```python
import torch

def _softmax(x, axis=-1):
    return torch.softmax(x, dim=axis)
def _gelu(x):
    return torch.nn.functional.gelu(x, approximate="tanh")
def _silu(x):
    return torch.nn.functional.silu(x)
def _sigmoid(x):
    return torch.sigmoid(x)
def _layernorm(x, axis=-1, eps=1e-5):
    m = x.mean(dim=axis, keepdim=True)
    v = x.var(dim=axis, keepdim=True, unbiased=False)
    return (x - m) / torch.sqrt(v + eps)
def _scatter_add(tgt, idx, src, axis=0):
    return tgt.clone().index_add_(axis, idx, src)
def _segment_sum(src, seg, n):
    out = torch.zeros((n,) + src.shape[1:], dtype=src.dtype)
    return out.index_add_(0, seg, src)
def _pad(x, pw):
    flat = tuple(v for pair in reversed(pw) for v in pair)
    return torch.nn.functional.pad(x, flat)

kernel_name = 'gated_mix__sliding_block__moe_arch_mod__prompt'

def setup_inputs():

    _w = (lambda a: (lambda t: t.to(torch.bfloat16) if t.is_floating_point() else t)(torch.as_tensor(a)))
    def _A_setup():
        B, S, D = 1, 2048, 576
        return {
            "x": _w((lambda *s: torch.randn(*s, dtype=torch.bfloat16) * 0.05)(B, S, D)),
            "wqkv": _w((lambda *s: torch.randn(*s, dtype=torch.bfloat16) * 0.8)(D, 3 * D)),
            "wo": _w((lambda *s: torch.randn(*s, dtype=torch.bfloat16) * 0.05)(D, D)),
        }
    _A_in = _A_setup()

    def _B_setup():
        B, S, D, F, C = 1, 2048, 576, 4608, 1
        return {
            "x": _w((lambda *s: torch.randn(*s, dtype=torch.bfloat16) * 0.05)(B, S, D)),
            "w_r": _w((lambda *s: torch.randn(*s, dtype=torch.bfloat16) * 3.2)(D)),
            "w_gate": _w((lambda *s: torch.randn(*s, dtype=torch.bfloat16) * 0.2)(D, F)),
            "w_up": _w((lambda *s: torch.randn(*s, dtype=torch.bfloat16) * 0.2)(D, F)),
            "w_down": _w((lambda *s: torch.randn(*s, dtype=torch.bfloat16) * 0.2)(F, D)),
        }
    _B_in = _B_setup()

    return {
        "A_x": _A_in["x"],
        "A_wqkv": _A_in["wqkv"],
        "A_wo": _A_in["wo"],
        "B_x": _B_in["x"],
        "B_w_r": _B_in["w_r"],
        "B_w_gate": _B_in["w_gate"],
        "B_w_up": _B_in["w_up"],
        "B_w_down": _B_in["w_down"],
        "gate_w": _w((lambda *s: torch.randn(*s, dtype=torch.bfloat16) * 0.05)(576) * 16.0),
    }

def reference(A_x, A_wqkv, A_wo, B_x, B_w_r, B_w_gate, B_w_up, B_w_down, gate_w):
    def _A_ref(x, wqkv, wo):
        B, S, D = x.shape
        H = 32; Dh = D // H; W = 256
        qkv = (lambda x, *d: x.permute(*d))((x @ wqkv).reshape(B, S, 3, H, Dh), 2, 0, 3, 1, 4)
        q, k, v = qkv[0], qkv[1], qkv[2]
        scores = torch.einsum("bhqd,bhkd->bhqk", q, k) * (Dh ** -0.5)
        idx = torch.arange(S)
        mask = (idx[:, None] - idx[None, :] >= 0) & (idx[:, None] - idx[None, :] < W)
        scores = torch.where(mask[None, None], scores, -1e9)
        p = _softmax(scores, axis=-1)
        o = torch.einsum("bhqk,bhkd->bhqd", p, v)
        return (lambda x, *d: x.permute(*d))(o, 0, 2, 1, 3).reshape(B, S, D) @ wo

    def _B_ref(x, w_r, w_gate, w_up, w_down):
        B, S, D = x.shape
        C = 1
        r = x @ w_r
        idx = torch.argsort(-r, axis=-1)[:, :C]
        idx_e = (lambda x, n, axis: torch.repeat_interleave(x, n, dim=axis))(idx.reshape(B, C, 1), D, axis=2)
        x_sel = (lambda x, i, axis: torch.take_along_dim(x, i, dim=axis))(x, idx_e, axis=1)
        g = _silu(x_sel @ w_gate)
        u = x_sel @ w_up
        y = (g * u) @ w_down
        r_sel = _sigmoid((lambda x, i, axis: torch.take_along_dim(x, i, dim=axis))(r, idx, axis=1))
        y = y * r_sel.reshape(B, C, 1)
        b_off = (torch.arange(B) * S).reshape(B, 1)
        flat_idx = (idx + b_off).reshape(B * C)
        zero = (x * 0.0).reshape(B * S, D)
        upd = _scatter_add(zero, flat_idx, y.reshape(B * C, D), axis=0)
        return x + upd.reshape(B, S, D)

    x = A_x
    g = _sigmoid((x * gate_w).sum(-1, keepdims=True))
    a = _A_ref(x, A_wqkv, A_wo)
    b = _B_ref(x, B_w_r, B_w_gate, B_w_up, B_w_down)
    return g * a + (1 - g) * b
```

```python
import re

TRANS = ("v_exp_f32", "v_log_f32", "v_rcp_f32", "v_rsq_f32", "v_sqrt_f32", "v_sin_f32", "v_cos_f32",
         "v_rcp_iflag_f32")
REG_RE = re.compile(r"(?<![\w.])([vsa])(?:\[(\d+):(\d+)\]|(\d+))(?![\w])")


def regs_of(tok):
    out = set()
    tok = tok.strip()
    for m in REG_RE.finditer(tok):
        k = m.group(1)
        if m.group(2) is not None:
            for i in range(int(m.group(2)), int(m.group(3)) + 1):
                out.add((k, i))
        else:
            out.add((k, int(m.group(4))))
    if re.search(r"\bvcc\b", tok):
        out.add(("s", "vcc"))
    if re.search(r"\bexec\b", tok):
        out.add(("s", "exec"))
    if re.search(r"\bm0\b", tok):
        out.add(("s", "m0"))
    return out


def mfma_passes(op):
    if "32x32x16" in op or "32x32x8" in op:
        return 8
    if "16x16x32" in op or "16x16x16" in op:
        return 4
    raise ValueError(op)


class Ins:
    def __init__(self, text):
        self.text = text
        body = text.split(";")[0].strip()
        self.is_label = body.endswith(":")
        self.is_dir = body.startswith(".") and not self.is_label
        self.op = ""
        self.dst = set()
        self.src = set()
        self.kind = "other"
        if self.is_label or self.is_dir or not body:
            self.kind = "none"
            return
        parts = body.split(None, 1)
        op = parts[0]
        self.op = op
        rest = parts[1] if len(parts) > 1 else ""
        ops = [o.strip() for o in re.split(r",(?![^\[]*\])", rest)] if rest else []
        mods = ""
        if ops:
            last = ops[-1].split(None, 1)
            ops[-1] = last[0]
            mods = last[1] if len(last) > 1 else ""
        self.ops = ops
        self.mods = mods
        R = [regs_of(o) for o in ops]
        allr = set().union(*R) if R else set()
        if op.startswith("v_mfma"):
            self.kind = "mfma"
            self.passes = mfma_passes(op)
            self.dst = R[0]
            self.a = R[1]
            self.b = R[2]
            self.c = R[3]
            self.src = R[1] | R[2] | R[3]
        elif op.startswith("v_cmp"):
            self.kind = "valu"
            self.dst = set(R[0])
            if op.startswith("v_cmpx"):
                self.dst.add(("s", "exec"))
            self.src = set().union(*R[1:])
        elif op.startswith("v_readfirstlane") or op.startswith("v_readlane"):
            self.kind = "valu"
            self.dst = R[0]
            self.src = set().union(*R[1:])
        elif op.startswith("v_permlane") and "swap" in op:
            self.kind = "valu"
            self.dst = R[0] | R[1]
            self.src = R[0] | R[1]
        elif op.startswith("v_"):
            self.kind = "valu"
            self.dst = set(R[0])
            k = 1
            if "_co_" in op or op.startswith("v_div_scale") or op.startswith("v_mad_u64"):
                self.dst |= R[1]
                k = 2
            self.src = set().union(*R[k:]) if len(R) > k else set()
            if op.startswith(("v_fmac", "v_dot2c", "v_writelane")) or "d16" in op or "_dpp" in op or "sdwa" in op:
                self.src |= R[0]
            if op.startswith("v_div_fmas"):
                self.src.add(("s", "vcc"))
        elif op.startswith(("buffer_", "global_", "flat_", "scratch_")):
            self.kind = "vmem"
            is_lds = (" lds" in (" " + mods)) or ("_lds_" in op)
            self.is_lds = is_lds
            if op in ("buffer_wbl2", "buffer_inv"):
                pass
            elif "store" in op or ("atomic" in op and "sc0" not in mods):
                self.src = allr
                self.store_data = R[0] if op.startswith("buffer_") else R[1]
                self.wide = ("x3" in op or "x4" in op)
            elif is_lds:
                self.src = allr | {("s", "m0")}
            else:
                self.dst = R[0]
                self.src = set().union(*R[1:])
                if "d16" in op or "atomic" in op:
                    self.src |= R[0]
        elif op.startswith("ds_"):
            self.kind = "ds"
            if op.startswith(("ds_read", "ds_bpermute", "ds_permute", "ds_swizzle")) or "_rtn" in op:
                self.dst = R[0]
                self.src = set().union(*R[1:])
                if "d16" in op:
                    self.src |= R[0]
            else:
                self.src = allr
        elif op.startswith(("s_load", "s_buffer_load", "s_memtime", "s_memrealtime")):
            self.kind = "smem"
            self.dst = R[0]
            self.src = set().union(*R[1:]) if len(R) > 1 else set()
        elif op.startswith("s_"):
            self.kind = "salu"
            if op.startswith(("s_cmp", "s_cbranch", "s_branch", "s_waitcnt", "s_barrier", "s_nop", "s_endpgm",
                              "s_setprio", "s_sleep", "s_bitcmp", "s_setpc")):
                self.src = allr
            else:
                self.dst = set(R[0]) if R else set()
                self.src = set().union(*R[1:]) if len(R) > 1 else set()
                if "saveexec" in op:
                    self.dst.add(("s", "exec"))
        self.states = 1
        if op == "s_nop":
            self.states = int(ops[0], 0) + 1

    def is_trans(self):
        return self.op.replace("_e32", "").replace("_e64", "") in TRANS

    def is_dpp(self):
        return "_dpp" in self.op


def need_states(p, c):
    n = 0
    vd = {r for r in p.dst if r[0] in "va"}
    sd = {r for r in p.dst if r[0] == "s"}
    if p.kind == "valu":
        if c.kind == "mfma" and vd & c.src:
            n = max(n, 2)
        if c.kind == "mfma" and ("s", "exec") in sd:
            n = max(n, 4)
        if c.kind == "valu":
            if p.is_trans() and not c.is_trans() and vd & c.src:
                n = max(n, 1)
            if p.is_trans() and c.is_trans() and vd & c.src:
                n = max(n, 1)
            if c.is_dpp() and vd & c.src:
                n = max(n, 2)
            if c.is_dpp() and ("s", "exec") in sd:
                n = max(n, 5)
            if c.op.startswith("v_permlane") and vd & c.src:
                n = max(n, 2)
            if c.op.startswith("v_permlane") and ("s", "exec") in sd:
                n = max(n, 4)
            if c.op.startswith(("v_readfirstlane", "v_readlane")) and vd & c.src:
                n = max(n, 1)
            if c.op.startswith(("v_readfirstlane", "v_readlane", "v_writelane")) and ("s", "exec") in sd:
                n = max(n, 4)
            if sd & c.src:
                n = max(n, 4 if c.op.startswith(("v_readlane", "v_writelane", "v_div_fmas")) else 2)
            if ("sdwa" in p.op or "op_sel" in p.mods) and vd & (c.src | c.dst):
                n = max(n, 1)
        if c.kind == "vmem" and sd & c.src:
            n = max(n, 5)
        if c.kind in ("salu", "smem") and sd & c.src:
            n = max(n, 1)
    if p.kind == "salu":
        if ("s", "m0") in sd and c.kind in ("vmem", "ds") and ("s", "m0") in c.src:
            n = max(n, 1)
    if p.kind == "vmem" and getattr(p, "wide", False):
        if c.dst & p.store_data:
            n = max(n, 2 if c.kind == "valu" else 1)
    if p.kind == "mfma":
        P = p.passes
        tbl_ab = {2: 5, 4: 8, 8: 12, 16: 20}[P]
        tbl_part = {2: 4, 4: 6, 8: 10, 16: 18}[P]
        tbl_war = {2: 1, 4: 3, 8: 7, 16: 15}[P]
        if c.kind == "mfma":
            if p.dst & (c.a | c.b):
                n = max(n, tbl_ab)
            if p.dst & c.c:
                if not (p.dst == c.c and p.passes == c.passes):
                    n = max(n, tbl_part)
            elif p.dst & c.dst:
                n = max(n, tbl_part)
        elif c.kind in ("valu", "vmem", "ds"):
            if p.dst & (c.src | c.dst):
                n = max(n, tbl_ab)
            if c.kind == "valu" and (p.c & c.dst):
                n = max(n, tbl_war)
    return n


def fix_hazards(lines, window=24):
    out = []
    hist = []
    nins = 0
    for ln in lines:
        ins = Ins(ln)
        if ins.kind == "none":
            out.append(ln)
            continue
        need = 0
        dist = 0
        for p in reversed(hist):
            r = need_states(p, ins)
            if r > dist:
                need = max(need, r - dist)
            dist += p.states
            if dist >= window:
                break
        while need > 0:
            k = min(need, 16)
            nop = Ins("s_nop %d" % (k - 1))
            out.append("  s_nop %d" % (k - 1))
            hist.append(nop)
            need -= k
            nins += 1
        out.append(ln)
        hist.append(ins)
        if ins.op in ("s_branch", "s_endpgm", "s_setpc_b64"):
            hist = []
        if len(hist) > 64:
            hist = hist[-40:]
    return out, nins


class Asm:
    def __init__(self):
        self.lines = []
        self.uid = 0

    def __call__(self, s):
        for l in s.split("\n"):
            l = l.strip()
            if l:
                self.lines.append(("" if l.endswith(":") else "  ") + l)

    def label(self, name):
        self.lines.append(name + ":")

    def newlabel(self, base):
        self.uid += 1
        return "L_%s_%d" % (base, self.uid)

    def c(self, text):
        self.lines.append("  ; " + text)


def vr(a, n=1):
    return "v%d" % a if n == 1 else "v[%d:%d]" % (a, a + n - 1)


def sr(a, n=1):
    return "s%d" % a if n == 1 else "s[%d:%d]" % (a, a + n - 1)
```

```python
from asmdsl import vr, sr
import layout as L

KB = 0
VB = 27648
QB = 55296
ONES = 64512
K2_LDS = 66560

vK, vKt, vV, vStep = 1, 2, 3, 4
QM, QT = 6, 10
MSK = 12
KF = (20, 26)
VF = (32, 40)
PP = (48, 56)
SS = (64, 80)
OO = 96
T = 112


def k_reads(i, base_k=vK, base_t=vKt, step=2304):
    s = KF[i & 1]
    return ["ds_read_b64 %s, v%d offset:%d" % (vr(s, 2), base_k, step * i),
            "ds_read_b64 %s, v%d offset:%d" % (vr(s + 2, 2), base_k, step * i + 8),
            "ds_read_b64 %s, v%d offset:%d" % (vr(s + 4, 2), base_t, step * i)]


def v_reads(i):
    s = VF[i & 1]
    return ["ds_read_b64_tr_b16 %s, v%d offset:%d" % (vr(s + 2 * q, 2), vV, 576 * q) for q in range(4)]


def qk(i):
    s, d = KF[i & 1], vr(SS[i & 1], 16)
    return ["v_mfma_f32_32x32x16_bf16 %s, %s, %s, 0" % (d, vr(s, 4), vr(QM, 4)),
            "v_mfma_f32_32x32x8_bf16 %s, %s, %s, %s" % (d, vr(s + 4, 2), vr(QT, 2), d)]


def pv(i, first):
    s, p, o = VF[i & 1], PP[i & 1], vr(OO, 16)
    return ["v_mfma_f32_32x32x16_bf16 %s, %s, %s, %s" % (o, vr(s, 4), vr(p, 4), "0" if first else o),
            "v_mfma_f32_32x32x16_bf16 %s, %s, %s, %s" % (o, vr(s + 4, 4), vr(p + 4, 4), o)]


def attn_loop(a, masked):
    for i in range(9):
        S, P = SS[i & 1], PP[i & 1]
        ex = ["v_exp_f32 v%d, v%d" % (S + r, S + r) for r in range(16)]
        cv = ["v_cvt_pk_bf16_f32 v%d, v%d, v%d" % (P + q, S + 2 * q, S + 2 * q + 1) for q in range(8)]
        if i == 0:
            mk = ["v_bfi_b32 v%d, v%d, 0, v%d" % (P + q, MSK + q, P + q) for q in range(8)]
        elif i == 8:
            mk = ["v_and_b32 v%d, v%d, v%d" % (P + q, MSK + q, P + q) for q in range(8)]
        else:
            mk = []
        if masked and i < 8:
            mk = mk + ["v_and_b32 v%d, s40, v%d" % (P + q, P + q) for q in range(8)]
            a("s_cmp_le_i32 s41, %d" % i)
            a("s_cselect_b32 s40, -1, 0")
        m1 = qk(i + 1) if i < 8 else []
        m2 = pv(i - 1, i == 1) if i > 0 else []
        a("s_waitcnt lgkmcnt(%d)" % (4 if 0 < i < 8 else 0))
        if m1:
            a(m1[0])
        for x in ex[0:4]:
            a(x)
        if m1:
            a(m1[1])
        if i + 2 <= 8:
            for x in k_reads(i + 2):
                a(x)
        for x in ex[4:8]:
            a(x)
        for x in cv[0:2]:
            a(x)
        if m2:
            a(m2[0])
        for x in ex[8:12]:
            a(x)
        for x in cv[2:4]:
            a(x)
        if m2:
            a(m2[1])
        if i + 1 <= 8:
            a("v_add_u32 v%d, v%d, v%d" % (vV, vV, vStep))
            for x in v_reads(i + 1):
                a(x)
        for x in ex[12:16]:
            a(x)
        for x in cv[4:8]:
            a(x)
        for x in mk:
            a(x)
    a("s_waitcnt lgkmcnt(0)")
    for x in pv(8, False):
        a(x)


def k2(a, G):
    f32, srd, srd_off, OPT = G.f32, G.srd, G.srd_off, G.OPT
    a.label("k2_kernel")
    a("s_cmp_ge_u32 s2, 328")
    a("s_cbranch_scc1 L_k2_end")
    G.stamp_init(a)
    G.stamp(a, 0)
    a("s_load_dwordx2 s[8:9], s[0:1], 88")
    a("v_lshrrev_b32 v1, 6, v0")
    a("v_readfirstlane_b32 s3, v1")
    a("s_cmp_lt_u32 s2, 72")
    a("s_cbranch_scc1 L_k2_moe")
    a("v_and_b32 v0, 63, v0")
    a("s_sub_u32 s30, s2, 72")
    a("s_and_b32 s31, s30, 3")
    a("s_bfe_u32 s32, s30, 0x20003")
    a("s_lshl_b32 s31, s31, 2")
    a("s_add_u32 s31, s31, s32")
    a("s_bfe_u32 s32, s30, 0x10002")
    a("s_lshl_b32 s32, s32, 3")
    a("s_lshr_b32 s33, s30, 5")
    a("s_add_u32 s32, s32, s33")
    a("s_mul_i32 s33, s31, %d" % L.PAIR_BYTES)
    a("s_mul_i32 s34, s32, 9216")
    a("s_add_u32 s33, s33, s34")
    a("s_lshl_b32 s34, s3, 10")
    a("s_add_u32 s33, s33, s34")
    a("s_add_u32 s35, s33, %d" % (16 * L.PAIR_BYTES - 18432 - KB))
    a("s_add_u32 s36, s33, %d" % (32 * L.PAIR_BYTES - 18432 - VB))
    a("s_sub_u32 s37, s33, %d" % QB)
    a("v_lshlrev_b32 v1, 4, v0")
    a("s_waitcnt lgkmcnt(0)")
    srd(a, 16, 8, L.QKV_BYTES)
    for j in range(8):
        if j <= 2:
            src = "s35"
        elif j == 3:
            a("s_cmp_lt_u32 s3, 3")
            a("s_cselect_b32 s38, s35, s36")
            src = "s38"
        elif j <= 5:
            src = "s36"
        elif j == 6:
            a("s_cmp_lt_u32 s3, 6")
            a("s_cselect_b32 s38, s36, s37")
            src = "s38"
        else:
            src = "s37"
            a("s_cmp_eq_u32 s3, 7")
            a("s_cbranch_scc1 L_k2_dmadone")
        a("s_add_u32 m0, s34, %d" % (8192 * j))
        a("s_add_u32 s39, %s, %d" % (src, 8192 * j))
        a("buffer_load_dwordx4 v1, s[16:19], s39 offen lds")
    a.label("L_k2_dmadone")
    a("v_and_b32 v2, 3, v0")
    a("v_mul_u32_u24 v2, 576, v2")
    a("v_mov_b32 v4, 0x3f803f80")
    a("v_mov_b32 v5, v4")
    a("ds_write_b64 v2, v[4:5] offset:%d" % ONES)
    a("s_and_b32 s42, s3, 1")
    a("s_lshr_b32 s43, s3, 1")
    a("s_mul_i32 s44, s43, 2304")
    a("s_mul_i32 s45, s42, 40")
    a("v_and_b32 v%d, 31, v0" % T)
    a("v_lshrrev_b32 v%d, 5, v0" % (T + 1))
    a("v_mul_u32_u24 v%d, 72, v%d" % (vKt, T))
    a("v_add_u32 v%d, s44, v%d" % (vKt, vKt))
    a("v_lshl_add_u32 v%d, v%d, 4, v%d" % (vK, T + 1, vKt))
    a("v_add_u32 v%d, s45, v%d" % (vK, vK))
    a("v_add_u32 v%d, 32, v%d" % (vKt, vKt))
    a("v_bfe_u32 v%d, v0, 2, 2" % (T + 2))
    a("v_lshl_add_u32 v%d, v%d, 2, v%d" % (T + 2, T + 1, T + 2))
    a("v_mul_u32_u24 v%d, 72, v%d" % (T + 2, T + 2))
    a("s_add_u32 s46, s44, %d" % VB)
    a("v_add_u32 v%d, s46, v%d" % (T + 2, T + 2))
    a("v_and_b32 v%d, 3, v0" % (T + 3))
    a("v_lshlrev_b32 v%d, 3, v%d" % (T + 4, T + 3))
    a("v_add_u32 v%d, s45, v%d" % (T + 4, T + 4))
    a("v_and_b32 v%d, 16, v0" % (T + 5))
    a("v_cmp_eq_u32 vcc, 0, v%d" % (T + 5))
    a("v_cndmask_b32 v%d, 32, v%d, vcc" % (T + 4, T + 4))
    a("v_add_u32 v%d, v%d, v%d" % (vV, T + 2, T + 4))
    a("v_and_b32 v%d, 19, v0" % (T + 5))
    a("v_cmp_lt_u32 vcc, 16, v%d" % (T + 5))
    a("v_mov_b32 v%d, %d" % (T + 6, ONES))
    a("v_cndmask_b32 v%d, v%d, v%d, vcc" % (vV, vV, T + 6))
    a("v_mov_b32 v%d, 2304" % (T + 6))
    a("v_cndmask_b32 v%d, v%d, 0, vcc" % (vStep, T + 6))
    a("v_lshlrev_b32 v%d, 2, v%d" % (T + 2, T + 1))
    a("v_sub_u32 v%d, v%d, v%d" % (T + 2, T, T + 2))
    a("v_mov_b32 v%d, 0xffff" % (T + 3))
    for q in range(8):
        kl = 8 * (q >> 1) + 2 * (q & 1)
        a("v_cmp_le_i32 vcc, %d, v%d" % (kl, T + 2))
        a("v_cndmask_b32 v%d, 0, v%d, vcc" % (MSK + q, T + 3))
        a("v_cmp_le_i32 vcc, %d, v%d" % (kl + 1, T + 2))
        a("v_cndmask_b32 v%d, v%d, -1, vcc" % (MSK + q, MSK + q))
    a("s_lshl_b32 s41, s32, 2")
    a("s_add_u32 s41, s41, s43")
    a("s_sub_i32 s41, 8, s41")
    a("s_waitcnt vmcnt(0) lgkmcnt(0)")
    a("s_barrier")
    G.stamp(a, 1)
    a.label("L_k2_start")
    a("ds_read_b64 %s, v%d offset:%d" % (vr(QM, 2), vK, QB))
    a("ds_read_b64 %s, v%d offset:%d" % (vr(QM + 2, 2), vK, QB + 8))
    a("ds_read_b64 %s, v%d offset:%d" % (vr(QT, 2), vKt, QB))
    for x in k_reads(0) + k_reads(1) + v_reads(0):
        a(x)
    a("v_cmp_gt_u32 vcc, 32, v0")
    a("s_cmp_eq_u32 s42, 0")
    a("s_cselect_b64 s[46:47], vcc, 0")
    a("s_cselect_b64 s[48:49], 0, vcc")
    a("s_waitcnt lgkmcnt(7)")
    a("v_cndmask_b32 v%d, 0, v%d, s[46:47]" % (QT, QT))
    a("v_cndmask_b32 v%d, 0, v%d, s[48:49]" % (QT + 1, QT + 1))
    for x in qk(0):
        a(x)
    a("s_cmp_lt_u32 s32, 2")
    a("s_cbranch_scc1 L_k2_masked")
    attn_loop(a, False)
    a("s_branch L_k2_check")
    a.label("L_k2_masked")
    a("s_nop 7")
    attn_loop(a, True)
    a.label("L_k2_check")
    G.stamp(a, 2)
    a("s_nop 7")
    a("s_nop 3")
    a("v_max3_f32 v%d, abs(v%d), abs(v%d), abs(v%d)" % (T, OO, OO + 1, OO + 2))
    a("v_max3_f32 v%d, abs(v%d), abs(v%d), v%d" % (T, OO + 3, OO + 4, T))
    a("v_max3_f32 v%d, abs(v%d), abs(v%d), v%d" % (T, OO + 5, OO + 6, T))
    a("v_max3_f32 v%d, abs(v%d), abs(v%d), v%d" % (T, OO + 7, OO + 8, T))
    a("v_max3_f32 v%d, abs(v%d), abs(v%d), v%d" % (T, OO + 9, OO + 10, T))
    a("v_max_f32 v%d, abs(v%d), v%d" % (T, OO + 11, T))
    for k in range(0, 12, 2):
        a("v_cmp_o_f32 vcc, v%d, v%d" % (OO + k, OO + k + 1))
        a("s_mov_b64 s[50:51], vcc" if k == 0 else "s_and_b64 s[50:51], s[50:51], vcc")
    a("s_mov_b32 s46, %s" % f32(2.0 ** 126))
    a("v_cmp_gt_f32 vcc, s46, v%d" % T)
    a("s_and_b64 s[50:51], s[50:51], vcc")
    a("s_mov_b32 s46, %s" % f32(2.0 ** 60))
    a("v_cmp_gt_f32 vcc, s46, v%d" % (OO + 12))
    a("s_and_b64 s[50:51], s[50:51], vcc")
    a("s_mov_b32 s46, %s" % f32(2.0 ** -60))
    a("v_cmp_lt_f32 vcc, s46, v%d" % (OO + 12))
    a("s_and_b64 s[50:51], s[50:51], vcc")
    a("s_cmp_eq_u64 s[50:51], -1")
    a("s_cbranch_scc0 L_k2_slow")
    a.label("L_k2_fin")
    a("v_rcp_f32 v%d, v%d" % (T, OO + 12))
    a("s_cmp_eq_u32 s42, 0")
    a("s_cbranch_scc1 L_k2_fa")
    a("v_mov_b32 v%d, v%d" % (OO + 8, OO + 10))
    a("v_mov_b32 v%d, v%d" % (OO + 9, OO + 11))
    a.label("L_k2_fa")
    for k in range(10):
        a("v_mul_f32 v%d, v%d, v%d" % (OO + k, OO + k, T))
    for q in range(5):
        a("v_cvt_pk_bf16_f32 v%d, v%d, v%d" % (T + 4 + q, OO + 2 * q, OO + 2 * q + 1))
    a("s_add_u32 s24, s8, %d" % L.WS_O)
    a("s_addc_u32 s25, s9, 0")
    a("s_and_b32 s25, s25, 0xffff")
    a("s_mov_b32 s26, %d" % (128 * 18432))
    a("s_mov_b32 s27, 0x20000")
    a("s_lshl_b32 s46, s32, 3")
    a("s_lshl_b32 s47, s43, 1")
    a("s_add_u32 s46, s46, s47")
    a("s_mul_i32 s46, s46, 18432")
    a("v_bfe_u32 v%d, v0, 4, 1" % (T + 1))
    a("v_mul_u32_u24 v%d, 18432, v%d" % (T + 1, T + 1))
    a("v_and_b32 v%d, 15, v0" % (T + 2))
    a("v_lshl_add_u32 v%d, v%d, 4, v%d" % (T + 1, T + 2, T + 1))
    a("v_lshrrev_b32 v%d, 5, v0" % (T + 2))
    a("v_lshl_add_u32 v%d, v%d, 8, v%d" % (T + 2, T + 2, T + 1))
    a("s_lshl_b32 s47, s31, 10")
    a("s_lshl_b32 s48, s42, 9")
    a("s_add_u32 s47, s47, s48")
    a("s_add_u32 s47, s47, s46")
    a("buffer_store_dwordx4 %s, v%d, s[24:27], s47 offen %s" % (vr(T + 4, 4), T + 2, OPT["st2"]))
    a("s_lshr_b32 s47, s31, 3")
    a("s_lshl_b32 s47, s47, 10")
    a("s_bfe_u32 s48, s31, 0x20001")
    a("s_lshl_b32 s48, s48, 8")
    a("s_add_u32 s47, s47, s48")
    a("s_and_b32 s48, s31, 1")
    a("s_lshl_b32 s48, s48, 3")
    a("s_add_u32 s47, s47, s48")
    a("s_lshl_b32 s48, s42, 2")
    a("s_add_u32 s47, s47, s48")
    a("s_add_u32 s47, s47, s46")
    a("s_mov_b32 exec_hi, 0")
    a("s_add_u32 s47, s47, 16384")
    a("buffer_store_dword v%d, v%d, s[24:27], s47 offen %s" % (T + 8, T + 1, OPT["st2"]))
    if OPT["stamp"]:
        G.stamp(a, 3)
        a("s_waitcnt vmcnt(0)")
        G.stamp(a, 4)
        a("s_cmp_eq_u32 s3, 0")
        a("s_cbranch_scc0 L_k2_end")
        G.stamp_flush(a, 1, 8, 30)
    a("s_endpgm")

    a.label("L_k2_slow")
    vKs, vKts, vM, vD0, vNeg = T + 8, T + 9, T + 10, T + 11, T + 12
    a("v_and_b32 v%d, 31, v0" % T)
    a("v_lshrrev_b32 v%d, 5, v0" % (T + 1))
    a("v_lshlrev_b32 v%d, 2, v%d" % (vD0, T + 1))
    a("v_sub_u32 v%d, v%d, v%d" % (vD0, vD0, T))
    a("v_mov_b32 v%d, 0xff800000" % vNeg)
    a("v_mov_b32 v%d, v%d" % (vM, vNeg))
    a("v_mul_u32_u24 v%d, 8, v%d" % (T, vStep))
    a("v_sub_u32 v%d, v%d, v%d" % (vV, vV, T))
    for r in range(16):
        a("v_mov_b32 v%d, 0" % (OO + r))
    for ps in range(2):
        lab = "L_k2_sp%d" % ps
        a("v_mov_b32 v%d, v%d" % (vKs, vK))
        a("v_mov_b32 v%d, v%d" % (vKts, vKt))
        a("s_mov_b32 s46, 0")
        a.label(lab)
        for x in k_reads(0, vKs, vKts):
            a(x)
        if ps == 1:
            for x in v_reads(0):
                a(x)
        a("s_mov_b32 s47, -31")
        a("s_mov_b32 s48, 62")
        a("s_cmp_eq_u32 s46, 0")
        a("s_cselect_b32 s47, 1, s47")
        a("s_cselect_b32 s48, 30, s48")
        a("s_cmp_eq_u32 s46, 8")
        a("s_cselect_b32 s48, 31, s48")
        a("s_cmp_lt_i32 s46, s41")
        a("s_cselect_b32 s47, 64, s47")
        a("s_cselect_b32 s48, 0, s48")
        a("s_waitcnt lgkmcnt(0)")
        for x in qk(0):
            a(x)
        a("v_subrev_u32 v%d, s47, v%d" % (T, vD0))
        for r in range(16):
            a("v_add_u32 v%d, %d, v%d" % (T + 1, 8 * (r >> 2) + (r & 3), T))
            a("v_cmp_ge_u32 vcc, s48, v%d" % (T + 1))
            a("v_cndmask_b32 v%d, v%d, v%d, vcc" % (SS[0] + r, vNeg, SS[0] + r))
            if ps == 0:
                a("v_max_f32 v%d, v%d, v%d" % (vM, vM, SS[0] + r))
            else:
                a("v_sub_f32 v%d, v%d, v%d" % (SS[0] + r, SS[0] + r, vM))
                a("v_exp_f32 v%d, v%d" % (SS[0] + r, SS[0] + r))
        if ps == 1:
            for q in range(8):
                a("v_cvt_pk_bf16_f32 v%d, v%d, v%d" % (PP[0] + q, SS[0] + 2 * q, SS[0] + 2 * q + 1))
            for x in pv(0, False):
                a(x)
            a("v_add_u32 v%d, v%d, v%d" % (vV, vV, vStep))
        a("v_add_u32 v%d, 2304, v%d" % (vKs, vKs))
        a("v_add_u32 v%d, 2304, v%d" % (vKts, vKts))
        a("s_add_u32 s46, s46, 1")
        a("s_cmp_lt_u32 s46, 9")
        a("s_nop 7")
        a("s_nop 7")
        a("s_cbranch_scc1 %s" % lab)
        if ps == 0:
            a("v_mov_b32 v%d, v%d" % (T, vM))
            a("v_permlane32_swap_b32 v%d, v%d" % (T, vM))
            a("v_max_f32 v%d, v%d, v%d" % (vM, vM, T))
    a("s_branch L_k2_fin")

    a.label("L_k2_moe")
    GW, UW, DW = 20, 56, 92
    XS, SEL, ACG = 2, 12, 16
    RED, RED2, KEYS = 0, 8192, 45056
    a("s_load_dwordx4 s[12:15], s[0:1], 40")
    a("s_load_dwordx2 s[10:11], s[0:1], 56")
    a("s_load_dwordx2 s[4:5], s[0:1], 0")
    a("v_lshlrev_b32 v1, 4, v0")
    a("v_add_u32 v1, %d, v1" % L.WS_KEY)
    a("v_and_b32 v0, 63, v0")
    a("v_lshrrev_b32 v2, 3, v0")
    a("v_and_b32 v3, 7, v0")
    a("v_lshlrev_b32 v3, 4, v3")
    a("v_mul_u32_u24 v4, 9216, v2")
    a("v_add_u32 v4, v4, v3")
    a("v_mul_u32_u24 v5, 1152, v2")
    a("v_add_u32 v5, v5, v3")
    a("s_lshl_b32 s30, s2, 7")
    a("s_sub_u32 s31, %d, s30" % (576 * 9216))
    a("s_mul_i32 s32, s2, %d" % (64 * 1152))
    a("s_mul_i32 s33, s3, %d" % (72 * 9216))
    a("s_mul_i32 s34, s3, %d" % (8 * 1152))
    a("s_waitcnt lgkmcnt(0)")
    a("global_load_dwordx4 v[12:15], v1, s[8:9]")
    srd_off(a, 16, 12, "s30", "s31")
    srd_off(a, 20, 14, "s30", "s31")
    srd_off(a, 24, 10, "s32", 64 * 1152)
    for i in range(9):
        a("s_add_u32 s35, s33, %d" % (8 * 9216 * i))
        a("buffer_load_dwordx4 %s, v4, s[16:19], s35 offen nt" % vr(GW + 4 * i, 4))
        a("buffer_load_dwordx4 %s, v4, s[20:23], s35 offen nt" % vr(UW + 4 * i, 4))
    for i in range(9):
        a("buffer_load_dwordx4 %s, v5, s[24:27], s34 offen offset:%d nt" % (vr(DW + 4 * i, 4), 128 * i))
    srd(a, 16, 4, 2048 * 1152)
    a("s_waitcnt vmcnt(27)")
    a("v_max3_u32 v12, v12, v13, v14")
    a("v_max_u32 v12, v12, v15")
    for mod in ("row_shr:1 row_mask:0xf", "row_shr:2 row_mask:0xf", "row_shr:4 row_mask:0xf", "row_shr:8 row_mask:0xf",
                "row_bcast:15 row_mask:0xa", "row_bcast:31 row_mask:0xc"):
        a("v_max_u32_dpp v12, v12, v12 %s bank_mask:0xf" % mod)
    a("v_readlane_b32 s36, v12, 63")
    a("s_lshl_b32 s37, s3, 2")
    a("v_mov_b32 v13, s37")
    a("v_mov_b32 v12, s36")
    a("ds_write_b32 v13, v12 offset:%d" % KEYS)
    a("v_mov_b32 v11, 0")
    a("s_waitcnt lgkmcnt(0)")
    a("s_barrier")
    a("ds_read_b128 v[12:15], v11 offset:%d" % KEYS)
    a("ds_read_b128 v[16:19], v11 offset:%d" % (KEYS + 16))
    a("s_waitcnt lgkmcnt(0)")
    a("v_max3_u32 v12, v12, v13, v14")
    a("v_max3_u32 v12, v12, v15, v16")
    a("v_max3_u32 v12, v12, v17, v18")
    a("v_max_u32 v12, v12, v19")
    a("v_readfirstlane_b32 s36, v12")
    a("s_and_b32 s36, s36, 0x7ff")
    a("s_sub_u32 s36, 2047, s36")
    G.stamp(a, 1)
    a("s_mul_i32 s37, s36, 1152")
    a("s_mul_i32 s38, s3, 144")
    a("s_add_u32 s37, s37, s38")
    a("v_lshlrev_b32 v11, 1, v2")
    for i in range(9):
        a("buffer_load_ushort v%d, v11, s[16:19], s37 offen offset:%d" % (XS + i, 16 * i))
    a("s_lshl_b32 s38, s36, 2")
    a("s_add_u32 s38, s38, %d" % L.WS_R)
    a("s_load_dword s39, s[8:9], s38")
    a("v_and_b32 v1, 1, v0")
    a("v_lshlrev_b32 v1, 4, v1")
    a("v_bfe_u32 v11, v0, 1, 2")
    for q in range(4):
        a("v_cmp_eq_u32 s[%d:%d], %d, v11" % (40 + 2 * q, 41 + 2 * q, q))
    a("s_waitcnt vmcnt(0)")
    G.stamp(a, 2)
    for i in range(9):
        a("v_lshlrev_b32 v11, v1, v%d" % (XS + i))
        for q in range(4):
            a("v_cndmask_b32 v%d, 0, v11, s[%d:%d]" % (SEL + q, 40 + 2 * q, 41 + 2 * q))
        a("v_mfma_f32_16x16x32_bf16 %s, %s, %s, %s" % (vr(ACG, 4), vr(GW + 4 * i, 4), vr(SEL, 4), "0" if i == 0 else vr(ACG, 4)))
        a("v_mfma_f32_16x16x32_bf16 %s, %s, %s, %s" % (vr(GW, 4), vr(UW + 4 * i, 4), vr(SEL, 4), "0" if i == 0 else vr(GW, 4)))
    a("v_lshrrev_b32 v2, 5, v0")
    a("v_bfe_u32 v3, v0, 3, 1")
    a("v_cmp_eq_u32 s[48:49], v2, v3")
    a("v_bfe_u32 v4, v0, 4, 1")
    a("v_lshlrev_b32 v4, 7, v4")
    a("v_and_b32 v5, 7, v0")
    a("v_lshl_add_u32 v4, v5, 2, v4")
    a("s_lshl_b32 s37, s3, 1")
    a("v_add_u32 v3, s37, v3")
    a("v_lshl_add_u32 v6, v3, 8, v4")
    a("v_mul_u32_u24 v7, 2304, v3")
    a("v_add_u32 v7, v7, v4")
    a("s_mov_b64 exec, s[48:49]")
    for r in range(4):
        a("ds_write_b32 v6, v%d offset:%d" % (ACG + r, RED + 32 * r))
        a("ds_write_b32 v6, v%d offset:%d" % (GW + r, RED + 4096 + 32 * r))
    a("s_mov_b64 exec, -1")
    a("v_lshrrev_b32 v8, 3, v0")
    a("v_lshlrev_b32 v8, 2, v8")
    a("v_lshl_add_u32 v8, v5, 9, v8")
    a("s_lshl_b32 s37, s3, 5")
    a("v_add_u32 v8, s37, v8")
    a("v_add_u32 v9, 4096, v8")
    a("s_waitcnt lgkmcnt(0)")
    a("s_barrier")
    a("ds_read2_b32 v[12:13], v8 offset0:0 offset1:64")
    a("ds_read2_b32 v[14:15], v9 offset0:0 offset1:64")
    a("s_waitcnt lgkmcnt(0)")
    a("v_add_f32 v12, v12, v13")
    a("v_add_f32 v14, v14, v15")
    for mod in ("quad_perm:[1,0,3,2]", "quad_perm:[2,3,0,1]", "row_half_mirror"):
        a("v_add_f32_dpp v12, v12, v12 %s row_mask:0xf bank_mask:0xf" % mod)
        a("v_add_f32_dpp v14, v14, v14 %s row_mask:0xf bank_mask:0xf" % mod)
    G.bf16_round(a, 12, 12)
    G.bf16_round(a, 14, 14)
    G.sigmoid(a, 13, 12)
    a("v_mul_f32 v12, v12, v13")
    G.bf16_round(a, 12, 12)
    a("v_mul_f32 v12, v12, v14")
    a("v_cvt_pk_bf16_f32 v11, v12, v12")
    a("v_and_b32 v11, 0xffff, v11")
    a("v_lshlrev_b32 v11, v1, v11")
    for q in range(4):
        a("v_cndmask_b32 v%d, 0, v11, s[%d:%d]" % (SEL + q, 40 + 2 * q, 41 + 2 * q))
    for i in range(9):
        a("v_mfma_f32_16x16x32_bf16 %s, %s, %s, 0" % (vr(UW + 4 * i, 4), vr(DW + 4 * i, 4), vr(SEL, 4)))
    a("s_mov_b64 exec, s[48:49]")
    for i in range(9):
        for r in range(4):
            a("ds_write_b32 v7, v%d offset:%d" % (UW + 4 * i + r, RED2 + 256 * i + 32 * r))
    a("s_mov_b64 exec, -1")
    a("s_lshl_b32 s37, s3, 10")
    a("v_lshlrev_b32 v8, 4, v0")
    a("v_add_u32 v8, s37, v8")
    a("s_waitcnt lgkmcnt(0)")
    a("s_barrier")
    a("s_cmp_gt_u32 s3, 2")
    a("s_cbranch_scc1 L_k2_end")
    a("v_cmp_gt_u32 vcc, 2304, v8")
    a("s_and_b64 exec, exec, vcc")
    for p in range(16):
        a("ds_read_b128 %s, v8 offset:%d" % (vr(20 + 4 * p, 4), RED2 + 2304 * p))
    a("s_mul_i32 s37, s2, 2304")
    a("s_add_u32 s37, s37, %d" % L.WS_YP)
    a("v_add_u32 v8, s37, v8")
    a("s_waitcnt lgkmcnt(0)")
    for w in (8, 4, 2, 1):
        for p in range(w):
            for h in range(2):
                a("v_pk_add_f32 %s, %s, %s" % (vr(20 + 4 * p + 2 * h, 2), vr(20 + 4 * p + 2 * h, 2), vr(20 + 4 * (p + w) + 2 * h, 2)))
    a("global_store_dwordx4 v8, v[20:23], s[8:9]")
    G.stamp(a, 3)
    a("s_or_b32 s37, s2, s3")
    a("s_cmp_eq_u32 s37, 0")
    a("s_cbranch_scc0 L_k2_mst")
    a("v_mov_b32 v12, s39")
    G.bf16_round(a, 12, 12)
    G.sigmoid(a, 13, 12)
    G.bf16_round(a, 13, 13)
    a("v_mov_b32 v12, s36")
    a("v_mov_b32 v8, %d" % L.WS_SEL)
    a("s_mov_b64 exec, 1")
    a("global_store_dwordx2 v8, v[12:13], s[8:9]")
    a.label("L_k2_mst")
    if OPT["stamp"]:
        a("s_cmp_eq_u32 s3, 0")
        a("s_cbranch_scc0 L_k2_end")
        G.stamp_flush(a, 3, 8, 30)
    a.label("L_k2_end")
    a("s_endpgm")
```

```python
from asmdsl import vr, sr
import layout as L

STG = 73728
YB = STG + 5 * 2304
K3_LDS = YB + 256


def k3(a, G):
    f32, srd, srd_off, OPT = G.f32, G.srd, G.srd_off, G.OPT
    OF = 64
    ACC = 48
    WFR = (16, 32)
    XR = 136
    GR = 144
    YP = 112
    a.label("k3_kernel")
    a("s_cmp_ge_u32 s2, 234")
    a("s_cbranch_scc1 L_k3_end")
    G.stamp_init(a)
    G.stamp(a, 0)
    a("s_load_dwordx2 s[8:9], s[0:1], 88")
    a("s_load_dwordx2 s[4:5], s[0:1], 0")
    a("s_load_dwordx2 s[6:7], s[0:1], 16")
    a("s_load_dwordx2 s[10:11], s[0:1], 72")
    a("v_lshrrev_b32 v1, 6, v0")
    a("v_and_b32 v0, 63, v0")
    a("v_readfirstlane_b32 s3, v1")
    a("s_lshr_b32 s30, s2, 3")
    a("s_mul_i32 s31, s30, 57")
    a("s_lshr_b32 s31, s31, 9")
    a("s_mul_i32 s32, s31, 9")
    a("s_sub_u32 s32, s30, s32")
    a("s_lshl_b32 s31, s31, 3")
    a("s_and_b32 s33, s2, 7")
    a("s_add_u32 s31, s31, s33")
    a("s_sub_u32 s33, s2, 216")
    a("s_and_b32 s34, s33, 1")
    a("s_add_u32 s34, s34, 24")
    a("s_lshr_b32 s33, s33, 1")
    a("s_cmp_ge_u32 s2, 216")
    a("s_cselect_b32 s31, s34, s31")
    a("s_cselect_b32 s32, s33, s32")
    a("s_mul_i32 s33, s31, 5")
    a("s_add_u32 s33, s33, s3")
    a("s_mul_i32 s34, s33, 18432")
    a("s_lshl_b32 s35, s32, 7")
    a("s_sub_u32 s36, %d, s35" % (576 * 1152))
    a("v_lshlrev_b32 v1, 4, v0")
    a("v_lshrrev_b32 v2, 3, v0")
    a("v_and_b32 v3, 7, v0")
    a("v_lshrrev_b32 v4, 4, v0")
    a("v_lshlrev_b32 v4, 1, v4")
    a("v_xor_b32 v4, v4, v3")
    a("v_mul_u32_u24 v5, 1152, v2")
    a("v_lshl_add_u32 v4, v4, 4, v5")
    a("v_lshl_add_u32 v5, v3, 4, v5")
    a("s_waitcnt lgkmcnt(0)")
    a("s_load_dwordx2 s[12:13], s[8:9], %d" % L.WS_SEL if L.WS_SEL < (1 << 20) else "s_mov_b32 s40, %d" % L.WS_SEL)
    a("s_load_dwordx2 s[12:13], s[8:9], s40")
    srd_off(a, 16, 6, "s35", "s36")
    a("s_mov_b32 s37, %d" % L.WS_O)
    srd_off(a, 20, 8, "s37", 132 * 18432)
    a("s_lshl_b32 s38, s3, 10")
    a("s_mul_i32 s39, s3, 9216")
    seq = []
    for j in range(15):
        seq.append(("w", j))
        if j < 14 and True:
            pass
    oi = 0
    for j in range(15):
        if j == 14:
            a("s_cmp_ge_u32 s3, 2")
            a("s_cbranch_scc1 L_k3_wdone")
        a("s_add_u32 m0, s38, %d" % (5120 * j))
        a("s_add_u32 s41, s39, %d" % (5 * 9216 * j))
        a("buffer_load_dwordx4 v4, s[16:19], s41 offen lds")
        if j == 14:
            a.label("L_k3_wdone")
        n_o = (18 * (j + 1)) // 14 if j < 14 else 18
        while oi < min(n_o, 18):
            if oi % 4 == 0:
                a("s_add_u32 s42, s34, %d" % (1024 * oi))
            a("buffer_load_dwordx4 %s, v1, s[20:23], s42 offen offset:%d" % (vr(OF + 4 * oi, 4), 1024 * (oi % 4)))
            oi += 1
    srd(a, 24, 4, 2048 * 1152)
    a("s_mul_i32 s43, s33, %d" % (16 * 1152))
    a("s_add_u32 s43, s43, s35")
    a("s_add_u32 s44, s43, %d" % (8 * 1152))
    a("buffer_load_dwordx4 %s, v5, s[24:27], s43 offen" % vr(XR, 4))
    a("buffer_load_dwordx4 %s, v5, s[24:27], s44 offen" % vr(XR + 4, 4))
    a("s_mov_b32 s37, %d" % L.WS_G)
    srd_off(a, 24, 8, "s37", 8192)
    a("v_lshlrev_b32 v6, 2, v2")
    a("s_lshl_b32 s45, s33, 6")
    a("buffer_load_dword v%d, v6, s[24:27], s45 offen" % GR)
    a("buffer_load_dword v%d, v6, s[24:27], s45 offen offset:32" % (GR + 1))
    a("v_lshrrev_b32 v6, 5, v0")
    a("v_mul_u32_u24 v6, 20, v6")
    a("v_bfe_u32 v7, v0, 2, 3")
    a("v_add_u32 v6, v6, v7")
    a("v_bfe_u32 v7, v6, 1, 2")
    a("v_lshlrev_b32 v7, 1, v7")
    a("v_bfe_u32 v8, v0, 1, 1")
    a("v_xor_b32 v7, v7, v8")
    a("v_and_b32 v8, 1, v0")
    a("v_lshlrev_b32 v8, 3, v8")
    a("v_lshl_add_u32 v8, v6, 7, v8")
    a("v_lshl_add_u32 v8, v7, 4, v8")
    for ct in range(1, 4):
        a("v_xor_b32 v%d, %d, v8" % (8 + ct, 32 * ct))
    for ct in range(4):
        a("v_add_u32 v%d, %d, v%d" % (12 + ct, 8 * 36 * 128, 8 + ct))
    a("v_lshrrev_b32 v6, 4, v0")
    a("v_mul_u32_u24 v6, 72, v6")
    a("v_bfe_u32 v7, v0, 2, 2")
    a("v_add_u32 v6, v6, v7")
    a("v_add_u32 v6, 16, v6")
    a("v_bfe_u32 v7, v6, 1, 2")
    a("v_lshlrev_b32 v7, 1, v7")
    a("v_bfe_u32 v146, v0, 1, 1")
    a("v_xor_b32 v7, v7, v146")
    a("v_and_b32 v146, 1, v0")
    a("v_lshlrev_b32 v146, 3, v146")
    a("v_lshl_add_u32 v146, v6, 7, v146")
    a("v_lshl_add_u32 v146, v7, 4, v146")
    for ct in range(1, 4):
        a("v_xor_b32 v%d, %d, v146" % (146 + ct, 32 * ct))
    a("s_waitcnt lgkmcnt(0)")
    a("s_lshr_b32 s46, s12, 4")
    a("s_cmp_eq_u32 s46, s33")
    a("s_cselect_b32 s47, 1, 0")
    a("s_cbranch_scc0 L_k3_noy")
    a("s_mov_b32 s37, %d" % L.WS_YP)
    srd_off(a, 24, 8, "s37", 72 * 2304)
    a("v_lshrrev_b32 v6, 4, v0")
    a("v_mul_u32_u24 v6, 2304, v6")
    a("v_and_b32 v7, 15, v0")
    a("v_lshl_add_u32 v6, v7, 4, v6")
    a("s_lshl_b32 s48, s32, 8")
    a("v_mov_b32 v16, 0")
    a("v_mov_b32 v17, 0")
    a("v_mov_b32 v18, 0")
    a("v_mov_b32 v19, 0")
    for half in range(2):
        for i in range(9):
            a("buffer_load_dwordx4 %s, v6, s[24:27], s48 offen" % vr(152 + 4 * i, 4))
            a("s_add_u32 s48, s48, %d" % (4 * 2304))
        a("s_waitcnt vmcnt(0)")
        for i in range(9):
            a("v_pk_add_f32 v[16:17], v[16:17], %s" % vr(152 + 4 * i, 2))
            a("v_pk_add_f32 v[18:19], v[18:19], %s" % vr(154 + 4 * i, 2))
    for k in range(4):
        a("v_mov_b32 v20, v%d" % (16 + k))
        a("v_permlane32_swap_b32 v20, v%d" % (16 + k))
        a("v_add_f32 v%d, v%d, v20" % (16 + k, 16 + k))
        a("v_mov_b32 v20, v%d" % (16 + k))
        a("v_permlane16_swap_b32 v20, v%d" % (16 + k))
        a("v_add_f32 v%d, v%d, v20" % (16 + k, 16 + k))
        G.bf16_round(a, 16 + k, 16 + k)
        a("v_mul_f32 v%d, s13, v%d" % (16 + k, 16 + k))
        G.bf16_round(a, 16 + k, 16 + k)
    a("v_lshlrev_b32 v7, 4, v7")
    a("v_add_u32 v7, %d, v7" % YB)
    a("ds_write_b128 v7, v[16:19]")
    a.label("L_k3_noy")
    a("s_waitcnt vmcnt(0) lgkmcnt(0)")
    a("s_barrier")
    G.stamp(a, 1)

    def reads(s):
        st = WFR[s & 1]
        r = []
        for ct in range(4):
            for sec in range(2):
                if s < 16:
                    base = (8 if s < 8 else 12) + (ct ^ (2 if s & 1 else 0))
                    off = (36 * (s & 7) + 8 * sec) * 128
                else:
                    base = 146 + (ct ^ (2 if sec else 0))
                    off = (288 * (s - 16) + 36 * sec) * 128
                r.append("ds_read_b64_tr_b16 %s, v%d offset:%d" % (vr(st + 4 * ct + 2 * sec, 2), base, off))
        return r

    for x in reads(0):
        a(x)
    for s in range(18):
        rd = reads(s + 1) if s < 17 else []
        a("s_waitcnt lgkmcnt(0)")
        for ct in range(4):
            d = vr(ACC + 4 * ct, 4)
            a("v_mfma_f32_16x16x32_bf16 %s, %s, %s, %s" % (d, vr(WFR[s & 1] + 4 * ct, 4), vr(OF + 4 * s, 4), "0" if s == 0 else d))
            for x in rd[2 * ct:2 * ct + 2]:
                a(x)
    G.stamp(a, 2)
    a("s_mul_i32 s48, s3, 2304")
    a("s_add_u32 s48, s48, %d" % STG)
    a("v_and_b32 v6, 15, v0")
    a("v_mul_u32_u24 v6, 144, v6")
    a("v_lshrrev_b32 v7, 4, v0")
    a("v_lshl_add_u32 v6, v7, 3, v6")
    a("v_add_u32 v6, s48, v6")
    a("v_mul_u32_u24 v7, 144, v2")
    a("v_lshl_add_u32 v7, v3, 4, v7")
    a("v_add_u32 v7, s48, v7")
    for ct in range(4):
        b = ACC + 4 * ct
        a("v_cvt_pk_bf16_f32 v%d, v%d, v%d" % (16 + 2 * ct, b, b + 1))
        a("v_cvt_pk_bf16_f32 v%d, v%d, v%d" % (17 + 2 * ct, b + 2, b + 3))
        a("ds_write_b64 v6, %s offset:%d" % (vr(16 + 2 * ct, 2), 32 * ct))
    a("s_waitcnt lgkmcnt(0)")
    a("ds_read_b128 v[24:27], v7")
    a("ds_read_b128 v[28:31], v7 offset:%d" % (8 * 144))
    a("v_lshlrev_b32 v8, 5, v3")
    a("v_add_u32 v8, %d, v8" % YB)
    a("ds_read_b128 v[32:35], v8")
    a("ds_read_b128 v[36:39], v8 offset:16")
    srd(a, 24, 10, 2048 * 1152)
    a("s_and_b32 s46, s12, 15")
    a("s_cmp_eq_u32 s47, 1")
    a("s_cselect_b32 s46, s46, 64")
    a("s_waitcnt lgkmcnt(0)")
    for u in range(2):
        g = GR + u
        a("v_sub_f32 v9, 1.0, v%d" % g)
        G.bf16_round(a, 9, 9)
        a("v_add_u32 v10, %d, v2" % (8 * u))
        a("v_cmp_eq_u32 vcc, s46, v10")
        for q in range(4):
            av, xv = 24 + 4 * u + q, XR + 4 * u + q
            a("v_lshlrev_b32 v40, 16, v%d" % av)
            a("v_and_b32 v41, 0xffff0000, v%d" % av)
            a("v_lshlrev_b32 v42, 16, v%d" % xv)
            a("v_and_b32 v43, 0xffff0000, v%d" % xv)
            a("v_add_f32 v44, v42, v%d" % (32 + 2 * q))
            a("v_add_f32 v45, v43, v%d" % (33 + 2 * q))
            a("v_cvt_pk_bf16_f32 v44, v44, v45")
            a("v_and_b32 v45, 0xffff0000, v44")
            a("v_lshlrev_b32 v44, 16, v44")
            a("v_cndmask_b32 v42, v42, v44, vcc")
            a("v_cndmask_b32 v43, v43, v45, vcc")
            a("v_mul_f32 v40, v%d, v40" % g)
            a("v_mul_f32 v41, v%d, v41" % g)
            a("v_mul_f32 v42, v9, v42")
            a("v_mul_f32 v43, v9, v43")
            a("v_cvt_pk_bf16_f32 v40, v40, v41")
            a("v_cvt_pk_bf16_f32 v42, v42, v43")
            a("v_and_b32 v41, 0xffff0000, v40")
            a("v_lshlrev_b32 v40, 16, v40")
            a("v_and_b32 v43, 0xffff0000, v42")
            a("v_lshlrev_b32 v42, 16, v42")
            a("v_add_f32 v40, v40, v42")
            a("v_add_f32 v41, v41, v43")
            a("v_cvt_pk_bf16_f32 v%d, v40, v41" % (48 + 4 * u + q))
        a("buffer_store_dwordx4 %s, v5, s[24:27], s%d offen" % (vr(48 + 4 * u, 4), 43 + u))
    if OPT["stamp"]:
        G.stamp(a, 3)
        a("s_waitcnt vmcnt(0)")
        G.stamp(a, 4)
        a("s_cmp_eq_u32 s3, 0")
        a("s_cbranch_scc0 L_k3_end")
        G.stamp_flush(a, 2, 8, 30)
    a.label("L_k3_end")
    a("s_endpgm")
```

```python
WS_QKV = 0
PAIR_BYTES = 2048 * 72
QKV_BYTES = 48 * PAIR_BYTES
WS_O = 0x700000
WS_KEY = 0x980000
WS_R = 0x982000
WS_G = 0x984000
WS_SEL = 0x986000
WS_YP = 0x990000
N_YP = 72
WS_STAMP = 0xA00000
STAMP_BYTES = 4 * 512 * 64
WS_USED = 0xB00000


def kslot_to_col():
    out = []
    for s in range(18):
        for g in range(4):
            for e in range(8):
                if s < 16:
                    hs, hh = g >> 1, g & 1
                    m = 4 * hh + e if e < 4 else 8 + 4 * hh + (e - 4)
                    out.append(36 * s + (20 if hs else 0) + m)
                else:
                    u = s - 16
                    p = 8 * u + 2 * g + (e >> 2)
                    out.append(36 * p + 16 + (e & 3))
    assert sorted(out) == list(range(576))
    return out
```

```python
import sys, struct
from asmdsl import Asm, vr, sr, fix_hazards
import layout as L

OPT = dict(stamp=False, st1="sc1", st2="sc1", extra_empty=0)
for a in sys.argv[2:]:
    k, v = a.split("=")
    OPT[k] = type(OPT[k])(int(v)) if not isinstance(OPT[k], str) else v


def f32(x):
    return "0x%08x" % struct.unpack("<I", struct.pack("<f", x))[0]


LOG2E = 1.4426950408889634
QSCALE = (18 ** -0.5) * LOG2E
STAMP0 = 84


def stamp(a, j):
    if OPT["stamp"]:
        a("s_memrealtime %s" % sr(STAMP0 + 2 * j, 2))


def stamp_init(a):
    if OPT["stamp"]:
        for j in range(14):
            a("s_mov_b32 s%d, 0" % (STAMP0 + j))


def stamp_flush(a, kidx, wsreg, vt):
    if not OPT["stamp"]:
        return
    a("s_waitcnt lgkmcnt(0)")
    a("s_mov_b64 exec, 1")
    a("s_lshl_b32 s98, s2, 6")
    a("s_add_u32 s98, s98, %d" % (L.WS_STAMP + kidx * 512 * 64))
    a("v_mov_b32 v%d, s98" % vt)
    for j in range(7):
        a("v_mov_b32 v%d, s%d" % (vt + 2, STAMP0 + 2 * j))
        a("v_mov_b32 v%d, s%d" % (vt + 3, STAMP0 + 2 * j + 1))
        a("global_store_dwordx2 v%d, %s, %s offset:%d" % (vt, vr(vt + 2, 2), sr(wsreg, 2), 8 * j))
        a("s_nop 1")
    a("v_mov_b32 v%d, 0x54414D50" % (vt + 2))
    a("v_mov_b32 v%d, 0x53" % (vt + 3))
    a("global_store_dwordx2 v%d, %s, %s offset:56" % (vt, vr(vt + 2, 2), sr(wsreg, 2)))


def srd(a, d, base, nbytes):
    a("s_mov_b32 s%d, s%d" % (d, base))
    a("s_and_b32 s%d, s%d, 0xffff" % (d + 1, base + 1))
    a("s_mov_b32 s%d, %s" % (d + 2, nbytes))
    a("s_mov_b32 s%d, 0x20000" % (d + 3))


def srd_off(a, d, base, offreg, nbytes):
    a("s_add_u32 s%d, s%d, %s" % (d, base, offreg))
    a("s_addc_u32 s%d, s%d, 0" % (d + 1, base + 1))
    a("s_and_b32 s%d, s%d, 0xffff" % (d + 1, d + 1))
    a("s_mov_b32 s%d, %s" % (d + 2, nbytes))
    a("s_mov_b32 s%d, 0x20000" % (d + 3))


def bf16_round(a, dst, src):
    a("v_cvt_pk_bf16_f32 v%d, v%d, v%d" % (dst, src, src))
    a("v_lshlrev_b32 v%d, 16, v%d" % (dst, dst))


def sigmoid(a, dst, src):
    a("v_mul_f32 v%d, %s, v%d" % (dst, f32(-LOG2E), src))
    a("v_exp_f32 v%d, v%d" % (dst, dst))
    a("v_add_f32 v%d, 1.0, v%d" % (dst, dst))
    a("v_rcp_f32 v%d, v%d" % (dst, dst))


SLOT = 34816
K1_LDS = 4 * SLOT
IMG = SLOT


def k1(a):
    a.label("k1_kernel")
    a("s_cmp_ge_u32 s2, 256")
    a("s_cbranch_scc1 L_k1_end")
    stamp_init(a)
    stamp(a, 0)
    a("s_load_dwordx4 s[4:7], s[0:1], 0")
    a("s_load_dwordx2 s[8:9], s[0:1], 88")
    a("s_load_dwordx2 s[10:11], s[0:1], 32")
    a("s_load_dwordx2 s[12:13], s[0:1], 64")
    a("v_lshrrev_b32 v1, 6, v0")
    a("v_and_b32 v0, 63, v0")
    a("v_readfirstlane_b32 s3, v1")
    a("s_and_b32 s30, s2, 3")
    a("s_bfe_u32 s31, s2, 0x10002")
    a("s_lshr_b32 s32, s2, 3")
    a("s_cmp_ge_u32 s32, 24")
    a("s_cbranch_scc1 L_k1_rg")
    a("s_mul_i32 s33, s32, 43")
    a("s_lshr_b32 s33, s33, 7")
    a("s_mul_i32 s34, s33, 3")
    a("s_sub_u32 s34, s32, s34")
    a("s_lshl_b32 s34, s34, 2")
    a("s_add_u32 s34, s34, s30")
    a("s_lshl_b32 s35, s31, 3")
    a("s_add_u32 s35, s35, s33")
    a("s_cmp_lt_u32 s3, 4")
    a("s_cbranch_scc1 L_k1_comp")
    a("s_cmp_lt_u32 s3, 6")
    a("s_cbranch_scc0 L_k1_ldw")
    a("v_lshrrev_b32 v1, 3, v0")
    a("v_mul_u32_u24 v1, 1152, v1")
    a("v_lshrrev_b32 v2, 4, v0")
    a("v_and_b32 v3, 7, v0")
    a("v_xor_b32 v3, v3, v2")
    a("v_lshl_add_u32 v4, v3, 4, v1")
    a("v_xor_b32 v3, 4, v3")
    a("v_lshl_add_u32 v5, v3, 4, v1")
    a("v_add_u32 v5, %d, v5" % (8 * 1152))
    a("s_sub_u32 s36, s3, 4")
    a("s_mul_i32 s37, s36, %d" % (64 * 1152))
    a("s_lshl_b32 s38, s36, 13")
    a("s_mul_i32 s39, s35, %d" % (128 * 1152))
    a("s_waitcnt lgkmcnt(0)")
    srd_off(a, 16, 4, "s39", 128 * 1152)

    def x_chunk(c):
        for i in range(8):
            a("s_add_u32 m0, s38, %d" % ((c % 4) * SLOT + i * 1024))
            a("s_add_u32 s40, s37, %d" % ((i >> 1) * 16 * 1152 + c * 128))
            a("buffer_load_dwordx4 v%d, s[16:19], s40 offen lds" % (4 + (i & 1)))

    def loader_loop(fn, n):
        for c in range(3):
            fn(c)
        for c in range(9):
            a("s_waitcnt vmcnt(%d)" % (n * min(2, 8 - c)))
            a("s_barrier")
            if c + 3 < 9:
                fn(c + 3)

    loader_loop(x_chunk, 8)
    a("s_branch L_k1_copy")
    a.label("L_k1_ldw")
    a("s_movk_i32 s41, 3641")
    for i in range(9):
        a("v_add_u32 v1, %d, v0" % (64 * i))
        a("v_mul_u32_u24 v2, s41, v1")
        a("v_lshrrev_b32 v2, 16, v2")
        a("v_mul_u32_u24 v3, 18, v2")
        a("v_sub_u32 v3, v1, v3")
        a("v_bfe_u32 v1, v2, 2, 2")
        a("v_lshlrev_b32 v1, 3, v1")
        a("v_lshrrev_b32 v13, 4, v2")
        a("v_lshl_add_u32 v1, v13, 2, v1")
        a("v_and_b32 v2, 3, v2")
        a("v_add_u32 v1, v1, v2")
        a("v_mul_u32_u24 v1, 3456, v1")
        a("v_lshl_add_u32 v%d, v3, 4, v1" % (4 + i))
    a("s_sub_u32 s36, s3, 6")
    a("s_mul_i32 s37, s36, %d" % (32 * 3456))
    a("s_mul_i32 s38, s36, 9216")
    a("s_mul_i32 s39, s34, 288")
    a("s_sub_u32 s42, %d, s39" % (576 * 3456))
    a("s_waitcnt lgkmcnt(0)")
    srd_off(a, 16, 6, "s39", "s42")

    def w_chunk(c):
        a("s_add_u32 s40, s37, %d" % (c * 64 * 3456))
        for i in range(9):
            a("s_add_u32 m0, s38, %d" % ((c % 4) * SLOT + 16384 + i * 1024))
            a("s_nop 0")
            a("buffer_load_dwordx4 v%d, s[16:19], s40 offen lds" % (4 + i))

    loader_loop(w_chunk, 9)
    a("s_branch L_k1_copy")
    a.label("L_k1_comp")
    ACC = 64
    XF = (136, 180)
    WF = (144, 188)
    a("v_and_b32 v8, 15, v0")
    a("v_lshrrev_b32 v9, 4, v0")
    a("v_lshrrev_b32 v10, 1, v8")
    a("v_xor_b32 v10, v10, v9")
    a("s_lshl_b32 s36, s3, 12")
    a("v_lshlrev_b32 v2, 7, v8")
    a("v_lshl_add_u32 v2, v10, 4, v2")
    a("v_add_u32 v2, s36, v2")
    a("v_xor_b32 v3, 64, v2")
    a("v_add_u32 v4, %d, v2" % (2 * SLOT))
    a("v_add_u32 v5, %d, v3" % (2 * SLOT))
    a("v_lshrrev_b32 v10, 2, v0")
    a("v_mul_u32_u24 v6, 288, v10")
    a("v_and_b32 v10, 3, v0")
    a("v_lshl_add_u32 v6, v10, 3, v6")
    a("v_add_u32 v6, 16384, v6")
    a("v_add_u32 v7, %d, v6" % (2 * SLOT))

    def reads(step):
        c, h2 = step >> 1, step & 1
        slot = c % 4
        hi = slot >> 1
        o = (slot & 1) * SLOT
        st = step & 1
        r = []
        for tt in range(2):
            r.append("ds_read_b128 %s, v%d offset:%d" % (vr(XF[st] + 4 * tt, 4), 2 + 2 * hi + h2, o + tt * 2048))
        for ft in range(9):
            for sec in range(2):
                r.append("ds_read_b64_tr_b16 %s, v%d offset:%d" % (
                    vr(WF[st] + 4 * ft + 2 * sec, 2), 6 + hi, o + h2 * 9216 + sec * 4608 + ft * 32))
        return r

    def mfmas(step):
        st = step & 1
        r = []
        for ft in range(9):
            for tt in range(2):
                d = vr(ACC + 8 * ft + 4 * tt, 4)
                r.append("v_mfma_f32_16x16x32_bf16 %s, %s, %s, %s" % (
                    d, vr(WF[st] + 4 * ft, 4), vr(XF[st] + 4 * tt, 4), "0" if step == 0 else d))
        return r

    def interleave(m, rd):
        rd = list(rd)
        for k, ins in enumerate(m):
            a(ins)
            for _ in range(2):
                if rd:
                    a(rd.pop(0))
        assert not rd

    a("s_barrier")
    stamp(a, 1)
    for ins in reads(0):
        a(ins)
    for c in range(9):
        a("s_waitcnt lgkmcnt(0)")
        interleave(mfmas(2 * c), reads(2 * c + 1))
        a("s_waitcnt lgkmcnt(0)")
        if c < 8:
            a("s_barrier")
            interleave(mfmas(2 * c + 1), reads(2 * c + 2))
        else:
            interleave(mfmas(2 * c + 1), [])
    stamp(a, 2)
    a("s_mov_b32 s36, 1.0")
    a("s_cmp_lt_u32 s34, 4")
    a("s_cselect_b32 s36, %s, s36" % f32(QSCALE))
    a("s_mov_b32 s37, s36")
    a("s_lshl_b32 s38, s3, 5")
    a("v_add_u32 v10, s38, v8")
    a("v_mul_u32_u24 v10, 72, v10")
    a("v_lshl_add_u32 v10, v9, 3, v10")
    a("v_add_u32 v10, %d, v10" % IMG)
    for ft in range(9):
        a("v_add_u32 v11, %d, v9" % (4 * ft))
        a("v_mul_u32_u24 v11, 57, v11")
        a("v_lshrrev_b32 v11, 9, v11")
        a("v_mul_u32_u24 v11, 9144, v11")
        a("v_add_u32 v%d, v11, v10" % (12 + ft))
    for ft in range(9):
        for tt in range(2):
            b = ACC + 8 * ft + 4 * tt
            a("v_pk_mul_f32 %s, %s, s[36:37]" % (vr(b, 2), vr(b, 2)))
            a("v_pk_mul_f32 %s, %s, s[36:37]" % (vr(b + 2, 2), vr(b + 2, 2)))
            t = 24 + 2 * ((2 * ft + tt) % 8)
            a("v_cvt_pk_bf16_f32 v%d, v%d, v%d" % (t, b, b + 1))
            a("v_cvt_pk_bf16_f32 v%d, v%d, v%d" % (t + 1, b + 2, b + 3))
            a("ds_write_b64 v%d, %s offset:%d" % (12 + ft, vr(t, 2), 32 * ft + 1152 * tt))
    a("s_waitcnt lgkmcnt(0)")
    a.label("L_k1_copy")
    a("s_barrier")
    srd(a, 24, 8, L.QKV_BYTES)
    a("v_lshlrev_b32 v1, 4, v0")
    a("s_lshl_b32 s36, s3, 10")
    a("v_add_u32 v2, s36, v1")
    for j in range(4):
        a("ds_read_b128 %s, v2 offset:%d" % (vr(4 + 4 * j, 4), IMG + j * 8192))
    a("s_cmp_lt_u32 s3, 4")
    a("s_cbranch_scc0 L_k1_c4")
    a("v_add_u32 v3, %d, v2" % (IMG + 4 * 8192))
    a("ds_read_b128 v[20:23], v3")
    a.label("L_k1_c4")
    a("s_mul_i32 s37, s34, %d" % (4 * L.PAIR_BYTES))
    a("s_mul_i32 s38, s35, 9216")
    a("s_add_u32 s37, s37, s38")
    a("s_add_u32 s37, s37, s36")

    def cstore(j):
        a("s_add_u32 s39, s3, %d" % (8 * j))
        a("s_mul_i32 s39, s39, 57")
        a("s_lshr_b32 s39, s39, 9")
        a("s_mul_i32 s39, s39, %d" % (L.PAIR_BYTES - 9216))
        a("s_add_u32 s39, s39, s37")
        a("s_add_u32 s%d, s39, %d" % (44 + j, 8192 * j))

    for j in range(5):
        cstore(j)
    a("s_waitcnt lgkmcnt(0)")
    for j in range(4):
        a("buffer_store_dwordx4 %s, v1, s[24:27], s%d offen %s" % (vr(4 + 4 * j, 4), 44 + j, OPT["st1"]))
    a("s_cmp_lt_u32 s3, 4")
    a("s_cbranch_scc0 L_k1_end")
    a("buffer_store_dwordx4 v[20:23], v1, s[24:27], s48 offen %s" % OPT["st1"])
    stamp(a, 3)
    if OPT["stamp"]:
        a("s_waitcnt vmcnt(0)")
        stamp(a, 4)
        a("s_cmp_eq_u32 s3, 0")
        a("s_cbranch_scc0 L_k1_end")
        stamp_flush(a, 0, 8, 30)
    a("s_endpgm")
    a.label("L_k1_rg")
    a("s_cmp_lt_u32 s3, 4")
    a("s_cbranch_scc0 L_k1_end")
    a("s_lshl_b32 s33, s31, 10")
    a("s_lshl_b32 s34, s30, 8")
    a("s_add_u32 s33, s33, s34")
    a("s_sub_u32 s34, s32, 24")
    a("s_lshl_b32 s34, s34, 5")
    a("s_add_u32 s33, s33, s34")
    a("s_lshl_b32 s34, s3, 3")
    a("s_add_u32 s33, s33, s34")
    a("v_lshrrev_b32 v1, 3, v0")
    a("v_add_u32 v1, s33, v1")
    a("v_and_b32 v2, 7, v0")
    a("v_lshlrev_b32 v3, 4, v2")
    a("v_mul_u32_u24 v4, 1152, v1")
    a("v_add_u32 v4, v4, v3")
    a("s_waitcnt lgkmcnt(0)")
    for i in range(9):
        a("global_load_dwordx4 %s, v4, s[4:5] offset:%d" % (vr(8 + 4 * i, 4), 128 * i))
    for i in range(9):
        a("global_load_dwordx4 %s, v3, s[10:11] offset:%d" % (vr(44 + 4 * i, 4), 128 * i))
        a("global_load_dwordx4 %s, v3, s[12:13] offset:%d" % (vr(80 + 4 * i, 4), 128 * i))
    a("v_mov_b32 v5, 0")
    a("v_mov_b32 v6, 0")
    a("s_waitcnt vmcnt(0)")
    for i in range(36):
        a("v_dot2_f32_bf16 v5, v%d, v%d, v5" % (8 + i, 44 + i))
        a("v_dot2_f32_bf16 v6, v%d, v%d, v6" % (8 + i, 80 + i))
    a("s_nop 2")
    for mod in ("quad_perm:[1,0,3,2]", "quad_perm:[2,3,0,1]", "row_half_mirror"):
        a("v_add_f32_dpp v5, v5, v5 %s row_mask:0xf bank_mask:0xf" % mod)
        a("v_add_f32_dpp v6, v6, v6 %s row_mask:0xf bank_mask:0xf" % mod)
    a("v_ashrrev_i32 v7, 31, v5")
    a("v_or_b32 v7, 0x80000000, v7")
    a("v_xor_b32 v7, v7, v5")
    a("v_and_b32 v7, 0xfffff800, v7")
    a("v_sub_u32 v8, 2047, v1")
    a("v_or_b32 v7, v7, v8")
    bf16_round(a, 6, 6)
    sigmoid(a, 6, 6)
    bf16_round(a, 6, 6)
    a("v_lshlrev_b32 v1, 2, v1")
    a("v_add_u32 v1, %d, v1" % L.WS_KEY)
    a("v_cmp_eq_u32 vcc, 0, v2")
    a("s_and_saveexec_b64 s[36:37], vcc")
    a("global_store_dword v1, v7, s[8:9]")
    a("v_add_u32 v2, %d, v1" % (L.WS_R - L.WS_KEY))
    a("global_store_dword v2, v5, s[8:9]")
    a("v_add_u32 v3, %d, v1" % (L.WS_G - L.WS_KEY))
    a("global_store_dword v3, v6, s[8:9]")
    a.label("L_k1_end")
    a("s_endpgm")


from k2 import k2, K2_LDS
from k3 import k3, K3_LDS

HEAD = open(__file__.replace("gen/gen.py", "cdna_kernels/gated_mix__sliding_block__moe_arch_mod__prompt.s.ref")
            if "gen/gen.py" in __file__ else "../cdna_kernels/gated_mix__sliding_block__moe_arch_mod__prompt.s.ref").read()


def desc(name, vgpr, sgpr=102):
    acc = (vgpr + 3) // 4 * 4
    return """.section .rodata,"a"
.p2align 6
.amdhsa_kernel %s
  .amdhsa_next_free_vgpr %d
  .amdhsa_next_free_sgpr %d
  .amdhsa_accum_offset %d
  .amdhsa_group_segment_fixed_size 0
  .amdhsa_kernarg_size 96
  .amdhsa_user_sgpr_count 2
  .amdhsa_user_sgpr_kernarg_segment_ptr 1
  .amdhsa_system_sgpr_workgroup_id_x 1
.end_amdhsa_kernel
""" % (name, vgpr, sgpr, acc)


def main():
    hdr = [l for l in HEAD.split("\n") if l.startswith(";   offset") or l.startswith("; Kernarg")]
    launches = [("k1_kernel", 256, 512, K1_LDS), ("k2_kernel", 328, 512, K2_LDS), ("k3_kernel", 234, 320, K3_LDS)]
    for _ in range(OPT["extra_empty"]):
        launches.append(("empty_kernel", 256, 256, 0))
    out = hdr + ["; @launch kernel=%s grid=(%d,1,1) block=(%d,1,1) lds=%d" % l for l in launches]
    out.append('.amdgcn_target "amdgcn-amd-amdhsa--gfx950"')
    out.append(".text")
    mod = sys.modules[__name__]
    kernels = [("k1_kernel", k1, 224), ("k2_kernel", k2, 128), ("k3_kernel", k3, 200)]
    if OPT["extra_empty"]:
        kernels.append(("empty_kernel", lambda a, g=None: (a.label("empty_kernel"), a("s_endpgm")), 8))
    for name, fn, vg in kernels:
        a = Asm()
        if fn is k1:
            fn(a)
        else:
            fn(a, mod)
        lines, nn = fix_hazards(a.lines)
        sys.stderr.write("%s: %d lines, %d nops inserted\n" % (name, len(lines), nn))
        out += [".globl %s" % name, ".p2align 8", ".type %s,@function" % name] + lines
    for name, fn, vg in kernels:
        out.append(desc(name, vg))
    open(sys.argv[1], "w").write("\n".join(out) + "\n")


if __name__ == "__main__":
    main()
```

```python
import sys, struct
from asmdsl import Asm, vr, sr, fix_hazards
import layout as L

OPT = dict(stamp=False, st1="sc1", st2="sc1", extra_empty=0, spin="")
for a in sys.argv[2:]:
    k, v = a.split("=")
    OPT[k] = type(OPT[k])(int(v)) if not isinstance(OPT[k], str) else v


def f32(x):
    return "0x%08x" % struct.unpack("<I", struct.pack("<f", x))[0]


LOG2E = 1.4426950408889634
QSCALE = (18 ** -0.5) * LOG2E
STAMP0 = 84


def stamp(a, j):
    if OPT["stamp"]:
        a("s_memrealtime %s" % sr(STAMP0 + 2 * j, 2))


def stamp_init(a):
    if OPT["stamp"]:
        for j in range(14):
            a("s_mov_b32 s%d, 0" % (STAMP0 + j))


def stamp_flush(a, kidx, wsreg, vt):
    if not OPT["stamp"]:
        return
    a("s_waitcnt lgkmcnt(0)")
    a("s_mov_b64 exec, 1")
    a("s_lshl_b32 s98, s2, 6")
    a("s_add_u32 s98, s98, %d" % (L.WS_STAMP + kidx * 512 * 64))
    a("v_mov_b32 v%d, s98" % vt)
    for j in range(7):
        a("v_mov_b32 v%d, s%d" % (vt + 2, STAMP0 + 2 * j))
        a("v_mov_b32 v%d, s%d" % (vt + 3, STAMP0 + 2 * j + 1))
        a("global_store_dwordx2 v%d, %s, %s offset:%d" % (vt, vr(vt + 2, 2), sr(wsreg, 2), 8 * j))
        a("s_nop 1")
    a("v_mov_b32 v%d, 0x54414D50" % (vt + 2))
    a("v_mov_b32 v%d, 0x53" % (vt + 3))
    a("global_store_dwordx2 v%d, %s, %s offset:56" % (vt, vr(vt + 2, 2), sr(wsreg, 2)))


def srd(a, d, base, nbytes):
    a("s_mov_b32 s%d, s%d" % (d, base))
    a("s_and_b32 s%d, s%d, 0xffff" % (d + 1, base + 1))
    a("s_mov_b32 s%d, %s" % (d + 2, nbytes))
    a("s_mov_b32 s%d, 0x20000" % (d + 3))


def srd_off(a, d, base, offreg, nbytes):
    a("s_add_u32 s%d, s%d, %s" % (d, base, offreg))
    a("s_addc_u32 s%d, s%d, 0" % (d + 1, base + 1))
    a("s_and_b32 s%d, s%d, 0xffff" % (d + 1, d + 1))
    a("s_mov_b32 s%d, %s" % (d + 2, nbytes))
    a("s_mov_b32 s%d, 0x20000" % (d + 3))


def bf16_round(a, dst, src):
    a("v_cvt_pk_bf16_f32 v%d, v%d, v%d" % (dst, src, src))
    a("v_lshlrev_b32 v%d, 16, v%d" % (dst, dst))


def sigmoid(a, dst, src):
    a("v_mul_f32 v%d, %s, v%d" % (dst, f32(-LOG2E), src))
    a("v_exp_f32 v%d, v%d" % (dst, dst))
    a("v_add_f32 v%d, 1.0, v%d" % (dst, dst))
    a("v_rcp_f32 v%d, v%d" % (dst, dst))


SLOT = 34816
K1_LDS = 4 * SLOT
IMG = SLOT


def k1(a):
    a.label("k1_kernel")
    a("s_cmp_ge_u32 s2, 256")
    a("s_cbranch_scc1 L_k1_end")
    stamp_init(a)
    stamp(a, 0)
    a("s_load_dwordx4 s[4:7], s[0:1], 0")
    a("s_load_dwordx2 s[8:9], s[0:1], 88")
    a("s_load_dwordx2 s[10:11], s[0:1], 32")
    a("s_load_dwordx2 s[12:13], s[0:1], 64")
    a("v_lshrrev_b32 v1, 6, v0")
    a("v_and_b32 v0, 63, v0")
    a("v_readfirstlane_b32 s3, v1")
    a("s_and_b32 s30, s2, 3")
    a("s_bfe_u32 s31, s2, 0x10002")
    a("s_lshr_b32 s32, s2, 3")
    a("s_cmp_ge_u32 s32, 24")
    a("s_cbranch_scc1 L_k1_rg")
    a("s_mul_i32 s33, s32, 43")
    a("s_lshr_b32 s33, s33, 7")
    a("s_mul_i32 s34, s33, 3")
    a("s_sub_u32 s34, s32, s34")
    a("s_lshl_b32 s34, s34, 2")
    a("s_add_u32 s34, s34, s30")
    a("s_lshl_b32 s35, s31, 3")
    a("s_add_u32 s35, s35, s33")
    a("s_cmp_lt_u32 s3, 4")
    a("s_cbranch_scc1 L_k1_comp")
    a("s_cmp_lt_u32 s3, 6")
    a("s_cbranch_scc0 L_k1_ldw")
    a("v_lshrrev_b32 v1, 3, v0")
    a("v_mul_u32_u24 v1, 1152, v1")
    a("v_lshrrev_b32 v2, 4, v0")
    a("v_and_b32 v3, 7, v0")
    a("v_xor_b32 v3, v3, v2")
    a("v_lshl_add_u32 v4, v3, 4, v1")
    a("v_xor_b32 v3, 4, v3")
    a("v_lshl_add_u32 v5, v3, 4, v1")
    a("v_add_u32 v5, %d, v5" % (8 * 1152))
    a("s_sub_u32 s36, s3, 4")
    a("s_mul_i32 s37, s36, %d" % (64 * 1152))
    a("s_lshl_b32 s38, s36, 13")
    a("s_mul_i32 s39, s35, %d" % (128 * 1152))
    a("s_waitcnt lgkmcnt(0)")
    srd_off(a, 16, 4, "s39", 128 * 1152)

    def x_chunk(c):
        for i in range(8):
            a("s_add_u32 m0, s38, %d" % ((c % 4) * SLOT + i * 1024))
            a("s_add_u32 s40, s37, %d" % ((i >> 1) * 16 * 1152 + c * 128))
            a("buffer_load_dwordx4 v%d, s[16:19], s40 offen lds" % (4 + (i & 1)))

    def loader_loop(fn, n):
        for c in range(3):
            fn(c)
        for c in range(9):
            a("s_waitcnt vmcnt(%d)" % (n * min(2, 8 - c)))
            a("s_barrier")
            if c + 3 < 9:
                fn(c + 3)

    loader_loop(x_chunk, 8)
    a("s_branch L_k1_copy")
    a.label("L_k1_ldw")
    a("s_movk_i32 s41, 3641")
    for i in range(9):
        a("v_add_u32 v1, %d, v0" % (64 * i))
        a("v_mul_u32_u24 v2, s41, v1")
        a("v_lshrrev_b32 v2, 16, v2")
        a("v_mul_u32_u24 v3, 18, v2")
        a("v_sub_u32 v3, v1, v3")
        a("v_bfe_u32 v1, v2, 2, 2")
        a("v_lshlrev_b32 v1, 3, v1")
        a("v_lshrrev_b32 v13, 4, v2")
        a("v_lshl_add_u32 v1, v13, 2, v1")
        a("v_and_b32 v2, 3, v2")
        a("v_add_u32 v1, v1, v2")
        a("v_mul_u32_u24 v1, 3456, v1")
        a("v_lshl_add_u32 v%d, v3, 4, v1" % (4 + i))
    a("s_sub_u32 s36, s3, 6")
    a("s_mul_i32 s37, s36, %d" % (32 * 3456))
    a("s_mul_i32 s38, s36, 9216")
    a("s_mul_i32 s39, s34, 288")
    a("s_sub_u32 s42, %d, s39" % (576 * 3456))
    a("s_waitcnt lgkmcnt(0)")
    srd_off(a, 16, 6, "s39", "s42")

    def w_chunk(c):
        a("s_add_u32 s40, s37, %d" % (c * 64 * 3456))
        for i in range(9):
            a("s_add_u32 m0, s38, %d" % ((c % 4) * SLOT + 16384 + i * 1024))
            a("s_nop 0")
            a("buffer_load_dwordx4 v%d, s[16:19], s40 offen lds" % (4 + i))

    loader_loop(w_chunk, 9)
    a("s_branch L_k1_copy")
    a.label("L_k1_comp")
    ACC = 64
    XF = (136, 180)
    WF = (144, 188)
    a("v_and_b32 v8, 15, v0")
    a("v_lshrrev_b32 v9, 4, v0")
    a("v_lshrrev_b32 v10, 1, v8")
    a("v_xor_b32 v10, v10, v9")
    a("s_lshl_b32 s36, s3, 12")
    a("v_lshlrev_b32 v2, 7, v8")
    a("v_lshl_add_u32 v2, v10, 4, v2")
    a("v_add_u32 v2, s36, v2")
    a("v_xor_b32 v3, 64, v2")
    a("v_add_u32 v4, %d, v2" % (2 * SLOT))
    a("v_add_u32 v5, %d, v3" % (2 * SLOT))
    a("v_lshrrev_b32 v10, 2, v0")
    a("v_mul_u32_u24 v6, 288, v10")
    a("v_and_b32 v10, 3, v0")
    a("v_lshl_add_u32 v6, v10, 3, v6")
    a("v_add_u32 v6, 16384, v6")
    a("v_add_u32 v7, %d, v6" % (2 * SLOT))

    def reads(step):
        c, h2 = step >> 1, step & 1
        slot = c % 4
        hi = slot >> 1
        o = (slot & 1) * SLOT
        st = step & 1
        r = []
        for tt in range(2):
            r.append("ds_read_b128 %s, v%d offset:%d" % (vr(XF[st] + 4 * tt, 4), 2 + 2 * hi + h2, o + tt * 2048))
        for ft in range(9):
            for sec in range(2):
                r.append("ds_read_b64_tr_b16 %s, v%d offset:%d" % (
                    vr(WF[st] + 4 * ft + 2 * sec, 2), 6 + hi, o + h2 * 9216 + sec * 4608 + ft * 32))
        return r

    def mfmas(step):
        st = step & 1
        r = []
        for ft in range(9):
            for tt in range(2):
                d = vr(ACC + 8 * ft + 4 * tt, 4)
                r.append("v_mfma_f32_16x16x32_bf16 %s, %s, %s, %s" % (
                    d, vr(WF[st] + 4 * ft, 4), vr(XF[st] + 4 * tt, 4), "0" if step == 0 else d))
        return r

    def interleave(m, rd):
        rd = list(rd)
        for k, ins in enumerate(m):
            a(ins)
            for _ in range(2):
                if rd:
                    a(rd.pop(0))
        assert not rd

    a("s_barrier")
    stamp(a, 1)
    for ins in reads(0):
        a(ins)
    for c in range(9):
        a("s_waitcnt lgkmcnt(0)")
        interleave(mfmas(2 * c), reads(2 * c + 1))
        a("s_waitcnt lgkmcnt(0)")
        if c < 8:
            a("s_barrier")
            interleave(mfmas(2 * c + 1), reads(2 * c + 2))
        else:
            interleave(mfmas(2 * c + 1), [])
    stamp(a, 2)
    a("s_mov_b32 s36, 1.0")
    a("s_cmp_lt_u32 s34, 4")
    a("s_cselect_b32 s36, %s, s36" % f32(QSCALE))
    a("s_mov_b32 s37, s36")
    a("s_lshl_b32 s38, s3, 5")
    a("v_add_u32 v10, s38, v8")
    a("v_mul_u32_u24 v10, 72, v10")
    a("v_lshl_add_u32 v10, v9, 3, v10")
    a("v_add_u32 v10, %d, v10" % IMG)
    for ft in range(9):
        a("v_add_u32 v11, %d, v9" % (4 * ft))
        a("v_mul_u32_u24 v11, 57, v11")
        a("v_lshrrev_b32 v11, 9, v11")
        a("v_mul_u32_u24 v11, 9144, v11")
        a("v_add_u32 v%d, v11, v10" % (12 + ft))
    for ft in range(9):
        for tt in range(2):
            b = ACC + 8 * ft + 4 * tt
            a("v_pk_mul_f32 %s, %s, s[36:37]" % (vr(b, 2), vr(b, 2)))
            a("v_pk_mul_f32 %s, %s, s[36:37]" % (vr(b + 2, 2), vr(b + 2, 2)))
            t = 24 + 2 * ((2 * ft + tt) % 8)
            a("v_cvt_pk_bf16_f32 v%d, v%d, v%d" % (t, b, b + 1))
            a("v_cvt_pk_bf16_f32 v%d, v%d, v%d" % (t + 1, b + 2, b + 3))
            a("ds_write_b64 v%d, %s offset:%d" % (12 + ft, vr(t, 2), 32 * ft + 1152 * tt))
    a("s_waitcnt lgkmcnt(0)")
    a.label("L_k1_copy")
    a("s_barrier")
    srd(a, 24, 8, L.QKV_BYTES)
    a("v_lshlrev_b32 v1, 4, v0")
    a("s_lshl_b32 s36, s3, 10")
    a("v_add_u32 v2, s36, v1")
    for j in range(4):
        a("ds_read_b128 %s, v2 offset:%d" % (vr(4 + 4 * j, 4), IMG + j * 8192))
    a("s_cmp_lt_u32 s3, 4")
    a("s_cbranch_scc0 L_k1_c4")
    a("v_add_u32 v3, %d, v2" % (IMG + 4 * 8192))
    a("ds_read_b128 v[20:23], v3")
    a.label("L_k1_c4")
    a("s_mul_i32 s37, s34, %d" % (4 * L.PAIR_BYTES))
    a("s_mul_i32 s38, s35, 9216")
    a("s_add_u32 s37, s37, s38")
    a("s_add_u32 s37, s37, s36")

    def cstore(j):
        a("s_add_u32 s39, s3, %d" % (8 * j))
        a("s_mul_i32 s39, s39, 57")
        a("s_lshr_b32 s39, s39, 9")
        a("s_mul_i32 s39, s39, %d" % (L.PAIR_BYTES - 9216))
        a("s_add_u32 s39, s39, s37")
        a("s_add_u32 s%d, s39, %d" % (44 + j, 8192 * j))

    for j in range(5):
        cstore(j)
    a("s_waitcnt lgkmcnt(0)")
    for j in range(4):
        a("buffer_store_dwordx4 %s, v1, s[24:27], s%d offen %s" % (vr(4 + 4 * j, 4), 44 + j, OPT["st1"]))
    a("s_cmp_lt_u32 s3, 4")
    a("s_cbranch_scc0 L_k1_end")
    a("buffer_store_dwordx4 v[20:23], v1, s[24:27], s48 offen %s" % OPT["st1"])
    stamp(a, 3)
    if OPT["stamp"]:
        a("s_waitcnt vmcnt(0)")
        stamp(a, 4)
        a("s_cmp_eq_u32 s3, 0")
        a("s_cbranch_scc0 L_k1_end")
        stamp_flush(a, 0, 8, 30)
    a("s_endpgm")
    a.label("L_k1_rg")
    a("s_cmp_lt_u32 s3, 4")
    a("s_cbranch_scc0 L_k1_end")
    a("s_lshl_b32 s33, s31, 10")
    a("s_lshl_b32 s34, s30, 8")
    a("s_add_u32 s33, s33, s34")
    a("s_sub_u32 s34, s32, 24")
    a("s_lshl_b32 s34, s34, 5")
    a("s_add_u32 s33, s33, s34")
    a("s_lshl_b32 s34, s3, 3")
    a("s_add_u32 s33, s33, s34")
    a("v_lshrrev_b32 v1, 3, v0")
    a("v_add_u32 v1, s33, v1")
    a("v_and_b32 v2, 7, v0")
    a("v_lshlrev_b32 v3, 4, v2")
    a("v_mul_u32_u24 v4, 1152, v1")
    a("v_add_u32 v4, v4, v3")
    a("s_waitcnt lgkmcnt(0)")
    for i in range(9):
        a("global_load_dwordx4 %s, v4, s[4:5] offset:%d" % (vr(8 + 4 * i, 4), 128 * i))
    for i in range(9):
        a("global_load_dwordx4 %s, v3, s[10:11] offset:%d" % (vr(44 + 4 * i, 4), 128 * i))
        a("global_load_dwordx4 %s, v3, s[12:13] offset:%d" % (vr(80 + 4 * i, 4), 128 * i))
    a("v_mov_b32 v5, 0")
    a("v_mov_b32 v6, 0")
    a("s_waitcnt vmcnt(0)")
    for i in range(36):
        a("v_dot2_f32_bf16 v5, v%d, v%d, v5" % (8 + i, 44 + i))
        a("v_dot2_f32_bf16 v6, v%d, v%d, v6" % (8 + i, 80 + i))
    a("s_nop 2")
    for mod in ("quad_perm:[1,0,3,2]", "quad_perm:[2,3,0,1]", "row_half_mirror"):
        a("v_add_f32_dpp v5, v5, v5 %s row_mask:0xf bank_mask:0xf" % mod)
        a("v_add_f32_dpp v6, v6, v6 %s row_mask:0xf bank_mask:0xf" % mod)
    a("v_ashrrev_i32 v7, 31, v5")
    a("v_or_b32 v7, 0x80000000, v7")
    a("v_xor_b32 v7, v7, v5")
    a("v_and_b32 v7, 0xfffff800, v7")
    a("v_sub_u32 v8, 2047, v1")
    a("v_or_b32 v7, v7, v8")
    bf16_round(a, 6, 6)
    sigmoid(a, 6, 6)
    bf16_round(a, 6, 6)
    a("v_lshlrev_b32 v1, 2, v1")
    a("v_add_u32 v1, %d, v1" % L.WS_KEY)
    a("v_cmp_eq_u32 vcc, 0, v2")
    a("s_and_saveexec_b64 s[36:37], vcc")
    a("global_store_dword v1, v7, s[8:9]")
    a("v_add_u32 v2, %d, v1" % (L.WS_R - L.WS_KEY))
    a("global_store_dword v2, v5, s[8:9]")
    a("v_add_u32 v3, %d, v1" % (L.WS_G - L.WS_KEY))
    a("global_store_dword v3, v6, s[8:9]")
    a.label("L_k1_end")
    a("s_endpgm")


def spin(a, G=None):
    ka, ja, kb, jb, wg = [int(t) for t in OPT["spin"].split(",")]
    a.label("spin_kernel")
    a("s_cmp_ge_u32 s2, 1")
    a("s_cbranch_scc1 L_spin_end")
    a("s_memrealtime s[10:11]")
    a("s_load_dwordx2 s[8:9], s[0:1], 88")
    a("s_mov_b32 s4, %d" % (L.WS_STAMP + ka * 512 * 64 + wg * 64 + 8 * ja))
    a("s_mov_b32 s5, %d" % (L.WS_STAMP + max(kb, 0) * 512 * 64 + wg * 64 + 8 * jb))
    a("s_waitcnt lgkmcnt(0)")
    a("s_load_dword s6, s[8:9], s4")
    a("s_load_dword s7, s[8:9], s5")
    a("s_waitcnt lgkmcnt(0)")
    if kb < 0:
        a("s_mov_b32 s7, s10")
    a("s_sub_u32 s6, s7, s6")
    a("s_min_u32 s6, s6, 3000")
    a("s_mul_i32 s6, s6, 10")
    a.label("L_spin_l")
    a("s_memrealtime s[12:13]")
    a("s_waitcnt lgkmcnt(0)")
    a("s_sub_u32 s12, s12, s10")
    a("s_cmp_lt_u32 s12, s6")
    a("s_cbranch_scc1 L_spin_l")
    a.label("L_spin_end")
    a("s_endpgm")


from k2 import k2, K2_LDS
from k3 import k3, K3_LDS

HEAD = open(__file__.replace("gen/gen.py", "cdna_kernels/gated_mix__sliding_block__moe_arch_mod__prompt.s.ref")
            if "gen/gen.py" in __file__ else "../cdna_kernels/gated_mix__sliding_block__moe_arch_mod__prompt.s.ref").read()


def desc(name, vgpr, sgpr=102):
    acc = (vgpr + 3) // 4 * 4
    return """.section .rodata,"a"
.p2align 6
.amdhsa_kernel %s
  .amdhsa_next_free_vgpr %d
  .amdhsa_next_free_sgpr %d
  .amdhsa_accum_offset %d
  .amdhsa_group_segment_fixed_size 0
  .amdhsa_kernarg_size 96
  .amdhsa_user_sgpr_count 2
  .amdhsa_user_sgpr_kernarg_segment_ptr 1
  .amdhsa_system_sgpr_workgroup_id_x 1
.end_amdhsa_kernel
""" % (name, vgpr, sgpr, acc)


def main():
    hdr = [l for l in HEAD.split("\n") if l.startswith(";   offset") or l.startswith("; Kernarg")]
    launches = [("k1_kernel", 256, 512, K1_LDS), ("k2_kernel", 328, 512, K2_LDS), ("k3_kernel", 234, 320, K3_LDS)]
    for _ in range(OPT["extra_empty"]):
        launches.append(("empty_kernel", 256, 256, 0))
    if OPT["spin"]:
        launches.append(("spin_kernel", 1, 64, 0))
    out = hdr + ["; @launch kernel=%s grid=(%d,1,1) block=(%d,1,1) lds=%d" % l for l in launches]
    out.append('.amdgcn_target "amdgcn-amd-amdhsa--gfx950"')
    out.append(".text")
    mod = sys.modules[__name__]
    kernels = [("k1_kernel", k1, 224), ("k2_kernel", k2, 128), ("k3_kernel", k3, 200)]
    if OPT["extra_empty"]:
        kernels.append(("empty_kernel", lambda a, g=None: (a.label("empty_kernel"), a("s_endpgm")), 8))
    if OPT["spin"]:
        kernels.append(("spin_kernel", spin, 8))
    for name, fn, vg in kernels:
        a = Asm()
        if fn is k1:
            fn(a)
        else:
            fn(a, mod)
        lines, nn = fix_hazards(a.lines)
        sys.stderr.write("%s: %d lines, %d nops inserted\n" % (name, len(lines), nn))
        out += [".globl %s" % name, ".p2align 8", ".type %s,@function" % name] + lines
    for name, fn, vg in kernels:
        out.append(desc(name, vg))
    open(sys.argv[1], "w").write("\n".join(out) + "\n")


if __name__ == "__main__":
    main()
```

```python
import re

TRANS = ("v_exp_f32", "v_log_f32", "v_rcp_f32", "v_rsq_f32", "v_sqrt_f32", "v_sin_f32", "v_cos_f32",
         "v_rcp_iflag_f32")
REG_RE = re.compile(r"(?<![\w.])([vsa])(?:\[(\d+):(\d+)\]|(\d+))(?![\w])")


def regs_of(tok):
    out = set()
    tok = tok.strip()
    for m in REG_RE.finditer(tok):
        k = m.group(1)
        if m.group(2) is not None:
            for i in range(int(m.group(2)), int(m.group(3)) + 1):
                out.add((k, i))
        else:
            out.add((k, int(m.group(4))))
    if re.search(r"\bvcc\b", tok):
        out.add(("s", "vcc"))
    if re.search(r"\bexec\b", tok):
        out.add(("s", "exec"))
    if re.search(r"\bm0\b", tok):
        out.add(("s", "m0"))
    return out


def mfma_passes(op):
    if "32x32x16" in op or "32x32x8" in op:
        return 8
    if "16x16x32" in op or "16x16x16" in op:
        return 4
    raise ValueError(op)


class Ins:
    def __init__(self, text):
        self.text = text
        body = text.split(";")[0].strip()
        self.is_label = body.endswith(":")
        self.is_dir = body.startswith(".") and not self.is_label
        self.op = ""
        self.dst = set()
        self.src = set()
        self.kind = "other"
        if self.is_label or self.is_dir or not body:
            self.kind = "none"
            return
        parts = body.split(None, 1)
        op = parts[0]
        self.op = op
        rest = parts[1] if len(parts) > 1 else ""
        ops = [o.strip() for o in re.split(r",(?![^\[]*\])", rest)] if rest else []
        mods = ""
        if ops:
            last = ops[-1].split(None, 1)
            ops[-1] = last[0]
            mods = last[1] if len(last) > 1 else ""
        self.ops = ops
        self.mods = mods
        R = [regs_of(o) for o in ops]
        allr = set().union(*R) if R else set()
        if op.startswith("v_mfma"):
            self.kind = "mfma"
            self.passes = mfma_passes(op)
            self.dst = R[0]
            self.a = R[1]
            self.b = R[2]
            self.c = R[3]
            self.src = R[1] | R[2] | R[3]
        elif op.startswith("v_cmp"):
            self.kind = "valu"
            self.dst = set(R[0])
            if op.startswith("v_cmpx"):
                self.dst.add(("s", "exec"))
            self.src = set().union(*R[1:])
        elif op.startswith("v_readfirstlane") or op.startswith("v_readlane"):
            self.kind = "valu"
            self.dst = R[0]
            self.src = set().union(*R[1:])
        elif op.startswith("v_permlane") and "swap" in op:
            self.kind = "valu"
            self.dst = R[0] | R[1]
            self.src = R[0] | R[1]
        elif op.startswith("v_"):
            self.kind = "valu"
            self.dst = set(R[0])
            k = 1
            if "_co_" in op or op.startswith("v_div_scale") or op.startswith("v_mad_u64"):
                self.dst |= R[1]
                k = 2
            self.src = set().union(*R[k:]) if len(R) > k else set()
            if op.startswith(("v_fmac", "v_dot2c", "v_writelane")) or "d16" in op or "_dpp" in op or "sdwa" in op:
                self.src |= R[0]
            if op.startswith("v_div_fmas"):
                self.src.add(("s", "vcc"))
        elif op.startswith(("buffer_", "global_", "flat_", "scratch_")):
            self.kind = "vmem"
            is_lds = (" lds" in (" " + mods)) or ("_lds_" in op)
            self.is_lds = is_lds
            if op in ("buffer_wbl2", "buffer_inv"):
                pass
            elif "store" in op or ("atomic" in op and "sc0" not in mods):
                self.src = allr
                self.store_data = R[0] if op.startswith("buffer_") else R[1]
                self.wide = ("x3" in op or "x4" in op)
            elif is_lds:
                self.src = allr | {("s", "m0")}
            else:
                self.dst = R[0]
                self.src = set().union(*R[1:])
                if "d16" in op or "atomic" in op:
                    self.src |= R[0]
        elif op.startswith("ds_"):
            self.kind = "ds"
            if op.startswith(("ds_read", "ds_bpermute", "ds_permute", "ds_swizzle")) or "_rtn" in op:
                self.dst = R[0]
                self.src = set().union(*R[1:])
                if "d16" in op:
                    self.src |= R[0]
            else:
                self.src = allr
        elif op.startswith(("s_load", "s_buffer_load", "s_memtime", "s_memrealtime")):
            self.kind = "smem"
            self.dst = R[0]
            self.src = set().union(*R[1:]) if len(R) > 1 else set()
        elif op.startswith("s_"):
            self.kind = "salu"
            if op.startswith(("s_cmp", "s_cbranch", "s_branch", "s_waitcnt", "s_barrier", "s_nop", "s_endpgm",
                              "s_setprio", "s_sleep", "s_bitcmp", "s_setpc")):
                self.src = allr
            else:
                self.dst = set(R[0]) if R else set()
                self.src = set().union(*R[1:]) if len(R) > 1 else set()
                if "saveexec" in op:
                    self.dst.add(("s", "exec"))
        self.states = 1
        if op == "s_nop":
            self.states = int(ops[0], 0) + 1

    def is_trans(self):
        return self.op.replace("_e32", "").replace("_e64", "") in TRANS

    def is_dpp(self):
        return "_dpp" in self.op


def need_states(p, c):
    n = 0
    vd = {r for r in p.dst if r[0] in "va"}
    sd = {r for r in p.dst if r[0] == "s"}
    if p.kind == "valu" and p.op.startswith("v_dot") and vd & (c.src | c.dst):
        if c.op != p.op or (vd & (regs_of(c.ops[1]) | regs_of(c.ops[2]))):
            n = max(n, 3)
    if p.kind == "valu":
        if c.kind == "mfma" and vd & c.src:
            n = max(n, 2)
        if c.kind == "mfma" and ("s", "exec") in sd:
            n = max(n, 4)
        if c.kind == "valu":
            if p.is_trans() and not c.is_trans() and vd & c.src:
                n = max(n, 1)
            if p.is_trans() and c.is_trans() and vd & c.src:
                n = max(n, 1)
            if c.is_dpp() and vd & c.src:
                n = max(n, 2)
            if c.is_dpp() and ("s", "exec") in sd:
                n = max(n, 5)
            if c.op.startswith("v_permlane") and vd & c.src:
                n = max(n, 2)
            if c.op.startswith("v_permlane") and ("s", "exec") in sd:
                n = max(n, 4)
            if c.op.startswith(("v_readfirstlane", "v_readlane")) and vd & c.src:
                n = max(n, 1)
            if c.op.startswith(("v_readfirstlane", "v_readlane", "v_writelane")) and ("s", "exec") in sd:
                n = max(n, 4)
            if sd & c.src:
                n = max(n, 4 if c.op.startswith(("v_readlane", "v_writelane", "v_div_fmas")) else 2)
            if ("sdwa" in p.op or "op_sel" in p.mods) and vd & (c.src | c.dst):
                n = max(n, 1)
        if c.kind == "vmem" and sd & c.src:
            n = max(n, 5)
        if c.kind in ("salu", "smem") and sd & c.src:
            n = max(n, 1)
    if p.kind == "salu":
        if ("s", "m0") in sd and c.kind in ("vmem", "ds") and ("s", "m0") in c.src:
            n = max(n, 1)
    if p.kind == "vmem" and getattr(p, "wide", False):
        if c.dst & p.store_data:
            n = max(n, 2 if c.kind == "valu" else 1)
    if p.kind == "mfma":
        P = p.passes
        tbl_ab = {2: 5, 4: 8, 8: 12, 16: 20}[P]
        tbl_part = {2: 4, 4: 6, 8: 10, 16: 18}[P]
        tbl_war = {2: 1, 4: 3, 8: 7, 16: 15}[P]
        if c.kind == "mfma":
            if p.dst & (c.a | c.b):
                n = max(n, tbl_ab)
            if p.dst & c.c:
                if not (p.dst == c.c and p.passes == c.passes):
                    n = max(n, tbl_part)
            elif p.dst & c.dst:
                n = max(n, tbl_part)
        elif c.kind in ("valu", "vmem", "ds"):
            if p.dst & (c.src | c.dst):
                n = max(n, tbl_ab)
            if c.kind == "valu" and (p.c & c.dst):
                n = max(n, tbl_war)
    return n


def fix_hazards(lines, window=24):
    out = []
    hist = []
    nins = 0
    for ln in lines:
        ins = Ins(ln)
        if ins.kind == "none":
            out.append(ln)
            continue
        need = 0
        dist = 0
        for p in reversed(hist):
            r = need_states(p, ins)
            if r > dist:
                need = max(need, r - dist)
            dist += p.states
            if dist >= window:
                break
        while need > 0:
            k = min(need, 16)
            nop = Ins("s_nop %d" % (k - 1))
            out.append("  s_nop %d" % (k - 1))
            hist.append(nop)
            need -= k
            nins += 1
        out.append(ln)
        hist.append(ins)
        if ins.op in ("s_branch", "s_endpgm", "s_setpc_b64"):
            hist = []
        if len(hist) > 64:
            hist = hist[-40:]
    return out, nins


class Asm:
    UID = 0

    def __init__(self):
        self.lines = []
        self.uid = 0

    def __call__(self, s):
        for l in s.split("\n"):
            l = l.strip()
            if l:
                self.lines.append(("" if l.endswith(":") else "  ") + l)

    def label(self, name):
        self.lines.append(name + ":")

    def newlabel(self, base):
        Asm.UID += 1
        return "L_%s_%d" % (base, Asm.UID)

    def c(self, text):
        self.lines.append("  ; " + text)


def vr(a, n=1):
    return "v%d" % a if n == 1 else "v[%d:%d]" % (a, a + n - 1)


def sr(a, n=1):
    return "s%d" % a if n == 1 else "s[%d:%d]" % (a, a + n - 1)
```

```python
import struct
from asmdsl import vr, sr
import layout as L

OPT = dict(stamp=0, spin="", extra_empty=0, st1="sc1", st2="sc1", la=2, moe=1, nopoll=0, slp=8, pl="sc1", ps="sc1", rb=3, slp0=24, wdel=0, thr=0, wol2=0, old="sc1", stw=0, hdel=0, sperm=0, k1only=0, notail=0, ttouch=0, lao=4, wos=2, qslp=0, g1s=1, dpos=9, kvl="sc1", pr1=0, pr2=3, woe=0, ppos=4, pst="sc1", slp2=40, slp3=8, st11=0, wtp=99, ph=5, pr3=3, wt2=0, wth=0, dearly=0, dtouch=0, nodown=0, nopois=0, t0p="", ctouch=1, w8e=1, ost="", auxp=0, can=0, cdel=0)


def f32(x):
    return "0x%08x" % struct.unpack("<I", struct.pack("<f", x))[0]


LOG2E = 1.4426950408889634
QSCALE = (18 ** -0.5) * LOG2E
STAMP0 = 66
NST = 15


def stamp(a, j):
    if OPT["stamp"]:
        a("s_memrealtime %s" % sr(STAMP0 + 2 * j, 2))


def stamp_init(a):
    if OPT["stamp"]:
        for j in range(2 * NST):
            a("s_mov_b32 s%d, 0" % (STAMP0 + j))


def stamp_flush(a, kidx, wsreg, vt):
    if not OPT["stamp"]:
        return
    a("s_waitcnt lgkmcnt(0)")
    a("s_mov_b64 exec, 1")
    a("s_lshl_b32 s98, s2, 7")
    a("s_add_u32 s98, s98, %d" % (L.WS_STAMP + kidx * 512 * 128))
    a("v_mov_b32 v%d, s98" % vt)
    for j in range(NST):
        a("v_mov_b32 v%d, s%d" % (vt + 2, STAMP0 + 2 * j))
        a("v_mov_b32 v%d, s%d" % (vt + 3, STAMP0 + 2 * j + 1))
        a("global_store_dwordx2 v%d, %s, %s offset:%d" % (vt, vr(vt + 2, 2), sr(wsreg, 2), 8 * j))
        a("s_nop 1")
    a("v_mov_b32 v%d, 0x54414D50" % (vt + 2))
    a("v_mov_b32 v%d, 0x53" % (vt + 3))
    a("global_store_dwordx2 v%d, %s, %s offset:120" % (vt, vr(vt + 2, 2), sr(wsreg, 2)))


def stamp_end(a, wave, kidx, wsreg=8, vt=30):
    if OPT["stamp"]:
        lab = a.newlabel("se")
        a("s_cmp_eq_u32 s3, %d" % wave)
        a("s_cbranch_scc0 %s" % lab)
        stamp_flush(a, kidx, wsreg, vt)
        a("s_endpgm")
        a.label(lab)


def srd(a, d, base, nbytes):
    a("s_mov_b32 s%d, s%d" % (d, base))
    a("s_and_b32 s%d, s%d, 0xffff" % (d + 1, base + 1))
    a("s_mov_b32 s%d, %s" % (d + 2, nbytes))
    a("s_mov_b32 s%d, 0x20000" % (d + 3))


def srd_off(a, d, base, off, nbytes):
    a("s_add_u32 s%d, s%d, %s" % (d, base, off))
    a("s_addc_u32 s%d, s%d, 0" % (d + 1, base + 1))
    a("s_and_b32 s%d, s%d, 0xffff" % (d + 1, d + 1))
    a("s_mov_b32 s%d, %s" % (d + 2, nbytes))
    a("s_mov_b32 s%d, 0x20000" % (d + 3))


def bf16_round(a, dst, src):
    a("v_cvt_pk_bf16_f32 v%d, v%d, v%d" % (dst, src, src))
    a("v_lshlrev_b32 v%d, 16, v%d" % (dst, dst))


def sigmoid(a, dst, src):
    a("v_mul_f32 v%d, %s, v%d" % (dst, f32(-LOG2E), src))
    a("v_exp_f32 v%d, v%d" % (dst, dst))
    a("v_add_f32 v%d, 1.0, v%d" % (dst, dst))
    a("v_rcp_f32 v%d, v%d" % (dst, dst))


def wave_umax(a, v, sdst):
    for mod in ("row_shr:1 row_mask:0xf", "row_shr:2 row_mask:0xf", "row_shr:4 row_mask:0xf",
                "row_shr:8 row_mask:0xf", "row_bcast:15 row_mask:0xa", "row_bcast:31 row_mask:0xc"):
        a("v_max_u32_dpp v%d, v%d, v%d %s bank_mask:0xf" % (v, v, v, mod))
    a("v_readlane_b32 s%d, v%d, 63" % (sdst, v))


def sum8(a, regs):
    for mod in ("quad_perm:[1,0,3,2]", "quad_perm:[2,3,0,1]", "row_half_mirror"):
        for v in regs:
            a("v_add_f32_dpp v%d, v%d, v%d %s row_mask:0xf bank_mask:0xf" % (v, v, v, mod))


def sel_masks(a, sbase, vt):
    a("v_bfe_u32 v%d, v0, 1, 2" % vt)
    for q in range(4):
        a("v_cmp_eq_u32 s[%d:%d], %d, v%d" % (sbase + 2 * q, sbase + 2 * q + 1, q, vt))


def selector(a, dst, src, sbase):
    for q in range(4):
        a("v_cndmask_b32 v%d, 0, v%d, s[%d:%d]" % (dst + q, src, sbase + 2 * q, sbase + 2 * q + 1))
```

```python
from asmdsl import vr, sr
import layout as L
from common import *

SLOT = 34816
K1_LDS = 4 * SLOT
IMG = SLOT
K1_VGPR = 168


def copy_scalars(a):
    a("s_mul_i32 s55, s34, %d" % (4 * L.PAIR_BYTES))
    a("s_mul_i32 s56, s35, 9216")
    a("s_add_u32 s55, s55, s56")
    a("s_lshl_b32 s56, s3, 10")
    a("s_add_u32 s55, s55, s56")
    for j in range(5):
        a("s_add_u32 s57, s3, %d" % (8 * j))
        a("s_mul_i32 s57, s57, 57")
        a("s_lshr_b32 s57, s57, 9")
        a("s_mul_i32 s57, s57, %d" % (L.PAIR_BYTES - 9216))
        a("s_add_u32 s57, s57, s55")
        a("s_add_u32 s%d, s57, %d" % (50 + j, 8192 * j))


def k1(a):
    a.label("k1_kernel")
    a("s_cmp_ge_u32 s2, 256")
    a("s_cbranch_scc1 L_k1_end")
    stamp_init(a)
    stamp(a, 0)
    a("s_load_dwordx4 s[4:7], s[0:1], 0")
    a("s_load_dwordx2 s[8:9], s[0:1], 88")
    a("v_lshrrev_b32 v1, 6, v0")
    a("v_and_b32 v0, 63, v0")
    a("v_readfirstlane_b32 s3, v1")
    a("s_and_b32 s30, s2, 3")
    a("s_bfe_u32 s31, s2, 0x10002")
    a("s_lshr_b32 s32, s2, 3")
    a("s_cmp_ge_u32 s32, 24")
    a("s_cbranch_scc1 L_k1_sp")
    a("s_cmp_eq_u32 s3, 8")
    a("s_cbranch_scc1 L_k1_end")
    a("s_mul_i32 s33, s32, 43")
    a("s_lshr_b32 s33, s33, 7")
    a("s_mul_i32 s34, s33, 3")
    a("s_sub_u32 s34, s32, s34")
    a("s_lshl_b32 s34, s34, 2")
    a("s_add_u32 s34, s34, s30")
    a("s_lshl_b32 s35, s31, 3")
    a("s_add_u32 s35, s35, s33")
    a("s_cmp_lt_u32 s3, 4")
    a("s_cbranch_scc1 L_k1_comp")
    a("s_cmp_lt_u32 s3, 6")
    a("s_cbranch_scc0 L_k1_ldw")
    a("s_lshr_b32 s41, s34, 2")
    a("s_mul_i32 s41, s41, 43")
    a("v_add_u32 v6, s41, v0")
    a("v_mul_u32_u24 v6, 1152, v6")
    a("v_and_b32 v7, 7, v0")
    a("s_lshl_b32 s41, s33, 3")
    a("v_add_u32 v7, s41, v7")
    a("v_mul_u32_u24 v7, 3456, v7")
    a("v_lshrrev_b32 v8, 3, v0")
    a("v_lshl_add_u32 v7, v8, 7, v7")
    a("s_cmp_eq_u32 s3, 4")
    a("s_cselect_b32 s42, 43, 24")
    a("s_cselect_b64 vcc, -1, 0")
    a("v_cndmask_b32 v6, v7, v6, vcc")
    a("v_cmp_gt_u32 s[44:45], s42, v0")
    a("s_mul_i32 s39, s35, %d" % (128 * 1152))
    a("s_mul_i32 s46, s34, 288")
    a("s_and_b32 s46, s46, 0xffffff80")
    a("s_sub_u32 s47, %d, s46" % (576 * 3456))
    a("s_waitcnt lgkmcnt(0)")
    srd_off(a, 16, 4, "s39", 128 * 1152)
    srd_off(a, 20, 6, "s46", "s47")
    a("s_cmp_eq_u32 s3, 4")
    a("s_cselect_b32 s20, s16, s20")
    a("s_cselect_b32 s21, s17, s21")
    a("s_cselect_b32 s22, s18, s22")
    a("s_mov_b64 exec, s[44:45]")
    a("buffer_load_dword v20, v6, s[20:23], 0 offen")
    a("s_mov_b64 exec, -1")
    a("v_lshrrev_b32 v1, 3, v0")
    a("v_mul_u32_u24 v1, 1152, v1")
    a("v_lshrrev_b32 v2, 4, v0")
    a("v_and_b32 v3, 7, v0")
    a("v_xor_b32 v3, v3, v2")
    a("v_lshl_add_u32 v4, v3, 4, v1")
    a("v_xor_b32 v3, 4, v3")
    a("v_lshl_add_u32 v5, v3, 4, v1")
    a("v_add_u32 v5, %d, v5" % (8 * 1152))
    a("s_sub_u32 s36, s3, 4")
    a("s_mul_i32 s37, s36, %d" % (64 * 1152))
    a("s_lshl_b32 s38, s36, 13")
    copy_scalars(a)
    a("s_waitcnt vmcnt(0)")

    def x_chunk(c):
        for i in range(8):
            a("s_add_u32 m0, s38, %d" % ((c % 4) * SLOT + i * 1024))
            a("s_add_u32 s40, s37, %d" % ((i >> 1) * 16 * 1152 + c * 128))
            a("buffer_load_dwordx4 v%d, s[16:19], s40 offen lds" % (4 + (i & 1)))

    def loader_loop(fn, n):
        LA = OPT["la"]
        a("s_barrier")
        for c in range(LA):
            fn(c)
        for c in range(9):
            a("s_waitcnt vmcnt(%d)" % (n * min(LA - 1, 8 - c)))
            a("s_barrier")
            if c + LA < 9:
                fn(c + LA)

    loader_loop(x_chunk, 8)
    a("s_branch L_k1_copy")
    a.label("L_k1_ldw")
    a("s_movk_i32 s41, 3641")
    for i in range(9):
        a("v_add_u32 v1, %d, v0" % (64 * i))
        a("v_mul_u32_u24 v2, s41, v1")
        a("v_lshrrev_b32 v2, 16, v2")
        a("v_mul_u32_u24 v3, 18, v2")
        a("v_sub_u32 v3, v1, v3")
        a("v_bfe_u32 v1, v2, 2, 2")
        a("v_lshlrev_b32 v1, 3, v1")
        a("v_lshrrev_b32 v13, 4, v2")
        a("v_lshl_add_u32 v1, v13, 2, v1")
        a("v_and_b32 v2, 3, v2")
        a("v_add_u32 v1, v1, v2")
        a("v_mul_u32_u24 v1, 3456, v1")
        a("v_lshl_add_u32 v%d, v3, 4, v1" % (4 + i))
    a("s_sub_u32 s36, s3, 6")
    a("s_mul_i32 s37, s36, %d" % (32 * 3456))
    a("s_mul_i32 s38, s36, 9216")
    a("s_mul_i32 s39, s34, 288")
    a("s_sub_u32 s42, %d, s39" % (576 * 3456))
    copy_scalars(a)
    a("s_waitcnt lgkmcnt(0)")
    srd_off(a, 16, 6, "s39", "s42")

    def w_chunk(c):
        a("s_add_u32 s40, s37, %d" % (c * 64 * 3456))
        for i in range(9):
            a("s_add_u32 m0, s38, %d" % ((c % 4) * SLOT + 16384 + i * 1024))
            a("s_nop 0")
            a("buffer_load_dwordx4 v%d, s[16:19], s40 offen lds" % (4 + i))

    loader_loop(w_chunk, 9)
    a("s_branch L_k1_copy")
    a.label("L_k1_comp")
    ACC = 64
    XF = (136, 144)
    WF = 24
    a("v_and_b32 v8, 15, v0")
    a("v_lshrrev_b32 v9, 4, v0")
    a("v_lshrrev_b32 v10, 1, v8")
    a("v_xor_b32 v10, v10, v9")
    a("s_lshl_b32 s36, s3, 12")
    a("v_lshlrev_b32 v2, 7, v8")
    a("v_lshl_add_u32 v2, v10, 4, v2")
    a("v_add_u32 v2, s36, v2")
    a("v_xor_b32 v3, 64, v2")
    a("v_add_u32 v4, %d, v2" % (2 * SLOT))
    a("v_add_u32 v5, %d, v3" % (2 * SLOT))
    a("v_lshrrev_b32 v10, 2, v0")
    a("v_mul_u32_u24 v6, 288, v10")
    a("v_and_b32 v10, 3, v0")
    a("v_lshl_add_u32 v6, v10, 3, v6")
    a("v_add_u32 v6, 16384, v6")
    a("v_add_u32 v7, %d, v6" % (2 * SLOT))
    a("s_mov_b32 s36, 1.0")
    a("s_cmp_lt_u32 s34, 4")
    a("s_cselect_b32 s36, %s, s36" % f32(QSCALE))
    a("s_mov_b32 s37, s36")
    a("s_lshl_b32 s38, s3, 5")
    a("v_add_u32 v10, s38, v8")
    a("v_mul_u32_u24 v10, 72, v10")
    a("v_lshl_add_u32 v10, v9, 3, v10")
    a("v_add_u32 v10, %d, v10" % IMG)
    for ft in range(9):
        a("v_add_u32 v11, %d, v9" % (4 * ft))
        a("v_mul_u32_u24 v11, 57, v11")
        a("v_lshrrev_b32 v11, 9, v11")
        a("v_mul_u32_u24 v11, 9144, v11")
        a("v_add_u32 v%d, v11, v10" % (12 + ft))
    copy_scalars(a)

    def xreads(step):
        c, h2 = step >> 1, step & 1
        slot = c % 4
        return ["ds_read_b128 %s, v%d offset:%d" % (vr(XF[step & 1] + 4 * tt, 4), 2 + 2 * (slot >> 1) + h2,
                                                    (slot & 1) * SLOT + tt * 2048) for tt in range(2)]

    def wreads(step, ft):
        c, h2 = step >> 1, step & 1
        slot = c % 4
        return ["ds_read_b64_tr_b16 %s, v%d offset:%d" % (vr(WF + 4 * ft + 2 * sec, 2), 6 + (slot >> 1),
                                                          (slot & 1) * SLOT + h2 * 9216 + sec * 4608 + ft * 32)
                for sec in range(2)]

    def mfma(step, ft, tt):
        d = vr(ACC + 8 * ft + 4 * tt, 4)
        return "v_mfma_f32_16x16x32_bf16 %s, %s, %s, %s" % (
            d, vr(WF + 4 * ft, 4), vr(XF[step & 1] + 4 * tt, 4), "0" if step == 0 else d)

    def epi(k):
        ft, tt = k >> 1, k & 1
        b = ACC + 4 * k
        t = 152 + 2 * (k % 8)
        return ["v_pk_mul_f32 %s, %s, s[36:37]" % (vr(b, 2), vr(b, 2)),
                "v_pk_mul_f32 %s, %s, s[36:37]" % (vr(b + 2, 2), vr(b + 2, 2)),
                "v_cvt_pk_bf16_f32 v%d, v%d, v%d" % (t, b, b + 1),
                "v_cvt_pk_bf16_f32 v%d, v%d, v%d" % (t + 1, b + 2, b + 3),
                "ds_write_b64 v%d, %s offset:%d" % (12 + ft, vr(t, 2), 32 * ft + 1152 * tt)]

    a("s_barrier")
    a("s_barrier")
    stamp(a, 1)
    q = []

    def issue(tag, lst):
        for x in lst:
            a(x)
            q.append(tag)

    def need(tag):
        last = max(k for k, v in enumerate(q) if v == tag)
        a("s_waitcnt lgkmcnt(%d)" % min(15, len(q) - 1 - last))

    issue(("x", 0), xreads(0))
    for ft in range(9):
        issue(("w", 0, ft), wreads(0, ft))
    LAG = 3
    for step in range(18):
        if step & 1 and step < 17:
            a("s_barrier")
            stamp(a, 5 + (step >> 1))
        for ft in range(9):
            need(("w", step, ft))
            a(mfma(step, ft, 0))
            if ft == 0 and step < 17:
                issue(("x", step + 1), xreads(step + 1))
            if step == 17 and 2 * ft >= LAG:
                e = epi(2 * ft - LAG)
                for x in e[:4]:
                    a(x)
                issue("e", e[4:])
            a(mfma(step, ft, 1))
            if step < 17:
                issue(("w", step + 1, ft), wreads(step + 1, ft))
            elif 2 * ft + 1 >= LAG:
                e = epi(2 * ft + 1 - LAG)
                for x in e[:4]:
                    a(x)
                issue("e", e[4:])
    for k in range(18 - LAG, 18):
        for x in epi(k):
            a(x)
    stamp(a, 2)
    a("s_waitcnt lgkmcnt(0)")
    a.label("L_k1_copy")
    a("v_lshlrev_b32 v1, 4, v0")
    a("s_lshl_b32 s36, s3, 10")
    a("v_add_u32 v2, s36, v1")
    a("v_add_u32 v3, %d, v2" % (IMG + 4 * 8192))
    srd(a, 24, 8, L.QKV_BYTES)
    a("s_barrier")
    for j in range(4):
        a("ds_read_b128 %s, v2 offset:%d" % (vr(4 + 4 * j, 4), IMG + j * 8192))
    a("s_cmp_lt_u32 s3, 4")
    a("s_cbranch_scc0 L_k1_c4")
    a("ds_read_b128 v[20:23], v3")
    for j in range(5):
        a("s_waitcnt lgkmcnt(%d)" % (4 - j))
        a("buffer_store_dwordx4 %s, v1, s[24:27], s%d offen %s" % (vr(4 + 4 * j, 4), 50 + j, OPT["st1"]))
    if OPT["stamp"]:
        stamp(a, 3)
        a("s_waitcnt vmcnt(0)")
        stamp(a, 4)
        stamp_end(a, 0, 0)
    a("s_endpgm")
    a.label("L_k1_c4")
    for j in range(4):
        a("s_waitcnt lgkmcnt(%d)" % (3 - j))
        a("buffer_store_dwordx4 %s, v1, s[24:27], s%d offen %s" % (vr(4 + 4 * j, 4), 50 + j, OPT["st1"]))
    a("s_endpgm")

    XS, CTL, RED = 0, 1536, 2048
    GW, UW, EX = 64, 100, 136
    a.label("L_k1_sp")
    a("s_load_dwordx2 s[10:11], s[0:1], 32")
    a("s_load_dwordx2 s[12:13], s[0:1], 64")
    a("s_load_dwordx4 s[40:43], s[0:1], 40")
    a("s_load_dwordx2 s[44:45], s[0:1], 16")
    a("s_sub_u32 s36, s2, 192")
    a("s_mov_b32 s53, %d" % L.WS_EPOCH)
    a("s_sub_u32 s3, s3, 1")
    a("s_min_u32 s3, s3, 8")
    a("s_cmp_eq_u32 s3, 8")
    a("s_cbranch_scc1 L_k1_pw")
    a("v_lshrrev_b32 v2, 3, v0")
    a("v_and_b32 v3, 7, v0")
    a("v_lshlrev_b32 v3, 4, v3")
    a("s_cmp_lt_u32 s3, 4")
    a("s_cbranch_scc0 L_k1_sp2")
    a("s_lshl_b32 s34, s36, 2")
    a("s_add_u32 s34, s34, s3")
    a("s_lshl_b32 s33, s34, 3")
    a("v_add_u32 v1, s33, v2")
    a("v_mul_u32_u24 v4, 1152, v1")
    a("v_add_u32 v4, v4, v3")
    a("s_mul_i32 s51, s34, %d" % (7 * 128))
    if OPT["wol2"]:
        a("s_lshr_b32 s52, s36, 3")
        a("s_lshl_b32 s52, s52, 2")
        a("s_add_u32 s52, s52, s3")
        a("s_mul_i32 s52, s52, %d" % (162 * 128))
    else:
        a("s_mul_i32 s52, s34, %d" % (21 * 128))
    a("v_lshlrev_b32 v7, 7, v0")
    a("s_waitcnt lgkmcnt(0)")
    a("s_load_dword s46, s[8:9], s53")
    srd(a, 16, 6, 576 * 3456)
    srd(a, 20, 44, 576 * 1152)
    for i in range(9):
        a("global_load_dwordx4 %s, v4, s[4:5] offset:%d" % (vr(8 + 4 * i, 4), 128 * i))
        if i == 0:
            for j in range(9):
                a("global_load_dwordx4 %s, v3, s[10:11] offset:%d" % (vr(44 + 4 * j, 4), 128 * j))
                a("global_load_dwordx4 %s, v3, s[12:13] offset:%d" % (vr(80 + 4 * j, 4), 128 * j))
        else:
            a("s_add_u32 s53, s51, %d" % (1728 * 128 * i))
            a("s_mov_b64 exec, 0x7f")
            a("buffer_load_dword v124, v7, s[16:19], s53 offen")
            a("s_mov_b64 exec, -1")
    a("s_mov_b64 exec, 0x1fffff")
    a("s_mul_i32 s53, s34, %d" % (21 * 128))
    a("buffer_load_dword v124, v7, s[20:23], s53 offen")
    a("s_mov_b64 exec, -1")
    a.label("L_k1_sp2")
    a("s_lshl_b32 s37, s36, 7")
    a("s_sub_u32 s38, %d, s37" % (576 * 9216))
    a("s_mul_i32 s39, s3, %d" % (72 * 9216))
    a("s_lshr_b32 s48, s36, 3")
    a("s_add_u32 s48, s48, 64")
    a("s_sub_u32 s48, s48, s36")
    a("s_lshl_b32 s48, s48, 7")
    a("s_and_b32 s49, s36, 7")
    a("s_mul_i32 s49, s49, 72")
    a("s_lshl_b32 s50, s3, 3")
    a("s_add_u32 s49, s49, s50")
    a("s_mul_i32 s50, s49, 9216")
    a("s_add_u32 s48, s48, s50")
    a("v_mul_u32_u24 v160, 9216, v2")
    a("v_add_u32 v160, v160, v3")
    a("s_waitcnt lgkmcnt(0)")
    srd_off(a, 16, 40, "s37", "s38")
    srd_off(a, 20, 42, "s37", "s38")
    a("s_barrier")
    a("s_cmp_lt_u32 s3, 4")
    a("s_cbranch_scc0 L_k1_wl")
    a("s_waitcnt vmcnt(2)")
    stamp(a, 6)
    for i in range(36):
        p, q = 116 + (i & 3), 120 + (i & 3)
        a("v_dot2_f32_bf16 v%d, v%d, v%d, %s" % (p, 8 + i, 44 + i, "0" if i < 4 else "v%d" % p))
        a("v_dot2_f32_bf16 v%d, v%d, v%d, %s" % (q, 8 + i, 80 + i, "0" if i < 4 else "v%d" % q))
    a("s_mul_i32 s46, s46, 0x9e3779b1")
    a("s_add_u32 s46, s46, 0x7f4a7c15")
    a("s_nop 0")
    a("v_pk_add_f32 v[116:117], v[116:117], v[118:119]")
    a("v_pk_add_f32 v[120:121], v[120:121], v[122:123]")
    a("v_add_f32 v5, v116, v117")
    a("v_add_f32 v6, v120, v121")
    sum8(a, (5, 6))
    bf16_round(a, 5, 5)
    a("v_ashrrev_i32 v7, 31, v5")
    a("v_or_b32 v7, 0x80000000, v7")
    a("v_xor_b32 v7, v7, v5")
    a("v_and_b32 v7, 0xffff0000, v7")
    a("v_sub_u32 v8, 0x7ff, v1")
    a("v_or_b32 v7, v7, v8")
    a("v_mov_b32 v8, 0")
    a("v_mov_b32 v9, 1")
    a("s_mov_b32 s54, 0x01010101")
    a("s_mov_b32 exec_lo, s54")
    a("s_mov_b32 exec_hi, s54")
    a("ds_max_u32 v8, v7 offset:%d" % CTL)
    a("s_mov_b64 exec, 1")
    a("ds_add_rtn_u32 v9, v8, v9 offset:%d" % (CTL + 4))
    a("ds_read_b32 v10, v8 offset:%d" % CTL)
    a("s_lshl_b32 s53, s36, 3")
    a("s_add_u32 s53, s53, %d" % L.WS_KEYF)
    a("v_mov_b32 v8, s53")
    a("v_mov_b32 v11, s46")
    a("s_waitcnt lgkmcnt(0)")
    a("v_cmp_eq_u32 vcc, 3, v9")
    a("s_and_b64 exec, exec, vcc")
    a("s_cbranch_execz L_k1_nopub")
    a("global_store_dwordx2 v8, v[10:11], s[8:9] sc1")
    a.label("L_k1_nopub")
    a("s_mov_b64 exec, -1")
    bf16_round(a, 6, 6)
    sigmoid(a, 6, 6)
    bf16_round(a, 6, 6)
    a("v_lshlrev_b32 v1, 2, v1")
    a("v_add_u32 v1, %d, v1" % L.WS_G)
    a("s_mov_b32 exec_lo, s54")
    a("s_mov_b32 exec_hi, s54")
    a("global_store_dword v1, v6, s[8:9]")
    a("s_mov_b64 exec, -1")
    stamp(a, 7)
    if OPT["wol2"]:
        srd(a, 24, 44, 576 * 1152)
        a("v_lshlrev_b32 v7, 7, v0")
        for k in range(3):
            a("buffer_load_dword v124, v7, s[24:27], s52 offen")
            a("s_add_u32 s52, s52, %d" % (54 * 128))
    a("s_branch L_k1_wl2")

    a.label("L_k1_pw")
    a("v_mov_b32 v12, 0")
    a("v_mov_b32 v13, 0")
    a("v_mov_b32 v14, 0")
    a("v_mov_b32 v15, 0")
    a("ds_write_b64 v12, v[12:13] offset:%d" % CTL)
    a("s_waitcnt lgkmcnt(0)")
    a("s_load_dword s46, s[8:9], s53")
    a("s_waitcnt lgkmcnt(0)")
    a("s_barrier")
    a("s_cmp_lt_u32 s36, 5")
    a("s_cbranch_scc0 L_k1_nf")
    a("s_lshl_b32 s51, s36, 13")
    a("s_add_u32 s51, s51, %d" % L.WS_FLAG)
    a("v_lshlrev_b32 v4, 7, v0")
    a("v_add_u32 v4, s51, v4")
    a("global_store_dword v4, v12, s[8:9]")
    a.label("L_k1_nf")
    a("s_cmp_lt_u32 s36, 36")
    a("s_cbranch_scc0 L_k1_nz")
    a("s_lshl_b32 s51, s36, 10")
    a("s_add_u32 s51, s51, %d" % L.WS_YP)
    a("v_lshlrev_b32 v4, 4, v0")
    a("v_add_u32 v4, s51, v4")
    a("global_store_dwordx4 v4, v[12:15], s[8:9]")
    a.label("L_k1_nz")
    a("v_lshlrev_b32 v8, 3, v0")
    a("v_add_u32 v8, %d, v8" % L.WS_KEYF)
    srd(a, 24, 4, 2048 * 1152)
    a("s_mul_i32 s46, s46, 0x9e3779b1")
    a("s_add_u32 s46, s46, 0x7f4a7c15")
    a("s_mov_b32 s53, 0x100000")
    a.label("L_k1_own")
    a("ds_read_b32 v10, v12 offset:%d" % (CTL + 4))
    a("s_sleep 2")
    a("s_waitcnt lgkmcnt(0)")
    a("v_readfirstlane_b32 s54, v10")
    a("s_sub_u32 s53, s53, 1")
    a("s_cselect_b32 s54, 4, s54")
    a("s_cmp_lt_u32 s54, 4")
    a("s_cbranch_scc1 L_k1_own")
    stamp(a, 1)
    a("s_mov_b32 s53, 0x40000")
    a("s_sleep %d" % OPT["slp0"])
    a.label("L_k1_poll")
    a("global_load_dwordx2 v[10:11], v8, s[8:9] sc1")
    a("s_waitcnt vmcnt(0)")
    a("v_cmp_eq_u32 vcc, s46, v11")
    a("s_cmp_eq_u64 vcc, -1")
    a("s_cbranch_scc1 L_k1_pd")
    a("s_sleep %d" % OPT["slp"])
    a("s_sub_u32 s53, s53, 1")
    a("s_cmp_lg_u32 s53, 0")
    a("s_cbranch_scc1 L_k1_poll")
    a.label("L_k1_pd")
    stamp(a, 2)
    wave_umax(a, 10, 53)
    a("s_and_b32 s54, s53, 0x7ff")
    a("s_sub_u32 s54, 2047, s54")
    a("s_mul_i32 s55, s54, 1152")
    a("v_lshlrev_b32 v8, 4, v0")
    a("s_mov_b32 m0, %d" % XS)
    a("s_add_u32 s56, s55, 1024")
    a("buffer_load_dwordx4 v8, s[24:27], s55 offen lds")
    a("s_mov_b32 m0, %d" % (XS + 1024))
    a("s_mov_b64 exec, 0xff")
    a("buffer_load_dwordx4 v8, s[24:27], s56 offen lds")
    a("s_mov_b64 exec, -1")
    a("s_waitcnt vmcnt(0)")
    stamp(a, 3)
    a("s_barrier")
    a("s_cmp_eq_u32 s36, 0")
    a("s_cbranch_scc0 L_k1_nosel")
    a("s_and_b32 s55, s53, 0xffff0000")
    a("s_xor_b32 s56, s55, 0x80000000")
    a("s_xor_b32 s57, s55, 0xffff0000")
    a("s_bitcmp1_b32 s55, 31")
    a("s_cselect_b32 s55, s56, s57")
    a("v_mov_b32 v12, s55")
    sigmoid(a, 13, 12)
    bf16_round(a, 13, 13)
    a("v_mov_b32 v12, s54")
    a("v_mov_b32 v8, %d" % L.WS_SEL)
    a("s_mov_b64 exec, 1")
    a("global_store_dwordx2 v8, v[12:13], s[8:9]")
    a("v_mov_b32 v8, %d" % L.WS_EPOCH)
    a("v_mov_b32 v12, s46")
    a("global_store_dword v8, v12, s[8:9]")
    a.label("L_k1_nosel")
    stamp_end(a, 8, 5)
    a("s_endpgm")

    a.label("L_k1_wl")
    WL = 20480
    a("s_mul_i32 s57, s3, 22528")
    a("s_add_u32 s57, s57, %d" % (WL - 4 * 22528))
    a("s_sub_u32 s58, s39, %d" % (4 * 72 * 9216))
    a("s_sub_u32 s59, s48, %d" % (32 * 9216))
    a("s_cmp_eq_u32 s3, 4")
    a("s_cbranch_scc0 L_k1_wl1")
    a("s_add_u32 s55, s59, %d" % (64 * 9216))
    a("s_add_u32 m0, s57, %d" % (20 * 1024))
    a("buffer_load_dwordx4 v160, s[16:19], s55 offen nt lds")
    a("s_add_u32 m0, s57, %d" % (21 * 1024))
    a("buffer_load_dwordx4 v160, s[20:23], s55 offen nt lds")
    a.label("L_k1_wl1")
    for i in range(9):
        a("s_add_u32 s55, s58, %d" % (8 * 9216 * i))
        a("s_add_u32 m0, s57, %d" % (i * 1024))
        a("buffer_load_dwordx4 v160, s[16:19], s55 offen nt lds")
        a("s_add_u32 m0, s57, %d" % ((9 + i) * 1024))
        a("buffer_load_dwordx4 v160, s[20:23], s55 offen nt lds")
    a("s_add_u32 m0, s57, %d" % (18 * 1024))
    a("buffer_load_dwordx4 v160, s[16:19], s59 offen nt lds")
    a("s_add_u32 m0, s57, %d" % (19 * 1024))
    a("buffer_load_dwordx4 v160, s[20:23], s59 offen nt lds")
    for i in range(9):
        a("s_add_u32 s55, s39, %d" % (8 * 9216 * i))
        a("buffer_load_dwordx4 %s, v160, s[16:19], s55 offen nt" % vr(GW + 4 * i, 4))
        a("buffer_load_dwordx4 %s, v160, s[20:23], s55 offen nt" % vr(UW + 4 * i, 4))
    a("buffer_load_dwordx4 %s, v160, s[16:19], s48 offen nt" % vr(EX, 4))
    a("buffer_load_dwordx4 %s, v160, s[20:23], s48 offen nt" % vr(EX + 4, 4))
    a.label("L_k1_wl2")
    a("s_mul_i32 s55, s3, 144")
    a("v_lshlrev_b32 v51, 1, v2")
    a("s_lshl_b32 s56, s49, 1")
    a("v_add_u32 v52, s56, v51")
    a("v_add_u32 v51, s55, v51")
    a("v_and_b32 v1, 1, v0")
    a("v_lshlrev_b32 v1, 4, v1")
    sel_masks(a, 56, 4)
    a("v_lshrrev_b32 v4, 5, v0")
    a("v_bfe_u32 v5, v0, 3, 1")
    a("v_cmp_eq_u32 s[64:65], v4, v5")
    a("v_bfe_u32 v4, v0, 4, 1")
    a("v_lshlrev_b32 v4, 7, v4")
    a("v_and_b32 v6, 7, v0")
    a("v_lshl_add_u32 v4, v6, 2, v4")
    a("s_lshl_b32 s55, s3, 1")
    a("v_add_u32 v5, s55, v5")
    a("v_lshl_add_u32 v6, v5, 8, v4")
    a("s_mul_i32 s55, s3, 22528")
    a("s_add_u32 s55, s55, %d" % WL)
    a("v_lshlrev_b32 v53, 4, v0")
    a("v_add_u32 v53, s55, v53")
    stamp(a, 1)
    a("s_waitcnt vmcnt(20)")
    stamp(a, 2)
    a("s_barrier")
    stamp(a, 3)
    for i in range(9):
        a("ds_read_u16 v%d, v51 offset:%d" % (32 + i, XS + 16 * i))
    a("ds_read_u16 v41, v52 offset:%d" % XS)
    a("ds_read_u16 v42, v52 offset:%d" % (XS + 128))
    a("s_cmp_lt_u32 s3, 4")
    a("s_cbranch_scc0 L_k1_wl3")
    for i in range(22):
        a("ds_read_b128 %s, v53 offset:%d" % (vr(GW + 4 * i, 4), 1024 * i))
    a.label("L_k1_wl3")
    a("s_waitcnt lgkmcnt(0)")
    for i in range(11):
        a("v_lshlrev_b32 v%d, v1, v%d" % (32 + i, 32 + i))
    for i in range(9):
        selector(a, 44, 32 + i, 56)
        a("s_waitcnt vmcnt(%d)" % (2 * (8 - i) + 2))
        a("v_mfma_f32_16x16x32_bf16 v[16:19], %s, v[44:47], %s" % (vr(GW + 4 * i, 4), "0" if i == 0 else "v[16:19]"))
        a("v_mfma_f32_16x16x32_bf16 v[20:23], %s, v[44:47], %s" % (vr(UW + 4 * i, 4), "0" if i == 0 else "v[20:23]"))
    selector(a, 44, 41, 56)
    a("s_waitcnt vmcnt(0)")
    a("v_mfma_f32_16x16x32_bf16 v[24:27], %s, v[44:47], 0" % vr(EX, 4))
    a("v_mfma_f32_16x16x32_bf16 v[28:31], %s, v[44:47], 0" % vr(EX + 4, 4))
    a("s_cmp_eq_u32 s3, 0")
    a("s_cbranch_scc0 L_k1_nox")
    selector(a, 44, 42, 56)
    a("v_mfma_f32_16x16x32_bf16 v[24:27], %s, v[44:47], v[24:27]" % vr(EX + 8, 4))
    a("v_mfma_f32_16x16x32_bf16 v[28:31], %s, v[44:47], v[28:31]" % vr(EX + 12, 4))
    a.label("L_k1_nox")
    stamp(a, 4)
    a("s_mov_b64 exec, s[64:65]")
    a("s_nop 7")
    for arr in range(4):
        for r in range(4):
            a("ds_write_b32 v6, v%d offset:%d" % (16 + 4 * arr + r, RED + 4096 * arr + 32 * r))
    a("s_mov_b64 exec, -1")
    a("s_lshl_b32 s55, s3, 12")
    a("v_lshlrev_b32 v8, 2, v0")
    a("v_add_u32 v9, s55, v8")
    a("s_waitcnt lgkmcnt(0)")
    a("s_barrier")
    stamp_end(a, 7, 4)
    a("s_cmp_lt_u32 s3, 4")
    a("s_cbranch_scc0 L_k1_end")
    for p in range(8):
        a("ds_read2st64_b32 %s, v9 offset0:%d offset1:%d" % (vr(16 + 2 * p, 2), RED // 256 + 2 * p, RED // 256 + 2 * p + 1))
    a("s_lshr_b32 s55, s3, 1")
    a("s_lshl_b32 s55, s55, 6")
    a("s_add_u32 s55, s55, s36")
    a("s_lshl_b32 s55, s55, 1")
    a("s_and_b32 s56, s3, 1")
    a("s_add_u32 s55, s55, s56")
    a("s_lshl_b32 s55, s55, 8")
    a("s_add_u32 s55, s55, %d" % L.WS_PA)
    a("v_add_u32 v8, s55, v8")
    a("s_waitcnt lgkmcnt(0)")
    for w in (8, 4, 2, 1):
        for p in range(w):
            a("v_add_f32 v%d, v%d, v%d" % (16 + p, 16 + p, 16 + p + w))
    a("global_store_dword v8, v16, s[8:9]")
    if OPT["stamp"]:
        stamp(a, 5)
        stamp_end(a, 0, 2)
    a.label("L_k1_end")
    a("s_endpgm")
```

```python
from asmdsl import vr, sr
import layout as L
from common import *
from k2 import (KB, VB, QB, ONES, vK, vKt, vV, vStep, QM, QT, MSK, KF, VF, PP, SS, OO, T,
                k_reads, v_reads, qk, pv, attn_loop)

WO = 66560
CTL = 149568
YB = 149632
HP = 149952
YT = 154560
K2_LDS = 156672
K2_VGPR = 168
PART = 0
STG = 20480
XR = 128
GR = 140
RW = 146
VO = 149


def lds_spin(a, name, addr_v, off, regs, conds, slp=1):
    n = len(conds)
    a("s_mov_b32 s60, 0x100000")
    a.label(name)
    a(("ds_read_b64 %s, v%d offset:%d" % (vr(regs, 2), addr_v, off)) if n == 2 else
      ("ds_read_b32 v%d, v%d offset:%d" % (regs, addr_v, off)))
    a("s_waitcnt lgkmcnt(0)")
    a("v_readfirstlane_b32 s61, v%d" % regs)
    if n == 2:
        a("v_readfirstlane_b32 s62, v%d" % (regs + 1))
        a("s_lshl_b32 s62, s62, 8")
        a("s_or_b32 s61, s61, s62")
        a("s_cmp_eq_u32 s61, %d" % (conds[0] | (conds[1] << 8)))
    else:
        a("s_cmp_eq_u32 s61, %d" % conds[0])
    a("s_cbranch_scc1 %s_d" % name)
    if slp:
        a("s_sleep %d" % slp)
    a("s_sub_u32 s60, s60, 1")
    a("s_cmp_lg_u32 s60, 0")
    a("s_cbranch_scc1 %s" % name)
    a.label(name + "_d")


def flag_poll(a, name, voff, vt, want):
    a("s_mov_b64 exec, 0xffff")
    a("s_mov_b32 s60, 0x40000")
    a.label(name)
    a("global_load_dword v%d, v%d, s[8:9] sc1" % (vt, voff))
    a("s_waitcnt vmcnt(0)")
    a("v_cmp_eq_u32 vcc, %d, v%d" % (want, vt))
    a("s_cmp_eq_u64 vcc, exec")
    a("s_cbranch_scc1 %s_d" % name)
    a("s_sleep 1")
    a("s_sub_u32 s60, s60, 1")
    a("s_cmp_lg_u32 s60, 0")
    a("s_cbranch_scc1 %s" % name)
    a.label(name + "_d")
    a("s_mov_b64 exec, -1")


def lds_inc(a, vz, vt, off, rtn=False):
    a("v_mov_b32 v%d, 1" % vt)
    a("s_mov_b64 exec, 1")
    if rtn:
        a("ds_add_rtn_u32 v%d, v%d, v%d offset:%d" % (vt, vz, vt, off))
    else:
        a("ds_add_u32 v%d, v%d offset:%d" % (vz, vt, off))
    a("s_mov_b64 exec, -1")


def k2(a):
    a.label("k2_kernel")
    a("s_cmp_ge_u32 s2, 256")
    a("s_cbranch_scc1 L_k2_end")
    stamp_init(a)
    stamp(a, 0)
    a("s_load_dwordx2 s[8:9], s[0:1], 88")
    a("s_load_dwordx2 s[4:5], s[0:1], 0")
    a("s_load_dwordx2 s[6:7], s[0:1], 16")
    a("s_load_dwordx2 s[10:11], s[0:1], 72")
    a("s_load_dwordx2 s[14:15], s[0:1], 56")
    a("v_lshrrev_b32 v1, 6, v0")
    a("v_and_b32 v0, 63, v0")
    a("v_readfirstlane_b32 s3, v1")
    a("s_and_b32 s30, s2, 3")
    a("s_bfe_u32 s33, s2, 0x10002")
    a("s_bfe_u32 s32, s2, 0x20003")
    a("s_lshl_b32 s31, s30, 2")
    a("s_add_u32 s31, s31, s32")
    a("s_lshl_b32 s32, s33, 3")
    a("s_lshr_b32 s34, s2, 5")
    a("s_add_u32 s32, s32, s34")
    a("s_lshl_b32 s52, s33, 4")
    a("s_lshl_b32 s34, s30, 2")
    a("s_add_u32 s52, s52, s34")
    a("s_lshr_b32 s34, s2, 6")
    a("s_add_u32 s52, s52, s34")
    a("s_bfe_u32 s53, s2, 0x30003")
    a("s_cmp_ge_u32 s3, 8")
    a("s_cbranch_scc1 L_k2_help")
    a("s_mul_i32 s33, s31, %d" % L.PAIR_BYTES)
    a("s_mul_i32 s34, s32, 9216")
    a("s_add_u32 s33, s33, s34")
    a("s_lshl_b32 s34, s3, 10")
    a("s_add_u32 s33, s33, s34")
    a("s_add_u32 s35, s33, %d" % (16 * L.PAIR_BYTES - 18432 - KB))
    a("s_add_u32 s36, s33, %d" % (32 * L.PAIR_BYTES - 18432 - VB))
    a("s_sub_u32 s37, s33, %d" % QB)
    a("v_lshlrev_b32 v1, 4, v0")
    a("s_barrier")
    a("s_waitcnt lgkmcnt(0)")
    stamp(a, 8)
    srd(a, 16, 8, L.QKV_BYTES)
    a("s_mov_b32 s40, %d" % L.WS_SEL)
    a("s_load_dwordx2 s[12:13], s[8:9], s40")
    for j in (7, 0, 1, 2, 3, 4, 5, 6):
        if j <= 2:
            src = "s35"
        elif j == 3:
            a("s_cmp_lt_u32 s3, 3")
            a("s_cselect_b32 s38, s35, s36")
            src = "s38"
        elif j <= 5:
            src = "s36"
        elif j == 6:
            a("s_cmp_lt_u32 s3, 6")
            a("s_cselect_b32 s38, s36, s37")
            src = "s38"
        else:
            src = "s37"
            a("s_cmp_eq_u32 s3, 7")
            a("s_cbranch_scc1 L_k2_dma7")
        a("s_add_u32 m0, s34, %d" % (8192 * j))
        a("s_add_u32 s39, %s, %d" % (src, 8192 * j))
        a("buffer_load_dwordx4 v1, s[16:19], s39 offen lds")
        if j == 7:
            a.label("L_k2_dma7")
    stamp(a, 9)
    a("v_and_b32 v2, 3, v0")
    a("v_mul_u32_u24 v2, 576, v2")
    a("v_mov_b32 v4, 0x3f803f80")
    a("v_mov_b32 v5, v4")
    a("ds_write_b64 v2, v[4:5] offset:%d" % ONES)
    a("s_and_b32 s42, s3, 1")
    a("s_lshr_b32 s43, s3, 1")
    a("s_mul_i32 s44, s43, 2304")
    a("s_mul_i32 s45, s42, 40")
    a("v_and_b32 v%d, 31, v0" % T)
    a("v_lshrrev_b32 v%d, 5, v0" % (T + 1))
    a("v_mul_u32_u24 v%d, 72, v%d" % (vKt, T))
    a("v_add_u32 v%d, s44, v%d" % (vKt, vKt))
    a("v_lshl_add_u32 v%d, v%d, 4, v%d" % (vK, T + 1, vKt))
    a("v_add_u32 v%d, s45, v%d" % (vK, vK))
    a("v_add_u32 v%d, 32, v%d" % (vKt, vKt))
    a("v_bfe_u32 v%d, v0, 2, 2" % (T + 2))
    a("v_lshl_add_u32 v%d, v%d, 2, v%d" % (T + 2, T + 1, T + 2))
    a("v_mul_u32_u24 v%d, 72, v%d" % (T + 2, T + 2))
    a("s_add_u32 s46, s44, %d" % VB)
    a("v_add_u32 v%d, s46, v%d" % (T + 2, T + 2))
    a("v_and_b32 v%d, 3, v0" % (T + 3))
    a("v_lshlrev_b32 v%d, 3, v%d" % (T + 4, T + 3))
    a("v_add_u32 v%d, s45, v%d" % (T + 4, T + 4))
    a("v_and_b32 v%d, 16, v0" % (T + 5))
    a("v_cmp_eq_u32 vcc, 0, v%d" % (T + 5))
    a("v_cndmask_b32 v%d, 32, v%d, vcc" % (T + 4, T + 4))
    a("v_add_u32 v%d, v%d, v%d" % (vV, T + 2, T + 4))
    a("v_and_b32 v%d, 19, v0" % (T + 5))
    a("v_cmp_lt_u32 vcc, 16, v%d" % (T + 5))
    a("v_mov_b32 v%d, %d" % (T + 6, ONES))
    a("v_cndmask_b32 v%d, v%d, v%d, vcc" % (vV, vV, T + 6))
    a("v_mov_b32 v%d, 2304" % (T + 6))
    a("v_cndmask_b32 v%d, v%d, 0, vcc" % (vStep, T + 6))
    a("v_lshlrev_b32 v%d, 2, v%d" % (T + 2, T + 1))
    a("v_sub_u32 v%d, v%d, v%d" % (T + 2, T, T + 2))
    a("v_mov_b32 v%d, 0xffff" % (T + 3))
    for q in range(8):
        kl = 8 * (q >> 1) + 2 * (q & 1)
        a("v_cmp_le_i32 vcc, %d, v%d" % (kl, T + 2))
        a("v_cndmask_b32 v%d, 0, v%d, vcc" % (MSK + q, T + 3))
        a("v_cmp_le_i32 vcc, %d, v%d" % (kl + 1, T + 2))
        a("v_cndmask_b32 v%d, v%d, -1, vcc" % (MSK + q, MSK + q))
    a("s_lshl_b32 s41, s32, 2")
    a("s_add_u32 s41, s41, s43")
    a("s_sub_i32 s41, 8, s41")
    srd_off(a, 24, 8, L.WS_O, 128 * 18432)
    a("s_lshl_b32 s46, s32, 3")
    a("s_lshl_b32 s47, s43, 1")
    a("s_add_u32 s46, s46, s47")
    a("s_mul_i32 s46, s46, 18432")
    a("s_lshl_b32 s58, s31, 10")
    a("s_lshl_b32 s48, s42, 9")
    a("s_add_u32 s58, s58, s48")
    a("s_add_u32 s58, s58, s46")
    a("s_lshr_b32 s59, s31, 3")
    a("s_lshl_b32 s59, s59, 10")
    a("s_bfe_u32 s48, s31, 0x20001")
    a("s_lshl_b32 s48, s48, 8")
    a("s_add_u32 s59, s59, s48")
    a("s_and_b32 s48, s31, 1")
    a("s_lshl_b32 s48, s48, 3")
    a("s_add_u32 s59, s59, s48")
    a("s_lshl_b32 s48, s42, 2")
    a("s_add_u32 s59, s59, s48")
    a("s_add_u32 s59, s59, s46")
    a("s_add_u32 s59, s59, 16384")
    a("v_bfe_u32 v152, v0, 4, 1")
    a("v_mul_u32_u24 v152, 18432, v152")
    a("v_and_b32 v153, 15, v0")
    a("v_lshl_add_u32 v152, v153, 4, v152")
    a("v_lshrrev_b32 v153, 5, v0")
    a("v_lshl_add_u32 v153, v153, 8, v152")
    a("v_mov_b32 v154, %d" % CTL)
    stamp(a, 10)
    a("s_waitcnt vmcnt(0)")
    stamp(a, 11)
    lds_inc(a, 154, T, 8)
    lds_spin(a, "L_k2_kv", 154, 8, T, (8,), 0)
    stamp(a, 1)
    if OPT["stamp"]:
        a("s_memtime s[96:97]")
    a("ds_read_b64 %s, v%d offset:%d" % (vr(QM, 2), vK, QB))
    a("ds_read_b64 %s, v%d offset:%d" % (vr(QM + 2, 2), vK, QB + 8))
    a("ds_read_b64 %s, v%d offset:%d" % (vr(QT, 2), vKt, QB))
    for x in k_reads(0) + k_reads(1) + v_reads(0):
        a(x)
    a("v_cmp_gt_u32 vcc, 32, v0")
    a("s_cmp_eq_u32 s42, 0")
    a("s_cselect_b64 s[46:47], vcc, 0")
    a("s_cselect_b64 s[48:49], 0, vcc")
    a("s_waitcnt lgkmcnt(7)")
    a("v_cndmask_b32 v%d, 0, v%d, s[46:47]" % (QT, QT))
    a("v_cndmask_b32 v%d, 0, v%d, s[48:49]" % (QT + 1, QT + 1))
    for x in qk(0):
        a(x)
    a("s_cmp_lt_u32 s32, 2")
    a("s_cbranch_scc1 L_k2_masked")
    attn_loop(a, False)
    a("s_branch L_k2_check")
    a.label("L_k2_masked")
    a("s_nop 7")
    attn_loop(a, True)
    a.label("L_k2_check")
    stamp(a, 2)
    if OPT["stamp"]:
        a("s_memtime s[92:93]")
        a("s_waitcnt lgkmcnt(0)")
        a("s_sub_u32 s92, s92, s96")
        a("s_add_u32 s92, s92, s66")
        a("s_addc_u32 s93, s67, 0")
    a("s_mov_b32 s46, %s" % f32(2.0 ** 60))
    a("s_mov_b32 s47, %s" % f32(2.0 ** -60))
    a("s_nop 7")
    a("s_nop 1")
    a("v_rcp_f32 v%d, v%d" % (T, OO + 12))
    a("v_cmp_gt_f32 s[50:51], s46, v%d" % (OO + 12))
    a("v_cmp_lt_f32 vcc, s47, v%d" % (OO + 12))
    a("s_and_b64 s[50:51], s[50:51], vcc")
    a("v_add_f32 v%d, abs(v%d), abs(v%d)" % (T + 1, OO, OO + 1))
    a("v_add_f32 v%d, abs(v%d), abs(v%d)" % (T + 2, OO + 2, OO + 3))
    a("v_add_f32 v%d, abs(v%d), abs(v%d)" % (T + 3, OO + 4, OO + 5))
    a("v_add_f32 v%d, abs(v%d), abs(v%d)" % (T + 4, OO + 6, OO + 7))
    a("v_add_f32 v%d, abs(v%d), abs(v%d)" % (T + 5, OO + 8, OO + 9))
    a("v_add_f32 v%d, abs(v%d), abs(v%d)" % (T + 6, OO + 10, OO + 11))
    a("v_add_f32 v%d, v%d, v%d" % (T + 1, T + 1, T + 2))
    a("v_add_f32 v%d, v%d, v%d" % (T + 3, T + 3, T + 4))
    a("v_add_f32 v%d, v%d, v%d" % (T + 5, T + 5, T + 6))
    a("v_add_f32 v%d, v%d, v%d" % (T + 1, T + 1, T + 3))
    a("v_add_f32 v%d, v%d, v%d" % (T + 1, T + 1, T + 5))
    a("s_mov_b32 s46, 0x7f800000")
    a("v_cmp_gt_f32 vcc, s46, v%d" % (T + 1))
    a("s_and_b64 s[50:51], s[50:51], vcc")
    a("s_cmp_eq_u64 s[50:51], -1")
    a("s_cbranch_scc0 L_k2_slow")
    a.label("L_k2_fin")
    a("s_cmp_eq_u32 s42, 0")
    a("s_cbranch_scc1 L_k2_fa")
    a("v_mov_b32 v%d, v%d" % (OO + 8, OO + 10))
    a("v_mov_b32 v%d, v%d" % (OO + 9, OO + 11))
    a.label("L_k2_fa")
    for k in range(0, 10, 2):
        a("v_pk_mul_f32 %s, %s, %s op_sel_hi:[1,0]" % (vr(OO + k, 2), vr(OO + k, 2), vr(T, 2)))
    for q in range(5):
        a("v_cvt_pk_bf16_f32 v%d, v%d, v%d" % (T + 4 + q, OO + 2 * q, OO + 2 * q + 1))
    a("buffer_store_dwordx4 %s, v153, s[24:27], s58 offen sc1" % vr(T + 4, 4))
    a("s_mov_b32 exec_hi, 0")
    a("buffer_store_dword v%d, v152, s[24:27], s59 offen sc1" % (T + 8))
    a("s_mov_b32 exec_hi, -1")
    A0 = 4
    BX = 6
    WFR = (20, 40)
    OF = 64
    ACC = 100
    a("s_add_u32 s40, s3, s53")
    a("s_and_b32 s54, s40, 3")
    a("s_bfe_u32 s40, s40, 0x10002")
    a("s_lshl_b32 s55, s52, 2")
    a("s_add_u32 s55, s55, s54")
    a("v_lshrrev_b32 v10, 5, v0")
    a("v_mul_u32_u24 v10, 20, v10")
    a("v_bfe_u32 v11, v0, 2, 3")
    a("v_add_u32 v10, v10, v11")
    a("v_mul_u32_u24 v10, 144, v10")
    a("v_and_b32 v11, 3, v0")
    a("v_lshlrev_b32 v11, 3, v11")
    a("s_mul_i32 s41, s40, %d" % (9 * 36 * 144))
    a("s_add_u32 s41, s41, %d" % WO)
    a("v_add3_u32 v%d, v10, v11, s41" % A0)
    a("v_lshrrev_b32 v10, 4, v0")
    a("v_mul_u32_u24 v10, 72, v10")
    a("v_bfe_u32 v12, v0, 2, 2")
    a("v_add_u32 v10, v10, v12")
    a("v_mul_u32_u24 v10, 144, v10")
    a("s_mov_b32 s41, %d" % (WO + 16 * 144))
    a("v_add3_u32 v10, v10, v11, s41")
    a("s_cmp_eq_u32 s40, 1")
    a("s_cselect_b64 vcc, -1, 0")
    for sl in (7, 8):
        for sec in range(2):
            a("v_add_u32 v11, %d, v%d" % ((36 * sl + 8 * sec) * 144, A0))
            a("v_add_u32 v12, %d, v10" % ((288 * (sl - 7) + 36 * sec) * 144))
            a("v_cndmask_b32 v%d, v11, v12, vcc" % (BX + 2 * (sl - 7) + sec))
    a("s_mul_i32 s41, s55, 18432")
    a("s_mul_i32 s44, s40, 9216")
    a("s_add_u32 s41, s41, s44")
    a("s_add_u32 s44, s41, 4096")
    a("s_add_u32 s45, s41, 8192")
    a("v_lshlrev_b32 v1, 4, v0")
    a("s_waitcnt vmcnt(0)")
    stamp(a, 3)
    lds_inc(a, 154, 10, 0, rtn=True)
    a("s_lshl_b32 s46, s32, 4")
    a("s_add_u32 s46, s46, s31")
    a("s_lshl_b32 s46, s46, 7")
    a("s_add_u32 s46, s46, %d" % L.WS_FLAG)
    a("v_mov_b32 v11, s46")
    a("v_mov_b32 v12, 1")
    a("s_waitcnt lgkmcnt(0)")
    a("v_readfirstlane_b32 s46, v10")
    a("s_cmp_eq_u32 s46, 7")
    a("s_cbranch_scc0 L_k2_nofl")
    a("s_mov_b64 exec, 1")
    a("global_store_dword v11, v12, s[8:9] sc1")
    a("s_mov_b64 exec, -1")
    a.label("L_k2_nofl")
    a("s_lshl_b32 s46, s40, 2")
    a("s_add_u32 s46, s46, s54")
    a("s_cmp_eq_u32 s46, 4")
    a("s_cbranch_scc0 L_k2_nopoll")
    a("s_lshr_b32 s46, s52, 1")
    a("s_lshl_b32 s46, s46, 11")
    a("s_add_u32 s46, s46, %d" % L.WS_FLAG)
    a("v_lshlrev_b32 v11, 7, v0")
    a("v_add_u32 v11, s46, v11")
    flag_poll(a, "L_k2_op", 11, 12, 1)
    lds_inc(a, 154, 10, 4)
    a.label("L_k2_nopoll")
    a("s_mul_i32 s56, s55, %d" % (16 * 1152))
    a("s_mul_i32 s57, s53, 144")
    a("s_add_u32 s56, s56, s57")
    a("s_lshl_b32 s57, s55, 6")
    for j in range(3):
        a("v_add_u32 v2, %d, v0" % (64 * j))
        a("v_mul_u32_u24 v%d, 7282, v2" % (RW + j))
        a("v_lshrrev_b32 v%d, 16, v%d" % (RW + j, RW + j))
        a("v_mul_u32_u24 v3, %d, v%d" % (1152 - 144, RW + j))
        a("v_lshl_add_u32 v%d, v2, 4, v3" % (VO + j))
    a("v_cmp_gt_u32 vcc, 16, v0")
    a("v_mov_b32 v3, 0x40000000")
    a("v_cndmask_b32 v%d, v3, v%d, vcc" % (VO + 2, VO + 2))
    a("s_cmp_eq_u32 s40, 0")
    a("s_cbranch_scc0 L_k2_noxg")
    srd(a, 20, 4, 2048 * 1152)
    srd_off(a, 16, 8, L.WS_G, 8192)
    for j in range(3):
        a("buffer_load_dwordx4 %s, v%d, s[20:23], s56 offen" % (vr(XR + 4 * j, 4), VO + j))
        a("v_lshlrev_b32 v3, 2, v%d" % (RW + j))
        a("buffer_load_dword v%d, v3, s[16:19], s57 offen" % (GR + 2 * j))
    a("s_waitcnt vmcnt(0)")
    for j in range(3):
        a("v_sub_f32 v%d, 1.0, v%d" % (GR + 2 * j + 1, GR + 2 * j))
        bf16_round(a, GR + 2 * j + 1, GR + 2 * j + 1)
    a.label("L_k2_noxg")
    lds_spin(a, "L_k2_go", 154, 0, 10, (8, 4))
    stamp(a, 4)
    for s in range(9):
        a("buffer_load_dwordx4 %s, v1, s[24:27], s%d offen offset:%d %s" % (vr(OF + 4 * s, 4), (41, 44, 45)[s // 4], 1024 * (s % 4), OPT["old"]))

    def reads(sl):
        st = WFR[sl & 1]
        r = []
        for t in range(5):
            for sec in range(2):
                if sl < 7:
                    base, off = A0, (36 * sl + 8 * sec) * 144 + 32 * t
                else:
                    base, off = BX + 2 * (sl - 7) + sec, 32 * t
                r.append("ds_read_b64_tr_b16 %s, v%d offset:%d" % (vr(st + 4 * t + 2 * sec, 2), base, off))
        return r

    for x in reads(0):
        a(x)
    a("s_mul_i32 s46, s54, 5120")
    a("v_add_u32 v2, s46, v1")
    a("s_lshl_b32 s46, s54, 2")
    a("v_add_u32 v3, s46, v154")
    for sl in range(9):
        rd = reads(sl + 1) if sl < 8 else []
        a("s_waitcnt vmcnt(%d) lgkmcnt(0)" % (8 - sl))
        for t in range(5):
            d = vr(ACC + 4 * t, 4)
            a("v_mfma_f32_16x16x32_bf16 %s, %s, %s, %s" % (d, vr(WFR[sl & 1] + 4 * t, 4), vr(OF + 4 * sl, 4), "0" if sl == 0 else d))
            for x in rd[2 * t:2 * t + 2]:
                a(x)
    stamp(a, 5)
    a("s_cmp_eq_u32 s40, 0")
    a("s_cbranch_scc1 L_k2_k0")
    for t in range(5):
        a("ds_write_b128 v2, %s offset:%d" % (vr(ACC + 4 * t, 4), PART + 1024 * t))
    a("v_mov_b32 v10, 1")
    a("ds_write_b32 v3, v10 offset:16")
    stamp_end(a, OPT["stw"], 1)
    a("s_endpgm")
    a.label("L_k2_k0")
    a("s_mul_i32 s46, s54, 2304")
    a("s_add_u32 s46, s46, %d" % STG)
    a("v_and_b32 v6, 15, v0")
    a("v_mul_u32_u24 v6, 144, v6")
    a("v_lshrrev_b32 v7, 4, v0")
    a("v_lshlrev_b32 v7, 3, v7")
    a("v_add3_u32 v6, v6, v7, s46")
    a("v_add_u32 v7, s46, v1")
    srd(a, 20, 10, 2048 * 1152)
    a("s_lshr_b32 s46, s12, 4")
    a("s_cmp_eq_u32 s46, s55")
    a("s_cbranch_scc0 L_k2_noy")
    lds_spin(a, "L_k2_yw", 154, 32, 10, (1,))
    a("s_and_b32 s46, s12, 15")
    for j in range(3):
        a("v_mul_u32_u24 v10, 9, v%d" % (RW + j))
        a("v_sub_u32 v10, v0, v10")
        a("v_add_u32 v10, %d, v10" % (64 * j))
        a("v_lshlrev_b32 v10, 5, v10")
        a("v_add_u32 v10, %d, v10" % YB)
        a("ds_read_b128 v[12:15], v10")
        a("ds_read_b128 v[16:19], v10 offset:16")
        a("v_cmp_eq_u32 vcc, s46, v%d" % (RW + j))
        a("s_waitcnt lgkmcnt(0)")
        for q in range(4):
            xv = XR + 4 * j + q
            a("v_lshlrev_b32 v10, 16, v%d" % xv)
            a("v_and_b32 v11, 0xffff0000, v%d" % xv)
            a("v_add_f32 v10, v10, v%d" % (12 + 2 * q))
            a("v_add_f32 v11, v11, v%d" % (13 + 2 * q))
            a("v_cvt_pk_bf16_f32 v10, v10, v11")
            a("v_cndmask_b32 v%d, v%d, v10, vcc" % (xv, xv))
    a.label("L_k2_noy")
    for j in range(3):
        for q in range(4):
            xv = XR + 4 * j + q
            d = 64 + 8 * j + 2 * q
            a("v_lshlrev_b32 v%d, 16, v%d" % (d, xv))
            a("v_and_b32 v%d, 0xffff0000, v%d" % (d + 1, xv))
            a("v_pk_mul_f32 %s, %s, %s op_sel:[0,1] op_sel_hi:[1,1]" % (vr(d, 2), vr(d, 2), vr(GR + 2 * j, 2)))
    stamp(a, 12)
    lds_spin(a, "L_k2_pw", 3, 16, 10, (1,), 0)
    for t in range(5):
        a("ds_read_b128 %s, v2 offset:%d" % (vr(20 + 4 * t, 4), PART + 1024 * t))
    for t in range(5):
        a("s_waitcnt lgkmcnt(%d)" % (4 - t))
        b = ACC + 4 * t
        a("v_pk_add_f32 %s, %s, %s" % (vr(b, 2), vr(b, 2), vr(20 + 4 * t, 2)))
        a("v_pk_add_f32 %s, %s, %s" % (vr(b + 2, 2), vr(b + 2, 2), vr(22 + 4 * t, 2)))
        a("v_cvt_pk_bf16_f32 v%d, v%d, v%d" % (40 + 2 * t, b, b + 1))
        a("v_cvt_pk_bf16_f32 v%d, v%d, v%d" % (41 + 2 * t, b + 2, b + 3))
    for t in range(5):
        if t == 4:
            a("s_mov_b32 exec_hi, 0")
        a("ds_write_b64 v6, %s offset:%d" % (vr(40 + 2 * t, 2), 32 * t))
    a("s_mov_b32 exec_hi, -1")
    stamp(a, 14)
    for j in range(3):
        a("ds_read_b128 %s, v7 offset:%d" % (vr(20 + 4 * j, 4), 1024 * j))
    for j in range(3):
        a("s_waitcnt lgkmcnt(%d)" % (2 - j))
        for q in range(4):
            av = 20 + 4 * j + q
            d = 64 + 8 * j + 2 * q
            a("v_lshlrev_b32 v10, 16, v%d" % av)
            a("v_and_b32 v11, 0xffff0000, v%d" % av)
            a("v_pk_fma_f32 %s, v[10:11], %s, %s op_sel_hi:[1,0,1]" % (vr(d, 2), vr(GR + 2 * j, 2), vr(d, 2)))
            a("v_cvt_pk_bf16_f32 v%d, v%d, v%d" % (32 + 4 * j + q, d, d + 1))
        a("buffer_store_dwordx4 %s, v%d, s[20:23], s56 offen" % (vr(32 + 4 * j, 4), VO + j))
    if OPT["stamp"]:
        stamp(a, 6)
        a("s_waitcnt vmcnt(0)")
        stamp(a, 7)
        stamp_end(a, OPT["stw"], 1)
    a("s_endpgm")

    a.label("L_k2_slow")
    vKs, vKts, vM, vD0, vNeg = T + 8, T + 9, T + 10, T + 11, T + 12
    a("v_and_b32 v%d, 31, v0" % T)
    a("v_lshrrev_b32 v%d, 5, v0" % (T + 1))
    a("v_lshlrev_b32 v%d, 2, v%d" % (vD0, T + 1))
    a("v_sub_u32 v%d, v%d, v%d" % (vD0, vD0, T))
    a("v_mov_b32 v%d, 0xff800000" % vNeg)
    a("v_mov_b32 v%d, v%d" % (vM, vNeg))
    a("v_mul_u32_u24 v%d, 8, v%d" % (T, vStep))
    a("v_sub_u32 v%d, v%d, v%d" % (vV, vV, T))
    for r in range(16):
        a("v_mov_b32 v%d, 0" % (OO + r))
    for ps in range(2):
        lab = "L_k2_sp%d" % ps
        a("v_mov_b32 v%d, v%d" % (vKs, vK))
        a("v_mov_b32 v%d, v%d" % (vKts, vKt))
        a("s_mov_b32 s46, 0")
        a.label(lab)
        for x in k_reads(0, vKs, vKts):
            a(x)
        if ps == 1:
            for x in v_reads(0):
                a(x)
        a("s_mov_b32 s47, -31")
        a("s_mov_b32 s48, 62")
        a("s_cmp_eq_u32 s46, 0")
        a("s_cselect_b32 s47, 1, s47")
        a("s_cselect_b32 s48, 30, s48")
        a("s_cmp_eq_u32 s46, 8")
        a("s_cselect_b32 s48, 31, s48")
        a("s_cmp_lt_i32 s46, s41")
        a("s_cselect_b32 s47, 64, s47")
        a("s_cselect_b32 s48, 0, s48")
        a("s_waitcnt lgkmcnt(0)")
        for x in qk(0):
            a(x)
        a("v_subrev_u32 v%d, s47, v%d" % (T, vD0))
        for r in range(16):
            a("v_add_u32 v%d, %d, v%d" % (T + 1, 8 * (r >> 2) + (r & 3), T))
            a("v_cmp_ge_u32 vcc, s48, v%d" % (T + 1))
            a("v_cndmask_b32 v%d, v%d, v%d, vcc" % (SS[0] + r, vNeg, SS[0] + r))
            if ps == 0:
                a("v_max_f32 v%d, v%d, v%d" % (vM, vM, SS[0] + r))
            else:
                a("v_sub_f32 v%d, v%d, v%d" % (SS[0] + r, SS[0] + r, vM))
                a("v_exp_f32 v%d, v%d" % (SS[0] + r, SS[0] + r))
        if ps == 1:
            for q in range(8):
                a("v_cvt_pk_bf16_f32 v%d, v%d, v%d" % (PP[0] + q, SS[0] + 2 * q, SS[0] + 2 * q + 1))
            for x in pv(0, False):
                a(x)
            a("v_add_u32 v%d, v%d, v%d" % (vV, vV, vStep))
        a("v_add_u32 v%d, 2304, v%d" % (vKs, vKs))
        a("v_add_u32 v%d, 2304, v%d" % (vKts, vKts))
        a("s_add_u32 s46, s46, 1")
        a("s_cmp_lt_u32 s46, 9")
        a("s_nop 7")
        a("s_nop 7")
        a("s_cbranch_scc1 %s" % lab)
        if ps == 0:
            a("v_mov_b32 v%d, v%d" % (T, vM))
            a("v_permlane32_swap_b32 v%d, v%d" % (T, vM))
            a("v_max_f32 v%d, v%d, v%d" % (vM, vM, T))
    a("v_rcp_f32 v%d, v%d" % (T, OO + 12))
    a("s_nop 1")
    a("s_branch L_k2_fin")

    a.label("L_k2_help")
    a("v_mov_b32 v3, %d" % CTL)
    a("s_cmp_eq_u32 s3, 8")
    a("s_cbranch_scc1 L_k2_down")
    a("s_barrier")
    if OPT["hdel"]:
        a("s_sleep %d" % OPT["hdel"])
    a("s_movk_i32 s41, 7282")
    for i in range(9):
        a("v_add_u32 v1, %d, v0" % (64 * i))
        a("v_mul_u32_u24 v2, s41, v1")
        a("v_lshrrev_b32 v2, 16, v2")
        a("v_mul_u32_u24 v2, %d, v2" % (1152 - 144))
        a("v_lshl_add_u32 v%d, v1, 4, v2" % (4 + i))
    a("s_sub_u32 s36, s3, 9")
    a("s_mul_i32 s37, s36, %d" % (3 * 64 * 1152))
    a("s_mul_i32 s38, s36, %d" % (3 * 9216))
    a("s_add_u32 s38, s38, %d" % WO)
    a("s_mul_i32 s39, s53, 144")
    a("s_sub_u32 s42, %d, s39" % (576 * 1152))
    a("s_waitcnt lgkmcnt(0)")
    srd_off(a, 16, 6, "s39", "s42")
    a("s_mov_b32 s40, %d" % L.WS_SEL)
    a("s_load_dwordx2 s[12:13], s[8:9], s40")
    for j in range(3):
        a("s_add_u32 s40, s37, %d" % (64 * 1152 * j))
        for i in range(9):
            a("s_add_u32 m0, s38, %d" % (9216 * j + 1024 * i))
            a("s_nop 0")
            a("buffer_load_dwordx4 v%d, s[16:19], s40 offen lds" % (4 + i))
    stamp(a, 1)
    a("s_waitcnt vmcnt(0) lgkmcnt(0)")
    stamp(a, 2)
    lds_inc(a, 3, 4, 4)
    stamp_end(a, 10, 3)
    a("s_lshr_b32 s46, s12, 6")
    a("s_cmp_eq_u32 s46, s52")
    a("s_cselect_b32 s46, s3, 0")
    a("s_cmp_eq_u32 s46, 9")
    a("s_cbranch_scc0 L_k2_end")
    a("v_lshlrev_b32 v4, 7, v0")
    a("v_add_u32 v4, %d, v4" % (L.WS_FLAG + 256 * 128))
    srd_off(a, 16, 8, L.WS_YP, 16 * 2304)
    a("v_mul_u32_u24 v6, 3641, v0")
    a("v_lshrrev_b32 v6, 16, v6")
    a("v_mul_u32_u24 v6, %d, v6" % (2304 - 288))
    a("v_lshl_add_u32 v6, v0, 4, v6")
    a("s_mul_i32 s40, s53, 288")
    flag_poll(a, "L_k2_yp", 4, 5, 16)
    for i in range(6):
        a("buffer_load_dwordx4 %s, v6, s[16:19], s40 offen sc1" % vr(8 + 4 * i, 4))
        a("s_add_u32 s40, s40, %d" % (3 * 2304))
    a("v_lshlrev_b32 v7, 4, v0")
    a("v_add_u32 v7, %d, v7" % YT)
    a("s_waitcnt vmcnt(0)")
    for i in range(1, 6):
        a("v_pk_add_f32 v[8:9], v[8:9], %s" % vr(8 + 4 * i, 2))
        a("v_pk_add_f32 v[10:11], v[10:11], %s" % vr(10 + 4 * i, 2))
    a("ds_write_b128 v7, v[8:11]")
    a("ds_read_b128 v[12:15], v7 offset:288")
    a("ds_read_b128 v[16:19], v7 offset:576")
    a("s_waitcnt lgkmcnt(0)")
    for k in range(4):
        a("v_add_f32 v%d, v%d, v%d" % (8 + k, 8 + k, 12 + k))
        a("v_add_f32 v%d, v%d, v%d" % (8 + k, 8 + k, 16 + k))
        bf16_round(a, 8 + k, 8 + k)
        a("v_mul_f32 v%d, s13, v%d" % (8 + k, 8 + k))
        bf16_round(a, 8 + k, 8 + k)
    a("v_subrev_u32 v7, %d, v7" % (YT - YB))
    a("v_mov_b32 v12, 1")
    a("s_mov_b64 exec, 0x3ffff")
    a("ds_write_b128 v7, v[8:11]")
    a("ds_write_b32 v3, v12 offset:32")
    a("s_endpgm")

    a.label("L_k2_down")
    DW, DA = 20, 128
    a("v_mov_b32 v4, 0")
    a("v_mov_b32 v5, 0")
    a("v_mov_b32 v6, 0")
    a("v_mov_b32 v7, 0")
    a("v_lshlrev_b32 v1, 4, v0")
    a("v_add_u32 v1, v1, v3")
    a("s_mov_b64 exec, 7")
    a("ds_write_b128 v1, v[4:7]")
    a("s_mov_b64 exec, -1")
    a("s_waitcnt lgkmcnt(0)")
    a("s_barrier")
    if OPT["hdel"]:
        a("s_sleep %d" % OPT["hdel"])
    a("v_lshrrev_b32 v2, 3, v0")
    a("v_and_b32 v10, 7, v0")
    a("v_mul_u32_u24 v16, 1152, v2")
    a("v_lshl_add_u32 v16, v10, 4, v16")
    a("s_mul_i32 s36, s2, 18")
    for t in range(3):
        a("v_add_u32 v11, %d, v2" % (8 * t))
        a("v_cmp_gt_u32 s[40:41], 18, v11")
        a("v_add_u32 v11, s36, v11")
        a("v_lshrrev_b32 v12, 6, v11")
        a("v_and_b32 v11, 63, v11")
        a("v_lshl_add_u32 v13, v12, 3, v10")
        a("v_subrev_u32 v13, %d, v13" % (8 * 64 - 64))
        a("v_cmp_lt_u32 vcc, 63, v12")
        a("v_cndmask_b32 v12, v12, v13, vcc")
        a("v_cmp_eq_u32 s[42:43], 0, v10")
        a("s_or_b64 vcc, vcc, s[42:43]")
        a("s_and_b64 vcc, vcc, s[40:41]")
        a("v_lshlrev_b32 v12, 9, v12")
        a("v_lshl_add_u32 v12, v11, 2, v12")
        a("v_mov_b32 v13, 0x40000000")
        a("v_cndmask_b32 v%d, v13, v12, vcc" % (17 + t))
    a("s_mul_i32 s37, s2, %d" % (18 * 1152))
    a("v_and_b32 v1, 1, v0")
    a("v_lshlrev_b32 v1, 4, v1")
    sel_masks(a, 44, 11)
    a("v_lshrrev_b32 v11, 5, v0")
    a("v_bfe_u32 v12, v0, 3, 1")
    a("v_cmp_eq_u32 s[52:53], v11, v12")
    a("v_mul_u32_u24 v12, 2304, v12")
    a("v_bfe_u32 v11, v0, 4, 1")
    a("v_lshl_add_u32 v12, v11, 7, v12")
    a("v_lshl_add_u32 v12, v10, 2, v12")
    a("v_add_u32 v164, %d, v12" % HP)
    a("v_lshlrev_b32 v165, 2, v0")
    a("v_add_u32 v166, %d, v165" % HP)
    a("s_and_b32 s38, s2, 15")
    a("s_mul_i32 s39, s38, 2304")
    a("s_add_u32 s39, s39, %d" % L.WS_YP)
    a("v_add_u32 v165, s39, v165")
    a("s_lshl_b32 s38, s38, 7")
    a("s_add_u32 s38, s38, %d" % (L.WS_FLAG + 256 * 128))
    a("s_waitcnt lgkmcnt(0)")
    srd_off(a, 16, 14, "s37", 18 * 1152)
    srd_off(a, 20, 8, L.WS_PA, 128 * 512)
    for t in range(3):
        a("buffer_load_dword v%d, v%d, s[20:23], 0 offen" % (4 + 2 * t, 17 + t))
        a("buffer_load_dword v%d, v%d, s[20:23], 0 offen offset:256" % (5 + 2 * t, 17 + t))
    for t in range(3):
        a("s_movk_i32 s40, %d" % (9216 * t))
        for cg in range(9):
            a("buffer_load_dwordx4 %s, v16, s[16:19], s40 offen offset:%d nt" % (vr(DW + 4 * (9 * t + cg), 4), 128 * cg))
    a("s_waitcnt vmcnt(27)")
    sum8(a, (4, 5, 6, 7, 8, 9))
    for t in range(3):
        g, u = 4 + 2 * t, 5 + 2 * t
        bf16_round(a, g, g)
        bf16_round(a, u, u)
        sigmoid(a, 10, g)
        a("v_mul_f32 v%d, v%d, v10" % (g, g))
        bf16_round(a, g, g)
        a("v_mul_f32 v%d, v%d, v%d" % (g, g, u))
        a("v_cvt_pk_bf16_f32 v%d, v%d, v%d" % (g, g, g))
        a("v_and_b32 v%d, 0xffff, v%d" % (g, g))
        a("v_lshlrev_b32 v%d, v1, v%d" % (g, g))
    for t in range(3):
        selector(a, 12, 4 + 2 * t, 44)
        a("s_waitcnt vmcnt(%d)" % (9 * (2 - t)))
        for cg in range(9):
            d = vr(DA + 4 * cg, 4)
            a("v_mfma_f32_16x16x32_bf16 %s, %s, v[12:15], %s" % (d, vr(DW + 4 * (9 * t + cg), 4), "0" if t == 0 else d))
    stamp(a, 1)
    a("s_mov_b64 exec, s[52:53]")
    for cg in range(9):
        for r in range(4):
            a("ds_write_b32 v164, v%d offset:%d" % (DA + 4 * cg + r, 256 * cg + 32 * r))
    a("s_mov_b64 exec, -1")
    for cg in range(9):
        a("ds_read2st64_b32 %s, v166 offset0:%d offset1:%d" % (vr(20 + 2 * cg, 2), cg, cg + 9))
    for cg in range(9):
        a("s_waitcnt lgkmcnt(%d)" % (8 - cg))
        a("v_add_f32 v%d, v%d, v%d" % (20 + 2 * cg, 20 + 2 * cg, 21 + 2 * cg))
        a("global_atomic_add_f32 v165, v%d, s[8:9] offset:%d" % (20 + 2 * cg, 256 * cg))
    a("v_mov_b32 v4, s38")
    a("v_mov_b32 v5, 1")
    a("s_waitcnt vmcnt(0)")
    stamp(a, 2)
    a("s_mov_b64 exec, 1")
    a("global_atomic_add v4, v5, s[8:9] sc1")
    stamp_end(a, 8, 2 if False else 4)
    a.label("L_k2_end")
    a("s_endpgm")
```

```python
WS_QKV = 0
PAIR_BYTES = 2048 * 72
QKV_BYTES = 48 * PAIR_BYTES
WS_O = 0x700000
WS_G = 0x984000
WS_SEL = 0x986000
WS_PA = 0x988000
WS_YP = 0x9A0000
N_YP = 16
WS_FLAG = 0x9C0000
WS_KEYF = 0x9D0000
WS_EPOCH = 0x9D4000
WS_STAMP = 0xA00000
STAMP_BYTES = 6 * 512 * 128
WS_USED = 0xB00000


def kslot_to_col():
    out = []
    for s in range(18):
        for g in range(4):
            for e in range(8):
                if s < 16:
                    hs, hh = g >> 1, g & 1
                    m = 4 * hh + e if e < 4 else 8 + 4 * hh + (e - 4)
                    out.append(36 * s + (20 if hs else 0) + m)
                else:
                    u = s - 16
                    p = 8 * u + 2 * g + (e >> 2)
                    out.append(36 * p + 16 + (e & 3))
    assert sorted(out) == list(range(576))
    return out
```

```python
import sys
from asmdsl import Asm, fix_hazards
import common
from common import OPT
import layout as L
for x in sys.argv[2:]:
    k, v = x.split("=")
    OPT[k] = v if isinstance(OPT[k], str) else int(v)
from k1 import k1, K1_LDS, K1_VGPR
from k2b import k2, K2_LDS, K2_VGPR
import os
HEAD = open(os.path.join(os.path.dirname(os.path.abspath(__file__)), "../cdna_kernels/gated_mix__sliding_block__moe_arch_mod__prompt.s.ref")).read()


def spin(a):
    ka, ja, kb, jb, wg = [int(t) for t in OPT["spin"].split(",")]
    a.label("spin_kernel")
    a("s_cmp_ge_u32 s2, 1")
    a("s_cbranch_scc1 L_spin_end")
    a("s_memrealtime s[10:11]")
    a("s_load_dwordx2 s[8:9], s[0:1], 88")
    a("s_mov_b32 s4, %d" % (L.WS_STAMP + ka * 512 * 128 + wg * 128 + 8 * ja))
    a("s_mov_b32 s5, %d" % (L.WS_STAMP + max(kb, 0) * 512 * 128 + wg * 128 + 8 * jb))
    a("s_waitcnt lgkmcnt(0)")
    a("s_load_dword s6, s[8:9], s4")
    a("s_load_dword s7, s[8:9], s5")
    a("s_waitcnt lgkmcnt(0)")
    if kb < 0:
        a("s_mov_b32 s7, s10")
    a("s_sub_u32 s6, s7, s6")
    a("s_min_u32 s6, s6, 3000")
    a("s_mul_i32 s6, s6, 10")
    a.label("L_spin_l")
    a("s_memrealtime s[12:13]")
    a("s_waitcnt lgkmcnt(0)")
    a("s_sub_u32 s12, s12, s10")
    a("s_cmp_lt_u32 s12, s6")
    a("s_cbranch_scc1 L_spin_l")
    a.label("L_spin_end")
    a("s_endpgm")


def desc(name, vgpr, sgpr=102):
    acc = (vgpr + 3) // 4 * 4
    return """.section .rodata,"a"
.p2align 6
.amdhsa_kernel %s
  .amdhsa_next_free_vgpr %d
  .amdhsa_next_free_sgpr %d
  .amdhsa_accum_offset %d
  .amdhsa_group_segment_fixed_size 0
  .amdhsa_kernarg_size 96
  .amdhsa_user_sgpr_count 2
  .amdhsa_user_sgpr_kernarg_segment_ptr 1
  .amdhsa_system_sgpr_workgroup_id_x 1
.end_amdhsa_kernel
""" % (name, vgpr, sgpr, acc)


def main():
    hdr = [l for l in HEAD.split("\n") if l.startswith(";   offset") or l.startswith("; Kernarg")]
    launches = [("k1_kernel", 256, 576, K1_LDS), ("k2_kernel", 256, 768, K2_LDS)]
    kernels = [("k1_kernel", k1, K1_VGPR), ("k2_kernel", k2, K2_VGPR)]
    if OPT["spin"]:
        launches.append(("spin_kernel", 1, 64, 0))
        kernels.append(("spin_kernel", spin, 8))
    out = hdr + ["; @launch kernel=%s grid=(%d,1,1) block=(%d,1,1) lds=%d" % l for l in launches]
    out.append('.amdgcn_target "amdgcn-amd-amdhsa--gfx950"')
    out.append(".text")
    for name, fn, vg in kernels:
        a = Asm()
        fn(a)
        lines, nn = fix_hazards(a.lines)
        sys.stderr.write("%s: %d lines, %d nops inserted\n" % (name, len(lines), nn))
        out += [".globl %s" % name, ".p2align 8", ".type %s,@function" % name] + lines
    for name, fn, vg in kernels:
        out.append(desc(name, vg))
    open(sys.argv[1], "w").write("\n".join(out) + "\n")


main()
```

```python
from asmdsl import vr, sr
import layout as L

KB = 0
VB = 27648
QB = 55296
ONES = 64512
K2_LDS = 66560

vK, vKt, vV, vStep = 1, 2, 3, 4
QM, QT = 6, 10
MSK = 12
KF = (20, 26)
VF = (32, 40)
PP = (48, 56)
SS = (64, 80)
OO = 96
T = 112


def k_reads(i, base_k=vK, base_t=vKt, step=2304):
    s = KF[i & 1]
    return ["ds_read_b64 %s, v%d offset:%d" % (vr(s, 2), base_k, step * i),
            "ds_read_b64 %s, v%d offset:%d" % (vr(s + 2, 2), base_k, step * i + 8),
            "ds_read_b64 %s, v%d offset:%d" % (vr(s + 4, 2), base_t, step * i)]


def v_reads(i):
    s = VF[i & 1]
    return ["ds_read_b64_tr_b16 %s, v%d offset:%d" % (vr(s + 2 * q, 2), vV, 576 * q) for q in range(4)]


def qk(i):
    s, d = KF[i & 1], vr(SS[i & 1], 16)
    return ["v_mfma_f32_32x32x16_bf16 %s, %s, %s, 0" % (d, vr(s, 4), vr(QM, 4)),
            "v_mfma_f32_32x32x8_bf16 %s, %s, %s, %s" % (d, vr(s + 4, 2), vr(QT, 2), d)]


def pv(i, first):
    s, p, o = VF[i & 1], PP[i & 1], vr(OO, 16)
    return ["v_mfma_f32_32x32x16_bf16 %s, %s, %s, %s" % (o, vr(s, 4), vr(p, 4), "0" if first else o),
            "v_mfma_f32_32x32x16_bf16 %s, %s, %s, %s" % (o, vr(s + 4, 4), vr(p + 4, 4), o)]


def attn_loop(a, masked, entry=None):
    for i in range(9):
        if entry:
            a.label("%s%d" % (entry, i))
        S, P = SS[i & 1], PP[i & 1]
        ex = ["v_exp_f32 v%d, v%d" % (S + r, S + r) for r in range(16)]
        cv = ["v_cvt_pk_bf16_f32 v%d, v%d, v%d" % (P + q, S + 2 * q, S + 2 * q + 1) for q in range(8)]
        if i == 0:
            mk = ["v_bfi_b32 v%d, v%d, 0, v%d" % (P + q, MSK + q, P + q) for q in range(8)]
        elif i == 8:
            mk = ["v_and_b32 v%d, v%d, v%d" % (P + q, MSK + q, P + q) for q in range(8)]
        else:
            mk = []
        if masked and i < 8:
            mk = mk + ["v_and_b32 v%d, s40, v%d" % (P + q, P + q) for q in range(8)]
            a("s_cmp_le_i32 s41, %d" % i)
            a("s_cselect_b32 s40, -1, 0")
        m1 = qk(i + 1) if i < 8 else []
        m2 = pv(i - 1, i == 1) if i > 0 else []
        a("s_waitcnt lgkmcnt(%d)" % (4 if 0 < i < 8 else 0))
        if m1:
            a(m1[0])
        for x in ex[0:4]:
            a(x)
        if m1:
            a(m1[1])
        if i + 2 <= 8:
            for x in k_reads(i + 2):
                a(x)
        for x in ex[4:8]:
            a(x)
        for x in cv[0:2]:
            a(x)
        if m2:
            a(m2[0])
        for x in ex[8:12]:
            a(x)
        for x in cv[2:4]:
            a(x)
        if m2:
            a(m2[1])
        if i + 1 <= 8:
            a("v_add_u32 v%d, v%d, v%d" % (vV, vV, vStep))
            for x in v_reads(i + 1):
                a(x)
        for x in ex[12:16]:
            a(x)
        for x in cv[4:8]:
            a(x)
        for x in mk:
            a(x)
    a("s_waitcnt lgkmcnt(0)")
    for x in pv(8, False):
        a(x)


def k2(a, G):
    f32, srd, srd_off, OPT = G.f32, G.srd, G.srd_off, G.OPT
    a.label("k2_kernel")
    a("s_cmp_ge_u32 s2, 328")
    a("s_cbranch_scc1 L_k2_end")
    G.stamp_init(a)
    G.stamp(a, 0)
    a("s_load_dwordx2 s[8:9], s[0:1], 88")
    a("v_lshrrev_b32 v1, 6, v0")
    a("v_readfirstlane_b32 s3, v1")
    a("s_cmp_lt_u32 s2, 72")
    a("s_cbranch_scc1 L_k2_moe")
    a("v_and_b32 v0, 63, v0")
    a("s_sub_u32 s30, s2, 72")
    a("s_and_b32 s31, s30, 3")
    a("s_bfe_u32 s32, s30, 0x20003")
    a("s_lshl_b32 s31, s31, 2")
    a("s_add_u32 s31, s31, s32")
    a("s_bfe_u32 s32, s30, 0x10002")
    a("s_lshl_b32 s32, s32, 3")
    a("s_lshr_b32 s33, s30, 5")
    a("s_add_u32 s32, s32, s33")
    a("s_mul_i32 s33, s31, %d" % L.PAIR_BYTES)
    a("s_mul_i32 s34, s32, 9216")
    a("s_add_u32 s33, s33, s34")
    a("s_lshl_b32 s34, s3, 10")
    a("s_add_u32 s33, s33, s34")
    a("s_add_u32 s35, s33, %d" % (16 * L.PAIR_BYTES - 18432 - KB))
    a("s_add_u32 s36, s33, %d" % (32 * L.PAIR_BYTES - 18432 - VB))
    a("s_sub_u32 s37, s33, %d" % QB)
    a("v_lshlrev_b32 v1, 4, v0")
    a("s_waitcnt lgkmcnt(0)")
    srd(a, 16, 8, L.QKV_BYTES)
    for j in range(8):
        if j <= 2:
            src = "s35"
        elif j == 3:
            a("s_cmp_lt_u32 s3, 3")
            a("s_cselect_b32 s38, s35, s36")
            src = "s38"
        elif j <= 5:
            src = "s36"
        elif j == 6:
            a("s_cmp_lt_u32 s3, 6")
            a("s_cselect_b32 s38, s36, s37")
            src = "s38"
        else:
            src = "s37"
            a("s_cmp_eq_u32 s3, 7")
            a("s_cbranch_scc1 L_k2_dmadone")
        a("s_add_u32 m0, s34, %d" % (8192 * j))
        a("s_add_u32 s39, %s, %d" % (src, 8192 * j))
        a("buffer_load_dwordx4 v1, s[16:19], s39 offen lds")
    a.label("L_k2_dmadone")
    a("v_and_b32 v2, 3, v0")
    a("v_mul_u32_u24 v2, 576, v2")
    a("v_mov_b32 v4, 0x3f803f80")
    a("v_mov_b32 v5, v4")
    a("ds_write_b64 v2, v[4:5] offset:%d" % ONES)
    a("s_and_b32 s42, s3, 1")
    a("s_lshr_b32 s43, s3, 1")
    a("s_mul_i32 s44, s43, 2304")
    a("s_mul_i32 s45, s42, 40")
    a("v_and_b32 v%d, 31, v0" % T)
    a("v_lshrrev_b32 v%d, 5, v0" % (T + 1))
    a("v_mul_u32_u24 v%d, 72, v%d" % (vKt, T))
    a("v_add_u32 v%d, s44, v%d" % (vKt, vKt))
    a("v_lshl_add_u32 v%d, v%d, 4, v%d" % (vK, T + 1, vKt))
    a("v_add_u32 v%d, s45, v%d" % (vK, vK))
    a("v_add_u32 v%d, 32, v%d" % (vKt, vKt))
    a("v_bfe_u32 v%d, v0, 2, 2" % (T + 2))
    a("v_lshl_add_u32 v%d, v%d, 2, v%d" % (T + 2, T + 1, T + 2))
    a("v_mul_u32_u24 v%d, 72, v%d" % (T + 2, T + 2))
    a("s_add_u32 s46, s44, %d" % VB)
    a("v_add_u32 v%d, s46, v%d" % (T + 2, T + 2))
    a("v_and_b32 v%d, 3, v0" % (T + 3))
    a("v_lshlrev_b32 v%d, 3, v%d" % (T + 4, T + 3))
    a("v_add_u32 v%d, s45, v%d" % (T + 4, T + 4))
    a("v_and_b32 v%d, 16, v0" % (T + 5))
    a("v_cmp_eq_u32 vcc, 0, v%d" % (T + 5))
    a("v_cndmask_b32 v%d, 32, v%d, vcc" % (T + 4, T + 4))
    a("v_add_u32 v%d, v%d, v%d" % (vV, T + 2, T + 4))
    a("v_and_b32 v%d, 19, v0" % (T + 5))
    a("v_cmp_lt_u32 vcc, 16, v%d" % (T + 5))
    a("v_mov_b32 v%d, %d" % (T + 6, ONES))
    a("v_cndmask_b32 v%d, v%d, v%d, vcc" % (vV, vV, T + 6))
    a("v_mov_b32 v%d, 2304" % (T + 6))
    a("v_cndmask_b32 v%d, v%d, 0, vcc" % (vStep, T + 6))
    a("v_lshlrev_b32 v%d, 2, v%d" % (T + 2, T + 1))
    a("v_sub_u32 v%d, v%d, v%d" % (T + 2, T, T + 2))
    a("v_mov_b32 v%d, 0xffff" % (T + 3))
    for q in range(8):
        kl = 8 * (q >> 1) + 2 * (q & 1)
        a("v_cmp_le_i32 vcc, %d, v%d" % (kl, T + 2))
        a("v_cndmask_b32 v%d, 0, v%d, vcc" % (MSK + q, T + 3))
        a("v_cmp_le_i32 vcc, %d, v%d" % (kl + 1, T + 2))
        a("v_cndmask_b32 v%d, v%d, -1, vcc" % (MSK + q, MSK + q))
    a("s_lshl_b32 s41, s32, 2")
    a("s_add_u32 s41, s41, s43")
    a("s_sub_i32 s41, 8, s41")
    a("s_waitcnt vmcnt(0) lgkmcnt(0)")
    a("s_barrier")
    G.stamp(a, 1)
    a.label("L_k2_start")
    a("ds_read_b64 %s, v%d offset:%d" % (vr(QM, 2), vK, QB))
    a("ds_read_b64 %s, v%d offset:%d" % (vr(QM + 2, 2), vK, QB + 8))
    a("ds_read_b64 %s, v%d offset:%d" % (vr(QT, 2), vKt, QB))
    for x in k_reads(0) + k_reads(1) + v_reads(0):
        a(x)
    a("v_cmp_gt_u32 vcc, 32, v0")
    a("s_cmp_eq_u32 s42, 0")
    a("s_cselect_b64 s[46:47], vcc, 0")
    a("s_cselect_b64 s[48:49], 0, vcc")
    a("s_waitcnt lgkmcnt(7)")
    a("v_cndmask_b32 v%d, 0, v%d, s[46:47]" % (QT, QT))
    a("v_cndmask_b32 v%d, 0, v%d, s[48:49]" % (QT + 1, QT + 1))
    for x in qk(0):
        a(x)
    a("s_cmp_lt_u32 s32, 2")
    a("s_cbranch_scc1 L_k2_masked")
    attn_loop(a, False)
    a("s_branch L_k2_check")
    a.label("L_k2_masked")
    a("s_nop 7")
    attn_loop(a, True)
    a.label("L_k2_check")
    G.stamp(a, 2)
    a("s_nop 7")
    a("s_nop 3")
    a("v_max3_f32 v%d, abs(v%d), abs(v%d), abs(v%d)" % (T, OO, OO + 1, OO + 2))
    a("v_max3_f32 v%d, abs(v%d), abs(v%d), v%d" % (T, OO + 3, OO + 4, T))
    a("v_max3_f32 v%d, abs(v%d), abs(v%d), v%d" % (T, OO + 5, OO + 6, T))
    a("v_max3_f32 v%d, abs(v%d), abs(v%d), v%d" % (T, OO + 7, OO + 8, T))
    a("v_max3_f32 v%d, abs(v%d), abs(v%d), v%d" % (T, OO + 9, OO + 10, T))
    a("v_max_f32 v%d, abs(v%d), v%d" % (T, OO + 11, T))
    for k in range(0, 12, 2):
        a("v_cmp_o_f32 vcc, v%d, v%d" % (OO + k, OO + k + 1))
        a("s_mov_b64 s[50:51], vcc" if k == 0 else "s_and_b64 s[50:51], s[50:51], vcc")
    a("s_mov_b32 s46, %s" % f32(2.0 ** 126))
    a("v_cmp_gt_f32 vcc, s46, v%d" % T)
    a("s_and_b64 s[50:51], s[50:51], vcc")
    a("s_mov_b32 s46, %s" % f32(2.0 ** 60))
    a("v_cmp_gt_f32 vcc, s46, v%d" % (OO + 12))
    a("s_and_b64 s[50:51], s[50:51], vcc")
    a("s_mov_b32 s46, %s" % f32(2.0 ** -60))
    a("v_cmp_lt_f32 vcc, s46, v%d" % (OO + 12))
    a("s_and_b64 s[50:51], s[50:51], vcc")
    a("s_cmp_eq_u64 s[50:51], -1")
    a("s_cbranch_scc0 L_k2_slow")
    a.label("L_k2_fin")
    a("v_rcp_f32 v%d, v%d" % (T, OO + 12))
    a("s_cmp_eq_u32 s42, 0")
    a("s_cbranch_scc1 L_k2_fa")
    a("v_mov_b32 v%d, v%d" % (OO + 8, OO + 10))
    a("v_mov_b32 v%d, v%d" % (OO + 9, OO + 11))
    a.label("L_k2_fa")
    for k in range(10):
        a("v_mul_f32 v%d, v%d, v%d" % (OO + k, OO + k, T))
    for q in range(5):
        a("v_cvt_pk_bf16_f32 v%d, v%d, v%d" % (T + 4 + q, OO + 2 * q, OO + 2 * q + 1))
    a("s_add_u32 s24, s8, %d" % L.WS_O)
    a("s_addc_u32 s25, s9, 0")
    a("s_and_b32 s25, s25, 0xffff")
    a("s_mov_b32 s26, %d" % (128 * 18432))
    a("s_mov_b32 s27, 0x20000")
    a("s_lshl_b32 s46, s32, 3")
    a("s_lshl_b32 s47, s43, 1")
    a("s_add_u32 s46, s46, s47")
    a("s_mul_i32 s46, s46, 18432")
    a("v_bfe_u32 v%d, v0, 4, 1" % (T + 1))
    a("v_mul_u32_u24 v%d, 18432, v%d" % (T + 1, T + 1))
    a("v_and_b32 v%d, 15, v0" % (T + 2))
    a("v_lshl_add_u32 v%d, v%d, 4, v%d" % (T + 1, T + 2, T + 1))
    a("v_lshrrev_b32 v%d, 5, v0" % (T + 2))
    a("v_lshl_add_u32 v%d, v%d, 8, v%d" % (T + 2, T + 2, T + 1))
    a("s_lshl_b32 s47, s31, 10")
    a("s_lshl_b32 s48, s42, 9")
    a("s_add_u32 s47, s47, s48")
    a("s_add_u32 s47, s47, s46")
    a("buffer_store_dwordx4 %s, v%d, s[24:27], s47 offen %s" % (vr(T + 4, 4), T + 2, OPT["st2"]))
    a("s_lshr_b32 s47, s31, 3")
    a("s_lshl_b32 s47, s47, 10")
    a("s_bfe_u32 s48, s31, 0x20001")
    a("s_lshl_b32 s48, s48, 8")
    a("s_add_u32 s47, s47, s48")
    a("s_and_b32 s48, s31, 1")
    a("s_lshl_b32 s48, s48, 3")
    a("s_add_u32 s47, s47, s48")
    a("s_lshl_b32 s48, s42, 2")
    a("s_add_u32 s47, s47, s48")
    a("s_add_u32 s47, s47, s46")
    a("s_mov_b32 exec_hi, 0")
    a("s_add_u32 s47, s47, 16384")
    a("buffer_store_dword v%d, v%d, s[24:27], s47 offen %s" % (T + 8, T + 1, OPT["st2"]))
    if OPT["stamp"]:
        G.stamp(a, 3)
        a("s_waitcnt vmcnt(0)")
        G.stamp(a, 4)
        a("s_cmp_eq_u32 s3, 0")
        a("s_cbranch_scc0 L_k2_end")
        G.stamp_flush(a, 1, 8, 30)
    a("s_endpgm")

    a.label("L_k2_slow")
    vKs, vKts, vM, vD0, vNeg = T + 8, T + 9, T + 10, T + 11, T + 12
    a("v_and_b32 v%d, 31, v0" % T)
    a("v_lshrrev_b32 v%d, 5, v0" % (T + 1))
    a("v_lshlrev_b32 v%d, 2, v%d" % (vD0, T + 1))
    a("v_sub_u32 v%d, v%d, v%d" % (vD0, vD0, T))
    a("v_mov_b32 v%d, 0xff800000" % vNeg)
    a("v_mov_b32 v%d, v%d" % (vM, vNeg))
    a("v_mul_u32_u24 v%d, 8, v%d" % (T, vStep))
    a("v_sub_u32 v%d, v%d, v%d" % (vV, vV, T))
    for r in range(16):
        a("v_mov_b32 v%d, 0" % (OO + r))
    for ps in range(2):
        lab = "L_k2_sp%d" % ps
        a("v_mov_b32 v%d, v%d" % (vKs, vK))
        a("v_mov_b32 v%d, v%d" % (vKts, vKt))
        a("s_mov_b32 s46, 0")
        a.label(lab)
        for x in k_reads(0, vKs, vKts):
            a(x)
        if ps == 1:
            for x in v_reads(0):
                a(x)
        a("s_mov_b32 s47, -31")
        a("s_mov_b32 s48, 62")
        a("s_cmp_eq_u32 s46, 0")
        a("s_cselect_b32 s47, 1, s47")
        a("s_cselect_b32 s48, 30, s48")
        a("s_cmp_eq_u32 s46, 8")
        a("s_cselect_b32 s48, 31, s48")
        a("s_cmp_lt_i32 s46, s41")
        a("s_cselect_b32 s47, 64, s47")
        a("s_cselect_b32 s48, 0, s48")
        a("s_waitcnt lgkmcnt(0)")
        for x in qk(0):
            a(x)
        a("v_subrev_u32 v%d, s47, v%d" % (T, vD0))
        for r in range(16):
            a("v_add_u32 v%d, %d, v%d" % (T + 1, 8 * (r >> 2) + (r & 3), T))
            a("v_cmp_ge_u32 vcc, s48, v%d" % (T + 1))
            a("v_cndmask_b32 v%d, v%d, v%d, vcc" % (SS[0] + r, vNeg, SS[0] + r))
            if ps == 0:
                a("v_max_f32 v%d, v%d, v%d" % (vM, vM, SS[0] + r))
            else:
                a("v_sub_f32 v%d, v%d, v%d" % (SS[0] + r, SS[0] + r, vM))
                a("v_exp_f32 v%d, v%d" % (SS[0] + r, SS[0] + r))
        if ps == 1:
            for q in range(8):
                a("v_cvt_pk_bf16_f32 v%d, v%d, v%d" % (PP[0] + q, SS[0] + 2 * q, SS[0] + 2 * q + 1))
            for x in pv(0, False):
                a(x)
            a("v_add_u32 v%d, v%d, v%d" % (vV, vV, vStep))
        a("v_add_u32 v%d, 2304, v%d" % (vKs, vKs))
        a("v_add_u32 v%d, 2304, v%d" % (vKts, vKts))
        a("s_add_u32 s46, s46, 1")
        a("s_cmp_lt_u32 s46, 9")
        a("s_nop 7")
        a("s_nop 7")
        a("s_cbranch_scc1 %s" % lab)
        if ps == 0:
            a("v_mov_b32 v%d, v%d" % (T, vM))
            a("v_permlane32_swap_b32 v%d, v%d" % (T, vM))
            a("v_max_f32 v%d, v%d, v%d" % (vM, vM, T))
    a("s_branch L_k2_fin")

    a.label("L_k2_moe")
    GW, UW, DW = 20, 56, 92
    XS, SEL, ACG = 2, 12, 16
    RED, RED2, KEYS = 0, 8192, 45056
    a("s_load_dwordx4 s[12:15], s[0:1], 40")
    a("s_load_dwordx2 s[10:11], s[0:1], 56")
    a("s_load_dwordx2 s[4:5], s[0:1], 0")
    a("v_lshlrev_b32 v1, 4, v0")
    a("v_add_u32 v1, %d, v1" % L.WS_KEY)
    a("v_and_b32 v0, 63, v0")
    a("v_lshrrev_b32 v2, 3, v0")
    a("v_and_b32 v3, 7, v0")
    a("v_lshlrev_b32 v3, 4, v3")
    a("v_mul_u32_u24 v4, 9216, v2")
    a("v_add_u32 v4, v4, v3")
    a("v_mul_u32_u24 v5, 1152, v2")
    a("v_add_u32 v5, v5, v3")
    a("s_lshl_b32 s30, s2, 7")
    a("s_sub_u32 s31, %d, s30" % (576 * 9216))
    a("s_mul_i32 s32, s2, %d" % (64 * 1152))
    a("s_mul_i32 s33, s3, %d" % (72 * 9216))
    a("s_mul_i32 s34, s3, %d" % (8 * 1152))
    a("s_waitcnt lgkmcnt(0)")
    a("global_load_dwordx4 v[12:15], v1, s[8:9]")
    srd_off(a, 16, 12, "s30", "s31")
    srd_off(a, 20, 14, "s30", "s31")
    srd_off(a, 24, 10, "s32", 64 * 1152)
    for i in range(9):
        a("s_add_u32 s35, s33, %d" % (8 * 9216 * i))
        a("buffer_load_dwordx4 %s, v4, s[16:19], s35 offen nt" % vr(GW + 4 * i, 4))
        a("buffer_load_dwordx4 %s, v4, s[20:23], s35 offen nt" % vr(UW + 4 * i, 4))
    for i in range(9):
        a("buffer_load_dwordx4 %s, v5, s[24:27], s34 offen offset:%d nt" % (vr(DW + 4 * i, 4), 128 * i))
    srd(a, 16, 4, 2048 * 1152)
    a("s_waitcnt vmcnt(27)")
    a("v_max3_u32 v12, v12, v13, v14")
    a("v_max_u32 v12, v12, v15")
    for mod in ("row_shr:1 row_mask:0xf", "row_shr:2 row_mask:0xf", "row_shr:4 row_mask:0xf", "row_shr:8 row_mask:0xf",
                "row_bcast:15 row_mask:0xa", "row_bcast:31 row_mask:0xc"):
        a("v_max_u32_dpp v12, v12, v12 %s bank_mask:0xf" % mod)
    a("v_readlane_b32 s36, v12, 63")
    a("s_lshl_b32 s37, s3, 2")
    a("v_mov_b32 v13, s37")
    a("v_mov_b32 v12, s36")
    a("ds_write_b32 v13, v12 offset:%d" % KEYS)
    a("v_mov_b32 v11, 0")
    a("s_waitcnt lgkmcnt(0)")
    a("s_barrier")
    a("ds_read_b128 v[12:15], v11 offset:%d" % KEYS)
    a("ds_read_b128 v[16:19], v11 offset:%d" % (KEYS + 16))
    a("s_waitcnt lgkmcnt(0)")
    a("v_max3_u32 v12, v12, v13, v14")
    a("v_max3_u32 v12, v12, v15, v16")
    a("v_max3_u32 v12, v12, v17, v18")
    a("v_max_u32 v12, v12, v19")
    a("v_readfirstlane_b32 s36, v12")
    a("s_and_b32 s36, s36, 0x7ff")
    a("s_sub_u32 s36, 2047, s36")
    G.stamp(a, 1)
    a("s_mul_i32 s37, s36, 1152")
    a("s_mul_i32 s38, s3, 144")
    a("s_add_u32 s37, s37, s38")
    a("v_lshlrev_b32 v11, 1, v2")
    for i in range(9):
        a("buffer_load_ushort v%d, v11, s[16:19], s37 offen offset:%d" % (XS + i, 16 * i))
    a("s_lshl_b32 s38, s36, 2")
    a("s_add_u32 s38, s38, %d" % L.WS_R)
    a("s_load_dword s39, s[8:9], s38")
    a("v_and_b32 v1, 1, v0")
    a("v_lshlrev_b32 v1, 4, v1")
    a("v_bfe_u32 v11, v0, 1, 2")
    for q in range(4):
        a("v_cmp_eq_u32 s[%d:%d], %d, v11" % (40 + 2 * q, 41 + 2 * q, q))
    a("s_waitcnt vmcnt(0)")
    G.stamp(a, 2)
    for i in range(9):
        a("v_lshlrev_b32 v11, v1, v%d" % (XS + i))
        for q in range(4):
            a("v_cndmask_b32 v%d, 0, v11, s[%d:%d]" % (SEL + q, 40 + 2 * q, 41 + 2 * q))
        a("v_mfma_f32_16x16x32_bf16 %s, %s, %s, %s" % (vr(ACG, 4), vr(GW + 4 * i, 4), vr(SEL, 4), "0" if i == 0 else vr(ACG, 4)))
        a("v_mfma_f32_16x16x32_bf16 %s, %s, %s, %s" % (vr(GW, 4), vr(UW + 4 * i, 4), vr(SEL, 4), "0" if i == 0 else vr(GW, 4)))
    a("v_lshrrev_b32 v2, 5, v0")
    a("v_bfe_u32 v3, v0, 3, 1")
    a("v_cmp_eq_u32 s[48:49], v2, v3")
    a("v_bfe_u32 v4, v0, 4, 1")
    a("v_lshlrev_b32 v4, 7, v4")
    a("v_and_b32 v5, 7, v0")
    a("v_lshl_add_u32 v4, v5, 2, v4")
    a("s_lshl_b32 s37, s3, 1")
    a("v_add_u32 v3, s37, v3")
    a("v_lshl_add_u32 v6, v3, 8, v4")
    a("v_mul_u32_u24 v7, 2304, v3")
    a("v_add_u32 v7, v7, v4")
    a("s_mov_b64 exec, s[48:49]")
    for r in range(4):
        a("ds_write_b32 v6, v%d offset:%d" % (ACG + r, RED + 32 * r))
        a("ds_write_b32 v6, v%d offset:%d" % (GW + r, RED + 4096 + 32 * r))
    a("s_mov_b64 exec, -1")
    a("v_lshrrev_b32 v8, 3, v0")
    a("v_lshlrev_b32 v8, 2, v8")
    a("v_lshl_add_u32 v8, v5, 9, v8")
    a("s_lshl_b32 s37, s3, 5")
    a("v_add_u32 v8, s37, v8")
    a("v_add_u32 v9, 4096, v8")
    a("s_waitcnt lgkmcnt(0)")
    a("s_barrier")
    a("ds_read2_b32 v[12:13], v8 offset0:0 offset1:64")
    a("ds_read2_b32 v[14:15], v9 offset0:0 offset1:64")
    a("s_waitcnt lgkmcnt(0)")
    a("v_add_f32 v12, v12, v13")
    a("v_add_f32 v14, v14, v15")
    for mod in ("quad_perm:[1,0,3,2]", "quad_perm:[2,3,0,1]", "row_half_mirror"):
        a("v_add_f32_dpp v12, v12, v12 %s row_mask:0xf bank_mask:0xf" % mod)
        a("v_add_f32_dpp v14, v14, v14 %s row_mask:0xf bank_mask:0xf" % mod)
    G.bf16_round(a, 12, 12)
    G.bf16_round(a, 14, 14)
    G.sigmoid(a, 13, 12)
    a("v_mul_f32 v12, v12, v13")
    G.bf16_round(a, 12, 12)
    a("v_mul_f32 v12, v12, v14")
    a("v_cvt_pk_bf16_f32 v11, v12, v12")
    a("v_and_b32 v11, 0xffff, v11")
    a("v_lshlrev_b32 v11, v1, v11")
    for q in range(4):
        a("v_cndmask_b32 v%d, 0, v11, s[%d:%d]" % (SEL + q, 40 + 2 * q, 41 + 2 * q))
    for i in range(9):
        a("v_mfma_f32_16x16x32_bf16 %s, %s, %s, 0" % (vr(UW + 4 * i, 4), vr(DW + 4 * i, 4), vr(SEL, 4)))
    a("s_mov_b64 exec, s[48:49]")
    for i in range(9):
        for r in range(4):
            a("ds_write_b32 v7, v%d offset:%d" % (UW + 4 * i + r, RED2 + 256 * i + 32 * r))
    a("s_mov_b64 exec, -1")
    a("s_lshl_b32 s37, s3, 10")
    a("v_lshlrev_b32 v8, 4, v0")
    a("v_add_u32 v8, s37, v8")
    a("s_waitcnt lgkmcnt(0)")
    a("s_barrier")
    a("s_cmp_gt_u32 s3, 2")
    a("s_cbranch_scc1 L_k2_end")
    a("v_cmp_gt_u32 vcc, 2304, v8")
    a("s_and_b64 exec, exec, vcc")
    for p in range(16):
        a("ds_read_b128 %s, v8 offset:%d" % (vr(20 + 4 * p, 4), RED2 + 2304 * p))
    a("s_mul_i32 s37, s2, 2304")
    a("s_add_u32 s37, s37, %d" % L.WS_YP)
    a("v_add_u32 v8, s37, v8")
    a("s_waitcnt lgkmcnt(0)")
    for w in (8, 4, 2, 1):
        for p in range(w):
            for h in range(2):
                a("v_pk_add_f32 %s, %s, %s" % (vr(20 + 4 * p + 2 * h, 2), vr(20 + 4 * p + 2 * h, 2), vr(20 + 4 * (p + w) + 2 * h, 2)))
    a("global_store_dwordx4 v8, v[20:23], s[8:9]")
    G.stamp(a, 3)
    a("s_or_b32 s37, s2, s3")
    a("s_cmp_eq_u32 s37, 0")
    a("s_cbranch_scc0 L_k2_mst")
    a("v_mov_b32 v12, s39")
    G.bf16_round(a, 12, 12)
    G.sigmoid(a, 13, 12)
    G.bf16_round(a, 13, 13)
    a("v_mov_b32 v12, s36")
    a("v_mov_b32 v8, %d" % L.WS_SEL)
    a("s_mov_b64 exec, 1")
    a("global_store_dwordx2 v8, v[12:13], s[8:9]")
    a.label("L_k2_mst")
    if OPT["stamp"]:
        a("s_cmp_eq_u32 s3, 0")
        a("s_cbranch_scc0 L_k2_end")
        G.stamp_flush(a, 3, 8, 30)
    a.label("L_k2_end")
    a("s_endpgm")
```

```python
from asmdsl import vr, sr
import layout as L
from common import *
from k2 import (KB, VB, QB, ONES, vK, vKt, vV, vStep, QM, QT, MSK, KF, VF, PP, SS, OO, T,
                k_reads, v_reads, qk, pv)

NAME = "gated_mix__sliding_block__moe_arch_mod__prompt_kernel"
SLOT = 34816
IMG = SLOT
WO = 66560
CTL = 149568
YB = 149696
HP = 150016
YT = 154624
XS = 156672
KF_LDS = 158208
KF_VGPR = 168
PART = 0
STG = 20480
XR, GR, RW, VO = 128, 140, 146, 149
vC = 154
TAG = 65
C_O, C_GO2, C_A, C_WO, C_PART, C_YRDY, C_B, C_1, C_GO1, C_C, C_PA, C_IDX, C_RSEL = 0, 4, 8, 12, 16, 32, 36, 40, 44, 48, 52, 56, 60
C_KMAX, C_KCNT, C_XS, C_GD, C_RED, C_RED2 = 64, 68, 72, 76, 80, 84
F_Q, F_O, F_PA, F_Y = 0, 192, 448, 512


def lds_spin(a, name, addr_v, off, regs, conds, slp=1):
    n = len(conds)
    a("s_mov_b32 s60, 0x200000")
    a.label(name)
    a(("ds_read_b64 %s, v%d offset:%d" % (vr(regs, 2), addr_v, off)) if n == 2 else
      ("ds_read_b32 v%d, v%d offset:%d" % (regs, addr_v, off)))
    a("s_waitcnt lgkmcnt(0)")
    a("v_readfirstlane_b32 s61, v%d" % regs)
    if n == 2:
        a("v_readfirstlane_b32 s62, v%d" % (regs + 1))
        a("s_lshl_b32 s62, s62, 8")
        a("s_or_b32 s61, s61, s62")
        a("s_cmp_eq_u32 s61, %d" % (conds[0] | (conds[1] << 8)))
    else:
        a("s_cmp_eq_u32 s61, %d" % conds[0])
    a("s_cbranch_scc1 %s_d" % name)
    if slp:
        a("s_sleep %d" % slp)
    a("s_sub_u32 s60, s60, 1")
    a("s_cmp_lg_u32 s60, 0")
    a("s_cbranch_scc1 %s" % name)
    a.label(name + "_d")


def flag_poll(a, name, voff, vt, want, lanes, slp=1, width=1):
    a("s_mov_b64 exec, %s" % ("-1" if lanes == 64 else hex((1 << lanes) - 1)))
    a("s_mov_b32 s60, 0x40000")
    a.label(name)
    a("global_load_dword%s %s, v%d, s[8:9] sc1" % ("" if width == 1 else "x%d" % width, vr(vt, width), voff))
    a("s_waitcnt vmcnt(0)")
    a("v_cmp_eq_u32 vcc, %s, v%d" % (want, vt))
    a("s_cmp_eq_u64 vcc, exec")
    a("s_cbranch_scc1 %s_d" % name)
    a("s_sleep %d" % slp)
    a("s_sub_u32 s60, s60, 1")
    a("s_cmp_lg_u32 s60, 0")
    a("s_cbranch_scc1 %s" % name)
    a.label(name + "_d")
    a("s_mov_b64 exec, -1")


def lds_inc(a, vz, vt, off, rtn=False):
    a("v_mov_b32 v%d, 1" % vt)
    a("s_mov_b64 exec, 1")
    if rtn:
        a("ds_add_rtn_u32 v%d, v%d, v%d offset:%d" % (vt, vz, vt, off))
    else:
        a("ds_add_u32 v%d, v%d offset:%d" % (vz, vt, off))
    a("s_mov_b64 exec, -1")


def load_tag(a):
    a("s_mov_b32 s64, %d" % L.WS_EPOCH)
    a("s_load_dword s%d, s[8:9], s64" % TAG)


def make_tag(a):
    a("s_mul_i32 s%d, s%d, 0x9e3779b1" % (TAG, TAG))
    a("s_add_u32 s%d, s%d, 0x7f4a7c15" % (TAG, TAG))


def copy_scalars(a):
    a("s_mul_i32 s55, s34, %d" % (4 * L.PAIR_BYTES))
    a("s_mul_i32 s56, s35, 9216")
    a("s_add_u32 s55, s55, s56")
    a("s_lshl_b32 s56, s3, 10")
    a("s_add_u32 s55, s55, s56")
    for j in range(5):
        a("s_add_u32 s57, s3, %d" % (8 * j))
        a("s_mul_i32 s57, s57, 57")
        a("s_lshr_b32 s57, s57, 9")
        a("s_mul_i32 s57, s57, %d" % (L.PAIR_BYTES - 9216))
        a("s_add_u32 s57, s57, s55")
        a("s_add_u32 s%d, s57, %d" % (50 + j, 8192 * j))
    a("s_mul_i32 s58, s35, 12")
    a("s_add_u32 s58, s58, s34")
    a("s_lshl_b32 s58, s58, 7")
    a("s_add_u32 s58, s58, %d" % (L.WS_FLAG + F_Q * 128))


def decode2(a):
    a("s_and_b32 s30, s2, 3")
    a("s_bfe_u32 s33, s2, 0x10002")
    a("s_bfe_u32 s32, s2, 0x20003")
    a("s_lshl_b32 s31, s30, 2")
    a("s_add_u32 s31, s31, s32")
    a("s_lshl_b32 s32, s33, 3")
    a("s_lshr_b32 s34, s2, 5")
    a("s_add_u32 s32, s32, s34")
    a("s_lshl_b32 s52, s33, 4")
    a("s_lshl_b32 s34, s30, 2")
    a("s_add_u32 s52, s52, s34")
    a("s_lshr_b32 s34, s2, 6")
    a("s_add_u32 s52, s52, s34")
    a("s_bfe_u32 s53, s2, 0x30003")


def gemm_phase(a):
    a("s_mul_i32 s33, s32, 43")
    a("s_lshr_b32 s33, s33, 7")
    a("s_mul_i32 s34, s33, 3")
    a("s_sub_u32 s34, s32, s34")
    a("s_lshl_b32 s34, s34, 2")
    a("s_add_u32 s34, s34, s30")
    a("s_lshl_b32 s35, s31, 3")
    a("s_add_u32 s35, s35, s33")
    a("s_cmp_lt_u32 s3, 4")
    a("s_cbranch_scc1 L_comp")
    a("s_cmp_lt_u32 s3, 6")
    a("s_cbranch_scc0 L_ldw")
    a("s_lshr_b32 s41, s34, 2")
    a("s_mul_i32 s41, s41, 43")
    a("v_add_u32 v6, s41, v0")
    a("v_mul_u32_u24 v6, 1152, v6")
    a("v_and_b32 v7, 7, v0")
    a("s_lshl_b32 s41, s33, 3")
    a("v_add_u32 v7, s41, v7")
    a("v_mul_u32_u24 v7, 3456, v7")
    a("v_lshrrev_b32 v8, 3, v0")
    a("v_lshl_add_u32 v7, v8, 7, v7")
    a("s_cmp_eq_u32 s3, 4")
    a("s_cselect_b32 s42, 43, 24")
    a("s_cselect_b64 s[46:47], -1, 0")
    a("v_cndmask_b32 v6, v7, v6, s[46:47]")
    a("v_cmp_gt_u32 s[44:45], s42, v0")
    a("s_mul_i32 s39, s35, %d" % (128 * 1152))
    a("s_mul_i32 s46, s34, 288")
    a("s_and_b32 s46, s46, 0xffffff80")
    a("s_sub_u32 s47, %d, s46" % (576 * 3456))
    a("s_waitcnt lgkmcnt(0)")
    srd_off(a, 16, 4, "s39", 128 * 1152)
    srd_off(a, 20, 6, "s46", "s47")
    a("s_cmp_eq_u32 s3, 4")
    a("s_cselect_b32 s20, s16, s20")
    a("s_cselect_b32 s21, s17, s21")
    a("s_cselect_b32 s22, s18, s22")
    a("s_mov_b64 exec, s[44:45]")
    a("buffer_load_dword v20, v6, s[20:23], 0 offen")
    a("s_mov_b64 exec, -1")
    load_tag(a)
    a("v_lshrrev_b32 v1, 3, v0")
    a("v_mul_u32_u24 v1, 1152, v1")
    a("v_lshrrev_b32 v2, 4, v0")
    a("v_and_b32 v3, 7, v0")
    a("v_xor_b32 v3, v3, v2")
    a("v_lshl_add_u32 v4, v3, 4, v1")
    a("v_xor_b32 v3, 4, v3")
    a("v_lshl_add_u32 v5, v3, 4, v1")
    a("v_add_u32 v5, %d, v5" % (8 * 1152))
    a("s_sub_u32 s36, s3, 4")
    a("s_mul_i32 s37, s36, %d" % (64 * 1152))
    a("s_lshl_b32 s38, s36, 13")
    copy_scalars(a)
    a("s_waitcnt vmcnt(0) lgkmcnt(0)")

    def x_chunk(c):
        for i in range(8):
            a("s_add_u32 m0, s38, %d" % ((c % 4) * SLOT + i * 1024))
            a("s_add_u32 s40, s37, %d" % ((i >> 1) * 16 * 1152 + c * 128))
            a("buffer_load_dwordx4 v%d, s[16:19], s40 offen lds" % (4 + (i & 1)))

    def loader_loop(fn, n):
        LA = OPT["la"]
        a("s_barrier")
        for c in range(LA):
            fn(c)
        for c in range(9):
            a("s_waitcnt vmcnt(%d)" % (n * min(LA - 1, 8 - c)))
            a("s_barrier")
            if c + LA < 9:
                fn(c + LA)

    loader_loop(x_chunk, 8)
    a("s_branch L_copy")
    a.label("L_ldw")
    a("s_movk_i32 s41, 3641")
    for i in range(9):
        a("v_add_u32 v1, %d, v0" % (64 * i))
        a("v_mul_u32_u24 v2, s41, v1")
        a("v_lshrrev_b32 v2, 16, v2")
        a("v_mul_u32_u24 v3, 18, v2")
        a("v_sub_u32 v3, v1, v3")
        a("v_bfe_u32 v1, v2, 2, 2")
        a("v_lshlrev_b32 v1, 3, v1")
        a("v_lshrrev_b32 v13, 4, v2")
        a("v_lshl_add_u32 v1, v13, 2, v1")
        a("v_and_b32 v2, 3, v2")
        a("v_add_u32 v1, v1, v2")
        a("v_mul_u32_u24 v1, 3456, v1")
        a("v_lshl_add_u32 v%d, v3, 4, v1" % (4 + i))
        if i == 2:
            a("s_waitcnt lgkmcnt(0)")
            load_tag(a)
    a("s_sub_u32 s36, s3, 6")
    a("s_mul_i32 s37, s36, %d" % (32 * 3456))
    a("s_mul_i32 s38, s36, 9216")
    a("s_mul_i32 s39, s34, 288")
    a("s_sub_u32 s42, %d, s39" % (576 * 3456))
    copy_scalars(a)
    srd_off(a, 16, 6, "s39", "s42")
    a("s_waitcnt lgkmcnt(0)")

    def w_chunk(c):
        a("s_add_u32 s40, s37, %d" % (c * 64 * 3456))
        for i in range(9):
            a("s_add_u32 m0, s38, %d" % ((c % 4) * SLOT + 16384 + i * 1024))
            a("s_nop 0")
            a("buffer_load_dwordx4 v%d, s[16:19], s40 offen lds" % (4 + i))

    loader_loop(w_chunk, 9)
    a("s_branch L_copy")
    a.label("L_comp")
    ACC, XF, WF = 64, (136, 144), 24
    a("v_and_b32 v8, 15, v0")
    a("v_lshrrev_b32 v9, 4, v0")
    a("v_lshrrev_b32 v10, 1, v8")
    a("v_xor_b32 v10, v10, v9")
    a("s_lshl_b32 s36, s3, 12")
    a("v_lshlrev_b32 v2, 7, v8")
    a("v_lshl_add_u32 v2, v10, 4, v2")
    a("v_add_u32 v2, s36, v2")
    a("v_xor_b32 v3, 64, v2")
    a("v_add_u32 v4, %d, v2" % (2 * SLOT))
    a("v_add_u32 v5, %d, v3" % (2 * SLOT))
    a("v_lshrrev_b32 v10, 2, v0")
    a("v_mul_u32_u24 v6, 288, v10")
    a("v_and_b32 v10, 3, v0")
    a("v_lshl_add_u32 v6, v10, 3, v6")
    a("v_add_u32 v6, 16384, v6")
    a("v_add_u32 v7, %d, v6" % (2 * SLOT))
    a("s_waitcnt lgkmcnt(0)")
    load_tag(a)
    a("s_mov_b32 s36, 1.0")
    a("s_cmp_lt_u32 s34, 4")
    a("s_cselect_b32 s36, %s, s36" % f32(QSCALE))
    a("s_mov_b32 s37, s36")
    a("s_lshl_b32 s38, s3, 5")
    a("v_add_u32 v10, s38, v8")
    a("v_mul_u32_u24 v10, 72, v10")
    a("v_lshl_add_u32 v10, v9, 3, v10")
    a("v_add_u32 v10, %d, v10" % IMG)
    for ft in range(9):
        a("v_add_u32 v11, %d, v9" % (4 * ft))
        a("v_mul_u32_u24 v11, 57, v11")
        a("v_lshrrev_b32 v11, 9, v11")
        a("v_mul_u32_u24 v11, 9144, v11")
        a("v_add_u32 v%d, v11, v10" % (12 + ft))
    copy_scalars(a)
    a("s_waitcnt lgkmcnt(0)")

    def xreads(step):
        c, h2 = step >> 1, step & 1
        slot = c % 4
        return ["ds_read_b128 %s, v%d offset:%d" % (vr(XF[step & 1] + 4 * tt, 4), 2 + 2 * (slot >> 1) + h2,
                                                    (slot & 1) * SLOT + tt * 2048) for tt in range(2)]

    def wreads(step, ft):
        c, h2 = step >> 1, step & 1
        slot = c % 4
        return ["ds_read_b64_tr_b16 %s, v%d offset:%d" % (vr(WF + 4 * ft + 2 * sec, 2), 6 + (slot >> 1),
                                                          (slot & 1) * SLOT + h2 * 9216 + sec * 4608 + ft * 32)
                for sec in range(2)]

    def mfma(step, ft, tt):
        d = vr(ACC + 8 * ft + 4 * tt, 4)
        return "v_mfma_f32_16x16x32_bf16 %s, %s, %s, %s" % (
            d, vr(WF + 4 * ft, 4), vr(XF[step & 1] + 4 * tt, 4), "0" if step == 0 else d)

    def epi(k):
        ft, tt = k >> 1, k & 1
        b = ACC + 4 * k
        t = 152 + 2 * (k % 8)
        return ["v_pk_mul_f32 %s, %s, s[36:37]" % (vr(b, 2), vr(b, 2)),
                "v_pk_mul_f32 %s, %s, s[36:37]" % (vr(b + 2, 2), vr(b + 2, 2)),
                "v_cvt_pk_bf16_f32 v%d, v%d, v%d" % (t, b, b + 1),
                "v_cvt_pk_bf16_f32 v%d, v%d, v%d" % (t + 1, b + 2, b + 3),
                "ds_write_b64 v%d, %s offset:%d" % (12 + ft, vr(t, 2), 32 * ft + 1152 * tt)]

    a("s_barrier")
    a("s_barrier")
    stamp(a, 1)
    q = []

    def issue(tag, lst):
        for x in lst:
            a(x)
            q.append(tag)

    def need(tag):
        last = max(k for k, v in enumerate(q) if v == tag)
        a("s_waitcnt lgkmcnt(%d)" % min(15, len(q) - 1 - last))

    issue(("x", 0), xreads(0))
    for ft in range(9):
        issue(("w", 0, ft), wreads(0, ft))
    LAG = 3
    for step in range(18):
        if step & 1 and step < 17:
            a("s_barrier")
        for ft in range(9):
            need(("w", step, ft))
            a(mfma(step, ft, 0))
            if ft == 0 and step < 17:
                issue(("x", step + 1), xreads(step + 1))
            if step == 17 and 2 * ft >= LAG:
                e = epi(2 * ft - LAG)
                for x in e[:4]:
                    a(x)
                issue("e", e[4:])
            a(mfma(step, ft, 1))
            if step < 17:
                issue(("w", step + 1, ft), wreads(step + 1, ft))
            elif 2 * ft + 1 >= LAG:
                e = epi(2 * ft + 1 - LAG)
                for x in e[:4]:
                    a(x)
                issue("e", e[4:])
    for k in range(18 - LAG, 18):
        for x in epi(k):
            a(x)
    stamp(a, 2)
    a("s_waitcnt lgkmcnt(0)")
    a.label("L_copy")
    a("v_lshlrev_b32 v1, 4, v0")
    a("s_lshl_b32 s36, s3, 10")
    a("v_add_u32 v2, s36, v1")
    a("v_add_u32 v3, %d, v2" % (IMG + 4 * 8192))
    srd(a, 24, 8, L.QKV_BYTES)
    make_tag(a)
    a("s_barrier")
    for j in range(4):
        a("ds_read_b128 %s, v2 offset:%d" % (vr(4 + 4 * j, 4), IMG + j * 8192))
    a("s_cmp_lt_u32 s3, 4")
    a("s_cbranch_scc0 L_c4")
    a("ds_read_b128 v[20:23], v3")
    a("s_waitcnt lgkmcnt(0)")
    a("buffer_store_dwordx4 v[20:23], v1, s[24:27], s54 offen sc1")
    a.label("L_c4")
    for j in range(4):
        a("s_waitcnt lgkmcnt(%d)" % (3 - j))
        a("buffer_store_dwordx4 %s, v1, s[24:27], s%d offen sc1" % (vr(4 + 4 * j, 4), 50 + j))
    a("s_mov_b32 s63, s58")
    stamp(a, 3)


def spare_phase(a):
    GW = 64
    a.label("L_sp")
    a("s_sub_u32 s36, s2, 192")
    a("s_cmp_ge_u32 s3, 8")
    a("s_cbranch_scc1 L_sp_ffn")
    a("s_cmp_ge_u32 s3, 4")
    a("s_cbranch_scc1 L_sp_hi")
    a("s_load_dwordx2 s[60:61], s[0:1], 32")
    a("s_load_dwordx2 s[62:63], s[0:1], 64")
    a("v_lshrrev_b32 v2, 3, v0")
    a("v_and_b32 v3, 7, v0")
    a("v_lshlrev_b32 v3, 4, v3")
    a("s_lshl_b32 s34, s36, 2")
    a("s_add_u32 s34, s34, s3")
    a("s_lshl_b32 s33, s34, 3")
    a("v_add_u32 v1, s33, v2")
    a("v_mul_u32_u24 v4, 1152, v1")
    a("v_add_u32 v4, v4, v3")
    a("s_mul_i32 s51, s34, %d" % (7 * 128))
    a("s_mul_i32 s52, s34, %d" % (21 * 128))
    a("v_lshlrev_b32 v7, 7, v0")
    a("s_waitcnt lgkmcnt(0)")
    load_tag(a)
    srd(a, 16, 6, 576 * 3456)
    srd(a, 20, 28, 576 * 1152)
    for i in range(9):
        a("global_load_dwordx4 %s, v4, s[4:5] offset:%d" % (vr(8 + 4 * i, 4), 128 * i))
        if i == 0:
            for j in range(9):
                a("global_load_dwordx4 %s, v3, s[60:61] offset:%d" % (vr(44 + 4 * j, 4), 128 * j))
                a("global_load_dwordx4 %s, v3, s[62:63] offset:%d" % (vr(80 + 4 * j, 4), 128 * j))
        else:
            a("s_add_u32 s53, s51, %d" % (1728 * 128 * i))
            a("s_mov_b64 exec, 0x7f")
            a("buffer_load_dword v124, v7, s[16:19], s53 offen")
            a("s_mov_b64 exec, -1")
    a("s_mov_b64 exec, 0x1fffff")
    a("buffer_load_dword v124, v7, s[20:23], s52 offen")
    a("s_mov_b64 exec, -1")
    a("v_mov_b32 v%d, %d" % (vC, CTL))
    a("s_waitcnt lgkmcnt(0)")
    make_tag(a)
    a("s_barrier")
    a("s_waitcnt vmcnt(2)")
    for i in range(36):
        p = 116 + (i & 3)
        a("v_dot2_f32_bf16 v%d, v%d, v%d, %s" % (p, 8 + i, 44 + i, "0" if i < 4 else "v%d" % p))
    a("s_nop 1")
    a("v_pk_add_f32 v[116:117], v[116:117], v[118:119]")
    a("v_add_f32 v5, v116, v117")
    sum8(a, (5,))
    bf16_round(a, 5, 5)
    a("v_ashrrev_i32 v7, 31, v5")
    a("v_or_b32 v7, 0x80000000, v7")
    a("v_xor_b32 v7, v7, v5")
    a("v_and_b32 v7, 0xffff0000, v7")
    a("v_sub_u32 v6, 0x7ff, v1")
    a("v_or_b32 v7, v7, v6")
    a("v_mov_b32 v5, 1")
    a("s_mov_b32 s54, 0x01010101")
    a("s_mov_b32 exec_lo, s54")
    a("s_mov_b32 exec_hi, s54")
    a("ds_max_u32 v%d, v7 offset:%d" % (vC, C_KMAX))
    a("s_mov_b64 exec, 1")
    a("ds_add_rtn_u32 v5, v%d, v5 offset:%d" % (vC, C_KCNT))
    a("ds_read_b32 v7, v%d offset:%d" % (vC, C_KMAX))
    a("s_lshl_b32 s53, s36, 3")
    a("s_add_u32 s53, s53, %d" % L.WS_KEYF)
    a("v_mov_b32 v4, s53")
    a("v_mov_b32 v6, s%d" % TAG)
    a("s_waitcnt lgkmcnt(0)")
    a("v_cmp_eq_u32 vcc, 3, v5")
    a("s_and_b64 exec, exec, vcc")
    a("s_cbranch_execz L_sp_nopub")
    a("global_store_dwordx2 v4, v[6:7], s[8:9] sc1")
    a.label("L_sp_nopub")
    a("s_mov_b64 exec, -1")
    stamp(a, 1)
    a("s_mov_b32 s55, 0x3f803f80")
    for i in range(36):
        x, w, p = 8 + i, 80 + i, 116 + (i & 3)
        t = 44 + 4 * (i & 3)
        a("v_lshlrev_b32 v%d, 16, v%d" % (t, x))
        a("v_and_b32 v%d, 0xffff0000, v%d" % (t + 1, x))
        a("v_lshlrev_b32 v%d, 16, v%d" % (t + 2, w))
        a("v_and_b32 v%d, 0xffff0000, v%d" % (t + 3, w))
        a("v_pk_mul_f32 %s, %s, %s" % (vr(t, 2), vr(t, 2), vr(t + 2, 2)))
        a("v_cvt_pk_bf16_f32 v%d, v%d, v%d" % (t, t, t + 1))
        a("v_dot2_f32_bf16 v%d, v%d, s55, %s" % (p, t, "0" if i < 4 else "v%d" % p))
    a("s_nop 1")
    a("v_pk_add_f32 v[116:117], v[116:117], v[118:119]")
    a("v_add_f32 v6, v116, v117")
    sum8(a, (6,))
    bf16_round(a, 6, 6)
    sigmoid(a, 6, 6)
    bf16_round(a, 6, 6)
    a("v_lshlrev_b32 v1, 2, v1")
    a("v_add_u32 v1, %d, v1" % L.WS_G)
    a("s_mov_b32 exec_lo, s54")
    a("s_mov_b32 exec_hi, s54")
    a("global_store_dword v1, v6, s[8:9] sc1")
    a("s_mov_b64 exec, -1")
    a("s_waitcnt vmcnt(0)")
    lds_inc(a, vC, 5, C_GD)
    a("s_mov_b32 s63, 0")
    stamp(a, 2)
    a("s_branch L_att")

    a.label("L_sp_hi")
    a("v_mov_b32 v%d, %d" % (vC, CTL))
    a("s_waitcnt lgkmcnt(0)")
    load_tag(a)
    a("s_mov_b32 s63, 0")
    a("s_waitcnt lgkmcnt(0)")
    make_tag(a)
    a("s_barrier")
    a("s_cmp_eq_u32 s3, 4")
    a("s_cbranch_scc0 L_att")
    for k in range(4):
        a("v_mov_b32 v%d, 0" % (12 + k))
    a("s_cmp_lt_u32 s36, 36")
    a("s_cbranch_scc0 L_sp_nz")
    a("s_lshl_b32 s51, s36, 10")
    a("s_add_u32 s51, s51, %d" % L.WS_YP)
    a("v_lshlrev_b32 v4, 4, v0")
    a("v_add_u32 v4, s51, v4")
    a("global_store_dwordx4 v4, v[12:15], s[8:9] sc1")
    a("s_cmp_eq_u32 s36, 0")
    a("s_cbranch_scc0 L_sp_nz")
    a("v_lshlrev_b32 v4, 7, v0")
    a("v_add_u32 v4, %d, v4" % (L.WS_FLAG + F_Y * 128))
    a("global_store_dword v4, v12, s[8:9] sc1")
    a.label("L_sp_nz")
    a("v_lshlrev_b32 v8, 3, v0")
    a("v_add_u32 v8, %d, v8" % L.WS_KEYF)
    srd(a, 24, 4, 2048 * 1152)
    lds_spin(a, "L_sp_own", vC, C_KCNT, 10, (4,), 2)
    a("s_sleep %d" % OPT["slp0"])
    flag_poll(a, "L_sp_kp", 8, 10, "s%d" % TAG, 64, OPT["slp"], 2)
    a("v_lshlrev_b32 v8, 4, v0")
    stamp(a, 1)
    wave_umax(a, 11, 53)
    a("s_and_b32 s54, s53, 0x7ff")
    a("s_sub_u32 s54, 2047, s54")
    a("s_mul_i32 s55, s54, 1152")
    a("s_mov_b32 m0, %d" % XS)
    a("s_add_u32 s56, s55, 1024")
    a("buffer_load_dwordx4 v8, s[24:27], s55 offen lds")
    a("s_mov_b32 m0, %d" % (XS + 1024))
    a("s_mov_b64 exec, 0xff")
    a("buffer_load_dwordx4 v8, s[24:27], s56 offen lds")
    a("s_mov_b64 exec, -1")
    a("s_and_b32 s55, s53, 0xffff0000")
    a("s_xor_b32 s56, s55, 0x80000000")
    a("s_xor_b32 s57, s55, 0xffff0000")
    a("s_bitcmp1_b32 s55, 31")
    a("s_cselect_b32 s55, s56, s57")
    a("v_mov_b32 v12, s55")
    sigmoid(a, 13, 12)
    bf16_round(a, 13, 13)
    a("v_mov_b32 v12, s54")
    a("ds_write_b64 v%d, v[12:13] offset:%d" % (vC, C_IDX))
    a("v_mov_b32 v12, 1")
    a("s_waitcnt vmcnt(0)")
    a("ds_write_b32 v%d, v12 offset:%d" % (vC, C_XS))
    stamp(a, 2)
    a("s_branch L_att")

    a.label("L_sp_ffn")
    a("s_load_dwordx4 s[40:43], s[0:1], 40")
    a("v_mov_b32 v3, %d" % CTL)
    for k in range(4):
        a("v_mov_b32 v%d, 0" % (4 + k))
    a("v_lshlrev_b32 v1, 4, v0")
    a("v_add_u32 v2, v1, v3")
    a("s_mov_b64 exec, 0xff")
    a("ds_write_b128 v2, v[4:7]")
    a("s_mov_b64 exec, -1")
    a("v_lshlrev_b32 v2, 2, v0")
    a("v_add_u32 v2, %d, v2" % (XS + 1152))
    a("ds_write_b32 v2, v4")
    a("s_sub_u32 s59, s3, 8")
    a("s_mul_i32 s37, s36, 57")
    a("s_lshr_b32 s37, s37, 9")
    a("s_mul_i32 s38, s37, 9")
    a("s_sub_u32 s38, s36, s38")
    a("s_mul_i32 s49, s37, 84")
    a("s_mul_i32 s39, s49, 9216")
    a("s_lshl_b32 s48, s38, 10")
    a("s_add_u32 s39, s39, s48")
    a("s_sub_u32 s48, %d, s39" % (576 * 9216))
    a("s_min_i32 s48, s48, %d" % (83 * 9216 + 1024))
    a("s_max_i32 s48, s48, 0")
    a("v_lshrrev_b32 v160, 5, v0")
    a("v_mul_u32_u24 v160, 9216, v160")
    a("v_and_b32 v161, 31, v0")
    a("v_lshl_add_u32 v160, v161, 4, v160")
    a("s_mul_i32 s57, s59, 20480")
    a("s_add_u32 s57, s57, %d" % WO)
    a("s_mul_i32 s58, s59, %d" % (2 * 9216))
    a("s_waitcnt lgkmcnt(0)")
    load_tag(a)
    srd_off(a, 16, 40, "s39", "s48")
    srd_off(a, 20, 42, "s39", "s48")
    a("s_waitcnt lgkmcnt(0)")
    make_tag(a)
    a("s_barrier")
    for i in range(5):
        a("s_add_u32 s55, s58, %d" % (8 * (6 + i) * 9216))
        a("s_add_u32 s56, s55, 512")
        for k in range(4):
            a("s_add_u32 m0, s57, %d" % ((4 * i + k) * 1024))
            a("buffer_load_dwordx4 v160, s[%d:%d], s%d offen nt lds" % (16 + 4 * (k >> 1), 19 + 4 * (k >> 1), 55 + (k & 1)))
    for i in range(6):
        a("s_add_u32 s55, s58, %d" % (8 * i * 9216))
        for k in range(4):
            a("buffer_load_dwordx4 %s, v160, s[%d:%d], s55 offen offset:%d nt" % (
                vr(GW + 16 * i + 4 * k, 4), 16 + 4 * (k >> 1), 19 + 4 * (k >> 1), 512 * (k & 1)))
    a("s_lshl_b32 s55, s59, 1")
    a("s_add_u32 s55, s55, s49")
    a("v_lshrrev_b32 v51, 5, v0")
    a("v_add_u32 v51, s55, v51")
    a("v_lshlrev_b32 v51, 1, v51")
    a("v_add_u32 v51, %d, v51" % XS)
    a("v_and_b32 v2, 1, v0")
    a("v_lshlrev_b32 v2, 4, v2")
    a("v_lshrrev_b32 v4, 1, v0")
    a("v_xor_b32 v4, v4, v0")
    a("v_and_b32 v4, 8, v4")
    a("v_bfe_u32 v5, v0, 1, 2")
    a("v_or_b32 v4, v4, v5")
    for q in range(4):
        a("v_cmp_eq_u32 s[%d:%d], %d, v4" % (40 + 2 * q, 41 + 2 * q, q))
    a("v_bfe_u32 v4, v0, 3, 1")
    a("v_lshlrev_b32 v4, 9, v4")
    a("v_lshrrev_b32 v5, 4, v0")
    a("v_lshl_add_u32 v4, v5, 7, v4")
    a("v_and_b32 v5, 7, v0")
    a("v_lshl_add_u32 v4, v5, 2, v4")
    a("v_add_u32 v6, s57, v4")
    a("v_add_u32 v52, s57, v1")
    a("s_sub_u32 s55, s3, 8")
    a("s_lshl_b32 s55, s55, 10")
    a("v_add_u32 v8, s55, v1")
    a("s_mul_i32 s52, s37, %d" % (2 * 4608 * 4))
    a("s_lshr_b32 s55, s59, 1")
    a("s_mul_i32 s55, s55, %d" % (4608 * 4 - 2048))
    a("s_add_u32 s52, s52, s55")
    a("s_lshl_b32 s55, s38, 11")
    a("s_add_u32 s52, s52, s55")
    a("s_add_u32 s52, s52, %d" % L.WS_PA)
    a("v_add_u32 v9, s52, v8")
    a("v_add_u32 v8, %d, v8" % WO)
    stamp(a, 3)
    lds_spin(a, "L_sp_xs", 3, C_XS, 10, (1,), 2)
    for i in range(11):
        a("ds_read_u16 v%d, v51 offset:%d" % (53 + i, 16 * i))
    a("s_waitcnt vmcnt(24)")
    for k in range(4):
        a("ds_read_b128 %s, v52 offset:%d" % (vr(32 + 4 * k, 4), 1024 * k))
    a("s_waitcnt lgkmcnt(4)")
    for i in range(11):
        a("v_lshlrev_b32 v%d, v2, v%d" % (53 + i, 53 + i))
    first = True
    for i in range(5):
        selector(a, 12, 53 + 6 + i, 40)
        for k in range(4):
            d = vr(16 + 4 * k, 4)
            a("s_waitcnt lgkmcnt(%d)" % (3 if i < 4 else 3 - k))
            a("v_mfma_f32_16x16x32_bf16 %s, %s, v[12:15], %s" % (d, vr(32 + 4 * k, 4), "0" if first else d))
            if i < 4:
                a("ds_read_b128 %s, v52 offset:%d" % (vr(32 + 4 * k, 4), 1024 * (4 * (i + 1) + k)))
        first = False
    for i in range(6):
        selector(a, 12, 53 + i, 40)
        a("s_waitcnt vmcnt(%d)" % (4 * (5 - i)))
        for k in range(4):
            d = vr(16 + 4 * k, 4)
            a("v_mfma_f32_16x16x32_bf16 %s, %s, v[12:15], %s" % (d, vr(GW + 16 * i + 4 * k, 4), d))
    for k in range(4):
        for r in range(4):
            a("ds_write_b32 v6, v%d offset:%d" % (16 + 4 * k + r, 1024 * k + 32 * r))
    lds_inc(a, 3, 10, C_RED)
    lds_spin(a, "L_sp_rd", 3, C_RED, 10, (4,), 0)
    for p in range(4):
        a("ds_read_b128 %s, v8 offset:%d" % (vr(16 + 4 * p, 4), 20480 * p))
    a("ds_read_b64 v[34:35], v3 offset:%d" % C_IDX)
    a("s_waitcnt lgkmcnt(0)")
    for p in (2, 1):
        for h in range(2 * p):
            a("v_pk_add_f32 %s, %s, %s" % (vr(16 + 2 * h, 2), vr(16 + 2 * h, 2), vr(16 + 4 * p + 2 * h, 2)))
    a("s_cmp_eq_u32 s36, 63")
    a("s_cbranch_scc1 L_sp_nost")
    a("global_store_dwordx4 v9, v[16:19], s[8:9] sc1")
    a.label("L_sp_nost")
    a("s_lshl_b32 s55, s36, 7")
    a("s_add_u32 s55, s55, %d" % (L.WS_FLAG + F_PA * 128))
    a("v_mov_b32 v9, s55")
    a("v_mov_b32 v32, s%d" % TAG)
    a("v_mov_b32 v33, v34")
    a("v_mov_b32 v34, v35")
    lds_spin(a, "L_sp_gd", 3, C_GD, 10, (4,), 1)
    a("s_waitcnt vmcnt(0)")
    lds_inc(a, 3, 10, C_RED2, rtn=True)
    a("s_waitcnt lgkmcnt(0)")
    a("v_readfirstlane_b32 s55, v10")
    a("s_cmp_eq_u32 s55, 3")
    a("s_cbranch_scc0 L_sp_nofl")
    a("s_mov_b64 exec, 1")
    a("global_store_dwordx4 v9, v[32:35], s[8:9] sc1")
    a("s_mov_b64 exec, -1")
    a.label("L_sp_nofl")
    stamp(a, 4)
    lds_spin(a, "L_sp_r2", 3, C_RED2, 10, (4,), 0)
    a("s_branch L_help2")


def attn_loop(a):
    for i in range(9):
        if i == 0:
            a("s_cmp_lt_u32 s43, 2")
            a("s_cbranch_scc0 L_hb_x")
            a("s_waitcnt vmcnt(2)")
            lds_inc(a, vC, T, C_B)
            a.label("L_hb_x")
        if i == 1:
            a("s_waitcnt vmcnt(0)")
            lds_inc(a, vC, T, C_C)
            a("buffer_load_dword v155, v152, s[24:27], s59 offen")
        if i in (1, 2):
            a("s_cmp_eq_u32 s43, %d" % (2 - i))
            a("s_cbranch_scc0 L_hb%d_d" % i)
            lds_spin(a, "L_hb%d" % i, vC, C_B, T, (8,), 0)
        if 3 <= i <= 6:
            a("s_cmp_eq_u32 s43, %d" % (6 - i))
            a("s_cbranch_scc0 L_hc%d_d" % i)
            lds_spin(a, "L_hc%d" % i, vC, C_C, T, (8,), 0)
        a.label("L_it%d" % i)
        S, P = SS[i & 1], PP[i & 1]
        ex = ["v_exp_f32 v%d, v%d" % (S + r, S + r) for r in range(16)]
        cv = ["v_cvt_pk_bf16_f32 v%d, v%d, v%d" % (P + q, S + 2 * q, S + 2 * q + 1) for q in range(8)]
        if i == 0:
            mk = ["v_bfi_b32 v%d, v%d, 0, v%d" % (P + q, MSK + q, P + q) for q in range(8)]
        elif i == 8:
            mk = ["v_and_b32 v%d, v%d, v%d" % (P + q, MSK + q, P + q) for q in range(8)]
        else:
            mk = []
        m1 = qk(i + 1) if i < 8 else []
        m2 = pv(i - 1, i == 1) if i > 0 else []
        a("s_waitcnt lgkmcnt(%d)" % (4 if 0 < i < 8 else 0))
        seq = m1[:1] + ex[0:4] + m1[1:] + (k_reads(i + 2) if i + 2 <= 8 else []) + ex[4:8] + cv[0:2] + m2[:1] + \
            ex[8:12] + cv[2:4] + m2[1:]
        if i + 1 <= 8:
            seq += ["v_add_u32 v%d, v%d, v%d" % (vV, vV, vStep)] + v_reads(i + 1)
        seq += ex[12:16] + cv[4:8] + mk
        for x in seq:
            a(x)
    a("s_waitcnt lgkmcnt(0)")
    for x in pv(8, False):
        a(x)


def attention_phase(a):
    a.label("L_att")
    decode2(a)
    a("s_mul_i32 s33, s31, %d" % L.PAIR_BYTES)
    a("s_mul_i32 s34, s32, 9216")
    a("s_add_u32 s33, s33, s34")
    a("v_mov_b32 v%d, %d" % (vC, CTL))
    KS, VS = 16 * L.PAIR_BYTES - 18432, 32 * L.PAIR_BYTES - 18432
    grp = [(QB, 0), (KB, KS), (VB, VS), (KB + 9216, KS + 9216), (VB + 9216, VS + 9216), (KB + 18432, KS + 18432), (VB + 18432, VS + 18432)]
    a("s_lshl_b32 s34, s3, 10")
    for j in range(8):
        lo, hi = (8 * j) // 9, min(8 * j + 7, 62) // 9
        l0, g0 = grp[lo][0] + (8 * j - 9 * lo) * 1024, grp[lo][1] + (8 * j - 9 * lo) * 1024
        l1, g1 = grp[hi][0] + (8 * j - 9 * hi) * 1024, grp[hi][1] + (8 * j - 9 * hi) * 1024
        if j == 7:
            a("s_min_u32 s34, s34, %d" % (6 * 1024))
        if lo == hi:
            a("s_add_u32 s%d, s34, %d" % (16 + j, l0))
            a("s_add_u32 s%d, s33, %d" % (44 + j, g0 - l0 & 0xffffffff))
        else:
            a("s_mov_b32 s35, %d" % l0)
            a("s_mov_b32 s36, %d" % (g0 - l0 & 0xffffffff))
            a("s_cmp_ge_u32 s3, %d" % (9 * hi - 8 * j))
            a("s_cselect_b32 s35, %d, s35" % (l1 & 0xffffffff))
            a("s_cselect_b32 s36, %d, s36" % (g1 - l1 & 0xffffffff))
            a("s_add_u32 s%d, s34, s35" % (16 + j))
            a("s_add_u32 s%d, s33, s36" % (44 + j))
        a("s_add_u32 s%d, s%d, s%d" % (44 + j, 44 + j, 16 + j))
    a("v_add_u32 v8, 2, v0")
    a("v_mul_u32_u24 v9, 43, v8")
    a("v_lshrrev_b32 v9, 7, v9")
    a("v_mul_u32_u24 v10, 3, v9")
    a("v_sub_u32 v8, v8, v10")
    a("s_sub_u32 s35, s32, 2")
    a("v_add_u32 v8, s35, v8")
    a("v_max_i32 v8, 0, v8")
    a("v_mul_u32_u24 v8, 12, v8")
    a("v_lshl_add_u32 v8, v9, 2, v8")
    a("v_add_u32 v8, s30, v8")
    a("v_lshlrev_b32 v8, 7, v8")
    a("v_add_u32 v8, %d, v8" % (L.WS_FLAG + F_Q * 128))
    a("v_mov_b32 v10, s63")
    a("v_mov_b32 v11, s%d" % TAG)
    a("s_waitcnt vmcnt(0)")
    lds_inc(a, vC, 9, C_1, rtn=True)
    a("s_cmp_lg_u32 s63, 0")
    a("s_cselect_b32 s35, 7, 99")
    a("s_waitcnt lgkmcnt(0)")
    a("v_readfirstlane_b32 s36, v9")
    a("s_cmp_eq_u32 s36, s35")
    a("s_cbranch_scc0 L_nofl1")
    a("s_mov_b64 exec, 1")
    a("global_store_dword v10, v11, s[8:9] sc1")
    a("s_mov_b64 exec, -1")
    a.label("L_nofl1")
    stamp(a, 4)
    a("s_cmp_eq_u32 s3, 4")
    a("s_cbranch_scc0 L_nopoll1")
    flag_poll(a, "L_qp", 8, 9, "s%d" % TAG, 7, 2)
    lds_inc(a, vC, 9, C_GO1)
    a.label("L_nopoll1")
    a("s_and_b32 s42, s3, 1")
    a("s_lshr_b32 s43, s3, 1")
    a("s_mul_i32 s35, s43, 2304")
    a("s_mul_i32 s36, s42, 40")
    a("v_and_b32 v%d, 31, v0" % T)
    a("v_lshrrev_b32 v%d, 5, v0" % (T + 1))
    a("v_mul_u32_u24 v%d, 72, v%d" % (vKt, T))
    a("v_add_u32 v%d, s35, v%d" % (vKt, vKt))
    a("v_lshl_add_u32 v%d, v%d, 4, v%d" % (vK, T + 1, vKt))
    a("v_add_u32 v%d, s36, v%d" % (vK, vK))
    a("v_add_u32 v%d, 32, v%d" % (vKt, vKt))
    a("v_bfe_u32 v%d, v0, 2, 2" % (T + 2))
    a("v_lshl_add_u32 v%d, v%d, 2, v%d" % (T + 2, T + 1, T + 2))
    a("v_mul_u32_u24 v%d, 72, v%d" % (T + 2, T + 2))
    a("s_add_u32 s37, s35, %d" % VB)
    a("v_add_u32 v%d, s37, v%d" % (T + 2, T + 2))
    a("v_and_b32 v%d, 3, v0" % (T + 3))
    a("v_lshlrev_b32 v%d, 3, v%d" % (T + 4, T + 3))
    a("v_add_u32 v%d, s36, v%d" % (T + 4, T + 4))
    a("v_and_b32 v%d, 16, v0" % (T + 5))
    a("v_cmp_eq_u32 s[38:39], 0, v%d" % (T + 5))
    a("v_cndmask_b32 v%d, 32, v%d, s[38:39]" % (T + 4, T + 4))
    a("v_add_u32 v%d, v%d, v%d" % (vV, T + 2, T + 4))
    a("v_and_b32 v%d, 19, v0" % (T + 5))
    a("v_cmp_lt_u32 s[38:39], 16, v%d" % (T + 5))
    a("v_mov_b32 v%d, %d" % (T + 6, ONES))
    a("v_cndmask_b32 v%d, v%d, v%d, s[38:39]" % (vV, vV, T + 6))
    a("v_mov_b32 v%d, 2304" % (T + 6))
    a("v_cndmask_b32 v%d, v%d, 0, s[38:39]" % (vStep, T + 6))
    a("v_lshlrev_b32 v%d, 2, v%d" % (T + 2, T + 1))
    a("v_sub_u32 v%d, v%d, v%d" % (T + 2, T, T + 2))
    a("v_mov_b32 v%d, 0xffff" % (T + 3))
    for q in range(8):
        kl = 8 * (q >> 1) + 2 * (q & 1)
        a("v_cmp_le_i32 s[38:39], %d, v%d" % (kl, T + 2))
        a("v_cmp_le_i32 s[40:41], %d, v%d" % (kl + 1, T + 2))
        a("v_cndmask_b32 v%d, 0, v%d, s[38:39]" % (MSK + q, T + 3))
        a("v_cndmask_b32 v%d, v%d, -1, s[40:41]" % (MSK + q, MSK + q))
    a("s_lshl_b32 s41, s32, 2")
    a("s_add_u32 s41, s41, s43")
    a("s_sub_i32 s41, 8, s41")
    a("s_lshl_b32 s35, s32, 3")
    a("s_lshl_b32 s36, s43, 1")
    a("s_add_u32 s35, s35, s36")
    a("s_mul_i32 s35, s35, 18432")
    a("s_lshl_b32 s58, s31, 10")
    a("s_lshl_b32 s36, s42, 9")
    a("s_add_u32 s58, s58, s36")
    a("s_add_u32 s58, s58, s35")
    a("s_lshr_b32 s59, s31, 1")
    a("s_lshl_b32 s59, s59, 8")
    a("s_and_b32 s36, s31, 1")
    a("s_lshl_b32 s36, s36, 3")
    a("s_add_u32 s59, s59, s36")
    a("s_lshl_b32 s36, s42, 2")
    a("s_add_u32 s59, s59, s36")
    a("s_add_u32 s59, s59, s35")
    a("s_add_u32 s59, s59, 16384")
    a("v_bfe_u32 v152, v0, 4, 1")
    a("v_mul_u32_u24 v152, 18432, v152")
    a("v_and_b32 v153, 15, v0")
    a("v_lshl_add_u32 v152, v153, 4, v152")
    a("v_lshrrev_b32 v153, 5, v0")
    a("v_lshl_add_u32 v153, v153, 8, v152")
    a("v_cmp_gt_u32 vcc, 32, v0")
    a("s_cmp_eq_u32 s42, 0")
    a("s_cselect_b64 s[54:55], vcc, 0")
    a("s_cselect_b64 s[56:57], 0, vcc")
    a("v_and_b32 v%d, 3, v0" % (T + 2))
    a("v_mul_u32_u24 v%d, 576, v%d" % (T + 2, T + 2))
    a("v_mov_b32 v%d, 0x3f803f80" % (T + 4))
    a("v_mov_b32 v%d, v%d" % (T + 5, T + 4))
    a("v_lshlrev_b32 v%d, 4, v0" % (T + 3))
    srd(a, 36, 8, L.QKV_BYTES)
    srd_off(a, 24, 8, L.WS_O, 128 * 18432)
    lds_spin(a, "L_go1", vC, C_1, T, (8, 1), 0)
    stamp(a, 5)
    for j in range(8):
        a("s_mov_b32 m0, s%d" % (16 + j))
        a("s_nop 0")
        a("buffer_load_dwordx4 v%d, s[36:39], s%d offen sc1 lds" % (T + 3, 44 + j))
    a("ds_write_b64 v%d, %s offset:%d" % (T + 2, vr(T + 4, 2), ONES))
    a("s_cmp_lt_u32 s32, 2")
    a("s_cbranch_scc1 L_late")
    a("s_waitcnt vmcnt(4)")
    lds_inc(a, vC, T, C_A)
    a("s_cmp_lt_u32 s43, 2")
    a("s_cbranch_scc1 L_sA")
    a("s_waitcnt vmcnt(2)")
    lds_inc(a, vC, T, C_B)
    lds_spin(a, "L_sB", vC, C_B, T, (8,), 0)
    a.label("L_sA")
    lds_spin(a, "L_sA2", vC, C_A, T, (8,), 0)
    stamp(a, 6)
    for x in q_reads() + k_reads(0) + k_reads(1) + v_reads(0):
        a(x)
    a("s_waitcnt lgkmcnt(7)")
    a("v_cndmask_b32 v%d, 0, v%d, s[54:55]" % (QT, QT))
    a("v_cndmask_b32 v%d, 0, v%d, s[56:57]" % (QT + 1, QT + 1))
    for x in qk(0):
        a(x)
    attn_loop(a)
    a.label("L_check")
    stamp(a, 7)
    a("s_mov_b32 s46, %s" % f32(2.0 ** 60))
    a("s_mov_b32 s47, %s" % f32(2.0 ** -60))
    a("s_mov_b32 s48, 0x7f800000")
    a("s_nop 7")
    a("s_nop 0")
    a("v_rcp_f32 v%d, v%d" % (T, OO + 12))
    a("v_cmp_gt_f32 s[50:51], s46, v%d" % (OO + 12))
    a("v_cmp_lt_f32 vcc, s47, v%d" % (OO + 12))
    for k in range(6):
        a("v_add_f32 v%d, abs(v%d), abs(v%d)" % (T + 2 + k, OO + 2 * k, OO + 2 * k + 1))
    a("s_and_b64 s[50:51], s[50:51], vcc")
    a("v_pk_add_f32 %s, %s, %s" % (vr(T + 2, 2), vr(T + 2, 2), vr(T + 4, 2)))
    a("v_pk_add_f32 %s, %s, %s" % (vr(T + 2, 2), vr(T + 2, 2), vr(T + 6, 2)))
    a("v_add_f32 v%d, v%d, v%d" % (T + 2, T + 2, T + 3))
    a("v_cmp_gt_f32 vcc, s48, v%d" % (T + 2))
    a("s_and_b64 s[50:51], s[50:51], vcc")
    a("s_cmp_eq_u64 s[50:51], -1")
    a("s_cbranch_scc0 L_slow")
    a.label("L_fin")
    a("s_cmp_eq_u32 s42, 0")
    a("s_cbranch_scc1 L_fa")
    a("v_mov_b32 v%d, v%d" % (OO + 8, OO + 10))
    a("v_mov_b32 v%d, v%d" % (OO + 9, OO + 11))
    a.label("L_fa")
    for k in range(0, 10, 2):
        a("v_pk_mul_f32 %s, %s, %s op_sel_hi:[1,0]" % (vr(OO + k, 2), vr(OO + k, 2), vr(T, 2)))
    for q in range(5):
        a("v_cvt_pk_bf16_f32 v%d, v%d, v%d" % (T + 4 + q, OO + 2 * q, OO + 2 * q + 1))
    a("buffer_store_dwordx4 %s, v153, s[24:27], s58 offen sc1" % vr(T + 4, 4))
    a("s_mov_b32 exec_hi, 0")
    a("buffer_store_dword v%d, v152, s[24:27], s59 offen sc1" % (T + 8))
    a("s_mov_b32 exec_hi, -1")


def q_reads():
    return ["ds_read_b64 %s, v%d offset:%d" % (vr(QM, 2), vK, QB),
            "ds_read_b64 %s, v%d offset:%d" % (vr(QM + 2, 2), vK, QB + 8),
            "ds_read_b64 %s, v%d offset:%d" % (vr(QT, 2), vKt, QB)]


def out_phase(a):
    A0, BX, WFR, OF, ACC = 4, 6, (20, 40, 100), 64, (60, 120, 124, 156, 160)
    a("s_add_u32 s40, s3, s53")
    a("s_and_b32 s54, s40, 3")
    a("s_bfe_u32 s40, s40, 0x10002")
    a("s_lshl_b32 s55, s52, 2")
    a("s_add_u32 s55, s55, s54")
    a("s_lshl_b32 s46, s32, 4")
    a("s_add_u32 s46, s46, s31")
    a("s_lshl_b32 s46, s46, 7")
    a("s_add_u32 s46, s46, %d" % (L.WS_FLAG + F_O * 128))
    a("v_mov_b32 v14, s46")
    a("v_mov_b32 v15, s%d" % TAG)
    a("v_lshrrev_b32 v10, 2, v0")
    a("v_mul_u32_u24 v10, 288, v10")
    a("v_and_b32 v11, 3, v0")
    a("v_lshlrev_b32 v11, 3, v11")
    a("s_mul_i32 s41, s40, %d" % (9 * 36 * 144))
    a("s_add_u32 s41, s41, %d" % WO)
    a("v_add3_u32 v%d, v10, v11, s41" % A0)
    a("v_lshrrev_b32 v10, 4, v0")
    a("v_mul_u32_u24 v10, 72, v10")
    a("v_bfe_u32 v12, v0, 2, 2")
    a("v_add_u32 v10, v10, v12")
    a("v_mul_u32_u24 v10, 144, v10")
    a("s_mov_b32 s41, %d" % (WO + 32 * 144))
    a("v_add3_u32 v10, v10, v11, s41")
    a("s_waitcnt vmcnt(0)")
    stamp(a, 8)
    lds_inc(a, vC, 13, C_O, rtn=True)
    a("s_cmp_eq_u32 s40, 1")
    a("s_cselect_b64 s[46:47], -1, 0")
    a("s_waitcnt lgkmcnt(0)")
    a("v_readfirstlane_b32 s48, v13")
    a("s_cmp_eq_u32 s48, 7")
    a("s_cbranch_scc0 L_nofl")
    a("s_mov_b64 exec, 1")
    a("global_store_dword v14, v15, s[8:9] sc1")
    a("s_mov_b64 exec, -1")
    a.label("L_nofl")
    for sl in (7, 8):
        for sec in range(2):
            a("v_add_u32 v11, %d, v%d" % ((36 * sl + sec) * 144, A0))
            a("v_add_u32 v12, %d, v10" % ((288 * (sl - 7) + 36 * sec) * 144))
            a("v_cndmask_b32 v%d, v11, v12, s[46:47]" % (BX + 2 * (sl - 7) + sec))
    a("s_mul_i32 s41, s55, 18432")
    a("s_mul_i32 s44, s40, 9216")
    a("s_add_u32 s41, s41, s44")
    a("s_add_u32 s44, s41, 4096")
    a("s_add_u32 s45, s41, 8192")
    a("v_lshlrev_b32 v1, 4, v0")
    a("s_lshl_b32 s46, s40, 2")
    a("s_add_u32 s46, s46, s54")
    a("s_cmp_eq_u32 s46, 4")
    a("s_cbranch_scc0 L_nopoll")
    a("s_lshr_b32 s46, s52, 1")
    a("s_lshl_b32 s46, s46, 11")
    a("s_add_u32 s46, s46, %d" % (L.WS_FLAG + F_O * 128))
    a("v_lshlrev_b32 v11, 7, v0")
    a("v_add_u32 v11, s46, v11")
    flag_poll(a, "L_op", 11, 12, "s%d" % TAG, 16)
    lds_inc(a, vC, 10, C_GO2)
    a.label("L_nopoll")
    a("s_mul_i32 s56, s55, %d" % (16 * 1152))
    a("s_mul_i32 s57, s53, 144")
    a("s_add_u32 s56, s56, s57")
    a("s_lshl_b32 s57, s55, 6")
    for j in range(3):
        a("v_add_u32 v2, %d, v0" % (64 * j))
        a("v_mul_u32_u24 v%d, 7282, v2" % (RW + j))
        a("v_lshrrev_b32 v%d, 16, v%d" % (RW + j, RW + j))
        a("v_mul_u32_u24 v3, %d, v%d" % (1152 - 144, RW + j))
        a("v_lshl_add_u32 v%d, v2, 4, v3" % (VO + j))
    a("v_cmp_gt_u32 s[46:47], 16, v0")
    a("v_mov_b32 v3, 0x40000000")
    a("v_cndmask_b32 v%d, v3, v%d, s[46:47]" % (VO + 2, VO + 2))
    a("s_cmp_eq_u32 s40, 0")
    a("s_cbranch_scc0 L_noxg")
    srd(a, 20, 4, 2048 * 1152)
    srd_off(a, 16, 8, L.WS_G, 8192)
    for j in range(3):
        a("buffer_load_dwordx4 %s, v%d, s[20:23], s56 offen" % (vr(XR + 4 * j, 4), VO + j))
    lds_spin(a, "L_pa", vC, C_PA, 10, (1,))
    a("ds_read_b32 v10, v%d offset:%d" % (vC, C_IDX))
    for j in range(3):
        a("v_lshlrev_b32 v3, 2, v%d" % (RW + j))
        a("buffer_load_dword v%d, v3, s[16:19], s57 offen sc1" % (GR + 2 * j))
    a("s_mul_i32 s46, s54, 2304")
    a("s_add_u32 s46, s46, %d" % STG)
    a("v_and_b32 v164, 15, v0")
    a("v_mul_u32_u24 v164, 144, v164")
    a("v_lshrrev_b32 v165, 4, v0")
    a("v_lshlrev_b32 v165, 3, v165")
    a("v_add3_u32 v164, v164, v165, s46")
    a("v_add_u32 v165, s46, v1")
    a("s_waitcnt vmcnt(0) lgkmcnt(0)")
    a("v_readfirstlane_b32 s12, v10")
    srd(a, 20, 10, 2048 * 1152)
    for j in range(3):
        a("v_sub_f32 v%d, 1.0, v%d" % (GR + 2 * j + 1, GR + 2 * j))
        bf16_round(a, GR + 2 * j + 1, GR + 2 * j + 1)
    a.label("L_noxg")
    a("s_mul_i32 s46, s54, 5120")
    a("v_add_u32 v2, s46, v1")
    a("s_lshl_b32 s46, s54, 2")
    a("v_add_u32 v3, s46, v%d" % vC)

    def reads(sl):
        st = WFR[sl % 3]
        r = []
        for t in range(5):
            for sec in range(2):
                if sl < 7:
                    base, off = A0, (36 * sl + sec) * 144 + 32 * t
                else:
                    base, off = BX + 2 * (sl - 7) + sec, 32 * t
                r.append("ds_read_b64_tr_b16 %s, v%d offset:%d" % (vr(st + 4 * t + 2 * sec, 2), base, off))
        return r

    lds_spin(a, "L_wo", vC, C_WO, 10, (3,))
    for x in reads(0) + reads(1):
        a(x)
    lds_spin(a, "L_go2", vC, C_O, 10, (8, 1), 0)
    stamp(a, 9)
    LAO = OPT["lao"]

    def oload(s):
        a("buffer_load_dwordx4 %s, v1, s[24:27], s%d offen offset:%d sc1" % (vr(OF + 4 * s, 4), (41, 44, 45)[s // 4], 1024 * (s % 4)))

    for s in range(LAO):
        oload(s)
    for sl in range(9):
        rd = reads(sl + 2) if sl < 7 else []
        a("s_waitcnt vmcnt(%d) lgkmcnt(%d)" % (min(LAO - 1, 8 - sl), 10 if sl < 8 else 0))
        for t in range(5):
            d = vr(ACC[t], 4)
            a("v_mfma_f32_16x16x32_bf16 %s, %s, %s, %s" % (d, vr(WFR[sl % 3] + 4 * t, 4), vr(OF + 4 * sl, 4), "0" if sl == 0 else d))
            if t == 0 and sl + LAO < 9:
                oload(sl + LAO)
            for x in rd[2 * t:2 * t + 2]:
                a(x)
    stamp(a, 10)
    a("s_cmp_eq_u32 s40, 0")
    a("s_cbranch_scc1 L_k0")
    for t in range(5):
        a("ds_write_b128 v2, %s offset:%d" % (vr(ACC[t], 4), PART + 1024 * t))
    a("v_mov_b32 v10, 1")
    a("ds_write_b32 v3, v10 offset:%d" % C_PART)
    stamp_end(a, OPT["stw"], 0)
    a("s_endpgm")
    a.label("L_k0")
    a("s_lshr_b32 s46, s12, 4")
    a("s_cmp_eq_u32 s46, s55")
    a("s_cbranch_scc0 L_noy")
    lds_spin(a, "L_yw", vC, C_YRDY, 10, (1,))
    a("s_and_b32 s46, s12, 15")
    for j in range(3):
        a("v_mul_u32_u24 v10, 9, v%d" % (RW + j))
        a("v_sub_u32 v10, v0, v10")
        a("v_add_u32 v10, %d, v10" % (64 * j))
        a("v_lshlrev_b32 v10, 5, v10")
        a("v_add_u32 v10, %d, v10" % YB)
        a("ds_read_b128 v[12:15], v10")
        a("ds_read_b128 v[16:19], v10 offset:16")
        a("v_cmp_eq_u32 s[48:49], s46, v%d" % (RW + j))
        a("s_waitcnt lgkmcnt(0)")
        for q in range(4):
            xv = XR + 4 * j + q
            a("v_lshlrev_b32 v10, 16, v%d" % xv)
            a("v_and_b32 v11, 0xffff0000, v%d" % xv)
            a("v_add_f32 v10, v10, v%d" % (12 + 2 * q))
            a("v_add_f32 v11, v11, v%d" % (13 + 2 * q))
            a("v_cvt_pk_bf16_f32 v10, v10, v11")
            a("v_cndmask_b32 v%d, v%d, v10, s[48:49]" % (xv, xv))
    a.label("L_noy")
    for j in range(3):
        for q in range(4):
            xv = XR + 4 * j + q
            d = 64 + 8 * j + 2 * q
            a("v_lshlrev_b32 v%d, 16, v%d" % (d, xv))
            a("v_and_b32 v%d, 0xffff0000, v%d" % (d + 1, xv))
            a("v_pk_mul_f32 %s, %s, %s op_sel:[0,1] op_sel_hi:[1,1]" % (vr(d, 2), vr(d, 2), vr(GR + 2 * j, 2)))
    lds_spin(a, "L_pw", 3, C_PART, 10, (1,), 0)
    stamp(a, 11)
    for t in range(5):
        a("ds_read_b128 %s, v2 offset:%d" % (vr(20 + 4 * t, 4), PART + 1024 * t))
    for t in range(5):
        a("s_waitcnt lgkmcnt(%d)" % (4 - t))
        b = ACC[t]
        a("v_pk_add_f32 %s, %s, %s" % (vr(b, 2), vr(b, 2), vr(20 + 4 * t, 2)))
        a("v_pk_add_f32 %s, %s, %s" % (vr(b + 2, 2), vr(b + 2, 2), vr(22 + 4 * t, 2)))
        a("v_cvt_pk_bf16_f32 v%d, v%d, v%d" % (40 + 2 * t, b, b + 1))
        a("v_cvt_pk_bf16_f32 v%d, v%d, v%d" % (41 + 2 * t, b + 2, b + 3))
    for t in range(5):
        if t == 4:
            a("s_mov_b32 exec_hi, 0")
        a("ds_write_b64 v164, %s offset:%d" % (vr(40 + 2 * t, 2), 32 * t))
    a("s_mov_b32 exec_hi, -1")
    for j in range(3):
        a("ds_read_b128 %s, v165 offset:%d" % (vr(20 + 4 * j, 4), 1024 * j))
    for j in range(3):
        a("s_waitcnt lgkmcnt(%d)" % (2 - j))
        for q in range(4):
            av = 20 + 4 * j + q
            d = 64 + 8 * j + 2 * q
            a("v_lshlrev_b32 v10, 16, v%d" % av)
            a("v_and_b32 v11, 0xffff0000, v%d" % av)
            a("v_pk_fma_f32 %s, v[10:11], %s, %s op_sel_hi:[1,0,1]" % (vr(d, 2), vr(GR + 2 * j, 2), vr(d, 2)))
            a("v_cvt_pk_bf16_f32 v%d, v%d, v%d" % (32 + 4 * j + q, d, d + 1))
        a("buffer_store_dwordx4 %s, v%d, s[20:23], s56 offen" % (vr(32 + 4 * j, 4), VO + j))
    if OPT["stamp"]:
        stamp(a, 12)
        a("s_waitcnt vmcnt(0)")
        stamp(a, 13)
        stamp_end(a, OPT["stw"], 0)
    a("s_endpgm")


def late_and_slow(a):
    a.label("L_late")
    a("s_mul_i32 s50, s41, 2304")
    a("v_add_u32 v%d, s50, v%d" % (T + 8, vK))
    a("v_add_u32 v%d, s50, v%d" % (T + 9, vKt))
    a("v_mul_u32_u24 v%d, s41, v%d" % (T + 2, vStep))
    a("v_add_u32 v%d, v%d, v%d" % (vV, vV, T + 2))
    for r in list(range(OO, OO + 16)) + list(range(VF[0], VF[0] + 32)):
        a("v_mov_b32 v%d, 0" % r)
    a("s_waitcnt vmcnt(0)")
    lds_inc(a, vC, T, C_A)
    lds_spin(a, "L_lt", vC, C_A, T, (8,), 0)
    a("buffer_load_dword v155, v152, s[24:27], s59 offen")
    a("s_mov_b32 s43, 9")
    for x in q_reads():
        a(x)
    a("s_bitcmp1_b32 s41, 0")
    a("s_cbranch_scc1 L_late1")
    for par in range(2):
        if par:
            a.label("L_late1")
        for x in k_reads(par, T + 8, T + 9, 0):
            a(x)
        for x in k_reads(par + 1, T + 8, T + 9, 0):
            a(x.replace("offset:8", "offset:2312").replace("offset:0", "offset:2304"))
        for x in v_reads(par):
            a(x)
        a("s_waitcnt lgkmcnt(7)")
        a("v_cndmask_b32 v%d, 0, v%d, s[54:55]" % (QT, QT))
        a("v_cndmask_b32 v%d, 0, v%d, s[56:57]" % (QT + 1, QT + 1))
        for x in qk(par):
            a(x)
        a("s_nop 7")
        a("s_nop 3")
        for i0 in range(2 - par, 9, 2):
            a("s_cmp_eq_u32 s41, %d" % i0)
            a("s_cbranch_scc1 L_it%d" % i0)
        a("s_branch L_it%d" % (8 - par))

    a.label("L_slow")
    vKs, vKts, vM, vD0, vNeg = T + 8, T + 9, T + 10, T + 11, T + 12
    a("v_and_b32 v%d, 31, v0" % T)
    a("v_lshrrev_b32 v%d, 5, v0" % (T + 1))
    a("v_lshlrev_b32 v%d, 2, v%d" % (vD0, T + 1))
    a("v_sub_u32 v%d, v%d, v%d" % (vD0, vD0, T))
    a("v_mov_b32 v%d, 0xff800000" % vNeg)
    a("v_mov_b32 v%d, v%d" % (vM, vNeg))
    a("s_max_i32 s50, s41, 0")
    a("s_sub_u32 s51, 8, s50")
    a("v_mul_u32_u24 v%d, s51, v%d" % (T, vStep))
    a("v_sub_u32 v%d, v%d, v%d" % (vV, vV, T))
    a("s_mul_i32 s51, s50, 2304")
    for r in range(16):
        a("v_mov_b32 v%d, 0" % (OO + r))
    for ps in range(2):
        lab = "L_sp%d" % ps
        a("v_add_u32 v%d, s51, v%d" % (vKs, vK))
        a("v_add_u32 v%d, s51, v%d" % (vKts, vKt))
        a("s_mov_b32 s46, s50")
        a.label(lab)
        for x in k_reads(0, vKs, vKts):
            a(x)
        if ps == 1:
            for x in v_reads(0):
                a(x)
        a("s_mov_b32 s47, -31")
        a("s_mov_b32 s48, 62")
        a("s_cmp_eq_u32 s46, 0")
        a("s_cselect_b32 s47, 1, s47")
        a("s_cselect_b32 s48, 30, s48")
        a("s_cmp_eq_u32 s46, 8")
        a("s_cselect_b32 s48, 31, s48")
        a("s_waitcnt lgkmcnt(0)")
        for x in qk(0):
            a(x)
        a("v_subrev_u32 v%d, s47, v%d" % (T, vD0))
        for r in range(16):
            a("v_add_u32 v%d, %d, v%d" % (T + 1, 8 * (r >> 2) + (r & 3), T))
            a("v_cmp_ge_u32 vcc, s48, v%d" % (T + 1))
            a("v_cndmask_b32 v%d, v%d, v%d, vcc" % (SS[0] + r, vNeg, SS[0] + r))
            if ps == 0:
                a("v_max_f32 v%d, v%d, v%d" % (vM, vM, SS[0] + r))
            else:
                a("v_sub_f32 v%d, v%d, v%d" % (SS[0] + r, SS[0] + r, vM))
                a("v_exp_f32 v%d, v%d" % (SS[0] + r, SS[0] + r))
        if ps == 1:
            for q in range(8):
                a("v_cvt_pk_bf16_f32 v%d, v%d, v%d" % (PP[0] + q, SS[0] + 2 * q, SS[0] + 2 * q + 1))
            for x in pv(0, False):
                a(x)
            a("v_add_u32 v%d, v%d, v%d" % (vV, vV, vStep))
        a("v_add_u32 v%d, 2304, v%d" % (vKs, vKs))
        a("v_add_u32 v%d, 2304, v%d" % (vKts, vKts))
        a("s_add_u32 s46, s46, 1")
        a("s_cmp_lt_u32 s46, 9")
        a("s_nop 7")
        a("s_nop 7")
        a("s_cbranch_scc1 %s" % lab)
        if ps == 0:
            a("v_mov_b32 v%d, v%d" % (T, vM))
            a("v_permlane32_swap_b32 v%d, v%d" % (T, vM))
            a("v_max_f32 v%d, v%d, v%d" % (vM, vM, T))
    a("v_rcp_f32 v%d, v%d" % (T, OO + 12))
    a("s_nop 1")
    a("s_branch L_fin")


def helpers(a):
    a.label("L_help")
    a("v_mov_b32 v3, %d" % CTL)
    for k in range(4):
        a("v_mov_b32 v%d, 0" % (4 + k))
    a("v_lshlrev_b32 v1, 4, v0")
    a("v_add_u32 v2, v1, v3")
    a("s_mov_b64 exec, 0xff")
    a("ds_write_b128 v2, v[4:7]")
    a("s_mov_b64 exec, -1")
    a("s_waitcnt lgkmcnt(0)")
    load_tag(a)
    a("s_waitcnt lgkmcnt(0)")
    make_tag(a)
    for _ in range(10):
        a("s_barrier")
    a.label("L_help2")
    decode2(a)
    a("s_cmp_eq_u32 s3, 8")
    a("s_cbranch_scc1 L_down")
    a("s_movk_i32 s41, 7282")
    for i in range(6):
        a("v_add_u32 v1, %d, v0" % (64 * i))
        a("v_mul_u32_u24 v2, s41, v1")
        a("v_lshrrev_b32 v2, 16, v2")
        a("v_mul_u32_u24 v10, 9, v2")
        a("v_sub_u32 v1, v1, v10")
        if i < 5:
            a("v_lshrrev_b32 v10, 4, v2")
            a("v_mul_u32_u24 v10, 20, v10")
            a("v_and_b32 v11, 1, v2")
            a("v_lshl_add_u32 v10, v11, 3, v10")
            a("v_bfe_u32 v11, v2, 1, 3")
            a("v_add_u32 v10, v10, v11")
        if i >= 4:
            a("v_subrev_u32 v11, 16, v2")
            if i == 4:
                a("v_cmp_lt_u32 s[44:45], 31, v2")
                a("v_cndmask_b32 v10, v10, v11, s[44:45]")
            else:
                a("v_mov_b32 v10, v11")
        a("v_mul_u32_u24 v10, 1152, v10")
        a("v_lshl_add_u32 v%d, v1, 4, v10" % (4 + i))
    a("s_sub_u32 s36, s3, 9")
    a("s_mul_i32 s37, s36, %d" % (36 * 1152))
    a("s_mul_i32 s38, s36, 5184")
    a("s_add_u32 s38, s38, %d" % WO)
    a("s_mul_i32 s39, s53, 144")
    a("s_sub_u32 s42, %d, s39" % (576 * 1152))
    srd_off(a, 16, 28, "s39", "s42")
    a("s_cmp_ge_u32 s2, 192")
    a("s_cbranch_scc1 L_wo_go")
    a("s_barrier")
    lds_spin(a, "L_wo_w", 3, C_1, 10, (8,), 2)
    a.label("L_wo_go")
    stamp(a, 5)
    for j in range(6):
        if j == 5:
            a("s_cmp_eq_u32 s3, 9")
            a("s_cbranch_scc0 L_wd")
        a("s_add_u32 s40, s37, %d" % (3 * 36 * 1152 * j))
        for i in range(6):
            a("s_add_u32 m0, s38, %d" % (3 * 5184 * j + 1024 * i))
            if i == 5:
                a("s_mov_b64 exec, 15")
            else:
                a("s_nop 0")
            a("buffer_load_dwordx4 v%d, s[16:19], s40 offen lds" % (4 + i))
        a("s_mov_b64 exec, -1")
    a.label("L_wd")
    a("s_waitcnt vmcnt(0)")
    stamp(a, 6)
    lds_inc(a, 3, 4, C_WO)
    stamp_end(a, 10, 2)
    a("s_cmp_eq_u32 s3, 9")
    a("s_cbranch_scc0 L_end")
    lds_spin(a, "L_y_pa", 3, C_PA, 10, (1,), 2)
    a("ds_read_b64 v[10:11], v3 offset:%d" % C_IDX)
    a("s_waitcnt lgkmcnt(0)")
    a("v_readfirstlane_b32 s12, v10")
    a("v_readfirstlane_b32 s13, v11")
    a("s_lshr_b32 s46, s12, 6")
    a("s_cmp_eq_u32 s46, s52")
    a("s_cbranch_scc0 L_end")
    a("v_lshlrev_b32 v4, 7, v0")
    a("v_add_u32 v4, %d, v4" % (L.WS_FLAG + F_Y * 128))
    srd_off(a, 16, 8, L.WS_YP, 16 * 2304)
    a("v_mul_u32_u24 v6, 3641, v0")
    a("v_lshrrev_b32 v6, 16, v6")
    a("v_mul_u32_u24 v6, %d, v6" % (2304 - 288))
    a("v_lshl_add_u32 v6, v0, 4, v6")
    a("s_mul_i32 s40, s53, 288")
    flag_poll(a, "L_yp", 4, 5, "16", 16, 2)
    for i in range(6):
        a("buffer_load_dwordx4 %s, v6, s[16:19], s40 offen sc1" % vr(8 + 4 * i, 4))
        a("s_add_u32 s40, s40, %d" % (3 * 2304))
    a("v_lshlrev_b32 v7, 4, v0")
    a("v_add_u32 v7, %d, v7" % YT)
    a("s_waitcnt vmcnt(0)")
    for i in range(1, 6):
        a("v_pk_add_f32 v[8:9], v[8:9], %s" % vr(8 + 4 * i, 2))
        a("v_pk_add_f32 v[10:11], v[10:11], %s" % vr(10 + 4 * i, 2))
    a("ds_write_b128 v7, v[8:11]")
    a("ds_read_b128 v[12:15], v7 offset:288")
    a("ds_read_b128 v[16:19], v7 offset:576")
    a("s_waitcnt lgkmcnt(0)")
    for k in range(4):
        a("v_add_f32 v%d, v%d, v%d" % (8 + k, 8 + k, 12 + k))
        a("v_add_f32 v%d, v%d, v%d" % (8 + k, 8 + k, 16 + k))
        bf16_round(a, 8 + k, 8 + k)
        a("v_mul_f32 v%d, s13, v%d" % (8 + k, 8 + k))
        bf16_round(a, 8 + k, 8 + k)
    a("v_subrev_u32 v7, %d, v7" % (YT - YB))
    a("v_mov_b32 v12, 1")
    a("s_mov_b64 exec, 0x3ffff")
    a("ds_write_b128 v7, v[8:11]")
    a("ds_write_b32 v3, v12 offset:%d" % C_YRDY)
    a("s_cmp_eq_u32 s53, 0")
    a("s_cbranch_scc0 L_end")
    a("v_mov_b32 v4, %d" % L.WS_EPOCH)
    a("v_mov_b32 v5, s%d" % TAG)
    a("s_mov_b64 exec, 1")
    a("global_store_dword v4, v5, s[8:9]")
    a("s_endpgm")

    a.label("L_down")
    DW, DA = 20, 128
    a("v_lshrrev_b32 v2, 3, v0")
    a("v_and_b32 v10, 7, v0")
    a("v_mul_u32_u24 v16, 1152, v2")
    a("v_lshl_add_u32 v16, v10, 4, v16")
    a("s_mul_i32 s36, s2, 18")
    a("v_mul_u32_u24 v12, %d, v10" % (2 * 4608 * 4))
    a("v_add_u32 v11, s36, v2")
    a("v_lshl_add_u32 v17, v11, 2, v12")
    a("v_add_u32 v18, 32, v17")
    a("v_add_u32 v19, 64, v17")
    a("v_mov_b32 v13, 0x40000000")
    a("v_cmp_gt_u32 s[40:41], 16, v0")
    a("v_cndmask_b32 v19, v13, v19, s[40:41]")
    a("s_mul_i32 s37, s2, %d" % (18 * 1152))
    a("v_and_b32 v1, 1, v0")
    a("v_lshlrev_b32 v1, 4, v1")
    sel_masks(a, 44, 11)
    a("v_lshrrev_b32 v11, 5, v0")
    a("v_bfe_u32 v12, v0, 3, 1")
    a("v_cmp_eq_u32 s[52:53], v11, v12")
    a("v_mul_u32_u24 v12, 2304, v12")
    a("v_bfe_u32 v11, v0, 4, 1")
    a("v_lshl_add_u32 v12, v11, 7, v12")
    a("v_lshl_add_u32 v12, v10, 2, v12")
    a("v_add_u32 v164, %d, v12" % HP)
    a("v_lshlrev_b32 v165, 2, v0")
    a("v_add_u32 v166, %d, v165" % HP)
    a("s_and_b32 s38, s2, 15")
    a("s_mul_i32 s39, s38, 2304")
    a("s_add_u32 s39, s39, %d" % L.WS_YP)
    a("v_add_u32 v165, s39, v165")
    a("s_lshl_b32 s38, s38, 7")
    a("s_add_u32 s38, s38, %d" % (L.WS_FLAG + F_Y * 128))
    a("v_lshlrev_b32 v167, 7, v0")
    a("v_add_u32 v167, %d, v167" % (L.WS_FLAG + F_PA * 128))
    srd_off(a, 16, 14, "s37", 18 * 1152)
    srd_off(a, 20, 8, L.WS_PA, 7 * 2 * 4608 * 4)
    a("s_movk_i32 s41, %d" % (4608 * 4))
    a("s_cmp_ge_u32 s2, 192")
    a("s_cbranch_scc1 L_dn_go")
    a("s_barrier")
    a.label("L_dn_go")
    lds_spin(a, "L_dn_w", 3, C_A, 10, (8,), 2)
    stamp(a, 5)
    for t in range(3):
        a("s_movk_i32 s40, %d" % (9216 * t))
        for cg in range(9):
            a("buffer_load_dwordx4 %s, v16, s[16:19], s40 offen offset:%d nt" % (vr(DW + 4 * (9 * t + cg), 4), 128 * cg))
    flag_poll(a, "L_pap", 167, 4, "s%d" % TAG, 64, 4, 3)
    stamp(a, 6)
    a("v_mov_b32 v8, v5")
    a("v_mov_b32 v9, v6")
    a("v_mov_b32 v4, 1")
    a("ds_write_b64 v3, v[8:9] offset:%d" % C_IDX)
    a("ds_write_b32 v3, v4 offset:%d" % C_PA)
    for t in range(3):
        a("buffer_load_dword v%d, v%d, s[20:23], 0 offen sc1" % (4 + 2 * t, 17 + t))
        a("buffer_load_dword v%d, v%d, s[20:23], s41 offen sc1" % (5 + 2 * t, 17 + t))
    a("s_waitcnt vmcnt(0)")
    sum8(a, (4, 5, 6, 7, 8, 9))
    for t in range(3):
        g, u = 4 + 2 * t, 5 + 2 * t
        bf16_round(a, g, g)
        bf16_round(a, u, u)
        sigmoid(a, 10, g)
        a("v_mul_f32 v%d, v%d, v10" % (g, g))
        bf16_round(a, g, g)
        a("v_mul_f32 v%d, v%d, v%d" % (g, g, u))
        a("v_cvt_pk_bf16_f32 v%d, v%d, v%d" % (g, g, g))
        a("v_and_b32 v%d, 0xffff, v%d" % (g, g))
        a("v_lshlrev_b32 v%d, v1, v%d" % (g, g))
    for t in range(3):
        selector(a, 12, 4 + 2 * t, 44)
        for cg in range(9):
            d = vr(DA + 4 * cg, 4)
            a("v_mfma_f32_16x16x32_bf16 %s, %s, v[12:15], %s" % (d, vr(DW + 4 * (9 * t + cg), 4), "0" if t == 0 else d))
    a("s_mov_b64 exec, s[52:53]")
    for cg in range(9):
        for r in range(4):
            a("ds_write_b32 v164, v%d offset:%d" % (DA + 4 * cg + r, 256 * cg + 32 * r))
    a("s_mov_b64 exec, -1")
    for cg in range(9):
        a("ds_read2st64_b32 %s, v166 offset0:%d offset1:%d" % (vr(20 + 2 * cg, 2), cg, cg + 9))
    for cg in range(9):
        a("s_waitcnt lgkmcnt(%d)" % (8 - cg))
        a("v_add_f32 v%d, v%d, v%d" % (20 + 2 * cg, 20 + 2 * cg, 21 + 2 * cg))
        a("global_atomic_add_f32 v165, v%d, s[8:9] offset:%d" % (20 + 2 * cg, 256 * cg))
    a("v_mov_b32 v4, s38")
    a("v_mov_b32 v5, 1")
    a("s_waitcnt vmcnt(0)")
    stamp(a, 7)
    a("s_mov_b64 exec, 1")
    a("global_atomic_add v4, v5, s[8:9] sc1")
    stamp_end(a, 8, 1)


def kf(a):
    a.label(NAME)
    a("s_cmp_ge_u32 s2, 256")
    a("s_cbranch_scc1 L_end")
    stamp_init(a)
    stamp(a, 0)
    a("s_load_dwordx4 s[4:7], s[0:1], 0")
    a("s_load_dwordx2 s[8:9], s[0:1], 88")
    a("s_load_dwordx2 s[10:11], s[0:1], 72")
    a("s_load_dwordx2 s[14:15], s[0:1], 56")
    a("s_load_dwordx2 s[28:29], s[0:1], 16")
    a("v_lshrrev_b32 v1, 6, v0")
    a("v_and_b32 v0, 63, v0")
    a("v_readfirstlane_b32 s3, v1")
    a("s_and_b32 s30, s2, 3")
    a("s_bfe_u32 s31, s2, 0x10002")
    a("s_lshr_b32 s32, s2, 3")
    a("s_cmp_ge_u32 s32, 24")
    a("s_cbranch_scc1 L_sp")
    a("s_cmp_ge_u32 s3, 8")
    a("s_cbranch_scc1 L_help")
    gemm_phase(a)
    attention_phase(a)
    out_phase(a)
    late_and_slow(a)
    spare_phase(a)
    helpers(a)
    a.label("L_end")
    a("s_endpgm")
```

```python
WS_QKV = 0
PAIR_BYTES = 2048 * 72
QKV_BYTES = 48 * PAIR_BYTES
WS_O = 0x700000
WS_G = 0x984000
WS_SEL = 0x986000
WS_PA = 0xB00000
WS_YP = 0x9A0000
N_YP = 16
WS_FLAG = 0x9C0000
WS_KEYF = 0x9E0000
WS_EPOCH = 0x9E4000
WS_BC = 0x9E8000
WS_STAMP = 0xA00000
STAMP_BYTES = 8 * 512 * 128
WS_USED = 0xC00000


def kslot_to_col():
    out = []
    for s in range(18):
        for g in range(4):
            for e in range(8):
                if s < 16:
                    hs, hh = g >> 1, g & 1
                    m = 4 * hh + e if e < 4 else 8 + 4 * hh + (e - 4)
                    out.append(36 * s + (20 if hs else 0) + m)
                else:
                    u = s - 16
                    p = 8 * u + 2 * g + (e >> 2)
                    out.append(36 * p + 16 + (e & 3))
    assert sorted(out) == list(range(576))
    return out
```

```python
import sys, os
from asmdsl import Asm, fix_hazards
from common import OPT
for x in sys.argv[2:]:
    k, v = x.split("=")
    OPT[k] = v if isinstance(OPT[k], str) else int(v)
from kf import kf, KF_LDS, KF_VGPR, NAME
HEAD = open(os.path.join(os.path.dirname(os.path.abspath(__file__)), "../cdna_kernels/gated_mix__sliding_block__moe_arch_mod__prompt.s.ref")).read()
hdr = [l for l in HEAD.split("\n") if l.startswith(";   offset") or l.startswith("; Kernarg")]
out = hdr + ["; @launch grid=(256,1,1) block=(768,1,1) lds=%d" % KF_LDS]
out += ['.amdgcn_target "amdgcn-amd-amdhsa--gfx950"', ".text"]
a = Asm()
kf(a)
lines, nn = fix_hazards(a.lines)
sys.stderr.write("%d lines, %d nops inserted\n" % (len(lines), nn))
out += [".globl %s" % NAME, ".p2align 8", ".type %s,@function" % NAME] + lines
out.append(""".section .rodata,"a"
.p2align 6
.amdhsa_kernel %s
  .amdhsa_next_free_vgpr %d
  .amdhsa_next_free_sgpr 102
  .amdhsa_accum_offset %d
  .amdhsa_group_segment_fixed_size 0
  .amdhsa_kernarg_size 96
  .amdhsa_user_sgpr_count 2
  .amdhsa_user_sgpr_kernarg_segment_ptr 1
  .amdhsa_system_sgpr_workgroup_id_x 1
.end_amdhsa_kernel
""" % (NAME, KF_VGPR, KF_VGPR))
open(sys.argv[1], "w").write("\n".join(out) + "\n")
```

```python
from asmdsl import vr, sr
import layout as L
from common import *
from k2 import (KB, VB, QB, ONES, vK, vKt, vV, vStep, QM, QT, MSK, KF, VF, PP, SS, OO, T,
                k_reads, v_reads, qk, pv)

NAME = "gated_mix__sliding_block__moe_arch_mod__prompt_kernel"
SLOT = 34816
IMG = SLOT
WO = 66560
CTL = 149568
YB = 149696
HP = 150016
YT = 154624
XS = 156672
KF_LDS = 158208
KF_VGPR = 168
PART = 0
STG = 20480
XR, GR = 128, 136
vC = 154
TAG = 65
C_O, C_GO2, C_A, C_WO, C_PART, C_YRDY, C_B, C_1, C_GO1, C_C, C_PA, C_IDX, C_RSEL = 0, 4, 8, 12, 96, 32, 36, 40, 44, 48, 52, 56, 60
C_KMAX, C_KCNT, C_XS, C_GD, C_RED, C_RED2, C_FI = 64, 68, 72, 76, 80, 84, 88
F_Q, F_O, F_PA, F_Y = 0, 192, 448, 512


def lds_spin(a, name, addr_v, off, regs, conds, slp=1):
    n = len(conds)
    a("s_mov_b32 s60, 0x200000")
    a.label(name)
    a(("ds_read_b64 %s, v%d offset:%d" % (vr(regs, 2), addr_v, off)) if n == 2 else
      ("ds_read_b32 v%d, v%d offset:%d" % (regs, addr_v, off)))
    a("s_waitcnt lgkmcnt(0)")
    a("v_readfirstlane_b32 s61, v%d" % regs)
    if n == 2:
        a("v_readfirstlane_b32 s62, v%d" % (regs + 1))
        a("s_lshl_b32 s62, s62, 8")
        a("s_or_b32 s61, s61, s62")
        a("s_cmp_eq_u32 s61, %d" % (conds[0] | (conds[1] << 8)))
    else:
        a("s_cmp_eq_u32 s61, %d" % conds[0])
    a("s_cbranch_scc1 %s_d" % name)
    if slp:
        a("s_sleep %d" % slp)
    a("s_sub_u32 s60, s60, 1")
    a("s_cmp_lg_u32 s60, 0")
    a("s_cbranch_scc1 %s" % name)
    a.label(name + "_d")


def stage_spin(a, name, stage, vc=vC, T=T, slp=0):
    a("s_mov_b32 s60, 0x200000")
    a.label(name)
    a("ds_read_b32 v%d, v%d offset:%d" % (T, vc, C_A))
    a("s_waitcnt lgkmcnt(0)")
    a("v_readfirstlane_b32 s61, v%d" % T)
    a("s_bitcmp1_b32 s61, %d" % (8 * stage + 3))
    a("s_cbranch_scc1 %s_d" % name)
    if slp:
        a("s_sleep %d" % slp)
    a("s_sub_u32 s60, s60, 1")
    a("s_cmp_lg_u32 s60, 0")
    a("s_cbranch_scc1 %s" % name)
    a.label(name + "_d")


def landed(a, inc, vm):
    a("v_mov_b32 v%d, %s" % (T, hex(inc)))
    a("s_waitcnt vmcnt(%d)" % vm)
    a("s_mov_b64 exec, 1")
    a("ds_add_u32 v%d, v%d offset:%d" % (vC, T, C_A))
    a("s_mov_b64 exec, -1")


def poison(a):
    if OPT["nopois"]:
        a("s_nop 0")
        a("buffer_load_dword v155, v152, s[24:27], s59 offen")
        a("buffer_load_dword v155, v152, s[24:27], s59 offen")
        return
    for k in range(4):
        a("v_mov_b32 v%d, -1" % (120 + k))
    a("buffer_store_dwordx4 %s, v153, s[24:27], s58 offen sc1" % vr(120, 4))
    a("s_mov_b32 exec_hi, 0")
    a("buffer_store_dword v%d, v152, s[24:27], s59 offen sc1" % 120)
    a("s_mov_b32 exec_hi, -1")


def tail_touch(a):
    a("buffer_load_dword v155, v152, s[24:27], s59 offen")


def flag_poll(a, name, voff, vt, want, lanes, slp=1, width=1):
    a("s_mov_b64 exec, %s" % ("-1" if lanes == 64 else hex((1 << lanes) - 1)))
    a("s_mov_b32 s60, 0x40000")
    a.label(name)
    a("global_load_dword%s %s, v%d, s[8:9] sc1" % ("" if width == 1 else "x%d" % width, vr(vt, width), voff))
    a("s_waitcnt vmcnt(0)")
    a("v_cmp_eq_u32 vcc, %s, v%d" % (want, vt))
    a("s_cmp_eq_u64 vcc, exec")
    a("s_cbranch_scc1 %s_d" % name)
    a("s_sleep %d" % slp)
    a("s_sub_u32 s60, s60, 1")
    a("s_cmp_lg_u32 s60, 0")
    a("s_cbranch_scc1 %s" % name)
    a.label(name + "_d")
    a("s_mov_b64 exec, -1")


def lds_inc(a, vz, vt, off, rtn=False):
    a("v_mov_b32 v%d, 1" % vt)
    a("s_mov_b64 exec, 1")
    if rtn:
        a("ds_add_rtn_u32 v%d, v%d, v%d offset:%d" % (vt, vz, vt, off))
    else:
        a("ds_add_u32 v%d, v%d offset:%d" % (vz, vt, off))
    a("s_mov_b64 exec, -1")


def load_tag(a):
    a("s_mov_b32 s64, %d" % L.WS_EPOCH)
    a("s_load_dword s%d, s[8:9], s64" % TAG)


def make_tag(a):
    a("s_mul_i32 s%d, s%d, 0x9e3779b1" % (TAG, TAG))
    a("s_add_u32 s%d, s%d, 0x7f4a7c15" % (TAG, TAG))


def copy_scalars(a):
    a("s_mul_i32 s55, s34, %d" % (4 * L.PAIR_BYTES))
    a("s_mul_i32 s56, s35, 9216")
    a("s_add_u32 s55, s55, s56")
    a("s_lshl_b32 s56, s3, 10")
    a("s_add_u32 s55, s55, s56")
    for j in range(5):
        a("s_add_u32 s57, s3, %d" % (8 * j))
        a("s_mul_i32 s57, s57, 57")
        a("s_lshr_b32 s57, s57, 9")
        a("s_mul_i32 s57, s57, %d" % (L.PAIR_BYTES - 9216))
        a("s_add_u32 s57, s57, s55")
        a("s_add_u32 s%d, s57, %d" % (50 + j, 8192 * j))
    a("s_mul_i32 s58, s35, 12")
    a("s_add_u32 s58, s58, s34")
    a("s_lshl_b32 s58, s58, 7")
    a("s_add_u32 s58, s58, %d" % (L.WS_FLAG + F_Q * 128))


def decode2(a):
    a("s_and_b32 s30, s2, 3")
    a("s_bfe_u32 s33, s2, 0x10002")
    a("s_bfe_u32 s32, s2, 0x20003")
    a("s_lshl_b32 s31, s30, 2")
    a("s_add_u32 s31, s31, s32")
    a("s_lshl_b32 s32, s33, 3")
    a("s_lshr_b32 s34, s2, 5")
    a("s_add_u32 s32, s32, s34")
    a("s_lshr_b32 s33, s2, 3")
    a("s_mul_i32 s34, s33, 57")
    a("s_lshr_b32 s34, s34, 9")
    a("s_mul_i32 s53, s34, 9")
    a("s_sub_u32 s53, s33, s53")
    a("s_lshl_b32 s52, s34, 3")
    a("s_and_b32 s34, s2, 7")
    a("s_add_u32 s52, s52, s34")
    a("s_sub_u32 s33, s2, 216")
    a("s_mul_i32 s34, s33, 57")
    a("s_lshr_b32 s34, s34, 9")
    a("s_mul_i32 s35, s34, 9")
    a("s_sub_u32 s33, s33, s35")
    a("s_add_u32 s34, s34, 24")
    a("s_cmp_ge_u32 s2, 216")
    a("s_cselect_b32 s52, s34, s52")
    a("s_cselect_b32 s53, s33, s53")


def qpoll(a, vc, name, own, r=16):
    R = dict(a=r, b=r + 1, c=r + 2)
    a("v_add_u32 v%(a)d, 2, v0" % R)
    a("v_mul_u32_u24 v%(b)d, 43, v%(a)d" % R)
    a("v_lshrrev_b32 v%(b)d, 7, v%(b)d" % R)
    a("v_mul_u32_u24 v%(c)d, 3, v%(b)d" % R)
    a("v_sub_u32 v%(a)d, v%(a)d, v%(c)d" % R)
    a("s_sub_u32 s35, s32, 2")
    a("v_add_u32 v%(a)d, s35, v%(a)d" % R)
    a("v_max_i32 v%(a)d, 0, v%(a)d" % R)
    a("v_mul_u32_u24 v%(a)d, 12, v%(a)d" % R)
    a("v_lshl_add_u32 v%(a)d, v%(b)d, 2, v%(a)d" % R)
    a("v_add_u32 v%(a)d, s30, v%(a)d" % R)
    a("v_lshlrev_b32 v%(a)d, 7, v%(a)d" % R)
    a("v_add_u32 v%d, %d, v%d" % (r, L.WS_FLAG + F_Q * 128, r))
    if own:
        lds_spin(a, name + "w", vc, C_1, r + 2, (8,), 1)
    flag_poll(a, name, r, r + 1, "s%d" % TAG, 7, OPT["qslp"])
    lds_inc(a, vc, r + 2, C_GO1)


def gemm_phase(a):
    a("s_mul_i32 s33, s32, 43")
    a("s_lshr_b32 s33, s33, 7")
    a("s_mul_i32 s34, s33, 3")
    a("s_sub_u32 s34, s32, s34")
    a("s_lshl_b32 s34, s34, 2")
    a("s_add_u32 s34, s34, s30")
    a("s_lshl_b32 s35, s31, 3")
    a("s_add_u32 s35, s35, s33")
    a("s_cmp_lt_u32 s3, 4")
    a("s_cbranch_scc1 L_comp")
    a("s_cmp_lt_u32 s3, 6")
    a("s_cbranch_scc0 L_ldw")
    a("s_lshr_b32 s41, s34, 2")
    a("s_mul_i32 s41, s41, 43")
    a("v_add_u32 v6, s41, v0")
    a("v_mul_u32_u24 v6, 1152, v6")
    a("v_and_b32 v7, 7, v0")
    a("s_lshl_b32 s41, s33, 3")
    a("v_add_u32 v7, s41, v7")
    a("v_mul_u32_u24 v7, 3456, v7")
    a("v_lshrrev_b32 v8, 3, v0")
    a("v_lshl_add_u32 v7, v8, 7, v7")
    a("s_cmp_eq_u32 s3, 4")
    a("s_cselect_b32 s42, 43, 24")
    a("s_cselect_b64 s[46:47], -1, 0")
    a("v_cndmask_b32 v6, v7, v6, s[46:47]")
    a("v_cmp_gt_u32 s[44:45], s42, v0")
    a("s_mul_i32 s39, s35, %d" % (128 * 1152))
    a("s_mul_i32 s46, s34, 288")
    a("s_and_b32 s46, s46, 0xffffff80")
    a("s_sub_u32 s47, %d, s46" % (576 * 3456))
    a("s_waitcnt lgkmcnt(0)")
    srd_off(a, 16, 4, "s39", 128 * 1152)
    srd_off(a, 20, 6, "s46", "s47")
    a("s_cmp_eq_u32 s3, 4")
    a("s_cselect_b32 s20, s16, s20")
    a("s_cselect_b32 s21, s17, s21")
    a("s_cselect_b32 s22, s18, s22")
    a("s_mov_b64 exec, s[44:45]")
    a("buffer_load_dword v20, v6, s[20:23], 0 offen %s" % OPT["t0p"])
    a("s_mov_b64 exec, -1")
    load_tag(a)
    a("v_lshrrev_b32 v1, 3, v0")
    a("v_mul_u32_u24 v1, 1152, v1")
    a("v_lshrrev_b32 v2, 4, v0")
    a("v_and_b32 v3, 7, v0")
    a("v_xor_b32 v3, v3, v2")
    a("v_lshl_add_u32 v4, v3, 4, v1")
    a("v_xor_b32 v3, 4, v3")
    a("v_lshl_add_u32 v5, v3, 4, v1")
    a("v_add_u32 v5, %d, v5" % (8 * 1152))
    a("s_sub_u32 s36, s3, 4")
    a("s_mul_i32 s37, s36, %d" % (64 * 1152))
    a("s_lshl_b32 s38, s36, 13")
    copy_scalars(a)
    a("s_waitcnt vmcnt(0) lgkmcnt(0)")

    def x_chunk(c):
        for i in range(8):
            a("s_add_u32 m0, s38, %d" % ((c % 4) * SLOT + i * 1024))
            a("s_add_u32 s40, s37, %d" % ((i >> 1) * 16 * 1152 + c * 128))
            a("buffer_load_dwordx4 v%d, s[16:19], s40 offen lds" % (4 + (i & 1)))

    def loader_loop(fn, n):
        LA = OPT["la"]
        a("s_barrier")
        for c in range(LA):
            fn(c)
        extra = 0
        for c in range(9):
            a("s_waitcnt vmcnt(%d)" % (n * min(LA - 1, 8 - c) + extra))
            a("s_barrier")
            if c + LA < 9:
                fn(c + LA)
            if c + LA == 8 and OPT["wt2"]:
                a("s_lshr_b32 s44, s2, 3")
                a("s_lshl_b32 s44, s44, 2")
                a("s_add_u32 s44, s44, s3")
                a("s_mul_i32 s44, s44, %d" % (54 * 128))
                a("s_sub_u32 s44, s44, %d" % (4 * 54 * 128))
                srd(a, 20, 28, 576 * 1152)
                a("v_lshlrev_b32 v21, 7, v0")
                a("buffer_load_dword v20, v21, s[20:23], s44 offen")
                extra = 1

    loader_loop(x_chunk, 8)
    a("s_branch L_copy")
    a.label("L_ldw")
    a("s_movk_i32 s41, 3641")
    for i in range(9):
        a("v_add_u32 v1, %d, v0" % (64 * i))
        a("v_mul_u32_u24 v2, s41, v1")
        a("v_lshrrev_b32 v2, 16, v2")
        a("v_mul_u32_u24 v3, 18, v2")
        a("v_sub_u32 v3, v1, v3")
        a("v_bfe_u32 v1, v2, 2, 2")
        a("v_lshlrev_b32 v1, 3, v1")
        a("v_lshrrev_b32 v13, 4, v2")
        a("v_lshl_add_u32 v1, v13, 2, v1")
        a("v_and_b32 v2, 3, v2")
        a("v_add_u32 v1, v1, v2")
        a("v_mul_u32_u24 v1, 3456, v1")
        a("v_lshl_add_u32 v%d, v3, 4, v1" % (4 + i))
        if i == 2:
            a("s_waitcnt lgkmcnt(0)")
            load_tag(a)
    a("s_sub_u32 s36, s3, 6")
    a("s_mul_i32 s37, s36, %d" % (32 * 3456))
    a("s_mul_i32 s38, s36, 9216")
    a("s_mul_i32 s39, s34, 288")
    a("s_sub_u32 s42, %d, s39" % (576 * 3456))
    copy_scalars(a)
    srd_off(a, 16, 6, "s39", "s42")
    a("s_waitcnt lgkmcnt(0)")

    def w_chunk(c):
        a("s_add_u32 s40, s37, %d" % (c * 64 * 3456))
        for i in range(9):
            a("s_add_u32 m0, s38, %d" % ((c % 4) * SLOT + 16384 + i * 1024))
            a("s_nop 0")
            a("buffer_load_dwordx4 v%d, s[16:19], s40 offen lds" % (4 + i))

    loader_loop(w_chunk, 9)
    a("s_branch L_copy")
    a.label("L_comp")
    ACC, XF, WF = 64, (136, 144), 24
    a("v_and_b32 v8, 15, v0")
    a("v_lshrrev_b32 v9, 4, v0")
    a("v_lshrrev_b32 v10, 1, v8")
    a("v_xor_b32 v10, v10, v9")
    a("s_lshl_b32 s36, s3, 12")
    a("v_lshlrev_b32 v2, 7, v8")
    a("v_lshl_add_u32 v2, v10, 4, v2")
    a("v_add_u32 v2, s36, v2")
    a("v_xor_b32 v3, 64, v2")
    a("v_add_u32 v4, %d, v2" % (2 * SLOT))
    a("v_add_u32 v5, %d, v3" % (2 * SLOT))
    a("v_lshrrev_b32 v10, 2, v0")
    a("v_mul_u32_u24 v6, 288, v10")
    a("v_and_b32 v10, 3, v0")
    a("v_lshl_add_u32 v6, v10, 3, v6")
    a("v_add_u32 v6, 16384, v6")
    a("v_add_u32 v7, %d, v6" % (2 * SLOT))
    a("s_waitcnt lgkmcnt(0)")
    load_tag(a)
    a("s_mov_b32 s36, 1.0")
    a("s_cmp_lt_u32 s34, 4")
    a("s_cselect_b32 s36, %s, s36" % f32(QSCALE))
    a("s_mov_b32 s37, s36")
    a("s_lshl_b32 s38, s3, 5")
    a("v_add_u32 v10, s38, v8")
    a("v_mul_u32_u24 v10, 72, v10")
    a("v_lshl_add_u32 v10, v9, 3, v10")
    a("v_add_u32 v10, %d, v10" % IMG)
    for ft in range(9):
        a("v_add_u32 v11, %d, v9" % (4 * ft))
        a("v_mul_u32_u24 v11, 57, v11")
        a("v_lshrrev_b32 v11, 9, v11")
        a("v_mul_u32_u24 v11, 9144, v11")
        a("v_add_u32 v%d, v11, v10" % (12 + ft))
    copy_scalars(a)
    a("s_waitcnt lgkmcnt(0)")

    def xreads(step):
        c, h2 = step >> 1, step & 1
        slot = c % 4
        return ["ds_read_b128 %s, v%d offset:%d" % (vr(XF[step & 1] + 4 * tt, 4), 2 + 2 * (slot >> 1) + h2,
                                                    (slot & 1) * SLOT + tt * 2048) for tt in range(2)]

    def wreads(step, ft):
        c, h2 = step >> 1, step & 1
        slot = c % 4
        return ["ds_read_b64_tr_b16 %s, v%d offset:%d" % (vr(WF + 4 * ft + 2 * sec, 2), 6 + (slot >> 1),
                                                          (slot & 1) * SLOT + h2 * 9216 + sec * 4608 + ft * 32)
                for sec in range(2)]

    def mfma(step, ft, tt):
        d = vr(ACC + 8 * ft + 4 * tt, 4)
        return "v_mfma_f32_16x16x32_bf16 %s, %s, %s, %s" % (
            d, vr(WF + 4 * ft, 4), vr(XF[step & 1] + 4 * tt, 4), "0" if step == 0 else d)

    def epi(k):
        ft, tt = k >> 1, k & 1
        b = ACC + 4 * k
        t = 152 + 2 * (k % 8)
        return ["v_pk_mul_f32 %s, %s, s[36:37]" % (vr(b, 2), vr(b, 2)),
                "v_pk_mul_f32 %s, %s, s[36:37]" % (vr(b + 2, 2), vr(b + 2, 2)),
                "v_cvt_pk_bf16_f32 v%d, v%d, v%d" % (t, b, b + 1),
                "v_cvt_pk_bf16_f32 v%d, v%d, v%d" % (t + 1, b + 2, b + 3),
                "ds_write_b64 v%d, %s offset:%d" % (12 + ft, vr(t, 2), 32 * ft + 1152 * tt)]

    a("s_barrier")
    a("s_barrier")
    stamp(a, 1)
    q = []

    def issue(tag, lst):
        for x in lst:
            a(x)
            q.append(tag)

    def need(tag):
        last = max(k for k, v in enumerate(q) if v == tag)
        a("s_waitcnt lgkmcnt(%d)" % min(15, len(q) - 1 - last))

    issue(("x", 0), xreads(0))
    for ft in range(9):
        issue(("w", 0, ft), wreads(0, ft))
    LAG = 3
    for step in range(18):
        if step & 1 and step < 17:
            a("s_barrier")
        for ft in range(9):
            need(("w", step, ft))
            a(mfma(step, ft, 0))
            if ft == 0 and step < 17:
                issue(("x", step + 1), xreads(step + 1))
            if step == 17 and 2 * ft >= LAG:
                e = epi(2 * ft - LAG)
                for x in e[:4]:
                    a(x)
                issue("e", e[4:])
            a(mfma(step, ft, 1))
            if step < 17:
                issue(("w", step + 1, ft), wreads(step + 1, ft))
            elif 2 * ft + 1 >= LAG:
                e = epi(2 * ft + 1 - LAG)
                for x in e[:4]:
                    a(x)
                issue("e", e[4:])
    for k in range(18 - LAG, 18):
        for x in epi(k):
            a(x)
    stamp(a, 2)
    a("s_waitcnt lgkmcnt(0)")
    a.label("L_copy")
    a("v_lshlrev_b32 v1, 4, v0")
    a("s_lshl_b32 s36, s3, 10")
    a("v_add_u32 v2, s36, v1")
    a("v_add_u32 v3, %d, v2" % (IMG + 4 * 8192))
    srd(a, 24, 8, L.QKV_BYTES)
    make_tag(a)
    a("s_barrier")
    for j in range(4):
        a("ds_read_b128 %s, v2 offset:%d" % (vr(4 + 4 * j, 4), IMG + j * 8192))
    a("s_cmp_lt_u32 s3, 4")
    a("s_cbranch_scc0 L_c4")
    a("ds_read_b128 v[20:23], v3")
    a("s_waitcnt lgkmcnt(0)")
    a("buffer_store_dwordx4 v[20:23], v1, s[24:27], s54 offen sc1")
    a.label("L_c4")
    for j in range(4):
        a("s_waitcnt lgkmcnt(%d)" % (3 - j))
        a("buffer_store_dwordx4 %s, v1, s[24:27], s%d offen sc1" % (vr(4 + 4 * j, 4), 50 + j))
    a("s_mov_b32 s63, s58")
    a("v_mov_b32 v%d, %d" % (vC, CTL))
    lds_inc(a, vC, 24, C_FI)
    stamp(a, 3)


def spare_phase(a):
    GW = 64
    a.label("L_sp")
    a("s_sub_u32 s36, s2, 192")
    a("s_cmp_ge_u32 s3, 8")
    a("s_cbranch_scc1 L_sp_ffn")
    a("s_cmp_ge_u32 s3, 4")
    a("s_cbranch_scc1 L_sp_hi")
    a("s_load_dwordx2 s[60:61], s[0:1], 32")
    a("s_load_dwordx2 s[62:63], s[0:1], 64")
    a("v_lshrrev_b32 v2, 3, v0")
    a("v_and_b32 v3, 7, v0")
    a("v_lshlrev_b32 v3, 4, v3")
    a("s_lshl_b32 s34, s36, 2")
    a("s_add_u32 s34, s34, s3")
    a("s_lshl_b32 s33, s34, 3")
    a("v_add_u32 v1, s33, v2")
    a("v_mul_u32_u24 v4, 1152, v1")
    a("v_add_u32 v4, v4, v3")
    a("s_mul_i32 s51, s34, %d" % (7 * 128))
    a("s_mul_i32 s52, s34, %d" % (21 * 128))
    a("v_lshlrev_b32 v7, 7, v0")
    a("s_waitcnt lgkmcnt(0)")
    load_tag(a)
    srd(a, 16, 6, 576 * 3456)
    srd(a, 20, 28, 576 * 1152)
    for i in range(9):
        a("global_load_dwordx4 %s, v4, s[4:5] offset:%d" % (vr(8 + 4 * i, 4), 128 * i))
        if i == 0:
            for j in range(9):
                a("global_load_dwordx4 %s, v3, s[60:61] offset:%d" % (vr(44 + 4 * j, 4), 128 * j))
                a("global_load_dwordx4 %s, v3, s[62:63] offset:%d" % (vr(80 + 4 * j, 4), 128 * j))
        else:
            a("s_add_u32 s53, s51, %d" % (1728 * 128 * i))
            a("s_mov_b64 exec, 0x7f")
            a("buffer_load_dword v124, v7, s[16:19], s53 offen")
            a("s_mov_b64 exec, -1")
    a("s_mov_b64 exec, 0x1fffff")
    a("buffer_load_dword v124, v7, s[20:23], s52 offen")
    a("s_mov_b64 exec, -1")
    a("v_mov_b32 v%d, %d" % (vC, CTL))
    a("s_waitcnt lgkmcnt(0)")
    make_tag(a)
    a("s_barrier")
    a("s_waitcnt vmcnt(2)")
    for i in range(36):
        p = 116 + (i & 3)
        a("v_dot2_f32_bf16 v%d, v%d, v%d, %s" % (p, 8 + i, 44 + i, "0" if i < 4 else "v%d" % p))
    a("s_nop 1")
    a("v_pk_add_f32 v[116:117], v[116:117], v[118:119]")
    a("v_add_f32 v5, v116, v117")
    sum8(a, (5,))
    bf16_round(a, 5, 5)
    a("v_ashrrev_i32 v7, 31, v5")
    a("v_or_b32 v7, 0x80000000, v7")
    a("v_xor_b32 v7, v7, v5")
    a("v_and_b32 v7, 0xffff0000, v7")
    a("v_sub_u32 v6, 0x7ff, v1")
    a("v_or_b32 v7, v7, v6")
    a("v_mov_b32 v5, 1")
    a("s_mov_b32 s54, 0x01010101")
    a("s_mov_b32 exec_lo, s54")
    a("s_mov_b32 exec_hi, s54")
    a("ds_max_u32 v%d, v7 offset:%d" % (vC, C_KMAX))
    a("s_mov_b64 exec, 1")
    a("ds_add_rtn_u32 v5, v%d, v5 offset:%d" % (vC, C_KCNT))
    a("ds_read_b32 v7, v%d offset:%d" % (vC, C_KMAX))
    a("s_lshl_b32 s53, s36, 3")
    a("s_add_u32 s53, s53, %d" % L.WS_KEYF)
    a("v_mov_b32 v4, s53")
    a("v_mov_b32 v6, s%d" % TAG)
    a("s_waitcnt lgkmcnt(0)")
    a("v_cmp_eq_u32 vcc, 3, v5")
    a("s_and_b64 exec, exec, vcc")
    a("s_cbranch_execz L_sp_nopub")
    a("global_store_dwordx2 v4, v[6:7], s[8:9] sc1")
    a.label("L_sp_nopub")
    a("s_mov_b64 exec, -1")
    stamp(a, 1)
    a("s_mov_b32 s55, 0x3f803f80")
    for i in range(36):
        x, w, p = 8 + i, 80 + i, 116 + (i & 3)
        t = 44 + 4 * (i & 3)
        a("v_lshlrev_b32 v%d, 16, v%d" % (t, x))
        a("v_and_b32 v%d, 0xffff0000, v%d" % (t + 1, x))
        a("v_lshlrev_b32 v%d, 16, v%d" % (t + 2, w))
        a("v_and_b32 v%d, 0xffff0000, v%d" % (t + 3, w))
        a("v_pk_mul_f32 %s, %s, %s" % (vr(t, 2), vr(t, 2), vr(t + 2, 2)))
        a("v_cvt_pk_bf16_f32 v%d, v%d, v%d" % (t, t, t + 1))
        a("v_dot2_f32_bf16 v%d, v%d, s55, %s" % (p, t, "0" if i < 4 else "v%d" % p))
    a("s_nop 1")
    a("v_pk_add_f32 v[116:117], v[116:117], v[118:119]")
    a("v_add_f32 v6, v116, v117")
    sum8(a, (6,))
    bf16_round(a, 6, 6)
    sigmoid(a, 6, 6)
    bf16_round(a, 6, 6)
    a("v_lshlrev_b32 v1, 2, v1")
    a("v_add_u32 v1, %d, v1" % L.WS_G)
    a("s_mov_b32 exec_lo, s54")
    a("s_mov_b32 exec_hi, s54")
    a("global_store_dword v1, v6, s[8:9] sc1")
    a("s_mov_b64 exec, -1")
    a("s_waitcnt vmcnt(0)")
    lds_inc(a, vC, 5, C_GD)
    if OPT["dtouch"]:
        srd(a, 16, 14, 4608 * 1152)
        a("s_mul_i32 s52, s34, %d" % (162 * 128))
        a("v_lshlrev_b32 v7, 7, v0")
        for k in range(3):
            a("buffer_load_dword v124, v7, s[16:19], s52 offen")
            a("s_add_u32 s52, s52, %d" % (54 * 128))
    a("s_mov_b32 s63, 0")
    stamp(a, 2)
    a("s_branch L_att")

    a.label("L_sp_hi")
    a("v_mov_b32 v%d, %d" % (vC, CTL))
    a("s_waitcnt lgkmcnt(0)")
    load_tag(a)
    a("s_mov_b32 s63, 0")
    a("s_waitcnt lgkmcnt(0)")
    make_tag(a)
    a("s_barrier")
    a("s_cmp_eq_u32 s3, 4")
    a("s_cbranch_scc1 L_sp_w4")
    a("s_cmp_eq_u32 s3, 5")
    a("s_cbranch_scc0 L_att")
    a("s_lshl_b32 s56, s36, 7")
    a("s_add_u32 s56, s56, %d" % (L.WS_FLAG + F_PA * 128))
    a("v_mov_b32 v9, s56")
    lds_spin(a, "L_sp_x5", vC, C_XS, 10, (1, 4), 4)
    a("ds_read_b64 v[14:15], v%d offset:%d" % (vC, C_IDX))
    a("v_mov_b32 v12, s%d" % TAG)
    a("s_waitcnt lgkmcnt(0)")
    a("v_mov_b32 v13, v14")
    a("v_mov_b32 v14, v15")
    a("s_mov_b64 exec, 1")
    a("global_store_dwordx3 v9, v[12:14], s[8:9] sc1")
    a("s_mov_b64 exec, -1")
    a("s_branch L_att")
    a.label("L_sp_w4")
    for k in range(4):
        a("v_mov_b32 v%d, 0" % (12 + k))
    a("s_cmp_lt_u32 s36, 36")
    a("s_cbranch_scc0 L_sp_nz")
    a("s_lshl_b32 s51, s36, 10")
    a("s_add_u32 s51, s51, %d" % L.WS_YP)
    a("v_lshlrev_b32 v4, 4, v0")
    a("v_add_u32 v4, s51, v4")
    a("global_store_dwordx4 v4, v[12:15], s[8:9] sc1")
    a("s_cmp_eq_u32 s36, 0")
    a("s_cbranch_scc0 L_sp_nz")
    a("v_lshlrev_b32 v4, 7, v0")
    a("v_add_u32 v4, %d, v4" % (L.WS_FLAG + F_Y * 128))
    a("global_store_dword v4, v12, s[8:9] sc1")
    a.label("L_sp_nz")
    a("v_lshlrev_b32 v8, 3, v0")
    a("v_add_u32 v8, %d, v8" % L.WS_KEYF)
    srd(a, 24, 4, 2048 * 1152)
    lds_spin(a, "L_sp_own", vC, C_KCNT, 10, (4,), 2)
    a("s_sleep %d" % OPT["slp0"])
    flag_poll(a, "L_sp_kp", 8, 10, "s%d" % TAG, 64, OPT["slp"], 2)
    a("v_lshlrev_b32 v8, 4, v0")
    stamp(a, 1)
    wave_umax(a, 11, 53)
    a("s_and_b32 s54, s53, 0x7ff")
    a("s_sub_u32 s54, 2047, s54")
    a("s_mul_i32 s55, s54, 1152")
    a("s_mov_b32 m0, %d" % XS)
    a("s_add_u32 s56, s55, 1024")
    a("buffer_load_dwordx4 v8, s[24:27], s55 offen lds")
    a("s_mov_b32 m0, %d" % (XS + 1024))
    a("s_mov_b64 exec, 0xff")
    a("buffer_load_dwordx4 v8, s[24:27], s56 offen lds")
    a("s_mov_b64 exec, -1")
    a("s_and_b32 s55, s53, 0xffff0000")
    a("s_xor_b32 s56, s55, 0x80000000")
    a("s_xor_b32 s57, s55, 0xffff0000")
    a("s_bitcmp1_b32 s55, 31")
    a("s_cselect_b32 s55, s56, s57")
    a("v_mov_b32 v12, s55")
    sigmoid(a, 13, 12)
    bf16_round(a, 13, 13)
    a("v_mov_b32 v12, s54")
    a("ds_write_b64 v%d, v[12:13] offset:%d" % (vC, C_IDX))
    a("v_mov_b32 v12, 1")
    a("s_waitcnt vmcnt(0)")
    a("ds_write_b32 v%d, v12 offset:%d" % (vC, C_XS))
    stamp(a, 2)
    a("s_branch L_att")

    a.label("L_sp_ffn")
    a("s_load_dwordx4 s[40:43], s[0:1], 40")
    a("v_mov_b32 v3, %d" % CTL)
    for k in range(4):
        a("v_mov_b32 v%d, 0" % (4 + k))
    a("v_lshlrev_b32 v1, 4, v0")
    a("v_add_u32 v2, v1, v3")
    a("s_mov_b64 exec, 0xff")
    a("ds_write_b128 v2, v[4:7]")
    a("s_mov_b64 exec, -1")
    a("v_lshlrev_b32 v2, 2, v0")
    a("v_add_u32 v2, %d, v2" % (XS + 1152))
    a("ds_write_b32 v2, v4")
    a("s_sub_u32 s59, s3, 8")
    a("s_mul_i32 s37, s36, 57")
    a("s_lshr_b32 s37, s37, 9")
    a("s_mul_i32 s38, s37, 9")
    a("s_sub_u32 s38, s36, s38")
    a("s_mul_i32 s49, s37, 84")
    a("s_mul_i32 s39, s49, 9216")
    a("s_lshl_b32 s48, s38, 10")
    a("s_add_u32 s39, s39, s48")
    a("s_sub_u32 s48, %d, s39" % (576 * 9216))
    a("s_min_i32 s48, s48, %d" % (83 * 9216 + 1024))
    a("s_max_i32 s48, s48, 0")
    a("v_lshrrev_b32 v160, 5, v0")
    a("v_mul_u32_u24 v160, 9216, v160")
    a("v_and_b32 v161, 31, v0")
    a("v_lshl_add_u32 v160, v161, 4, v160")
    a("s_mul_i32 s57, s59, 20480")
    a("s_add_u32 s57, s57, %d" % WO)
    a("s_mul_i32 s58, s59, %d" % (2 * 9216))
    a("s_waitcnt lgkmcnt(0)")
    load_tag(a)
    srd_off(a, 16, 40, "s39", "s48")
    srd_off(a, 20, 42, "s39", "s48")
    a("s_waitcnt lgkmcnt(0)")
    make_tag(a)
    a("s_barrier")
    for i in range(5):
        a("s_add_u32 s55, s58, %d" % (8 * (6 + i) * 9216))
        a("s_add_u32 s56, s55, 512")
        for k in range(4):
            a("s_add_u32 m0, s57, %d" % ((4 * i + k) * 1024))
            a("buffer_load_dwordx4 v160, s[%d:%d], s%d offen nt lds" % (16 + 4 * (k >> 1), 19 + 4 * (k >> 1), 55 + (k & 1)))
    for i in range(6):
        a("s_add_u32 s55, s58, %d" % (8 * i * 9216))
        for k in range(4):
            a("buffer_load_dwordx4 %s, v160, s[%d:%d], s55 offen offset:%d nt" % (
                vr(GW + 16 * i + 4 * k, 4), 16 + 4 * (k >> 1), 19 + 4 * (k >> 1), 512 * (k & 1)))
    a("s_lshl_b32 s55, s59, 1")
    a("s_add_u32 s55, s55, s49")
    a("v_lshrrev_b32 v51, 5, v0")
    a("v_add_u32 v51, s55, v51")
    a("v_lshlrev_b32 v51, 1, v51")
    a("v_add_u32 v51, %d, v51" % XS)
    a("v_and_b32 v2, 1, v0")
    a("v_lshlrev_b32 v2, 4, v2")
    a("v_lshrrev_b32 v4, 1, v0")
    a("v_xor_b32 v4, v4, v0")
    a("v_and_b32 v4, 8, v4")
    a("v_bfe_u32 v5, v0, 1, 2")
    a("v_or_b32 v4, v4, v5")
    for q in range(4):
        a("v_cmp_eq_u32 s[%d:%d], %d, v4" % (40 + 2 * q, 41 + 2 * q, q))
    a("v_bfe_u32 v4, v0, 3, 1")
    a("v_lshlrev_b32 v4, 9, v4")
    a("v_lshrrev_b32 v5, 4, v0")
    a("v_lshl_add_u32 v4, v5, 7, v4")
    a("v_and_b32 v5, 7, v0")
    a("v_lshl_add_u32 v4, v5, 2, v4")
    a("v_add_u32 v6, s57, v4")
    a("v_add_u32 v52, s57, v1")
    a("s_lshl_b32 s55, s59, 9")
    a("v_lshlrev_b32 v8, 3, v0")
    a("v_add_u32 v8, s55, v8")
    a("s_mul_i32 s52, s37, %d" % (4608 * 16))
    a("s_lshl_b32 s55, s38, 13")
    a("s_add_u32 s52, s52, s55")
    a("s_add_u32 s52, s52, %d" % L.WS_PA)
    a("v_lshlrev_b32 v9, 2, v8")
    a("v_add_u32 v9, s52, v9")
    a("v_add_u32 v8, %d, v8" % WO)
    stamp(a, 3)
    lds_spin(a, "L_sp_xs", 3, C_XS, 10, (1,), 2)
    a("s_setprio %d" % OPT["pr2"])
    for i in range(11):
        a("ds_read_u16 v%d, v51 offset:%d" % (53 + i, 16 * i))
    a("s_waitcnt vmcnt(24)")
    for k in range(4):
        a("ds_read_b128 %s, v52 offset:%d" % (vr(32 + 4 * k, 4), 1024 * k))
    a("s_waitcnt lgkmcnt(4)")
    for i in range(11):
        a("v_lshlrev_b32 v%d, v2, v%d" % (53 + i, 53 + i))
    first = True
    for i in range(5):
        selector(a, 12, 53 + 6 + i, 40)
        for k in range(4):
            d = vr(16 + 4 * k, 4)
            a("s_waitcnt lgkmcnt(%d)" % (3 if i < 4 else 3 - k))
            a("v_mfma_f32_16x16x32_bf16 %s, %s, v[12:15], %s" % (d, vr(32 + 4 * k, 4), "0" if first else d))
            if i < 4:
                a("ds_read_b128 %s, v52 offset:%d" % (vr(32 + 4 * k, 4), 1024 * (4 * (i + 1) + k)))
        first = False
    for i in range(6):
        selector(a, 12, 53 + i, 40)
        a("s_waitcnt vmcnt(%d)" % (4 * (5 - i)))
        for k in range(4):
            d = vr(16 + 4 * k, 4)
            a("v_mfma_f32_16x16x32_bf16 %s, %s, v[12:15], %s" % (d, vr(GW + 16 * i + 4 * k, 4), d))
    for k in range(4):
        for r in range(4):
            a("ds_write_b32 v6, v%d offset:%d" % (16 + 4 * k + r, 1024 * k + 32 * r))
    lds_inc(a, 3, 10, C_RED)
    lds_spin(a, "L_sp_rd", 3, C_RED, 10, (4,), 0)
    for p in range(4):
        a("ds_read_b64 %s, v8 offset:%d" % (vr(16 + 4 * p, 2), 20480 * p))
        a("ds_read_b64 %s, v8 offset:%d" % (vr(18 + 4 * p, 2), 20480 * p + 2048))
    a("v_mov_b32 v34, s%d" % TAG)
    a("v_mov_b32 v38, s%d" % TAG)
    a("s_waitcnt lgkmcnt(0)")
    lds_inc(a, 3, 10, C_RED2)
    for p in (2, 1):
        for h in range(2 * p):
            a("v_pk_add_f32 %s, %s, %s" % (vr(16 + 2 * h, 2), vr(16 + 2 * h, 2), vr(16 + 4 * p + 2 * h, 2)))
    a("v_mov_b32 v32, v16")
    a("v_mov_b32 v33, v18")
    a("v_mov_b32 v36, v17")
    a("v_mov_b32 v37, v19")
    a("s_cmp_eq_u32 s36, 63")
    a("s_cbranch_scc1 L_sp_nost")
    a("global_store_dwordx4 v9, v[32:35], s[8:9] sc1")
    a("global_store_dwordx4 v9, v[36:39], s[8:9] offset:16 sc1")
    a.label("L_sp_nost")
    stamp(a, 4)
    lds_spin(a, "L_sp_r2", 3, C_RED2, 10, (4,), 0)
    a("s_branch L_help2")


def attn_loop(a):
    for i in range(9):
        if i == 0:
            a("s_cmp_lt_u32 s43, 2")
            a("s_cbranch_scc0 L_hl")
            landed(a, 0x100, 4)
            a.label("L_hl")
        if i == 1:
            landed(a, 0x10000, 0)
        if i in (1, 2):
            a("s_cmp_eq_u32 s43, %d" % (2 - i))
            a("s_cbranch_scc0 L_hb%d_d" % i)
            stage_spin(a, "L_hb%d" % i, 1)
        if 3 <= i <= 6:
            a("s_cmp_eq_u32 s43, %d" % (6 - i))
            a("s_cbranch_scc0 L_hc%d_d" % i)
            stage_spin(a, "L_hc%d" % i, 2)
        a.label("L_it%d" % i)
        S, P = SS[i & 1], PP[i & 1]
        ex = ["v_exp_f32 v%d, v%d" % (S + r, S + r) for r in range(16)]
        cv = ["v_cvt_pk_bf16_f32 v%d, v%d, v%d" % (P + q, S + 2 * q, S + 2 * q + 1) for q in range(8)]
        if i == 0:
            mk = ["v_bfi_b32 v%d, v%d, 0, v%d" % (P + q, MSK + q, P + q) for q in range(8)]
        elif i == 8:
            mk = ["v_and_b32 v%d, v%d, v%d" % (P + q, MSK + q, P + q) for q in range(8)]
        else:
            mk = []
        m1 = qk(i + 1) if i < 8 else []
        m2 = pv(i - 1, i == 1) if i > 0 else []
        a("s_waitcnt lgkmcnt(%d)" % (4 if 0 < i < 8 else 0))
        seq = m1[:1] + ex[0:4] + m1[1:] + (k_reads(i + 2) if i + 2 <= 8 else []) + ex[4:8] + cv[0:2] + m2[:1] + \
            ex[8:12] + cv[2:4] + m2[1:]
        if i + 1 <= 8:
            seq += ["v_add_u32 v%d, v%d, v%d" % (vV, vV, vStep)] + v_reads(i + 1)
        seq += ex[12:16] + cv[4:8] + mk
        for x in seq:
            a(x)
    a("s_waitcnt lgkmcnt(0)")
    for x in pv(8, False):
        a(x)


def attention_phase(a):
    a.label("L_att")
    decode2(a)
    a("s_mul_i32 s33, s31, %d" % L.PAIR_BYTES)
    a("s_mul_i32 s34, s32, 9216")
    a("s_add_u32 s33, s33, s34")
    a("v_mov_b32 v%d, %d" % (vC, CTL))
    KS, VS = 16 * L.PAIR_BYTES - 18432, 32 * L.PAIR_BYTES - 18432
    grp = [(QB, 0), (KB, KS), (VB, VS), (KB + 9216, KS + 9216), (VB + 9216, VS + 9216), (KB + 18432, KS + 18432), (VB + 18432, VS + 18432)]
    a("s_lshl_b32 s34, s3, 10")
    for j in range(8):
        lo, hi = (8 * j) // 9, min(8 * j + 7, 62) // 9
        l0, g0 = grp[lo][0] + (8 * j - 9 * lo) * 1024, grp[lo][1] + (8 * j - 9 * lo) * 1024
        l1, g1 = grp[hi][0] + (8 * j - 9 * hi) * 1024, grp[hi][1] + (8 * j - 9 * hi) * 1024
        if j == 7:
            a("s_min_u32 s34, s34, %d" % (6 * 1024))
        if lo == hi:
            a("s_add_u32 s%d, s34, %d" % (16 + j, l0))
            a("s_add_u32 s%d, s33, %d" % (44 + j, g0 - l0 & 0xffffffff))
        else:
            a("s_mov_b32 s35, %d" % l0)
            a("s_mov_b32 s36, %d" % (g0 - l0 & 0xffffffff))
            a("s_cmp_ge_u32 s3, %d" % (9 * hi - 8 * j))
            a("s_cselect_b32 s35, %d, s35" % (l1 & 0xffffffff))
            a("s_cselect_b32 s36, %d, s36" % (g1 - l1 & 0xffffffff))
            a("s_add_u32 s%d, s34, s35" % (16 + j))
            a("s_add_u32 s%d, s33, s36" % (44 + j))
        a("s_add_u32 s%d, s%d, s%d" % (44 + j, 44 + j, 16 + j))
    a("v_mov_b32 v10, s63")
    a("v_mov_b32 v11, s%d" % TAG)
    a("s_waitcnt vmcnt(0)")
    lds_inc(a, vC, 9, C_1, rtn=True)
    a("s_cmp_lg_u32 s63, 0")
    a("s_cselect_b32 s35, 7, 99")
    a("s_waitcnt lgkmcnt(0)")
    a("v_readfirstlane_b32 s36, v9")
    a("s_cmp_eq_u32 s36, s35")
    a("s_cbranch_scc0 L_nofl1")
    a("s_mov_b64 exec, 1")
    a("global_store_dword v10, v11, s[8:9] sc1")
    a("s_mov_b64 exec, -1")
    a.label("L_nofl1")
    stamp(a, 4)
    a("s_and_b32 s42, s3, 1")
    a("s_lshr_b32 s43, s3, 1")
    a("s_mul_i32 s35, s43, 2304")
    a("s_mul_i32 s36, s42, 40")
    a("v_and_b32 v%d, 31, v0" % T)
    a("v_lshrrev_b32 v%d, 5, v0" % (T + 1))
    a("v_mul_u32_u24 v%d, 72, v%d" % (vKt, T))
    a("v_add_u32 v%d, s35, v%d" % (vKt, vKt))
    a("v_lshl_add_u32 v%d, v%d, 4, v%d" % (vK, T + 1, vKt))
    a("v_add_u32 v%d, s36, v%d" % (vK, vK))
    a("v_add_u32 v%d, 32, v%d" % (vKt, vKt))
    a("v_bfe_u32 v%d, v0, 2, 2" % (T + 2))
    a("v_lshl_add_u32 v%d, v%d, 2, v%d" % (T + 2, T + 1, T + 2))
    a("v_mul_u32_u24 v%d, 72, v%d" % (T + 2, T + 2))
    a("s_add_u32 s37, s35, %d" % VB)
    a("v_add_u32 v%d, s37, v%d" % (T + 2, T + 2))
    a("v_and_b32 v%d, 3, v0" % (T + 3))
    a("v_lshlrev_b32 v%d, 3, v%d" % (T + 4, T + 3))
    a("v_add_u32 v%d, s36, v%d" % (T + 4, T + 4))
    a("v_and_b32 v%d, 16, v0" % (T + 5))
    a("v_cmp_eq_u32 s[38:39], 0, v%d" % (T + 5))
    a("v_cndmask_b32 v%d, 32, v%d, s[38:39]" % (T + 4, T + 4))
    a("v_add_u32 v%d, v%d, v%d" % (vV, T + 2, T + 4))
    a("v_and_b32 v%d, 19, v0" % (T + 5))
    a("v_cmp_lt_u32 s[38:39], 16, v%d" % (T + 5))
    a("v_mov_b32 v%d, %d" % (T + 6, ONES))
    a("v_cndmask_b32 v%d, v%d, v%d, s[38:39]" % (vV, vV, T + 6))
    a("v_mov_b32 v%d, 2304" % (T + 6))
    a("v_cndmask_b32 v%d, v%d, 0, s[38:39]" % (vStep, T + 6))
    a("v_lshlrev_b32 v%d, 2, v%d" % (T + 2, T + 1))
    a("v_sub_u32 v%d, v%d, v%d" % (T + 2, T, T + 2))
    a("v_mov_b32 v%d, 0xffff" % (T + 3))
    for q in range(8):
        kl = 8 * (q >> 1) + 2 * (q & 1)
        a("v_cmp_le_i32 s[38:39], %d, v%d" % (kl, T + 2))
        a("v_cmp_le_i32 s[40:41], %d, v%d" % (kl + 1, T + 2))
        a("v_cndmask_b32 v%d, 0, v%d, s[38:39]" % (MSK + q, T + 3))
        a("v_cndmask_b32 v%d, v%d, -1, s[40:41]" % (MSK + q, MSK + q))
    a("s_lshl_b32 s41, s32, 2")
    a("s_add_u32 s41, s41, s43")
    a("s_sub_i32 s41, 8, s41")
    a("s_lshl_b32 s35, s32, 3")
    a("s_lshl_b32 s36, s43, 1")
    a("s_add_u32 s35, s35, s36")
    a("s_mul_i32 s35, s35, 18432")
    a("s_lshl_b32 s58, s31, 10")
    a("s_lshl_b32 s36, s42, 9")
    a("s_add_u32 s58, s58, s36")
    a("s_add_u32 s58, s58, s35")
    a("s_lshr_b32 s59, s31, 1")
    a("s_lshl_b32 s59, s59, 8")
    a("s_and_b32 s36, s31, 1")
    a("s_lshl_b32 s36, s36, 3")
    a("s_add_u32 s59, s59, s36")
    a("s_lshl_b32 s36, s42, 2")
    a("s_add_u32 s59, s59, s36")
    a("s_add_u32 s59, s59, s35")
    a("s_add_u32 s59, s59, 16384")
    a("v_bfe_u32 v152, v0, 4, 1")
    a("v_mul_u32_u24 v152, 18432, v152")
    a("v_and_b32 v153, 15, v0")
    a("v_lshl_add_u32 v152, v153, 4, v152")
    a("v_lshrrev_b32 v153, 5, v0")
    a("v_lshl_add_u32 v153, v153, 8, v152")
    a("v_cmp_gt_u32 vcc, 32, v0")
    a("s_cmp_eq_u32 s42, 0")
    a("s_cselect_b64 s[54:55], vcc, 0")
    a("s_cselect_b64 s[56:57], 0, vcc")
    a("v_and_b32 v%d, 3, v0" % (T + 2))
    a("v_mul_u32_u24 v%d, 576, v%d" % (T + 2, T + 2))
    a("v_mov_b32 v%d, 0x3f803f80" % (T + 4))
    a("v_mov_b32 v%d, v%d" % (T + 5, T + 4))
    a("v_lshlrev_b32 v%d, 4, v0" % (T + 3))
    srd(a, 36, 8, L.QKV_BYTES)
    srd_off(a, 24, 8, L.WS_O, 128 * 18432)
    a("s_lshr_b32 s35, s2, 6")
    a("s_lshl_b32 s35, s35, 4")
    a("s_add_u32 s35, s35, s3")
    a("s_cmp_eq_u32 s35, %d" % (3 * 16 + 6))
    a("s_cbranch_scc0 L_nq2")
    lds_spin(a, "L_sp_x6", vC, C_XS, T + 8, (1,), 8)
    qpoll(a, vC, "L_qp2", False, T + 8)
    a.label("L_nq2")
    lds_spin(a, "L_go1", vC, C_1, T, (8, 1), OPT["g1s"])
    stamp(a, 5)
    for j in range(8):
        if j == 6:
            a("ds_write_b64 v%d, %s offset:%d" % (T + 2, vr(T + 4, 2), ONES))
            landed(a, 1, 2)
            poison(a)
        a("s_mov_b32 m0, s%d" % (16 + j))
        a("s_nop 0")
        a("buffer_load_dwordx4 v%d, s[36:39], s%d offen %s lds" % (T + 3, 44 + j, OPT["kvl"]))
    a("s_cmp_lt_u32 s32, 2")
    a("s_cbranch_scc1 L_late")
    a("s_cmp_lt_u32 s43, 2")
    a("s_cbranch_scc1 L_sA")
    landed(a, 0x100, 4)
    stage_spin(a, "L_sB", 1)
    stage_spin(a, "L_sA", 0)
    stamp(a, 6)
    for x in q_reads() + k_reads(0) + k_reads(1) + v_reads(0):
        a(x)
    a("s_waitcnt lgkmcnt(7)")
    a("v_cndmask_b32 v%d, 0, v%d, s[54:55]" % (QT, QT))
    a("v_cndmask_b32 v%d, 0, v%d, s[56:57]" % (QT + 1, QT + 1))
    for x in qk(0):
        a(x)
    attn_loop(a)
    a.label("L_check")
    stamp(a, 7)
    a("s_mov_b32 s46, %s" % f32(2.0 ** 60))
    a("s_mov_b32 s47, %s" % f32(2.0 ** -60))
    a("s_mov_b32 s48, 0x7f800000")
    a("s_nop 7")
    a("s_nop 0")
    a("v_rcp_f32 v%d, v%d" % (T, OO + 12))
    a("v_cmp_gt_f32 s[50:51], s46, v%d" % (OO + 12))
    a("v_cmp_lt_f32 vcc, s47, v%d" % (OO + 12))
    for k in range(6):
        a("v_add_f32 v%d, abs(v%d), abs(v%d)" % (T + 2 + k, OO + 2 * k, OO + 2 * k + 1))
    a("s_and_b64 s[50:51], s[50:51], vcc")
    a("v_pk_add_f32 %s, %s, %s" % (vr(T + 2, 2), vr(T + 2, 2), vr(T + 4, 2)))
    a("v_pk_add_f32 %s, %s, %s" % (vr(T + 2, 2), vr(T + 2, 2), vr(T + 6, 2)))
    a("v_add_f32 v%d, v%d, v%d" % (T + 2, T + 2, T + 3))
    a("v_cmp_gt_f32 vcc, s48, v%d" % (T + 2))
    a("s_and_b64 s[50:51], s[50:51], vcc")
    a("s_cmp_eq_u64 s[50:51], -1")
    a("s_cbranch_scc0 L_slow")
    a.label("L_fin")
    a("s_cmp_eq_u32 s42, 0")
    a("s_cbranch_scc1 L_fa")
    a("v_mov_b32 v%d, v%d" % (OO + 8, OO + 10))
    a("v_mov_b32 v%d, v%d" % (OO + 9, OO + 11))
    a.label("L_fa")
    for k in range(0, 10, 2):
        a("v_pk_mul_f32 %s, %s, %s op_sel_hi:[1,0]" % (vr(OO + k, 2), vr(OO + k, 2), vr(T, 2)))
    for q in range(5):
        a("v_cvt_pk_bf16_f32 v%d, v%d, v%d" % (T + 4 + q, OO + 2 * q, OO + 2 * q + 1))
    a("buffer_store_dwordx4 %s, v153, s[24:27], s58 offen sc1" % vr(T + 4, 4))
    a("s_mov_b32 exec_hi, 0")
    a("buffer_store_dword v%d, v152, s[24:27], s59 offen sc1" % (T + 8))
    a("s_mov_b32 exec_hi, -1")


def q_reads():
    return ["ds_read_b64 %s, v%d offset:%d" % (vr(QM, 2), vK, QB),
            "ds_read_b64 %s, v%d offset:%d" % (vr(QM + 2, 2), vK, QB + 8),
            "ds_read_b64 %s, v%d offset:%d" % (vr(QT, 2), vKt, QB)]


def out_phase(a):
    A0, WFR, OF, ACC = 4, (20, 36, 100), 64, (52, 56, 60, 116)
    a("s_mov_b32 s49, s3")
    a("s_cmp_ge_u32 s52, 26")
    a("s_cbranch_scc1 L_end")
    a.label("L_out")
    a("s_cmp_ge_u32 s49, 5")
    a("s_cselect_b32 s40, 1, 0")
    a("s_mul_i32 s54, s40, 5")
    a("s_sub_u32 s54, s49, s54")
    a("s_mul_i32 s55, s52, 5")
    a("s_add_u32 s55, s55, s54")
    a("v_lshrrev_b32 v10, 2, v0")
    a("v_bfe_u32 v11, v0, 3, 2")
    a("v_lshlrev_b32 v11, 1, v11")
    a("v_bfe_u32 v12, v0, 1, 1")
    a("v_xor_b32 v11, v11, v12")
    a("v_and_b32 v12, 1, v0")
    a("v_lshlrev_b32 v12, 3, v12")
    a("v_lshl_add_u32 v12, v10, 7, v12")
    a("v_lshl_add_u32 v12, v11, 4, v12")
    a("s_mul_i32 s41, s40, %d" % (9 * 4096))
    a("s_add_u32 s41, s41, %d" % WO)
    for t in range(4):
        a("v_xor_b32 v%d, %d, v12" % (A0 + t, 32 * t))
        a("v_add_u32 v%d, s41, v%d" % (A0 + t, A0 + t))
    a("s_mul_i32 s41, s55, 18432")
    a("s_mul_i32 s44, s40, 9216")
    a("s_add_u32 s41, s41, s44")
    a("s_add_u32 s44, s41, 4096")
    a("s_add_u32 s45, s41, 8192")
    a("v_lshlrev_b32 v1, 4, v0")
    a("s_cmp_lt_u32 s3, 8")
    a("s_cbranch_scc0 L_noinc")
    a("s_waitcnt vmcnt(0)")
    stamp(a, 8)
    lds_inc(a, vC, 13, C_O)
    a.label("L_noinc")
    a("s_mul_i32 s56, s55, %d" % (16 * 1152))
    a("s_lshl_b32 s57, s53, 7")
    a("s_add_u32 s56, s56, s57")
    a("s_add_u32 s58, s56, %d" % (8 * 1152))
    a("s_lshl_b32 s57, s55, 6")
    a("v_lshrrev_b32 v140, 3, v0")
    a("v_and_b32 v141, 7, v0")
    a("v_mul_u32_u24 v142, 1152, v140")
    a("v_lshl_add_u32 v142, v141, 4, v142")
    a("s_cmp_eq_u32 s40, 0")
    a("s_cbranch_scc0 L_noxg")
    srd(a, 20, 4, 2048 * 1152)
    srd_off(a, 16, 8, L.WS_G, 8192)
    a("buffer_load_dwordx4 %s, v142, s[20:23], s56 offen" % vr(XR, 4))
    a("buffer_load_dwordx4 %s, v142, s[20:23], s58 offen" % vr(XR + 4, 4))
    lds_spin(a, "L_pa", vC, C_PA, 10, (1,))
    a("ds_read_b32 v10, v%d offset:%d" % (vC, C_IDX))
    a("v_lshlrev_b32 v3, 2, v140")
    a("buffer_load_dword v%d, v3, s[16:19], s57 offen sc1" % GR)
    a("buffer_load_dword v%d, v3, s[16:19], s57 offen offset:32 sc1" % (GR + 2))
    a("s_mul_i32 s46, s54, 2304")
    a("s_add_u32 s46, s46, %d" % STG)
    a("v_and_b32 v143, 15, v0")
    a("v_mul_u32_u24 v143, 144, v143")
    a("v_lshrrev_b32 v144, 4, v0")
    a("v_lshlrev_b32 v144, 3, v144")
    a("v_add3_u32 v143, v143, v144, s46")
    a("v_mul_u32_u24 v144, 144, v140")
    a("v_lshl_add_u32 v144, v141, 4, v144")
    a("v_add_u32 v144, s46, v144")
    a("s_waitcnt vmcnt(0) lgkmcnt(0)")
    a("v_readfirstlane_b32 s12, v10")
    srd(a, 20, 10, 2048 * 1152)
    for j in range(2):
        a("v_sub_f32 v%d, 1.0, v%d" % (GR + 2 * j + 1, GR + 2 * j))
        bf16_round(a, GR + 2 * j + 1, GR + 2 * j + 1)

    def omx():
        for j in range(2):
            for q in range(4):
                xv = XR + 4 * j + q
                d = 146 + 8 * j + 2 * q if j == 0 else (156 + 2 * q)
                a("v_lshlrev_b32 v%d, 16, v%d" % (d, xv))
                a("v_and_b32 v%d, 0xffff0000, v%d" % (d + 1, xv))
                a("v_pk_mul_f32 %s, %s, %s op_sel:[0,1] op_sel_hi:[1,1]" % (vr(d, 2), vr(d, 2), vr(GR + 2 * j, 2)))

    omx()
    a.label("L_noxg")
    a("s_lshl_b32 s46, s54, 12")
    a("v_add_u32 v2, s46, v1")
    a("s_lshl_b32 s46, s54, 2")
    a("v_add_u32 v3, s46, v%d" % vC)

    def reads(sl):
        st = WFR[sl % 3]
        return ["ds_read_b64_tr_b16 %s, v%d offset:%d" % (vr(st + 4 * t + 2 * sec, 2), A0 + t, (32 * sl + 16 * sec) * 128)
                for t in range(4) for sec in range(2)]

    lds_spin(a, "L_wo", vC, C_WO, 10, (2,))
    for x in reads(0) + reads(1):
        a(x)
    lds_spin(a, "L_go2", vC, C_O, 10, (8, 1), 0)
    stamp(a, 9)
    LAO = OPT["lao"]

    def oload(s):
        a("buffer_load_dwordx4 %s, v1, s[24:27], s%d offen offset:%d sc1" % (vr(OF + 4 * s, 4), (41, 44, 45)[s // 4], 1024 * (s % 4)))

    def ocheck(sl):
        b = OF + 4 * sl
        if sl < 7:
            a("v_cmp_eq_u32 vcc, -1, v%d" % b)
        else:
            a("v_max3_u32 v10, v%d, v%d, v%d" % (b, b + 1, b + 2))
            a("v_max_u32 v10, v10, v%d" % (b + 3))
            a("v_cmp_eq_u32 vcc, -1, v10")
        a("s_nop 1")

    def oretry():
        for sl in range(9):
            a.label("L_or%d" % sl)
            a("s_sub_u32 s60, s60, 1")
            a("s_cbranch_scc1 L_ok%d" % sl)
            a("s_waitcnt vmcnt(0)")
            for s in range(sl, min(sl + LAO, 9)):
                oload(s)
            a("s_waitcnt vmcnt(%d)" % min(LAO - 1, 8 - sl))
            a("s_branch L_oc%d" % sl)

    RETRY.append(oretry)
    a("s_mov_b32 s60, 0x8000")
    for s in range(LAO):
        oload(s)
    for sl in range(9):
        rd = reads(sl + 2) if sl < 7 else []
        a("s_waitcnt vmcnt(%d) lgkmcnt(%d)" % (min(LAO - 1, 8 - sl), 8 if sl < 8 else 0))
        a.label("L_oc%d" % sl)
        ocheck(sl)
        a("s_cbranch_vccnz L_or%d" % sl)
        a.label("L_ok%d" % sl)
        for t in range(4):
            d = vr(ACC[t], 4)
            a("v_mfma_f32_16x16x32_bf16 %s, %s, %s, %s" % (d, vr(WFR[sl % 3] + 4 * t, 4), vr(OF + 4 * sl, 4), "0" if sl == 0 else d))
            if t == 0 and sl + LAO < 9:
                oload(sl + LAO)
            for x in rd[2 * t:2 * t + 2]:
                a(x)
    stamp(a, 10)
    a("s_cmp_eq_u32 s40, 0")
    a("s_cbranch_scc1 L_k0")
    for t in range(4):
        a("ds_write_b128 v2, %s offset:%d" % (vr(ACC[t], 4), PART + 1024 * t))
    a("v_mov_b32 v10, 1")
    a("ds_write_b32 v3, v10 offset:%d" % C_PART)
    stamp_end(a, OPT["stw"], 0)
    stamp_end(a, 10, 2)
    a("s_endpgm")
    a.label("L_k0")
    a("s_lshr_b32 s46, s12, 4")
    a("s_cmp_eq_u32 s46, s55")
    a("s_cbranch_scc0 L_noy")
    lds_spin(a, "L_yw", vC, C_YRDY, 10, (1,))
    a("v_lshlrev_b32 v10, 5, v141")
    a("v_add_u32 v10, %d, v10" % YB)
    a("ds_read_b128 v[12:15], v10")
    a("ds_read_b128 v[16:19], v10 offset:16")
    a("s_and_b32 s46, s12, 15")
    a("s_waitcnt lgkmcnt(0)")
    for j in range(2):
        a("v_add_u32 v10, %d, v140" % (8 * j))
        a("v_cmp_eq_u32 s[48:49], s46, v10")
        for q in range(4):
            xv = XR + 4 * j + q
            a("v_lshlrev_b32 v10, 16, v%d" % xv)
            a("v_and_b32 v11, 0xffff0000, v%d" % xv)
            a("v_add_f32 v10, v10, v%d" % (12 + 2 * q))
            a("v_add_f32 v11, v11, v%d" % (13 + 2 * q))
            a("v_cvt_pk_bf16_f32 v10, v10, v11")
            a("v_cndmask_b32 v%d, v%d, v10, s[48:49]" % (xv, xv))
    omx()
    a.label("L_noy")
    lds_spin(a, "L_pw", 3, C_PART, 10, (1,), 0)
    stamp(a, 11)
    for t in range(4):
        a("ds_read_b128 %s, v2 offset:%d" % (vr(20 + 4 * t, 4), PART + 1024 * t))
    for t in range(4):
        a("s_waitcnt lgkmcnt(3)")
        b = ACC[t]
        a("v_pk_add_f32 %s, %s, %s" % (vr(b, 2), vr(b, 2), vr(20 + 4 * t, 2)))
        a("v_pk_add_f32 %s, %s, %s" % (vr(b + 2, 2), vr(b + 2, 2), vr(22 + 4 * t, 2)))
        a("v_cvt_pk_bf16_f32 v%d, v%d, v%d" % (40 + 2 * t, b, b + 1))
        a("v_cvt_pk_bf16_f32 v%d, v%d, v%d" % (41 + 2 * t, b + 2, b + 3))
        a("ds_write_b64 v143, %s offset:%d" % (vr(40 + 2 * t, 2), 32 * t))
    for j in range(2):
        a("ds_read_b128 %s, v144 offset:%d" % (vr(20 + 4 * j, 4), 8 * 144 * j))
    for j in range(2):
        a("s_waitcnt lgkmcnt(%d)" % (1 - j))
        for q in range(4):
            av = 20 + 4 * j + q
            d = 146 + 2 * q if j == 0 else 156 + 2 * q
            a("v_lshlrev_b32 v10, 16, v%d" % av)
            a("v_and_b32 v11, 0xffff0000, v%d" % av)
            a("v_pk_fma_f32 %s, v[10:11], %s, %s op_sel_hi:[1,0,1]" % (vr(d, 2), vr(GR + 2 * j, 2), vr(d, 2)))
            a("v_cvt_pk_bf16_f32 v%d, v%d, v%d" % (32 + 4 * j + q, d, d + 1))
        a("buffer_store_dwordx4 %s, v142, s[20:23], s%d offen" % (vr(32 + 4 * j, 4), 56 + 2 * j))
    if OPT["stamp"]:
        stamp(a, 12)
        a("s_waitcnt vmcnt(0)")
        stamp(a, 13)
        stamp_end(a, OPT["stw"], 0)
    a("s_endpgm")


RETRY = []


def late_and_slow(a):
    RETRY[0]()
    a.label("L_late")
    a("s_mul_i32 s50, s41, 2304")
    a("v_add_u32 v%d, s50, v%d" % (T + 8, vK))
    a("v_add_u32 v%d, s50, v%d" % (T + 9, vKt))
    a("v_mul_u32_u24 v%d, s41, v%d" % (T + 2, vStep))
    a("v_add_u32 v%d, v%d, v%d" % (vV, vV, T + 2))
    for r in list(range(OO, OO + 16)) + list(range(VF[0], VF[0] + 32)):
        a("v_mov_b32 v%d, 0" % r)
    landed(a, 0x10100, 0)
    stage_spin(a, "L_lt", 2)
    a("s_mov_b32 s43, 9")
    for x in q_reads():
        a(x)
    a("s_bitcmp1_b32 s41, 0")
    a("s_cbranch_scc1 L_late1")
    for par in range(2):
        if par:
            a.label("L_late1")
        for x in k_reads(par, T + 8, T + 9, 0):
            a(x)
        for x in k_reads(par + 1, T + 8, T + 9, 0):
            a(x.replace("offset:8", "offset:2312").replace("offset:0", "offset:2304"))
        for x in v_reads(par):
            a(x)
        a("s_waitcnt lgkmcnt(7)")
        a("v_cndmask_b32 v%d, 0, v%d, s[54:55]" % (QT, QT))
        a("v_cndmask_b32 v%d, 0, v%d, s[56:57]" % (QT + 1, QT + 1))
        for x in qk(par):
            a(x)
        a("s_nop 7")
        a("s_nop 3")
        for i0 in range(2 - par, 9, 2):
            a("s_cmp_eq_u32 s41, %d" % i0)
            a("s_cbranch_scc1 L_it%d" % i0)
        a("s_branch L_it%d" % (8 - par))

    a.label("L_slow")
    vKs, vKts, vM, vD0, vNeg = T + 8, T + 9, T + 10, T + 11, T + 12
    a("v_and_b32 v%d, 31, v0" % T)
    a("v_lshrrev_b32 v%d, 5, v0" % (T + 1))
    a("v_lshlrev_b32 v%d, 2, v%d" % (vD0, T + 1))
    a("v_sub_u32 v%d, v%d, v%d" % (vD0, vD0, T))
    a("v_mov_b32 v%d, 0xff800000" % vNeg)
    a("v_mov_b32 v%d, v%d" % (vM, vNeg))
    a("s_max_i32 s50, s41, 0")
    a("s_sub_u32 s51, 8, s50")
    a("v_mul_u32_u24 v%d, s51, v%d" % (T, vStep))
    a("v_sub_u32 v%d, v%d, v%d" % (vV, vV, T))
    a("s_mul_i32 s51, s50, 2304")
    for r in range(16):
        a("v_mov_b32 v%d, 0" % (OO + r))
    for ps in range(2):
        lab = "L_sp%d" % ps
        a("v_add_u32 v%d, s51, v%d" % (vKs, vK))
        a("v_add_u32 v%d, s51, v%d" % (vKts, vKt))
        a("s_mov_b32 s46, s50")
        a.label(lab)
        for x in k_reads(0, vKs, vKts):
            a(x)
        if ps == 1:
            for x in v_reads(0):
                a(x)
        a("s_mov_b32 s47, -31")
        a("s_mov_b32 s48, 62")
        a("s_cmp_eq_u32 s46, 0")
        a("s_cselect_b32 s47, 1, s47")
        a("s_cselect_b32 s48, 30, s48")
        a("s_cmp_eq_u32 s46, 8")
        a("s_cselect_b32 s48, 31, s48")
        a("s_waitcnt lgkmcnt(0)")
        for x in qk(0):
            a(x)
        a("v_subrev_u32 v%d, s47, v%d" % (T, vD0))
        for r in range(16):
            a("v_add_u32 v%d, %d, v%d" % (T + 1, 8 * (r >> 2) + (r & 3), T))
            a("v_cmp_ge_u32 vcc, s48, v%d" % (T + 1))
            a("v_cndmask_b32 v%d, v%d, v%d, vcc" % (SS[0] + r, vNeg, SS[0] + r))
            if ps == 0:
                a("v_max_f32 v%d, v%d, v%d" % (vM, vM, SS[0] + r))
            else:
                a("v_sub_f32 v%d, v%d, v%d" % (SS[0] + r, SS[0] + r, vM))
                a("v_exp_f32 v%d, v%d" % (SS[0] + r, SS[0] + r))
        if ps == 1:
            for q in range(8):
                a("v_cvt_pk_bf16_f32 v%d, v%d, v%d" % (PP[0] + q, SS[0] + 2 * q, SS[0] + 2 * q + 1))
            for x in pv(0, False):
                a(x)
            a("v_add_u32 v%d, v%d, v%d" % (vV, vV, vStep))
        a("v_add_u32 v%d, 2304, v%d" % (vKs, vKs))
        a("v_add_u32 v%d, 2304, v%d" % (vKts, vKts))
        a("s_add_u32 s46, s46, 1")
        a("s_cmp_lt_u32 s46, 9")
        a("s_nop 7")
        a("s_nop 7")
        a("s_cbranch_scc1 %s" % lab)
        if ps == 0:
            a("v_mov_b32 v%d, v%d" % (T, vM))
            a("v_permlane32_swap_b32 v%d, v%d" % (T, vM))
            a("v_max_f32 v%d, v%d, v%d" % (vM, vM, T))
    a("v_rcp_f32 v%d, v%d" % (T, OO + 12))
    a("s_nop 1")
    a("s_branch L_fin")


def helpers(a):
    a.label("L_help")
    a("v_mov_b32 v3, %d" % CTL)
    for k in range(4):
        a("v_mov_b32 v%d, 0" % (4 + k))
    a("v_lshlrev_b32 v1, 4, v0")
    a("v_add_u32 v2, v1, v3")
    a("s_mov_b64 exec, 0xff")
    a("ds_write_b128 v2, v[4:7]")
    a("s_mov_b64 exec, -1")
    a("s_waitcnt lgkmcnt(0)")
    load_tag(a)
    a("s_waitcnt lgkmcnt(0)")
    make_tag(a)
    a.label("L_help2")
    decode2(a)
    a("s_cmp_eq_u32 s3, 8")
    a("s_cbranch_scc1 L_down")
    a("v_lshrrev_b32 v1, 5, v0")
    a("v_bfe_u32 v2, v0, 3, 2")
    a("v_lshrrev_b32 v10, 4, v0")
    a("v_lshlrev_b32 v10, 1, v10")
    a("v_and_b32 v11, 7, v0")
    a("v_xor_b32 v10, v10, v11")
    a("v_lshl_add_u32 v4, v1, 2, v2")
    a("v_mul_u32_u24 v4, 1152, v4")
    a("v_lshl_add_u32 v4, v10, 4, v4")
    a("v_mul_u32_u24 v5, 72, v1")
    a("v_add_u32 v5, v5, v2")
    a("v_mul_u32_u24 v5, 1152, v5")
    a("v_lshl_add_u32 v5, v10, 4, v5")
    a("s_sub_u32 s36, s3, 9")
    a("s_mul_i32 s37, s36, %d" % (20 * 1152))
    a("s_mul_i32 s43, s36, %d" % (144 * 1152))
    a("s_lshl_b32 s38, s36, 10")
    a("s_add_u32 s38, s38, %d" % WO)
    a("s_lshl_b32 s39, s53, 7")
    a("s_sub_u32 s42, %d, s39" % (576 * 1152))
    srd_off(a, 16, 28, "s39", "s42")
    srd_off(a, 24, 8, L.WS_O, 128 * 18432)
    a("v_mov_b32 v%d, %d" % (vC, CTL))
    a("s_setprio %d" % OPT["pr3"])
    a("s_cmp_ge_u32 s2, 192")
    a("s_cbranch_scc1 L_wo_go")
    for k in range(11):
        a("s_barrier")
    a.label("L_wo_go")
    a("s_cmp_eq_u32 s3, 11")
    a("s_cbranch_scc1 L_ctl")
    a("s_cmp_ge_u32 s52, 26")
    a("s_cbranch_scc1 L_end")
    stage_spin(a, "L_wo_w", 0, 3, 10, 2)
    stamp(a, 5)
    for m in range(36):
        st, sec = m >> 1, m & 1
        a("s_add_u32 m0, s38, %d" % (2048 * m))
        if st < 16:
            a("s_add_u32 s40, s37, %d" % ((36 * st + 8 * sec) * 1152))
            a("buffer_load_dwordx4 v4, s[16:19], s40 offen lds")
        else:
            a("s_add_u32 s40, s43, %d" % ((288 * (st - 16) + 36 * sec + 16) * 1152))
            a("buffer_load_dwordx4 v5, s[16:19], s40 offen lds")
    a("s_waitcnt vmcnt(0)")
    stamp(a, 6)
    lds_inc(a, 3, 4, C_WO)
    a("s_setprio 0")
    a("s_sub_u32 s49, s3, 1")
    a("s_branch L_out")
    a.label("L_ctl")
    a("v_lshlrev_b32 v8, 7, v0")
    a("v_add_u32 v9, %d, v8" % (L.WS_FLAG + F_PA * 128))
    a("s_mul_i32 s46, s52, 5")
    a("s_lshr_b32 s46, s46, 3")
    a("s_min_u32 s46, s46, 14")
    a("s_lshl_b32 s46, s46, 11")
    a("s_add_u32 s46, s46, %d" % (L.WS_FLAG + F_O * 128))
    a("v_add_u32 v8, s46, v8")
    a("s_lshl_b32 s46, s32, 4")
    a("s_add_u32 s46, s46, s31")
    a("s_lshl_b32 s46, s46, 7")
    a("s_add_u32 s46, s46, %d" % (L.WS_FLAG + F_O * 128))
    a("v_mov_b32 v14, s46")
    a("v_mov_b32 v15, s%d" % TAG)
    a("s_cmp_ge_u32 s2, 192")
    a("s_cbranch_scc1 L_ct_0")
    qpoll(a, 3, "L_qp1", True)
    a.label("L_ct_0")
    stage_spin(a, "L_ct_a", 0, 3, 10, 2)
    flag_poll(a, "L_pap", 9, 4, "s%d" % TAG, 64, 8, 3)
    a("v_mov_b32 v10, v5")
    a("v_mov_b32 v11, v6")
    a("v_mov_b32 v4, 1")
    a("ds_write_b64 v3, v[10:11] offset:%d" % C_IDX)
    a("ds_write_b32 v3, v4 offset:%d" % C_PA)
    stamp(a, 5)
    stage_spin(a, "L_ct_p", 2, 3, 10, 1)
    a("s_mov_b64 exec, 1")
    a("global_store_dword v14, v15, s[8:9] sc1")
    a("s_mov_b64 exec, -1")
    stamp(a, 6)
    a("s_sleep %d" % OPT["slp3"])
    flag_poll(a, "L_op", 8, 12, "s%d" % TAG, 32, 2)
    lds_inc(a, 3, 10, C_GO2)
    stamp(a, 7)
    stamp_end(a, 11 if OPT["st11"] else 99, 3)
    a("ds_read_b64 v[10:11], v3 offset:%d" % C_IDX)
    a("s_waitcnt lgkmcnt(0)")
    a("v_readfirstlane_b32 s12, v10")
    a("v_readfirstlane_b32 s13, v11")
    a("s_mul_i32 s46, s52, 80")
    a("s_sub_u32 s46, s12, s46")
    a("s_cmp_lt_u32 s46, 80")
    a("s_cbranch_scc0 L_end")
    a("v_lshlrev_b32 v4, 7, v0")
    a("v_add_u32 v4, %d, v4" % (L.WS_FLAG + F_Y * 128))
    srd_off(a, 16, 8, L.WS_YP, 16 * 2304)
    a("v_lshrrev_b32 v6, 4, v0")
    a("v_mul_u32_u24 v6, 2304, v6")
    a("v_and_b32 v7, 15, v0")
    a("v_lshlrev_b32 v7, 4, v7")
    a("v_add_u32 v6, v6, v7")
    a("v_add_u32 v7, %d, v7" % YB)
    a("s_lshl_b32 s40, s53, 8")
    flag_poll(a, "L_yp", 4, 5, "16", 16, 2)
    for i in range(4):
        a("buffer_load_dwordx4 %s, v6, s[16:19], s40 offen sc1" % vr(8 + 4 * i, 4))
        a("s_add_u32 s40, s40, %d" % (4 * 2304))
    a("s_waitcnt vmcnt(0)")
    for i in range(1, 4):
        a("v_pk_add_f32 v[8:9], v[8:9], %s" % vr(8 + 4 * i, 2))
        a("v_pk_add_f32 v[10:11], v[10:11], %s" % vr(10 + 4 * i, 2))
    for k in range(4):
        a("v_mov_b32 v20, v%d" % (8 + k))
        a("v_permlane32_swap_b32 v20, v%d" % (8 + k))
        a("v_add_f32 v%d, v%d, v20" % (8 + k, 8 + k))
        a("v_mov_b32 v20, v%d" % (8 + k))
        a("v_permlane16_swap_b32 v20, v%d" % (8 + k))
        a("v_add_f32 v%d, v%d, v20" % (8 + k, 8 + k))
        bf16_round(a, 8 + k, 8 + k)
        a("v_mul_f32 v%d, s13, v%d" % (8 + k, 8 + k))
        bf16_round(a, 8 + k, 8 + k)
    a("v_mov_b32 v12, 1")
    a("ds_write_b128 v7, v[8:11]")
    a("ds_write_b32 v3, v12 offset:%d" % C_YRDY)
    a("s_cmp_eq_u32 s53, 0")
    a("s_cbranch_scc0 L_end")
    a("v_mov_b32 v4, %d" % L.WS_EPOCH)
    a("v_mov_b32 v5, s%d" % TAG)
    a("s_mov_b64 exec, 1")
    a("global_store_dword v4, v5, s[8:9]")
    a("s_endpgm")

    a.label("L_down")
    DW, DA = 20, 128
    a("v_lshrrev_b32 v2, 3, v0")
    a("v_and_b32 v10, 7, v0")
    a("v_mul_u32_u24 v16, 1152, v2")
    a("v_lshl_add_u32 v16, v10, 4, v16")
    a("s_mul_i32 s36, s2, 18")
    a("v_mul_u32_u24 v12, %d, v10" % (4608 * 16))
    a("v_add_u32 v11, s36, v2")
    a("v_lshl_add_u32 v17, v11, 4, v12")
    a("v_cmp_gt_u32 s[56:57], 7, v10")
    a("s_and_b32 s58, s56, 0xffff")
    a("s_mov_b32 s59, 0")
    a("s_mul_i32 s37, s2, %d" % (18 * 1152))
    a("v_and_b32 v1, 1, v0")
    a("v_lshlrev_b32 v1, 4, v1")
    sel_masks(a, 44, 11)
    a("v_lshrrev_b32 v11, 5, v0")
    a("v_bfe_u32 v12, v0, 3, 1")
    a("v_cmp_eq_u32 s[52:53], v11, v12")
    a("v_mul_u32_u24 v12, 2304, v12")
    a("v_bfe_u32 v11, v0, 4, 1")
    a("v_lshl_add_u32 v12, v11, 7, v12")
    a("v_lshl_add_u32 v12, v10, 2, v12")
    a("v_add_u32 v164, %d, v12" % HP)
    a("v_lshlrev_b32 v165, 2, v0")
    a("v_add_u32 v166, %d, v165" % HP)
    a("s_and_b32 s38, s2, 15")
    a("s_mul_i32 s39, s38, 2304")
    a("s_add_u32 s39, s39, %d" % L.WS_YP)
    a("v_add_u32 v165, s39, v165")
    a("s_lshl_b32 s38, s38, 7")
    a("s_add_u32 s38, s38, %d" % (L.WS_FLAG + F_Y * 128))
    srd_off(a, 16, 14, "s37", 18 * 1152)
    srd_off(a, 20, 8, L.WS_PA, 7 * 4608 * 16)
    def dloads():
        for t in range(0 if OPT["nodown"] else 3):
            a("s_movk_i32 s40, %d" % (9216 * t))
            for cg in range(9):
                a("buffer_load_dwordx4 %s, v16, s[16:19], s40 offen offset:%d %s" % (vr(DW + 4 * (9 * t + cg), 4), 128 * cg, "" if OPT["dtouch"] else "nt"))

    a("s_cmp_ge_u32 s2, 192")
    a("s_cbranch_scc1 L_dn_sp")
    for k in range(11):
        if k == OPT["dpos"]:
            dloads()
        a("s_barrier")
    if OPT["dpos"] >= 0:
        stage_spin(a, "L_dn_w2", 0, 3, 10, 2)
        a("s_branch L_dn_go")
    if OPT["dearly"]:
        lds_spin(a, "L_dn_e", 3, C_FI, 10, (8,), 0)
        dloads()
        stage_spin(a, "L_dn_w1", 0, 3, 10, 2)
        a("s_branch L_dn_go")
    a.label("L_dn_sp")
    a("s_setprio %d" % OPT["pr3"])
    stage_spin(a, "L_dn_w0", 0, 3, 10, 2)
    dloads()
    a.label("L_dn_go")
    stamp(a, 5)
    a("s_setprio %d" % OPT["pr1"])
    a("s_mov_b32 s60, 0x40000")
    a("v_mov_b32 v160, 0")
    a("v_mov_b32 v161, 0")
    a.label("L_dn_pa")
    a("buffer_load_dwordx3 v[4:6], v17, s[20:23], 0 offen sc1")
    a("buffer_load_dwordx3 v[8:10], v17, s[20:23], 0 offen offset:128 sc1")
    a("s_mov_b64 exec, 0xffff")
    a("buffer_load_dwordx3 v[160:162], v17, s[20:23], 0 offen offset:256 sc1")
    a("s_mov_b64 exec, -1")
    a("s_waitcnt vmcnt(0)")
    a("v_cmp_ne_u32 vcc, s%d, v6" % TAG)
    a("v_cmp_ne_u32 s[40:41], s%d, v10" % TAG)
    a("v_cmp_ne_u32 s[42:43], s%d, v162" % TAG)
    a("s_or_b64 vcc, vcc, s[40:41]")
    a("s_and_b64 vcc, vcc, s[56:57]")
    a("s_and_b64 s[42:43], s[42:43], s[58:59]")
    a("s_or_b64 vcc, vcc, s[42:43]")
    a("s_cmp_eq_u64 vcc, 0")
    a("s_cbranch_scc1 L_dn_pb")
    a("s_sleep 8")
    a("s_sub_u32 s60, s60, 1")
    a("s_cbranch_scc0 L_dn_pa")
    a.label("L_dn_pb")
    stamp(a, 8)
    a("v_mov_b32 v6, v8")
    a("v_mov_b32 v7, v9")
    a("v_mov_b32 v8, v160")
    a("v_mov_b32 v9, v161")
    sum8(a, (4, 5, 6, 7, 8, 9))
    for t in range(3):
        g, u = 4 + 2 * t, 5 + 2 * t
        bf16_round(a, g, g)
        bf16_round(a, u, u)
        sigmoid(a, 10, g)
        a("v_mul_f32 v%d, v%d, v10" % (g, g))
        bf16_round(a, g, g)
        a("v_mul_f32 v%d, v%d, v%d" % (g, g, u))
        a("v_cvt_pk_bf16_f32 v%d, v%d, v%d" % (g, g, g))
        a("v_and_b32 v%d, 0xffff, v%d" % (g, g))
        a("v_lshlrev_b32 v%d, v1, v%d" % (g, g))
    for t in range(3):
        selector(a, 12, 4 + 2 * t, 44)
        for cg in range(9):
            d = vr(DA + 4 * cg, 4)
            a("v_mfma_f32_16x16x32_bf16 %s, %s, v[12:15], %s" % (d, vr(DW + 4 * (9 * t + cg), 4), "0" if t == 0 else d))
    lds_spin(a, "L_dn_ax", 3, C_PA, 10, (1,), 1)
    a("s_mov_b64 exec, s[52:53]")
    for cg in range(9):
        for r in range(4):
            a("ds_write_b32 v164, v%d offset:%d" % (DA + 4 * cg + r, 256 * cg + 32 * r))
    a("s_mov_b64 exec, -1")
    for cg in range(9):
        a("ds_read2st64_b32 %s, v166 offset0:%d offset1:%d" % (vr(20 + 2 * cg, 2), cg, cg + 9))
    for cg in range(9):
        a("s_waitcnt lgkmcnt(%d)" % (8 - cg))
        a("v_add_f32 v%d, v%d, v%d" % (20 + 2 * cg, 20 + 2 * cg, 21 + 2 * cg))
        a("global_atomic_add_f32 v165, v%d, s[8:9] offset:%d" % (20 + 2 * cg, 256 * cg))
    a("v_mov_b32 v4, s38")
    a("v_mov_b32 v5, 1")
    a("s_waitcnt vmcnt(0)")
    stamp(a, 7)
    a("s_mov_b64 exec, 1")
    a("global_atomic_add v4, v5, s[8:9] sc1")
    stamp_end(a, 8, 1)


def kf(a):
    a.label(NAME)
    a("s_cmp_ge_u32 s2, 256")
    a("s_cbranch_scc1 L_end")
    stamp_init(a)
    stamp(a, 0)
    a("s_load_dwordx4 s[4:7], s[0:1], 0")
    a("s_load_dwordx2 s[8:9], s[0:1], 88")
    a("s_load_dwordx2 s[10:11], s[0:1], 72")
    a("s_load_dwordx2 s[14:15], s[0:1], 56")
    a("s_load_dwordx2 s[28:29], s[0:1], 16")
    a("v_lshrrev_b32 v1, 6, v0")
    a("v_and_b32 v0, 63, v0")
    a("v_readfirstlane_b32 s3, v1")
    a("s_and_b32 s30, s2, 3")
    a("s_bfe_u32 s31, s2, 0x10002")
    a("s_lshr_b32 s32, s2, 3")
    a("s_cmp_ge_u32 s32, 24")
    a("s_cbranch_scc1 L_sp")
    a("s_cmp_ge_u32 s3, 8")
    a("s_cbranch_scc1 L_help")
    gemm_phase(a)
    attention_phase(a)
    out_phase(a)
    late_and_slow(a)
    spare_phase(a)
    helpers(a)
    a.label("L_end")
    a("s_endpgm")
```

```python
from asmdsl import vr, sr
import layout as L
from common import *
from k2 import (KB, VB, QB, ONES, vK, vKt, vV, vStep, QM, QT, MSK, KF, VF, PP, SS, OO, T,
                k_reads, v_reads, qk, pv)

NAME = "gated_mix__sliding_block__moe_arch_mod__prompt_kernel"
SLOT = 34816
IMG = SLOT
WO = 66560
CTL = 149568
YB = 149696
HP = 150016
YT = 154624
XS = 156672
KF_LDS = 158208
KF_VGPR = 168
PART = 0
STG = 20480
XR, GR = 128, 136
vC = 154
TAG = 65
C_O, C_GO2, C_A, C_WO, C_PART, C_YRDY, C_B, C_1, C_GO1, C_C, C_PA, C_IDX, C_RSEL = 0, 4, 8, 12, 96, 32, 36, 40, 44, 48, 52, 56, 60
C_KMAX, C_KCNT, C_XS, C_GD, C_RED, C_RED2, C_FI = 64, 68, 72, 76, 80, 84, 88
F_Q, F_O, F_PA, F_Y = 0, 192, 448, 512


def lds_spin(a, name, addr_v, off, regs, conds, slp=1):
    n = len(conds)
    a("s_mov_b32 s60, 0x200000")
    a.label(name)
    a(("ds_read_b64 %s, v%d offset:%d" % (vr(regs, 2), addr_v, off)) if n == 2 else
      ("ds_read_b32 v%d, v%d offset:%d" % (regs, addr_v, off)))
    a("s_waitcnt lgkmcnt(0)")
    a("v_readfirstlane_b32 s61, v%d" % regs)
    if n == 2:
        a("v_readfirstlane_b32 s62, v%d" % (regs + 1))
        a("s_lshl_b32 s62, s62, 8")
        a("s_or_b32 s61, s61, s62")
        a("s_cmp_eq_u32 s61, %d" % (conds[0] | (conds[1] << 8)))
    else:
        a("s_cmp_eq_u32 s61, %d" % conds[0])
    a("s_cbranch_scc1 %s_d" % name)
    if slp:
        a("s_sleep %d" % slp)
    a("s_sub_u32 s60, s60, 1")
    a("s_cmp_lg_u32 s60, 0")
    a("s_cbranch_scc1 %s" % name)
    a.label(name + "_d")


def stage_spin(a, name, stage, vc=vC, T=T, slp=0):
    a("s_mov_b32 s60, 0x200000")
    a.label(name)
    a("ds_read_b32 v%d, v%d offset:%d" % (T, vc, C_A))
    a("s_waitcnt lgkmcnt(0)")
    a("v_readfirstlane_b32 s61, v%d" % T)
    a("s_bitcmp1_b32 s61, %d" % (8 * stage + 3))
    a("s_cbranch_scc1 %s_d" % name)
    if slp:
        a("s_sleep %d" % slp)
    a("s_sub_u32 s60, s60, 1")
    a("s_cmp_lg_u32 s60, 0")
    a("s_cbranch_scc1 %s" % name)
    a.label(name + "_d")


def landed(a, inc, vm):
    a("v_mov_b32 v%d, %s" % (T, hex(inc)))
    a("s_waitcnt vmcnt(%d)" % vm)
    a("s_mov_b64 exec, 1")
    a("ds_add_u32 v%d, v%d offset:%d" % (vC, T, C_A))
    a("s_mov_b64 exec, -1")


def poison(a):
    if OPT["nopois"]:
        a("s_nop 0")
        a("buffer_load_dword v155, v152, s[24:27], s59 offen")
        a("buffer_load_dword v155, v152, s[24:27], s59 offen")
        return
    for k in range(4):
        a("v_mov_b32 v%d, -1" % (120 + k))
    a("buffer_store_dwordx4 %s, v153, s[24:27], s58 offen sc1" % vr(120, 4))
    a("s_mov_b32 exec_hi, 0")
    a("buffer_store_dword v%d, v152, s[24:27], s59 offen sc1" % 120)
    a("s_mov_b32 exec_hi, -1")


def tail_touch(a):
    a("buffer_load_dword v155, v152, s[24:27], s59 offen")


def flag_poll(a, name, voff, vt, want, lanes, slp=1, width=1):
    a("s_mov_b64 exec, %s" % ("-1" if lanes == 64 else hex((1 << lanes) - 1)))
    a("s_mov_b32 s60, 0x40000")
    a.label(name)
    a("global_load_dword%s %s, v%d, s[8:9] sc1" % ("" if width == 1 else "x%d" % width, vr(vt, width), voff))
    a("s_waitcnt vmcnt(0)")
    a("v_cmp_eq_u32 vcc, %s, v%d" % (want, vt))
    a("s_cmp_eq_u64 vcc, exec")
    a("s_cbranch_scc1 %s_d" % name)
    if slp:
        a("s_sleep %d" % slp)
    a("s_sub_u32 s60, s60, 1")
    a("s_cmp_lg_u32 s60, 0")
    a("s_cbranch_scc1 %s" % name)
    a.label(name + "_d")
    a("s_mov_b64 exec, -1")


def lds_inc(a, vz, vt, off, rtn=False):
    a("v_mov_b32 v%d, 1" % vt)
    a("s_mov_b64 exec, 1")
    if rtn:
        a("ds_add_rtn_u32 v%d, v%d, v%d offset:%d" % (vt, vz, vt, off))
    else:
        a("ds_add_u32 v%d, v%d offset:%d" % (vz, vt, off))
    a("s_mov_b64 exec, -1")


def load_tag(a):
    a("s_mov_b32 s64, %d" % L.WS_EPOCH)
    a("s_load_dword s%d, s[8:9], s64" % TAG)


def make_tag(a):
    a("s_mul_i32 s%d, s%d, 0x9e3779b1" % (TAG, TAG))
    a("s_add_u32 s%d, s%d, 0x7f4a7c15" % (TAG, TAG))


def copy_scalars(a):
    a("s_mul_i32 s55, s34, %d" % (4 * L.PAIR_BYTES))
    a("s_mul_i32 s56, s35, 9216")
    a("s_add_u32 s55, s55, s56")
    a("s_lshl_b32 s56, s3, 10")
    a("s_add_u32 s55, s55, s56")
    for j in range(5):
        a("s_add_u32 s57, s3, %d" % (8 * j))
        a("s_mul_i32 s57, s57, 57")
        a("s_lshr_b32 s57, s57, 9")
        a("s_mul_i32 s57, s57, %d" % (L.PAIR_BYTES - 9216))
        a("s_add_u32 s57, s57, s55")
        a("s_add_u32 s%d, s57, %d" % (50 + j, 8192 * j))
    a("s_mul_i32 s58, s35, 12")
    a("s_add_u32 s58, s58, s34")
    a("s_lshl_b32 s58, s58, 7")
    a("s_add_u32 s58, s58, %d" % (L.WS_FLAG + F_Q * 128))


def decode2(a):
    a("s_and_b32 s30, s2, 3")
    a("s_bfe_u32 s33, s2, 0x10002")
    a("s_bfe_u32 s32, s2, 0x20003")
    a("s_lshl_b32 s31, s30, 2")
    a("s_add_u32 s31, s31, s32")
    a("s_lshl_b32 s32, s33, 3")
    a("s_lshr_b32 s34, s2, 5")
    a("s_add_u32 s32, s32, s34")
    a("s_lshr_b32 s33, s2, 3")
    a("s_mul_i32 s34, s33, 57")
    a("s_lshr_b32 s34, s34, 9")
    a("s_mul_i32 s53, s34, 9")
    a("s_sub_u32 s53, s33, s53")
    a("s_lshl_b32 s52, s34, 3")
    a("s_and_b32 s34, s2, 7")
    a("s_add_u32 s52, s52, s34")
    a("s_sub_u32 s33, s2, 216")
    a("s_mul_i32 s34, s33, 57")
    a("s_lshr_b32 s34, s34, 9")
    a("s_mul_i32 s35, s34, 9")
    a("s_sub_u32 s33, s33, s35")
    a("s_add_u32 s34, s34, 24")
    a("s_cmp_ge_u32 s2, 216")
    a("s_cselect_b32 s52, s34, s52")
    a("s_cselect_b32 s53, s33, s53")


def qpoll(a, vc, name, own, r=16):
    R = dict(a=r, b=r + 1, c=r + 2)
    a("v_add_u32 v%(a)d, 2, v0" % R)
    a("v_mul_u32_u24 v%(b)d, 43, v%(a)d" % R)
    a("v_lshrrev_b32 v%(b)d, 7, v%(b)d" % R)
    a("v_mul_u32_u24 v%(c)d, 3, v%(b)d" % R)
    a("v_sub_u32 v%(a)d, v%(a)d, v%(c)d" % R)
    a("s_sub_u32 s35, s32, 2")
    a("v_add_u32 v%(a)d, s35, v%(a)d" % R)
    a("v_max_i32 v%(a)d, 0, v%(a)d" % R)
    a("v_mul_u32_u24 v%(a)d, 12, v%(a)d" % R)
    a("v_lshl_add_u32 v%(a)d, v%(b)d, 2, v%(a)d" % R)
    a("v_add_u32 v%(a)d, s30, v%(a)d" % R)
    a("v_lshlrev_b32 v%(a)d, 7, v%(a)d" % R)
    a("v_add_u32 v%d, %d, v%d" % (r, L.WS_FLAG + F_Q * 128, r))
    if own:
        lds_spin(a, name + "w", vc, C_1, r + 2, (8,), 0)
    flag_poll(a, name, r, r + 1, "s%d" % TAG, 7, OPT["qslp"])
    lds_inc(a, vc, r + 2, C_GO1)


def code_touch(a):
    if not OPT["ctouch"]:
        return
    lab = a.newlabel("pc")
    a("s_getpc_b64 s[20:21]")
    a.label(lab)
    a("s_sub_u32 s20, s20, %s-%s" % (lab, NAME))
    a("s_subb_u32 s21, s21, 0")
    a("s_lshr_b32 s22, s2, 3")
    a("s_mul_i32 s22, s22, %d" % (12 * 128))
    a("v_lshlrev_b32 v20, 7, v0")
    a("v_add_u32 v20, s22, v20")
    a("v_min_u32 v20, L_end-%s, v20" % NAME)
    a("s_mov_b64 exec, 0xfff")
    a("global_load_dword v21, v20, s[20:21]")
    a("s_mov_b64 exec, -1")


def gemm_phase(a):
    a("s_mul_i32 s33, s32, 43")
    a("s_lshr_b32 s33, s33, 7")
    a("s_mul_i32 s34, s33, 3")
    a("s_sub_u32 s34, s32, s34")
    a("s_lshl_b32 s34, s34, 2")
    a("s_add_u32 s34, s34, s30")
    a("s_lshl_b32 s35, s31, 3")
    a("s_add_u32 s35, s35, s33")
    a("s_cmp_lt_u32 s3, 4")
    a("s_cbranch_scc1 L_comp")
    a("s_cmp_lt_u32 s3, 6")
    a("s_cbranch_scc0 L_ldw")
    a("s_lshr_b32 s41, s34, 2")
    a("s_mul_i32 s41, s41, 43")
    a("v_add_u32 v6, s41, v0")
    a("v_mul_u32_u24 v6, 1152, v6")
    a("v_and_b32 v7, 7, v0")
    a("s_lshl_b32 s41, s33, 3")
    a("v_add_u32 v7, s41, v7")
    a("v_mul_u32_u24 v7, 3456, v7")
    a("v_lshrrev_b32 v8, 3, v0")
    a("v_lshl_add_u32 v7, v8, 7, v7")
    a("s_cmp_eq_u32 s3, 4")
    a("s_cselect_b32 s42, 43, 24")
    a("s_cselect_b64 s[46:47], -1, 0")
    a("v_cndmask_b32 v6, v7, v6, s[46:47]")
    a("v_cmp_gt_u32 s[44:45], s42, v0")
    a("s_mul_i32 s39, s35, %d" % (128 * 1152))
    a("s_mul_i32 s46, s34, 288")
    a("s_and_b32 s46, s46, 0xffffff80")
    a("s_sub_u32 s47, %d, s46" % (576 * 3456))
    stamp(a, 11)
    a("s_waitcnt lgkmcnt(0)")
    stamp(a, 12)
    srd_off(a, 16, 4, "s39", 128 * 1152)
    srd_off(a, 20, 6, "s46", "s47")
    a("s_cmp_eq_u32 s3, 4")
    a("s_cselect_b32 s20, s16, s20")
    a("s_cselect_b32 s21, s17, s21")
    a("s_cselect_b32 s22, s18, s22")
    a("s_mov_b64 exec, s[44:45]")
    a("buffer_load_dword v20, v6, s[20:23], 0 offen %s" % OPT["t0p"])
    a("s_mov_b64 exec, -1")
    load_tag(a)
    a("v_lshrrev_b32 v1, 3, v0")
    a("v_mul_u32_u24 v1, 1152, v1")
    a("v_lshrrev_b32 v2, 4, v0")
    a("v_and_b32 v3, 7, v0")
    a("v_xor_b32 v3, v3, v2")
    a("v_lshl_add_u32 v4, v3, 4, v1")
    a("v_xor_b32 v3, 4, v3")
    a("v_lshl_add_u32 v5, v3, 4, v1")
    a("v_add_u32 v5, %d, v5" % (8 * 1152))
    a("s_sub_u32 s36, s3, 4")
    a("s_mul_i32 s37, s36, %d" % (64 * 1152))
    a("s_lshl_b32 s38, s36, 13")
    copy_scalars(a)
    stamp(a, 1)
    a("s_waitcnt vmcnt(0) lgkmcnt(0)")
    stamp(a, 2)

    def x_chunk(c):
        for i in range(8):
            a("s_add_u32 m0, s38, %d" % ((c % 4) * SLOT + i * 1024))
            a("s_add_u32 s40, s37, %d" % ((i >> 1) * 16 * 1152 + c * 128))
            a("buffer_load_dwordx4 v%d, s[16:19], s40 offen lds" % (4 + (i & 1)))

    def loader_loop(fn, n):
        LA = OPT["la"]
        a("s_barrier")
        stamp(a, 13)
        for c in range(LA):
            fn(c)
        stamp(a, 14)
        extra = 0
        for c in range(9):
            a("s_waitcnt vmcnt(%d)" % (n * min(LA - 1, 8 - c) + extra))
            a("s_barrier")
            if c + LA < 9:
                fn(c + LA)
            if c + LA == 8 and OPT["wt2"]:
                a("s_lshr_b32 s44, s2, 3")
                a("s_lshl_b32 s44, s44, 2")
                a("s_add_u32 s44, s44, s3")
                a("s_mul_i32 s44, s44, %d" % (54 * 128))
                a("s_sub_u32 s44, s44, %d" % (4 * 54 * 128))
                srd(a, 20, 28, 576 * 1152)
                a("v_lshlrev_b32 v21, 7, v0")
                a("buffer_load_dword v20, v21, s[20:23], s44 offen")
                extra = 1

    loader_loop(x_chunk, 8)
    a("s_branch L_copy")
    a.label("L_ldw")
    a("s_movk_i32 s41, 3641")
    for i in range(9):
        a("v_add_u32 v1, %d, v0" % (64 * i))
        a("v_mul_u32_u24 v2, s41, v1")
        a("v_lshrrev_b32 v2, 16, v2")
        a("v_mul_u32_u24 v3, 18, v2")
        a("v_sub_u32 v3, v1, v3")
        a("v_bfe_u32 v1, v2, 2, 2")
        a("v_lshlrev_b32 v1, 3, v1")
        a("v_lshrrev_b32 v13, 4, v2")
        a("v_lshl_add_u32 v1, v13, 2, v1")
        a("v_and_b32 v2, 3, v2")
        a("v_add_u32 v1, v1, v2")
        a("v_mul_u32_u24 v1, 3456, v1")
        a("v_lshl_add_u32 v%d, v3, 4, v1" % (4 + i))
        if i == 2:
            a("s_waitcnt lgkmcnt(0)")
            load_tag(a)
    a("s_sub_u32 s36, s3, 6")
    a("s_mul_i32 s37, s36, %d" % (32 * 3456))
    a("s_mul_i32 s38, s36, 9216")
    a("s_mul_i32 s39, s34, 288")
    a("s_sub_u32 s42, %d, s39" % (576 * 3456))
    copy_scalars(a)
    srd_off(a, 16, 6, "s39", "s42")
    a("s_waitcnt lgkmcnt(0)")

    def w_chunk(c):
        a("s_add_u32 s40, s37, %d" % (c * 64 * 3456))
        for i in range(9):
            a("s_add_u32 m0, s38, %d" % ((c % 4) * SLOT + 16384 + i * 1024))
            a("s_nop 0")
            a("buffer_load_dwordx4 v%d, s[16:19], s40 offen lds" % (4 + i))

    loader_loop(w_chunk, 9)
    a("s_branch L_copy")
    a.label("L_comp")
    ACC, XF, WF = 64, (136, 144), 24
    a("v_and_b32 v8, 15, v0")
    a("v_lshrrev_b32 v9, 4, v0")
    a("v_lshrrev_b32 v10, 1, v8")
    a("v_xor_b32 v10, v10, v9")
    a("s_lshl_b32 s36, s3, 12")
    a("v_lshlrev_b32 v2, 7, v8")
    a("v_lshl_add_u32 v2, v10, 4, v2")
    a("v_add_u32 v2, s36, v2")
    a("v_xor_b32 v3, 64, v2")
    a("v_add_u32 v4, %d, v2" % (2 * SLOT))
    a("v_add_u32 v5, %d, v3" % (2 * SLOT))
    a("v_lshrrev_b32 v10, 2, v0")
    a("v_mul_u32_u24 v6, 288, v10")
    a("v_and_b32 v10, 3, v0")
    a("v_lshl_add_u32 v6, v10, 3, v6")
    a("v_add_u32 v6, 16384, v6")
    a("v_add_u32 v7, %d, v6" % (2 * SLOT))
    a("s_waitcnt lgkmcnt(0)")
    load_tag(a)
    a("s_mov_b32 s36, 1.0")
    a("s_cmp_lt_u32 s34, 4")
    a("s_cselect_b32 s36, %s, s36" % f32(QSCALE))
    a("s_mov_b32 s37, s36")
    a("s_lshl_b32 s38, s3, 5")
    a("v_add_u32 v10, s38, v8")
    a("v_mul_u32_u24 v10, 72, v10")
    a("v_lshl_add_u32 v10, v9, 3, v10")
    a("v_add_u32 v10, %d, v10" % IMG)
    for ft in range(9):
        a("v_add_u32 v11, %d, v9" % (4 * ft))
        a("v_mul_u32_u24 v11, 57, v11")
        a("v_lshrrev_b32 v11, 9, v11")
        a("v_mul_u32_u24 v11, 9144, v11")
        a("v_add_u32 v%d, v11, v10" % (12 + ft))
    copy_scalars(a)
    a("s_waitcnt lgkmcnt(0)")

    def xreads(step):
        c, h2 = step >> 1, step & 1
        slot = c % 4
        return ["ds_read_b128 %s, v%d offset:%d" % (vr(XF[step & 1] + 4 * tt, 4), 2 + 2 * (slot >> 1) + h2,
                                                    (slot & 1) * SLOT + tt * 2048) for tt in range(2)]

    def wreads(step, ft):
        c, h2 = step >> 1, step & 1
        slot = c % 4
        return ["ds_read_b64_tr_b16 %s, v%d offset:%d" % (vr(WF + 4 * ft + 2 * sec, 2), 6 + (slot >> 1),
                                                          (slot & 1) * SLOT + h2 * 9216 + sec * 4608 + ft * 32)
                for sec in range(2)]

    def mfma(step, ft, tt):
        d = vr(ACC + 8 * ft + 4 * tt, 4)
        return "v_mfma_f32_16x16x32_bf16 %s, %s, %s, %s" % (
            d, vr(WF + 4 * ft, 4), vr(XF[step & 1] + 4 * tt, 4), "0" if step == 0 else d)

    def epi(k):
        ft, tt = k >> 1, k & 1
        b = ACC + 4 * k
        t = 152 + 2 * (k % 8)
        return ["v_pk_mul_f32 %s, %s, s[36:37]" % (vr(b, 2), vr(b, 2)),
                "v_pk_mul_f32 %s, %s, s[36:37]" % (vr(b + 2, 2), vr(b + 2, 2)),
                "v_cvt_pk_bf16_f32 v%d, v%d, v%d" % (t, b, b + 1),
                "v_cvt_pk_bf16_f32 v%d, v%d, v%d" % (t + 1, b + 2, b + 3),
                "ds_write_b64 v%d, %s offset:%d" % (12 + ft, vr(t, 2), 32 * ft + 1152 * tt)]

    a("s_barrier")
    a("s_barrier")
    stamp(a, 1)
    q = []

    def issue(tag, lst):
        for x in lst:
            a(x)
            q.append(tag)

    def need(tag):
        last = max(k for k, v in enumerate(q) if v == tag)
        a("s_waitcnt lgkmcnt(%d)" % min(15, len(q) - 1 - last))

    issue(("x", 0), xreads(0))
    for ft in range(9):
        issue(("w", 0, ft), wreads(0, ft))
    LAG = 3
    for step in range(18):
        if step & 1 and step < 17:
            a("s_barrier")
        for ft in range(9):
            need(("w", step, ft))
            a(mfma(step, ft, 0))
            if ft == 0 and step < 17:
                issue(("x", step + 1), xreads(step + 1))
            if step == 17 and 2 * ft >= LAG:
                e = epi(2 * ft - LAG)
                for x in e[:4]:
                    a(x)
                issue("e", e[4:])
            a(mfma(step, ft, 1))
            if step < 17:
                issue(("w", step + 1, ft), wreads(step + 1, ft))
            elif 2 * ft + 1 >= LAG:
                e = epi(2 * ft + 1 - LAG)
                for x in e[:4]:
                    a(x)
                issue("e", e[4:])
    for k in range(18 - LAG, 18):
        for x in epi(k):
            a(x)
    stamp(a, 2)
    a("s_waitcnt lgkmcnt(0)")
    a.label("L_copy")
    a("v_lshlrev_b32 v1, 4, v0")
    a("s_lshl_b32 s36, s3, 10")
    a("v_add_u32 v2, s36, v1")
    a("v_add_u32 v3, %d, v2" % (IMG + 4 * 8192))
    srd(a, 24, 8, L.QKV_BYTES)
    make_tag(a)
    a("s_barrier")
    for j in range(4):
        a("ds_read_b128 %s, v2 offset:%d" % (vr(4 + 4 * j, 4), IMG + j * 8192))
    a("s_cmp_lt_u32 s3, 4")
    a("s_cbranch_scc0 L_c4")
    a("ds_read_b128 v[20:23], v3")
    a("s_waitcnt lgkmcnt(0)")
    a("buffer_store_dwordx4 v[20:23], v1, s[24:27], s54 offen sc1")
    a.label("L_c4")
    for j in range(4):
        a("s_waitcnt lgkmcnt(%d)" % (3 - j))
        a("buffer_store_dwordx4 %s, v1, s[24:27], s%d offen sc1" % (vr(4 + 4 * j, 4), 50 + j))
    a("s_mov_b32 s63, s58")
    a("v_mov_b32 v%d, %d" % (vC, CTL))
    lds_inc(a, vC, 24, C_FI)
    stamp(a, 3)


def spare_phase(a):
    GW = 64
    a.label("L_sp")
    a("s_sub_u32 s36, s2, 192")
    a("s_cmp_ge_u32 s3, 8")
    a("s_cbranch_scc1 L_sp_ffn")
    a("s_cmp_ge_u32 s3, 4")
    a("s_cbranch_scc1 L_sp_hi")
    a("s_load_dwordx2 s[60:61], s[0:1], 32")
    a("s_load_dwordx2 s[62:63], s[0:1], 64")
    a("v_lshrrev_b32 v2, 3, v0")
    a("v_and_b32 v3, 7, v0")
    a("v_lshlrev_b32 v3, 4, v3")
    a("s_lshl_b32 s34, s36, 2")
    a("s_add_u32 s34, s34, s3")
    a("s_lshl_b32 s33, s34, 3")
    a("v_add_u32 v1, s33, v2")
    a("v_mul_u32_u24 v4, 1152, v1")
    a("v_add_u32 v4, v4, v3")
    a("s_mul_i32 s51, s34, %d" % (7 * 128))
    a("s_mul_i32 s52, s34, %d" % (21 * 128))
    a("v_lshlrev_b32 v7, 7, v0")
    a("s_waitcnt lgkmcnt(0)")
    load_tag(a)
    srd(a, 16, 6, 576 * 3456)
    srd(a, 20, 28, 576 * 1152)
    for i in range(9):
        a("global_load_dwordx4 %s, v4, s[4:5] offset:%d" % (vr(8 + 4 * i, 4), 128 * i))
        if i == 0:
            for j in range(9):
                a("global_load_dwordx4 %s, v3, s[60:61] offset:%d" % (vr(44 + 4 * j, 4), 128 * j))
                a("global_load_dwordx4 %s, v3, s[62:63] offset:%d" % (vr(80 + 4 * j, 4), 128 * j))
        else:
            a("s_add_u32 s53, s51, %d" % (1728 * 128 * i))
            a("s_mov_b64 exec, 0x7f")
            a("buffer_load_dword v124, v7, s[16:19], s53 offen")
            a("s_mov_b64 exec, -1")
    a("s_mov_b64 exec, 0x1fffff")
    a("buffer_load_dword v124, v7, s[20:23], s52 offen")
    a("s_mov_b64 exec, -1")
    a("v_mov_b32 v%d, %d" % (vC, CTL))
    a("s_waitcnt lgkmcnt(0)")
    make_tag(a)
    a("s_barrier")
    a("s_waitcnt vmcnt(2)")
    for i in range(36):
        p = 116 + (i & 3)
        a("v_dot2_f32_bf16 v%d, v%d, v%d, %s" % (p, 8 + i, 44 + i, "0" if i < 4 else "v%d" % p))
    a("s_nop 1")
    a("v_pk_add_f32 v[116:117], v[116:117], v[118:119]")
    a("v_add_f32 v5, v116, v117")
    sum8(a, (5,))
    bf16_round(a, 5, 5)
    a("v_ashrrev_i32 v7, 31, v5")
    a("v_or_b32 v7, 0x80000000, v7")
    a("v_xor_b32 v7, v7, v5")
    a("v_and_b32 v7, 0xffff0000, v7")
    a("v_sub_u32 v6, 0x7ff, v1")
    a("v_or_b32 v7, v7, v6")
    a("v_mov_b32 v5, 1")
    a("s_mov_b32 s54, 0x01010101")
    a("s_mov_b32 exec_lo, s54")
    a("s_mov_b32 exec_hi, s54")
    a("ds_max_u32 v%d, v7 offset:%d" % (vC, C_KMAX))
    a("s_mov_b64 exec, 1")
    a("ds_add_rtn_u32 v5, v%d, v5 offset:%d" % (vC, C_KCNT))
    a("ds_read_b32 v7, v%d offset:%d" % (vC, C_KMAX))
    a("s_lshl_b32 s53, s36, 3")
    a("s_add_u32 s53, s53, %d" % L.WS_KEYF)
    a("v_mov_b32 v4, s53")
    a("v_mov_b32 v6, s%d" % TAG)
    a("s_waitcnt lgkmcnt(0)")
    a("v_cmp_eq_u32 vcc, 3, v5")
    a("s_and_b64 exec, exec, vcc")
    a("s_cbranch_execz L_sp_nopub")
    a("global_store_dwordx2 v4, v[6:7], s[8:9] sc1")
    a.label("L_sp_nopub")
    a("s_mov_b64 exec, -1")
    stamp(a, 1)
    a("s_mov_b32 s55, 0x3f803f80")
    for i in range(36):
        x, w, p = 8 + i, 80 + i, 116 + (i & 3)
        t = 44 + 4 * (i & 3)
        a("v_lshlrev_b32 v%d, 16, v%d" % (t, x))
        a("v_and_b32 v%d, 0xffff0000, v%d" % (t + 1, x))
        a("v_lshlrev_b32 v%d, 16, v%d" % (t + 2, w))
        a("v_and_b32 v%d, 0xffff0000, v%d" % (t + 3, w))
        a("v_pk_mul_f32 %s, %s, %s" % (vr(t, 2), vr(t, 2), vr(t + 2, 2)))
        a("v_cvt_pk_bf16_f32 v%d, v%d, v%d" % (t, t, t + 1))
        a("v_dot2_f32_bf16 v%d, v%d, s55, %s" % (p, t, "0" if i < 4 else "v%d" % p))
    a("s_nop 1")
    a("v_pk_add_f32 v[116:117], v[116:117], v[118:119]")
    a("v_add_f32 v6, v116, v117")
    sum8(a, (6,))
    bf16_round(a, 6, 6)
    sigmoid(a, 6, 6)
    bf16_round(a, 6, 6)
    a("v_lshlrev_b32 v1, 2, v1")
    a("v_add_u32 v1, %d, v1" % L.WS_G)
    a("s_mov_b32 exec_lo, s54")
    a("s_mov_b32 exec_hi, s54")
    a("global_store_dword v1, v6, s[8:9] sc1")
    a("s_mov_b64 exec, -1")
    a("s_waitcnt vmcnt(0)")
    lds_inc(a, vC, 5, C_GD)
    if OPT["dtouch"]:
        srd(a, 16, 14, 4608 * 1152)
        a("s_mul_i32 s52, s34, %d" % (162 * 128))
        a("v_lshlrev_b32 v7, 7, v0")
        for k in range(3):
            a("buffer_load_dword v124, v7, s[16:19], s52 offen")
            a("s_add_u32 s52, s52, %d" % (54 * 128))
    a("s_mov_b32 s63, 0")
    stamp(a, 2)
    a("s_branch L_att")

    a.label("L_sp_hi")
    a("s_cmp_eq_u32 s3, 7")
    a("s_cbranch_scc0 L_sp_hi1")
    code_touch(a)
    a.label("L_sp_hi1")
    a("v_mov_b32 v%d, %d" % (vC, CTL))
    a("s_waitcnt lgkmcnt(0)")
    load_tag(a)
    a("s_mov_b32 s63, 0")
    a("s_waitcnt lgkmcnt(0)")
    make_tag(a)
    a("s_barrier")
    a("s_cmp_eq_u32 s3, 4")
    a("s_cbranch_scc1 L_sp_w4")
    a("s_cmp_eq_u32 s3, 5")
    a("s_cbranch_scc0 L_att")
    a("s_lshl_b32 s56, s36, 7")
    a("s_add_u32 s56, s56, %d" % (L.WS_FLAG + F_PA * 128))
    a("v_mov_b32 v9, s56")
    lds_spin(a, "L_sp_x5", vC, C_XS, 10, (1, 4), 4)
    a("ds_read_b64 v[14:15], v%d offset:%d" % (vC, C_IDX))
    a("v_mov_b32 v12, s%d" % TAG)
    a("s_waitcnt lgkmcnt(0)")
    a("v_mov_b32 v13, v14")
    a("v_mov_b32 v14, v15")
    a("s_mov_b64 exec, 1")
    a("global_store_dwordx3 v9, v[12:14], s[8:9] sc1")
    a("s_mov_b64 exec, -1")
    a("s_branch L_att")
    a.label("L_sp_w4")
    for k in range(4):
        a("v_mov_b32 v%d, 0" % (12 + k))
    a("s_cmp_lt_u32 s36, 36")
    a("s_cbranch_scc0 L_sp_nz")
    a("s_lshl_b32 s51, s36, 10")
    a("s_add_u32 s51, s51, %d" % L.WS_YP)
    a("v_lshlrev_b32 v4, 4, v0")
    a("v_add_u32 v4, s51, v4")
    a("global_store_dwordx4 v4, v[12:15], s[8:9] sc1")
    a("s_cmp_eq_u32 s36, 0")
    a("s_cbranch_scc0 L_sp_nz")
    a("v_lshlrev_b32 v4, 7, v0")
    a("v_add_u32 v4, %d, v4" % (L.WS_FLAG + F_Y * 128))
    a("global_store_dword v4, v12, s[8:9] sc1")
    a.label("L_sp_nz")
    a("v_lshlrev_b32 v8, 3, v0")
    a("v_add_u32 v8, %d, v8" % L.WS_KEYF)
    srd(a, 24, 4, 2048 * 1152)
    lds_spin(a, "L_sp_own", vC, C_KCNT, 10, (4,), 2)
    a("s_sleep %d" % OPT["slp0"])
    flag_poll(a, "L_sp_kp", 8, 10, "s%d" % TAG, 64, OPT["slp"], 2)
    a("v_lshlrev_b32 v8, 4, v0")
    stamp(a, 1)
    wave_umax(a, 11, 53)
    a("s_and_b32 s54, s53, 0x7ff")
    a("s_sub_u32 s54, 2047, s54")
    a("s_mul_i32 s55, s54, 1152")
    a("s_mov_b32 m0, %d" % XS)
    a("s_add_u32 s56, s55, 1024")
    a("buffer_load_dwordx4 v8, s[24:27], s55 offen lds")
    a("s_mov_b32 m0, %d" % (XS + 1024))
    a("s_mov_b64 exec, 0xff")
    a("buffer_load_dwordx4 v8, s[24:27], s56 offen lds")
    a("s_mov_b64 exec, -1")
    a("s_and_b32 s55, s53, 0xffff0000")
    a("s_xor_b32 s56, s55, 0x80000000")
    a("s_xor_b32 s57, s55, 0xffff0000")
    a("s_bitcmp1_b32 s55, 31")
    a("s_cselect_b32 s55, s56, s57")
    a("v_mov_b32 v12, s55")
    sigmoid(a, 13, 12)
    bf16_round(a, 13, 13)
    a("v_mov_b32 v12, s54")
    a("ds_write_b64 v%d, v[12:13] offset:%d" % (vC, C_IDX))
    a("v_mov_b32 v12, 1")
    a("s_waitcnt vmcnt(0)")
    a("ds_write_b32 v%d, v12 offset:%d" % (vC, C_XS))
    stamp(a, 2)
    a("s_branch L_att")

    a.label("L_sp_ffn")
    a("s_load_dwordx4 s[40:43], s[0:1], 40")
    a("v_mov_b32 v3, %d" % CTL)
    for k in range(4):
        a("v_mov_b32 v%d, 0" % (4 + k))
    a("v_lshlrev_b32 v1, 4, v0")
    a("v_add_u32 v2, v1, v3")
    a("s_mov_b64 exec, 0xff")
    a("ds_write_b128 v2, v[4:7]")
    a("s_mov_b64 exec, -1")
    a("v_lshlrev_b32 v2, 2, v0")
    a("v_add_u32 v2, %d, v2" % (XS + 1152))
    a("ds_write_b32 v2, v4")
    a("s_sub_u32 s59, s3, 8")
    a("s_mul_i32 s37, s36, 57")
    a("s_lshr_b32 s37, s37, 9")
    a("s_mul_i32 s38, s37, 9")
    a("s_sub_u32 s38, s36, s38")
    a("s_mul_i32 s49, s37, 84")
    a("s_mul_i32 s39, s49, 9216")
    a("s_lshl_b32 s48, s38, 10")
    a("s_add_u32 s39, s39, s48")
    a("s_sub_u32 s48, %d, s39" % (576 * 9216))
    a("s_min_i32 s48, s48, %d" % (83 * 9216 + 1024))
    a("s_max_i32 s48, s48, 0")
    a("v_lshrrev_b32 v160, 5, v0")
    a("v_mul_u32_u24 v160, 9216, v160")
    a("v_and_b32 v161, 31, v0")
    a("v_lshl_add_u32 v160, v161, 4, v160")
    a("s_mul_i32 s57, s59, 20480")
    a("s_add_u32 s57, s57, %d" % WO)
    a("s_mul_i32 s58, s59, %d" % (2 * 9216))
    a("s_waitcnt lgkmcnt(0)")
    load_tag(a)
    srd_off(a, 16, 40, "s39", "s48")
    srd_off(a, 20, 42, "s39", "s48")
    a("s_waitcnt lgkmcnt(0)")
    make_tag(a)
    a("s_barrier")
    for i in range(5):
        a("s_add_u32 s55, s58, %d" % (8 * (6 + i) * 9216))
        a("s_add_u32 s56, s55, 512")
        for k in range(4):
            a("s_add_u32 m0, s57, %d" % ((4 * i + k) * 1024))
            a("buffer_load_dwordx4 v160, s[%d:%d], s%d offen nt lds" % (16 + 4 * (k >> 1), 19 + 4 * (k >> 1), 55 + (k & 1)))
    for i in range(6):
        a("s_add_u32 s55, s58, %d" % (8 * i * 9216))
        for k in range(4):
            a("buffer_load_dwordx4 %s, v160, s[%d:%d], s55 offen offset:%d nt" % (
                vr(GW + 16 * i + 4 * k, 4), 16 + 4 * (k >> 1), 19 + 4 * (k >> 1), 512 * (k & 1)))
    a("s_lshl_b32 s55, s59, 1")
    a("s_add_u32 s55, s55, s49")
    a("v_lshrrev_b32 v51, 5, v0")
    a("v_add_u32 v51, s55, v51")
    a("v_lshlrev_b32 v51, 1, v51")
    a("v_add_u32 v51, %d, v51" % XS)
    a("v_and_b32 v2, 1, v0")
    a("v_lshlrev_b32 v2, 4, v2")
    a("v_lshrrev_b32 v4, 1, v0")
    a("v_xor_b32 v4, v4, v0")
    a("v_and_b32 v4, 8, v4")
    a("v_bfe_u32 v5, v0, 1, 2")
    a("v_or_b32 v4, v4, v5")
    for q in range(4):
        a("v_cmp_eq_u32 s[%d:%d], %d, v4" % (40 + 2 * q, 41 + 2 * q, q))
    a("v_bfe_u32 v4, v0, 3, 1")
    a("v_lshlrev_b32 v4, 9, v4")
    a("v_lshrrev_b32 v5, 4, v0")
    a("v_lshl_add_u32 v4, v5, 7, v4")
    a("v_and_b32 v5, 7, v0")
    a("v_lshl_add_u32 v4, v5, 2, v4")
    a("v_add_u32 v6, s57, v4")
    a("v_add_u32 v52, s57, v1")
    a("s_lshl_b32 s55, s59, 9")
    a("v_lshlrev_b32 v8, 3, v0")
    a("v_add_u32 v8, s55, v8")
    a("s_mul_i32 s52, s37, %d" % (4608 * 16))
    a("s_lshl_b32 s55, s38, 13")
    a("s_add_u32 s52, s52, s55")
    a("s_add_u32 s52, s52, %d" % L.WS_PA)
    a("v_lshlrev_b32 v9, 2, v8")
    a("v_add_u32 v9, s52, v9")
    a("v_add_u32 v8, %d, v8" % WO)
    stamp(a, 3)
    lds_spin(a, "L_sp_xs", 3, C_XS, 10, (1,), 2)
    a("s_setprio %d" % OPT["pr2"])
    for i in range(11):
        a("ds_read_u16 v%d, v51 offset:%d" % (53 + i, 16 * i))
    a("s_waitcnt vmcnt(24)")
    for k in range(4):
        a("ds_read_b128 %s, v52 offset:%d" % (vr(32 + 4 * k, 4), 1024 * k))
    a("s_waitcnt lgkmcnt(4)")
    for i in range(11):
        a("v_lshlrev_b32 v%d, v2, v%d" % (53 + i, 53 + i))
    first = True
    for i in range(5):
        selector(a, 12, 53 + 6 + i, 40)
        for k in range(4):
            d = vr(16 + 4 * k, 4)
            a("s_waitcnt lgkmcnt(%d)" % (3 if i < 4 else 3 - k))
            a("v_mfma_f32_16x16x32_bf16 %s, %s, v[12:15], %s" % (d, vr(32 + 4 * k, 4), "0" if first else d))
            if i < 4:
                a("ds_read_b128 %s, v52 offset:%d" % (vr(32 + 4 * k, 4), 1024 * (4 * (i + 1) + k)))
        first = False
    for i in range(6):
        selector(a, 12, 53 + i, 40)
        a("s_waitcnt vmcnt(%d)" % (4 * (5 - i)))
        for k in range(4):
            d = vr(16 + 4 * k, 4)
            a("v_mfma_f32_16x16x32_bf16 %s, %s, v[12:15], %s" % (d, vr(GW + 16 * i + 4 * k, 4), d))
    for k in range(4):
        for r in range(4):
            a("ds_write_b32 v6, v%d offset:%d" % (16 + 4 * k + r, 1024 * k + 32 * r))
    lds_inc(a, 3, 10, C_RED)
    lds_spin(a, "L_sp_rd", 3, C_RED, 10, (4,), 0)
    for p in range(4):
        a("ds_read_b64 %s, v8 offset:%d" % (vr(16 + 4 * p, 2), 20480 * p))
        a("ds_read_b64 %s, v8 offset:%d" % (vr(18 + 4 * p, 2), 20480 * p + 2048))
    a("v_mov_b32 v34, s%d" % TAG)
    a("v_mov_b32 v38, s%d" % TAG)
    a("s_waitcnt lgkmcnt(0)")
    lds_inc(a, 3, 10, C_RED2)
    for p in (2, 1):
        for h in range(2 * p):
            a("v_pk_add_f32 %s, %s, %s" % (vr(16 + 2 * h, 2), vr(16 + 2 * h, 2), vr(16 + 4 * p + 2 * h, 2)))
    a("v_mov_b32 v32, v16")
    a("v_mov_b32 v33, v18")
    a("v_mov_b32 v36, v17")
    a("v_mov_b32 v37, v19")
    a("s_cmp_eq_u32 s36, 63")
    a("s_cbranch_scc1 L_sp_nost")
    a("global_store_dwordx4 v9, v[32:35], s[8:9] sc1")
    a("global_store_dwordx4 v9, v[36:39], s[8:9] offset:16 sc1")
    a.label("L_sp_nost")
    stamp(a, 4)
    lds_spin(a, "L_sp_r2", 3, C_RED2, 10, (4,), 0)
    a("s_branch L_help2")


def attn_loop(a):
    for i in range(9):
        if i == 0:
            a("s_cmp_lt_u32 s43, 2")
            a("s_cbranch_scc0 L_hl")
            landed(a, 0x100, 4)
            a.label("L_hl")
        if i == 1:
            landed(a, 0x10000, 0)
        if i in (1, 2):
            a("s_cmp_eq_u32 s43, %d" % (2 - i))
            a("s_cbranch_scc0 L_hb%d_d" % i)
            stage_spin(a, "L_hb%d" % i, 1)
        if 3 <= i <= 6:
            a("s_cmp_eq_u32 s43, %d" % (6 - i))
            a("s_cbranch_scc0 L_hc%d_d" % i)
            stage_spin(a, "L_hc%d" % i, 2)
        a.label("L_it%d" % i)
        S, P = SS[i & 1], PP[i & 1]
        ex = ["v_exp_f32 v%d, v%d" % (S + r, S + r) for r in range(16)]
        cv = ["v_cvt_pk_bf16_f32 v%d, v%d, v%d" % (P + q, S + 2 * q, S + 2 * q + 1) for q in range(8)]
        if i == 0:
            mk = ["v_bfi_b32 v%d, v%d, 0, v%d" % (P + q, MSK + q, P + q) for q in range(8)]
        elif i == 8:
            mk = ["v_and_b32 v%d, v%d, v%d" % (P + q, MSK + q, P + q) for q in range(8)]
        else:
            mk = []
        m1 = qk(i + 1) if i < 8 else []
        m2 = pv(i - 1, i == 1) if i > 0 else []
        a("s_waitcnt lgkmcnt(%d)" % (4 if 0 < i < 8 else 0))
        seq = m1[:1] + ex[0:4] + m1[1:] + (k_reads(i + 2) if i + 2 <= 8 else []) + ex[4:8] + cv[0:2] + m2[:1] + \
            ex[8:12] + cv[2:4] + m2[1:]
        if i + 1 <= 8:
            seq += ["v_add_u32 v%d, v%d, v%d" % (vV, vV, vStep)] + v_reads(i + 1)
        seq += ex[12:16] + cv[4:8] + mk
        for x in seq:
            a(x)
    a("s_waitcnt lgkmcnt(0)")
    for x in pv(8, False):
        a(x)


def attention_phase(a):
    a.label("L_att")
    decode2(a)
    a("s_mul_i32 s33, s31, %d" % L.PAIR_BYTES)
    a("s_mul_i32 s34, s32, 9216")
    a("s_add_u32 s33, s33, s34")
    a("v_mov_b32 v%d, %d" % (vC, CTL))
    KS, VS = 16 * L.PAIR_BYTES - 18432, 32 * L.PAIR_BYTES - 18432
    grp = [(QB, 0), (KB, KS), (VB, VS), (KB + 9216, KS + 9216), (VB + 9216, VS + 9216), (KB + 18432, KS + 18432), (VB + 18432, VS + 18432)]
    a("s_lshl_b32 s34, s3, 10")
    for j in range(8):
        lo, hi = (8 * j) // 9, min(8 * j + 7, 62) // 9
        l0, g0 = grp[lo][0] + (8 * j - 9 * lo) * 1024, grp[lo][1] + (8 * j - 9 * lo) * 1024
        l1, g1 = grp[hi][0] + (8 * j - 9 * hi) * 1024, grp[hi][1] + (8 * j - 9 * hi) * 1024
        if j == 7:
            a("s_min_u32 s34, s34, %d" % (6 * 1024))
        if lo == hi:
            a("s_add_u32 s%d, s34, %d" % (16 + j, l0))
            a("s_add_u32 s%d, s33, %d" % (44 + j, g0 - l0 & 0xffffffff))
        else:
            a("s_mov_b32 s35, %d" % l0)
            a("s_mov_b32 s36, %d" % (g0 - l0 & 0xffffffff))
            a("s_cmp_ge_u32 s3, %d" % (9 * hi - 8 * j))
            a("s_cselect_b32 s35, %d, s35" % (l1 & 0xffffffff))
            a("s_cselect_b32 s36, %d, s36" % (g1 - l1 & 0xffffffff))
            a("s_add_u32 s%d, s34, s35" % (16 + j))
            a("s_add_u32 s%d, s33, s36" % (44 + j))
        a("s_add_u32 s%d, s%d, s%d" % (44 + j, 44 + j, 16 + j))
    a("v_mov_b32 v10, s63")
    a("v_mov_b32 v11, s%d" % TAG)
    a("s_waitcnt vmcnt(0)")
    lds_inc(a, vC, 9, C_1, rtn=True)
    a("s_cmp_lg_u32 s63, 0")
    a("s_cselect_b32 s35, 7, 99")
    a("s_waitcnt lgkmcnt(0)")
    a("v_readfirstlane_b32 s36, v9")
    a("s_cmp_eq_u32 s36, s35")
    a("s_cbranch_scc0 L_nofl1")
    a("s_mov_b64 exec, 1")
    a("global_store_dword v10, v11, s[8:9] sc1")
    a("s_mov_b64 exec, -1")
    a.label("L_nofl1")
    stamp(a, 4)
    a("s_and_b32 s42, s3, 1")
    a("s_lshr_b32 s43, s3, 1")
    a("s_mul_i32 s35, s43, 2304")
    a("s_mul_i32 s36, s42, 40")
    a("v_and_b32 v%d, 31, v0" % T)
    a("v_lshrrev_b32 v%d, 5, v0" % (T + 1))
    a("v_mul_u32_u24 v%d, 72, v%d" % (vKt, T))
    a("v_add_u32 v%d, s35, v%d" % (vKt, vKt))
    a("v_lshl_add_u32 v%d, v%d, 4, v%d" % (vK, T + 1, vKt))
    a("v_add_u32 v%d, s36, v%d" % (vK, vK))
    a("v_add_u32 v%d, 32, v%d" % (vKt, vKt))
    a("v_bfe_u32 v%d, v0, 2, 2" % (T + 2))
    a("v_lshl_add_u32 v%d, v%d, 2, v%d" % (T + 2, T + 1, T + 2))
    a("v_mul_u32_u24 v%d, 72, v%d" % (T + 2, T + 2))
    a("s_add_u32 s37, s35, %d" % VB)
    a("v_add_u32 v%d, s37, v%d" % (T + 2, T + 2))
    a("v_and_b32 v%d, 3, v0" % (T + 3))
    a("v_lshlrev_b32 v%d, 3, v%d" % (T + 4, T + 3))
    a("v_add_u32 v%d, s36, v%d" % (T + 4, T + 4))
    a("v_and_b32 v%d, 16, v0" % (T + 5))
    a("v_cmp_eq_u32 s[38:39], 0, v%d" % (T + 5))
    a("v_cndmask_b32 v%d, 32, v%d, s[38:39]" % (T + 4, T + 4))
    a("v_add_u32 v%d, v%d, v%d" % (vV, T + 2, T + 4))
    a("v_and_b32 v%d, 19, v0" % (T + 5))
    a("v_cmp_lt_u32 s[38:39], 16, v%d" % (T + 5))
    a("v_mov_b32 v%d, %d" % (T + 6, ONES))
    a("v_cndmask_b32 v%d, v%d, v%d, s[38:39]" % (vV, vV, T + 6))
    a("v_mov_b32 v%d, 2304" % (T + 6))
    a("v_cndmask_b32 v%d, v%d, 0, s[38:39]" % (vStep, T + 6))
    a("v_lshlrev_b32 v%d, 2, v%d" % (T + 2, T + 1))
    a("v_sub_u32 v%d, v%d, v%d" % (T + 2, T, T + 2))
    a("v_mov_b32 v%d, 0xffff" % (T + 3))
    for q in range(8):
        kl = 8 * (q >> 1) + 2 * (q & 1)
        a("v_cmp_le_i32 s[38:39], %d, v%d" % (kl, T + 2))
        a("v_cmp_le_i32 s[40:41], %d, v%d" % (kl + 1, T + 2))
        a("v_cndmask_b32 v%d, 0, v%d, s[38:39]" % (MSK + q, T + 3))
        a("v_cndmask_b32 v%d, v%d, -1, s[40:41]" % (MSK + q, MSK + q))
    a("s_lshl_b32 s41, s32, 2")
    a("s_add_u32 s41, s41, s43")
    a("s_sub_i32 s41, 8, s41")
    a("s_lshl_b32 s35, s32, 3")
    a("s_lshl_b32 s36, s43, 1")
    a("s_add_u32 s35, s35, s36")
    a("s_mul_i32 s35, s35, 18432")
    a("s_lshl_b32 s58, s31, 10")
    a("s_lshl_b32 s36, s42, 9")
    a("s_add_u32 s58, s58, s36")
    a("s_add_u32 s58, s58, s35")
    a("s_lshr_b32 s59, s31, 1")
    a("s_lshl_b32 s59, s59, 8")
    a("s_and_b32 s36, s31, 1")
    a("s_lshl_b32 s36, s36, 3")
    a("s_add_u32 s59, s59, s36")
    a("s_lshl_b32 s36, s42, 2")
    a("s_add_u32 s59, s59, s36")
    a("s_add_u32 s59, s59, s35")
    a("s_add_u32 s59, s59, 16384")
    a("v_bfe_u32 v152, v0, 4, 1")
    a("v_mul_u32_u24 v152, 18432, v152")
    a("v_and_b32 v153, 15, v0")
    a("v_lshl_add_u32 v152, v153, 4, v152")
    a("v_lshrrev_b32 v153, 5, v0")
    a("v_lshl_add_u32 v153, v153, 8, v152")
    a("v_cmp_gt_u32 vcc, 32, v0")
    a("s_cmp_eq_u32 s42, 0")
    a("s_cselect_b64 s[54:55], vcc, 0")
    a("s_cselect_b64 s[56:57], 0, vcc")
    a("v_and_b32 v%d, 3, v0" % (T + 2))
    a("v_mul_u32_u24 v%d, 576, v%d" % (T + 2, T + 2))
    a("v_mov_b32 v%d, 0x3f803f80" % (T + 4))
    a("v_mov_b32 v%d, v%d" % (T + 5, T + 4))
    a("v_lshlrev_b32 v%d, 4, v0" % (T + 3))
    srd(a, 36, 8, L.QKV_BYTES)
    srd_off(a, 24, 8, L.WS_O, 128 * 18432)
    a("s_lshr_b32 s35, s2, 6")
    a("s_lshl_b32 s35, s35, 4")
    a("s_add_u32 s35, s35, s3")
    a("s_cmp_eq_u32 s35, %d" % (3 * 16 + 6))
    a("s_cbranch_scc0 L_nq2")
    lds_spin(a, "L_sp_x6", vC, C_XS, T + 8, (1,), 8)
    qpoll(a, vC, "L_qp2", False, T + 8)
    a.label("L_nq2")
    lds_spin(a, "L_go1", vC, C_1, T, (8, 1), OPT["g1s"])
    stamp(a, 5)
    for j in range(8):
        if j == 6:
            a("ds_write_b64 v%d, %s offset:%d" % (T + 2, vr(T + 4, 2), ONES))
            landed(a, 1, 2)
            poison(a)
        a("s_mov_b32 m0, s%d" % (16 + j))
        a("s_nop 0")
        a("buffer_load_dwordx4 v%d, s[36:39], s%d offen %s lds" % (T + 3, 44 + j, OPT["kvl"]))
    a("s_cmp_lt_u32 s32, 2")
    a("s_cbranch_scc1 L_late")
    a("s_cmp_lt_u32 s43, 2")
    a("s_cbranch_scc1 L_sA")
    landed(a, 0x100, 4)
    stage_spin(a, "L_sB", 1)
    stage_spin(a, "L_sA", 0)
    stamp(a, 6)
    for x in q_reads() + k_reads(0) + k_reads(1) + v_reads(0):
        a(x)
    a("s_waitcnt lgkmcnt(7)")
    a("v_cndmask_b32 v%d, 0, v%d, s[54:55]" % (QT, QT))
    a("v_cndmask_b32 v%d, 0, v%d, s[56:57]" % (QT + 1, QT + 1))
    for x in qk(0):
        a(x)
    attn_loop(a)
    a.label("L_check")
    stamp(a, 7)
    a("s_mov_b32 s46, %s" % f32(2.0 ** 60))
    a("s_mov_b32 s47, %s" % f32(2.0 ** -60))
    a("s_mov_b32 s48, 0x7f800000")
    a("s_nop 7")
    a("s_nop 0")
    a("v_rcp_f32 v%d, v%d" % (T, OO + 12))
    a("v_cmp_gt_f32 s[50:51], s46, v%d" % (OO + 12))
    a("v_cmp_lt_f32 vcc, s47, v%d" % (OO + 12))
    for k in range(6):
        a("v_add_f32 v%d, abs(v%d), abs(v%d)" % (T + 2 + k, OO + 2 * k, OO + 2 * k + 1))
    a("s_and_b64 s[50:51], s[50:51], vcc")
    a("v_pk_add_f32 %s, %s, %s" % (vr(T + 2, 2), vr(T + 2, 2), vr(T + 4, 2)))
    a("v_pk_add_f32 %s, %s, %s" % (vr(T + 2, 2), vr(T + 2, 2), vr(T + 6, 2)))
    a("v_add_f32 v%d, v%d, v%d" % (T + 2, T + 2, T + 3))
    a("v_cmp_gt_f32 vcc, s48, v%d" % (T + 2))
    a("s_and_b64 s[50:51], s[50:51], vcc")
    a("s_cmp_eq_u64 s[50:51], -1")
    a("s_cbranch_scc0 L_slow")
    a.label("L_fin")
    a("s_cmp_eq_u32 s42, 0")
    a("s_cbranch_scc1 L_fa")
    a("v_mov_b32 v%d, v%d" % (OO + 8, OO + 10))
    a("v_mov_b32 v%d, v%d" % (OO + 9, OO + 11))
    a.label("L_fa")
    for k in range(0, 10, 2):
        a("v_pk_mul_f32 %s, %s, %s op_sel_hi:[1,0]" % (vr(OO + k, 2), vr(OO + k, 2), vr(T, 2)))
    for q in range(5):
        a("v_cvt_pk_bf16_f32 v%d, v%d, v%d" % (T + 4 + q, OO + 2 * q, OO + 2 * q + 1))
    a("buffer_store_dwordx4 %s, v153, s[24:27], s58 offen sc1" % vr(T + 4, 4))
    a("s_mov_b32 exec_hi, 0")
    a("buffer_store_dword v%d, v152, s[24:27], s59 offen sc1" % (T + 8))
    a("s_mov_b32 exec_hi, -1")


def q_reads():
    return ["ds_read_b64 %s, v%d offset:%d" % (vr(QM, 2), vK, QB),
            "ds_read_b64 %s, v%d offset:%d" % (vr(QM + 2, 2), vK, QB + 8),
            "ds_read_b64 %s, v%d offset:%d" % (vr(QT, 2), vKt, QB)]


def out_phase(a):
    A0, WFR, OF, ACC = 4, (20, 36, 100), 64, (52, 56, 60, 116)
    a("s_mov_b32 s49, s3")
    a("s_cmp_ge_u32 s52, 26")
    a("s_cbranch_scc1 L_end")
    a.label("L_out")
    a("s_cmp_ge_u32 s49, 5")
    a("s_cselect_b32 s40, 1, 0")
    a("s_mul_i32 s54, s40, 5")
    a("s_sub_u32 s54, s49, s54")
    a("s_mul_i32 s55, s52, 5")
    a("s_add_u32 s55, s55, s54")
    a("v_lshrrev_b32 v10, 2, v0")
    a("v_bfe_u32 v11, v0, 3, 2")
    a("v_lshlrev_b32 v11, 1, v11")
    a("v_bfe_u32 v12, v0, 1, 1")
    a("v_xor_b32 v11, v11, v12")
    a("v_and_b32 v12, 1, v0")
    a("v_lshlrev_b32 v12, 3, v12")
    a("v_lshl_add_u32 v12, v10, 7, v12")
    a("v_lshl_add_u32 v12, v11, 4, v12")
    a("s_mul_i32 s41, s40, %d" % (9 * 4096))
    a("s_add_u32 s41, s41, %d" % WO)
    for t in range(4):
        a("v_xor_b32 v%d, %d, v12" % (A0 + t, 32 * t))
        a("v_add_u32 v%d, s41, v%d" % (A0 + t, A0 + t))
    a("s_mul_i32 s41, s55, 18432")
    a("s_mul_i32 s44, s40, 9216")
    a("s_add_u32 s41, s41, s44")
    a("s_add_u32 s44, s41, 4096")
    a("s_add_u32 s45, s41, 8192")
    a("v_lshlrev_b32 v1, 4, v0")
    a("s_cmp_lt_u32 s3, 8")
    a("s_cbranch_scc0 L_noinc")
    a("s_waitcnt vmcnt(0)")
    stamp(a, 8)
    lds_inc(a, vC, 13, C_O)
    a.label("L_noinc")
    a("s_mul_i32 s56, s55, %d" % (16 * 1152))
    a("s_lshl_b32 s57, s53, 7")
    a("s_add_u32 s56, s56, s57")
    a("s_add_u32 s58, s56, %d" % (8 * 1152))
    a("s_lshl_b32 s57, s55, 6")
    a("v_lshrrev_b32 v140, 3, v0")
    a("v_and_b32 v141, 7, v0")
    a("v_mul_u32_u24 v142, 1152, v140")
    a("v_lshl_add_u32 v142, v141, 4, v142")
    a("s_cmp_eq_u32 s40, 0")
    a("s_cbranch_scc0 L_noxg")
    srd(a, 20, 4, 2048 * 1152)
    srd_off(a, 16, 8, L.WS_G, 8192)
    a("buffer_load_dwordx4 %s, v142, s[20:23], s56 offen" % vr(XR, 4))
    a("buffer_load_dwordx4 %s, v142, s[20:23], s58 offen" % vr(XR + 4, 4))
    lds_spin(a, "L_pa", vC, C_PA, 10, (1,))
    a("ds_read_b32 v10, v%d offset:%d" % (vC, C_IDX))
    a("v_lshlrev_b32 v3, 2, v140")
    a("buffer_load_dword v%d, v3, s[16:19], s57 offen sc1" % GR)
    a("buffer_load_dword v%d, v3, s[16:19], s57 offen offset:32 sc1" % (GR + 2))
    a("s_mul_i32 s46, s54, 2304")
    a("s_add_u32 s46, s46, %d" % STG)
    a("v_and_b32 v143, 15, v0")
    a("v_mul_u32_u24 v143, 144, v143")
    a("v_lshrrev_b32 v144, 4, v0")
    a("v_lshlrev_b32 v144, 3, v144")
    a("v_add3_u32 v143, v143, v144, s46")
    a("v_mul_u32_u24 v144, 144, v140")
    a("v_lshl_add_u32 v144, v141, 4, v144")
    a("v_add_u32 v144, s46, v144")
    a("s_waitcnt vmcnt(0) lgkmcnt(0)")
    a("v_readfirstlane_b32 s12, v10")
    srd(a, 20, 10, 2048 * 1152)
    for j in range(2):
        a("v_sub_f32 v%d, 1.0, v%d" % (GR + 2 * j + 1, GR + 2 * j))
        bf16_round(a, GR + 2 * j + 1, GR + 2 * j + 1)

    def omx():
        for j in range(2):
            for q in range(4):
                xv = XR + 4 * j + q
                d = 146 + 8 * j + 2 * q if j == 0 else (156 + 2 * q)
                a("v_lshlrev_b32 v%d, 16, v%d" % (d, xv))
                a("v_and_b32 v%d, 0xffff0000, v%d" % (d + 1, xv))
                a("v_pk_mul_f32 %s, %s, %s op_sel:[0,1] op_sel_hi:[1,1]" % (vr(d, 2), vr(d, 2), vr(GR + 2 * j, 2)))

    omx()
    a.label("L_noxg")
    a("s_lshl_b32 s46, s54, 12")
    a("v_add_u32 v2, s46, v1")
    a("s_lshl_b32 s46, s54, 2")
    a("v_add_u32 v3, s46, v%d" % vC)

    def reads(sl):
        st = WFR[sl % 3]
        return ["ds_read_b64_tr_b16 %s, v%d offset:%d" % (vr(st + 4 * t + 2 * sec, 2), A0 + t, (32 * sl + 16 * sec) * 128)
                for t in range(4) for sec in range(2)]

    lds_spin(a, "L_wo", vC, C_WO, 10, (2,))
    for x in reads(0) + reads(1):
        a(x)
    lds_spin(a, "L_go2", vC, C_O, 10, (8, 1), 0)
    stamp(a, 9)
    LAO = OPT["lao"]

    def oload(s):
        a("buffer_load_dwordx4 %s, v1, s[24:27], s%d offen offset:%d sc1" % (vr(OF + 4 * s, 4), (41, 44, 45)[s // 4], 1024 * (s % 4)))

    def ocheck(sl):
        b = OF + 4 * sl
        if sl < 7:
            a("v_cmp_eq_u32 vcc, -1, v%d" % b)
        else:
            a("v_max3_u32 v10, v%d, v%d, v%d" % (b, b + 1, b + 2))
            a("v_max_u32 v10, v10, v%d" % (b + 3))
            a("v_cmp_eq_u32 vcc, -1, v10")
        a("s_nop 1")

    def oretry():
        for sl in range(9):
            a.label("L_or%d" % sl)
            a("s_sub_u32 s60, s60, 1")
            a("s_cbranch_scc1 L_ok%d" % sl)
            a("s_waitcnt vmcnt(0)")
            for s in range(sl, min(sl + LAO, 9)):
                oload(s)
            a("s_waitcnt vmcnt(%d)" % min(LAO - 1, 8 - sl))
            a("s_branch L_oc%d" % sl)

    RETRY.append(oretry)
    a("s_mov_b32 s60, 0x8000")
    for s in range(LAO):
        oload(s)
    for sl in range(9):
        rd = reads(sl + 2) if sl < 7 else []
        a("s_waitcnt vmcnt(%d) lgkmcnt(%d)" % (min(LAO - 1, 8 - sl), 8 if sl < 8 else 0))
        a.label("L_oc%d" % sl)
        ocheck(sl)
        a("s_cbranch_vccnz L_or%d" % sl)
        a.label("L_ok%d" % sl)
        for t in range(4):
            d = vr(ACC[t], 4)
            a("v_mfma_f32_16x16x32_bf16 %s, %s, %s, %s" % (d, vr(WFR[sl % 3] + 4 * t, 4), vr(OF + 4 * sl, 4), "0" if sl == 0 else d))
            if t == 0 and sl + LAO < 9:
                oload(sl + LAO)
            for x in rd[2 * t:2 * t + 2]:
                a(x)
    stamp(a, 10)
    a("s_cmp_eq_u32 s40, 0")
    a("s_cbranch_scc1 L_k0")
    for t in range(4):
        a("ds_write_b128 v2, %s offset:%d" % (vr(ACC[t], 4), PART + 1024 * t))
    a("v_mov_b32 v10, 1")
    a("ds_write_b32 v3, v10 offset:%d" % C_PART)
    stamp_end(a, OPT["stw"], 0)
    stamp_end(a, 10, 2)
    a("s_endpgm")
    a.label("L_k0")
    a("s_lshr_b32 s46, s12, 4")
    a("s_cmp_eq_u32 s46, s55")
    a("s_cbranch_scc0 L_noy")
    lds_spin(a, "L_yw", vC, C_YRDY, 10, (1,))
    a("v_lshlrev_b32 v10, 5, v141")
    a("v_add_u32 v10, %d, v10" % YB)
    a("ds_read_b128 v[12:15], v10")
    a("ds_read_b128 v[16:19], v10 offset:16")
    a("s_and_b32 s46, s12, 15")
    a("s_waitcnt lgkmcnt(0)")
    for j in range(2):
        a("v_add_u32 v10, %d, v140" % (8 * j))
        a("v_cmp_eq_u32 s[48:49], s46, v10")
        for q in range(4):
            xv = XR + 4 * j + q
            a("v_lshlrev_b32 v10, 16, v%d" % xv)
            a("v_and_b32 v11, 0xffff0000, v%d" % xv)
            a("v_add_f32 v10, v10, v%d" % (12 + 2 * q))
            a("v_add_f32 v11, v11, v%d" % (13 + 2 * q))
            a("v_cvt_pk_bf16_f32 v10, v10, v11")
            a("v_cndmask_b32 v%d, v%d, v10, s[48:49]" % (xv, xv))
    omx()
    a.label("L_noy")
    lds_spin(a, "L_pw", 3, C_PART, 10, (1,), 0)
    stamp(a, 11)
    for t in range(4):
        a("ds_read_b128 %s, v2 offset:%d" % (vr(20 + 4 * t, 4), PART + 1024 * t))
    for t in range(4):
        a("s_waitcnt lgkmcnt(3)")
        b = ACC[t]
        a("v_pk_add_f32 %s, %s, %s" % (vr(b, 2), vr(b, 2), vr(20 + 4 * t, 2)))
        a("v_pk_add_f32 %s, %s, %s" % (vr(b + 2, 2), vr(b + 2, 2), vr(22 + 4 * t, 2)))
        a("v_cvt_pk_bf16_f32 v%d, v%d, v%d" % (40 + 2 * t, b, b + 1))
        a("v_cvt_pk_bf16_f32 v%d, v%d, v%d" % (41 + 2 * t, b + 2, b + 3))
        a("ds_write_b64 v143, %s offset:%d" % (vr(40 + 2 * t, 2), 32 * t))
    for j in range(2):
        a("ds_read_b128 %s, v144 offset:%d" % (vr(20 + 4 * j, 4), 8 * 144 * j))
    for j in range(2):
        a("s_waitcnt lgkmcnt(%d)" % (1 - j))
        for q in range(4):
            av = 20 + 4 * j + q
            d = 146 + 2 * q if j == 0 else 156 + 2 * q
            a("v_lshlrev_b32 v10, 16, v%d" % av)
            a("v_and_b32 v11, 0xffff0000, v%d" % av)
            a("v_pk_fma_f32 %s, v[10:11], %s, %s op_sel_hi:[1,0,1]" % (vr(d, 2), vr(GR + 2 * j, 2), vr(d, 2)))
            a("v_cvt_pk_bf16_f32 v%d, v%d, v%d" % (32 + 4 * j + q, d, d + 1))
        a("buffer_store_dwordx4 %s, v142, s[20:23], s%d offen %s" % (vr(32 + 4 * j, 4), 56 + 2 * j, OPT["ost"]))
    if OPT["stamp"]:
        stamp(a, 12)
        a("s_waitcnt vmcnt(0)")
        stamp(a, 13)
        stamp_end(a, OPT["stw"], 0)
    a("s_endpgm")


RETRY = []


def late_and_slow(a):
    RETRY[0]()
    a.label("L_late")
    a("s_mul_i32 s50, s41, 2304")
    a("v_add_u32 v%d, s50, v%d" % (T + 8, vK))
    a("v_add_u32 v%d, s50, v%d" % (T + 9, vKt))
    a("v_mul_u32_u24 v%d, s41, v%d" % (T + 2, vStep))
    a("v_add_u32 v%d, v%d, v%d" % (vV, vV, T + 2))
    for r in list(range(OO, OO + 16)) + list(range(VF[0], VF[0] + 32)):
        a("v_mov_b32 v%d, 0" % r)
    landed(a, 0x10100, 0)
    stage_spin(a, "L_lt", 2)
    a("s_mov_b32 s43, 9")
    for x in q_reads():
        a(x)
    a("s_bitcmp1_b32 s41, 0")
    a("s_cbranch_scc1 L_late1")
    for par in range(2):
        if par:
            a.label("L_late1")
        for x in k_reads(par, T + 8, T + 9, 0):
            a(x)
        for x in k_reads(par + 1, T + 8, T + 9, 0):
            a(x.replace("offset:8", "offset:2312").replace("offset:0", "offset:2304"))
        for x in v_reads(par):
            a(x)
        a("s_waitcnt lgkmcnt(7)")
        a("v_cndmask_b32 v%d, 0, v%d, s[54:55]" % (QT, QT))
        a("v_cndmask_b32 v%d, 0, v%d, s[56:57]" % (QT + 1, QT + 1))
        for x in qk(par):
            a(x)
        a("s_nop 7")
        a("s_nop 3")
        for i0 in range(2 - par, 9, 2):
            a("s_cmp_eq_u32 s41, %d" % i0)
            a("s_cbranch_scc1 L_it%d" % i0)
        a("s_branch L_it%d" % (8 - par))

    a.label("L_slow")
    vKs, vKts, vM, vD0, vNeg = T + 8, T + 9, T + 10, T + 11, T + 12
    a("v_and_b32 v%d, 31, v0" % T)
    a("v_lshrrev_b32 v%d, 5, v0" % (T + 1))
    a("v_lshlrev_b32 v%d, 2, v%d" % (vD0, T + 1))
    a("v_sub_u32 v%d, v%d, v%d" % (vD0, vD0, T))
    a("v_mov_b32 v%d, 0xff800000" % vNeg)
    a("v_mov_b32 v%d, v%d" % (vM, vNeg))
    a("s_max_i32 s50, s41, 0")
    a("s_sub_u32 s51, 8, s50")
    a("v_mul_u32_u24 v%d, s51, v%d" % (T, vStep))
    a("v_sub_u32 v%d, v%d, v%d" % (vV, vV, T))
    a("s_mul_i32 s51, s50, 2304")
    for r in range(16):
        a("v_mov_b32 v%d, 0" % (OO + r))
    for ps in range(2):
        lab = "L_sp%d" % ps
        a("v_add_u32 v%d, s51, v%d" % (vKs, vK))
        a("v_add_u32 v%d, s51, v%d" % (vKts, vKt))
        a("s_mov_b32 s46, s50")
        a.label(lab)
        for x in k_reads(0, vKs, vKts):
            a(x)
        if ps == 1:
            for x in v_reads(0):
                a(x)
        a("s_mov_b32 s47, -31")
        a("s_mov_b32 s48, 62")
        a("s_cmp_eq_u32 s46, 0")
        a("s_cselect_b32 s47, 1, s47")
        a("s_cselect_b32 s48, 30, s48")
        a("s_cmp_eq_u32 s46, 8")
        a("s_cselect_b32 s48, 31, s48")
        a("s_waitcnt lgkmcnt(0)")
        for x in qk(0):
            a(x)
        a("v_subrev_u32 v%d, s47, v%d" % (T, vD0))
        for r in range(16):
            a("v_add_u32 v%d, %d, v%d" % (T + 1, 8 * (r >> 2) + (r & 3), T))
            a("v_cmp_ge_u32 vcc, s48, v%d" % (T + 1))
            a("v_cndmask_b32 v%d, v%d, v%d, vcc" % (SS[0] + r, vNeg, SS[0] + r))
            if ps == 0:
                a("v_max_f32 v%d, v%d, v%d" % (vM, vM, SS[0] + r))
            else:
                a("v_sub_f32 v%d, v%d, v%d" % (SS[0] + r, SS[0] + r, vM))
                a("v_exp_f32 v%d, v%d" % (SS[0] + r, SS[0] + r))
        if ps == 1:
            for q in range(8):
                a("v_cvt_pk_bf16_f32 v%d, v%d, v%d" % (PP[0] + q, SS[0] + 2 * q, SS[0] + 2 * q + 1))
            for x in pv(0, False):
                a(x)
            a("v_add_u32 v%d, v%d, v%d" % (vV, vV, vStep))
        a("v_add_u32 v%d, 2304, v%d" % (vKs, vKs))
        a("v_add_u32 v%d, 2304, v%d" % (vKts, vKts))
        a("s_add_u32 s46, s46, 1")
        a("s_cmp_lt_u32 s46, 9")
        a("s_nop 7")
        a("s_nop 7")
        a("s_cbranch_scc1 %s" % lab)
        if ps == 0:
            a("v_mov_b32 v%d, v%d" % (T, vM))
            a("v_permlane32_swap_b32 v%d, v%d" % (T, vM))
            a("v_max_f32 v%d, v%d, v%d" % (vM, vM, T))
    a("v_rcp_f32 v%d, v%d" % (T, OO + 12))
    a("s_nop 1")
    a("s_branch L_fin")


def helpers(a):
    a.label("L_help")
    a("s_cmp_eq_u32 s3, 9")
    a("s_cbranch_scc0 L_help1")
    code_touch(a)
    a.label("L_help1")
    a("v_mov_b32 v3, %d" % CTL)
    for k in range(4):
        a("v_mov_b32 v%d, 0" % (4 + k))
    a("v_lshlrev_b32 v1, 4, v0")
    a("v_add_u32 v2, v1, v3")
    a("s_mov_b64 exec, 0xff")
    a("ds_write_b128 v2, v[4:7]")
    a("s_mov_b64 exec, -1")
    a("s_waitcnt lgkmcnt(0)")
    load_tag(a)
    a("s_barrier")
    a("s_barrier")
    a("s_waitcnt lgkmcnt(0)")
    make_tag(a)
    a.label("L_help2")
    decode2(a)
    a("s_cmp_eq_u32 s3, 8")
    a("s_cbranch_scc1 L_down")
    a("v_lshrrev_b32 v1, 5, v0")
    a("v_bfe_u32 v2, v0, 3, 2")
    a("v_lshrrev_b32 v10, 4, v0")
    a("v_lshlrev_b32 v10, 1, v10")
    a("v_and_b32 v11, 7, v0")
    a("v_xor_b32 v10, v10, v11")
    a("v_lshl_add_u32 v4, v1, 2, v2")
    a("v_mul_u32_u24 v4, 1152, v4")
    a("v_lshl_add_u32 v4, v10, 4, v4")
    a("v_mul_u32_u24 v5, 72, v1")
    a("v_add_u32 v5, v5, v2")
    a("v_mul_u32_u24 v5, 1152, v5")
    a("v_lshl_add_u32 v5, v10, 4, v5")
    a("s_sub_u32 s36, s3, 9")
    a("s_mul_i32 s37, s36, %d" % (20 * 1152))
    a("s_mul_i32 s43, s36, %d" % (144 * 1152))
    a("s_lshl_b32 s38, s36, 10")
    a("s_add_u32 s38, s38, %d" % WO)
    a("s_lshl_b32 s39, s53, 7")
    a("s_sub_u32 s42, %d, s39" % (576 * 1152))
    srd_off(a, 16, 28, "s39", "s42")
    srd_off(a, 24, 8, L.WS_O, 128 * 18432)
    a("v_mov_b32 v%d, %d" % (vC, CTL))
    a("s_setprio %d" % OPT["pr3"])
    a("s_cmp_ge_u32 s2, 192")
    a("s_cbranch_scc1 L_wo_go")
    for k in range(9):
        a("s_barrier")
    a.label("L_wo_go")
    a("s_cmp_eq_u32 s3, 11")
    a("s_cbranch_scc1 L_ctl")
    a("s_cmp_ge_u32 s52, 26")
    a("s_cbranch_scc1 L_end")
    stage_spin(a, "L_wo_w", 0, 3, 10, 2)
    stamp(a, 5)
    for m in range(36):
        st, sec = m >> 1, m & 1
        a("s_add_u32 m0, s38, %d" % (2048 * m))
        if st < 16:
            a("s_add_u32 s40, s37, %d" % ((36 * st + 8 * sec) * 1152))
            a("buffer_load_dwordx4 v4, s[16:19], s40 offen lds")
        else:
            a("s_add_u32 s40, s43, %d" % ((288 * (st - 16) + 36 * sec + 16) * 1152))
            a("buffer_load_dwordx4 v5, s[16:19], s40 offen lds")
    a("s_waitcnt vmcnt(0)")
    stamp(a, 6)
    lds_inc(a, 3, 4, C_WO)
    a("s_setprio 0")
    a("s_sub_u32 s49, s3, 1")
    a("s_branch L_out")
    a.label("L_ctl")
    a("v_lshlrev_b32 v8, 7, v0")
    a("v_add_u32 v9, %d, v8" % (L.WS_FLAG + F_PA * 128))
    a("s_mul_i32 s46, s52, 5")
    a("s_lshr_b32 s46, s46, 3")
    a("s_min_u32 s46, s46, 14")
    a("s_lshl_b32 s46, s46, 11")
    a("s_add_u32 s46, s46, %d" % (L.WS_FLAG + F_O * 128))
    a("v_add_u32 v8, s46, v8")
    a("s_lshl_b32 s46, s32, 4")
    a("s_add_u32 s46, s46, s31")
    a("s_lshl_b32 s46, s46, 7")
    a("s_add_u32 s46, s46, %d" % (L.WS_FLAG + F_O * 128))
    a("v_mov_b32 v14, s46")
    a("v_mov_b32 v15, s%d" % TAG)
    a("s_cmp_ge_u32 s2, 192")
    a("s_cbranch_scc1 L_ct_0")
    qpoll(a, 3, "L_qp1", True)
    a.label("L_ct_0")
    stage_spin(a, "L_ct_a", 0, 3, 10, 2)
    flag_poll(a, "L_pap", 9, 4, "s%d" % TAG, 64, 8, 3)
    a("v_mov_b32 v10, v5")
    a("v_mov_b32 v11, v6")
    a("v_mov_b32 v4, 1")
    a("ds_write_b64 v3, v[10:11] offset:%d" % C_IDX)
    a("ds_write_b32 v3, v4 offset:%d" % C_PA)
    stamp(a, 5)
    stage_spin(a, "L_ct_p", 2, 3, 10, 1)
    a("s_mov_b64 exec, 1")
    a("global_store_dword v14, v15, s[8:9] sc1")
    a("s_mov_b64 exec, -1")
    stamp(a, 6)
    a("s_sleep %d" % OPT["slp3"])
    flag_poll(a, "L_op", 8, 12, "s%d" % TAG, 32, 2)
    lds_inc(a, 3, 10, C_GO2)
    stamp(a, 7)
    stamp_end(a, 11 if OPT["st11"] else 99, 3)
    a("ds_read_b64 v[10:11], v3 offset:%d" % C_IDX)
    a("s_waitcnt lgkmcnt(0)")
    a("v_readfirstlane_b32 s12, v10")
    a("v_readfirstlane_b32 s13, v11")
    a("s_mul_i32 s46, s52, 80")
    a("s_sub_u32 s46, s12, s46")
    a("s_cmp_lt_u32 s46, 80")
    a("s_cbranch_scc0 L_end")
    a("v_lshlrev_b32 v4, 7, v0")
    a("v_add_u32 v4, %d, v4" % (L.WS_FLAG + F_Y * 128))
    srd_off(a, 16, 8, L.WS_YP, 16 * 2304)
    a("v_lshrrev_b32 v6, 4, v0")
    a("v_mul_u32_u24 v6, 2304, v6")
    a("v_and_b32 v7, 15, v0")
    a("v_lshlrev_b32 v7, 4, v7")
    a("v_add_u32 v6, v6, v7")
    a("v_add_u32 v7, %d, v7" % YB)
    a("s_lshl_b32 s40, s53, 8")
    flag_poll(a, "L_yp", 4, 5, "16", 16, 2)
    for i in range(4):
        a("buffer_load_dwordx4 %s, v6, s[16:19], s40 offen sc1" % vr(8 + 4 * i, 4))
        a("s_add_u32 s40, s40, %d" % (4 * 2304))
    a("s_waitcnt vmcnt(0)")
    for i in range(1, 4):
        a("v_pk_add_f32 v[8:9], v[8:9], %s" % vr(8 + 4 * i, 2))
        a("v_pk_add_f32 v[10:11], v[10:11], %s" % vr(10 + 4 * i, 2))
    for k in range(4):
        a("v_mov_b32 v20, v%d" % (8 + k))
        a("v_permlane32_swap_b32 v20, v%d" % (8 + k))
        a("v_add_f32 v%d, v%d, v20" % (8 + k, 8 + k))
        a("v_mov_b32 v20, v%d" % (8 + k))
        a("v_permlane16_swap_b32 v20, v%d" % (8 + k))
        a("v_add_f32 v%d, v%d, v20" % (8 + k, 8 + k))
        bf16_round(a, 8 + k, 8 + k)
        a("v_mul_f32 v%d, s13, v%d" % (8 + k, 8 + k))
        bf16_round(a, 8 + k, 8 + k)
    a("v_mov_b32 v12, 1")
    a("ds_write_b128 v7, v[8:11]")
    a("ds_write_b32 v3, v12 offset:%d" % C_YRDY)
    a("s_cmp_eq_u32 s53, 0")
    a("s_cbranch_scc0 L_end")
    a("v_mov_b32 v4, %d" % L.WS_EPOCH)
    a("v_mov_b32 v5, s%d" % TAG)
    a("s_mov_b64 exec, 1")
    a("global_store_dword v4, v5, s[8:9]")
    a("s_endpgm")

    a.label("L_down")
    DW, DA = 20, 128
    a("v_lshrrev_b32 v2, 3, v0")
    a("v_and_b32 v10, 7, v0")
    a("v_mul_u32_u24 v16, 1152, v2")
    a("v_lshl_add_u32 v16, v10, 4, v16")
    a("s_mul_i32 s36, s2, 18")
    a("v_mul_u32_u24 v12, %d, v10" % (4608 * 16))
    a("v_add_u32 v11, s36, v2")
    a("v_lshl_add_u32 v17, v11, 4, v12")
    a("v_cmp_gt_u32 s[56:57], 7, v10")
    a("s_and_b32 s58, s56, 0xffff")
    a("s_mov_b32 s59, 0")
    a("s_mul_i32 s37, s2, %d" % (18 * 1152))
    a("v_and_b32 v1, 1, v0")
    a("v_lshlrev_b32 v1, 4, v1")
    sel_masks(a, 44, 11)
    a("v_lshrrev_b32 v11, 5, v0")
    a("v_bfe_u32 v12, v0, 3, 1")
    a("v_cmp_eq_u32 s[52:53], v11, v12")
    a("v_mul_u32_u24 v12, 2304, v12")
    a("v_bfe_u32 v11, v0, 4, 1")
    a("v_lshl_add_u32 v12, v11, 7, v12")
    a("v_lshl_add_u32 v12, v10, 2, v12")
    a("v_add_u32 v164, %d, v12" % HP)
    a("v_lshlrev_b32 v165, 2, v0")
    a("v_add_u32 v166, %d, v165" % HP)
    a("s_and_b32 s38, s2, 15")
    a("s_mul_i32 s39, s38, 2304")
    a("s_add_u32 s39, s39, %d" % L.WS_YP)
    a("v_add_u32 v165, s39, v165")
    a("s_lshl_b32 s38, s38, 7")
    a("s_add_u32 s38, s38, %d" % (L.WS_FLAG + F_Y * 128))
    srd_off(a, 16, 14, "s37", 18 * 1152)
    srd_off(a, 20, 8, L.WS_PA, 7 * 4608 * 16)
    def dloads():
        for t in range(0 if OPT["nodown"] else 3):
            a("s_movk_i32 s40, %d" % (9216 * t))
            for cg in range(9):
                a("buffer_load_dwordx4 %s, v16, s[16:19], s40 offen offset:%d %s" % (vr(DW + 4 * (9 * t + cg), 4), 128 * cg, "" if OPT["dtouch"] else "nt"))

    a("s_cmp_ge_u32 s2, 192")
    a("s_cbranch_scc1 L_dn_sp")
    for k in range(2, 11):
        if k == OPT["dpos"]:
            dloads()
        a("s_barrier")
    if OPT["dpos"] >= 0:
        if OPT["w8e"]:
            lds_spin(a, "L_dn_w2", 3, C_1, 10, (8,), 2)
        else:
            stage_spin(a, "L_dn_w2", 0, 3, 10, 2)
        a("s_branch L_dn_go")
    if OPT["dearly"]:
        lds_spin(a, "L_dn_e", 3, C_FI, 10, (8,), 0)
        dloads()
        stage_spin(a, "L_dn_w1", 0, 3, 10, 2)
        a("s_branch L_dn_go")
    a.label("L_dn_sp")
    a("s_setprio %d" % OPT["pr3"])
    stage_spin(a, "L_dn_w0", 0, 3, 10, 2)
    dloads()
    a.label("L_dn_go")
    stamp(a, 5)
    a("s_setprio %d" % OPT["pr1"])
    a("s_mov_b32 s60, 0x40000")
    a("v_mov_b32 v160, 0")
    a("v_mov_b32 v161, 0")
    a.label("L_dn_pa")
    a("buffer_load_dwordx3 v[4:6], v17, s[20:23], 0 offen sc1")
    a("buffer_load_dwordx3 v[8:10], v17, s[20:23], 0 offen offset:128 sc1")
    a("s_mov_b64 exec, 0xffff")
    a("buffer_load_dwordx3 v[160:162], v17, s[20:23], 0 offen offset:256 sc1")
    a("s_mov_b64 exec, -1")
    a("s_waitcnt vmcnt(0)")
    a("v_cmp_ne_u32 vcc, s%d, v6" % TAG)
    a("v_cmp_ne_u32 s[40:41], s%d, v10" % TAG)
    a("v_cmp_ne_u32 s[42:43], s%d, v162" % TAG)
    a("s_or_b64 vcc, vcc, s[40:41]")
    a("s_and_b64 vcc, vcc, s[56:57]")
    a("s_and_b64 s[42:43], s[42:43], s[58:59]")
    a("s_or_b64 vcc, vcc, s[42:43]")
    a("s_cmp_eq_u64 vcc, 0")
    a("s_cbranch_scc1 L_dn_pb")
    a("s_sleep 8")
    a("s_sub_u32 s60, s60, 1")
    a("s_cbranch_scc0 L_dn_pa")
    a.label("L_dn_pb")
    stamp(a, 8)
    a("v_mov_b32 v6, v8")
    a("v_mov_b32 v7, v9")
    a("v_mov_b32 v8, v160")
    a("v_mov_b32 v9, v161")
    sum8(a, (4, 5, 6, 7, 8, 9))
    for t in range(3):
        g, u = 4 + 2 * t, 5 + 2 * t
        bf16_round(a, g, g)
        bf16_round(a, u, u)
        sigmoid(a, 10, g)
        a("v_mul_f32 v%d, v%d, v10" % (g, g))
        bf16_round(a, g, g)
        a("v_mul_f32 v%d, v%d, v%d" % (g, g, u))
        a("v_cvt_pk_bf16_f32 v%d, v%d, v%d" % (g, g, g))
        a("v_and_b32 v%d, 0xffff, v%d" % (g, g))
        a("v_lshlrev_b32 v%d, v1, v%d" % (g, g))
    for t in range(3):
        selector(a, 12, 4 + 2 * t, 44)
        for cg in range(9):
            d = vr(DA + 4 * cg, 4)
            a("v_mfma_f32_16x16x32_bf16 %s, %s, v[12:15], %s" % (d, vr(DW + 4 * (9 * t + cg), 4), "0" if t == 0 else d))
    a("s_mov_b64 exec, s[52:53]")
    for cg in range(9):
        for r in range(4):
            a("ds_write_b32 v164, v%d offset:%d" % (DA + 4 * cg + r, 256 * cg + 32 * r))
    a("s_mov_b64 exec, -1")
    for cg in range(9):
        a("ds_read2st64_b32 %s, v166 offset0:%d offset1:%d" % (vr(20 + 2 * cg, 2), cg, cg + 9))
    stage_spin(a, "L_dn_at", 0, 3, 10, 2)
    lds_spin(a, "L_dn_ax", 3, C_PA, 10, (1,), 1)
    for cg in range(9):
        a("v_add_f32 v%d, v%d, v%d" % (20 + 2 * cg, 20 + 2 * cg, 21 + 2 * cg))
        a("global_atomic_add_f32 v165, v%d, s[8:9] offset:%d" % (20 + 2 * cg, 256 * cg))
    a("v_mov_b32 v4, s38")
    a("v_mov_b32 v5, 1")
    a("s_waitcnt vmcnt(0)")
    stamp(a, 7)
    a("s_mov_b64 exec, 1")
    a("global_atomic_add v4, v5, s[8:9] sc1")
    stamp_end(a, 8, 1)


def kf(a):
    a.label(NAME)
    a("s_cmp_ge_u32 s2, 256")
    a("s_cbranch_scc1 L_end")
    stamp_init(a)
    stamp(a, 0)
    a("s_load_dwordx4 s[4:7], s[0:1], 0")
    a("s_load_dwordx2 s[8:9], s[0:1], 88")
    a("s_load_dwordx2 s[10:11], s[0:1], 72")
    a("s_load_dwordx2 s[14:15], s[0:1], 56")
    a("s_load_dwordx2 s[28:29], s[0:1], 16")
    a("v_lshrrev_b32 v1, 6, v0")
    a("v_and_b32 v0, 63, v0")
    a("v_readfirstlane_b32 s3, v1")
    a("s_and_b32 s30, s2, 3")
    a("s_bfe_u32 s31, s2, 0x10002")
    a("s_lshr_b32 s32, s2, 3")
    a("s_cmp_ge_u32 s32, 24")
    a("s_cbranch_scc1 L_sp")
    a("s_cmp_ge_u32 s3, 8")
    a("s_cbranch_scc1 L_help")
    gemm_phase(a)
    attention_phase(a)
    out_phase(a)
    late_and_slow(a)
    spare_phase(a)
    helpers(a)
    a.label("L_end")
    a("s_endpgm")
```

```python
import sys, os
from asmdsl import Asm, fix_hazards
from common import OPT
for x in sys.argv[2:]:
    k, v = x.split("=")
    OPT[k] = v if isinstance(OPT[k], str) else int(v)
from kf import kf, KF_LDS, KF_VGPR, NAME
HEAD = open(os.path.join(os.path.dirname(os.path.abspath(__file__)), "../cdna_kernels/gated_mix__sliding_block__moe_arch_mod__prompt.s.ref")).read()
hdr = [l for l in HEAD.split("\n") if l.startswith(";   offset") or l.startswith("; Kernarg")]
if OPT["spin"]:
    out = hdr + ["; @launch kernel=%s grid=(256,1,1) block=(768,1,1) lds=%d" % (NAME, KF_LDS), "; @launch kernel=spin_kernel grid=(1,1,1) block=(64,1,1) lds=0"]
else:
    out = hdr + ["; @launch grid=(256,1,1) block=(768,1,1) lds=%d" % KF_LDS]
out += ["; " + l for l in open(os.path.join(os.path.dirname(os.path.abspath(__file__)), "header.txt")).read().rstrip("\n").split("\n")]
out += ['.amdgcn_target "amdgcn-amd-amdhsa--gfx950"', ".text"]
a = Asm()
kf(a)
lines, nn = fix_hazards(a.lines)
sys.stderr.write("%d lines, %d nops inserted\n" % (len(lines), nn))
out += [".globl %s" % NAME, ".p2align 8", ".type %s,@function" % NAME] + lines
if OPT["spin"]:
    import layout as L
    ka, ja, kb, jb, wg = [int(t) for t in OPT["spin"].split(",")]
    out += [".globl spin_kernel", ".p2align 8", ".type spin_kernel,@function", "spin_kernel:"] + """s_cmp_ge_u32 s2, 1
s_cbranch_scc1 L_spin_end
s_memrealtime s[10:11]
s_load_dwordx2 s[8:9], s[0:1], 88
s_mov_b32 s4, %d
s_mov_b32 s5, %d
s_waitcnt lgkmcnt(0)
s_load_dword s6, s[8:9], s4
s_load_dword s7, s[8:9], s5
s_waitcnt lgkmcnt(0)
%s
s_sub_u32 s6, s7, s6
s_min_u32 s6, s6, 3000
s_mul_i32 s6, s6, 10
L_spin_l:
s_memrealtime s[12:13]
s_waitcnt lgkmcnt(0)
s_sub_u32 s12, s12, s10
s_cmp_lt_u32 s12, s6
s_cbranch_scc1 L_spin_l
L_spin_end:
s_endpgm
.section .rodata,"a"
.p2align 6
.amdhsa_kernel spin_kernel
  .amdhsa_next_free_vgpr 8
  .amdhsa_next_free_sgpr 102
  .amdhsa_accum_offset 8
  .amdhsa_group_segment_fixed_size 0
  .amdhsa_kernarg_size 96
  .amdhsa_user_sgpr_count 2
  .amdhsa_user_sgpr_kernarg_segment_ptr 1
  .amdhsa_system_sgpr_workgroup_id_x 1
.end_amdhsa_kernel""".__mod__((L.WS_STAMP + ka * 65536 + wg * 128 + 8 * ja, L.WS_STAMP + max(kb, 0) * 65536 + wg * 128 + 8 * jb, "s_mov_b32 s7, s10" if kb < 0 else "s_nop 0")).split("\n")
out.append(""".section .rodata,"a"
.p2align 6
.amdhsa_kernel %s
  .amdhsa_next_free_vgpr %d
  .amdhsa_next_free_sgpr 102
  .amdhsa_accum_offset %d
  .amdhsa_group_segment_fixed_size 0
  .amdhsa_kernarg_size 96
  .amdhsa_user_sgpr_count 2
  .amdhsa_user_sgpr_kernarg_segment_ptr 1
  .amdhsa_system_sgpr_workgroup_id_x 1
.end_amdhsa_kernel
""" % (NAME, KF_VGPR, KF_VGPR))
open(sys.argv[1], "w").write("\n".join(out) + "\n")
```

```python
from asmdsl import vr, sr
import layout as L
from common import *
from k2 import (KB, VB, QB, ONES, vK, vKt, vV, vStep, QM, QT, MSK, KF, VF, PP, SS, OO, T,
                k_reads, v_reads, qk, pv)

NAME = "gated_mix__sliding_block__moe_arch_mod__prompt_kernel"
SLOT = 34816
IMG = SLOT
WO = 66560
CTL = 149568
YB = 149696
HP = 150016
YT = 154624
XS = 156672
KF_LDS = 162304
PSLOT = (QB, QB + 4096, 140288, 144384, 158208)
KF_VGPR = 168
PART = 0
STG = 20480
XR, GR = 128, 136
vC = 154
TAG = 65
C_O, C_GO2, C_A, C_WO, C_PART, C_YRDY, C_B, C_1, C_GO1, C_C, C_PA, C_IDX, C_RSEL = 0, 4, 8, 12, 96, 32, 36, 40, 44, 48, 52, 56, 60
C_KMAX, C_KCNT, C_XS, C_GD, C_RED, C_RED2, C_FI = 64, 68, 72, 76, 80, 84, 88
F_Q, F_O, F_PA, F_Y = 0, 192, 448, 512


def lds_spin(a, name, addr_v, off, regs, conds, slp=1):
    n = len(conds)
    a("s_mov_b32 s60, 0x200000")
    a.label(name)
    a(("ds_read_b64 %s, v%d offset:%d" % (vr(regs, 2), addr_v, off)) if n == 2 else
      ("ds_read_b32 v%d, v%d offset:%d" % (regs, addr_v, off)))
    a("s_waitcnt lgkmcnt(0)")
    a("v_readfirstlane_b32 s61, v%d" % regs)
    if n == 2:
        a("v_readfirstlane_b32 s62, v%d" % (regs + 1))
        a("s_lshl_b32 s62, s62, 8")
        a("s_or_b32 s61, s61, s62")
        a("s_cmp_eq_u32 s61, %d" % (conds[0] | (conds[1] << 8)))
    else:
        a("s_cmp_eq_u32 s61, %d" % conds[0])
    a("s_cbranch_scc1 %s_d" % name)
    if slp:
        a("s_sleep %d" % slp)
    a("s_sub_u32 s60, s60, 1")
    a("s_cmp_lg_u32 s60, 0")
    a("s_cbranch_scc1 %s" % name)
    a.label(name + "_d")


def stage_spin(a, name, stage, vc=vC, T=T, slp=0):
    a("s_mov_b32 s60, 0x200000")
    a.label(name)
    a("ds_read_b32 v%d, v%d offset:%d" % (T, vc, C_A))
    a("s_waitcnt lgkmcnt(0)")
    a("v_readfirstlane_b32 s61, v%d" % T)
    a("s_bitcmp1_b32 s61, %d" % (8 * stage + 3))
    a("s_cbranch_scc1 %s_d" % name)
    if slp:
        a("s_sleep %d" % slp)
    a("s_sub_u32 s60, s60, 1")
    a("s_cmp_lg_u32 s60, 0")
    a("s_cbranch_scc1 %s" % name)
    a.label(name + "_d")


def landed(a, inc, vm):
    a("v_mov_b32 v%d, %s" % (T, hex(inc)))
    a("s_waitcnt vmcnt(%d)" % vm)
    a("s_mov_b64 exec, 1")
    a("ds_add_u32 v%d, v%d offset:%d" % (vC, T, C_A))
    a("s_mov_b64 exec, -1")


def poison(a):
    if OPT["nopois"]:
        a("s_nop 0")
        a("buffer_load_dword v155, v152, s[24:27], s59 offen")
        a("buffer_load_dword v155, v152, s[24:27], s59 offen")
        return
    for k in range(4):
        a("v_mov_b32 v%d, -1" % (120 + k))
    a("buffer_store_dwordx4 %s, v153, s[24:27], s58 offen sc1" % vr(120, 4))
    a("s_mov_b32 exec_hi, 0")
    a("buffer_store_dword v%d, v152, s[24:27], s59 offen sc1" % 120)
    a("s_mov_b32 exec_hi, -1")


def tail_touch(a):
    a("buffer_load_dword v155, v152, s[24:27], s59 offen")


def flag_poll(a, name, voff, vt, want, lanes, slp=1, width=1):
    a("s_mov_b64 exec, %s" % ("-1" if lanes == 64 else hex((1 << lanes) - 1)))
    a("s_mov_b32 s60, 0x40000")
    a.label(name)
    a("global_load_dword%s %s, v%d, s[8:9] sc1" % ("" if width == 1 else "x%d" % width, vr(vt, width), voff))
    a("s_waitcnt vmcnt(0)")
    a("v_cmp_eq_u32 vcc, %s, v%d" % (want, vt))
    a("s_cmp_eq_u64 vcc, exec")
    a("s_cbranch_scc1 %s_d" % name)
    if slp:
        a("s_sleep %d" % slp)
    a("s_sub_u32 s60, s60, 1")
    a("s_cmp_lg_u32 s60, 0")
    a("s_cbranch_scc1 %s" % name)
    a.label(name + "_d")
    a("s_mov_b64 exec, -1")


def lds_inc(a, vz, vt, off, rtn=False):
    a("v_mov_b32 v%d, 1" % vt)
    a("s_mov_b64 exec, 1")
    if rtn:
        a("ds_add_rtn_u32 v%d, v%d, v%d offset:%d" % (vt, vz, vt, off))
    else:
        a("ds_add_u32 v%d, v%d offset:%d" % (vz, vt, off))
    a("s_mov_b64 exec, -1")


def load_tag(a):
    a("s_mov_b32 s64, %d" % L.WS_EPOCH)
    a("s_load_dword s%d, s[8:9], s64" % TAG)


def make_tag(a):
    a("s_mul_i32 s%d, s%d, 0x9e3779b1" % (TAG, TAG))
    a("s_add_u32 s%d, s%d, 0x7f4a7c15" % (TAG, TAG))


def copy_scalars(a):
    a("s_mul_i32 s55, s34, %d" % (4 * L.PAIR_BYTES))
    a("s_mul_i32 s56, s35, 9216")
    a("s_add_u32 s55, s55, s56")
    a("s_lshl_b32 s56, s3, 10")
    a("s_add_u32 s55, s55, s56")
    for j in range(5):
        a("s_add_u32 s57, s3, %d" % (8 * j))
        a("s_mul_i32 s57, s57, 57")
        a("s_lshr_b32 s57, s57, 9")
        a("s_mul_i32 s57, s57, %d" % (L.PAIR_BYTES - 9216))
        a("s_add_u32 s57, s57, s55")
        a("s_add_u32 s%d, s57, %d" % (50 + j, 8192 * j))
    a("s_mul_i32 s58, s35, 12")
    a("s_add_u32 s58, s58, s34")
    a("s_lshl_b32 s58, s58, 7")
    a("s_add_u32 s58, s58, %d" % (L.WS_FLAG + F_Q * 128))


def decode2(a):
    a("s_and_b32 s30, s2, 3")
    a("s_bfe_u32 s33, s2, 0x10002")
    a("s_bfe_u32 s32, s2, 0x20003")
    a("s_lshl_b32 s31, s30, 2")
    a("s_add_u32 s31, s31, s32")
    a("s_lshl_b32 s32, s33, 3")
    a("s_lshr_b32 s34, s2, 5")
    a("s_add_u32 s32, s32, s34")
    a("s_lshr_b32 s33, s2, 3")
    a("s_mul_i32 s34, s33, 57")
    a("s_lshr_b32 s34, s34, 9")
    a("s_mul_i32 s53, s34, 9")
    a("s_sub_u32 s53, s33, s53")
    a("s_lshl_b32 s52, s34, 3")
    a("s_and_b32 s34, s2, 7")
    a("s_add_u32 s52, s52, s34")
    a("s_sub_u32 s33, s2, 216")
    a("s_mul_i32 s34, s33, 57")
    a("s_lshr_b32 s34, s34, 9")
    a("s_mul_i32 s35, s34, 9")
    a("s_sub_u32 s33, s33, s35")
    a("s_add_u32 s34, s34, 24")
    a("s_cmp_ge_u32 s2, 216")
    a("s_cselect_b32 s52, s34, s52")
    a("s_cselect_b32 s53, s33, s53")


def qpoll(a, vc, name, own, r=16):
    R = dict(a=r, b=r + 1, c=r + 2)
    a("v_add_u32 v%(a)d, 2, v0" % R)
    a("v_mul_u32_u24 v%(b)d, 43, v%(a)d" % R)
    a("v_lshrrev_b32 v%(b)d, 7, v%(b)d" % R)
    a("v_mul_u32_u24 v%(c)d, 3, v%(b)d" % R)
    a("v_sub_u32 v%(a)d, v%(a)d, v%(c)d" % R)
    a("s_sub_u32 s35, s32, 2")
    a("v_add_u32 v%(a)d, s35, v%(a)d" % R)
    a("v_max_i32 v%(a)d, 0, v%(a)d" % R)
    a("v_mul_u32_u24 v%(a)d, 12, v%(a)d" % R)
    a("v_lshl_add_u32 v%(a)d, v%(b)d, 2, v%(a)d" % R)
    a("v_add_u32 v%(a)d, s30, v%(a)d" % R)
    a("v_lshlrev_b32 v%(a)d, 7, v%(a)d" % R)
    a("v_add_u32 v%d, %d, v%d" % (r, L.WS_FLAG + F_Q * 128, r))
    if own:
        lds_spin(a, name + "w", vc, C_1, r + 2, (8,), 0)
    flag_poll(a, name, r, r + 1, "s%d" % TAG, 7, OPT["qslp"])
    lds_inc(a, vc, r + 2, C_GO1)


def code_touch(a):
    if not OPT["ctouch"]:
        return
    lab = a.newlabel("pc")
    a("s_getpc_b64 s[20:21]")
    a.label(lab)
    a("s_sub_u32 s20, s20, %s-%s" % (lab, NAME))
    a("s_subb_u32 s21, s21, 0")
    a("s_lshr_b32 s22, s2, 3")
    a("s_mul_i32 s22, s22, %d" % (12 * 128))
    a("v_lshlrev_b32 v20, 7, v0")
    a("v_add_u32 v20, s22, v20")
    a("v_min_u32 v20, L_end-%s, v20" % NAME)
    a("s_mov_b64 exec, 0xfff")
    a("global_load_dword v21, v20, s[20:21]")
    a("s_mov_b64 exec, -1")


def gemm_phase(a):
    a("s_mul_i32 s33, s32, 43")
    a("s_lshr_b32 s33, s33, 7")
    a("s_mul_i32 s34, s33, 3")
    a("s_sub_u32 s34, s32, s34")
    a("s_lshl_b32 s34, s34, 2")
    a("s_add_u32 s34, s34, s30")
    a("s_lshl_b32 s35, s31, 3")
    a("s_add_u32 s35, s35, s33")
    a("s_cmp_lt_u32 s3, 4")
    a("s_cbranch_scc1 L_comp")
    a("s_cmp_lt_u32 s3, 6")
    a("s_cbranch_scc0 L_ldw")
    a("s_lshr_b32 s41, s34, 2")
    a("s_mul_i32 s41, s41, 43")
    a("v_add_u32 v6, s41, v0")
    a("v_mul_u32_u24 v6, 1152, v6")
    a("v_and_b32 v7, 7, v0")
    a("s_lshl_b32 s41, s33, 3")
    a("v_add_u32 v7, s41, v7")
    a("v_mul_u32_u24 v7, 3456, v7")
    a("v_lshrrev_b32 v8, 3, v0")
    a("v_lshl_add_u32 v7, v8, 7, v7")
    a("s_cmp_eq_u32 s3, 4")
    a("s_cselect_b32 s42, 43, 24")
    a("s_cselect_b64 s[46:47], -1, 0")
    a("v_cndmask_b32 v6, v7, v6, s[46:47]")
    a("v_cmp_gt_u32 s[44:45], s42, v0")
    a("s_mul_i32 s39, s35, %d" % (128 * 1152))
    a("s_mul_i32 s46, s34, 288")
    a("s_and_b32 s46, s46, 0xffffff80")
    a("s_sub_u32 s47, %d, s46" % (576 * 3456))
    stamp(a, 11)
    a("s_waitcnt lgkmcnt(0)")
    stamp(a, 12)
    srd_off(a, 16, 4, "s39", 128 * 1152)
    srd_off(a, 20, 6, "s46", "s47")
    a("s_cmp_eq_u32 s3, 4")
    a("s_cselect_b32 s20, s16, s20")
    a("s_cselect_b32 s21, s17, s21")
    a("s_cselect_b32 s22, s18, s22")
    a("s_mov_b64 exec, s[44:45]")
    a("buffer_load_dword v20, v6, s[20:23], 0 offen %s" % OPT["t0p"])
    a("s_mov_b64 exec, -1")
    load_tag(a)
    a("v_lshrrev_b32 v1, 3, v0")
    a("v_mul_u32_u24 v1, 1152, v1")
    a("v_lshrrev_b32 v2, 4, v0")
    a("v_and_b32 v3, 7, v0")
    a("v_xor_b32 v3, v3, v2")
    a("v_lshl_add_u32 v4, v3, 4, v1")
    a("v_xor_b32 v3, 4, v3")
    a("v_lshl_add_u32 v5, v3, 4, v1")
    a("v_add_u32 v5, %d, v5" % (8 * 1152))
    a("s_sub_u32 s36, s3, 4")
    a("s_mul_i32 s37, s36, %d" % (64 * 1152))
    a("s_lshl_b32 s38, s36, 13")
    copy_scalars(a)
    stamp(a, 1)
    a("s_waitcnt vmcnt(0) lgkmcnt(0)")
    stamp(a, 2)

    def x_chunk(c):
        for i in range(8):
            a("s_add_u32 m0, s38, %d" % ((c % 4) * SLOT + i * 1024))
            a("s_add_u32 s40, s37, %d" % ((i >> 1) * 16 * 1152 + c * 128))
            a("buffer_load_dwordx4 v%d, s[16:19], s40 offen lds" % (4 + (i & 1)))

    def loader_loop(fn, n):
        LA = OPT["la"]
        a("s_barrier")
        stamp(a, 13)
        for c in range(LA):
            fn(c)
        stamp(a, 14)
        extra = 0
        for c in range(9):
            a("s_waitcnt vmcnt(%d)" % (n * min(LA - 1, 8 - c) + extra))
            a("s_barrier")
            if c + LA < 9:
                fn(c + LA)
            if c + LA == 8 and OPT["wt2"]:
                a("s_lshr_b32 s44, s2, 3")
                a("s_lshl_b32 s44, s44, 2")
                a("s_add_u32 s44, s44, s3")
                a("s_mul_i32 s44, s44, %d" % (54 * 128))
                a("s_sub_u32 s44, s44, %d" % (4 * 54 * 128))
                srd(a, 20, 28, 576 * 1152)
                a("v_lshlrev_b32 v21, 7, v0")
                a("buffer_load_dword v20, v21, s[20:23], s44 offen")
                extra = 1

    loader_loop(x_chunk, 8)
    a("s_branch L_copy")
    a.label("L_ldw")
    a("s_movk_i32 s41, 3641")
    for i in range(9):
        a("v_add_u32 v1, %d, v0" % (64 * i))
        a("v_mul_u32_u24 v2, s41, v1")
        a("v_lshrrev_b32 v2, 16, v2")
        a("v_mul_u32_u24 v3, 18, v2")
        a("v_sub_u32 v3, v1, v3")
        a("v_bfe_u32 v1, v2, 2, 2")
        a("v_lshlrev_b32 v1, 3, v1")
        a("v_lshrrev_b32 v13, 4, v2")
        a("v_lshl_add_u32 v1, v13, 2, v1")
        a("v_and_b32 v2, 3, v2")
        a("v_add_u32 v1, v1, v2")
        a("v_mul_u32_u24 v1, 3456, v1")
        a("v_lshl_add_u32 v%d, v3, 4, v1" % (4 + i))
        if i == 2:
            a("s_waitcnt lgkmcnt(0)")
            load_tag(a)
    a("s_sub_u32 s36, s3, 6")
    a("s_mul_i32 s37, s36, %d" % (32 * 3456))
    a("s_mul_i32 s38, s36, 9216")
    a("s_mul_i32 s39, s34, 288")
    a("s_sub_u32 s42, %d, s39" % (576 * 3456))
    copy_scalars(a)
    srd_off(a, 16, 6, "s39", "s42")
    a("s_waitcnt lgkmcnt(0)")

    def w_chunk(c):
        a("s_add_u32 s40, s37, %d" % (c * 64 * 3456))
        for i in range(9):
            a("s_add_u32 m0, s38, %d" % ((c % 4) * SLOT + 16384 + i * 1024))
            a("s_nop 0")
            a("buffer_load_dwordx4 v%d, s[16:19], s40 offen lds" % (4 + i))

    loader_loop(w_chunk, 9)
    a("s_branch L_copy")
    a.label("L_comp")
    ACC, XF, WF = 64, (136, 144), 24
    a("v_and_b32 v8, 15, v0")
    a("v_lshrrev_b32 v9, 4, v0")
    a("v_lshrrev_b32 v10, 1, v8")
    a("v_xor_b32 v10, v10, v9")
    a("s_lshl_b32 s36, s3, 12")
    a("v_lshlrev_b32 v2, 7, v8")
    a("v_lshl_add_u32 v2, v10, 4, v2")
    a("v_add_u32 v2, s36, v2")
    a("v_xor_b32 v3, 64, v2")
    a("v_add_u32 v4, %d, v2" % (2 * SLOT))
    a("v_add_u32 v5, %d, v3" % (2 * SLOT))
    a("v_lshrrev_b32 v10, 2, v0")
    a("v_mul_u32_u24 v6, 288, v10")
    a("v_and_b32 v10, 3, v0")
    a("v_lshl_add_u32 v6, v10, 3, v6")
    a("v_add_u32 v6, 16384, v6")
    a("v_add_u32 v7, %d, v6" % (2 * SLOT))
    a("s_waitcnt lgkmcnt(0)")
    load_tag(a)
    a("s_mov_b32 s36, 1.0")
    a("s_cmp_lt_u32 s34, 4")
    a("s_cselect_b32 s36, %s, s36" % f32(QSCALE))
    a("s_mov_b32 s37, s36")
    a("s_lshl_b32 s38, s3, 5")
    a("v_add_u32 v10, s38, v8")
    a("v_mul_u32_u24 v10, 72, v10")
    a("v_lshl_add_u32 v10, v9, 3, v10")
    a("v_add_u32 v10, %d, v10" % IMG)
    for ft in range(9):
        a("v_add_u32 v11, %d, v9" % (4 * ft))
        a("v_mul_u32_u24 v11, 57, v11")
        a("v_lshrrev_b32 v11, 9, v11")
        a("v_mul_u32_u24 v11, 9144, v11")
        a("v_add_u32 v%d, v11, v10" % (12 + ft))
    copy_scalars(a)
    a("s_waitcnt lgkmcnt(0)")

    def xreads(step):
        c, h2 = step >> 1, step & 1
        slot = c % 4
        return ["ds_read_b128 %s, v%d offset:%d" % (vr(XF[step & 1] + 4 * tt, 4), 2 + 2 * (slot >> 1) + h2,
                                                    (slot & 1) * SLOT + tt * 2048) for tt in range(2)]

    def wreads(step, ft):
        c, h2 = step >> 1, step & 1
        slot = c % 4
        return ["ds_read_b64_tr_b16 %s, v%d offset:%d" % (vr(WF + 4 * ft + 2 * sec, 2), 6 + (slot >> 1),
                                                          (slot & 1) * SLOT + h2 * 9216 + sec * 4608 + ft * 32)
                for sec in range(2)]

    def mfma(step, ft, tt):
        d = vr(ACC + 8 * ft + 4 * tt, 4)
        return "v_mfma_f32_16x16x32_bf16 %s, %s, %s, %s" % (
            d, vr(WF + 4 * ft, 4), vr(XF[step & 1] + 4 * tt, 4), "0" if step == 0 else d)

    def epi(k):
        ft, tt = k >> 1, k & 1
        b = ACC + 4 * k
        t = 152 + 2 * (k % 8)
        return ["v_pk_mul_f32 %s, %s, s[36:37]" % (vr(b, 2), vr(b, 2)),
                "v_pk_mul_f32 %s, %s, s[36:37]" % (vr(b + 2, 2), vr(b + 2, 2)),
                "v_cvt_pk_bf16_f32 v%d, v%d, v%d" % (t, b, b + 1),
                "v_cvt_pk_bf16_f32 v%d, v%d, v%d" % (t + 1, b + 2, b + 3),
                "ds_write_b64 v%d, %s offset:%d" % (12 + ft, vr(t, 2), 32 * ft + 1152 * tt)]

    a("s_barrier")
    a("s_barrier")
    stamp(a, 1)
    q = []

    def issue(tag, lst):
        for x in lst:
            a(x)
            q.append(tag)

    def need(tag):
        last = max(k for k, v in enumerate(q) if v == tag)
        a("s_waitcnt lgkmcnt(%d)" % min(15, len(q) - 1 - last))

    issue(("x", 0), xreads(0))
    for ft in range(9):
        issue(("w", 0, ft), wreads(0, ft))
    LAG = 3
    for step in range(18):
        if step & 1 and step < 17:
            a("s_barrier")
        for ft in range(9):
            need(("w", step, ft))
            a(mfma(step, ft, 0))
            if ft == 0 and step < 17:
                issue(("x", step + 1), xreads(step + 1))
            if step == 17 and 2 * ft >= LAG:
                e = epi(2 * ft - LAG)
                for x in e[:4]:
                    a(x)
                issue("e", e[4:])
            a(mfma(step, ft, 1))
            if step < 17:
                issue(("w", step + 1, ft), wreads(step + 1, ft))
            elif 2 * ft + 1 >= LAG:
                e = epi(2 * ft + 1 - LAG)
                for x in e[:4]:
                    a(x)
                issue("e", e[4:])
    for k in range(18 - LAG, 18):
        for x in epi(k):
            a(x)
    stamp(a, 2)
    a("s_waitcnt lgkmcnt(0)")
    a.label("L_copy")
    a("v_lshlrev_b32 v1, 4, v0")
    a("s_lshl_b32 s36, s3, 10")
    a("v_add_u32 v2, s36, v1")
    a("v_add_u32 v3, %d, v2" % (IMG + 4 * 8192))
    srd(a, 24, 8, L.QKV_BYTES)
    make_tag(a)
    a("s_barrier")
    for j in range(4):
        a("ds_read_b128 %s, v2 offset:%d" % (vr(4 + 4 * j, 4), IMG + j * 8192))
    a("s_cmp_lt_u32 s3, 4")
    a("s_cbranch_scc0 L_c4")
    a("ds_read_b128 v[20:23], v3")
    a("s_waitcnt lgkmcnt(0)")
    a("buffer_store_dwordx4 v[20:23], v1, s[24:27], s54 offen sc1")
    a.label("L_c4")
    for j in range(4):
        a("s_waitcnt lgkmcnt(%d)" % (3 - j))
        a("buffer_store_dwordx4 %s, v1, s[24:27], s%d offen sc1" % (vr(4 + 4 * j, 4), 50 + j))
    a("s_mov_b32 s63, s58")
    a("v_mov_b32 v%d, %d" % (vC, CTL))
    lds_inc(a, vC, 24, C_FI)
    stamp(a, 3)


def spare_phase(a):
    GW = 64
    a.label("L_sp")
    a("s_sub_u32 s36, s2, 192")
    a("s_cmp_ge_u32 s3, 8")
    a("s_cbranch_scc1 L_sp_ffn")
    a("s_cmp_ge_u32 s3, 4")
    a("s_cbranch_scc1 L_sp_hi")
    a("s_load_dwordx2 s[60:61], s[0:1], 32")
    a("s_load_dwordx2 s[62:63], s[0:1], 64")
    a("v_lshrrev_b32 v2, 3, v0")
    a("v_and_b32 v3, 7, v0")
    a("v_lshlrev_b32 v3, 4, v3")
    a("s_lshl_b32 s34, s36, 2")
    a("s_add_u32 s34, s34, s3")
    a("s_lshl_b32 s33, s34, 3")
    a("v_add_u32 v1, s33, v2")
    a("v_mul_u32_u24 v4, 1152, v1")
    a("v_add_u32 v4, v4, v3")
    a("s_mul_i32 s51, s34, %d" % (7 * 128))
    a("s_mul_i32 s52, s34, %d" % (21 * 128))
    a("v_lshlrev_b32 v7, 7, v0")
    a("s_waitcnt lgkmcnt(0)")
    load_tag(a)
    srd(a, 16, 6, 576 * 3456)
    srd(a, 20, 28, 576 * 1152)
    for i in range(9):
        a("global_load_dwordx4 %s, v4, s[4:5] offset:%d" % (vr(8 + 4 * i, 4), 128 * i))
        if i == 0:
            for j in range(9):
                a("global_load_dwordx4 %s, v3, s[60:61] offset:%d" % (vr(44 + 4 * j, 4), 128 * j))
                a("global_load_dwordx4 %s, v3, s[62:63] offset:%d" % (vr(80 + 4 * j, 4), 128 * j))
        else:
            a("s_add_u32 s53, s51, %d" % (1728 * 128 * i))
            a("s_mov_b64 exec, 0x7f")
            a("buffer_load_dword v124, v7, s[16:19], s53 offen")
            a("s_mov_b64 exec, -1")
    a("s_mov_b64 exec, 0x1fffff")
    a("buffer_load_dword v124, v7, s[20:23], s52 offen")
    a("s_mov_b64 exec, -1")
    a("v_mov_b32 v%d, %d" % (vC, CTL))
    a("s_waitcnt lgkmcnt(0)")
    make_tag(a)
    a("s_barrier")
    a("s_waitcnt vmcnt(2)")
    for i in range(36):
        p = 116 + (i & 3)
        a("v_dot2_f32_bf16 v%d, v%d, v%d, %s" % (p, 8 + i, 44 + i, "0" if i < 4 else "v%d" % p))
    a("s_nop 1")
    a("v_pk_add_f32 v[116:117], v[116:117], v[118:119]")
    a("v_add_f32 v5, v116, v117")
    sum8(a, (5,))
    bf16_round(a, 5, 5)
    a("v_ashrrev_i32 v7, 31, v5")
    a("v_or_b32 v7, 0x80000000, v7")
    a("v_xor_b32 v7, v7, v5")
    a("v_and_b32 v7, 0xffff0000, v7")
    a("v_sub_u32 v6, 0x7ff, v1")
    a("v_or_b32 v7, v7, v6")
    a("v_mov_b32 v5, 1")
    a("s_mov_b32 s54, 0x01010101")
    a("s_mov_b32 exec_lo, s54")
    a("s_mov_b32 exec_hi, s54")
    a("ds_max_u32 v%d, v7 offset:%d" % (vC, C_KMAX))
    a("s_mov_b64 exec, 1")
    a("ds_add_rtn_u32 v5, v%d, v5 offset:%d" % (vC, C_KCNT))
    a("ds_read_b32 v7, v%d offset:%d" % (vC, C_KMAX))
    a("s_lshl_b32 s53, s36, 3")
    a("s_add_u32 s53, s53, %d" % L.WS_KEYF)
    a("v_mov_b32 v4, s53")
    a("v_mov_b32 v6, s%d" % TAG)
    a("s_waitcnt lgkmcnt(0)")
    a("v_cmp_eq_u32 vcc, 3, v5")
    a("s_and_b64 exec, exec, vcc")
    a("s_cbranch_execz L_sp_nopub")
    a("global_store_dwordx2 v4, v[6:7], s[8:9] sc1")
    a.label("L_sp_nopub")
    a("s_mov_b64 exec, -1")
    stamp(a, 1)
    a("s_mov_b32 s55, 0x3f803f80")
    for i in range(36):
        x, w, p = 8 + i, 80 + i, 116 + (i & 3)
        t = 44 + 4 * (i & 3)
        a("v_lshlrev_b32 v%d, 16, v%d" % (t, x))
        a("v_and_b32 v%d, 0xffff0000, v%d" % (t + 1, x))
        a("v_lshlrev_b32 v%d, 16, v%d" % (t + 2, w))
        a("v_and_b32 v%d, 0xffff0000, v%d" % (t + 3, w))
        a("v_pk_mul_f32 %s, %s, %s" % (vr(t, 2), vr(t, 2), vr(t + 2, 2)))
        a("v_cvt_pk_bf16_f32 v%d, v%d, v%d" % (t, t, t + 1))
        a("v_dot2_f32_bf16 v%d, v%d, s55, %s" % (p, t, "0" if i < 4 else "v%d" % p))
    a("s_nop 1")
    a("v_pk_add_f32 v[116:117], v[116:117], v[118:119]")
    a("v_add_f32 v6, v116, v117")
    sum8(a, (6,))
    bf16_round(a, 6, 6)
    sigmoid(a, 6, 6)
    bf16_round(a, 6, 6)
    a("v_lshlrev_b32 v1, 2, v1")
    a("v_add_u32 v1, %d, v1" % L.WS_G)
    a("s_mov_b32 exec_lo, s54")
    a("s_mov_b32 exec_hi, s54")
    a("global_store_dword v1, v6, s[8:9] sc1")
    a("s_mov_b64 exec, -1")
    a("s_waitcnt vmcnt(0)")
    lds_inc(a, vC, 5, C_GD)
    if OPT["dtouch"]:
        srd(a, 16, 14, 4608 * 1152)
        a("s_mul_i32 s52, s34, %d" % (162 * 128))
        a("v_lshlrev_b32 v7, 7, v0")
        for k in range(3):
            a("buffer_load_dword v124, v7, s[16:19], s52 offen")
            a("s_add_u32 s52, s52, %d" % (54 * 128))
    a("s_mov_b32 s63, 0")
    stamp(a, 2)
    a("s_branch L_att")

    a.label("L_sp_hi")
    a("s_cmp_eq_u32 s3, 7")
    a("s_cbranch_scc0 L_sp_hi1")
    code_touch(a)
    a.label("L_sp_hi1")
    a("v_mov_b32 v%d, %d" % (vC, CTL))
    a("s_waitcnt lgkmcnt(0)")
    load_tag(a)
    a("s_mov_b32 s63, 0")
    a("s_waitcnt lgkmcnt(0)")
    make_tag(a)
    a("s_barrier")
    a("s_cmp_eq_u32 s3, 4")
    a("s_cbranch_scc1 L_sp_w4")
    a("s_cmp_eq_u32 s3, 5")
    a("s_cbranch_scc0 L_att")
    a("s_lshl_b32 s56, s36, 7")
    a("s_add_u32 s56, s56, %d" % (L.WS_FLAG + F_PA * 128))
    a("v_mov_b32 v9, s56")
    lds_spin(a, "L_sp_x5", vC, C_XS, 10, (1, 4), 4)
    a("ds_read_b64 v[14:15], v%d offset:%d" % (vC, C_IDX))
    a("v_mov_b32 v12, s%d" % TAG)
    a("s_waitcnt lgkmcnt(0)")
    a("v_mov_b32 v13, v14")
    a("v_mov_b32 v14, v15")
    a("s_mov_b64 exec, 1")
    a("global_store_dwordx3 v9, v[12:14], s[8:9] sc1")
    a("s_mov_b64 exec, -1")
    a("s_branch L_att")
    a.label("L_sp_w4")
    for k in range(4):
        a("v_mov_b32 v%d, 0" % (12 + k))
    a("s_cmp_lt_u32 s36, 36")
    a("s_cbranch_scc0 L_sp_nz")
    a("s_lshl_b32 s51, s36, 10")
    a("s_add_u32 s51, s51, %d" % L.WS_YP)
    a("v_lshlrev_b32 v4, 4, v0")
    a("v_add_u32 v4, s51, v4")
    a("global_store_dwordx4 v4, v[12:15], s[8:9] sc1")
    a("s_cmp_eq_u32 s36, 0")
    a("s_cbranch_scc0 L_sp_nz")
    a("v_lshlrev_b32 v4, 7, v0")
    a("v_add_u32 v4, %d, v4" % (L.WS_FLAG + F_Y * 128))
    a("global_store_dword v4, v12, s[8:9] sc1")
    a.label("L_sp_nz")
    a("v_lshlrev_b32 v8, 3, v0")
    a("v_add_u32 v8, %d, v8" % L.WS_KEYF)
    srd(a, 24, 4, 2048 * 1152)
    lds_spin(a, "L_sp_own", vC, C_KCNT, 10, (4,), 2)
    a("s_sleep %d" % OPT["slp0"])
    flag_poll(a, "L_sp_kp", 8, 10, "s%d" % TAG, 64, OPT["slp"], 2)
    a("v_lshlrev_b32 v8, 4, v0")
    stamp(a, 1)
    wave_umax(a, 11, 53)
    a("s_and_b32 s54, s53, 0x7ff")
    a("s_sub_u32 s54, 2047, s54")
    a("s_mul_i32 s55, s54, 1152")
    a("s_mov_b32 m0, %d" % XS)
    a("s_add_u32 s56, s55, 1024")
    a("buffer_load_dwordx4 v8, s[24:27], s55 offen lds")
    a("s_mov_b32 m0, %d" % (XS + 1024))
    a("s_mov_b64 exec, 0xff")
    a("buffer_load_dwordx4 v8, s[24:27], s56 offen lds")
    a("s_mov_b64 exec, -1")
    a("s_and_b32 s55, s53, 0xffff0000")
    a("s_xor_b32 s56, s55, 0x80000000")
    a("s_xor_b32 s57, s55, 0xffff0000")
    a("s_bitcmp1_b32 s55, 31")
    a("s_cselect_b32 s55, s56, s57")
    a("v_mov_b32 v12, s55")
    sigmoid(a, 13, 12)
    bf16_round(a, 13, 13)
    a("v_mov_b32 v12, s54")
    a("ds_write_b64 v%d, v[12:13] offset:%d" % (vC, C_IDX))
    a("v_mov_b32 v12, 1")
    a("s_waitcnt vmcnt(0)")
    a("ds_write_b32 v%d, v12 offset:%d" % (vC, C_XS))
    stamp(a, 2)
    a("s_branch L_att")

    a.label("L_sp_ffn")
    a("s_load_dwordx4 s[40:43], s[0:1], 40")
    a("v_mov_b32 v3, %d" % CTL)
    for k in range(4):
        a("v_mov_b32 v%d, 0" % (4 + k))
    a("v_lshlrev_b32 v1, 4, v0")
    a("v_add_u32 v2, v1, v3")
    a("s_mov_b64 exec, 0xff")
    a("ds_write_b128 v2, v[4:7]")
    a("s_mov_b64 exec, -1")
    a("v_lshlrev_b32 v2, 2, v0")
    a("v_add_u32 v2, %d, v2" % (XS + 1152))
    a("ds_write_b32 v2, v4")
    a("s_sub_u32 s59, s3, 8")
    a("s_mul_i32 s37, s36, 57")
    a("s_lshr_b32 s37, s37, 9")
    a("s_mul_i32 s38, s37, 9")
    a("s_sub_u32 s38, s36, s38")
    a("s_mul_i32 s49, s37, 84")
    a("s_mul_i32 s39, s49, 9216")
    a("s_lshl_b32 s48, s38, 10")
    a("s_add_u32 s39, s39, s48")
    a("s_sub_u32 s48, %d, s39" % (576 * 9216))
    a("s_min_i32 s48, s48, %d" % (83 * 9216 + 1024))
    a("s_max_i32 s48, s48, 0")
    a("v_lshrrev_b32 v160, 5, v0")
    a("v_mul_u32_u24 v160, 9216, v160")
    a("v_and_b32 v161, 31, v0")
    a("v_lshl_add_u32 v160, v161, 4, v160")
    a("s_mul_i32 s57, s59, 20480")
    a("s_add_u32 s57, s57, %d" % WO)
    a("s_mul_i32 s58, s59, %d" % (2 * 9216))
    a("s_waitcnt lgkmcnt(0)")
    load_tag(a)
    srd_off(a, 16, 40, "s39", "s48")
    srd_off(a, 20, 42, "s39", "s48")
    a("s_waitcnt lgkmcnt(0)")
    make_tag(a)
    a("s_barrier")
    for i in range(5):
        a("s_add_u32 s55, s58, %d" % (8 * (6 + i) * 9216))
        a("s_add_u32 s56, s55, 512")
        for k in range(4):
            a("s_add_u32 m0, s57, %d" % ((4 * i + k) * 1024))
            a("buffer_load_dwordx4 v160, s[%d:%d], s%d offen nt lds" % (16 + 4 * (k >> 1), 19 + 4 * (k >> 1), 55 + (k & 1)))
    for i in range(6):
        a("s_add_u32 s55, s58, %d" % (8 * i * 9216))
        for k in range(4):
            a("buffer_load_dwordx4 %s, v160, s[%d:%d], s55 offen offset:%d nt" % (
                vr(GW + 16 * i + 4 * k, 4), 16 + 4 * (k >> 1), 19 + 4 * (k >> 1), 512 * (k & 1)))
    a("s_lshl_b32 s55, s59, 1")
    a("s_add_u32 s55, s55, s49")
    a("v_lshrrev_b32 v51, 5, v0")
    a("v_add_u32 v51, s55, v51")
    a("v_lshlrev_b32 v51, 1, v51")
    a("v_add_u32 v51, %d, v51" % XS)
    a("v_and_b32 v2, 1, v0")
    a("v_lshlrev_b32 v2, 4, v2")
    a("v_lshrrev_b32 v4, 1, v0")
    a("v_xor_b32 v4, v4, v0")
    a("v_and_b32 v4, 8, v4")
    a("v_bfe_u32 v5, v0, 1, 2")
    a("v_or_b32 v4, v4, v5")
    for q in range(4):
        a("v_cmp_eq_u32 s[%d:%d], %d, v4" % (40 + 2 * q, 41 + 2 * q, q))
    a("v_bfe_u32 v4, v0, 3, 1")
    a("v_lshlrev_b32 v4, 9, v4")
    a("v_lshrrev_b32 v5, 4, v0")
    a("v_lshl_add_u32 v4, v5, 7, v4")
    a("v_and_b32 v5, 7, v0")
    a("v_lshl_add_u32 v4, v5, 2, v4")
    a("v_add_u32 v6, s57, v4")
    a("v_add_u32 v52, s57, v1")
    a("s_lshl_b32 s55, s59, 9")
    a("v_lshlrev_b32 v8, 3, v0")
    a("v_add_u32 v8, s55, v8")
    a("s_mul_i32 s52, s37, %d" % (4608 * 16))
    a("s_lshl_b32 s55, s38, 13")
    a("s_add_u32 s52, s52, s55")
    a("s_add_u32 s52, s52, %d" % L.WS_PA)
    a("v_lshlrev_b32 v9, 2, v8")
    a("v_add_u32 v9, s52, v9")
    a("v_add_u32 v8, %d, v8" % WO)
    stamp(a, 3)
    lds_spin(a, "L_sp_xs", 3, C_XS, 10, (1,), 2)
    a("s_setprio %d" % OPT["pr2"])
    for i in range(11):
        a("ds_read_u16 v%d, v51 offset:%d" % (53 + i, 16 * i))
    a("s_waitcnt vmcnt(24)")
    for k in range(4):
        a("ds_read_b128 %s, v52 offset:%d" % (vr(32 + 4 * k, 4), 1024 * k))
    a("s_waitcnt lgkmcnt(4)")
    for i in range(11):
        a("v_lshlrev_b32 v%d, v2, v%d" % (53 + i, 53 + i))
    first = True
    for i in range(5):
        selector(a, 12, 53 + 6 + i, 40)
        for k in range(4):
            d = vr(16 + 4 * k, 4)
            a("s_waitcnt lgkmcnt(%d)" % (3 if i < 4 else 3 - k))
            a("v_mfma_f32_16x16x32_bf16 %s, %s, v[12:15], %s" % (d, vr(32 + 4 * k, 4), "0" if first else d))
            if i < 4:
                a("ds_read_b128 %s, v52 offset:%d" % (vr(32 + 4 * k, 4), 1024 * (4 * (i + 1) + k)))
        first = False
    for i in range(6):
        selector(a, 12, 53 + i, 40)
        a("s_waitcnt vmcnt(%d)" % (4 * (5 - i)))
        for k in range(4):
            d = vr(16 + 4 * k, 4)
            a("v_mfma_f32_16x16x32_bf16 %s, %s, v[12:15], %s" % (d, vr(GW + 16 * i + 4 * k, 4), d))
    for k in range(4):
        for r in range(4):
            a("ds_write_b32 v6, v%d offset:%d" % (16 + 4 * k + r, 1024 * k + 32 * r))
    lds_inc(a, 3, 10, C_RED)
    lds_spin(a, "L_sp_rd", 3, C_RED, 10, (4,), 0)
    for p in range(4):
        a("ds_read_b64 %s, v8 offset:%d" % (vr(16 + 4 * p, 2), 20480 * p))
        a("ds_read_b64 %s, v8 offset:%d" % (vr(18 + 4 * p, 2), 20480 * p + 2048))
    a("v_mov_b32 v34, s%d" % TAG)
    a("v_mov_b32 v38, s%d" % TAG)
    a("s_waitcnt lgkmcnt(0)")
    lds_inc(a, 3, 10, C_RED2)
    for p in (2, 1):
        for h in range(2 * p):
            a("v_pk_add_f32 %s, %s, %s" % (vr(16 + 2 * h, 2), vr(16 + 2 * h, 2), vr(16 + 4 * p + 2 * h, 2)))
    a("v_mov_b32 v32, v16")
    a("v_mov_b32 v33, v18")
    a("v_mov_b32 v36, v17")
    a("v_mov_b32 v37, v19")
    a("s_cmp_eq_u32 s36, 63")
    a("s_cbranch_scc1 L_sp_nost")
    a("global_store_dwordx4 v9, v[32:35], s[8:9] sc1")
    a("global_store_dwordx4 v9, v[36:39], s[8:9] offset:16 sc1")
    a.label("L_sp_nost")
    stamp(a, 4)
    lds_spin(a, "L_sp_r2", 3, C_RED2, 10, (4,), 0)
    a("s_branch L_help2")


def attn_loop(a):
    for i in range(9):
        if i == 0:
            a("s_cmp_lt_u32 s43, 2")
            a("s_cbranch_scc0 L_hl")
            landed(a, 0x100, 4)
            a.label("L_hl")
        if i == 1:
            landed(a, 0x10000, 0)
        if i in (1, 2):
            a("s_cmp_eq_u32 s43, %d" % (2 - i))
            a("s_cbranch_scc0 L_hb%d_d" % i)
            stage_spin(a, "L_hb%d" % i, 1)
        if 3 <= i <= 6:
            a("s_cmp_eq_u32 s43, %d" % (6 - i))
            a("s_cbranch_scc0 L_hc%d_d" % i)
            stage_spin(a, "L_hc%d" % i, 2)
        a.label("L_it%d" % i)
        S, P = SS[i & 1], PP[i & 1]
        ex = ["v_exp_f32 v%d, v%d" % (S + r, S + r) for r in range(16)]
        cv = ["v_cvt_pk_bf16_f32 v%d, v%d, v%d" % (P + q, S + 2 * q, S + 2 * q + 1) for q in range(8)]
        if i == 0:
            mk = ["v_bfi_b32 v%d, v%d, 0, v%d" % (P + q, MSK + q, P + q) for q in range(8)]
        elif i == 8:
            mk = ["v_and_b32 v%d, v%d, v%d" % (P + q, MSK + q, P + q) for q in range(8)]
        else:
            mk = []
        m1 = qk(i + 1) if i < 8 else []
        m2 = pv(i - 1, i == 1) if i > 0 else []
        a("s_waitcnt lgkmcnt(%d)" % (4 if 0 < i < 8 else 0))
        seq = m1[:1] + ex[0:4] + m1[1:] + (k_reads(i + 2) if i + 2 <= 8 else []) + ex[4:8] + cv[0:2] + m2[:1] + \
            ex[8:12] + cv[2:4] + m2[1:]
        if i + 1 <= 8:
            seq += ["v_add_u32 v%d, v%d, v%d" % (vV, vV, vStep)] + v_reads(i + 1)
        seq += ex[12:16] + cv[4:8] + mk
        for x in seq:
            a(x)
    a("s_waitcnt lgkmcnt(0)")
    for x in pv(8, False):
        a(x)


def attention_phase(a):
    a.label("L_att")
    decode2(a)
    a("s_mul_i32 s33, s31, %d" % L.PAIR_BYTES)
    a("s_mul_i32 s34, s32, 9216")
    a("s_add_u32 s33, s33, s34")
    a("v_mov_b32 v%d, %d" % (vC, CTL))
    KS, VS = 16 * L.PAIR_BYTES - 18432, 32 * L.PAIR_BYTES - 18432
    grp = [(QB, 0), (KB, KS), (VB, VS), (KB + 9216, KS + 9216), (VB + 9216, VS + 9216), (KB + 18432, KS + 18432), (VB + 18432, VS + 18432)]
    a("s_lshl_b32 s34, s3, 10")
    for j in range(8):
        lo, hi = (8 * j) // 9, min(8 * j + 7, 62) // 9
        l0, g0 = grp[lo][0] + (8 * j - 9 * lo) * 1024, grp[lo][1] + (8 * j - 9 * lo) * 1024
        l1, g1 = grp[hi][0] + (8 * j - 9 * hi) * 1024, grp[hi][1] + (8 * j - 9 * hi) * 1024
        if j == 7:
            a("s_min_u32 s34, s34, %d" % (6 * 1024))
        if lo == hi:
            a("s_add_u32 s%d, s34, %d" % (16 + j, l0))
            a("s_add_u32 s%d, s33, %d" % (44 + j, g0 - l0 & 0xffffffff))
        else:
            a("s_mov_b32 s35, %d" % l0)
            a("s_mov_b32 s36, %d" % (g0 - l0 & 0xffffffff))
            a("s_cmp_ge_u32 s3, %d" % (9 * hi - 8 * j))
            a("s_cselect_b32 s35, %d, s35" % (l1 & 0xffffffff))
            a("s_cselect_b32 s36, %d, s36" % (g1 - l1 & 0xffffffff))
            a("s_add_u32 s%d, s34, s35" % (16 + j))
            a("s_add_u32 s%d, s33, s36" % (44 + j))
        a("s_add_u32 s%d, s%d, s%d" % (44 + j, 44 + j, 16 + j))
    a("v_mov_b32 v10, s63")
    a("v_mov_b32 v11, s%d" % TAG)
    a("s_waitcnt vmcnt(0)")
    lds_inc(a, vC, 9, C_1, rtn=True)
    a("s_cmp_lg_u32 s63, 0")
    a("s_cselect_b32 s35, 7, 99")
    a("s_waitcnt lgkmcnt(0)")
    a("v_readfirstlane_b32 s36, v9")
    a("s_cmp_eq_u32 s36, s35")
    a("s_cbranch_scc0 L_nofl1")
    a("s_mov_b64 exec, 1")
    a("global_store_dword v10, v11, s[8:9] sc1")
    a("s_mov_b64 exec, -1")
    a.label("L_nofl1")
    stamp(a, 4)
    a("s_and_b32 s42, s3, 1")
    a("s_lshr_b32 s43, s3, 1")
    a("s_mul_i32 s35, s43, 2304")
    a("s_mul_i32 s36, s42, 40")
    a("v_and_b32 v%d, 31, v0" % T)
    a("v_lshrrev_b32 v%d, 5, v0" % (T + 1))
    a("v_mul_u32_u24 v%d, 72, v%d" % (vKt, T))
    a("v_add_u32 v%d, s35, v%d" % (vKt, vKt))
    a("v_lshl_add_u32 v%d, v%d, 4, v%d" % (vK, T + 1, vKt))
    a("v_add_u32 v%d, s36, v%d" % (vK, vK))
    a("v_add_u32 v%d, 32, v%d" % (vKt, vKt))
    a("v_bfe_u32 v%d, v0, 2, 2" % (T + 2))
    a("v_lshl_add_u32 v%d, v%d, 2, v%d" % (T + 2, T + 1, T + 2))
    a("v_mul_u32_u24 v%d, 72, v%d" % (T + 2, T + 2))
    a("s_add_u32 s37, s35, %d" % VB)
    a("v_add_u32 v%d, s37, v%d" % (T + 2, T + 2))
    a("v_and_b32 v%d, 3, v0" % (T + 3))
    a("v_lshlrev_b32 v%d, 3, v%d" % (T + 4, T + 3))
    a("v_add_u32 v%d, s36, v%d" % (T + 4, T + 4))
    a("v_and_b32 v%d, 16, v0" % (T + 5))
    a("v_cmp_eq_u32 s[38:39], 0, v%d" % (T + 5))
    a("v_cndmask_b32 v%d, 32, v%d, s[38:39]" % (T + 4, T + 4))
    a("v_add_u32 v%d, v%d, v%d" % (vV, T + 2, T + 4))
    a("v_and_b32 v%d, 19, v0" % (T + 5))
    a("v_cmp_lt_u32 s[38:39], 16, v%d" % (T + 5))
    a("v_mov_b32 v%d, %d" % (T + 6, ONES))
    a("v_cndmask_b32 v%d, v%d, v%d, s[38:39]" % (vV, vV, T + 6))
    a("v_mov_b32 v%d, 2304" % (T + 6))
    a("v_cndmask_b32 v%d, v%d, 0, s[38:39]" % (vStep, T + 6))
    a("v_lshlrev_b32 v%d, 2, v%d" % (T + 2, T + 1))
    a("v_sub_u32 v%d, v%d, v%d" % (T + 2, T, T + 2))
    a("v_mov_b32 v%d, 0xffff" % (T + 3))
    for q in range(8):
        kl = 8 * (q >> 1) + 2 * (q & 1)
        a("v_cmp_le_i32 s[38:39], %d, v%d" % (kl, T + 2))
        a("v_cmp_le_i32 s[40:41], %d, v%d" % (kl + 1, T + 2))
        a("v_cndmask_b32 v%d, 0, v%d, s[38:39]" % (MSK + q, T + 3))
        a("v_cndmask_b32 v%d, v%d, -1, s[40:41]" % (MSK + q, MSK + q))
    a("s_lshl_b32 s41, s32, 2")
    a("s_add_u32 s41, s41, s43")
    a("s_sub_i32 s41, 8, s41")
    a("s_lshl_b32 s35, s32, 3")
    a("s_lshl_b32 s36, s43, 1")
    a("s_add_u32 s35, s35, s36")
    a("s_mul_i32 s35, s35, 18432")
    a("s_lshl_b32 s58, s31, 10")
    a("s_lshl_b32 s36, s42, 9")
    a("s_add_u32 s58, s58, s36")
    a("s_add_u32 s58, s58, s35")
    a("s_lshr_b32 s59, s31, 1")
    a("s_lshl_b32 s59, s59, 8")
    a("s_and_b32 s36, s31, 1")
    a("s_lshl_b32 s36, s36, 3")
    a("s_add_u32 s59, s59, s36")
    a("s_lshl_b32 s36, s42, 2")
    a("s_add_u32 s59, s59, s36")
    a("s_add_u32 s59, s59, s35")
    a("s_add_u32 s59, s59, 16384")
    a("v_bfe_u32 v152, v0, 4, 1")
    a("v_mul_u32_u24 v152, 18432, v152")
    a("v_and_b32 v153, 15, v0")
    a("v_lshl_add_u32 v152, v153, 4, v152")
    a("v_lshrrev_b32 v153, 5, v0")
    a("v_lshl_add_u32 v153, v153, 8, v152")
    a("v_cmp_gt_u32 vcc, 32, v0")
    a("s_cmp_eq_u32 s42, 0")
    a("s_cselect_b64 s[54:55], vcc, 0")
    a("s_cselect_b64 s[56:57], 0, vcc")
    a("v_and_b32 v%d, 3, v0" % (T + 2))
    a("v_mul_u32_u24 v%d, 576, v%d" % (T + 2, T + 2))
    a("v_mov_b32 v%d, 0x3f803f80" % (T + 4))
    a("v_mov_b32 v%d, v%d" % (T + 5, T + 4))
    a("v_lshlrev_b32 v%d, 4, v0" % (T + 3))
    srd(a, 36, 8, L.QKV_BYTES)
    srd_off(a, 24, 8, L.WS_O, 128 * 18432)
    a("s_lshr_b32 s35, s2, 6")
    a("s_lshl_b32 s35, s35, 4")
    a("s_add_u32 s35, s35, s3")
    a("s_cmp_eq_u32 s35, %d" % (3 * 16 + 6))
    a("s_cbranch_scc0 L_nq2")
    lds_spin(a, "L_sp_x6", vC, C_XS, T + 8, (1,), 8)
    qpoll(a, vC, "L_qp2", False, T + 8)
    a.label("L_nq2")
    lds_spin(a, "L_go1", vC, C_1, T, (8, 1), OPT["g1s"])
    stamp(a, 5)
    for j in range(8):
        if j == 6:
            a("ds_write_b64 v%d, %s offset:%d" % (T + 2, vr(T + 4, 2), ONES))
            landed(a, 1, 2)
            poison(a)
        a("s_mov_b32 m0, s%d" % (16 + j))
        a("s_nop 0")
        a("buffer_load_dwordx4 v%d, s[36:39], s%d offen %s lds" % (T + 3, 44 + j, OPT["kvl"]))
    a("s_cmp_lt_u32 s32, 2")
    a("s_cbranch_scc1 L_late")
    a("s_cmp_lt_u32 s43, 2")
    a("s_cbranch_scc1 L_sA")
    landed(a, 0x100, 4)
    stage_spin(a, "L_sB", 1)
    stage_spin(a, "L_sA", 0)
    stamp(a, 6)
    for x in q_reads() + k_reads(0) + k_reads(1) + v_reads(0):
        a(x)
    a("s_waitcnt lgkmcnt(7)")
    a("v_cndmask_b32 v%d, 0, v%d, s[54:55]" % (QT, QT))
    a("v_cndmask_b32 v%d, 0, v%d, s[56:57]" % (QT + 1, QT + 1))
    for x in qk(0):
        a(x)
    attn_loop(a)
    a.label("L_check")
    stamp(a, 7)
    a("s_mov_b32 s46, %s" % f32(2.0 ** 60))
    a("s_mov_b32 s47, %s" % f32(2.0 ** -60))
    a("s_mov_b32 s48, 0x7f800000")
    a("s_nop 7")
    a("s_nop 0")
    a("v_rcp_f32 v%d, v%d" % (T, OO + 12))
    a("v_cmp_gt_f32 s[50:51], s46, v%d" % (OO + 12))
    a("v_cmp_lt_f32 vcc, s47, v%d" % (OO + 12))
    for k in range(6):
        a("v_add_f32 v%d, abs(v%d), abs(v%d)" % (T + 2 + k, OO + 2 * k, OO + 2 * k + 1))
    a("s_and_b64 s[50:51], s[50:51], vcc")
    a("v_pk_add_f32 %s, %s, %s" % (vr(T + 2, 2), vr(T + 2, 2), vr(T + 4, 2)))
    a("v_pk_add_f32 %s, %s, %s" % (vr(T + 2, 2), vr(T + 2, 2), vr(T + 6, 2)))
    a("v_add_f32 v%d, v%d, v%d" % (T + 2, T + 2, T + 3))
    a("v_cmp_gt_f32 vcc, s48, v%d" % (T + 2))
    a("s_and_b64 s[50:51], s[50:51], vcc")
    a("s_cmp_eq_u64 s[50:51], -1")
    a("s_cbranch_scc0 L_slow")
    a.label("L_fin")
    a("s_cmp_eq_u32 s42, 0")
    a("s_cbranch_scc1 L_fa")
    a("v_mov_b32 v%d, v%d" % (OO + 8, OO + 10))
    a("v_mov_b32 v%d, v%d" % (OO + 9, OO + 11))
    a.label("L_fa")
    for k in range(0, 10, 2):
        a("v_pk_mul_f32 %s, %s, %s op_sel_hi:[1,0]" % (vr(OO + k, 2), vr(OO + k, 2), vr(T, 2)))
    for q in range(5):
        a("v_cvt_pk_bf16_f32 v%d, v%d, v%d" % (T + 4 + q, OO + 2 * q, OO + 2 * q + 1))
    a("buffer_store_dwordx4 %s, v153, s[24:27], s58 offen sc1" % vr(T + 4, 4))
    a("s_mov_b32 exec_hi, 0")
    a("buffer_store_dword v%d, v152, s[24:27], s59 offen sc1" % (T + 8))
    a("s_mov_b32 exec_hi, -1")


def q_reads():
    return ["ds_read_b64 %s, v%d offset:%d" % (vr(QM, 2), vK, QB),
            "ds_read_b64 %s, v%d offset:%d" % (vr(QM + 2, 2), vK, QB + 8),
            "ds_read_b64 %s, v%d offset:%d" % (vr(QT, 2), vKt, QB)]


def out_phase(a):
    A0, WFR, OF, ACC = 4, (20, 36, 100), 64, (52, 56, 60, 116)
    a("s_add_u32 s49, s3, 2")
    a("s_cmp_lt_u32 s3, 4")
    a("s_cselect_b32 s49, s3, s49")
    a("s_cmp_ge_u32 s52, 26")
    a("s_cbranch_scc1 L_end")
    a.label("L_out")
    a("s_and_b32 s40, s49, 1")
    a("s_lshr_b32 s54, s49, 1")
    a("s_mul_i32 s55, s52, 5")
    a("s_and_b32 s41, s55, 7")
    a("s_sub_u32 s44, 8, s41")
    a("s_cmp_lt_u32 s41, 4")
    a("s_cselect_b32 s44, 0, s44")
    a("s_add_u32 s44, s44, s54")
    a("s_sub_u32 s45, s44, 5")
    a("s_cmp_ge_u32 s44, 5")
    a("s_cselect_b32 s44, s45, s44")
    a("s_add_u32 s55, s55, s44")
    a("s_mov_b32 s59, 0x404")
    a("s_bitcmp1_b32 s55, 2")
    a("s_cselect_b32 s59, s59, 4")
    a("s_mov_b32 s48, %d" % PSLOT[0])
    for p in range(1, 5):
        a("s_cmp_eq_u32 s54, %d" % p)
        a("s_cselect_b32 s48, %d, s48" % PSLOT[p])
    a("v_lshrrev_b32 v10, 2, v0")
    a("v_bfe_u32 v11, v0, 3, 2")
    a("v_lshlrev_b32 v11, 1, v11")
    a("v_bfe_u32 v12, v0, 1, 1")
    a("v_xor_b32 v11, v11, v12")
    a("v_and_b32 v12, 1, v0")
    a("v_lshlrev_b32 v12, 3, v12")
    a("v_lshl_add_u32 v12, v10, 7, v12")
    a("v_lshl_add_u32 v12, v11, 4, v12")
    a("s_mul_i32 s41, s40, %d" % (9 * 4096))
    a("s_add_u32 s41, s41, %d" % WO)
    for t in range(4):
        a("v_xor_b32 v%d, %d, v12" % (A0 + t, 32 * t))
        a("v_add_u32 v%d, s41, v%d" % (A0 + t, A0 + t))
    a("s_mul_i32 s41, s55, 18432")
    a("s_mul_i32 s44, s40, 9216")
    a("s_add_u32 s41, s41, s44")
    a("s_add_u32 s44, s41, 4096")
    a("s_add_u32 s45, s41, 8192")
    a("v_lshlrev_b32 v1, 4, v0")
    a("s_cmp_lt_u32 s3, 8")
    a("s_cbranch_scc0 L_noinc")
    a("s_cmp_lt_u32 s3, 4")
    a("s_cselect_b32 s46, 1, 0x100")
    a("v_mov_b32 v13, s46")
    a("s_waitcnt vmcnt(0)")
    stamp(a, 8)
    a("s_mov_b64 exec, 1")
    a("ds_add_u32 v%d, v13 offset:%d" % (vC, C_O))
    a("s_mov_b64 exec, -1")
    a.label("L_noinc")
    a("s_mul_i32 s56, s55, %d" % (16 * 1152))
    a("s_lshl_b32 s57, s53, 7")
    a("s_add_u32 s56, s56, s57")
    a("s_add_u32 s58, s56, %d" % (8 * 1152))
    a("s_lshl_b32 s57, s55, 6")
    a("v_lshrrev_b32 v140, 3, v0")
    a("v_and_b32 v141, 7, v0")
    a("v_mul_u32_u24 v142, 1152, v140")
    a("v_lshl_add_u32 v142, v141, 4, v142")
    a("s_cmp_eq_u32 s40, 0")
    a("s_cbranch_scc0 L_noxg")
    srd(a, 20, 4, 2048 * 1152)
    srd_off(a, 16, 8, L.WS_G, 8192)
    a("buffer_load_dwordx4 %s, v142, s[20:23], s56 offen" % vr(XR, 4))
    a("buffer_load_dwordx4 %s, v142, s[20:23], s58 offen" % vr(XR + 4, 4))
    lds_spin(a, "L_pa", vC, C_PA, 10, (1,))
    a("ds_read_b32 v10, v%d offset:%d" % (vC, C_IDX))
    a("v_lshlrev_b32 v3, 2, v140")
    a("buffer_load_dword v%d, v3, s[16:19], s57 offen sc1" % GR)
    a("buffer_load_dword v%d, v3, s[16:19], s57 offen offset:32 sc1" % (GR + 2))
    a("v_and_b32 v143, 15, v0")
    a("v_mul_u32_u24 v143, 144, v143")
    a("v_lshrrev_b32 v144, 4, v0")
    a("v_lshlrev_b32 v144, 3, v144")
    a("v_add3_u32 v143, v143, v144, s48")
    a("v_mul_u32_u24 v144, 144, v140")
    a("v_lshl_add_u32 v144, v141, 4, v144")
    a("v_add_u32 v144, s48, v144")
    a("s_waitcnt vmcnt(0) lgkmcnt(0)")
    a("v_readfirstlane_b32 s12, v10")
    srd(a, 20, 10, 2048 * 1152)
    for j in range(2):
        a("v_sub_f32 v%d, 1.0, v%d" % (GR + 2 * j + 1, GR + 2 * j))
        bf16_round(a, GR + 2 * j + 1, GR + 2 * j + 1)

    def omx():
        for j in range(2):
            for q in range(4):
                xv = XR + 4 * j + q
                d = 146 + 8 * j + 2 * q if j == 0 else (156 + 2 * q)
                a("v_lshlrev_b32 v%d, 16, v%d" % (d, xv))
                a("v_and_b32 v%d, 0xffff0000, v%d" % (d + 1, xv))
                a("v_pk_mul_f32 %s, %s, %s op_sel:[0,1] op_sel_hi:[1,1]" % (vr(d, 2), vr(d, 2), vr(GR + 2 * j, 2)))

    omx()
    a.label("L_noxg")
    a("v_add_u32 v2, s48, v1")
    a("s_lshl_b32 s46, s54, 2")
    a("v_add_u32 v3, s46, v%d" % vC)

    def reads(sl):
        st = WFR[sl % 3]
        return ["ds_read_b64_tr_b16 %s, v%d offset:%d" % (vr(st + 4 * t + 2 * sec, 2), A0 + t, (32 * sl + 16 * sec) * 128)
                for t in range(4) for sec in range(2)]

    lds_spin(a, "L_wo", vC, C_WO, 10, (2,))
    for x in reads(0) + reads(1):
        a(x)
    a("s_mov_b32 s60, 0x200000")
    a.label("L_go2")
    a("ds_read_b64 v[10:11], v%d offset:%d" % (vC, C_O))
    a("s_waitcnt lgkmcnt(0)")
    a("v_readfirstlane_b32 s61, v10")
    a("v_readfirstlane_b32 s62, v11")
    a("s_and_b32 s61, s61, s59")
    a("s_cmp_eq_u32 s61, s59")
    a("s_cselect_b32 s62, s62, 0")
    a("s_cmp_eq_u32 s62, 1")
    a("s_cbranch_scc1 L_go2_d")
    a("s_sub_u32 s60, s60, 1")
    a("s_cbranch_scc0 L_go2")
    a.label("L_go2_d")
    stamp(a, 9)
    LAO = OPT["lao"]

    def oload(s):
        a("buffer_load_dwordx4 %s, v1, s[24:27], s%d offen offset:%d sc1" % (vr(OF + 4 * s, 4), (41, 44, 45)[s // 4], 1024 * (s % 4)))

    def ocheck(sl):
        b = OF + 4 * sl
        if sl < 7:
            a("v_cmp_eq_u32 vcc, -1, v%d" % b)
        else:
            a("v_max3_u32 v10, v%d, v%d, v%d" % (b, b + 1, b + 2))
            a("v_max_u32 v10, v10, v%d" % (b + 3))
            a("v_cmp_eq_u32 vcc, -1, v10")
        a("s_nop 1")

    def oretry():
        for sl in range(9):
            a.label("L_or%d" % sl)
            a("s_sub_u32 s60, s60, 1")
            a("s_cbranch_scc1 L_ok%d" % sl)
            a("s_waitcnt vmcnt(0)")
            for s in range(sl, min(sl + LAO, 9)):
                oload(s)
            a("s_waitcnt vmcnt(%d)" % min(LAO - 1, 8 - sl))
            a("s_branch L_oc%d" % sl)

    RETRY.append(oretry)
    a("s_mov_b32 s60, 0x8000")
    for s in range(LAO):
        oload(s)
    for sl in range(9):
        rd = reads(sl + 2) if sl < 7 else []
        a("s_waitcnt vmcnt(%d) lgkmcnt(%d)" % (min(LAO - 1, 8 - sl), 8 if sl < 8 else 0))
        a.label("L_oc%d" % sl)
        ocheck(sl)
        a("s_cbranch_vccnz L_or%d" % sl)
        a.label("L_ok%d" % sl)
        for t in range(4):
            d = vr(ACC[t], 4)
            a("v_mfma_f32_16x16x32_bf16 %s, %s, %s, %s" % (d, vr(WFR[sl % 3] + 4 * t, 4), vr(OF + 4 * sl, 4), "0" if sl == 0 else d))
            if t == 0 and sl + LAO < 9:
                oload(sl + LAO)
            for x in rd[2 * t:2 * t + 2]:
                a(x)
    stamp(a, 10)
    a("s_cmp_eq_u32 s40, 0")
    a("s_cbranch_scc1 L_k0")
    for t in range(4):
        a("ds_write_b128 v2, %s offset:%d" % (vr(ACC[t], 4), PART + 1024 * t))
    a("v_mov_b32 v10, 1")
    a("ds_write_b32 v3, v10 offset:%d" % C_PART)
    stamp_end(a, OPT["stw"], 0)
    stamp_end(a, 10, 2)
    a("s_endpgm")
    a.label("L_k0")
    a("s_lshr_b32 s46, s12, 4")
    a("s_cmp_eq_u32 s46, s55")
    a("s_cbranch_scc0 L_noy")
    lds_spin(a, "L_yw", vC, C_YRDY, 10, (1,))
    a("v_lshlrev_b32 v10, 5, v141")
    a("v_add_u32 v10, %d, v10" % YB)
    a("ds_read_b128 v[12:15], v10")
    a("ds_read_b128 v[16:19], v10 offset:16")
    a("s_and_b32 s46, s12, 15")
    a("s_waitcnt lgkmcnt(0)")
    for j in range(2):
        a("v_add_u32 v10, %d, v140" % (8 * j))
        a("v_cmp_eq_u32 s[50:51], s46, v10")
        for q in range(4):
            xv = XR + 4 * j + q
            a("v_lshlrev_b32 v10, 16, v%d" % xv)
            a("v_and_b32 v11, 0xffff0000, v%d" % xv)
            a("v_add_f32 v10, v10, v%d" % (12 + 2 * q))
            a("v_add_f32 v11, v11, v%d" % (13 + 2 * q))
            a("v_cvt_pk_bf16_f32 v10, v10, v11")
            a("v_cndmask_b32 v%d, v%d, v10, s[50:51]" % (xv, xv))
    omx()
    a.label("L_noy")
    lds_spin(a, "L_pw", 3, C_PART, 10, (1,), 0)
    stamp(a, 11)
    for t in range(4):
        a("ds_read_b128 %s, v2 offset:%d" % (vr(20 + 4 * t, 4), PART + 1024 * t))
    a("s_waitcnt lgkmcnt(0)")
    for t in range(4):
        b = ACC[t]
        a("v_pk_add_f32 %s, %s, %s" % (vr(b, 2), vr(b, 2), vr(20 + 4 * t, 2)))
        a("v_pk_add_f32 %s, %s, %s" % (vr(b + 2, 2), vr(b + 2, 2), vr(22 + 4 * t, 2)))
        a("v_cvt_pk_bf16_f32 v%d, v%d, v%d" % (40 + 2 * t, b, b + 1))
        a("v_cvt_pk_bf16_f32 v%d, v%d, v%d" % (41 + 2 * t, b + 2, b + 3))
        a("ds_write_b64 v143, %s offset:%d" % (vr(40 + 2 * t, 2), 32 * t))
    for j in range(2):
        a("ds_read_b128 %s, v144 offset:%d" % (vr(20 + 4 * j, 4), 8 * 144 * j))
    for j in range(2):
        a("s_waitcnt lgkmcnt(%d)" % (1 - j))
        for q in range(4):
            av = 20 + 4 * j + q
            d = 146 + 2 * q if j == 0 else 156 + 2 * q
            a("v_lshlrev_b32 v10, 16, v%d" % av)
            a("v_and_b32 v11, 0xffff0000, v%d" % av)
            a("v_pk_fma_f32 %s, v[10:11], %s, %s op_sel_hi:[1,0,1]" % (vr(d, 2), vr(GR + 2 * j, 2), vr(d, 2)))
            a("v_cvt_pk_bf16_f32 v%d, v%d, v%d" % (32 + 4 * j + q, d, d + 1))
        a("buffer_store_dwordx4 %s, v142, s[20:23], s%d offen %s" % (vr(32 + 4 * j, 4), 56 + 2 * j, OPT["ost"]))
    if OPT["stamp"]:
        stamp(a, 12)
        a("s_waitcnt vmcnt(0)")
        stamp(a, 13)
        stamp_end(a, OPT["stw"], 0)
    a("s_endpgm")


RETRY = []


def late_and_slow(a):
    RETRY[0]()
    a.label("L_late")
    a("s_mul_i32 s50, s41, 2304")
    a("v_add_u32 v%d, s50, v%d" % (T + 8, vK))
    a("v_add_u32 v%d, s50, v%d" % (T + 9, vKt))
    a("v_mul_u32_u24 v%d, s41, v%d" % (T + 2, vStep))
    a("v_add_u32 v%d, v%d, v%d" % (vV, vV, T + 2))
    for r in list(range(OO, OO + 16)) + list(range(VF[0], VF[0] + 32)):
        a("v_mov_b32 v%d, 0" % r)
    landed(a, 0x100, 0)
    stage_spin(a, "L_lt", 1)
    a("s_mov_b32 s43, 9")
    for x in q_reads():
        a(x)
    a("s_waitcnt lgkmcnt(0)")
    landed(a, 0x10000, 0)
    a("s_bitcmp1_b32 s41, 0")
    a("s_cbranch_scc1 L_late1")
    for par in range(2):
        if par:
            a.label("L_late1")
        for x in k_reads(par, T + 8, T + 9, 0):
            a(x)
        for x in k_reads(par + 1, T + 8, T + 9, 0):
            a(x.replace("offset:8", "offset:2312").replace("offset:0", "offset:2304"))
        for x in v_reads(par):
            a(x)
        a("s_waitcnt lgkmcnt(7)")
        a("v_cndmask_b32 v%d, 0, v%d, s[54:55]" % (QT, QT))
        a("v_cndmask_b32 v%d, 0, v%d, s[56:57]" % (QT + 1, QT + 1))
        for x in qk(par):
            a(x)
        a("s_nop 7")
        a("s_nop 3")
        for i0 in range(2 - par, 9, 2):
            a("s_cmp_eq_u32 s41, %d" % i0)
            a("s_cbranch_scc1 L_it%d" % i0)
        a("s_branch L_it%d" % (8 - par))

    a.label("L_slow")
    vKs, vKts, vM, vD0, vNeg = T + 8, T + 9, T + 10, T + 11, T + 12
    a("v_and_b32 v%d, 31, v0" % T)
    a("v_lshrrev_b32 v%d, 5, v0" % (T + 1))
    a("v_lshlrev_b32 v%d, 2, v%d" % (vD0, T + 1))
    a("v_sub_u32 v%d, v%d, v%d" % (vD0, vD0, T))
    a("v_mov_b32 v%d, 0xff800000" % vNeg)
    a("v_mov_b32 v%d, v%d" % (vM, vNeg))
    a("s_max_i32 s50, s41, 0")
    a("s_sub_u32 s51, 8, s50")
    a("v_mul_u32_u24 v%d, s51, v%d" % (T, vStep))
    a("v_sub_u32 v%d, v%d, v%d" % (vV, vV, T))
    a("s_mul_i32 s51, s50, 2304")
    for r in range(16):
        a("v_mov_b32 v%d, 0" % (OO + r))
    for ps in range(2):
        lab = "L_sp%d" % ps
        a("v_add_u32 v%d, s51, v%d" % (vKs, vK))
        a("v_add_u32 v%d, s51, v%d" % (vKts, vKt))
        a("s_mov_b32 s46, s50")
        a.label(lab)
        for x in k_reads(0, vKs, vKts):
            a(x)
        if ps == 1:
            for x in v_reads(0):
                a(x)
        a("s_mov_b32 s47, -31")
        a("s_mov_b32 s48, 62")
        a("s_cmp_eq_u32 s46, 0")
        a("s_cselect_b32 s47, 1, s47")
        a("s_cselect_b32 s48, 30, s48")
        a("s_cmp_eq_u32 s46, 8")
        a("s_cselect_b32 s48, 31, s48")
        a("s_waitcnt lgkmcnt(0)")
        for x in qk(0):
            a(x)
        a("v_subrev_u32 v%d, s47, v%d" % (T, vD0))
        for r in range(16):
            a("v_add_u32 v%d, %d, v%d" % (T + 1, 8 * (r >> 2) + (r & 3), T))
            a("v_cmp_ge_u32 vcc, s48, v%d" % (T + 1))
            a("v_cndmask_b32 v%d, v%d, v%d, vcc" % (SS[0] + r, vNeg, SS[0] + r))
            if ps == 0:
                a("v_max_f32 v%d, v%d, v%d" % (vM, vM, SS[0] + r))
            else:
                a("v_sub_f32 v%d, v%d, v%d" % (SS[0] + r, SS[0] + r, vM))
                a("v_exp_f32 v%d, v%d" % (SS[0] + r, SS[0] + r))
        if ps == 1:
            for q in range(8):
                a("v_cvt_pk_bf16_f32 v%d, v%d, v%d" % (PP[0] + q, SS[0] + 2 * q, SS[0] + 2 * q + 1))
            for x in pv(0, False):
                a(x)
            a("v_add_u32 v%d, v%d, v%d" % (vV, vV, vStep))
        a("v_add_u32 v%d, 2304, v%d" % (vKs, vKs))
        a("v_add_u32 v%d, 2304, v%d" % (vKts, vKts))
        a("s_add_u32 s46, s46, 1")
        a("s_cmp_lt_u32 s46, 9")
        a("s_nop 7")
        a("s_nop 7")
        a("s_cbranch_scc1 %s" % lab)
        if ps == 0:
            a("v_mov_b32 v%d, v%d" % (T, vM))
            a("v_permlane32_swap_b32 v%d, v%d" % (T, vM))
            a("v_max_f32 v%d, v%d, v%d" % (vM, vM, T))
    a("v_rcp_f32 v%d, v%d" % (T, OO + 12))
    a("s_nop 1")
    a("s_branch L_fin")


def helpers(a):
    a.label("L_help")
    a("s_cmp_eq_u32 s3, 9")
    a("s_cbranch_scc0 L_help1")
    code_touch(a)
    a.label("L_help1")
    a("v_mov_b32 v3, %d" % CTL)
    for k in range(4):
        a("v_mov_b32 v%d, 0" % (4 + k))
    a("v_lshlrev_b32 v1, 4, v0")
    a("v_add_u32 v2, v1, v3")
    a("s_mov_b64 exec, 0xff")
    a("ds_write_b128 v2, v[4:7]")
    a("s_mov_b64 exec, -1")
    a("s_waitcnt lgkmcnt(0)")
    load_tag(a)
    a("s_barrier")
    a("s_barrier")
    a("s_waitcnt lgkmcnt(0)")
    make_tag(a)
    a.label("L_help2")
    decode2(a)
    a("s_cmp_eq_u32 s3, 8")
    a("s_cbranch_scc1 L_down")
    a("v_lshrrev_b32 v1, 5, v0")
    a("v_bfe_u32 v2, v0, 3, 2")
    a("v_lshrrev_b32 v10, 4, v0")
    a("v_lshlrev_b32 v10, 1, v10")
    a("v_and_b32 v11, 7, v0")
    a("v_xor_b32 v10, v10, v11")
    a("v_lshl_add_u32 v4, v1, 2, v2")
    a("v_mul_u32_u24 v4, 1152, v4")
    a("v_lshl_add_u32 v4, v10, 4, v4")
    a("v_mul_u32_u24 v5, 72, v1")
    a("v_add_u32 v5, v5, v2")
    a("v_mul_u32_u24 v5, 1152, v5")
    a("v_lshl_add_u32 v5, v10, 4, v5")
    a("s_sub_u32 s36, s3, 9")
    a("s_mul_i32 s37, s36, %d" % (20 * 1152))
    a("s_mul_i32 s43, s36, %d" % (144 * 1152))
    a("s_lshl_b32 s38, s36, 10")
    a("s_add_u32 s38, s38, %d" % WO)
    a("s_lshl_b32 s39, s53, 7")
    a("s_sub_u32 s42, %d, s39" % (576 * 1152))
    srd_off(a, 16, 28, "s39", "s42")
    srd_off(a, 24, 8, L.WS_O, 128 * 18432)
    a("v_mov_b32 v%d, %d" % (vC, CTL))
    a("s_setprio %d" % OPT["pr3"])
    a("s_cmp_ge_u32 s2, 192")
    a("s_cbranch_scc1 L_wo_go")
    for k in range(9):
        a("s_barrier")
    a.label("L_wo_go")
    a("s_cmp_eq_u32 s3, 11")
    a("s_cbranch_scc1 L_ctl")
    a("s_cmp_ge_u32 s52, 26")
    a("s_cbranch_scc1 L_end")
    stage_spin(a, "L_wo_w", 0, 3, 10, 2)
    stamp(a, 5)
    for m in range(36):
        st, sec = m >> 1, m & 1
        a("s_add_u32 m0, s38, %d" % (2048 * m))
        if st < 16:
            a("s_add_u32 s40, s37, %d" % ((36 * st + 8 * sec) * 1152))
            a("buffer_load_dwordx4 v4, s[16:19], s40 offen lds")
        else:
            a("s_add_u32 s40, s43, %d" % ((288 * (st - 16) + 36 * sec + 16) * 1152))
            a("buffer_load_dwordx4 v5, s[16:19], s40 offen lds")
    a("s_waitcnt vmcnt(0)")
    stamp(a, 6)
    lds_inc(a, 3, 4, C_WO)
    a("s_setprio 0")
    a("s_sub_u32 s49, s3, 5")
    a("s_branch L_out")
    a.label("L_ctl")
    a("v_lshlrev_b32 v8, 7, v0")
    a("v_add_u32 v9, %d, v8" % (L.WS_FLAG + F_PA * 128))
    a("s_mul_i32 s46, s52, 5")
    a("s_lshr_b32 s46, s46, 3")
    a("s_min_u32 s46, s46, 14")
    a("s_lshl_b32 s46, s46, 11")
    a("s_add_u32 s46, s46, %d" % (L.WS_FLAG + F_O * 128))
    a("v_add_u32 v8, s46, v8")
    a("s_lshl_b32 s46, s32, 4")
    a("s_add_u32 s46, s46, s31")
    a("s_lshl_b32 s46, s46, 7")
    a("s_add_u32 s46, s46, %d" % (L.WS_FLAG + F_O * 128))
    a("v_mov_b32 v14, s46")
    a("v_mov_b32 v15, s%d" % TAG)
    a("s_cmp_ge_u32 s2, 192")
    a("s_cbranch_scc1 L_ct_0")
    qpoll(a, 3, "L_qp1", True)
    a.label("L_ct_0")
    def aux():
        flag_poll(a, "L_pap", 9, 4, "s%d" % TAG, 64, 8, 3)
        a("v_mov_b32 v10, v5")
        a("v_mov_b32 v11, v6")
        a("v_mov_b32 v4, 1")
        a("ds_write_b64 v3, v[10:11] offset:%d" % C_IDX)
        a("ds_write_b32 v3, v4 offset:%d" % C_PA)
        stamp(a, 5)

    if OPT["auxp"] == 0:
        aux()
    stage_spin(a, "L_ct_p", 2, 3, 10, 0)
    a("s_mov_b64 exec, 1")
    a("global_store_dword v14, v15, s[8:9] sc1")
    a("s_mov_b64 exec, -1")
    stamp(a, 6)
    if OPT["auxp"] == 1:
        aux()
    else:
        a("s_sleep %d" % OPT["slp3"])
    flag_poll(a, "L_op", 8, 12, "s%d" % TAG, 32, 2)
    lds_inc(a, 3, 10, C_GO2)
    stamp(a, 7)
    stamp_end(a, 11 if OPT["st11"] else 99, 3)
    a("ds_read_b64 v[10:11], v3 offset:%d" % C_IDX)
    a("s_waitcnt lgkmcnt(0)")
    a("v_readfirstlane_b32 s12, v10")
    a("v_readfirstlane_b32 s13, v11")
    a("s_mul_i32 s46, s52, 80")
    a("s_sub_u32 s46, s12, s46")
    a("s_cmp_lt_u32 s46, 80")
    a("s_cbranch_scc0 L_end")
    a("v_lshlrev_b32 v4, 7, v0")
    a("v_add_u32 v4, %d, v4" % (L.WS_FLAG + F_Y * 128))
    srd_off(a, 16, 8, L.WS_YP, 16 * 2304)
    a("v_lshrrev_b32 v6, 4, v0")
    a("v_mul_u32_u24 v6, 2304, v6")
    a("v_and_b32 v7, 15, v0")
    a("v_lshlrev_b32 v7, 4, v7")
    a("v_add_u32 v6, v6, v7")
    a("v_add_u32 v7, %d, v7" % YB)
    a("s_lshl_b32 s40, s53, 8")
    flag_poll(a, "L_yp", 4, 5, "16", 16, 2)
    for i in range(4):
        a("buffer_load_dwordx4 %s, v6, s[16:19], s40 offen sc1" % vr(8 + 4 * i, 4))
        a("s_add_u32 s40, s40, %d" % (4 * 2304))
    a("s_waitcnt vmcnt(0)")
    for i in range(1, 4):
        a("v_pk_add_f32 v[8:9], v[8:9], %s" % vr(8 + 4 * i, 2))
        a("v_pk_add_f32 v[10:11], v[10:11], %s" % vr(10 + 4 * i, 2))
    for k in range(4):
        a("v_mov_b32 v20, v%d" % (8 + k))
        a("v_permlane32_swap_b32 v20, v%d" % (8 + k))
        a("v_add_f32 v%d, v%d, v20" % (8 + k, 8 + k))
        a("v_mov_b32 v20, v%d" % (8 + k))
        a("v_permlane16_swap_b32 v20, v%d" % (8 + k))
        a("v_add_f32 v%d, v%d, v20" % (8 + k, 8 + k))
        bf16_round(a, 8 + k, 8 + k)
        a("v_mul_f32 v%d, s13, v%d" % (8 + k, 8 + k))
        bf16_round(a, 8 + k, 8 + k)
    a("v_mov_b32 v12, 1")
    a("ds_write_b128 v7, v[8:11]")
    a("ds_write_b32 v3, v12 offset:%d" % C_YRDY)
    a("s_cmp_eq_u32 s53, 0")
    a("s_cbranch_scc0 L_end")
    a("v_mov_b32 v4, %d" % L.WS_EPOCH)
    a("v_mov_b32 v5, s%d" % TAG)
    a("s_mov_b64 exec, 1")
    a("global_store_dword v4, v5, s[8:9]")
    a("s_endpgm")

    a.label("L_down")
    DW, DA = 20, 128
    a("v_lshrrev_b32 v2, 3, v0")
    a("v_and_b32 v10, 7, v0")
    a("v_mul_u32_u24 v16, 1152, v2")
    a("v_lshl_add_u32 v16, v10, 4, v16")
    a("s_mul_i32 s36, s2, 18")
    a("v_mul_u32_u24 v12, %d, v10" % (4608 * 16))
    a("v_add_u32 v11, s36, v2")
    a("v_lshl_add_u32 v17, v11, 4, v12")
    a("v_cmp_gt_u32 s[56:57], 7, v10")
    a("s_and_b32 s58, s56, 0xffff")
    a("s_mov_b32 s59, 0")
    a("s_mul_i32 s37, s2, %d" % (18 * 1152))
    a("v_and_b32 v1, 1, v0")
    a("v_lshlrev_b32 v1, 4, v1")
    sel_masks(a, 44, 11)
    a("v_lshrrev_b32 v11, 5, v0")
    a("v_bfe_u32 v12, v0, 3, 1")
    a("v_cmp_eq_u32 s[52:53], v11, v12")
    a("v_mul_u32_u24 v12, 2304, v12")
    a("v_bfe_u32 v11, v0, 4, 1")
    a("v_lshl_add_u32 v12, v11, 7, v12")
    a("v_lshl_add_u32 v12, v10, 2, v12")
    a("v_add_u32 v164, %d, v12" % HP)
    a("v_lshlrev_b32 v165, 2, v0")
    a("v_add_u32 v166, %d, v165" % HP)
    a("s_and_b32 s38, s2, 15")
    a("s_mul_i32 s39, s38, 2304")
    a("s_add_u32 s39, s39, %d" % L.WS_YP)
    a("v_add_u32 v165, s39, v165")
    a("s_lshl_b32 s38, s38, 7")
    a("s_add_u32 s38, s38, %d" % (L.WS_FLAG + F_Y * 128))
    srd_off(a, 16, 14, "s37", 18 * 1152)
    srd_off(a, 20, 8, L.WS_PA, 7 * 4608 * 16)
    def dloads():
        for t in range(0 if OPT["nodown"] else 3):
            a("s_movk_i32 s40, %d" % (9216 * t))
            for cg in range(9):
                a("buffer_load_dwordx4 %s, v16, s[16:19], s40 offen offset:%d %s" % (vr(DW + 4 * (9 * t + cg), 4), 128 * cg, "" if OPT["dtouch"] else "nt"))

    a("s_cmp_ge_u32 s2, 192")
    a("s_cbranch_scc1 L_dn_sp")
    for k in range(2, 11):
        if k == OPT["dpos"]:
            dloads()
        a("s_barrier")
    if OPT["dpos"] >= 0:
        if OPT["w8e"]:
            lds_spin(a, "L_dn_w2", 3, C_1, 10, (8,), 2)
        else:
            stage_spin(a, "L_dn_w2", 0, 3, 10, 2)
        a("s_branch L_dn_go")
    if OPT["dearly"]:
        lds_spin(a, "L_dn_e", 3, C_FI, 10, (8,), 0)
        dloads()
        stage_spin(a, "L_dn_w1", 0, 3, 10, 2)
        a("s_branch L_dn_go")
    a.label("L_dn_sp")
    a("s_setprio %d" % OPT["pr3"])
    stage_spin(a, "L_dn_w0", 0, 3, 10, 2)
    dloads()
    a.label("L_dn_go")
    stamp(a, 5)
    a("s_setprio %d" % OPT["pr1"])
    a("s_mov_b32 s60, 0x40000")
    a("v_mov_b32 v160, 0")
    a("v_mov_b32 v161, 0")
    a.label("L_dn_pa")
    a("buffer_load_dwordx3 v[4:6], v17, s[20:23], 0 offen sc1")
    a("buffer_load_dwordx3 v[8:10], v17, s[20:23], 0 offen offset:128 sc1")
    a("s_mov_b64 exec, 0xffff")
    a("buffer_load_dwordx3 v[160:162], v17, s[20:23], 0 offen offset:256 sc1")
    a("s_mov_b64 exec, -1")
    a("s_waitcnt vmcnt(0)")
    a("v_cmp_ne_u32 vcc, s%d, v6" % TAG)
    a("v_cmp_ne_u32 s[40:41], s%d, v10" % TAG)
    a("v_cmp_ne_u32 s[42:43], s%d, v162" % TAG)
    a("s_or_b64 vcc, vcc, s[40:41]")
    a("s_and_b64 vcc, vcc, s[56:57]")
    a("s_and_b64 s[42:43], s[42:43], s[58:59]")
    a("s_or_b64 vcc, vcc, s[42:43]")
    a("s_cmp_eq_u64 vcc, 0")
    a("s_cbranch_scc1 L_dn_pb")
    a("s_sleep 8")
    a("s_sub_u32 s60, s60, 1")
    a("s_cbranch_scc0 L_dn_pa")
    a.label("L_dn_pb")
    stamp(a, 8)
    a("v_mov_b32 v6, v8")
    a("v_mov_b32 v7, v9")
    a("v_mov_b32 v8, v160")
    a("v_mov_b32 v9, v161")
    sum8(a, (4, 5, 6, 7, 8, 9))
    for t in range(3):
        g, u = 4 + 2 * t, 5 + 2 * t
        bf16_round(a, g, g)
        bf16_round(a, u, u)
        sigmoid(a, 10, g)
        a("v_mul_f32 v%d, v%d, v10" % (g, g))
        bf16_round(a, g, g)
        a("v_mul_f32 v%d, v%d, v%d" % (g, g, u))
        a("v_cvt_pk_bf16_f32 v%d, v%d, v%d" % (g, g, g))
        a("v_and_b32 v%d, 0xffff, v%d" % (g, g))
        a("v_lshlrev_b32 v%d, v1, v%d" % (g, g))
    for t in range(3):
        selector(a, 12, 4 + 2 * t, 44)
        for cg in range(9):
            d = vr(DA + 4 * cg, 4)
            a("v_mfma_f32_16x16x32_bf16 %s, %s, v[12:15], %s" % (d, vr(DW + 4 * (9 * t + cg), 4), "0" if t == 0 else d))
    a("s_mov_b64 exec, s[52:53]")
    for cg in range(9):
        for r in range(4):
            a("ds_write_b32 v164, v%d offset:%d" % (DA + 4 * cg + r, 256 * cg + 32 * r))
    a("s_mov_b64 exec, -1")
    for cg in range(9):
        a("ds_read2st64_b32 %s, v166 offset0:%d offset1:%d" % (vr(20 + 2 * cg, 2), cg, cg + 9))
    stage_spin(a, "L_dn_at", 0, 3, 10, 2)
    lds_spin(a, "L_dn_ax", 3, C_PA, 10, (1,), 1)
    for cg in range(9):
        a("v_add_f32 v%d, v%d, v%d" % (20 + 2 * cg, 20 + 2 * cg, 21 + 2 * cg))
        a("global_atomic_add_f32 v165, v%d, s[8:9] offset:%d" % (20 + 2 * cg, 256 * cg))
    a("v_mov_b32 v4, s38")
    a("v_mov_b32 v5, 1")
    a("s_waitcnt vmcnt(0)")
    stamp(a, 7)
    a("s_mov_b64 exec, 1")
    a("global_atomic_add v4, v5, s[8:9] sc1")
    stamp_end(a, 8, 1)


def kf(a):
    a.label(NAME)
    a("s_cmp_ge_u32 s2, 256")
    a("s_cbranch_scc1 L_end")
    stamp_init(a)
    stamp(a, 0)
    a("s_load_dwordx4 s[4:7], s[0:1], 0")
    a("s_load_dwordx2 s[8:9], s[0:1], 88")
    a("s_load_dwordx2 s[10:11], s[0:1], 72")
    a("s_load_dwordx2 s[14:15], s[0:1], 56")
    a("s_load_dwordx2 s[28:29], s[0:1], 16")
    a("v_lshrrev_b32 v1, 6, v0")
    a("v_and_b32 v0, 63, v0")
    a("v_readfirstlane_b32 s3, v1")
    a("s_and_b32 s30, s2, 3")
    a("s_bfe_u32 s31, s2, 0x10002")
    a("s_lshr_b32 s32, s2, 3")
    a("s_cmp_ge_u32 s32, 24")
    a("s_cbranch_scc1 L_sp")
    a("s_cmp_ge_u32 s3, 8")
    a("s_cbranch_scc1 L_help")
    gemm_phase(a)
    attention_phase(a)
    out_phase(a)
    late_and_slow(a)
    spare_phase(a)
    helpers(a)
    a.label("L_end")
    a("s_endpgm")
```

```python
from asmdsl import vr, sr
import layout as L
from common import *
from k2 import (KB, VB, QB, ONES, vK, vKt, vV, vStep, QM, QT, MSK, KF, VF, PP, SS, OO, T,
                k_reads, v_reads, qk, pv)

NAME = "gated_mix__sliding_block__moe_arch_mod__prompt_kernel"
SLOT = 34816
IMG = SLOT
WO = 66560
CTL = 149568
YB = 149696
HP = 150016
YT = 154624
XS = 156672
KF_LDS = 162304
PSLOT = (QB, QB + 4096, 140288, 144384, 158208)
KF_VGPR = 168
PART = 0
STG = 20480
XR, GR = 128, 136
vC = 154
TAG = 65
C_O, C_GO2, C_A, C_WO, C_PART, C_YRDY, C_B, C_1, C_GO1, C_C, C_PA, C_IDX, C_RSEL = 0, 4, 8, 12, 96, 32, 36, 40, 44, 48, 52, 56, 60
C_KMAX, C_KCNT, C_XS, C_GD, C_RED, C_RED2, C_FI = 64, 68, 72, 76, 80, 84, 88
F_Q, F_O, F_PA, F_Y = 0, 192, 448, 512


def lds_spin(a, name, addr_v, off, regs, conds, slp=1):
    n = len(conds)
    a("s_mov_b32 s60, 0x200000")
    a.label(name)
    a(("ds_read_b64 %s, v%d offset:%d" % (vr(regs, 2), addr_v, off)) if n == 2 else
      ("ds_read_b32 v%d, v%d offset:%d" % (regs, addr_v, off)))
    a("s_waitcnt lgkmcnt(0)")
    a("v_readfirstlane_b32 s61, v%d" % regs)
    if n == 2:
        a("v_readfirstlane_b32 s62, v%d" % (regs + 1))
        a("s_lshl_b32 s62, s62, 8")
        a("s_or_b32 s61, s61, s62")
        a("s_cmp_eq_u32 s61, %d" % (conds[0] | (conds[1] << 8)))
    else:
        a("s_cmp_eq_u32 s61, %d" % conds[0])
    a("s_cbranch_scc1 %s_d" % name)
    if slp:
        a("s_sleep %d" % slp)
    a("s_sub_u32 s60, s60, 1")
    a("s_cmp_lg_u32 s60, 0")
    a("s_cbranch_scc1 %s" % name)
    a.label(name + "_d")


def stage_spin(a, name, stage, vc=vC, T=T, slp=0):
    a("s_mov_b32 s60, 0x200000")
    a.label(name)
    a("ds_read_b32 v%d, v%d offset:%d" % (T, vc, C_A))
    a("s_waitcnt lgkmcnt(0)")
    a("v_readfirstlane_b32 s61, v%d" % T)
    a("s_bitcmp1_b32 s61, %d" % (8 * stage + 3))
    a("s_cbranch_scc1 %s_d" % name)
    if slp:
        a("s_sleep %d" % slp)
    a("s_sub_u32 s60, s60, 1")
    a("s_cmp_lg_u32 s60, 0")
    a("s_cbranch_scc1 %s" % name)
    a.label(name + "_d")


def landed(a, inc, vm):
    a("v_mov_b32 v%d, %s" % (T, hex(inc)))
    a("s_waitcnt vmcnt(%d)" % vm)
    a("s_mov_b64 exec, 1")
    a("ds_add_u32 v%d, v%d offset:%d" % (vC, T, C_A))
    a("s_mov_b64 exec, -1")


def poison(a):
    if OPT["nopois"]:
        a("s_nop 0")
        a("buffer_load_dword v155, v152, s[24:27], s59 offen")
        a("buffer_load_dword v155, v152, s[24:27], s59 offen")
        return
    for k in range(4):
        a("v_mov_b32 v%d, -1" % (120 + k))
    a("buffer_store_dwordx4 %s, v153, s[24:27], s58 offen sc1" % vr(120, 4))
    a("s_mov_b32 exec_hi, 0")
    a("buffer_store_dword v%d, v152, s[24:27], s59 offen sc1" % 120)
    a("s_mov_b32 exec_hi, -1")


def tail_touch(a):
    a("buffer_load_dword v155, v152, s[24:27], s59 offen")


def flag_poll(a, name, voff, vt, want, lanes, slp=1, width=1):
    a("s_mov_b64 exec, %s" % ("-1" if lanes == 64 else hex((1 << lanes) - 1)))
    a("s_mov_b32 s60, 0x40000")
    a.label(name)
    a("global_load_dword%s %s, v%d, s[8:9] sc1" % ("" if width == 1 else "x%d" % width, vr(vt, width), voff))
    a("s_waitcnt vmcnt(0)")
    a("v_cmp_eq_u32 vcc, %s, v%d" % (want, vt))
    a("s_cmp_eq_u64 vcc, exec")
    a("s_cbranch_scc1 %s_d" % name)
    if slp:
        a("s_sleep %d" % slp)
    a("s_sub_u32 s60, s60, 1")
    a("s_cmp_lg_u32 s60, 0")
    a("s_cbranch_scc1 %s" % name)
    a.label(name + "_d")
    a("s_mov_b64 exec, -1")


def lds_inc(a, vz, vt, off, rtn=False):
    a("v_mov_b32 v%d, 1" % vt)
    a("s_mov_b64 exec, 1")
    if rtn:
        a("ds_add_rtn_u32 v%d, v%d, v%d offset:%d" % (vt, vz, vt, off))
    else:
        a("ds_add_u32 v%d, v%d offset:%d" % (vz, vt, off))
    a("s_mov_b64 exec, -1")


def load_tag(a):
    a("s_mov_b32 s64, %d" % L.WS_EPOCH)
    a("s_load_dword s%d, s[8:9], s64" % TAG)


def make_tag(a):
    a("s_mul_i32 s%d, s%d, 0x9e3779b1" % (TAG, TAG))
    a("s_add_u32 s%d, s%d, 0x7f4a7c15" % (TAG, TAG))


def copy_scalars(a):
    a("s_mul_i32 s55, s34, %d" % (4 * L.PAIR_BYTES))
    a("s_mul_i32 s56, s35, 9216")
    a("s_add_u32 s55, s55, s56")
    a("s_lshl_b32 s56, s3, 10")
    a("s_add_u32 s55, s55, s56")
    for j in range(5):
        a("s_add_u32 s57, s3, %d" % (8 * j))
        a("s_mul_i32 s57, s57, 57")
        a("s_lshr_b32 s57, s57, 9")
        a("s_mul_i32 s57, s57, %d" % (L.PAIR_BYTES - 9216))
        a("s_add_u32 s57, s57, s55")
        a("s_add_u32 s%d, s57, %d" % (50 + j, 8192 * j))
    a("s_mul_i32 s58, s35, 12")
    a("s_add_u32 s58, s58, s34")
    a("s_lshl_b32 s58, s58, 7")
    a("s_add_u32 s58, s58, %d" % (L.WS_FLAG + F_Q * 128))


def decode2(a):
    a("s_and_b32 s30, s2, 3")
    a("s_bfe_u32 s33, s2, 0x10002")
    a("s_bfe_u32 s32, s2, 0x20003")
    a("s_lshl_b32 s31, s30, 2")
    a("s_add_u32 s31, s31, s32")
    a("s_lshl_b32 s32, s33, 3")
    a("s_lshr_b32 s34, s2, 5")
    a("s_add_u32 s32, s32, s34")
    a("s_lshr_b32 s33, s2, 3")
    a("s_mul_i32 s34, s33, 57")
    a("s_lshr_b32 s34, s34, 9")
    a("s_mul_i32 s53, s34, 9")
    a("s_sub_u32 s53, s33, s53")
    a("s_lshl_b32 s52, s34, 3")
    a("s_and_b32 s34, s2, 7")
    a("s_add_u32 s52, s52, s34")
    a("s_sub_u32 s33, s2, 216")
    a("s_mul_i32 s34, s33, 57")
    a("s_lshr_b32 s34, s34, 9")
    a("s_mul_i32 s35, s34, 9")
    a("s_sub_u32 s33, s33, s35")
    a("s_add_u32 s34, s34, 24")
    a("s_cmp_ge_u32 s2, 216")
    a("s_cselect_b32 s52, s34, s52")
    a("s_cselect_b32 s53, s33, s53")


def qpoll(a, vc, name, own, r=16):
    R = dict(a=r, b=r + 1, c=r + 2)
    a("v_add_u32 v%(a)d, 2, v0" % R)
    a("v_mul_u32_u24 v%(b)d, 43, v%(a)d" % R)
    a("v_lshrrev_b32 v%(b)d, 7, v%(b)d" % R)
    a("v_mul_u32_u24 v%(c)d, 3, v%(b)d" % R)
    a("v_sub_u32 v%(a)d, v%(a)d, v%(c)d" % R)
    a("s_sub_u32 s35, s32, 2")
    a("v_add_u32 v%(a)d, s35, v%(a)d" % R)
    a("v_max_i32 v%(a)d, 0, v%(a)d" % R)
    a("v_mul_u32_u24 v%(a)d, 12, v%(a)d" % R)
    a("v_lshl_add_u32 v%(a)d, v%(b)d, 2, v%(a)d" % R)
    a("v_add_u32 v%(a)d, s30, v%(a)d" % R)
    a("v_lshlrev_b32 v%(a)d, 7, v%(a)d" % R)
    a("v_add_u32 v%d, %d, v%d" % (r, L.WS_FLAG + F_Q * 128, r))
    if own:
        lds_spin(a, name + "w", vc, C_1, r + 2, (8,), 0)
    flag_poll(a, name, r, r + 1, "s%d" % TAG, 7, OPT["qslp"])
    lds_inc(a, vc, r + 2, C_GO1)


def code_touch(a):
    if not OPT["ctouch"]:
        return
    lab = a.newlabel("pc")
    a("s_getpc_b64 s[20:21]")
    a.label(lab)
    a("s_sub_u32 s20, s20, %s-%s" % (lab, NAME))
    a("s_subb_u32 s21, s21, 0")
    a("s_lshr_b32 s22, s2, 3")
    a("s_mul_i32 s22, s22, %d" % (12 * 128))
    a("v_lshlrev_b32 v20, 7, v0")
    a("v_add_u32 v20, s22, v20")
    a("v_min_u32 v20, L_end-%s, v20" % NAME)
    a("s_mov_b64 exec, 0xfff")
    a("global_load_dword v21, v20, s[20:21]")
    a("s_mov_b64 exec, -1")


def gemm_phase(a):
    a("s_mul_i32 s33, s32, 43")
    a("s_lshr_b32 s33, s33, 7")
    a("s_mul_i32 s34, s33, 3")
    a("s_sub_u32 s34, s32, s34")
    a("s_lshl_b32 s34, s34, 2")
    a("s_add_u32 s34, s34, s30")
    a("s_lshl_b32 s35, s31, 3")
    a("s_add_u32 s35, s35, s33")
    a("s_cmp_lt_u32 s3, 4")
    a("s_cbranch_scc1 L_comp")
    a("s_cmp_lt_u32 s3, 6")
    a("s_cbranch_scc0 L_ldw")
    a("s_lshr_b32 s41, s34, 2")
    a("s_mul_i32 s41, s41, 43")
    a("v_add_u32 v6, s41, v0")
    a("v_mul_u32_u24 v6, 1152, v6")
    a("v_and_b32 v7, 7, v0")
    a("s_lshl_b32 s41, s33, 3")
    a("v_add_u32 v7, s41, v7")
    a("v_mul_u32_u24 v7, 3456, v7")
    a("v_lshrrev_b32 v8, 3, v0")
    a("v_lshl_add_u32 v7, v8, 7, v7")
    a("s_cmp_eq_u32 s3, 4")
    a("s_cselect_b32 s42, 43, 24")
    a("s_cselect_b64 s[46:47], -1, 0")
    a("v_cndmask_b32 v6, v7, v6, s[46:47]")
    a("v_cmp_gt_u32 s[44:45], s42, v0")
    a("s_mul_i32 s39, s35, %d" % (128 * 1152))
    a("s_mul_i32 s46, s34, 288")
    a("s_and_b32 s46, s46, 0xffffff80")
    a("s_sub_u32 s47, %d, s46" % (576 * 3456))
    stamp(a, 11)
    a("s_waitcnt lgkmcnt(0)")
    stamp(a, 12)
    srd_off(a, 16, 4, "s39", 128 * 1152)
    srd_off(a, 20, 6, "s46", "s47")
    a("s_cmp_eq_u32 s3, 4")
    a("s_cselect_b32 s20, s16, s20")
    a("s_cselect_b32 s21, s17, s21")
    a("s_cselect_b32 s22, s18, s22")
    a("s_mov_b64 exec, s[44:45]")
    a("buffer_load_dword v20, v6, s[20:23], 0 offen %s" % OPT["t0p"])
    a("s_mov_b64 exec, -1")
    load_tag(a)
    a("v_lshrrev_b32 v1, 3, v0")
    a("v_mul_u32_u24 v1, 1152, v1")
    a("v_lshrrev_b32 v2, 4, v0")
    a("v_and_b32 v3, 7, v0")
    a("v_xor_b32 v3, v3, v2")
    a("v_lshl_add_u32 v4, v3, 4, v1")
    a("v_xor_b32 v3, 4, v3")
    a("v_lshl_add_u32 v5, v3, 4, v1")
    a("v_add_u32 v5, %d, v5" % (8 * 1152))
    a("s_sub_u32 s36, s3, 4")
    a("s_mul_i32 s37, s36, %d" % (64 * 1152))
    a("s_lshl_b32 s38, s36, 13")
    copy_scalars(a)
    stamp(a, 1)
    a("s_waitcnt vmcnt(0) lgkmcnt(0)")
    stamp(a, 2)

    def x_chunk(c):
        for i in range(8):
            a("s_add_u32 m0, s38, %d" % ((c % 4) * SLOT + i * 1024))
            a("s_add_u32 s40, s37, %d" % ((i >> 1) * 16 * 1152 + c * 128))
            a("buffer_load_dwordx4 v%d, s[16:19], s40 offen lds" % (4 + (i & 1)))

    def loader_loop(fn, n):
        LA = OPT["la"]
        a("s_barrier")
        stamp(a, 13)
        for c in range(LA):
            fn(c)
        stamp(a, 14)
        extra = 0
        for c in range(9):
            a("s_waitcnt vmcnt(%d)" % (n * min(LA - 1, 8 - c) + extra))
            a("s_barrier")
            if c + LA < 9:
                fn(c + LA)
            if c + LA == 8 and OPT["wt2"]:
                a("s_lshr_b32 s44, s2, 3")
                a("s_lshl_b32 s44, s44, 2")
                a("s_add_u32 s44, s44, s3")
                a("s_mul_i32 s44, s44, %d" % (54 * 128))
                a("s_sub_u32 s44, s44, %d" % (4 * 54 * 128))
                srd(a, 20, 28, 576 * 1152)
                a("v_lshlrev_b32 v21, 7, v0")
                a("buffer_load_dword v20, v21, s[20:23], s44 offen")
                extra = 1

    loader_loop(x_chunk, 8)
    a("s_branch L_copy")
    a.label("L_ldw")
    a("s_movk_i32 s41, 3641")
    for i in range(9):
        a("v_add_u32 v1, %d, v0" % (64 * i))
        a("v_mul_u32_u24 v2, s41, v1")
        a("v_lshrrev_b32 v2, 16, v2")
        a("v_mul_u32_u24 v3, 18, v2")
        a("v_sub_u32 v3, v1, v3")
        a("v_bfe_u32 v1, v2, 2, 2")
        a("v_lshlrev_b32 v1, 3, v1")
        a("v_lshrrev_b32 v13, 4, v2")
        a("v_lshl_add_u32 v1, v13, 2, v1")
        a("v_and_b32 v2, 3, v2")
        a("v_add_u32 v1, v1, v2")
        a("v_mul_u32_u24 v1, 3456, v1")
        a("v_lshl_add_u32 v%d, v3, 4, v1" % (4 + i))
        if i == 2:
            a("s_waitcnt lgkmcnt(0)")
            load_tag(a)
    a("s_sub_u32 s36, s3, 6")
    a("s_mul_i32 s37, s36, %d" % (32 * 3456))
    a("s_mul_i32 s38, s36, 9216")
    a("s_mul_i32 s39, s34, 288")
    a("s_sub_u32 s42, %d, s39" % (576 * 3456))
    copy_scalars(a)
    srd_off(a, 16, 6, "s39", "s42")
    a("s_waitcnt lgkmcnt(0)")

    def w_chunk(c):
        a("s_add_u32 s40, s37, %d" % (c * 64 * 3456))
        for i in range(9):
            a("s_add_u32 m0, s38, %d" % ((c % 4) * SLOT + 16384 + i * 1024))
            a("s_nop 0")
            a("buffer_load_dwordx4 v%d, s[16:19], s40 offen lds" % (4 + i))

    loader_loop(w_chunk, 9)
    a("s_branch L_copy")
    a.label("L_comp")
    ACC, XF, WF = 64, (136, 144), 24
    a("v_and_b32 v8, 15, v0")
    a("v_lshrrev_b32 v9, 4, v0")
    a("v_lshrrev_b32 v10, 1, v8")
    a("v_xor_b32 v10, v10, v9")
    a("s_lshl_b32 s36, s3, 12")
    a("v_lshlrev_b32 v2, 7, v8")
    a("v_lshl_add_u32 v2, v10, 4, v2")
    a("v_add_u32 v2, s36, v2")
    a("v_xor_b32 v3, 64, v2")
    a("v_add_u32 v4, %d, v2" % (2 * SLOT))
    a("v_add_u32 v5, %d, v3" % (2 * SLOT))
    a("v_lshrrev_b32 v10, 2, v0")
    a("v_mul_u32_u24 v6, 288, v10")
    a("v_and_b32 v10, 3, v0")
    a("v_lshl_add_u32 v6, v10, 3, v6")
    a("v_add_u32 v6, 16384, v6")
    a("v_add_u32 v7, %d, v6" % (2 * SLOT))
    a("s_waitcnt lgkmcnt(0)")
    load_tag(a)
    a("s_mov_b32 s36, 1.0")
    a("s_cmp_lt_u32 s34, 4")
    a("s_cselect_b32 s36, %s, s36" % f32(QSCALE))
    a("s_mov_b32 s37, s36")
    a("s_lshl_b32 s38, s3, 5")
    a("v_add_u32 v10, s38, v8")
    a("v_mul_u32_u24 v10, 72, v10")
    a("v_lshl_add_u32 v10, v9, 3, v10")
    a("v_add_u32 v10, %d, v10" % IMG)
    for ft in range(9):
        a("v_add_u32 v11, %d, v9" % (4 * ft))
        a("v_mul_u32_u24 v11, 57, v11")
        a("v_lshrrev_b32 v11, 9, v11")
        a("v_mul_u32_u24 v11, 9144, v11")
        a("v_add_u32 v%d, v11, v10" % (12 + ft))
    copy_scalars(a)
    a("s_waitcnt lgkmcnt(0)")

    def xreads(step):
        c, h2 = step >> 1, step & 1
        slot = c % 4
        return ["ds_read_b128 %s, v%d offset:%d" % (vr(XF[step & 1] + 4 * tt, 4), 2 + 2 * (slot >> 1) + h2,
                                                    (slot & 1) * SLOT + tt * 2048) for tt in range(2)]

    def wreads(step, ft):
        c, h2 = step >> 1, step & 1
        slot = c % 4
        return ["ds_read_b64_tr_b16 %s, v%d offset:%d" % (vr(WF + 4 * ft + 2 * sec, 2), 6 + (slot >> 1),
                                                          (slot & 1) * SLOT + h2 * 9216 + sec * 4608 + ft * 32)
                for sec in range(2)]

    def mfma(step, ft, tt):
        d = vr(ACC + 8 * ft + 4 * tt, 4)
        return "v_mfma_f32_16x16x32_bf16 %s, %s, %s, %s" % (
            d, vr(WF + 4 * ft, 4), vr(XF[step & 1] + 4 * tt, 4), "0" if step == 0 else d)

    def epi(k):
        ft, tt = k >> 1, k & 1
        b = ACC + 4 * k
        t = 152 + 2 * (k % 8)
        return ["v_pk_mul_f32 %s, %s, s[36:37]" % (vr(b, 2), vr(b, 2)),
                "v_pk_mul_f32 %s, %s, s[36:37]" % (vr(b + 2, 2), vr(b + 2, 2)),
                "v_cvt_pk_bf16_f32 v%d, v%d, v%d" % (t, b, b + 1),
                "v_cvt_pk_bf16_f32 v%d, v%d, v%d" % (t + 1, b + 2, b + 3),
                "ds_write_b64 v%d, %s offset:%d" % (12 + ft, vr(t, 2), 32 * ft + 1152 * tt)]

    a("s_barrier")
    a("s_barrier")
    stamp(a, 1)
    q = []

    def issue(tag, lst):
        for x in lst:
            a(x)
            q.append(tag)

    def need(tag):
        last = max(k for k, v in enumerate(q) if v == tag)
        a("s_waitcnt lgkmcnt(%d)" % min(15, len(q) - 1 - last))

    issue(("x", 0), xreads(0))
    for ft in range(9):
        issue(("w", 0, ft), wreads(0, ft))
    LAG = 3
    for step in range(18):
        if step & 1 and step < 17:
            a("s_barrier")
        for ft in range(9):
            need(("w", step, ft))
            a(mfma(step, ft, 0))
            if ft == 0 and step < 17:
                issue(("x", step + 1), xreads(step + 1))
            if step == 17 and 2 * ft >= LAG:
                e = epi(2 * ft - LAG)
                for x in e[:4]:
                    a(x)
                issue("e", e[4:])
            a(mfma(step, ft, 1))
            if step < 17:
                issue(("w", step + 1, ft), wreads(step + 1, ft))
            elif 2 * ft + 1 >= LAG:
                e = epi(2 * ft + 1 - LAG)
                for x in e[:4]:
                    a(x)
                issue("e", e[4:])
    for k in range(18 - LAG, 18):
        for x in epi(k):
            a(x)
    stamp(a, 2)
    a("s_waitcnt lgkmcnt(0)")
    a.label("L_copy")
    a("v_lshlrev_b32 v1, 4, v0")
    a("s_lshl_b32 s36, s3, 10")
    a("v_add_u32 v2, s36, v1")
    a("v_add_u32 v3, %d, v2" % (IMG + 4 * 8192))
    srd(a, 24, 8, L.QKV_BYTES)
    make_tag(a)
    a("s_barrier")
    for j in range(4):
        a("ds_read_b128 %s, v2 offset:%d" % (vr(4 + 4 * j, 4), IMG + j * 8192))
    a("s_cmp_lt_u32 s3, 4")
    a("s_cbranch_scc0 L_c4")
    a("ds_read_b128 v[20:23], v3")
    a("s_waitcnt lgkmcnt(0)")
    a("buffer_store_dwordx4 v[20:23], v1, s[24:27], s54 offen sc1")
    a.label("L_c4")
    for j in range(4):
        a("s_waitcnt lgkmcnt(%d)" % (3 - j))
        a("buffer_store_dwordx4 %s, v1, s[24:27], s%d offen sc1" % (vr(4 + 4 * j, 4), 50 + j))
    a("s_mov_b32 s63, s58")
    a("v_mov_b32 v%d, %d" % (vC, CTL))
    lds_inc(a, vC, 24, C_FI)
    stamp(a, 3)


def spare_phase(a):
    GW = 64
    a.label("L_sp")
    a("s_sub_u32 s36, s2, 192")
    a("s_cmp_ge_u32 s3, 8")
    a("s_cbranch_scc1 L_sp_ffn")
    a("s_cmp_ge_u32 s3, 4")
    a("s_cbranch_scc1 L_sp_hi")
    a("s_load_dwordx2 s[60:61], s[0:1], 32")
    a("s_load_dwordx2 s[62:63], s[0:1], 64")
    a("v_lshrrev_b32 v2, 3, v0")
    a("v_and_b32 v3, 7, v0")
    a("v_lshlrev_b32 v3, 4, v3")
    a("s_lshl_b32 s34, s36, 2")
    a("s_add_u32 s34, s34, s3")
    a("s_lshl_b32 s33, s34, 3")
    a("v_add_u32 v1, s33, v2")
    a("v_mul_u32_u24 v4, 1152, v1")
    a("v_add_u32 v4, v4, v3")
    a("s_mul_i32 s51, s34, %d" % (7 * 128))
    a("s_mul_i32 s52, s34, %d" % (21 * 128))
    a("v_lshlrev_b32 v7, 7, v0")
    a("s_waitcnt lgkmcnt(0)")
    load_tag(a)
    srd(a, 16, 6, 576 * 3456)
    srd(a, 20, 28, 576 * 1152)
    for i in range(9):
        a("global_load_dwordx4 %s, v4, s[4:5] offset:%d" % (vr(8 + 4 * i, 4), 128 * i))
        if i == 0:
            for j in range(9):
                a("global_load_dwordx4 %s, v3, s[60:61] offset:%d" % (vr(44 + 4 * j, 4), 128 * j))
                a("global_load_dwordx4 %s, v3, s[62:63] offset:%d" % (vr(80 + 4 * j, 4), 128 * j))
        else:
            a("s_add_u32 s53, s51, %d" % (1728 * 128 * i))
            a("s_mov_b64 exec, 0x7f")
            a("buffer_load_dword v124, v7, s[16:19], s53 offen")
            a("s_mov_b64 exec, -1")
    a("s_mov_b64 exec, 0x1fffff")
    a("buffer_load_dword v124, v7, s[20:23], s52 offen")
    a("s_mov_b64 exec, -1")
    a("v_mov_b32 v%d, %d" % (vC, CTL))
    a("s_waitcnt lgkmcnt(0)")
    make_tag(a)
    a("s_barrier")
    a("s_waitcnt vmcnt(2)")
    for i in range(36):
        p = 116 + (i & 3)
        a("v_dot2_f32_bf16 v%d, v%d, v%d, %s" % (p, 8 + i, 44 + i, "0" if i < 4 else "v%d" % p))
    a("s_nop 1")
    a("v_pk_add_f32 v[116:117], v[116:117], v[118:119]")
    a("v_add_f32 v5, v116, v117")
    sum8(a, (5,))
    bf16_round(a, 5, 5)
    a("v_ashrrev_i32 v7, 31, v5")
    a("v_or_b32 v7, 0x80000000, v7")
    a("v_xor_b32 v7, v7, v5")
    a("v_and_b32 v7, 0xffff0000, v7")
    a("v_sub_u32 v6, 0x7ff, v1")
    a("v_or_b32 v7, v7, v6")
    a("v_mov_b32 v5, 1")
    a("s_mov_b32 s54, 0x01010101")
    a("s_mov_b32 exec_lo, s54")
    a("s_mov_b32 exec_hi, s54")
    a("ds_max_u32 v%d, v7 offset:%d" % (vC, C_KMAX))
    a("s_mov_b64 exec, 1")
    a("ds_add_rtn_u32 v5, v%d, v5 offset:%d" % (vC, C_KCNT))
    a("ds_read_b32 v7, v%d offset:%d" % (vC, C_KMAX))
    a("s_lshl_b32 s53, s36, 3")
    a("s_add_u32 s53, s53, %d" % L.WS_KEYF)
    a("v_mov_b32 v4, s53")
    a("v_mov_b32 v6, s%d" % TAG)
    a("s_waitcnt lgkmcnt(0)")
    a("v_cmp_eq_u32 vcc, 3, v5")
    a("s_and_b64 exec, exec, vcc")
    a("s_cbranch_execz L_sp_nopub")
    a("global_store_dwordx2 v4, v[6:7], s[8:9] sc1")
    a.label("L_sp_nopub")
    a("s_mov_b64 exec, -1")
    stamp(a, 1)
    a("s_mov_b32 s55, 0x3f803f80")
    for i in range(36):
        x, w, p = 8 + i, 80 + i, 116 + (i & 3)
        t = 44 + 4 * (i & 3)
        a("v_lshlrev_b32 v%d, 16, v%d" % (t, x))
        a("v_and_b32 v%d, 0xffff0000, v%d" % (t + 1, x))
        a("v_lshlrev_b32 v%d, 16, v%d" % (t + 2, w))
        a("v_and_b32 v%d, 0xffff0000, v%d" % (t + 3, w))
        a("v_pk_mul_f32 %s, %s, %s" % (vr(t, 2), vr(t, 2), vr(t + 2, 2)))
        a("v_cvt_pk_bf16_f32 v%d, v%d, v%d" % (t, t, t + 1))
        a("v_dot2_f32_bf16 v%d, v%d, s55, %s" % (p, t, "0" if i < 4 else "v%d" % p))
    a("s_nop 1")
    a("v_pk_add_f32 v[116:117], v[116:117], v[118:119]")
    a("v_add_f32 v6, v116, v117")
    sum8(a, (6,))
    bf16_round(a, 6, 6)
    sigmoid(a, 6, 6)
    bf16_round(a, 6, 6)
    a("v_lshlrev_b32 v1, 2, v1")
    a("v_add_u32 v1, %d, v1" % L.WS_G)
    a("s_mov_b32 exec_lo, s54")
    a("s_mov_b32 exec_hi, s54")
    a("global_store_dword v1, v6, s[8:9] sc1")
    a("s_mov_b64 exec, -1")
    a("s_waitcnt vmcnt(0)")
    lds_inc(a, vC, 5, C_GD)
    if OPT["dtouch"]:
        srd(a, 16, 14, 4608 * 1152)
        a("s_mul_i32 s52, s34, %d" % (162 * 128))
        a("v_lshlrev_b32 v7, 7, v0")
        for k in range(3):
            a("buffer_load_dword v124, v7, s[16:19], s52 offen")
            a("s_add_u32 s52, s52, %d" % (54 * 128))
    a("s_mov_b32 s63, 0")
    stamp(a, 2)
    a("s_branch L_att")

    a.label("L_sp_hi")
    a("s_cmp_eq_u32 s3, 7")
    a("s_cbranch_scc0 L_sp_hi1")
    code_touch(a)
    a.label("L_sp_hi1")
    a("v_mov_b32 v%d, %d" % (vC, CTL))
    a("s_waitcnt lgkmcnt(0)")
    load_tag(a)
    a("s_mov_b32 s63, 0")
    a("s_waitcnt lgkmcnt(0)")
    make_tag(a)
    a("s_barrier")
    a("s_cmp_eq_u32 s3, 4")
    a("s_cbranch_scc1 L_sp_w4")
    a("s_cmp_eq_u32 s3, 5")
    a("s_cbranch_scc0 L_att")
    a("s_lshl_b32 s56, s36, 7")
    a("s_add_u32 s56, s56, %d" % (L.WS_FLAG + F_PA * 128))
    a("v_mov_b32 v9, s56")
    lds_spin(a, "L_sp_x5", vC, C_XS, 10, (1, 4), 4)
    a("ds_read_b64 v[14:15], v%d offset:%d" % (vC, C_IDX))
    a("v_mov_b32 v12, s%d" % TAG)
    a("s_waitcnt lgkmcnt(0)")
    a("v_mov_b32 v13, v14")
    a("v_mov_b32 v14, v15")
    a("s_mov_b64 exec, 1")
    a("global_store_dwordx3 v9, v[12:14], s[8:9] sc1")
    a("s_mov_b64 exec, -1")
    a("s_branch L_att")
    a.label("L_sp_w4")
    for k in range(4):
        a("v_mov_b32 v%d, 0" % (12 + k))
    a("s_cmp_lt_u32 s36, 36")
    a("s_cbranch_scc0 L_sp_nz")
    a("s_lshl_b32 s51, s36, 10")
    a("s_add_u32 s51, s51, %d" % L.WS_YP)
    a("v_lshlrev_b32 v4, 4, v0")
    a("v_add_u32 v4, s51, v4")
    a("global_store_dwordx4 v4, v[12:15], s[8:9] sc1")
    a("s_cmp_eq_u32 s36, 0")
    a("s_cbranch_scc0 L_sp_nz")
    a("v_lshlrev_b32 v4, 7, v0")
    a("v_add_u32 v4, %d, v4" % (L.WS_FLAG + F_Y * 128))
    a("global_store_dword v4, v12, s[8:9] sc1")
    a.label("L_sp_nz")
    a("v_lshlrev_b32 v8, 3, v0")
    a("v_add_u32 v8, %d, v8" % L.WS_KEYF)
    srd(a, 24, 4, 2048 * 1152)
    lds_spin(a, "L_sp_own", vC, C_KCNT, 10, (4,), 2)
    a("s_sleep %d" % OPT["slp0"])
    flag_poll(a, "L_sp_kp", 8, 10, "s%d" % TAG, 64, OPT["slp"], 2)
    a("v_lshlrev_b32 v8, 4, v0")
    stamp(a, 1)
    wave_umax(a, 11, 53)
    a("s_and_b32 s54, s53, 0x7ff")
    a("s_sub_u32 s54, 2047, s54")
    a("s_mul_i32 s55, s54, 1152")
    a("s_mov_b32 m0, %d" % XS)
    a("s_add_u32 s56, s55, 1024")
    a("buffer_load_dwordx4 v8, s[24:27], s55 offen lds")
    a("s_mov_b32 m0, %d" % (XS + 1024))
    a("s_mov_b64 exec, 0xff")
    a("buffer_load_dwordx4 v8, s[24:27], s56 offen lds")
    a("s_mov_b64 exec, -1")
    a("s_and_b32 s55, s53, 0xffff0000")
    a("s_xor_b32 s56, s55, 0x80000000")
    a("s_xor_b32 s57, s55, 0xffff0000")
    a("s_bitcmp1_b32 s55, 31")
    a("s_cselect_b32 s55, s56, s57")
    a("v_mov_b32 v12, s55")
    sigmoid(a, 13, 12)
    bf16_round(a, 13, 13)
    a("v_mov_b32 v12, s54")
    a("ds_write_b64 v%d, v[12:13] offset:%d" % (vC, C_IDX))
    a("v_mov_b32 v12, 1")
    a("s_waitcnt vmcnt(0)")
    a("ds_write_b32 v%d, v12 offset:%d" % (vC, C_XS))
    stamp(a, 2)
    a("s_branch L_att")

    a.label("L_sp_ffn")
    a("s_load_dwordx4 s[40:43], s[0:1], 40")
    a("v_mov_b32 v3, %d" % CTL)
    for k in range(4):
        a("v_mov_b32 v%d, 0" % (4 + k))
    a("v_lshlrev_b32 v1, 4, v0")
    a("v_add_u32 v2, v1, v3")
    a("s_mov_b64 exec, 0xff")
    a("ds_write_b128 v2, v[4:7]")
    a("s_mov_b64 exec, -1")
    a("v_lshlrev_b32 v2, 2, v0")
    a("v_add_u32 v2, %d, v2" % (XS + 1152))
    a("ds_write_b32 v2, v4")
    a("s_sub_u32 s59, s3, 8")
    a("s_mul_i32 s37, s36, 57")
    a("s_lshr_b32 s37, s37, 9")
    a("s_mul_i32 s38, s37, 9")
    a("s_sub_u32 s38, s36, s38")
    a("s_mul_i32 s49, s37, 84")
    a("s_mul_i32 s39, s49, 9216")
    a("s_lshl_b32 s48, s38, 10")
    a("s_add_u32 s39, s39, s48")
    a("s_sub_u32 s48, %d, s39" % (576 * 9216))
    a("s_min_i32 s48, s48, %d" % (83 * 9216 + 1024))
    a("s_max_i32 s48, s48, 0")
    a("v_lshrrev_b32 v160, 5, v0")
    a("v_mul_u32_u24 v160, 9216, v160")
    a("v_and_b32 v161, 31, v0")
    a("v_lshl_add_u32 v160, v161, 4, v160")
    a("s_mul_i32 s57, s59, 20480")
    a("s_add_u32 s57, s57, %d" % WO)
    a("s_mul_i32 s58, s59, %d" % (2 * 9216))
    a("s_waitcnt lgkmcnt(0)")
    load_tag(a)
    srd_off(a, 16, 40, "s39", "s48")
    srd_off(a, 20, 42, "s39", "s48")
    a("s_waitcnt lgkmcnt(0)")
    make_tag(a)
    a("s_barrier")
    for i in range(5):
        a("s_add_u32 s55, s58, %d" % (8 * (6 + i) * 9216))
        a("s_add_u32 s56, s55, 512")
        for k in range(4):
            a("s_add_u32 m0, s57, %d" % ((4 * i + k) * 1024))
            a("buffer_load_dwordx4 v160, s[%d:%d], s%d offen nt lds" % (16 + 4 * (k >> 1), 19 + 4 * (k >> 1), 55 + (k & 1)))
    for i in range(6):
        a("s_add_u32 s55, s58, %d" % (8 * i * 9216))
        for k in range(4):
            a("buffer_load_dwordx4 %s, v160, s[%d:%d], s55 offen offset:%d nt" % (
                vr(GW + 16 * i + 4 * k, 4), 16 + 4 * (k >> 1), 19 + 4 * (k >> 1), 512 * (k & 1)))
    a("s_lshl_b32 s55, s59, 1")
    a("s_add_u32 s55, s55, s49")
    a("v_lshrrev_b32 v51, 5, v0")
    a("v_add_u32 v51, s55, v51")
    a("v_lshlrev_b32 v51, 1, v51")
    a("v_add_u32 v51, %d, v51" % XS)
    a("v_and_b32 v2, 1, v0")
    a("v_lshlrev_b32 v2, 4, v2")
    a("v_lshrrev_b32 v4, 1, v0")
    a("v_xor_b32 v4, v4, v0")
    a("v_and_b32 v4, 8, v4")
    a("v_bfe_u32 v5, v0, 1, 2")
    a("v_or_b32 v4, v4, v5")
    for q in range(4):
        a("v_cmp_eq_u32 s[%d:%d], %d, v4" % (40 + 2 * q, 41 + 2 * q, q))
    a("v_bfe_u32 v4, v0, 3, 1")
    a("v_lshlrev_b32 v4, 9, v4")
    a("v_lshrrev_b32 v5, 4, v0")
    a("v_lshl_add_u32 v4, v5, 7, v4")
    a("v_and_b32 v5, 7, v0")
    a("v_lshl_add_u32 v4, v5, 2, v4")
    a("v_add_u32 v6, s57, v4")
    a("v_add_u32 v52, s57, v1")
    a("s_lshl_b32 s55, s59, 9")
    a("v_lshlrev_b32 v8, 3, v0")
    a("v_add_u32 v8, s55, v8")
    a("s_mul_i32 s52, s37, %d" % (4608 * 16))
    a("s_lshl_b32 s55, s38, 13")
    a("s_add_u32 s52, s52, s55")
    a("s_add_u32 s52, s52, %d" % L.WS_PA)
    a("v_lshlrev_b32 v9, 2, v8")
    a("v_add_u32 v9, s52, v9")
    a("v_add_u32 v8, %d, v8" % WO)
    stamp(a, 3)
    lds_spin(a, "L_sp_xs", 3, C_XS, 10, (1,), 2)
    a("s_setprio %d" % OPT["pr2"])
    for i in range(11):
        a("ds_read_u16 v%d, v51 offset:%d" % (53 + i, 16 * i))
    a("s_waitcnt vmcnt(24)")
    for k in range(4):
        a("ds_read_b128 %s, v52 offset:%d" % (vr(32 + 4 * k, 4), 1024 * k))
    a("s_waitcnt lgkmcnt(4)")
    for i in range(11):
        a("v_lshlrev_b32 v%d, v2, v%d" % (53 + i, 53 + i))
    first = True
    for i in range(5):
        selector(a, 12, 53 + 6 + i, 40)
        for k in range(4):
            d = vr(16 + 4 * k, 4)
            a("s_waitcnt lgkmcnt(%d)" % (3 if i < 4 else 3 - k))
            a("v_mfma_f32_16x16x32_bf16 %s, %s, v[12:15], %s" % (d, vr(32 + 4 * k, 4), "0" if first else d))
            if i < 4:
                a("ds_read_b128 %s, v52 offset:%d" % (vr(32 + 4 * k, 4), 1024 * (4 * (i + 1) + k)))
        first = False
    for i in range(6):
        selector(a, 12, 53 + i, 40)
        a("s_waitcnt vmcnt(%d)" % (4 * (5 - i)))
        for k in range(4):
            d = vr(16 + 4 * k, 4)
            a("v_mfma_f32_16x16x32_bf16 %s, %s, v[12:15], %s" % (d, vr(GW + 16 * i + 4 * k, 4), d))
    for k in range(4):
        for r in range(4):
            a("ds_write_b32 v6, v%d offset:%d" % (16 + 4 * k + r, 1024 * k + 32 * r))
    lds_inc(a, 3, 10, C_RED)
    lds_spin(a, "L_sp_rd", 3, C_RED, 10, (4,), 0)
    for p in range(4):
        a("ds_read_b64 %s, v8 offset:%d" % (vr(16 + 4 * p, 2), 20480 * p))
        a("ds_read_b64 %s, v8 offset:%d" % (vr(18 + 4 * p, 2), 20480 * p + 2048))
    a("v_mov_b32 v34, s%d" % TAG)
    a("v_mov_b32 v38, s%d" % TAG)
    a("s_waitcnt lgkmcnt(0)")
    lds_inc(a, 3, 10, C_RED2)
    for p in (2, 1):
        for h in range(2 * p):
            a("v_pk_add_f32 %s, %s, %s" % (vr(16 + 2 * h, 2), vr(16 + 2 * h, 2), vr(16 + 4 * p + 2 * h, 2)))
    a("v_mov_b32 v32, v16")
    a("v_mov_b32 v33, v18")
    a("v_mov_b32 v36, v17")
    a("v_mov_b32 v37, v19")
    a("s_cmp_eq_u32 s36, 63")
    a("s_cbranch_scc1 L_sp_nost")
    a("global_store_dwordx4 v9, v[32:35], s[8:9] sc1")
    a("global_store_dwordx4 v9, v[36:39], s[8:9] offset:16 sc1")
    a.label("L_sp_nost")
    stamp(a, 4)
    lds_spin(a, "L_sp_r2", 3, C_RED2, 10, (4,), 0)
    a("s_branch L_help2")


def attn_loop(a):
    for i in range(9):
        if i == 0:
            a("s_cmp_lt_u32 s43, 2")
            a("s_cbranch_scc0 L_hl")
            landed(a, 0x100, 4)
            a.label("L_hl")
        if i == 1:
            landed(a, 0x10000, 0)
        if i in (1, 2):
            a("s_cmp_eq_u32 s43, %d" % (2 - i))
            a("s_cbranch_scc0 L_hb%d_d" % i)
            stage_spin(a, "L_hb%d" % i, 1)
        if 3 <= i <= 6:
            a("s_cmp_eq_u32 s43, %d" % (6 - i))
            a("s_cbranch_scc0 L_hc%d_d" % i)
            stage_spin(a, "L_hc%d" % i, 2)
        a.label("L_it%d" % i)
        S, P = SS[i & 1], PP[i & 1]
        ex = ["v_exp_f32 v%d, v%d" % (S + r, S + r) for r in range(16)]
        cv = ["v_cvt_pk_bf16_f32 v%d, v%d, v%d" % (P + q, S + 2 * q, S + 2 * q + 1) for q in range(8)]
        if i == 0:
            mk = ["v_bfi_b32 v%d, v%d, 0, v%d" % (P + q, MSK + q, P + q) for q in range(8)]
        elif i == 8:
            mk = ["v_and_b32 v%d, v%d, v%d" % (P + q, MSK + q, P + q) for q in range(8)]
        else:
            mk = []
        m1 = qk(i + 1) if i < 8 else []
        m2 = pv(i - 1, i == 1) if i > 0 else []
        a("s_waitcnt lgkmcnt(%d)" % (4 if 0 < i < 8 else 0))
        seq = m1[:1] + ex[0:4] + m1[1:] + (k_reads(i + 2) if i + 2 <= 8 else []) + ex[4:8] + cv[0:2] + m2[:1] + \
            ex[8:12] + cv[2:4] + m2[1:]
        if i + 1 <= 8:
            seq += ["v_add_u32 v%d, v%d, v%d" % (vV, vV, vStep)] + v_reads(i + 1)
        seq += ex[12:16] + cv[4:8] + mk
        for x in seq:
            a(x)
    a("s_waitcnt lgkmcnt(0)")
    for x in pv(8, False):
        a(x)


def attention_phase(a):
    a.label("L_att")
    decode2(a)
    a("s_mul_i32 s33, s31, %d" % L.PAIR_BYTES)
    a("s_mul_i32 s34, s32, 9216")
    a("s_add_u32 s33, s33, s34")
    a("v_mov_b32 v%d, %d" % (vC, CTL))
    KS, VS = 16 * L.PAIR_BYTES - 18432, 32 * L.PAIR_BYTES - 18432
    grp = [(QB, 0), (KB, KS), (VB, VS), (KB + 9216, KS + 9216), (VB + 9216, VS + 9216), (KB + 18432, KS + 18432), (VB + 18432, VS + 18432)]
    a("s_lshl_b32 s34, s3, 10")
    for j in range(8):
        lo, hi = (8 * j) // 9, min(8 * j + 7, 62) // 9
        l0, g0 = grp[lo][0] + (8 * j - 9 * lo) * 1024, grp[lo][1] + (8 * j - 9 * lo) * 1024
        l1, g1 = grp[hi][0] + (8 * j - 9 * hi) * 1024, grp[hi][1] + (8 * j - 9 * hi) * 1024
        if j == 7:
            a("s_min_u32 s34, s34, %d" % (6 * 1024))
        if lo == hi:
            a("s_add_u32 s%d, s34, %d" % (16 + j, l0))
            a("s_add_u32 s%d, s33, %d" % (44 + j, g0 - l0 & 0xffffffff))
        else:
            a("s_mov_b32 s35, %d" % l0)
            a("s_mov_b32 s36, %d" % (g0 - l0 & 0xffffffff))
            a("s_cmp_ge_u32 s3, %d" % (9 * hi - 8 * j))
            a("s_cselect_b32 s35, %d, s35" % (l1 & 0xffffffff))
            a("s_cselect_b32 s36, %d, s36" % (g1 - l1 & 0xffffffff))
            a("s_add_u32 s%d, s34, s35" % (16 + j))
            a("s_add_u32 s%d, s33, s36" % (44 + j))
        a("s_add_u32 s%d, s%d, s%d" % (44 + j, 44 + j, 16 + j))
    a("v_mov_b32 v10, s63")
    a("v_mov_b32 v11, s%d" % TAG)
    a("s_waitcnt vmcnt(0)")
    lds_inc(a, vC, 9, C_1, rtn=True)
    a("s_cmp_lg_u32 s63, 0")
    a("s_cselect_b32 s35, 7, 99")
    a("s_waitcnt lgkmcnt(0)")
    a("v_readfirstlane_b32 s36, v9")
    a("s_cmp_eq_u32 s36, s35")
    a("s_cbranch_scc0 L_nofl1")
    a("s_mov_b64 exec, 1")
    a("global_store_dword v10, v11, s[8:9] sc1")
    a("s_mov_b64 exec, -1")
    a.label("L_nofl1")
    stamp(a, 4)
    a("s_and_b32 s42, s3, 1")
    a("s_lshr_b32 s43, s3, 1")
    a("s_mul_i32 s35, s43, 2304")
    a("s_mul_i32 s36, s42, 40")
    a("v_and_b32 v%d, 31, v0" % T)
    a("v_lshrrev_b32 v%d, 5, v0" % (T + 1))
    a("v_mul_u32_u24 v%d, 72, v%d" % (vKt, T))
    a("v_add_u32 v%d, s35, v%d" % (vKt, vKt))
    a("v_lshl_add_u32 v%d, v%d, 4, v%d" % (vK, T + 1, vKt))
    a("v_add_u32 v%d, s36, v%d" % (vK, vK))
    a("v_add_u32 v%d, 32, v%d" % (vKt, vKt))
    a("v_bfe_u32 v%d, v0, 2, 2" % (T + 2))
    a("v_lshl_add_u32 v%d, v%d, 2, v%d" % (T + 2, T + 1, T + 2))
    a("v_mul_u32_u24 v%d, 72, v%d" % (T + 2, T + 2))
    a("s_add_u32 s37, s35, %d" % VB)
    a("v_add_u32 v%d, s37, v%d" % (T + 2, T + 2))
    a("v_and_b32 v%d, 3, v0" % (T + 3))
    a("v_lshlrev_b32 v%d, 3, v%d" % (T + 4, T + 3))
    a("v_add_u32 v%d, s36, v%d" % (T + 4, T + 4))
    a("v_and_b32 v%d, 16, v0" % (T + 5))
    a("v_cmp_eq_u32 s[38:39], 0, v%d" % (T + 5))
    a("v_cndmask_b32 v%d, 32, v%d, s[38:39]" % (T + 4, T + 4))
    a("v_add_u32 v%d, v%d, v%d" % (vV, T + 2, T + 4))
    a("v_and_b32 v%d, 19, v0" % (T + 5))
    a("v_cmp_lt_u32 s[38:39], 16, v%d" % (T + 5))
    a("v_mov_b32 v%d, %d" % (T + 6, ONES))
    a("v_cndmask_b32 v%d, v%d, v%d, s[38:39]" % (vV, vV, T + 6))
    a("v_mov_b32 v%d, 2304" % (T + 6))
    a("v_cndmask_b32 v%d, v%d, 0, s[38:39]" % (vStep, T + 6))
    a("v_lshlrev_b32 v%d, 2, v%d" % (T + 2, T + 1))
    a("v_sub_u32 v%d, v%d, v%d" % (T + 2, T, T + 2))
    a("v_mov_b32 v%d, 0xffff" % (T + 3))
    for q in range(8):
        kl = 8 * (q >> 1) + 2 * (q & 1)
        a("v_cmp_le_i32 s[38:39], %d, v%d" % (kl, T + 2))
        a("v_cmp_le_i32 s[40:41], %d, v%d" % (kl + 1, T + 2))
        a("v_cndmask_b32 v%d, 0, v%d, s[38:39]" % (MSK + q, T + 3))
        a("v_cndmask_b32 v%d, v%d, -1, s[40:41]" % (MSK + q, MSK + q))
    a("s_lshl_b32 s41, s32, 2")
    a("s_add_u32 s41, s41, s43")
    a("s_sub_i32 s41, 8, s41")
    a("s_lshl_b32 s35, s32, 3")
    a("s_lshl_b32 s36, s43, 1")
    a("s_add_u32 s35, s35, s36")
    a("s_mul_i32 s35, s35, 18432")
    a("s_lshl_b32 s58, s31, 10")
    a("s_lshl_b32 s36, s42, 9")
    a("s_add_u32 s58, s58, s36")
    a("s_add_u32 s58, s58, s35")
    a("s_lshr_b32 s59, s31, 1")
    a("s_lshl_b32 s59, s59, 8")
    a("s_and_b32 s36, s31, 1")
    a("s_lshl_b32 s36, s36, 3")
    a("s_add_u32 s59, s59, s36")
    a("s_lshl_b32 s36, s42, 2")
    a("s_add_u32 s59, s59, s36")
    a("s_add_u32 s59, s59, s35")
    a("s_add_u32 s59, s59, 16384")
    a("v_bfe_u32 v152, v0, 4, 1")
    a("v_mul_u32_u24 v152, 18432, v152")
    a("v_and_b32 v153, 15, v0")
    a("v_lshl_add_u32 v152, v153, 4, v152")
    a("v_lshrrev_b32 v153, 5, v0")
    a("v_lshl_add_u32 v153, v153, 8, v152")
    a("v_cmp_gt_u32 vcc, 32, v0")
    a("s_cmp_eq_u32 s42, 0")
    a("s_cselect_b64 s[54:55], vcc, 0")
    a("s_cselect_b64 s[56:57], 0, vcc")
    a("v_and_b32 v%d, 3, v0" % (T + 2))
    a("v_mul_u32_u24 v%d, 576, v%d" % (T + 2, T + 2))
    a("v_mov_b32 v%d, 0x3f803f80" % (T + 4))
    a("v_mov_b32 v%d, v%d" % (T + 5, T + 4))
    a("v_lshlrev_b32 v%d, 4, v0" % (T + 3))
    srd(a, 36, 8, L.QKV_BYTES)
    srd_off(a, 24, 8, L.WS_O, 128 * 18432)
    a("s_lshr_b32 s35, s2, 6")
    a("s_lshl_b32 s35, s35, 4")
    a("s_add_u32 s35, s35, s3")
    a("s_cmp_eq_u32 s35, %d" % (3 * 16 + 6))
    a("s_cbranch_scc0 L_nq2")
    lds_spin(a, "L_sp_x6", vC, C_XS, T + 8, (1,), 8)
    qpoll(a, vC, "L_qp2", False, T + 8)
    a.label("L_nq2")
    lds_spin(a, "L_go1", vC, C_1, T, (8, 1), OPT["g1s"])
    stamp(a, 5)
    for j in range(8):
        if j == 6:
            a("ds_write_b64 v%d, %s offset:%d" % (T + 2, vr(T + 4, 2), ONES))
            landed(a, 1, 2)
            poison(a)
        a("s_mov_b32 m0, s%d" % (16 + j))
        a("s_nop 0")
        a("buffer_load_dwordx4 v%d, s[36:39], s%d offen %s lds" % (T + 3, 44 + j, OPT["kvl"]))
    a("s_cmp_lt_u32 s32, 2")
    a("s_cbranch_scc1 L_late")
    a("s_cmp_lt_u32 s43, 2")
    a("s_cbranch_scc1 L_sA")
    landed(a, 0x100, 4)
    stage_spin(a, "L_sB", 1)
    stage_spin(a, "L_sA", 0)
    stamp(a, 6)
    for x in q_reads() + k_reads(0) + k_reads(1) + v_reads(0):
        a(x)
    a("s_waitcnt lgkmcnt(7)")
    a("v_cndmask_b32 v%d, 0, v%d, s[54:55]" % (QT, QT))
    a("v_cndmask_b32 v%d, 0, v%d, s[56:57]" % (QT + 1, QT + 1))
    for x in qk(0):
        a(x)
    attn_loop(a)
    a.label("L_check")
    stamp(a, 7)
    a("s_mov_b32 s46, %s" % f32(2.0 ** 60))
    a("s_mov_b32 s47, %s" % f32(2.0 ** -60))
    a("s_mov_b32 s48, 0x7f800000")
    a("s_nop 7")
    a("s_nop 0")
    a("v_rcp_f32 v%d, v%d" % (T, OO + 12))
    a("v_cmp_gt_f32 s[50:51], s46, v%d" % (OO + 12))
    a("v_cmp_lt_f32 vcc, s47, v%d" % (OO + 12))
    for k in range(6):
        a("v_add_f32 v%d, abs(v%d), abs(v%d)" % (T + 2 + k, OO + 2 * k, OO + 2 * k + 1))
    a("s_and_b64 s[50:51], s[50:51], vcc")
    a("v_pk_add_f32 %s, %s, %s" % (vr(T + 2, 2), vr(T + 2, 2), vr(T + 4, 2)))
    a("v_pk_add_f32 %s, %s, %s" % (vr(T + 2, 2), vr(T + 2, 2), vr(T + 6, 2)))
    a("v_add_f32 v%d, v%d, v%d" % (T + 2, T + 2, T + 3))
    a("v_cmp_gt_f32 vcc, s48, v%d" % (T + 2))
    a("s_and_b64 s[50:51], s[50:51], vcc")
    a("s_cmp_eq_u64 s[50:51], -1")
    a("s_cbranch_scc0 L_slow")
    a.label("L_fin")
    a("s_cmp_eq_u32 s42, 0")
    a("s_cbranch_scc1 L_fa")
    a("v_mov_b32 v%d, v%d" % (OO + 8, OO + 10))
    a("v_mov_b32 v%d, v%d" % (OO + 9, OO + 11))
    a.label("L_fa")
    for k in range(0, 10, 2):
        a("v_pk_mul_f32 %s, %s, %s op_sel_hi:[1,0]" % (vr(OO + k, 2), vr(OO + k, 2), vr(T, 2)))
    for q in range(5):
        a("v_cvt_pk_bf16_f32 v%d, v%d, v%d" % (T + 4 + q, OO + 2 * q, OO + 2 * q + 1))
    a("buffer_store_dwordx4 %s, v153, s[24:27], s58 offen sc1" % vr(T + 4, 4))
    a("s_mov_b32 exec_hi, 0")
    a("buffer_store_dword v%d, v152, s[24:27], s59 offen sc1" % (T + 8))
    a("s_mov_b32 exec_hi, -1")


def q_reads():
    return ["ds_read_b64 %s, v%d offset:%d" % (vr(QM, 2), vK, QB),
            "ds_read_b64 %s, v%d offset:%d" % (vr(QM + 2, 2), vK, QB + 8),
            "ds_read_b64 %s, v%d offset:%d" % (vr(QT, 2), vKt, QB)]


def out_phase(a):
    A0, WFR, OF, ACC = 4, (20, 36, 100), 64, (52, 56, 60, 116)
    a("s_add_u32 s49, s3, 2")
    a("s_cmp_lt_u32 s3, 4")
    a("s_cselect_b32 s49, s3, s49")
    a("s_cmp_ge_u32 s52, 26")
    a("s_cbranch_scc1 L_end")
    a.label("L_out")
    a("s_and_b32 s40, s49, 1")
    a("s_lshr_b32 s54, s49, 1")
    a("s_mul_i32 s55, s52, 5")
    a("s_and_b32 s41, s55, 7")
    a("s_sub_u32 s44, 8, s41")
    a("s_cmp_lt_u32 s41, 4")
    a("s_cselect_b32 s44, 0, s44")
    a("s_add_u32 s44, s44, s54")
    a("s_sub_u32 s45, s44, 5")
    a("s_cmp_ge_u32 s44, 5")
    a("s_cselect_b32 s44, s45, s44")
    a("s_add_u32 s55, s55, s44")
    a("s_mov_b32 s59, 0x404")
    a("s_bitcmp1_b32 s55, 2")
    a("s_cselect_b32 s59, s59, 4")
    a("s_mov_b32 s48, %d" % PSLOT[0])
    for p in range(1, 5):
        a("s_cmp_eq_u32 s54, %d" % p)
        a("s_cselect_b32 s48, %d, s48" % PSLOT[p])
    a("s_mul_i32 s56, s55, %d" % (16 * 1152))
    a("s_lshl_b32 s57, s53, 7")
    a("s_add_u32 s56, s56, s57")
    a("s_add_u32 s58, s56, %d" % (8 * 1152))
    a("v_lshrrev_b32 v140, 3, v0")
    a("v_and_b32 v141, 7, v0")
    a("v_mul_u32_u24 v142, 1152, v140")
    a("v_lshl_add_u32 v142, v141, 4, v142")
    a("s_cmp_eq_u32 s40, 0")
    a("s_cbranch_scc0 L_noxg")
    srd(a, 20, 4, 2048 * 1152)
    a("buffer_load_dwordx4 %s, v142, s[20:23], s56 offen" % vr(XR, 4))
    a("buffer_load_dwordx4 %s, v142, s[20:23], s58 offen" % vr(XR + 4, 4))
    srd_off(a, 16, 8, L.WS_G, 8192)
    a("s_lshl_b32 s57, s55, 6")
    a("v_lshlrev_b32 v3, 2, v140")
    lds_spin(a, "L_pa", vC, C_PA, 10, (1,), 0)
    a("ds_read_b32 v145, v%d offset:%d" % (vC, C_IDX))
    a("buffer_load_dword v%d, v3, s[16:19], s57 offen sc1" % GR)
    a("buffer_load_dword v%d, v3, s[16:19], s57 offen offset:32 sc1" % (GR + 2))
    srd(a, 20, 10, 2048 * 1152)
    a.label("L_noxg")
    a("v_lshrrev_b32 v10, 2, v0")
    a("v_bfe_u32 v11, v0, 3, 2")
    a("v_lshlrev_b32 v11, 1, v11")
    a("v_bfe_u32 v12, v0, 1, 1")
    a("v_xor_b32 v11, v11, v12")
    a("v_and_b32 v12, 1, v0")
    a("v_lshlrev_b32 v12, 3, v12")
    a("v_lshl_add_u32 v12, v10, 7, v12")
    a("v_lshl_add_u32 v12, v11, 4, v12")
    a("s_mul_i32 s41, s40, %d" % (9 * 4096))
    a("s_add_u32 s41, s41, %d" % WO)
    for t in range(4):
        a("v_xor_b32 v%d, %d, v12" % (A0 + t, 32 * t))
        a("v_add_u32 v%d, s41, v%d" % (A0 + t, A0 + t))
    a("s_mul_i32 s41, s55, 18432")
    a("s_mul_i32 s44, s40, 9216")
    a("s_add_u32 s41, s41, s44")
    a("s_add_u32 s44, s41, 4096")
    a("s_add_u32 s45, s41, 8192")
    a("v_lshlrev_b32 v1, 4, v0")
    a("v_add_u32 v2, s48, v1")
    a("s_lshl_b32 s46, s54, 2")
    a("v_add_u32 v3, s46, v%d" % vC)

    def omx():
        for j in range(2):
            for q in range(4):
                xv = XR + 4 * j + q
                d = 146 + 8 * j + 2 * q if j == 0 else (156 + 2 * q)
                a("v_lshlrev_b32 v%d, 16, v%d" % (d, xv))
                a("v_and_b32 v%d, 0xffff0000, v%d" % (d + 1, xv))
                a("v_pk_mul_f32 %s, %s, %s op_sel:[0,1] op_sel_hi:[1,1]" % (vr(d, 2), vr(d, 2), vr(GR + 2 * j, 2)))

    def reads(sl):
        st = WFR[sl % 3]
        return ["ds_read_b64_tr_b16 %s, v%d offset:%d" % (vr(st + 4 * t + 2 * sec, 2), A0 + t, (32 * sl + 16 * sec) * 128)
                for t in range(4) for sec in range(2)]

    lds_spin(a, "L_wo", vC, C_WO, 10, (2,), 0)
    for x in reads(0) + reads(1):
        a(x)
    a("s_cmp_lt_u32 s3, 4")
    a("s_cselect_b32 s46, 1, 0x100")
    a("s_cmp_lt_u32 s3, 8")
    a("s_cselect_b32 s46, s46, 0")
    a("v_mov_b32 v13, s46")
    a("s_waitcnt vmcnt(0)")
    stamp(a, 8)
    a("s_mov_b64 exec, 1")
    a("ds_add_u32 v%d, v13 offset:%d" % (vC, C_O))
    a("s_mov_b64 exec, -1")
    a("s_mov_b32 s60, 0x200000")
    a.label("L_go2")
    a("ds_read_b64 v[10:11], v%d offset:%d" % (vC, C_O))
    a("s_waitcnt lgkmcnt(0)")
    a("v_readfirstlane_b32 s61, v10")
    a("v_readfirstlane_b32 s62, v11")
    a("s_and_b32 s61, s61, s59")
    a("s_cmp_eq_u32 s61, s59")
    a("s_cselect_b32 s62, s62, 0")
    a("s_cmp_eq_u32 s62, 1")
    a("s_cbranch_scc1 L_go2_d")
    a("s_sub_u32 s60, s60, 1")
    a("s_cbranch_scc0 L_go2")
    a.label("L_go2_d")
    if OPT["can"]:
        a("v_lshlrev_b32 v10, 9, v0")
        a("s_mul_i32 s46, s55, 18432")
        a("s_mov_b32 s60, 0x8000")
        a("s_mov_b32 exec_hi, 0")
        if OPT["cdel"]:
            a("s_sleep %d" % OPT["cdel"])
        a.label("L_can")
        a("buffer_load_dword v11, v10, s[24:27], s46 offen offset:496 sc1")
        a("s_waitcnt vmcnt(0)")
        a("v_cmp_eq_u32 vcc, -1, v11")
        a("s_cmp_eq_u64 vcc, 0")
        a("s_cbranch_scc1 L_can_d")
        a("s_sleep %d" % OPT["can"])
        a("s_sub_u32 s60, s60, 1")
        a("s_cbranch_scc0 L_can")
        a.label("L_can_d")
        a("s_mov_b32 exec_hi, -1")
    elif OPT["cdel"]:
        a("s_sleep %d" % OPT["cdel"])
    stamp(a, 9)
    LAO = OPT["lao"]

    def oload(s):
        a("buffer_load_dwordx4 %s, v1, s[24:27], s%d offen offset:%d sc1" % (vr(OF + 4 * s, 4), (41, 44, 45)[s // 4], 1024 * (s % 4)))

    def ocheck(sl):
        b = OF + 4 * sl
        if sl < 7:
            a("v_cmp_eq_u32 vcc, -1, v%d" % b)
        else:
            a("v_max3_u32 v10, v%d, v%d, v%d" % (b, b + 1, b + 2))
            a("v_max_u32 v10, v10, v%d" % (b + 3))
            a("v_cmp_eq_u32 vcc, -1, v10")
        a("s_nop 1")

    def oretry():
        for sl in range(9):
            a.label("L_or%d" % sl)
            a("s_sub_u32 s60, s60, 1")
            a("s_cbranch_scc1 L_ok%d" % sl)
            a("s_waitcnt vmcnt(0)")
            for s in range(sl, min(sl + LAO, 9)):
                oload(s)
            a("s_waitcnt vmcnt(%d)" % min(LAO - 1, 8 - sl))
            a("s_branch L_oc%d" % sl)

    RETRY.append(oretry)
    a("s_mov_b32 s60, 0x8000")
    for s in range(LAO):
        oload(s)
    a("v_readfirstlane_b32 s12, v145")
    a("v_and_b32 v143, 15, v0")
    a("v_mul_u32_u24 v143, 144, v143")
    a("v_lshrrev_b32 v144, 4, v0")
    a("v_lshlrev_b32 v144, 3, v144")
    a("v_add3_u32 v143, v143, v144, s48")
    a("v_mul_u32_u24 v144, 144, v140")
    a("v_lshl_add_u32 v144, v141, 4, v144")
    a("v_add_u32 v144, s48, v144")
    for j in range(2):
        a("v_sub_f32 v%d, 1.0, v%d" % (GR + 2 * j + 1, GR + 2 * j))
        bf16_round(a, GR + 2 * j + 1, GR + 2 * j + 1)
    omx()
    for sl in range(9):
        rd = reads(sl + 2) if sl < 7 else []
        a("s_waitcnt vmcnt(%d) lgkmcnt(%d)" % (min(LAO - 1, 8 - sl), 8 if sl < 8 else 0))
        a.label("L_oc%d" % sl)
        ocheck(sl)
        a("s_cbranch_vccnz L_or%d" % sl)
        a.label("L_ok%d" % sl)
        for t in range(4):
            d = vr(ACC[t], 4)
            a("v_mfma_f32_16x16x32_bf16 %s, %s, %s, %s" % (d, vr(WFR[sl % 3] + 4 * t, 4), vr(OF + 4 * sl, 4), "0" if sl == 0 else d))
            if t == 0 and sl + LAO < 9:
                oload(sl + LAO)
            for x in rd[2 * t:2 * t + 2]:
                a(x)
    stamp(a, 10)
    a("s_cmp_eq_u32 s40, 0")
    a("s_cbranch_scc1 L_k0")
    for t in range(4):
        a("ds_write_b128 v2, %s offset:%d" % (vr(ACC[t], 4), PART + 1024 * t))
    a("v_mov_b32 v10, 1")
    a("ds_write_b32 v3, v10 offset:%d" % C_PART)
    stamp_end(a, OPT["stw"], 0)
    stamp_end(a, 10, 2)
    a("s_endpgm")
    a.label("L_k0")
    a("s_lshr_b32 s46, s12, 4")
    a("s_cmp_eq_u32 s46, s55")
    a("s_cbranch_scc0 L_noy")
    lds_spin(a, "L_yw", vC, C_YRDY, 10, (1,))
    a("v_lshlrev_b32 v10, 5, v141")
    a("v_add_u32 v10, %d, v10" % YB)
    a("ds_read_b128 v[12:15], v10")
    a("ds_read_b128 v[16:19], v10 offset:16")
    a("s_and_b32 s46, s12, 15")
    a("s_waitcnt lgkmcnt(0)")
    for j in range(2):
        a("v_add_u32 v10, %d, v140" % (8 * j))
        a("v_cmp_eq_u32 s[50:51], s46, v10")
        for q in range(4):
            xv = XR + 4 * j + q
            a("v_lshlrev_b32 v10, 16, v%d" % xv)
            a("v_and_b32 v11, 0xffff0000, v%d" % xv)
            a("v_add_f32 v10, v10, v%d" % (12 + 2 * q))
            a("v_add_f32 v11, v11, v%d" % (13 + 2 * q))
            a("v_cvt_pk_bf16_f32 v10, v10, v11")
            a("v_cndmask_b32 v%d, v%d, v10, s[50:51]" % (xv, xv))
    omx()
    a.label("L_noy")
    lds_spin(a, "L_pw", 3, C_PART, 10, (1,), 0)
    stamp(a, 11)
    for t in range(4):
        a("ds_read_b128 %s, v2 offset:%d" % (vr(20 + 4 * t, 4), PART + 1024 * t))
    a("s_waitcnt lgkmcnt(0)")
    for t in range(4):
        b = ACC[t]
        a("v_pk_add_f32 %s, %s, %s" % (vr(b, 2), vr(b, 2), vr(20 + 4 * t, 2)))
        a("v_pk_add_f32 %s, %s, %s" % (vr(b + 2, 2), vr(b + 2, 2), vr(22 + 4 * t, 2)))
        a("v_cvt_pk_bf16_f32 v%d, v%d, v%d" % (40 + 2 * t, b, b + 1))
        a("v_cvt_pk_bf16_f32 v%d, v%d, v%d" % (41 + 2 * t, b + 2, b + 3))
        a("ds_write_b64 v143, %s offset:%d" % (vr(40 + 2 * t, 2), 32 * t))
    for j in range(2):
        a("ds_read_b128 %s, v144 offset:%d" % (vr(20 + 4 * j, 4), 8 * 144 * j))
    for j in range(2):
        a("s_waitcnt lgkmcnt(%d)" % (1 - j))
        for q in range(4):
            av = 20 + 4 * j + q
            d = 146 + 2 * q if j == 0 else 156 + 2 * q
            a("v_lshlrev_b32 v10, 16, v%d" % av)
            a("v_and_b32 v11, 0xffff0000, v%d" % av)
            a("v_pk_fma_f32 %s, v[10:11], %s, %s op_sel_hi:[1,0,1]" % (vr(d, 2), vr(GR + 2 * j, 2), vr(d, 2)))
            a("v_cvt_pk_bf16_f32 v%d, v%d, v%d" % (32 + 4 * j + q, d, d + 1))
        a("buffer_store_dwordx4 %s, v142, s[20:23], s%d offen %s" % (vr(32 + 4 * j, 4), 56 + 2 * j, OPT["ost"]))
    if OPT["stamp"]:
        stamp(a, 12)
        a("s_waitcnt vmcnt(0)")
        stamp(a, 13)
        stamp_end(a, OPT["stw"], 0)
    a("s_endpgm")


RETRY = []


def late_and_slow(a):
    RETRY[0]()
    a.label("L_late")
    a("s_mul_i32 s50, s41, 2304")
    a("v_add_u32 v%d, s50, v%d" % (T + 8, vK))
    a("v_add_u32 v%d, s50, v%d" % (T + 9, vKt))
    a("v_mul_u32_u24 v%d, s41, v%d" % (T + 2, vStep))
    a("v_add_u32 v%d, v%d, v%d" % (vV, vV, T + 2))
    for r in list(range(OO, OO + 16)) + list(range(VF[0], VF[0] + 32)):
        a("v_mov_b32 v%d, 0" % r)
    landed(a, 0x100, 0)
    stage_spin(a, "L_lt", 1)
    a("s_mov_b32 s43, 9")
    for x in q_reads():
        a(x)
    a("s_waitcnt lgkmcnt(0)")
    landed(a, 0x10000, 0)
    a("s_bitcmp1_b32 s41, 0")
    a("s_cbranch_scc1 L_late1")
    for par in range(2):
        if par:
            a.label("L_late1")
        for x in k_reads(par, T + 8, T + 9, 0):
            a(x)
        for x in k_reads(par + 1, T + 8, T + 9, 0):
            a(x.replace("offset:8", "offset:2312").replace("offset:0", "offset:2304"))
        for x in v_reads(par):
            a(x)
        a("s_waitcnt lgkmcnt(7)")
        a("v_cndmask_b32 v%d, 0, v%d, s[54:55]" % (QT, QT))
        a("v_cndmask_b32 v%d, 0, v%d, s[56:57]" % (QT + 1, QT + 1))
        for x in qk(par):
            a(x)
        a("s_nop 7")
        a("s_nop 3")
        for i0 in range(2 - par, 9, 2):
            a("s_cmp_eq_u32 s41, %d" % i0)
            a("s_cbranch_scc1 L_it%d" % i0)
        a("s_branch L_it%d" % (8 - par))

    a.label("L_slow")
    vKs, vKts, vM, vD0, vNeg = T + 8, T + 9, T + 10, T + 11, T + 12
    a("v_and_b32 v%d, 31, v0" % T)
    a("v_lshrrev_b32 v%d, 5, v0" % (T + 1))
    a("v_lshlrev_b32 v%d, 2, v%d" % (vD0, T + 1))
    a("v_sub_u32 v%d, v%d, v%d" % (vD0, vD0, T))
    a("v_mov_b32 v%d, 0xff800000" % vNeg)
    a("v_mov_b32 v%d, v%d" % (vM, vNeg))
    a("s_max_i32 s50, s41, 0")
    a("s_sub_u32 s51, 8, s50")
    a("v_mul_u32_u24 v%d, s51, v%d" % (T, vStep))
    a("v_sub_u32 v%d, v%d, v%d" % (vV, vV, T))
    a("s_mul_i32 s51, s50, 2304")
    for r in range(16):
        a("v_mov_b32 v%d, 0" % (OO + r))
    for ps in range(2):
        lab = "L_sp%d" % ps
        a("v_add_u32 v%d, s51, v%d" % (vKs, vK))
        a("v_add_u32 v%d, s51, v%d" % (vKts, vKt))
        a("s_mov_b32 s46, s50")
        a.label(lab)
        for x in k_reads(0, vKs, vKts):
            a(x)
        if ps == 1:
            for x in v_reads(0):
                a(x)
        a("s_mov_b32 s47, -31")
        a("s_mov_b32 s48, 62")
        a("s_cmp_eq_u32 s46, 0")
        a("s_cselect_b32 s47, 1, s47")
        a("s_cselect_b32 s48, 30, s48")
        a("s_cmp_eq_u32 s46, 8")
        a("s_cselect_b32 s48, 31, s48")
        a("s_waitcnt lgkmcnt(0)")
        for x in qk(0):
            a(x)
        a("v_subrev_u32 v%d, s47, v%d" % (T, vD0))
        for r in range(16):
            a("v_add_u32 v%d, %d, v%d" % (T + 1, 8 * (r >> 2) + (r & 3), T))
            a("v_cmp_ge_u32 vcc, s48, v%d" % (T + 1))
            a("v_cndmask_b32 v%d, v%d, v%d, vcc" % (SS[0] + r, vNeg, SS[0] + r))
            if ps == 0:
                a("v_max_f32 v%d, v%d, v%d" % (vM, vM, SS[0] + r))
            else:
                a("v_sub_f32 v%d, v%d, v%d" % (SS[0] + r, SS[0] + r, vM))
                a("v_exp_f32 v%d, v%d" % (SS[0] + r, SS[0] + r))
        if ps == 1:
            for q in range(8):
                a("v_cvt_pk_bf16_f32 v%d, v%d, v%d" % (PP[0] + q, SS[0] + 2 * q, SS[0] + 2 * q + 1))
            for x in pv(0, False):
                a(x)
            a("v_add_u32 v%d, v%d, v%d" % (vV, vV, vStep))
        a("v_add_u32 v%d, 2304, v%d" % (vKs, vKs))
        a("v_add_u32 v%d, 2304, v%d" % (vKts, vKts))
        a("s_add_u32 s46, s46, 1")
        a("s_cmp_lt_u32 s46, 9")
        a("s_nop 7")
        a("s_nop 7")
        a("s_cbranch_scc1 %s" % lab)
        if ps == 0:
            a("v_mov_b32 v%d, v%d" % (T, vM))
            a("v_permlane32_swap_b32 v%d, v%d" % (T, vM))
            a("v_max_f32 v%d, v%d, v%d" % (vM, vM, T))
    a("v_rcp_f32 v%d, v%d" % (T, OO + 12))
    a("s_nop 1")
    a("s_branch L_fin")


def helpers(a):
    a.label("L_help")
    a("s_cmp_eq_u32 s3, 9")
    a("s_cbranch_scc0 L_help1")
    code_touch(a)
    a.label("L_help1")
    a("v_mov_b32 v3, %d" % CTL)
    for k in range(4):
        a("v_mov_b32 v%d, 0" % (4 + k))
    a("v_lshlrev_b32 v1, 4, v0")
    a("v_add_u32 v2, v1, v3")
    a("s_mov_b64 exec, 0xff")
    a("ds_write_b128 v2, v[4:7]")
    a("s_mov_b64 exec, -1")
    a("s_waitcnt lgkmcnt(0)")
    load_tag(a)
    a("s_barrier")
    a("s_barrier")
    a("s_waitcnt lgkmcnt(0)")
    make_tag(a)
    a.label("L_help2")
    decode2(a)
    a("s_cmp_eq_u32 s3, 8")
    a("s_cbranch_scc1 L_down")
    a("v_lshrrev_b32 v1, 5, v0")
    a("v_bfe_u32 v2, v0, 3, 2")
    a("v_lshrrev_b32 v10, 4, v0")
    a("v_lshlrev_b32 v10, 1, v10")
    a("v_and_b32 v11, 7, v0")
    a("v_xor_b32 v10, v10, v11")
    a("v_lshl_add_u32 v4, v1, 2, v2")
    a("v_mul_u32_u24 v4, 1152, v4")
    a("v_lshl_add_u32 v4, v10, 4, v4")
    a("v_mul_u32_u24 v5, 72, v1")
    a("v_add_u32 v5, v5, v2")
    a("v_mul_u32_u24 v5, 1152, v5")
    a("v_lshl_add_u32 v5, v10, 4, v5")
    a("s_sub_u32 s36, s3, 9")
    a("s_mul_i32 s37, s36, %d" % (20 * 1152))
    a("s_mul_i32 s43, s36, %d" % (144 * 1152))
    a("s_lshl_b32 s38, s36, 10")
    a("s_add_u32 s38, s38, %d" % WO)
    a("s_lshl_b32 s39, s53, 7")
    a("s_sub_u32 s42, %d, s39" % (576 * 1152))
    srd_off(a, 16, 28, "s39", "s42")
    srd_off(a, 24, 8, L.WS_O, 128 * 18432)
    a("v_mov_b32 v%d, %d" % (vC, CTL))
    a("s_setprio %d" % OPT["pr3"])
    a("s_cmp_ge_u32 s2, 192")
    a("s_cbranch_scc1 L_wo_go")
    for k in range(9):
        a("s_barrier")
    a.label("L_wo_go")
    a("s_cmp_eq_u32 s3, 11")
    a("s_cbranch_scc1 L_ctl")
    a("s_cmp_ge_u32 s52, 26")
    a("s_cbranch_scc1 L_end")
    stage_spin(a, "L_wo_w", 0, 3, 10, 2)
    stamp(a, 5)
    for m in range(36):
        st, sec = m >> 1, m & 1
        a("s_add_u32 m0, s38, %d" % (2048 * m))
        if st < 16:
            a("s_add_u32 s40, s37, %d" % ((36 * st + 8 * sec) * 1152))
            a("buffer_load_dwordx4 v4, s[16:19], s40 offen lds")
        else:
            a("s_add_u32 s40, s43, %d" % ((288 * (st - 16) + 36 * sec + 16) * 1152))
            a("buffer_load_dwordx4 v5, s[16:19], s40 offen lds")
    a("s_waitcnt vmcnt(0)")
    stamp(a, 6)
    lds_inc(a, 3, 4, C_WO)
    a("s_setprio 0")
    a("s_sub_u32 s49, s3, 5")
    a("s_branch L_out")
    a.label("L_ctl")
    a("v_lshlrev_b32 v8, 7, v0")
    a("v_add_u32 v9, %d, v8" % (L.WS_FLAG + F_PA * 128))
    a("s_mul_i32 s46, s52, 5")
    a("s_lshr_b32 s46, s46, 3")
    a("s_min_u32 s46, s46, 14")
    a("s_lshl_b32 s46, s46, 11")
    a("s_add_u32 s46, s46, %d" % (L.WS_FLAG + F_O * 128))
    a("v_add_u32 v8, s46, v8")
    a("s_lshl_b32 s46, s32, 4")
    a("s_add_u32 s46, s46, s31")
    a("s_lshl_b32 s46, s46, 7")
    a("s_add_u32 s46, s46, %d" % (L.WS_FLAG + F_O * 128))
    a("v_mov_b32 v14, s46")
    a("v_mov_b32 v15, s%d" % TAG)
    a("s_cmp_ge_u32 s2, 192")
    a("s_cbranch_scc1 L_ct_0")
    qpoll(a, 3, "L_qp1", True)
    a.label("L_ct_0")
    def aux():
        flag_poll(a, "L_pap", 9, 4, "s%d" % TAG, 64, 8, 3)
        a("v_mov_b32 v10, v5")
        a("v_mov_b32 v11, v6")
        a("v_mov_b32 v4, 1")
        a("ds_write_b64 v3, v[10:11] offset:%d" % C_IDX)
        a("ds_write_b32 v3, v4 offset:%d" % C_PA)
        stamp(a, 5)

    if OPT["auxp"] == 0:
        aux()
    stage_spin(a, "L_ct_p", 2, 3, 10, 0)
    a("s_mov_b64 exec, 1")
    a("global_store_dword v14, v15, s[8:9] sc1")
    a("s_mov_b64 exec, -1")
    stamp(a, 6)
    if OPT["auxp"] == 1:
        aux()
    else:
        a("s_sleep %d" % OPT["slp3"])
    flag_poll(a, "L_op", 8, 12, "s%d" % TAG, 32, 2)
    lds_inc(a, 3, 10, C_GO2)
    stamp(a, 7)
    stamp_end(a, 11 if OPT["st11"] else 99, 3)
    a("ds_read_b64 v[10:11], v3 offset:%d" % C_IDX)
    a("s_waitcnt lgkmcnt(0)")
    a("v_readfirstlane_b32 s12, v10")
    a("v_readfirstlane_b32 s13, v11")
    a("s_mul_i32 s46, s52, 80")
    a("s_sub_u32 s46, s12, s46")
    a("s_cmp_lt_u32 s46, 80")
    a("s_cbranch_scc0 L_end")
    a("v_lshlrev_b32 v4, 7, v0")
    a("v_add_u32 v4, %d, v4" % (L.WS_FLAG + F_Y * 128))
    srd_off(a, 16, 8, L.WS_YP, 16 * 2304)
    a("v_lshrrev_b32 v6, 4, v0")
    a("v_mul_u32_u24 v6, 2304, v6")
    a("v_and_b32 v7, 15, v0")
    a("v_lshlrev_b32 v7, 4, v7")
    a("v_add_u32 v6, v6, v7")
    a("v_add_u32 v7, %d, v7" % YB)
    a("s_lshl_b32 s40, s53, 8")
    flag_poll(a, "L_yp", 4, 5, "16", 16, 2)
    for i in range(4):
        a("buffer_load_dwordx4 %s, v6, s[16:19], s40 offen sc1" % vr(8 + 4 * i, 4))
        a("s_add_u32 s40, s40, %d" % (4 * 2304))
    a("s_waitcnt vmcnt(0)")
    for i in range(1, 4):
        a("v_pk_add_f32 v[8:9], v[8:9], %s" % vr(8 + 4 * i, 2))
        a("v_pk_add_f32 v[10:11], v[10:11], %s" % vr(10 + 4 * i, 2))
    for k in range(4):
        a("v_mov_b32 v20, v%d" % (8 + k))
        a("v_permlane32_swap_b32 v20, v%d" % (8 + k))
        a("v_add_f32 v%d, v%d, v20" % (8 + k, 8 + k))
        a("v_mov_b32 v20, v%d" % (8 + k))
        a("v_permlane16_swap_b32 v20, v%d" % (8 + k))
        a("v_add_f32 v%d, v%d, v20" % (8 + k, 8 + k))
        bf16_round(a, 8 + k, 8 + k)
        a("v_mul_f32 v%d, s13, v%d" % (8 + k, 8 + k))
        bf16_round(a, 8 + k, 8 + k)
    a("v_mov_b32 v12, 1")
    a("ds_write_b128 v7, v[8:11]")
    a("ds_write_b32 v3, v12 offset:%d" % C_YRDY)
    a("s_cmp_eq_u32 s53, 0")
    a("s_cbranch_scc0 L_end")
    a("v_mov_b32 v4, %d" % L.WS_EPOCH)
    a("v_mov_b32 v5, s%d" % TAG)
    a("s_mov_b64 exec, 1")
    a("global_store_dword v4, v5, s[8:9]")
    a("s_endpgm")

    a.label("L_down")
    DW, DA = 20, 128
    a("v_lshrrev_b32 v2, 3, v0")
    a("v_and_b32 v10, 7, v0")
    a("v_mul_u32_u24 v16, 1152, v2")
    a("v_lshl_add_u32 v16, v10, 4, v16")
    a("s_mul_i32 s36, s2, 18")
    a("v_mul_u32_u24 v12, %d, v10" % (4608 * 16))
    a("v_add_u32 v11, s36, v2")
    a("v_lshl_add_u32 v17, v11, 4, v12")
    a("v_cmp_gt_u32 s[56:57], 7, v10")
    a("s_and_b32 s58, s56, 0xffff")
    a("s_mov_b32 s59, 0")
    a("s_mul_i32 s37, s2, %d" % (18 * 1152))
    a("v_and_b32 v1, 1, v0")
    a("v_lshlrev_b32 v1, 4, v1")
    sel_masks(a, 44, 11)
    a("v_lshrrev_b32 v11, 5, v0")
    a("v_bfe_u32 v12, v0, 3, 1")
    a("v_cmp_eq_u32 s[52:53], v11, v12")
    a("v_mul_u32_u24 v12, 2304, v12")
    a("v_bfe_u32 v11, v0, 4, 1")
    a("v_lshl_add_u32 v12, v11, 7, v12")
    a("v_lshl_add_u32 v12, v10, 2, v12")
    a("v_add_u32 v164, %d, v12" % HP)
    a("v_lshlrev_b32 v165, 2, v0")
    a("v_add_u32 v166, %d, v165" % HP)
    a("s_and_b32 s38, s2, 15")
    a("s_mul_i32 s39, s38, 2304")
    a("s_add_u32 s39, s39, %d" % L.WS_YP)
    a("v_add_u32 v165, s39, v165")
    a("s_lshl_b32 s38, s38, 7")
    a("s_add_u32 s38, s38, %d" % (L.WS_FLAG + F_Y * 128))
    srd_off(a, 16, 14, "s37", 18 * 1152)
    srd_off(a, 20, 8, L.WS_PA, 7 * 4608 * 16)
    def dloads():
        for t in range(0 if OPT["nodown"] else 3):
            a("s_movk_i32 s40, %d" % (9216 * t))
            for cg in range(9):
                a("buffer_load_dwordx4 %s, v16, s[16:19], s40 offen offset:%d %s" % (vr(DW + 4 * (9 * t + cg), 4), 128 * cg, "" if OPT["dtouch"] else "nt"))

    a("s_cmp_ge_u32 s2, 192")
    a("s_cbranch_scc1 L_dn_sp")
    for k in range(2, 11):
        if k == OPT["dpos"]:
            dloads()
        a("s_barrier")
    if OPT["dpos"] >= 0:
        if OPT["w8e"]:
            lds_spin(a, "L_dn_w2", 3, C_1, 10, (8,), 2)
        else:
            stage_spin(a, "L_dn_w2", 0, 3, 10, 2)
        a("s_branch L_dn_go")
    if OPT["dearly"]:
        lds_spin(a, "L_dn_e", 3, C_FI, 10, (8,), 0)
        dloads()
        stage_spin(a, "L_dn_w1", 0, 3, 10, 2)
        a("s_branch L_dn_go")
    a.label("L_dn_sp")
    a("s_setprio %d" % OPT["pr3"])
    stage_spin(a, "L_dn_w0", 0, 3, 10, 2)
    dloads()
    a.label("L_dn_go")
    stamp(a, 5)
    a("s_setprio %d" % OPT["pr1"])
    a("s_mov_b32 s60, 0x40000")
    a("v_mov_b32 v160, 0")
    a("v_mov_b32 v161, 0")
    a.label("L_dn_pa")
    a("buffer_load_dwordx3 v[4:6], v17, s[20:23], 0 offen sc1")
    a("buffer_load_dwordx3 v[8:10], v17, s[20:23], 0 offen offset:128 sc1")
    a("s_mov_b64 exec, 0xffff")
    a("buffer_load_dwordx3 v[160:162], v17, s[20:23], 0 offen offset:256 sc1")
    a("s_mov_b64 exec, -1")
    a("s_waitcnt vmcnt(0)")
    a("v_cmp_ne_u32 vcc, s%d, v6" % TAG)
    a("v_cmp_ne_u32 s[40:41], s%d, v10" % TAG)
    a("v_cmp_ne_u32 s[42:43], s%d, v162" % TAG)
    a("s_or_b64 vcc, vcc, s[40:41]")
    a("s_and_b64 vcc, vcc, s[56:57]")
    a("s_and_b64 s[42:43], s[42:43], s[58:59]")
    a("s_or_b64 vcc, vcc, s[42:43]")
    a("s_cmp_eq_u64 vcc, 0")
    a("s_cbranch_scc1 L_dn_pb")
    a("s_sleep 8")
    a("s_sub_u32 s60, s60, 1")
    a("s_cbranch_scc0 L_dn_pa")
    a.label("L_dn_pb")
    stamp(a, 8)
    a("v_mov_b32 v6, v8")
    a("v_mov_b32 v7, v9")
    a("v_mov_b32 v8, v160")
    a("v_mov_b32 v9, v161")
    sum8(a, (4, 5, 6, 7, 8, 9))
    for t in range(3):
        g, u = 4 + 2 * t, 5 + 2 * t
        bf16_round(a, g, g)
        bf16_round(a, u, u)
        sigmoid(a, 10, g)
        a("v_mul_f32 v%d, v%d, v10" % (g, g))
        bf16_round(a, g, g)
        a("v_mul_f32 v%d, v%d, v%d" % (g, g, u))
        a("v_cvt_pk_bf16_f32 v%d, v%d, v%d" % (g, g, g))
        a("v_and_b32 v%d, 0xffff, v%d" % (g, g))
        a("v_lshlrev_b32 v%d, v1, v%d" % (g, g))
    for t in range(3):
        selector(a, 12, 4 + 2 * t, 44)
        for cg in range(9):
            d = vr(DA + 4 * cg, 4)
            a("v_mfma_f32_16x16x32_bf16 %s, %s, v[12:15], %s" % (d, vr(DW + 4 * (9 * t + cg), 4), "0" if t == 0 else d))
    a("s_mov_b64 exec, s[52:53]")
    for cg in range(9):
        for r in range(4):
            a("ds_write_b32 v164, v%d offset:%d" % (DA + 4 * cg + r, 256 * cg + 32 * r))
    a("s_mov_b64 exec, -1")
    for cg in range(9):
        a("ds_read2st64_b32 %s, v166 offset0:%d offset1:%d" % (vr(20 + 2 * cg, 2), cg, cg + 9))
    stage_spin(a, "L_dn_at", 0, 3, 10, 2)
    lds_spin(a, "L_dn_ax", 3, C_PA, 10, (1,), 1)
    for cg in range(9):
        a("v_add_f32 v%d, v%d, v%d" % (20 + 2 * cg, 20 + 2 * cg, 21 + 2 * cg))
        a("global_atomic_add_f32 v165, v%d, s[8:9] offset:%d" % (20 + 2 * cg, 256 * cg))
    a("v_mov_b32 v4, s38")
    a("v_mov_b32 v5, 1")
    a("s_waitcnt vmcnt(0)")
    stamp(a, 7)
    a("s_mov_b64 exec, 1")
    a("global_atomic_add v4, v5, s[8:9] sc1")
    stamp_end(a, 8, 1)


def kf(a):
    a.label(NAME)
    a("s_cmp_ge_u32 s2, 256")
    a("s_cbranch_scc1 L_end")
    stamp_init(a)
    stamp(a, 0)
    a("s_load_dwordx4 s[4:7], s[0:1], 0")
    a("s_load_dwordx2 s[8:9], s[0:1], 88")
    a("s_load_dwordx2 s[10:11], s[0:1], 72")
    a("s_load_dwordx2 s[14:15], s[0:1], 56")
    a("s_load_dwordx2 s[28:29], s[0:1], 16")
    a("v_lshrrev_b32 v1, 6, v0")
    a("v_and_b32 v0, 63, v0")
    a("v_readfirstlane_b32 s3, v1")
    a("s_and_b32 s30, s2, 3")
    a("s_bfe_u32 s31, s2, 0x10002")
    a("s_lshr_b32 s32, s2, 3")
    a("s_cmp_ge_u32 s32, 24")
    a("s_cbranch_scc1 L_sp")
    a("s_cmp_ge_u32 s3, 8")
    a("s_cbranch_scc1 L_help")
    gemm_phase(a)
    attention_phase(a)
    out_phase(a)
    late_and_slow(a)
    spare_phase(a)
    helpers(a)
    a.label("L_end")
    a("s_endpgm")
```

```python
from asmdsl import vr, sr
import layout as L
from common import *
from k2 import (KB, VB, QB, ONES, vK, vKt, vV, vStep, QM, QT, MSK, KF, VF, PP, SS, OO, T,
                k_reads, v_reads, qk, pv)

NAME = "gated_mix__sliding_block__moe_arch_mod__prompt_kernel"
SLOT = 34816
IMG = SLOT
WO = 66560
CTL = 149568
YB = 149696
HP = 150016
YT = 154624
XS = 156672
KF_LDS = 162304
PSLOT = (QB, QB + 4096, 140288, 144384, 158208)
KF_VGPR = 168
PART = 0
STG = 20480
XR, GR = 128, 136
vC = 154
TAG = 65
C_O, C_GO2, C_A, C_WO, C_PART, C_YRDY, C_B, C_1, C_GO1, C_C, C_PA, C_IDX, C_RSEL = 0, 4, 8, 12, 96, 32, 36, 40, 44, 48, 52, 56, 60
C_KMAX, C_KCNT, C_XS, C_GD, C_RED, C_RED2, C_FI = 64, 68, 72, 76, 80, 84, 88
F_Q, F_O, F_PA, F_Y = 0, 192, 448, 512


def lds_spin(a, name, addr_v, off, regs, conds, slp=1):
    n = len(conds)
    a("s_mov_b32 s60, 0x200000")
    a.label(name)
    a(("ds_read_b64 %s, v%d offset:%d" % (vr(regs, 2), addr_v, off)) if n == 2 else
      ("ds_read_b32 v%d, v%d offset:%d" % (regs, addr_v, off)))
    a("s_waitcnt lgkmcnt(0)")
    a("v_readfirstlane_b32 s61, v%d" % regs)
    if n == 2:
        a("v_readfirstlane_b32 s62, v%d" % (regs + 1))
        a("s_lshl_b32 s62, s62, 8")
        a("s_or_b32 s61, s61, s62")
        a("s_cmp_eq_u32 s61, %d" % (conds[0] | (conds[1] << 8)))
    else:
        a("s_cmp_eq_u32 s61, %d" % conds[0])
    a("s_cbranch_scc1 %s_d" % name)
    if slp:
        a("s_sleep %d" % slp)
    a("s_sub_u32 s60, s60, 1")
    a("s_cmp_lg_u32 s60, 0")
    a("s_cbranch_scc1 %s" % name)
    a.label(name + "_d")


def stage_spin(a, name, stage, vc=vC, T=T, slp=0):
    a("s_mov_b32 s60, 0x200000")
    a.label(name)
    a("ds_read_b32 v%d, v%d offset:%d" % (T, vc, C_A))
    a("s_waitcnt lgkmcnt(0)")
    a("v_readfirstlane_b32 s61, v%d" % T)
    a("s_bitcmp1_b32 s61, %d" % (8 * stage + 3))
    a("s_cbranch_scc1 %s_d" % name)
    if slp:
        a("s_sleep %d" % slp)
    a("s_sub_u32 s60, s60, 1")
    a("s_cmp_lg_u32 s60, 0")
    a("s_cbranch_scc1 %s" % name)
    a.label(name + "_d")


def landed(a, inc, vm):
    a("v_mov_b32 v%d, %s" % (T, hex(inc)))
    a("s_waitcnt vmcnt(%d)" % vm)
    a("s_mov_b64 exec, 1")
    a("ds_add_u32 v%d, v%d offset:%d" % (vC, T, C_A))
    a("s_mov_b64 exec, -1")


def poison(a):
    if OPT["nopois"]:
        a("s_nop 0")
        a("buffer_load_dword v155, v152, s[24:27], s59 offen")
        a("buffer_load_dword v155, v152, s[24:27], s59 offen")
        return
    for k in range(4):
        a("v_mov_b32 v%d, -1" % (120 + k))
    a("buffer_store_dwordx4 %s, v153, s[24:27], s58 offen sc1" % vr(120, 4))
    a("s_mov_b32 exec_hi, 0")
    a("buffer_store_dword v%d, v152, s[24:27], s59 offen sc1" % 120)
    a("s_mov_b32 exec_hi, -1")


def tail_touch(a):
    a("buffer_load_dword v155, v152, s[24:27], s59 offen")


def flag_poll(a, name, voff, vt, want, lanes, slp=1, width=1):
    a("s_mov_b64 exec, %s" % ("-1" if lanes == 64 else hex((1 << lanes) - 1)))
    a("s_mov_b32 s60, 0x40000")
    a.label(name)
    a("global_load_dword%s %s, v%d, s[8:9] sc1" % ("" if width == 1 else "x%d" % width, vr(vt, width), voff))
    a("s_waitcnt vmcnt(0)")
    a("v_cmp_eq_u32 vcc, %s, v%d" % (want, vt))
    a("s_cmp_eq_u64 vcc, exec")
    a("s_cbranch_scc1 %s_d" % name)
    if slp:
        a("s_sleep %d" % slp)
    a("s_sub_u32 s60, s60, 1")
    a("s_cmp_lg_u32 s60, 0")
    a("s_cbranch_scc1 %s" % name)
    a.label(name + "_d")
    a("s_mov_b64 exec, -1")


def lds_inc(a, vz, vt, off, rtn=False):
    a("v_mov_b32 v%d, 1" % vt)
    a("s_mov_b64 exec, 1")
    if rtn:
        a("ds_add_rtn_u32 v%d, v%d, v%d offset:%d" % (vt, vz, vt, off))
    else:
        a("ds_add_u32 v%d, v%d offset:%d" % (vz, vt, off))
    a("s_mov_b64 exec, -1")


def load_tag(a):
    a("s_mov_b32 s64, %d" % L.WS_EPOCH)
    a("s_load_dword s%d, s[8:9], s64" % TAG)


def make_tag(a):
    a("s_mul_i32 s%d, s%d, 0x9e3779b1" % (TAG, TAG))
    a("s_add_u32 s%d, s%d, 0x7f4a7c15" % (TAG, TAG))


def copy_scalars(a):
    a("s_mul_i32 s55, s34, %d" % (4 * L.PAIR_BYTES))
    a("s_mul_i32 s56, s35, 9216")
    a("s_add_u32 s55, s55, s56")
    a("s_lshl_b32 s56, s3, 10")
    a("s_add_u32 s55, s55, s56")
    for j in range(5):
        a("s_add_u32 s57, s3, %d" % (8 * j))
        a("s_mul_i32 s57, s57, 57")
        a("s_lshr_b32 s57, s57, 9")
        a("s_mul_i32 s57, s57, %d" % (L.PAIR_BYTES - 9216))
        a("s_add_u32 s57, s57, s55")
        a("s_add_u32 s%d, s57, %d" % (50 + j, 8192 * j))
    a("s_mul_i32 s58, s35, 12")
    a("s_add_u32 s58, s58, s34")
    a("s_lshl_b32 s58, s58, 7")
    a("s_add_u32 s58, s58, %d" % (L.WS_FLAG + F_Q * 128))


def decode2(a):
    a("s_and_b32 s30, s2, 3")
    a("s_bfe_u32 s33, s2, 0x10002")
    a("s_bfe_u32 s32, s2, 0x20003")
    a("s_lshl_b32 s31, s30, 2")
    a("s_add_u32 s31, s31, s32")
    a("s_lshl_b32 s32, s33, 3")
    a("s_lshr_b32 s34, s2, 5")
    a("s_add_u32 s32, s32, s34")
    a("s_lshr_b32 s33, s2, 3")
    a("s_mul_i32 s34, s33, 57")
    a("s_lshr_b32 s34, s34, 9")
    a("s_mul_i32 s53, s34, 9")
    a("s_sub_u32 s53, s33, s53")
    a("s_lshl_b32 s52, s34, 3")
    a("s_and_b32 s34, s2, 7")
    a("s_add_u32 s52, s52, s34")
    a("s_sub_u32 s33, s2, 216")
    a("s_mul_i32 s34, s33, 57")
    a("s_lshr_b32 s34, s34, 9")
    a("s_mul_i32 s35, s34, 9")
    a("s_sub_u32 s33, s33, s35")
    a("s_add_u32 s34, s34, 24")
    a("s_cmp_ge_u32 s2, 216")
    a("s_cselect_b32 s52, s34, s52")
    a("s_cselect_b32 s53, s33, s53")


def qpoll(a, vc, name, own, r=16):
    R = dict(a=r, b=r + 1, c=r + 2)
    a("v_add_u32 v%(a)d, 2, v0" % R)
    a("v_mul_u32_u24 v%(b)d, 43, v%(a)d" % R)
    a("v_lshrrev_b32 v%(b)d, 7, v%(b)d" % R)
    a("v_mul_u32_u24 v%(c)d, 3, v%(b)d" % R)
    a("v_sub_u32 v%(a)d, v%(a)d, v%(c)d" % R)
    a("s_sub_u32 s35, s32, 2")
    a("v_add_u32 v%(a)d, s35, v%(a)d" % R)
    a("v_max_i32 v%(a)d, 0, v%(a)d" % R)
    a("v_mul_u32_u24 v%(a)d, 12, v%(a)d" % R)
    a("v_lshl_add_u32 v%(a)d, v%(b)d, 2, v%(a)d" % R)
    a("v_add_u32 v%(a)d, s30, v%(a)d" % R)
    a("v_lshlrev_b32 v%(a)d, 7, v%(a)d" % R)
    a("v_add_u32 v%d, %d, v%d" % (r, L.WS_FLAG + F_Q * 128, r))
    if own:
        lds_spin(a, name + "w", vc, C_1, r + 2, (8,), 0)
    flag_poll(a, name, r, r + 1, "s%d" % TAG, 7, OPT["qslp"])
    lds_inc(a, vc, r + 2, C_GO1)


def code_touch(a):
    if not OPT["ctouch"]:
        return
    lab = a.newlabel("pc")
    a("s_getpc_b64 s[20:21]")
    a.label(lab)
    a("s_sub_u32 s20, s20, %s-%s" % (lab, NAME))
    a("s_subb_u32 s21, s21, 0")
    a("s_lshr_b32 s22, s2, 3")
    a("s_mul_i32 s22, s22, %d" % (12 * 128))
    a("v_lshlrev_b32 v20, 7, v0")
    a("v_add_u32 v20, s22, v20")
    a("v_min_u32 v20, L_end-%s, v20" % NAME)
    a("s_mov_b64 exec, 0xfff")
    a("global_load_dword v21, v20, s[20:21]")
    a("s_mov_b64 exec, -1")


def gemm_phase(a):
    a("s_mul_i32 s33, s32, 43")
    a("s_lshr_b32 s33, s33, 7")
    a("s_mul_i32 s34, s33, 3")
    a("s_sub_u32 s34, s32, s34")
    a("s_lshl_b32 s34, s34, 2")
    a("s_add_u32 s34, s34, s30")
    a("s_lshl_b32 s35, s31, 3")
    a("s_add_u32 s35, s35, s33")
    a("s_cmp_lt_u32 s3, 4")
    a("s_cbranch_scc1 L_comp")
    a("s_cmp_lt_u32 s3, 6")
    a("s_cbranch_scc0 L_ldw")
    a("s_lshr_b32 s41, s34, 2")
    a("s_mul_i32 s41, s41, 43")
    a("v_add_u32 v6, s41, v0")
    a("v_mul_u32_u24 v6, 1152, v6")
    a("v_and_b32 v7, 7, v0")
    a("s_lshl_b32 s41, s33, 3")
    a("v_add_u32 v7, s41, v7")
    a("v_mul_u32_u24 v7, 3456, v7")
    a("v_lshrrev_b32 v8, 3, v0")
    a("v_lshl_add_u32 v7, v8, 7, v7")
    a("s_cmp_eq_u32 s3, 4")
    a("s_cselect_b32 s42, 43, 24")
    a("s_cselect_b64 s[46:47], -1, 0")
    a("v_cndmask_b32 v6, v7, v6, s[46:47]")
    a("v_cmp_gt_u32 s[44:45], s42, v0")
    a("s_mul_i32 s39, s35, %d" % (128 * 1152))
    a("s_mul_i32 s46, s34, 288")
    a("s_and_b32 s46, s46, 0xffffff80")
    a("s_sub_u32 s47, %d, s46" % (576 * 3456))
    stamp(a, 11)
    a("s_waitcnt lgkmcnt(0)")
    stamp(a, 12)
    srd_off(a, 16, 4, "s39", 128 * 1152)
    srd_off(a, 20, 6, "s46", "s47")
    a("s_cmp_eq_u32 s3, 4")
    a("s_cselect_b32 s20, s16, s20")
    a("s_cselect_b32 s21, s17, s21")
    a("s_cselect_b32 s22, s18, s22")
    a("s_mov_b64 exec, s[44:45]")
    a("buffer_load_dword v20, v6, s[20:23], 0 offen %s" % OPT["t0p"])
    a("s_mov_b64 exec, -1")
    load_tag(a)
    a("v_lshrrev_b32 v1, 3, v0")
    a("v_mul_u32_u24 v1, 1152, v1")
    a("v_lshrrev_b32 v2, 4, v0")
    a("v_and_b32 v3, 7, v0")
    a("v_xor_b32 v3, v3, v2")
    a("v_lshl_add_u32 v4, v3, 4, v1")
    a("v_xor_b32 v3, 4, v3")
    a("v_lshl_add_u32 v5, v3, 4, v1")
    a("v_add_u32 v5, %d, v5" % (8 * 1152))
    a("s_sub_u32 s36, s3, 4")
    a("s_mul_i32 s37, s36, %d" % (64 * 1152))
    a("s_lshl_b32 s38, s36, 13")
    copy_scalars(a)
    stamp(a, 1)
    a("s_waitcnt vmcnt(0) lgkmcnt(0)")
    stamp(a, 2)

    def x_chunk(c):
        for i in range(8):
            a("s_add_u32 m0, s38, %d" % ((c % 4) * SLOT + i * 1024))
            a("s_add_u32 s40, s37, %d" % ((i >> 1) * 16 * 1152 + c * 128))
            a("buffer_load_dwordx4 v%d, s[16:19], s40 offen lds" % (4 + (i & 1)))

    def loader_loop(fn, n):
        LA = OPT["la"]
        a("s_barrier")
        stamp(a, 13)
        for c in range(LA):
            fn(c)
        stamp(a, 14)
        extra = 0
        for c in range(9):
            a("s_waitcnt vmcnt(%d)" % (n * min(LA - 1, 8 - c) + extra))
            a("s_barrier")
            if c + LA < 9:
                fn(c + LA)
            if c + LA == 8 and OPT["wt2"]:
                a("s_lshr_b32 s44, s2, 3")
                a("s_lshl_b32 s44, s44, 2")
                a("s_add_u32 s44, s44, s3")
                a("s_mul_i32 s44, s44, %d" % (54 * 128))
                a("s_sub_u32 s44, s44, %d" % (4 * 54 * 128))
                srd(a, 20, 28, 576 * 1152)
                a("v_lshlrev_b32 v21, 7, v0")
                a("buffer_load_dword v20, v21, s[20:23], s44 offen")
                extra = 1

    loader_loop(x_chunk, 8)
    a("s_branch L_copy")
    a.label("L_ldw")
    a("s_movk_i32 s41, 3641")
    for i in range(9):
        a("v_add_u32 v1, %d, v0" % (64 * i))
        a("v_mul_u32_u24 v2, s41, v1")
        a("v_lshrrev_b32 v2, 16, v2")
        a("v_mul_u32_u24 v3, 18, v2")
        a("v_sub_u32 v3, v1, v3")
        a("v_bfe_u32 v1, v2, 2, 2")
        a("v_lshlrev_b32 v1, 3, v1")
        a("v_lshrrev_b32 v13, 4, v2")
        a("v_lshl_add_u32 v1, v13, 2, v1")
        a("v_and_b32 v2, 3, v2")
        a("v_add_u32 v1, v1, v2")
        a("v_mul_u32_u24 v1, 3456, v1")
        a("v_lshl_add_u32 v%d, v3, 4, v1" % (4 + i))
        if i == 2:
            a("s_waitcnt lgkmcnt(0)")
            load_tag(a)
    a("s_sub_u32 s36, s3, 6")
    a("s_mul_i32 s37, s36, %d" % (32 * 3456))
    a("s_mul_i32 s38, s36, 9216")
    a("s_mul_i32 s39, s34, 288")
    a("s_sub_u32 s42, %d, s39" % (576 * 3456))
    copy_scalars(a)
    srd_off(a, 16, 6, "s39", "s42")
    a("s_waitcnt lgkmcnt(0)")

    def w_chunk(c):
        a("s_add_u32 s40, s37, %d" % (c * 64 * 3456))
        for i in range(9):
            a("s_add_u32 m0, s38, %d" % ((c % 4) * SLOT + 16384 + i * 1024))
            a("s_nop 0")
            a("buffer_load_dwordx4 v%d, s[16:19], s40 offen lds" % (4 + i))

    loader_loop(w_chunk, 9)
    a("s_branch L_copy")
    a.label("L_comp")
    ACC, XF, WF = 64, (136, 144), 24
    a("v_and_b32 v8, 15, v0")
    a("v_lshrrev_b32 v9, 4, v0")
    a("v_lshrrev_b32 v10, 1, v8")
    a("v_xor_b32 v10, v10, v9")
    a("s_lshl_b32 s36, s3, 12")
    a("v_lshlrev_b32 v2, 7, v8")
    a("v_lshl_add_u32 v2, v10, 4, v2")
    a("v_add_u32 v2, s36, v2")
    a("v_xor_b32 v3, 64, v2")
    a("v_add_u32 v4, %d, v2" % (2 * SLOT))
    a("v_add_u32 v5, %d, v3" % (2 * SLOT))
    a("v_lshrrev_b32 v10, 2, v0")
    a("v_mul_u32_u24 v6, 288, v10")
    a("v_and_b32 v10, 3, v0")
    a("v_lshl_add_u32 v6, v10, 3, v6")
    a("v_add_u32 v6, 16384, v6")
    a("v_add_u32 v7, %d, v6" % (2 * SLOT))
    a("s_waitcnt lgkmcnt(0)")
    load_tag(a)
    a("s_mov_b32 s36, 1.0")
    a("s_cmp_lt_u32 s34, 4")
    a("s_cselect_b32 s36, %s, s36" % f32(QSCALE))
    a("s_mov_b32 s37, s36")
    a("s_lshl_b32 s38, s3, 5")
    a("v_add_u32 v10, s38, v8")
    a("v_mul_u32_u24 v10, 72, v10")
    a("v_lshl_add_u32 v10, v9, 3, v10")
    a("v_add_u32 v10, %d, v10" % IMG)
    for ft in range(9):
        a("v_add_u32 v11, %d, v9" % (4 * ft))
        a("v_mul_u32_u24 v11, 57, v11")
        a("v_lshrrev_b32 v11, 9, v11")
        a("v_mul_u32_u24 v11, 9144, v11")
        a("v_add_u32 v%d, v11, v10" % (12 + ft))
    copy_scalars(a)
    a("s_waitcnt lgkmcnt(0)")

    def xreads(step):
        c, h2 = step >> 1, step & 1
        slot = c % 4
        return ["ds_read_b128 %s, v%d offset:%d" % (vr(XF[step & 1] + 4 * tt, 4), 2 + 2 * (slot >> 1) + h2,
                                                    (slot & 1) * SLOT + tt * 2048) for tt in range(2)]

    def wreads(step, ft):
        c, h2 = step >> 1, step & 1
        slot = c % 4
        return ["ds_read_b64_tr_b16 %s, v%d offset:%d" % (vr(WF + 4 * ft + 2 * sec, 2), 6 + (slot >> 1),
                                                          (slot & 1) * SLOT + h2 * 9216 + sec * 4608 + ft * 32)
                for sec in range(2)]

    def mfma(step, ft, tt):
        d = vr(ACC + 8 * ft + 4 * tt, 4)
        return "v_mfma_f32_16x16x32_bf16 %s, %s, %s, %s" % (
            d, vr(WF + 4 * ft, 4), vr(XF[step & 1] + 4 * tt, 4), "0" if step == 0 else d)

    def epi(k):
        ft, tt = k >> 1, k & 1
        b = ACC + 4 * k
        t = 152 + 2 * (k % 8)
        return ["v_pk_mul_f32 %s, %s, s[36:37]" % (vr(b, 2), vr(b, 2)),
                "v_pk_mul_f32 %s, %s, s[36:37]" % (vr(b + 2, 2), vr(b + 2, 2)),
                "v_cvt_pk_bf16_f32 v%d, v%d, v%d" % (t, b, b + 1),
                "v_cvt_pk_bf16_f32 v%d, v%d, v%d" % (t + 1, b + 2, b + 3),
                "ds_write_b64 v%d, %s offset:%d" % (12 + ft, vr(t, 2), 32 * ft + 1152 * tt)]

    a("s_barrier")
    a("s_barrier")
    stamp(a, 1)
    q = []

    def issue(tag, lst):
        for x in lst:
            a(x)
            q.append(tag)

    def need(tag):
        last = max(k for k, v in enumerate(q) if v == tag)
        a("s_waitcnt lgkmcnt(%d)" % min(15, len(q) - 1 - last))

    issue(("x", 0), xreads(0))
    for ft in range(9):
        issue(("w", 0, ft), wreads(0, ft))
    LAG = 3
    for step in range(18):
        if step & 1 and step < 17:
            a("s_barrier")
        for ft in range(9):
            need(("w", step, ft))
            a(mfma(step, ft, 0))
            if ft == 0 and step < 17:
                issue(("x", step + 1), xreads(step + 1))
            if step == 17 and 2 * ft >= LAG:
                e = epi(2 * ft - LAG)
                for x in e[:4]:
                    a(x)
                issue("e", e[4:])
            a(mfma(step, ft, 1))
            if step < 17:
                issue(("w", step + 1, ft), wreads(step + 1, ft))
            elif 2 * ft + 1 >= LAG:
                e = epi(2 * ft + 1 - LAG)
                for x in e[:4]:
                    a(x)
                issue("e", e[4:])
    for k in range(18 - LAG, 18):
        for x in epi(k):
            a(x)
    stamp(a, 2)
    a("s_waitcnt lgkmcnt(0)")
    a.label("L_copy")
    a("v_lshlrev_b32 v1, 4, v0")
    a("s_lshl_b32 s36, s3, 10")
    a("v_add_u32 v2, s36, v1")
    a("v_add_u32 v3, %d, v2" % (IMG + 4 * 8192))
    srd(a, 24, 8, L.QKV_BYTES)
    make_tag(a)
    a("s_barrier")
    for j in range(4):
        a("ds_read_b128 %s, v2 offset:%d" % (vr(4 + 4 * j, 4), IMG + j * 8192))
    a("s_cmp_lt_u32 s3, 4")
    a("s_cbranch_scc0 L_c4")
    a("ds_read_b128 v[20:23], v3")
    a("s_waitcnt lgkmcnt(0)")
    a("buffer_store_dwordx4 v[20:23], v1, s[24:27], s54 offen sc1")
    a.label("L_c4")
    for j in range(4):
        a("s_waitcnt lgkmcnt(%d)" % (3 - j))
        a("buffer_store_dwordx4 %s, v1, s[24:27], s%d offen sc1" % (vr(4 + 4 * j, 4), 50 + j))
    a("s_mov_b32 s63, s58")
    a("v_mov_b32 v%d, %d" % (vC, CTL))
    lds_inc(a, vC, 24, C_FI)
    stamp(a, 3)


def spare_phase(a):
    GW = 64
    a.label("L_sp")
    a("s_sub_u32 s36, s2, 192")
    a("s_cmp_ge_u32 s3, 8")
    a("s_cbranch_scc1 L_sp_ffn")
    a("s_cmp_ge_u32 s3, 4")
    a("s_cbranch_scc1 L_sp_hi")
    a("s_load_dwordx2 s[60:61], s[0:1], 32")
    a("s_load_dwordx2 s[62:63], s[0:1], 64")
    a("v_lshrrev_b32 v2, 3, v0")
    a("v_and_b32 v3, 7, v0")
    a("v_lshlrev_b32 v3, 4, v3")
    a("s_lshl_b32 s34, s36, 2")
    a("s_add_u32 s34, s34, s3")
    a("s_lshl_b32 s33, s34, 3")
    a("v_add_u32 v1, s33, v2")
    a("v_mul_u32_u24 v4, 1152, v1")
    a("v_add_u32 v4, v4, v3")
    a("s_mul_i32 s51, s34, %d" % (7 * 128))
    a("s_mul_i32 s52, s34, %d" % (21 * 128))
    a("v_lshlrev_b32 v7, 7, v0")
    a("s_waitcnt lgkmcnt(0)")
    load_tag(a)
    srd(a, 16, 6, 576 * 3456)
    srd(a, 20, 28, 576 * 1152)
    for i in range(9):
        a("global_load_dwordx4 %s, v4, s[4:5] offset:%d" % (vr(8 + 4 * i, 4), 128 * i))
        if i == 0:
            for j in range(9):
                a("global_load_dwordx4 %s, v3, s[60:61] offset:%d" % (vr(44 + 4 * j, 4), 128 * j))
                a("global_load_dwordx4 %s, v3, s[62:63] offset:%d" % (vr(80 + 4 * j, 4), 128 * j))
        else:
            a("s_add_u32 s53, s51, %d" % (1728 * 128 * i))
            a("s_mov_b64 exec, 0x7f")
            a("buffer_load_dword v124, v7, s[16:19], s53 offen")
            a("s_mov_b64 exec, -1")
    a("s_mov_b64 exec, 0x1fffff")
    a("buffer_load_dword v124, v7, s[20:23], s52 offen")
    a("s_mov_b64 exec, -1")
    a("v_mov_b32 v%d, %d" % (vC, CTL))
    a("s_waitcnt lgkmcnt(0)")
    make_tag(a)
    a("s_barrier")
    a("s_waitcnt vmcnt(2)")
    for i in range(36):
        p = 116 + (i & 3)
        a("v_dot2_f32_bf16 v%d, v%d, v%d, %s" % (p, 8 + i, 44 + i, "0" if i < 4 else "v%d" % p))
    a("s_nop 1")
    a("v_pk_add_f32 v[116:117], v[116:117], v[118:119]")
    a("v_add_f32 v5, v116, v117")
    sum8(a, (5,))
    bf16_round(a, 5, 5)
    a("v_ashrrev_i32 v7, 31, v5")
    a("v_or_b32 v7, 0x80000000, v7")
    a("v_xor_b32 v7, v7, v5")
    a("v_and_b32 v7, 0xffff0000, v7")
    a("v_sub_u32 v6, 0x7ff, v1")
    a("v_or_b32 v7, v7, v6")
    a("v_mov_b32 v5, 1")
    a("s_mov_b32 s54, 0x01010101")
    a("s_mov_b32 exec_lo, s54")
    a("s_mov_b32 exec_hi, s54")
    a("ds_max_u32 v%d, v7 offset:%d" % (vC, C_KMAX))
    a("s_mov_b64 exec, 1")
    a("ds_add_rtn_u32 v5, v%d, v5 offset:%d" % (vC, C_KCNT))
    a("ds_read_b32 v7, v%d offset:%d" % (vC, C_KMAX))
    a("s_lshl_b32 s53, s36, 3")
    a("s_add_u32 s53, s53, %d" % L.WS_KEYF)
    a("v_mov_b32 v4, s53")
    a("v_mov_b32 v6, s%d" % TAG)
    a("s_waitcnt lgkmcnt(0)")
    a("v_cmp_eq_u32 vcc, 3, v5")
    a("s_and_b64 exec, exec, vcc")
    a("s_cbranch_execz L_sp_nopub")
    a("global_store_dwordx2 v4, v[6:7], s[8:9] sc1")
    a.label("L_sp_nopub")
    a("s_mov_b64 exec, -1")
    stamp(a, 1)
    a("s_mov_b32 s55, 0x3f803f80")
    for i in range(36):
        x, w, p = 8 + i, 80 + i, 116 + (i & 3)
        t = 44 + 4 * (i & 3)
        a("v_lshlrev_b32 v%d, 16, v%d" % (t, x))
        a("v_and_b32 v%d, 0xffff0000, v%d" % (t + 1, x))
        a("v_lshlrev_b32 v%d, 16, v%d" % (t + 2, w))
        a("v_and_b32 v%d, 0xffff0000, v%d" % (t + 3, w))
        a("v_pk_mul_f32 %s, %s, %s" % (vr(t, 2), vr(t, 2), vr(t + 2, 2)))
        a("v_cvt_pk_bf16_f32 v%d, v%d, v%d" % (t, t, t + 1))
        a("v_dot2_f32_bf16 v%d, v%d, s55, %s" % (p, t, "0" if i < 4 else "v%d" % p))
    a("s_nop 1")
    a("v_pk_add_f32 v[116:117], v[116:117], v[118:119]")
    a("v_add_f32 v6, v116, v117")
    sum8(a, (6,))
    bf16_round(a, 6, 6)
    sigmoid(a, 6, 6)
    bf16_round(a, 6, 6)
    a("v_lshlrev_b32 v1, 2, v1")
    a("v_add_u32 v1, %d, v1" % L.WS_G)
    a("s_mov_b32 exec_lo, s54")
    a("s_mov_b32 exec_hi, s54")
    a("global_store_dword v1, v6, s[8:9] sc1")
    a("s_mov_b64 exec, -1")
    a("s_waitcnt vmcnt(0)")
    lds_inc(a, vC, 5, C_GD)
    if OPT["dtouch"]:
        srd(a, 16, 14, 4608 * 1152)
        a("s_mul_i32 s52, s34, %d" % (162 * 128))
        a("v_lshlrev_b32 v7, 7, v0")
        for k in range(3):
            a("buffer_load_dword v124, v7, s[16:19], s52 offen")
            a("s_add_u32 s52, s52, %d" % (54 * 128))
    a("s_mov_b32 s63, 0")
    stamp(a, 2)
    a("s_branch L_att")

    a.label("L_sp_hi")
    a("s_cmp_eq_u32 s3, 7")
    a("s_cbranch_scc0 L_sp_hi1")
    code_touch(a)
    a.label("L_sp_hi1")
    a("v_mov_b32 v%d, %d" % (vC, CTL))
    a("s_waitcnt lgkmcnt(0)")
    load_tag(a)
    a("s_mov_b32 s63, 0")
    a("s_waitcnt lgkmcnt(0)")
    make_tag(a)
    a("s_barrier")
    a("s_cmp_eq_u32 s3, 4")
    a("s_cbranch_scc1 L_sp_w4")
    a("s_cmp_eq_u32 s3, 5")
    a("s_cbranch_scc0 L_att")
    a("s_lshl_b32 s56, s36, 7")
    a("s_add_u32 s56, s56, %d" % (L.WS_FLAG + F_PA * 128))
    a("v_mov_b32 v9, s56")
    lds_spin(a, "L_sp_x5", vC, C_XS, 10, (1, 4), 4)
    a("ds_read_b64 v[14:15], v%d offset:%d" % (vC, C_IDX))
    a("v_mov_b32 v12, s%d" % TAG)
    a("s_waitcnt lgkmcnt(0)")
    a("v_mov_b32 v13, v14")
    a("v_mov_b32 v14, v15")
    a("s_mov_b64 exec, 1")
    a("global_store_dwordx3 v9, v[12:14], s[8:9] sc1")
    a("s_mov_b64 exec, -1")
    a("s_branch L_att")
    a.label("L_sp_w4")
    for k in range(4):
        a("v_mov_b32 v%d, 0" % (12 + k))
    a("s_cmp_lt_u32 s36, 36")
    a("s_cbranch_scc0 L_sp_nz")
    a("s_lshl_b32 s51, s36, 10")
    a("s_add_u32 s51, s51, %d" % L.WS_YP)
    a("v_lshlrev_b32 v4, 4, v0")
    a("v_add_u32 v4, s51, v4")
    a("global_store_dwordx4 v4, v[12:15], s[8:9] sc1")
    a("s_cmp_eq_u32 s36, 0")
    a("s_cbranch_scc0 L_sp_nz")
    a("v_lshlrev_b32 v4, 7, v0")
    a("v_add_u32 v4, %d, v4" % (L.WS_FLAG + F_Y * 128))
    a("global_store_dword v4, v12, s[8:9] sc1")
    a.label("L_sp_nz")
    a("v_lshlrev_b32 v8, 3, v0")
    a("v_add_u32 v8, %d, v8" % L.WS_KEYF)
    srd(a, 24, 4, 2048 * 1152)
    lds_spin(a, "L_sp_own", vC, C_KCNT, 10, (4,), 2)
    a("s_sleep %d" % OPT["slp0"])
    flag_poll(a, "L_sp_kp", 8, 10, "s%d" % TAG, 64, OPT["slp"], 2)
    a("v_lshlrev_b32 v8, 4, v0")
    stamp(a, 1)
    wave_umax(a, 11, 53)
    a("s_and_b32 s54, s53, 0x7ff")
    a("s_sub_u32 s54, 2047, s54")
    a("s_mul_i32 s55, s54, 1152")
    a("s_mov_b32 m0, %d" % XS)
    a("s_add_u32 s56, s55, 1024")
    a("buffer_load_dwordx4 v8, s[24:27], s55 offen lds")
    a("s_mov_b32 m0, %d" % (XS + 1024))
    a("s_mov_b64 exec, 0xff")
    a("buffer_load_dwordx4 v8, s[24:27], s56 offen lds")
    a("s_mov_b64 exec, -1")
    a("s_and_b32 s55, s53, 0xffff0000")
    a("s_xor_b32 s56, s55, 0x80000000")
    a("s_xor_b32 s57, s55, 0xffff0000")
    a("s_bitcmp1_b32 s55, 31")
    a("s_cselect_b32 s55, s56, s57")
    a("v_mov_b32 v12, s55")
    sigmoid(a, 13, 12)
    bf16_round(a, 13, 13)
    a("v_mov_b32 v12, s54")
    a("ds_write_b64 v%d, v[12:13] offset:%d" % (vC, C_IDX))
    a("v_mov_b32 v12, 1")
    a("s_waitcnt vmcnt(0)")
    a("ds_write_b32 v%d, v12 offset:%d" % (vC, C_XS))
    stamp(a, 2)
    a("s_branch L_att")

    a.label("L_sp_ffn")
    a("s_load_dwordx4 s[40:43], s[0:1], 40")
    a("v_mov_b32 v3, %d" % CTL)
    for k in range(4):
        a("v_mov_b32 v%d, 0" % (4 + k))
    a("v_lshlrev_b32 v1, 4, v0")
    a("v_add_u32 v2, v1, v3")
    a("s_mov_b64 exec, 0xff")
    a("ds_write_b128 v2, v[4:7]")
    a("s_mov_b64 exec, -1")
    a("v_lshlrev_b32 v2, 2, v0")
    a("v_add_u32 v2, %d, v2" % (XS + 1152))
    a("ds_write_b32 v2, v4")
    a("s_sub_u32 s59, s3, 8")
    a("s_mul_i32 s37, s36, 57")
    a("s_lshr_b32 s37, s37, 9")
    a("s_mul_i32 s38, s37, 9")
    a("s_sub_u32 s38, s36, s38")
    a("s_mul_i32 s49, s37, 84")
    a("s_mul_i32 s39, s49, 9216")
    a("s_lshl_b32 s48, s38, 10")
    a("s_add_u32 s39, s39, s48")
    a("s_sub_u32 s48, %d, s39" % (576 * 9216))
    a("s_min_i32 s48, s48, %d" % (83 * 9216 + 1024))
    a("s_max_i32 s48, s48, 0")
    a("v_lshrrev_b32 v160, 5, v0")
    a("v_mul_u32_u24 v160, 9216, v160")
    a("v_and_b32 v161, 31, v0")
    a("v_lshl_add_u32 v160, v161, 4, v160")
    a("s_mul_i32 s57, s59, 20480")
    a("s_add_u32 s57, s57, %d" % WO)
    a("s_mul_i32 s58, s59, %d" % (2 * 9216))
    a("s_waitcnt lgkmcnt(0)")
    load_tag(a)
    srd_off(a, 16, 40, "s39", "s48")
    srd_off(a, 20, 42, "s39", "s48")
    a("s_waitcnt lgkmcnt(0)")
    make_tag(a)
    a("s_barrier")
    for i in range(5):
        a("s_add_u32 s55, s58, %d" % (8 * (6 + i) * 9216))
        a("s_add_u32 s56, s55, 512")
        for k in range(4):
            a("s_add_u32 m0, s57, %d" % ((4 * i + k) * 1024))
            a("buffer_load_dwordx4 v160, s[%d:%d], s%d offen nt lds" % (16 + 4 * (k >> 1), 19 + 4 * (k >> 1), 55 + (k & 1)))
    for i in range(6):
        a("s_add_u32 s55, s58, %d" % (8 * i * 9216))
        for k in range(4):
            a("buffer_load_dwordx4 %s, v160, s[%d:%d], s55 offen offset:%d nt" % (
                vr(GW + 16 * i + 4 * k, 4), 16 + 4 * (k >> 1), 19 + 4 * (k >> 1), 512 * (k & 1)))
    a("s_lshl_b32 s55, s59, 1")
    a("s_add_u32 s55, s55, s49")
    a("v_lshrrev_b32 v51, 5, v0")
    a("v_add_u32 v51, s55, v51")
    a("v_lshlrev_b32 v51, 1, v51")
    a("v_add_u32 v51, %d, v51" % XS)
    a("v_and_b32 v2, 1, v0")
    a("v_lshlrev_b32 v2, 4, v2")
    a("v_lshrrev_b32 v4, 1, v0")
    a("v_xor_b32 v4, v4, v0")
    a("v_and_b32 v4, 8, v4")
    a("v_bfe_u32 v5, v0, 1, 2")
    a("v_or_b32 v4, v4, v5")
    for q in range(4):
        a("v_cmp_eq_u32 s[%d:%d], %d, v4" % (40 + 2 * q, 41 + 2 * q, q))
    a("v_bfe_u32 v4, v0, 3, 1")
    a("v_lshlrev_b32 v4, 9, v4")
    a("v_lshrrev_b32 v5, 4, v0")
    a("v_lshl_add_u32 v4, v5, 7, v4")
    a("v_and_b32 v5, 7, v0")
    a("v_lshl_add_u32 v4, v5, 2, v4")
    a("v_add_u32 v6, s57, v4")
    a("v_add_u32 v52, s57, v1")
    a("s_lshl_b32 s55, s59, 9")
    a("v_lshlrev_b32 v8, 3, v0")
    a("v_add_u32 v8, s55, v8")
    a("s_mul_i32 s52, s37, %d" % (4608 * 16))
    a("s_lshl_b32 s55, s38, 13")
    a("s_add_u32 s52, s52, s55")
    a("s_add_u32 s52, s52, %d" % L.WS_PA)
    a("v_lshlrev_b32 v9, 2, v8")
    a("v_add_u32 v9, s52, v9")
    a("v_add_u32 v8, %d, v8" % WO)
    stamp(a, 3)
    lds_spin(a, "L_sp_xs", 3, C_XS, 10, (1,), 2)
    a("s_setprio %d" % OPT["pr2"])
    for i in range(11):
        a("ds_read_u16 v%d, v51 offset:%d" % (53 + i, 16 * i))
    a("s_waitcnt vmcnt(24)")
    for k in range(4):
        a("ds_read_b128 %s, v52 offset:%d" % (vr(32 + 4 * k, 4), 1024 * k))
    a("s_waitcnt lgkmcnt(4)")
    for i in range(11):
        a("v_lshlrev_b32 v%d, v2, v%d" % (53 + i, 53 + i))
    first = True
    for i in range(5):
        selector(a, 12, 53 + 6 + i, 40)
        for k in range(4):
            d = vr(16 + 4 * k, 4)
            a("s_waitcnt lgkmcnt(%d)" % (3 if i < 4 else 3 - k))
            a("v_mfma_f32_16x16x32_bf16 %s, %s, v[12:15], %s" % (d, vr(32 + 4 * k, 4), "0" if first else d))
            if i < 4:
                a("ds_read_b128 %s, v52 offset:%d" % (vr(32 + 4 * k, 4), 1024 * (4 * (i + 1) + k)))
        first = False
    for i in range(6):
        selector(a, 12, 53 + i, 40)
        a("s_waitcnt vmcnt(%d)" % (4 * (5 - i)))
        for k in range(4):
            d = vr(16 + 4 * k, 4)
            a("v_mfma_f32_16x16x32_bf16 %s, %s, v[12:15], %s" % (d, vr(GW + 16 * i + 4 * k, 4), d))
    for k in range(4):
        for r in range(4):
            a("ds_write_b32 v6, v%d offset:%d" % (16 + 4 * k + r, 1024 * k + 32 * r))
    lds_inc(a, 3, 10, C_RED)
    lds_spin(a, "L_sp_rd", 3, C_RED, 10, (4,), 0)
    for p in range(4):
        a("ds_read_b64 %s, v8 offset:%d" % (vr(16 + 4 * p, 2), 20480 * p))
        a("ds_read_b64 %s, v8 offset:%d" % (vr(18 + 4 * p, 2), 20480 * p + 2048))
    a("v_mov_b32 v34, s%d" % TAG)
    a("v_mov_b32 v38, s%d" % TAG)
    a("s_waitcnt lgkmcnt(0)")
    lds_inc(a, 3, 10, C_RED2)
    for p in (2, 1):
        for h in range(2 * p):
            a("v_pk_add_f32 %s, %s, %s" % (vr(16 + 2 * h, 2), vr(16 + 2 * h, 2), vr(16 + 4 * p + 2 * h, 2)))
    a("v_mov_b32 v32, v16")
    a("v_mov_b32 v33, v18")
    a("v_mov_b32 v36, v17")
    a("v_mov_b32 v37, v19")
    a("s_cmp_eq_u32 s36, 63")
    a("s_cbranch_scc1 L_sp_nost")
    a("global_store_dwordx4 v9, v[32:35], s[8:9] sc1")
    a("global_store_dwordx4 v9, v[36:39], s[8:9] offset:16 sc1")
    a.label("L_sp_nost")
    stamp(a, 4)
    lds_spin(a, "L_sp_r2", 3, C_RED2, 10, (4,), 0)
    a("s_branch L_help2")


def attn_loop(a):
    for i in range(9):
        if i == 0:
            a("s_cmp_lt_u32 s43, 2")
            a("s_cbranch_scc0 L_hl")
            landed(a, 0x100, 4)
            a.label("L_hl")
        if i == 1:
            landed(a, 0x10000, 0)
        if i in (1, 2):
            a("s_cmp_eq_u32 s43, %d" % (2 - i))
            a("s_cbranch_scc0 L_hb%d_d" % i)
            stage_spin(a, "L_hb%d" % i, 1)
        if 3 <= i <= 6:
            a("s_cmp_eq_u32 s43, %d" % (6 - i))
            a("s_cbranch_scc0 L_hc%d_d" % i)
            stage_spin(a, "L_hc%d" % i, 2)
        a.label("L_it%d" % i)
        S, P = SS[i & 1], PP[i & 1]
        ex = ["v_exp_f32 v%d, v%d" % (S + r, S + r) for r in range(16)]
        cv = ["v_cvt_pk_bf16_f32 v%d, v%d, v%d" % (P + q, S + 2 * q, S + 2 * q + 1) for q in range(8)]
        if i == 0:
            mk = ["v_bfi_b32 v%d, v%d, 0, v%d" % (P + q, MSK + q, P + q) for q in range(8)]
        elif i == 8:
            mk = ["v_and_b32 v%d, v%d, v%d" % (P + q, MSK + q, P + q) for q in range(8)]
        else:
            mk = []
        m1 = qk(i + 1) if i < 8 else []
        m2 = pv(i - 1, i == 1) if i > 0 else []
        a("s_waitcnt lgkmcnt(%d)" % (4 if 0 < i < 8 else 0))
        seq = m1[:1] + ex[0:4] + m1[1:] + (k_reads(i + 2) if i + 2 <= 8 else []) + ex[4:8] + cv[0:2] + m2[:1] + \
            ex[8:12] + cv[2:4] + m2[1:]
        if i + 1 <= 8:
            seq += ["v_add_u32 v%d, v%d, v%d" % (vV, vV, vStep)] + v_reads(i + 1)
        seq += ex[12:16] + cv[4:8] + mk
        for x in seq:
            a(x)
    a("s_waitcnt lgkmcnt(0)")
    for x in pv(8, False):
        a(x)


def attention_phase(a):
    a.label("L_att")
    decode2(a)
    a("s_mul_i32 s33, s31, %d" % L.PAIR_BYTES)
    a("s_mul_i32 s34, s32, 9216")
    a("s_add_u32 s33, s33, s34")
    a("v_mov_b32 v%d, %d" % (vC, CTL))
    KS, VS = 16 * L.PAIR_BYTES - 18432, 32 * L.PAIR_BYTES - 18432
    grp = [(QB, 0), (KB, KS), (VB, VS), (KB + 9216, KS + 9216), (VB + 9216, VS + 9216), (KB + 18432, KS + 18432), (VB + 18432, VS + 18432)]
    a("s_lshl_b32 s34, s3, 10")
    for j in range(8):
        lo, hi = (8 * j) // 9, min(8 * j + 7, 62) // 9
        l0, g0 = grp[lo][0] + (8 * j - 9 * lo) * 1024, grp[lo][1] + (8 * j - 9 * lo) * 1024
        l1, g1 = grp[hi][0] + (8 * j - 9 * hi) * 1024, grp[hi][1] + (8 * j - 9 * hi) * 1024
        if j == 7:
            a("s_min_u32 s34, s34, %d" % (6 * 1024))
        if lo == hi:
            a("s_add_u32 s%d, s34, %d" % (16 + j, l0))
            a("s_add_u32 s%d, s33, %d" % (44 + j, g0 - l0 & 0xffffffff))
        else:
            a("s_mov_b32 s35, %d" % l0)
            a("s_mov_b32 s36, %d" % (g0 - l0 & 0xffffffff))
            a("s_cmp_ge_u32 s3, %d" % (9 * hi - 8 * j))
            a("s_cselect_b32 s35, %d, s35" % (l1 & 0xffffffff))
            a("s_cselect_b32 s36, %d, s36" % (g1 - l1 & 0xffffffff))
            a("s_add_u32 s%d, s34, s35" % (16 + j))
            a("s_add_u32 s%d, s33, s36" % (44 + j))
        a("s_add_u32 s%d, s%d, s%d" % (44 + j, 44 + j, 16 + j))
    a("v_mov_b32 v10, s63")
    a("v_mov_b32 v11, s%d" % TAG)
    a("s_waitcnt vmcnt(0)")
    lds_inc(a, vC, 9, C_1, rtn=True)
    a("s_cmp_lg_u32 s63, 0")
    a("s_cselect_b32 s35, 7, 99")
    a("s_waitcnt lgkmcnt(0)")
    a("v_readfirstlane_b32 s36, v9")
    a("s_cmp_eq_u32 s36, s35")
    a("s_cbranch_scc0 L_nofl1")
    a("s_mov_b64 exec, 1")
    a("global_store_dword v10, v11, s[8:9] sc1")
    a("s_mov_b64 exec, -1")
    a.label("L_nofl1")
    stamp(a, 4)
    a("s_and_b32 s42, s3, 1")
    a("s_lshr_b32 s43, s3, 1")
    a("s_mul_i32 s35, s43, 2304")
    a("s_mul_i32 s36, s42, 40")
    a("v_and_b32 v%d, 31, v0" % T)
    a("v_lshrrev_b32 v%d, 5, v0" % (T + 1))
    a("v_mul_u32_u24 v%d, 72, v%d" % (vKt, T))
    a("v_add_u32 v%d, s35, v%d" % (vKt, vKt))
    a("v_lshl_add_u32 v%d, v%d, 4, v%d" % (vK, T + 1, vKt))
    a("v_add_u32 v%d, s36, v%d" % (vK, vK))
    a("v_add_u32 v%d, 32, v%d" % (vKt, vKt))
    a("v_bfe_u32 v%d, v0, 2, 2" % (T + 2))
    a("v_lshl_add_u32 v%d, v%d, 2, v%d" % (T + 2, T + 1, T + 2))
    a("v_mul_u32_u24 v%d, 72, v%d" % (T + 2, T + 2))
    a("s_add_u32 s37, s35, %d" % VB)
    a("v_add_u32 v%d, s37, v%d" % (T + 2, T + 2))
    a("v_and_b32 v%d, 3, v0" % (T + 3))
    a("v_lshlrev_b32 v%d, 3, v%d" % (T + 4, T + 3))
    a("v_add_u32 v%d, s36, v%d" % (T + 4, T + 4))
    a("v_and_b32 v%d, 16, v0" % (T + 5))
    a("v_cmp_eq_u32 s[38:39], 0, v%d" % (T + 5))
    a("v_cndmask_b32 v%d, 32, v%d, s[38:39]" % (T + 4, T + 4))
    a("v_add_u32 v%d, v%d, v%d" % (vV, T + 2, T + 4))
    a("v_and_b32 v%d, 19, v0" % (T + 5))
    a("v_cmp_lt_u32 s[38:39], 16, v%d" % (T + 5))
    a("v_mov_b32 v%d, %d" % (T + 6, ONES))
    a("v_cndmask_b32 v%d, v%d, v%d, s[38:39]" % (vV, vV, T + 6))
    a("v_mov_b32 v%d, 2304" % (T + 6))
    a("v_cndmask_b32 v%d, v%d, 0, s[38:39]" % (vStep, T + 6))
    a("v_lshlrev_b32 v%d, 2, v%d" % (T + 2, T + 1))
    a("v_sub_u32 v%d, v%d, v%d" % (T + 2, T, T + 2))
    a("v_mov_b32 v%d, 0xffff" % (T + 3))
    for q in range(8):
        kl = 8 * (q >> 1) + 2 * (q & 1)
        a("v_cmp_le_i32 s[38:39], %d, v%d" % (kl, T + 2))
        a("v_cmp_le_i32 s[40:41], %d, v%d" % (kl + 1, T + 2))
        a("v_cndmask_b32 v%d, 0, v%d, s[38:39]" % (MSK + q, T + 3))
        a("v_cndmask_b32 v%d, v%d, -1, s[40:41]" % (MSK + q, MSK + q))
    a("s_lshl_b32 s41, s32, 2")
    a("s_add_u32 s41, s41, s43")
    a("s_sub_i32 s41, 8, s41")
    a("s_lshl_b32 s35, s32, 3")
    a("s_lshl_b32 s36, s43, 1")
    a("s_add_u32 s35, s35, s36")
    a("s_mul_i32 s35, s35, 18432")
    a("s_lshl_b32 s58, s31, 10")
    a("s_lshl_b32 s36, s42, 9")
    a("s_add_u32 s58, s58, s36")
    a("s_add_u32 s58, s58, s35")
    a("s_lshr_b32 s59, s31, 1")
    a("s_lshl_b32 s59, s59, 8")
    a("s_and_b32 s36, s31, 1")
    a("s_lshl_b32 s36, s36, 3")
    a("s_add_u32 s59, s59, s36")
    a("s_lshl_b32 s36, s42, 2")
    a("s_add_u32 s59, s59, s36")
    a("s_add_u32 s59, s59, s35")
    a("s_add_u32 s59, s59, 16384")
    a("v_bfe_u32 v152, v0, 4, 1")
    a("v_mul_u32_u24 v152, 18432, v152")
    a("v_and_b32 v153, 15, v0")
    a("v_lshl_add_u32 v152, v153, 4, v152")
    a("v_lshrrev_b32 v153, 5, v0")
    a("v_lshl_add_u32 v153, v153, 8, v152")
    a("v_cmp_gt_u32 vcc, 32, v0")
    a("s_cmp_eq_u32 s42, 0")
    a("s_cselect_b64 s[54:55], vcc, 0")
    a("s_cselect_b64 s[56:57], 0, vcc")
    a("v_and_b32 v%d, 3, v0" % (T + 2))
    a("v_mul_u32_u24 v%d, 576, v%d" % (T + 2, T + 2))
    a("v_mov_b32 v%d, 0x3f803f80" % (T + 4))
    a("v_mov_b32 v%d, v%d" % (T + 5, T + 4))
    a("v_lshlrev_b32 v%d, 4, v0" % (T + 3))
    srd(a, 36, 8, L.QKV_BYTES)
    srd_off(a, 24, 8, L.WS_O, 128 * 18432)
    a("s_lshr_b32 s35, s2, 6")
    a("s_lshl_b32 s35, s35, 4")
    a("s_add_u32 s35, s35, s3")
    a("s_cmp_eq_u32 s35, %d" % (3 * 16 + 6))
    a("s_cbranch_scc0 L_nq2")
    lds_spin(a, "L_sp_x6", vC, C_XS, T + 8, (1,), 8)
    qpoll(a, vC, "L_qp2", False, T + 8)
    a.label("L_nq2")
    lds_spin(a, "L_go1", vC, C_1, T, (8, 1), OPT["g1s"])
    stamp(a, 5)
    for j in range(8):
        if j == 6:
            a("ds_write_b64 v%d, %s offset:%d" % (T + 2, vr(T + 4, 2), ONES))
            landed(a, 1, 2)
            poison(a)
        a("s_mov_b32 m0, s%d" % (16 + j))
        a("s_nop 0")
        a("buffer_load_dwordx4 v%d, s[36:39], s%d offen %s lds" % (T + 3, 44 + j, OPT["kvl"]))
    a("s_cmp_lt_u32 s32, 2")
    a("s_cbranch_scc1 L_late")
    a("s_cmp_lt_u32 s43, 2")
    a("s_cbranch_scc1 L_sA")
    landed(a, 0x100, 4)
    stage_spin(a, "L_sB", 1)
    stage_spin(a, "L_sA", 0)
    stamp(a, 6)
    for x in q_reads() + k_reads(0) + k_reads(1) + v_reads(0):
        a(x)
    a("s_waitcnt lgkmcnt(7)")
    a("v_cndmask_b32 v%d, 0, v%d, s[54:55]" % (QT, QT))
    a("v_cndmask_b32 v%d, 0, v%d, s[56:57]" % (QT + 1, QT + 1))
    for x in qk(0):
        a(x)
    attn_loop(a)
    a.label("L_check")
    stamp(a, 7)
    a("s_mov_b32 s46, %s" % f32(2.0 ** 60))
    a("s_mov_b32 s47, %s" % f32(2.0 ** -60))
    a("s_mov_b32 s48, 0x7f800000")
    a("s_nop 7")
    a("s_nop 0")
    a("v_rcp_f32 v%d, v%d" % (T, OO + 12))
    a("v_cmp_gt_f32 s[50:51], s46, v%d" % (OO + 12))
    a("v_cmp_lt_f32 vcc, s47, v%d" % (OO + 12))
    for k in range(6):
        a("v_add_f32 v%d, abs(v%d), abs(v%d)" % (T + 2 + k, OO + 2 * k, OO + 2 * k + 1))
    a("s_and_b64 s[50:51], s[50:51], vcc")
    a("v_pk_add_f32 %s, %s, %s" % (vr(T + 2, 2), vr(T + 2, 2), vr(T + 4, 2)))
    a("v_pk_add_f32 %s, %s, %s" % (vr(T + 2, 2), vr(T + 2, 2), vr(T + 6, 2)))
    a("v_add_f32 v%d, v%d, v%d" % (T + 2, T + 2, T + 3))
    a("v_cmp_gt_f32 vcc, s48, v%d" % (T + 2))
    a("s_and_b64 s[50:51], s[50:51], vcc")
    a("s_cmp_eq_u64 s[50:51], -1")
    a("s_cbranch_scc0 L_slow")
    a.label("L_fin")
    a("s_cmp_eq_u32 s42, 0")
    a("s_cbranch_scc1 L_fa")
    a("v_mov_b32 v%d, v%d" % (OO + 8, OO + 10))
    a("v_mov_b32 v%d, v%d" % (OO + 9, OO + 11))
    a.label("L_fa")
    for k in range(0, 10, 2):
        a("v_pk_mul_f32 %s, %s, %s op_sel_hi:[1,0]" % (vr(OO + k, 2), vr(OO + k, 2), vr(T, 2)))
    for q in range(5):
        a("v_cvt_pk_bf16_f32 v%d, v%d, v%d" % (T + 4 + q, OO + 2 * q, OO + 2 * q + 1))
    a("buffer_store_dwordx4 %s, v153, s[24:27], s58 offen sc1" % vr(T + 4, 4))
    a("s_mov_b32 exec_hi, 0")
    a("buffer_store_dword v%d, v152, s[24:27], s59 offen sc1" % (T + 8))
    a("s_mov_b32 exec_hi, -1")


def q_reads():
    return ["ds_read_b64 %s, v%d offset:%d" % (vr(QM, 2), vK, QB),
            "ds_read_b64 %s, v%d offset:%d" % (vr(QM + 2, 2), vK, QB + 8),
            "ds_read_b64 %s, v%d offset:%d" % (vr(QT, 2), vKt, QB)]


def out_phase(a):
    A0, WFR, OF, ACC = 4, (20, 36, 100), 64, (52, 56, 60, 116)
    a("s_add_u32 s49, s3, 2")
    a("s_cmp_lt_u32 s3, 4")
    a("s_cselect_b32 s49, s3, s49")
    a("s_cmp_ge_u32 s52, 26")
    a("s_cbranch_scc1 L_end")
    a.label("L_out")
    a("s_and_b32 s40, s49, 1")
    a("s_lshr_b32 s54, s49, 1")
    a("s_mul_i32 s55, s52, 5")
    a("s_and_b32 s41, s55, 7")
    a("s_sub_u32 s44, 8, s41")
    a("s_cmp_lt_u32 s41, 4")
    a("s_cselect_b32 s44, 0, s44")
    a("s_add_u32 s44, s44, s54")
    a("s_sub_u32 s45, s44, 5")
    a("s_cmp_ge_u32 s44, 5")
    a("s_cselect_b32 s44, s45, s44")
    a("s_add_u32 s55, s55, s44")
    a("s_mov_b32 s59, 0x404")
    a("s_bitcmp1_b32 s55, 2")
    a("s_cselect_b32 s59, s59, 4")
    a("s_mov_b32 s48, %d" % PSLOT[0])
    for p in range(1, 5):
        a("s_cmp_eq_u32 s54, %d" % p)
        a("s_cselect_b32 s48, %d, s48" % PSLOT[p])
    a("s_mul_i32 s56, s55, %d" % (16 * 1152))
    a("s_lshl_b32 s57, s53, 7")
    a("s_add_u32 s56, s56, s57")
    a("s_add_u32 s58, s56, %d" % (8 * 1152))
    a("v_lshrrev_b32 v140, 3, v0")
    a("v_and_b32 v141, 7, v0")
    a("v_mul_u32_u24 v142, 1152, v140")
    a("v_lshl_add_u32 v142, v141, 4, v142")
    a("s_cmp_eq_u32 s40, 0")
    a("s_cbranch_scc0 L_noxg")
    srd(a, 20, 4, 2048 * 1152)
    a("buffer_load_dwordx4 %s, v142, s[20:23], s56 offen" % vr(XR, 4))
    a("buffer_load_dwordx4 %s, v142, s[20:23], s58 offen" % vr(XR + 4, 4))
    srd_off(a, 16, 8, L.WS_G, 8192)
    a("s_lshl_b32 s57, s55, 6")
    a("v_lshlrev_b32 v3, 2, v140")
    lds_spin(a, "L_pa", vC, C_PA, 10, (1,), 0)
    a("ds_read_b32 v145, v%d offset:%d" % (vC, C_IDX))
    a("buffer_load_dword v%d, v3, s[16:19], s57 offen sc1" % GR)
    a("buffer_load_dword v%d, v3, s[16:19], s57 offen offset:32 sc1" % (GR + 2))
    srd(a, 20, 10, 2048 * 1152)
    a.label("L_noxg")
    a("v_lshrrev_b32 v10, 2, v0")
    a("v_bfe_u32 v11, v0, 3, 2")
    a("v_lshlrev_b32 v11, 1, v11")
    a("v_bfe_u32 v12, v0, 1, 1")
    a("v_xor_b32 v11, v11, v12")
    a("v_and_b32 v12, 1, v0")
    a("v_lshlrev_b32 v12, 3, v12")
    a("v_lshl_add_u32 v12, v10, 7, v12")
    a("v_lshl_add_u32 v12, v11, 4, v12")
    a("s_mul_i32 s41, s40, %d" % (9 * 4096))
    a("s_add_u32 s41, s41, %d" % WO)
    for t in range(4):
        a("v_xor_b32 v%d, %d, v12" % (A0 + t, 32 * t))
        a("v_add_u32 v%d, s41, v%d" % (A0 + t, A0 + t))
    a("s_mul_i32 s41, s55, 18432")
    a("s_mul_i32 s44, s40, 9216")
    a("s_add_u32 s41, s41, s44")
    a("s_add_u32 s44, s41, 4096")
    a("s_add_u32 s45, s41, 8192")
    a("v_lshlrev_b32 v1, 4, v0")
    a("v_add_u32 v2, s48, v1")
    a("s_lshl_b32 s46, s54, 2")
    a("v_add_u32 v3, s46, v%d" % vC)

    def omx():
        for j in range(2):
            for q in range(4):
                xv = XR + 4 * j + q
                d = 146 + 8 * j + 2 * q if j == 0 else (156 + 2 * q)
                a("v_lshlrev_b32 v%d, 16, v%d" % (d, xv))
                a("v_and_b32 v%d, 0xffff0000, v%d" % (d + 1, xv))
                a("v_pk_mul_f32 %s, %s, %s op_sel:[0,1] op_sel_hi:[1,1]" % (vr(d, 2), vr(d, 2), vr(GR + 2 * j, 2)))

    def reads(sl):
        st = WFR[sl % 3]
        return ["ds_read_b64_tr_b16 %s, v%d offset:%d" % (vr(st + 4 * t + 2 * sec, 2), A0 + t, (32 * sl + 16 * sec) * 128)
                for t in range(4) for sec in range(2)]

    lds_spin(a, "L_wo", vC, C_WO, 10, (2,), 0)
    for x in reads(0) + reads(1):
        a(x)
    a("s_cmp_lt_u32 s3, 4")
    a("s_cselect_b32 s46, 1, 0x100")
    a("s_cmp_lt_u32 s3, 8")
    a("s_cselect_b32 s46, s46, 0")
    a("v_mov_b32 v13, s46")
    a("s_waitcnt vmcnt(0)")
    stamp(a, 8)
    a("s_mov_b64 exec, 1")
    a("ds_add_u32 v%d, v13 offset:%d" % (vC, C_O))
    a("s_mov_b64 exec, -1")
    a("s_mov_b32 s60, 0x200000")
    a.label("L_go2")
    a("ds_read_b64 v[10:11], v%d offset:%d" % (vC, C_O))
    a("s_waitcnt lgkmcnt(0)")
    a("v_readfirstlane_b32 s61, v10")
    a("v_readfirstlane_b32 s62, v11")
    a("s_and_b32 s61, s61, s59")
    a("s_cmp_eq_u32 s61, s59")
    a("s_cselect_b32 s62, s62, 0")
    a("s_cmp_eq_u32 s62, 1")
    a("s_cbranch_scc1 L_go2_d")
    a("s_sub_u32 s60, s60, 1")
    a("s_cbranch_scc0 L_go2")
    a.label("L_go2_d")
    if OPT["can"]:
        a("v_lshlrev_b32 v10, 9, v0")
        a("s_mul_i32 s46, s55, 18432")
        a("s_mov_b32 s60, 0x8000")
        a("s_mov_b32 exec_hi, 0")
        if OPT["cdel"]:
            a("s_sleep %d" % OPT["cdel"])
        a.label("L_can")
        a("buffer_load_dword v11, v10, s[24:27], s46 offen offset:496 sc1")
        a("s_waitcnt vmcnt(0)")
        a("v_cmp_eq_u32 vcc, -1, v11")
        a("s_cmp_eq_u64 vcc, 0")
        a("s_cbranch_scc1 L_can_d")
        a("s_sleep %d" % OPT["can"])
        a("s_sub_u32 s60, s60, 1")
        a("s_cbranch_scc0 L_can")
        a.label("L_can_d")
        a("s_mov_b32 exec_hi, -1")
    elif OPT["cdel"]:
        a("s_sleep %d" % OPT["cdel"])
    stamp(a, 9)
    LAO = OPT["lao"]

    def oload(s):
        a("buffer_load_dwordx4 %s, v1, s[24:27], s%d offen offset:%d sc1" % (vr(OF + 4 * s, 4), (41, 44, 45)[s // 4], 1024 * (s % 4)))

    def ocheck(sl):
        b = OF + 4 * sl
        if sl < 7:
            a("v_cmp_eq_u32 vcc, -1, v%d" % b)
        else:
            a("v_max3_u32 v10, v%d, v%d, v%d" % (b, b + 1, b + 2))
            a("v_max_u32 v10, v10, v%d" % (b + 3))
            a("v_cmp_eq_u32 vcc, -1, v10")
        a("s_nop 1")

    def oretry():
        for sl in range(9):
            a.label("L_or%d" % sl)
            a("s_sub_u32 s60, s60, 1")
            a("s_cbranch_scc1 L_ok%d" % sl)
            a("s_waitcnt vmcnt(0)")
            for s in range(sl, min(sl + LAO, 9)):
                oload(s)
            a("s_waitcnt vmcnt(%d)" % min(LAO - 1, 8 - sl))
            a("s_branch L_oc%d" % sl)

    RETRY.append(oretry)
    a("s_mov_b32 s60, 0x8000")
    for s in range(LAO):
        oload(s)
    a("v_readfirstlane_b32 s12, v145")
    a("v_and_b32 v143, 15, v0")
    a("v_mul_u32_u24 v143, 144, v143")
    a("v_lshrrev_b32 v144, 4, v0")
    a("v_lshlrev_b32 v144, 3, v144")
    a("v_add3_u32 v143, v143, v144, s48")
    a("v_mul_u32_u24 v144, 144, v140")
    a("v_lshl_add_u32 v144, v141, 4, v144")
    a("v_add_u32 v144, s48, v144")
    for j in range(2):
        a("v_sub_f32 v%d, 1.0, v%d" % (GR + 2 * j + 1, GR + 2 * j))
        bf16_round(a, GR + 2 * j + 1, GR + 2 * j + 1)
    omx()
    for sl in range(9):
        rd = reads(sl + 2) if sl < 7 else []
        a("s_waitcnt vmcnt(%d) lgkmcnt(%d)" % (min(LAO - 1, 8 - sl), 8 if sl < 8 else 0))
        a.label("L_oc%d" % sl)
        ocheck(sl)
        a("s_cbranch_vccnz L_or%d" % sl)
        a.label("L_ok%d" % sl)
        for t in range(4):
            d = vr(ACC[t], 4)
            a("v_mfma_f32_16x16x32_bf16 %s, %s, %s, %s" % (d, vr(WFR[sl % 3] + 4 * t, 4), vr(OF + 4 * sl, 4), "0" if sl == 0 else d))
            if t == 0 and sl + LAO < 9:
                oload(sl + LAO)
            for x in rd[2 * t:2 * t + 2]:
                a(x)
    stamp(a, 10)
    a("s_cmp_eq_u32 s40, 0")
    a("s_cbranch_scc1 L_k0")
    for t in range(4):
        a("ds_write_b128 v2, %s offset:%d" % (vr(ACC[t], 4), PART + 1024 * t))
    a("v_mov_b32 v10, 1")
    a("ds_write_b32 v3, v10 offset:%d" % C_PART)
    stamp_end(a, OPT["stw"], 0)
    stamp_end(a, 10, 2)
    a("s_endpgm")
    a.label("L_k0")
    a("s_lshr_b32 s46, s12, 4")
    a("s_cmp_eq_u32 s46, s55")
    a("s_cbranch_scc0 L_noy")
    lds_spin(a, "L_yw", vC, C_YRDY, 10, (1,))
    a("v_lshlrev_b32 v10, 5, v141")
    a("v_add_u32 v10, %d, v10" % YB)
    a("ds_read_b128 v[12:15], v10")
    a("ds_read_b128 v[16:19], v10 offset:16")
    a("s_and_b32 s46, s12, 15")
    a("s_waitcnt lgkmcnt(0)")
    for j in range(2):
        a("v_add_u32 v10, %d, v140" % (8 * j))
        a("v_cmp_eq_u32 s[50:51], s46, v10")
        for q in range(4):
            xv = XR + 4 * j + q
            a("v_lshlrev_b32 v10, 16, v%d" % xv)
            a("v_and_b32 v11, 0xffff0000, v%d" % xv)
            a("v_add_f32 v10, v10, v%d" % (12 + 2 * q))
            a("v_add_f32 v11, v11, v%d" % (13 + 2 * q))
            a("v_cvt_pk_bf16_f32 v10, v10, v11")
            a("v_cndmask_b32 v%d, v%d, v10, s[50:51]" % (xv, xv))
    omx()
    a.label("L_noy")
    lds_spin(a, "L_pw", 3, C_PART, 10, (1,), 0)
    stamp(a, 11)
    for t in range(4):
        a("ds_read_b128 %s, v2 offset:%d" % (vr(20 + 4 * t, 4), PART + 1024 * t))
    a("s_waitcnt lgkmcnt(0)")
    for t in range(4):
        b = ACC[t]
        a("v_pk_add_f32 %s, %s, %s" % (vr(b, 2), vr(b, 2), vr(20 + 4 * t, 2)))
        a("v_pk_add_f32 %s, %s, %s" % (vr(b + 2, 2), vr(b + 2, 2), vr(22 + 4 * t, 2)))
        a("v_cvt_pk_bf16_f32 v%d, v%d, v%d" % (40 + 2 * t, b, b + 1))
        a("v_cvt_pk_bf16_f32 v%d, v%d, v%d" % (41 + 2 * t, b + 2, b + 3))
        a("ds_write_b64 v143, %s offset:%d" % (vr(40 + 2 * t, 2), 32 * t))
    for j in range(2):
        a("ds_read_b128 %s, v144 offset:%d" % (vr(20 + 4 * j, 4), 8 * 144 * j))
    for j in range(2):
        a("s_waitcnt lgkmcnt(%d)" % (1 - j))
        for q in range(4):
            av = 20 + 4 * j + q
            d = 146 + 2 * q if j == 0 else 156 + 2 * q
            a("v_lshlrev_b32 v10, 16, v%d" % av)
            a("v_and_b32 v11, 0xffff0000, v%d" % av)
            a("v_pk_fma_f32 %s, v[10:11], %s, %s op_sel_hi:[1,0,1]" % (vr(d, 2), vr(GR + 2 * j, 2), vr(d, 2)))
            a("v_cvt_pk_bf16_f32 v%d, v%d, v%d" % (32 + 4 * j + q, d, d + 1))
        a("buffer_store_dwordx4 %s, v142, s[20:23], s%d offen %s" % (vr(32 + 4 * j, 4), 56 + 2 * j, OPT["ost"]))
    if OPT["stamp"]:
        stamp(a, 12)
        a("s_waitcnt vmcnt(0)")
        stamp(a, 13)
        stamp_end(a, OPT["stw"], 0)
    a("s_endpgm")


RETRY = []


def late_and_slow(a):
    RETRY[0]()
    a.label("L_late")
    a("s_mul_i32 s50, s41, 2304")
    a("v_add_u32 v%d, s50, v%d" % (T + 8, vK))
    a("v_add_u32 v%d, s50, v%d" % (T + 9, vKt))
    a("v_mul_u32_u24 v%d, s41, v%d" % (T + 2, vStep))
    a("v_add_u32 v%d, v%d, v%d" % (vV, vV, T + 2))
    for r in list(range(OO, OO + 16)) + list(range(VF[0], VF[0] + 32)):
        a("v_mov_b32 v%d, 0" % r)
    landed(a, 0x100, 0)
    stage_spin(a, "L_lt", 1)
    a("s_mov_b32 s43, 9")
    for x in q_reads():
        a(x)
    a("s_waitcnt lgkmcnt(0)")
    landed(a, 0x10000, 0)
    a("s_bitcmp1_b32 s41, 0")
    a("s_cbranch_scc1 L_late1")
    for par in range(2):
        if par:
            a.label("L_late1")
        for x in k_reads(par, T + 8, T + 9, 0):
            a(x)
        for x in k_reads(par + 1, T + 8, T + 9, 0):
            a(x.replace("offset:8", "offset:2312").replace("offset:0", "offset:2304"))
        for x in v_reads(par):
            a(x)
        a("s_waitcnt lgkmcnt(7)")
        a("v_cndmask_b32 v%d, 0, v%d, s[54:55]" % (QT, QT))
        a("v_cndmask_b32 v%d, 0, v%d, s[56:57]" % (QT + 1, QT + 1))
        for x in qk(par):
            a(x)
        a("s_nop 7")
        a("s_nop 3")
        for i0 in range(2 - par, 9, 2):
            a("s_cmp_eq_u32 s41, %d" % i0)
            a("s_cbranch_scc1 L_it%d" % i0)
        a("s_branch L_it%d" % (8 - par))

    a.label("L_slow")
    vKs, vKts, vM, vD0, vNeg = T + 8, T + 9, T + 10, T + 11, T + 12
    a("v_and_b32 v%d, 31, v0" % T)
    a("v_lshrrev_b32 v%d, 5, v0" % (T + 1))
    a("v_lshlrev_b32 v%d, 2, v%d" % (vD0, T + 1))
    a("v_sub_u32 v%d, v%d, v%d" % (vD0, vD0, T))
    a("v_mov_b32 v%d, 0xff800000" % vNeg)
    a("v_mov_b32 v%d, v%d" % (vM, vNeg))
    a("s_max_i32 s50, s41, 0")
    a("s_sub_u32 s51, 8, s50")
    a("v_mul_u32_u24 v%d, s51, v%d" % (T, vStep))
    a("v_sub_u32 v%d, v%d, v%d" % (vV, vV, T))
    a("s_mul_i32 s51, s50, 2304")
    for r in range(16):
        a("v_mov_b32 v%d, 0" % (OO + r))
    for ps in range(2):
        lab = "L_sp%d" % ps
        a("v_add_u32 v%d, s51, v%d" % (vKs, vK))
        a("v_add_u32 v%d, s51, v%d" % (vKts, vKt))
        a("s_mov_b32 s46, s50")
        a.label(lab)
        for x in k_reads(0, vKs, vKts):
            a(x)
        if ps == 1:
            for x in v_reads(0):
                a(x)
        a("s_mov_b32 s47, -31")
        a("s_mov_b32 s48, 62")
        a("s_cmp_eq_u32 s46, 0")
        a("s_cselect_b32 s47, 1, s47")
        a("s_cselect_b32 s48, 30, s48")
        a("s_cmp_eq_u32 s46, 8")
        a("s_cselect_b32 s48, 31, s48")
        a("s_waitcnt lgkmcnt(0)")
        for x in qk(0):
            a(x)
        a("v_subrev_u32 v%d, s47, v%d" % (T, vD0))
        for r in range(16):
            a("v_add_u32 v%d, %d, v%d" % (T + 1, 8 * (r >> 2) + (r & 3), T))
            a("v_cmp_ge_u32 vcc, s48, v%d" % (T + 1))
            a("v_cndmask_b32 v%d, v%d, v%d, vcc" % (SS[0] + r, vNeg, SS[0] + r))
            if ps == 0:
                a("v_max_f32 v%d, v%d, v%d" % (vM, vM, SS[0] + r))
            else:
                a("v_sub_f32 v%d, v%d, v%d" % (SS[0] + r, SS[0] + r, vM))
                a("v_exp_f32 v%d, v%d" % (SS[0] + r, SS[0] + r))
        if ps == 1:
            for q in range(8):
                a("v_cvt_pk_bf16_f32 v%d, v%d, v%d" % (PP[0] + q, SS[0] + 2 * q, SS[0] + 2 * q + 1))
            for x in pv(0, False):
                a(x)
            a("v_add_u32 v%d, v%d, v%d" % (vV, vV, vStep))
        a("v_add_u32 v%d, 2304, v%d" % (vKs, vKs))
        a("v_add_u32 v%d, 2304, v%d" % (vKts, vKts))
        a("s_add_u32 s46, s46, 1")
        a("s_cmp_lt_u32 s46, 9")
        a("s_nop 7")
        a("s_nop 7")
        a("s_cbranch_scc1 %s" % lab)
        if ps == 0:
            a("v_mov_b32 v%d, v%d" % (T, vM))
            a("v_permlane32_swap_b32 v%d, v%d" % (T, vM))
            a("v_max_f32 v%d, v%d, v%d" % (vM, vM, T))
    a("v_rcp_f32 v%d, v%d" % (T, OO + 12))
    a("s_nop 1")
    a("s_branch L_fin")


def helpers(a):
    a.label("L_help")
    a("s_cmp_eq_u32 s3, 9")
    a("s_cbranch_scc0 L_help1")
    code_touch(a)
    a.label("L_help1")
    a("v_mov_b32 v3, %d" % CTL)
    for k in range(4):
        a("v_mov_b32 v%d, 0" % (4 + k))
    a("v_lshlrev_b32 v1, 4, v0")
    a("v_add_u32 v2, v1, v3")
    a("s_mov_b64 exec, 0xff")
    a("ds_write_b128 v2, v[4:7]")
    a("s_mov_b64 exec, -1")
    a("s_waitcnt lgkmcnt(0)")
    load_tag(a)
    a("s_barrier")
    a("s_barrier")
    a("s_waitcnt lgkmcnt(0)")
    make_tag(a)
    a.label("L_help2")
    decode2(a)
    a("s_cmp_eq_u32 s3, 8")
    a("s_cbranch_scc1 L_down")
    a("v_lshrrev_b32 v1, 5, v0")
    a("v_bfe_u32 v2, v0, 3, 2")
    a("v_lshrrev_b32 v10, 4, v0")
    a("v_lshlrev_b32 v10, 1, v10")
    a("v_and_b32 v11, 7, v0")
    a("v_xor_b32 v10, v10, v11")
    a("v_lshl_add_u32 v4, v1, 2, v2")
    a("v_mul_u32_u24 v4, 1152, v4")
    a("v_lshl_add_u32 v4, v10, 4, v4")
    a("v_mul_u32_u24 v5, 72, v1")
    a("v_add_u32 v5, v5, v2")
    a("v_mul_u32_u24 v5, 1152, v5")
    a("v_lshl_add_u32 v5, v10, 4, v5")
    a("s_sub_u32 s36, s3, 9")
    a("s_mul_i32 s37, s36, %d" % (20 * 1152))
    a("s_mul_i32 s43, s36, %d" % (144 * 1152))
    a("s_lshl_b32 s38, s36, 10")
    a("s_add_u32 s38, s38, %d" % WO)
    a("s_lshl_b32 s39, s53, 7")
    a("s_sub_u32 s42, %d, s39" % (576 * 1152))
    srd_off(a, 16, 28, "s39", "s42")
    srd_off(a, 24, 8, L.WS_O, 128 * 18432)
    a("v_mov_b32 v%d, %d" % (vC, CTL))
    a("s_setprio %d" % OPT["pr3"])
    a("s_cmp_ge_u32 s2, 192")
    a("s_cbranch_scc1 L_wo_go")
    for k in range(9):
        a("s_barrier")
    a.label("L_wo_go")
    a("s_cmp_eq_u32 s3, 11")
    a("s_cbranch_scc1 L_ctl")
    a("s_cmp_ge_u32 s52, 26")
    a("s_cbranch_scc1 L_end")
    stage_spin(a, "L_wo_w", 0, 3, 10, 2)
    stamp(a, 5)
    for m in range(36):
        st, sec = m >> 1, m & 1
        a("s_add_u32 m0, s38, %d" % (2048 * m))
        if st < 16:
            a("s_add_u32 s40, s37, %d" % ((36 * st + 8 * sec) * 1152))
            a("buffer_load_dwordx4 v4, s[16:19], s40 offen lds")
        else:
            a("s_add_u32 s40, s43, %d" % ((288 * (st - 16) + 36 * sec + 16) * 1152))
            a("buffer_load_dwordx4 v5, s[16:19], s40 offen lds")
    a("s_waitcnt vmcnt(0)")
    stamp(a, 6)
    lds_inc(a, 3, 4, C_WO)
    a("s_setprio 0")
    a("s_sub_u32 s49, s3, 5")
    a("s_branch L_out")
    a.label("L_ctl")
    a("v_lshlrev_b32 v8, 7, v0")
    a("v_add_u32 v9, %d, v8" % (L.WS_FLAG + F_PA * 128))
    a("s_mul_i32 s46, s52, 5")
    a("s_lshr_b32 s46, s46, 3")
    a("s_min_u32 s46, s46, 14")
    a("s_lshl_b32 s46, s46, 11")
    a("s_add_u32 s46, s46, %d" % (L.WS_FLAG + F_O * 128))
    a("v_add_u32 v8, s46, v8")
    a("s_lshl_b32 s46, s32, 4")
    a("s_add_u32 s46, s46, s31")
    a("s_lshl_b32 s46, s46, 7")
    a("s_add_u32 s46, s46, %d" % (L.WS_FLAG + F_O * 128))
    a("v_mov_b32 v14, s46")
    a("v_mov_b32 v15, s%d" % TAG)
    a("s_cmp_ge_u32 s2, 192")
    a("s_cbranch_scc1 L_ct_0")
    qpoll(a, 3, "L_qp1", True)
    a.label("L_ct_0")
    def aux():
        flag_poll(a, "L_pap", 9, 4, "s%d" % TAG, 64, 8, 3)
        a("v_mov_b32 v10, v5")
        a("v_mov_b32 v11, v6")
        a("v_mov_b32 v4, 1")
        a("ds_write_b64 v3, v[10:11] offset:%d" % C_IDX)
        a("ds_write_b32 v3, v4 offset:%d" % C_PA)
        stamp(a, 5)

    if OPT["auxp"] == 0:
        aux()
    stage_spin(a, "L_ct_p", 2, 3, 10, 0)
    a("s_mov_b64 exec, 1")
    a("global_store_dword v14, v15, s[8:9] sc1")
    a("s_mov_b64 exec, -1")
    stamp(a, 6)
    if OPT["auxp"] == 1:
        aux()
    else:
        a("s_sleep %d" % OPT["slp3"])
    flag_poll(a, "L_op", 8, 12, "s%d" % TAG, 32, 2)
    lds_inc(a, 3, 10, C_GO2)
    stamp(a, 7)
    stamp_end(a, 11 if OPT["st11"] else 99, 3)
    a("ds_read_b64 v[10:11], v3 offset:%d" % C_IDX)
    a("s_waitcnt lgkmcnt(0)")
    a("v_readfirstlane_b32 s12, v10")
    a("v_readfirstlane_b32 s13, v11")
    a("s_mul_i32 s46, s52, 80")
    a("s_sub_u32 s46, s12, s46")
    a("s_cmp_lt_u32 s46, 80")
    a("s_cbranch_scc0 L_end")
    a("v_lshlrev_b32 v4, 7, v0")
    a("v_add_u32 v4, %d, v4" % (L.WS_FLAG + F_Y * 128))
    srd_off(a, 16, 8, L.WS_YP, 16 * 2304)
    a("v_lshrrev_b32 v6, 4, v0")
    a("v_mul_u32_u24 v6, 2304, v6")
    a("v_and_b32 v7, 15, v0")
    a("v_lshlrev_b32 v7, 4, v7")
    a("v_add_u32 v6, v6, v7")
    a("v_add_u32 v7, %d, v7" % YB)
    a("s_lshl_b32 s40, s53, 8")
    flag_poll(a, "L_yp", 4, 5, "12", 16, 2)
    for i in range(4):
        a("buffer_load_dwordx4 %s, v6, s[16:19], s40 offen sc1" % vr(8 + 4 * i, 4))
        a("s_add_u32 s40, s40, %d" % (4 * 2304))
    a("s_waitcnt vmcnt(0)")
    for i in range(1, 4):
        a("v_pk_add_f32 v[8:9], v[8:9], %s" % vr(8 + 4 * i, 2))
        a("v_pk_add_f32 v[10:11], v[10:11], %s" % vr(10 + 4 * i, 2))
    for k in range(4):
        a("v_mov_b32 v20, v%d" % (8 + k))
        a("v_permlane32_swap_b32 v20, v%d" % (8 + k))
        a("v_add_f32 v%d, v%d, v20" % (8 + k, 8 + k))
        a("v_mov_b32 v20, v%d" % (8 + k))
        a("v_permlane16_swap_b32 v20, v%d" % (8 + k))
        a("v_add_f32 v%d, v%d, v20" % (8 + k, 8 + k))
        bf16_round(a, 8 + k, 8 + k)
        a("v_mul_f32 v%d, s13, v%d" % (8 + k, 8 + k))
        bf16_round(a, 8 + k, 8 + k)
    a("v_mov_b32 v12, 1")
    a("ds_write_b128 v7, v[8:11]")
    a("ds_write_b32 v3, v12 offset:%d" % C_YRDY)
    a("s_cmp_eq_u32 s53, 0")
    a("s_cbranch_scc0 L_end")
    a("v_mov_b32 v4, %d" % L.WS_EPOCH)
    a("v_mov_b32 v5, s%d" % TAG)
    a("s_mov_b64 exec, 1")
    a("global_store_dword v4, v5, s[8:9]")
    a("s_endpgm")

    a.label("L_down")
    a("s_cmp_ge_u32 s2, 192")
    a("s_cbranch_scc1 L_end")
    DW, DA = 20, 128
    a("v_lshrrev_b32 v2, 3, v0")
    a("v_and_b32 v10, 7, v0")
    a("v_mul_u32_u24 v16, 1152, v2")
    a("v_lshl_add_u32 v16, v10, 4, v16")
    a("s_mul_i32 s36, s2, 24")
    a("v_mul_u32_u24 v12, %d, v10" % (4608 * 16))
    a("v_add_u32 v11, s36, v2")
    a("v_lshl_add_u32 v17, v11, 4, v12")
    a("v_cmp_gt_u32 s[56:57], 7, v10")
    a("s_mul_i32 s37, s2, %d" % (24 * 1152))
    a("v_and_b32 v1, 1, v0")
    a("v_lshlrev_b32 v1, 4, v1")
    sel_masks(a, 44, 11)
    a("v_lshrrev_b32 v11, 5, v0")
    a("v_bfe_u32 v12, v0, 3, 1")
    a("v_cmp_eq_u32 s[52:53], v11, v12")
    a("v_mul_u32_u24 v12, 2304, v12")
    a("v_bfe_u32 v11, v0, 4, 1")
    a("v_lshl_add_u32 v12, v11, 7, v12")
    a("v_lshl_add_u32 v12, v10, 2, v12")
    a("v_add_u32 v164, %d, v12" % HP)
    a("v_lshlrev_b32 v165, 2, v0")
    a("v_add_u32 v166, %d, v165" % HP)
    a("s_and_b32 s38, s2, 15")
    a("s_mul_i32 s39, s38, 2304")
    a("s_add_u32 s39, s39, %d" % L.WS_YP)
    a("v_add_u32 v165, s39, v165")
    a("s_lshl_b32 s38, s38, 7")
    a("s_add_u32 s38, s38, %d" % (L.WS_FLAG + F_Y * 128))
    srd_off(a, 16, 14, "s37", 24 * 1152)
    srd_off(a, 20, 8, L.WS_PA, 7 * 4608 * 16)
    def dloads():
        for t in range(0 if OPT["nodown"] else 3):
            a("s_movk_i32 s40, %d" % (9216 * t))
            for cg in range(9):
                a("buffer_load_dwordx4 %s, v16, s[16:19], s40 offen offset:%d %s" % (vr(DW + 4 * (9 * t + cg), 4), 128 * cg, "" if OPT["dtouch"] else "nt"))

    for k in range(2, 11):
        if k == OPT["dpos"]:
            dloads()
        a("s_barrier")
    if OPT["w8e"]:
        lds_spin(a, "L_dn_w2", 3, C_1, 10, (8,), 2)
    else:
        stage_spin(a, "L_dn_w2", 0, 3, 10, 2)
    stamp(a, 5)
    a("s_setprio %d" % OPT["pr1"])
    a("s_mov_b32 s60, 0x40000")
    a.label("L_dn_pa")
    a("buffer_load_dwordx3 v[4:6], v17, s[20:23], 0 offen sc1")
    a("buffer_load_dwordx3 v[8:10], v17, s[20:23], 0 offen offset:128 sc1")
    a("buffer_load_dwordx3 v[160:162], v17, s[20:23], 0 offen offset:256 sc1")
    a("s_waitcnt vmcnt(0)")
    a("v_cmp_ne_u32 vcc, s%d, v6" % TAG)
    a("v_cmp_ne_u32 s[40:41], s%d, v10" % TAG)
    a("v_cmp_ne_u32 s[42:43], s%d, v162" % TAG)
    a("s_or_b64 vcc, vcc, s[40:41]")
    a("s_or_b64 vcc, vcc, s[42:43]")
    a("s_and_b64 vcc, vcc, s[56:57]")
    a("s_cmp_eq_u64 vcc, 0")
    a("s_cbranch_scc1 L_dn_pb")
    a("s_sleep 8")
    a("s_sub_u32 s60, s60, 1")
    a("s_cbranch_scc0 L_dn_pa")
    a.label("L_dn_pb")
    stamp(a, 8)
    a("v_mov_b32 v6, v8")
    a("v_mov_b32 v7, v9")
    a("v_mov_b32 v8, v160")
    a("v_mov_b32 v9, v161")
    sum8(a, (4, 5, 6, 7, 8, 9))
    for t in range(3):
        g, u = 4 + 2 * t, 5 + 2 * t
        bf16_round(a, g, g)
        bf16_round(a, u, u)
        sigmoid(a, 10, g)
        a("v_mul_f32 v%d, v%d, v10" % (g, g))
        bf16_round(a, g, g)
        a("v_mul_f32 v%d, v%d, v%d" % (g, g, u))
        a("v_cvt_pk_bf16_f32 v%d, v%d, v%d" % (g, g, g))
        a("v_and_b32 v%d, 0xffff, v%d" % (g, g))
        a("v_lshlrev_b32 v%d, v1, v%d" % (g, g))
    for t in range(3):
        selector(a, 12, 4 + 2 * t, 44)
        for cg in range(9):
            d = vr(DA + 4 * cg, 4)
            a("v_mfma_f32_16x16x32_bf16 %s, %s, v[12:15], %s" % (d, vr(DW + 4 * (9 * t + cg), 4), "0" if t == 0 else d))
    a("s_mov_b64 exec, s[52:53]")
    for cg in range(9):
        for r in range(4):
            a("ds_write_b32 v164, v%d offset:%d" % (DA + 4 * cg + r, 256 * cg + 32 * r))
    a("s_mov_b64 exec, -1")
    for cg in range(9):
        a("ds_read2st64_b32 %s, v166 offset0:%d offset1:%d" % (vr(20 + 2 * cg, 2), cg, cg + 9))
    stage_spin(a, "L_dn_at", 0, 3, 10, 2)
    lds_spin(a, "L_dn_ax", 3, C_PA, 10, (1,), 1)
    for cg in range(9):
        a("v_add_f32 v%d, v%d, v%d" % (20 + 2 * cg, 20 + 2 * cg, 21 + 2 * cg))
        a("global_atomic_add_f32 v165, v%d, s[8:9] offset:%d" % (20 + 2 * cg, 256 * cg))
    a("v_mov_b32 v4, s38")
    a("v_mov_b32 v5, 1")
    a("s_waitcnt vmcnt(0)")
    stamp(a, 7)
    a("s_mov_b64 exec, 1")
    a("global_atomic_add v4, v5, s[8:9] sc1")
    stamp_end(a, 8, 1)


def kf(a):
    a.label(NAME)
    a("s_cmp_ge_u32 s2, 256")
    a("s_cbranch_scc1 L_end")
    stamp_init(a)
    stamp(a, 0)
    a("s_load_dwordx4 s[4:7], s[0:1], 0")
    a("s_load_dwordx2 s[8:9], s[0:1], 88")
    a("s_load_dwordx2 s[10:11], s[0:1], 72")
    a("s_load_dwordx2 s[14:15], s[0:1], 56")
    a("s_load_dwordx2 s[28:29], s[0:1], 16")
    a("v_lshrrev_b32 v1, 6, v0")
    a("v_and_b32 v0, 63, v0")
    a("v_readfirstlane_b32 s3, v1")
    a("s_and_b32 s30, s2, 3")
    a("s_bfe_u32 s31, s2, 0x10002")
    a("s_lshr_b32 s32, s2, 3")
    a("s_cmp_ge_u32 s32, 24")
    a("s_cbranch_scc1 L_sp")
    a("s_cmp_ge_u32 s3, 8")
    a("s_cbranch_scc1 L_help")
    gemm_phase(a)
    attention_phase(a)
    out_phase(a)
    late_and_slow(a)
    spare_phase(a)
    helpers(a)
    a.label("L_end")
    a("s_endpgm")
```

```python
from asmdsl import vr, sr
import layout as L
from common import *
from k2 import (KB, VB, QB, ONES, vK, vKt, vV, vStep, QM, QT, MSK, KF, VF, PP, SS, OO, T,
                k_reads, v_reads, qk, pv)

NAME = "gated_mix__sliding_block__moe_arch_mod__prompt_kernel"
SLOT = 34816
IMG = SLOT
WO = 66560
CTL = 149568
YB = 149696
HP = 150016
YT = 154624
XS = 156672
KF_LDS = 162304
PSLOT = (QB, QB + 4096, 140288, 144384, 158208)
KF_VGPR = 168
PART = 0
STG = 20480
XR, GR = 128, 136
vC = 154
TAG = 65
C_O, C_GO2, C_A, C_WO, C_PART, C_YRDY, C_B, C_1, C_GO1, C_C, C_PA, C_IDX, C_RSEL = 0, 4, 8, 12, 96, 32, 36, 40, 44, 48, 52, 56, 60
C_KMAX, C_KCNT, C_XS, C_GD, C_RED, C_RED2, C_FI = 64, 68, 72, 76, 80, 84, 88
F_Q, F_O, F_PA, F_Y = 0, 192, 448, 512


def lds_spin(a, name, addr_v, off, regs, conds, slp=1):
    n = len(conds)
    a("s_mov_b32 s60, 0x200000")
    a.label(name)
    a(("ds_read_b64 %s, v%d offset:%d" % (vr(regs, 2), addr_v, off)) if n == 2 else
      ("ds_read_b32 v%d, v%d offset:%d" % (regs, addr_v, off)))
    a("s_waitcnt lgkmcnt(0)")
    a("v_readfirstlane_b32 s61, v%d" % regs)
    if n == 2:
        a("v_readfirstlane_b32 s62, v%d" % (regs + 1))
        a("s_lshl_b32 s62, s62, 8")
        a("s_or_b32 s61, s61, s62")
        a("s_cmp_eq_u32 s61, %d" % (conds[0] | (conds[1] << 8)))
    else:
        a("s_cmp_eq_u32 s61, %d" % conds[0])
    a("s_cbranch_scc1 %s_d" % name)
    if slp:
        a("s_sleep %d" % slp)
    a("s_sub_u32 s60, s60, 1")
    a("s_cmp_lg_u32 s60, 0")
    a("s_cbranch_scc1 %s" % name)
    a.label(name + "_d")


def stage_spin(a, name, stage, vc=vC, T=T, slp=0):
    a("s_mov_b32 s60, 0x200000")
    a.label(name)
    a("ds_read_b32 v%d, v%d offset:%d" % (T, vc, C_A))
    a("s_waitcnt lgkmcnt(0)")
    a("v_readfirstlane_b32 s61, v%d" % T)
    a("s_bitcmp1_b32 s61, %d" % (8 * stage + 3))
    a("s_cbranch_scc1 %s_d" % name)
    if slp:
        a("s_sleep %d" % slp)
    a("s_sub_u32 s60, s60, 1")
    a("s_cmp_lg_u32 s60, 0")
    a("s_cbranch_scc1 %s" % name)
    a.label(name + "_d")


def landed(a, inc, vm):
    a("v_mov_b32 v%d, %s" % (T, hex(inc)))
    a("s_waitcnt vmcnt(%d)" % vm)
    a("s_mov_b64 exec, 1")
    a("ds_add_u32 v%d, v%d offset:%d" % (vC, T, C_A))
    a("s_mov_b64 exec, -1")


def poison(a):
    if OPT["nopois"]:
        a("s_nop 0")
        a("buffer_load_dword v155, v152, s[24:27], s59 offen")
        a("buffer_load_dword v155, v152, s[24:27], s59 offen")
        return
    for k in range(4):
        a("v_mov_b32 v%d, -1" % (120 + k))
    a("buffer_store_dwordx4 %s, v153, s[24:27], s58 offen sc1" % vr(120, 4))
    a("s_mov_b32 exec_hi, 0")
    a("buffer_store_dword v%d, v152, s[24:27], s59 offen sc1" % 120)
    a("s_mov_b32 exec_hi, -1")


def tail_touch(a):
    a("buffer_load_dword v155, v152, s[24:27], s59 offen")


def flag_poll(a, name, voff, vt, want, lanes, slp=1, width=1):
    a("s_mov_b64 exec, %s" % ("-1" if lanes == 64 else hex((1 << lanes) - 1)))
    a("s_mov_b32 s60, 0x40000")
    a.label(name)
    a("global_load_dword%s %s, v%d, s[8:9] sc1" % ("" if width == 1 else "x%d" % width, vr(vt, width), voff))
    a("s_waitcnt vmcnt(0)")
    a("v_cmp_eq_u32 vcc, %s, v%d" % (want, vt))
    a("s_cmp_eq_u64 vcc, exec")
    a("s_cbranch_scc1 %s_d" % name)
    if slp:
        a("s_sleep %d" % slp)
    a("s_sub_u32 s60, s60, 1")
    a("s_cmp_lg_u32 s60, 0")
    a("s_cbranch_scc1 %s" % name)
    a.label(name + "_d")
    a("s_mov_b64 exec, -1")


def lds_inc(a, vz, vt, off, rtn=False):
    a("v_mov_b32 v%d, 1" % vt)
    a("s_mov_b64 exec, 1")
    if rtn:
        a("ds_add_rtn_u32 v%d, v%d, v%d offset:%d" % (vt, vz, vt, off))
    else:
        a("ds_add_u32 v%d, v%d offset:%d" % (vz, vt, off))
    a("s_mov_b64 exec, -1")


def load_tag(a):
    a("s_mov_b32 s64, %d" % L.WS_EPOCH)
    a("s_load_dword s%d, s[8:9], s64" % TAG)


def make_tag(a):
    a("s_mul_i32 s%d, s%d, 0x9e3779b1" % (TAG, TAG))
    a("s_add_u32 s%d, s%d, 0x7f4a7c15" % (TAG, TAG))


def copy_scalars(a):
    a("s_mul_i32 s55, s34, %d" % (4 * L.PAIR_BYTES))
    a("s_mul_i32 s56, s35, 9216")
    a("s_add_u32 s55, s55, s56")
    a("s_lshl_b32 s56, s3, 10")
    a("s_add_u32 s55, s55, s56")
    for j in range(5):
        a("s_add_u32 s57, s3, %d" % (8 * j))
        a("s_mul_i32 s57, s57, 57")
        a("s_lshr_b32 s57, s57, 9")
        a("s_mul_i32 s57, s57, %d" % (L.PAIR_BYTES - 9216))
        a("s_add_u32 s57, s57, s55")
        a("s_add_u32 s%d, s57, %d" % (50 + j, 8192 * j))
    a("s_mul_i32 s58, s35, 12")
    a("s_add_u32 s58, s58, s34")
    a("s_lshl_b32 s58, s58, 7")
    a("s_add_u32 s58, s58, %d" % (L.WS_FLAG + F_Q * 128))


def decode2(a):
    a("s_and_b32 s30, s2, 3")
    a("s_bfe_u32 s33, s2, 0x10002")
    a("s_bfe_u32 s32, s2, 0x20003")
    a("s_lshl_b32 s31, s30, 2")
    a("s_add_u32 s31, s31, s32")
    a("s_lshl_b32 s32, s33, 3")
    a("s_lshr_b32 s34, s2, 5")
    a("s_add_u32 s32, s32, s34")
    a("s_lshr_b32 s33, s2, 3")
    a("s_mul_i32 s34, s33, 57")
    a("s_lshr_b32 s34, s34, 9")
    a("s_mul_i32 s53, s34, 9")
    a("s_sub_u32 s53, s33, s53")
    a("s_lshl_b32 s52, s34, 3")
    a("s_and_b32 s34, s2, 7")
    a("s_add_u32 s52, s52, s34")
    a("s_sub_u32 s33, s2, 216")
    a("s_mul_i32 s34, s33, 57")
    a("s_lshr_b32 s34, s34, 9")
    a("s_mul_i32 s35, s34, 9")
    a("s_sub_u32 s33, s33, s35")
    a("s_add_u32 s34, s34, 24")
    a("s_cmp_ge_u32 s2, 216")
    a("s_cselect_b32 s52, s34, s52")
    a("s_cselect_b32 s53, s33, s53")


def qpoll(a, vc, name, own, r=16):
    R = dict(a=r, b=r + 1, c=r + 2)
    a("v_add_u32 v%(a)d, 2, v0" % R)
    a("v_mul_u32_u24 v%(b)d, 43, v%(a)d" % R)
    a("v_lshrrev_b32 v%(b)d, 7, v%(b)d" % R)
    a("v_mul_u32_u24 v%(c)d, 3, v%(b)d" % R)
    a("v_sub_u32 v%(a)d, v%(a)d, v%(c)d" % R)
    a("s_sub_u32 s35, s32, 2")
    a("v_add_u32 v%(a)d, s35, v%(a)d" % R)
    a("v_max_i32 v%(a)d, 0, v%(a)d" % R)
    a("v_mul_u32_u24 v%(a)d, 12, v%(a)d" % R)
    a("v_lshl_add_u32 v%(a)d, v%(b)d, 2, v%(a)d" % R)
    a("v_add_u32 v%(a)d, s30, v%(a)d" % R)
    a("v_lshlrev_b32 v%(a)d, 7, v%(a)d" % R)
    a("v_add_u32 v%d, %d, v%d" % (r, L.WS_FLAG + F_Q * 128, r))
    if own:
        lds_spin(a, name + "w", vc, C_1, r + 2, (8,), 0)
    flag_poll(a, name, r, r + 1, "s%d" % TAG, 7, OPT["qslp"])
    lds_inc(a, vc, r + 2, C_GO1)


def code_touch(a):
    if not OPT["ctouch"]:
        return
    lab = a.newlabel("pc")
    a("s_getpc_b64 s[20:21]")
    a.label(lab)
    a("s_sub_u32 s20, s20, %s-%s" % (lab, NAME))
    a("s_subb_u32 s21, s21, 0")
    a("s_lshr_b32 s22, s2, 3")
    a("s_mul_i32 s22, s22, %d" % (12 * 128))
    a("v_lshlrev_b32 v20, 7, v0")
    a("v_add_u32 v20, s22, v20")
    a("v_min_u32 v20, L_end-%s, v20" % NAME)
    a("s_mov_b64 exec, 0xfff")
    a("global_load_dword v21, v20, s[20:21]")
    a("s_mov_b64 exec, -1")


def gemm_phase(a):
    a("s_mul_i32 s33, s32, 43")
    a("s_lshr_b32 s33, s33, 7")
    a("s_mul_i32 s34, s33, 3")
    a("s_sub_u32 s34, s32, s34")
    a("s_lshl_b32 s34, s34, 2")
    a("s_add_u32 s34, s34, s30")
    a("s_lshl_b32 s35, s31, 3")
    a("s_add_u32 s35, s35, s33")
    a("s_cmp_lt_u32 s3, 4")
    a("s_cbranch_scc1 L_comp")
    a("s_cmp_lt_u32 s3, 6")
    a("s_cbranch_scc0 L_ldw")
    a("s_lshr_b32 s41, s34, 2")
    a("s_mul_i32 s41, s41, 43")
    a("v_add_u32 v6, s41, v0")
    a("v_mul_u32_u24 v6, 1152, v6")
    a("v_and_b32 v7, 7, v0")
    a("s_lshl_b32 s41, s33, 3")
    a("v_add_u32 v7, s41, v7")
    a("v_mul_u32_u24 v7, 3456, v7")
    a("v_lshrrev_b32 v8, 3, v0")
    a("v_lshl_add_u32 v7, v8, 7, v7")
    a("s_cmp_eq_u32 s3, 4")
    a("s_cselect_b32 s42, 43, 24")
    a("s_cselect_b64 s[46:47], -1, 0")
    a("v_cndmask_b32 v6, v7, v6, s[46:47]")
    a("v_cmp_gt_u32 s[44:45], s42, v0")
    a("s_mul_i32 s39, s35, %d" % (128 * 1152))
    a("s_mul_i32 s46, s34, 288")
    a("s_and_b32 s46, s46, 0xffffff80")
    a("s_sub_u32 s47, %d, s46" % (576 * 3456))
    stamp(a, 11)
    a("s_waitcnt lgkmcnt(0)")
    stamp(a, 12)
    srd_off(a, 16, 4, "s39", 128 * 1152)
    srd_off(a, 20, 6, "s46", "s47")
    a("s_cmp_eq_u32 s3, 4")
    a("s_cselect_b32 s20, s16, s20")
    a("s_cselect_b32 s21, s17, s21")
    a("s_cselect_b32 s22, s18, s22")
    a("s_mov_b64 exec, s[44:45]")
    a("buffer_load_dword v20, v6, s[20:23], 0 offen %s" % OPT["t0p"])
    a("s_mov_b64 exec, -1")
    load_tag(a)
    a("v_lshrrev_b32 v1, 3, v0")
    a("v_mul_u32_u24 v1, 1152, v1")
    a("v_lshrrev_b32 v2, 4, v0")
    a("v_and_b32 v3, 7, v0")
    a("v_xor_b32 v3, v3, v2")
    a("v_lshl_add_u32 v4, v3, 4, v1")
    a("v_xor_b32 v3, 4, v3")
    a("v_lshl_add_u32 v5, v3, 4, v1")
    a("v_add_u32 v5, %d, v5" % (8 * 1152))
    a("s_sub_u32 s36, s3, 4")
    a("s_mul_i32 s37, s36, %d" % (64 * 1152))
    a("s_lshl_b32 s38, s36, 13")
    copy_scalars(a)
    stamp(a, 1)
    a("s_waitcnt vmcnt(0) lgkmcnt(0)")
    stamp(a, 2)

    def x_chunk(c):
        for i in range(8):
            a("s_add_u32 m0, s38, %d" % ((c % 4) * SLOT + i * 1024))
            a("s_add_u32 s40, s37, %d" % ((i >> 1) * 16 * 1152 + c * 128))
            a("buffer_load_dwordx4 v%d, s[16:19], s40 offen lds" % (4 + (i & 1)))

    def loader_loop(fn, n):
        LA = OPT["la"]
        a("s_barrier")
        stamp(a, 13)
        for c in range(LA):
            fn(c)
        stamp(a, 14)
        extra = 0
        for c in range(9):
            a("s_waitcnt vmcnt(%d)" % (n * min(LA - 1, 8 - c) + extra))
            a("s_barrier")
            if c + LA < 9:
                fn(c + LA)
            if c + LA == 8 and OPT["wt2"]:
                a("s_lshr_b32 s44, s2, 3")
                a("s_lshl_b32 s44, s44, 2")
                a("s_add_u32 s44, s44, s3")
                a("s_mul_i32 s44, s44, %d" % (54 * 128))
                a("s_sub_u32 s44, s44, %d" % (4 * 54 * 128))
                srd(a, 20, 28, 576 * 1152)
                a("v_lshlrev_b32 v21, 7, v0")
                a("buffer_load_dword v20, v21, s[20:23], s44 offen")
                extra = 1

    loader_loop(x_chunk, 8)
    a("s_branch L_copy")
    a.label("L_ldw")
    a("s_movk_i32 s41, 3641")
    for i in range(9):
        a("v_add_u32 v1, %d, v0" % (64 * i))
        a("v_mul_u32_u24 v2, s41, v1")
        a("v_lshrrev_b32 v2, 16, v2")
        a("v_mul_u32_u24 v3, 18, v2")
        a("v_sub_u32 v3, v1, v3")
        a("v_bfe_u32 v1, v2, 2, 2")
        a("v_lshlrev_b32 v1, 3, v1")
        a("v_lshrrev_b32 v13, 4, v2")
        a("v_lshl_add_u32 v1, v13, 2, v1")
        a("v_and_b32 v2, 3, v2")
        a("v_add_u32 v1, v1, v2")
        a("v_mul_u32_u24 v1, 3456, v1")
        a("v_lshl_add_u32 v%d, v3, 4, v1" % (4 + i))
        if i == 2:
            a("s_waitcnt lgkmcnt(0)")
            load_tag(a)
    a("s_sub_u32 s36, s3, 6")
    a("s_mul_i32 s37, s36, %d" % (32 * 3456))
    a("s_mul_i32 s38, s36, 9216")
    a("s_mul_i32 s39, s34, 288")
    a("s_sub_u32 s42, %d, s39" % (576 * 3456))
    copy_scalars(a)
    srd_off(a, 16, 6, "s39", "s42")
    a("s_waitcnt lgkmcnt(0)")

    def w_chunk(c):
        a("s_add_u32 s40, s37, %d" % (c * 64 * 3456))
        for i in range(9):
            a("s_add_u32 m0, s38, %d" % ((c % 4) * SLOT + 16384 + i * 1024))
            a("s_nop 0")
            a("buffer_load_dwordx4 v%d, s[16:19], s40 offen lds" % (4 + i))

    loader_loop(w_chunk, 9)
    a("s_branch L_copy")
    a.label("L_comp")
    ACC, XF, WF = 64, (136, 144), 24
    a("v_and_b32 v8, 15, v0")
    a("v_lshrrev_b32 v9, 4, v0")
    a("v_lshrrev_b32 v10, 1, v8")
    a("v_xor_b32 v10, v10, v9")
    a("s_lshl_b32 s36, s3, 12")
    a("v_lshlrev_b32 v2, 7, v8")
    a("v_lshl_add_u32 v2, v10, 4, v2")
    a("v_add_u32 v2, s36, v2")
    a("v_xor_b32 v3, 64, v2")
    a("v_add_u32 v4, %d, v2" % (2 * SLOT))
    a("v_add_u32 v5, %d, v3" % (2 * SLOT))
    a("v_lshrrev_b32 v10, 2, v0")
    a("v_mul_u32_u24 v6, 288, v10")
    a("v_and_b32 v10, 3, v0")
    a("v_lshl_add_u32 v6, v10, 3, v6")
    a("v_add_u32 v6, 16384, v6")
    a("v_add_u32 v7, %d, v6" % (2 * SLOT))
    a("s_waitcnt lgkmcnt(0)")
    load_tag(a)
    a("s_mov_b32 s36, 1.0")
    a("s_cmp_lt_u32 s34, 4")
    a("s_cselect_b32 s36, %s, s36" % f32(QSCALE))
    a("s_mov_b32 s37, s36")
    a("s_lshl_b32 s38, s3, 5")
    a("v_add_u32 v10, s38, v8")
    a("v_mul_u32_u24 v10, 72, v10")
    a("v_lshl_add_u32 v10, v9, 3, v10")
    a("v_add_u32 v10, %d, v10" % IMG)
    for ft in range(9):
        a("v_add_u32 v11, %d, v9" % (4 * ft))
        a("v_mul_u32_u24 v11, 57, v11")
        a("v_lshrrev_b32 v11, 9, v11")
        a("v_mul_u32_u24 v11, 9144, v11")
        a("v_add_u32 v%d, v11, v10" % (12 + ft))
    copy_scalars(a)
    a("s_waitcnt lgkmcnt(0)")

    def xreads(step):
        c, h2 = step >> 1, step & 1
        slot = c % 4
        return ["ds_read_b128 %s, v%d offset:%d" % (vr(XF[step & 1] + 4 * tt, 4), 2 + 2 * (slot >> 1) + h2,
                                                    (slot & 1) * SLOT + tt * 2048) for tt in range(2)]

    def wreads(step, ft):
        c, h2 = step >> 1, step & 1
        slot = c % 4
        return ["ds_read_b64_tr_b16 %s, v%d offset:%d" % (vr(WF + 4 * ft + 2 * sec, 2), 6 + (slot >> 1),
                                                          (slot & 1) * SLOT + h2 * 9216 + sec * 4608 + ft * 32)
                for sec in range(2)]

    def mfma(step, ft, tt):
        d = vr(ACC + 8 * ft + 4 * tt, 4)
        return "v_mfma_f32_16x16x32_bf16 %s, %s, %s, %s" % (
            d, vr(WF + 4 * ft, 4), vr(XF[step & 1] + 4 * tt, 4), "0" if step == 0 else d)

    def epi(k):
        ft, tt = k >> 1, k & 1
        b = ACC + 4 * k
        t = 152 + 2 * (k % 8)
        return ["v_pk_mul_f32 %s, %s, s[36:37]" % (vr(b, 2), vr(b, 2)),
                "v_pk_mul_f32 %s, %s, s[36:37]" % (vr(b + 2, 2), vr(b + 2, 2)),
                "v_cvt_pk_bf16_f32 v%d, v%d, v%d" % (t, b, b + 1),
                "v_cvt_pk_bf16_f32 v%d, v%d, v%d" % (t + 1, b + 2, b + 3),
                "ds_write_b64 v%d, %s offset:%d" % (12 + ft, vr(t, 2), 32 * ft + 1152 * tt)]

    a("s_barrier")
    a("s_barrier")
    stamp(a, 1)
    q = []

    def issue(tag, lst):
        for x in lst:
            a(x)
            q.append(tag)

    def need(tag):
        last = max(k for k, v in enumerate(q) if v == tag)
        a("s_waitcnt lgkmcnt(%d)" % min(15, len(q) - 1 - last))

    issue(("x", 0), xreads(0))
    for ft in range(9):
        issue(("w", 0, ft), wreads(0, ft))
    LAG = 3
    for step in range(18):
        if step & 1 and step < 17:
            a("s_barrier")
        for ft in range(9):
            need(("w", step, ft))
            a(mfma(step, ft, 0))
            if ft == 0 and step < 17:
                issue(("x", step + 1), xreads(step + 1))
            if step == 17 and 2 * ft >= LAG:
                e = epi(2 * ft - LAG)
                for x in e[:4]:
                    a(x)
                issue("e", e[4:])
            a(mfma(step, ft, 1))
            if step < 17:
                issue(("w", step + 1, ft), wreads(step + 1, ft))
            elif 2 * ft + 1 >= LAG:
                e = epi(2 * ft + 1 - LAG)
                for x in e[:4]:
                    a(x)
                issue("e", e[4:])
    for k in range(18 - LAG, 18):
        for x in epi(k):
            a(x)
    stamp(a, 2)
    a("s_waitcnt lgkmcnt(0)")
    a.label("L_copy")
    a("v_lshlrev_b32 v1, 4, v0")
    a("s_lshl_b32 s36, s3, 10")
    a("v_add_u32 v2, s36, v1")
    a("v_add_u32 v3, %d, v2" % (IMG + 4 * 8192))
    srd(a, 24, 8, L.QKV_BYTES)
    make_tag(a)
    a("s_barrier")
    for j in range(4):
        a("ds_read_b128 %s, v2 offset:%d" % (vr(4 + 4 * j, 4), IMG + j * 8192))
    a("s_cmp_lt_u32 s3, 4")
    a("s_cbranch_scc0 L_c4")
    a("ds_read_b128 v[20:23], v3")
    a("s_waitcnt lgkmcnt(0)")
    a("buffer_store_dwordx4 v[20:23], v1, s[24:27], s54 offen sc1")
    a.label("L_c4")
    for j in range(4):
        a("s_waitcnt lgkmcnt(%d)" % (3 - j))
        a("buffer_store_dwordx4 %s, v1, s[24:27], s%d offen sc1" % (vr(4 + 4 * j, 4), 50 + j))
    a("s_mov_b32 s63, s58")
    a("v_mov_b32 v%d, %d" % (vC, CTL))
    lds_inc(a, vC, 24, C_FI)
    stamp(a, 3)


def spare_phase(a):
    GW = 64
    a.label("L_sp")
    a("s_sub_u32 s36, s2, 192")
    a("s_cmp_ge_u32 s3, 8")
    a("s_cbranch_scc1 L_sp_ffn")
    a("s_cmp_ge_u32 s3, 4")
    a("s_cbranch_scc1 L_sp_hi")
    a("s_load_dwordx2 s[60:61], s[0:1], 32")
    a("s_load_dwordx2 s[62:63], s[0:1], 64")
    a("v_lshrrev_b32 v2, 3, v0")
    a("v_and_b32 v3, 7, v0")
    a("v_lshlrev_b32 v3, 4, v3")
    a("s_lshl_b32 s34, s36, 2")
    a("s_add_u32 s34, s34, s3")
    a("s_lshl_b32 s33, s34, 3")
    a("v_add_u32 v1, s33, v2")
    a("v_mul_u32_u24 v4, 1152, v1")
    a("v_add_u32 v4, v4, v3")
    a("s_mul_i32 s51, s34, %d" % (7 * 128))
    a("s_mul_i32 s52, s34, %d" % (21 * 128))
    a("v_lshlrev_b32 v7, 7, v0")
    a("s_waitcnt lgkmcnt(0)")
    load_tag(a)
    srd(a, 16, 6, 576 * 3456)
    srd(a, 20, 28, 576 * 1152)
    for i in range(9):
        a("global_load_dwordx4 %s, v4, s[4:5] offset:%d" % (vr(8 + 4 * i, 4), 128 * i))
        if i == 0:
            for j in range(9):
                a("global_load_dwordx4 %s, v3, s[60:61] offset:%d" % (vr(44 + 4 * j, 4), 128 * j))
                a("global_load_dwordx4 %s, v3, s[62:63] offset:%d" % (vr(80 + 4 * j, 4), 128 * j))
        else:
            a("s_add_u32 s53, s51, %d" % (1728 * 128 * i))
            a("s_mov_b64 exec, 0x7f")
            a("buffer_load_dword v124, v7, s[16:19], s53 offen")
            a("s_mov_b64 exec, -1")
    a("s_mov_b64 exec, 0x1fffff")
    a("buffer_load_dword v124, v7, s[20:23], s52 offen")
    a("s_mov_b64 exec, -1")
    a("v_mov_b32 v%d, %d" % (vC, CTL))
    a("s_waitcnt lgkmcnt(0)")
    make_tag(a)
    a("s_barrier")
    a("s_waitcnt vmcnt(2)")
    for i in range(36):
        p = 116 + (i & 3)
        a("v_dot2_f32_bf16 v%d, v%d, v%d, %s" % (p, 8 + i, 44 + i, "0" if i < 4 else "v%d" % p))
    a("s_nop 1")
    a("v_pk_add_f32 v[116:117], v[116:117], v[118:119]")
    a("v_add_f32 v5, v116, v117")
    sum8(a, (5,))
    bf16_round(a, 5, 5)
    a("v_ashrrev_i32 v7, 31, v5")
    a("v_or_b32 v7, 0x80000000, v7")
    a("v_xor_b32 v7, v7, v5")
    a("v_and_b32 v7, 0xffff0000, v7")
    a("v_sub_u32 v6, 0x7ff, v1")
    a("v_or_b32 v7, v7, v6")
    a("v_mov_b32 v5, 1")
    a("s_mov_b32 s54, 0x01010101")
    a("s_mov_b32 exec_lo, s54")
    a("s_mov_b32 exec_hi, s54")
    a("ds_max_u32 v%d, v7 offset:%d" % (vC, C_KMAX))
    a("s_mov_b64 exec, 1")
    a("ds_add_rtn_u32 v5, v%d, v5 offset:%d" % (vC, C_KCNT))
    a("ds_read_b32 v7, v%d offset:%d" % (vC, C_KMAX))
    a("s_lshl_b32 s53, s36, 3")
    a("s_add_u32 s53, s53, %d" % L.WS_KEYF)
    a("v_mov_b32 v4, s53")
    a("v_mov_b32 v6, s%d" % TAG)
    a("s_waitcnt lgkmcnt(0)")
    a("v_cmp_eq_u32 vcc, 3, v5")
    a("s_and_b64 exec, exec, vcc")
    a("s_cbranch_execz L_sp_nopub")
    a("global_store_dwordx2 v4, v[6:7], s[8:9] sc1")
    a.label("L_sp_nopub")
    a("s_mov_b64 exec, -1")
    stamp(a, 1)
    a("s_mov_b32 s55, 0x3f803f80")
    for i in range(36):
        x, w, p = 8 + i, 80 + i, 116 + (i & 3)
        t = 44 + 4 * (i & 3)
        a("v_lshlrev_b32 v%d, 16, v%d" % (t, x))
        a("v_and_b32 v%d, 0xffff0000, v%d" % (t + 1, x))
        a("v_lshlrev_b32 v%d, 16, v%d" % (t + 2, w))
        a("v_and_b32 v%d, 0xffff0000, v%d" % (t + 3, w))
        a("v_pk_mul_f32 %s, %s, %s" % (vr(t, 2), vr(t, 2), vr(t + 2, 2)))
        a("v_cvt_pk_bf16_f32 v%d, v%d, v%d" % (t, t, t + 1))
        a("v_dot2_f32_bf16 v%d, v%d, s55, %s" % (p, t, "0" if i < 4 else "v%d" % p))
    a("s_nop 1")
    a("v_pk_add_f32 v[116:117], v[116:117], v[118:119]")
    a("v_add_f32 v6, v116, v117")
    sum8(a, (6,))
    bf16_round(a, 6, 6)
    sigmoid(a, 6, 6)
    bf16_round(a, 6, 6)
    a("v_lshlrev_b32 v1, 2, v1")
    a("v_add_u32 v1, %d, v1" % L.WS_G)
    a("s_mov_b32 exec_lo, s54")
    a("s_mov_b32 exec_hi, s54")
    a("global_store_dword v1, v6, s[8:9] sc1")
    a("s_mov_b64 exec, -1")
    a("s_waitcnt vmcnt(0)")
    lds_inc(a, vC, 5, C_GD)
    if OPT["dtouch"]:
        srd(a, 16, 14, 4608 * 1152)
        a("s_mul_i32 s52, s34, %d" % (162 * 128))
        a("v_lshlrev_b32 v7, 7, v0")
        for k in range(3):
            a("buffer_load_dword v124, v7, s[16:19], s52 offen")
            a("s_add_u32 s52, s52, %d" % (54 * 128))
    a("s_mov_b32 s63, 0")
    stamp(a, 2)
    a("s_branch L_att")

    a.label("L_sp_hi")
    a("s_cmp_eq_u32 s3, 7")
    a("s_cbranch_scc0 L_sp_hi1")
    code_touch(a)
    a.label("L_sp_hi1")
    a("v_mov_b32 v%d, %d" % (vC, CTL))
    a("s_waitcnt lgkmcnt(0)")
    load_tag(a)
    a("s_mov_b32 s63, 0")
    a("s_waitcnt lgkmcnt(0)")
    make_tag(a)
    a("s_barrier")
    a("s_cmp_eq_u32 s3, 4")
    a("s_cbranch_scc1 L_sp_w4")
    a("s_cmp_eq_u32 s3, 5")
    a("s_cbranch_scc0 L_att")
    a("s_lshl_b32 s56, s36, 7")
    a("s_add_u32 s56, s56, %d" % (L.WS_FLAG + F_PA * 128))
    a("v_mov_b32 v9, s56")
    lds_spin(a, "L_sp_x5", vC, C_XS, 10, (1, 4), 4)
    a("ds_read_b64 v[14:15], v%d offset:%d" % (vC, C_IDX))
    a("v_mov_b32 v12, s%d" % TAG)
    a("s_waitcnt lgkmcnt(0)")
    a("v_mov_b32 v13, v14")
    a("v_mov_b32 v14, v15")
    a("s_mov_b64 exec, 1")
    a("global_store_dwordx3 v9, v[12:14], s[8:9] sc1")
    a("s_mov_b64 exec, -1")
    a("s_branch L_att")
    a.label("L_sp_w4")
    for k in range(4):
        a("v_mov_b32 v%d, 0" % (12 + k))
    a("s_cmp_lt_u32 s36, 36")
    a("s_cbranch_scc0 L_sp_nz")
    a("s_lshl_b32 s51, s36, 10")
    a("s_add_u32 s51, s51, %d" % L.WS_YP)
    a("v_lshlrev_b32 v4, 4, v0")
    a("v_add_u32 v4, s51, v4")
    a("global_store_dwordx4 v4, v[12:15], s[8:9] sc1")
    a("s_cmp_eq_u32 s36, 0")
    a("s_cbranch_scc0 L_sp_nz")
    a("v_lshlrev_b32 v4, 7, v0")
    a("v_add_u32 v4, %d, v4" % (L.WS_FLAG + F_Y * 128))
    a("global_store_dword v4, v12, s[8:9] sc1")
    a.label("L_sp_nz")
    a("v_lshlrev_b32 v8, 3, v0")
    a("v_add_u32 v8, %d, v8" % L.WS_KEYF)
    srd(a, 24, 4, 2048 * 1152)
    lds_spin(a, "L_sp_own", vC, C_KCNT, 10, (4,), 2)
    a("s_sleep %d" % OPT["slp0"])
    flag_poll(a, "L_sp_kp", 8, 10, "s%d" % TAG, 64, OPT["slp"], 2)
    a("v_lshlrev_b32 v8, 4, v0")
    stamp(a, 1)
    wave_umax(a, 11, 53)
    a("s_and_b32 s54, s53, 0x7ff")
    a("s_sub_u32 s54, 2047, s54")
    a("s_mul_i32 s55, s54, 1152")
    a("s_mov_b32 m0, %d" % XS)
    a("s_add_u32 s56, s55, 1024")
    a("buffer_load_dwordx4 v8, s[24:27], s55 offen lds")
    a("s_mov_b32 m0, %d" % (XS + 1024))
    a("s_mov_b64 exec, 0xff")
    a("buffer_load_dwordx4 v8, s[24:27], s56 offen lds")
    a("s_mov_b64 exec, -1")
    a("s_and_b32 s55, s53, 0xffff0000")
    a("s_xor_b32 s56, s55, 0x80000000")
    a("s_xor_b32 s57, s55, 0xffff0000")
    a("s_bitcmp1_b32 s55, 31")
    a("s_cselect_b32 s55, s56, s57")
    a("v_mov_b32 v12, s55")
    sigmoid(a, 13, 12)
    bf16_round(a, 13, 13)
    a("v_mov_b32 v12, s54")
    a("ds_write_b64 v%d, v[12:13] offset:%d" % (vC, C_IDX))
    a("v_mov_b32 v12, 1")
    a("s_waitcnt vmcnt(0)")
    a("ds_write_b32 v%d, v12 offset:%d" % (vC, C_XS))
    stamp(a, 2)
    a("s_branch L_att")

    a.label("L_sp_ffn")
    a("s_load_dwordx4 s[40:43], s[0:1], 40")
    a("v_mov_b32 v3, %d" % CTL)
    for k in range(4):
        a("v_mov_b32 v%d, 0" % (4 + k))
    a("v_lshlrev_b32 v1, 4, v0")
    a("v_add_u32 v2, v1, v3")
    a("s_mov_b64 exec, 0xff")
    a("ds_write_b128 v2, v[4:7]")
    a("s_mov_b64 exec, -1")
    a("v_lshlrev_b32 v2, 2, v0")
    a("v_add_u32 v2, %d, v2" % (XS + 1152))
    a("ds_write_b32 v2, v4")
    a("s_sub_u32 s59, s3, 8")
    a("s_mul_i32 s37, s36, 57")
    a("s_lshr_b32 s37, s37, 9")
    a("s_mul_i32 s38, s37, 9")
    a("s_sub_u32 s38, s36, s38")
    a("s_mul_i32 s49, s37, 84")
    a("s_mul_i32 s39, s49, 9216")
    a("s_lshl_b32 s48, s38, 10")
    a("s_add_u32 s39, s39, s48")
    a("s_sub_u32 s48, %d, s39" % (576 * 9216))
    a("s_min_i32 s48, s48, %d" % (83 * 9216 + 1024))
    a("s_max_i32 s48, s48, 0")
    a("v_lshrrev_b32 v160, 5, v0")
    a("v_mul_u32_u24 v160, 9216, v160")
    a("v_and_b32 v161, 31, v0")
    a("v_lshl_add_u32 v160, v161, 4, v160")
    a("s_mul_i32 s57, s59, 20480")
    a("s_add_u32 s57, s57, %d" % WO)
    a("s_mul_i32 s58, s59, %d" % (2 * 9216))
    a("s_waitcnt lgkmcnt(0)")
    load_tag(a)
    srd_off(a, 16, 40, "s39", "s48")
    srd_off(a, 20, 42, "s39", "s48")
    a("s_waitcnt lgkmcnt(0)")
    make_tag(a)
    a("s_barrier")
    for i in range(5):
        a("s_add_u32 s55, s58, %d" % (8 * (6 + i) * 9216))
        a("s_add_u32 s56, s55, 512")
        for k in range(4):
            a("s_add_u32 m0, s57, %d" % ((4 * i + k) * 1024))
            a("buffer_load_dwordx4 v160, s[%d:%d], s%d offen nt lds" % (16 + 4 * (k >> 1), 19 + 4 * (k >> 1), 55 + (k & 1)))
    for i in range(6):
        a("s_add_u32 s55, s58, %d" % (8 * i * 9216))
        for k in range(4):
            a("buffer_load_dwordx4 %s, v160, s[%d:%d], s55 offen offset:%d nt" % (
                vr(GW + 16 * i + 4 * k, 4), 16 + 4 * (k >> 1), 19 + 4 * (k >> 1), 512 * (k & 1)))
    a("s_lshl_b32 s55, s59, 1")
    a("s_add_u32 s55, s55, s49")
    a("v_lshrrev_b32 v51, 5, v0")
    a("v_add_u32 v51, s55, v51")
    a("v_lshlrev_b32 v51, 1, v51")
    a("v_add_u32 v51, %d, v51" % XS)
    a("v_and_b32 v2, 1, v0")
    a("v_lshlrev_b32 v2, 4, v2")
    a("v_lshrrev_b32 v4, 1, v0")
    a("v_xor_b32 v4, v4, v0")
    a("v_and_b32 v4, 8, v4")
    a("v_bfe_u32 v5, v0, 1, 2")
    a("v_or_b32 v4, v4, v5")
    for q in range(4):
        a("v_cmp_eq_u32 s[%d:%d], %d, v4" % (40 + 2 * q, 41 + 2 * q, q))
    a("v_bfe_u32 v4, v0, 3, 1")
    a("v_lshlrev_b32 v4, 9, v4")
    a("v_lshrrev_b32 v5, 4, v0")
    a("v_lshl_add_u32 v4, v5, 7, v4")
    a("v_and_b32 v5, 7, v0")
    a("v_lshl_add_u32 v4, v5, 2, v4")
    a("v_add_u32 v6, s57, v4")
    a("v_add_u32 v52, s57, v1")
    a("s_lshl_b32 s55, s59, 9")
    a("v_lshlrev_b32 v8, 3, v0")
    a("v_add_u32 v8, s55, v8")
    a("s_mul_i32 s52, s37, %d" % (4608 * 16))
    a("s_lshl_b32 s55, s38, 13")
    a("s_add_u32 s52, s52, s55")
    a("s_add_u32 s52, s52, %d" % L.WS_PA)
    a("v_lshlrev_b32 v9, 2, v8")
    a("v_add_u32 v9, s52, v9")
    a("v_add_u32 v8, %d, v8" % WO)
    stamp(a, 3)
    lds_spin(a, "L_sp_xs", 3, C_XS, 10, (1,), 2)
    a("s_setprio %d" % OPT["pr2"])
    for i in range(11):
        a("ds_read_u16 v%d, v51 offset:%d" % (53 + i, 16 * i))
    a("s_waitcnt vmcnt(24)")
    for k in range(4):
        a("ds_read_b128 %s, v52 offset:%d" % (vr(32 + 4 * k, 4), 1024 * k))
    a("s_waitcnt lgkmcnt(4)")
    for i in range(11):
        a("v_lshlrev_b32 v%d, v2, v%d" % (53 + i, 53 + i))
    first = True
    for i in range(5):
        selector(a, 12, 53 + 6 + i, 40)
        for k in range(4):
            d = vr(16 + 4 * k, 4)
            a("s_waitcnt lgkmcnt(%d)" % (3 if i < 4 else 3 - k))
            a("v_mfma_f32_16x16x32_bf16 %s, %s, v[12:15], %s" % (d, vr(32 + 4 * k, 4), "0" if first else d))
            if i < 4:
                a("ds_read_b128 %s, v52 offset:%d" % (vr(32 + 4 * k, 4), 1024 * (4 * (i + 1) + k)))
        first = False
    for i in range(6):
        selector(a, 12, 53 + i, 40)
        a("s_waitcnt vmcnt(%d)" % (4 * (5 - i)))
        for k in range(4):
            d = vr(16 + 4 * k, 4)
            a("v_mfma_f32_16x16x32_bf16 %s, %s, v[12:15], %s" % (d, vr(GW + 16 * i + 4 * k, 4), d))
    for k in range(4):
        for r in range(4):
            a("ds_write_b32 v6, v%d offset:%d" % (16 + 4 * k + r, 1024 * k + 32 * r))
    lds_inc(a, 3, 10, C_RED)
    lds_spin(a, "L_sp_rd", 3, C_RED, 10, (4,), 0)
    for p in range(4):
        a("ds_read_b64 %s, v8 offset:%d" % (vr(16 + 4 * p, 2), 20480 * p))
        a("ds_read_b64 %s, v8 offset:%d" % (vr(18 + 4 * p, 2), 20480 * p + 2048))
    a("v_mov_b32 v34, s%d" % TAG)
    a("v_mov_b32 v38, s%d" % TAG)
    a("s_waitcnt lgkmcnt(0)")
    lds_inc(a, 3, 10, C_RED2)
    for p in (2, 1):
        for h in range(2 * p):
            a("v_pk_add_f32 %s, %s, %s" % (vr(16 + 2 * h, 2), vr(16 + 2 * h, 2), vr(16 + 4 * p + 2 * h, 2)))
    a("v_mov_b32 v32, v16")
    a("v_mov_b32 v33, v18")
    a("v_mov_b32 v36, v17")
    a("v_mov_b32 v37, v19")
    a("s_cmp_eq_u32 s36, 63")
    a("s_cbranch_scc1 L_sp_nost")
    a("global_store_dwordx4 v9, v[32:35], s[8:9] sc1")
    a("global_store_dwordx4 v9, v[36:39], s[8:9] offset:16 sc1")
    a.label("L_sp_nost")
    stamp(a, 4)
    lds_spin(a, "L_sp_r2", 3, C_RED2, 10, (4,), 0)
    a("s_branch L_help2")


def attn_loop(a):
    for i in range(9):
        a.label("L_it%d" % i)
        S, P = SS[i & 1], PP[i & 1]
        ex = ["v_exp_f32 v%d, v%d" % (S + r, S + r) for r in range(16)]
        cv = ["v_cvt_pk_bf16_f32 v%d, v%d, v%d" % (P + q, S + 2 * q, S + 2 * q + 1) for q in range(8)]
        if i == 0:
            mk = ["v_bfi_b32 v%d, v%d, 0, v%d" % (P + q, MSK + q, P + q) for q in range(8)]
        elif i == 8:
            mk = ["v_and_b32 v%d, v%d, v%d" % (P + q, MSK + q, P + q) for q in range(8)]
        else:
            mk = []
        m1 = qk(i + 1) if i < 8 else []
        m2 = pv(i - 1, i == 1) if i > 0 else []
        a("s_waitcnt lgkmcnt(%d)" % (4 if 0 < i < 8 else 0))
        seq = m1[:1] + ex[0:4] + m1[1:] + (k_reads(i + 2) if i + 2 <= 8 else []) + ex[4:8] + cv[0:2] + m2[:1] + \
            ex[8:12] + cv[2:4] + m2[1:]
        if i + 1 <= 8:
            seq += ["v_add_u32 v%d, v%d, v%d" % (vV, vV, vStep)] + v_reads(i + 1)
        seq += ex[12:16] + cv[4:8] + mk
        for x in seq:
            a(x)
    a("s_waitcnt lgkmcnt(0)")
    for x in pv(8, False):
        a(x)


def attention_phase(a):
    a.label("L_att")
    decode2(a)
    a("s_mul_i32 s33, s31, %d" % L.PAIR_BYTES)
    a("s_mul_i32 s34, s32, 9216")
    a("s_add_u32 s33, s33, s34")
    a("v_mov_b32 v%d, %d" % (vC, CTL))
    KS, VS = 16 * L.PAIR_BYTES - 18432, 32 * L.PAIR_BYTES - 18432
    grp = [(QB, 0), (KB, KS), (VB, VS), (KB + 9216, KS + 9216), (VB + 9216, VS + 9216), (KB + 18432, KS + 18432), (VB + 18432, VS + 18432)]
    a("s_lshl_b32 s34, s3, 10")
    for j in range(8):
        lo, hi = (8 * j) // 9, min(8 * j + 7, 62) // 9
        l0, g0 = grp[lo][0] + (8 * j - 9 * lo) * 1024, grp[lo][1] + (8 * j - 9 * lo) * 1024
        l1, g1 = grp[hi][0] + (8 * j - 9 * hi) * 1024, grp[hi][1] + (8 * j - 9 * hi) * 1024
        if j == 7:
            a("s_min_u32 s34, s34, %d" % (6 * 1024))
        if lo == hi:
            a("s_add_u32 s%d, s34, %d" % (16 + j, l0))
            a("s_add_u32 s%d, s33, %d" % (44 + j, g0 - l0 & 0xffffffff))
        else:
            a("s_mov_b32 s35, %d" % l0)
            a("s_mov_b32 s36, %d" % (g0 - l0 & 0xffffffff))
            a("s_cmp_ge_u32 s3, %d" % (9 * hi - 8 * j))
            a("s_cselect_b32 s35, %d, s35" % (l1 & 0xffffffff))
            a("s_cselect_b32 s36, %d, s36" % (g1 - l1 & 0xffffffff))
            a("s_add_u32 s%d, s34, s35" % (16 + j))
            a("s_add_u32 s%d, s33, s36" % (44 + j))
        a("s_add_u32 s%d, s%d, s%d" % (44 + j, 44 + j, 16 + j))
    a("v_mov_b32 v10, s63")
    a("v_mov_b32 v11, s%d" % TAG)
    a("s_waitcnt vmcnt(0)")
    lds_inc(a, vC, 9, C_1, rtn=True)
    a("s_cmp_lg_u32 s63, 0")
    a("s_cselect_b32 s35, 7, 99")
    a("s_waitcnt lgkmcnt(0)")
    a("v_readfirstlane_b32 s36, v9")
    a("s_cmp_eq_u32 s36, s35")
    a("s_cbranch_scc0 L_nofl1")
    a("s_mov_b64 exec, 1")
    a("global_store_dword v10, v11, s[8:9] sc1")
    a("s_mov_b64 exec, -1")
    a.label("L_nofl1")
    stamp(a, 4)
    a("s_and_b32 s42, s3, 1")
    a("s_lshr_b32 s43, s3, 1")
    a("s_mul_i32 s35, s43, 2304")
    a("s_mul_i32 s36, s42, 40")
    a("v_and_b32 v%d, 31, v0" % T)
    a("v_lshrrev_b32 v%d, 5, v0" % (T + 1))
    a("v_mul_u32_u24 v%d, 72, v%d" % (vKt, T))
    a("v_add_u32 v%d, s35, v%d" % (vKt, vKt))
    a("v_lshl_add_u32 v%d, v%d, 4, v%d" % (vK, T + 1, vKt))
    a("v_add_u32 v%d, s36, v%d" % (vK, vK))
    a("v_add_u32 v%d, 32, v%d" % (vKt, vKt))
    a("v_bfe_u32 v%d, v0, 2, 2" % (T + 2))
    a("v_lshl_add_u32 v%d, v%d, 2, v%d" % (T + 2, T + 1, T + 2))
    a("v_mul_u32_u24 v%d, 72, v%d" % (T + 2, T + 2))
    a("s_add_u32 s37, s35, %d" % VB)
    a("v_add_u32 v%d, s37, v%d" % (T + 2, T + 2))
    a("v_and_b32 v%d, 3, v0" % (T + 3))
    a("v_lshlrev_b32 v%d, 3, v%d" % (T + 4, T + 3))
    a("v_add_u32 v%d, s36, v%d" % (T + 4, T + 4))
    a("v_and_b32 v%d, 16, v0" % (T + 5))
    a("v_cmp_eq_u32 s[38:39], 0, v%d" % (T + 5))
    a("v_cndmask_b32 v%d, 32, v%d, s[38:39]" % (T + 4, T + 4))
    a("v_add_u32 v%d, v%d, v%d" % (vV, T + 2, T + 4))
    a("v_and_b32 v%d, 19, v0" % (T + 5))
    a("v_cmp_lt_u32 s[38:39], 16, v%d" % (T + 5))
    a("v_mov_b32 v%d, %d" % (T + 6, ONES))
    a("v_cndmask_b32 v%d, v%d, v%d, s[38:39]" % (vV, vV, T + 6))
    a("v_mov_b32 v%d, 2304" % (T + 6))
    a("v_cndmask_b32 v%d, v%d, 0, s[38:39]" % (vStep, T + 6))
    a("v_lshlrev_b32 v%d, 2, v%d" % (T + 2, T + 1))
    a("v_sub_u32 v%d, v%d, v%d" % (T + 2, T, T + 2))
    a("v_mov_b32 v%d, 0xffff" % (T + 3))
    for q in range(8):
        kl = 8 * (q >> 1) + 2 * (q & 1)
        a("v_cmp_le_i32 s[38:39], %d, v%d" % (kl, T + 2))
        a("v_cmp_le_i32 s[40:41], %d, v%d" % (kl + 1, T + 2))
        a("v_cndmask_b32 v%d, 0, v%d, s[38:39]" % (MSK + q, T + 3))
        a("v_cndmask_b32 v%d, v%d, -1, s[40:41]" % (MSK + q, MSK + q))
    a("s_lshl_b32 s41, s32, 2")
    a("s_add_u32 s41, s41, s43")
    a("s_sub_i32 s41, 8, s41")
    a("s_lshl_b32 s35, s32, 3")
    a("s_lshl_b32 s36, s43, 1")
    a("s_add_u32 s35, s35, s36")
    a("s_mul_i32 s35, s35, 18432")
    a("s_lshl_b32 s58, s31, 10")
    a("s_lshl_b32 s36, s42, 9")
    a("s_add_u32 s58, s58, s36")
    a("s_add_u32 s58, s58, s35")
    a("s_lshr_b32 s59, s31, 1")
    a("s_lshl_b32 s59, s59, 8")
    a("s_and_b32 s36, s31, 1")
    a("s_lshl_b32 s36, s36, 3")
    a("s_add_u32 s59, s59, s36")
    a("s_lshl_b32 s36, s42, 2")
    a("s_add_u32 s59, s59, s36")
    a("s_add_u32 s59, s59, s35")
    a("s_add_u32 s59, s59, 16384")
    a("v_bfe_u32 v152, v0, 4, 1")
    a("v_mul_u32_u24 v152, 18432, v152")
    a("v_and_b32 v153, 15, v0")
    a("v_lshl_add_u32 v152, v153, 4, v152")
    a("v_lshrrev_b32 v153, 5, v0")
    a("v_lshl_add_u32 v153, v153, 8, v152")
    a("v_cmp_gt_u32 vcc, 32, v0")
    a("s_cmp_eq_u32 s42, 0")
    a("s_cselect_b64 s[54:55], vcc, 0")
    a("s_cselect_b64 s[56:57], 0, vcc")
    a("v_and_b32 v%d, 3, v0" % (T + 2))
    a("v_mul_u32_u24 v%d, 576, v%d" % (T + 2, T + 2))
    a("v_mov_b32 v%d, 0x3f803f80" % (T + 4))
    a("v_mov_b32 v%d, v%d" % (T + 5, T + 4))
    a("v_lshlrev_b32 v%d, 4, v0" % (T + 3))
    srd(a, 36, 8, L.QKV_BYTES)
    srd_off(a, 24, 8, L.WS_O, 128 * 18432)
    a("s_lshr_b32 s35, s2, 6")
    a("s_lshl_b32 s35, s35, 4")
    a("s_add_u32 s35, s35, s3")
    a("s_cmp_eq_u32 s35, %d" % (3 * 16 + 6))
    a("s_cbranch_scc0 L_nq2")
    lds_spin(a, "L_sp_x6", vC, C_XS, T + 8, (1,), 8)
    qpoll(a, vC, "L_qp2", False, T + 8)
    a.label("L_nq2")
    lds_spin(a, "L_go1", vC, C_1, T, (8, 1), OPT["g1s"])
    stamp(a, 5)
    for j in range(8):
        a("s_mov_b32 m0, s%d" % (16 + j))
        a("s_nop 0")
        a("buffer_load_dwordx4 v%d, s[36:39], s%d offen %s lds" % (T + 3, 44 + j, OPT["kvl"]))
    a("ds_write_b64 v%d, %s offset:%d" % (T + 2, vr(T + 4, 2), ONES))
    a("s_cmp_lt_u32 s32, 2")
    a("s_cbranch_scc1 L_late")
    landed(a, 1, 0)
    stage_spin(a, "L_sA", 0)
    stamp(a, 6)
    for x in q_reads() + k_reads(0) + k_reads(1) + v_reads(0):
        a(x)
    a("s_waitcnt lgkmcnt(7)")
    a("v_cndmask_b32 v%d, 0, v%d, s[54:55]" % (QT, QT))
    a("v_cndmask_b32 v%d, 0, v%d, s[56:57]" % (QT + 1, QT + 1))
    for x in qk(0):
        a(x)
    lds_inc(a, vC, T, C_B)
    attn_loop(a)
    a.label("L_check")
    stamp(a, 7)
    a("s_mov_b32 s46, %s" % f32(2.0 ** 60))
    a("s_mov_b32 s47, %s" % f32(2.0 ** -60))
    a("s_mov_b32 s48, 0x7f800000")
    lds_spin(a, "L_pz", vC, C_C, T, (1,), 0)
    a("s_nop 3")
    a("v_rcp_f32 v%d, v%d" % (T, OO + 12))
    a("v_cmp_gt_f32 s[50:51], s46, v%d" % (OO + 12))
    a("v_cmp_lt_f32 vcc, s47, v%d" % (OO + 12))
    for k in range(6):
        a("v_add_f32 v%d, abs(v%d), abs(v%d)" % (T + 2 + k, OO + 2 * k, OO + 2 * k + 1))
    a("s_and_b64 s[50:51], s[50:51], vcc")
    a("v_pk_add_f32 %s, %s, %s" % (vr(T + 2, 2), vr(T + 2, 2), vr(T + 4, 2)))
    a("v_pk_add_f32 %s, %s, %s" % (vr(T + 2, 2), vr(T + 2, 2), vr(T + 6, 2)))
    a("v_add_f32 v%d, v%d, v%d" % (T + 2, T + 2, T + 3))
    a("v_cmp_gt_f32 vcc, s48, v%d" % (T + 2))
    a("s_and_b64 s[50:51], s[50:51], vcc")
    a("s_cmp_eq_u64 s[50:51], -1")
    a("s_cbranch_scc0 L_slow")
    a.label("L_fin")
    a("s_cmp_eq_u32 s42, 0")
    a("s_cbranch_scc1 L_fa")
    a("v_mov_b32 v%d, v%d" % (OO + 8, OO + 10))
    a("v_mov_b32 v%d, v%d" % (OO + 9, OO + 11))
    a.label("L_fa")
    for k in range(0, 10, 2):
        a("v_pk_mul_f32 %s, %s, %s op_sel_hi:[1,0]" % (vr(OO + k, 2), vr(OO + k, 2), vr(T, 2)))
    for q in range(5):
        a("v_cvt_pk_bf16_f32 v%d, v%d, v%d" % (T + 4 + q, OO + 2 * q, OO + 2 * q + 1))
    a("buffer_store_dwordx4 %s, v153, s[24:27], s58 offen sc1" % vr(T + 4, 4))
    a("s_mov_b32 exec_hi, 0")
    a("buffer_store_dword v%d, v152, s[24:27], s59 offen sc1" % (T + 8))
    a("s_mov_b32 exec_hi, -1")


def q_reads():
    return ["ds_read_b64 %s, v%d offset:%d" % (vr(QM, 2), vK, QB),
            "ds_read_b64 %s, v%d offset:%d" % (vr(QM + 2, 2), vK, QB + 8),
            "ds_read_b64 %s, v%d offset:%d" % (vr(QT, 2), vKt, QB)]


def out_phase(a):
    A0, WFR, OF, ACC = 4, (20, 36, 100), 64, (52, 56, 60, 116)
    a("s_add_u32 s49, s3, 2")
    a("s_cmp_lt_u32 s3, 4")
    a("s_cselect_b32 s49, s3, s49")
    a("s_cmp_ge_u32 s52, 26")
    a("s_cbranch_scc1 L_end")
    a.label("L_out")
    a("s_and_b32 s40, s49, 1")
    a("s_lshr_b32 s54, s49, 1")
    a("s_mul_i32 s55, s52, 5")
    a("s_and_b32 s41, s55, 7")
    a("s_sub_u32 s44, 8, s41")
    a("s_cmp_lt_u32 s41, 4")
    a("s_cselect_b32 s44, 0, s44")
    a("s_add_u32 s44, s44, s54")
    a("s_sub_u32 s45, s44, 5")
    a("s_cmp_ge_u32 s44, 5")
    a("s_cselect_b32 s44, s45, s44")
    a("s_add_u32 s55, s55, s44")
    a("s_mov_b32 s59, 0x404")
    a("s_bitcmp1_b32 s55, 2")
    a("s_cselect_b32 s59, s59, 4")
    a("s_mov_b32 s48, %d" % PSLOT[0])
    for p in range(1, 5):
        a("s_cmp_eq_u32 s54, %d" % p)
        a("s_cselect_b32 s48, %d, s48" % PSLOT[p])
    a("s_mul_i32 s56, s55, %d" % (16 * 1152))
    a("s_lshl_b32 s57, s53, 7")
    a("s_add_u32 s56, s56, s57")
    a("s_add_u32 s58, s56, %d" % (8 * 1152))
    a("v_lshrrev_b32 v140, 3, v0")
    a("v_and_b32 v141, 7, v0")
    a("v_mul_u32_u24 v142, 1152, v140")
    a("v_lshl_add_u32 v142, v141, 4, v142")
    a("s_cmp_eq_u32 s40, 0")
    a("s_cbranch_scc0 L_noxg")
    srd(a, 20, 4, 2048 * 1152)
    a("buffer_load_dwordx4 %s, v142, s[20:23], s56 offen" % vr(XR, 4))
    a("buffer_load_dwordx4 %s, v142, s[20:23], s58 offen" % vr(XR + 4, 4))
    srd_off(a, 16, 8, L.WS_G, 8192)
    a("s_lshl_b32 s57, s55, 6")
    a("v_lshlrev_b32 v3, 2, v140")
    lds_spin(a, "L_pa", vC, C_PA, 10, (1,), 0)
    a("ds_read_b32 v145, v%d offset:%d" % (vC, C_IDX))
    a("buffer_load_dword v%d, v3, s[16:19], s57 offen sc1" % GR)
    a("buffer_load_dword v%d, v3, s[16:19], s57 offen offset:32 sc1" % (GR + 2))
    srd(a, 20, 10, 2048 * 1152)
    a.label("L_noxg")
    a("v_lshrrev_b32 v10, 2, v0")
    a("v_bfe_u32 v11, v0, 3, 2")
    a("v_lshlrev_b32 v11, 1, v11")
    a("v_bfe_u32 v12, v0, 1, 1")
    a("v_xor_b32 v11, v11, v12")
    a("v_and_b32 v12, 1, v0")
    a("v_lshlrev_b32 v12, 3, v12")
    a("v_lshl_add_u32 v12, v10, 7, v12")
    a("v_lshl_add_u32 v12, v11, 4, v12")
    a("s_mul_i32 s41, s40, %d" % (9 * 4096))
    a("s_add_u32 s41, s41, %d" % WO)
    for t in range(4):
        a("v_xor_b32 v%d, %d, v12" % (A0 + t, 32 * t))
        a("v_add_u32 v%d, s41, v%d" % (A0 + t, A0 + t))
    a("s_mul_i32 s41, s55, 18432")
    a("s_mul_i32 s44, s40, 9216")
    a("s_add_u32 s41, s41, s44")
    a("s_add_u32 s44, s41, 4096")
    a("s_add_u32 s45, s41, 8192")
    a("v_lshlrev_b32 v1, 4, v0")
    a("v_add_u32 v2, s48, v1")
    a("s_lshl_b32 s46, s54, 2")
    a("v_add_u32 v3, s46, v%d" % vC)

    def omx():
        for j in range(2):
            for q in range(4):
                xv = XR + 4 * j + q
                d = 146 + 8 * j + 2 * q if j == 0 else (156 + 2 * q)
                a("v_lshlrev_b32 v%d, 16, v%d" % (d, xv))
                a("v_and_b32 v%d, 0xffff0000, v%d" % (d + 1, xv))
                a("v_pk_mul_f32 %s, %s, %s op_sel:[0,1] op_sel_hi:[1,1]" % (vr(d, 2), vr(d, 2), vr(GR + 2 * j, 2)))

    def reads(sl):
        st = WFR[sl % 3]
        return ["ds_read_b64_tr_b16 %s, v%d offset:%d" % (vr(st + 4 * t + 2 * sec, 2), A0 + t, (32 * sl + 16 * sec) * 128)
                for t in range(4) for sec in range(2)]

    lds_spin(a, "L_wo", vC, C_WO, 10, (2,), 0)
    for x in reads(0) + reads(1):
        a(x)
    a("s_cmp_lt_u32 s3, 4")
    a("s_cselect_b32 s46, 1, 0x100")
    a("s_cmp_lt_u32 s3, 8")
    a("s_cselect_b32 s46, s46, 0")
    a("v_mov_b32 v13, s46")
    a("s_waitcnt vmcnt(0)")
    stamp(a, 8)
    a("s_mov_b64 exec, 1")
    a("ds_add_u32 v%d, v13 offset:%d" % (vC, C_O))
    a("s_mov_b64 exec, -1")
    a("s_mov_b32 s60, 0x200000")
    a.label("L_go2")
    a("ds_read_b64 v[10:11], v%d offset:%d" % (vC, C_O))
    a("s_waitcnt lgkmcnt(0)")
    a("v_readfirstlane_b32 s61, v10")
    a("v_readfirstlane_b32 s62, v11")
    a("s_and_b32 s61, s61, s59")
    a("s_cmp_eq_u32 s61, s59")
    a("s_cselect_b32 s62, s62, 0")
    a("s_cmp_eq_u32 s62, 1")
    a("s_cbranch_scc1 L_go2_d")
    a("s_sub_u32 s60, s60, 1")
    a("s_cbranch_scc0 L_go2")
    a.label("L_go2_d")
    if OPT["can"]:
        a("v_lshlrev_b32 v10, 9, v0")
        a("s_mul_i32 s46, s55, 18432")
        a("s_mov_b32 s60, 0x8000")
        a("s_mov_b32 exec_hi, 0")
        if OPT["cdel"]:
            a("s_sleep %d" % OPT["cdel"])
        a.label("L_can")
        a("buffer_load_dword v11, v10, s[24:27], s46 offen offset:496 sc1")
        a("s_waitcnt vmcnt(0)")
        a("v_cmp_eq_u32 vcc, -1, v11")
        a("s_cmp_eq_u64 vcc, 0")
        a("s_cbranch_scc1 L_can_d")
        a("s_sleep %d" % OPT["can"])
        a("s_sub_u32 s60, s60, 1")
        a("s_cbranch_scc0 L_can")
        a.label("L_can_d")
        a("s_mov_b32 exec_hi, -1")
    elif OPT["cdel"]:
        a("s_sleep %d" % OPT["cdel"])
    stamp(a, 9)
    LAO = OPT["lao"]

    def oload(s):
        a("buffer_load_dwordx4 %s, v1, s[24:27], s%d offen offset:%d sc1" % (vr(OF + 4 * s, 4), (41, 44, 45)[s // 4], 1024 * (s % 4)))

    def ocheck(sl):
        b = OF + 4 * sl
        if sl < 7:
            a("v_cmp_eq_u32 vcc, -1, v%d" % b)
        else:
            a("v_max3_u32 v10, v%d, v%d, v%d" % (b, b + 1, b + 2))
            a("v_max_u32 v10, v10, v%d" % (b + 3))
            a("v_cmp_eq_u32 vcc, -1, v10")
        a("s_nop 1")

    def oretry():
        for sl in range(9):
            a.label("L_or%d" % sl)
            a("s_sub_u32 s60, s60, 1")
            a("s_cbranch_scc1 L_ok%d" % sl)
            a("s_waitcnt vmcnt(0)")
            for s in range(sl, min(sl + LAO, 9)):
                oload(s)
            a("s_waitcnt vmcnt(%d)" % min(LAO - 1, 8 - sl))
            a("s_branch L_oc%d" % sl)

    RETRY.append(oretry)
    a("s_mov_b32 s60, 0x8000")
    for s in range(LAO):
        oload(s)
    a("v_readfirstlane_b32 s12, v145")
    a("v_and_b32 v143, 15, v0")
    a("v_mul_u32_u24 v143, 144, v143")
    a("v_lshrrev_b32 v144, 4, v0")
    a("v_lshlrev_b32 v144, 3, v144")
    a("v_add3_u32 v143, v143, v144, s48")
    a("v_mul_u32_u24 v144, 144, v140")
    a("v_lshl_add_u32 v144, v141, 4, v144")
    a("v_add_u32 v144, s48, v144")
    for j in range(2):
        a("v_sub_f32 v%d, 1.0, v%d" % (GR + 2 * j + 1, GR + 2 * j))
        bf16_round(a, GR + 2 * j + 1, GR + 2 * j + 1)
    omx()
    for sl in range(9):
        rd = reads(sl + 2) if sl < 7 else []
        a("s_waitcnt vmcnt(%d) lgkmcnt(%d)" % (min(LAO - 1, 8 - sl), 8 if sl < 8 else 0))
        a.label("L_oc%d" % sl)
        ocheck(sl)
        a("s_cbranch_vccnz L_or%d" % sl)
        a.label("L_ok%d" % sl)
        for t in range(4):
            d = vr(ACC[t], 4)
            a("v_mfma_f32_16x16x32_bf16 %s, %s, %s, %s" % (d, vr(WFR[sl % 3] + 4 * t, 4), vr(OF + 4 * sl, 4), "0" if sl == 0 else d))
            if t == 0 and sl + LAO < 9:
                oload(sl + LAO)
            for x in rd[2 * t:2 * t + 2]:
                a(x)
    stamp(a, 10)
    a("s_cmp_eq_u32 s40, 0")
    a("s_cbranch_scc1 L_k0")
    for t in range(4):
        a("ds_write_b128 v2, %s offset:%d" % (vr(ACC[t], 4), PART + 1024 * t))
    a("v_mov_b32 v10, 1")
    a("ds_write_b32 v3, v10 offset:%d" % C_PART)
    stamp_end(a, OPT["stw"], 0)
    stamp_end(a, 10, 2)
    a("s_endpgm")
    a.label("L_k0")
    a("s_lshr_b32 s46, s12, 4")
    a("s_cmp_eq_u32 s46, s55")
    a("s_cbranch_scc0 L_noy")
    lds_spin(a, "L_yw", vC, C_YRDY, 10, (1,))
    a("v_lshlrev_b32 v10, 5, v141")
    a("v_add_u32 v10, %d, v10" % YB)
    a("ds_read_b128 v[12:15], v10")
    a("ds_read_b128 v[16:19], v10 offset:16")
    a("s_and_b32 s46, s12, 15")
    a("s_waitcnt lgkmcnt(0)")
    for j in range(2):
        a("v_add_u32 v10, %d, v140" % (8 * j))
        a("v_cmp_eq_u32 s[50:51], s46, v10")
        for q in range(4):
            xv = XR + 4 * j + q
            a("v_lshlrev_b32 v10, 16, v%d" % xv)
            a("v_and_b32 v11, 0xffff0000, v%d" % xv)
            a("v_add_f32 v10, v10, v%d" % (12 + 2 * q))
            a("v_add_f32 v11, v11, v%d" % (13 + 2 * q))
            a("v_cvt_pk_bf16_f32 v10, v10, v11")
            a("v_cndmask_b32 v%d, v%d, v10, s[50:51]" % (xv, xv))
    omx()
    a.label("L_noy")
    lds_spin(a, "L_pw", 3, C_PART, 10, (1,), 0)
    stamp(a, 11)
    for t in range(4):
        a("ds_read_b128 %s, v2 offset:%d" % (vr(20 + 4 * t, 4), PART + 1024 * t))
    a("s_waitcnt lgkmcnt(0)")
    for t in range(4):
        b = ACC[t]
        a("v_pk_add_f32 %s, %s, %s" % (vr(b, 2), vr(b, 2), vr(20 + 4 * t, 2)))
        a("v_pk_add_f32 %s, %s, %s" % (vr(b + 2, 2), vr(b + 2, 2), vr(22 + 4 * t, 2)))
        a("v_cvt_pk_bf16_f32 v%d, v%d, v%d" % (40 + 2 * t, b, b + 1))
        a("v_cvt_pk_bf16_f32 v%d, v%d, v%d" % (41 + 2 * t, b + 2, b + 3))
        a("ds_write_b64 v143, %s offset:%d" % (vr(40 + 2 * t, 2), 32 * t))
    for j in range(2):
        a("ds_read_b128 %s, v144 offset:%d" % (vr(20 + 4 * j, 4), 8 * 144 * j))
    for j in range(2):
        a("s_waitcnt lgkmcnt(%d)" % (1 - j))
        for q in range(4):
            av = 20 + 4 * j + q
            d = 146 + 2 * q if j == 0 else 156 + 2 * q
            a("v_lshlrev_b32 v10, 16, v%d" % av)
            a("v_and_b32 v11, 0xffff0000, v%d" % av)
            a("v_pk_fma_f32 %s, v[10:11], %s, %s op_sel_hi:[1,0,1]" % (vr(d, 2), vr(GR + 2 * j, 2), vr(d, 2)))
            a("v_cvt_pk_bf16_f32 v%d, v%d, v%d" % (32 + 4 * j + q, d, d + 1))
        a("buffer_store_dwordx4 %s, v142, s[20:23], s%d offen %s" % (vr(32 + 4 * j, 4), 56 + 2 * j, OPT["ost"]))
    if OPT["stamp"]:
        stamp(a, 12)
        a("s_waitcnt vmcnt(0)")
        stamp(a, 13)
        stamp_end(a, OPT["stw"], 0)
    a("s_endpgm")


RETRY = []


def late_and_slow(a):
    RETRY[0]()
    a.label("L_late")
    a("s_mul_i32 s50, s41, 2304")
    a("v_add_u32 v%d, s50, v%d" % (T + 8, vK))
    a("v_add_u32 v%d, s50, v%d" % (T + 9, vKt))
    a("v_mul_u32_u24 v%d, s41, v%d" % (T + 2, vStep))
    a("v_add_u32 v%d, v%d, v%d" % (vV, vV, T + 2))
    for r in list(range(OO, OO + 16)) + list(range(VF[0], VF[0] + 32)):
        a("v_mov_b32 v%d, 0" % r)
    landed(a, 1, 0)
    stage_spin(a, "L_lt", 0)
    for x in q_reads():
        a(x)
    a("s_waitcnt lgkmcnt(0)")
    lds_inc(a, vC, T, C_B)
    a("s_bitcmp1_b32 s41, 0")
    a("s_cbranch_scc1 L_late1")
    for par in range(2):
        if par:
            a.label("L_late1")
        for x in k_reads(par, T + 8, T + 9, 0):
            a(x)
        for x in k_reads(par + 1, T + 8, T + 9, 0):
            a(x.replace("offset:8", "offset:2312").replace("offset:0", "offset:2304"))
        for x in v_reads(par):
            a(x)
        a("s_waitcnt lgkmcnt(7)")
        a("v_cndmask_b32 v%d, 0, v%d, s[54:55]" % (QT, QT))
        a("v_cndmask_b32 v%d, 0, v%d, s[56:57]" % (QT + 1, QT + 1))
        for x in qk(par):
            a(x)
        a("s_nop 7")
        a("s_nop 3")
        for i0 in range(2 - par, 9, 2):
            a("s_cmp_eq_u32 s41, %d" % i0)
            a("s_cbranch_scc1 L_it%d" % i0)
        a("s_branch L_it%d" % (8 - par))

    a.label("L_slow")
    vKs, vKts, vM, vD0, vNeg = T + 8, T + 9, T + 10, T + 11, T + 12
    a("v_and_b32 v%d, 31, v0" % T)
    a("v_lshrrev_b32 v%d, 5, v0" % (T + 1))
    a("v_lshlrev_b32 v%d, 2, v%d" % (vD0, T + 1))
    a("v_sub_u32 v%d, v%d, v%d" % (vD0, vD0, T))
    a("v_mov_b32 v%d, 0xff800000" % vNeg)
    a("v_mov_b32 v%d, v%d" % (vM, vNeg))
    a("s_max_i32 s50, s41, 0")
    a("s_sub_u32 s51, 8, s50")
    a("v_mul_u32_u24 v%d, s51, v%d" % (T, vStep))
    a("v_sub_u32 v%d, v%d, v%d" % (vV, vV, T))
    a("s_mul_i32 s51, s50, 2304")
    for r in range(16):
        a("v_mov_b32 v%d, 0" % (OO + r))
    for ps in range(2):
        lab = "L_sp%d" % ps
        a("v_add_u32 v%d, s51, v%d" % (vKs, vK))
        a("v_add_u32 v%d, s51, v%d" % (vKts, vKt))
        a("s_mov_b32 s46, s50")
        a.label(lab)
        for x in k_reads(0, vKs, vKts):
            a(x)
        if ps == 1:
            for x in v_reads(0):
                a(x)
        a("s_mov_b32 s47, -31")
        a("s_mov_b32 s48, 62")
        a("s_cmp_eq_u32 s46, 0")
        a("s_cselect_b32 s47, 1, s47")
        a("s_cselect_b32 s48, 30, s48")
        a("s_cmp_eq_u32 s46, 8")
        a("s_cselect_b32 s48, 31, s48")
        a("s_waitcnt lgkmcnt(0)")
        for x in qk(0):
            a(x)
        a("v_subrev_u32 v%d, s47, v%d" % (T, vD0))
        for r in range(16):
            a("v_add_u32 v%d, %d, v%d" % (T + 1, 8 * (r >> 2) + (r & 3), T))
            a("v_cmp_ge_u32 vcc, s48, v%d" % (T + 1))
            a("v_cndmask_b32 v%d, v%d, v%d, vcc" % (SS[0] + r, vNeg, SS[0] + r))
            if ps == 0:
                a("v_max_f32 v%d, v%d, v%d" % (vM, vM, SS[0] + r))
            else:
                a("v_sub_f32 v%d, v%d, v%d" % (SS[0] + r, SS[0] + r, vM))
                a("v_exp_f32 v%d, v%d" % (SS[0] + r, SS[0] + r))
        if ps == 1:
            for q in range(8):
                a("v_cvt_pk_bf16_f32 v%d, v%d, v%d" % (PP[0] + q, SS[0] + 2 * q, SS[0] + 2 * q + 1))
            for x in pv(0, False):
                a(x)
            a("v_add_u32 v%d, v%d, v%d" % (vV, vV, vStep))
        a("v_add_u32 v%d, 2304, v%d" % (vKs, vKs))
        a("v_add_u32 v%d, 2304, v%d" % (vKts, vKts))
        a("s_add_u32 s46, s46, 1")
        a("s_cmp_lt_u32 s46, 9")
        a("s_nop 7")
        a("s_nop 7")
        a("s_cbranch_scc1 %s" % lab)
        if ps == 0:
            a("v_mov_b32 v%d, v%d" % (T, vM))
            a("v_permlane32_swap_b32 v%d, v%d" % (T, vM))
            a("v_max_f32 v%d, v%d, v%d" % (vM, vM, T))
    a("v_rcp_f32 v%d, v%d" % (T, OO + 12))
    a("s_nop 1")
    a("s_branch L_fin")


def helpers(a):
    a.label("L_help")
    a("s_cmp_eq_u32 s3, 9")
    a("s_cbranch_scc0 L_help1")
    code_touch(a)
    a.label("L_help1")
    a("v_mov_b32 v3, %d" % CTL)
    for k in range(4):
        a("v_mov_b32 v%d, 0" % (4 + k))
    a("v_lshlrev_b32 v1, 4, v0")
    a("v_add_u32 v2, v1, v3")
    a("s_mov_b64 exec, 0xff")
    a("ds_write_b128 v2, v[4:7]")
    a("s_mov_b64 exec, -1")
    a("s_waitcnt lgkmcnt(0)")
    load_tag(a)
    a("s_barrier")
    a("s_barrier")
    a("s_waitcnt lgkmcnt(0)")
    make_tag(a)
    a.label("L_help2")
    decode2(a)
    a("s_cmp_eq_u32 s3, 8")
    a("s_cbranch_scc1 L_down")
    a("v_lshrrev_b32 v1, 5, v0")
    a("v_bfe_u32 v2, v0, 3, 2")
    a("v_lshrrev_b32 v10, 4, v0")
    a("v_lshlrev_b32 v10, 1, v10")
    a("v_and_b32 v11, 7, v0")
    a("v_xor_b32 v10, v10, v11")
    a("v_lshl_add_u32 v4, v1, 2, v2")
    a("v_mul_u32_u24 v4, 1152, v4")
    a("v_lshl_add_u32 v4, v10, 4, v4")
    a("v_mul_u32_u24 v5, 72, v1")
    a("v_add_u32 v5, v5, v2")
    a("v_mul_u32_u24 v5, 1152, v5")
    a("v_lshl_add_u32 v5, v10, 4, v5")
    a("s_sub_u32 s36, s3, 9")
    a("s_mul_i32 s37, s36, %d" % (20 * 1152))
    a("s_mul_i32 s43, s36, %d" % (144 * 1152))
    a("s_lshl_b32 s38, s36, 10")
    a("s_add_u32 s38, s38, %d" % WO)
    a("s_lshl_b32 s39, s53, 7")
    a("s_sub_u32 s42, %d, s39" % (576 * 1152))
    srd_off(a, 16, 28, "s39", "s42")
    srd_off(a, 24, 8, L.WS_O, 128 * 18432)
    a("v_mov_b32 v%d, %d" % (vC, CTL))
    a("s_setprio %d" % OPT["pr3"])
    a("s_cmp_ge_u32 s2, 192")
    a("s_cbranch_scc1 L_wo_go")
    for k in range(9):
        a("s_barrier")
    a.label("L_wo_go")
    a("s_cmp_eq_u32 s3, 11")
    a("s_cbranch_scc1 L_ctl")
    a("s_cmp_ge_u32 s52, 26")
    a("s_cbranch_scc1 L_end")
    stage_spin(a, "L_wo_w", 0, 3, 10, 2)
    stamp(a, 5)
    for m in range(36):
        st, sec = m >> 1, m & 1
        a("s_add_u32 m0, s38, %d" % (2048 * m))
        if st < 16:
            a("s_add_u32 s40, s37, %d" % ((36 * st + 8 * sec) * 1152))
            a("buffer_load_dwordx4 v4, s[16:19], s40 offen lds")
        else:
            a("s_add_u32 s40, s43, %d" % ((288 * (st - 16) + 36 * sec + 16) * 1152))
            a("buffer_load_dwordx4 v5, s[16:19], s40 offen lds")
    a("s_waitcnt vmcnt(0)")
    stamp(a, 6)
    lds_inc(a, 3, 4, C_WO)
    a("s_setprio 0")
    a("s_sub_u32 s49, s3, 5")
    a("s_branch L_out")
    a.label("L_ctl")
    a("v_lshlrev_b32 v8, 7, v0")
    a("v_add_u32 v9, %d, v8" % (L.WS_FLAG + F_PA * 128))
    a("s_mul_i32 s46, s52, 5")
    a("s_lshr_b32 s46, s46, 3")
    a("s_min_u32 s46, s46, 14")
    a("s_lshl_b32 s46, s46, 11")
    a("s_add_u32 s46, s46, %d" % (L.WS_FLAG + F_O * 128))
    a("v_add_u32 v8, s46, v8")
    a("s_lshl_b32 s46, s32, 4")
    a("s_add_u32 s46, s46, s31")
    a("s_lshl_b32 s46, s46, 7")
    a("s_add_u32 s46, s46, %d" % (L.WS_FLAG + F_O * 128))
    a("v_mov_b32 v14, s46")
    a("v_mov_b32 v15, s%d" % TAG)
    a("s_cmp_ge_u32 s2, 192")
    a("s_cbranch_scc1 L_ct_0")
    qpoll(a, 3, "L_qp1", True)
    a.label("L_ct_0")
    def aux():
        flag_poll(a, "L_pap", 9, 4, "s%d" % TAG, 64, 8, 3)
        a("v_mov_b32 v10, v5")
        a("v_mov_b32 v11, v6")
        a("v_mov_b32 v4, 1")
        a("ds_write_b64 v3, v[10:11] offset:%d" % C_IDX)
        a("ds_write_b32 v3, v4 offset:%d" % C_PA)
        stamp(a, 5)

    aux()
    a("v_bfe_u32 v20, v0, 4, 1")
    a("v_mul_u32_u24 v20, 18432, v20")
    a("v_and_b32 v21, 15, v0")
    a("v_lshl_add_u32 v20, v21, 4, v20")
    a("v_lshrrev_b32 v21, 5, v0")
    a("v_lshl_add_u32 v22, v21, 2, v20")
    a("v_lshl_add_u32 v21, v21, 8, v20")
    for k in range(4):
        a("v_mov_b32 v%d, -1" % (24 + k))
    a("s_mul_i32 s54, s32, %d" % (8 * 18432))
    a("s_lshl_b32 s55, s31, 10")
    a("s_add_u32 s55, s55, s54")
    a("s_lshr_b32 s56, s31, 1")
    a("s_lshl_b32 s56, s56, 8")
    a("s_and_b32 s57, s31, 1")
    a("s_lshl_b32 s57, s57, 3")
    a("s_add_u32 s56, s56, s57")
    a("s_add_u32 s56, s56, s54")
    a("s_add_u32 s56, s56, 16384")
    stage_spin(a, "L_ct_p", 0, 3, 10, 0)
    for j in range(4):
        a("buffer_store_dword v24, v22, s[24:27], s56 offen sc1")
        a("buffer_store_dwordx4 v[24:27], v21, s[24:27], s55 offen sc1")
        a("buffer_store_dwordx4 v[24:27], v21, s[24:27], s55 offen offset:512 sc1")
        a("s_add_u32 s55, s55, %d" % (2 * 18432))
        a("s_add_u32 s56, s56, %d" % (2 * 18432))
    a("v_mov_b32 v4, 1")
    a("s_waitcnt vmcnt(0)")
    a("ds_write_b32 v3, v4 offset:%d" % C_C)
    a("s_mov_b64 exec, 1")
    a("global_store_dword v14, v15, s[8:9] sc1")
    a("s_mov_b64 exec, -1")
    stamp(a, 6)
    lds_spin(a, "L_ct_q", 3, C_B, 10, (8,), 1)
    a("s_sleep %d" % OPT["slp3"])
    flag_poll(a, "L_op", 8, 12, "s%d" % TAG, 32, 2)
    lds_inc(a, 3, 10, C_GO2)
    stamp(a, 7)
    stamp_end(a, 11 if OPT["st11"] else 99, 3)
    a("ds_read_b64 v[10:11], v3 offset:%d" % C_IDX)
    a("s_waitcnt lgkmcnt(0)")
    a("v_readfirstlane_b32 s12, v10")
    a("v_readfirstlane_b32 s13, v11")
    a("s_mul_i32 s46, s52, 80")
    a("s_sub_u32 s46, s12, s46")
    a("s_cmp_lt_u32 s46, 80")
    a("s_cbranch_scc0 L_end")
    a("v_lshlrev_b32 v4, 7, v0")
    a("v_add_u32 v4, %d, v4" % (L.WS_FLAG + F_Y * 128))
    srd_off(a, 16, 8, L.WS_YP, 16 * 2304)
    a("v_lshrrev_b32 v6, 4, v0")
    a("v_mul_u32_u24 v6, 2304, v6")
    a("v_and_b32 v7, 15, v0")
    a("v_lshlrev_b32 v7, 4, v7")
    a("v_add_u32 v6, v6, v7")
    a("v_add_u32 v7, %d, v7" % YB)
    a("s_lshl_b32 s40, s53, 8")
    flag_poll(a, "L_yp", 4, 5, "12", 16, 2)
    for i in range(4):
        a("buffer_load_dwordx4 %s, v6, s[16:19], s40 offen sc1" % vr(8 + 4 * i, 4))
        a("s_add_u32 s40, s40, %d" % (4 * 2304))
    a("s_waitcnt vmcnt(0)")
    for i in range(1, 4):
        a("v_pk_add_f32 v[8:9], v[8:9], %s" % vr(8 + 4 * i, 2))
        a("v_pk_add_f32 v[10:11], v[10:11], %s" % vr(10 + 4 * i, 2))
    for k in range(4):
        a("v_mov_b32 v20, v%d" % (8 + k))
        a("v_permlane32_swap_b32 v20, v%d" % (8 + k))
        a("v_add_f32 v%d, v%d, v20" % (8 + k, 8 + k))
        a("v_mov_b32 v20, v%d" % (8 + k))
        a("v_permlane16_swap_b32 v20, v%d" % (8 + k))
        a("v_add_f32 v%d, v%d, v20" % (8 + k, 8 + k))
        bf16_round(a, 8 + k, 8 + k)
        a("v_mul_f32 v%d, s13, v%d" % (8 + k, 8 + k))
        bf16_round(a, 8 + k, 8 + k)
    a("v_mov_b32 v12, 1")
    a("ds_write_b128 v7, v[8:11]")
    a("ds_write_b32 v3, v12 offset:%d" % C_YRDY)
    a("s_cmp_eq_u32 s53, 0")
    a("s_cbranch_scc0 L_end")
    a("v_mov_b32 v4, %d" % L.WS_EPOCH)
    a("v_mov_b32 v5, s%d" % TAG)
    a("s_mov_b64 exec, 1")
    a("global_store_dword v4, v5, s[8:9]")
    a("s_endpgm")

    a.label("L_down")
    a("s_cmp_ge_u32 s2, 192")
    a("s_cbranch_scc1 L_end")
    DW, DA = 20, 128
    a("v_lshrrev_b32 v2, 3, v0")
    a("v_and_b32 v10, 7, v0")
    a("v_mul_u32_u24 v16, 1152, v2")
    a("v_lshl_add_u32 v16, v10, 4, v16")
    a("s_mul_i32 s36, s2, 24")
    a("v_mul_u32_u24 v12, %d, v10" % (4608 * 16))
    a("v_add_u32 v11, s36, v2")
    a("v_lshl_add_u32 v17, v11, 4, v12")
    a("v_cmp_gt_u32 s[56:57], 7, v10")
    a("s_mul_i32 s37, s2, %d" % (24 * 1152))
    a("v_and_b32 v1, 1, v0")
    a("v_lshlrev_b32 v1, 4, v1")
    sel_masks(a, 44, 11)
    a("v_lshrrev_b32 v11, 5, v0")
    a("v_bfe_u32 v12, v0, 3, 1")
    a("v_cmp_eq_u32 s[52:53], v11, v12")
    a("v_mul_u32_u24 v12, 2304, v12")
    a("v_bfe_u32 v11, v0, 4, 1")
    a("v_lshl_add_u32 v12, v11, 7, v12")
    a("v_lshl_add_u32 v12, v10, 2, v12")
    a("v_add_u32 v164, %d, v12" % HP)
    a("v_lshlrev_b32 v165, 2, v0")
    a("v_add_u32 v166, %d, v165" % HP)
    a("s_and_b32 s38, s2, 15")
    a("s_mul_i32 s39, s38, 2304")
    a("s_add_u32 s39, s39, %d" % L.WS_YP)
    a("v_add_u32 v165, s39, v165")
    a("s_lshl_b32 s38, s38, 7")
    a("s_add_u32 s38, s38, %d" % (L.WS_FLAG + F_Y * 128))
    srd_off(a, 16, 14, "s37", 24 * 1152)
    srd_off(a, 20, 8, L.WS_PA, 7 * 4608 * 16)
    def dloads():
        for t in range(0 if OPT["nodown"] else 3):
            a("s_movk_i32 s40, %d" % (9216 * t))
            for cg in range(9):
                a("buffer_load_dwordx4 %s, v16, s[16:19], s40 offen offset:%d %s" % (vr(DW + 4 * (9 * t + cg), 4), 128 * cg, "" if OPT["dtouch"] else "nt"))

    for k in range(2, 11):
        if k == OPT["dpos"]:
            dloads()
        a("s_barrier")
    if OPT["w8e"]:
        lds_spin(a, "L_dn_w2", 3, C_1, 10, (8,), 2)
    else:
        stage_spin(a, "L_dn_w2", 0, 3, 10, 2)
    stamp(a, 5)
    a("s_setprio %d" % OPT["pr1"])
    a("s_mov_b32 s60, 0x40000")
    a.label("L_dn_pa")
    a("buffer_load_dwordx3 v[4:6], v17, s[20:23], 0 offen sc1")
    a("buffer_load_dwordx3 v[8:10], v17, s[20:23], 0 offen offset:128 sc1")
    a("buffer_load_dwordx3 v[160:162], v17, s[20:23], 0 offen offset:256 sc1")
    a("s_waitcnt vmcnt(0)")
    a("v_cmp_ne_u32 vcc, s%d, v6" % TAG)
    a("v_cmp_ne_u32 s[40:41], s%d, v10" % TAG)
    a("v_cmp_ne_u32 s[42:43], s%d, v162" % TAG)
    a("s_or_b64 vcc, vcc, s[40:41]")
    a("s_or_b64 vcc, vcc, s[42:43]")
    a("s_and_b64 vcc, vcc, s[56:57]")
    a("s_cmp_eq_u64 vcc, 0")
    a("s_cbranch_scc1 L_dn_pb")
    a("s_sleep 8")
    a("s_sub_u32 s60, s60, 1")
    a("s_cbranch_scc0 L_dn_pa")
    a.label("L_dn_pb")
    stamp(a, 8)
    a("v_mov_b32 v6, v8")
    a("v_mov_b32 v7, v9")
    a("v_mov_b32 v8, v160")
    a("v_mov_b32 v9, v161")
    sum8(a, (4, 5, 6, 7, 8, 9))
    for t in range(3):
        g, u = 4 + 2 * t, 5 + 2 * t
        bf16_round(a, g, g)
        bf16_round(a, u, u)
        sigmoid(a, 10, g)
        a("v_mul_f32 v%d, v%d, v10" % (g, g))
        bf16_round(a, g, g)
        a("v_mul_f32 v%d, v%d, v%d" % (g, g, u))
        a("v_cvt_pk_bf16_f32 v%d, v%d, v%d" % (g, g, g))
        a("v_and_b32 v%d, 0xffff, v%d" % (g, g))
        a("v_lshlrev_b32 v%d, v1, v%d" % (g, g))
    for t in range(3):
        selector(a, 12, 4 + 2 * t, 44)
        for cg in range(9):
            d = vr(DA + 4 * cg, 4)
            a("v_mfma_f32_16x16x32_bf16 %s, %s, v[12:15], %s" % (d, vr(DW + 4 * (9 * t + cg), 4), "0" if t == 0 else d))
    a("s_mov_b64 exec, s[52:53]")
    for cg in range(9):
        for r in range(4):
            a("ds_write_b32 v164, v%d offset:%d" % (DA + 4 * cg + r, 256 * cg + 32 * r))
    a("s_mov_b64 exec, -1")
    for cg in range(9):
        a("ds_read2st64_b32 %s, v166 offset0:%d offset1:%d" % (vr(20 + 2 * cg, 2), cg, cg + 9))
    stage_spin(a, "L_dn_at", 0, 3, 10, 2)
    lds_spin(a, "L_dn_ax", 3, C_PA, 10, (1,), 1)
    for cg in range(9):
        a("v_add_f32 v%d, v%d, v%d" % (20 + 2 * cg, 20 + 2 * cg, 21 + 2 * cg))
        a("global_atomic_add_f32 v165, v%d, s[8:9] offset:%d" % (20 + 2 * cg, 256 * cg))
    a("v_mov_b32 v4, s38")
    a("v_mov_b32 v5, 1")
    a("s_waitcnt vmcnt(0)")
    stamp(a, 7)
    a("s_mov_b64 exec, 1")
    a("global_atomic_add v4, v5, s[8:9] sc1")
    stamp_end(a, 8, 1)


def kf(a):
    a.label(NAME)
    a("s_cmp_ge_u32 s2, 256")
    a("s_cbranch_scc1 L_end")
    stamp_init(a)
    stamp(a, 0)
    a("s_load_dwordx4 s[4:7], s[0:1], 0")
    a("s_load_dwordx2 s[8:9], s[0:1], 88")
    a("s_load_dwordx2 s[10:11], s[0:1], 72")
    a("s_load_dwordx2 s[14:15], s[0:1], 56")
    a("s_load_dwordx2 s[28:29], s[0:1], 16")
    a("v_lshrrev_b32 v1, 6, v0")
    a("v_and_b32 v0, 63, v0")
    a("v_readfirstlane_b32 s3, v1")
    a("s_and_b32 s30, s2, 3")
    a("s_bfe_u32 s31, s2, 0x10002")
    a("s_lshr_b32 s32, s2, 3")
    a("s_cmp_ge_u32 s32, 24")
    a("s_cbranch_scc1 L_sp")
    a("s_cmp_ge_u32 s3, 8")
    a("s_cbranch_scc1 L_help")
    gemm_phase(a)
    attention_phase(a)
    out_phase(a)
    late_and_slow(a)
    spare_phase(a)
    helpers(a)
    a.label("L_end")
    a("s_endpgm")
```

```python
import struct
from asmdsl import vr, sr
import layout as L

OPT = dict(stamp=0, spin="", extra_empty=0, st1="sc1", st2="sc1", la=2, moe=1, nopoll=0, slp=8, pl="sc1", ps="sc1", rb=3, slp0=24, wdel=0, thr=8, wol2=0, old="sc1", stw=0, hdel=0, sperm=0, k1only=0, notail=0, ttouch=0, lao=4, wos=2, qslp=0, g1s=1, dpos=9, kvl="sc1", pr1=2, pr2=3, woe=0, ppos=4, pst="sc1", slp2=40, slp3=8, st11=0, wtp=99, ph=5, pr3=3, wt2=0, wth=12, dearly=0, dtouch=0, nodown=0, nopois=0, t0p="", ctouch=1, w8e=1, ost="", auxp=1, can=0, cdel=6, gissue=2, light=1, wa0=1, bal=4, allg=1, noat=0, atw=0, qdel=0, qpipe=0, dsplit=0, amap=1, gmap=1, pearly=0, fdel=0)


def f32(x):
    return "0x%08x" % struct.unpack("<I", struct.pack("<f", x))[0]


LOG2E = 1.4426950408889634
QSCALE = (18 ** -0.5) * LOG2E
STAMP0 = 66
NST = 15


def stamp(a, j):
    if OPT["stamp"]:
        a("s_memrealtime %s" % sr(STAMP0 + 2 * j, 2))


def stamp_init(a):
    if OPT["stamp"]:
        for j in range(2 * NST):
            a("s_mov_b32 s%d, 0" % (STAMP0 + j))


def stamp_flush(a, kidx, wsreg, vt):
    if not OPT["stamp"]:
        return
    a("s_waitcnt lgkmcnt(0)")
    a("s_mov_b64 exec, 1")
    a("s_lshl_b32 s100, s2, 7")
    a("s_add_u32 s100, s100, %d" % (L.WS_STAMP + kidx * 512 * 128))
    a("v_mov_b32 v%d, s100" % vt)
    for j in range(NST):
        a("v_mov_b32 v%d, s%d" % (vt + 2, STAMP0 + 2 * j))
        a("v_mov_b32 v%d, s%d" % (vt + 3, STAMP0 + 2 * j + 1))
        a("global_store_dwordx2 v%d, %s, %s offset:%d" % (vt, vr(vt + 2, 2), sr(wsreg, 2), 8 * j))
        a("s_nop 1")
    a("v_mov_b32 v%d, 0x54414D50" % (vt + 2))
    a("v_mov_b32 v%d, 0x53" % (vt + 3))
    a("global_store_dwordx2 v%d, %s, %s offset:120" % (vt, vr(vt + 2, 2), sr(wsreg, 2)))


def stamp_end(a, wave, kidx, wsreg=8, vt=30):
    if OPT["stamp"]:
        lab = a.newlabel("se")
        a("s_cmp_eq_u32 s3, %d" % wave)
        a("s_cbranch_scc0 %s" % lab)
        stamp_flush(a, kidx, wsreg, vt)
        a("s_endpgm")
        a.label(lab)


def srd(a, d, base, nbytes):
    a("s_mov_b32 s%d, s%d" % (d, base))
    a("s_and_b32 s%d, s%d, 0xffff" % (d + 1, base + 1))
    a("s_mov_b32 s%d, %s" % (d + 2, nbytes))
    a("s_mov_b32 s%d, 0x20000" % (d + 3))


def srd_off(a, d, base, off, nbytes):
    a("s_add_u32 s%d, s%d, %s" % (d, base, off))
    a("s_addc_u32 s%d, s%d, 0" % (d + 1, base + 1))
    a("s_and_b32 s%d, s%d, 0xffff" % (d + 1, d + 1))
    a("s_mov_b32 s%d, %s" % (d + 2, nbytes))
    a("s_mov_b32 s%d, 0x20000" % (d + 3))


def bf16_round(a, dst, src):
    a("v_cvt_pk_bf16_f32 v%d, v%d, v%d" % (dst, src, src))
    a("v_lshlrev_b32 v%d, 16, v%d" % (dst, dst))


def sigmoid(a, dst, src):
    a("v_mul_f32 v%d, %s, v%d" % (dst, f32(-LOG2E), src))
    a("v_exp_f32 v%d, v%d" % (dst, dst))
    a("v_add_f32 v%d, 1.0, v%d" % (dst, dst))
    a("v_rcp_f32 v%d, v%d" % (dst, dst))


def wave_umax(a, v, sdst):
    for mod in ("row_shr:1 row_mask:0xf", "row_shr:2 row_mask:0xf", "row_shr:4 row_mask:0xf",
                "row_shr:8 row_mask:0xf", "row_bcast:15 row_mask:0xa", "row_bcast:31 row_mask:0xc"):
        a("v_max_u32_dpp v%d, v%d, v%d %s bank_mask:0xf" % (v, v, v, mod))
    a("v_readlane_b32 s%d, v%d, 63" % (sdst, v))


def sum8(a, regs):
    for mod in ("quad_perm:[1,0,3,2]", "quad_perm:[2,3,0,1]", "row_half_mirror"):
        for v in regs:
            a("v_add_f32_dpp v%d, v%d, v%d %s row_mask:0xf bank_mask:0xf" % (v, v, v, mod))


def sel_masks(a, sbase, vt):
    a("v_bfe_u32 v%d, v0, 1, 2" % vt)
    for q in range(4):
        a("v_cmp_eq_u32 s[%d:%d], %d, v%d" % (sbase + 2 * q, sbase + 2 * q + 1, q, vt))


def selector(a, dst, src, sbase):
    for q in range(4):
        a("v_cndmask_b32 v%d, 0, v%d, s[%d:%d]" % (dst + q, src, sbase + 2 * q, sbase + 2 * q + 1))
```

```python
from asmdsl import vr, sr
import layout as L
from common import *
from k2 import (KB, VB, QB, ONES, vK, vKt, vV, vStep, QM, QT, MSK, KF, VF, PP, SS, OO, T,
                k_reads, v_reads, qk, pv)

NAME = "gated_mix__sliding_block__moe_arch_mod__prompt_kernel"
SLOT = 34816
IMG = SLOT
WO = 66560
CTL = 149568
YB = 149696
HP = 150016
YT = 154624
XS = 156672
KF_LDS = 162304
PSLOT = (QB, QB + 4096, 140288, 144384, 158208)
KF_VGPR = 168
PART = 0
STG = 20480
XR, GR = 128, 136
vC = 154
TAG = 65
C_O, C_GO2, C_A, C_WO, C_PART, C_YRDY, C_B, C_1, C_GO1, C_C, C_PA, C_IDX, C_RSEL = 0, 4, 8, 12, 96, 32, 36, 40, 44, 48, 52, 56, 60
C_KMAX, C_KCNT, C_XS, C_GD, C_RED, C_RED2, C_FI = 64, 68, 72, 76, 80, 84, 88
F_Q, F_O, F_PA, F_Y = 0, 192, 448, 512


def lds_spin(a, name, addr_v, off, regs, conds, slp=1):
    n = len(conds)
    a("s_mov_b32 s60, 0x200000")
    a.label(name)
    a(("ds_read_b64 %s, v%d offset:%d" % (vr(regs, 2), addr_v, off)) if n == 2 else
      ("ds_read_b32 v%d, v%d offset:%d" % (regs, addr_v, off)))
    a("s_waitcnt lgkmcnt(0)")
    a("v_readfirstlane_b32 s61, v%d" % regs)
    if n == 2:
        a("v_readfirstlane_b32 s62, v%d" % (regs + 1))
        a("s_lshl_b32 s62, s62, 8")
        a("s_or_b32 s61, s61, s62")
        a("s_cmp_eq_u32 s61, %d" % (conds[0] | (conds[1] << 8)))
    else:
        a("s_cmp_eq_u32 s61, %d" % conds[0])
    a("s_cbranch_scc1 %s_d" % name)
    if slp:
        a("s_sleep %d" % slp)
    a("s_sub_u32 s60, s60, 1")
    a("s_cmp_lg_u32 s60, 0")
    a("s_cbranch_scc1 %s" % name)
    a.label(name + "_d")


def stage_spin(a, name, stage, vc=vC, T=T, slp=0):
    a("s_mov_b32 s60, 0x200000")
    a.label(name)
    a("ds_read_b32 v%d, v%d offset:%d" % (T, vc, C_A))
    a("s_waitcnt lgkmcnt(0)")
    a("v_readfirstlane_b32 s61, v%d" % T)
    a("s_bitcmp1_b32 s61, %d" % (8 * stage + 3))
    a("s_cbranch_scc1 %s_d" % name)
    if slp:
        a("s_sleep %d" % slp)
    a("s_sub_u32 s60, s60, 1")
    a("s_cmp_lg_u32 s60, 0")
    a("s_cbranch_scc1 %s" % name)
    a.label(name + "_d")


def landed(a, inc, vm):
    a("v_mov_b32 v%d, %s" % (T, hex(inc)))
    a("s_waitcnt vmcnt(%d)" % vm)
    a("s_mov_b64 exec, 1")
    a("ds_add_u32 v%d, v%d offset:%d" % (vC, T, C_A))
    a("s_mov_b64 exec, -1")


def poison(a):
    if OPT["nopois"]:
        a("s_nop 0")
        a("buffer_load_dword v155, v152, s[24:27], s59 offen")
        a("buffer_load_dword v155, v152, s[24:27], s59 offen")
        return
    for k in range(4):
        a("v_mov_b32 v%d, -1" % (120 + k))
    a("buffer_store_dwordx4 %s, v153, s[24:27], s58 offen sc1" % vr(120, 4))
    a("s_mov_b32 exec_hi, 0")
    a("buffer_store_dword v%d, v152, s[24:27], s59 offen sc1" % 120)
    a("s_mov_b32 exec_hi, -1")


def tail_touch(a):
    a("buffer_load_dword v155, v152, s[24:27], s59 offen")


def flag_poll(a, name, voff, vt, want, lanes, slp=1, width=1):
    a("s_mov_b64 exec, %s" % ("-1" if lanes == 64 else hex((1 << lanes) - 1)))
    a("s_mov_b32 s60, 0x40000")
    a.label(name)
    a("global_load_dword%s %s, v%d, s[8:9] sc1" % ("" if width == 1 else "x%d" % width, vr(vt, width), voff))
    a("s_waitcnt vmcnt(0)")
    a("v_cmp_eq_u32 vcc, %s, v%d" % (want, vt))
    a("s_cmp_eq_u64 vcc, exec")
    a("s_cbranch_scc1 %s_d" % name)
    if slp:
        a("s_sleep %d" % slp)
    a("s_sub_u32 s60, s60, 1")
    a("s_cmp_lg_u32 s60, 0")
    a("s_cbranch_scc1 %s" % name)
    a.label(name + "_d")
    a("s_mov_b64 exec, -1")


def lds_inc(a, vz, vt, off, rtn=False):
    a("v_mov_b32 v%d, 1" % vt)
    a("s_mov_b64 exec, 1")
    if rtn:
        a("ds_add_rtn_u32 v%d, v%d, v%d offset:%d" % (vt, vz, vt, off))
    else:
        a("ds_add_u32 v%d, v%d offset:%d" % (vz, vt, off))
    a("s_mov_b64 exec, -1")


def load_tag(a):
    a("s_mov_b32 s64, %d" % L.WS_EPOCH)
    a("s_load_dword s%d, s[8:9], s64" % TAG)


def make_tag(a):
    a("s_mul_i32 s%d, s%d, 0x9e3779b1" % (TAG, TAG))
    a("s_add_u32 s%d, s%d, 0x7f4a7c15" % (TAG, TAG))


def copy_scalars(a):
    a("s_mul_i32 s55, s34, %d" % (4 * L.PAIR_BYTES))
    a("s_mul_i32 s56, s35, 9216")
    a("s_add_u32 s55, s55, s56")
    a("s_lshl_b32 s56, s3, 10")
    a("s_add_u32 s55, s55, s56")
    for j in range(5):
        a("s_add_u32 s57, s3, %d" % (8 * j))
        a("s_mul_i32 s57, s57, 57")
        a("s_lshr_b32 s57, s57, 9")
        a("s_mul_i32 s57, s57, %d" % (L.PAIR_BYTES - 9216))
        a("s_add_u32 s57, s57, s55")
        a("s_add_u32 s%d, s57, %d" % (50 + j, 8192 * j))
    a("s_mul_i32 s58, s35, 12")
    a("s_add_u32 s58, s58, s34")
    a("s_lshl_b32 s58, s58, 7")
    a("s_add_u32 s58, s58, %d" % (L.WS_FLAG + F_Q * 128))


def decode2(a):
    a("s_and_b32 s30, s2, 3")
    a("s_bfe_u32 s33, s2, 0x10002")
    a("s_bfe_u32 s32, s2, 0x20003")
    a("s_lshl_b32 s31, s30, 2")
    a("s_add_u32 s31, s31, s32")
    a("s_lshl_b32 s32, s33, 3")
    a("s_lshr_b32 s34, s2, 5")
    if OPT["light"]:
        a("s_add_u32 s34, s34, 2")
        a("s_and_b32 s34, s34, 7")
    a("s_add_u32 s32, s32, s34")
    a("s_lshr_b32 s33, s2, 3")
    a("s_mul_i32 s34, s33, 57")
    a("s_lshr_b32 s34, s34, 9")
    a("s_mul_i32 s53, s34, 9")
    a("s_sub_u32 s53, s33, s53")
    a("s_lshl_b32 s52, s34, 3")
    a("s_and_b32 s34, s2, 7")
    a("s_add_u32 s52, s52, s34")
    a("s_sub_u32 s33, s2, 216")
    a("s_mul_i32 s34, s33, 57")
    a("s_lshr_b32 s34, s34, 9")
    a("s_mul_i32 s35, s34, 9")
    a("s_sub_u32 s33, s33, s35")
    a("s_add_u32 s34, s34, 24")
    a("s_cmp_ge_u32 s2, 216")
    a("s_cselect_b32 s52, s34, s52")
    a("s_cselect_b32 s53, s33, s53")


def qpoll(a, vc, name, own, r=16):
    R = dict(a=r, b=r + 1, c=r + 2)
    a("v_add_u32 v%(a)d, 2, v0" % R)
    a("v_mul_u32_u24 v%(b)d, 43, v%(a)d" % R)
    a("v_lshrrev_b32 v%(b)d, 7, v%(b)d" % R)
    a("v_mul_u32_u24 v%(c)d, 3, v%(b)d" % R)
    a("v_sub_u32 v%(a)d, v%(a)d, v%(c)d" % R)
    a("s_sub_u32 s35, s32, 2")
    a("v_add_u32 v%(a)d, s35, v%(a)d" % R)
    a("v_max_i32 v%(a)d, 0, v%(a)d" % R)
    a("v_mul_u32_u24 v%(a)d, 12, v%(a)d" % R)
    a("v_lshl_add_u32 v%(a)d, v%(b)d, 2, v%(a)d" % R)
    a("v_add_u32 v%(a)d, s30, v%(a)d" % R)
    a("v_lshlrev_b32 v%(a)d, 7, v%(a)d" % R)
    a("v_add_u32 v%d, %d, v%d" % (r, L.WS_FLAG + F_Q * 128, r))
    if own:
        lds_spin(a, name + "w", vc, C_1, r + 2, (8,), 0)
    flag_poll(a, name, r, r + 1, "s%d" % TAG, 7, OPT["qslp"])
    lds_inc(a, vc, r + 2, C_GO1)


def code_touch(a):
    if not OPT["ctouch"]:
        return
    lab = a.newlabel("pc")
    a("s_getpc_b64 s[20:21]")
    a.label(lab)
    a("s_sub_u32 s20, s20, %s-%s" % (lab, NAME))
    a("s_subb_u32 s21, s21, 0")
    a("s_lshr_b32 s22, s2, 3")
    a("s_mul_i32 s22, s22, %d" % (12 * 128))
    a("v_lshlrev_b32 v20, 7, v0")
    a("v_add_u32 v20, s22, v20")
    a("v_min_u32 v20, L_end-%s, v20" % NAME)
    a("s_mov_b64 exec, 0xfff")
    a("global_load_dword v21, v20, s[20:21]")
    a("s_mov_b64 exec, -1")


def gemm_phase(a):
    a("s_mul_i32 s33, s32, 43")
    a("s_lshr_b32 s33, s33, 7")
    a("s_mul_i32 s34, s33, 3")
    a("s_sub_u32 s34, s32, s34")
    a("s_lshl_b32 s34, s34, 2")
    a("s_add_u32 s34, s34, s30")
    a("s_lshl_b32 s35, s31, 3")
    a("s_add_u32 s35, s35, s33")
    a("s_cmp_lt_u32 s3, 4")
    a("s_cbranch_scc1 L_comp")
    a("s_cmp_lt_u32 s3, 6")
    a("s_cbranch_scc0 L_ldw")
    a("s_lshr_b32 s41, s34, 2")
    a("s_mul_i32 s41, s41, 43")
    a("v_add_u32 v6, s41, v0")
    a("v_mul_u32_u24 v6, 1152, v6")
    a("v_and_b32 v7, 7, v0")
    a("s_lshl_b32 s41, s33, 3")
    a("v_add_u32 v7, s41, v7")
    a("v_mul_u32_u24 v7, 3456, v7")
    a("v_lshrrev_b32 v8, 3, v0")
    a("v_lshl_add_u32 v7, v8, 7, v7")
    a("s_cmp_eq_u32 s3, 4")
    a("s_cselect_b32 s42, 43, 24")
    a("s_cselect_b64 s[46:47], -1, 0")
    a("v_cndmask_b32 v6, v7, v6, s[46:47]")
    a("v_cmp_gt_u32 s[44:45], s42, v0")
    a("s_mul_i32 s39, s35, %d" % (128 * 1152))
    a("s_mul_i32 s46, s34, 288")
    a("s_and_b32 s46, s46, 0xffffff80")
    a("s_sub_u32 s47, %d, s46" % (576 * 3456))
    stamp(a, 11)
    a("s_waitcnt lgkmcnt(0)")
    stamp(a, 12)
    srd_off(a, 16, 4, "s39", 128 * 1152)
    srd_off(a, 20, 6, "s46", "s47")
    a("s_cmp_eq_u32 s3, 4")
    a("s_cselect_b32 s20, s16, s20")
    a("s_cselect_b32 s21, s17, s21")
    a("s_cselect_b32 s22, s18, s22")
    a("s_mov_b64 exec, s[44:45]")
    a("buffer_load_dword v20, v6, s[20:23], 0 offen %s" % OPT["t0p"])
    a("s_mov_b64 exec, -1")
    load_tag(a)
    a("v_lshrrev_b32 v1, 3, v0")
    a("v_mul_u32_u24 v1, 1152, v1")
    a("v_lshrrev_b32 v2, 4, v0")
    a("v_and_b32 v3, 7, v0")
    a("v_xor_b32 v3, v3, v2")
    a("v_lshl_add_u32 v4, v3, 4, v1")
    a("v_xor_b32 v3, 4, v3")
    a("v_lshl_add_u32 v5, v3, 4, v1")
    a("v_add_u32 v5, %d, v5" % (8 * 1152))
    a("s_sub_u32 s36, s3, 4")
    a("s_mul_i32 s37, s36, %d" % (64 * 1152))
    a("s_lshl_b32 s38, s36, 13")
    copy_scalars(a)
    stamp(a, 1)
    a("s_waitcnt vmcnt(0) lgkmcnt(0)")
    stamp(a, 2)

    def x_chunk(c):
        for i in range(8):
            a("s_add_u32 m0, s38, %d" % ((c % 4) * SLOT + i * 1024))
            a("s_add_u32 s40, s37, %d" % ((i >> 1) * 16 * 1152 + c * 128))
            a("buffer_load_dwordx4 v%d, s[16:19], s40 offen lds" % (4 + (i & 1)))

    def loader_loop(fn, n):
        LA = OPT["la"]
        a("s_barrier")
        stamp(a, 13)
        for c in range(LA):
            fn(c)
        stamp(a, 14)
        extra = 0
        for c in range(9):
            a("s_waitcnt vmcnt(%d)" % (n * min(LA - 1, 8 - c) + extra))
            a("s_barrier")
            if c + LA < 9:
                fn(c + LA)
            if c + LA == 8 and OPT["wt2"]:
                a("s_lshr_b32 s44, s2, 3")
                a("s_lshl_b32 s44, s44, 2")
                a("s_add_u32 s44, s44, s3")
                a("s_mul_i32 s44, s44, %d" % (54 * 128))
                a("s_sub_u32 s44, s44, %d" % (4 * 54 * 128))
                srd(a, 20, 28, 576 * 1152)
                a("v_lshlrev_b32 v21, 7, v0")
                a("buffer_load_dword v20, v21, s[20:23], s44 offen")
                extra = 1

    loader_loop(x_chunk, 8)
    a("s_branch L_copy")
    a.label("L_ldw")
    a("s_movk_i32 s41, 3641")
    for i in range(9):
        a("v_add_u32 v1, %d, v0" % (64 * i))
        a("v_mul_u32_u24 v2, s41, v1")
        a("v_lshrrev_b32 v2, 16, v2")
        a("v_mul_u32_u24 v3, 18, v2")
        a("v_sub_u32 v3, v1, v3")
        a("v_bfe_u32 v1, v2, 2, 2")
        a("v_lshlrev_b32 v1, 3, v1")
        a("v_lshrrev_b32 v13, 4, v2")
        a("v_lshl_add_u32 v1, v13, 2, v1")
        a("v_and_b32 v2, 3, v2")
        a("v_add_u32 v1, v1, v2")
        a("v_mul_u32_u24 v1, 3456, v1")
        a("v_lshl_add_u32 v%d, v3, 4, v1" % (4 + i))
        if i == 2:
            a("s_waitcnt lgkmcnt(0)")
            load_tag(a)
    a("s_sub_u32 s36, s3, 6")
    a("s_mul_i32 s37, s36, %d" % (32 * 3456))
    a("s_mul_i32 s38, s36, 9216")
    a("s_mul_i32 s39, s34, 288")
    a("s_sub_u32 s42, %d, s39" % (576 * 3456))
    copy_scalars(a)
    srd_off(a, 16, 6, "s39", "s42")
    a("s_waitcnt lgkmcnt(0)")

    def w_chunk(c):
        a("s_add_u32 s40, s37, %d" % (c * 64 * 3456))
        for i in range(9):
            a("s_add_u32 m0, s38, %d" % ((c % 4) * SLOT + 16384 + i * 1024))
            a("s_nop 0")
            a("buffer_load_dwordx4 v%d, s[16:19], s40 offen lds" % (4 + i))

    loader_loop(w_chunk, 9)
    a("s_branch L_copy")
    a.label("L_comp")
    ACC, XF, WF = 64, (136, 144), 24
    a("v_and_b32 v8, 15, v0")
    a("v_lshrrev_b32 v9, 4, v0")
    a("v_lshrrev_b32 v10, 1, v8")
    a("v_xor_b32 v10, v10, v9")
    a("s_lshl_b32 s36, s3, 12")
    a("v_lshlrev_b32 v2, 7, v8")
    a("v_lshl_add_u32 v2, v10, 4, v2")
    a("v_add_u32 v2, s36, v2")
    a("v_xor_b32 v3, 64, v2")
    a("v_add_u32 v4, %d, v2" % (2 * SLOT))
    a("v_add_u32 v5, %d, v3" % (2 * SLOT))
    a("v_lshrrev_b32 v10, 2, v0")
    a("v_mul_u32_u24 v6, 288, v10")
    a("v_and_b32 v10, 3, v0")
    a("v_lshl_add_u32 v6, v10, 3, v6")
    a("v_add_u32 v6, 16384, v6")
    a("v_add_u32 v7, %d, v6" % (2 * SLOT))
    a("s_waitcnt lgkmcnt(0)")
    load_tag(a)
    a("s_mov_b32 s36, 1.0")
    a("s_cmp_lt_u32 s34, 4")
    a("s_cselect_b32 s36, %s, s36" % f32(QSCALE))
    a("s_mov_b32 s37, s36")
    a("s_lshl_b32 s38, s3, 5")
    a("v_add_u32 v10, s38, v8")
    a("v_mul_u32_u24 v10, 72, v10")
    a("v_lshl_add_u32 v10, v9, 3, v10")
    a("v_add_u32 v10, %d, v10" % IMG)
    for ft in range(9):
        a("v_add_u32 v11, %d, v9" % (4 * ft))
        a("v_mul_u32_u24 v11, 57, v11")
        a("v_lshrrev_b32 v11, 9, v11")
        a("v_mul_u32_u24 v11, 9144, v11")
        a("v_add_u32 v%d, v11, v10" % (12 + ft))
    copy_scalars(a)
    a("s_waitcnt lgkmcnt(0)")

    def xreads(step):
        c, h2 = step >> 1, step & 1
        slot = c % 4
        return ["ds_read_b128 %s, v%d offset:%d" % (vr(XF[step & 1] + 4 * tt, 4), 2 + 2 * (slot >> 1) + h2,
                                                    (slot & 1) * SLOT + tt * 2048) for tt in range(2)]

    def wreads(step, ft):
        c, h2 = step >> 1, step & 1
        slot = c % 4
        return ["ds_read_b64_tr_b16 %s, v%d offset:%d" % (vr(WF + 4 * ft + 2 * sec, 2), 6 + (slot >> 1),
                                                          (slot & 1) * SLOT + h2 * 9216 + sec * 4608 + ft * 32)
                for sec in range(2)]

    def mfma(step, ft, tt):
        d = vr(ACC + 8 * ft + 4 * tt, 4)
        return "v_mfma_f32_16x16x32_bf16 %s, %s, %s, %s" % (
            d, vr(WF + 4 * ft, 4), vr(XF[step & 1] + 4 * tt, 4), "0" if step == 0 else d)

    def epi(k):
        ft, tt = k >> 1, k & 1
        b = ACC + 4 * k
        t = 152 + 2 * (k % 8)
        return ["v_pk_mul_f32 %s, %s, s[36:37]" % (vr(b, 2), vr(b, 2)),
                "v_pk_mul_f32 %s, %s, s[36:37]" % (vr(b + 2, 2), vr(b + 2, 2)),
                "v_cvt_pk_bf16_f32 v%d, v%d, v%d" % (t, b, b + 1),
                "v_cvt_pk_bf16_f32 v%d, v%d, v%d" % (t + 1, b + 2, b + 3),
                "ds_write_b64 v%d, %s offset:%d" % (12 + ft, vr(t, 2), 32 * ft + 1152 * tt)]

    a("s_barrier")
    a("s_barrier")
    stamp(a, 1)
    q = []

    def issue(tag, lst):
        for x in lst:
            a(x)
            q.append(tag)

    def need(tag):
        last = max(k for k, v in enumerate(q) if v == tag)
        a("s_waitcnt lgkmcnt(%d)" % min(15, len(q) - 1 - last))

    issue(("x", 0), xreads(0))
    for ft in range(9):
        issue(("w", 0, ft), wreads(0, ft))
    LAG = 3
    for step in range(18):
        if step & 1 and step < 17:
            a("s_barrier")
        for ft in range(9):
            need(("w", step, ft))
            a(mfma(step, ft, 0))
            if ft == 0 and step < 17:
                issue(("x", step + 1), xreads(step + 1))
            if step == 17 and 2 * ft >= LAG:
                e = epi(2 * ft - LAG)
                for x in e[:4]:
                    a(x)
                issue("e", e[4:])
            a(mfma(step, ft, 1))
            if step < 17:
                issue(("w", step + 1, ft), wreads(step + 1, ft))
            elif 2 * ft + 1 >= LAG:
                e = epi(2 * ft + 1 - LAG)
                for x in e[:4]:
                    a(x)
                issue("e", e[4:])
    for k in range(18 - LAG, 18):
        for x in epi(k):
            a(x)
    stamp(a, 2)
    a("s_waitcnt lgkmcnt(0)")
    a.label("L_copy")
    a("v_lshlrev_b32 v1, 4, v0")
    a("s_lshl_b32 s36, s3, 10")
    a("v_add_u32 v2, s36, v1")
    a("v_add_u32 v3, %d, v2" % (IMG + 4 * 8192))
    srd(a, 24, 8, L.QKV_BYTES)
    make_tag(a)
    a("s_barrier")
    for j in range(4):
        a("ds_read_b128 %s, v2 offset:%d" % (vr(4 + 4 * j, 4), IMG + j * 8192))
    a("s_cmp_lt_u32 s3, 4")
    a("s_cbranch_scc0 L_c4")
    a("ds_read_b128 v[20:23], v3")
    a("s_waitcnt lgkmcnt(0)")
    a("buffer_store_dwordx4 v[20:23], v1, s[24:27], s54 offen sc1")
    a.label("L_c4")
    for j in range(4):
        a("s_waitcnt lgkmcnt(%d)" % (3 - j))
        a("buffer_store_dwordx4 %s, v1, s[24:27], s%d offen sc1" % (vr(4 + 4 * j, 4), 50 + j))
    a("s_mov_b32 s63, s58")
    a("v_mov_b32 v%d, %d" % (vC, CTL))
    lds_inc(a, vC, 24, C_FI)
    stamp(a, 3)


def spare_phase(a):
    GW = 64
    a.label("L_sp")
    a("s_sub_u32 s36, s2, 192")
    a("s_cmp_ge_u32 s3, 8")
    a("s_cbranch_scc1 L_sp_ffn")
    a("s_cmp_ge_u32 s3, 4")
    a("s_cbranch_scc1 L_sp_hi")
    a("s_load_dwordx2 s[60:61], s[0:1], 32")
    a("s_load_dwordx2 s[62:63], s[0:1], 64")
    a("v_lshrrev_b32 v2, 3, v0")
    a("v_and_b32 v3, 7, v0")
    a("v_lshlrev_b32 v3, 4, v3")
    a("s_lshl_b32 s34, s36, 2")
    a("s_add_u32 s34, s34, s3")
    a("s_lshl_b32 s33, s34, 3")
    a("v_add_u32 v1, s33, v2")
    a("v_mul_u32_u24 v4, 1152, v1")
    a("v_add_u32 v4, v4, v3")
    a("s_mul_i32 s51, s34, %d" % (7 * 128))
    a("s_mul_i32 s52, s34, %d" % (21 * 128))
    a("v_lshlrev_b32 v7, 7, v0")
    a("s_waitcnt lgkmcnt(0)")
    load_tag(a)
    srd(a, 16, 6, 576 * 3456)
    srd(a, 20, 28, 576 * 1152)
    for i in range(9):
        a("global_load_dwordx4 %s, v4, s[4:5] offset:%d" % (vr(8 + 4 * i, 4), 128 * i))
        if i == 0:
            for j in range(9):
                a("global_load_dwordx4 %s, v3, s[60:61] offset:%d" % (vr(44 + 4 * j, 4), 128 * j))
                a("global_load_dwordx4 %s, v3, s[62:63] offset:%d" % (vr(80 + 4 * j, 4), 128 * j))
        else:
            a("s_add_u32 s53, s51, %d" % (1728 * 128 * i))
            a("s_mov_b64 exec, 0x7f")
            a("buffer_load_dword v124, v7, s[16:19], s53 offen")
            a("s_mov_b64 exec, -1")
    a("s_mov_b64 exec, 0x1fffff")
    a("buffer_load_dword v124, v7, s[20:23], s52 offen")
    a("s_mov_b64 exec, -1")
    a("v_mov_b32 v%d, %d" % (vC, CTL))
    a("s_waitcnt lgkmcnt(0)")
    make_tag(a)
    a("s_barrier")
    a("s_waitcnt vmcnt(2)")
    for i in range(36):
        p = 116 + (i & 3)
        a("v_dot2_f32_bf16 v%d, v%d, v%d, %s" % (p, 8 + i, 44 + i, "0" if i < 4 else "v%d" % p))
    a("s_nop 1")
    a("v_pk_add_f32 v[116:117], v[116:117], v[118:119]")
    a("v_add_f32 v5, v116, v117")
    sum8(a, (5,))
    bf16_round(a, 5, 5)
    a("v_ashrrev_i32 v7, 31, v5")
    a("v_or_b32 v7, 0x80000000, v7")
    a("v_xor_b32 v7, v7, v5")
    a("v_and_b32 v7, 0xffff0000, v7")
    a("v_sub_u32 v6, 0x7ff, v1")
    a("v_or_b32 v7, v7, v6")
    a("v_mov_b32 v5, 1")
    a("s_mov_b32 s54, 0x01010101")
    a("s_mov_b32 exec_lo, s54")
    a("s_mov_b32 exec_hi, s54")
    a("ds_max_u32 v%d, v7 offset:%d" % (vC, C_KMAX))
    a("s_mov_b64 exec, 1")
    a("ds_add_rtn_u32 v5, v%d, v5 offset:%d" % (vC, C_KCNT))
    a("ds_read_b32 v7, v%d offset:%d" % (vC, C_KMAX))
    a("s_lshl_b32 s53, s36, 3")
    a("s_add_u32 s53, s53, %d" % L.WS_KEYF)
    a("v_mov_b32 v4, s53")
    a("v_mov_b32 v6, s%d" % TAG)
    a("s_waitcnt lgkmcnt(0)")
    a("v_cmp_eq_u32 vcc, 3, v5")
    a("s_and_b64 exec, exec, vcc")
    a("s_cbranch_execz L_sp_nopub")
    a("global_store_dwordx2 v4, v[6:7], s[8:9] sc1")
    a.label("L_sp_nopub")
    a("s_mov_b64 exec, -1")
    stamp(a, 1)
    a("s_mov_b32 s55, 0x3f803f80")
    for i in range(36):
        x, w, p = 8 + i, 80 + i, 116 + (i & 3)
        t = 44 + 4 * (i & 3)
        a("v_lshlrev_b32 v%d, 16, v%d" % (t, x))
        a("v_and_b32 v%d, 0xffff0000, v%d" % (t + 1, x))
        a("v_lshlrev_b32 v%d, 16, v%d" % (t + 2, w))
        a("v_and_b32 v%d, 0xffff0000, v%d" % (t + 3, w))
        a("v_pk_mul_f32 %s, %s, %s" % (vr(t, 2), vr(t, 2), vr(t + 2, 2)))
        a("v_cvt_pk_bf16_f32 v%d, v%d, v%d" % (t, t, t + 1))
        a("v_dot2_f32_bf16 v%d, v%d, s55, %s" % (p, t, "0" if i < 4 else "v%d" % p))
    a("s_nop 1")
    a("v_pk_add_f32 v[116:117], v[116:117], v[118:119]")
    a("v_add_f32 v6, v116, v117")
    sum8(a, (6,))
    bf16_round(a, 6, 6)
    sigmoid(a, 6, 6)
    bf16_round(a, 6, 6)
    a("v_lshlrev_b32 v1, 2, v1")
    a("v_add_u32 v1, %d, v1" % L.WS_G)
    a("s_mov_b32 exec_lo, s54")
    a("s_mov_b32 exec_hi, s54")
    a("global_store_dword v1, v6, s[8:9] sc1")
    a("s_mov_b64 exec, -1")
    a("s_waitcnt vmcnt(0)")
    lds_inc(a, vC, 5, C_GD)
    if OPT["dtouch"]:
        srd(a, 16, 14, 4608 * 1152)
        a("s_mul_i32 s52, s34, %d" % (162 * 128))
        a("v_lshlrev_b32 v7, 7, v0")
        for k in range(3):
            a("buffer_load_dword v124, v7, s[16:19], s52 offen")
            a("s_add_u32 s52, s52, %d" % (54 * 128))
    a("s_mov_b32 s63, 0")
    stamp(a, 2)
    a("s_branch L_att")

    a.label("L_sp_hi")
    a("s_cmp_eq_u32 s3, 7")
    a("s_cbranch_scc0 L_sp_hi1")
    code_touch(a)
    a.label("L_sp_hi1")
    a("v_mov_b32 v%d, %d" % (vC, CTL))
    a("s_waitcnt lgkmcnt(0)")
    load_tag(a)
    a("s_mov_b32 s63, 0")
    a("s_waitcnt lgkmcnt(0)")
    make_tag(a)
    a("s_barrier")
    a("s_cmp_eq_u32 s3, 4")
    a("s_cbranch_scc1 L_sp_w4")
    a("s_cmp_eq_u32 s3, 5")
    a("s_cbranch_scc0 L_att")
    a("s_lshl_b32 s56, s36, 7")
    a("s_add_u32 s56, s56, %d" % (L.WS_FLAG + F_PA * 128))
    a("v_mov_b32 v9, s56")
    lds_spin(a, "L_sp_x5", vC, C_XS, 10, (1, 4), 4)
    a("ds_read_b64 v[14:15], v%d offset:%d" % (vC, C_IDX))
    a("v_mov_b32 v12, s%d" % TAG)
    a("s_waitcnt lgkmcnt(0)")
    a("v_mov_b32 v13, v14")
    a("v_mov_b32 v14, v15")
    a("s_mov_b64 exec, 1")
    a("global_store_dwordx3 v9, v[12:14], s[8:9] sc1")
    a("s_mov_b64 exec, -1")
    a("s_branch L_att")
    a.label("L_sp_w4")
    for k in range(4):
        a("v_mov_b32 v%d, 0" % (12 + k))
    a("s_cmp_lt_u32 s36, 36")
    a("s_cbranch_scc0 L_sp_nz")
    a("s_lshl_b32 s51, s36, 10")
    a("s_add_u32 s51, s51, %d" % L.WS_YP)
    a("v_lshlrev_b32 v4, 4, v0")
    a("v_add_u32 v4, s51, v4")
    a("global_store_dwordx4 v4, v[12:15], s[8:9] sc1")
    a("s_cmp_eq_u32 s36, 0")
    a("s_cbranch_scc0 L_sp_nz")
    a("v_lshlrev_b32 v4, 7, v0")
    a("v_add_u32 v4, %d, v4" % (L.WS_FLAG + F_Y * 128))
    a("global_store_dword v4, v12, s[8:9] sc1")
    a.label("L_sp_nz")
    a("v_lshlrev_b32 v8, 3, v0")
    a("v_add_u32 v8, %d, v8" % L.WS_KEYF)
    srd(a, 24, 4, 2048 * 1152)
    lds_spin(a, "L_sp_own", vC, C_KCNT, 10, (4,), 2)
    a("s_sleep %d" % OPT["slp0"])
    flag_poll(a, "L_sp_kp", 8, 10, "s%d" % TAG, 64, OPT["slp"], 2)
    a("v_lshlrev_b32 v8, 4, v0")
    stamp(a, 1)
    wave_umax(a, 11, 53)
    a("s_and_b32 s54, s53, 0x7ff")
    a("s_sub_u32 s54, 2047, s54")
    a("s_mul_i32 s55, s54, 1152")
    a("s_mov_b32 m0, %d" % XS)
    a("s_add_u32 s56, s55, 1024")
    a("buffer_load_dwordx4 v8, s[24:27], s55 offen lds")
    a("s_mov_b32 m0, %d" % (XS + 1024))
    a("s_mov_b64 exec, 0xff")
    a("buffer_load_dwordx4 v8, s[24:27], s56 offen lds")
    a("s_mov_b64 exec, -1")
    a("s_and_b32 s55, s53, 0xffff0000")
    a("s_xor_b32 s56, s55, 0x80000000")
    a("s_xor_b32 s57, s55, 0xffff0000")
    a("s_bitcmp1_b32 s55, 31")
    a("s_cselect_b32 s55, s56, s57")
    a("v_mov_b32 v12, s55")
    sigmoid(a, 13, 12)
    bf16_round(a, 13, 13)
    a("v_mov_b32 v12, s54")
    a("ds_write_b64 v%d, v[12:13] offset:%d" % (vC, C_IDX))
    a("v_mov_b32 v12, 1")
    a("s_waitcnt vmcnt(0)")
    a("ds_write_b32 v%d, v12 offset:%d" % (vC, C_XS))
    stamp(a, 2)
    a("s_branch L_att")

    a.label("L_sp_ffn")
    a("s_load_dwordx4 s[40:43], s[0:1], 40")
    a("v_mov_b32 v3, %d" % CTL)
    for k in range(4):
        a("v_mov_b32 v%d, 0" % (4 + k))
    a("v_lshlrev_b32 v1, 4, v0")
    a("v_add_u32 v2, v1, v3")
    a("s_mov_b64 exec, 0xff")
    a("ds_write_b128 v2, v[4:7]")
    a("s_mov_b64 exec, -1")
    a("v_lshlrev_b32 v2, 2, v0")
    a("v_add_u32 v2, %d, v2" % (XS + 1152))
    a("ds_write_b32 v2, v4")
    a("s_sub_u32 s59, s3, 8")
    a("s_mul_i32 s37, s36, 57")
    a("s_lshr_b32 s37, s37, 9")
    a("s_mul_i32 s38, s37, 9")
    a("s_sub_u32 s38, s36, s38")
    a("s_mul_i32 s49, s37, 84")
    a("s_mul_i32 s39, s49, 9216")
    a("s_lshl_b32 s48, s38, 10")
    a("s_add_u32 s39, s39, s48")
    a("s_sub_u32 s48, %d, s39" % (576 * 9216))
    a("s_min_i32 s48, s48, %d" % (83 * 9216 + 1024))
    a("s_max_i32 s48, s48, 0")
    a("v_lshrrev_b32 v160, 5, v0")
    a("v_mul_u32_u24 v160, 9216, v160")
    a("v_and_b32 v161, 31, v0")
    a("v_lshl_add_u32 v160, v161, 4, v160")
    a("s_mul_i32 s57, s59, 20480")
    a("s_add_u32 s57, s57, %d" % WO)
    a("s_mul_i32 s58, s59, %d" % (2 * 9216))
    a("s_waitcnt lgkmcnt(0)")
    load_tag(a)
    srd_off(a, 16, 40, "s39", "s48")
    srd_off(a, 20, 42, "s39", "s48")
    a("s_waitcnt lgkmcnt(0)")
    make_tag(a)
    a("s_barrier")
    for i in range(5):
        a("s_add_u32 s55, s58, %d" % (8 * (6 + i) * 9216))
        a("s_add_u32 s56, s55, 512")
        for k in range(4):
            a("s_add_u32 m0, s57, %d" % ((4 * i + k) * 1024))
            a("buffer_load_dwordx4 v160, s[%d:%d], s%d offen nt lds" % (16 + 4 * (k >> 1), 19 + 4 * (k >> 1), 55 + (k & 1)))
    for i in range(6):
        a("s_add_u32 s55, s58, %d" % (8 * i * 9216))
        for k in range(4):
            a("buffer_load_dwordx4 %s, v160, s[%d:%d], s55 offen offset:%d nt" % (
                vr(GW + 16 * i + 4 * k, 4), 16 + 4 * (k >> 1), 19 + 4 * (k >> 1), 512 * (k & 1)))
    a("s_lshl_b32 s55, s59, 1")
    a("s_add_u32 s55, s55, s49")
    a("v_lshrrev_b32 v51, 5, v0")
    a("v_add_u32 v51, s55, v51")
    a("v_lshlrev_b32 v51, 1, v51")
    a("v_add_u32 v51, %d, v51" % XS)
    a("v_and_b32 v2, 1, v0")
    a("v_lshlrev_b32 v2, 4, v2")
    a("v_lshrrev_b32 v4, 1, v0")
    a("v_xor_b32 v4, v4, v0")
    a("v_and_b32 v4, 8, v4")
    a("v_bfe_u32 v5, v0, 1, 2")
    a("v_or_b32 v4, v4, v5")
    for q in range(4):
        a("v_cmp_eq_u32 s[%d:%d], %d, v4" % (40 + 2 * q, 41 + 2 * q, q))
    a("v_bfe_u32 v4, v0, 3, 1")
    a("v_lshlrev_b32 v4, 9, v4")
    a("v_lshrrev_b32 v5, 4, v0")
    a("v_lshl_add_u32 v4, v5, 7, v4")
    a("v_and_b32 v5, 7, v0")
    a("v_lshl_add_u32 v4, v5, 2, v4")
    a("v_add_u32 v6, s57, v4")
    a("v_add_u32 v52, s57, v1")
    a("s_lshl_b32 s55, s59, 9")
    a("v_lshlrev_b32 v8, 3, v0")
    a("v_add_u32 v8, s55, v8")
    a("s_mul_i32 s52, s37, %d" % (4608 * 16))
    a("s_lshl_b32 s55, s38, 13")
    a("s_add_u32 s52, s52, s55")
    a("s_add_u32 s52, s52, %d" % L.WS_PA)
    a("v_lshlrev_b32 v9, 2, v8")
    a("v_add_u32 v9, s52, v9")
    a("v_add_u32 v8, %d, v8" % WO)
    stamp(a, 3)
    lds_spin(a, "L_sp_xs", 3, C_XS, 10, (1,), 2)
    a("s_setprio %d" % OPT["pr2"])
    stamp(a, 7)
    for i in range(11):
        a("ds_read_u16 v%d, v51 offset:%d" % (53 + i, 16 * i))
    a("s_waitcnt vmcnt(24)")
    for k in range(4):
        a("ds_read_b128 %s, v52 offset:%d" % (vr(32 + 4 * k, 4), 1024 * k))
    a("s_waitcnt lgkmcnt(4)")
    for i in range(11):
        a("v_lshlrev_b32 v%d, v2, v%d" % (53 + i, 53 + i))
    first = True
    for i in range(5):
        selector(a, 12, 53 + 6 + i, 40)
        for k in range(4):
            d = vr(16 + 4 * k, 4)
            a("s_waitcnt lgkmcnt(%d)" % (3 if i < 4 else 3 - k))
            a("v_mfma_f32_16x16x32_bf16 %s, %s, v[12:15], %s" % (d, vr(32 + 4 * k, 4), "0" if first else d))
            if i < 4:
                a("ds_read_b128 %s, v52 offset:%d" % (vr(32 + 4 * k, 4), 1024 * (4 * (i + 1) + k)))
        first = False
    stamp(a, 12)
    for i in range(6):
        selector(a, 12, 53 + i, 40)
        a("s_waitcnt vmcnt(%d)" % (4 * (5 - i)))
        for k in range(4):
            d = vr(16 + 4 * k, 4)
            a("v_mfma_f32_16x16x32_bf16 %s, %s, v[12:15], %s" % (d, vr(GW + 16 * i + 4 * k, 4), d))
    stamp(a, 11)
    for k in range(4):
        for r in range(4):
            a("ds_write_b32 v6, v%d offset:%d" % (16 + 4 * k + r, 1024 * k + 32 * r))
    lds_inc(a, 3, 10, C_RED)
    lds_spin(a, "L_sp_rd", 3, C_RED, 10, (4,), 0)
    for p in range(4):
        a("ds_read_b64 %s, v8 offset:%d" % (vr(16 + 4 * p, 2), 20480 * p))
        a("ds_read_b64 %s, v8 offset:%d" % (vr(18 + 4 * p, 2), 20480 * p + 2048))
    a("v_mov_b32 v34, s%d" % TAG)
    a("v_mov_b32 v38, s%d" % TAG)
    a("s_waitcnt lgkmcnt(0)")
    lds_inc(a, 3, 10, C_RED2)
    for p in (2, 1):
        for h in range(2 * p):
            a("v_pk_add_f32 %s, %s, %s" % (vr(16 + 2 * h, 2), vr(16 + 2 * h, 2), vr(16 + 4 * p + 2 * h, 2)))
    a("v_mov_b32 v32, v16")
    a("v_mov_b32 v33, v18")
    a("v_mov_b32 v36, v17")
    a("v_mov_b32 v37, v19")
    a("s_cmp_eq_u32 s36, 63")
    a("s_cbranch_scc1 L_sp_nost")
    a("global_store_dwordx4 v9, v[32:35], s[8:9] sc1")
    a("global_store_dwordx4 v9, v[36:39], s[8:9] offset:16 sc1")
    a.label("L_sp_nost")
    stamp(a, 4)
    lds_spin(a, "L_sp_r2", 3, C_RED2, 10, (4,), 0)
    a("s_branch L_help2")


def attn_loop(a):
    for i in range(9):
        a.label("L_it%d" % i)
        S, P = SS[i & 1], PP[i & 1]
        ex = ["v_exp_f32 v%d, v%d" % (S + r, S + r) for r in range(16)]
        cv = ["v_cvt_pk_bf16_f32 v%d, v%d, v%d" % (P + q, S + 2 * q, S + 2 * q + 1) for q in range(8)]
        if i == 0:
            mk = ["v_bfi_b32 v%d, v%d, 0, v%d" % (P + q, MSK + q, P + q) for q in range(8)]
        elif i == 8:
            mk = ["v_and_b32 v%d, v%d, v%d" % (P + q, MSK + q, P + q) for q in range(8)]
        else:
            mk = []
        m1 = qk(i + 1) if i < 8 else []
        m2 = pv(i - 1, i == 1) if i > 0 else []
        a("s_waitcnt lgkmcnt(%d)" % (4 if 0 < i < 8 else 0))
        seq = m1[:1] + ex[0:4] + m1[1:] + (k_reads(i + 2) if i + 2 <= 8 else []) + ex[4:8] + cv[0:2] + m2[:1] + \
            ex[8:12] + cv[2:4] + m2[1:]
        if i + 1 <= 8:
            seq += ["v_add_u32 v%d, v%d, v%d" % (vV, vV, vStep)] + v_reads(i + 1)
        seq += ex[12:16] + cv[4:8] + mk
        for x in seq:
            a(x)
    a("s_waitcnt lgkmcnt(0)")
    for x in pv(8, False):
        a(x)


def attention_phase(a):
    a.label("L_att")
    decode2(a)
    a("s_mul_i32 s33, s31, %d" % L.PAIR_BYTES)
    a("s_mul_i32 s34, s32, 9216")
    a("s_add_u32 s33, s33, s34")
    a("v_mov_b32 v%d, %d" % (vC, CTL))
    KS, VS = 16 * L.PAIR_BYTES - 18432, 32 * L.PAIR_BYTES - 18432
    grp = [(QB, 0), (KB, KS), (VB, VS), (KB + 9216, KS + 9216), (VB + 9216, VS + 9216), (KB + 18432, KS + 18432), (VB + 18432, VS + 18432)]
    a("s_lshl_b32 s34, s3, 10")
    for j in range(8):
        lo, hi = (8 * j) // 9, min(8 * j + 7, 62) // 9
        l0, g0 = grp[lo][0] + (8 * j - 9 * lo) * 1024, grp[lo][1] + (8 * j - 9 * lo) * 1024
        l1, g1 = grp[hi][0] + (8 * j - 9 * hi) * 1024, grp[hi][1] + (8 * j - 9 * hi) * 1024
        if j == 7:
            a("s_min_u32 s34, s34, %d" % (6 * 1024))
        if lo == hi:
            a("s_add_u32 s%d, s34, %d" % (16 + j, l0))
            a("s_add_u32 s%d, s33, %d" % (44 + j, g0 - l0 & 0xffffffff))
        else:
            a("s_mov_b32 s35, %d" % l0)
            a("s_mov_b32 s36, %d" % (g0 - l0 & 0xffffffff))
            a("s_cmp_ge_u32 s3, %d" % (9 * hi - 8 * j))
            a("s_cselect_b32 s35, %d, s35" % (l1 & 0xffffffff))
            a("s_cselect_b32 s36, %d, s36" % (g1 - l1 & 0xffffffff))
            a("s_add_u32 s%d, s34, s35" % (16 + j))
            a("s_add_u32 s%d, s33, s36" % (44 + j))
        a("s_add_u32 s%d, s%d, s%d" % (44 + j, 44 + j, 16 + j))
    a("v_mov_b32 v10, s63")
    a("v_mov_b32 v11, s%d" % TAG)
    a("s_waitcnt vmcnt(0)")
    lds_inc(a, vC, 9, C_1, rtn=True)
    a("s_cmp_lg_u32 s63, 0")
    a("s_cselect_b32 s35, 7, 99")
    a("s_waitcnt lgkmcnt(0)")
    a("v_readfirstlane_b32 s36, v9")
    a("s_cmp_eq_u32 s36, s35")
    a("s_cbranch_scc0 L_nofl1")
    a("s_mov_b64 exec, 1")
    a("global_store_dword v10, v11, s[8:9] sc1")
    a("s_mov_b64 exec, -1")
    a.label("L_nofl1")
    stamp(a, 4)
    a("s_and_b32 s42, s3, 1")
    a("s_lshr_b32 s43, s3, 1")
    a("s_mul_i32 s35, s43, 2304")
    a("s_mul_i32 s36, s42, 40")
    a("v_and_b32 v%d, 31, v0" % T)
    a("v_lshrrev_b32 v%d, 5, v0" % (T + 1))
    a("v_mul_u32_u24 v%d, 72, v%d" % (vKt, T))
    a("v_add_u32 v%d, s35, v%d" % (vKt, vKt))
    a("v_lshl_add_u32 v%d, v%d, 4, v%d" % (vK, T + 1, vKt))
    a("v_add_u32 v%d, s36, v%d" % (vK, vK))
    a("v_add_u32 v%d, 32, v%d" % (vKt, vKt))
    a("v_bfe_u32 v%d, v0, 2, 2" % (T + 2))
    a("v_lshl_add_u32 v%d, v%d, 2, v%d" % (T + 2, T + 1, T + 2))
    a("v_mul_u32_u24 v%d, 72, v%d" % (T + 2, T + 2))
    a("s_add_u32 s37, s35, %d" % VB)
    a("v_add_u32 v%d, s37, v%d" % (T + 2, T + 2))
    a("v_and_b32 v%d, 3, v0" % (T + 3))
    a("v_lshlrev_b32 v%d, 3, v%d" % (T + 4, T + 3))
    a("v_add_u32 v%d, s36, v%d" % (T + 4, T + 4))
    a("v_and_b32 v%d, 16, v0" % (T + 5))
    a("v_cmp_eq_u32 s[38:39], 0, v%d" % (T + 5))
    a("v_cndmask_b32 v%d, 32, v%d, s[38:39]" % (T + 4, T + 4))
    a("v_add_u32 v%d, v%d, v%d" % (vV, T + 2, T + 4))
    a("v_and_b32 v%d, 19, v0" % (T + 5))
    a("v_cmp_lt_u32 s[38:39], 16, v%d" % (T + 5))
    a("v_mov_b32 v%d, %d" % (T + 6, ONES))
    a("v_cndmask_b32 v%d, v%d, v%d, s[38:39]" % (vV, vV, T + 6))
    a("v_mov_b32 v%d, 2304" % (T + 6))
    a("v_cndmask_b32 v%d, v%d, 0, s[38:39]" % (vStep, T + 6))
    a("v_lshlrev_b32 v%d, 2, v%d" % (T + 2, T + 1))
    a("v_sub_u32 v%d, v%d, v%d" % (T + 2, T, T + 2))
    a("v_mov_b32 v%d, 0xffff" % (T + 3))
    for q in range(8):
        kl = 8 * (q >> 1) + 2 * (q & 1)
        a("v_cmp_le_i32 s[38:39], %d, v%d" % (kl, T + 2))
        a("v_cmp_le_i32 s[40:41], %d, v%d" % (kl + 1, T + 2))
        a("v_cndmask_b32 v%d, 0, v%d, s[38:39]" % (MSK + q, T + 3))
        a("v_cndmask_b32 v%d, v%d, -1, s[40:41]" % (MSK + q, MSK + q))
    a("s_lshl_b32 s41, s32, 2")
    a("s_add_u32 s41, s41, s43")
    a("s_sub_i32 s41, 8, s41")
    a("s_lshl_b32 s35, s32, 3")
    a("s_lshl_b32 s36, s43, 1")
    a("s_add_u32 s35, s35, s36")
    a("s_mul_i32 s35, s35, 18432")
    a("s_lshl_b32 s58, s31, 10")
    a("s_lshl_b32 s36, s42, 9")
    a("s_add_u32 s58, s58, s36")
    a("s_add_u32 s58, s58, s35")
    a("s_lshr_b32 s59, s31, 1")
    a("s_lshl_b32 s59, s59, 8")
    a("s_and_b32 s36, s31, 1")
    a("s_lshl_b32 s36, s36, 3")
    a("s_add_u32 s59, s59, s36")
    a("s_lshl_b32 s36, s42, 2")
    a("s_add_u32 s59, s59, s36")
    a("s_add_u32 s59, s59, s35")
    a("s_add_u32 s59, s59, 16384")
    a("v_bfe_u32 v152, v0, 4, 1")
    a("v_mul_u32_u24 v152, 18432, v152")
    a("v_and_b32 v153, 15, v0")
    a("v_lshl_add_u32 v152, v153, 4, v152")
    a("v_lshrrev_b32 v153, 5, v0")
    a("v_lshl_add_u32 v153, v153, 8, v152")
    a("v_cmp_gt_u32 vcc, 32, v0")
    a("s_cmp_eq_u32 s42, 0")
    a("s_cselect_b64 s[54:55], vcc, 0")
    a("s_cselect_b64 s[56:57], 0, vcc")
    a("v_and_b32 v%d, 3, v0" % (T + 2))
    a("v_mul_u32_u24 v%d, 576, v%d" % (T + 2, T + 2))
    a("v_mov_b32 v%d, 0x3f803f80" % (T + 4))
    a("v_mov_b32 v%d, v%d" % (T + 5, T + 4))
    a("v_lshlrev_b32 v%d, 4, v0" % (T + 3))
    srd(a, 36, 8, L.QKV_BYTES)
    srd_off(a, 24, 8, L.WS_O, 128 * 18432)
    a("s_add_u32 s40, s3, 2")
    a("s_cmp_lt_u32 s3, 4")
    a("s_cselect_b32 s40, s3, s40")
    out_setup(a, 40)
    a("s_lshr_b32 s35, s2, 6")
    a("s_lshl_b32 s35, s35, 4")
    a("s_add_u32 s35, s35, s3")
    a("s_cmp_eq_u32 s35, %d" % (3 * 16 + 6))
    a("s_cbranch_scc0 L_nq2")
    lds_spin(a, "L_sp_x6", vC, C_XS, T + 8, (1,), 8)
    qpoll(a, vC, "L_qp2", False, T + 8)
    a.label("L_nq2")
    lds_spin(a, "L_go1", vC, C_1, T, (8, 1), OPT["g1s"])
    stamp(a, 5)
    for j in range(8):
        a("s_mov_b32 m0, s%d" % (16 + j))
        a("s_nop 0")
        a("buffer_load_dwordx4 v%d, s[36:39], s%d offen %s lds" % (T + 3, 44 + j, OPT["kvl"]))
    a("ds_write_b64 v%d, %s offset:%d" % (T + 2, vr(T + 4, 2), ONES))
    a("s_cmp_lt_u32 s32, 2")
    a("s_cbranch_scc1 L_late")
    landed(a, 1, 0)
    stage_spin(a, "L_sA", 0)
    stamp(a, 6)
    for x in q_reads() + k_reads(0) + k_reads(1) + v_reads(0):
        a(x)
    a("s_waitcnt lgkmcnt(7)")
    a("v_cndmask_b32 v%d, 0, v%d, s[54:55]" % (QT, QT))
    a("v_cndmask_b32 v%d, 0, v%d, s[56:57]" % (QT + 1, QT + 1))
    for x in qk(0):
        a(x)
    lds_inc(a, vC, T, C_B)
    x_loads(a)
    attn_loop(a)
    a.label("L_check")
    stamp(a, 7)
    a("s_mov_b32 s46, %s" % f32(2.0 ** 60))
    a("s_mov_b32 s47, %s" % f32(2.0 ** -60))
    a("s_mov_b32 s48, 0x7f800000")
    lds_spin(a, "L_pz", vC, C_C, T, (1,), 0)
    a("s_nop 3")
    a("v_rcp_f32 v%d, v%d" % (T, OO + 12))
    a("v_cmp_gt_f32 s[50:51], s46, v%d" % (OO + 12))
    a("v_cmp_lt_f32 vcc, s47, v%d" % (OO + 12))
    for k in range(6):
        a("v_add_f32 v%d, abs(v%d), abs(v%d)" % (T + 2 + k, OO + 2 * k, OO + 2 * k + 1))
    a("s_and_b64 s[50:51], s[50:51], vcc")
    a("v_pk_add_f32 %s, %s, %s" % (vr(T + 2, 2), vr(T + 2, 2), vr(T + 4, 2)))
    a("v_pk_add_f32 %s, %s, %s" % (vr(T + 2, 2), vr(T + 2, 2), vr(T + 6, 2)))
    a("v_add_f32 v%d, v%d, v%d" % (T + 2, T + 2, T + 3))
    a("v_cmp_gt_f32 vcc, s48, v%d" % (T + 2))
    a("s_and_b64 s[50:51], s[50:51], vcc")
    a("s_cmp_eq_u64 s[50:51], -1")
    a("s_cbranch_scc0 L_slow")
    a.label("L_fin")
    a("s_cmp_eq_u32 s42, 0")
    a("s_cbranch_scc1 L_fa")
    a("v_mov_b32 v%d, v%d" % (OO + 8, OO + 10))
    a("v_mov_b32 v%d, v%d" % (OO + 9, OO + 11))
    a.label("L_fa")
    for k in range(0, 10, 2):
        a("v_pk_mul_f32 %s, %s, %s op_sel_hi:[1,0]" % (vr(OO + k, 2), vr(OO + k, 2), vr(T, 2)))
    for q in range(5):
        a("v_cvt_pk_bf16_f32 v%d, v%d, v%d" % (T + 4 + q, OO + 2 * q, OO + 2 * q + 1))
    a("buffer_store_dwordx4 %s, v153, s[24:27], s58 offen sc1" % vr(T + 4, 4))
    a("s_mov_b32 exec_hi, 0")
    a("buffer_store_dword v%d, v152, s[24:27], s59 offen sc1" % (T + 8))
    a("s_mov_b32 exec_hi, -1")


def q_reads():
    return ["ds_read_b64 %s, v%d offset:%d" % (vr(QM, 2), vK, QB),
            "ds_read_b64 %s, v%d offset:%d" % (vr(QM + 2, 2), vK, QB + 8),
            "ds_read_b64 %s, v%d offset:%d" % (vr(QT, 2), vKt, QB)]


sKH, sPAIR, sTILE, sGATE, sSLOT, sOB, sXO = 6, 7, 13, 14, 15, 28, 29
A0, vXO, vRW, vCH, vSW, vSR, vL16, vPX, vPF = 156, 142, 140, 141, 143, 144, 162, 160, 161
GB = 154624


def out_setup(a, role):
    a("s_and_b32 s%d, s%d, 1" % (sKH, role))
    a("s_lshr_b32 s%d, s%d, 1" % (sPAIR, role))
    a("s_mul_i32 s%d, s52, 5" % sTILE)
    a("s_and_b32 s33, s%d, 7" % sTILE)
    a("s_sub_u32 s34, 8, s33")
    a("s_cmp_lt_u32 s33, 4")
    a("s_cselect_b32 s34, 0, s34")
    a("s_add_u32 s34, s34, s%d" % sPAIR)
    a("s_sub_u32 s35, s34, 5")
    a("s_cmp_ge_u32 s34, 5")
    a("s_cselect_b32 s34, s35, s34")
    a("s_add_u32 s%d, s%d, s34" % (sTILE, sTILE))
    a("s_lshl_b32 s98, s34, 6")
    a("s_mov_b32 s%d, 0x404" % sGATE)
    a("s_bitcmp1_b32 s%d, 2" % sTILE)
    a("s_cselect_b32 s%d, s%d, 4" % (sGATE, sGATE))
    a("s_mov_b32 s%d, %d" % (sSLOT, PSLOT[0]))
    for p in range(1, 5):
        a("s_cmp_eq_u32 s%d, %d" % (sPAIR, p))
        a("s_cselect_b32 s%d, %d, s%d" % (sSLOT, PSLOT[p], sSLOT))
    a("s_mul_i32 s%d, s%d, 18432" % (sOB, sTILE))
    a("s_lshl_b32 s33, s53, 7")
    a("s_add_u32 s%d, s%d, s33" % (sXO, sOB))
    a("s_mul_i32 s33, s%d, 9216" % sKH)
    a("s_add_u32 s%d, s%d, s33" % (sOB, sOB))
    a("s_add_u32 s96, s%d, 4096" % sOB)
    a("s_add_u32 s97, s%d, 8192" % sOB)
    a("s_add_u32 s99, s%d, %d" % (sXO, 8 * 1152))
    a("v_lshrrev_b32 v%d, 3, v0" % vRW)
    a("v_and_b32 v%d, 7, v0" % vCH)
    a("v_mul_u32_u24 v%d, 1152, v%d" % (vXO, vRW))
    a("v_lshl_add_u32 v%d, v%d, 4, v%d" % (vXO, vCH, vXO))
    a("v_lshrrev_b32 v146, 2, v0")
    a("v_bfe_u32 v147, v0, 3, 2")
    a("v_lshlrev_b32 v147, 1, v147")
    a("v_bfe_u32 v148, v0, 1, 1")
    a("v_xor_b32 v147, v147, v148")
    a("v_and_b32 v148, 1, v0")
    a("v_lshlrev_b32 v148, 3, v148")
    a("v_lshl_add_u32 v148, v146, 7, v148")
    a("v_lshl_add_u32 v148, v147, 4, v148")
    a("s_mul_i32 s33, s%d, %d" % (sKH, 9 * 4096))
    a("s_add_u32 s33, s33, %d" % WO)
    for t in range(4):
        a("v_xor_b32 v%d, %d, v148" % (A0 + t, 32 * t))
        a("v_add_u32 v%d, s33, v%d" % (A0 + t, A0 + t))
    a("v_lshlrev_b32 v%d, 4, v0" % vL16)
    a("v_add_u32 v%d, s%d, v%d" % (vPX, sSLOT, vL16))
    a("s_lshl_b32 s33, s%d, 2" % sPAIR)
    a("s_add_u32 s33, s33, %d" % CTL)
    a("v_mov_b32 v%d, s33" % vPF)
    a("v_and_b32 v%d, 15, v0" % vSW)
    a("v_mul_u32_u24 v%d, 144, v%d" % (vSW, vSW))
    a("v_lshrrev_b32 v146, 4, v0")
    a("v_lshlrev_b32 v146, 3, v146")
    a("v_add3_u32 v%d, v%d, v146, s%d" % (vSW, vSW, sSLOT))
    a("v_mul_u32_u24 v%d, 144, v%d" % (vSR, vRW))
    a("v_lshl_add_u32 v%d, v%d, 4, v%d" % (vSR, vCH, vSR))
    a("v_add_u32 v%d, s%d, v%d" % (vSR, sSLOT, vSR))
    a("s_add_u32 s98, s98, %d" % GB)
    a("v_lshl_add_u32 v145, v%d, 2, s98" % vRW)
    a("s_cmp_lt_u32 s3, 4")
    a("s_cselect_b32 s33, 1, 0x100")
    a("v_mov_b32 v163, s33")


def x_loads(a):
    srd(a, 20, 4, 2048 * 1152)
    a("buffer_load_dwordx4 %s, v%d, s[20:23], s%d offen" % (vr(XR, 4), vXO, sXO))
    a("buffer_load_dwordx4 %s, v%d, s[20:23], s99 offen" % (vr(XR + 4, 4), vXO))


def out_phase(a):
    WFR, OF, ACC, PX = (20, 36, 100), 64, (52, 56, 60, 116), (146, 120)
    a("s_cmp_ge_u32 s52, 26")
    a("s_cbranch_scc1 L_end")
    if not OPT["gissue"]:
        a("s_waitcnt vmcnt(0)")
    stamp(a, 8)
    a("s_mov_b64 exec, 1")
    a("ds_add_u32 v%d, v163 offset:%d" % (vC, C_O))
    a("s_mov_b64 exec, -1")
    a.label("L_out")

    def omx():
        for j in range(2):
            for q in range(4):
                xv = XR + 4 * j + q
                d = PX[j] + 2 * q
                a("v_lshlrev_b32 v%d, 16, v%d" % (d, xv))
                a("v_and_b32 v%d, 0xffff0000, v%d" % (d + 1, xv))
                a("v_pk_mul_f32 %s, %s, %s op_sel:[0,1] op_sel_hi:[1,1]" % (vr(d, 2), vr(d, 2), vr(GR + 2 * j, 2)))

    def reads(sl):
        st = WFR[sl % 3]
        return ["ds_read_b64_tr_b16 %s, v%d offset:%d" % (vr(st + 4 * t + 2 * sec, 2), A0 + t, (32 * sl + 16 * sec) * 128)
                for t in range(4) for sec in range(2)]

    lds_spin(a, "L_wo", vC, C_WO, 10, (2,), 0)
    for x in reads(0) + reads(1):
        a(x)
    a("s_mov_b32 s60, 0x200000")
    a.label("L_go2")
    a("ds_read_b64 v[10:11], v%d offset:%d" % (vC, C_O))
    a("s_waitcnt lgkmcnt(0)")
    a("v_readfirstlane_b32 s61, v10")
    a("v_readfirstlane_b32 s62, v11")
    a("s_and_b32 s61, s61, s%d" % sGATE)
    a("s_cmp_eq_u32 s61, s%d" % sGATE)
    a("s_cselect_b32 s62, s62, 0")
    a("s_cmp_eq_u32 s62, 1")
    a("s_cbranch_scc1 L_go2_d")
    a("s_sub_u32 s60, s60, 1")
    a("s_cbranch_scc0 L_go2")
    a.label("L_go2_d")
    if OPT["cdel"]:
        a("s_sleep %d" % OPT["cdel"])
    stamp(a, 9)
    LAO = OPT["lao"]

    def oload(s):
        a("buffer_load_dwordx4 %s, v%d, s[24:27], s%d offen offset:%d sc1" % (vr(OF + 4 * s, 4), vL16, (sOB, 96, 97)[s // 4], 1024 * (s % 4)))

    def ocheck(sl):
        b = OF + 4 * sl
        if sl < 7:
            a("v_cmp_eq_u32 vcc, -1, v%d" % b)
        else:
            a("v_max3_u32 v10, v%d, v%d, v%d" % (b, b + 1, b + 2))
            a("v_max_u32 v10, v10, v%d" % (b + 3))
            a("v_cmp_eq_u32 vcc, -1, v10")
        a("s_nop 1")

    def oretry():
        for sl in range(9):
            a.label("L_or%d" % sl)
            a("s_sub_u32 s60, s60, 1")
            a("s_cbranch_scc1 L_ok%d" % sl)
            a("s_waitcnt vmcnt(0)")
            for s in range(sl, min(sl + LAO, 9)):
                oload(s)
            a("s_waitcnt vmcnt(%d)" % min(LAO - 1, 8 - sl))
            a("s_branch L_oc%d" % sl)

    RETRY.append(oretry)
    a("s_mov_b32 s60, 0x8000")
    for s in range(LAO):
        oload(s)
    a("ds_read_b32 v%d, v145" % GR)
    a("ds_read_b32 v%d, v145 offset:32" % (GR + 2))
    a("ds_read_b32 v10, v%d offset:%d" % (vC, C_IDX))
    srd(a, 20, 10, 2048 * 1152)
    a("s_waitcnt lgkmcnt(0) vmcnt(%d)" % LAO)
    a("v_readfirstlane_b32 s12, v10")
    for j in range(2):
        a("v_sub_f32 v%d, 1.0, v%d" % (GR + 2 * j + 1, GR + 2 * j))
        bf16_round(a, GR + 2 * j + 1, GR + 2 * j + 1)
    omx()
    for sl in range(9):
        rd = reads(sl + 2) if sl < 7 else []
        a("s_waitcnt vmcnt(%d) lgkmcnt(%d)" % (min(LAO - 1, 8 - sl), 8 if sl < 8 else 0))
        a.label("L_oc%d" % sl)
        ocheck(sl)
        a("s_cbranch_vccnz L_or%d" % sl)
        a.label("L_ok%d" % sl)
        for t in range(4):
            d = vr(ACC[t], 4)
            a("v_mfma_f32_16x16x32_bf16 %s, %s, %s, %s" % (d, vr(WFR[sl % 3] + 4 * t, 4), vr(OF + 4 * sl, 4), "0" if sl == 0 else d))
            if t == 0 and sl + LAO < 9:
                oload(sl + LAO)
            for x in rd[2 * t:2 * t + 2]:
                a(x)
    stamp(a, 10)
    a("s_cmp_eq_u32 s%d, 0" % sKH)
    a("s_cbranch_scc1 L_k0")
    a("v_mov_b32 v10, 1")
    for t in range(4):
        a("ds_write_b128 v%d, %s offset:%d" % (vPX, vr(ACC[t], 4), 1024 * t))
    a("ds_write_b32 v%d, v10 offset:%d" % (vPF, C_PART))
    stamp_end(a, OPT["stw"], 0)
    stamp_end(a, 10, 2)
    a("s_endpgm")
    a.label("L_k0")
    a("s_lshr_b32 s46, s12, 4")
    a("s_cmp_eq_u32 s46, s%d" % sTILE)
    a("s_cbranch_scc0 L_noy")
    lds_spin(a, "L_yw", vC, C_YRDY, 10, (1,))
    a("v_lshlrev_b32 v10, 5, v%d" % vCH)
    a("v_add_u32 v10, %d, v10" % YB)
    a("ds_read_b128 v[12:15], v10")
    a("ds_read_b128 v[16:19], v10 offset:16")
    a("s_and_b32 s46, s12, 15")
    a("s_waitcnt lgkmcnt(0)")
    for j in range(2):
        a("v_add_u32 v10, %d, v%d" % (8 * j, vRW))
        a("v_cmp_eq_u32 s[50:51], s46, v10")
        for q in range(4):
            xv = XR + 4 * j + q
            a("v_lshlrev_b32 v10, 16, v%d" % xv)
            a("v_and_b32 v11, 0xffff0000, v%d" % xv)
            a("v_add_f32 v10, v10, v%d" % (12 + 2 * q))
            a("v_add_f32 v11, v11, v%d" % (13 + 2 * q))
            a("v_cvt_pk_bf16_f32 v10, v10, v11")
            a("v_cndmask_b32 v%d, v%d, v10, s[50:51]" % (xv, xv))
    omx()
    a.label("L_noy")
    lds_spin(a, "L_pw", vPF, C_PART, 10, (1,), 0)
    stamp(a, 11)
    for t in range(4):
        a("ds_read_b128 %s, v%d offset:%d" % (vr(20 + 4 * t, 4), vPX, 1024 * t))
    a("s_waitcnt lgkmcnt(0)")
    for t in range(4):
        b = ACC[t]
        a("v_pk_add_f32 %s, %s, %s" % (vr(b, 2), vr(b, 2), vr(20 + 4 * t, 2)))
        a("v_pk_add_f32 %s, %s, %s" % (vr(b + 2, 2), vr(b + 2, 2), vr(22 + 4 * t, 2)))
        a("v_cvt_pk_bf16_f32 v%d, v%d, v%d" % (40 + 2 * t, b, b + 1))
        a("v_cvt_pk_bf16_f32 v%d, v%d, v%d" % (41 + 2 * t, b + 2, b + 3))
        a("ds_write_b64 v%d, %s offset:%d" % (vSW, vr(40 + 2 * t, 2), 32 * t))
    for j in range(2):
        a("ds_read_b128 %s, v%d offset:%d" % (vr(20 + 4 * j, 4), vSR, 8 * 144 * j))
    for j in range(2):
        a("s_waitcnt lgkmcnt(%d)" % (1 - j))
        for q in range(4):
            av = 20 + 4 * j + q
            d = PX[j] + 2 * q
            a("v_lshlrev_b32 v10, 16, v%d" % av)
            a("v_and_b32 v11, 0xffff0000, v%d" % av)
            a("v_pk_fma_f32 %s, v[10:11], %s, %s op_sel_hi:[1,0,1]" % (vr(d, 2), vr(GR + 2 * j, 2), vr(d, 2)))
            a("v_cvt_pk_bf16_f32 v%d, v%d, v%d" % (32 + 4 * j + q, d, d + 1))
        a("buffer_store_dwordx4 %s, v%d, s[20:23], s%d offen %s" % (vr(32 + 4 * j, 4), vXO, (sXO, 99)[j], OPT["ost"]))
    if OPT["stamp"]:
        stamp(a, 12)
        a("s_waitcnt vmcnt(0)")
        stamp(a, 13)
        stamp_end(a, OPT["stw"], 0)
    a("s_endpgm")


RETRY = []
GLATE = []


def late_and_slow(a):
    RETRY[0]()
    a.label("L_late")
    a("s_mul_i32 s50, s41, 2304")
    a("v_add_u32 v%d, s50, v%d" % (T + 8, vK))
    a("v_add_u32 v%d, s50, v%d" % (T + 9, vKt))
    a("v_mul_u32_u24 v%d, s41, v%d" % (T + 2, vStep))
    a("v_add_u32 v%d, v%d, v%d" % (vV, vV, T + 2))
    for r in list(range(OO, OO + 16)) + list(range(VF[0], VF[0] + 32)):
        a("v_mov_b32 v%d, 0" % r)
    landed(a, 1, 0)
    stage_spin(a, "L_lt", 0)
    for x in q_reads():
        a(x)
    a("s_waitcnt lgkmcnt(0)")
    lds_inc(a, vC, T, C_B)
    x_loads(a)
    a("s_bitcmp1_b32 s41, 0")
    a("s_cbranch_scc1 L_late1")
    for par in range(2):
        if par:
            a.label("L_late1")
        for x in k_reads(par, T + 8, T + 9, 0):
            a(x)
        for x in k_reads(par + 1, T + 8, T + 9, 0):
            a(x.replace("offset:8", "offset:2312").replace("offset:0", "offset:2304"))
        for x in v_reads(par):
            a(x)
        a("s_waitcnt lgkmcnt(7)")
        a("v_cndmask_b32 v%d, 0, v%d, s[54:55]" % (QT, QT))
        a("v_cndmask_b32 v%d, 0, v%d, s[56:57]" % (QT + 1, QT + 1))
        for x in qk(par):
            a(x)
        a("s_nop 7")
        a("s_nop 3")
        for i0 in range(2 - par, 9, 2):
            a("s_cmp_eq_u32 s41, %d" % i0)
            a("s_cbranch_scc1 L_it%d" % i0)
        a("s_branch L_it%d" % (8 - par))

    a.label("L_slow")
    vKs, vKts, vM, vD0, vNeg = T + 8, T + 9, T + 10, T + 11, T + 12
    a("v_and_b32 v%d, 31, v0" % T)
    a("v_lshrrev_b32 v%d, 5, v0" % (T + 1))
    a("v_lshlrev_b32 v%d, 2, v%d" % (vD0, T + 1))
    a("v_sub_u32 v%d, v%d, v%d" % (vD0, vD0, T))
    a("v_mov_b32 v%d, 0xff800000" % vNeg)
    a("v_mov_b32 v%d, v%d" % (vM, vNeg))
    a("s_max_i32 s50, s41, 0")
    a("s_sub_u32 s51, 8, s50")
    a("v_mul_u32_u24 v%d, s51, v%d" % (T, vStep))
    a("v_sub_u32 v%d, v%d, v%d" % (vV, vV, T))
    a("s_mul_i32 s51, s50, 2304")
    for r in range(16):
        a("v_mov_b32 v%d, 0" % (OO + r))
    for ps in range(2):
        lab = "L_sp%d" % ps
        a("v_add_u32 v%d, s51, v%d" % (vKs, vK))
        a("v_add_u32 v%d, s51, v%d" % (vKts, vKt))
        a("s_mov_b32 s46, s50")
        a.label(lab)
        for x in k_reads(0, vKs, vKts):
            a(x)
        if ps == 1:
            for x in v_reads(0):
                a(x)
        a("s_mov_b32 s47, -31")
        a("s_mov_b32 s48, 62")
        a("s_cmp_eq_u32 s46, 0")
        a("s_cselect_b32 s47, 1, s47")
        a("s_cselect_b32 s48, 30, s48")
        a("s_cmp_eq_u32 s46, 8")
        a("s_cselect_b32 s48, 31, s48")
        a("s_waitcnt lgkmcnt(0)")
        for x in qk(0):
            a(x)
        a("v_subrev_u32 v%d, s47, v%d" % (T, vD0))
        for r in range(16):
            a("v_add_u32 v%d, %d, v%d" % (T + 1, 8 * (r >> 2) + (r & 3), T))
            a("v_cmp_ge_u32 vcc, s48, v%d" % (T + 1))
            a("v_cndmask_b32 v%d, v%d, v%d, vcc" % (SS[0] + r, vNeg, SS[0] + r))
            if ps == 0:
                a("v_max_f32 v%d, v%d, v%d" % (vM, vM, SS[0] + r))
            else:
                a("v_sub_f32 v%d, v%d, v%d" % (SS[0] + r, SS[0] + r, vM))
                a("v_exp_f32 v%d, v%d" % (SS[0] + r, SS[0] + r))
        if ps == 1:
            for q in range(8):
                a("v_cvt_pk_bf16_f32 v%d, v%d, v%d" % (PP[0] + q, SS[0] + 2 * q, SS[0] + 2 * q + 1))
            for x in pv(0, False):
                a(x)
            a("v_add_u32 v%d, v%d, v%d" % (vV, vV, vStep))
        a("v_add_u32 v%d, 2304, v%d" % (vKs, vKs))
        a("v_add_u32 v%d, 2304, v%d" % (vKts, vKts))
        a("s_add_u32 s46, s46, 1")
        a("s_cmp_lt_u32 s46, 9")
        a("s_nop 7")
        a("s_nop 7")
        a("s_cbranch_scc1 %s" % lab)
        if ps == 0:
            a("v_mov_b32 v%d, v%d" % (T, vM))
            a("v_permlane32_swap_b32 v%d, v%d" % (T, vM))
            a("v_max_f32 v%d, v%d, v%d" % (vM, vM, T))
    a("v_rcp_f32 v%d, v%d" % (T, OO + 12))
    a("s_nop 1")
    a("s_branch L_fin")


def helpers(a):
    a.label("L_help")
    a("s_cmp_eq_u32 s3, 9")
    a("s_cbranch_scc0 L_help1")
    code_touch(a)
    a.label("L_help1")
    a("v_mov_b32 v3, %d" % CTL)
    for k in range(4):
        a("v_mov_b32 v%d, 0" % (4 + k))
    a("v_lshlrev_b32 v1, 4, v0")
    a("v_add_u32 v2, v1, v3")
    a("s_mov_b64 exec, 0xff")
    a("ds_write_b128 v2, v[4:7]")
    a("s_mov_b64 exec, -1")
    a("s_waitcnt lgkmcnt(0)")
    load_tag(a)
    a("s_barrier")
    a("s_barrier")
    a("s_waitcnt lgkmcnt(0)")
    make_tag(a)
    a.label("L_help2")
    decode2(a)
    a("s_cmp_eq_u32 s3, 8")
    a("s_cbranch_scc1 L_down")
    a("v_lshrrev_b32 v1, 5, v0")
    a("v_bfe_u32 v2, v0, 3, 2")
    a("v_lshrrev_b32 v10, 4, v0")
    a("v_lshlrev_b32 v10, 1, v10")
    a("v_and_b32 v11, 7, v0")
    a("v_xor_b32 v10, v10, v11")
    a("v_lshl_add_u32 v4, v1, 2, v2")
    a("v_mul_u32_u24 v4, 1152, v4")
    a("v_lshl_add_u32 v4, v10, 4, v4")
    a("v_mul_u32_u24 v5, 72, v1")
    a("v_add_u32 v5, v5, v2")
    a("v_mul_u32_u24 v5, 1152, v5")
    a("v_lshl_add_u32 v5, v10, 4, v5")
    a("s_sub_u32 s36, s3, 9")
    a("s_mul_i32 s37, s36, %d" % (20 * 1152))
    a("s_mul_i32 s43, s36, %d" % (144 * 1152))
    a("s_lshl_b32 s38, s36, 10")
    a("s_add_u32 s38, s38, %d" % WO)
    a("s_lshl_b32 s39, s53, 7")
    a("s_sub_u32 s42, %d, s39" % (576 * 1152))
    srd_off(a, 16, 28, "s39", "s42")
    srd_off(a, 24, 8, L.WS_O, 128 * 18432)
    a("v_mov_b32 v%d, %d" % (vC, CTL))
    a("s_sub_u32 s40, s3, 5")
    out_setup(a, 40)
    a("s_setprio %d" % OPT["pr3"])
    a("s_cmp_ge_u32 s2, 192")
    a("s_cbranch_scc1 L_wo_go")
    for k in range(9):
        a("s_barrier")
    a.label("L_wo_go")
    a("s_cmp_eq_u32 s3, 11")
    a("s_cbranch_scc1 L_ctl")
    a("s_cmp_ge_u32 s52, 26")
    a("s_cbranch_scc1 L_end")
    if OPT["woe"]:
        a("s_cmp_ge_u32 s2, 192")
        a("s_cbranch_scc1 L_wo_e_d")
        lds_spin(a, "L_wo_e", 3, C_FI, 10, (8,), 0)
    stamp(a, 5)
    for m in range(36):
        if m == OPT["woe"]:
            stage_spin(a, "L_wo_w", 0, 3, 10, 2)
        st, sec = m >> 1, m & 1
        a("s_add_u32 m0, s38, %d" % (2048 * m))
        if st < 16:
            a("s_add_u32 s40, s37, %d" % ((36 * st + 8 * sec) * 1152))
            a("buffer_load_dwordx4 v4, s[16:19], s40 offen lds")
        else:
            a("s_add_u32 s40, s43, %d" % ((288 * (st - 16) + 36 * sec + 16) * 1152))
            a("buffer_load_dwordx4 v5, s[16:19], s40 offen lds")
        if OPT["wth"] and m >= OPT["wth"] - 1:
            a("s_waitcnt vmcnt(%d)" % (OPT["wth"] - 1))
    x_loads(a)
    a("s_waitcnt vmcnt(2)")
    stamp(a, 6)
    lds_inc(a, 3, 4, C_WO)
    a("s_setprio 0")
    a("s_branch L_out")
    a.label("L_ctl")
    a("v_lshlrev_b32 v8, 7, v0")
    a("v_add_u32 v9, %d, v8" % (L.WS_FLAG + F_PA * 128))
    a("s_mul_i32 s46, s52, 5")
    a("s_lshr_b32 s46, s46, 3")
    a("s_min_u32 s46, s46, 14")
    a("s_lshl_b32 s46, s46, 11")
    a("s_add_u32 s46, s46, %d" % (L.WS_FLAG + F_O * 128))
    a("v_add_u32 v8, s46, v8")
    a("s_lshl_b32 s46, s32, 4")
    a("s_add_u32 s46, s46, s31")
    a("s_lshl_b32 s46, s46, 7")
    a("s_add_u32 s46, s46, %d" % (L.WS_FLAG + F_O * 128))
    a("v_mov_b32 v14, s46")
    a("v_mov_b32 v15, s%d" % TAG)
    a("s_cmp_ge_u32 s2, 192")
    a("s_cbranch_scc1 L_ct_0")
    qpoll(a, 3, "L_qp1", True)
    a.label("L_ct_0")
    AUXLATE = OPT["auxp"]
    def aux():
        flag_poll(a, "L_pap", 9, 4, "s%d" % TAG, 64, 8, 3)
        a("v_mov_b32 v10, v5")
        a("v_mov_b32 v11, v6")
        a("v_mov_b32 v4, 1")
        a("ds_write_b64 v3, v[10:11] offset:%d" % C_IDX)
        a("ds_write_b32 v3, v4 offset:%d" % C_PA)
        srd_off(a, 16, 8, L.WS_G, 8192)
        a("s_mul_i32 s40, s52, 320")
        a("v_lshlrev_b32 v4, 2, v0")
        a("buffer_load_dword v5, v4, s[16:19], s40 offen sc1")
        a("buffer_load_dword v6, v4, s[16:19], s40 offen offset:256 sc1")
        a("v_add_u32 v4, %d, v4" % GB)
        GLATE.append(1)
        stamp(a, 5)

    if not AUXLATE:
        aux()
    a("v_bfe_u32 v20, v0, 4, 1")
    a("v_mul_u32_u24 v20, 18432, v20")
    a("v_and_b32 v21, 15, v0")
    a("v_lshl_add_u32 v20, v21, 4, v20")
    a("v_lshrrev_b32 v21, 5, v0")
    a("v_lshl_add_u32 v22, v21, 2, v20")
    a("v_lshl_add_u32 v21, v21, 8, v20")
    for k in range(4):
        a("v_mov_b32 v%d, -1" % (24 + k))
    a("s_mul_i32 s54, s32, %d" % (8 * 18432))
    a("s_lshl_b32 s55, s31, 10")
    a("s_add_u32 s55, s55, s54")
    a("s_lshr_b32 s56, s31, 1")
    a("s_lshl_b32 s56, s56, 8")
    a("s_and_b32 s57, s31, 1")
    a("s_lshl_b32 s57, s57, 3")
    a("s_add_u32 s56, s56, s57")
    a("s_add_u32 s56, s56, s54")
    a("s_add_u32 s56, s56, 16384")
    stage_spin(a, "L_ct_p", 0, 3, 10, 0)
    for j in range(4):
        a("buffer_store_dword v24, v22, s[24:27], s56 offen sc1")
        a("buffer_store_dwordx4 v[24:27], v21, s[24:27], s55 offen sc1")
        a("buffer_store_dwordx4 v[24:27], v21, s[24:27], s55 offen offset:512 sc1")
        a("s_add_u32 s55, s55, %d" % (2 * 18432))
        a("s_add_u32 s56, s56, %d" % (2 * 18432))
    a("v_mov_b32 v4, 1")
    a("s_waitcnt vmcnt(0)")
    a("ds_write_b32 v3, v4 offset:%d" % C_C)
    a("s_mov_b64 exec, 1")
    a("global_store_dword v14, v15, s[8:9] sc1")
    a("s_mov_b64 exec, -1")
    stamp(a, 6)
    lds_spin(a, "L_ct_q", 3, C_B, 10, (8,), 1)
    if AUXLATE:
        aux()
    else:
        a("s_sleep %d" % OPT["slp3"])
    flag_poll(a, "L_op", 8, 12, "s%d" % TAG, 32, 2)
    a("ds_write_b32 v4, v5")
    a("ds_write_b32 v4, v6 offset:256")
    lds_inc(a, 3, 10, C_GO2)
    stamp(a, 7)
    stamp_end(a, 11 if OPT["st11"] else 99, 3)
    a("ds_read_b64 v[10:11], v3 offset:%d" % C_IDX)
    a("s_waitcnt lgkmcnt(0)")
    a("v_readfirstlane_b32 s12, v10")
    a("v_readfirstlane_b32 s13, v11")
    a("s_mul_i32 s46, s52, 80")
    a("s_sub_u32 s46, s12, s46")
    a("s_cmp_lt_u32 s46, 80")
    a("s_cbranch_scc0 L_end")
    a("v_lshlrev_b32 v4, 7, v0")
    a("v_add_u32 v4, %d, v4" % (L.WS_FLAG + F_Y * 128))
    srd_off(a, 16, 8, L.WS_YP, 16 * 2304)
    a("v_lshrrev_b32 v6, 4, v0")
    a("v_mul_u32_u24 v6, 2304, v6")
    a("v_and_b32 v7, 15, v0")
    a("v_lshlrev_b32 v7, 4, v7")
    a("v_add_u32 v6, v6, v7")
    a("v_add_u32 v7, %d, v7" % YB)
    a("s_lshl_b32 s40, s53, 8")
    flag_poll(a, "L_yp", 4, 5, "12", 16, 2)
    for i in range(4):
        a("buffer_load_dwordx4 %s, v6, s[16:19], s40 offen sc1" % vr(8 + 4 * i, 4))
        a("s_add_u32 s40, s40, %d" % (4 * 2304))
    a("s_waitcnt vmcnt(0)")
    for i in range(1, 4):
        a("v_pk_add_f32 v[8:9], v[8:9], %s" % vr(8 + 4 * i, 2))
        a("v_pk_add_f32 v[10:11], v[10:11], %s" % vr(10 + 4 * i, 2))
    for k in range(4):
        a("v_mov_b32 v20, v%d" % (8 + k))
        a("v_permlane32_swap_b32 v20, v%d" % (8 + k))
        a("v_add_f32 v%d, v%d, v20" % (8 + k, 8 + k))
        a("v_mov_b32 v20, v%d" % (8 + k))
        a("v_permlane16_swap_b32 v20, v%d" % (8 + k))
        a("v_add_f32 v%d, v%d, v20" % (8 + k, 8 + k))
        bf16_round(a, 8 + k, 8 + k)
        a("v_mul_f32 v%d, s13, v%d" % (8 + k, 8 + k))
        bf16_round(a, 8 + k, 8 + k)
    a("v_mov_b32 v12, 1")
    a("ds_write_b128 v7, v[8:11]")
    a("ds_write_b32 v3, v12 offset:%d" % C_YRDY)
    a("s_cmp_eq_u32 s53, 0")
    a("s_cbranch_scc0 L_end")
    a("v_mov_b32 v4, %d" % L.WS_EPOCH)
    a("v_mov_b32 v5, s%d" % TAG)
    a("s_mov_b64 exec, 1")
    a("global_store_dword v4, v5, s[8:9]")
    a("s_endpgm")

    a.label("L_down")
    a("s_cmp_ge_u32 s2, 192")
    a("s_cbranch_scc1 L_end")
    DW, DA = 20, 128
    a("v_lshrrev_b32 v2, 3, v0")
    a("v_and_b32 v10, 7, v0")
    a("v_mul_u32_u24 v16, 1152, v2")
    a("v_lshl_add_u32 v16, v10, 4, v16")
    a("s_mul_i32 s36, s2, 24")
    a("v_mul_u32_u24 v12, %d, v10" % (4608 * 16))
    a("v_add_u32 v11, s36, v2")
    a("v_lshl_add_u32 v17, v11, 4, v12")
    a("v_cmp_gt_u32 s[56:57], 7, v10")
    a("s_mul_i32 s37, s2, %d" % (24 * 1152))
    a("v_and_b32 v1, 1, v0")
    a("v_lshlrev_b32 v1, 4, v1")
    sel_masks(a, 44, 11)
    a("v_lshrrev_b32 v11, 5, v0")
    a("v_bfe_u32 v12, v0, 3, 1")
    a("v_cmp_eq_u32 s[52:53], v11, v12")
    a("v_mul_u32_u24 v12, 2304, v12")
    a("v_bfe_u32 v11, v0, 4, 1")
    a("v_lshl_add_u32 v12, v11, 7, v12")
    a("v_lshl_add_u32 v12, v10, 2, v12")
    a("v_add_u32 v164, %d, v12" % HP)
    a("v_lshlrev_b32 v165, 2, v0")
    a("v_add_u32 v166, %d, v165" % HP)
    a("s_and_b32 s38, s2, 15")
    a("s_mul_i32 s39, s38, 2304")
    a("s_add_u32 s39, s39, %d" % L.WS_YP)
    a("v_add_u32 v165, s39, v165")
    a("s_lshl_b32 s38, s38, 7")
    a("s_add_u32 s38, s38, %d" % (L.WS_FLAG + F_Y * 128))
    srd_off(a, 16, 14, "s37", 24 * 1152)
    srd_off(a, 20, 8, L.WS_PA, 7 * 4608 * 16)
    def dloads():
        for t in range(0 if OPT["nodown"] else 3):
            a("s_movk_i32 s40, %d" % (9216 * t))
            for cg in range(9):
                a("buffer_load_dwordx4 %s, v16, s[16:19], s40 offen offset:%d %s" % (vr(DW + 4 * (9 * t + cg), 4), 128 * cg, "" if OPT["dtouch"] else "nt"))

    for k in range(2, 11):
        if k == OPT["dpos"]:
            dloads()
        a("s_barrier")
    if OPT["w8e"]:
        lds_spin(a, "L_dn_w2", 3, C_1, 10, (8,), 2)
    else:
        stage_spin(a, "L_dn_w2", 0, 3, 10, 2)
    stamp(a, 5)
    a("s_setprio %d" % OPT["pr1"])
    a("s_mov_b32 s60, 0x40000")
    a.label("L_dn_pa")
    a("buffer_load_dwordx3 v[4:6], v17, s[20:23], 0 offen sc1")
    a("buffer_load_dwordx3 v[8:10], v17, s[20:23], 0 offen offset:128 sc1")
    a("buffer_load_dwordx3 v[160:162], v17, s[20:23], 0 offen offset:256 sc1")
    a("s_waitcnt vmcnt(0)")
    a("v_cmp_ne_u32 vcc, s%d, v6" % TAG)
    a("v_cmp_ne_u32 s[40:41], s%d, v10" % TAG)
    a("v_cmp_ne_u32 s[42:43], s%d, v162" % TAG)
    a("s_or_b64 vcc, vcc, s[40:41]")
    a("s_or_b64 vcc, vcc, s[42:43]")
    a("s_and_b64 vcc, vcc, s[56:57]")
    a("s_cmp_eq_u64 vcc, 0")
    a("s_cbranch_scc1 L_dn_pb")
    a("s_sleep 8")
    a("s_sub_u32 s60, s60, 1")
    a("s_cbranch_scc0 L_dn_pa")
    a.label("L_dn_pb")
    stamp(a, 8)
    a("v_mov_b32 v6, v8")
    a("v_mov_b32 v7, v9")
    a("v_mov_b32 v8, v160")
    a("v_mov_b32 v9, v161")
    sum8(a, (4, 5, 6, 7, 8, 9))
    for t in range(3):
        g, u = 4 + 2 * t, 5 + 2 * t
        bf16_round(a, g, g)
        bf16_round(a, u, u)
        sigmoid(a, 10, g)
        a("v_mul_f32 v%d, v%d, v10" % (g, g))
        bf16_round(a, g, g)
        a("v_mul_f32 v%d, v%d, v%d" % (g, g, u))
        a("v_cvt_pk_bf16_f32 v%d, v%d, v%d" % (g, g, g))
        a("v_and_b32 v%d, 0xffff, v%d" % (g, g))
        a("v_lshlrev_b32 v%d, v1, v%d" % (g, g))
    for t in range(3):
        selector(a, 12, 4 + 2 * t, 44)
        for cg in range(9):
            d = vr(DA + 4 * cg, 4)
            a("v_mfma_f32_16x16x32_bf16 %s, %s, v[12:15], %s" % (d, vr(DW + 4 * (9 * t + cg), 4), "0" if t == 0 else d))
    a("s_mov_b64 exec, s[52:53]")
    for cg in range(9):
        for r in range(4):
            a("ds_write_b32 v164, v%d offset:%d" % (DA + 4 * cg + r, 256 * cg + 32 * r))
    a("s_mov_b64 exec, -1")
    for cg in range(9):
        a("ds_read2st64_b32 %s, v166 offset0:%d offset1:%d" % (vr(20 + 2 * cg, 2), cg, cg + 9))
    stage_spin(a, "L_dn_at", 0, 3, 10, 2)
    lds_spin(a, "L_dn_ax", 3, C_PA, 10, (1,), 1)
    for cg in range(9):
        a("v_add_f32 v%d, v%d, v%d" % (20 + 2 * cg, 20 + 2 * cg, 21 + 2 * cg))
        a("global_atomic_add_f32 v165, v%d, s[8:9] offset:%d" % (20 + 2 * cg, 256 * cg))
    a("v_mov_b32 v4, s38")
    a("v_mov_b32 v5, 1")
    a("s_waitcnt vmcnt(0)")
    stamp(a, 7)
    a("s_mov_b64 exec, 1")
    a("global_atomic_add v4, v5, s[8:9] sc1")
    stamp_end(a, 8, 1)


def kf(a):
    a.label(NAME)
    a("s_cmp_ge_u32 s2, 256")
    a("s_cbranch_scc1 L_end")
    stamp_init(a)
    stamp(a, 0)
    a("s_load_dwordx4 s[4:7], s[0:1], 0")
    a("s_load_dwordx2 s[8:9], s[0:1], 88")
    a("s_load_dwordx2 s[10:11], s[0:1], 72")
    a("s_load_dwordx2 s[14:15], s[0:1], 56")
    a("s_load_dwordx2 s[28:29], s[0:1], 16")
    a("v_lshrrev_b32 v1, 6, v0")
    a("v_and_b32 v0, 63, v0")
    a("v_readfirstlane_b32 s3, v1")
    a("s_and_b32 s30, s2, 3")
    a("s_bfe_u32 s31, s2, 0x10002")
    a("s_lshr_b32 s32, s2, 3")
    a("s_cmp_ge_u32 s32, 24")
    a("s_cbranch_scc1 L_sp")
    a("s_cmp_ge_u32 s3, 8")
    a("s_cbranch_scc1 L_help")
    gemm_phase(a)
    attention_phase(a)
    out_phase(a)
    late_and_slow(a)
    spare_phase(a)
    helpers(a)
    a.label("L_end")
    a("s_endpgm")
```

```python
from asmdsl import vr, sr
import layout as L
from common import *
from k2 import (KB, VB, QB, ONES, vK, vKt, vV, vStep, QM, QT, MSK, KF, VF, PP, SS, OO, T,
                k_reads, v_reads, qk, pv)

NAME = "gated_mix__sliding_block__moe_arch_mod__prompt_kernel"
SLOT = 34816
IMG = SLOT
WO = 66560
CTL = 149568
YB = 149696
HP = 150016
YT = 154624
XS = 156672
KF_LDS = 162304
PSLOT = (QB, QB + 4096, 140288, 144384, 158208)
KF_VGPR = 168
PART = 0
STG = 20480
XR, GR = 128, 136
vC = 154
TAG = 65
C_O, C_GO2, C_A, C_WO, C_PART, C_YRDY, C_B, C_1, C_GO1, C_C, C_PA, C_IDX, C_RSEL = 0, 4, 8, 12, 96, 32, 36, 40, 44, 48, 52, 56, 60
C_KMAX, C_KCNT, C_XS, C_GD, C_RED, C_RED2, C_FI = 64, 68, 72, 76, 80, 84, 88
F_Q, F_O, F_PA, F_Y = 0, 192, 448, 512


def lds_spin(a, name, addr_v, off, regs, conds, slp=1):
    n = len(conds)
    a("s_mov_b32 s60, 0x200000")
    a.label(name)
    a(("ds_read_b64 %s, v%d offset:%d" % (vr(regs, 2), addr_v, off)) if n == 2 else
      ("ds_read_b32 v%d, v%d offset:%d" % (regs, addr_v, off)))
    a("s_waitcnt lgkmcnt(0)")
    a("v_readfirstlane_b32 s61, v%d" % regs)
    if n == 2:
        a("v_readfirstlane_b32 s62, v%d" % (regs + 1))
        a("s_lshl_b32 s62, s62, 8")
        a("s_or_b32 s61, s61, s62")
        a("s_cmp_eq_u32 s61, %d" % (conds[0] | (conds[1] << 8)))
    else:
        a("s_cmp_eq_u32 s61, %d" % conds[0])
    a("s_cbranch_scc1 %s_d" % name)
    if slp:
        a("s_sleep %d" % slp)
    a("s_sub_u32 s60, s60, 1")
    a("s_cmp_lg_u32 s60, 0")
    a("s_cbranch_scc1 %s" % name)
    a.label(name + "_d")


def stage_spin(a, name, stage, vc=vC, T=T, slp=0):
    a("s_mov_b32 s60, 0x200000")
    a.label(name)
    a("ds_read_b32 v%d, v%d offset:%d" % (T, vc, C_A))
    a("s_waitcnt lgkmcnt(0)")
    a("v_readfirstlane_b32 s61, v%d" % T)
    a("s_bitcmp1_b32 s61, %d" % (8 * stage + 3))
    a("s_cbranch_scc1 %s_d" % name)
    if slp:
        a("s_sleep %d" % slp)
    a("s_sub_u32 s60, s60, 1")
    a("s_cmp_lg_u32 s60, 0")
    a("s_cbranch_scc1 %s" % name)
    a.label(name + "_d")


def landed(a, inc, vm):
    a("v_mov_b32 v%d, %s" % (T, hex(inc)))
    a("s_waitcnt vmcnt(%d)" % vm)
    a("s_mov_b64 exec, 1")
    a("ds_add_u32 v%d, v%d offset:%d" % (vC, T, C_A))
    a("s_mov_b64 exec, -1")


def poison(a):
    if OPT["nopois"]:
        a("s_nop 0")
        a("buffer_load_dword v155, v152, s[24:27], s59 offen")
        a("buffer_load_dword v155, v152, s[24:27], s59 offen")
        return
    for k in range(4):
        a("v_mov_b32 v%d, -1" % (120 + k))
    a("buffer_store_dwordx4 %s, v153, s[24:27], s58 offen sc1" % vr(120, 4))
    a("s_mov_b32 exec_hi, 0")
    a("buffer_store_dword v%d, v152, s[24:27], s59 offen sc1" % 120)
    a("s_mov_b32 exec_hi, -1")


def tail_touch(a):
    a("buffer_load_dword v155, v152, s[24:27], s59 offen")


def flag_poll(a, name, voff, vt, want, lanes, slp=1, width=1):
    a("s_mov_b64 exec, %s" % ("-1" if lanes == 64 else hex((1 << lanes) - 1)))
    a("s_mov_b32 s60, 0x40000")
    a.label(name)
    a("global_load_dword%s %s, v%d, s[8:9] sc1" % ("" if width == 1 else "x%d" % width, vr(vt, width), voff))
    a("s_waitcnt vmcnt(0)")
    a("v_cmp_eq_u32 vcc, %s, v%d" % (want, vt))
    a("s_cmp_eq_u64 vcc, exec")
    a("s_cbranch_scc1 %s_d" % name)
    if slp:
        a("s_sleep %d" % slp)
    a("s_sub_u32 s60, s60, 1")
    a("s_cmp_lg_u32 s60, 0")
    a("s_cbranch_scc1 %s" % name)
    a.label(name + "_d")
    a("s_mov_b64 exec, -1")


def lds_inc(a, vz, vt, off, rtn=False):
    a("v_mov_b32 v%d, 1" % vt)
    a("s_mov_b64 exec, 1")
    if rtn:
        a("ds_add_rtn_u32 v%d, v%d, v%d offset:%d" % (vt, vz, vt, off))
    else:
        a("ds_add_u32 v%d, v%d offset:%d" % (vz, vt, off))
    a("s_mov_b64 exec, -1")


def load_tag(a):
    a("s_mov_b32 s64, %d" % L.WS_EPOCH)
    a("s_load_dword s%d, s[8:9], s64" % TAG)


def make_tag(a):
    a("s_mul_i32 s%d, s%d, 0x9e3779b1" % (TAG, TAG))
    a("s_add_u32 s%d, s%d, 0x7f4a7c15" % (TAG, TAG))


def copy_scalars(a):
    a("s_mul_i32 s55, s34, %d" % (4 * L.PAIR_BYTES))
    a("s_mul_i32 s56, s35, 9216")
    a("s_add_u32 s55, s55, s56")
    a("s_lshl_b32 s56, s3, 10")
    a("s_add_u32 s55, s55, s56")
    for j in range(5):
        a("s_add_u32 s57, s3, %d" % (8 * j))
        a("s_mul_i32 s57, s57, 57")
        a("s_lshr_b32 s57, s57, 9")
        a("s_mul_i32 s57, s57, %d" % (L.PAIR_BYTES - 9216))
        a("s_add_u32 s57, s57, s55")
        a("s_add_u32 s%d, s57, %d" % (50 + j, 8192 * j))
    a("s_mul_i32 s58, s35, 12")
    a("s_add_u32 s58, s58, s34")
    a("s_lshl_b32 s58, s58, 7")
    a("s_add_u32 s58, s58, %d" % (L.WS_FLAG + F_Q * 128))


def decode2(a):
    a("s_and_b32 s30, s2, 3")
    a("s_bfe_u32 s33, s2, 0x10002")
    a("s_bfe_u32 s32, s2, 0x20003")
    a("s_lshl_b32 s31, s30, 2")
    a("s_add_u32 s31, s31, s32")
    a("s_lshl_b32 s32, s33, 3")
    a("s_lshr_b32 s34, s2, 5")
    if OPT["light"]:
        a("s_add_u32 s34, s34, 2")
        a("s_and_b32 s34, s34, 7")
    a("s_add_u32 s32, s32, s34")
    a("s_lshr_b32 s33, s2, 3")
    a("s_mul_i32 s34, s33, 57")
    a("s_lshr_b32 s34, s34, 9")
    a("s_mul_i32 s53, s34, 9")
    a("s_sub_u32 s53, s33, s53")
    a("s_lshl_b32 s52, s34, 3")
    a("s_and_b32 s34, s2, 7")
    a("s_add_u32 s52, s52, s34")
    a("s_sub_u32 s33, s2, 216")
    a("s_mul_i32 s34, s33, 57")
    a("s_lshr_b32 s34, s34, 9")
    a("s_mul_i32 s35, s34, 9")
    a("s_sub_u32 s33, s33, s35")
    a("s_add_u32 s34, s34, 24")
    a("s_cmp_ge_u32 s2, 216")
    a("s_cselect_b32 s52, s34, s52")
    a("s_cselect_b32 s53, s33, s53")


def qpoll(a, vc, name, own, r=16):
    R = dict(a=r, b=r + 1, c=r + 2)
    a("v_add_u32 v%(a)d, 2, v0" % R)
    a("v_mul_u32_u24 v%(b)d, 43, v%(a)d" % R)
    a("v_lshrrev_b32 v%(b)d, 7, v%(b)d" % R)
    a("v_mul_u32_u24 v%(c)d, 3, v%(b)d" % R)
    a("v_sub_u32 v%(a)d, v%(a)d, v%(c)d" % R)
    a("s_sub_u32 s35, s32, 2")
    a("v_add_u32 v%(a)d, s35, v%(a)d" % R)
    a("v_max_i32 v%(a)d, 0, v%(a)d" % R)
    a("v_mul_u32_u24 v%(a)d, 12, v%(a)d" % R)
    a("v_lshl_add_u32 v%(a)d, v%(b)d, 2, v%(a)d" % R)
    a("v_add_u32 v%(a)d, s30, v%(a)d" % R)
    a("v_lshlrev_b32 v%(a)d, 7, v%(a)d" % R)
    a("v_add_u32 v%d, %d, v%d" % (r, L.WS_FLAG + F_Q * 128, r))
    if own:
        lds_spin(a, name + "w", vc, C_1, r + 2, (8,), 0)
    flag_poll(a, name, r, r + 1, "s%d" % TAG, 7, OPT["qslp"])
    lds_inc(a, vc, r + 2, C_GO1)


def code_touch(a):
    if not OPT["ctouch"]:
        return
    lab = a.newlabel("pc")
    a("s_getpc_b64 s[20:21]")
    a.label(lab)
    a("s_sub_u32 s20, s20, %s-%s" % (lab, NAME))
    a("s_subb_u32 s21, s21, 0")
    a("s_lshr_b32 s22, s2, 3")
    a("s_mul_i32 s22, s22, %d" % (12 * 128))
    a("v_lshlrev_b32 v20, 7, v0")
    a("v_add_u32 v20, s22, v20")
    a("v_min_u32 v20, L_end-%s, v20" % NAME)
    a("s_mov_b64 exec, 0xfff")
    a("global_load_dword v21, v20, s[20:21]")
    a("s_mov_b64 exec, -1")


def gemm_phase(a):
    a("s_mul_i32 s33, s32, 43")
    a("s_lshr_b32 s33, s33, 7")
    a("s_mul_i32 s34, s33, 3")
    a("s_sub_u32 s34, s32, s34")
    a("s_lshl_b32 s34, s34, 2")
    a("s_add_u32 s34, s34, s30")
    a("s_lshl_b32 s35, s31, 3")
    a("s_add_u32 s35, s35, s33")
    a("s_cmp_lt_u32 s3, 4")
    a("s_cbranch_scc1 L_comp")
    a("s_cmp_lt_u32 s3, 6")
    a("s_cbranch_scc0 L_ldw")
    a("s_sub_u32 s36, s3, 4")
    a("v_and_b32 v7, 7, v0")
    a("s_lshl_b32 s41, s33, 3")
    a("s_lshl_b32 s42, s36, 6")
    a("s_add_u32 s41, s41, s42")
    a("v_add_u32 v7, s41, v7")
    a("v_mul_u32_u24 v7, 3456, v7")
    a("v_lshrrev_b32 v1, 3, v0")
    a("v_lshl_add_u32 v7, v1, 7, v7")
    a("s_mul_i32 s39, s35, %d" % (128 * 1152))
    a("s_mul_i32 s46, s34, 288")
    a("s_and_b32 s46, s46, 0xffffff80")
    a("s_sub_u32 s47, %d, s46" % (576 * 3456))
    a("v_mul_u32_u24 v1, 1152, v1")
    a("v_lshrrev_b32 v2, 4, v0")
    a("v_and_b32 v3, 7, v0")
    a("v_xor_b32 v3, v3, v2")
    a("v_lshl_add_u32 v4, v3, 4, v1")
    a("v_xor_b32 v3, 4, v3")
    a("v_lshl_add_u32 v5, v3, 4, v1")
    a("v_add_u32 v5, %d, v5" % (8 * 1152))
    a("s_mul_i32 s37, s36, %d" % (64 * 1152))
    a("s_lshl_b32 s38, s36, 13")
    a("s_waitcnt lgkmcnt(0)")
    srd_off(a, 20, 6, "s46", "s47")
    a("s_mov_b64 exec, 0xffffff")
    a("buffer_load_dword v20, v7, s[20:23], 0 offen")
    a("s_mov_b64 exec, -1")
    srd_off(a, 16, 4, "s39", 128 * 1152)

    def x_chunk(c):
        for i in range(8):
            a("s_add_u32 m0, s38, %d" % ((c % 4) * SLOT + i * 1024))
            a("s_add_u32 s40, s37, %d" % ((i >> 1) * 16 * 1152 + c * 128))
            a("buffer_load_dwordx4 v%d, s[16:19], s40 offen lds" % (4 + (i & 1)))

    x_chunk(0)
    load_tag(a)
    copy_scalars(a)
    stamp(a, 1)
    a("s_waitcnt vmcnt(8) lgkmcnt(0)")
    stamp(a, 2)

    def loader_loop(fn, n, first, ahead0):
        LA = OPT["la"]
        a("s_barrier")
        stamp(a, 13)
        nxt = first
        while nxt < ahead0:
            fn(nxt)
            nxt += 1
        stamp(a, 14)
        for c in range(9):
            a("s_waitcnt vmcnt(%d)" % (n * (nxt - 1 - c)))
            a("s_barrier")
            while nxt <= c + LA and nxt < 9:
                fn(nxt)
                nxt += 1

    loader_loop(x_chunk, 8, 1, 2)
    a("s_branch L_copy")
    a.label("L_ldw")
    a("s_movk_i32 s41, 3641")
    for i in range(9):
        a("v_add_u32 v1, %d, v0" % (64 * i))
        a("v_mul_u32_u24 v2, s41, v1")
        a("v_lshrrev_b32 v2, 16, v2")
        a("v_mul_u32_u24 v3, 18, v2")
        a("v_sub_u32 v3, v1, v3")
        a("v_bfe_u32 v1, v2, 2, 2")
        a("v_lshlrev_b32 v1, 3, v1")
        a("v_lshrrev_b32 v13, 4, v2")
        a("v_lshl_add_u32 v1, v13, 2, v1")
        a("v_and_b32 v2, 3, v2")
        a("v_add_u32 v1, v1, v2")
        a("v_mul_u32_u24 v1, 3456, v1")
        a("v_lshl_add_u32 v%d, v3, 4, v1" % (4 + i))
        if i == 2:
            a("s_waitcnt lgkmcnt(0)")
            load_tag(a)
    a("s_sub_u32 s36, s3, 6")
    a("s_mul_i32 s37, s36, %d" % (32 * 3456))
    a("s_mul_i32 s38, s36, 9216")
    a("s_mul_i32 s39, s34, 288")
    a("s_sub_u32 s42, %d, s39" % (576 * 3456))
    copy_scalars(a)
    srd_off(a, 16, 6, "s39", "s42")
    a("s_waitcnt lgkmcnt(0)")

    def w_chunk(c):
        a("s_add_u32 s40, s37, %d" % (c * 64 * 3456))
        for i in range(9):
            a("s_add_u32 m0, s38, %d" % ((c % 4) * SLOT + 16384 + i * 1024))
            a("s_nop 0")
            a("buffer_load_dwordx4 v%d, s[16:19], s40 offen lds" % (4 + i))

    loader_loop(w_chunk, 9, 0, OPT["wa0"])
    a("s_branch L_copy")
    a.label("L_comp")
    ACC, XF, WF = 64, (136, 144), 24
    a("v_and_b32 v8, 15, v0")
    a("v_lshrrev_b32 v9, 4, v0")
    a("v_lshrrev_b32 v10, 1, v8")
    a("v_xor_b32 v10, v10, v9")
    a("s_lshl_b32 s36, s3, 12")
    a("v_lshlrev_b32 v2, 7, v8")
    a("v_lshl_add_u32 v2, v10, 4, v2")
    a("v_add_u32 v2, s36, v2")
    a("v_xor_b32 v3, 64, v2")
    a("v_add_u32 v4, %d, v2" % (2 * SLOT))
    a("v_add_u32 v5, %d, v3" % (2 * SLOT))
    a("v_lshrrev_b32 v10, 2, v0")
    a("v_mul_u32_u24 v6, 288, v10")
    a("v_and_b32 v10, 3, v0")
    a("v_lshl_add_u32 v6, v10, 3, v6")
    a("v_add_u32 v6, 16384, v6")
    a("v_add_u32 v7, %d, v6" % (2 * SLOT))
    a("s_waitcnt lgkmcnt(0)")
    load_tag(a)
    a("s_mov_b32 s36, 1.0")
    a("s_cmp_lt_u32 s34, 4")
    a("s_cselect_b32 s36, %s, s36" % f32(QSCALE))
    a("s_mov_b32 s37, s36")
    a("s_lshl_b32 s38, s3, 5")
    a("v_add_u32 v10, s38, v8")
    a("v_mul_u32_u24 v10, 72, v10")
    a("v_lshl_add_u32 v10, v9, 3, v10")
    a("v_add_u32 v10, %d, v10" % IMG)
    for ft in range(9):
        a("v_add_u32 v11, %d, v9" % (4 * ft))
        a("v_mul_u32_u24 v11, 57, v11")
        a("v_lshrrev_b32 v11, 9, v11")
        a("v_mul_u32_u24 v11, 9144, v11")
        a("v_add_u32 v%d, v11, v10" % (12 + ft))
    copy_scalars(a)
    a("s_waitcnt lgkmcnt(0)")

    def xreads(step):
        c, h2 = step >> 1, step & 1
        slot = c % 4
        return ["ds_read_b128 %s, v%d offset:%d" % (vr(XF[step & 1] + 4 * tt, 4), 2 + 2 * (slot >> 1) + h2,
                                                    (slot & 1) * SLOT + tt * 2048) for tt in range(2)]

    def wreads(step, ft):
        c, h2 = step >> 1, step & 1
        slot = c % 4
        return ["ds_read_b64_tr_b16 %s, v%d offset:%d" % (vr(WF + 4 * ft + 2 * sec, 2), 6 + (slot >> 1),
                                                          (slot & 1) * SLOT + h2 * 9216 + sec * 4608 + ft * 32)
                for sec in range(2)]

    def mfma(step, ft, tt):
        d = vr(ACC + 8 * ft + 4 * tt, 4)
        return "v_mfma_f32_16x16x32_bf16 %s, %s, %s, %s" % (
            d, vr(WF + 4 * ft, 4), vr(XF[step & 1] + 4 * tt, 4), "0" if step == 0 else d)

    def epi(k):
        ft, tt = k >> 1, k & 1
        b = ACC + 4 * k
        t = 152 + 2 * (k % 8)
        return ["v_pk_mul_f32 %s, %s, s[36:37]" % (vr(b, 2), vr(b, 2)),
                "v_pk_mul_f32 %s, %s, s[36:37]" % (vr(b + 2, 2), vr(b + 2, 2)),
                "v_cvt_pk_bf16_f32 v%d, v%d, v%d" % (t, b, b + 1),
                "v_cvt_pk_bf16_f32 v%d, v%d, v%d" % (t + 1, b + 2, b + 3),
                "ds_write_b64 v%d, %s offset:%d" % (12 + ft, vr(t, 2), 32 * ft + 1152 * tt)]

    a("s_barrier")
    a("s_barrier")
    stamp(a, 1)
    q = []

    def issue(tag, lst):
        for x in lst:
            a(x)
            q.append(tag)

    def need(tag):
        last = max(k for k, v in enumerate(q) if v == tag)
        a("s_waitcnt lgkmcnt(%d)" % min(15, len(q) - 1 - last))

    issue(("x", 0), xreads(0))
    for ft in range(9):
        issue(("w", 0, ft), wreads(0, ft))
    LAG = 3
    for step in range(18):
        if step & 1 and step < 17:
            a("s_barrier")
        for ft in range(9):
            need(("w", step, ft))
            a(mfma(step, ft, 0))
            if ft == 0 and step < 17:
                issue(("x", step + 1), xreads(step + 1))
            if step == 17 and 2 * ft >= LAG:
                e = epi(2 * ft - LAG)
                for x in e[:4]:
                    a(x)
                issue("e", e[4:])
            a(mfma(step, ft, 1))
            if step < 17:
                issue(("w", step + 1, ft), wreads(step + 1, ft))
            elif 2 * ft + 1 >= LAG:
                e = epi(2 * ft + 1 - LAG)
                for x in e[:4]:
                    a(x)
                issue("e", e[4:])
    for k in range(18 - LAG, 18):
        for x in epi(k):
            a(x)
    stamp(a, 2)
    a("s_waitcnt lgkmcnt(0)")
    a.label("L_copy")
    a("v_lshlrev_b32 v1, 4, v0")
    a("s_lshl_b32 s36, s3, 10")
    a("v_add_u32 v2, s36, v1")
    a("v_add_u32 v3, %d, v2" % (IMG + 4 * 8192))
    srd(a, 24, 8, L.QKV_BYTES)
    make_tag(a)
    a("s_barrier")
    for j in range(4):
        a("ds_read_b128 %s, v2 offset:%d" % (vr(4 + 4 * j, 4), IMG + j * 8192))
    a("s_cmp_lt_u32 s3, 4")
    a("s_cbranch_scc0 L_c4")
    a("ds_read_b128 v[20:23], v3")
    a("s_waitcnt lgkmcnt(0)")
    a("buffer_store_dwordx4 v[20:23], v1, s[24:27], s54 offen sc1")
    a.label("L_c4")
    for j in range(4):
        a("s_waitcnt lgkmcnt(%d)" % (3 - j))
        a("buffer_store_dwordx4 %s, v1, s[24:27], s%d offen sc1" % (vr(4 + 4 * j, 4), 50 + j))
    a("s_mov_b32 s63, s58")
    a("v_mov_b32 v%d, %d" % (vC, CTL))
    lds_inc(a, vC, 24, C_FI)
    stamp(a, 3)


def spare_phase(a):
    GW = 64
    a.label("L_sp")
    a("s_sub_u32 s36, s2, 192")
    a("s_cmp_ge_u32 s3, 8")
    a("s_cbranch_scc1 L_sp_ffn")
    a("s_cmp_ge_u32 s3, 4")
    a("s_cbranch_scc1 L_sp_hi")
    a("s_load_dwordx2 s[60:61], s[0:1], 32")
    a("s_load_dwordx2 s[62:63], s[0:1], 64")
    a("v_lshrrev_b32 v2, 3, v0")
    a("v_and_b32 v3, 7, v0")
    a("v_lshlrev_b32 v3, 4, v3")
    a("s_lshl_b32 s34, s36, 2")
    a("s_add_u32 s34, s34, s3")
    a("s_lshl_b32 s33, s34, 3")
    a("v_add_u32 v1, s33, v2")
    a("v_mul_u32_u24 v4, 1152, v1")
    a("v_add_u32 v4, v4, v3")
    a("s_mul_i32 s51, s34, %d" % (7 * 128))
    a("s_mul_i32 s52, s34, %d" % (21 * 128))
    a("v_lshlrev_b32 v7, 7, v0")
    a("s_waitcnt lgkmcnt(0)")
    load_tag(a)
    srd(a, 16, 6, 576 * 3456)
    srd(a, 20, 28, 576 * 1152)
    for i in range(9):
        a("global_load_dwordx4 %s, v4, s[4:5] offset:%d" % (vr(8 + 4 * i, 4), 128 * i))
        if i == 0:
            for j in range(9):
                a("global_load_dwordx4 %s, v3, s[60:61] offset:%d" % (vr(44 + 4 * j, 4), 128 * j))
                a("global_load_dwordx4 %s, v3, s[62:63] offset:%d" % (vr(80 + 4 * j, 4), 128 * j))
        else:
            a("s_add_u32 s53, s51, %d" % (1728 * 128 * i))
            a("s_mov_b64 exec, 0x7f")
            a("buffer_load_dword v124, v7, s[16:19], s53 offen")
            a("s_mov_b64 exec, -1")
    a("s_mov_b64 exec, 0x1fffff")
    a("buffer_load_dword v124, v7, s[20:23], s52 offen")
    a("s_mov_b64 exec, -1")
    a("v_mov_b32 v%d, %d" % (vC, CTL))
    a("s_waitcnt lgkmcnt(0)")
    make_tag(a)
    a("s_barrier")
    a("s_waitcnt vmcnt(2)")
    for i in range(36):
        p = 116 + (i & 3)
        a("v_dot2_f32_bf16 v%d, v%d, v%d, %s" % (p, 8 + i, 44 + i, "0" if i < 4 else "v%d" % p))
    a("s_nop 1")
    a("v_pk_add_f32 v[116:117], v[116:117], v[118:119]")
    a("v_add_f32 v5, v116, v117")
    sum8(a, (5,))
    bf16_round(a, 5, 5)
    a("v_ashrrev_i32 v7, 31, v5")
    a("v_or_b32 v7, 0x80000000, v7")
    a("v_xor_b32 v7, v7, v5")
    a("v_and_b32 v7, 0xffff0000, v7")
    a("v_sub_u32 v6, 0x7ff, v1")
    a("v_or_b32 v7, v7, v6")
    a("v_mov_b32 v5, 1")
    a("s_mov_b32 s54, 0x01010101")
    a("s_mov_b32 exec_lo, s54")
    a("s_mov_b32 exec_hi, s54")
    a("ds_max_u32 v%d, v7 offset:%d" % (vC, C_KMAX))
    a("s_mov_b64 exec, 1")
    a("ds_add_rtn_u32 v5, v%d, v5 offset:%d" % (vC, C_KCNT))
    a("ds_read_b32 v7, v%d offset:%d" % (vC, C_KMAX))
    a("s_lshl_b32 s53, s36, 3")
    a("s_add_u32 s53, s53, %d" % L.WS_KEYF)
    a("v_mov_b32 v4, s53")
    a("v_mov_b32 v6, s%d" % TAG)
    a("s_waitcnt lgkmcnt(0)")
    a("v_cmp_eq_u32 vcc, 3, v5")
    a("s_and_b64 exec, exec, vcc")
    a("s_cbranch_execz L_sp_nopub")
    a("global_store_dwordx2 v4, v[6:7], s[8:9] sc1")
    a.label("L_sp_nopub")
    a("s_mov_b64 exec, -1")
    stamp(a, 1)
    a("s_mov_b32 s55, 0x3f803f80")
    for i in range(36):
        x, w, p = 8 + i, 80 + i, 116 + (i & 3)
        t = 44 + 4 * (i & 3)
        a("v_lshlrev_b32 v%d, 16, v%d" % (t, x))
        a("v_and_b32 v%d, 0xffff0000, v%d" % (t + 1, x))
        a("v_lshlrev_b32 v%d, 16, v%d" % (t + 2, w))
        a("v_and_b32 v%d, 0xffff0000, v%d" % (t + 3, w))
        a("v_pk_mul_f32 %s, %s, %s" % (vr(t, 2), vr(t, 2), vr(t + 2, 2)))
        a("v_cvt_pk_bf16_f32 v%d, v%d, v%d" % (t, t, t + 1))
        a("v_dot2_f32_bf16 v%d, v%d, s55, %s" % (p, t, "0" if i < 4 else "v%d" % p))
    a("s_nop 1")
    a("v_pk_add_f32 v[116:117], v[116:117], v[118:119]")
    a("v_add_f32 v6, v116, v117")
    sum8(a, (6,))
    bf16_round(a, 6, 6)
    sigmoid(a, 6, 6)
    bf16_round(a, 6, 6)
    a("v_lshlrev_b32 v1, 2, v1")
    a("v_add_u32 v1, %d, v1" % L.WS_G)
    a("s_mov_b32 exec_lo, s54")
    a("s_mov_b32 exec_hi, s54")
    a("global_store_dword v1, v6, s[8:9] sc1")
    a("s_mov_b64 exec, -1")
    a("s_waitcnt vmcnt(0)")
    lds_inc(a, vC, 5, C_GD)
    if OPT["dtouch"]:
        srd(a, 16, 14, 4608 * 1152)
        a("s_mul_i32 s52, s34, %d" % (162 * 128))
        a("v_lshlrev_b32 v7, 7, v0")
        for k in range(3):
            a("buffer_load_dword v124, v7, s[16:19], s52 offen")
            a("s_add_u32 s52, s52, %d" % (54 * 128))
    a("s_mov_b32 s63, 0")
    stamp(a, 2)
    a("s_branch L_att")

    a.label("L_sp_hi")
    a("s_cmp_eq_u32 s3, 7")
    a("s_cbranch_scc0 L_sp_hi1")
    code_touch(a)
    a.label("L_sp_hi1")
    a("v_mov_b32 v%d, %d" % (vC, CTL))
    a("s_waitcnt lgkmcnt(0)")
    load_tag(a)
    a("s_mov_b32 s63, 0")
    a("s_waitcnt lgkmcnt(0)")
    make_tag(a)
    a("s_barrier")
    a("s_cmp_eq_u32 s3, 4")
    a("s_cbranch_scc1 L_sp_w4")
    a("s_cmp_eq_u32 s3, 5")
    a("s_cbranch_scc0 L_att")
    a("s_lshl_b32 s56, s36, 7")
    a("s_add_u32 s56, s56, %d" % (L.WS_FLAG + F_PA * 128))
    a("v_mov_b32 v9, s56")
    lds_spin(a, "L_sp_x5", vC, C_XS, 10, (1, 4), 4)
    a("ds_read_b64 v[14:15], v%d offset:%d" % (vC, C_IDX))
    a("v_mov_b32 v12, s%d" % TAG)
    a("s_waitcnt lgkmcnt(0)")
    a("v_mov_b32 v13, v14")
    a("v_mov_b32 v14, v15")
    a("s_mov_b64 exec, 1")
    a("global_store_dwordx3 v9, v[12:14], s[8:9] sc1")
    a("s_mov_b64 exec, -1")
    a("s_branch L_att")
    a.label("L_sp_w4")
    for k in range(4):
        a("v_mov_b32 v%d, 0" % (12 + k))
    a("s_cmp_lt_u32 s36, 36")
    a("s_cbranch_scc0 L_sp_nz")
    a("s_lshl_b32 s51, s36, 10")
    a("s_add_u32 s51, s51, %d" % L.WS_YP)
    a("v_lshlrev_b32 v4, 4, v0")
    a("v_add_u32 v4, s51, v4")
    a("global_store_dwordx4 v4, v[12:15], s[8:9] sc1")
    a("s_cmp_eq_u32 s36, 0")
    a("s_cbranch_scc0 L_sp_nz")
    a("v_lshlrev_b32 v4, 7, v0")
    a("v_add_u32 v4, %d, v4" % (L.WS_FLAG + F_Y * 128))
    a("global_store_dword v4, v12, s[8:9] sc1")
    a.label("L_sp_nz")
    a("v_lshlrev_b32 v8, 3, v0")
    a("v_add_u32 v8, %d, v8" % L.WS_KEYF)
    srd(a, 24, 4, 2048 * 1152)
    lds_spin(a, "L_sp_own", vC, C_KCNT, 10, (4,), 2)
    a("s_sleep %d" % OPT["slp0"])
    flag_poll(a, "L_sp_kp", 8, 10, "s%d" % TAG, 64, OPT["slp"], 2)
    a("v_lshlrev_b32 v8, 4, v0")
    stamp(a, 1)
    wave_umax(a, 11, 53)
    a("s_and_b32 s54, s53, 0x7ff")
    a("s_sub_u32 s54, 2047, s54")
    a("s_mul_i32 s55, s54, 1152")
    a("s_mov_b32 m0, %d" % XS)
    a("s_add_u32 s56, s55, 1024")
    a("buffer_load_dwordx4 v8, s[24:27], s55 offen lds")
    a("s_mov_b32 m0, %d" % (XS + 1024))
    a("s_mov_b64 exec, 0xff")
    a("buffer_load_dwordx4 v8, s[24:27], s56 offen lds")
    a("s_mov_b64 exec, -1")
    a("s_and_b32 s55, s53, 0xffff0000")
    a("s_xor_b32 s56, s55, 0x80000000")
    a("s_xor_b32 s57, s55, 0xffff0000")
    a("s_bitcmp1_b32 s55, 31")
    a("s_cselect_b32 s55, s56, s57")
    a("v_mov_b32 v12, s55")
    sigmoid(a, 13, 12)
    bf16_round(a, 13, 13)
    a("v_mov_b32 v12, s54")
    a("ds_write_b64 v%d, v[12:13] offset:%d" % (vC, C_IDX))
    a("v_mov_b32 v12, 1")
    a("s_waitcnt vmcnt(0)")
    a("ds_write_b32 v%d, v12 offset:%d" % (vC, C_XS))
    stamp(a, 2)
    a("s_branch L_att")

    a.label("L_sp_ffn")
    a("s_load_dwordx4 s[40:43], s[0:1], 40")
    a("v_mov_b32 v3, %d" % CTL)
    for k in range(4):
        a("v_mov_b32 v%d, 0" % (4 + k))
    a("v_lshlrev_b32 v1, 4, v0")
    a("v_add_u32 v2, v1, v3")
    a("s_mov_b64 exec, 0xff")
    a("ds_write_b128 v2, v[4:7]")
    a("s_mov_b64 exec, -1")
    a("v_lshlrev_b32 v2, 2, v0")
    a("v_add_u32 v2, %d, v2" % (XS + 1152))
    a("ds_write_b32 v2, v4")
    a("s_sub_u32 s59, s3, 8")
    a("s_mul_i32 s37, s36, 57")
    a("s_lshr_b32 s37, s37, 9")
    a("s_mul_i32 s38, s37, 9")
    a("s_sub_u32 s38, s36, s38")
    a("s_mul_i32 s49, s37, 84")
    a("s_mul_i32 s39, s49, 9216")
    a("s_lshl_b32 s48, s38, 10")
    a("s_add_u32 s39, s39, s48")
    a("s_sub_u32 s48, %d, s39" % (576 * 9216))
    a("s_min_i32 s48, s48, %d" % (83 * 9216 + 1024))
    a("s_max_i32 s48, s48, 0")
    a("v_lshrrev_b32 v160, 5, v0")
    a("v_mul_u32_u24 v160, 9216, v160")
    a("v_and_b32 v161, 31, v0")
    a("v_lshl_add_u32 v160, v161, 4, v160")
    a("s_mul_i32 s57, s59, 20480")
    a("s_add_u32 s57, s57, %d" % WO)
    a("s_mul_i32 s58, s59, %d" % (2 * 9216))
    a("s_waitcnt lgkmcnt(0)")
    load_tag(a)
    srd_off(a, 16, 40, "s39", "s48")
    srd_off(a, 20, 42, "s39", "s48")
    a("s_waitcnt lgkmcnt(0)")
    make_tag(a)
    a("s_barrier")
    for i in range(5):
        a("s_add_u32 s55, s58, %d" % (8 * (6 + i) * 9216))
        a("s_add_u32 s56, s55, 512")
        for k in range(4):
            a("s_add_u32 m0, s57, %d" % ((4 * i + k) * 1024))
            a("buffer_load_dwordx4 v160, s[%d:%d], s%d offen nt lds" % (16 + 4 * (k >> 1), 19 + 4 * (k >> 1), 55 + (k & 1)))
    for i in range(6):
        a("s_add_u32 s55, s58, %d" % (8 * i * 9216))
        for k in range(4):
            a("buffer_load_dwordx4 %s, v160, s[%d:%d], s55 offen offset:%d nt" % (
                vr(GW + 16 * i + 4 * k, 4), 16 + 4 * (k >> 1), 19 + 4 * (k >> 1), 512 * (k & 1)))
    a("s_lshl_b32 s55, s59, 1")
    a("s_add_u32 s55, s55, s49")
    a("v_lshrrev_b32 v51, 5, v0")
    a("v_add_u32 v51, s55, v51")
    a("v_lshlrev_b32 v51, 1, v51")
    a("v_add_u32 v51, %d, v51" % XS)
    a("v_and_b32 v2, 1, v0")
    a("v_lshlrev_b32 v2, 4, v2")
    a("v_lshrrev_b32 v4, 1, v0")
    a("v_xor_b32 v4, v4, v0")
    a("v_and_b32 v4, 8, v4")
    a("v_bfe_u32 v5, v0, 1, 2")
    a("v_or_b32 v4, v4, v5")
    for q in range(4):
        a("v_cmp_eq_u32 s[%d:%d], %d, v4" % (40 + 2 * q, 41 + 2 * q, q))
    a("v_bfe_u32 v4, v0, 3, 1")
    a("v_lshlrev_b32 v4, 9, v4")
    a("v_lshrrev_b32 v5, 4, v0")
    a("v_lshl_add_u32 v4, v5, 7, v4")
    a("v_and_b32 v5, 7, v0")
    a("v_lshl_add_u32 v4, v5, 2, v4")
    a("v_add_u32 v6, s57, v4")
    a("v_add_u32 v52, s57, v1")
    a("s_lshl_b32 s55, s59, 9")
    a("v_lshlrev_b32 v8, 3, v0")
    a("v_add_u32 v8, s55, v8")
    a("s_mul_i32 s52, s37, %d" % (4608 * 16))
    a("s_lshl_b32 s55, s38, 13")
    a("s_add_u32 s52, s52, s55")
    a("s_add_u32 s52, s52, %d" % L.WS_PA)
    a("v_lshlrev_b32 v9, 2, v8")
    a("v_add_u32 v9, s52, v9")
    a("v_add_u32 v8, %d, v8" % WO)
    stamp(a, 3)
    lds_spin(a, "L_sp_xs", 3, C_XS, 10, (1,), 2)
    a("s_setprio %d" % OPT["pr2"])
    stamp(a, 7)
    for i in range(11):
        a("ds_read_u16 v%d, v51 offset:%d" % (53 + i, 16 * i))
    a("s_waitcnt vmcnt(24)")
    for k in range(4):
        a("ds_read_b128 %s, v52 offset:%d" % (vr(32 + 4 * k, 4), 1024 * k))
    a("s_waitcnt lgkmcnt(4)")
    for i in range(11):
        a("v_lshlrev_b32 v%d, v2, v%d" % (53 + i, 53 + i))
    first = True
    for i in range(5):
        selector(a, 12, 53 + 6 + i, 40)
        for k in range(4):
            d = vr(16 + 4 * k, 4)
            a("s_waitcnt lgkmcnt(%d)" % (3 if i < 4 else 3 - k))
            a("v_mfma_f32_16x16x32_bf16 %s, %s, v[12:15], %s" % (d, vr(32 + 4 * k, 4), "0" if first else d))
            if i < 4:
                a("ds_read_b128 %s, v52 offset:%d" % (vr(32 + 4 * k, 4), 1024 * (4 * (i + 1) + k)))
        first = False
    stamp(a, 12)
    for i in range(6):
        selector(a, 12, 53 + i, 40)
        a("s_waitcnt vmcnt(%d)" % (4 * (5 - i)))
        for k in range(4):
            d = vr(16 + 4 * k, 4)
            a("v_mfma_f32_16x16x32_bf16 %s, %s, v[12:15], %s" % (d, vr(GW + 16 * i + 4 * k, 4), d))
    stamp(a, 11)
    for k in range(4):
        for r in range(4):
            a("ds_write_b32 v6, v%d offset:%d" % (16 + 4 * k + r, 1024 * k + 32 * r))
    lds_inc(a, 3, 10, C_RED)
    lds_spin(a, "L_sp_rd", 3, C_RED, 10, (4,), 0)
    for p in range(4):
        a("ds_read_b64 %s, v8 offset:%d" % (vr(16 + 4 * p, 2), 20480 * p))
        a("ds_read_b64 %s, v8 offset:%d" % (vr(18 + 4 * p, 2), 20480 * p + 2048))
    a("v_mov_b32 v34, s%d" % TAG)
    a("v_mov_b32 v38, s%d" % TAG)
    a("s_waitcnt lgkmcnt(0)")
    lds_inc(a, 3, 10, C_RED2)
    for p in (2, 1):
        for h in range(2 * p):
            a("v_pk_add_f32 %s, %s, %s" % (vr(16 + 2 * h, 2), vr(16 + 2 * h, 2), vr(16 + 4 * p + 2 * h, 2)))
    a("v_mov_b32 v32, v16")
    a("v_mov_b32 v33, v18")
    a("v_mov_b32 v36, v17")
    a("v_mov_b32 v37, v19")
    a("s_cmp_eq_u32 s36, 63")
    a("s_cbranch_scc1 L_sp_nost")
    a("global_store_dwordx4 v9, v[32:35], s[8:9] sc1")
    a("global_store_dwordx4 v9, v[36:39], s[8:9] offset:16 sc1")
    a.label("L_sp_nost")
    stamp(a, 4)
    lds_spin(a, "L_sp_r2", 3, C_RED2, 10, (4,), 0)
    a("s_branch L_help2")


def attn_loop(a):
    for i in range(9):
        a.label("L_it%d" % i)
        S, P = SS[i & 1], PP[i & 1]
        ex = ["v_exp_f32 v%d, v%d" % (S + r, S + r) for r in range(16)]
        cv = ["v_cvt_pk_bf16_f32 v%d, v%d, v%d" % (P + q, S + 2 * q, S + 2 * q + 1) for q in range(8)]
        if i == 0:
            mk = ["v_bfi_b32 v%d, v%d, 0, v%d" % (P + q, MSK + q, P + q) for q in range(8)]
        elif i == 8:
            mk = ["v_and_b32 v%d, v%d, v%d" % (P + q, MSK + q, P + q) for q in range(8)]
        else:
            mk = []
        m1 = qk(i + 1) if i < 8 else []
        m2 = pv(i - 1, i == 1) if i > 0 else []
        a("s_waitcnt lgkmcnt(%d)" % (4 if 0 < i < 8 else 0))
        seq = m1[:1] + ex[0:4] + m1[1:] + (k_reads(i + 2) if i + 2 <= 8 else []) + ex[4:8] + cv[0:2] + m2[:1] + \
            ex[8:12] + cv[2:4] + m2[1:]
        if i + 1 <= 8:
            seq += ["v_add_u32 v%d, v%d, v%d" % (vV, vV, vStep)] + v_reads(i + 1)
        seq += ex[12:16] + cv[4:8] + mk
        for x in seq:
            a(x)
    a("s_waitcnt lgkmcnt(0)")
    for x in pv(8, False):
        a(x)


def attention_phase(a):
    a.label("L_att")
    decode2(a)
    a("s_mul_i32 s33, s31, %d" % L.PAIR_BYTES)
    a("s_mul_i32 s34, s32, 9216")
    a("s_add_u32 s33, s33, s34")
    a("v_mov_b32 v%d, %d" % (vC, CTL))
    KS, VS = 16 * L.PAIR_BYTES - 18432, 32 * L.PAIR_BYTES - 18432
    grp = [(QB, 0), (KB, KS), (VB, VS), (KB + 9216, KS + 9216), (VB + 9216, VS + 9216), (KB + 18432, KS + 18432), (VB + 18432, VS + 18432)]
    a("s_lshl_b32 s34, s3, 10")
    for j in range(8):
        lo, hi = (8 * j) // 9, min(8 * j + 7, 62) // 9
        l0, g0 = grp[lo][0] + (8 * j - 9 * lo) * 1024, grp[lo][1] + (8 * j - 9 * lo) * 1024
        l1, g1 = grp[hi][0] + (8 * j - 9 * hi) * 1024, grp[hi][1] + (8 * j - 9 * hi) * 1024
        if j == 7:
            a("s_min_u32 s34, s34, %d" % (6 * 1024))
        if lo == hi:
            a("s_add_u32 s%d, s34, %d" % (16 + j, l0))
            a("s_add_u32 s%d, s33, %d" % (44 + j, g0 - l0 & 0xffffffff))
        else:
            a("s_mov_b32 s35, %d" % l0)
            a("s_mov_b32 s36, %d" % (g0 - l0 & 0xffffffff))
            a("s_cmp_ge_u32 s3, %d" % (9 * hi - 8 * j))
            a("s_cselect_b32 s35, %d, s35" % (l1 & 0xffffffff))
            a("s_cselect_b32 s36, %d, s36" % (g1 - l1 & 0xffffffff))
            a("s_add_u32 s%d, s34, s35" % (16 + j))
            a("s_add_u32 s%d, s33, s36" % (44 + j))
        a("s_add_u32 s%d, s%d, s%d" % (44 + j, 44 + j, 16 + j))
    a("v_mov_b32 v10, s63")
    a("v_mov_b32 v11, s%d" % TAG)
    a("s_waitcnt vmcnt(0)")
    lds_inc(a, vC, 9, C_1, rtn=True)
    a("s_cmp_lg_u32 s63, 0")
    a("s_cselect_b32 s35, 7, 99")
    a("s_waitcnt lgkmcnt(0)")
    a("v_readfirstlane_b32 s36, v9")
    a("s_cmp_eq_u32 s36, s35")
    a("s_cbranch_scc0 L_nofl1")
    a("s_mov_b64 exec, 1")
    a("global_store_dword v10, v11, s[8:9] sc1")
    a("s_mov_b64 exec, -1")
    a.label("L_nofl1")
    stamp(a, 4)
    a("s_and_b32 s42, s3, 1")
    a("s_lshr_b32 s43, s3, 1")
    a("s_mul_i32 s35, s43, 2304")
    a("s_mul_i32 s36, s42, 40")
    a("v_and_b32 v%d, 31, v0" % T)
    a("v_lshrrev_b32 v%d, 5, v0" % (T + 1))
    a("v_mul_u32_u24 v%d, 72, v%d" % (vKt, T))
    a("v_add_u32 v%d, s35, v%d" % (vKt, vKt))
    a("v_lshl_add_u32 v%d, v%d, 4, v%d" % (vK, T + 1, vKt))
    a("v_add_u32 v%d, s36, v%d" % (vK, vK))
    a("v_add_u32 v%d, 32, v%d" % (vKt, vKt))
    a("v_bfe_u32 v%d, v0, 2, 2" % (T + 2))
    a("v_lshl_add_u32 v%d, v%d, 2, v%d" % (T + 2, T + 1, T + 2))
    a("v_mul_u32_u24 v%d, 72, v%d" % (T + 2, T + 2))
    a("s_add_u32 s37, s35, %d" % VB)
    a("v_add_u32 v%d, s37, v%d" % (T + 2, T + 2))
    a("v_and_b32 v%d, 3, v0" % (T + 3))
    a("v_lshlrev_b32 v%d, 3, v%d" % (T + 4, T + 3))
    a("v_add_u32 v%d, s36, v%d" % (T + 4, T + 4))
    a("v_and_b32 v%d, 16, v0" % (T + 5))
    a("v_cmp_eq_u32 s[38:39], 0, v%d" % (T + 5))
    a("v_cndmask_b32 v%d, 32, v%d, s[38:39]" % (T + 4, T + 4))
    a("v_add_u32 v%d, v%d, v%d" % (vV, T + 2, T + 4))
    a("v_and_b32 v%d, 19, v0" % (T + 5))
    a("v_cmp_lt_u32 s[38:39], 16, v%d" % (T + 5))
    a("v_mov_b32 v%d, %d" % (T + 6, ONES))
    a("v_cndmask_b32 v%d, v%d, v%d, s[38:39]" % (vV, vV, T + 6))
    a("v_mov_b32 v%d, 2304" % (T + 6))
    a("v_cndmask_b32 v%d, v%d, 0, s[38:39]" % (vStep, T + 6))
    a("v_lshlrev_b32 v%d, 2, v%d" % (T + 2, T + 1))
    a("v_sub_u32 v%d, v%d, v%d" % (T + 2, T, T + 2))
    a("v_mov_b32 v%d, 0xffff" % (T + 3))
    for q in range(8):
        kl = 8 * (q >> 1) + 2 * (q & 1)
        a("v_cmp_le_i32 s[38:39], %d, v%d" % (kl, T + 2))
        a("v_cmp_le_i32 s[40:41], %d, v%d" % (kl + 1, T + 2))
        a("v_cndmask_b32 v%d, 0, v%d, s[38:39]" % (MSK + q, T + 3))
        a("v_cndmask_b32 v%d, v%d, -1, s[40:41]" % (MSK + q, MSK + q))
    a("s_lshl_b32 s41, s32, 2")
    a("s_add_u32 s41, s41, s43")
    a("s_sub_i32 s41, 8, s41")
    a("s_lshl_b32 s35, s32, 3")
    a("s_lshl_b32 s36, s43, 1")
    a("s_add_u32 s35, s35, s36")
    a("s_mul_i32 s35, s35, 18432")
    a("s_lshl_b32 s58, s31, 10")
    a("s_lshl_b32 s36, s42, 9")
    a("s_add_u32 s58, s58, s36")
    a("s_add_u32 s58, s58, s35")
    a("s_lshr_b32 s59, s31, 1")
    a("s_lshl_b32 s59, s59, 8")
    a("s_and_b32 s36, s31, 1")
    a("s_lshl_b32 s36, s36, 3")
    a("s_add_u32 s59, s59, s36")
    a("s_lshl_b32 s36, s42, 2")
    a("s_add_u32 s59, s59, s36")
    a("s_add_u32 s59, s59, s35")
    a("s_add_u32 s59, s59, 16384")
    a("v_bfe_u32 v152, v0, 4, 1")
    a("v_mul_u32_u24 v152, 18432, v152")
    a("v_and_b32 v153, 15, v0")
    a("v_lshl_add_u32 v152, v153, 4, v152")
    a("v_lshrrev_b32 v153, 5, v0")
    a("v_lshl_add_u32 v153, v153, 8, v152")
    a("v_cmp_gt_u32 vcc, 32, v0")
    a("s_cmp_eq_u32 s42, 0")
    a("s_cselect_b64 s[54:55], vcc, 0")
    a("s_cselect_b64 s[56:57], 0, vcc")
    a("v_and_b32 v%d, 3, v0" % (T + 2))
    a("v_mul_u32_u24 v%d, 576, v%d" % (T + 2, T + 2))
    a("v_mov_b32 v%d, 0x3f803f80" % (T + 4))
    a("v_mov_b32 v%d, v%d" % (T + 5, T + 4))
    a("v_lshlrev_b32 v%d, 4, v0" % (T + 3))
    srd(a, 36, 8, L.QKV_BYTES)
    srd_off(a, 24, 8, L.WS_O, 128 * 18432)
    a("s_add_u32 s40, s3, 2")
    a("s_cmp_lt_u32 s3, 4")
    a("s_cselect_b32 s40, s3, s40")
    out_setup(a, 40)
    a("s_lshr_b32 s35, s2, 6")
    a("s_lshl_b32 s35, s35, 4")
    a("s_add_u32 s35, s35, s3")
    a("s_cmp_eq_u32 s35, %d" % (3 * 16 + 6))
    a("s_cbranch_scc0 L_nq2")
    lds_spin(a, "L_sp_x6", vC, C_XS, T + 8, (1,), 8)
    qpoll(a, vC, "L_qp2", False, T + 8)
    a.label("L_nq2")
    lds_spin(a, "L_go1", vC, C_1, T, (8, 1), OPT["g1s"])
    stamp(a, 5)
    for j in range(8):
        a("s_mov_b32 m0, s%d" % (16 + j))
        a("s_nop 0")
        a("buffer_load_dwordx4 v%d, s[36:39], s%d offen %s lds" % (T + 3, 44 + j, OPT["kvl"]))
    a("ds_write_b64 v%d, %s offset:%d" % (T + 2, vr(T + 4, 2), ONES))
    a("s_cmp_lt_u32 s32, 2")
    a("s_cbranch_scc1 L_late")
    landed(a, 1, 0)
    stage_spin(a, "L_sA", 0)
    stamp(a, 6)
    for x in q_reads() + k_reads(0) + k_reads(1) + v_reads(0):
        a(x)
    a("s_waitcnt lgkmcnt(7)")
    a("v_cndmask_b32 v%d, 0, v%d, s[54:55]" % (QT, QT))
    a("v_cndmask_b32 v%d, 0, v%d, s[56:57]" % (QT + 1, QT + 1))
    for x in qk(0):
        a(x)
    lds_inc(a, vC, T, C_B)
    x_loads(a)
    attn_loop(a)
    a.label("L_check")
    stamp(a, 7)
    a("s_mov_b32 s46, %s" % f32(2.0 ** 60))
    a("s_mov_b32 s47, %s" % f32(2.0 ** -60))
    a("s_mov_b32 s48, 0x7f800000")
    lds_spin(a, "L_pz", vC, C_C, T, (1,), 0)
    a("s_nop 3")
    a("v_rcp_f32 v%d, v%d" % (T, OO + 12))
    a("v_cmp_gt_f32 s[50:51], s46, v%d" % (OO + 12))
    a("v_cmp_lt_f32 vcc, s47, v%d" % (OO + 12))
    for k in range(6):
        a("v_add_f32 v%d, abs(v%d), abs(v%d)" % (T + 2 + k, OO + 2 * k, OO + 2 * k + 1))
    a("s_and_b64 s[50:51], s[50:51], vcc")
    a("v_pk_add_f32 %s, %s, %s" % (vr(T + 2, 2), vr(T + 2, 2), vr(T + 4, 2)))
    a("v_pk_add_f32 %s, %s, %s" % (vr(T + 2, 2), vr(T + 2, 2), vr(T + 6, 2)))
    a("v_add_f32 v%d, v%d, v%d" % (T + 2, T + 2, T + 3))
    a("v_cmp_gt_f32 vcc, s48, v%d" % (T + 2))
    a("s_and_b64 s[50:51], s[50:51], vcc")
    a("s_cmp_eq_u64 s[50:51], -1")
    a("s_cbranch_scc0 L_slow")
    a.label("L_fin")
    a("s_cmp_eq_u32 s42, 0")
    a("s_cbranch_scc1 L_fa")
    a("v_mov_b32 v%d, v%d" % (OO + 8, OO + 10))
    a("v_mov_b32 v%d, v%d" % (OO + 9, OO + 11))
    a.label("L_fa")
    for k in range(0, 10, 2):
        a("v_pk_mul_f32 %s, %s, %s op_sel_hi:[1,0]" % (vr(OO + k, 2), vr(OO + k, 2), vr(T, 2)))
    for q in range(5):
        a("v_cvt_pk_bf16_f32 v%d, v%d, v%d" % (T + 4 + q, OO + 2 * q, OO + 2 * q + 1))
    a("buffer_store_dwordx4 %s, v153, s[24:27], s58 offen sc1" % vr(T + 4, 4))
    a("s_mov_b32 exec_hi, 0")
    a("buffer_store_dword v%d, v152, s[24:27], s59 offen sc1" % (T + 8))
    a("s_mov_b32 exec_hi, -1")


def q_reads():
    return ["ds_read_b64 %s, v%d offset:%d" % (vr(QM, 2), vK, QB),
            "ds_read_b64 %s, v%d offset:%d" % (vr(QM + 2, 2), vK, QB + 8),
            "ds_read_b64 %s, v%d offset:%d" % (vr(QT, 2), vKt, QB)]


sKH, sPAIR, sTILE, sGATE, sSLOT, sOB, sXO = 6, 7, 13, 14, 15, 28, 29
A0, vXO, vRW, vCH, vSW, vSR, vL16, vPX, vPF = 156, 142, 140, 141, 143, 144, 162, 160, 161
GB = 154624


def out_setup(a, role):
    a("s_and_b32 s%d, s%d, 1" % (sKH, role))
    a("s_lshr_b32 s%d, s%d, 1" % (sPAIR, role))
    a("s_mul_i32 s%d, s52, 5" % sTILE)
    a("s_and_b32 s33, s%d, 7" % sTILE)
    a("s_sub_u32 s34, 8, s33")
    a("s_cmp_lt_u32 s33, 4")
    a("s_cselect_b32 s34, 0, s34")
    a("s_add_u32 s34, s34, s%d" % sPAIR)
    a("s_sub_u32 s35, s34, 5")
    a("s_cmp_ge_u32 s34, 5")
    a("s_cselect_b32 s34, s35, s34")
    a("s_add_u32 s%d, s%d, s34" % (sTILE, sTILE))
    a("s_lshl_b32 s98, s34, 6")
    a("s_mov_b32 s%d, 0x404" % sGATE)
    a("s_bitcmp1_b32 s%d, 2" % sTILE)
    a("s_cselect_b32 s%d, s%d, 4" % (sGATE, sGATE))
    a("s_mov_b32 s%d, %d" % (sSLOT, PSLOT[0]))
    for p in range(1, 5):
        a("s_cmp_eq_u32 s%d, %d" % (sPAIR, p))
        a("s_cselect_b32 s%d, %d, s%d" % (sSLOT, PSLOT[p], sSLOT))
    a("s_mul_i32 s%d, s%d, 18432" % (sOB, sTILE))
    a("s_lshl_b32 s33, s53, 7")
    a("s_add_u32 s%d, s%d, s33" % (sXO, sOB))
    a("s_mul_i32 s33, s%d, 9216" % sKH)
    a("s_add_u32 s%d, s%d, s33" % (sOB, sOB))
    a("s_add_u32 s96, s%d, 4096" % sOB)
    a("s_add_u32 s97, s%d, 8192" % sOB)
    a("s_add_u32 s99, s%d, %d" % (sXO, 8 * 1152))
    a("v_lshrrev_b32 v%d, 3, v0" % vRW)
    a("v_and_b32 v%d, 7, v0" % vCH)
    a("v_mul_u32_u24 v%d, 1152, v%d" % (vXO, vRW))
    a("v_lshl_add_u32 v%d, v%d, 4, v%d" % (vXO, vCH, vXO))
    a("v_lshrrev_b32 v146, 2, v0")
    a("v_bfe_u32 v147, v0, 3, 2")
    a("v_lshlrev_b32 v147, 1, v147")
    a("v_bfe_u32 v148, v0, 1, 1")
    a("v_xor_b32 v147, v147, v148")
    a("v_and_b32 v148, 1, v0")
    a("v_lshlrev_b32 v148, 3, v148")
    a("v_lshl_add_u32 v148, v146, 7, v148")
    a("v_lshl_add_u32 v148, v147, 4, v148")
    a("s_mul_i32 s33, s%d, %d" % (sKH, 9 * 4096))
    a("s_add_u32 s33, s33, %d" % WO)
    for t in range(4):
        a("v_xor_b32 v%d, %d, v148" % (A0 + t, 32 * t))
        a("v_add_u32 v%d, s33, v%d" % (A0 + t, A0 + t))
    a("v_lshlrev_b32 v%d, 4, v0" % vL16)
    a("v_add_u32 v%d, s%d, v%d" % (vPX, sSLOT, vL16))
    a("s_lshl_b32 s33, s%d, 2" % sPAIR)
    a("s_add_u32 s33, s33, %d" % CTL)
    a("v_mov_b32 v%d, s33" % vPF)
    a("v_and_b32 v%d, 15, v0" % vSW)
    a("v_mul_u32_u24 v%d, 144, v%d" % (vSW, vSW))
    a("v_lshrrev_b32 v146, 4, v0")
    a("v_lshlrev_b32 v146, 3, v146")
    a("v_add3_u32 v%d, v%d, v146, s%d" % (vSW, vSW, sSLOT))
    a("v_mul_u32_u24 v%d, 144, v%d" % (vSR, vRW))
    a("v_lshl_add_u32 v%d, v%d, 4, v%d" % (vSR, vCH, vSR))
    a("v_add_u32 v%d, s%d, v%d" % (vSR, sSLOT, vSR))
    a("s_add_u32 s98, s98, %d" % GB)
    a("v_lshl_add_u32 v145, v%d, 2, s98" % vRW)
    a("s_cmp_lt_u32 s3, 4")
    a("s_cselect_b32 s33, 1, 0x100")
    a("v_mov_b32 v163, s33")


def x_loads(a):
    srd(a, 20, 4, 2048 * 1152)
    a("buffer_load_dwordx4 %s, v%d, s[20:23], s%d offen" % (vr(XR, 4), vXO, sXO))
    a("buffer_load_dwordx4 %s, v%d, s[20:23], s99 offen" % (vr(XR + 4, 4), vXO))


def out_phase(a):
    WFR, OF, ACC, PX = (20, 36, 100), 64, (52, 56, 60, 116), (146, 120)
    a("s_cmp_ge_u32 s52, 26")
    a("s_cbranch_scc1 L_end")
    if not OPT["gissue"]:
        a("s_waitcnt vmcnt(0)")
    stamp(a, 8)
    a("s_mov_b64 exec, 1")
    a("ds_add_u32 v%d, v163 offset:%d" % (vC, C_O))
    a("s_mov_b64 exec, -1")
    a.label("L_out")

    def omx():
        for j in range(2):
            for q in range(4):
                xv = XR + 4 * j + q
                d = PX[j] + 2 * q
                a("v_lshlrev_b32 v%d, 16, v%d" % (d, xv))
                a("v_and_b32 v%d, 0xffff0000, v%d" % (d + 1, xv))
                a("v_pk_mul_f32 %s, %s, %s op_sel:[0,1] op_sel_hi:[1,1]" % (vr(d, 2), vr(d, 2), vr(GR + 2 * j, 2)))

    def reads(sl):
        st = WFR[sl % 3]
        return ["ds_read_b64_tr_b16 %s, v%d offset:%d" % (vr(st + 4 * t + 2 * sec, 2), A0 + t, (32 * sl + 16 * sec) * 128)
                for t in range(4) for sec in range(2)]

    lds_spin(a, "L_wo", vC, C_WO, 10, (2,), 0)
    for x in reads(0) + reads(1):
        a(x)
    a("s_mov_b32 s60, 0x200000")
    a.label("L_go2")
    a("ds_read_b64 v[10:11], v%d offset:%d" % (vC, C_O))
    a("s_waitcnt lgkmcnt(0)")
    a("v_readfirstlane_b32 s61, v10")
    a("v_readfirstlane_b32 s62, v11")
    a("s_and_b32 s61, s61, s%d" % sGATE)
    a("s_cmp_eq_u32 s61, s%d" % sGATE)
    a("s_cselect_b32 s62, s62, 0")
    a("s_cmp_eq_u32 s62, 1")
    a("s_cbranch_scc1 L_go2_d")
    a("s_sub_u32 s60, s60, 1")
    a("s_cbranch_scc0 L_go2")
    a.label("L_go2_d")
    if OPT["cdel"]:
        a("s_sleep %d" % OPT["cdel"])
    stamp(a, 9)
    LAO = OPT["lao"]

    def oload(s):
        a("buffer_load_dwordx4 %s, v%d, s[24:27], s%d offen offset:%d sc1" % (vr(OF + 4 * s, 4), vL16, (sOB, 96, 97)[s // 4], 1024 * (s % 4)))

    def ocheck(sl):
        b = OF + 4 * sl
        if sl < 7:
            a("v_cmp_eq_u32 vcc, -1, v%d" % b)
        else:
            a("v_max3_u32 v10, v%d, v%d, v%d" % (b, b + 1, b + 2))
            a("v_max_u32 v10, v10, v%d" % (b + 3))
            a("v_cmp_eq_u32 vcc, -1, v10")
        a("s_nop 1")

    def oretry():
        for sl in range(9):
            a.label("L_or%d" % sl)
            a("s_sub_u32 s60, s60, 1")
            a("s_cbranch_scc1 L_ok%d" % sl)
            a("s_waitcnt vmcnt(0)")
            for s in range(sl, min(sl + LAO, 9)):
                oload(s)
            a("s_waitcnt vmcnt(%d)" % min(LAO - 1, 8 - sl))
            a("s_branch L_oc%d" % sl)

    RETRY.append(oretry)
    a("s_mov_b32 s60, 0x8000")
    for s in range(LAO):
        oload(s)
    a("ds_read_b32 v%d, v145" % GR)
    a("ds_read_b32 v%d, v145 offset:32" % (GR + 2))
    a("ds_read_b32 v10, v%d offset:%d" % (vC, C_IDX))
    srd(a, 20, 10, 2048 * 1152)
    a("s_waitcnt lgkmcnt(0) vmcnt(%d)" % LAO)
    a("v_readfirstlane_b32 s12, v10")
    for j in range(2):
        a("v_sub_f32 v%d, 1.0, v%d" % (GR + 2 * j + 1, GR + 2 * j))
        bf16_round(a, GR + 2 * j + 1, GR + 2 * j + 1)
    omx()
    for sl in range(9):
        rd = reads(sl + 2) if sl < 7 else []
        a("s_waitcnt vmcnt(%d) lgkmcnt(%d)" % (min(LAO - 1, 8 - sl), 8 if sl < 8 else 0))
        a.label("L_oc%d" % sl)
        ocheck(sl)
        a("s_cbranch_vccnz L_or%d" % sl)
        a.label("L_ok%d" % sl)
        for t in range(4):
            d = vr(ACC[t], 4)
            a("v_mfma_f32_16x16x32_bf16 %s, %s, %s, %s" % (d, vr(WFR[sl % 3] + 4 * t, 4), vr(OF + 4 * sl, 4), "0" if sl == 0 else d))
            if t == 0 and sl + LAO < 9:
                oload(sl + LAO)
            for x in rd[2 * t:2 * t + 2]:
                a(x)
    stamp(a, 10)
    a("s_cmp_eq_u32 s%d, 0" % sKH)
    a("s_cbranch_scc1 L_k0")
    a("v_mov_b32 v10, 1")
    for t in range(4):
        a("ds_write_b128 v%d, %s offset:%d" % (vPX, vr(ACC[t], 4), 1024 * t))
    a("ds_write_b32 v%d, v10 offset:%d" % (vPF, C_PART))
    stamp_end(a, OPT["stw"], 0)
    stamp_end(a, 10, 2)
    a("s_endpgm")
    a.label("L_k0")
    a("s_lshr_b32 s46, s12, 4")
    a("s_cmp_eq_u32 s46, s%d" % sTILE)
    a("s_cbranch_scc0 L_noy")
    lds_spin(a, "L_yw", vC, C_YRDY, 10, (1,))
    a("v_lshlrev_b32 v10, 5, v%d" % vCH)
    a("v_add_u32 v10, %d, v10" % YB)
    a("ds_read_b128 v[12:15], v10")
    a("ds_read_b128 v[16:19], v10 offset:16")
    a("s_and_b32 s46, s12, 15")
    a("s_waitcnt lgkmcnt(0)")
    for j in range(2):
        a("v_add_u32 v10, %d, v%d" % (8 * j, vRW))
        a("v_cmp_eq_u32 s[50:51], s46, v10")
        for q in range(4):
            xv = XR + 4 * j + q
            a("v_lshlrev_b32 v10, 16, v%d" % xv)
            a("v_and_b32 v11, 0xffff0000, v%d" % xv)
            a("v_add_f32 v10, v10, v%d" % (12 + 2 * q))
            a("v_add_f32 v11, v11, v%d" % (13 + 2 * q))
            a("v_cvt_pk_bf16_f32 v10, v10, v11")
            a("v_cndmask_b32 v%d, v%d, v10, s[50:51]" % (xv, xv))
    omx()
    a.label("L_noy")
    lds_spin(a, "L_pw", vPF, C_PART, 10, (1,), 0)
    stamp(a, 11)
    for t in range(4):
        a("ds_read_b128 %s, v%d offset:%d" % (vr(20 + 4 * t, 4), vPX, 1024 * t))
    a("s_waitcnt lgkmcnt(0)")
    for t in range(4):
        b = ACC[t]
        a("v_pk_add_f32 %s, %s, %s" % (vr(b, 2), vr(b, 2), vr(20 + 4 * t, 2)))
        a("v_pk_add_f32 %s, %s, %s" % (vr(b + 2, 2), vr(b + 2, 2), vr(22 + 4 * t, 2)))
        a("v_cvt_pk_bf16_f32 v%d, v%d, v%d" % (40 + 2 * t, b, b + 1))
        a("v_cvt_pk_bf16_f32 v%d, v%d, v%d" % (41 + 2 * t, b + 2, b + 3))
        a("ds_write_b64 v%d, %s offset:%d" % (vSW, vr(40 + 2 * t, 2), 32 * t))
    for j in range(2):
        a("ds_read_b128 %s, v%d offset:%d" % (vr(20 + 4 * j, 4), vSR, 8 * 144 * j))
    for j in range(2):
        a("s_waitcnt lgkmcnt(%d)" % (1 - j))
        for q in range(4):
            av = 20 + 4 * j + q
            d = PX[j] + 2 * q
            a("v_lshlrev_b32 v10, 16, v%d" % av)
            a("v_and_b32 v11, 0xffff0000, v%d" % av)
            a("v_pk_fma_f32 %s, v[10:11], %s, %s op_sel_hi:[1,0,1]" % (vr(d, 2), vr(GR + 2 * j, 2), vr(d, 2)))
            a("v_cvt_pk_bf16_f32 v%d, v%d, v%d" % (32 + 4 * j + q, d, d + 1))
        a("buffer_store_dwordx4 %s, v%d, s[20:23], s%d offen %s" % (vr(32 + 4 * j, 4), vXO, (sXO, 99)[j], OPT["ost"]))
    if OPT["stamp"]:
        stamp(a, 12)
        a("s_waitcnt vmcnt(0)")
        stamp(a, 13)
        stamp_end(a, OPT["stw"], 0)
    a("s_endpgm")


RETRY = []
GLATE = []


def late_and_slow(a):
    RETRY[0]()
    a.label("L_late")
    a("s_mul_i32 s50, s41, 2304")
    a("v_add_u32 v%d, s50, v%d" % (T + 8, vK))
    a("v_add_u32 v%d, s50, v%d" % (T + 9, vKt))
    a("v_mul_u32_u24 v%d, s41, v%d" % (T + 2, vStep))
    a("v_add_u32 v%d, v%d, v%d" % (vV, vV, T + 2))
    for r in list(range(OO, OO + 16)) + list(range(VF[0], VF[0] + 32)):
        a("v_mov_b32 v%d, 0" % r)
    landed(a, 1, 0)
    stage_spin(a, "L_lt", 0)
    for x in q_reads():
        a(x)
    a("s_waitcnt lgkmcnt(0)")
    lds_inc(a, vC, T, C_B)
    x_loads(a)
    a("s_bitcmp1_b32 s41, 0")
    a("s_cbranch_scc1 L_late1")
    for par in range(2):
        if par:
            a.label("L_late1")
        for x in k_reads(par, T + 8, T + 9, 0):
            a(x)
        for x in k_reads(par + 1, T + 8, T + 9, 0):
            a(x.replace("offset:8", "offset:2312").replace("offset:0", "offset:2304"))
        for x in v_reads(par):
            a(x)
        a("s_waitcnt lgkmcnt(7)")
        a("v_cndmask_b32 v%d, 0, v%d, s[54:55]" % (QT, QT))
        a("v_cndmask_b32 v%d, 0, v%d, s[56:57]" % (QT + 1, QT + 1))
        for x in qk(par):
            a(x)
        a("s_nop 7")
        a("s_nop 3")
        for i0 in range(2 - par, 9, 2):
            a("s_cmp_eq_u32 s41, %d" % i0)
            a("s_cbranch_scc1 L_it%d" % i0)
        a("s_branch L_it%d" % (8 - par))

    a.label("L_slow")
    vKs, vKts, vM, vD0, vNeg = T + 8, T + 9, T + 10, T + 11, T + 12
    a("v_and_b32 v%d, 31, v0" % T)
    a("v_lshrrev_b32 v%d, 5, v0" % (T + 1))
    a("v_lshlrev_b32 v%d, 2, v%d" % (vD0, T + 1))
    a("v_sub_u32 v%d, v%d, v%d" % (vD0, vD0, T))
    a("v_mov_b32 v%d, 0xff800000" % vNeg)
    a("v_mov_b32 v%d, v%d" % (vM, vNeg))
    a("s_max_i32 s50, s41, 0")
    a("s_sub_u32 s51, 8, s50")
    a("v_mul_u32_u24 v%d, s51, v%d" % (T, vStep))
    a("v_sub_u32 v%d, v%d, v%d" % (vV, vV, T))
    a("s_mul_i32 s51, s50, 2304")
    for r in range(16):
        a("v_mov_b32 v%d, 0" % (OO + r))
    for ps in range(2):
        lab = "L_sp%d" % ps
        a("v_add_u32 v%d, s51, v%d" % (vKs, vK))
        a("v_add_u32 v%d, s51, v%d" % (vKts, vKt))
        a("s_mov_b32 s46, s50")
        a.label(lab)
        for x in k_reads(0, vKs, vKts):
            a(x)
        if ps == 1:
            for x in v_reads(0):
                a(x)
        a("s_mov_b32 s47, -31")
        a("s_mov_b32 s48, 62")
        a("s_cmp_eq_u32 s46, 0")
        a("s_cselect_b32 s47, 1, s47")
        a("s_cselect_b32 s48, 30, s48")
        a("s_cmp_eq_u32 s46, 8")
        a("s_cselect_b32 s48, 31, s48")
        a("s_waitcnt lgkmcnt(0)")
        for x in qk(0):
            a(x)
        a("v_subrev_u32 v%d, s47, v%d" % (T, vD0))
        for r in range(16):
            a("v_add_u32 v%d, %d, v%d" % (T + 1, 8 * (r >> 2) + (r & 3), T))
            a("v_cmp_ge_u32 vcc, s48, v%d" % (T + 1))
            a("v_cndmask_b32 v%d, v%d, v%d, vcc" % (SS[0] + r, vNeg, SS[0] + r))
            if ps == 0:
                a("v_max_f32 v%d, v%d, v%d" % (vM, vM, SS[0] + r))
            else:
                a("v_sub_f32 v%d, v%d, v%d" % (SS[0] + r, SS[0] + r, vM))
                a("v_exp_f32 v%d, v%d" % (SS[0] + r, SS[0] + r))
        if ps == 1:
            for q in range(8):
                a("v_cvt_pk_bf16_f32 v%d, v%d, v%d" % (PP[0] + q, SS[0] + 2 * q, SS[0] + 2 * q + 1))
            for x in pv(0, False):
                a(x)
            a("v_add_u32 v%d, v%d, v%d" % (vV, vV, vStep))
        a("v_add_u32 v%d, 2304, v%d" % (vKs, vKs))
        a("v_add_u32 v%d, 2304, v%d" % (vKts, vKts))
        a("s_add_u32 s46, s46, 1")
        a("s_cmp_lt_u32 s46, 9")
        a("s_nop 7")
        a("s_nop 7")
        a("s_cbranch_scc1 %s" % lab)
        if ps == 0:
            a("v_mov_b32 v%d, v%d" % (T, vM))
            a("v_permlane32_swap_b32 v%d, v%d" % (T, vM))
            a("v_max_f32 v%d, v%d, v%d" % (vM, vM, T))
    a("v_rcp_f32 v%d, v%d" % (T, OO + 12))
    a("s_nop 1")
    a("s_branch L_fin")


def helpers(a):
    a.label("L_help")
    a("s_cmp_eq_u32 s3, 9")
    a("s_cbranch_scc0 L_help1")
    code_touch(a)
    a.label("L_help1")
    a("v_mov_b32 v3, %d" % CTL)
    for k in range(4):
        a("v_mov_b32 v%d, 0" % (4 + k))
    a("v_lshlrev_b32 v1, 4, v0")
    a("v_add_u32 v2, v1, v3")
    a("s_mov_b64 exec, 0xff")
    a("ds_write_b128 v2, v[4:7]")
    a("s_mov_b64 exec, -1")
    a("s_waitcnt lgkmcnt(0)")
    load_tag(a)
    a("s_barrier")
    a("s_barrier")
    a("s_waitcnt lgkmcnt(0)")
    make_tag(a)
    a.label("L_help2")
    decode2(a)
    a("s_cmp_eq_u32 s3, 8")
    a("s_cbranch_scc1 L_down")
    a("v_lshrrev_b32 v1, 5, v0")
    a("v_bfe_u32 v2, v0, 3, 2")
    a("v_lshrrev_b32 v10, 4, v0")
    a("v_lshlrev_b32 v10, 1, v10")
    a("v_and_b32 v11, 7, v0")
    a("v_xor_b32 v10, v10, v11")
    a("v_lshl_add_u32 v4, v1, 2, v2")
    a("v_mul_u32_u24 v4, 1152, v4")
    a("v_lshl_add_u32 v4, v10, 4, v4")
    a("v_mul_u32_u24 v5, 72, v1")
    a("v_add_u32 v5, v5, v2")
    a("v_mul_u32_u24 v5, 1152, v5")
    a("v_lshl_add_u32 v5, v10, 4, v5")
    a("s_sub_u32 s36, s3, 9")
    a("s_mul_i32 s37, s36, %d" % (20 * 1152))
    a("s_mul_i32 s43, s36, %d" % (144 * 1152))
    a("s_lshl_b32 s38, s36, 10")
    a("s_add_u32 s38, s38, %d" % WO)
    a("s_lshl_b32 s39, s53, 7")
    a("s_sub_u32 s42, %d, s39" % (576 * 1152))
    srd_off(a, 16, 28, "s39", "s42")
    srd_off(a, 24, 8, L.WS_O, 128 * 18432)
    a("v_mov_b32 v%d, %d" % (vC, CTL))
    a("s_sub_u32 s40, s3, 5")
    out_setup(a, 40)
    a("s_setprio %d" % OPT["pr3"])
    a("s_cmp_ge_u32 s2, 192")
    a("s_cbranch_scc1 L_wo_go")
    for k in range(9):
        a("s_barrier")
    a.label("L_wo_go")
    a("s_cmp_eq_u32 s3, 11")
    a("s_cbranch_scc1 L_ctl")
    a("s_cmp_ge_u32 s52, 26")
    a("s_cbranch_scc1 L_end")
    if OPT["woe"]:
        a("s_cmp_ge_u32 s2, 192")
        a("s_cbranch_scc1 L_wo_e_d")
        lds_spin(a, "L_wo_e", 3, C_FI, 10, (8,), 0)
    stamp(a, 5)
    for m in range(36):
        if m == OPT["woe"]:
            stage_spin(a, "L_wo_w", 0, 3, 10, 2)
        st, sec = m >> 1, m & 1
        a("s_add_u32 m0, s38, %d" % (2048 * m))
        if st < 16:
            a("s_add_u32 s40, s37, %d" % ((36 * st + 8 * sec) * 1152))
            a("buffer_load_dwordx4 v4, s[16:19], s40 offen lds")
        else:
            a("s_add_u32 s40, s43, %d" % ((288 * (st - 16) + 36 * sec + 16) * 1152))
            a("buffer_load_dwordx4 v5, s[16:19], s40 offen lds")
        if OPT["wth"] and m >= OPT["wth"] - 1:
            a("s_waitcnt vmcnt(%d)" % (OPT["wth"] - 1))
    x_loads(a)
    a("s_waitcnt vmcnt(2)")
    stamp(a, 6)
    lds_inc(a, 3, 4, C_WO)
    a("s_setprio 0")
    a("s_branch L_out")
    a.label("L_ctl")
    a("v_lshlrev_b32 v8, 7, v0")
    a("v_add_u32 v9, %d, v8" % (L.WS_FLAG + F_PA * 128))
    a("s_mul_i32 s46, s52, 5")
    a("s_lshr_b32 s46, s46, 3")
    a("s_min_u32 s46, s46, 14")
    a("s_lshl_b32 s46, s46, 11")
    a("s_add_u32 s46, s46, %d" % (L.WS_FLAG + F_O * 128))
    a("v_add_u32 v8, s46, v8")
    a("s_lshl_b32 s46, s32, 4")
    a("s_add_u32 s46, s46, s31")
    a("s_lshl_b32 s46, s46, 7")
    a("s_add_u32 s46, s46, %d" % (L.WS_FLAG + F_O * 128))
    a("v_mov_b32 v14, s46")
    a("v_mov_b32 v15, s%d" % TAG)
    a("s_cmp_ge_u32 s2, 192")
    a("s_cbranch_scc1 L_ct_0")
    qpoll(a, 3, "L_qp1", True)
    a.label("L_ct_0")
    AUXLATE = OPT["auxp"]
    def aux():
        flag_poll(a, "L_pap", 9, 4, "s%d" % TAG, 64, 8, 3)
        a("v_mov_b32 v10, v5")
        a("v_mov_b32 v11, v6")
        a("v_mov_b32 v4, 1")
        a("ds_write_b64 v3, v[10:11] offset:%d" % C_IDX)
        a("ds_write_b32 v3, v4 offset:%d" % C_PA)
        srd_off(a, 16, 8, L.WS_G, 8192)
        a("s_mul_i32 s40, s52, 320")
        a("v_lshlrev_b32 v4, 2, v0")
        a("buffer_load_dword v5, v4, s[16:19], s40 offen sc1")
        a("buffer_load_dword v6, v4, s[16:19], s40 offen offset:256 sc1")
        a("v_add_u32 v4, %d, v4" % GB)
        GLATE.append(1)
        stamp(a, 5)

    if not AUXLATE:
        aux()
    a("v_bfe_u32 v20, v0, 4, 1")
    a("v_mul_u32_u24 v20, 18432, v20")
    a("v_and_b32 v21, 15, v0")
    a("v_lshl_add_u32 v20, v21, 4, v20")
    a("v_lshrrev_b32 v21, 5, v0")
    a("v_lshl_add_u32 v22, v21, 2, v20")
    a("v_lshl_add_u32 v21, v21, 8, v20")
    for k in range(4):
        a("v_mov_b32 v%d, -1" % (24 + k))
    a("s_mul_i32 s54, s32, %d" % (8 * 18432))
    a("s_lshl_b32 s55, s31, 10")
    a("s_add_u32 s55, s55, s54")
    a("s_lshr_b32 s56, s31, 1")
    a("s_lshl_b32 s56, s56, 8")
    a("s_and_b32 s57, s31, 1")
    a("s_lshl_b32 s57, s57, 3")
    a("s_add_u32 s56, s56, s57")
    a("s_add_u32 s56, s56, s54")
    a("s_add_u32 s56, s56, 16384")
    stage_spin(a, "L_ct_p", 0, 3, 10, 0)
    for j in range(4):
        a("buffer_store_dword v24, v22, s[24:27], s56 offen sc1")
        a("buffer_store_dwordx4 v[24:27], v21, s[24:27], s55 offen sc1")
        a("buffer_store_dwordx4 v[24:27], v21, s[24:27], s55 offen offset:512 sc1")
        a("s_add_u32 s55, s55, %d" % (2 * 18432))
        a("s_add_u32 s56, s56, %d" % (2 * 18432))
    a("v_mov_b32 v4, 1")
    a("s_waitcnt vmcnt(0)")
    a("ds_write_b32 v3, v4 offset:%d" % C_C)
    a("s_mov_b64 exec, 1")
    a("global_store_dword v14, v15, s[8:9] sc1")
    a("s_mov_b64 exec, -1")
    stamp(a, 6)
    lds_spin(a, "L_ct_q", 3, C_B, 10, (8,), 1)
    if AUXLATE:
        aux()
    else:
        a("s_sleep %d" % OPT["slp3"])
    flag_poll(a, "L_op", 8, 12, "s%d" % TAG, 32, 2)
    a("ds_write_b32 v4, v5")
    a("ds_write_b32 v4, v6 offset:256")
    lds_inc(a, 3, 10, C_GO2)
    stamp(a, 7)
    stamp_end(a, 11 if OPT["st11"] else 99, 3)
    a("ds_read_b64 v[10:11], v3 offset:%d" % C_IDX)
    a("s_waitcnt lgkmcnt(0)")
    a("v_readfirstlane_b32 s12, v10")
    a("v_readfirstlane_b32 s13, v11")
    a("s_mul_i32 s46, s52, 80")
    a("s_sub_u32 s46, s12, s46")
    a("s_cmp_lt_u32 s46, 80")
    a("s_cbranch_scc0 L_end")
    a("v_lshlrev_b32 v4, 7, v0")
    a("v_add_u32 v4, %d, v4" % (L.WS_FLAG + F_Y * 128))
    srd_off(a, 16, 8, L.WS_YP, 16 * 2304)
    a("v_lshrrev_b32 v6, 4, v0")
    a("v_mul_u32_u24 v6, 2304, v6")
    a("v_and_b32 v7, 15, v0")
    a("v_lshlrev_b32 v7, 4, v7")
    a("v_add_u32 v6, v6, v7")
    a("v_add_u32 v7, %d, v7" % YB)
    a("s_lshl_b32 s40, s53, 8")
    flag_poll(a, "L_yp", 4, 5, "12", 16, 2)
    for i in range(4):
        a("buffer_load_dwordx4 %s, v6, s[16:19], s40 offen sc1" % vr(8 + 4 * i, 4))
        a("s_add_u32 s40, s40, %d" % (4 * 2304))
    a("s_waitcnt vmcnt(0)")
    for i in range(1, 4):
        a("v_pk_add_f32 v[8:9], v[8:9], %s" % vr(8 + 4 * i, 2))
        a("v_pk_add_f32 v[10:11], v[10:11], %s" % vr(10 + 4 * i, 2))
    for k in range(4):
        a("v_mov_b32 v20, v%d" % (8 + k))
        a("v_permlane32_swap_b32 v20, v%d" % (8 + k))
        a("v_add_f32 v%d, v%d, v20" % (8 + k, 8 + k))
        a("v_mov_b32 v20, v%d" % (8 + k))
        a("v_permlane16_swap_b32 v20, v%d" % (8 + k))
        a("v_add_f32 v%d, v%d, v20" % (8 + k, 8 + k))
        bf16_round(a, 8 + k, 8 + k)
        a("v_mul_f32 v%d, s13, v%d" % (8 + k, 8 + k))
        bf16_round(a, 8 + k, 8 + k)
    a("v_mov_b32 v12, 1")
    a("ds_write_b128 v7, v[8:11]")
    a("ds_write_b32 v3, v12 offset:%d" % C_YRDY)
    a("s_cmp_eq_u32 s53, 0")
    a("s_cbranch_scc0 L_end")
    a("v_mov_b32 v4, %d" % L.WS_EPOCH)
    a("v_mov_b32 v5, s%d" % TAG)
    a("s_mov_b64 exec, 1")
    a("global_store_dword v4, v5, s[8:9]")
    a("s_endpgm")

    a.label("L_down")
    a("s_cmp_ge_u32 s2, 192")
    a("s_cbranch_scc1 L_end")
    DW, DA = 20, 128
    a("v_lshrrev_b32 v2, 3, v0")
    a("v_and_b32 v10, 7, v0")
    a("v_mul_u32_u24 v16, 1152, v2")
    a("v_lshl_add_u32 v16, v10, 4, v16")
    a("s_mul_i32 s36, s2, 24")
    a("v_mul_u32_u24 v12, %d, v10" % (4608 * 16))
    a("v_add_u32 v11, s36, v2")
    a("v_lshl_add_u32 v17, v11, 4, v12")
    a("v_cmp_gt_u32 s[56:57], 7, v10")
    a("s_mul_i32 s37, s2, %d" % (24 * 1152))
    a("v_and_b32 v1, 1, v0")
    a("v_lshlrev_b32 v1, 4, v1")
    sel_masks(a, 44, 11)
    a("v_lshrrev_b32 v11, 5, v0")
    a("v_bfe_u32 v12, v0, 3, 1")
    a("v_cmp_eq_u32 s[52:53], v11, v12")
    a("v_mul_u32_u24 v12, 2304, v12")
    a("v_bfe_u32 v11, v0, 4, 1")
    a("v_lshl_add_u32 v12, v11, 7, v12")
    a("v_lshl_add_u32 v12, v10, 2, v12")
    a("v_add_u32 v164, %d, v12" % HP)
    a("v_lshlrev_b32 v165, 2, v0")
    a("v_add_u32 v166, %d, v165" % HP)
    a("s_and_b32 s38, s2, 15")
    a("s_mul_i32 s39, s38, 2304")
    a("s_add_u32 s39, s39, %d" % L.WS_YP)
    a("v_add_u32 v165, s39, v165")
    a("s_lshl_b32 s38, s38, 7")
    a("s_add_u32 s38, s38, %d" % (L.WS_FLAG + F_Y * 128))
    srd_off(a, 16, 14, "s37", 24 * 1152)
    srd_off(a, 20, 8, L.WS_PA, 7 * 4608 * 16)
    def dloads():
        for t in range(0 if OPT["nodown"] else 3):
            a("s_movk_i32 s40, %d" % (9216 * t))
            for cg in range(9):
                a("buffer_load_dwordx4 %s, v16, s[16:19], s40 offen offset:%d %s" % (vr(DW + 4 * (9 * t + cg), 4), 128 * cg, "" if OPT["dtouch"] else "nt"))

    for k in range(2, 11):
        if k == OPT["dpos"]:
            dloads()
        a("s_barrier")
    if OPT["w8e"]:
        lds_spin(a, "L_dn_w2", 3, C_1, 10, (8,), 2)
    else:
        stage_spin(a, "L_dn_w2", 0, 3, 10, 2)
    stamp(a, 5)
    a("s_setprio %d" % OPT["pr1"])
    a("s_mov_b32 s60, 0x40000")
    a.label("L_dn_pa")
    a("buffer_load_dwordx3 v[4:6], v17, s[20:23], 0 offen sc1")
    a("buffer_load_dwordx3 v[8:10], v17, s[20:23], 0 offen offset:128 sc1")
    a("buffer_load_dwordx3 v[160:162], v17, s[20:23], 0 offen offset:256 sc1")
    a("s_waitcnt vmcnt(0)")
    a("v_cmp_ne_u32 vcc, s%d, v6" % TAG)
    a("v_cmp_ne_u32 s[40:41], s%d, v10" % TAG)
    a("v_cmp_ne_u32 s[42:43], s%d, v162" % TAG)
    a("s_or_b64 vcc, vcc, s[40:41]")
    a("s_or_b64 vcc, vcc, s[42:43]")
    a("s_and_b64 vcc, vcc, s[56:57]")
    a("s_cmp_eq_u64 vcc, 0")
    a("s_cbranch_scc1 L_dn_pb")
    a("s_sleep 8")
    a("s_sub_u32 s60, s60, 1")
    a("s_cbranch_scc0 L_dn_pa")
    a.label("L_dn_pb")
    stamp(a, 8)
    a("v_mov_b32 v6, v8")
    a("v_mov_b32 v7, v9")
    a("v_mov_b32 v8, v160")
    a("v_mov_b32 v9, v161")
    sum8(a, (4, 5, 6, 7, 8, 9))
    for t in range(3):
        g, u = 4 + 2 * t, 5 + 2 * t
        bf16_round(a, g, g)
        bf16_round(a, u, u)
        sigmoid(a, 10, g)
        a("v_mul_f32 v%d, v%d, v10" % (g, g))
        bf16_round(a, g, g)
        a("v_mul_f32 v%d, v%d, v%d" % (g, g, u))
        a("v_cvt_pk_bf16_f32 v%d, v%d, v%d" % (g, g, g))
        a("v_and_b32 v%d, 0xffff, v%d" % (g, g))
        a("v_lshlrev_b32 v%d, v1, v%d" % (g, g))
    for t in range(3):
        selector(a, 12, 4 + 2 * t, 44)
        for cg in range(9):
            d = vr(DA + 4 * cg, 4)
            a("v_mfma_f32_16x16x32_bf16 %s, %s, v[12:15], %s" % (d, vr(DW + 4 * (9 * t + cg), 4), "0" if t == 0 else d))
    a("s_mov_b64 exec, s[52:53]")
    for cg in range(9):
        for r in range(4):
            a("ds_write_b32 v164, v%d offset:%d" % (DA + 4 * cg + r, 256 * cg + 32 * r))
    a("s_mov_b64 exec, -1")
    for cg in range(9):
        a("ds_read2st64_b32 %s, v166 offset0:%d offset1:%d" % (vr(20 + 2 * cg, 2), cg, cg + 9))
    stage_spin(a, "L_dn_at", 0, 3, 10, 2)
    lds_spin(a, "L_dn_ax", 3, C_PA, 10, (1,), 1)
    for cg in range(9):
        a("v_add_f32 v%d, v%d, v%d" % (20 + 2 * cg, 20 + 2 * cg, 21 + 2 * cg))
        a("global_atomic_add_f32 v165, v%d, s[8:9] offset:%d" % (20 + 2 * cg, 256 * cg))
    a("v_mov_b32 v4, s38")
    a("v_mov_b32 v5, 1")
    a("s_waitcnt vmcnt(0)")
    stamp(a, 7)
    a("s_mov_b64 exec, 1")
    a("global_atomic_add v4, v5, s[8:9] sc1")
    stamp_end(a, 8, 1)


def kf(a):
    a.label(NAME)
    a("s_cmp_ge_u32 s2, 256")
    a("s_cbranch_scc1 L_end")
    stamp_init(a)
    stamp(a, 0)
    a("s_load_dwordx4 s[4:7], s[0:1], 0")
    a("s_load_dwordx2 s[8:9], s[0:1], 88")
    a("s_load_dwordx2 s[10:11], s[0:1], 72")
    a("s_load_dwordx2 s[14:15], s[0:1], 56")
    a("s_load_dwordx2 s[28:29], s[0:1], 16")
    a("v_lshrrev_b32 v1, 6, v0")
    a("v_and_b32 v0, 63, v0")
    a("v_readfirstlane_b32 s3, v1")
    a("s_and_b32 s30, s2, 3")
    a("s_bfe_u32 s31, s2, 0x10002")
    a("s_lshr_b32 s32, s2, 3")
    a("s_cmp_ge_u32 s32, 24")
    a("s_cbranch_scc1 L_sp")
    a("s_cmp_ge_u32 s3, 8")
    a("s_cbranch_scc1 L_help")
    gemm_phase(a)
    attention_phase(a)
    out_phase(a)
    late_and_slow(a)
    spare_phase(a)
    helpers(a)
    a.label("L_end")
    a("s_endpgm")
```

```python
from asmdsl import vr, sr
import layout as L
from common import *
from k2 import (KB, VB, QB, ONES, vK, vKt, vV, vStep, QM, QT, MSK, KF, VF, PP, SS, OO, T,
                k_reads, v_reads, qk, pv)

NAME = "gated_mix__sliding_block__moe_arch_mod__prompt_kernel"
SLOT = 34816
IMG = SLOT
WO = 66560
CTL = 149568
YB = 149696
HP = 150016
YT = 154624
XS = 156672
KF_LDS = 162304
PSLOT = (QB, QB + 4096, 140288, 144384, 158208)
KF_VGPR = 168
PART = 0
STG = 20480
XR, GR = 128, 136
vC = 154
TAG = 65
C_O, C_GO2, C_A, C_WO, C_PART, C_YRDY, C_B, C_1, C_GO1, C_C, C_PA, C_IDX, C_RSEL = 0, 4, 8, 12, 96, 32, 36, 40, 44, 48, 52, 56, 60
C_KMAX, C_KCNT, C_XS, C_GD, C_RED, C_RED2, C_FI = 64, 68, 72, 76, 80, 84, 88
F_Q, F_O, F_PA, F_Y = 0, 192, 448, 512


def lds_spin(a, name, addr_v, off, regs, conds, slp=1):
    n = len(conds)
    a("s_mov_b32 s60, 0x200000")
    a.label(name)
    a(("ds_read_b64 %s, v%d offset:%d" % (vr(regs, 2), addr_v, off)) if n == 2 else
      ("ds_read_b32 v%d, v%d offset:%d" % (regs, addr_v, off)))
    a("s_waitcnt lgkmcnt(0)")
    a("v_readfirstlane_b32 s61, v%d" % regs)
    if n == 2:
        a("v_readfirstlane_b32 s62, v%d" % (regs + 1))
        a("s_lshl_b32 s62, s62, 8")
        a("s_or_b32 s61, s61, s62")
        a("s_cmp_eq_u32 s61, %d" % (conds[0] | (conds[1] << 8)))
    else:
        a("s_cmp_eq_u32 s61, %d" % conds[0])
    a("s_cbranch_scc1 %s_d" % name)
    if slp:
        a("s_sleep %d" % slp)
    a("s_sub_u32 s60, s60, 1")
    a("s_cmp_lg_u32 s60, 0")
    a("s_cbranch_scc1 %s" % name)
    a.label(name + "_d")


def stage_spin(a, name, stage, vc=vC, T=T, slp=0):
    a("s_mov_b32 s60, 0x200000")
    a.label(name)
    a("ds_read_b32 v%d, v%d offset:%d" % (T, vc, C_A))
    a("s_waitcnt lgkmcnt(0)")
    a("v_readfirstlane_b32 s61, v%d" % T)
    a("s_bitcmp1_b32 s61, %d" % (8 * stage + 3))
    a("s_cbranch_scc1 %s_d" % name)
    if slp:
        a("s_sleep %d" % slp)
    a("s_sub_u32 s60, s60, 1")
    a("s_cmp_lg_u32 s60, 0")
    a("s_cbranch_scc1 %s" % name)
    a.label(name + "_d")


def landed(a, inc, vm):
    a("v_mov_b32 v%d, %s" % (T, hex(inc)))
    a("s_waitcnt vmcnt(%d)" % vm)
    a("s_mov_b64 exec, 1")
    a("ds_add_u32 v%d, v%d offset:%d" % (vC, T, C_A))
    a("s_mov_b64 exec, -1")


def poison(a):
    if OPT["nopois"]:
        a("s_nop 0")
        a("buffer_load_dword v155, v152, s[24:27], s59 offen")
        a("buffer_load_dword v155, v152, s[24:27], s59 offen")
        return
    for k in range(4):
        a("v_mov_b32 v%d, -1" % (120 + k))
    a("buffer_store_dwordx4 %s, v153, s[24:27], s58 offen sc1" % vr(120, 4))
    a("s_mov_b32 exec_hi, 0")
    a("buffer_store_dword v%d, v152, s[24:27], s59 offen sc1" % 120)
    a("s_mov_b32 exec_hi, -1")


def tail_touch(a):
    a("buffer_load_dword v155, v152, s[24:27], s59 offen")


def flag_poll(a, name, voff, vt, want, lanes, slp=1, width=1):
    a("s_mov_b64 exec, %s" % ("-1" if lanes == 64 else hex((1 << lanes) - 1)))
    a("s_mov_b32 s60, 0x40000")
    a.label(name)
    a("global_load_dword%s %s, v%d, s[8:9] sc1" % ("" if width == 1 else "x%d" % width, vr(vt, width), voff))
    a("s_waitcnt vmcnt(0)")
    a("v_cmp_eq_u32 vcc, %s, v%d" % (want, vt))
    a("s_cmp_eq_u64 vcc, exec")
    a("s_cbranch_scc1 %s_d" % name)
    if slp:
        a("s_sleep %d" % slp)
    a("s_sub_u32 s60, s60, 1")
    a("s_cmp_lg_u32 s60, 0")
    a("s_cbranch_scc1 %s" % name)
    a.label(name + "_d")
    a("s_mov_b64 exec, -1")


def lds_inc(a, vz, vt, off, rtn=False):
    a("v_mov_b32 v%d, 1" % vt)
    a("s_mov_b64 exec, 1")
    if rtn:
        a("ds_add_rtn_u32 v%d, v%d, v%d offset:%d" % (vt, vz, vt, off))
    else:
        a("ds_add_u32 v%d, v%d offset:%d" % (vz, vt, off))
    a("s_mov_b64 exec, -1")


def load_tag(a):
    a("s_mov_b32 s64, %d" % L.WS_EPOCH)
    a("s_load_dword s%d, s[8:9], s64" % TAG)


def make_tag(a):
    a("s_mul_i32 s%d, s%d, 0x9e3779b1" % (TAG, TAG))
    a("s_add_u32 s%d, s%d, 0x7f4a7c15" % (TAG, TAG))


def copy_scalars(a):
    a("s_mul_i32 s55, s34, %d" % (4 * L.PAIR_BYTES))
    a("s_mul_i32 s56, s35, 9216")
    a("s_add_u32 s55, s55, s56")
    a("s_lshl_b32 s56, s3, 10")
    a("s_add_u32 s55, s55, s56")
    for j in range(5):
        a("s_add_u32 s57, s3, %d" % (8 * j))
        a("s_mul_i32 s57, s57, 57")
        a("s_lshr_b32 s57, s57, 9")
        a("s_mul_i32 s57, s57, %d" % (L.PAIR_BYTES - 9216))
        a("s_add_u32 s57, s57, s55")
        a("s_add_u32 s%d, s57, %d" % (50 + j, 8192 * j))
    a("s_mul_i32 s58, s35, 12")
    a("s_add_u32 s58, s58, s34")
    a("s_lshl_b32 s58, s58, 7")
    a("s_add_u32 s58, s58, %d" % (L.WS_FLAG + F_Q * 128))


def decode2(a):
    a("s_and_b32 s30, s2, 3")
    a("s_bfe_u32 s33, s2, 0x10002")
    a("s_bfe_u32 s32, s2, 0x20003")
    a("s_lshl_b32 s31, s30, 2")
    a("s_add_u32 s31, s31, s32")
    a("s_lshl_b32 s32, s33, 3")
    a("s_lshr_b32 s34, s2, 5")
    if OPT["light"]:
        a("s_add_u32 s34, s34, 2")
        a("s_and_b32 s34, s34, 7")
    a("s_add_u32 s32, s32, s34")
    a("s_lshr_b32 s33, s2, 3")
    a("s_mul_i32 s34, s33, 57")
    a("s_lshr_b32 s34, s34, 9")
    a("s_mul_i32 s53, s34, 9")
    a("s_sub_u32 s53, s33, s53")
    a("s_lshl_b32 s52, s34, 3")
    a("s_and_b32 s34, s2, 7")
    a("s_add_u32 s52, s52, s34")
    a("s_sub_u32 s33, s2, 216")
    a("s_mul_i32 s34, s33, 57")
    a("s_lshr_b32 s34, s34, 9")
    a("s_mul_i32 s35, s34, 9")
    a("s_sub_u32 s33, s33, s35")
    a("s_add_u32 s34, s34, 24")
    a("s_cmp_ge_u32 s2, 216")
    a("s_cselect_b32 s52, s34, s52")
    a("s_cselect_b32 s53, s33, s53")


def qpoll(a, vc, name, own, r=16):
    R = dict(a=r, b=r + 1, c=r + 2)
    a("v_add_u32 v%(a)d, 2, v0" % R)
    a("v_mul_u32_u24 v%(b)d, 43, v%(a)d" % R)
    a("v_lshrrev_b32 v%(b)d, 7, v%(b)d" % R)
    a("v_mul_u32_u24 v%(c)d, 3, v%(b)d" % R)
    a("v_sub_u32 v%(a)d, v%(a)d, v%(c)d" % R)
    a("s_sub_u32 s35, s32, 2")
    a("v_add_u32 v%(a)d, s35, v%(a)d" % R)
    a("v_max_i32 v%(a)d, 0, v%(a)d" % R)
    a("v_mul_u32_u24 v%(a)d, 12, v%(a)d" % R)
    a("v_lshl_add_u32 v%(a)d, v%(b)d, 2, v%(a)d" % R)
    a("v_add_u32 v%(a)d, s30, v%(a)d" % R)
    a("v_lshlrev_b32 v%(a)d, 7, v%(a)d" % R)
    a("v_add_u32 v%d, %d, v%d" % (r, L.WS_FLAG + F_Q * 128, r))
    if own:
        lds_spin(a, name + "w", vc, C_1, r + 2, (8,), 0)
    flag_poll(a, name, r, r + 1, "s%d" % TAG, 7, OPT["qslp"])
    lds_inc(a, vc, r + 2, C_GO1)


def code_touch(a):
    if not OPT["ctouch"]:
        return
    lab = a.newlabel("pc")
    a("s_getpc_b64 s[20:21]")
    a.label(lab)
    a("s_sub_u32 s20, s20, %s-%s" % (lab, NAME))
    a("s_subb_u32 s21, s21, 0")
    a("s_lshr_b32 s22, s2, 3")
    a("s_mul_i32 s22, s22, %d" % (12 * 128))
    a("v_lshlrev_b32 v20, 7, v0")
    a("v_add_u32 v20, s22, v20")
    a("v_min_u32 v20, L_end-%s, v20" % NAME)
    a("s_mov_b64 exec, 0xfff")
    a("global_load_dword v21, v20, s[20:21]")
    a("s_mov_b64 exec, -1")


def gemm_phase(a):
    a("s_mul_i32 s33, s32, 43")
    a("s_lshr_b32 s33, s33, 7")
    a("s_mul_i32 s34, s33, 3")
    a("s_sub_u32 s34, s32, s34")
    a("s_lshl_b32 s34, s34, 2")
    a("s_add_u32 s34, s34, s30")
    a("s_lshl_b32 s35, s31, 3")
    a("s_add_u32 s35, s35, s33")
    a("s_cmp_lt_u32 s3, 4")
    a("s_cbranch_scc1 L_comp")
    a("s_cmp_lt_u32 s3, 6")
    a("s_cbranch_scc0 L_ldw")
    a("s_sub_u32 s36, s3, 4")
    a("v_and_b32 v7, 7, v0")
    a("s_lshl_b32 s41, s33, 3")
    a("s_lshl_b32 s42, s36, 6")
    a("s_add_u32 s41, s41, s42")
    a("v_add_u32 v7, s41, v7")
    a("v_mul_u32_u24 v7, 3456, v7")
    a("v_lshrrev_b32 v1, 3, v0")
    a("v_lshl_add_u32 v7, v1, 7, v7")
    a("s_mul_i32 s39, s35, %d" % (128 * 1152))
    a("s_mul_i32 s46, s34, 288")
    a("s_and_b32 s46, s46, 0xffffff80")
    a("s_sub_u32 s47, %d, s46" % (576 * 3456))
    a("v_mul_u32_u24 v1, 1152, v1")
    a("v_lshrrev_b32 v2, 4, v0")
    a("v_and_b32 v3, 7, v0")
    a("v_xor_b32 v3, v3, v2")
    a("v_lshl_add_u32 v4, v3, 4, v1")
    a("v_xor_b32 v3, 4, v3")
    a("v_lshl_add_u32 v5, v3, 4, v1")
    a("v_add_u32 v5, %d, v5" % (8 * 1152))
    a("s_mul_i32 s37, s36, %d" % (64 * 1152))
    a("s_lshl_b32 s38, s36, 13")
    a("s_waitcnt lgkmcnt(0)")
    srd_off(a, 20, 6, "s46", "s47")
    a("s_mov_b64 exec, 0xffffff")
    a("buffer_load_dword v20, v7, s[20:23], 0 offen")
    a("s_mov_b64 exec, -1")
    srd_off(a, 16, 4, "s39", 128 * 1152)

    def x_chunk(c):
        for i in range(8):
            a("s_add_u32 m0, s38, %d" % ((c % 4) * SLOT + i * 1024))
            a("s_add_u32 s40, s37, %d" % ((i >> 1) * 16 * 1152 + c * 128))
            a("buffer_load_dwordx4 v%d, s[16:19], s40 offen lds" % (4 + (i & 1)))

    x_chunk(0)
    load_tag(a)
    copy_scalars(a)
    stamp(a, 1)
    a("s_waitcnt vmcnt(8) lgkmcnt(0)")
    stamp(a, 2)

    def loader_loop(fn, n, first, ahead0):
        LA = OPT["la"]
        a("s_barrier")
        stamp(a, 13)
        nxt = first
        while nxt < ahead0:
            fn(nxt)
            nxt += 1
        stamp(a, 14)
        for c in range(9):
            a("s_waitcnt vmcnt(%d)" % (n * (nxt - 1 - c)))
            a("s_barrier")
            while nxt <= c + LA and nxt < 9:
                fn(nxt)
                nxt += 1

    loader_loop(x_chunk, 8, 1, 2)
    a("s_branch L_copy")
    a.label("L_ldw")
    a("s_movk_i32 s41, 3641")
    for i in range(9):
        a("v_add_u32 v1, %d, v0" % (64 * i))
        a("v_mul_u32_u24 v2, s41, v1")
        a("v_lshrrev_b32 v2, 16, v2")
        a("v_mul_u32_u24 v3, 18, v2")
        a("v_sub_u32 v3, v1, v3")
        a("v_bfe_u32 v1, v2, 2, 2")
        a("v_lshlrev_b32 v1, 3, v1")
        a("v_lshrrev_b32 v13, 4, v2")
        a("v_lshl_add_u32 v1, v13, 2, v1")
        a("v_and_b32 v2, 3, v2")
        a("v_add_u32 v1, v1, v2")
        a("v_mul_u32_u24 v1, 3456, v1")
        a("v_lshl_add_u32 v%d, v3, 4, v1" % (4 + i))
        if i == 2:
            a("s_waitcnt lgkmcnt(0)")
            load_tag(a)
    a("s_sub_u32 s36, s3, 6")
    a("s_mul_i32 s37, s36, %d" % (32 * 3456))
    a("s_mul_i32 s38, s36, 9216")
    a("s_mul_i32 s39, s34, 288")
    a("s_sub_u32 s42, %d, s39" % (576 * 3456))
    copy_scalars(a)
    srd_off(a, 16, 6, "s39", "s42")
    a("s_waitcnt lgkmcnt(0)")

    def w_chunk(c):
        a("s_add_u32 s40, s37, %d" % (c * 64 * 3456))
        for i in range(9):
            a("s_add_u32 m0, s38, %d" % ((c % 4) * SLOT + 16384 + i * 1024))
            a("s_nop 0")
            a("buffer_load_dwordx4 v%d, s[16:19], s40 offen lds" % (4 + i))

    loader_loop(w_chunk, 9, 0, OPT["wa0"])
    a("s_branch L_copy")
    a.label("L_comp")
    ACC, XF, WF = 64, (136, 144), 24
    a("v_and_b32 v8, 15, v0")
    a("v_lshrrev_b32 v9, 4, v0")
    a("v_lshrrev_b32 v10, 1, v8")
    a("v_xor_b32 v10, v10, v9")
    a("s_lshl_b32 s36, s3, 12")
    a("v_lshlrev_b32 v2, 7, v8")
    a("v_lshl_add_u32 v2, v10, 4, v2")
    a("v_add_u32 v2, s36, v2")
    a("v_xor_b32 v3, 64, v2")
    a("v_add_u32 v4, %d, v2" % (2 * SLOT))
    a("v_add_u32 v5, %d, v3" % (2 * SLOT))
    a("v_lshrrev_b32 v10, 2, v0")
    a("v_mul_u32_u24 v6, 288, v10")
    a("v_and_b32 v10, 3, v0")
    a("v_lshl_add_u32 v6, v10, 3, v6")
    a("v_add_u32 v6, 16384, v6")
    a("v_add_u32 v7, %d, v6" % (2 * SLOT))
    a("s_waitcnt lgkmcnt(0)")
    load_tag(a)
    a("s_mov_b32 s36, 1.0")
    a("s_cmp_lt_u32 s34, 4")
    a("s_cselect_b32 s36, %s, s36" % f32(QSCALE))
    a("s_mov_b32 s37, s36")
    a("s_lshl_b32 s38, s3, 5")
    a("v_add_u32 v10, s38, v8")
    a("v_mul_u32_u24 v10, 72, v10")
    a("v_lshl_add_u32 v10, v9, 3, v10")
    a("v_add_u32 v10, %d, v10" % IMG)
    for ft in range(9):
        a("v_add_u32 v11, %d, v9" % (4 * ft))
        a("v_mul_u32_u24 v11, 57, v11")
        a("v_lshrrev_b32 v11, 9, v11")
        a("v_mul_u32_u24 v11, 9144, v11")
        a("v_add_u32 v%d, v11, v10" % (12 + ft))
    copy_scalars(a)
    a("s_waitcnt lgkmcnt(0)")

    def xreads(step):
        c, h2 = step >> 1, step & 1
        slot = c % 4
        return ["ds_read_b128 %s, v%d offset:%d" % (vr(XF[step & 1] + 4 * tt, 4), 2 + 2 * (slot >> 1) + h2,
                                                    (slot & 1) * SLOT + tt * 2048) for tt in range(2)]

    def wreads(step, ft):
        c, h2 = step >> 1, step & 1
        slot = c % 4
        return ["ds_read_b64_tr_b16 %s, v%d offset:%d" % (vr(WF + 4 * ft + 2 * sec, 2), 6 + (slot >> 1),
                                                          (slot & 1) * SLOT + h2 * 9216 + sec * 4608 + ft * 32)
                for sec in range(2)]

    def mfma(step, ft, tt):
        d = vr(ACC + 8 * ft + 4 * tt, 4)
        return "v_mfma_f32_16x16x32_bf16 %s, %s, %s, %s" % (
            d, vr(WF + 4 * ft, 4), vr(XF[step & 1] + 4 * tt, 4), "0" if step == 0 else d)

    def epi(k):
        ft, tt = k >> 1, k & 1
        b = ACC + 4 * k
        t = 152 + 2 * (k % 8)
        return ["v_pk_mul_f32 %s, %s, s[36:37]" % (vr(b, 2), vr(b, 2)),
                "v_pk_mul_f32 %s, %s, s[36:37]" % (vr(b + 2, 2), vr(b + 2, 2)),
                "v_cvt_pk_bf16_f32 v%d, v%d, v%d" % (t, b, b + 1),
                "v_cvt_pk_bf16_f32 v%d, v%d, v%d" % (t + 1, b + 2, b + 3),
                "ds_write_b64 v%d, %s offset:%d" % (12 + ft, vr(t, 2), 32 * ft + 1152 * tt)]

    a("s_barrier")
    a("s_barrier")
    stamp(a, 1)
    q = []

    def issue(tag, lst):
        for x in lst:
            a(x)
            q.append(tag)

    def need(tag):
        last = max(k for k, v in enumerate(q) if v == tag)
        a("s_waitcnt lgkmcnt(%d)" % min(15, len(q) - 1 - last))

    issue(("x", 0), xreads(0))
    for ft in range(9):
        issue(("w", 0, ft), wreads(0, ft))
    LAG = 3
    for step in range(18):
        if step & 1 and step < 17:
            a("s_barrier")
        for ft in range(9):
            need(("w", step, ft))
            a(mfma(step, ft, 0))
            if ft == 0 and step < 17:
                issue(("x", step + 1), xreads(step + 1))
            if step == 17 and 2 * ft >= LAG:
                e = epi(2 * ft - LAG)
                for x in e[:4]:
                    a(x)
                issue("e", e[4:])
            a(mfma(step, ft, 1))
            if step < 17:
                issue(("w", step + 1, ft), wreads(step + 1, ft))
            elif 2 * ft + 1 >= LAG:
                e = epi(2 * ft + 1 - LAG)
                for x in e[:4]:
                    a(x)
                issue("e", e[4:])
    for k in range(18 - LAG, 18):
        for x in epi(k):
            a(x)
    stamp(a, 2)
    a("s_waitcnt lgkmcnt(0)")
    a.label("L_copy")
    a("v_lshlrev_b32 v1, 4, v0")
    a("s_lshl_b32 s36, s3, 10")
    a("v_add_u32 v2, s36, v1")
    a("v_add_u32 v3, %d, v2" % (IMG + 4 * 8192))
    srd(a, 24, 8, L.QKV_BYTES)
    make_tag(a)
    a("s_barrier")
    for j in range(4):
        a("ds_read_b128 %s, v2 offset:%d" % (vr(4 + 4 * j, 4), IMG + j * 8192))
    a("s_cmp_lt_u32 s3, 4")
    a("s_cbranch_scc0 L_c4")
    a("ds_read_b128 v[20:23], v3")
    a("s_waitcnt lgkmcnt(0)")
    a("buffer_store_dwordx4 v[20:23], v1, s[24:27], s54 offen sc1")
    a.label("L_c4")
    for j in range(4):
        a("s_waitcnt lgkmcnt(%d)" % (3 - j))
        a("buffer_store_dwordx4 %s, v1, s[24:27], s%d offen sc1" % (vr(4 + 4 * j, 4), 50 + j))
    a("s_mov_b32 s63, s58")
    a("v_mov_b32 v%d, %d" % (vC, CTL))
    lds_inc(a, vC, 24, C_FI)
    stamp(a, 3)


def spare_phase(a):
    GW = 64
    a.label("L_sp")
    a("s_sub_u32 s36, s2, 192")
    a("s_cmp_ge_u32 s3, 8")
    a("s_cbranch_scc1 L_sp_ffn")
    a("s_cmp_ge_u32 s3, 4")
    a("s_cbranch_scc1 L_sp_hi")
    a("s_load_dwordx2 s[60:61], s[0:1], 32")
    a("s_load_dwordx2 s[62:63], s[0:1], 64")
    a("v_lshrrev_b32 v2, 3, v0")
    a("v_and_b32 v3, 7, v0")
    a("v_lshlrev_b32 v3, 4, v3")
    a("s_lshl_b32 s34, s36, 2")
    a("s_add_u32 s34, s34, s3")
    a("s_lshl_b32 s33, s34, 3")
    a("v_add_u32 v1, s33, v2")
    a("v_mul_u32_u24 v4, 1152, v1")
    a("v_add_u32 v4, v4, v3")
    a("s_mul_i32 s51, s34, %d" % (7 * 128))
    a("s_mul_i32 s52, s34, %d" % (21 * 128))
    a("v_lshlrev_b32 v7, 7, v0")
    a("s_waitcnt lgkmcnt(0)")
    load_tag(a)
    srd(a, 16, 6, 576 * 3456)
    srd(a, 20, 28, 576 * 1152)
    for i in range(9):
        a("global_load_dwordx4 %s, v4, s[4:5] offset:%d" % (vr(8 + 4 * i, 4), 128 * i))
        if i == 0:
            for j in range(9):
                a("global_load_dwordx4 %s, v3, s[60:61] offset:%d" % (vr(44 + 4 * j, 4), 128 * j))
                a("global_load_dwordx4 %s, v3, s[62:63] offset:%d" % (vr(80 + 4 * j, 4), 128 * j))
        else:
            a("s_add_u32 s53, s51, %d" % (1728 * 128 * i))
            a("s_mov_b64 exec, 0x7f")
            a("buffer_load_dword v124, v7, s[16:19], s53 offen")
            a("s_mov_b64 exec, -1")
    a("s_mov_b64 exec, 0x1fffff")
    a("buffer_load_dword v124, v7, s[20:23], s52 offen")
    a("s_mov_b64 exec, -1")
    a("v_mov_b32 v%d, %d" % (vC, CTL))
    a("s_waitcnt lgkmcnt(0)")
    make_tag(a)
    a("s_barrier")
    a("s_waitcnt vmcnt(2)")
    for i in range(36):
        p = 116 + (i & 3)
        a("v_dot2_f32_bf16 v%d, v%d, v%d, %s" % (p, 8 + i, 44 + i, "0" if i < 4 else "v%d" % p))
    a("s_nop 1")
    a("v_pk_add_f32 v[116:117], v[116:117], v[118:119]")
    a("v_add_f32 v5, v116, v117")
    sum8(a, (5,))
    bf16_round(a, 5, 5)
    a("v_ashrrev_i32 v7, 31, v5")
    a("v_or_b32 v7, 0x80000000, v7")
    a("v_xor_b32 v7, v7, v5")
    a("v_and_b32 v7, 0xffff0000, v7")
    a("v_sub_u32 v6, 0x7ff, v1")
    a("v_or_b32 v7, v7, v6")
    a("v_mov_b32 v5, 1")
    a("s_mov_b32 s54, 0x01010101")
    a("s_mov_b32 exec_lo, s54")
    a("s_mov_b32 exec_hi, s54")
    a("ds_max_u32 v%d, v7 offset:%d" % (vC, C_KMAX))
    a("s_mov_b64 exec, 1")
    a("ds_add_rtn_u32 v5, v%d, v5 offset:%d" % (vC, C_KCNT))
    a("ds_read_b32 v7, v%d offset:%d" % (vC, C_KMAX))
    a("s_lshl_b32 s53, s36, 3")
    a("s_add_u32 s53, s53, %d" % L.WS_KEYF)
    a("v_mov_b32 v4, s53")
    a("v_mov_b32 v6, s%d" % TAG)
    a("s_waitcnt lgkmcnt(0)")
    a("v_cmp_eq_u32 vcc, 3, v5")
    a("s_and_b64 exec, exec, vcc")
    a("s_cbranch_execz L_sp_nopub")
    a("global_store_dwordx2 v4, v[6:7], s[8:9] sc1")
    a.label("L_sp_nopub")
    a("s_mov_b64 exec, -1")
    stamp(a, 1)
    a("s_mov_b32 s55, 0x3f803f80")
    for i in range(36):
        x, w, p = 8 + i, 80 + i, 116 + (i & 3)
        t = 44 + 4 * (i & 3)
        a("v_lshlrev_b32 v%d, 16, v%d" % (t, x))
        a("v_and_b32 v%d, 0xffff0000, v%d" % (t + 1, x))
        a("v_lshlrev_b32 v%d, 16, v%d" % (t + 2, w))
        a("v_and_b32 v%d, 0xffff0000, v%d" % (t + 3, w))
        a("v_pk_mul_f32 %s, %s, %s" % (vr(t, 2), vr(t, 2), vr(t + 2, 2)))
        a("v_cvt_pk_bf16_f32 v%d, v%d, v%d" % (t, t, t + 1))
        a("v_dot2_f32_bf16 v%d, v%d, s55, %s" % (p, t, "0" if i < 4 else "v%d" % p))
    a("s_nop 1")
    a("v_pk_add_f32 v[116:117], v[116:117], v[118:119]")
    a("v_add_f32 v6, v116, v117")
    sum8(a, (6,))
    bf16_round(a, 6, 6)
    sigmoid(a, 6, 6)
    bf16_round(a, 6, 6)
    a("v_lshlrev_b32 v1, 2, v1")
    a("v_add_u32 v1, %d, v1" % L.WS_G)
    a("s_mov_b32 exec_lo, s54")
    a("s_mov_b32 exec_hi, s54")
    a("global_store_dword v1, v6, s[8:9] sc1")
    a("s_mov_b64 exec, -1")
    a("s_waitcnt vmcnt(0)")
    lds_inc(a, vC, 5, C_GD)
    if OPT["dtouch"]:
        srd(a, 16, 14, 4608 * 1152)
        a("s_mul_i32 s52, s34, %d" % (162 * 128))
        a("v_lshlrev_b32 v7, 7, v0")
        for k in range(3):
            a("buffer_load_dword v124, v7, s[16:19], s52 offen")
            a("s_add_u32 s52, s52, %d" % (54 * 128))
    a("s_mov_b32 s63, 0")
    stamp(a, 2)
    a("s_branch L_att")

    a.label("L_sp_hi")
    a("s_cmp_eq_u32 s3, 7")
    a("s_cbranch_scc0 L_sp_hi1")
    code_touch(a)
    a.label("L_sp_hi1")
    a("v_mov_b32 v%d, %d" % (vC, CTL))
    a("s_waitcnt lgkmcnt(0)")
    load_tag(a)
    a("s_mov_b32 s63, 0")
    a("s_waitcnt lgkmcnt(0)")
    make_tag(a)
    a("s_barrier")
    a("s_cmp_eq_u32 s3, 4")
    a("s_cbranch_scc1 L_sp_w4")
    a("s_cmp_eq_u32 s3, 5")
    a("s_cbranch_scc0 L_att")
    a("s_lshl_b32 s56, s36, 7")
    a("s_add_u32 s56, s56, %d" % (L.WS_FLAG + F_PA * 128))
    a("v_mov_b32 v9, s56")
    lds_spin(a, "L_sp_x5", vC, C_XS, 10, (1, 4), 4)
    a("ds_read_b64 v[14:15], v%d offset:%d" % (vC, C_IDX))
    a("v_mov_b32 v12, s%d" % TAG)
    a("s_waitcnt lgkmcnt(0)")
    a("v_mov_b32 v13, v14")
    a("v_mov_b32 v14, v15")
    a("s_mov_b64 exec, 1")
    a("global_store_dwordx3 v9, v[12:14], s[8:9] sc1")
    a("s_mov_b64 exec, -1")
    a("s_branch L_att")
    a.label("L_sp_w4")
    for k in range(4):
        a("v_mov_b32 v%d, 0" % (12 + k))
    a("s_cmp_lt_u32 s36, 36")
    a("s_cbranch_scc0 L_sp_nz")
    a("s_lshl_b32 s51, s36, 10")
    a("s_add_u32 s51, s51, %d" % L.WS_YP)
    a("v_lshlrev_b32 v4, 4, v0")
    a("v_add_u32 v4, s51, v4")
    a("global_store_dwordx4 v4, v[12:15], s[8:9] sc1")
    a("s_cmp_eq_u32 s36, 0")
    a("s_cbranch_scc0 L_sp_nz")
    a("v_lshlrev_b32 v4, 7, v0")
    a("v_add_u32 v4, %d, v4" % (L.WS_FLAG + F_Y * 128))
    a("global_store_dword v4, v12, s[8:9] sc1")
    a.label("L_sp_nz")
    a("v_lshlrev_b32 v8, 3, v0")
    a("v_add_u32 v8, %d, v8" % L.WS_KEYF)
    srd(a, 24, 4, 2048 * 1152)
    lds_spin(a, "L_sp_own", vC, C_KCNT, 10, (4,), 2)
    a("s_sleep %d" % OPT["slp0"])
    flag_poll(a, "L_sp_kp", 8, 10, "s%d" % TAG, 64, OPT["slp"], 2)
    a("v_lshlrev_b32 v8, 4, v0")
    stamp(a, 1)
    wave_umax(a, 11, 53)
    a("s_and_b32 s54, s53, 0x7ff")
    a("s_sub_u32 s54, 2047, s54")
    a("s_mul_i32 s55, s54, 1152")
    a("s_mov_b32 m0, %d" % XS)
    a("s_add_u32 s56, s55, 1024")
    a("buffer_load_dwordx4 v8, s[24:27], s55 offen lds")
    a("s_mov_b32 m0, %d" % (XS + 1024))
    a("s_mov_b64 exec, 0xff")
    a("buffer_load_dwordx4 v8, s[24:27], s56 offen lds")
    a("s_mov_b64 exec, -1")
    a("s_and_b32 s55, s53, 0xffff0000")
    a("s_xor_b32 s56, s55, 0x80000000")
    a("s_xor_b32 s57, s55, 0xffff0000")
    a("s_bitcmp1_b32 s55, 31")
    a("s_cselect_b32 s55, s56, s57")
    a("v_mov_b32 v12, s55")
    sigmoid(a, 13, 12)
    bf16_round(a, 13, 13)
    a("v_mov_b32 v12, s54")
    a("ds_write_b64 v%d, v[12:13] offset:%d" % (vC, C_IDX))
    a("v_mov_b32 v12, 1")
    a("s_waitcnt vmcnt(0)")
    a("ds_write_b32 v%d, v12 offset:%d" % (vC, C_XS))
    stamp(a, 2)
    a("s_branch L_att")

    a.label("L_sp_ffn")
    a("s_load_dwordx4 s[40:43], s[0:1], 40")
    a("v_mov_b32 v3, %d" % CTL)
    for k in range(4):
        a("v_mov_b32 v%d, 0" % (4 + k))
    a("v_lshlrev_b32 v1, 4, v0")
    a("v_add_u32 v2, v1, v3")
    a("s_mov_b64 exec, 0xff")
    a("ds_write_b128 v2, v[4:7]")
    a("s_mov_b64 exec, -1")
    a("v_lshlrev_b32 v2, 2, v0")
    a("v_add_u32 v2, %d, v2" % (XS + 1152))
    a("ds_write_b32 v2, v4")
    a("s_sub_u32 s59, s3, 8")
    a("s_mul_i32 s37, s36, 57")
    a("s_lshr_b32 s37, s37, 9")
    a("s_mul_i32 s38, s37, 9")
    a("s_sub_u32 s38, s36, s38")
    a("s_mul_i32 s49, s37, 84")
    a("s_mul_i32 s39, s49, 9216")
    a("s_lshl_b32 s48, s38, 10")
    a("s_add_u32 s39, s39, s48")
    a("s_sub_u32 s48, %d, s39" % (576 * 9216))
    a("s_min_i32 s48, s48, %d" % (83 * 9216 + 1024))
    a("s_max_i32 s48, s48, 0")
    a("v_lshrrev_b32 v160, 5, v0")
    a("v_mul_u32_u24 v160, 9216, v160")
    a("v_and_b32 v161, 31, v0")
    a("v_lshl_add_u32 v160, v161, 4, v160")
    a("s_mul_i32 s57, s59, 20480")
    a("s_add_u32 s57, s57, %d" % WO)
    a("s_mul_i32 s58, s59, %d" % (2 * 9216))
    a("s_waitcnt lgkmcnt(0)")
    load_tag(a)
    srd_off(a, 16, 40, "s39", "s48")
    srd_off(a, 20, 42, "s39", "s48")
    a("s_waitcnt lgkmcnt(0)")
    make_tag(a)
    a("s_barrier")
    for i in range(5):
        a("s_add_u32 s55, s58, %d" % (8 * (6 + i) * 9216))
        a("s_add_u32 s56, s55, 512")
        for k in range(4):
            a("s_add_u32 m0, s57, %d" % ((4 * i + k) * 1024))
            a("buffer_load_dwordx4 v160, s[%d:%d], s%d offen nt lds" % (16 + 4 * (k >> 1), 19 + 4 * (k >> 1), 55 + (k & 1)))
    for i in range(6):
        a("s_add_u32 s55, s58, %d" % (8 * i * 9216))
        for k in range(4):
            a("buffer_load_dwordx4 %s, v160, s[%d:%d], s55 offen offset:%d nt" % (
                vr(GW + 16 * i + 4 * k, 4), 16 + 4 * (k >> 1), 19 + 4 * (k >> 1), 512 * (k & 1)))
    a("s_lshl_b32 s55, s59, 1")
    a("s_add_u32 s55, s55, s49")
    a("v_lshrrev_b32 v51, 5, v0")
    a("v_add_u32 v51, s55, v51")
    a("v_lshlrev_b32 v51, 1, v51")
    a("v_add_u32 v51, %d, v51" % XS)
    a("v_and_b32 v2, 1, v0")
    a("v_lshlrev_b32 v2, 4, v2")
    a("v_lshrrev_b32 v4, 1, v0")
    a("v_xor_b32 v4, v4, v0")
    a("v_and_b32 v4, 8, v4")
    a("v_bfe_u32 v5, v0, 1, 2")
    a("v_or_b32 v4, v4, v5")
    for q in range(4):
        a("v_cmp_eq_u32 s[%d:%d], %d, v4" % (40 + 2 * q, 41 + 2 * q, q))
    a("v_bfe_u32 v4, v0, 3, 1")
    a("v_lshlrev_b32 v4, 9, v4")
    a("v_lshrrev_b32 v5, 4, v0")
    a("v_lshl_add_u32 v4, v5, 7, v4")
    a("v_and_b32 v5, 7, v0")
    a("v_lshl_add_u32 v4, v5, 2, v4")
    a("v_add_u32 v6, s57, v4")
    a("v_add_u32 v52, s57, v1")
    a("s_lshl_b32 s55, s59, 9")
    a("v_lshlrev_b32 v8, 3, v0")
    a("v_add_u32 v8, s55, v8")
    a("s_mul_i32 s52, s37, %d" % (4608 * 16))
    a("s_lshl_b32 s55, s38, 13")
    a("s_add_u32 s52, s52, s55")
    a("s_add_u32 s52, s52, %d" % L.WS_PA)
    a("v_lshlrev_b32 v9, 2, v8")
    a("v_add_u32 v9, s52, v9")
    a("v_add_u32 v8, %d, v8" % WO)
    stamp(a, 3)
    lds_spin(a, "L_sp_xs", 3, C_XS, 10, (1,), 2)
    a("s_setprio %d" % OPT["pr2"])
    stamp(a, 7)
    for i in range(11):
        a("ds_read_u16 v%d, v51 offset:%d" % (53 + i, 16 * i))
    a("s_waitcnt vmcnt(24)")
    for k in range(4):
        a("ds_read_b128 %s, v52 offset:%d" % (vr(32 + 4 * k, 4), 1024 * k))
    a("s_waitcnt lgkmcnt(4)")
    for i in range(11):
        a("v_lshlrev_b32 v%d, v2, v%d" % (53 + i, 53 + i))
    first = True
    for i in range(5):
        selector(a, 12, 53 + 6 + i, 40)
        for k in range(4):
            d = vr(16 + 4 * k, 4)
            a("s_waitcnt lgkmcnt(%d)" % (3 if i < 4 else 3 - k))
            a("v_mfma_f32_16x16x32_bf16 %s, %s, v[12:15], %s" % (d, vr(32 + 4 * k, 4), "0" if first else d))
            if i < 4:
                a("ds_read_b128 %s, v52 offset:%d" % (vr(32 + 4 * k, 4), 1024 * (4 * (i + 1) + k)))
        first = False
    stamp(a, 12)
    for i in range(6):
        selector(a, 12, 53 + i, 40)
        a("s_waitcnt vmcnt(%d)" % (4 * (5 - i)))
        for k in range(4):
            d = vr(16 + 4 * k, 4)
            a("v_mfma_f32_16x16x32_bf16 %s, %s, v[12:15], %s" % (d, vr(GW + 16 * i + 4 * k, 4), d))
    stamp(a, 11)
    for k in range(4):
        for r in range(4):
            a("ds_write_b32 v6, v%d offset:%d" % (16 + 4 * k + r, 1024 * k + 32 * r))
    lds_inc(a, 3, 10, C_RED)
    lds_spin(a, "L_sp_rd", 3, C_RED, 10, (4,), 0)
    for p in range(4):
        a("ds_read_b64 %s, v8 offset:%d" % (vr(16 + 4 * p, 2), 20480 * p))
        a("ds_read_b64 %s, v8 offset:%d" % (vr(18 + 4 * p, 2), 20480 * p + 2048))
    a("v_mov_b32 v34, s%d" % TAG)
    a("v_mov_b32 v38, s%d" % TAG)
    a("s_waitcnt lgkmcnt(0)")
    lds_inc(a, 3, 10, C_RED2)
    for p in (2, 1):
        for h in range(2 * p):
            a("v_pk_add_f32 %s, %s, %s" % (vr(16 + 2 * h, 2), vr(16 + 2 * h, 2), vr(16 + 4 * p + 2 * h, 2)))
    a("v_mov_b32 v32, v16")
    a("v_mov_b32 v33, v18")
    a("v_mov_b32 v36, v17")
    a("v_mov_b32 v37, v19")
    a("s_cmp_eq_u32 s36, 63")
    a("s_cbranch_scc1 L_sp_nost")
    a("global_store_dwordx4 v9, v[32:35], s[8:9] sc1")
    a("global_store_dwordx4 v9, v[36:39], s[8:9] offset:16 sc1")
    a.label("L_sp_nost")
    stamp(a, 4)
    lds_spin(a, "L_sp_r2", 3, C_RED2, 10, (4,), 0)
    a("s_branch L_help2")


def attn_loop(a):
    for i in range(9):
        a.label("L_it%d" % i)
        S, P = SS[i & 1], PP[i & 1]
        ex = ["v_exp_f32 v%d, v%d" % (S + r, S + r) for r in range(16)]
        cv = ["v_cvt_pk_bf16_f32 v%d, v%d, v%d" % (P + q, S + 2 * q, S + 2 * q + 1) for q in range(8)]
        if i == 0:
            mk = ["v_bfi_b32 v%d, v%d, 0, v%d" % (P + q, MSK + q, P + q) for q in range(8)]
        elif i == 8:
            mk = ["v_and_b32 v%d, v%d, v%d" % (P + q, MSK + q, P + q) for q in range(8)]
        else:
            mk = []
        m1 = qk(i + 1) if i < 8 else []
        m2 = pv(i - 1, i == 1) if i > 0 else []
        a("s_waitcnt lgkmcnt(%d)" % (4 if 0 < i < 8 else 0))
        seq = m1[:1] + ex[0:4] + m1[1:] + (k_reads(i + 2) if i + 2 <= 8 else []) + ex[4:8] + cv[0:2] + m2[:1] + \
            ex[8:12] + cv[2:4] + m2[1:]
        if i + 1 <= 8:
            seq += ["v_add_u32 v%d, v%d, v%d" % (vV, vV, vStep)] + v_reads(i + 1)
        seq += ex[12:16] + cv[4:8] + mk
        for x in seq:
            a(x)
    a("s_waitcnt lgkmcnt(0)")
    for x in pv(8, False):
        a(x)


def attention_phase(a):
    a.label("L_att")
    decode2(a)
    a("s_mul_i32 s33, s31, %d" % L.PAIR_BYTES)
    a("s_mul_i32 s34, s32, 9216")
    a("s_add_u32 s33, s33, s34")
    a("v_mov_b32 v%d, %d" % (vC, CTL))
    KS, VS = 16 * L.PAIR_BYTES - 18432, 32 * L.PAIR_BYTES - 18432
    grp = [(QB, 0), (KB, KS), (VB, VS), (KB + 9216, KS + 9216), (VB + 9216, VS + 9216), (KB + 18432, KS + 18432), (VB + 18432, VS + 18432)]
    a("s_lshl_b32 s34, s3, 10")
    for j in range(8):
        lo, hi = (8 * j) // 9, min(8 * j + 7, 62) // 9
        l0, g0 = grp[lo][0] + (8 * j - 9 * lo) * 1024, grp[lo][1] + (8 * j - 9 * lo) * 1024
        l1, g1 = grp[hi][0] + (8 * j - 9 * hi) * 1024, grp[hi][1] + (8 * j - 9 * hi) * 1024
        if j == 7:
            a("s_min_u32 s34, s34, %d" % (6 * 1024))
        if lo == hi:
            a("s_add_u32 s%d, s34, %d" % (16 + j, l0))
            a("s_add_u32 s%d, s33, %d" % (44 + j, g0 - l0 & 0xffffffff))
        else:
            a("s_mov_b32 s35, %d" % l0)
            a("s_mov_b32 s36, %d" % (g0 - l0 & 0xffffffff))
            a("s_cmp_ge_u32 s3, %d" % (9 * hi - 8 * j))
            a("s_cselect_b32 s35, %d, s35" % (l1 & 0xffffffff))
            a("s_cselect_b32 s36, %d, s36" % (g1 - l1 & 0xffffffff))
            a("s_add_u32 s%d, s34, s35" % (16 + j))
            a("s_add_u32 s%d, s33, s36" % (44 + j))
        a("s_add_u32 s%d, s%d, s%d" % (44 + j, 44 + j, 16 + j))
    a("v_mov_b32 v10, s63")
    a("v_mov_b32 v11, s%d" % TAG)
    a("s_waitcnt vmcnt(0)")
    lds_inc(a, vC, 9, C_1, rtn=True)
    a("s_cmp_lg_u32 s63, 0")
    a("s_cselect_b32 s35, 7, 99")
    a("s_waitcnt lgkmcnt(0)")
    a("v_readfirstlane_b32 s36, v9")
    a("s_cmp_eq_u32 s36, s35")
    a("s_cbranch_scc0 L_nofl1")
    a("s_mov_b64 exec, 1")
    a("global_store_dword v10, v11, s[8:9] sc1")
    a("s_mov_b64 exec, -1")
    a.label("L_nofl1")
    stamp(a, 4)
    a("s_and_b32 s42, s3, 1")
    a("s_lshr_b32 s43, s3, 1")
    a("s_mul_i32 s35, s43, 2304")
    a("s_mul_i32 s36, s42, 40")
    a("v_and_b32 v%d, 31, v0" % T)
    a("v_lshrrev_b32 v%d, 5, v0" % (T + 1))
    a("v_mul_u32_u24 v%d, 72, v%d" % (vKt, T))
    a("v_add_u32 v%d, s35, v%d" % (vKt, vKt))
    a("v_lshl_add_u32 v%d, v%d, 4, v%d" % (vK, T + 1, vKt))
    a("v_add_u32 v%d, s36, v%d" % (vK, vK))
    a("v_add_u32 v%d, 32, v%d" % (vKt, vKt))
    a("v_bfe_u32 v%d, v0, 2, 2" % (T + 2))
    a("v_lshl_add_u32 v%d, v%d, 2, v%d" % (T + 2, T + 1, T + 2))
    a("v_mul_u32_u24 v%d, 72, v%d" % (T + 2, T + 2))
    a("s_add_u32 s37, s35, %d" % VB)
    a("v_add_u32 v%d, s37, v%d" % (T + 2, T + 2))
    a("v_and_b32 v%d, 3, v0" % (T + 3))
    a("v_lshlrev_b32 v%d, 3, v%d" % (T + 4, T + 3))
    a("v_add_u32 v%d, s36, v%d" % (T + 4, T + 4))
    a("v_and_b32 v%d, 16, v0" % (T + 5))
    a("v_cmp_eq_u32 s[38:39], 0, v%d" % (T + 5))
    a("v_cndmask_b32 v%d, 32, v%d, s[38:39]" % (T + 4, T + 4))
    a("v_add_u32 v%d, v%d, v%d" % (vV, T + 2, T + 4))
    a("v_and_b32 v%d, 19, v0" % (T + 5))
    a("v_cmp_lt_u32 s[38:39], 16, v%d" % (T + 5))
    a("v_mov_b32 v%d, %d" % (T + 6, ONES))
    a("v_cndmask_b32 v%d, v%d, v%d, s[38:39]" % (vV, vV, T + 6))
    a("v_mov_b32 v%d, 2304" % (T + 6))
    a("v_cndmask_b32 v%d, v%d, 0, s[38:39]" % (vStep, T + 6))
    a("v_lshlrev_b32 v%d, 2, v%d" % (T + 2, T + 1))
    a("v_sub_u32 v%d, v%d, v%d" % (T + 2, T, T + 2))
    a("v_mov_b32 v%d, 0xffff" % (T + 3))
    for q in range(8):
        kl = 8 * (q >> 1) + 2 * (q & 1)
        a("v_cmp_le_i32 s[38:39], %d, v%d" % (kl, T + 2))
        a("v_cmp_le_i32 s[40:41], %d, v%d" % (kl + 1, T + 2))
        a("v_cndmask_b32 v%d, 0, v%d, s[38:39]" % (MSK + q, T + 3))
        a("v_cndmask_b32 v%d, v%d, -1, s[40:41]" % (MSK + q, MSK + q))
    a("s_lshl_b32 s41, s32, 2")
    a("s_add_u32 s41, s41, s43")
    a("s_sub_i32 s41, 8, s41")
    a("s_lshl_b32 s35, s32, 3")
    a("s_lshl_b32 s36, s43, 1")
    a("s_add_u32 s35, s35, s36")
    a("s_mul_i32 s35, s35, 18432")
    a("s_lshl_b32 s58, s31, 10")
    a("s_lshl_b32 s36, s42, 9")
    a("s_add_u32 s58, s58, s36")
    a("s_add_u32 s58, s58, s35")
    a("s_lshr_b32 s59, s31, 1")
    a("s_lshl_b32 s59, s59, 8")
    a("s_and_b32 s36, s31, 1")
    a("s_lshl_b32 s36, s36, 3")
    a("s_add_u32 s59, s59, s36")
    a("s_lshl_b32 s36, s42, 2")
    a("s_add_u32 s59, s59, s36")
    a("s_add_u32 s59, s59, s35")
    a("s_add_u32 s59, s59, 16384")
    a("v_bfe_u32 v152, v0, 4, 1")
    a("v_mul_u32_u24 v152, 18432, v152")
    a("v_and_b32 v153, 15, v0")
    a("v_lshl_add_u32 v152, v153, 4, v152")
    a("v_lshrrev_b32 v153, 5, v0")
    a("v_lshl_add_u32 v153, v153, 8, v152")
    a("v_cmp_gt_u32 vcc, 32, v0")
    a("s_cmp_eq_u32 s42, 0")
    a("s_cselect_b64 s[54:55], vcc, 0")
    a("s_cselect_b64 s[56:57], 0, vcc")
    a("v_and_b32 v%d, 3, v0" % (T + 2))
    a("v_mul_u32_u24 v%d, 576, v%d" % (T + 2, T + 2))
    a("v_mov_b32 v%d, 0x3f803f80" % (T + 4))
    a("v_mov_b32 v%d, v%d" % (T + 5, T + 4))
    a("v_lshlrev_b32 v%d, 4, v0" % (T + 3))
    srd(a, 36, 8, L.QKV_BYTES)
    srd_off(a, 24, 8, L.WS_O, 128 * 18432)
    a("s_add_u32 s40, s3, 2")
    a("s_cmp_lt_u32 s3, 4")
    a("s_cselect_b32 s40, s3, s40")
    out_setup(a, 40)
    a("s_lshr_b32 s35, s2, 6")
    a("s_lshl_b32 s35, s35, 4")
    a("s_add_u32 s35, s35, s3")
    a("s_cmp_eq_u32 s35, %d" % (3 * 16 + 6))
    a("s_cbranch_scc0 L_nq2")
    lds_spin(a, "L_sp_x6", vC, C_XS, T + 8, (1,), 8)
    qpoll(a, vC, "L_qp2", False, T + 8)
    a.label("L_nq2")
    lds_spin(a, "L_go1", vC, C_1, T, (8, 1), OPT["g1s"])
    stamp(a, 5)
    for j in range(8):
        a("s_mov_b32 m0, s%d" % (16 + j))
        a("s_nop 0")
        a("buffer_load_dwordx4 v%d, s[36:39], s%d offen %s lds" % (T + 3, 44 + j, OPT["kvl"]))
    a("ds_write_b64 v%d, %s offset:%d" % (T + 2, vr(T + 4, 2), ONES))
    a("s_cmp_lt_u32 s32, 2")
    a("s_cbranch_scc1 L_late")
    landed(a, 1, 0)
    stage_spin(a, "L_sA", 0)
    stamp(a, 6)
    for x in q_reads() + k_reads(0) + k_reads(1) + v_reads(0):
        a(x)
    a("s_waitcnt lgkmcnt(7)")
    a("v_cndmask_b32 v%d, 0, v%d, s[54:55]" % (QT, QT))
    a("v_cndmask_b32 v%d, 0, v%d, s[56:57]" % (QT + 1, QT + 1))
    for x in qk(0):
        a(x)
    lds_inc(a, vC, T, C_B)
    x_loads(a)
    attn_loop(a)
    a.label("L_check")
    stamp(a, 7)
    a("s_mov_b32 s46, %s" % f32(2.0 ** 60))
    a("s_mov_b32 s47, %s" % f32(2.0 ** -60))
    a("s_mov_b32 s48, 0x7f800000")
    lds_spin(a, "L_pz", vC, C_C, T, (1,), 0)
    a("s_nop 3")
    a("v_rcp_f32 v%d, v%d" % (T, OO + 12))
    a("v_cmp_gt_f32 s[50:51], s46, v%d" % (OO + 12))
    a("v_cmp_lt_f32 vcc, s47, v%d" % (OO + 12))
    for k in range(6):
        a("v_add_f32 v%d, abs(v%d), abs(v%d)" % (T + 2 + k, OO + 2 * k, OO + 2 * k + 1))
    a("s_and_b64 s[50:51], s[50:51], vcc")
    a("v_pk_add_f32 %s, %s, %s" % (vr(T + 2, 2), vr(T + 2, 2), vr(T + 4, 2)))
    a("v_pk_add_f32 %s, %s, %s" % (vr(T + 2, 2), vr(T + 2, 2), vr(T + 6, 2)))
    a("v_add_f32 v%d, v%d, v%d" % (T + 2, T + 2, T + 3))
    a("v_cmp_gt_f32 vcc, s48, v%d" % (T + 2))
    a("s_and_b64 s[50:51], s[50:51], vcc")
    a("s_cmp_eq_u64 s[50:51], -1")
    a("s_cbranch_scc0 L_slow")
    a.label("L_fin")
    a("s_cmp_eq_u32 s42, 0")
    a("s_cbranch_scc1 L_fa")
    a("v_mov_b32 v%d, v%d" % (OO + 8, OO + 10))
    a("v_mov_b32 v%d, v%d" % (OO + 9, OO + 11))
    a.label("L_fa")
    for k in range(0, 10, 2):
        a("v_pk_mul_f32 %s, %s, %s op_sel_hi:[1,0]" % (vr(OO + k, 2), vr(OO + k, 2), vr(T, 2)))
    for q in range(5):
        a("v_cvt_pk_bf16_f32 v%d, v%d, v%d" % (T + 4 + q, OO + 2 * q, OO + 2 * q + 1))
    a("buffer_store_dwordx4 %s, v153, s[24:27], s58 offen sc1" % vr(T + 4, 4))
    a("s_mov_b32 exec_hi, 0")
    a("buffer_store_dword v%d, v152, s[24:27], s59 offen sc1" % (T + 8))
    a("s_mov_b32 exec_hi, -1")


def q_reads():
    return ["ds_read_b64 %s, v%d offset:%d" % (vr(QM, 2), vK, QB),
            "ds_read_b64 %s, v%d offset:%d" % (vr(QM + 2, 2), vK, QB + 8),
            "ds_read_b64 %s, v%d offset:%d" % (vr(QT, 2), vKt, QB)]


sKH, sPAIR, sTILE, sGATE, sSLOT, sOB, sXO = 6, 7, 13, 14, 15, 28, 29
A0, vXO, vRW, vCH, vSW, vSR, vL16, vPX, vPF = 156, 142, 140, 141, 143, 144, 162, 160, 161
GB = 154624


def out_setup(a, role):
    a("s_and_b32 s%d, s%d, 1" % (sKH, role))
    a("s_lshr_b32 s%d, s%d, 1" % (sPAIR, role))
    a("s_mul_i32 s%d, s52, 5" % sTILE)
    a("s_and_b32 s33, s%d, 7" % sTILE)
    a("s_sub_u32 s34, 8, s33")
    a("s_cmp_lt_u32 s33, 4")
    a("s_cselect_b32 s34, 0, s34")
    a("s_add_u32 s34, s34, s%d" % sPAIR)
    a("s_sub_u32 s35, s34, 5")
    a("s_cmp_ge_u32 s34, 5")
    a("s_cselect_b32 s34, s35, s34")
    a("s_add_u32 s%d, s%d, s34" % (sTILE, sTILE))
    a("s_lshl_b32 s98, s34, 6")
    a("s_mov_b32 s%d, 0x404" % sGATE)
    a("s_bitcmp1_b32 s%d, 2" % sTILE)
    a("s_cselect_b32 s%d, s%d, 4" % (sGATE, sGATE))
    a("s_mov_b32 s%d, %d" % (sSLOT, PSLOT[0]))
    for p in range(1, 5):
        a("s_cmp_eq_u32 s%d, %d" % (sPAIR, p))
        a("s_cselect_b32 s%d, %d, s%d" % (sSLOT, PSLOT[p], sSLOT))
    a("s_mul_i32 s%d, s%d, 18432" % (sOB, sTILE))
    a("s_lshl_b32 s33, s53, 7")
    a("s_add_u32 s%d, s%d, s33" % (sXO, sOB))
    a("s_mul_i32 s33, s%d, 9216" % sKH)
    a("s_add_u32 s%d, s%d, s33" % (sOB, sOB))
    a("s_add_u32 s96, s%d, 4096" % sOB)
    a("s_add_u32 s97, s%d, 8192" % sOB)
    a("s_add_u32 s99, s%d, %d" % (sXO, 8 * 1152))
    a("v_lshrrev_b32 v%d, 3, v0" % vRW)
    a("v_and_b32 v%d, 7, v0" % vCH)
    a("v_mul_u32_u24 v%d, 1152, v%d" % (vXO, vRW))
    a("v_lshl_add_u32 v%d, v%d, 4, v%d" % (vXO, vCH, vXO))
    a("v_lshrrev_b32 v146, 2, v0")
    a("v_bfe_u32 v147, v0, 3, 2")
    a("v_lshlrev_b32 v147, 1, v147")
    a("v_bfe_u32 v148, v0, 1, 1")
    a("v_xor_b32 v147, v147, v148")
    a("v_and_b32 v148, 1, v0")
    a("v_lshlrev_b32 v148, 3, v148")
    a("v_lshl_add_u32 v148, v146, 7, v148")
    a("v_lshl_add_u32 v148, v147, 4, v148")
    a("s_mul_i32 s33, s%d, %d" % (sKH, 9 * 4096))
    a("s_add_u32 s33, s33, %d" % WO)
    for t in range(4):
        a("v_xor_b32 v%d, %d, v148" % (A0 + t, 32 * t))
        a("v_add_u32 v%d, s33, v%d" % (A0 + t, A0 + t))
    a("v_lshlrev_b32 v%d, 4, v0" % vL16)
    a("v_add_u32 v%d, s%d, v%d" % (vPX, sSLOT, vL16))
    a("s_lshl_b32 s33, s%d, 2" % sPAIR)
    a("s_add_u32 s33, s33, %d" % CTL)
    a("v_mov_b32 v%d, s33" % vPF)
    a("v_and_b32 v%d, 15, v0" % vSW)
    a("v_mul_u32_u24 v%d, 144, v%d" % (vSW, vSW))
    a("v_lshrrev_b32 v146, 4, v0")
    a("v_lshlrev_b32 v146, 3, v146")
    a("v_add3_u32 v%d, v%d, v146, s%d" % (vSW, vSW, sSLOT))
    a("v_mul_u32_u24 v%d, 144, v%d" % (vSR, vRW))
    a("v_lshl_add_u32 v%d, v%d, 4, v%d" % (vSR, vCH, vSR))
    a("v_add_u32 v%d, s%d, v%d" % (vSR, sSLOT, vSR))
    a("s_add_u32 s98, s98, %d" % GB)
    a("v_lshl_add_u32 v145, v%d, 2, s98" % vRW)
    a("s_cmp_lt_u32 s3, 4")
    a("s_cselect_b32 s33, 1, 0x100")
    a("v_mov_b32 v163, s33")


def x_loads(a):
    srd(a, 20, 4, 2048 * 1152)
    a("buffer_load_dwordx4 %s, v%d, s[20:23], s%d offen" % (vr(XR, 4), vXO, sXO))
    a("buffer_load_dwordx4 %s, v%d, s[20:23], s99 offen" % (vr(XR + 4, 4), vXO))


def out_phase(a):
    WFR, OF, ACC, PX = (20, 36, 100), 64, (52, 56, 60, 116), (146, 120)
    a("s_cmp_ge_u32 s52, 26")
    a("s_cbranch_scc1 L_end")
    if not OPT["gissue"]:
        a("s_waitcnt vmcnt(0)")
    stamp(a, 8)
    a("s_mov_b64 exec, 1")
    a("ds_add_u32 v%d, v163 offset:%d" % (vC, C_O))
    a("s_mov_b64 exec, -1")
    a.label("L_out")

    def omx():
        for j in range(2):
            for q in range(4):
                xv = XR + 4 * j + q
                d = PX[j] + 2 * q
                a("v_lshlrev_b32 v%d, 16, v%d" % (d, xv))
                a("v_and_b32 v%d, 0xffff0000, v%d" % (d + 1, xv))
                a("v_pk_mul_f32 %s, %s, %s op_sel:[0,1] op_sel_hi:[1,1]" % (vr(d, 2), vr(d, 2), vr(GR + 2 * j, 2)))

    def reads(sl):
        st = WFR[sl % 3]
        return ["ds_read_b64_tr_b16 %s, v%d offset:%d" % (vr(st + 4 * t + 2 * sec, 2), A0 + t, (32 * sl + 16 * sec) * 128)
                for t in range(4) for sec in range(2)]

    lds_spin(a, "L_wo", vC, C_WO, 10, (2,), 0)
    for x in reads(0) + reads(1):
        a(x)
    a("s_mov_b32 s60, 0x200000")
    a.label("L_go2")
    a("ds_read_b64 v[10:11], v%d offset:%d" % (vC, C_O))
    a("s_waitcnt lgkmcnt(0)")
    a("v_readfirstlane_b32 s61, v10")
    a("v_readfirstlane_b32 s62, v11")
    a("s_and_b32 s61, s61, s%d" % sGATE)
    a("s_cmp_eq_u32 s61, s%d" % sGATE)
    a("s_cselect_b32 s62, s62, 0")
    a("s_cmp_eq_u32 s62, 1")
    a("s_cbranch_scc1 L_go2_d")
    a("s_sub_u32 s60, s60, 1")
    a("s_cbranch_scc0 L_go2")
    a.label("L_go2_d")
    if OPT["gissue"] == 2:
        a("s_cmp_eq_u32 s60, 0x200000")
        a("s_cbranch_scc1 L_go2_e")
        a("s_sleep %d" % OPT["cdel"])
        a.label("L_go2_e")
        a("s_waitcnt vmcnt(0)")
    elif OPT["cdel"]:
        a("s_sleep %d" % OPT["cdel"])
    stamp(a, 9)
    LAO = OPT["lao"]

    def oload(s):
        a("buffer_load_dwordx4 %s, v%d, s[24:27], s%d offen offset:%d sc1" % (vr(OF + 4 * s, 4), vL16, (sOB, 96, 97)[s // 4], 1024 * (s % 4)))

    def ocheck(sl):
        b = OF + 4 * sl
        if sl < 7:
            a("v_cmp_eq_u32 vcc, -1, v%d" % b)
        else:
            a("v_max3_u32 v10, v%d, v%d, v%d" % (b, b + 1, b + 2))
            a("v_max_u32 v10, v10, v%d" % (b + 3))
            a("v_cmp_eq_u32 vcc, -1, v10")
        a("s_nop 1")

    def oretry():
        for sl in range(9):
            a.label("L_or%d" % sl)
            a("s_sub_u32 s60, s60, 1")
            a("s_cbranch_scc1 L_ok%d" % sl)
            a("s_waitcnt vmcnt(0)")
            for s in range(sl, min(sl + LAO, 9)):
                oload(s)
            a("s_waitcnt vmcnt(%d)" % min(LAO - 1, 8 - sl))
            a("s_branch L_oc%d" % sl)

    RETRY.append(oretry)
    a("s_mov_b32 s60, 0x8000")
    for s in range(LAO):
        oload(s)
    a("ds_read_b32 v%d, v145" % GR)
    a("ds_read_b32 v%d, v145 offset:32" % (GR + 2))
    a("ds_read_b32 v10, v%d offset:%d" % (vC, C_IDX))
    srd(a, 20, 10, 2048 * 1152)
    a("s_waitcnt lgkmcnt(0) vmcnt(%d)" % LAO)
    a("v_readfirstlane_b32 s12, v10")
    for j in range(2):
        a("v_sub_f32 v%d, 1.0, v%d" % (GR + 2 * j + 1, GR + 2 * j))
        bf16_round(a, GR + 2 * j + 1, GR + 2 * j + 1)
    omx()
    for sl in range(9):
        rd = reads(sl + 2) if sl < 7 else []
        a("s_waitcnt vmcnt(%d) lgkmcnt(%d)" % (min(LAO - 1, 8 - sl), 8 if sl < 8 else 0))
        a.label("L_oc%d" % sl)
        ocheck(sl)
        a("s_cbranch_vccnz L_or%d" % sl)
        a.label("L_ok%d" % sl)
        for t in range(4):
            d = vr(ACC[t], 4)
            a("v_mfma_f32_16x16x32_bf16 %s, %s, %s, %s" % (d, vr(WFR[sl % 3] + 4 * t, 4), vr(OF + 4 * sl, 4), "0" if sl == 0 else d))
            if t == 0 and sl + LAO < 9:
                oload(sl + LAO)
            for x in rd[2 * t:2 * t + 2]:
                a(x)
    stamp(a, 10)
    if OPT["stamp"]:
        a("s_sub_u32 s94, 0x8000, s60")
        a("s_mul_i32 s94, s94, 100")
        a("s_add_u32 s94, s94, s66")
        a("s_addc_u32 s95, s67, 0")
    a("s_cmp_eq_u32 s%d, 0" % sKH)
    a("s_cbranch_scc1 L_k0")
    a("v_mov_b32 v10, 1")
    for t in range(4):
        a("ds_write_b128 v%d, %s offset:%d" % (vPX, vr(ACC[t], 4), 1024 * t))
    a("ds_write_b32 v%d, v10 offset:%d" % (vPF, C_PART))
    stamp_end(a, OPT["stw"], 0)
    stamp_end(a, 10, 2)
    a("s_endpgm")
    a.label("L_k0")
    a("s_lshr_b32 s46, s12, 4")
    a("s_cmp_eq_u32 s46, s%d" % sTILE)
    a("s_cbranch_scc0 L_noy")
    lds_spin(a, "L_yw", vC, C_YRDY, 10, (1,))
    a("v_lshlrev_b32 v10, 5, v%d" % vCH)
    a("v_add_u32 v10, %d, v10" % YB)
    a("ds_read_b128 v[12:15], v10")
    a("ds_read_b128 v[16:19], v10 offset:16")
    a("s_and_b32 s46, s12, 15")
    a("s_waitcnt lgkmcnt(0)")
    for j in range(2):
        a("v_add_u32 v10, %d, v%d" % (8 * j, vRW))
        a("v_cmp_eq_u32 s[50:51], s46, v10")
        for q in range(4):
            xv = XR + 4 * j + q
            a("v_lshlrev_b32 v10, 16, v%d" % xv)
            a("v_and_b32 v11, 0xffff0000, v%d" % xv)
            a("v_add_f32 v10, v10, v%d" % (12 + 2 * q))
            a("v_add_f32 v11, v11, v%d" % (13 + 2 * q))
            a("v_cvt_pk_bf16_f32 v10, v10, v11")
            a("v_cndmask_b32 v%d, v%d, v10, s[50:51]" % (xv, xv))
    omx()
    a.label("L_noy")
    lds_spin(a, "L_pw", vPF, C_PART, 10, (1,), 0)
    stamp(a, 11)
    for t in range(4):
        a("ds_read_b128 %s, v%d offset:%d" % (vr(20 + 4 * t, 4), vPX, 1024 * t))
    a("s_waitcnt lgkmcnt(0)")
    for t in range(4):
        b = ACC[t]
        a("v_pk_add_f32 %s, %s, %s" % (vr(b, 2), vr(b, 2), vr(20 + 4 * t, 2)))
        a("v_pk_add_f32 %s, %s, %s" % (vr(b + 2, 2), vr(b + 2, 2), vr(22 + 4 * t, 2)))
        a("v_cvt_pk_bf16_f32 v%d, v%d, v%d" % (40 + 2 * t, b, b + 1))
        a("v_cvt_pk_bf16_f32 v%d, v%d, v%d" % (41 + 2 * t, b + 2, b + 3))
        a("ds_write_b64 v%d, %s offset:%d" % (vSW, vr(40 + 2 * t, 2), 32 * t))
    for j in range(2):
        a("ds_read_b128 %s, v%d offset:%d" % (vr(20 + 4 * j, 4), vSR, 8 * 144 * j))
    for j in range(2):
        a("s_waitcnt lgkmcnt(%d)" % (1 - j))
        for q in range(4):
            av = 20 + 4 * j + q
            d = PX[j] + 2 * q
            a("v_lshlrev_b32 v10, 16, v%d" % av)
            a("v_and_b32 v11, 0xffff0000, v%d" % av)
            a("v_pk_fma_f32 %s, v[10:11], %s, %s op_sel_hi:[1,0,1]" % (vr(d, 2), vr(GR + 2 * j, 2), vr(d, 2)))
            a("v_cvt_pk_bf16_f32 v%d, v%d, v%d" % (32 + 4 * j + q, d, d + 1))
        a("buffer_store_dwordx4 %s, v%d, s[20:23], s%d offen %s" % (vr(32 + 4 * j, 4), vXO, (sXO, 99)[j], OPT["ost"]))
    if OPT["stamp"]:
        stamp(a, 12)
        a("s_waitcnt vmcnt(0)")
        stamp(a, 13)
        stamp_end(a, OPT["stw"], 0)
    a("s_endpgm")


RETRY = []
GLATE = []


def late_and_slow(a):
    RETRY[0]()
    a.label("L_late")
    a("s_mul_i32 s50, s41, 2304")
    a("v_add_u32 v%d, s50, v%d" % (T + 8, vK))
    a("v_add_u32 v%d, s50, v%d" % (T + 9, vKt))
    a("v_mul_u32_u24 v%d, s41, v%d" % (T + 2, vStep))
    a("v_add_u32 v%d, v%d, v%d" % (vV, vV, T + 2))
    for r in list(range(OO, OO + 16)) + list(range(VF[0], VF[0] + 32)):
        a("v_mov_b32 v%d, 0" % r)
    landed(a, 1, 0)
    stage_spin(a, "L_lt", 0)
    for x in q_reads():
        a(x)
    a("s_waitcnt lgkmcnt(0)")
    lds_inc(a, vC, T, C_B)
    x_loads(a)
    a("s_bitcmp1_b32 s41, 0")
    a("s_cbranch_scc1 L_late1")
    for par in range(2):
        if par:
            a.label("L_late1")
        for x in k_reads(par, T + 8, T + 9, 0):
            a(x)
        for x in k_reads(par + 1, T + 8, T + 9, 0):
            a(x.replace("offset:8", "offset:2312").replace("offset:0", "offset:2304"))
        for x in v_reads(par):
            a(x)
        a("s_waitcnt lgkmcnt(7)")
        a("v_cndmask_b32 v%d, 0, v%d, s[54:55]" % (QT, QT))
        a("v_cndmask_b32 v%d, 0, v%d, s[56:57]" % (QT + 1, QT + 1))
        for x in qk(par):
            a(x)
        a("s_nop 7")
        a("s_nop 3")
        for i0 in range(2 - par, 9, 2):
            a("s_cmp_eq_u32 s41, %d" % i0)
            a("s_cbranch_scc1 L_it%d" % i0)
        a("s_branch L_it%d" % (8 - par))

    a.label("L_slow")
    vKs, vKts, vM, vD0, vNeg = T + 8, T + 9, T + 10, T + 11, T + 12
    a("v_and_b32 v%d, 31, v0" % T)
    a("v_lshrrev_b32 v%d, 5, v0" % (T + 1))
    a("v_lshlrev_b32 v%d, 2, v%d" % (vD0, T + 1))
    a("v_sub_u32 v%d, v%d, v%d" % (vD0, vD0, T))
    a("v_mov_b32 v%d, 0xff800000" % vNeg)
    a("v_mov_b32 v%d, v%d" % (vM, vNeg))
    a("s_max_i32 s50, s41, 0")
    a("s_sub_u32 s51, 8, s50")
    a("v_mul_u32_u24 v%d, s51, v%d" % (T, vStep))
    a("v_sub_u32 v%d, v%d, v%d" % (vV, vV, T))
    a("s_mul_i32 s51, s50, 2304")
    for r in range(16):
        a("v_mov_b32 v%d, 0" % (OO + r))
    for ps in range(2):
        lab = "L_sp%d" % ps
        a("v_add_u32 v%d, s51, v%d" % (vKs, vK))
        a("v_add_u32 v%d, s51, v%d" % (vKts, vKt))
        a("s_mov_b32 s46, s50")
        a.label(lab)
        for x in k_reads(0, vKs, vKts):
            a(x)
        if ps == 1:
            for x in v_reads(0):
                a(x)
        a("s_mov_b32 s47, -31")
        a("s_mov_b32 s48, 62")
        a("s_cmp_eq_u32 s46, 0")
        a("s_cselect_b32 s47, 1, s47")
        a("s_cselect_b32 s48, 30, s48")
        a("s_cmp_eq_u32 s46, 8")
        a("s_cselect_b32 s48, 31, s48")
        a("s_waitcnt lgkmcnt(0)")
        for x in qk(0):
            a(x)
        a("v_subrev_u32 v%d, s47, v%d" % (T, vD0))
        for r in range(16):
            a("v_add_u32 v%d, %d, v%d" % (T + 1, 8 * (r >> 2) + (r & 3), T))
            a("v_cmp_ge_u32 vcc, s48, v%d" % (T + 1))
            a("v_cndmask_b32 v%d, v%d, v%d, vcc" % (SS[0] + r, vNeg, SS[0] + r))
            if ps == 0:
                a("v_max_f32 v%d, v%d, v%d" % (vM, vM, SS[0] + r))
            else:
                a("v_sub_f32 v%d, v%d, v%d" % (SS[0] + r, SS[0] + r, vM))
                a("v_exp_f32 v%d, v%d" % (SS[0] + r, SS[0] + r))
        if ps == 1:
            for q in range(8):
                a("v_cvt_pk_bf16_f32 v%d, v%d, v%d" % (PP[0] + q, SS[0] + 2 * q, SS[0] + 2 * q + 1))
            for x in pv(0, False):
                a(x)
            a("v_add_u32 v%d, v%d, v%d" % (vV, vV, vStep))
        a("v_add_u32 v%d, 2304, v%d" % (vKs, vKs))
        a("v_add_u32 v%d, 2304, v%d" % (vKts, vKts))
        a("s_add_u32 s46, s46, 1")
        a("s_cmp_lt_u32 s46, 9")
        a("s_nop 7")
        a("s_nop 7")
        a("s_cbranch_scc1 %s" % lab)
        if ps == 0:
            a("v_mov_b32 v%d, v%d" % (T, vM))
            a("v_permlane32_swap_b32 v%d, v%d" % (T, vM))
            a("v_max_f32 v%d, v%d, v%d" % (vM, vM, T))
    a("v_rcp_f32 v%d, v%d" % (T, OO + 12))
    a("s_nop 1")
    a("s_branch L_fin")


def helpers(a):
    a.label("L_help")
    a("s_cmp_eq_u32 s3, 9")
    a("s_cbranch_scc0 L_help1")
    code_touch(a)
    a.label("L_help1")
    a("v_mov_b32 v3, %d" % CTL)
    for k in range(4):
        a("v_mov_b32 v%d, 0" % (4 + k))
    a("v_lshlrev_b32 v1, 4, v0")
    a("v_add_u32 v2, v1, v3")
    a("s_mov_b64 exec, 0xff")
    a("ds_write_b128 v2, v[4:7]")
    a("s_mov_b64 exec, -1")
    a("s_waitcnt lgkmcnt(0)")
    load_tag(a)
    a("s_barrier")
    a("s_barrier")
    a("s_waitcnt lgkmcnt(0)")
    make_tag(a)
    a.label("L_help2")
    decode2(a)
    a("s_cmp_eq_u32 s3, 8")
    a("s_cbranch_scc1 L_down")
    a("v_lshrrev_b32 v1, 5, v0")
    a("v_bfe_u32 v2, v0, 3, 2")
    a("v_lshrrev_b32 v10, 4, v0")
    a("v_lshlrev_b32 v10, 1, v10")
    a("v_and_b32 v11, 7, v0")
    a("v_xor_b32 v10, v10, v11")
    a("v_lshl_add_u32 v4, v1, 2, v2")
    a("v_mul_u32_u24 v4, 1152, v4")
    a("v_lshl_add_u32 v4, v10, 4, v4")
    a("v_mul_u32_u24 v5, 72, v1")
    a("v_add_u32 v5, v5, v2")
    a("v_mul_u32_u24 v5, 1152, v5")
    a("v_lshl_add_u32 v5, v10, 4, v5")
    a("s_sub_u32 s36, s3, 9")
    a("s_mul_i32 s37, s36, %d" % (20 * 1152))
    a("s_mul_i32 s43, s36, %d" % (144 * 1152))
    a("s_lshl_b32 s38, s36, 10")
    a("s_add_u32 s38, s38, %d" % WO)
    a("s_lshl_b32 s39, s53, 7")
    a("s_sub_u32 s42, %d, s39" % (576 * 1152))
    srd_off(a, 16, 28, "s39", "s42")
    srd_off(a, 24, 8, L.WS_O, 128 * 18432)
    a("v_mov_b32 v%d, %d" % (vC, CTL))
    a("s_sub_u32 s40, s3, 5")
    out_setup(a, 40)
    a("s_setprio %d" % OPT["pr3"])
    a("s_cmp_ge_u32 s2, 192")
    a("s_cbranch_scc1 L_wo_go")
    for k in range(9):
        a("s_barrier")
    a.label("L_wo_go")
    a("s_cmp_eq_u32 s3, 11")
    a("s_cbranch_scc1 L_ctl")
    a("s_cmp_ge_u32 s52, 26")
    a("s_cbranch_scc1 L_end")
    if OPT["woe"]:
        a("s_cmp_ge_u32 s2, 192")
        a("s_cbranch_scc1 L_wo_e_d")
        lds_spin(a, "L_wo_e", 3, C_FI, 10, (8,), 0)
    stamp(a, 5)
    for m in range(36):
        if m == OPT["woe"]:
            stage_spin(a, "L_wo_w", 0, 3, 10, 2)
        st, sec = m >> 1, m & 1
        a("s_add_u32 m0, s38, %d" % (2048 * m))
        if st < 16:
            a("s_add_u32 s40, s37, %d" % ((36 * st + 8 * sec) * 1152))
            a("buffer_load_dwordx4 v4, s[16:19], s40 offen lds")
        else:
            a("s_add_u32 s40, s43, %d" % ((288 * (st - 16) + 36 * sec + 16) * 1152))
            a("buffer_load_dwordx4 v5, s[16:19], s40 offen lds")
        if OPT["wth"] and m >= OPT["wth"] - 1:
            a("s_waitcnt vmcnt(%d)" % (OPT["wth"] - 1))
    x_loads(a)
    a("s_waitcnt vmcnt(2)")
    stamp(a, 6)
    lds_inc(a, 3, 4, C_WO)
    a("s_setprio 0")
    a("s_branch L_out")
    a.label("L_ctl")
    a("v_lshlrev_b32 v8, 7, v0")
    a("v_add_u32 v9, %d, v8" % (L.WS_FLAG + F_PA * 128))
    a("s_mul_i32 s46, s52, 5")
    a("s_lshr_b32 s46, s46, 3")
    a("s_min_u32 s46, s46, 14")
    a("s_lshl_b32 s46, s46, 11")
    a("s_add_u32 s46, s46, %d" % (L.WS_FLAG + F_O * 128))
    a("v_add_u32 v8, s46, v8")
    a("s_lshl_b32 s46, s32, 4")
    a("s_add_u32 s46, s46, s31")
    a("s_lshl_b32 s46, s46, 7")
    a("s_add_u32 s46, s46, %d" % (L.WS_FLAG + F_O * 128))
    a("v_mov_b32 v14, s46")
    a("v_mov_b32 v15, s%d" % TAG)
    a("s_cmp_ge_u32 s2, 192")
    a("s_cbranch_scc1 L_ct_0")
    qpoll(a, 3, "L_qp1", True)
    a.label("L_ct_0")
    AUXLATE = OPT["auxp"]
    def aux():
        flag_poll(a, "L_pap", 9, 4, "s%d" % TAG, 64, 8, 3)
        a("v_mov_b32 v10, v5")
        a("v_mov_b32 v11, v6")
        a("v_mov_b32 v4, 1")
        a("ds_write_b64 v3, v[10:11] offset:%d" % C_IDX)
        a("ds_write_b32 v3, v4 offset:%d" % C_PA)
        srd_off(a, 16, 8, L.WS_G, 8192)
        a("s_mul_i32 s40, s52, 320")
        a("v_lshlrev_b32 v4, 2, v0")
        a("buffer_load_dword v5, v4, s[16:19], s40 offen sc1")
        a("buffer_load_dword v6, v4, s[16:19], s40 offen offset:256 sc1")
        a("v_add_u32 v4, %d, v4" % GB)
        GLATE.append(1)
        stamp(a, 5)

    if not AUXLATE:
        aux()
    a("v_bfe_u32 v20, v0, 4, 1")
    a("v_mul_u32_u24 v20, 18432, v20")
    a("v_and_b32 v21, 15, v0")
    a("v_lshl_add_u32 v20, v21, 4, v20")
    a("v_lshrrev_b32 v21, 5, v0")
    a("v_lshl_add_u32 v22, v21, 2, v20")
    a("v_lshl_add_u32 v21, v21, 8, v20")
    for k in range(4):
        a("v_mov_b32 v%d, -1" % (24 + k))
    a("s_mul_i32 s54, s32, %d" % (8 * 18432))
    a("s_lshl_b32 s55, s31, 10")
    a("s_add_u32 s55, s55, s54")
    a("s_lshr_b32 s56, s31, 1")
    a("s_lshl_b32 s56, s56, 8")
    a("s_and_b32 s57, s31, 1")
    a("s_lshl_b32 s57, s57, 3")
    a("s_add_u32 s56, s56, s57")
    a("s_add_u32 s56, s56, s54")
    a("s_add_u32 s56, s56, 16384")
    stage_spin(a, "L_ct_p", 0, 3, 10, 0)
    for j in range(4):
        a("buffer_store_dword v24, v22, s[24:27], s56 offen sc1")
        a("buffer_store_dwordx4 v[24:27], v21, s[24:27], s55 offen sc1")
        a("buffer_store_dwordx4 v[24:27], v21, s[24:27], s55 offen offset:512 sc1")
        a("s_add_u32 s55, s55, %d" % (2 * 18432))
        a("s_add_u32 s56, s56, %d" % (2 * 18432))
    a("v_mov_b32 v4, 1")
    a("s_waitcnt vmcnt(0)")
    a("ds_write_b32 v3, v4 offset:%d" % C_C)
    a("s_mov_b64 exec, 1")
    a("global_store_dword v14, v15, s[8:9] sc1")
    a("s_mov_b64 exec, -1")
    stamp(a, 6)
    lds_spin(a, "L_ct_q", 3, C_B, 10, (8,), 1)
    if AUXLATE:
        aux()
    else:
        a("s_sleep %d" % OPT["slp3"])
    flag_poll(a, "L_op", 8, 12, "s%d" % TAG, 32, 2)
    a("ds_write_b32 v4, v5")
    a("ds_write_b32 v4, v6 offset:256")
    lds_inc(a, 3, 10, C_GO2)
    stamp(a, 7)
    stamp_end(a, 11 if OPT["st11"] else 99, 3)
    a("ds_read_b64 v[10:11], v3 offset:%d" % C_IDX)
    a("s_waitcnt lgkmcnt(0)")
    a("v_readfirstlane_b32 s12, v10")
    a("v_readfirstlane_b32 s13, v11")
    a("s_mul_i32 s46, s52, 80")
    a("s_sub_u32 s46, s12, s46")
    a("s_cmp_lt_u32 s46, 80")
    a("s_cbranch_scc0 L_end")
    a("v_lshlrev_b32 v4, 7, v0")
    a("v_add_u32 v4, %d, v4" % (L.WS_FLAG + F_Y * 128))
    srd_off(a, 16, 8, L.WS_YP, 16 * 2304)
    a("v_lshrrev_b32 v6, 4, v0")
    a("v_mul_u32_u24 v6, 2304, v6")
    a("v_and_b32 v7, 15, v0")
    a("v_lshlrev_b32 v7, 4, v7")
    a("v_add_u32 v6, v6, v7")
    a("v_add_u32 v7, %d, v7" % YB)
    a("s_lshl_b32 s40, s53, 8")
    flag_poll(a, "L_yp", 4, 5, "12", 16, 2)
    for i in range(4):
        a("buffer_load_dwordx4 %s, v6, s[16:19], s40 offen sc1" % vr(8 + 4 * i, 4))
        a("s_add_u32 s40, s40, %d" % (4 * 2304))
    a("s_waitcnt vmcnt(0)")
    for i in range(1, 4):
        a("v_pk_add_f32 v[8:9], v[8:9], %s" % vr(8 + 4 * i, 2))
        a("v_pk_add_f32 v[10:11], v[10:11], %s" % vr(10 + 4 * i, 2))
    for k in range(4):
        a("v_mov_b32 v20, v%d" % (8 + k))
        a("v_permlane32_swap_b32 v20, v%d" % (8 + k))
        a("v_add_f32 v%d, v%d, v20" % (8 + k, 8 + k))
        a("v_mov_b32 v20, v%d" % (8 + k))
        a("v_permlane16_swap_b32 v20, v%d" % (8 + k))
        a("v_add_f32 v%d, v%d, v20" % (8 + k, 8 + k))
        bf16_round(a, 8 + k, 8 + k)
        a("v_mul_f32 v%d, s13, v%d" % (8 + k, 8 + k))
        bf16_round(a, 8 + k, 8 + k)
    a("v_mov_b32 v12, 1")
    a("ds_write_b128 v7, v[8:11]")
    a("ds_write_b32 v3, v12 offset:%d" % C_YRDY)
    a("s_cmp_eq_u32 s53, 0")
    a("s_cbranch_scc0 L_end")
    a("v_mov_b32 v4, %d" % L.WS_EPOCH)
    a("v_mov_b32 v5, s%d" % TAG)
    a("s_mov_b64 exec, 1")
    a("global_store_dword v4, v5, s[8:9]")
    a("s_endpgm")

    a.label("L_down")
    a("s_cmp_ge_u32 s2, 192")
    a("s_cbranch_scc1 L_end")
    DW, DA = 20, 128
    a("v_lshrrev_b32 v2, 3, v0")
    a("v_and_b32 v10, 7, v0")
    a("v_mul_u32_u24 v16, 1152, v2")
    a("v_lshl_add_u32 v16, v10, 4, v16")
    a("s_mul_i32 s36, s2, 24")
    a("v_mul_u32_u24 v12, %d, v10" % (4608 * 16))
    a("v_add_u32 v11, s36, v2")
    a("v_lshl_add_u32 v17, v11, 4, v12")
    a("v_cmp_gt_u32 s[56:57], 7, v10")
    a("s_mul_i32 s37, s2, %d" % (24 * 1152))
    a("v_and_b32 v1, 1, v0")
    a("v_lshlrev_b32 v1, 4, v1")
    sel_masks(a, 44, 11)
    a("v_lshrrev_b32 v11, 5, v0")
    a("v_bfe_u32 v12, v0, 3, 1")
    a("v_cmp_eq_u32 s[52:53], v11, v12")
    a("v_mul_u32_u24 v12, 2304, v12")
    a("v_bfe_u32 v11, v0, 4, 1")
    a("v_lshl_add_u32 v12, v11, 7, v12")
    a("v_lshl_add_u32 v12, v10, 2, v12")
    a("v_add_u32 v164, %d, v12" % HP)
    a("v_lshlrev_b32 v165, 2, v0")
    a("v_add_u32 v166, %d, v165" % HP)
    a("s_and_b32 s38, s2, 15")
    a("s_mul_i32 s39, s38, 2304")
    a("s_add_u32 s39, s39, %d" % L.WS_YP)
    a("v_add_u32 v165, s39, v165")
    a("s_lshl_b32 s38, s38, 7")
    a("s_add_u32 s38, s38, %d" % (L.WS_FLAG + F_Y * 128))
    srd_off(a, 16, 14, "s37", 24 * 1152)
    srd_off(a, 20, 8, L.WS_PA, 7 * 4608 * 16)
    def dloads():
        for t in range(0 if OPT["nodown"] else 3):
            a("s_movk_i32 s40, %d" % (9216 * t))
            for cg in range(9):
                a("buffer_load_dwordx4 %s, v16, s[16:19], s40 offen offset:%d %s" % (vr(DW + 4 * (9 * t + cg), 4), 128 * cg, "" if OPT["dtouch"] else "nt"))

    for k in range(2, 11):
        if k == OPT["dpos"]:
            dloads()
        a("s_barrier")
    if OPT["w8e"]:
        lds_spin(a, "L_dn_w2", 3, C_1, 10, (8,), 2)
    else:
        stage_spin(a, "L_dn_w2", 0, 3, 10, 2)
    stamp(a, 5)
    a("s_setprio %d" % OPT["pr1"])
    a("s_mov_b32 s60, 0x40000")
    a.label("L_dn_pa")
    a("buffer_load_dwordx3 v[4:6], v17, s[20:23], 0 offen sc1")
    a("buffer_load_dwordx3 v[8:10], v17, s[20:23], 0 offen offset:128 sc1")
    a("buffer_load_dwordx3 v[160:162], v17, s[20:23], 0 offen offset:256 sc1")
    a("s_waitcnt vmcnt(0)")
    a("v_cmp_ne_u32 vcc, s%d, v6" % TAG)
    a("v_cmp_ne_u32 s[40:41], s%d, v10" % TAG)
    a("v_cmp_ne_u32 s[42:43], s%d, v162" % TAG)
    a("s_or_b64 vcc, vcc, s[40:41]")
    a("s_or_b64 vcc, vcc, s[42:43]")
    a("s_and_b64 vcc, vcc, s[56:57]")
    a("s_cmp_eq_u64 vcc, 0")
    a("s_cbranch_scc1 L_dn_pb")
    a("s_sleep 8")
    a("s_sub_u32 s60, s60, 1")
    a("s_cbranch_scc0 L_dn_pa")
    a.label("L_dn_pb")
    stamp(a, 8)
    a("v_mov_b32 v6, v8")
    a("v_mov_b32 v7, v9")
    a("v_mov_b32 v8, v160")
    a("v_mov_b32 v9, v161")
    sum8(a, (4, 5, 6, 7, 8, 9))
    for t in range(3):
        g, u = 4 + 2 * t, 5 + 2 * t
        bf16_round(a, g, g)
        bf16_round(a, u, u)
        sigmoid(a, 10, g)
        a("v_mul_f32 v%d, v%d, v10" % (g, g))
        bf16_round(a, g, g)
        a("v_mul_f32 v%d, v%d, v%d" % (g, g, u))
        a("v_cvt_pk_bf16_f32 v%d, v%d, v%d" % (g, g, g))
        a("v_and_b32 v%d, 0xffff, v%d" % (g, g))
        a("v_lshlrev_b32 v%d, v1, v%d" % (g, g))
    for t in range(3):
        selector(a, 12, 4 + 2 * t, 44)
        for cg in range(9):
            d = vr(DA + 4 * cg, 4)
            a("v_mfma_f32_16x16x32_bf16 %s, %s, v[12:15], %s" % (d, vr(DW + 4 * (9 * t + cg), 4), "0" if t == 0 else d))
    a("s_mov_b64 exec, s[52:53]")
    for cg in range(9):
        for r in range(4):
            a("ds_write_b32 v164, v%d offset:%d" % (DA + 4 * cg + r, 256 * cg + 32 * r))
    a("s_mov_b64 exec, -1")
    for cg in range(9):
        a("ds_read2st64_b32 %s, v166 offset0:%d offset1:%d" % (vr(20 + 2 * cg, 2), cg, cg + 9))
    stage_spin(a, "L_dn_at", 0, 3, 10, 2)
    lds_spin(a, "L_dn_ax", 3, C_PA, 10, (1,), 1)
    for cg in range(9):
        a("v_add_f32 v%d, v%d, v%d" % (20 + 2 * cg, 20 + 2 * cg, 21 + 2 * cg))
        a("global_atomic_add_f32 v165, v%d, s[8:9] offset:%d" % (20 + 2 * cg, 256 * cg))
    a("v_mov_b32 v4, s38")
    a("v_mov_b32 v5, 1")
    a("s_waitcnt vmcnt(0)")
    stamp(a, 7)
    a("s_mov_b64 exec, 1")
    a("global_atomic_add v4, v5, s[8:9] sc1")
    stamp_end(a, 8, 1)


def kf(a):
    a.label(NAME)
    a("s_cmp_ge_u32 s2, 256")
    a("s_cbranch_scc1 L_end")
    stamp_init(a)
    stamp(a, 0)
    a("s_load_dwordx4 s[4:7], s[0:1], 0")
    a("s_load_dwordx2 s[8:9], s[0:1], 88")
    a("s_load_dwordx2 s[10:11], s[0:1], 72")
    a("s_load_dwordx2 s[14:15], s[0:1], 56")
    a("s_load_dwordx2 s[28:29], s[0:1], 16")
    a("v_lshrrev_b32 v1, 6, v0")
    a("v_and_b32 v0, 63, v0")
    a("v_readfirstlane_b32 s3, v1")
    a("s_and_b32 s30, s2, 3")
    a("s_bfe_u32 s31, s2, 0x10002")
    a("s_lshr_b32 s32, s2, 3")
    a("s_cmp_ge_u32 s32, 24")
    a("s_cbranch_scc1 L_sp")
    a("s_cmp_ge_u32 s3, 8")
    a("s_cbranch_scc1 L_help")
    gemm_phase(a)
    attention_phase(a)
    out_phase(a)
    late_and_slow(a)
    spare_phase(a)
    helpers(a)
    a.label("L_end")
    a("s_endpgm")
```

```python
from asmdsl import vr, sr
import layout as L
from common import *
from k2 import (KB, VB, QB, ONES, vK, vKt, vV, vStep, QM, QT, MSK, KF, VF, PP, SS, OO, T,
                k_reads, v_reads, qk, pv)

NAME = "gated_mix__sliding_block__moe_arch_mod__prompt_kernel"
SLOT = 34816
IMG = SLOT
WO = 66560
CTL = 149568
YB = 149696
HP = 150016
YT = 154624
XS = 156672
KF_LDS = 162304
PSLOT = (QB, QB + 4096, 140288, 144384, 158208)
KF_VGPR = 168
PART = 0
STG = 20480
XR, GR = 128, 136
vC = 154
TAG = 65
C_O, C_GO2, C_A, C_WO, C_PART, C_YRDY, C_B, C_1, C_GO1, C_C, C_PA, C_IDX, C_RSEL = 0, 4, 8, 12, 88, 32, 36, 40, 44, 48, 52, 56, 60
C_KMAX, C_KCNT, C_XS, C_GD, C_RED, C_RED2, C_FI = 64, 68, 72, 76, 80, 84, 16
F_Q, F_O, F_PA, F_Y = 0, 192, 448, 512


def lds_spin(a, name, addr_v, off, regs, conds, slp=1):
    n = len(conds)
    a("s_mov_b32 s60, 0x200000")
    a.label(name)
    a(("ds_read_b64 %s, v%d offset:%d" % (vr(regs, 2), addr_v, off)) if n == 2 else
      ("ds_read_b32 v%d, v%d offset:%d" % (regs, addr_v, off)))
    a("s_waitcnt lgkmcnt(0)")
    a("v_readfirstlane_b32 s61, v%d" % regs)
    if n == 2:
        a("v_readfirstlane_b32 s62, v%d" % (regs + 1))
        a("s_lshl_b32 s62, s62, 8")
        a("s_or_b32 s61, s61, s62")
        a("s_cmp_eq_u32 s61, %d" % (conds[0] | (conds[1] << 8)))
    else:
        a("s_cmp_eq_u32 s61, %d" % conds[0])
    a("s_cbranch_scc1 %s_d" % name)
    if slp:
        a("s_sleep %d" % slp)
    a("s_sub_u32 s60, s60, 1")
    a("s_cmp_lg_u32 s60, 0")
    a("s_cbranch_scc1 %s" % name)
    a.label(name + "_d")


def stage_spin(a, name, stage, vc=vC, T=T, slp=0):
    a("s_mov_b32 s60, 0x200000")
    a.label(name)
    a("ds_read_b32 v%d, v%d offset:%d" % (T, vc, C_A))
    a("s_waitcnt lgkmcnt(0)")
    a("v_readfirstlane_b32 s61, v%d" % T)
    a("s_bitcmp1_b32 s61, %d" % (8 * stage + 3))
    a("s_cbranch_scc1 %s_d" % name)
    if slp:
        a("s_sleep %d" % slp)
    a("s_sub_u32 s60, s60, 1")
    a("s_cmp_lg_u32 s60, 0")
    a("s_cbranch_scc1 %s" % name)
    a.label(name + "_d")


def landed(a, inc, vm):
    a("v_mov_b32 v%d, %s" % (T, hex(inc)))
    a("s_waitcnt vmcnt(%d)" % vm)
    a("s_mov_b64 exec, 1")
    a("ds_add_u32 v%d, v%d offset:%d" % (vC, T, C_A))
    a("s_mov_b64 exec, -1")


def poison(a):
    if OPT["nopois"]:
        a("s_nop 0")
        a("buffer_load_dword v155, v152, s[24:27], s59 offen")
        a("buffer_load_dword v155, v152, s[24:27], s59 offen")
        return
    for k in range(4):
        a("v_mov_b32 v%d, -1" % (120 + k))
    a("buffer_store_dwordx4 %s, v153, s[24:27], s58 offen sc1" % vr(120, 4))
    a("s_mov_b32 exec_hi, 0")
    a("buffer_store_dword v%d, v152, s[24:27], s59 offen sc1" % 120)
    a("s_mov_b32 exec_hi, -1")


def tail_touch(a):
    a("buffer_load_dword v155, v152, s[24:27], s59 offen")


def flag_poll(a, name, voff, vt, want, lanes, slp=1, width=1):
    a("s_mov_b64 exec, %s" % ("-1" if lanes == 64 else hex((1 << lanes) - 1)))
    a("s_mov_b32 s60, 0x40000")
    a.label(name)
    a("global_load_dword%s %s, v%d, s[8:9] sc1" % ("" if width == 1 else "x%d" % width, vr(vt, width), voff))
    a("s_waitcnt vmcnt(0)")
    a("v_cmp_eq_u32 vcc, %s, v%d" % (want, vt))
    a("s_cmp_eq_u64 vcc, exec")
    a("s_cbranch_scc1 %s_d" % name)
    if slp:
        a("s_sleep %d" % slp)
    a("s_sub_u32 s60, s60, 1")
    a("s_cmp_lg_u32 s60, 0")
    a("s_cbranch_scc1 %s" % name)
    a.label(name + "_d")
    a("s_mov_b64 exec, -1")


def lds_inc(a, vz, vt, off, rtn=False):
    a("v_mov_b32 v%d, 1" % vt)
    a("s_mov_b64 exec, 1")
    if rtn:
        a("ds_add_rtn_u32 v%d, v%d, v%d offset:%d" % (vt, vz, vt, off))
    else:
        a("ds_add_u32 v%d, v%d offset:%d" % (vz, vt, off))
    a("s_mov_b64 exec, -1")


def load_tag(a):
    a("s_mov_b32 s64, %d" % L.WS_EPOCH)
    a("s_load_dword s%d, s[8:9], s64" % TAG)


def make_tag(a):
    a("s_mul_i32 s%d, s%d, 0x9e3779b1" % (TAG, TAG))
    a("s_add_u32 s%d, s%d, 0x7f4a7c15" % (TAG, TAG))


def copy_scalars(a):
    a("s_mul_i32 s55, s34, %d" % (4 * L.PAIR_BYTES))
    a("s_mul_i32 s56, s35, 9216")
    a("s_add_u32 s55, s55, s56")
    a("s_lshl_b32 s56, s3, 10")
    a("s_add_u32 s55, s55, s56")
    for j in range(5):
        a("s_add_u32 s57, s3, %d" % (8 * j))
        a("s_mul_i32 s57, s57, 57")
        a("s_lshr_b32 s57, s57, 9")
        a("s_mul_i32 s57, s57, %d" % (L.PAIR_BYTES - 9216))
        a("s_add_u32 s57, s57, s55")
        a("s_add_u32 s%d, s57, %d" % (50 + j, 8192 * j))
    a("s_mul_i32 s58, s35, 12")
    a("s_add_u32 s58, s58, s34")
    a("s_lshl_b32 s58, s58, 7")
    a("s_add_u32 s58, s58, %d" % (L.WS_FLAG + F_Q * 128))


def decode2(a):
    a("s_and_b32 s30, s2, 3")
    a("s_bfe_u32 s33, s2, 0x10002")
    a("s_bfe_u32 s32, s2, 0x20003")
    a("s_lshl_b32 s31, s30, 2")
    a("s_add_u32 s31, s31, s32")
    a("s_lshl_b32 s32, s33, 3")
    a("s_lshr_b32 s34, s2, 5")
    if OPT["light"]:
        a("s_add_u32 s34, s34, 2")
        a("s_and_b32 s34, s34, 7")
    a("s_add_u32 s32, s32, s34")
    a("s_lshr_b32 s33, s2, 3")
    a("s_mul_i32 s34, s33, 57")
    a("s_lshr_b32 s34, s34, 9")
    a("s_mul_i32 s53, s34, 9")
    a("s_sub_u32 s53, s33, s53")
    a("s_lshl_b32 s52, s34, 3")
    a("s_and_b32 s34, s2, 7")
    a("s_add_u32 s52, s52, s34")
    a("s_sub_u32 s33, s2, 216")
    a("s_mul_i32 s34, s33, 57")
    a("s_lshr_b32 s34, s34, 9")
    a("s_mul_i32 s35, s34, 9")
    a("s_sub_u32 s33, s33, s35")
    a("s_add_u32 s34, s34, 24")
    a("s_cmp_ge_u32 s2, 216")
    a("s_cselect_b32 s52, s34, s52")
    a("s_cselect_b32 s53, s33, s53")


def qpoll(a, vc, name, own, r=16):
    R = dict(a=r, b=r + 1, c=r + 2)
    a("v_add_u32 v%(a)d, 2, v0" % R)
    a("v_mul_u32_u24 v%(b)d, 43, v%(a)d" % R)
    a("v_lshrrev_b32 v%(b)d, 7, v%(b)d" % R)
    a("v_mul_u32_u24 v%(c)d, 3, v%(b)d" % R)
    a("v_sub_u32 v%(a)d, v%(a)d, v%(c)d" % R)
    a("s_sub_u32 s35, s32, 2")
    a("v_add_u32 v%(a)d, s35, v%(a)d" % R)
    a("v_max_i32 v%(a)d, 0, v%(a)d" % R)
    a("v_mul_u32_u24 v%(a)d, 12, v%(a)d" % R)
    a("v_lshl_add_u32 v%(a)d, v%(b)d, 2, v%(a)d" % R)
    a("v_add_u32 v%(a)d, s30, v%(a)d" % R)
    a("v_lshlrev_b32 v%(a)d, 7, v%(a)d" % R)
    a("v_add_u32 v%d, %d, v%d" % (r, L.WS_FLAG + F_Q * 128, r))
    if own:
        lds_spin(a, name + "w", vc, C_1, r + 2, (8,), 0)
    flag_poll(a, name, r, r + 1, "s%d" % TAG, 7, OPT["qslp"])
    lds_inc(a, vc, r + 2, C_GO1)


def code_touch(a):
    if not OPT["ctouch"]:
        return
    lab = a.newlabel("pc")
    a("s_getpc_b64 s[20:21]")
    a.label(lab)
    a("s_sub_u32 s20, s20, %s-%s" % (lab, NAME))
    a("s_subb_u32 s21, s21, 0")
    a("s_lshr_b32 s22, s2, 3")
    a("s_mul_i32 s22, s22, %d" % (12 * 128))
    a("v_lshlrev_b32 v20, 7, v0")
    a("v_add_u32 v20, s22, v20")
    a("v_min_u32 v20, L_end-%s, v20" % NAME)
    a("s_mov_b64 exec, 0xfff")
    a("global_load_dword v21, v20, s[20:21]")
    a("s_mov_b64 exec, -1")


def gemm_phase(a):
    a("s_mul_i32 s33, s32, 43")
    a("s_lshr_b32 s33, s33, 7")
    a("s_mul_i32 s34, s33, 3")
    a("s_sub_u32 s34, s32, s34")
    a("s_lshl_b32 s34, s34, 2")
    a("s_add_u32 s34, s34, s30")
    a("s_lshl_b32 s35, s31, 3")
    a("s_add_u32 s35, s35, s33")
    a("s_cmp_lt_u32 s3, 4")
    a("s_cbranch_scc1 L_comp")
    a("s_cmp_lt_u32 s3, 6")
    a("s_cbranch_scc0 L_ldw")
    a("s_sub_u32 s36, s3, 4")
    a("v_and_b32 v7, 7, v0")
    a("s_lshl_b32 s41, s33, 3")
    a("s_lshl_b32 s42, s36, 6")
    a("s_add_u32 s41, s41, s42")
    a("v_add_u32 v7, s41, v7")
    a("v_mul_u32_u24 v7, 3456, v7")
    a("v_lshrrev_b32 v1, 3, v0")
    a("v_lshl_add_u32 v7, v1, 7, v7")
    a("s_mul_i32 s39, s35, %d" % (128 * 1152))
    a("s_mul_i32 s46, s34, 288")
    a("s_and_b32 s46, s46, 0xffffff80")
    a("s_sub_u32 s47, %d, s46" % (576 * 3456))
    a("v_mul_u32_u24 v1, 1152, v1")
    a("v_lshrrev_b32 v2, 4, v0")
    a("v_and_b32 v3, 7, v0")
    a("v_xor_b32 v3, v3, v2")
    a("v_lshl_add_u32 v4, v3, 4, v1")
    a("v_xor_b32 v3, 4, v3")
    a("v_lshl_add_u32 v5, v3, 4, v1")
    a("v_add_u32 v5, %d, v5" % (8 * 1152))
    a("s_mul_i32 s37, s36, %d" % (64 * 1152))
    a("s_lshl_b32 s38, s36, 13")
    a("s_waitcnt lgkmcnt(0)")
    srd_off(a, 20, 6, "s46", "s47")
    a("s_mov_b64 exec, 0xffffff")
    a("buffer_load_dword v20, v7, s[20:23], 0 offen")
    a("s_mov_b64 exec, -1")
    srd_off(a, 16, 4, "s39", 128 * 1152)

    def x_chunk(c):
        for i in range(8):
            a("s_add_u32 m0, s38, %d" % ((c % 4) * SLOT + i * 1024))
            a("s_add_u32 s40, s37, %d" % ((i >> 1) * 16 * 1152 + c * 128))
            a("buffer_load_dwordx4 v%d, s[16:19], s40 offen lds" % (4 + (i & 1)))

    x_chunk(0)
    load_tag(a)
    copy_scalars(a)
    stamp(a, 1)
    a("s_waitcnt vmcnt(8) lgkmcnt(0)")
    stamp(a, 2)

    def loader_loop(fn, n, first, ahead0):
        LA = OPT["la"]
        a("s_barrier")
        stamp(a, 13)
        nxt = first
        while nxt < ahead0:
            fn(nxt)
            nxt += 1
        stamp(a, 14)
        for c in range(9):
            a("s_waitcnt vmcnt(%d)" % (n * (nxt - 1 - c)))
            a("s_barrier")
            while nxt <= c + LA and nxt < 9:
                fn(nxt)
                nxt += 1

    loader_loop(x_chunk, 8, 1, 2)
    a("s_branch L_copy")
    a.label("L_ldw")
    a("s_movk_i32 s41, 3641")
    for i in range(9):
        a("v_add_u32 v1, %d, v0" % (64 * i))
        a("v_mul_u32_u24 v2, s41, v1")
        a("v_lshrrev_b32 v2, 16, v2")
        a("v_mul_u32_u24 v3, 18, v2")
        a("v_sub_u32 v3, v1, v3")
        a("v_bfe_u32 v1, v2, 2, 2")
        a("v_lshlrev_b32 v1, 3, v1")
        a("v_lshrrev_b32 v13, 4, v2")
        a("v_lshl_add_u32 v1, v13, 2, v1")
        a("v_and_b32 v2, 3, v2")
        a("v_add_u32 v1, v1, v2")
        a("v_mul_u32_u24 v1, 3456, v1")
        a("v_lshl_add_u32 v%d, v3, 4, v1" % (4 + i))
        if i == 2:
            a("s_waitcnt lgkmcnt(0)")
            load_tag(a)
    a("s_sub_u32 s36, s3, 6")
    a("s_mul_i32 s37, s36, %d" % (32 * 3456))
    a("s_mul_i32 s38, s36, 9216")
    a("s_mul_i32 s39, s34, 288")
    a("s_sub_u32 s42, %d, s39" % (576 * 3456))
    copy_scalars(a)
    srd_off(a, 16, 6, "s39", "s42")
    a("s_waitcnt lgkmcnt(0)")

    def w_chunk(c):
        a("s_add_u32 s40, s37, %d" % (c * 64 * 3456))
        for i in range(9):
            a("s_add_u32 m0, s38, %d" % ((c % 4) * SLOT + 16384 + i * 1024))
            a("s_nop 0")
            a("buffer_load_dwordx4 v%d, s[16:19], s40 offen lds" % (4 + i))

    loader_loop(w_chunk, 9, 0, OPT["wa0"])
    a("s_branch L_copy")
    a.label("L_comp")
    ACC, XF, WF = 64, (136, 144), 24
    a("v_and_b32 v8, 15, v0")
    a("v_lshrrev_b32 v9, 4, v0")
    a("v_lshrrev_b32 v10, 1, v8")
    a("v_xor_b32 v10, v10, v9")
    a("s_lshl_b32 s36, s3, 12")
    a("v_lshlrev_b32 v2, 7, v8")
    a("v_lshl_add_u32 v2, v10, 4, v2")
    a("v_add_u32 v2, s36, v2")
    a("v_xor_b32 v3, 64, v2")
    a("v_add_u32 v4, %d, v2" % (2 * SLOT))
    a("v_add_u32 v5, %d, v3" % (2 * SLOT))
    a("v_lshrrev_b32 v10, 2, v0")
    a("v_mul_u32_u24 v6, 288, v10")
    a("v_and_b32 v10, 3, v0")
    a("v_lshl_add_u32 v6, v10, 3, v6")
    a("v_add_u32 v6, 16384, v6")
    a("v_add_u32 v7, %d, v6" % (2 * SLOT))
    a("s_waitcnt lgkmcnt(0)")
    load_tag(a)
    a("s_mov_b32 s36, 1.0")
    a("s_cmp_lt_u32 s34, 4")
    a("s_cselect_b32 s36, %s, s36" % f32(QSCALE))
    a("s_mov_b32 s37, s36")
    a("s_lshl_b32 s38, s3, 5")
    a("v_add_u32 v10, s38, v8")
    a("v_mul_u32_u24 v10, 72, v10")
    a("v_lshl_add_u32 v10, v9, 3, v10")
    a("v_add_u32 v10, %d, v10" % IMG)
    for ft in range(9):
        a("v_add_u32 v11, %d, v9" % (4 * ft))
        a("v_mul_u32_u24 v11, 57, v11")
        a("v_lshrrev_b32 v11, 9, v11")
        a("v_mul_u32_u24 v11, 9144, v11")
        a("v_add_u32 v%d, v11, v10" % (12 + ft))
    copy_scalars(a)
    a("s_waitcnt lgkmcnt(0)")

    def xreads(step):
        c, h2 = step >> 1, step & 1
        slot = c % 4
        return ["ds_read_b128 %s, v%d offset:%d" % (vr(XF[step & 1] + 4 * tt, 4), 2 + 2 * (slot >> 1) + h2,
                                                    (slot & 1) * SLOT + tt * 2048) for tt in range(2)]

    def wreads(step, ft):
        c, h2 = step >> 1, step & 1
        slot = c % 4
        return ["ds_read_b64_tr_b16 %s, v%d offset:%d" % (vr(WF + 4 * ft + 2 * sec, 2), 6 + (slot >> 1),
                                                          (slot & 1) * SLOT + h2 * 9216 + sec * 4608 + ft * 32)
                for sec in range(2)]

    def mfma(step, ft, tt):
        d = vr(ACC + 8 * ft + 4 * tt, 4)
        return "v_mfma_f32_16x16x32_bf16 %s, %s, %s, %s" % (
            d, vr(WF + 4 * ft, 4), vr(XF[step & 1] + 4 * tt, 4), "0" if step == 0 else d)

    def epi(k):
        ft, tt = k >> 1, k & 1
        b = ACC + 4 * k
        t = 152 + 2 * (k % 8)
        return ["v_pk_mul_f32 %s, %s, s[36:37]" % (vr(b, 2), vr(b, 2)),
                "v_pk_mul_f32 %s, %s, s[36:37]" % (vr(b + 2, 2), vr(b + 2, 2)),
                "v_cvt_pk_bf16_f32 v%d, v%d, v%d" % (t, b, b + 1),
                "v_cvt_pk_bf16_f32 v%d, v%d, v%d" % (t + 1, b + 2, b + 3),
                "ds_write_b64 v%d, %s offset:%d" % (12 + ft, vr(t, 2), 32 * ft + 1152 * tt)]

    a("s_barrier")
    a("s_barrier")
    stamp(a, 1)
    q = []

    def issue(tag, lst):
        for x in lst:
            a(x)
            q.append(tag)

    def need(tag):
        last = max(k for k, v in enumerate(q) if v == tag)
        a("s_waitcnt lgkmcnt(%d)" % min(15, len(q) - 1 - last))

    issue(("x", 0), xreads(0))
    for ft in range(9):
        issue(("w", 0, ft), wreads(0, ft))
    LAG = 3
    for step in range(18):
        if step & 1 and step < 17:
            a("s_barrier")
        for ft in range(9):
            need(("w", step, ft))
            a(mfma(step, ft, 0))
            if ft == 0 and step < 17:
                issue(("x", step + 1), xreads(step + 1))
            if step == 17 and 2 * ft >= LAG:
                e = epi(2 * ft - LAG)
                for x in e[:4]:
                    a(x)
                issue("e", e[4:])
            a(mfma(step, ft, 1))
            if step < 17:
                issue(("w", step + 1, ft), wreads(step + 1, ft))
            elif 2 * ft + 1 >= LAG:
                e = epi(2 * ft + 1 - LAG)
                for x in e[:4]:
                    a(x)
                issue("e", e[4:])
    for k in range(18 - LAG, 18):
        for x in epi(k):
            a(x)
    stamp(a, 2)
    a("s_waitcnt lgkmcnt(0)")
    a.label("L_copy")
    a("v_lshlrev_b32 v1, 4, v0")
    a("s_lshl_b32 s36, s3, 10")
    a("v_add_u32 v2, s36, v1")
    a("v_add_u32 v3, %d, v2" % (IMG + 4 * 8192))
    srd(a, 24, 8, L.QKV_BYTES)
    make_tag(a)
    a("s_barrier")
    for j in range(4):
        a("ds_read_b128 %s, v2 offset:%d" % (vr(4 + 4 * j, 4), IMG + j * 8192))
    a("s_cmp_lt_u32 s3, 4")
    a("s_cbranch_scc0 L_c4")
    a("ds_read_b128 v[20:23], v3")
    a("s_waitcnt lgkmcnt(0)")
    a("buffer_store_dwordx4 v[20:23], v1, s[24:27], s54 offen sc1")
    a.label("L_c4")
    for j in range(4):
        a("s_waitcnt lgkmcnt(%d)" % (3 - j))
        a("buffer_store_dwordx4 %s, v1, s[24:27], s%d offen sc1" % (vr(4 + 4 * j, 4), 50 + j))
    a("s_mov_b32 s63, s58")
    a("v_mov_b32 v%d, %d" % (vC, CTL))
    lds_inc(a, vC, 24, C_FI)
    stamp(a, 3)


def spare_phase(a):
    GW = 64
    a.label("L_sp")
    a("s_sub_u32 s36, s2, 192")
    a("s_cmp_ge_u32 s3, 8")
    a("s_cbranch_scc1 L_sp_ffn")
    a("s_cmp_ge_u32 s3, 4")
    a("s_cbranch_scc1 L_sp_hi")
    a("s_load_dwordx2 s[60:61], s[0:1], 32")
    a("s_load_dwordx2 s[62:63], s[0:1], 64")
    a("v_lshrrev_b32 v2, 3, v0")
    a("v_and_b32 v3, 7, v0")
    a("v_lshlrev_b32 v3, 4, v3")
    a("s_lshl_b32 s34, s36, 2")
    a("s_add_u32 s34, s34, s3")
    a("s_lshl_b32 s33, s34, 3")
    a("v_add_u32 v1, s33, v2")
    a("v_mul_u32_u24 v4, 1152, v1")
    a("v_add_u32 v4, v4, v3")
    a("s_mul_i32 s51, s34, %d" % (7 * 128))
    a("s_mul_i32 s52, s34, %d" % (21 * 128))
    a("v_lshlrev_b32 v7, 7, v0")
    a("s_waitcnt lgkmcnt(0)")
    load_tag(a)
    srd(a, 16, 6, 576 * 3456)
    srd(a, 20, 28, 576 * 1152)
    for i in range(9):
        a("global_load_dwordx4 %s, v4, s[4:5] offset:%d" % (vr(8 + 4 * i, 4), 128 * i))
        if i == 0:
            for j in range(9):
                a("global_load_dwordx4 %s, v3, s[60:61] offset:%d" % (vr(44 + 4 * j, 4), 128 * j))
                a("global_load_dwordx4 %s, v3, s[62:63] offset:%d" % (vr(80 + 4 * j, 4), 128 * j))
        else:
            a("s_add_u32 s53, s51, %d" % (1728 * 128 * i))
            a("s_mov_b64 exec, 0x7f")
            a("buffer_load_dword v124, v7, s[16:19], s53 offen")
            a("s_mov_b64 exec, -1")
    a("s_mov_b64 exec, 0x1fffff")
    a("buffer_load_dword v124, v7, s[20:23], s52 offen")
    a("s_mov_b64 exec, -1")
    a("v_mov_b32 v%d, %d" % (vC, CTL))
    a("s_waitcnt lgkmcnt(0)")
    make_tag(a)
    a("s_barrier")
    a("s_waitcnt vmcnt(2)")
    for i in range(36):
        p = 116 + (i & 3)
        a("v_dot2_f32_bf16 v%d, v%d, v%d, %s" % (p, 8 + i, 44 + i, "0" if i < 4 else "v%d" % p))
    a("s_nop 1")
    a("v_pk_add_f32 v[116:117], v[116:117], v[118:119]")
    a("v_add_f32 v5, v116, v117")
    sum8(a, (5,))
    bf16_round(a, 5, 5)
    a("v_ashrrev_i32 v7, 31, v5")
    a("v_or_b32 v7, 0x80000000, v7")
    a("v_xor_b32 v7, v7, v5")
    a("v_and_b32 v7, 0xffff0000, v7")
    a("v_sub_u32 v6, 0x7ff, v1")
    a("v_or_b32 v7, v7, v6")
    a("v_mov_b32 v5, 1")
    a("s_mov_b32 s54, 0x01010101")
    a("s_mov_b32 exec_lo, s54")
    a("s_mov_b32 exec_hi, s54")
    a("ds_max_u32 v%d, v7 offset:%d" % (vC, C_KMAX))
    a("s_mov_b64 exec, 1")
    a("ds_add_rtn_u32 v5, v%d, v5 offset:%d" % (vC, C_KCNT))
    a("ds_read_b32 v7, v%d offset:%d" % (vC, C_KMAX))
    a("s_lshl_b32 s53, s36, 3")
    a("s_add_u32 s53, s53, %d" % L.WS_KEYF)
    a("v_mov_b32 v4, s53")
    a("v_mov_b32 v6, s%d" % TAG)
    a("s_waitcnt lgkmcnt(0)")
    a("v_cmp_eq_u32 vcc, 3, v5")
    a("s_and_b64 exec, exec, vcc")
    a("s_cbranch_execz L_sp_nopub")
    a("global_store_dwordx2 v4, v[6:7], s[8:9] sc1")
    a.label("L_sp_nopub")
    a("s_mov_b64 exec, -1")
    stamp(a, 1)
    a("s_mov_b32 s55, 0x3f803f80")
    for i in range(36):
        x, w, p = 8 + i, 80 + i, 116 + (i & 3)
        t = 44 + 4 * (i & 3)
        a("v_lshlrev_b32 v%d, 16, v%d" % (t, x))
        a("v_and_b32 v%d, 0xffff0000, v%d" % (t + 1, x))
        a("v_lshlrev_b32 v%d, 16, v%d" % (t + 2, w))
        a("v_and_b32 v%d, 0xffff0000, v%d" % (t + 3, w))
        a("v_pk_mul_f32 %s, %s, %s" % (vr(t, 2), vr(t, 2), vr(t + 2, 2)))
        a("v_cvt_pk_bf16_f32 v%d, v%d, v%d" % (t, t, t + 1))
        a("v_dot2_f32_bf16 v%d, v%d, s55, %s" % (p, t, "0" if i < 4 else "v%d" % p))
    a("s_nop 1")
    a("v_pk_add_f32 v[116:117], v[116:117], v[118:119]")
    a("v_add_f32 v6, v116, v117")
    sum8(a, (6,))
    bf16_round(a, 6, 6)
    sigmoid(a, 6, 6)
    bf16_round(a, 6, 6)
    a("v_lshlrev_b32 v1, 2, v1")
    a("v_add_u32 v1, %d, v1" % L.WS_G)
    a("s_mov_b32 exec_lo, s54")
    a("s_mov_b32 exec_hi, s54")
    a("global_store_dword v1, v6, s[8:9] sc1")
    a("s_mov_b64 exec, -1")
    a("s_waitcnt vmcnt(0)")
    lds_inc(a, vC, 5, C_GD)
    if OPT["dtouch"]:
        srd(a, 16, 14, 4608 * 1152)
        a("s_mul_i32 s52, s34, %d" % (162 * 128))
        a("v_lshlrev_b32 v7, 7, v0")
        for k in range(3):
            a("buffer_load_dword v124, v7, s[16:19], s52 offen")
            a("s_add_u32 s52, s52, %d" % (54 * 128))
    a("s_mov_b32 s63, 0")
    stamp(a, 2)
    a("s_branch L_att")

    a.label("L_sp_hi")
    a("s_cmp_eq_u32 s3, 7")
    a("s_cbranch_scc0 L_sp_hi1")
    code_touch(a)
    a.label("L_sp_hi1")
    a("v_mov_b32 v%d, %d" % (vC, CTL))
    a("s_waitcnt lgkmcnt(0)")
    load_tag(a)
    a("s_mov_b32 s63, 0")
    a("s_waitcnt lgkmcnt(0)")
    make_tag(a)
    a("s_barrier")
    a("s_cmp_eq_u32 s3, 4")
    a("s_cbranch_scc1 L_sp_w4")
    a("s_cmp_eq_u32 s3, 5")
    a("s_cbranch_scc0 L_att")
    a("s_lshl_b32 s56, s36, 7")
    a("s_add_u32 s56, s56, %d" % (L.WS_FLAG + F_PA * 128))
    a("v_mov_b32 v9, s56")
    lds_spin(a, "L_sp_x5", vC, C_XS, 10, (1, 4), 4)
    a("ds_read_b64 v[14:15], v%d offset:%d" % (vC, C_IDX))
    a("v_mov_b32 v12, s%d" % TAG)
    a("s_waitcnt lgkmcnt(0)")
    a("v_mov_b32 v13, v14")
    a("v_mov_b32 v14, v15")
    a("s_mov_b64 exec, 1")
    a("global_store_dwordx3 v9, v[12:14], s[8:9] sc1")
    a("s_mov_b64 exec, -1")
    a("s_branch L_att")
    a.label("L_sp_w4")
    for k in range(4):
        a("v_mov_b32 v%d, 0" % (12 + k))
    a("s_cmp_lt_u32 s36, 36")
    a("s_cbranch_scc0 L_sp_nz")
    a("s_lshl_b32 s51, s36, 10")
    a("s_add_u32 s51, s51, %d" % L.WS_YP)
    a("v_lshlrev_b32 v4, 4, v0")
    a("v_add_u32 v4, s51, v4")
    a("global_store_dwordx4 v4, v[12:15], s[8:9] sc1")
    a("s_cmp_eq_u32 s36, 0")
    a("s_cbranch_scc0 L_sp_nz")
    a("v_lshlrev_b32 v4, 7, v0")
    a("v_add_u32 v4, %d, v4" % (L.WS_FLAG + F_Y * 128))
    a("global_store_dword v4, v12, s[8:9] sc1")
    a.label("L_sp_nz")
    a("v_lshlrev_b32 v8, 3, v0")
    a("v_add_u32 v8, %d, v8" % L.WS_KEYF)
    srd(a, 24, 4, 2048 * 1152)
    lds_spin(a, "L_sp_own", vC, C_KCNT, 10, (4,), 2)
    a("s_sleep %d" % OPT["slp0"])
    flag_poll(a, "L_sp_kp", 8, 10, "s%d" % TAG, 64, OPT["slp"], 2)
    a("v_lshlrev_b32 v8, 4, v0")
    stamp(a, 1)
    wave_umax(a, 11, 53)
    a("s_and_b32 s54, s53, 0x7ff")
    a("s_sub_u32 s54, 2047, s54")
    a("s_mul_i32 s55, s54, 1152")
    a("s_mov_b32 m0, %d" % XS)
    a("s_add_u32 s56, s55, 1024")
    a("buffer_load_dwordx4 v8, s[24:27], s55 offen lds")
    a("s_mov_b32 m0, %d" % (XS + 1024))
    a("s_mov_b64 exec, 0xff")
    a("buffer_load_dwordx4 v8, s[24:27], s56 offen lds")
    a("s_mov_b64 exec, -1")
    a("s_and_b32 s55, s53, 0xffff0000")
    a("s_xor_b32 s56, s55, 0x80000000")
    a("s_xor_b32 s57, s55, 0xffff0000")
    a("s_bitcmp1_b32 s55, 31")
    a("s_cselect_b32 s55, s56, s57")
    a("v_mov_b32 v12, s55")
    sigmoid(a, 13, 12)
    bf16_round(a, 13, 13)
    a("v_mov_b32 v12, s54")
    a("ds_write_b64 v%d, v[12:13] offset:%d" % (vC, C_IDX))
    a("v_mov_b32 v12, 1")
    a("s_waitcnt vmcnt(0)")
    a("ds_write_b32 v%d, v12 offset:%d" % (vC, C_XS))
    stamp(a, 2)
    a("s_branch L_att")

    a.label("L_sp_ffn")
    a("s_load_dwordx4 s[40:43], s[0:1], 40")
    a("v_mov_b32 v3, %d" % CTL)
    for k in range(4):
        a("v_mov_b32 v%d, 0" % (4 + k))
    a("v_lshlrev_b32 v1, 4, v0")
    a("v_add_u32 v2, v1, v3")
    a("s_mov_b64 exec, 0xff")
    a("ds_write_b128 v2, v[4:7]")
    a("s_mov_b64 exec, -1")
    a("v_lshlrev_b32 v2, 2, v0")
    a("v_add_u32 v2, %d, v2" % (XS + 1152))
    a("ds_write_b32 v2, v4")
    a("s_sub_u32 s59, s3, 8")
    a("s_mul_i32 s37, s36, 57")
    a("s_lshr_b32 s37, s37, 9")
    a("s_mul_i32 s38, s37, 9")
    a("s_sub_u32 s38, s36, s38")
    a("s_mul_i32 s49, s37, 84")
    a("s_mul_i32 s39, s49, 9216")
    a("s_lshl_b32 s48, s38, 10")
    a("s_add_u32 s39, s39, s48")
    a("s_sub_u32 s48, %d, s39" % (576 * 9216))
    a("s_min_i32 s48, s48, %d" % (83 * 9216 + 1024))
    a("s_max_i32 s48, s48, 0")
    a("v_lshrrev_b32 v160, 5, v0")
    a("v_mul_u32_u24 v160, 9216, v160")
    a("v_and_b32 v161, 31, v0")
    a("v_lshl_add_u32 v160, v161, 4, v160")
    a("s_mul_i32 s57, s59, 20480")
    a("s_add_u32 s57, s57, %d" % WO)
    a("s_mul_i32 s58, s59, %d" % (2 * 9216))
    a("s_waitcnt lgkmcnt(0)")
    load_tag(a)
    srd_off(a, 16, 40, "s39", "s48")
    srd_off(a, 20, 42, "s39", "s48")
    a("s_waitcnt lgkmcnt(0)")
    make_tag(a)
    a("s_barrier")
    for i in range(5):
        a("s_add_u32 s55, s58, %d" % (8 * (6 + i) * 9216))
        a("s_add_u32 s56, s55, 512")
        for k in range(4):
            a("s_add_u32 m0, s57, %d" % ((4 * i + k) * 1024))
            a("buffer_load_dwordx4 v160, s[%d:%d], s%d offen nt lds" % (16 + 4 * (k >> 1), 19 + 4 * (k >> 1), 55 + (k & 1)))
    for i in range(6):
        a("s_add_u32 s55, s58, %d" % (8 * i * 9216))
        for k in range(4):
            a("buffer_load_dwordx4 %s, v160, s[%d:%d], s55 offen offset:%d nt" % (
                vr(GW + 16 * i + 4 * k, 4), 16 + 4 * (k >> 1), 19 + 4 * (k >> 1), 512 * (k & 1)))
    a("s_lshl_b32 s55, s59, 1")
    a("s_add_u32 s55, s55, s49")
    a("v_lshrrev_b32 v51, 5, v0")
    a("v_add_u32 v51, s55, v51")
    a("v_lshlrev_b32 v51, 1, v51")
    a("v_add_u32 v51, %d, v51" % XS)
    a("v_and_b32 v2, 1, v0")
    a("v_lshlrev_b32 v2, 4, v2")
    a("v_lshrrev_b32 v4, 1, v0")
    a("v_xor_b32 v4, v4, v0")
    a("v_and_b32 v4, 8, v4")
    a("v_bfe_u32 v5, v0, 1, 2")
    a("v_or_b32 v4, v4, v5")
    for q in range(4):
        a("v_cmp_eq_u32 s[%d:%d], %d, v4" % (40 + 2 * q, 41 + 2 * q, q))
    a("v_bfe_u32 v4, v0, 3, 1")
    a("v_lshlrev_b32 v4, 9, v4")
    a("v_lshrrev_b32 v5, 4, v0")
    a("v_lshl_add_u32 v4, v5, 7, v4")
    a("v_and_b32 v5, 7, v0")
    a("v_lshl_add_u32 v4, v5, 2, v4")
    a("v_add_u32 v6, s57, v4")
    a("v_add_u32 v52, s57, v1")
    a("s_lshl_b32 s55, s59, 9")
    a("v_lshlrev_b32 v8, 3, v0")
    a("v_add_u32 v8, s55, v8")
    a("s_mul_i32 s52, s37, %d" % (4608 * 16))
    a("s_lshl_b32 s55, s38, 13")
    a("s_add_u32 s52, s52, s55")
    a("s_add_u32 s52, s52, %d" % L.WS_PA)
    a("v_lshlrev_b32 v9, 2, v8")
    a("v_add_u32 v9, s52, v9")
    a("v_add_u32 v8, %d, v8" % WO)
    stamp(a, 3)
    lds_spin(a, "L_sp_xs", 3, C_XS, 10, (1,), 2)
    a("s_setprio %d" % OPT["pr2"])
    stamp(a, 7)
    for i in range(11):
        a("ds_read_u16 v%d, v51 offset:%d" % (53 + i, 16 * i))
    a("s_waitcnt vmcnt(24)")
    for k in range(4):
        a("ds_read_b128 %s, v52 offset:%d" % (vr(32 + 4 * k, 4), 1024 * k))
    a("s_waitcnt lgkmcnt(4)")
    for i in range(11):
        a("v_lshlrev_b32 v%d, v2, v%d" % (53 + i, 53 + i))
    first = True
    for i in range(5):
        selector(a, 12, 53 + 6 + i, 40)
        for k in range(4):
            d = vr(16 + 4 * k, 4)
            a("s_waitcnt lgkmcnt(%d)" % (3 if i < 4 else 3 - k))
            a("v_mfma_f32_16x16x32_bf16 %s, %s, v[12:15], %s" % (d, vr(32 + 4 * k, 4), "0" if first else d))
            if i < 4:
                a("ds_read_b128 %s, v52 offset:%d" % (vr(32 + 4 * k, 4), 1024 * (4 * (i + 1) + k)))
        first = False
    stamp(a, 12)
    for i in range(6):
        selector(a, 12, 53 + i, 40)
        a("s_waitcnt vmcnt(%d)" % (4 * (5 - i)))
        for k in range(4):
            d = vr(16 + 4 * k, 4)
            a("v_mfma_f32_16x16x32_bf16 %s, %s, v[12:15], %s" % (d, vr(GW + 16 * i + 4 * k, 4), d))
    stamp(a, 11)
    for k in range(4):
        for r in range(4):
            a("ds_write_b32 v6, v%d offset:%d" % (16 + 4 * k + r, 1024 * k + 32 * r))
    lds_inc(a, 3, 10, C_RED)
    lds_spin(a, "L_sp_rd", 3, C_RED, 10, (4,), 0)
    for p in range(4):
        a("ds_read_b64 %s, v8 offset:%d" % (vr(16 + 4 * p, 2), 20480 * p))
        a("ds_read_b64 %s, v8 offset:%d" % (vr(18 + 4 * p, 2), 20480 * p + 2048))
    a("v_mov_b32 v34, s%d" % TAG)
    a("v_mov_b32 v38, s%d" % TAG)
    a("s_waitcnt lgkmcnt(0)")
    lds_inc(a, 3, 10, C_RED2)
    for p in (2, 1):
        for h in range(2 * p):
            a("v_pk_add_f32 %s, %s, %s" % (vr(16 + 2 * h, 2), vr(16 + 2 * h, 2), vr(16 + 4 * p + 2 * h, 2)))
    a("v_mov_b32 v32, v16")
    a("v_mov_b32 v33, v18")
    a("v_mov_b32 v36, v17")
    a("v_mov_b32 v37, v19")
    a("s_cmp_eq_u32 s36, 63")
    a("s_cbranch_scc1 L_sp_nost")
    a("global_store_dwordx4 v9, v[32:35], s[8:9] sc1")
    a("global_store_dwordx4 v9, v[36:39], s[8:9] offset:16 sc1")
    a.label("L_sp_nost")
    stamp(a, 4)
    lds_spin(a, "L_sp_r2", 3, C_RED2, 10, (4,), 0)
    a("s_branch L_help2")


def attn_loop(a):
    for i in range(9):
        a.label("L_it%d" % i)
        S, P = SS[i & 1], PP[i & 1]
        ex = ["v_exp_f32 v%d, v%d" % (S + r, S + r) for r in range(16)]
        cv = ["v_cvt_pk_bf16_f32 v%d, v%d, v%d" % (P + q, S + 2 * q, S + 2 * q + 1) for q in range(8)]
        if i == 0:
            mk = ["v_bfi_b32 v%d, v%d, 0, v%d" % (P + q, MSK + q, P + q) for q in range(8)]
        elif i == 8:
            mk = ["v_and_b32 v%d, v%d, v%d" % (P + q, MSK + q, P + q) for q in range(8)]
        else:
            mk = []
        m1 = qk(i + 1) if i < 8 else []
        m2 = pv(i - 1, i == 1) if i > 0 else []
        a("s_waitcnt lgkmcnt(%d)" % (4 if 0 < i < 8 else 0))
        seq = m1[:1] + ex[0:4] + m1[1:] + (k_reads(i + 2) if i + 2 <= 8 else []) + ex[4:8] + cv[0:2] + m2[:1] + \
            ex[8:12] + cv[2:4] + m2[1:]
        if i + 1 <= 8:
            seq += ["v_add_u32 v%d, v%d, v%d" % (vV, vV, vStep)] + v_reads(i + 1)
        seq += ex[12:16] + cv[4:8] + mk
        for x in seq:
            a(x)
    a("s_waitcnt lgkmcnt(0)")
    for x in pv(8, False):
        a(x)


def attention_phase(a):
    a.label("L_att")
    decode2(a)
    a("s_mul_i32 s33, s31, %d" % L.PAIR_BYTES)
    a("s_mul_i32 s34, s32, 9216")
    a("s_add_u32 s33, s33, s34")
    a("v_mov_b32 v%d, %d" % (vC, CTL))
    KS, VS = 16 * L.PAIR_BYTES - 18432, 32 * L.PAIR_BYTES - 18432
    grp = [(QB, 0), (KB, KS), (VB, VS), (KB + 9216, KS + 9216), (VB + 9216, VS + 9216), (KB + 18432, KS + 18432), (VB + 18432, VS + 18432)]
    a("s_lshl_b32 s34, s3, 10")
    for j in range(8):
        lo, hi = (8 * j) // 9, min(8 * j + 7, 62) // 9
        l0, g0 = grp[lo][0] + (8 * j - 9 * lo) * 1024, grp[lo][1] + (8 * j - 9 * lo) * 1024
        l1, g1 = grp[hi][0] + (8 * j - 9 * hi) * 1024, grp[hi][1] + (8 * j - 9 * hi) * 1024
        if j == 7:
            a("s_min_u32 s34, s34, %d" % (6 * 1024))
        if lo == hi:
            a("s_add_u32 s%d, s34, %d" % (16 + j, l0))
            a("s_add_u32 s%d, s33, %d" % (44 + j, g0 - l0 & 0xffffffff))
        else:
            a("s_mov_b32 s35, %d" % l0)
            a("s_mov_b32 s36, %d" % (g0 - l0 & 0xffffffff))
            a("s_cmp_ge_u32 s3, %d" % (9 * hi - 8 * j))
            a("s_cselect_b32 s35, %d, s35" % (l1 & 0xffffffff))
            a("s_cselect_b32 s36, %d, s36" % (g1 - l1 & 0xffffffff))
            a("s_add_u32 s%d, s34, s35" % (16 + j))
            a("s_add_u32 s%d, s33, s36" % (44 + j))
        a("s_add_u32 s%d, s%d, s%d" % (44 + j, 44 + j, 16 + j))
    a("v_mov_b32 v10, s63")
    a("v_mov_b32 v11, s%d" % TAG)
    a("s_waitcnt vmcnt(0)")
    lds_inc(a, vC, 9, C_1, rtn=True)
    a("s_cmp_lg_u32 s63, 0")
    a("s_cselect_b32 s35, 7, 99")
    a("s_waitcnt lgkmcnt(0)")
    a("v_readfirstlane_b32 s36, v9")
    a("s_cmp_eq_u32 s36, s35")
    a("s_cbranch_scc0 L_nofl1")
    a("s_mov_b64 exec, 1")
    a("global_store_dword v10, v11, s[8:9] sc1")
    a("s_mov_b64 exec, -1")
    a.label("L_nofl1")
    stamp(a, 4)
    a("s_and_b32 s42, s3, 1")
    a("s_lshr_b32 s43, s3, 1")
    a("s_mul_i32 s35, s43, 2304")
    a("s_mul_i32 s36, s42, 40")
    a("v_and_b32 v%d, 31, v0" % T)
    a("v_lshrrev_b32 v%d, 5, v0" % (T + 1))
    a("v_mul_u32_u24 v%d, 72, v%d" % (vKt, T))
    a("v_add_u32 v%d, s35, v%d" % (vKt, vKt))
    a("v_lshl_add_u32 v%d, v%d, 4, v%d" % (vK, T + 1, vKt))
    a("v_add_u32 v%d, s36, v%d" % (vK, vK))
    a("v_add_u32 v%d, 32, v%d" % (vKt, vKt))
    a("v_bfe_u32 v%d, v0, 2, 2" % (T + 2))
    a("v_lshl_add_u32 v%d, v%d, 2, v%d" % (T + 2, T + 1, T + 2))
    a("v_mul_u32_u24 v%d, 72, v%d" % (T + 2, T + 2))
    a("s_add_u32 s37, s35, %d" % VB)
    a("v_add_u32 v%d, s37, v%d" % (T + 2, T + 2))
    a("v_and_b32 v%d, 3, v0" % (T + 3))
    a("v_lshlrev_b32 v%d, 3, v%d" % (T + 4, T + 3))
    a("v_add_u32 v%d, s36, v%d" % (T + 4, T + 4))
    a("v_and_b32 v%d, 16, v0" % (T + 5))
    a("v_cmp_eq_u32 s[38:39], 0, v%d" % (T + 5))
    a("v_cndmask_b32 v%d, 32, v%d, s[38:39]" % (T + 4, T + 4))
    a("v_add_u32 v%d, v%d, v%d" % (vV, T + 2, T + 4))
    a("v_and_b32 v%d, 19, v0" % (T + 5))
    a("v_cmp_lt_u32 s[38:39], 16, v%d" % (T + 5))
    a("v_mov_b32 v%d, %d" % (T + 6, ONES))
    a("v_cndmask_b32 v%d, v%d, v%d, s[38:39]" % (vV, vV, T + 6))
    a("v_mov_b32 v%d, 2304" % (T + 6))
    a("v_cndmask_b32 v%d, v%d, 0, s[38:39]" % (vStep, T + 6))
    a("v_lshlrev_b32 v%d, 2, v%d" % (T + 2, T + 1))
    a("v_sub_u32 v%d, v%d, v%d" % (T + 2, T, T + 2))
    a("v_mov_b32 v%d, 0xffff" % (T + 3))
    for q in range(8):
        kl = 8 * (q >> 1) + 2 * (q & 1)
        a("v_cmp_le_i32 s[38:39], %d, v%d" % (kl, T + 2))
        a("v_cmp_le_i32 s[40:41], %d, v%d" % (kl + 1, T + 2))
        a("v_cndmask_b32 v%d, 0, v%d, s[38:39]" % (MSK + q, T + 3))
        a("v_cndmask_b32 v%d, v%d, -1, s[40:41]" % (MSK + q, MSK + q))
    a("s_lshl_b32 s41, s32, 2")
    a("s_add_u32 s41, s41, s43")
    a("s_sub_i32 s41, 8, s41")
    a("s_lshl_b32 s35, s32, 3")
    a("s_lshl_b32 s36, s43, 1")
    a("s_add_u32 s35, s35, s36")
    a("s_mul_i32 s35, s35, 18432")
    a("s_lshl_b32 s58, s31, 10")
    a("s_lshl_b32 s36, s42, 9")
    a("s_add_u32 s58, s58, s36")
    a("s_add_u32 s58, s58, s35")
    a("s_lshr_b32 s59, s31, 1")
    a("s_lshl_b32 s59, s59, 8")
    a("s_and_b32 s36, s31, 1")
    a("s_lshl_b32 s36, s36, 3")
    a("s_add_u32 s59, s59, s36")
    a("s_lshl_b32 s36, s42, 2")
    a("s_add_u32 s59, s59, s36")
    a("s_add_u32 s59, s59, s35")
    a("s_add_u32 s59, s59, 16384")
    a("v_bfe_u32 v152, v0, 4, 1")
    a("v_mul_u32_u24 v152, 18432, v152")
    a("v_and_b32 v153, 15, v0")
    a("v_lshl_add_u32 v152, v153, 4, v152")
    a("v_lshrrev_b32 v153, 5, v0")
    a("v_lshl_add_u32 v153, v153, 8, v152")
    a("v_cmp_gt_u32 vcc, 32, v0")
    a("s_cmp_eq_u32 s42, 0")
    a("s_cselect_b64 s[54:55], vcc, 0")
    a("s_cselect_b64 s[56:57], 0, vcc")
    a("v_and_b32 v%d, 3, v0" % (T + 2))
    a("v_mul_u32_u24 v%d, 576, v%d" % (T + 2, T + 2))
    a("v_mov_b32 v%d, 0x3f803f80" % (T + 4))
    a("v_mov_b32 v%d, v%d" % (T + 5, T + 4))
    a("v_lshlrev_b32 v%d, 4, v0" % (T + 3))
    srd(a, 36, 8, L.QKV_BYTES)
    srd_off(a, 24, 8, L.WS_O, 128 * 18432)
    a("s_add_u32 s40, s3, 2")
    a("s_cmp_lt_u32 s3, 4")
    a("s_cselect_b32 s40, s3, s40")
    out_setup(a, 40)
    a("s_lshr_b32 s35, s2, 6")
    a("s_lshl_b32 s35, s35, 4")
    a("s_add_u32 s35, s35, s3")
    a("s_cmp_eq_u32 s35, %d" % (3 * 16 + 6))
    a("s_cbranch_scc0 L_nq2")
    lds_spin(a, "L_sp_x6", vC, C_XS, T + 8, (1,), 8)
    qpoll(a, vC, "L_qp2", False, T + 8)
    a.label("L_nq2")
    lds_spin(a, "L_go1", vC, C_1, T, (8, 1), OPT["g1s"])
    stamp(a, 5)
    for j in range(8):
        a("s_mov_b32 m0, s%d" % (16 + j))
        a("s_nop 0")
        a("buffer_load_dwordx4 v%d, s[36:39], s%d offen %s lds" % (T + 3, 44 + j, OPT["kvl"]))
    a("ds_write_b64 v%d, %s offset:%d" % (T + 2, vr(T + 4, 2), ONES))
    a("s_cmp_lt_u32 s32, 2")
    a("s_cbranch_scc1 L_late")
    landed(a, 1, 0)
    stage_spin(a, "L_sA", 0)
    stamp(a, 6)
    for x in q_reads() + k_reads(0) + k_reads(1) + v_reads(0):
        a(x)
    a("s_waitcnt lgkmcnt(7)")
    a("v_cndmask_b32 v%d, 0, v%d, s[54:55]" % (QT, QT))
    a("v_cndmask_b32 v%d, 0, v%d, s[56:57]" % (QT + 1, QT + 1))
    for x in qk(0):
        a(x)
    lds_inc(a, vC, T, C_B)
    x_loads(a)
    attn_loop(a)
    a.label("L_check")
    stamp(a, 7)
    a("s_mov_b32 s46, %s" % f32(2.0 ** 60))
    a("s_mov_b32 s47, %s" % f32(2.0 ** -60))
    a("s_mov_b32 s48, 0x7f800000")
    lds_spin(a, "L_pz", vC, C_C, T, (1,), 0)
    a("s_nop 3")
    a("v_rcp_f32 v%d, v%d" % (T, OO + 12))
    a("v_cmp_gt_f32 s[50:51], s46, v%d" % (OO + 12))
    a("v_cmp_lt_f32 vcc, s47, v%d" % (OO + 12))
    for k in range(6):
        a("v_add_f32 v%d, abs(v%d), abs(v%d)" % (T + 2 + k, OO + 2 * k, OO + 2 * k + 1))
    a("s_and_b64 s[50:51], s[50:51], vcc")
    a("v_pk_add_f32 %s, %s, %s" % (vr(T + 2, 2), vr(T + 2, 2), vr(T + 4, 2)))
    a("v_pk_add_f32 %s, %s, %s" % (vr(T + 2, 2), vr(T + 2, 2), vr(T + 6, 2)))
    a("v_add_f32 v%d, v%d, v%d" % (T + 2, T + 2, T + 3))
    a("v_cmp_gt_f32 vcc, s48, v%d" % (T + 2))
    a("s_and_b64 s[50:51], s[50:51], vcc")
    a("s_cmp_eq_u64 s[50:51], -1")
    a("s_cbranch_scc0 L_slow")
    a.label("L_fin")
    a("s_cmp_eq_u32 s42, 0")
    a("s_cbranch_scc1 L_fa")
    a("v_mov_b32 v%d, v%d" % (OO + 8, OO + 10))
    a("v_mov_b32 v%d, v%d" % (OO + 9, OO + 11))
    a.label("L_fa")
    for k in range(0, 10, 2):
        a("v_pk_mul_f32 %s, %s, %s op_sel_hi:[1,0]" % (vr(OO + k, 2), vr(OO + k, 2), vr(T, 2)))
    for q in range(5):
        a("v_cvt_pk_bf16_f32 v%d, v%d, v%d" % (T + 4 + q, OO + 2 * q, OO + 2 * q + 1))
    a("buffer_store_dwordx4 %s, v153, s[24:27], s58 offen sc1" % vr(T + 4, 4))
    a("s_mov_b32 exec_hi, 0")
    a("buffer_store_dword v%d, v152, s[24:27], s59 offen sc1" % (T + 8))
    a("s_mov_b32 exec_hi, -1")


def q_reads():
    return ["ds_read_b64 %s, v%d offset:%d" % (vr(QM, 2), vK, QB),
            "ds_read_b64 %s, v%d offset:%d" % (vr(QM + 2, 2), vK, QB + 8),
            "ds_read_b64 %s, v%d offset:%d" % (vr(QT, 2), vKt, QB)]


sKH, sPAIR, sTILE, sGATE, sSLOT, sOB, sXO = 6, 7, 13, 14, 15, 28, 29
A0, vXO, vRW, vCH, vSW, vSR, vL16, vPX, vPF = 156, 142, 140, 141, 143, 144, 162, 160, 161
GB = 154624


def out_setup(a, role):
    a("s_and_b32 s%d, s%d, 1" % (sKH, role))
    a("s_lshr_b32 s%d, s%d, 1" % (sPAIR, role))
    a("s_mul_i32 s%d, s52, 5" % sTILE)
    a("s_and_b32 s33, s%d, 7" % sTILE)
    a("s_sub_u32 s34, 8, s33")
    a("s_cmp_lt_u32 s33, 4")
    a("s_cselect_b32 s34, 0, s34")
    a("s_add_u32 s34, s34, s%d" % sPAIR)
    a("s_sub_u32 s35, s34, 5")
    a("s_cmp_ge_u32 s34, 5")
    a("s_cselect_b32 s34, s35, s34")
    a("s_add_u32 s%d, s%d, s34" % (sTILE, sTILE))
    a("s_lshl_b32 s98, s34, 6")
    a("s_mov_b32 s%d, 0x404" % sGATE)
    a("s_bitcmp1_b32 s%d, 2" % sTILE)
    a("s_cselect_b32 s%d, s%d, 4" % (sGATE, sGATE))
    a("s_mov_b32 s%d, %d" % (sSLOT, PSLOT[0]))
    for p in range(1, 5):
        a("s_cmp_eq_u32 s%d, %d" % (sPAIR, p))
        a("s_cselect_b32 s%d, %d, s%d" % (sSLOT, PSLOT[p], sSLOT))
    a("s_mul_i32 s%d, s%d, 18432" % (sOB, sTILE))
    a("s_lshl_b32 s33, s53, 7")
    a("s_add_u32 s%d, s%d, s33" % (sXO, sOB))
    a("s_lshl_b32 s33, s%d, 6" % sKH)
    a("s_add_u32 s%d, s%d, s33" % (sXO, sXO))
    a("s_mul_i32 s33, s%d, 9216" % sKH)
    a("s_add_u32 s%d, s%d, s33" % (sOB, sOB))
    a("s_add_u32 s96, s%d, 4096" % sOB)
    a("s_add_u32 s97, s%d, 8192" % sOB)
    a("v_lshrrev_b32 v%d, 2, v0" % vRW)
    a("v_and_b32 v%d, 3, v0" % vCH)
    a("v_mul_u32_u24 v%d, 1152, v%d" % (vXO, vRW))
    a("v_lshl_add_u32 v%d, v%d, 4, v%d" % (vXO, vCH, vXO))
    a("v_lshrrev_b32 v146, 2, v0")
    a("v_bfe_u32 v147, v0, 3, 2")
    a("v_lshlrev_b32 v147, 1, v147")
    a("v_bfe_u32 v148, v0, 1, 1")
    a("v_xor_b32 v147, v147, v148")
    a("v_and_b32 v148, 1, v0")
    a("v_lshlrev_b32 v148, 3, v148")
    a("v_lshl_add_u32 v148, v146, 7, v148")
    a("v_lshl_add_u32 v148, v147, 4, v148")
    a("s_mul_i32 s33, s%d, %d" % (sKH, 9 * 4096))
    a("s_add_u32 s33, s33, %d" % WO)
    a("s_lshl_b32 s34, s%d, 6" % sKH)
    a("v_xor_b32 v148, s34, v148")
    for t in range(4):
        a("v_xor_b32 v%d, %d, v148" % (A0 + t, 32 * t))
        a("v_add_u32 v%d, s33, v%d" % (A0 + t, A0 + t))
    a("v_lshlrev_b32 v%d, 4, v0" % vL16)
    a("s_lshl_b32 s33, s%d, 11" % sKH)
    a("s_add_u32 s%d, s%d, s33" % (sSLOT, sSLOT))
    a("v_add_u32 v%d, s%d, v%d" % (vPX, sSLOT, vL16))
    a("s_lshl_b32 s33, s33, 1")
    a("s_sub_u32 s33, 2048, s33")
    a("v_add_u32 v164, s33, v%d" % vPX)
    a("s_lshl_b32 s33, s%d, 1" % sPAIR)
    a("s_add_u32 s33, s33, s%d" % sKH)
    a("s_lshl_b32 s33, s33, 2")
    a("s_add_u32 s33, s33, %d" % CTL)
    a("v_mov_b32 v%d, s33" % vPF)
    a("v_xor_b32 v165, 4, v%d" % vPF)
    a("v_and_b32 v%d, 15, v0" % vSW)
    a("v_mul_u32_u24 v%d, 80, v%d" % (vSW, vSW))
    a("v_lshrrev_b32 v146, 4, v0")
    a("v_lshlrev_b32 v146, 3, v146")
    a("v_add3_u32 v%d, v%d, v146, s%d" % (vSW, vSW, sSLOT))
    a("v_mul_u32_u24 v%d, 80, v%d" % (vSR, vRW))
    a("v_lshl_add_u32 v%d, v%d, 4, v%d" % (vSR, vCH, vSR))
    a("v_add_u32 v%d, s%d, v%d" % (vSR, sSLOT, vSR))
    a("s_add_u32 s98, s98, %d" % GB)
    a("v_lshl_add_u32 v145, v%d, 2, s98" % vRW)
    a("s_cmp_lt_u32 s3, 4")
    a("s_cselect_b32 s33, 1, 0x100")
    a("v_mov_b32 v163, s33")


def x_loads(a):
    srd(a, 20, 4, 2048 * 1152)
    a("buffer_load_dwordx4 %s, v%d, s[20:23], s%d offen" % (vr(XR, 4), vXO, sXO))


def out_phase(a):
    WFR, OF, ACC, PX = (20, 36, 100), 64, (52, 56, 60, 116), (146, 120)
    a("s_cmp_ge_u32 s52, 26")
    a("s_cbranch_scc1 L_end")
    if not OPT["gissue"]:
        a("s_waitcnt vmcnt(0)")
    stamp(a, 8)
    a("s_mov_b64 exec, 1")
    a("ds_add_u32 v%d, v163 offset:%d" % (vC, C_O))
    a("s_mov_b64 exec, -1")
    a.label("L_out")

    def omx():
        for j in range(1):
            for q in range(4):
                xv = XR + 4 * j + q
                d = PX[j] + 2 * q
                a("v_lshlrev_b32 v%d, 16, v%d" % (d, xv))
                a("v_and_b32 v%d, 0xffff0000, v%d" % (d + 1, xv))
                a("v_pk_mul_f32 %s, %s, %s op_sel:[0,1] op_sel_hi:[1,1]" % (vr(d, 2), vr(d, 2), vr(GR + 2 * j, 2)))

    def reads(sl):
        st = WFR[sl % 3]
        return ["ds_read_b64_tr_b16 %s, v%d offset:%d" % (vr(st + 4 * t + 2 * sec, 2), A0 + t, (32 * sl + 16 * sec) * 128)
                for t in range(4) for sec in range(2)]

    lds_spin(a, "L_wo", vC, C_WO, 10, (2,), 0)
    for x in reads(0) + reads(1):
        a(x)
    a("s_mov_b32 s60, 0x200000")
    a.label("L_go2")
    a("ds_read_b64 v[10:11], v%d offset:%d" % (vC, C_O))
    a("s_waitcnt lgkmcnt(0)")
    a("v_readfirstlane_b32 s61, v10")
    a("v_readfirstlane_b32 s62, v11")
    a("s_and_b32 s61, s61, s%d" % sGATE)
    a("s_cmp_eq_u32 s61, s%d" % sGATE)
    a("s_cselect_b32 s62, s62, 0")
    a("s_cmp_eq_u32 s62, 1")
    a("s_cbranch_scc1 L_go2_d")
    a("s_sub_u32 s60, s60, 1")
    a("s_cbranch_scc0 L_go2")
    a.label("L_go2_d")
    if OPT["gissue"] == 2:
        a("s_cmp_eq_u32 s60, 0x200000")
        a("s_cbranch_scc1 L_go2_e")
        a("s_sleep %d" % OPT["cdel"])
        a.label("L_go2_e")
        a("s_waitcnt vmcnt(0)")
    elif OPT["cdel"]:
        a("s_sleep %d" % OPT["cdel"])
    stamp(a, 9)
    LAO = OPT["lao"]

    def oload(s):
        a("buffer_load_dwordx4 %s, v%d, s[24:27], s%d offen offset:%d sc1" % (vr(OF + 4 * s, 4), vL16, (sOB, 96, 97)[s // 4], 1024 * (s % 4)))

    def ocheck(sl):
        b = OF + 4 * sl
        if sl < 7:
            a("v_cmp_eq_u32 vcc, -1, v%d" % b)
        else:
            a("v_max3_u32 v10, v%d, v%d, v%d" % (b, b + 1, b + 2))
            a("v_max_u32 v10, v10, v%d" % (b + 3))
            a("v_cmp_eq_u32 vcc, -1, v10")
        a("s_nop 1")

    def oretry():
        for sl in range(9):
            a.label("L_or%d" % sl)
            a("s_sub_u32 s60, s60, 1")
            a("s_cbranch_scc1 L_ok%d" % sl)
            a("s_waitcnt vmcnt(0)")
            for s in range(sl, min(sl + LAO, 9)):
                oload(s)
            a("s_waitcnt vmcnt(%d)" % min(LAO - 1, 8 - sl))
            a("s_branch L_oc%d" % sl)

    RETRY.append(oretry)
    a("s_mov_b32 s60, 0x8000")
    for s in range(LAO):
        oload(s)
    a("ds_read_b32 v%d, v145" % GR)
    a("ds_read_b32 v10, v%d offset:%d" % (vC, C_IDX))
    srd(a, 20, 10, 2048 * 1152)
    a("s_waitcnt lgkmcnt(0) vmcnt(%d)" % LAO)
    a("v_readfirstlane_b32 s12, v10")
    a("v_sub_f32 v%d, 1.0, v%d" % (GR + 1, GR))
    bf16_round(a, GR + 1, GR + 1)
    omx()
    for sl in range(9):
        rd = reads(sl + 2) if sl < 7 else []
        a("s_waitcnt vmcnt(%d) lgkmcnt(%d)" % (min(LAO - 1, 8 - sl), 8 if sl < 8 else 0))
        a.label("L_oc%d" % sl)
        ocheck(sl)
        a("s_cbranch_vccnz L_or%d" % sl)
        a.label("L_ok%d" % sl)
        for t in range(4):
            d = vr(ACC[t], 4)
            a("v_mfma_f32_16x16x32_bf16 %s, %s, %s, %s" % (d, vr(WFR[sl % 3] + 4 * t, 4), vr(OF + 4 * sl, 4), "0" if sl == 0 else d))
            if t == 0 and sl + LAO < 9:
                oload(sl + LAO)
            for x in rd[2 * t:2 * t + 2]:
                a(x)
    stamp(a, 10)
    if OPT["stamp"]:
        a("s_sub_u32 s94, 0x8000, s60")
        a("s_mul_i32 s94, s94, 100")
        a("s_add_u32 s94, s94, s66")
        a("s_addc_u32 s95, s67, 0")
    a("v_mov_b32 v10, 1")
    a("ds_write_b128 v164, %s" % vr(ACC[2], 4))
    a("ds_write_b128 v164, %s offset:1024" % vr(ACC[3], 4))
    a("ds_write_b32 v165, v10 offset:%d" % C_PART)
    a("s_lshr_b32 s46, s12, 4")
    a("s_cmp_eq_u32 s46, s%d" % sTILE)
    a("s_cbranch_scc0 L_noy")
    lds_spin(a, "L_yw", vC, C_YRDY, 10, (1,))
    a("s_lshl_b32 s46, s%d, 7" % sKH)
    a("s_add_u32 s46, s46, %d" % YB)
    a("v_lshl_add_u32 v10, v%d, 5, s46" % vCH)
    a("ds_read_b128 v[12:15], v10")
    a("ds_read_b128 v[16:19], v10 offset:16")
    a("s_and_b32 s46, s12, 15")
    a("v_cmp_eq_u32 s[50:51], s46, v%d" % vRW)
    a("s_waitcnt lgkmcnt(0)")
    for q in range(4):
        xv = XR + q
        a("v_lshlrev_b32 v10, 16, v%d" % xv)
        a("v_and_b32 v11, 0xffff0000, v%d" % xv)
        a("v_add_f32 v10, v10, v%d" % (12 + 2 * q))
        a("v_add_f32 v11, v11, v%d" % (13 + 2 * q))
        a("v_cvt_pk_bf16_f32 v10, v10, v11")
        a("v_cndmask_b32 v%d, v%d, v10, s[50:51]" % (xv, xv))
    omx()
    a.label("L_noy")
    lds_spin(a, "L_pw", vPF, C_PART, 10, (1,), 0)
    stamp(a, 11)
    for t in range(2):
        a("ds_read_b128 %s, v%d offset:%d" % (vr(20 + 4 * t, 4), vPX, 1024 * t))
    a("s_waitcnt lgkmcnt(0)")
    for t in range(2):
        b = ACC[t]
        a("v_pk_add_f32 %s, %s, %s" % (vr(b, 2), vr(b, 2), vr(20 + 4 * t, 2)))
        a("v_pk_add_f32 %s, %s, %s" % (vr(b + 2, 2), vr(b + 2, 2), vr(22 + 4 * t, 2)))
        a("v_cvt_pk_bf16_f32 v%d, v%d, v%d" % (40 + 2 * t, b, b + 1))
        a("v_cvt_pk_bf16_f32 v%d, v%d, v%d" % (41 + 2 * t, b + 2, b + 3))
        a("ds_write_b64 v%d, %s offset:%d" % (vSW, vr(40 + 2 * t, 2), 32 * t))
    a("ds_read_b128 v[20:23], v%d" % vSR)
    a("s_waitcnt lgkmcnt(0)")
    for q in range(4):
        d = PX[0] + 2 * q
        a("v_lshlrev_b32 v%d, 16, v%d" % (10 + 2 * q, 20 + q))
        a("v_and_b32 v%d, 0xffff0000, v%d" % (11 + 2 * q, 20 + q))
        a("v_pk_fma_f32 %s, %s, %s, %s op_sel_hi:[1,0,1]" % (vr(d, 2), vr(10 + 2 * q, 2), vr(GR, 2), vr(d, 2)))
    for q in range(4):
        d = PX[0] + 2 * q
        a("v_cvt_pk_bf16_f32 v%d, v%d, v%d" % (32 + q, d, d + 1))
    a("buffer_store_dwordx4 v[32:35], v%d, s[20:23], s%d offen %s" % (vXO, sXO, OPT["ost"]))
    if OPT["stamp"]:
        stamp(a, 12)
        a("s_waitcnt vmcnt(0)")
        stamp(a, 13)
        stamp_end(a, OPT["stw"], 0)
        stamp_end(a, 10, 2)
    a("s_endpgm")


RETRY = []
GLATE = []


def late_and_slow(a):
    RETRY[0]()
    a.label("L_late")
    a("s_mul_i32 s50, s41, 2304")
    a("v_add_u32 v%d, s50, v%d" % (T + 8, vK))
    a("v_add_u32 v%d, s50, v%d" % (T + 9, vKt))
    a("v_mul_u32_u24 v%d, s41, v%d" % (T + 2, vStep))
    a("v_add_u32 v%d, v%d, v%d" % (vV, vV, T + 2))
    for r in list(range(OO, OO + 16)) + list(range(VF[0], VF[0] + 32)):
        a("v_mov_b32 v%d, 0" % r)
    landed(a, 1, 0)
    stage_spin(a, "L_lt", 0)
    for x in q_reads():
        a(x)
    a("s_waitcnt lgkmcnt(0)")
    lds_inc(a, vC, T, C_B)
    x_loads(a)
    a("s_bitcmp1_b32 s41, 0")
    a("s_cbranch_scc1 L_late1")
    for par in range(2):
        if par:
            a.label("L_late1")
        for x in k_reads(par, T + 8, T + 9, 0):
            a(x)
        for x in k_reads(par + 1, T + 8, T + 9, 0):
            a(x.replace("offset:8", "offset:2312").replace("offset:0", "offset:2304"))
        for x in v_reads(par):
            a(x)
        a("s_waitcnt lgkmcnt(7)")
        a("v_cndmask_b32 v%d, 0, v%d, s[54:55]" % (QT, QT))
        a("v_cndmask_b32 v%d, 0, v%d, s[56:57]" % (QT + 1, QT + 1))
        for x in qk(par):
            a(x)
        a("s_nop 7")
        a("s_nop 3")
        for i0 in range(2 - par, 9, 2):
            a("s_cmp_eq_u32 s41, %d" % i0)
            a("s_cbranch_scc1 L_it%d" % i0)
        a("s_branch L_it%d" % (8 - par))

    a.label("L_slow")
    vKs, vKts, vM, vD0, vNeg = T + 8, T + 9, T + 10, T + 11, T + 12
    a("v_and_b32 v%d, 31, v0" % T)
    a("v_lshrrev_b32 v%d, 5, v0" % (T + 1))
    a("v_lshlrev_b32 v%d, 2, v%d" % (vD0, T + 1))
    a("v_sub_u32 v%d, v%d, v%d" % (vD0, vD0, T))
    a("v_mov_b32 v%d, 0xff800000" % vNeg)
    a("v_mov_b32 v%d, v%d" % (vM, vNeg))
    a("s_max_i32 s50, s41, 0")
    a("s_sub_u32 s51, 8, s50")
    a("v_mul_u32_u24 v%d, s51, v%d" % (T, vStep))
    a("v_sub_u32 v%d, v%d, v%d" % (vV, vV, T))
    a("s_mul_i32 s51, s50, 2304")
    for r in range(16):
        a("v_mov_b32 v%d, 0" % (OO + r))
    for ps in range(2):
        lab = "L_sp%d" % ps
        a("v_add_u32 v%d, s51, v%d" % (vKs, vK))
        a("v_add_u32 v%d, s51, v%d" % (vKts, vKt))
        a("s_mov_b32 s46, s50")
        a.label(lab)
        for x in k_reads(0, vKs, vKts):
            a(x)
        if ps == 1:
            for x in v_reads(0):
                a(x)
        a("s_mov_b32 s47, -31")
        a("s_mov_b32 s48, 62")
        a("s_cmp_eq_u32 s46, 0")
        a("s_cselect_b32 s47, 1, s47")
        a("s_cselect_b32 s48, 30, s48")
        a("s_cmp_eq_u32 s46, 8")
        a("s_cselect_b32 s48, 31, s48")
        a("s_waitcnt lgkmcnt(0)")
        for x in qk(0):
            a(x)
        a("v_subrev_u32 v%d, s47, v%d" % (T, vD0))
        for r in range(16):
            a("v_add_u32 v%d, %d, v%d" % (T + 1, 8 * (r >> 2) + (r & 3), T))
            a("v_cmp_ge_u32 vcc, s48, v%d" % (T + 1))
            a("v_cndmask_b32 v%d, v%d, v%d, vcc" % (SS[0] + r, vNeg, SS[0] + r))
            if ps == 0:
                a("v_max_f32 v%d, v%d, v%d" % (vM, vM, SS[0] + r))
            else:
                a("v_sub_f32 v%d, v%d, v%d" % (SS[0] + r, SS[0] + r, vM))
                a("v_exp_f32 v%d, v%d" % (SS[0] + r, SS[0] + r))
        if ps == 1:
            for q in range(8):
                a("v_cvt_pk_bf16_f32 v%d, v%d, v%d" % (PP[0] + q, SS[0] + 2 * q, SS[0] + 2 * q + 1))
            for x in pv(0, False):
                a(x)
            a("v_add_u32 v%d, v%d, v%d" % (vV, vV, vStep))
        a("v_add_u32 v%d, 2304, v%d" % (vKs, vKs))
        a("v_add_u32 v%d, 2304, v%d" % (vKts, vKts))
        a("s_add_u32 s46, s46, 1")
        a("s_cmp_lt_u32 s46, 9")
        a("s_nop 7")
        a("s_nop 7")
        a("s_cbranch_scc1 %s" % lab)
        if ps == 0:
            a("v_mov_b32 v%d, v%d" % (T, vM))
            a("v_permlane32_swap_b32 v%d, v%d" % (T, vM))
            a("v_max_f32 v%d, v%d, v%d" % (vM, vM, T))
    a("v_rcp_f32 v%d, v%d" % (T, OO + 12))
    a("s_nop 1")
    a("s_branch L_fin")


def helpers(a):
    a.label("L_help")
    a("s_cmp_eq_u32 s3, 9")
    a("s_cbranch_scc0 L_help1")
    code_touch(a)
    a.label("L_help1")
    a("v_mov_b32 v3, %d" % CTL)
    for k in range(4):
        a("v_mov_b32 v%d, 0" % (4 + k))
    a("v_lshlrev_b32 v1, 4, v0")
    a("v_add_u32 v2, v1, v3")
    a("s_mov_b64 exec, 0xff")
    a("ds_write_b128 v2, v[4:7]")
    a("s_mov_b64 exec, -1")
    a("s_waitcnt lgkmcnt(0)")
    load_tag(a)
    a("s_barrier")
    a("s_barrier")
    a("s_waitcnt lgkmcnt(0)")
    make_tag(a)
    a.label("L_help2")
    decode2(a)
    a("s_cmp_eq_u32 s3, 8")
    a("s_cbranch_scc1 L_down")
    a("v_lshrrev_b32 v1, 5, v0")
    a("v_bfe_u32 v2, v0, 3, 2")
    a("v_lshrrev_b32 v10, 4, v0")
    a("v_lshlrev_b32 v10, 1, v10")
    a("v_and_b32 v11, 7, v0")
    a("v_xor_b32 v10, v10, v11")
    a("v_lshl_add_u32 v4, v1, 2, v2")
    a("v_mul_u32_u24 v4, 1152, v4")
    a("v_lshl_add_u32 v4, v10, 4, v4")
    a("v_mul_u32_u24 v5, 72, v1")
    a("v_add_u32 v5, v5, v2")
    a("v_mul_u32_u24 v5, 1152, v5")
    a("v_lshl_add_u32 v5, v10, 4, v5")
    a("s_sub_u32 s36, s3, 9")
    a("s_mul_i32 s37, s36, %d" % (20 * 1152))
    a("s_mul_i32 s43, s36, %d" % (144 * 1152))
    a("s_lshl_b32 s38, s36, 10")
    a("s_add_u32 s38, s38, %d" % WO)
    a("s_lshl_b32 s39, s53, 7")
    a("s_sub_u32 s42, %d, s39" % (576 * 1152))
    srd_off(a, 16, 28, "s39", "s42")
    srd_off(a, 24, 8, L.WS_O, 128 * 18432)
    a("v_mov_b32 v%d, %d" % (vC, CTL))
    a("s_sub_u32 s40, s3, 5")
    out_setup(a, 40)
    a("s_setprio %d" % OPT["pr3"])
    a("s_cmp_ge_u32 s2, 192")
    a("s_cbranch_scc1 L_wo_go")
    for k in range(9):
        a("s_barrier")
    a.label("L_wo_go")
    a("s_cmp_eq_u32 s3, 11")
    a("s_cbranch_scc1 L_ctl")
    a("s_cmp_ge_u32 s52, 26")
    a("s_cbranch_scc1 L_end")
    if OPT["woe"]:
        a("s_cmp_ge_u32 s2, 192")
        a("s_cbranch_scc1 L_wo_e_d")
        lds_spin(a, "L_wo_e", 3, C_FI, 10, (8,), 0)
    stamp(a, 5)
    for m in range(36):
        if m == OPT["woe"]:
            stage_spin(a, "L_wo_w", 0, 3, 10, 2)
        st, sec = m >> 1, m & 1
        a("s_add_u32 m0, s38, %d" % (2048 * m))
        if st < 16:
            a("s_add_u32 s40, s37, %d" % ((36 * st + 8 * sec) * 1152))
            a("buffer_load_dwordx4 v4, s[16:19], s40 offen lds")
        else:
            a("s_add_u32 s40, s43, %d" % ((288 * (st - 16) + 36 * sec + 16) * 1152))
            a("buffer_load_dwordx4 v5, s[16:19], s40 offen lds")
        if OPT["wth"] and m >= OPT["wth"] - 1:
            a("s_waitcnt vmcnt(%d)" % (OPT["wth"] - 1))
    x_loads(a)
    a("s_waitcnt vmcnt(1)")
    stamp(a, 6)
    lds_inc(a, 3, 4, C_WO)
    a("s_setprio 0")
    a("s_branch L_out")
    a.label("L_ctl")
    a("v_lshlrev_b32 v8, 7, v0")
    a("v_add_u32 v9, %d, v8" % (L.WS_FLAG + F_PA * 128))
    a("s_mul_i32 s46, s52, 5")
    a("s_lshr_b32 s46, s46, 3")
    a("s_min_u32 s46, s46, 14")
    a("s_lshl_b32 s46, s46, 11")
    a("s_add_u32 s46, s46, %d" % (L.WS_FLAG + F_O * 128))
    a("v_add_u32 v8, s46, v8")
    a("s_lshl_b32 s46, s32, 4")
    a("s_add_u32 s46, s46, s31")
    a("s_lshl_b32 s46, s46, 7")
    a("s_add_u32 s46, s46, %d" % (L.WS_FLAG + F_O * 128))
    a("v_mov_b32 v14, s46")
    a("v_mov_b32 v15, s%d" % TAG)
    a("s_cmp_ge_u32 s2, 192")
    a("s_cbranch_scc1 L_ct_0")
    qpoll(a, 3, "L_qp1", True)
    a.label("L_ct_0")
    AUXLATE = OPT["auxp"]
    def aux():
        flag_poll(a, "L_pap", 9, 4, "s%d" % TAG, 64, 8, 3)
        a("v_mov_b32 v10, v5")
        a("v_mov_b32 v11, v6")
        a("v_mov_b32 v4, 1")
        a("ds_write_b64 v3, v[10:11] offset:%d" % C_IDX)
        a("ds_write_b32 v3, v4 offset:%d" % C_PA)
        srd_off(a, 16, 8, L.WS_G, 8192)
        a("s_mul_i32 s40, s52, 320")
        a("v_lshlrev_b32 v4, 2, v0")
        a("buffer_load_dword v5, v4, s[16:19], s40 offen sc1")
        a("buffer_load_dword v6, v4, s[16:19], s40 offen offset:256 sc1")
        a("v_add_u32 v4, %d, v4" % GB)
        GLATE.append(1)
        stamp(a, 5)

    if not AUXLATE:
        aux()
    a("v_bfe_u32 v20, v0, 4, 1")
    a("v_mul_u32_u24 v20, 18432, v20")
    a("v_and_b32 v21, 15, v0")
    a("v_lshl_add_u32 v20, v21, 4, v20")
    a("v_lshrrev_b32 v21, 5, v0")
    a("v_lshl_add_u32 v22, v21, 2, v20")
    a("v_lshl_add_u32 v21, v21, 8, v20")
    for k in range(4):
        a("v_mov_b32 v%d, -1" % (24 + k))
    a("s_mul_i32 s54, s32, %d" % (8 * 18432))
    a("s_lshl_b32 s55, s31, 10")
    a("s_add_u32 s55, s55, s54")
    a("s_lshr_b32 s56, s31, 1")
    a("s_lshl_b32 s56, s56, 8")
    a("s_and_b32 s57, s31, 1")
    a("s_lshl_b32 s57, s57, 3")
    a("s_add_u32 s56, s56, s57")
    a("s_add_u32 s56, s56, s54")
    a("s_add_u32 s56, s56, 16384")
    stage_spin(a, "L_ct_p", 0, 3, 10, 0)
    for j in range(4):
        a("buffer_store_dword v24, v22, s[24:27], s56 offen sc1")
        a("buffer_store_dwordx4 v[24:27], v21, s[24:27], s55 offen sc1")
        a("buffer_store_dwordx4 v[24:27], v21, s[24:27], s55 offen offset:512 sc1")
        a("s_add_u32 s55, s55, %d" % (2 * 18432))
        a("s_add_u32 s56, s56, %d" % (2 * 18432))
    a("v_mov_b32 v4, 1")
    a("s_waitcnt vmcnt(0)")
    a("ds_write_b32 v3, v4 offset:%d" % C_C)
    a("s_mov_b64 exec, 1")
    a("global_store_dword v14, v15, s[8:9] sc1")
    a("s_mov_b64 exec, -1")
    stamp(a, 6)
    lds_spin(a, "L_ct_q", 3, C_B, 10, (8,), 1)
    if AUXLATE:
        aux()
    else:
        a("s_sleep %d" % OPT["slp3"])
    flag_poll(a, "L_op", 8, 12, "s%d" % TAG, 32, 2)
    a("ds_write_b32 v4, v5")
    a("ds_write_b32 v4, v6 offset:256")
    lds_inc(a, 3, 10, C_GO2)
    stamp(a, 7)
    stamp_end(a, 11 if OPT["st11"] else 99, 3)
    a("ds_read_b64 v[10:11], v3 offset:%d" % C_IDX)
    a("s_waitcnt lgkmcnt(0)")
    a("v_readfirstlane_b32 s12, v10")
    a("v_readfirstlane_b32 s13, v11")
    a("s_mul_i32 s46, s52, 80")
    a("s_sub_u32 s46, s12, s46")
    a("s_cmp_lt_u32 s46, 80")
    a("s_cbranch_scc0 L_end")
    a("v_lshlrev_b32 v4, 7, v0")
    a("v_add_u32 v4, %d, v4" % (L.WS_FLAG + F_Y * 128))
    srd_off(a, 16, 8, L.WS_YP, 16 * 2304)
    a("v_lshrrev_b32 v6, 4, v0")
    a("v_mul_u32_u24 v6, 2304, v6")
    a("v_and_b32 v7, 15, v0")
    a("v_lshlrev_b32 v7, 4, v7")
    a("v_add_u32 v6, v6, v7")
    a("v_add_u32 v7, %d, v7" % YB)
    a("s_lshl_b32 s40, s53, 8")
    flag_poll(a, "L_yp", 4, 5, "12", 16, 2)
    for i in range(4):
        a("buffer_load_dwordx4 %s, v6, s[16:19], s40 offen sc1" % vr(8 + 4 * i, 4))
        a("s_add_u32 s40, s40, %d" % (4 * 2304))
    a("s_waitcnt vmcnt(0)")
    for i in range(1, 4):
        a("v_pk_add_f32 v[8:9], v[8:9], %s" % vr(8 + 4 * i, 2))
        a("v_pk_add_f32 v[10:11], v[10:11], %s" % vr(10 + 4 * i, 2))
    for k in range(4):
        a("v_mov_b32 v20, v%d" % (8 + k))
        a("v_permlane32_swap_b32 v20, v%d" % (8 + k))
        a("v_add_f32 v%d, v%d, v20" % (8 + k, 8 + k))
        a("v_mov_b32 v20, v%d" % (8 + k))
        a("v_permlane16_swap_b32 v20, v%d" % (8 + k))
        a("v_add_f32 v%d, v%d, v20" % (8 + k, 8 + k))
        bf16_round(a, 8 + k, 8 + k)
        a("v_mul_f32 v%d, s13, v%d" % (8 + k, 8 + k))
        bf16_round(a, 8 + k, 8 + k)
    a("v_mov_b32 v12, 1")
    a("ds_write_b128 v7, v[8:11]")
    a("ds_write_b32 v3, v12 offset:%d" % C_YRDY)
    a("s_cmp_eq_u32 s53, 0")
    a("s_cbranch_scc0 L_end")
    a("v_mov_b32 v4, %d" % L.WS_EPOCH)
    a("v_mov_b32 v5, s%d" % TAG)
    a("s_mov_b64 exec, 1")
    a("global_store_dword v4, v5, s[8:9]")
    a("s_endpgm")

    a.label("L_down")
    a("s_cmp_ge_u32 s2, 192")
    a("s_cbranch_scc1 L_end")
    DW, DA = 20, 128
    a("v_lshrrev_b32 v2, 3, v0")
    a("v_and_b32 v10, 7, v0")
    a("v_mul_u32_u24 v16, 1152, v2")
    a("v_lshl_add_u32 v16, v10, 4, v16")
    a("s_mul_i32 s36, s2, 24")
    a("v_mul_u32_u24 v12, %d, v10" % (4608 * 16))
    a("v_add_u32 v11, s36, v2")
    a("v_lshl_add_u32 v17, v11, 4, v12")
    a("v_cmp_gt_u32 s[56:57], 7, v10")
    a("s_mul_i32 s37, s2, %d" % (24 * 1152))
    a("v_and_b32 v1, 1, v0")
    a("v_lshlrev_b32 v1, 4, v1")
    sel_masks(a, 44, 11)
    a("v_lshrrev_b32 v11, 5, v0")
    a("v_bfe_u32 v12, v0, 3, 1")
    a("v_cmp_eq_u32 s[52:53], v11, v12")
    a("v_mul_u32_u24 v12, 2304, v12")
    a("v_bfe_u32 v11, v0, 4, 1")
    a("v_lshl_add_u32 v12, v11, 7, v12")
    a("v_lshl_add_u32 v12, v10, 2, v12")
    a("v_add_u32 v164, %d, v12" % HP)
    a("v_lshlrev_b32 v165, 2, v0")
    a("v_add_u32 v166, %d, v165" % HP)
    a("s_and_b32 s38, s2, 15")
    a("s_mul_i32 s39, s38, 2304")
    a("s_add_u32 s39, s39, %d" % L.WS_YP)
    a("v_add_u32 v165, s39, v165")
    a("s_lshl_b32 s38, s38, 7")
    a("s_add_u32 s38, s38, %d" % (L.WS_FLAG + F_Y * 128))
    srd_off(a, 16, 14, "s37", 24 * 1152)
    srd_off(a, 20, 8, L.WS_PA, 7 * 4608 * 16)
    def dloads():
        for t in range(0 if OPT["nodown"] else 3):
            a("s_movk_i32 s40, %d" % (9216 * t))
            for cg in range(9):
                a("buffer_load_dwordx4 %s, v16, s[16:19], s40 offen offset:%d %s" % (vr(DW + 4 * (9 * t + cg), 4), 128 * cg, "" if OPT["dtouch"] else "nt"))

    for k in range(2, 11):
        if k == OPT["dpos"]:
            dloads()
        a("s_barrier")
    if OPT["w8e"]:
        lds_spin(a, "L_dn_w2", 3, C_1, 10, (8,), 2)
    else:
        stage_spin(a, "L_dn_w2", 0, 3, 10, 2)
    stamp(a, 5)
    a("s_setprio %d" % OPT["pr1"])
    a("s_mov_b32 s60, 0x40000")
    a.label("L_dn_pa")
    a("buffer_load_dwordx3 v[4:6], v17, s[20:23], 0 offen sc1")
    a("buffer_load_dwordx3 v[8:10], v17, s[20:23], 0 offen offset:128 sc1")
    a("buffer_load_dwordx3 v[160:162], v17, s[20:23], 0 offen offset:256 sc1")
    a("s_waitcnt vmcnt(0)")
    a("v_cmp_ne_u32 vcc, s%d, v6" % TAG)
    a("v_cmp_ne_u32 s[40:41], s%d, v10" % TAG)
    a("v_cmp_ne_u32 s[42:43], s%d, v162" % TAG)
    a("s_or_b64 vcc, vcc, s[40:41]")
    a("s_or_b64 vcc, vcc, s[42:43]")
    a("s_and_b64 vcc, vcc, s[56:57]")
    a("s_cmp_eq_u64 vcc, 0")
    a("s_cbranch_scc1 L_dn_pb")
    a("s_sleep 8")
    a("s_sub_u32 s60, s60, 1")
    a("s_cbranch_scc0 L_dn_pa")
    a.label("L_dn_pb")
    stamp(a, 8)
    a("v_mov_b32 v6, v8")
    a("v_mov_b32 v7, v9")
    a("v_mov_b32 v8, v160")
    a("v_mov_b32 v9, v161")
    sum8(a, (4, 5, 6, 7, 8, 9))
    for t in range(3):
        g, u = 4 + 2 * t, 5 + 2 * t
        bf16_round(a, g, g)
        bf16_round(a, u, u)
        sigmoid(a, 10, g)
        a("v_mul_f32 v%d, v%d, v10" % (g, g))
        bf16_round(a, g, g)
        a("v_mul_f32 v%d, v%d, v%d" % (g, g, u))
        a("v_cvt_pk_bf16_f32 v%d, v%d, v%d" % (g, g, g))
        a("v_and_b32 v%d, 0xffff, v%d" % (g, g))
        a("v_lshlrev_b32 v%d, v1, v%d" % (g, g))
    for t in range(3):
        selector(a, 12, 4 + 2 * t, 44)
        for cg in range(9):
            d = vr(DA + 4 * cg, 4)
            a("v_mfma_f32_16x16x32_bf16 %s, %s, v[12:15], %s" % (d, vr(DW + 4 * (9 * t + cg), 4), "0" if t == 0 else d))
    a("s_mov_b64 exec, s[52:53]")
    for cg in range(9):
        for r in range(4):
            a("ds_write_b32 v164, v%d offset:%d" % (DA + 4 * cg + r, 256 * cg + 32 * r))
    a("s_mov_b64 exec, -1")
    for cg in range(9):
        a("ds_read2st64_b32 %s, v166 offset0:%d offset1:%d" % (vr(20 + 2 * cg, 2), cg, cg + 9))
    stage_spin(a, "L_dn_at", 0, 3, 10, 2)
    lds_spin(a, "L_dn_ax", 3, C_PA, 10, (1,), 1)
    for cg in range(9):
        a("v_add_f32 v%d, v%d, v%d" % (20 + 2 * cg, 20 + 2 * cg, 21 + 2 * cg))
        a("global_atomic_add_f32 v165, v%d, s[8:9] offset:%d" % (20 + 2 * cg, 256 * cg))
    a("v_mov_b32 v4, s38")
    a("v_mov_b32 v5, 1")
    a("s_waitcnt vmcnt(0)")
    stamp(a, 7)
    a("s_mov_b64 exec, 1")
    a("global_atomic_add v4, v5, s[8:9] sc1")
    stamp_end(a, 8, 1)


def kf(a):
    a.label(NAME)
    a("s_cmp_ge_u32 s2, 256")
    a("s_cbranch_scc1 L_end")
    stamp_init(a)
    stamp(a, 0)
    a("s_load_dwordx4 s[4:7], s[0:1], 0")
    a("s_load_dwordx2 s[8:9], s[0:1], 88")
    a("s_load_dwordx2 s[10:11], s[0:1], 72")
    a("s_load_dwordx2 s[14:15], s[0:1], 56")
    a("s_load_dwordx2 s[28:29], s[0:1], 16")
    a("v_lshrrev_b32 v1, 6, v0")
    a("v_and_b32 v0, 63, v0")
    a("v_readfirstlane_b32 s3, v1")
    a("s_and_b32 s30, s2, 3")
    a("s_bfe_u32 s31, s2, 0x10002")
    a("s_lshr_b32 s32, s2, 3")
    a("s_cmp_ge_u32 s32, 24")
    a("s_cbranch_scc1 L_sp")
    a("s_cmp_ge_u32 s3, 8")
    a("s_cbranch_scc1 L_help")
    gemm_phase(a)
    attention_phase(a)
    out_phase(a)
    late_and_slow(a)
    spare_phase(a)
    helpers(a)
    a.label("L_end")
    a("s_endpgm")
```

```python
from asmdsl import vr, sr
import layout as L
from common import *
from k2 import (KB, VB, QB, ONES, vK, vKt, vV, vStep, QM, QT, MSK, KF, VF, PP, SS, OO, T,
                k_reads, v_reads, qk, pv)

NAME = "gated_mix__sliding_block__moe_arch_mod__prompt_kernel"
SLOT = 34816
IMG = SLOT
WO = 66560
CTL = 149568
YB = 149696
HP = 150016
YT = 154624
XS = 156672
KF_LDS = 162304
PSLOT = (QB, QB + 4096, 140288, 144384, 158208)
KF_VGPR = 168
PART = 0
STG = 20480
XR, GR = 128, 136
vC = 154
TAG = 65
C_O, C_GO2, C_A, C_WO, C_PART, C_YRDY, C_B, C_1, C_GO1, C_C, C_PA, C_IDX, C_RSEL = 0, 4, 8, 12, 88, 32, 36, 40, 44, 48, 52, 56, 60
C_KMAX, C_KCNT, C_XS, C_GD, C_RED, C_RED2, C_FI = 64, 68, 72, 76, 80, 84, 16
F_Q, F_O, F_PA, F_Y = 0, 192, 448, 512


def lds_spin(a, name, addr_v, off, regs, conds, slp=1):
    n = len(conds)
    a("s_mov_b32 s60, 0x200000")
    a.label(name)
    a(("ds_read_b64 %s, v%d offset:%d" % (vr(regs, 2), addr_v, off)) if n == 2 else
      ("ds_read_b32 v%d, v%d offset:%d" % (regs, addr_v, off)))
    a("s_waitcnt lgkmcnt(0)")
    a("v_readfirstlane_b32 s61, v%d" % regs)
    if n == 2:
        a("v_readfirstlane_b32 s62, v%d" % (regs + 1))
        a("s_lshl_b32 s62, s62, 8")
        a("s_or_b32 s61, s61, s62")
        a("s_cmp_eq_u32 s61, %d" % (conds[0] | (conds[1] << 8)))
    else:
        a("s_cmp_eq_u32 s61, %d" % conds[0])
    a("s_cbranch_scc1 %s_d" % name)
    if slp:
        a("s_sleep %d" % slp)
    a("s_sub_u32 s60, s60, 1")
    a("s_cmp_lg_u32 s60, 0")
    a("s_cbranch_scc1 %s" % name)
    a.label(name + "_d")


def stage_spin(a, name, stage, vc=vC, T=T, slp=0):
    a("s_mov_b32 s60, 0x200000")
    a.label(name)
    a("ds_read_b32 v%d, v%d offset:%d" % (T, vc, C_A))
    a("s_waitcnt lgkmcnt(0)")
    a("v_readfirstlane_b32 s61, v%d" % T)
    a("s_bitcmp1_b32 s61, %d" % (8 * stage + 3))
    a("s_cbranch_scc1 %s_d" % name)
    if slp:
        a("s_sleep %d" % slp)
    a("s_sub_u32 s60, s60, 1")
    a("s_cmp_lg_u32 s60, 0")
    a("s_cbranch_scc1 %s" % name)
    a.label(name + "_d")


def landed(a, inc, vm):
    a("v_mov_b32 v%d, %s" % (T, hex(inc)))
    a("s_waitcnt vmcnt(%d)" % vm)
    a("s_mov_b64 exec, 1")
    a("ds_add_u32 v%d, v%d offset:%d" % (vC, T, C_A))
    a("s_mov_b64 exec, -1")


def poison(a):
    if OPT["nopois"]:
        a("s_nop 0")
        a("buffer_load_dword v155, v152, s[24:27], s59 offen")
        a("buffer_load_dword v155, v152, s[24:27], s59 offen")
        return
    for k in range(4):
        a("v_mov_b32 v%d, -1" % (120 + k))
    a("buffer_store_dwordx4 %s, v153, s[24:27], s58 offen sc1" % vr(120, 4))
    a("s_mov_b32 exec_hi, 0")
    a("buffer_store_dword v%d, v152, s[24:27], s59 offen sc1" % 120)
    a("s_mov_b32 exec_hi, -1")


def tail_touch(a):
    a("buffer_load_dword v155, v152, s[24:27], s59 offen")


def flag_poll(a, name, voff, vt, want, lanes, slp=1, width=1):
    a("s_mov_b64 exec, %s" % ("-1" if lanes == 64 else hex((1 << lanes) - 1)))
    a("s_mov_b32 s60, 0x40000")
    a.label(name)
    a("global_load_dword%s %s, v%d, s[8:9] sc1" % ("" if width == 1 else "x%d" % width, vr(vt, width), voff))
    a("s_waitcnt vmcnt(0)")
    a("v_cmp_eq_u32 vcc, %s, v%d" % (want, vt))
    a("s_cmp_eq_u64 vcc, exec")
    a("s_cbranch_scc1 %s_d" % name)
    if slp:
        a("s_sleep %d" % slp)
    a("s_sub_u32 s60, s60, 1")
    a("s_cmp_lg_u32 s60, 0")
    a("s_cbranch_scc1 %s" % name)
    a.label(name + "_d")
    a("s_mov_b64 exec, -1")


def lds_inc(a, vz, vt, off, rtn=False):
    a("v_mov_b32 v%d, 1" % vt)
    a("s_mov_b64 exec, 1")
    if rtn:
        a("ds_add_rtn_u32 v%d, v%d, v%d offset:%d" % (vt, vz, vt, off))
    else:
        a("ds_add_u32 v%d, v%d offset:%d" % (vz, vt, off))
    a("s_mov_b64 exec, -1")


def load_tag(a):
    a("s_mov_b32 s64, %d" % L.WS_EPOCH)
    a("s_load_dword s%d, s[8:9], s64" % TAG)


def make_tag(a):
    a("s_mul_i32 s%d, s%d, 0x9e3779b1" % (TAG, TAG))
    a("s_add_u32 s%d, s%d, 0x7f4a7c15" % (TAG, TAG))


def copy_scalars(a):
    a("s_mul_i32 s55, s34, %d" % (4 * L.PAIR_BYTES))
    a("s_mul_i32 s56, s35, 9216")
    a("s_add_u32 s55, s55, s56")
    a("s_lshl_b32 s56, s3, 10")
    a("s_add_u32 s55, s55, s56")
    for j in range(5):
        a("s_add_u32 s57, s3, %d" % (8 * j))
        a("s_mul_i32 s57, s57, 57")
        a("s_lshr_b32 s57, s57, 9")
        a("s_mul_i32 s57, s57, %d" % (L.PAIR_BYTES - 9216))
        a("s_add_u32 s57, s57, s55")
        a("s_add_u32 s%d, s57, %d" % (50 + j, 8192 * j))
    a("s_mul_i32 s58, s35, 12")
    a("s_add_u32 s58, s58, s34")
    a("s_lshl_b32 s58, s58, 7")
    a("s_add_u32 s58, s58, %d" % (L.WS_FLAG + F_Q * 128))


def decode2(a):
    a("s_and_b32 s30, s2, 3")
    a("s_bfe_u32 s33, s2, 0x10002")
    a("s_bfe_u32 s32, s2, 0x20003")
    a("s_lshl_b32 s31, s30, 2")
    a("s_add_u32 s31, s31, s32")
    a("s_lshl_b32 s32, s33, 3")
    a("s_lshr_b32 s34, s2, 5")
    if OPT["light"]:
        a("s_add_u32 s34, s34, 2")
        a("s_and_b32 s34, s34, 7")
    a("s_add_u32 s32, s32, s34")
    a("s_lshr_b32 s33, s2, 3")
    a("s_mul_i32 s34, s33, 57")
    a("s_lshr_b32 s34, s34, 9")
    a("s_mul_i32 s53, s34, 9")
    a("s_sub_u32 s53, s33, s53")
    a("s_lshl_b32 s52, s34, 3")
    a("s_and_b32 s34, s2, 7")
    a("s_add_u32 s52, s52, s34")
    a("s_sub_u32 s33, s2, 216")
    a("s_mul_i32 s34, s33, 57")
    a("s_lshr_b32 s34, s34, 9")
    a("s_mul_i32 s35, s34, 9")
    a("s_sub_u32 s33, s33, s35")
    a("s_add_u32 s34, s34, 24")
    a("s_cmp_ge_u32 s2, 216")
    a("s_cselect_b32 s52, s34, s52")
    a("s_cselect_b32 s53, s33, s53")


def qpoll(a, vc, name, own, r=16):
    R = dict(a=r, b=r + 1, c=r + 2)
    a("v_add_u32 v%(a)d, 2, v0" % R)
    a("v_mul_u32_u24 v%(b)d, 43, v%(a)d" % R)
    a("v_lshrrev_b32 v%(b)d, 7, v%(b)d" % R)
    a("v_mul_u32_u24 v%(c)d, 3, v%(b)d" % R)
    a("v_sub_u32 v%(a)d, v%(a)d, v%(c)d" % R)
    a("s_sub_u32 s35, s32, 2")
    a("v_add_u32 v%(a)d, s35, v%(a)d" % R)
    a("v_max_i32 v%(a)d, 0, v%(a)d" % R)
    a("v_mul_u32_u24 v%(a)d, 12, v%(a)d" % R)
    a("v_lshl_add_u32 v%(a)d, v%(b)d, 2, v%(a)d" % R)
    a("v_add_u32 v%(a)d, s30, v%(a)d" % R)
    a("v_lshlrev_b32 v%(a)d, 7, v%(a)d" % R)
    a("v_add_u32 v%d, %d, v%d" % (r, L.WS_FLAG + F_Q * 128, r))
    if own:
        lds_spin(a, name + "w", vc, C_1, r + 2, (8,), 0)
    flag_poll(a, name, r, r + 1, "s%d" % TAG, 7, OPT["qslp"])
    lds_inc(a, vc, r + 2, C_GO1)


def code_touch(a):
    if not OPT["ctouch"]:
        return
    lab = a.newlabel("pc")
    a("s_getpc_b64 s[20:21]")
    a.label(lab)
    a("s_sub_u32 s20, s20, %s-%s" % (lab, NAME))
    a("s_subb_u32 s21, s21, 0")
    a("s_lshr_b32 s22, s2, 3")
    a("s_mul_i32 s22, s22, %d" % (12 * 128))
    a("v_lshlrev_b32 v20, 7, v0")
    a("v_add_u32 v20, s22, v20")
    a("v_min_u32 v20, L_end-%s, v20" % NAME)
    a("s_mov_b64 exec, 0xfff")
    a("global_load_dword v21, v20, s[20:21]")
    a("s_mov_b64 exec, -1")


def gemm_phase(a):
    a("s_mul_i32 s33, s32, 43")
    a("s_lshr_b32 s33, s33, 7")
    a("s_mul_i32 s34, s33, 3")
    a("s_sub_u32 s34, s32, s34")
    a("s_lshl_b32 s34, s34, 2")
    a("s_add_u32 s34, s34, s30")
    a("s_lshl_b32 s35, s31, 3")
    a("s_add_u32 s35, s35, s33")
    a("s_cmp_lt_u32 s3, 4")
    a("s_cbranch_scc1 L_comp")
    a("s_cmp_lt_u32 s3, 6")
    a("s_cbranch_scc0 L_ldw")
    a("s_sub_u32 s36, s3, 4")
    a("v_and_b32 v7, 7, v0")
    a("s_lshl_b32 s41, s33, 3")
    a("s_lshl_b32 s42, s36, 6")
    a("s_add_u32 s41, s41, s42")
    a("v_add_u32 v7, s41, v7")
    a("v_mul_u32_u24 v7, 3456, v7")
    a("v_lshrrev_b32 v1, 3, v0")
    a("v_lshl_add_u32 v7, v1, 7, v7")
    a("s_mul_i32 s39, s35, %d" % (128 * 1152))
    a("s_mul_i32 s46, s34, 288")
    a("s_and_b32 s46, s46, 0xffffff80")
    a("s_sub_u32 s47, %d, s46" % (576 * 3456))
    a("v_mul_u32_u24 v1, 1152, v1")
    a("v_lshrrev_b32 v2, 4, v0")
    a("v_and_b32 v3, 7, v0")
    a("v_xor_b32 v3, v3, v2")
    a("v_lshl_add_u32 v4, v3, 4, v1")
    a("v_xor_b32 v3, 4, v3")
    a("v_lshl_add_u32 v5, v3, 4, v1")
    a("v_add_u32 v5, %d, v5" % (8 * 1152))
    a("s_mul_i32 s37, s36, %d" % (64 * 1152))
    a("s_lshl_b32 s38, s36, 13")
    a("s_waitcnt lgkmcnt(0)")
    srd_off(a, 20, 6, "s46", "s47")
    a("s_mov_b64 exec, 0xffffff")
    a("buffer_load_dword v20, v7, s[20:23], 0 offen")
    a("s_mov_b64 exec, -1")
    srd_off(a, 16, 4, "s39", 128 * 1152)

    def x_chunk(c):
        for i in range(8):
            a("s_add_u32 m0, s38, %d" % ((c % 4) * SLOT + i * 1024))
            a("s_add_u32 s40, s37, %d" % ((i >> 1) * 16 * 1152 + c * 128))
            a("buffer_load_dwordx4 v%d, s[16:19], s40 offen lds" % (4 + (i & 1)))

    x_chunk(0)
    load_tag(a)
    copy_scalars(a)
    stamp(a, 1)
    a("s_waitcnt vmcnt(8) lgkmcnt(0)")
    stamp(a, 2)

    def loader_loop(fn, n, first, ahead0):
        LA = OPT["la"]
        a("s_barrier")
        stamp(a, 13)
        nxt = first
        while nxt < ahead0:
            fn(nxt)
            nxt += 1
        stamp(a, 14)
        for c in range(9):
            a("s_waitcnt vmcnt(%d)" % (n * (nxt - 1 - c)))
            a("s_barrier")
            while nxt <= c + LA and nxt < 9:
                fn(nxt)
                nxt += 1

    loader_loop(x_chunk, 8, 1, 2)
    a("s_branch L_copy")
    a.label("L_ldw")
    a("s_movk_i32 s41, 3641")
    for i in range(9):
        a("v_add_u32 v1, %d, v0" % (64 * i))
        a("v_mul_u32_u24 v2, s41, v1")
        a("v_lshrrev_b32 v2, 16, v2")
        a("v_mul_u32_u24 v3, 18, v2")
        a("v_sub_u32 v3, v1, v3")
        a("v_bfe_u32 v1, v2, 2, 2")
        a("v_lshlrev_b32 v1, 3, v1")
        a("v_lshrrev_b32 v13, 4, v2")
        a("v_lshl_add_u32 v1, v13, 2, v1")
        a("v_and_b32 v2, 3, v2")
        a("v_add_u32 v1, v1, v2")
        a("v_mul_u32_u24 v1, 3456, v1")
        a("v_lshl_add_u32 v%d, v3, 4, v1" % (4 + i))
        if i == 2:
            a("s_waitcnt lgkmcnt(0)")
            load_tag(a)
    a("s_sub_u32 s36, s3, 6")
    a("s_mul_i32 s37, s36, %d" % (32 * 3456))
    a("s_mul_i32 s38, s36, 9216")
    a("s_mul_i32 s39, s34, 288")
    a("s_sub_u32 s42, %d, s39" % (576 * 3456))
    copy_scalars(a)
    srd_off(a, 16, 6, "s39", "s42")
    a("s_waitcnt lgkmcnt(0)")

    def w_chunk(c):
        a("s_add_u32 s40, s37, %d" % (c * 64 * 3456))
        for i in range(9):
            a("s_add_u32 m0, s38, %d" % ((c % 4) * SLOT + 16384 + i * 1024))
            a("s_nop 0")
            a("buffer_load_dwordx4 v%d, s[16:19], s40 offen lds" % (4 + i))

    loader_loop(w_chunk, 9, 0, OPT["wa0"])
    a("s_branch L_copy")
    a.label("L_comp")
    ACC, XF, WF = 64, (136, 144), 24
    a("v_and_b32 v8, 15, v0")
    a("v_lshrrev_b32 v9, 4, v0")
    a("v_lshrrev_b32 v10, 1, v8")
    a("v_xor_b32 v10, v10, v9")
    a("s_lshl_b32 s36, s3, 12")
    a("v_lshlrev_b32 v2, 7, v8")
    a("v_lshl_add_u32 v2, v10, 4, v2")
    a("v_add_u32 v2, s36, v2")
    a("v_xor_b32 v3, 64, v2")
    a("v_add_u32 v4, %d, v2" % (2 * SLOT))
    a("v_add_u32 v5, %d, v3" % (2 * SLOT))
    a("v_lshrrev_b32 v10, 2, v0")
    a("v_mul_u32_u24 v6, 288, v10")
    a("v_and_b32 v10, 3, v0")
    a("v_lshl_add_u32 v6, v10, 3, v6")
    a("v_add_u32 v6, 16384, v6")
    a("v_add_u32 v7, %d, v6" % (2 * SLOT))
    a("s_waitcnt lgkmcnt(0)")
    load_tag(a)
    a("s_mov_b32 s36, 1.0")
    a("s_cmp_lt_u32 s34, 4")
    a("s_cselect_b32 s36, %s, s36" % f32(QSCALE))
    a("s_mov_b32 s37, s36")
    a("s_lshl_b32 s38, s3, 5")
    a("v_add_u32 v10, s38, v8")
    a("v_mul_u32_u24 v10, 72, v10")
    a("v_lshl_add_u32 v10, v9, 3, v10")
    a("v_add_u32 v10, %d, v10" % IMG)
    for ft in range(9):
        a("v_add_u32 v11, %d, v9" % (4 * ft))
        a("v_mul_u32_u24 v11, 57, v11")
        a("v_lshrrev_b32 v11, 9, v11")
        a("v_mul_u32_u24 v11, 9144, v11")
        a("v_add_u32 v%d, v11, v10" % (12 + ft))
    copy_scalars(a)
    a("s_waitcnt lgkmcnt(0)")

    def xreads(step):
        c, h2 = step >> 1, step & 1
        slot = c % 4
        return ["ds_read_b128 %s, v%d offset:%d" % (vr(XF[step & 1] + 4 * tt, 4), 2 + 2 * (slot >> 1) + h2,
                                                    (slot & 1) * SLOT + tt * 2048) for tt in range(2)]

    def wreads(step, ft):
        c, h2 = step >> 1, step & 1
        slot = c % 4
        return ["ds_read_b64_tr_b16 %s, v%d offset:%d" % (vr(WF + 4 * ft + 2 * sec, 2), 6 + (slot >> 1),
                                                          (slot & 1) * SLOT + h2 * 9216 + sec * 4608 + ft * 32)
                for sec in range(2)]

    def mfma(step, ft, tt):
        d = vr(ACC + 8 * ft + 4 * tt, 4)
        return "v_mfma_f32_16x16x32_bf16 %s, %s, %s, %s" % (
            d, vr(WF + 4 * ft, 4), vr(XF[step & 1] + 4 * tt, 4), "0" if step == 0 else d)

    def epi(k):
        ft, tt = k >> 1, k & 1
        b = ACC + 4 * k
        t = 152 + 2 * (k % 8)
        return ["v_pk_mul_f32 %s, %s, s[36:37]" % (vr(b, 2), vr(b, 2)),
                "v_pk_mul_f32 %s, %s, s[36:37]" % (vr(b + 2, 2), vr(b + 2, 2)),
                "v_cvt_pk_bf16_f32 v%d, v%d, v%d" % (t, b, b + 1),
                "v_cvt_pk_bf16_f32 v%d, v%d, v%d" % (t + 1, b + 2, b + 3),
                "ds_write_b64 v%d, %s offset:%d" % (12 + ft, vr(t, 2), 32 * ft + 1152 * tt)]

    a("s_barrier")
    a("s_barrier")
    stamp(a, 1)
    q = []

    def issue(tag, lst):
        for x in lst:
            a(x)
            q.append(tag)

    def need(tag):
        last = max(k for k, v in enumerate(q) if v == tag)
        a("s_waitcnt lgkmcnt(%d)" % min(15, len(q) - 1 - last))

    issue(("x", 0), xreads(0))
    for ft in range(9):
        issue(("w", 0, ft), wreads(0, ft))
    LAG = 3
    for step in range(18):
        if step & 1 and step < 17:
            a("s_barrier")
        for ft in range(9):
            need(("w", step, ft))
            a(mfma(step, ft, 0))
            if ft == 0 and step < 17:
                issue(("x", step + 1), xreads(step + 1))
            if step == 17 and 2 * ft >= LAG:
                e = epi(2 * ft - LAG)
                for x in e[:4]:
                    a(x)
                issue("e", e[4:])
            a(mfma(step, ft, 1))
            if step < 17:
                issue(("w", step + 1, ft), wreads(step + 1, ft))
            elif 2 * ft + 1 >= LAG:
                e = epi(2 * ft + 1 - LAG)
                for x in e[:4]:
                    a(x)
                issue("e", e[4:])
    for k in range(18 - LAG, 18):
        for x in epi(k):
            a(x)
    stamp(a, 2)
    a("s_waitcnt lgkmcnt(0)")
    a.label("L_copy")
    a("v_lshlrev_b32 v1, 4, v0")
    a("s_lshl_b32 s36, s3, 10")
    a("v_add_u32 v2, s36, v1")
    a("v_add_u32 v3, %d, v2" % (IMG + 4 * 8192))
    srd(a, 24, 8, L.QKV_BYTES)
    make_tag(a)
    a("s_barrier")
    for j in range(4):
        a("ds_read_b128 %s, v2 offset:%d" % (vr(4 + 4 * j, 4), IMG + j * 8192))
    a("s_cmp_lt_u32 s3, 4")
    a("s_cbranch_scc0 L_c4")
    a("ds_read_b128 v[20:23], v3")
    a("s_waitcnt lgkmcnt(0)")
    a("buffer_store_dwordx4 v[20:23], v1, s[24:27], s54 offen sc1")
    a.label("L_c4")
    for j in range(4):
        a("s_waitcnt lgkmcnt(%d)" % (3 - j))
        a("buffer_store_dwordx4 %s, v1, s[24:27], s%d offen sc1" % (vr(4 + 4 * j, 4), 50 + j))
    a("s_mov_b32 s63, s58")
    a("v_mov_b32 v%d, %d" % (vC, CTL))
    lds_inc(a, vC, 24, C_FI)
    stamp(a, 3)


def spare_phase(a):
    GW = 64
    a.label("L_sp")
    a("s_sub_u32 s36, s2, 192")
    a("s_cmp_ge_u32 s3, 8")
    a("s_cbranch_scc1 L_sp_ffn")
    a("s_cmp_ge_u32 s3, 4")
    a("s_cbranch_scc1 L_sp_hi")
    a("s_load_dwordx2 s[60:61], s[0:1], 32")
    a("s_load_dwordx2 s[62:63], s[0:1], 64")
    a("v_lshrrev_b32 v2, 3, v0")
    a("v_and_b32 v3, 7, v0")
    a("v_lshlrev_b32 v3, 4, v3")
    a("s_lshl_b32 s34, s36, 2")
    a("s_add_u32 s34, s34, s3")
    a("s_lshl_b32 s33, s34, 3")
    a("v_add_u32 v1, s33, v2")
    a("v_mul_u32_u24 v4, 1152, v1")
    a("v_add_u32 v4, v4, v3")
    a("s_mul_i32 s51, s34, %d" % (7 * 128))
    a("s_mul_i32 s52, s34, %d" % (21 * 128))
    a("v_lshlrev_b32 v7, 7, v0")
    a("s_waitcnt lgkmcnt(0)")
    load_tag(a)
    srd(a, 16, 6, 576 * 3456)
    srd(a, 20, 28, 576 * 1152)
    for i in range(9):
        a("global_load_dwordx4 %s, v4, s[4:5] offset:%d" % (vr(8 + 4 * i, 4), 128 * i))
        if i == 0:
            for j in range(9):
                a("global_load_dwordx4 %s, v3, s[60:61] offset:%d" % (vr(44 + 4 * j, 4), 128 * j))
                a("global_load_dwordx4 %s, v3, s[62:63] offset:%d" % (vr(80 + 4 * j, 4), 128 * j))
        else:
            a("s_add_u32 s53, s51, %d" % (1728 * 128 * i))
            a("s_mov_b64 exec, 0x7f")
            a("buffer_load_dword v124, v7, s[16:19], s53 offen")
            a("s_mov_b64 exec, -1")
    a("s_mov_b64 exec, 0x1fffff")
    a("buffer_load_dword v124, v7, s[20:23], s52 offen")
    a("s_mov_b64 exec, -1")
    a("v_mov_b32 v%d, %d" % (vC, CTL))
    a("s_waitcnt lgkmcnt(0)")
    make_tag(a)
    a("s_barrier")
    a("s_waitcnt vmcnt(2)")
    for i in range(36):
        p = 116 + (i & 3)
        a("v_dot2_f32_bf16 v%d, v%d, v%d, %s" % (p, 8 + i, 44 + i, "0" if i < 4 else "v%d" % p))
    a("s_nop 1")
    a("v_pk_add_f32 v[116:117], v[116:117], v[118:119]")
    a("v_add_f32 v5, v116, v117")
    sum8(a, (5,))
    bf16_round(a, 5, 5)
    a("v_ashrrev_i32 v7, 31, v5")
    a("v_or_b32 v7, 0x80000000, v7")
    a("v_xor_b32 v7, v7, v5")
    a("v_and_b32 v7, 0xffff0000, v7")
    a("v_sub_u32 v6, 0x7ff, v1")
    a("v_or_b32 v7, v7, v6")
    a("v_mov_b32 v5, 1")
    a("s_mov_b32 s54, 0x01010101")
    a("s_mov_b32 exec_lo, s54")
    a("s_mov_b32 exec_hi, s54")
    a("ds_max_u32 v%d, v7 offset:%d" % (vC, C_KMAX))
    a("s_mov_b64 exec, 1")
    a("ds_add_rtn_u32 v5, v%d, v5 offset:%d" % (vC, C_KCNT))
    a("ds_read_b32 v7, v%d offset:%d" % (vC, C_KMAX))
    a("s_lshl_b32 s53, s36, 3")
    a("s_add_u32 s53, s53, %d" % L.WS_KEYF)
    a("v_mov_b32 v4, s53")
    a("v_mov_b32 v6, s%d" % TAG)
    a("s_waitcnt lgkmcnt(0)")
    a("v_cmp_eq_u32 vcc, 3, v5")
    a("s_and_b64 exec, exec, vcc")
    a("s_cbranch_execz L_sp_nopub")
    a("global_store_dwordx2 v4, v[6:7], s[8:9] sc1")
    a.label("L_sp_nopub")
    a("s_mov_b64 exec, -1")
    stamp(a, 1)
    a("s_mov_b32 s55, 0x3f803f80")
    for i in range(36):
        x, w, p = 8 + i, 80 + i, 116 + (i & 3)
        t = 44 + 4 * (i & 3)
        a("v_lshlrev_b32 v%d, 16, v%d" % (t, x))
        a("v_and_b32 v%d, 0xffff0000, v%d" % (t + 1, x))
        a("v_lshlrev_b32 v%d, 16, v%d" % (t + 2, w))
        a("v_and_b32 v%d, 0xffff0000, v%d" % (t + 3, w))
        a("v_pk_mul_f32 %s, %s, %s" % (vr(t, 2), vr(t, 2), vr(t + 2, 2)))
        a("v_cvt_pk_bf16_f32 v%d, v%d, v%d" % (t, t, t + 1))
        a("v_dot2_f32_bf16 v%d, v%d, s55, %s" % (p, t, "0" if i < 4 else "v%d" % p))
    a("s_nop 1")
    a("v_pk_add_f32 v[116:117], v[116:117], v[118:119]")
    a("v_add_f32 v6, v116, v117")
    sum8(a, (6,))
    bf16_round(a, 6, 6)
    sigmoid(a, 6, 6)
    bf16_round(a, 6, 6)
    a("v_lshlrev_b32 v1, 2, v1")
    a("v_add_u32 v1, %d, v1" % L.WS_G)
    a("s_mov_b32 exec_lo, s54")
    a("s_mov_b32 exec_hi, s54")
    a("global_store_dword v1, v6, s[8:9] sc1")
    a("s_mov_b64 exec, -1")
    a("s_waitcnt vmcnt(0)")
    lds_inc(a, vC, 5, C_GD)
    if OPT["dtouch"]:
        srd(a, 16, 14, 4608 * 1152)
        a("s_mul_i32 s52, s34, %d" % (162 * 128))
        a("v_lshlrev_b32 v7, 7, v0")
        for k in range(3):
            a("buffer_load_dword v124, v7, s[16:19], s52 offen")
            a("s_add_u32 s52, s52, %d" % (54 * 128))
    a("s_mov_b32 s63, 0")
    stamp(a, 2)
    a("s_branch L_att")

    a.label("L_sp_hi")
    a("s_cmp_eq_u32 s3, 7")
    a("s_cbranch_scc0 L_sp_hi1")
    code_touch(a)
    a.label("L_sp_hi1")
    a("v_mov_b32 v%d, %d" % (vC, CTL))
    a("s_waitcnt lgkmcnt(0)")
    load_tag(a)
    a("s_mov_b32 s63, 0")
    a("s_waitcnt lgkmcnt(0)")
    make_tag(a)
    a("s_barrier")
    a("s_cmp_eq_u32 s3, 4")
    a("s_cbranch_scc1 L_sp_w4")
    a("s_cmp_eq_u32 s3, 5")
    a("s_cbranch_scc0 L_att")
    a("s_lshl_b32 s56, s36, 7")
    a("s_add_u32 s56, s56, %d" % (L.WS_FLAG + F_PA * 128))
    a("v_mov_b32 v9, s56")
    lds_spin(a, "L_sp_x5", vC, C_XS, 10, (1, 4), 4)
    a("ds_read_b64 v[14:15], v%d offset:%d" % (vC, C_IDX))
    a("v_mov_b32 v12, s%d" % TAG)
    a("s_waitcnt lgkmcnt(0)")
    a("v_mov_b32 v13, v14")
    a("v_mov_b32 v14, v15")
    a("s_mov_b64 exec, 1")
    a("global_store_dwordx3 v9, v[12:14], s[8:9] sc1")
    a("s_mov_b64 exec, -1")
    a("s_branch L_att")
    a.label("L_sp_w4")
    for k in range(4):
        a("v_mov_b32 v%d, 0" % (12 + k))
    a("s_cmp_lt_u32 s36, 36")
    a("s_cbranch_scc0 L_sp_nz")
    a("s_lshl_b32 s51, s36, 10")
    a("s_add_u32 s51, s51, %d" % L.WS_YP)
    a("v_lshlrev_b32 v4, 4, v0")
    a("v_add_u32 v4, s51, v4")
    a("global_store_dwordx4 v4, v[12:15], s[8:9] sc1")
    a("s_cmp_eq_u32 s36, 0")
    a("s_cbranch_scc0 L_sp_nz")
    a("v_lshlrev_b32 v4, 7, v0")
    a("v_add_u32 v4, %d, v4" % (L.WS_FLAG + F_Y * 128))
    a("global_store_dword v4, v12, s[8:9] sc1")
    a.label("L_sp_nz")
    a("v_lshlrev_b32 v8, 3, v0")
    a("v_add_u32 v8, %d, v8" % L.WS_KEYF)
    srd(a, 24, 4, 2048 * 1152)
    lds_spin(a, "L_sp_own", vC, C_KCNT, 10, (4,), 2)
    a("s_sleep %d" % OPT["slp0"])
    flag_poll(a, "L_sp_kp", 8, 10, "s%d" % TAG, 64, OPT["slp"], 2)
    a("v_lshlrev_b32 v8, 4, v0")
    stamp(a, 1)
    wave_umax(a, 11, 53)
    a("s_and_b32 s54, s53, 0x7ff")
    a("s_sub_u32 s54, 2047, s54")
    a("s_mul_i32 s55, s54, 1152")
    a("s_mov_b32 m0, %d" % XS)
    a("s_add_u32 s56, s55, 1024")
    a("buffer_load_dwordx4 v8, s[24:27], s55 offen lds")
    a("s_mov_b32 m0, %d" % (XS + 1024))
    a("s_mov_b64 exec, 0xff")
    a("buffer_load_dwordx4 v8, s[24:27], s56 offen lds")
    a("s_mov_b64 exec, -1")
    a("s_and_b32 s55, s53, 0xffff0000")
    a("s_xor_b32 s56, s55, 0x80000000")
    a("s_xor_b32 s57, s55, 0xffff0000")
    a("s_bitcmp1_b32 s55, 31")
    a("s_cselect_b32 s55, s56, s57")
    a("v_mov_b32 v12, s55")
    sigmoid(a, 13, 12)
    bf16_round(a, 13, 13)
    a("v_mov_b32 v12, s54")
    a("ds_write_b64 v%d, v[12:13] offset:%d" % (vC, C_IDX))
    a("v_mov_b32 v12, 1")
    a("s_waitcnt vmcnt(0)")
    a("ds_write_b32 v%d, v12 offset:%d" % (vC, C_XS))
    stamp(a, 2)
    a("s_branch L_att")

    a.label("L_sp_ffn")
    a("s_load_dwordx4 s[40:43], s[0:1], 40")
    a("v_mov_b32 v3, %d" % CTL)
    for k in range(4):
        a("v_mov_b32 v%d, 0" % (4 + k))
    a("v_lshlrev_b32 v1, 4, v0")
    a("v_add_u32 v2, v1, v3")
    a("s_mov_b64 exec, 0xff")
    a("ds_write_b128 v2, v[4:7]")
    a("s_mov_b64 exec, -1")
    a("v_lshlrev_b32 v2, 2, v0")
    a("v_add_u32 v2, %d, v2" % (XS + 1152))
    a("ds_write_b32 v2, v4")
    a("s_sub_u32 s59, s3, 8")
    a("s_mul_i32 s37, s36, 57")
    a("s_lshr_b32 s37, s37, 9")
    a("s_mul_i32 s38, s37, 9")
    a("s_sub_u32 s38, s36, s38")
    a("s_mul_i32 s49, s37, 84")
    a("s_mul_i32 s39, s49, 9216")
    a("s_lshl_b32 s48, s38, 10")
    a("s_add_u32 s39, s39, s48")
    a("s_sub_u32 s48, %d, s39" % (576 * 9216))
    a("s_min_i32 s48, s48, %d" % (83 * 9216 + 1024))
    a("s_max_i32 s48, s48, 0")
    a("v_lshrrev_b32 v160, 5, v0")
    a("v_mul_u32_u24 v160, 9216, v160")
    a("v_and_b32 v161, 31, v0")
    a("v_lshl_add_u32 v160, v161, 4, v160")
    a("s_mul_i32 s57, s59, 20480")
    a("s_add_u32 s57, s57, %d" % WO)
    a("s_mul_i32 s58, s59, %d" % (2 * 9216))
    a("s_waitcnt lgkmcnt(0)")
    load_tag(a)
    srd_off(a, 16, 40, "s39", "s48")
    srd_off(a, 20, 42, "s39", "s48")
    a("s_waitcnt lgkmcnt(0)")
    make_tag(a)
    a("s_barrier")
    for i in range(5):
        a("s_add_u32 s55, s58, %d" % (8 * (6 + i) * 9216))
        a("s_add_u32 s56, s55, 512")
        for k in range(4):
            a("s_add_u32 m0, s57, %d" % ((4 * i + k) * 1024))
            a("buffer_load_dwordx4 v160, s[%d:%d], s%d offen nt lds" % (16 + 4 * (k >> 1), 19 + 4 * (k >> 1), 55 + (k & 1)))
    for i in range(6):
        a("s_add_u32 s55, s58, %d" % (8 * i * 9216))
        for k in range(4):
            a("buffer_load_dwordx4 %s, v160, s[%d:%d], s55 offen offset:%d nt" % (
                vr(GW + 16 * i + 4 * k, 4), 16 + 4 * (k >> 1), 19 + 4 * (k >> 1), 512 * (k & 1)))
    a("s_lshl_b32 s55, s59, 1")
    a("s_add_u32 s55, s55, s49")
    a("v_lshrrev_b32 v51, 5, v0")
    a("v_add_u32 v51, s55, v51")
    a("v_lshlrev_b32 v51, 1, v51")
    a("v_add_u32 v51, %d, v51" % XS)
    a("v_and_b32 v2, 1, v0")
    a("v_lshlrev_b32 v2, 4, v2")
    a("v_lshrrev_b32 v4, 1, v0")
    a("v_xor_b32 v4, v4, v0")
    a("v_and_b32 v4, 8, v4")
    a("v_bfe_u32 v5, v0, 1, 2")
    a("v_or_b32 v4, v4, v5")
    for q in range(4):
        a("v_cmp_eq_u32 s[%d:%d], %d, v4" % (40 + 2 * q, 41 + 2 * q, q))
    a("v_bfe_u32 v4, v0, 3, 1")
    a("v_lshlrev_b32 v4, 9, v4")
    a("v_lshrrev_b32 v5, 4, v0")
    a("v_lshl_add_u32 v4, v5, 7, v4")
    a("v_and_b32 v5, 7, v0")
    a("v_lshl_add_u32 v4, v5, 2, v4")
    a("v_add_u32 v6, s57, v4")
    a("v_add_u32 v52, s57, v1")
    a("s_lshl_b32 s55, s59, 9")
    a("v_lshlrev_b32 v8, 3, v0")
    a("v_add_u32 v8, s55, v8")
    a("s_mul_i32 s52, s37, %d" % (4608 * 16))
    a("s_lshl_b32 s55, s38, 13")
    a("s_add_u32 s52, s52, s55")
    a("s_add_u32 s52, s52, %d" % L.WS_PA)
    a("v_lshlrev_b32 v9, 2, v8")
    a("v_add_u32 v9, s52, v9")
    a("v_add_u32 v8, %d, v8" % WO)
    stamp(a, 3)
    lds_spin(a, "L_sp_xs", 3, C_XS, 10, (1,), 2)
    a("s_setprio %d" % OPT["pr2"])
    stamp(a, 7)
    for i in range(11):
        a("ds_read_u16 v%d, v51 offset:%d" % (53 + i, 16 * i))
    a("s_waitcnt vmcnt(24)")
    for k in range(4):
        a("ds_read_b128 %s, v52 offset:%d" % (vr(32 + 4 * k, 4), 1024 * k))
    a("s_waitcnt lgkmcnt(4)")
    for i in range(11):
        a("v_lshlrev_b32 v%d, v2, v%d" % (53 + i, 53 + i))
    first = True
    for i in range(5):
        selector(a, 12, 53 + 6 + i, 40)
        for k in range(4):
            d = vr(16 + 4 * k, 4)
            a("s_waitcnt lgkmcnt(%d)" % (3 if i < 4 else 3 - k))
            a("v_mfma_f32_16x16x32_bf16 %s, %s, v[12:15], %s" % (d, vr(32 + 4 * k, 4), "0" if first else d))
            if i < 4:
                a("ds_read_b128 %s, v52 offset:%d" % (vr(32 + 4 * k, 4), 1024 * (4 * (i + 1) + k)))
        first = False
    stamp(a, 12)
    for i in range(6):
        selector(a, 12, 53 + i, 40)
        a("s_waitcnt vmcnt(%d)" % (4 * (5 - i)))
        for k in range(4):
            d = vr(16 + 4 * k, 4)
            a("v_mfma_f32_16x16x32_bf16 %s, %s, v[12:15], %s" % (d, vr(GW + 16 * i + 4 * k, 4), d))
    stamp(a, 11)
    for k in range(4):
        for r in range(4):
            a("ds_write_b32 v6, v%d offset:%d" % (16 + 4 * k + r, 1024 * k + 32 * r))
    lds_inc(a, 3, 10, C_RED)
    lds_spin(a, "L_sp_rd", 3, C_RED, 10, (4,), 0)
    for p in range(4):
        a("ds_read_b64 %s, v8 offset:%d" % (vr(16 + 4 * p, 2), 20480 * p))
        a("ds_read_b64 %s, v8 offset:%d" % (vr(18 + 4 * p, 2), 20480 * p + 2048))
    a("v_mov_b32 v34, s%d" % TAG)
    a("v_mov_b32 v38, s%d" % TAG)
    a("s_waitcnt lgkmcnt(0)")
    lds_inc(a, 3, 10, C_RED2)
    for p in (2, 1):
        for h in range(2 * p):
            a("v_pk_add_f32 %s, %s, %s" % (vr(16 + 2 * h, 2), vr(16 + 2 * h, 2), vr(16 + 4 * p + 2 * h, 2)))
    a("v_mov_b32 v32, v16")
    a("v_mov_b32 v33, v18")
    a("v_mov_b32 v36, v17")
    a("v_mov_b32 v37, v19")
    a("s_cmp_eq_u32 s36, 63")
    a("s_cbranch_scc1 L_sp_nost")
    a("global_store_dwordx4 v9, v[32:35], s[8:9] sc1")
    a("global_store_dwordx4 v9, v[36:39], s[8:9] offset:16 sc1")
    a.label("L_sp_nost")
    stamp(a, 4)
    lds_spin(a, "L_sp_r2", 3, C_RED2, 10, (4,), 0)
    a("s_branch L_help2")


def attn_loop(a):
    for i in range(9):
        if OPT["bal"] and i == 0:
            a("s_cmp_lt_u32 s3, 4")
            a("s_cbranch_scc1 L_bal0")
            a("s_setprio 1")
            a.label("L_bal0")
        if OPT["bal"] and i == OPT["bal"]:
            a("s_setprio 0")
        a.label("L_it%d" % i)
        S, P = SS[i & 1], PP[i & 1]
        ex = ["v_exp_f32 v%d, v%d" % (S + r, S + r) for r in range(16)]
        cv = ["v_cvt_pk_bf16_f32 v%d, v%d, v%d" % (P + q, S + 2 * q, S + 2 * q + 1) for q in range(8)]
        if i == 0:
            mk = ["v_bfi_b32 v%d, v%d, 0, v%d" % (P + q, MSK + q, P + q) for q in range(8)]
        elif i == 8:
            mk = ["v_and_b32 v%d, v%d, v%d" % (P + q, MSK + q, P + q) for q in range(8)]
        else:
            mk = []
        m1 = qk(i + 1) if i < 8 else []
        m2 = pv(i - 1, i == 1) if i > 0 else []
        a("s_waitcnt lgkmcnt(%d)" % (4 if 0 < i < 8 else 0))
        seq = m1[:1] + ex[0:4] + m1[1:] + (k_reads(i + 2) if i + 2 <= 8 else []) + ex[4:8] + cv[0:2] + m2[:1] + \
            ex[8:12] + cv[2:4] + m2[1:]
        if i + 1 <= 8:
            seq += ["v_add_u32 v%d, v%d, v%d" % (vV, vV, vStep)] + v_reads(i + 1)
        seq += ex[12:16] + cv[4:8] + mk
        for x in seq:
            a(x)
    lds_spin(a, "L_pz", vC, C_C, T, (1,), 0)
    for x in pv(8, False):
        a(x)


def attention_phase(a):
    a.label("L_att")
    decode2(a)
    a("s_mul_i32 s33, s31, %d" % L.PAIR_BYTES)
    a("s_mul_i32 s34, s32, 9216")
    a("s_add_u32 s33, s33, s34")
    a("v_mov_b32 v%d, %d" % (vC, CTL))
    KS, VS = 16 * L.PAIR_BYTES - 18432, 32 * L.PAIR_BYTES - 18432
    grp = [(QB, 0), (KB, KS), (VB, VS), (KB + 9216, KS + 9216), (VB + 9216, VS + 9216), (KB + 18432, KS + 18432), (VB + 18432, VS + 18432)]
    a("s_lshl_b32 s34, s3, 10")
    for j in range(8):
        lo, hi = (8 * j) // 9, min(8 * j + 7, 62) // 9
        l0, g0 = grp[lo][0] + (8 * j - 9 * lo) * 1024, grp[lo][1] + (8 * j - 9 * lo) * 1024
        l1, g1 = grp[hi][0] + (8 * j - 9 * hi) * 1024, grp[hi][1] + (8 * j - 9 * hi) * 1024
        if j == 7:
            a("s_min_u32 s34, s34, %d" % (6 * 1024))
        if lo == hi:
            a("s_add_u32 s%d, s34, %d" % (16 + j, l0))
            a("s_add_u32 s%d, s33, %d" % (44 + j, g0 - l0 & 0xffffffff))
        else:
            a("s_mov_b32 s35, %d" % l0)
            a("s_mov_b32 s36, %d" % (g0 - l0 & 0xffffffff))
            a("s_cmp_ge_u32 s3, %d" % (9 * hi - 8 * j))
            a("s_cselect_b32 s35, %d, s35" % (l1 & 0xffffffff))
            a("s_cselect_b32 s36, %d, s36" % (g1 - l1 & 0xffffffff))
            a("s_add_u32 s%d, s34, s35" % (16 + j))
            a("s_add_u32 s%d, s33, s36" % (44 + j))
        a("s_add_u32 s%d, s%d, s%d" % (44 + j, 44 + j, 16 + j))
    a("v_mov_b32 v10, s63")
    a("v_mov_b32 v11, s%d" % TAG)
    a("s_waitcnt vmcnt(0)")
    lds_inc(a, vC, 9, C_1, rtn=True)
    a("s_cmp_lg_u32 s63, 0")
    a("s_cselect_b32 s35, 7, 99")
    a("s_waitcnt lgkmcnt(0)")
    a("v_readfirstlane_b32 s36, v9")
    a("s_cmp_eq_u32 s36, s35")
    a("s_cbranch_scc0 L_nofl1")
    a("s_mov_b64 exec, 1")
    a("global_store_dword v10, v11, s[8:9] sc1")
    a("s_mov_b64 exec, -1")
    a.label("L_nofl1")
    stamp(a, 4)
    a("s_and_b32 s42, s3, 1")
    a("s_lshr_b32 s43, s3, 1")
    a("s_mul_i32 s35, s43, 2304")
    a("s_mul_i32 s36, s42, 40")
    a("v_and_b32 v%d, 31, v0" % T)
    a("v_lshrrev_b32 v%d, 5, v0" % (T + 1))
    a("v_mul_u32_u24 v%d, 72, v%d" % (vKt, T))
    a("v_add_u32 v%d, s35, v%d" % (vKt, vKt))
    a("v_lshl_add_u32 v%d, v%d, 4, v%d" % (vK, T + 1, vKt))
    a("v_add_u32 v%d, s36, v%d" % (vK, vK))
    a("v_add_u32 v%d, 32, v%d" % (vKt, vKt))
    a("v_bfe_u32 v%d, v0, 2, 2" % (T + 2))
    a("v_lshl_add_u32 v%d, v%d, 2, v%d" % (T + 2, T + 1, T + 2))
    a("v_mul_u32_u24 v%d, 72, v%d" % (T + 2, T + 2))
    a("s_add_u32 s37, s35, %d" % VB)
    a("v_add_u32 v%d, s37, v%d" % (T + 2, T + 2))
    a("v_and_b32 v%d, 3, v0" % (T + 3))
    a("v_lshlrev_b32 v%d, 3, v%d" % (T + 4, T + 3))
    a("v_add_u32 v%d, s36, v%d" % (T + 4, T + 4))
    a("v_and_b32 v%d, 16, v0" % (T + 5))
    a("v_cmp_eq_u32 s[38:39], 0, v%d" % (T + 5))
    a("v_cndmask_b32 v%d, 32, v%d, s[38:39]" % (T + 4, T + 4))
    a("v_add_u32 v%d, v%d, v%d" % (vV, T + 2, T + 4))
    a("v_and_b32 v%d, 19, v0" % (T + 5))
    a("v_cmp_lt_u32 s[38:39], 16, v%d" % (T + 5))
    a("v_mov_b32 v%d, %d" % (T + 6, ONES))
    a("v_cndmask_b32 v%d, v%d, v%d, s[38:39]" % (vV, vV, T + 6))
    a("v_mov_b32 v%d, 2304" % (T + 6))
    a("v_cndmask_b32 v%d, v%d, 0, s[38:39]" % (vStep, T + 6))
    a("v_lshlrev_b32 v%d, 2, v%d" % (T + 2, T + 1))
    a("v_sub_u32 v%d, v%d, v%d" % (T + 2, T, T + 2))
    a("v_mov_b32 v%d, 0xffff" % (T + 3))
    for q in range(8):
        kl = 8 * (q >> 1) + 2 * (q & 1)
        a("v_cmp_le_i32 s[38:39], %d, v%d" % (kl, T + 2))
        a("v_cmp_le_i32 s[40:41], %d, v%d" % (kl + 1, T + 2))
        a("v_cndmask_b32 v%d, 0, v%d, s[38:39]" % (MSK + q, T + 3))
        a("v_cndmask_b32 v%d, v%d, -1, s[40:41]" % (MSK + q, MSK + q))
    a("s_lshl_b32 s41, s32, 2")
    a("s_add_u32 s41, s41, s43")
    a("s_sub_i32 s41, 8, s41")
    a("s_lshl_b32 s35, s32, 3")
    a("s_lshl_b32 s36, s43, 1")
    a("s_add_u32 s35, s35, s36")
    a("s_mul_i32 s35, s35, 18432")
    a("s_lshl_b32 s58, s31, 10")
    a("s_lshl_b32 s36, s42, 9")
    a("s_add_u32 s58, s58, s36")
    a("s_add_u32 s58, s58, s35")
    a("s_lshr_b32 s59, s31, 1")
    a("s_lshl_b32 s59, s59, 8")
    a("s_and_b32 s36, s31, 1")
    a("s_lshl_b32 s36, s36, 3")
    a("s_add_u32 s59, s59, s36")
    a("s_lshl_b32 s36, s42, 2")
    a("s_add_u32 s59, s59, s36")
    a("s_add_u32 s59, s59, s35")
    a("s_add_u32 s59, s59, 16384")
    a("v_bfe_u32 v152, v0, 4, 1")
    a("v_mul_u32_u24 v152, 18432, v152")
    a("v_and_b32 v153, 15, v0")
    a("v_lshl_add_u32 v152, v153, 4, v152")
    a("v_lshrrev_b32 v153, 5, v0")
    a("v_lshl_add_u32 v153, v153, 8, v152")
    a("v_cmp_gt_u32 vcc, 32, v0")
    a("s_cmp_eq_u32 s42, 0")
    a("s_cselect_b64 s[54:55], vcc, 0")
    a("s_cselect_b64 s[56:57], 0, vcc")
    a("v_and_b32 v%d, 3, v0" % (T + 2))
    a("v_mul_u32_u24 v%d, 576, v%d" % (T + 2, T + 2))
    a("v_mov_b32 v%d, 0x3f803f80" % (T + 4))
    a("v_mov_b32 v%d, v%d" % (T + 5, T + 4))
    a("v_lshlrev_b32 v%d, 4, v0" % (T + 3))
    srd(a, 36, 8, L.QKV_BYTES)
    srd_off(a, 24, 8, L.WS_O, 128 * 18432)
    a("s_add_u32 s40, s3, 2")
    a("s_cmp_lt_u32 s3, 4")
    a("s_cselect_b32 s40, s3, s40")
    out_setup(a, 40)
    a("s_lshr_b32 s35, s2, 6")
    a("s_lshl_b32 s35, s35, 4")
    a("s_add_u32 s35, s35, s3")
    a("s_cmp_eq_u32 s35, %d" % (3 * 16 + 6))
    a("s_cbranch_scc0 L_nq2")
    lds_spin(a, "L_sp_x6", vC, C_XS, T + 8, (1,), 8)
    qpoll(a, vC, "L_qp2", False, T + 8)
    a.label("L_nq2")
    lds_spin(a, "L_go1", vC, C_1, T, (8, 1), OPT["g1s"])
    stamp(a, 5)
    for j in range(8):
        a("s_mov_b32 m0, s%d" % (16 + j))
        a("s_nop 0")
        a("buffer_load_dwordx4 v%d, s[36:39], s%d offen %s lds" % (T + 3, 44 + j, OPT["kvl"]))
    a("ds_write_b64 v%d, %s offset:%d" % (T + 2, vr(T + 4, 2), ONES))
    a("s_cmp_lt_u32 s32, 2")
    a("s_cbranch_scc1 L_late")
    landed(a, 1, 0)
    stage_spin(a, "L_sA", 0)
    stamp(a, 6)
    for x in q_reads() + k_reads(0) + k_reads(1) + v_reads(0):
        a(x)
    a("s_waitcnt lgkmcnt(7)")
    a("v_cndmask_b32 v%d, 0, v%d, s[54:55]" % (QT, QT))
    a("v_cndmask_b32 v%d, 0, v%d, s[56:57]" % (QT + 1, QT + 1))
    for x in qk(0):
        a(x)
    lds_inc(a, vC, T, C_B)
    x_loads(a)
    attn_loop(a)
    a.label("L_check")
    stamp(a, 7)
    a("s_mov_b32 s46, %s" % f32(2.0 ** 60))
    a("s_mov_b32 s47, %s" % f32(2.0 ** -60))
    a("s_mov_b32 s48, 0x7f800000")
    a("s_nop 7")
    a("s_nop 0")
    a("v_rcp_f32 v%d, v%d" % (T, OO + 12))
    a("v_cmp_gt_f32 s[50:51], s46, v%d" % (OO + 12))
    a("v_cmp_lt_f32 vcc, s47, v%d" % (OO + 12))
    for k in range(6):
        a("v_add_f32 v%d, abs(v%d), abs(v%d)" % (T + 2 + k, OO + 2 * k, OO + 2 * k + 1))
    a("s_and_b64 s[50:51], s[50:51], vcc")
    a("v_pk_add_f32 %s, %s, %s" % (vr(T + 2, 2), vr(T + 2, 2), vr(T + 4, 2)))
    a("v_pk_add_f32 %s, %s, %s" % (vr(T + 2, 2), vr(T + 2, 2), vr(T + 6, 2)))
    a("v_add_f32 v%d, v%d, v%d" % (T + 2, T + 2, T + 3))
    a("v_cmp_gt_f32 vcc, s48, v%d" % (T + 2))
    a("s_and_b64 s[50:51], s[50:51], vcc")
    a("s_cmp_eq_u64 s[50:51], -1")
    a("s_cbranch_scc0 L_slow")
    a.label("L_fin")
    a("s_cmp_eq_u32 s42, 0")
    a("s_cbranch_scc1 L_fa")
    a("v_mov_b32 v%d, v%d" % (OO + 8, OO + 10))
    a("v_mov_b32 v%d, v%d" % (OO + 9, OO + 11))
    a.label("L_fa")
    for k in range(0, 10, 2):
        a("v_pk_mul_f32 %s, %s, %s op_sel_hi:[1,0]" % (vr(OO + k, 2), vr(OO + k, 2), vr(T, 2)))
    for q in range(5):
        a("v_cvt_pk_bf16_f32 v%d, v%d, v%d" % (T + 4 + q, OO + 2 * q, OO + 2 * q + 1))
    a("buffer_store_dwordx4 %s, v153, s[24:27], s58 offen sc1" % vr(T + 4, 4))
    a("s_mov_b32 exec_hi, 0")
    a("buffer_store_dword v%d, v152, s[24:27], s59 offen sc1" % (T + 8))
    a("s_mov_b32 exec_hi, -1")


def q_reads():
    return ["ds_read_b64 %s, v%d offset:%d" % (vr(QM, 2), vK, QB),
            "ds_read_b64 %s, v%d offset:%d" % (vr(QM + 2, 2), vK, QB + 8),
            "ds_read_b64 %s, v%d offset:%d" % (vr(QT, 2), vKt, QB)]


sKH, sPAIR, sTILE, sGATE, sSLOT, sOB, sXO = 6, 7, 13, 14, 15, 28, 29
A0, vXO, vRW, vCH, vSW, vSR, vL16, vPX, vPF = 156, 142, 140, 141, 143, 144, 162, 160, 161
GB = 154624


def out_setup(a, role):
    a("s_and_b32 s%d, s%d, 1" % (sKH, role))
    a("s_lshr_b32 s%d, s%d, 1" % (sPAIR, role))
    a("s_mul_i32 s%d, s52, 5" % sTILE)
    a("s_and_b32 s33, s%d, 7" % sTILE)
    a("s_sub_u32 s34, 8, s33")
    a("s_cmp_lt_u32 s33, 4")
    a("s_cselect_b32 s34, 0, s34")
    a("s_add_u32 s34, s34, s%d" % sPAIR)
    a("s_sub_u32 s35, s34, 5")
    a("s_cmp_ge_u32 s34, 5")
    a("s_cselect_b32 s34, s35, s34")
    a("s_add_u32 s%d, s%d, s34" % (sTILE, sTILE))
    a("s_lshl_b32 s98, s34, 6")
    a("s_mov_b32 s%d, 0x404" % sGATE)
    a("s_bitcmp1_b32 s%d, 2" % sTILE)
    if not OPT["allg"]:
        a("s_cselect_b32 s%d, s%d, 4" % (sGATE, sGATE))
    a("s_mov_b32 s%d, %d" % (sSLOT, PSLOT[0]))
    for p in range(1, 5):
        a("s_cmp_eq_u32 s%d, %d" % (sPAIR, p))
        a("s_cselect_b32 s%d, %d, s%d" % (sSLOT, PSLOT[p], sSLOT))
    a("s_mul_i32 s%d, s%d, 18432" % (sOB, sTILE))
    a("s_lshl_b32 s33, s53, 7")
    a("s_add_u32 s%d, s%d, s33" % (sXO, sOB))
    a("s_lshl_b32 s33, s%d, 6" % sKH)
    a("s_add_u32 s%d, s%d, s33" % (sXO, sXO))
    a("s_mul_i32 s33, s%d, 9216" % sKH)
    a("s_add_u32 s%d, s%d, s33" % (sOB, sOB))
    a("s_add_u32 s96, s%d, 4096" % sOB)
    a("s_add_u32 s97, s%d, 8192" % sOB)
    a("v_lshrrev_b32 v%d, 2, v0" % vRW)
    a("v_and_b32 v%d, 3, v0" % vCH)
    a("v_mul_u32_u24 v%d, 1152, v%d" % (vXO, vRW))
    a("v_lshl_add_u32 v%d, v%d, 4, v%d" % (vXO, vCH, vXO))
    a("v_lshrrev_b32 v146, 2, v0")
    a("v_bfe_u32 v147, v0, 3, 2")
    a("v_lshlrev_b32 v147, 1, v147")
    a("v_bfe_u32 v148, v0, 1, 1")
    a("v_xor_b32 v147, v147, v148")
    a("v_and_b32 v148, 1, v0")
    a("v_lshlrev_b32 v148, 3, v148")
    a("v_lshl_add_u32 v148, v146, 7, v148")
    a("v_lshl_add_u32 v148, v147, 4, v148")
    a("s_mul_i32 s33, s%d, %d" % (sKH, 9 * 4096))
    a("s_add_u32 s33, s33, %d" % WO)
    a("s_lshl_b32 s34, s%d, 6" % sKH)
    a("v_xor_b32 v148, s34, v148")
    for t in range(4):
        a("v_xor_b32 v%d, %d, v148" % (A0 + t, 32 * t))
        a("v_add_u32 v%d, s33, v%d" % (A0 + t, A0 + t))
    a("v_lshlrev_b32 v%d, 4, v0" % vL16)
    a("s_lshl_b32 s33, s%d, 11" % sKH)
    a("s_add_u32 s%d, s%d, s33" % (sSLOT, sSLOT))
    a("v_add_u32 v%d, s%d, v%d" % (vPX, sSLOT, vL16))
    a("s_lshl_b32 s33, s33, 1")
    a("s_sub_u32 s33, 2048, s33")
    a("v_add_u32 v164, s33, v%d" % vPX)
    a("s_lshl_b32 s33, s%d, 1" % sPAIR)
    a("s_add_u32 s33, s33, s%d" % sKH)
    a("s_lshl_b32 s33, s33, 2")
    a("s_add_u32 s33, s33, %d" % CTL)
    a("v_mov_b32 v%d, s33" % vPF)
    a("v_xor_b32 v165, 4, v%d" % vPF)
    a("v_and_b32 v%d, 15, v0" % vSW)
    a("v_mul_u32_u24 v%d, 80, v%d" % (vSW, vSW))
    a("v_lshrrev_b32 v146, 4, v0")
    a("v_lshlrev_b32 v146, 3, v146")
    a("v_add3_u32 v%d, v%d, v146, s%d" % (vSW, vSW, sSLOT))
    a("v_mul_u32_u24 v%d, 80, v%d" % (vSR, vRW))
    a("v_lshl_add_u32 v%d, v%d, 4, v%d" % (vSR, vCH, vSR))
    a("v_add_u32 v%d, s%d, v%d" % (vSR, sSLOT, vSR))
    a("s_add_u32 s98, s98, %d" % GB)
    a("v_lshl_add_u32 v145, v%d, 2, s98" % vRW)
    a("s_cmp_lt_u32 s3, 4")
    a("s_cselect_b32 s33, 1, 0x100")
    a("v_mov_b32 v163, s33")


def x_loads(a):
    srd(a, 20, 4, 2048 * 1152)
    a("buffer_load_dwordx4 %s, v%d, s[20:23], s%d offen" % (vr(XR, 4), vXO, sXO))


def out_phase(a):
    WFR, OF, ACC, PX = (20, 36, 100), 64, (52, 56, 60, 116), (146, 120)
    a("s_cmp_ge_u32 s52, 26")
    a("s_cbranch_scc1 L_end")
    if not OPT["gissue"]:
        a("s_waitcnt vmcnt(0)")
    stamp(a, 8)
    a("s_mov_b64 exec, 1")
    a("ds_add_u32 v%d, v163 offset:%d" % (vC, C_O))
    a("s_mov_b64 exec, -1")
    a.label("L_out")

    def omx():
        for j in range(1):
            for q in range(4):
                xv = XR + 4 * j + q
                d = PX[j] + 2 * q
                a("v_lshlrev_b32 v%d, 16, v%d" % (d, xv))
                a("v_and_b32 v%d, 0xffff0000, v%d" % (d + 1, xv))
                a("v_pk_mul_f32 %s, %s, %s op_sel:[0,1] op_sel_hi:[1,1]" % (vr(d, 2), vr(d, 2), vr(GR + 2 * j, 2)))

    def reads(sl):
        st = WFR[sl % 3]
        return ["ds_read_b64_tr_b16 %s, v%d offset:%d" % (vr(st + 4 * t + 2 * sec, 2), A0 + t, (32 * sl + 16 * sec) * 128)
                for t in range(4) for sec in range(2)]

    lds_spin(a, "L_wo", vC, C_WO, 10, (2,), 0)
    for x in reads(0) + reads(1):
        a(x)
    a("s_mov_b32 s60, 0x200000")
    a.label("L_go2")
    a("ds_read_b64 v[10:11], v%d offset:%d" % (vC, C_O))
    a("s_waitcnt lgkmcnt(0)")
    a("v_readfirstlane_b32 s61, v10")
    a("v_readfirstlane_b32 s62, v11")
    a("s_and_b32 s61, s61, s%d" % sGATE)
    a("s_cmp_eq_u32 s61, s%d" % sGATE)
    a("s_cselect_b32 s62, s62, 0")
    a("s_cmp_eq_u32 s62, 1")
    a("s_cbranch_scc1 L_go2_d")
    a("s_sub_u32 s60, s60, 1")
    a("s_cbranch_scc0 L_go2")
    a.label("L_go2_d")
    if OPT["gissue"] == 2:
        a("s_cmp_eq_u32 s60, 0x200000")
        a("s_cbranch_scc1 L_go2_e")
        a("s_sleep %d" % OPT["cdel"])
        a.label("L_go2_e")
        a("s_waitcnt vmcnt(0)")
    elif OPT["cdel"]:
        a("s_sleep %d" % OPT["cdel"])
    stamp(a, 9)
    LAO = OPT["lao"]

    def oload(s):
        a("buffer_load_dwordx4 %s, v%d, s[24:27], s%d offen offset:%d sc1" % (vr(OF + 4 * s, 4), vL16, (sOB, 96, 97)[s // 4], 1024 * (s % 4)))

    def ocheck(sl):
        b = OF + 4 * sl
        if sl < 7:
            a("v_cmp_eq_u32 vcc, -1, v%d" % b)
        else:
            a("v_max3_u32 v10, v%d, v%d, v%d" % (b, b + 1, b + 2))
            a("v_max_u32 v10, v10, v%d" % (b + 3))
            a("v_cmp_eq_u32 vcc, -1, v10")
        a("s_nop 1")

    def oretry():
        for sl in range(9):
            a.label("L_or%d" % sl)
            a("s_sub_u32 s60, s60, 1")
            a("s_cbranch_scc1 L_ok%d" % sl)
            a("s_waitcnt vmcnt(0)")
            for s in range(sl, min(sl + LAO, 9)):
                oload(s)
            a("s_waitcnt vmcnt(%d)" % min(LAO - 1, 8 - sl))
            a("s_branch L_oc%d" % sl)

    RETRY.append(oretry)
    a("s_mov_b32 s60, 0x8000")
    for s in range(LAO):
        oload(s)
    a("ds_read_b32 v%d, v145" % GR)
    a("ds_read_b32 v10, v%d offset:%d" % (vC, C_IDX))
    srd(a, 20, 10, 2048 * 1152)
    a("s_waitcnt lgkmcnt(0) vmcnt(%d)" % LAO)
    a("v_readfirstlane_b32 s12, v10")
    a("v_sub_f32 v%d, 1.0, v%d" % (GR + 1, GR))
    bf16_round(a, GR + 1, GR + 1)
    omx()
    for sl in range(9):
        rd = reads(sl + 2) if sl < 7 else []
        a("s_waitcnt vmcnt(%d) lgkmcnt(%d)" % (min(LAO - 1, 8 - sl), 8 if sl < 8 else 0))
        a.label("L_oc%d" % sl)
        ocheck(sl)
        a("s_cbranch_vccnz L_or%d" % sl)
        a.label("L_ok%d" % sl)
        for t in range(4):
            d = vr(ACC[t], 4)
            a("v_mfma_f32_16x16x32_bf16 %s, %s, %s, %s" % (d, vr(WFR[sl % 3] + 4 * t, 4), vr(OF + 4 * sl, 4), "0" if sl == 0 else d))
            if t == 0 and sl + LAO < 9:
                oload(sl + LAO)
            for x in rd[2 * t:2 * t + 2]:
                a(x)
    stamp(a, 10)
    if OPT["stamp"]:
        a("s_sub_u32 s94, 0x8000, s60")
        a("s_mul_i32 s94, s94, 100")
        a("s_add_u32 s94, s94, s66")
        a("s_addc_u32 s95, s67, 0")
    a("v_mov_b32 v10, 1")
    a("ds_write_b128 v164, %s" % vr(ACC[2], 4))
    a("ds_write_b128 v164, %s offset:1024" % vr(ACC[3], 4))
    a("ds_write_b32 v165, v10 offset:%d" % C_PART)
    a("s_lshr_b32 s46, s12, 4")
    a("s_cmp_eq_u32 s46, s%d" % sTILE)
    a("s_cbranch_scc0 L_noy")
    lds_spin(a, "L_yw", vC, C_YRDY, 10, (1,))
    a("s_lshl_b32 s46, s%d, 7" % sKH)
    a("s_add_u32 s46, s46, %d" % YB)
    a("v_lshl_add_u32 v10, v%d, 5, s46" % vCH)
    a("ds_read_b128 v[12:15], v10")
    a("ds_read_b128 v[16:19], v10 offset:16")
    a("s_and_b32 s46, s12, 15")
    a("v_cmp_eq_u32 s[50:51], s46, v%d" % vRW)
    a("s_waitcnt lgkmcnt(0)")
    for q in range(4):
        xv = XR + q
        a("v_lshlrev_b32 v10, 16, v%d" % xv)
        a("v_and_b32 v11, 0xffff0000, v%d" % xv)
        a("v_add_f32 v10, v10, v%d" % (12 + 2 * q))
        a("v_add_f32 v11, v11, v%d" % (13 + 2 * q))
        a("v_cvt_pk_bf16_f32 v10, v10, v11")
        a("v_cndmask_b32 v%d, v%d, v10, s[50:51]" % (xv, xv))
    omx()
    a.label("L_noy")
    lds_spin(a, "L_pw", vPF, C_PART, 10, (1,), 0)
    stamp(a, 11)
    for t in range(2):
        a("ds_read_b128 %s, v%d offset:%d" % (vr(20 + 4 * t, 4), vPX, 1024 * t))
    a("s_waitcnt lgkmcnt(0)")
    for t in range(2):
        b = ACC[t]
        a("v_pk_add_f32 %s, %s, %s" % (vr(b, 2), vr(b, 2), vr(20 + 4 * t, 2)))
        a("v_pk_add_f32 %s, %s, %s" % (vr(b + 2, 2), vr(b + 2, 2), vr(22 + 4 * t, 2)))
        a("v_cvt_pk_bf16_f32 v%d, v%d, v%d" % (40 + 2 * t, b, b + 1))
        a("v_cvt_pk_bf16_f32 v%d, v%d, v%d" % (41 + 2 * t, b + 2, b + 3))
        a("ds_write_b64 v%d, %s offset:%d" % (vSW, vr(40 + 2 * t, 2), 32 * t))
    a("ds_read_b128 v[20:23], v%d" % vSR)
    a("s_waitcnt lgkmcnt(0)")
    for q in range(4):
        d = PX[0] + 2 * q
        a("v_lshlrev_b32 v%d, 16, v%d" % (10 + 2 * q, 20 + q))
        a("v_and_b32 v%d, 0xffff0000, v%d" % (11 + 2 * q, 20 + q))
        a("v_pk_fma_f32 %s, %s, %s, %s op_sel_hi:[1,0,1]" % (vr(d, 2), vr(10 + 2 * q, 2), vr(GR, 2), vr(d, 2)))
    for q in range(4):
        d = PX[0] + 2 * q
        a("v_cvt_pk_bf16_f32 v%d, v%d, v%d" % (32 + q, d, d + 1))
    a("buffer_store_dwordx4 v[32:35], v%d, s[20:23], s%d offen %s" % (vXO, sXO, OPT["ost"]))
    if OPT["stamp"]:
        stamp(a, 12)
        a("s_waitcnt vmcnt(0)")
        stamp(a, 13)
        stamp_end(a, OPT["stw"], 0)
        stamp_end(a, 10, 2)
    a("s_endpgm")


RETRY = []
GLATE = []


def late_and_slow(a):
    RETRY[0]()
    a.label("L_late")
    a("s_mul_i32 s50, s41, 2304")
    a("v_add_u32 v%d, s50, v%d" % (T + 8, vK))
    a("v_add_u32 v%d, s50, v%d" % (T + 9, vKt))
    a("v_mul_u32_u24 v%d, s41, v%d" % (T + 2, vStep))
    a("v_add_u32 v%d, v%d, v%d" % (vV, vV, T + 2))
    for r in list(range(OO, OO + 16)) + list(range(VF[0], VF[0] + 32)):
        a("v_mov_b32 v%d, 0" % r)
    landed(a, 1, 0)
    stage_spin(a, "L_lt", 0)
    for x in q_reads():
        a(x)
    a("s_waitcnt lgkmcnt(0)")
    lds_inc(a, vC, T, C_B)
    x_loads(a)
    a("s_bitcmp1_b32 s41, 0")
    a("s_cbranch_scc1 L_late1")
    for par in range(2):
        if par:
            a.label("L_late1")
        for x in k_reads(par, T + 8, T + 9, 0):
            a(x)
        for x in k_reads(par + 1, T + 8, T + 9, 0):
            a(x.replace("offset:8", "offset:2312").replace("offset:0", "offset:2304"))
        for x in v_reads(par):
            a(x)
        a("s_waitcnt lgkmcnt(7)")
        a("v_cndmask_b32 v%d, 0, v%d, s[54:55]" % (QT, QT))
        a("v_cndmask_b32 v%d, 0, v%d, s[56:57]" % (QT + 1, QT + 1))
        for x in qk(par):
            a(x)
        a("s_nop 7")
        a("s_nop 3")
        for i0 in range(2 - par, 9, 2):
            a("s_cmp_eq_u32 s41, %d" % i0)
            a("s_cbranch_scc1 L_it%d" % i0)
        a("s_branch L_it%d" % (8 - par))

    a.label("L_slow")
    vKs, vKts, vM, vD0, vNeg = T + 8, T + 9, T + 10, T + 11, T + 12
    a("v_and_b32 v%d, 31, v0" % T)
    a("v_lshrrev_b32 v%d, 5, v0" % (T + 1))
    a("v_lshlrev_b32 v%d, 2, v%d" % (vD0, T + 1))
    a("v_sub_u32 v%d, v%d, v%d" % (vD0, vD0, T))
    a("v_mov_b32 v%d, 0xff800000" % vNeg)
    a("v_mov_b32 v%d, v%d" % (vM, vNeg))
    a("s_max_i32 s50, s41, 0")
    a("s_sub_u32 s51, 8, s50")
    a("v_mul_u32_u24 v%d, s51, v%d" % (T, vStep))
    a("v_sub_u32 v%d, v%d, v%d" % (vV, vV, T))
    a("s_mul_i32 s51, s50, 2304")
    for r in range(16):
        a("v_mov_b32 v%d, 0" % (OO + r))
    for ps in range(2):
        lab = "L_sp%d" % ps
        a("v_add_u32 v%d, s51, v%d" % (vKs, vK))
        a("v_add_u32 v%d, s51, v%d" % (vKts, vKt))
        a("s_mov_b32 s46, s50")
        a.label(lab)
        for x in k_reads(0, vKs, vKts):
            a(x)
        if ps == 1:
            for x in v_reads(0):
                a(x)
        a("s_mov_b32 s47, -31")
        a("s_mov_b32 s48, 62")
        a("s_cmp_eq_u32 s46, 0")
        a("s_cselect_b32 s47, 1, s47")
        a("s_cselect_b32 s48, 30, s48")
        a("s_cmp_eq_u32 s46, 8")
        a("s_cselect_b32 s48, 31, s48")
        a("s_waitcnt lgkmcnt(0)")
        for x in qk(0):
            a(x)
        a("v_subrev_u32 v%d, s47, v%d" % (T, vD0))
        for r in range(16):
            a("v_add_u32 v%d, %d, v%d" % (T + 1, 8 * (r >> 2) + (r & 3), T))
            a("v_cmp_ge_u32 vcc, s48, v%d" % (T + 1))
            a("v_cndmask_b32 v%d, v%d, v%d, vcc" % (SS[0] + r, vNeg, SS[0] + r))
            if ps == 0:
                a("v_max_f32 v%d, v%d, v%d" % (vM, vM, SS[0] + r))
            else:
                a("v_sub_f32 v%d, v%d, v%d" % (SS[0] + r, SS[0] + r, vM))
                a("v_exp_f32 v%d, v%d" % (SS[0] + r, SS[0] + r))
        if ps == 1:
            for q in range(8):
                a("v_cvt_pk_bf16_f32 v%d, v%d, v%d" % (PP[0] + q, SS[0] + 2 * q, SS[0] + 2 * q + 1))
            for x in pv(0, False):
                a(x)
            a("v_add_u32 v%d, v%d, v%d" % (vV, vV, vStep))
        a("v_add_u32 v%d, 2304, v%d" % (vKs, vKs))
        a("v_add_u32 v%d, 2304, v%d" % (vKts, vKts))
        a("s_add_u32 s46, s46, 1")
        a("s_cmp_lt_u32 s46, 9")
        a("s_nop 7")
        a("s_nop 7")
        a("s_cbranch_scc1 %s" % lab)
        if ps == 0:
            a("v_mov_b32 v%d, v%d" % (T, vM))
            a("v_permlane32_swap_b32 v%d, v%d" % (T, vM))
            a("v_max_f32 v%d, v%d, v%d" % (vM, vM, T))
    a("v_rcp_f32 v%d, v%d" % (T, OO + 12))
    a("s_nop 1")
    a("s_branch L_fin")


def helpers(a):
    a.label("L_help")
    a("s_cmp_eq_u32 s3, 9")
    a("s_cbranch_scc0 L_help1")
    code_touch(a)
    a.label("L_help1")
    a("v_mov_b32 v3, %d" % CTL)
    for k in range(4):
        a("v_mov_b32 v%d, 0" % (4 + k))
    a("v_lshlrev_b32 v1, 4, v0")
    a("v_add_u32 v2, v1, v3")
    a("s_mov_b64 exec, 0xff")
    a("ds_write_b128 v2, v[4:7]")
    a("s_mov_b64 exec, -1")
    a("s_waitcnt lgkmcnt(0)")
    load_tag(a)
    a("s_barrier")
    a("s_barrier")
    a("s_waitcnt lgkmcnt(0)")
    make_tag(a)
    a.label("L_help2")
    decode2(a)
    a("s_cmp_eq_u32 s3, 8")
    a("s_cbranch_scc1 L_down")
    a("v_lshrrev_b32 v1, 5, v0")
    a("v_bfe_u32 v2, v0, 3, 2")
    a("v_lshrrev_b32 v10, 4, v0")
    a("v_lshlrev_b32 v10, 1, v10")
    a("v_and_b32 v11, 7, v0")
    a("v_xor_b32 v10, v10, v11")
    a("v_lshl_add_u32 v4, v1, 2, v2")
    a("v_mul_u32_u24 v4, 1152, v4")
    a("v_lshl_add_u32 v4, v10, 4, v4")
    a("v_mul_u32_u24 v5, 72, v1")
    a("v_add_u32 v5, v5, v2")
    a("v_mul_u32_u24 v5, 1152, v5")
    a("v_lshl_add_u32 v5, v10, 4, v5")
    a("s_sub_u32 s36, s3, 9")
    a("s_mul_i32 s37, s36, %d" % (20 * 1152))
    a("s_mul_i32 s43, s36, %d" % (144 * 1152))
    a("s_lshl_b32 s38, s36, 10")
    a("s_add_u32 s38, s38, %d" % WO)
    a("s_lshl_b32 s39, s53, 7")
    a("s_sub_u32 s42, %d, s39" % (576 * 1152))
    srd_off(a, 16, 28, "s39", "s42")
    srd_off(a, 24, 8, L.WS_O, 128 * 18432)
    a("v_mov_b32 v%d, %d" % (vC, CTL))
    a("s_sub_u32 s40, s3, 5")
    out_setup(a, 40)
    a("s_setprio %d" % OPT["pr3"])
    a("s_cmp_ge_u32 s2, 192")
    a("s_cbranch_scc1 L_wo_go")
    for k in range(9):
        a("s_barrier")
    a.label("L_wo_go")
    a("s_cmp_eq_u32 s3, 11")
    a("s_cbranch_scc1 L_ctl")
    a("s_cmp_ge_u32 s52, 26")
    a("s_cbranch_scc1 L_end")
    if OPT["woe"]:
        a("s_cmp_ge_u32 s2, 192")
        a("s_cbranch_scc1 L_wo_e_d")
        lds_spin(a, "L_wo_e", 3, C_FI, 10, (8,), 0)
    stamp(a, 5)
    for m in range(36):
        if m == OPT["woe"]:
            stage_spin(a, "L_wo_w", 0, 3, 10, 2)
        st, sec = m >> 1, m & 1
        a("s_add_u32 m0, s38, %d" % (2048 * m))
        if st < 16:
            a("s_add_u32 s40, s37, %d" % ((36 * st + 8 * sec) * 1152))
            a("buffer_load_dwordx4 v4, s[16:19], s40 offen lds")
        else:
            a("s_add_u32 s40, s43, %d" % ((288 * (st - 16) + 36 * sec + 16) * 1152))
            a("buffer_load_dwordx4 v5, s[16:19], s40 offen lds")
        if OPT["wth"] and m >= OPT["wth"] - 1:
            a("s_waitcnt vmcnt(%d)" % (OPT["wth"] - 1))
    x_loads(a)
    a("s_waitcnt vmcnt(1)")
    stamp(a, 6)
    lds_inc(a, 3, 4, C_WO)
    a("s_setprio 0")
    a("s_branch L_out")
    a.label("L_ctl")
    a("v_lshlrev_b32 v8, 7, v0")
    a("v_add_u32 v9, %d, v8" % (L.WS_FLAG + F_PA * 128))
    a("s_mul_i32 s46, s52, 5")
    a("s_lshr_b32 s46, s46, 3")
    a("s_min_u32 s46, s46, 14")
    a("s_lshl_b32 s46, s46, 11")
    a("s_add_u32 s46, s46, %d" % (L.WS_FLAG + F_O * 128))
    a("v_add_u32 v8, s46, v8")
    a("s_lshl_b32 s46, s32, 4")
    a("s_add_u32 s46, s46, s31")
    a("s_lshl_b32 s46, s46, 7")
    a("s_add_u32 s46, s46, %d" % (L.WS_FLAG + F_O * 128))
    a("v_mov_b32 v14, s46")
    a("v_mov_b32 v15, s%d" % TAG)
    a("s_cmp_ge_u32 s2, 192")
    a("s_cbranch_scc1 L_ct_0")
    qpoll(a, 3, "L_qp1", True)
    a.label("L_ct_0")
    AUXLATE = OPT["auxp"]
    def aux():
        flag_poll(a, "L_pap", 9, 4, "s%d" % TAG, 64, 8, 3)
        a("v_mov_b32 v10, v5")
        a("v_mov_b32 v11, v6")
        a("v_mov_b32 v4, 1")
        a("ds_write_b64 v3, v[10:11] offset:%d" % C_IDX)
        a("ds_write_b32 v3, v4 offset:%d" % C_PA)
        srd_off(a, 16, 8, L.WS_G, 8192)
        a("s_mul_i32 s40, s52, 320")
        a("v_lshlrev_b32 v4, 2, v0")
        a("buffer_load_dword v5, v4, s[16:19], s40 offen sc1")
        a("buffer_load_dword v6, v4, s[16:19], s40 offen offset:256 sc1")
        a("v_add_u32 v4, %d, v4" % GB)
        GLATE.append(1)
        stamp(a, 5)

    if not AUXLATE:
        aux()
    a("v_bfe_u32 v20, v0, 4, 1")
    a("v_mul_u32_u24 v20, 18432, v20")
    a("v_and_b32 v21, 15, v0")
    a("v_lshl_add_u32 v20, v21, 4, v20")
    a("v_lshrrev_b32 v21, 5, v0")
    a("v_lshl_add_u32 v22, v21, 2, v20")
    a("v_lshl_add_u32 v21, v21, 8, v20")
    for k in range(4):
        a("v_mov_b32 v%d, -1" % (24 + k))
    a("s_mul_i32 s54, s32, %d" % (8 * 18432))
    a("s_lshl_b32 s55, s31, 10")
    a("s_add_u32 s55, s55, s54")
    a("s_lshr_b32 s56, s31, 1")
    a("s_lshl_b32 s56, s56, 8")
    a("s_and_b32 s57, s31, 1")
    a("s_lshl_b32 s57, s57, 3")
    a("s_add_u32 s56, s56, s57")
    a("s_add_u32 s56, s56, s54")
    a("s_add_u32 s56, s56, 16384")
    stage_spin(a, "L_ct_p", 0, 3, 10, 0)
    for j in range(4):
        a("buffer_store_dword v24, v22, s[24:27], s56 offen sc1")
        a("buffer_store_dwordx4 v[24:27], v21, s[24:27], s55 offen sc1")
        a("buffer_store_dwordx4 v[24:27], v21, s[24:27], s55 offen offset:512 sc1")
        a("s_add_u32 s55, s55, %d" % (2 * 18432))
        a("s_add_u32 s56, s56, %d" % (2 * 18432))
    a("v_mov_b32 v4, 1")
    a("s_waitcnt vmcnt(0)")
    a("ds_write_b32 v3, v4 offset:%d" % C_C)
    a("s_mov_b64 exec, 1")
    a("global_store_dword v14, v15, s[8:9] sc1")
    a("s_mov_b64 exec, -1")
    stamp(a, 6)
    lds_spin(a, "L_ct_q", 3, C_B, 10, (8,), 1)
    if AUXLATE:
        aux()
    else:
        a("s_sleep %d" % OPT["slp3"])
    flag_poll(a, "L_op", 8, 12, "s%d" % TAG, 32, 2)
    a("ds_write_b32 v4, v5")
    a("ds_write_b32 v4, v6 offset:256")
    lds_inc(a, 3, 10, C_GO2)
    stamp(a, 7)
    stamp_end(a, 11 if OPT["st11"] else 99, 3)
    a("ds_read_b64 v[10:11], v3 offset:%d" % C_IDX)
    a("s_waitcnt lgkmcnt(0)")
    a("v_readfirstlane_b32 s12, v10")
    a("v_readfirstlane_b32 s13, v11")
    a("s_mul_i32 s46, s52, 80")
    a("s_sub_u32 s46, s12, s46")
    a("s_cmp_lt_u32 s46, 80")
    a("s_cbranch_scc0 L_end")
    a("v_lshlrev_b32 v4, 7, v0")
    a("v_add_u32 v4, %d, v4" % (L.WS_FLAG + F_Y * 128))
    srd_off(a, 16, 8, L.WS_YP, 16 * 2304)
    a("v_lshrrev_b32 v6, 4, v0")
    a("v_mul_u32_u24 v6, 2304, v6")
    a("v_and_b32 v7, 15, v0")
    a("v_lshlrev_b32 v7, 4, v7")
    a("v_add_u32 v6, v6, v7")
    a("v_add_u32 v7, %d, v7" % YB)
    a("s_lshl_b32 s40, s53, 8")
    flag_poll(a, "L_yp", 4, 5, "12", 16, 2)
    for i in range(4):
        a("buffer_load_dwordx4 %s, v6, s[16:19], s40 offen sc1" % vr(8 + 4 * i, 4))
        a("s_add_u32 s40, s40, %d" % (4 * 2304))
    a("s_waitcnt vmcnt(0)")
    for i in range(1, 4):
        a("v_pk_add_f32 v[8:9], v[8:9], %s" % vr(8 + 4 * i, 2))
        a("v_pk_add_f32 v[10:11], v[10:11], %s" % vr(10 + 4 * i, 2))
    for k in range(4):
        a("v_mov_b32 v20, v%d" % (8 + k))
        a("v_permlane32_swap_b32 v20, v%d" % (8 + k))
        a("v_add_f32 v%d, v%d, v20" % (8 + k, 8 + k))
        a("v_mov_b32 v20, v%d" % (8 + k))
        a("v_permlane16_swap_b32 v20, v%d" % (8 + k))
        a("v_add_f32 v%d, v%d, v20" % (8 + k, 8 + k))
        bf16_round(a, 8 + k, 8 + k)
        a("v_mul_f32 v%d, s13, v%d" % (8 + k, 8 + k))
        bf16_round(a, 8 + k, 8 + k)
    a("v_mov_b32 v12, 1")
    a("ds_write_b128 v7, v[8:11]")
    a("ds_write_b32 v3, v12 offset:%d" % C_YRDY)
    a("s_cmp_eq_u32 s53, 0")
    a("s_cbranch_scc0 L_end")
    a("v_mov_b32 v4, %d" % L.WS_EPOCH)
    a("v_mov_b32 v5, s%d" % TAG)
    a("s_mov_b64 exec, 1")
    a("global_store_dword v4, v5, s[8:9]")
    a("s_endpgm")

    a.label("L_down")
    a("s_cmp_ge_u32 s2, 192")
    a("s_cbranch_scc1 L_end")
    DW, DA = 20, 128
    a("v_lshrrev_b32 v2, 3, v0")
    a("v_and_b32 v10, 7, v0")
    a("v_mul_u32_u24 v16, 1152, v2")
    a("v_lshl_add_u32 v16, v10, 4, v16")
    a("s_mul_i32 s36, s2, 24")
    a("v_mul_u32_u24 v12, %d, v10" % (4608 * 16))
    a("v_add_u32 v11, s36, v2")
    a("v_lshl_add_u32 v17, v11, 4, v12")
    a("v_cmp_gt_u32 s[56:57], 7, v10")
    a("s_mul_i32 s37, s2, %d" % (24 * 1152))
    a("v_and_b32 v1, 1, v0")
    a("v_lshlrev_b32 v1, 4, v1")
    sel_masks(a, 44, 11)
    a("v_lshrrev_b32 v11, 5, v0")
    a("v_bfe_u32 v12, v0, 3, 1")
    a("v_cmp_eq_u32 s[52:53], v11, v12")
    a("v_mul_u32_u24 v12, 2304, v12")
    a("v_bfe_u32 v11, v0, 4, 1")
    a("v_lshl_add_u32 v12, v11, 7, v12")
    a("v_lshl_add_u32 v12, v10, 2, v12")
    a("v_add_u32 v164, %d, v12" % HP)
    a("v_lshlrev_b32 v165, 2, v0")
    a("v_add_u32 v166, %d, v165" % HP)
    a("s_and_b32 s38, s2, 15")
    a("s_mul_i32 s39, s38, 2304")
    a("s_add_u32 s39, s39, %d" % L.WS_YP)
    a("v_add_u32 v165, s39, v165")
    a("s_lshl_b32 s38, s38, 7")
    a("s_add_u32 s38, s38, %d" % (L.WS_FLAG + F_Y * 128))
    srd_off(a, 16, 14, "s37", 24 * 1152)
    srd_off(a, 20, 8, L.WS_PA, 7 * 4608 * 16)
    def dloads():
        for t in range(0 if OPT["nodown"] else 3):
            a("s_movk_i32 s40, %d" % (9216 * t))
            for cg in range(9):
                a("buffer_load_dwordx4 %s, v16, s[16:19], s40 offen offset:%d %s" % (vr(DW + 4 * (9 * t + cg), 4), 128 * cg, "" if OPT["dtouch"] else "nt"))

    for k in range(2, 11):
        if k == OPT["dpos"]:
            dloads()
        a("s_barrier")
    if OPT["dpos"] == -1:
        a("s_setprio 3")
        stage_spin(a, "L_dn_w2", 0, 3, 10, 0)
        dloads()
    elif OPT["dpos"] == -2:
        a("s_setprio 3")
        lds_spin(a, "L_dn_w2", 3, C_WO, 10, (2,), 2)
        dloads()
    elif OPT["dpos"] == -3:
        a("s_setprio 3")
        lds_spin(a, "L_dn_w2", 3, C_1, 10, (8, 1), 0)
        a("s_sleep 8")
        dloads()
    elif OPT["w8e"]:
        lds_spin(a, "L_dn_w2", 3, C_1, 10, (8,), 2)
    else:
        stage_spin(a, "L_dn_w2", 0, 3, 10, 2)
    stamp(a, 5)
    a("s_setprio %d" % OPT["pr1"])
    a("s_mov_b32 s60, 0x40000")
    a.label("L_dn_pa")
    a("buffer_load_dwordx3 v[4:6], v17, s[20:23], 0 offen sc1")
    a("buffer_load_dwordx3 v[8:10], v17, s[20:23], 0 offen offset:128 sc1")
    a("buffer_load_dwordx3 v[160:162], v17, s[20:23], 0 offen offset:256 sc1")
    a("s_waitcnt vmcnt(0)")
    a("v_cmp_ne_u32 vcc, s%d, v6" % TAG)
    a("v_cmp_ne_u32 s[40:41], s%d, v10" % TAG)
    a("v_cmp_ne_u32 s[42:43], s%d, v162" % TAG)
    a("s_or_b64 vcc, vcc, s[40:41]")
    a("s_or_b64 vcc, vcc, s[42:43]")
    a("s_and_b64 vcc, vcc, s[56:57]")
    a("s_cmp_eq_u64 vcc, 0")
    a("s_cbranch_scc1 L_dn_pb")
    a("s_sleep 8")
    a("s_sub_u32 s60, s60, 1")
    a("s_cbranch_scc0 L_dn_pa")
    a.label("L_dn_pb")
    stamp(a, 8)
    a("v_mov_b32 v6, v8")
    a("v_mov_b32 v7, v9")
    a("v_mov_b32 v8, v160")
    a("v_mov_b32 v9, v161")
    sum8(a, (4, 5, 6, 7, 8, 9))
    for t in range(3):
        g, u = 4 + 2 * t, 5 + 2 * t
        bf16_round(a, g, g)
        bf16_round(a, u, u)
        sigmoid(a, 10, g)
        a("v_mul_f32 v%d, v%d, v10" % (g, g))
        bf16_round(a, g, g)
        a("v_mul_f32 v%d, v%d, v%d" % (g, g, u))
        a("v_cvt_pk_bf16_f32 v%d, v%d, v%d" % (g, g, g))
        a("v_and_b32 v%d, 0xffff, v%d" % (g, g))
        a("v_lshlrev_b32 v%d, v1, v%d" % (g, g))
    for t in range(3):
        selector(a, 12, 4 + 2 * t, 44)
        for cg in range(9):
            d = vr(DA + 4 * cg, 4)
            a("v_mfma_f32_16x16x32_bf16 %s, %s, v[12:15], %s" % (d, vr(DW + 4 * (9 * t + cg), 4), "0" if t == 0 else d))
    a("s_mov_b64 exec, s[52:53]")
    for cg in range(9):
        for r in range(4):
            a("ds_write_b32 v164, v%d offset:%d" % (DA + 4 * cg + r, 256 * cg + 32 * r))
    a("s_mov_b64 exec, -1")
    for cg in range(9):
        a("ds_read2st64_b32 %s, v166 offset0:%d offset1:%d" % (vr(20 + 2 * cg, 2), cg, cg + 9))
    stage_spin(a, "L_dn_at", 0, 3, 10, 2)
    lds_spin(a, "L_dn_ax", 3, C_PA, 10, (1,), 1)
    for cg in range(9):
        a("v_add_f32 v%d, v%d, v%d" % (20 + 2 * cg, 20 + 2 * cg, 21 + 2 * cg))
        a("global_atomic_add_f32 v165, v%d, s[8:9] offset:%d" % (20 + 2 * cg, 256 * cg))
    a("v_mov_b32 v4, s38")
    a("v_mov_b32 v5, 1")
    a("s_waitcnt vmcnt(0)")
    stamp(a, 7)
    a("s_mov_b64 exec, 1")
    a("global_atomic_add v4, v5, s[8:9] sc1")
    stamp_end(a, 8, 1)


def kf(a):
    a.label(NAME)
    a("s_cmp_ge_u32 s2, 256")
    a("s_cbranch_scc1 L_end")
    stamp_init(a)
    stamp(a, 0)
    a("s_load_dwordx4 s[4:7], s[0:1], 0")
    a("s_load_dwordx2 s[8:9], s[0:1], 88")
    a("s_load_dwordx2 s[10:11], s[0:1], 72")
    a("s_load_dwordx2 s[14:15], s[0:1], 56")
    a("s_load_dwordx2 s[28:29], s[0:1], 16")
    a("v_lshrrev_b32 v1, 6, v0")
    a("v_and_b32 v0, 63, v0")
    a("v_readfirstlane_b32 s3, v1")
    a("s_and_b32 s30, s2, 3")
    a("s_bfe_u32 s31, s2, 0x10002")
    a("s_lshr_b32 s32, s2, 3")
    a("s_cmp_ge_u32 s32, 24")
    a("s_cbranch_scc1 L_sp")
    a("s_cmp_ge_u32 s3, 8")
    a("s_cbranch_scc1 L_help")
    gemm_phase(a)
    attention_phase(a)
    out_phase(a)
    late_and_slow(a)
    spare_phase(a)
    helpers(a)
    a.label("L_end")
    a("s_endpgm")
```

```python
from asmdsl import vr, sr
import layout as L
from common import *
from k2 import (KB, VB, QB, ONES, vK, vKt, vV, vStep, QM, QT, MSK, KF, VF, PP, SS, OO, T,
                k_reads, v_reads, qk, pv)

NAME = "gated_mix__sliding_block__moe_arch_mod__prompt_kernel"
SLOT = 34816
IMG = SLOT
WO = 66560
CTL = 149568
YB = 149696
HP = 150016
YT = 154624
XS = 156672
KF_LDS = 162304
PSLOT = (QB, QB + 4096, 140288, 144384, 158208)
KF_VGPR = 168
PART = 0
STG = 20480
XR, GR = 128, 136
vC = 154
TAG = 65
C_O, C_GO2, C_A, C_WO, C_PART, C_YRDY, C_B, C_1, C_GO1, C_C, C_PA, C_IDX, C_RSEL = 0, 4, 8, 12, 88, 32, 36, 40, 44, 48, 52, 56, 60
C_KMAX, C_KCNT, C_XS, C_GD, C_RED, C_RED2, C_FI = 64, 68, 72, 76, 80, 84, 16
F_Q, F_O, F_PA, F_Y = 0, 192, 448, 512


def lds_spin(a, name, addr_v, off, regs, conds, slp=1):
    n = len(conds)
    a("s_mov_b32 s60, 0x200000")
    a.label(name)
    a(("ds_read_b64 %s, v%d offset:%d" % (vr(regs, 2), addr_v, off)) if n == 2 else
      ("ds_read_b32 v%d, v%d offset:%d" % (regs, addr_v, off)))
    a("s_waitcnt lgkmcnt(0)")
    a("v_readfirstlane_b32 s61, v%d" % regs)
    if n == 2:
        a("v_readfirstlane_b32 s62, v%d" % (regs + 1))
        a("s_lshl_b32 s62, s62, 8")
        a("s_or_b32 s61, s61, s62")
        a("s_cmp_eq_u32 s61, %d" % (conds[0] | (conds[1] << 8)))
    else:
        a("s_cmp_eq_u32 s61, %d" % conds[0])
    a("s_cbranch_scc1 %s_d" % name)
    if slp:
        a("s_sleep %d" % slp)
    a("s_sub_u32 s60, s60, 1")
    a("s_cmp_lg_u32 s60, 0")
    a("s_cbranch_scc1 %s" % name)
    a.label(name + "_d")


def stage_spin(a, name, stage, vc=vC, T=T, slp=0):
    a("s_mov_b32 s60, 0x200000")
    a.label(name)
    a("ds_read_b32 v%d, v%d offset:%d" % (T, vc, C_A))
    a("s_waitcnt lgkmcnt(0)")
    a("v_readfirstlane_b32 s61, v%d" % T)
    a("s_bitcmp1_b32 s61, %d" % (8 * stage + 3))
    a("s_cbranch_scc1 %s_d" % name)
    if slp:
        a("s_sleep %d" % slp)
    a("s_sub_u32 s60, s60, 1")
    a("s_cmp_lg_u32 s60, 0")
    a("s_cbranch_scc1 %s" % name)
    a.label(name + "_d")


def landed(a, inc, vm):
    a("v_mov_b32 v%d, %s" % (T, hex(inc)))
    a("s_waitcnt vmcnt(%d)" % vm)
    a("s_mov_b64 exec, 1")
    a("ds_add_u32 v%d, v%d offset:%d" % (vC, T, C_A))
    a("s_mov_b64 exec, -1")


def poison(a):
    if OPT["nopois"]:
        a("s_nop 0")
        a("buffer_load_dword v155, v152, s[24:27], s59 offen")
        a("buffer_load_dword v155, v152, s[24:27], s59 offen")
        return
    for k in range(4):
        a("v_mov_b32 v%d, -1" % (120 + k))
    a("buffer_store_dwordx4 %s, v153, s[24:27], s58 offen sc1" % vr(120, 4))
    a("s_mov_b32 exec_hi, 0")
    a("buffer_store_dword v%d, v152, s[24:27], s59 offen sc1" % 120)
    a("s_mov_b32 exec_hi, -1")


def tail_touch(a):
    a("buffer_load_dword v155, v152, s[24:27], s59 offen")


def flag_poll(a, name, voff, vt, want, lanes, slp=1, width=1):
    a("s_mov_b64 exec, %s" % ("-1" if lanes == 64 else hex((1 << lanes) - 1)))
    a("s_mov_b32 s60, 0x40000")
    a.label(name)
    a("global_load_dword%s %s, v%d, s[8:9] sc1" % ("" if width == 1 else "x%d" % width, vr(vt, width), voff))
    a("s_waitcnt vmcnt(0)")
    a("v_cmp_eq_u32 vcc, %s, v%d" % (want, vt))
    a("s_cmp_eq_u64 vcc, exec")
    a("s_cbranch_scc1 %s_d" % name)
    if slp:
        a("s_sleep %d" % slp)
    a("s_sub_u32 s60, s60, 1")
    a("s_cmp_lg_u32 s60, 0")
    a("s_cbranch_scc1 %s" % name)
    a.label(name + "_d")
    a("s_mov_b64 exec, -1")


def lds_inc(a, vz, vt, off, rtn=False):
    a("v_mov_b32 v%d, 1" % vt)
    a("s_mov_b64 exec, 1")
    if rtn:
        a("ds_add_rtn_u32 v%d, v%d, v%d offset:%d" % (vt, vz, vt, off))
    else:
        a("ds_add_u32 v%d, v%d offset:%d" % (vz, vt, off))
    a("s_mov_b64 exec, -1")


def load_tag(a):
    a("s_mov_b32 s64, %d" % L.WS_EPOCH)
    a("s_load_dword s%d, s[8:9], s64" % TAG)


def make_tag(a):
    a("s_mul_i32 s%d, s%d, 0x9e3779b1" % (TAG, TAG))
    a("s_add_u32 s%d, s%d, 0x7f4a7c15" % (TAG, TAG))


def copy_scalars(a):
    a("s_mul_i32 s55, s34, %d" % (4 * L.PAIR_BYTES))
    a("s_mul_i32 s56, s35, 9216")
    a("s_add_u32 s55, s55, s56")
    a("s_lshl_b32 s56, s3, 10")
    a("s_add_u32 s55, s55, s56")
    for j in range(5):
        a("s_add_u32 s57, s3, %d" % (8 * j))
        a("s_mul_i32 s57, s57, 57")
        a("s_lshr_b32 s57, s57, 9")
        a("s_mul_i32 s57, s57, %d" % (L.PAIR_BYTES - 9216))
        a("s_add_u32 s57, s57, s55")
        a("s_add_u32 s%d, s57, %d" % (50 + j, 8192 * j))
    a("s_mul_i32 s58, s35, 12")
    a("s_add_u32 s58, s58, s34")
    a("s_lshl_b32 s58, s58, 7")
    a("s_add_u32 s58, s58, %d" % (L.WS_FLAG + F_Q * 128))


def decode2(a):
    a("s_and_b32 s30, s2, 3")
    a("s_bfe_u32 s33, s2, 0x10002")
    a("s_bfe_u32 s32, s2, 0x20003")
    a("s_lshl_b32 s31, s30, 2")
    a("s_add_u32 s31, s31, s32")
    a("s_lshl_b32 s32, s33, 3")
    a("s_lshr_b32 s34, s2, 5")
    if OPT["light"]:
        a("s_add_u32 s34, s34, 2")
        a("s_and_b32 s34, s34, 7")
    a("s_add_u32 s32, s32, s34")
    a("s_lshr_b32 s33, s2, 3")
    a("s_mul_i32 s34, s33, 57")
    a("s_lshr_b32 s34, s34, 9")
    a("s_mul_i32 s53, s34, 9")
    a("s_sub_u32 s53, s33, s53")
    a("s_lshl_b32 s52, s34, 3")
    a("s_and_b32 s34, s2, 7")
    a("s_add_u32 s52, s52, s34")
    a("s_sub_u32 s33, s2, 216")
    a("s_mul_i32 s34, s33, 57")
    a("s_lshr_b32 s34, s34, 9")
    a("s_mul_i32 s35, s34, 9")
    a("s_sub_u32 s33, s33, s35")
    a("s_add_u32 s34, s34, 24")
    a("s_cmp_ge_u32 s2, 216")
    a("s_cselect_b32 s52, s34, s52")
    a("s_cselect_b32 s53, s33, s53")


def qpoll(a, vc, name, own, r=16):
    R = dict(a=r, b=r + 1, c=r + 2)
    a("v_add_u32 v%(a)d, 2, v0" % R)
    a("v_mul_u32_u24 v%(b)d, 43, v%(a)d" % R)
    a("v_lshrrev_b32 v%(b)d, 7, v%(b)d" % R)
    a("v_mul_u32_u24 v%(c)d, 3, v%(b)d" % R)
    a("v_sub_u32 v%(a)d, v%(a)d, v%(c)d" % R)
    a("s_sub_u32 s35, s32, 2")
    a("v_add_u32 v%(a)d, s35, v%(a)d" % R)
    a("v_max_i32 v%(a)d, 0, v%(a)d" % R)
    a("v_mul_u32_u24 v%(a)d, 12, v%(a)d" % R)
    a("v_lshl_add_u32 v%(a)d, v%(b)d, 2, v%(a)d" % R)
    a("v_add_u32 v%(a)d, s30, v%(a)d" % R)
    a("v_lshlrev_b32 v%(a)d, 7, v%(a)d" % R)
    a("v_add_u32 v%d, %d, v%d" % (r, L.WS_FLAG + F_Q * 128, r))
    if own:
        lds_spin(a, name + "w", vc, C_1, r + 2, (8,), 0)
    if OPT["qdel"]:
        a("s_sleep %d" % OPT["qdel"])
    if OPT["qpipe"] and own:
        NP = OPT["qpipe"]
        a("s_mov_b64 exec, 0x7f")
        a("s_mov_b32 s60, 0x20000")
        for k in range(NP - 1):
            a("global_load_dword v%d, v%d, s[8:9] sc1" % (r + 3 + k, r))
            a("s_sleep 1")
        a.label(name)
        for k in range(NP):
            a("global_load_dword v%d, v%d, s[8:9] sc1" % (r + 3 + (k + NP - 1) % NP, r))
            a("s_waitcnt vmcnt(%d)" % (NP - 1))
            a("v_cmp_eq_u32 vcc, s%d, v%d" % (TAG, r + 3 + k))
            a("s_cmp_eq_u64 vcc, exec")
            a("s_cbranch_scc1 %s_d" % name)
        a("s_sub_u32 s60, s60, 1")
        a("s_cbranch_scc0 %s" % name)
        a.label(name + "_d")
        a("s_mov_b64 exec, -1")
    else:
        flag_poll(a, name, r, r + 1, "s%d" % TAG, 7, OPT["qslp"])
    lds_inc(a, vc, r + 2, C_GO1)


def code_touch(a):
    if not OPT["ctouch"]:
        return
    lab = a.newlabel("pc")
    a("s_getpc_b64 s[20:21]")
    a.label(lab)
    a("s_sub_u32 s20, s20, %s-%s" % (lab, NAME))
    a("s_subb_u32 s21, s21, 0")
    a("s_lshr_b32 s22, s2, 3")
    a("s_mul_i32 s22, s22, %d" % (12 * 128))
    a("v_lshlrev_b32 v20, 7, v0")
    a("v_add_u32 v20, s22, v20")
    a("v_min_u32 v20, L_end-%s, v20" % NAME)
    a("s_mov_b64 exec, 0xfff")
    a("global_load_dword v21, v20, s[20:21]")
    a("s_mov_b64 exec, -1")


def gemm_phase(a):
    a("s_mul_i32 s33, s32, 43")
    a("s_lshr_b32 s33, s33, 7")
    a("s_mul_i32 s34, s33, 3")
    a("s_sub_u32 s34, s32, s34")
    a("s_lshl_b32 s34, s34, 2")
    a("s_add_u32 s34, s34, s30")
    a("s_lshl_b32 s35, s31, 3")
    a("s_add_u32 s35, s35, s33")
    a("s_cmp_lt_u32 s3, 4")
    a("s_cbranch_scc1 L_comp")
    a("s_cmp_lt_u32 s3, 6")
    a("s_cbranch_scc0 L_ldw")
    a("s_sub_u32 s36, s3, 4")
    a("v_and_b32 v7, 7, v0")
    a("s_lshl_b32 s41, s33, 3")
    a("s_lshl_b32 s42, s36, 6")
    a("s_add_u32 s41, s41, s42")
    a("v_add_u32 v7, s41, v7")
    a("v_mul_u32_u24 v7, 3456, v7")
    a("v_lshrrev_b32 v1, 3, v0")
    a("v_lshl_add_u32 v7, v1, 7, v7")
    a("s_mul_i32 s39, s35, %d" % (128 * 1152))
    a("s_mul_i32 s46, s34, 288")
    a("s_and_b32 s46, s46, 0xffffff80")
    a("s_sub_u32 s47, %d, s46" % (576 * 3456))
    a("v_mul_u32_u24 v1, 1152, v1")
    a("v_lshrrev_b32 v2, 4, v0")
    a("v_and_b32 v3, 7, v0")
    a("v_xor_b32 v3, v3, v2")
    a("v_lshl_add_u32 v4, v3, 4, v1")
    a("v_xor_b32 v3, 4, v3")
    a("v_lshl_add_u32 v5, v3, 4, v1")
    a("v_add_u32 v5, %d, v5" % (8 * 1152))
    a("s_mul_i32 s37, s36, %d" % (64 * 1152))
    a("s_lshl_b32 s38, s36, 13")
    a("s_waitcnt lgkmcnt(0)")
    srd_off(a, 20, 6, "s46", "s47")
    a("s_mov_b64 exec, 0xffffff")
    a("buffer_load_dword v20, v7, s[20:23], 0 offen")
    a("s_mov_b64 exec, -1")
    srd_off(a, 16, 4, "s39", 128 * 1152)

    def x_chunk(c):
        for i in range(8):
            a("s_add_u32 m0, s38, %d" % ((c % 4) * SLOT + i * 1024))
            a("s_add_u32 s40, s37, %d" % ((i >> 1) * 16 * 1152 + c * 128))
            a("buffer_load_dwordx4 v%d, s[16:19], s40 offen lds" % (4 + (i & 1)))

    x_chunk(0)
    load_tag(a)
    copy_scalars(a)
    stamp(a, 1)
    a("s_waitcnt vmcnt(8) lgkmcnt(0)")
    stamp(a, 2)

    def loader_loop(fn, n, first, ahead0):
        LA = OPT["la"]
        a("s_barrier")
        stamp(a, 13)
        nxt = first
        while nxt < ahead0:
            fn(nxt)
            nxt += 1
        stamp(a, 14)
        for c in range(9):
            a("s_waitcnt vmcnt(%d)" % (n * (nxt - 1 - c)))
            a("s_barrier")
            while nxt <= c + LA and nxt < 9:
                fn(nxt)
                nxt += 1

    loader_loop(x_chunk, 8, 1, 2)
    a("s_branch L_copy")
    a.label("L_ldw")
    a("s_movk_i32 s41, 3641")
    for i in range(9):
        a("v_add_u32 v1, %d, v0" % (64 * i))
        a("v_mul_u32_u24 v2, s41, v1")
        a("v_lshrrev_b32 v2, 16, v2")
        a("v_mul_u32_u24 v3, 18, v2")
        a("v_sub_u32 v3, v1, v3")
        a("v_bfe_u32 v1, v2, 2, 2")
        a("v_lshlrev_b32 v1, 3, v1")
        a("v_lshrrev_b32 v13, 4, v2")
        a("v_lshl_add_u32 v1, v13, 2, v1")
        a("v_and_b32 v2, 3, v2")
        a("v_add_u32 v1, v1, v2")
        a("v_mul_u32_u24 v1, 3456, v1")
        a("v_lshl_add_u32 v%d, v3, 4, v1" % (4 + i))
        if i == 2:
            a("s_waitcnt lgkmcnt(0)")
            load_tag(a)
    a("s_sub_u32 s36, s3, 6")
    a("s_mul_i32 s37, s36, %d" % (32 * 3456))
    a("s_mul_i32 s38, s36, 9216")
    a("s_mul_i32 s39, s34, 288")
    a("s_sub_u32 s42, %d, s39" % (576 * 3456))
    copy_scalars(a)
    srd_off(a, 16, 6, "s39", "s42")
    a("s_waitcnt lgkmcnt(0)")

    def w_chunk(c):
        a("s_add_u32 s40, s37, %d" % (c * 64 * 3456))
        for i in range(9):
            a("s_add_u32 m0, s38, %d" % ((c % 4) * SLOT + 16384 + i * 1024))
            a("s_nop 0")
            a("buffer_load_dwordx4 v%d, s[16:19], s40 offen lds" % (4 + i))

    loader_loop(w_chunk, 9, 0, OPT["wa0"])
    a("s_branch L_copy")
    a.label("L_comp")
    ACC, XF, WF = 64, (136, 144), 24
    a("v_and_b32 v8, 15, v0")
    a("v_lshrrev_b32 v9, 4, v0")
    a("v_lshrrev_b32 v10, 1, v8")
    a("v_xor_b32 v10, v10, v9")
    a("s_lshl_b32 s36, s3, 12")
    a("v_lshlrev_b32 v2, 7, v8")
    a("v_lshl_add_u32 v2, v10, 4, v2")
    a("v_add_u32 v2, s36, v2")
    a("v_xor_b32 v3, 64, v2")
    a("v_add_u32 v4, %d, v2" % (2 * SLOT))
    a("v_add_u32 v5, %d, v3" % (2 * SLOT))
    a("v_lshrrev_b32 v10, 2, v0")
    a("v_mul_u32_u24 v6, 288, v10")
    a("v_and_b32 v10, 3, v0")
    a("v_lshl_add_u32 v6, v10, 3, v6")
    a("v_add_u32 v6, 16384, v6")
    a("v_add_u32 v7, %d, v6" % (2 * SLOT))
    a("s_waitcnt lgkmcnt(0)")
    load_tag(a)
    a("s_mov_b32 s36, 1.0")
    a("s_cmp_lt_u32 s34, 4")
    a("s_cselect_b32 s36, %s, s36" % f32(QSCALE))
    a("s_mov_b32 s37, s36")
    a("s_lshl_b32 s38, s3, 5")
    a("v_add_u32 v10, s38, v8")
    a("v_mul_u32_u24 v10, 72, v10")
    a("v_lshl_add_u32 v10, v9, 3, v10")
    a("v_add_u32 v10, %d, v10" % IMG)
    for ft in range(9):
        a("v_add_u32 v11, %d, v9" % (4 * ft))
        a("v_mul_u32_u24 v11, 57, v11")
        a("v_lshrrev_b32 v11, 9, v11")
        a("v_mul_u32_u24 v11, 9144, v11")
        a("v_add_u32 v%d, v11, v10" % (12 + ft))
    copy_scalars(a)
    a("s_waitcnt lgkmcnt(0)")

    def xreads(step):
        c, h2 = step >> 1, step & 1
        slot = c % 4
        return ["ds_read_b128 %s, v%d offset:%d" % (vr(XF[step & 1] + 4 * tt, 4), 2 + 2 * (slot >> 1) + h2,
                                                    (slot & 1) * SLOT + tt * 2048) for tt in range(2)]

    def wreads(step, ft):
        c, h2 = step >> 1, step & 1
        slot = c % 4
        return ["ds_read_b64_tr_b16 %s, v%d offset:%d" % (vr(WF + 4 * ft + 2 * sec, 2), 6 + (slot >> 1),
                                                          (slot & 1) * SLOT + h2 * 9216 + sec * 4608 + ft * 32)
                for sec in range(2)]

    def mfma(step, ft, tt):
        d = vr(ACC + 8 * ft + 4 * tt, 4)
        return "v_mfma_f32_16x16x32_bf16 %s, %s, %s, %s" % (
            d, vr(WF + 4 * ft, 4), vr(XF[step & 1] + 4 * tt, 4), "0" if step == 0 else d)

    def epi(k):
        ft, tt = k >> 1, k & 1
        b = ACC + 4 * k
        t = 152 + 2 * (k % 8)
        return ["v_pk_mul_f32 %s, %s, s[36:37]" % (vr(b, 2), vr(b, 2)),
                "v_pk_mul_f32 %s, %s, s[36:37]" % (vr(b + 2, 2), vr(b + 2, 2)),
                "v_cvt_pk_bf16_f32 v%d, v%d, v%d" % (t, b, b + 1),
                "v_cvt_pk_bf16_f32 v%d, v%d, v%d" % (t + 1, b + 2, b + 3),
                "ds_write_b64 v%d, %s offset:%d" % (12 + ft, vr(t, 2), 32 * ft + 1152 * tt)]

    a("s_barrier")
    a("s_barrier")
    stamp(a, 1)
    q = []

    def issue(tag, lst):
        for x in lst:
            a(x)
            q.append(tag)

    def need(tag):
        last = max(k for k, v in enumerate(q) if v == tag)
        a("s_waitcnt lgkmcnt(%d)" % min(15, len(q) - 1 - last))

    issue(("x", 0), xreads(0))
    for ft in range(9):
        issue(("w", 0, ft), wreads(0, ft))
    LAG = 3
    for step in range(18):
        if step & 1 and step < 17:
            a("s_barrier")
        for ft in range(9):
            need(("w", step, ft))
            a(mfma(step, ft, 0))
            if ft == 0 and step < 17:
                issue(("x", step + 1), xreads(step + 1))
            if step == 17 and 2 * ft >= LAG:
                e = epi(2 * ft - LAG)
                for x in e[:4]:
                    a(x)
                issue("e", e[4:])
            a(mfma(step, ft, 1))
            if step < 17:
                issue(("w", step + 1, ft), wreads(step + 1, ft))
            elif 2 * ft + 1 >= LAG:
                e = epi(2 * ft + 1 - LAG)
                for x in e[:4]:
                    a(x)
                issue("e", e[4:])
    for k in range(18 - LAG, 18):
        for x in epi(k):
            a(x)
    stamp(a, 2)
    a("s_waitcnt lgkmcnt(0)")
    a.label("L_copy")
    a("v_lshlrev_b32 v1, 4, v0")
    a("s_lshl_b32 s36, s3, 10")
    a("v_add_u32 v2, s36, v1")
    a("v_add_u32 v3, %d, v2" % (IMG + 4 * 8192))
    srd_off(a, 24, 8, L.WS_QKV, L.QKV_BYTES)
    make_tag(a)
    a("s_barrier")
    for j in range(4):
        a("ds_read_b128 %s, v2 offset:%d" % (vr(4 + 4 * j, 4), IMG + j * 8192))
    a("s_cmp_lt_u32 s3, 4")
    a("s_cbranch_scc0 L_c4")
    a("ds_read_b128 v[20:23], v3")
    a("s_waitcnt lgkmcnt(0)")
    a("buffer_store_dwordx4 v[20:23], v1, s[24:27], s54 offen sc1")
    a.label("L_c4")
    for j in range(4):
        a("s_waitcnt lgkmcnt(%d)" % (3 - j))
        a("buffer_store_dwordx4 %s, v1, s[24:27], s%d offen sc1" % (vr(4 + 4 * j, 4), 50 + j))
    a("s_mov_b32 s63, s58")
    a("v_mov_b32 v%d, %d" % (vC, CTL))
    lds_inc(a, vC, 24, C_FI)
    stamp(a, 3)


def spare_phase(a):
    GW = 64
    a.label("L_sp")
    a("s_sub_u32 s36, s2, 192")
    a("s_cmp_ge_u32 s3, 8")
    a("s_cbranch_scc1 L_sp_ffn")
    a("s_cmp_ge_u32 s3, 4")
    a("s_cbranch_scc1 L_sp_hi")
    a("s_load_dwordx2 s[60:61], s[0:1], 32")
    a("s_load_dwordx2 s[62:63], s[0:1], 64")
    a("v_lshrrev_b32 v2, 3, v0")
    a("v_and_b32 v3, 7, v0")
    a("v_lshlrev_b32 v3, 4, v3")
    a("s_lshl_b32 s34, s36, 2")
    a("s_add_u32 s34, s34, s3")
    a("s_lshl_b32 s33, s34, 3")
    a("v_add_u32 v1, s33, v2")
    a("v_mul_u32_u24 v4, 1152, v1")
    a("v_add_u32 v4, v4, v3")
    a("s_mul_i32 s51, s34, %d" % (7 * 128))
    a("s_mul_i32 s52, s34, %d" % (21 * 128))
    a("v_lshlrev_b32 v7, 7, v0")
    a("s_waitcnt lgkmcnt(0)")
    load_tag(a)
    srd(a, 16, 6, 576 * 3456)
    srd(a, 20, 28, 576 * 1152)
    for i in range(9):
        a("global_load_dwordx4 %s, v4, s[4:5] offset:%d" % (vr(8 + 4 * i, 4), 128 * i))
        if i == 0:
            for j in range(9):
                a("global_load_dwordx4 %s, v3, s[60:61] offset:%d" % (vr(44 + 4 * j, 4), 128 * j))
                a("global_load_dwordx4 %s, v3, s[62:63] offset:%d" % (vr(80 + 4 * j, 4), 128 * j))
        else:
            a("s_add_u32 s53, s51, %d" % (1728 * 128 * i))
            a("s_mov_b64 exec, 0x7f")
            a("buffer_load_dword v124, v7, s[16:19], s53 offen")
            a("s_mov_b64 exec, -1")
    a("s_mov_b64 exec, 0x1fffff")
    a("buffer_load_dword v124, v7, s[20:23], s52 offen")
    a("s_mov_b64 exec, -1")
    a("v_mov_b32 v%d, %d" % (vC, CTL))
    a("s_waitcnt lgkmcnt(0)")
    make_tag(a)
    a("s_barrier")
    a("s_waitcnt vmcnt(2)")
    for i in range(36):
        p = 116 + (i & 3)
        a("v_dot2_f32_bf16 v%d, v%d, v%d, %s" % (p, 8 + i, 44 + i, "0" if i < 4 else "v%d" % p))
    a("s_nop 1")
    a("v_pk_add_f32 v[116:117], v[116:117], v[118:119]")
    a("v_add_f32 v5, v116, v117")
    sum8(a, (5,))
    bf16_round(a, 5, 5)
    a("v_ashrrev_i32 v7, 31, v5")
    a("v_or_b32 v7, 0x80000000, v7")
    a("v_xor_b32 v7, v7, v5")
    a("v_and_b32 v7, 0xffff0000, v7")
    a("v_sub_u32 v6, 0x7ff, v1")
    a("v_or_b32 v7, v7, v6")
    a("v_mov_b32 v5, 1")
    a("s_mov_b32 s54, 0x01010101")
    a("s_mov_b32 exec_lo, s54")
    a("s_mov_b32 exec_hi, s54")
    a("ds_max_u32 v%d, v7 offset:%d" % (vC, C_KMAX))
    a("s_mov_b64 exec, 1")
    a("ds_add_rtn_u32 v5, v%d, v5 offset:%d" % (vC, C_KCNT))
    a("ds_read_b32 v7, v%d offset:%d" % (vC, C_KMAX))
    a("s_lshl_b32 s53, s36, 3")
    a("s_add_u32 s53, s53, %d" % L.WS_KEYF)
    a("v_mov_b32 v4, s53")
    a("v_mov_b32 v6, s%d" % TAG)
    a("s_waitcnt lgkmcnt(0)")
    a("v_cmp_eq_u32 vcc, 3, v5")
    a("s_and_b64 exec, exec, vcc")
    a("s_cbranch_execz L_sp_nopub")
    a("global_store_dwordx2 v4, v[6:7], s[8:9] sc1")
    a.label("L_sp_nopub")
    a("s_mov_b64 exec, -1")
    stamp(a, 1)
    a("s_mov_b32 s55, 0x3f803f80")
    for i in range(36):
        x, w, p = 8 + i, 80 + i, 116 + (i & 3)
        t = 44 + 4 * (i & 3)
        a("v_lshlrev_b32 v%d, 16, v%d" % (t, x))
        a("v_and_b32 v%d, 0xffff0000, v%d" % (t + 1, x))
        a("v_lshlrev_b32 v%d, 16, v%d" % (t + 2, w))
        a("v_and_b32 v%d, 0xffff0000, v%d" % (t + 3, w))
        a("v_pk_mul_f32 %s, %s, %s" % (vr(t, 2), vr(t, 2), vr(t + 2, 2)))
        a("v_cvt_pk_bf16_f32 v%d, v%d, v%d" % (t, t, t + 1))
        a("v_dot2_f32_bf16 v%d, v%d, s55, %s" % (p, t, "0" if i < 4 else "v%d" % p))
    a("s_nop 1")
    a("v_pk_add_f32 v[116:117], v[116:117], v[118:119]")
    a("v_add_f32 v6, v116, v117")
    sum8(a, (6,))
    bf16_round(a, 6, 6)
    sigmoid(a, 6, 6)
    bf16_round(a, 6, 6)
    a("v_lshlrev_b32 v1, 2, v1")
    a("v_add_u32 v1, %d, v1" % L.WS_G)
    a("s_mov_b32 exec_lo, s54")
    a("s_mov_b32 exec_hi, s54")
    a("global_store_dword v1, v6, s[8:9] sc1")
    a("s_mov_b64 exec, -1")
    a("s_waitcnt vmcnt(0)")
    lds_inc(a, vC, 5, C_GD)
    if OPT["dtouch"]:
        srd(a, 16, 14, 4608 * 1152)
        a("s_mul_i32 s52, s34, %d" % (162 * 128))
        a("v_lshlrev_b32 v7, 7, v0")
        for k in range(3):
            a("buffer_load_dword v124, v7, s[16:19], s52 offen")
            a("s_add_u32 s52, s52, %d" % (54 * 128))
    a("s_mov_b32 s63, 0")
    stamp(a, 2)
    a("s_branch L_att")

    a.label("L_sp_hi")
    a("s_cmp_eq_u32 s3, 7")
    a("s_cbranch_scc0 L_sp_hi1")
    code_touch(a)
    a.label("L_sp_hi1")
    a("v_mov_b32 v%d, %d" % (vC, CTL))
    a("s_waitcnt lgkmcnt(0)")
    load_tag(a)
    a("s_mov_b32 s63, 0")
    a("s_waitcnt lgkmcnt(0)")
    make_tag(a)
    a("s_barrier")
    a("s_cmp_eq_u32 s3, 4")
    a("s_cbranch_scc1 L_sp_w4")
    a("s_cmp_eq_u32 s3, 5")
    a("s_cbranch_scc0 L_att")
    a("s_lshl_b32 s56, s36, 7")
    a("s_add_u32 s56, s56, %d" % (L.WS_FLAG + F_PA * 128))
    a("v_mov_b32 v9, s56")
    lds_spin(a, "L_sp_x5", vC, C_XS, 10, (1, 4), 4)
    a("ds_read_b64 v[14:15], v%d offset:%d" % (vC, C_IDX))
    a("v_mov_b32 v12, s%d" % TAG)
    a("s_waitcnt lgkmcnt(0)")
    a("v_mov_b32 v13, v14")
    a("v_mov_b32 v14, v15")
    a("s_mov_b64 exec, 1")
    a("global_store_dwordx3 v9, v[12:14], s[8:9] sc1")
    a("s_mov_b64 exec, -1")
    a("s_branch L_att")
    a.label("L_sp_w4")
    for k in range(4):
        a("v_mov_b32 v%d, 0" % (12 + k))
    a("s_cmp_lt_u32 s36, 36")
    a("s_cbranch_scc0 L_sp_nz")
    a("s_lshl_b32 s51, s36, 10")
    a("s_add_u32 s51, s51, %d" % L.WS_YP)
    a("v_lshlrev_b32 v4, 4, v0")
    a("v_add_u32 v4, s51, v4")
    a("global_store_dwordx4 v4, v[12:15], s[8:9] sc1")
    a("s_cmp_eq_u32 s36, 0")
    a("s_cbranch_scc0 L_sp_nz")
    a("v_lshlrev_b32 v4, 7, v0")
    a("v_add_u32 v4, %d, v4" % (L.WS_FLAG + F_Y * 128))
    a("global_store_dword v4, v12, s[8:9] sc1")
    a.label("L_sp_nz")
    a("v_lshlrev_b32 v8, 3, v0")
    a("v_add_u32 v8, %d, v8" % L.WS_KEYF)
    srd(a, 24, 4, 2048 * 1152)
    lds_spin(a, "L_sp_own", vC, C_KCNT, 10, (4,), 2)
    a("s_sleep %d" % OPT["slp0"])
    flag_poll(a, "L_sp_kp", 8, 10, "s%d" % TAG, 64, OPT["slp"], 2)
    a("v_lshlrev_b32 v8, 4, v0")
    stamp(a, 1)
    wave_umax(a, 11, 53)
    a("s_and_b32 s54, s53, 0x7ff")
    a("s_sub_u32 s54, 2047, s54")
    a("s_mul_i32 s55, s54, 1152")
    a("s_mov_b32 m0, %d" % XS)
    a("s_add_u32 s56, s55, 1024")
    a("buffer_load_dwordx4 v8, s[24:27], s55 offen lds")
    a("s_mov_b32 m0, %d" % (XS + 1024))
    a("s_mov_b64 exec, 0xff")
    a("buffer_load_dwordx4 v8, s[24:27], s56 offen lds")
    a("s_mov_b64 exec, -1")
    a("s_and_b32 s55, s53, 0xffff0000")
    a("s_xor_b32 s56, s55, 0x80000000")
    a("s_xor_b32 s57, s55, 0xffff0000")
    a("s_bitcmp1_b32 s55, 31")
    a("s_cselect_b32 s55, s56, s57")
    a("v_mov_b32 v12, s55")
    sigmoid(a, 13, 12)
    bf16_round(a, 13, 13)
    a("v_mov_b32 v12, s54")
    a("ds_write_b64 v%d, v[12:13] offset:%d" % (vC, C_IDX))
    a("v_mov_b32 v12, 1")
    a("s_waitcnt vmcnt(0)")
    a("ds_write_b32 v%d, v12 offset:%d" % (vC, C_XS))
    stamp(a, 2)
    a("s_branch L_att")

    a.label("L_sp_ffn")
    a("s_load_dwordx4 s[40:43], s[0:1], 40")
    a("v_mov_b32 v3, %d" % CTL)
    for k in range(4):
        a("v_mov_b32 v%d, 0" % (4 + k))
    a("v_lshlrev_b32 v1, 4, v0")
    a("v_add_u32 v2, v1, v3")
    a("s_mov_b64 exec, 0xff")
    a("ds_write_b128 v2, v[4:7]")
    a("s_mov_b64 exec, -1")
    a("v_lshlrev_b32 v2, 2, v0")
    a("v_add_u32 v2, %d, v2" % (XS + 1152))
    a("ds_write_b32 v2, v4")
    a("s_sub_u32 s59, s3, 8")
    a("s_mul_i32 s37, s36, 57")
    a("s_lshr_b32 s37, s37, 9")
    a("s_mul_i32 s38, s37, 9")
    a("s_sub_u32 s38, s36, s38")
    a("s_mul_i32 s49, s37, 84")
    a("s_mul_i32 s39, s49, 9216")
    a("s_lshl_b32 s48, s38, 10")
    a("s_add_u32 s39, s39, s48")
    a("s_sub_u32 s48, %d, s39" % (576 * 9216))
    a("s_min_i32 s48, s48, %d" % (83 * 9216 + 1024))
    a("s_max_i32 s48, s48, 0")
    a("v_lshrrev_b32 v160, 5, v0")
    a("v_mul_u32_u24 v160, 9216, v160")
    a("v_and_b32 v161, 31, v0")
    a("v_lshl_add_u32 v160, v161, 4, v160")
    a("s_mul_i32 s57, s59, 20480")
    a("s_add_u32 s57, s57, %d" % WO)
    a("s_mul_i32 s58, s59, %d" % (2 * 9216))
    a("s_waitcnt lgkmcnt(0)")
    load_tag(a)
    srd_off(a, 16, 40, "s39", "s48")
    srd_off(a, 20, 42, "s39", "s48")
    a("s_waitcnt lgkmcnt(0)")
    make_tag(a)
    a("s_barrier")
    for i in range(5):
        a("s_add_u32 s55, s58, %d" % (8 * (6 + i) * 9216))
        a("s_add_u32 s56, s55, 512")
        for k in range(4):
            a("s_add_u32 m0, s57, %d" % ((4 * i + k) * 1024))
            a("buffer_load_dwordx4 v160, s[%d:%d], s%d offen nt lds" % (16 + 4 * (k >> 1), 19 + 4 * (k >> 1), 55 + (k & 1)))
    for i in range(6):
        a("s_add_u32 s55, s58, %d" % (8 * i * 9216))
        for k in range(4):
            a("buffer_load_dwordx4 %s, v160, s[%d:%d], s55 offen offset:%d nt" % (
                vr(GW + 16 * i + 4 * k, 4), 16 + 4 * (k >> 1), 19 + 4 * (k >> 1), 512 * (k & 1)))
    a("s_lshl_b32 s55, s59, 1")
    a("s_add_u32 s55, s55, s49")
    a("v_lshrrev_b32 v51, 5, v0")
    a("v_add_u32 v51, s55, v51")
    a("v_lshlrev_b32 v51, 1, v51")
    a("v_add_u32 v51, %d, v51" % XS)
    a("v_and_b32 v2, 1, v0")
    a("v_lshlrev_b32 v2, 4, v2")
    a("v_lshrrev_b32 v4, 1, v0")
    a("v_xor_b32 v4, v4, v0")
    a("v_and_b32 v4, 8, v4")
    a("v_bfe_u32 v5, v0, 1, 2")
    a("v_or_b32 v4, v4, v5")
    for q in range(4):
        a("v_cmp_eq_u32 s[%d:%d], %d, v4" % (40 + 2 * q, 41 + 2 * q, q))
    a("v_bfe_u32 v4, v0, 3, 1")
    a("v_lshlrev_b32 v4, 9, v4")
    a("v_lshrrev_b32 v5, 4, v0")
    a("v_lshl_add_u32 v4, v5, 7, v4")
    a("v_and_b32 v5, 7, v0")
    a("v_lshl_add_u32 v4, v5, 2, v4")
    a("v_add_u32 v6, s57, v4")
    a("v_add_u32 v52, s57, v1")
    a("s_lshl_b32 s55, s59, 9")
    a("v_lshlrev_b32 v8, 3, v0")
    a("v_add_u32 v8, s55, v8")
    a("s_mul_i32 s52, s37, %d" % (4608 * 16))
    a("s_lshl_b32 s55, s38, 13")
    a("s_add_u32 s52, s52, s55")
    a("s_add_u32 s52, s52, %d" % L.WS_PA)
    a("v_lshlrev_b32 v9, 2, v8")
    a("v_add_u32 v9, s52, v9")
    a("v_add_u32 v8, %d, v8" % WO)
    stamp(a, 3)
    lds_spin(a, "L_sp_xs", 3, C_XS, 10, (1,), 2)
    a("s_setprio %d" % OPT["pr2"])
    stamp(a, 7)
    for i in range(11):
        a("ds_read_u16 v%d, v51 offset:%d" % (53 + i, 16 * i))
    a("s_waitcnt vmcnt(24)")
    for k in range(4):
        a("ds_read_b128 %s, v52 offset:%d" % (vr(32 + 4 * k, 4), 1024 * k))
    a("s_waitcnt lgkmcnt(4)")
    for i in range(11):
        a("v_lshlrev_b32 v%d, v2, v%d" % (53 + i, 53 + i))
    first = True
    for i in range(5):
        selector(a, 12, 53 + 6 + i, 40)
        for k in range(4):
            d = vr(16 + 4 * k, 4)
            a("s_waitcnt lgkmcnt(%d)" % (3 if i < 4 else 3 - k))
            a("v_mfma_f32_16x16x32_bf16 %s, %s, v[12:15], %s" % (d, vr(32 + 4 * k, 4), "0" if first else d))
            if i < 4:
                a("ds_read_b128 %s, v52 offset:%d" % (vr(32 + 4 * k, 4), 1024 * (4 * (i + 1) + k)))
        first = False
    stamp(a, 12)
    for i in range(6):
        selector(a, 12, 53 + i, 40)
        a("s_waitcnt vmcnt(%d)" % (4 * (5 - i)))
        for k in range(4):
            d = vr(16 + 4 * k, 4)
            a("v_mfma_f32_16x16x32_bf16 %s, %s, v[12:15], %s" % (d, vr(GW + 16 * i + 4 * k, 4), d))
    stamp(a, 11)
    for k in range(4):
        for r in range(4):
            a("ds_write_b32 v6, v%d offset:%d" % (16 + 4 * k + r, 1024 * k + 32 * r))
    lds_inc(a, 3, 10, C_RED)
    lds_spin(a, "L_sp_rd", 3, C_RED, 10, (4,), 0)
    for p in range(4):
        a("ds_read_b64 %s, v8 offset:%d" % (vr(16 + 4 * p, 2), 20480 * p))
        a("ds_read_b64 %s, v8 offset:%d" % (vr(18 + 4 * p, 2), 20480 * p + 2048))
    a("v_mov_b32 v34, s%d" % TAG)
    a("v_mov_b32 v38, s%d" % TAG)
    a("s_waitcnt lgkmcnt(0)")
    lds_inc(a, 3, 10, C_RED2)
    for p in (2, 1):
        for h in range(2 * p):
            a("v_pk_add_f32 %s, %s, %s" % (vr(16 + 2 * h, 2), vr(16 + 2 * h, 2), vr(16 + 4 * p + 2 * h, 2)))
    a("v_mov_b32 v32, v16")
    a("v_mov_b32 v33, v18")
    a("v_mov_b32 v36, v17")
    a("v_mov_b32 v37, v19")
    a("s_cmp_eq_u32 s36, 63")
    a("s_cbranch_scc1 L_sp_nost")
    a("global_store_dwordx4 v9, v[32:35], s[8:9] sc1")
    a("global_store_dwordx4 v9, v[36:39], s[8:9] offset:16 sc1")
    a.label("L_sp_nost")
    stamp(a, 4)
    lds_spin(a, "L_sp_r2", 3, C_RED2, 10, (4,), 0)
    a("s_branch L_help2")


def attn_loop(a):
    for i in range(9):
        if OPT["bal"] and i == 0:
            a("s_cmp_lt_u32 s3, 4")
            a("s_cbranch_scc1 L_bal0")
            a("s_setprio 1")
            a.label("L_bal0")
        if OPT["bal"] and i == OPT["bal"]:
            a("s_setprio 0")
        a.label("L_it%d" % i)
        S, P = SS[i & 1], PP[i & 1]
        ex = ["v_exp_f32 v%d, v%d" % (S + r, S + r) for r in range(16)]
        cv = ["v_cvt_pk_bf16_f32 v%d, v%d, v%d" % (P + q, S + 2 * q, S + 2 * q + 1) for q in range(8)]
        if i == 0:
            mk = ["v_bfi_b32 v%d, v%d, 0, v%d" % (P + q, MSK + q, P + q) for q in range(8)]
        elif i == 8:
            mk = ["v_and_b32 v%d, v%d, v%d" % (P + q, MSK + q, P + q) for q in range(8)]
        else:
            mk = []
        m1 = qk(i + 1) if i < 8 else []
        m2 = pv(i - 1, i == 1) if i > 0 else []
        a("s_waitcnt lgkmcnt(%d)" % (4 if 0 < i < 8 else 0))
        seq = m1[:1] + ex[0:4] + m1[1:] + (k_reads(i + 2) if i + 2 <= 8 else []) + ex[4:8] + cv[0:2] + m2[:1] + \
            ex[8:12] + cv[2:4] + m2[1:]
        if i + 1 <= 8:
            seq += ["v_add_u32 v%d, v%d, v%d" % (vV, vV, vStep)] + v_reads(i + 1)
        seq += ex[12:16] + cv[4:8] + mk
        for x in seq:
            a(x)
    lds_spin(a, "L_pz", vC, C_C, T, (1,), 0)
    for x in pv(8, False):
        a(x)


def attention_phase(a):
    a.label("L_att")
    decode2(a)
    a("s_mul_i32 s33, s31, %d" % L.PAIR_BYTES)
    a("s_mul_i32 s34, s32, 9216")
    a("s_add_u32 s33, s33, s34")
    a("v_mov_b32 v%d, %d" % (vC, CTL))
    KS, VS = 16 * L.PAIR_BYTES - 18432, 32 * L.PAIR_BYTES - 18432
    grp = [(QB, 0), (KB, KS), (VB, VS), (KB + 9216, KS + 9216), (VB + 9216, VS + 9216), (KB + 18432, KS + 18432), (VB + 18432, VS + 18432)]
    a("s_lshl_b32 s34, s3, 10")
    for j in range(8):
        lo, hi = (8 * j) // 9, min(8 * j + 7, 62) // 9
        l0, g0 = grp[lo][0] + (8 * j - 9 * lo) * 1024, grp[lo][1] + (8 * j - 9 * lo) * 1024
        l1, g1 = grp[hi][0] + (8 * j - 9 * hi) * 1024, grp[hi][1] + (8 * j - 9 * hi) * 1024
        if j == 7:
            a("s_min_u32 s34, s34, %d" % (6 * 1024))
        if lo == hi:
            a("s_add_u32 s%d, s34, %d" % (16 + j, l0))
            a("s_add_u32 s%d, s33, %d" % (44 + j, g0 - l0 & 0xffffffff))
        else:
            a("s_mov_b32 s35, %d" % l0)
            a("s_mov_b32 s36, %d" % (g0 - l0 & 0xffffffff))
            a("s_cmp_ge_u32 s3, %d" % (9 * hi - 8 * j))
            a("s_cselect_b32 s35, %d, s35" % (l1 & 0xffffffff))
            a("s_cselect_b32 s36, %d, s36" % (g1 - l1 & 0xffffffff))
            a("s_add_u32 s%d, s34, s35" % (16 + j))
            a("s_add_u32 s%d, s33, s36" % (44 + j))
        a("s_add_u32 s%d, s%d, s%d" % (44 + j, 44 + j, 16 + j))
    a("v_mov_b32 v10, s63")
    a("v_mov_b32 v11, s%d" % TAG)
    a("s_waitcnt vmcnt(0)")
    lds_inc(a, vC, 9, C_1, rtn=True)
    a("s_cmp_lg_u32 s63, 0")
    a("s_cselect_b32 s35, 7, 99")
    a("s_waitcnt lgkmcnt(0)")
    a("v_readfirstlane_b32 s36, v9")
    a("s_cmp_eq_u32 s36, s35")
    a("s_cbranch_scc0 L_nofl1")
    a("s_mov_b64 exec, 1")
    a("global_store_dword v10, v11, s[8:9] sc1")
    a("s_mov_b64 exec, -1")
    a.label("L_nofl1")
    stamp(a, 4)
    a("s_and_b32 s42, s3, 1")
    a("s_lshr_b32 s43, s3, 1")
    a("s_mul_i32 s35, s43, 2304")
    a("s_mul_i32 s36, s42, 40")
    a("v_and_b32 v%d, 31, v0" % T)
    a("v_lshrrev_b32 v%d, 5, v0" % (T + 1))
    a("v_mul_u32_u24 v%d, 72, v%d" % (vKt, T))
    a("v_add_u32 v%d, s35, v%d" % (vKt, vKt))
    a("v_lshl_add_u32 v%d, v%d, 4, v%d" % (vK, T + 1, vKt))
    a("v_add_u32 v%d, s36, v%d" % (vK, vK))
    a("v_add_u32 v%d, 32, v%d" % (vKt, vKt))
    a("v_bfe_u32 v%d, v0, 2, 2" % (T + 2))
    a("v_lshl_add_u32 v%d, v%d, 2, v%d" % (T + 2, T + 1, T + 2))
    a("v_mul_u32_u24 v%d, 72, v%d" % (T + 2, T + 2))
    a("s_add_u32 s37, s35, %d" % VB)
    a("v_add_u32 v%d, s37, v%d" % (T + 2, T + 2))
    a("v_and_b32 v%d, 3, v0" % (T + 3))
    a("v_lshlrev_b32 v%d, 3, v%d" % (T + 4, T + 3))
    a("v_add_u32 v%d, s36, v%d" % (T + 4, T + 4))
    a("v_and_b32 v%d, 16, v0" % (T + 5))
    a("v_cmp_eq_u32 s[38:39], 0, v%d" % (T + 5))
    a("v_cndmask_b32 v%d, 32, v%d, s[38:39]" % (T + 4, T + 4))
    a("v_add_u32 v%d, v%d, v%d" % (vV, T + 2, T + 4))
    a("v_and_b32 v%d, 19, v0" % (T + 5))
    a("v_cmp_lt_u32 s[38:39], 16, v%d" % (T + 5))
    a("v_mov_b32 v%d, %d" % (T + 6, ONES))
    a("v_cndmask_b32 v%d, v%d, v%d, s[38:39]" % (vV, vV, T + 6))
    a("v_mov_b32 v%d, 2304" % (T + 6))
    a("v_cndmask_b32 v%d, v%d, 0, s[38:39]" % (vStep, T + 6))
    a("v_lshlrev_b32 v%d, 2, v%d" % (T + 2, T + 1))
    a("v_sub_u32 v%d, v%d, v%d" % (T + 2, T, T + 2))
    a("v_mov_b32 v%d, 0xffff" % (T + 3))
    for q in range(8):
        kl = 8 * (q >> 1) + 2 * (q & 1)
        a("v_cmp_le_i32 s[38:39], %d, v%d" % (kl, T + 2))
        a("v_cmp_le_i32 s[40:41], %d, v%d" % (kl + 1, T + 2))
        a("v_cndmask_b32 v%d, 0, v%d, s[38:39]" % (MSK + q, T + 3))
        a("v_cndmask_b32 v%d, v%d, -1, s[40:41]" % (MSK + q, MSK + q))
    a("s_lshl_b32 s41, s32, 2")
    a("s_add_u32 s41, s41, s43")
    a("s_sub_i32 s41, 8, s41")
    a("s_lshl_b32 s35, s32, 3")
    a("s_lshl_b32 s36, s43, 1")
    a("s_add_u32 s35, s35, s36")
    a("s_mul_i32 s35, s35, 18432")
    a("s_lshl_b32 s58, s31, 10")
    a("s_lshl_b32 s36, s42, 9")
    a("s_add_u32 s58, s58, s36")
    a("s_add_u32 s58, s58, s35")
    a("s_lshr_b32 s59, s31, 1")
    a("s_lshl_b32 s59, s59, 8")
    a("s_and_b32 s36, s31, 1")
    a("s_lshl_b32 s36, s36, 3")
    a("s_add_u32 s59, s59, s36")
    a("s_lshl_b32 s36, s42, 2")
    a("s_add_u32 s59, s59, s36")
    a("s_add_u32 s59, s59, s35")
    a("s_add_u32 s59, s59, 16384")
    a("v_bfe_u32 v152, v0, 4, 1")
    a("v_mul_u32_u24 v152, 18432, v152")
    a("v_and_b32 v153, 15, v0")
    a("v_lshl_add_u32 v152, v153, 4, v152")
    a("v_lshrrev_b32 v153, 5, v0")
    a("v_lshl_add_u32 v153, v153, 8, v152")
    a("v_cmp_gt_u32 vcc, 32, v0")
    a("s_cmp_eq_u32 s42, 0")
    a("s_cselect_b64 s[54:55], vcc, 0")
    a("s_cselect_b64 s[56:57], 0, vcc")
    a("v_and_b32 v%d, 3, v0" % (T + 2))
    a("v_mul_u32_u24 v%d, 576, v%d" % (T + 2, T + 2))
    a("v_mov_b32 v%d, 0x3f803f80" % (T + 4))
    a("v_mov_b32 v%d, v%d" % (T + 5, T + 4))
    a("v_lshlrev_b32 v%d, 4, v0" % (T + 3))
    srd_off(a, 36, 8, L.WS_QKV, L.QKV_BYTES)
    srd_off(a, 24, 8, L.WS_O, 128 * 18432)
    a("s_add_u32 s40, s3, 2")
    a("s_cmp_lt_u32 s3, 4")
    a("s_cselect_b32 s40, s3, s40")
    out_setup(a, 40)
    a("s_lshr_b32 s35, s2, 6")
    a("s_lshl_b32 s35, s35, 4")
    a("s_add_u32 s35, s35, s3")
    a("s_cmp_eq_u32 s35, %d" % (3 * 16 + 6))
    a("s_cbranch_scc0 L_nq2")
    lds_spin(a, "L_sp_x6", vC, C_XS, T + 8, (1,), 8)
    qpoll(a, vC, "L_qp2", False, T + 8)
    a.label("L_nq2")
    lds_spin(a, "L_go1", vC, C_1, T, (8, 1), OPT["g1s"])
    stamp(a, 5)
    for j in range(8):
        a("s_mov_b32 m0, s%d" % (16 + j))
        a("s_nop 0")
        a("buffer_load_dwordx4 v%d, s[36:39], s%d offen %s lds" % (T + 3, 44 + j, OPT["kvl"]))
    a("ds_write_b64 v%d, %s offset:%d" % (T + 2, vr(T + 4, 2), ONES))
    a("s_cmp_lt_u32 s32, 2")
    a("s_cbranch_scc1 L_late")
    landed(a, 1, 0)
    stage_spin(a, "L_sA", 0)
    stamp(a, 6)
    for x in q_reads() + k_reads(0) + k_reads(1) + v_reads(0):
        a(x)
    a("s_waitcnt lgkmcnt(7)")
    a("v_cndmask_b32 v%d, 0, v%d, s[54:55]" % (QT, QT))
    a("v_cndmask_b32 v%d, 0, v%d, s[56:57]" % (QT + 1, QT + 1))
    for x in qk(0):
        a(x)
    lds_inc(a, vC, T, C_B)
    x_loads(a)
    attn_loop(a)
    a.label("L_check")
    stamp(a, 7)
    a("s_mov_b32 s46, %s" % f32(2.0 ** 60))
    a("s_mov_b32 s47, %s" % f32(2.0 ** -60))
    a("s_mov_b32 s48, 0x7f800000")
    a("s_nop 7")
    a("s_nop 0")
    a("v_rcp_f32 v%d, v%d" % (T, OO + 12))
    a("v_cmp_gt_f32 s[50:51], s46, v%d" % (OO + 12))
    a("v_cmp_lt_f32 vcc, s47, v%d" % (OO + 12))
    for k in range(6):
        a("v_add_f32 v%d, abs(v%d), abs(v%d)" % (T + 2 + k, OO + 2 * k, OO + 2 * k + 1))
    a("s_and_b64 s[50:51], s[50:51], vcc")
    a("v_pk_add_f32 %s, %s, %s" % (vr(T + 2, 2), vr(T + 2, 2), vr(T + 4, 2)))
    a("v_pk_add_f32 %s, %s, %s" % (vr(T + 2, 2), vr(T + 2, 2), vr(T + 6, 2)))
    a("v_add_f32 v%d, v%d, v%d" % (T + 2, T + 2, T + 3))
    a("v_cmp_gt_f32 vcc, s48, v%d" % (T + 2))
    a("s_and_b64 s[50:51], s[50:51], vcc")
    a("s_cmp_eq_u64 s[50:51], -1")
    a("s_cbranch_scc0 L_slow")
    a.label("L_fin")
    a("s_cmp_eq_u32 s42, 0")
    a("s_cbranch_scc1 L_fa")
    a("v_mov_b32 v%d, v%d" % (OO + 8, OO + 10))
    a("v_mov_b32 v%d, v%d" % (OO + 9, OO + 11))
    a.label("L_fa")
    for k in range(0, 10, 2):
        a("v_pk_mul_f32 %s, %s, %s op_sel_hi:[1,0]" % (vr(OO + k, 2), vr(OO + k, 2), vr(T, 2)))
    for q in range(5):
        a("v_cvt_pk_bf16_f32 v%d, v%d, v%d" % (T + 4 + q, OO + 2 * q, OO + 2 * q + 1))
    a("buffer_store_dwordx4 %s, v153, s[24:27], s58 offen sc1" % vr(T + 4, 4))
    a("s_mov_b32 exec_hi, 0")
    a("buffer_store_dword v%d, v152, s[24:27], s59 offen sc1" % (T + 8))
    a("s_mov_b32 exec_hi, -1")


def q_reads():
    return ["ds_read_b64 %s, v%d offset:%d" % (vr(QM, 2), vK, QB),
            "ds_read_b64 %s, v%d offset:%d" % (vr(QM + 2, 2), vK, QB + 8),
            "ds_read_b64 %s, v%d offset:%d" % (vr(QT, 2), vKt, QB)]


sKH, sPAIR, sTILE, sGATE, sSLOT, sOB, sXO = 6, 7, 13, 14, 15, 28, 29
A0, vXO, vRW, vCH, vSW, vSR, vL16, vPX, vPF = 156, 142, 140, 141, 143, 144, 162, 160, 161
GB = 154624


def out_setup(a, role):
    a("s_and_b32 s%d, s%d, 1" % (sKH, role))
    a("s_lshr_b32 s%d, s%d, 1" % (sPAIR, role))
    a("s_mul_i32 s%d, s52, 5" % sTILE)
    a("s_and_b32 s33, s%d, 7" % sTILE)
    a("s_sub_u32 s34, 8, s33")
    a("s_cmp_lt_u32 s33, 4")
    a("s_cselect_b32 s34, 0, s34")
    a("s_add_u32 s34, s34, s%d" % sPAIR)
    a("s_sub_u32 s35, s34, 5")
    a("s_cmp_ge_u32 s34, 5")
    a("s_cselect_b32 s34, s35, s34")
    a("s_add_u32 s%d, s%d, s34" % (sTILE, sTILE))
    a("s_lshl_b32 s98, s34, 6")
    a("s_mov_b32 s%d, 0x404" % sGATE)
    a("s_bitcmp1_b32 s%d, 2" % sTILE)
    if not OPT["allg"]:
        a("s_cselect_b32 s%d, s%d, 4" % (sGATE, sGATE))
    a("s_mov_b32 s%d, %d" % (sSLOT, PSLOT[0]))
    for p in range(1, 5):
        a("s_cmp_eq_u32 s%d, %d" % (sPAIR, p))
        a("s_cselect_b32 s%d, %d, s%d" % (sSLOT, PSLOT[p], sSLOT))
    a("s_mul_i32 s%d, s%d, 18432" % (sOB, sTILE))
    a("s_lshl_b32 s33, s53, 7")
    a("s_add_u32 s%d, s%d, s33" % (sXO, sOB))
    a("s_lshl_b32 s33, s%d, 6" % sKH)
    a("s_add_u32 s%d, s%d, s33" % (sXO, sXO))
    a("s_mul_i32 s33, s%d, 9216" % sKH)
    a("s_add_u32 s%d, s%d, s33" % (sOB, sOB))
    a("s_add_u32 s96, s%d, 4096" % sOB)
    a("s_add_u32 s97, s%d, 8192" % sOB)
    a("v_lshrrev_b32 v%d, 2, v0" % vRW)
    a("v_and_b32 v%d, 3, v0" % vCH)
    a("v_mul_u32_u24 v%d, 1152, v%d" % (vXO, vRW))
    a("v_lshl_add_u32 v%d, v%d, 4, v%d" % (vXO, vCH, vXO))
    a("v_lshrrev_b32 v146, 2, v0")
    a("v_bfe_u32 v147, v0, 3, 2")
    a("v_lshlrev_b32 v147, 1, v147")
    a("v_bfe_u32 v148, v0, 1, 1")
    a("v_xor_b32 v147, v147, v148")
    a("v_and_b32 v148, 1, v0")
    a("v_lshlrev_b32 v148, 3, v148")
    a("v_lshl_add_u32 v148, v146, 7, v148")
    a("v_lshl_add_u32 v148, v147, 4, v148")
    a("s_mul_i32 s33, s%d, %d" % (sKH, 9 * 4096))
    a("s_add_u32 s33, s33, %d" % WO)
    a("s_lshl_b32 s34, s%d, 6" % sKH)
    a("v_xor_b32 v148, s34, v148")
    for t in range(4):
        a("v_xor_b32 v%d, %d, v148" % (A0 + t, 32 * t))
        a("v_add_u32 v%d, s33, v%d" % (A0 + t, A0 + t))
    a("v_lshlrev_b32 v%d, 4, v0" % vL16)
    a("s_lshl_b32 s33, s%d, 11" % sKH)
    a("s_add_u32 s%d, s%d, s33" % (sSLOT, sSLOT))
    a("v_add_u32 v%d, s%d, v%d" % (vPX, sSLOT, vL16))
    a("s_lshl_b32 s33, s33, 1")
    a("s_sub_u32 s33, 2048, s33")
    a("v_add_u32 v164, s33, v%d" % vPX)
    a("s_lshl_b32 s33, s%d, 1" % sPAIR)
    a("s_add_u32 s33, s33, s%d" % sKH)
    a("s_lshl_b32 s33, s33, 2")
    a("s_add_u32 s33, s33, %d" % CTL)
    a("v_mov_b32 v%d, s33" % vPF)
    a("v_xor_b32 v165, 4, v%d" % vPF)
    a("v_and_b32 v%d, 15, v0" % vSW)
    a("v_mul_u32_u24 v%d, 80, v%d" % (vSW, vSW))
    a("v_lshrrev_b32 v146, 4, v0")
    a("v_lshlrev_b32 v146, 3, v146")
    a("v_add3_u32 v%d, v%d, v146, s%d" % (vSW, vSW, sSLOT))
    a("v_mul_u32_u24 v%d, 80, v%d" % (vSR, vRW))
    a("v_lshl_add_u32 v%d, v%d, 4, v%d" % (vSR, vCH, vSR))
    a("v_add_u32 v%d, s%d, v%d" % (vSR, sSLOT, vSR))
    a("s_add_u32 s98, s98, %d" % GB)
    a("v_lshl_add_u32 v145, v%d, 2, s98" % vRW)
    a("s_cmp_lt_u32 s3, 4")
    a("s_cselect_b32 s33, 1, 0x100")
    a("v_mov_b32 v163, s33")


def x_loads(a):
    srd(a, 20, 4, 2048 * 1152)
    a("buffer_load_dwordx4 %s, v%d, s[20:23], s%d offen" % (vr(XR, 4), vXO, sXO))


def out_phase(a):
    WFR, OF, ACC, PX = (20, 36, 100), 64, (52, 56, 60, 116), (146, 120)
    a("s_cmp_ge_u32 s52, 26")
    a("s_cbranch_scc1 L_end")
    if not OPT["gissue"]:
        a("s_waitcnt vmcnt(0)")
    stamp(a, 8)
    a("s_mov_b64 exec, 1")
    a("ds_add_u32 v%d, v163 offset:%d" % (vC, C_O))
    a("s_mov_b64 exec, -1")
    a.label("L_out")

    def omx():
        for j in range(1):
            for q in range(4):
                xv = XR + 4 * j + q
                d = PX[j] + 2 * q
                a("v_lshlrev_b32 v%d, 16, v%d" % (d, xv))
                a("v_and_b32 v%d, 0xffff0000, v%d" % (d + 1, xv))
                a("v_pk_mul_f32 %s, %s, %s op_sel:[0,1] op_sel_hi:[1,1]" % (vr(d, 2), vr(d, 2), vr(GR + 2 * j, 2)))

    def reads(sl):
        st = WFR[sl % 3]
        return ["ds_read_b64_tr_b16 %s, v%d offset:%d" % (vr(st + 4 * t + 2 * sec, 2), A0 + t, (32 * sl + 16 * sec) * 128)
                for t in range(4) for sec in range(2)]

    lds_spin(a, "L_wo", vC, C_WO, 10, (2,), 0)
    for x in reads(0) + reads(1):
        a(x)
    a("s_mov_b32 s60, 0x200000")
    a.label("L_go2")
    a("ds_read_b64 v[10:11], v%d offset:%d" % (vC, C_O))
    a("s_waitcnt lgkmcnt(0)")
    a("v_readfirstlane_b32 s61, v10")
    a("v_readfirstlane_b32 s62, v11")
    a("s_and_b32 s61, s61, s%d" % sGATE)
    a("s_cmp_eq_u32 s61, s%d" % sGATE)
    a("s_cselect_b32 s62, s62, 0")
    a("s_cmp_eq_u32 s62, 1")
    a("s_cbranch_scc1 L_go2_d")
    a("s_sub_u32 s60, s60, 1")
    a("s_cbranch_scc0 L_go2")
    a.label("L_go2_d")
    if OPT["gissue"] == 2:
        a("s_cmp_eq_u32 s60, 0x200000")
        a("s_cbranch_scc1 L_go2_e")
        a("s_sleep %d" % OPT["cdel"])
        a.label("L_go2_e")
        a("s_waitcnt vmcnt(0)")
    elif OPT["cdel"]:
        a("s_sleep %d" % OPT["cdel"])
    stamp(a, 9)
    LAO = OPT["lao"]

    def oload(s):
        a("buffer_load_dwordx4 %s, v%d, s[24:27], s%d offen offset:%d sc1" % (vr(OF + 4 * s, 4), vL16, (sOB, 96, 97)[s // 4], 1024 * (s % 4)))

    def ocheck(sl):
        b = OF + 4 * sl
        if sl < 7:
            a("v_cmp_eq_u32 vcc, -1, v%d" % b)
        else:
            a("v_max3_u32 v10, v%d, v%d, v%d" % (b, b + 1, b + 2))
            a("v_max_u32 v10, v10, v%d" % (b + 3))
            a("v_cmp_eq_u32 vcc, -1, v10")
        a("s_nop 1")

    def oretry():
        for sl in range(9):
            a.label("L_or%d" % sl)
            a("s_sub_u32 s60, s60, 1")
            a("s_cbranch_scc1 L_ok%d" % sl)
            a("s_waitcnt vmcnt(0)")
            for s in range(sl, min(sl + LAO, 9)):
                oload(s)
            a("s_waitcnt vmcnt(%d)" % min(LAO - 1, 8 - sl))
            a("s_branch L_oc%d" % sl)

    RETRY.append(oretry)
    a("s_mov_b32 s60, 0x8000")
    for s in range(LAO):
        oload(s)
    a("ds_read_b32 v%d, v145" % GR)
    a("ds_read_b32 v10, v%d offset:%d" % (vC, C_IDX))
    srd(a, 20, 10, 2048 * 1152)
    a("s_waitcnt lgkmcnt(0) vmcnt(%d)" % LAO)
    a("v_readfirstlane_b32 s12, v10")
    a("v_sub_f32 v%d, 1.0, v%d" % (GR + 1, GR))
    bf16_round(a, GR + 1, GR + 1)
    omx()
    for sl in range(9):
        rd = reads(sl + 2) if sl < 7 else []
        a("s_waitcnt vmcnt(%d) lgkmcnt(%d)" % (min(LAO - 1, 8 - sl), 8 if sl < 8 else 0))
        a.label("L_oc%d" % sl)
        ocheck(sl)
        a("s_cbranch_vccnz L_or%d" % sl)
        a.label("L_ok%d" % sl)
        for t in range(4):
            d = vr(ACC[t], 4)
            a("v_mfma_f32_16x16x32_bf16 %s, %s, %s, %s" % (d, vr(WFR[sl % 3] + 4 * t, 4), vr(OF + 4 * sl, 4), "0" if sl == 0 else d))
            if t == 0 and sl + LAO < 9:
                oload(sl + LAO)
            for x in rd[2 * t:2 * t + 2]:
                a(x)
    stamp(a, 10)
    if OPT["stamp"]:
        a("s_sub_u32 s94, 0x8000, s60")
        a("s_mul_i32 s94, s94, 100")
        a("s_add_u32 s94, s94, s66")
        a("s_addc_u32 s95, s67, 0")
    a("v_mov_b32 v10, 1")
    a("ds_write_b128 v164, %s" % vr(ACC[2], 4))
    a("ds_write_b128 v164, %s offset:1024" % vr(ACC[3], 4))
    a("ds_write_b32 v165, v10 offset:%d" % C_PART)
    a("s_lshr_b32 s46, s12, 4")
    a("s_cmp_eq_u32 s46, s%d" % sTILE)
    a("s_cbranch_scc0 L_noy")
    lds_spin(a, "L_yw", vC, C_YRDY, 10, (1,))
    a("s_lshl_b32 s46, s%d, 7" % sKH)
    a("s_add_u32 s46, s46, %d" % YB)
    a("v_lshl_add_u32 v10, v%d, 5, s46" % vCH)
    a("ds_read_b128 v[12:15], v10")
    a("ds_read_b128 v[16:19], v10 offset:16")
    a("s_and_b32 s46, s12, 15")
    a("v_cmp_eq_u32 s[50:51], s46, v%d" % vRW)
    a("s_waitcnt lgkmcnt(0)")
    for q in range(4):
        xv = XR + q
        a("v_lshlrev_b32 v10, 16, v%d" % xv)
        a("v_and_b32 v11, 0xffff0000, v%d" % xv)
        a("v_add_f32 v10, v10, v%d" % (12 + 2 * q))
        a("v_add_f32 v11, v11, v%d" % (13 + 2 * q))
        a("v_cvt_pk_bf16_f32 v10, v10, v11")
        a("v_cndmask_b32 v%d, v%d, v10, s[50:51]" % (xv, xv))
    omx()
    a.label("L_noy")
    lds_spin(a, "L_pw", vPF, C_PART, 10, (1,), 0)
    stamp(a, 11)
    for t in range(2):
        a("ds_read_b128 %s, v%d offset:%d" % (vr(20 + 4 * t, 4), vPX, 1024 * t))
    a("s_waitcnt lgkmcnt(0)")
    for t in range(2):
        b = ACC[t]
        a("v_pk_add_f32 %s, %s, %s" % (vr(b, 2), vr(b, 2), vr(20 + 4 * t, 2)))
        a("v_pk_add_f32 %s, %s, %s" % (vr(b + 2, 2), vr(b + 2, 2), vr(22 + 4 * t, 2)))
        a("v_cvt_pk_bf16_f32 v%d, v%d, v%d" % (40 + 2 * t, b, b + 1))
        a("v_cvt_pk_bf16_f32 v%d, v%d, v%d" % (41 + 2 * t, b + 2, b + 3))
        a("ds_write_b64 v%d, %s offset:%d" % (vSW, vr(40 + 2 * t, 2), 32 * t))
    a("ds_read_b128 v[20:23], v%d" % vSR)
    a("s_waitcnt lgkmcnt(0)")
    for q in range(4):
        d = PX[0] + 2 * q
        a("v_lshlrev_b32 v%d, 16, v%d" % (10 + 2 * q, 20 + q))
        a("v_and_b32 v%d, 0xffff0000, v%d" % (11 + 2 * q, 20 + q))
        a("v_pk_fma_f32 %s, %s, %s, %s op_sel_hi:[1,0,1]" % (vr(d, 2), vr(10 + 2 * q, 2), vr(GR, 2), vr(d, 2)))
    for q in range(4):
        d = PX[0] + 2 * q
        a("v_cvt_pk_bf16_f32 v%d, v%d, v%d" % (32 + q, d, d + 1))
    a("buffer_store_dwordx4 v[32:35], v%d, s[20:23], s%d offen %s" % (vXO, sXO, OPT["ost"]))
    if OPT["stamp"]:
        stamp(a, 12)
        a("s_waitcnt vmcnt(0)")
        stamp(a, 13)
        stamp_end(a, OPT["stw"], 0)
        stamp_end(a, 10, 2)
    a("s_endpgm")


RETRY = []
GLATE = []


def late_and_slow(a):
    RETRY[0]()
    a.label("L_late")
    a("s_mul_i32 s50, s41, 2304")
    a("v_add_u32 v%d, s50, v%d" % (T + 8, vK))
    a("v_add_u32 v%d, s50, v%d" % (T + 9, vKt))
    a("v_mul_u32_u24 v%d, s41, v%d" % (T + 2, vStep))
    a("v_add_u32 v%d, v%d, v%d" % (vV, vV, T + 2))
    for r in list(range(OO, OO + 16)) + list(range(VF[0], VF[0] + 32)):
        a("v_mov_b32 v%d, 0" % r)
    landed(a, 1, 0)
    stage_spin(a, "L_lt", 0)
    for x in q_reads():
        a(x)
    a("s_waitcnt lgkmcnt(0)")
    lds_inc(a, vC, T, C_B)
    x_loads(a)
    a("s_bitcmp1_b32 s41, 0")
    a("s_cbranch_scc1 L_late1")
    for par in range(2):
        if par:
            a.label("L_late1")
        for x in k_reads(par, T + 8, T + 9, 0):
            a(x)
        for x in k_reads(par + 1, T + 8, T + 9, 0):
            a(x.replace("offset:8", "offset:2312").replace("offset:0", "offset:2304"))
        for x in v_reads(par):
            a(x)
        a("s_waitcnt lgkmcnt(7)")
        a("v_cndmask_b32 v%d, 0, v%d, s[54:55]" % (QT, QT))
        a("v_cndmask_b32 v%d, 0, v%d, s[56:57]" % (QT + 1, QT + 1))
        for x in qk(par):
            a(x)
        a("s_nop 7")
        a("s_nop 3")
        for i0 in range(2 - par, 9, 2):
            a("s_cmp_eq_u32 s41, %d" % i0)
            a("s_cbranch_scc1 L_it%d" % i0)
        a("s_branch L_it%d" % (8 - par))

    a.label("L_slow")
    vKs, vKts, vM, vD0, vNeg = T + 8, T + 9, T + 10, T + 11, T + 12
    a("v_and_b32 v%d, 31, v0" % T)
    a("v_lshrrev_b32 v%d, 5, v0" % (T + 1))
    a("v_lshlrev_b32 v%d, 2, v%d" % (vD0, T + 1))
    a("v_sub_u32 v%d, v%d, v%d" % (vD0, vD0, T))
    a("v_mov_b32 v%d, 0xff800000" % vNeg)
    a("v_mov_b32 v%d, v%d" % (vM, vNeg))
    a("s_max_i32 s50, s41, 0")
    a("s_sub_u32 s51, 8, s50")
    a("v_mul_u32_u24 v%d, s51, v%d" % (T, vStep))
    a("v_sub_u32 v%d, v%d, v%d" % (vV, vV, T))
    a("s_mul_i32 s51, s50, 2304")
    for r in range(16):
        a("v_mov_b32 v%d, 0" % (OO + r))
    for ps in range(2):
        lab = "L_sp%d" % ps
        a("v_add_u32 v%d, s51, v%d" % (vKs, vK))
        a("v_add_u32 v%d, s51, v%d" % (vKts, vKt))
        a("s_mov_b32 s46, s50")
        a.label(lab)
        for x in k_reads(0, vKs, vKts):
            a(x)
        if ps == 1:
            for x in v_reads(0):
                a(x)
        a("s_mov_b32 s47, -31")
        a("s_mov_b32 s48, 62")
        a("s_cmp_eq_u32 s46, 0")
        a("s_cselect_b32 s47, 1, s47")
        a("s_cselect_b32 s48, 30, s48")
        a("s_cmp_eq_u32 s46, 8")
        a("s_cselect_b32 s48, 31, s48")
        a("s_waitcnt lgkmcnt(0)")
        for x in qk(0):
            a(x)
        a("v_subrev_u32 v%d, s47, v%d" % (T, vD0))
        for r in range(16):
            a("v_add_u32 v%d, %d, v%d" % (T + 1, 8 * (r >> 2) + (r & 3), T))
            a("v_cmp_ge_u32 vcc, s48, v%d" % (T + 1))
            a("v_cndmask_b32 v%d, v%d, v%d, vcc" % (SS[0] + r, vNeg, SS[0] + r))
            if ps == 0:
                a("v_max_f32 v%d, v%d, v%d" % (vM, vM, SS[0] + r))
            else:
                a("v_sub_f32 v%d, v%d, v%d" % (SS[0] + r, SS[0] + r, vM))
                a("v_exp_f32 v%d, v%d" % (SS[0] + r, SS[0] + r))
        if ps == 1:
            for q in range(8):
                a("v_cvt_pk_bf16_f32 v%d, v%d, v%d" % (PP[0] + q, SS[0] + 2 * q, SS[0] + 2 * q + 1))
            for x in pv(0, False):
                a(x)
            a("v_add_u32 v%d, v%d, v%d" % (vV, vV, vStep))
        a("v_add_u32 v%d, 2304, v%d" % (vKs, vKs))
        a("v_add_u32 v%d, 2304, v%d" % (vKts, vKts))
        a("s_add_u32 s46, s46, 1")
        a("s_cmp_lt_u32 s46, 9")
        a("s_nop 7")
        a("s_nop 7")
        a("s_cbranch_scc1 %s" % lab)
        if ps == 0:
            a("v_mov_b32 v%d, v%d" % (T, vM))
            a("v_permlane32_swap_b32 v%d, v%d" % (T, vM))
            a("v_max_f32 v%d, v%d, v%d" % (vM, vM, T))
    a("v_rcp_f32 v%d, v%d" % (T, OO + 12))
    a("s_nop 1")
    a("s_branch L_fin")


def helpers(a):
    a.label("L_help")
    a("s_cmp_eq_u32 s3, 9")
    a("s_cbranch_scc0 L_help1")
    code_touch(a)
    a.label("L_help1")
    a("v_mov_b32 v3, %d" % CTL)
    for k in range(4):
        a("v_mov_b32 v%d, 0" % (4 + k))
    a("v_lshlrev_b32 v1, 4, v0")
    a("v_add_u32 v2, v1, v3")
    a("s_mov_b64 exec, 0xff")
    a("ds_write_b128 v2, v[4:7]")
    a("s_mov_b64 exec, -1")
    a("s_waitcnt lgkmcnt(0)")
    load_tag(a)
    a("s_barrier")
    a("s_barrier")
    a("s_waitcnt lgkmcnt(0)")
    make_tag(a)
    a.label("L_help2")
    decode2(a)
    a("s_cmp_eq_u32 s3, 8")
    a("s_cbranch_scc1 L_down")
    a("v_lshrrev_b32 v1, 5, v0")
    a("v_bfe_u32 v2, v0, 3, 2")
    a("v_lshrrev_b32 v10, 4, v0")
    a("v_lshlrev_b32 v10, 1, v10")
    a("v_and_b32 v11, 7, v0")
    a("v_xor_b32 v10, v10, v11")
    a("v_lshl_add_u32 v4, v1, 2, v2")
    a("v_mul_u32_u24 v4, 1152, v4")
    a("v_lshl_add_u32 v4, v10, 4, v4")
    a("v_mul_u32_u24 v5, 72, v1")
    a("v_add_u32 v5, v5, v2")
    a("v_mul_u32_u24 v5, 1152, v5")
    a("v_lshl_add_u32 v5, v10, 4, v5")
    a("s_sub_u32 s36, s3, 9")
    a("s_mul_i32 s37, s36, %d" % (20 * 1152))
    a("s_mul_i32 s43, s36, %d" % (144 * 1152))
    a("s_lshl_b32 s38, s36, 10")
    a("s_add_u32 s38, s38, %d" % WO)
    a("s_lshl_b32 s39, s53, 7")
    a("s_sub_u32 s42, %d, s39" % (576 * 1152))
    srd_off(a, 16, 28, "s39", "s42")
    srd_off(a, 24, 8, L.WS_O, 128 * 18432)
    a("v_mov_b32 v%d, %d" % (vC, CTL))
    a("s_sub_u32 s40, s3, 5")
    out_setup(a, 40)
    a("s_setprio %d" % OPT["pr3"])
    a("s_cmp_ge_u32 s2, 192")
    a("s_cbranch_scc1 L_wo_go")
    for k in range(9):
        a("s_barrier")
    a.label("L_wo_go")
    a("s_cmp_eq_u32 s3, 11")
    a("s_cbranch_scc1 L_ctl")
    a("s_cmp_ge_u32 s52, 26")
    a("s_cbranch_scc1 L_end")
    if OPT["woe"]:
        a("s_cmp_ge_u32 s2, 192")
        a("s_cbranch_scc1 L_wo_e_d")
        lds_spin(a, "L_wo_e", 3, C_FI, 10, (8,), 0)
    stamp(a, 5)
    for m in range(36):
        if m == OPT["woe"]:
            stage_spin(a, "L_wo_w", 0, 3, 10, 2)
        st, sec = m >> 1, m & 1
        a("s_add_u32 m0, s38, %d" % (2048 * m))
        if st < 16:
            a("s_add_u32 s40, s37, %d" % ((36 * st + 8 * sec) * 1152))
            a("buffer_load_dwordx4 v4, s[16:19], s40 offen lds")
        else:
            a("s_add_u32 s40, s43, %d" % ((288 * (st - 16) + 36 * sec + 16) * 1152))
            a("buffer_load_dwordx4 v5, s[16:19], s40 offen lds")
        if OPT["wth"] and m >= OPT["wth"] - 1:
            a("s_waitcnt vmcnt(%d)" % (OPT["wth"] - 1))
    x_loads(a)
    a("s_waitcnt vmcnt(1)")
    stamp(a, 6)
    lds_inc(a, 3, 4, C_WO)
    a("s_setprio 0")
    a("s_branch L_out")
    a.label("L_ctl")
    a("v_lshlrev_b32 v8, 7, v0")
    a("v_add_u32 v9, %d, v8" % (L.WS_FLAG + F_PA * 128))
    a("s_mul_i32 s46, s52, 5")
    a("s_lshr_b32 s46, s46, 3")
    a("s_min_u32 s46, s46, 14")
    a("s_lshl_b32 s46, s46, 11")
    a("s_add_u32 s46, s46, %d" % (L.WS_FLAG + F_O * 128))
    a("v_add_u32 v8, s46, v8")
    a("s_lshl_b32 s46, s32, 4")
    a("s_add_u32 s46, s46, s31")
    a("s_lshl_b32 s46, s46, 7")
    a("s_add_u32 s46, s46, %d" % (L.WS_FLAG + F_O * 128))
    a("v_mov_b32 v14, s46")
    a("v_mov_b32 v15, s%d" % TAG)
    a("s_cmp_ge_u32 s2, 192")
    a("s_cbranch_scc1 L_ct_0")
    qpoll(a, 3, "L_qp1", True)
    a.label("L_ct_0")
    AUXLATE = OPT["auxp"]
    def aux():
        flag_poll(a, "L_pap", 9, 4, "s%d" % TAG, 64, 8, 3)
        a("v_mov_b32 v10, v5")
        a("v_mov_b32 v11, v6")
        a("v_mov_b32 v4, 1")
        a("ds_write_b64 v3, v[10:11] offset:%d" % C_IDX)
        a("ds_write_b32 v3, v4 offset:%d" % C_PA)
        srd_off(a, 16, 8, L.WS_G, 8192)
        a("s_mul_i32 s40, s52, 320")
        a("v_lshlrev_b32 v4, 2, v0")
        a("buffer_load_dword v5, v4, s[16:19], s40 offen sc1")
        a("buffer_load_dword v6, v4, s[16:19], s40 offen offset:256 sc1")
        a("v_add_u32 v4, %d, v4" % GB)
        GLATE.append(1)
        stamp(a, 5)

    if not AUXLATE:
        aux()
    a("v_bfe_u32 v20, v0, 4, 1")
    a("v_mul_u32_u24 v20, 18432, v20")
    a("v_and_b32 v21, 15, v0")
    a("v_lshl_add_u32 v20, v21, 4, v20")
    a("v_lshrrev_b32 v21, 5, v0")
    a("v_lshl_add_u32 v22, v21, 2, v20")
    a("v_lshl_add_u32 v21, v21, 8, v20")
    for k in range(4):
        a("v_mov_b32 v%d, -1" % (24 + k))
    a("s_mul_i32 s54, s32, %d" % (8 * 18432))
    a("s_lshl_b32 s55, s31, 10")
    a("s_add_u32 s55, s55, s54")
    a("s_lshr_b32 s56, s31, 1")
    a("s_lshl_b32 s56, s56, 8")
    a("s_and_b32 s57, s31, 1")
    a("s_lshl_b32 s57, s57, 3")
    a("s_add_u32 s56, s56, s57")
    a("s_add_u32 s56, s56, s54")
    a("s_add_u32 s56, s56, 16384")
    stage_spin(a, "L_ct_p", 0, 3, 10, 0)
    for j in range(4):
        a("buffer_store_dword v24, v22, s[24:27], s56 offen sc1")
        a("buffer_store_dwordx4 v[24:27], v21, s[24:27], s55 offen sc1")
        a("buffer_store_dwordx4 v[24:27], v21, s[24:27], s55 offen offset:512 sc1")
        a("s_add_u32 s55, s55, %d" % (2 * 18432))
        a("s_add_u32 s56, s56, %d" % (2 * 18432))
    a("v_mov_b32 v4, 1")
    a("s_waitcnt vmcnt(0)")
    a("ds_write_b32 v3, v4 offset:%d" % C_C)
    a("s_mov_b64 exec, 1")
    a("global_store_dword v14, v15, s[8:9] sc1")
    a("s_mov_b64 exec, -1")
    stamp(a, 6)
    lds_spin(a, "L_ct_q", 3, C_B, 10, (8,), 1)
    if AUXLATE:
        aux()
    else:
        a("s_sleep %d" % OPT["slp3"])
    flag_poll(a, "L_op", 8, 12, "s%d" % TAG, 32, 2)
    a("ds_write_b32 v4, v5")
    a("ds_write_b32 v4, v6 offset:256")
    lds_inc(a, 3, 10, C_GO2)
    stamp(a, 7)
    stamp_end(a, 11 if OPT["st11"] else 99, 3)
    a("ds_read_b64 v[10:11], v3 offset:%d" % C_IDX)
    a("s_waitcnt lgkmcnt(0)")
    a("v_readfirstlane_b32 s12, v10")
    a("v_readfirstlane_b32 s13, v11")
    a("s_mul_i32 s46, s52, 80")
    a("s_sub_u32 s46, s12, s46")
    a("s_cmp_lt_u32 s46, 80")
    a("s_cbranch_scc0 L_end")
    a("v_lshlrev_b32 v4, 7, v0")
    a("v_add_u32 v4, %d, v4" % (L.WS_FLAG + F_Y * 128))
    srd_off(a, 16, 8, L.WS_YP, 16 * 2304)
    a("v_lshrrev_b32 v6, 4, v0")
    a("v_mul_u32_u24 v6, 2304, v6")
    a("v_and_b32 v7, 15, v0")
    a("v_lshlrev_b32 v7, 4, v7")
    a("v_add_u32 v6, v6, v7")
    a("v_add_u32 v7, %d, v7" % YB)
    a("s_lshl_b32 s40, s53, 8")
    flag_poll(a, "L_yp", 4, 5, "12", 16, 2)
    for i in range(4):
        a("buffer_load_dwordx4 %s, v6, s[16:19], s40 offen sc1" % vr(8 + 4 * i, 4))
        a("s_add_u32 s40, s40, %d" % (4 * 2304))
    a("s_waitcnt vmcnt(0)")
    for i in range(1, 4):
        a("v_pk_add_f32 v[8:9], v[8:9], %s" % vr(8 + 4 * i, 2))
        a("v_pk_add_f32 v[10:11], v[10:11], %s" % vr(10 + 4 * i, 2))
    for k in range(4):
        a("v_mov_b32 v20, v%d" % (8 + k))
        a("v_permlane32_swap_b32 v20, v%d" % (8 + k))
        a("v_add_f32 v%d, v%d, v20" % (8 + k, 8 + k))
        a("v_mov_b32 v20, v%d" % (8 + k))
        a("v_permlane16_swap_b32 v20, v%d" % (8 + k))
        a("v_add_f32 v%d, v%d, v20" % (8 + k, 8 + k))
        bf16_round(a, 8 + k, 8 + k)
        a("v_mul_f32 v%d, s13, v%d" % (8 + k, 8 + k))
        bf16_round(a, 8 + k, 8 + k)
    a("v_mov_b32 v12, 1")
    a("ds_write_b128 v7, v[8:11]")
    a("ds_write_b32 v3, v12 offset:%d" % C_YRDY)
    a("s_cmp_eq_u32 s53, 0")
    a("s_cbranch_scc0 L_end")
    a("v_mov_b32 v4, %d" % L.WS_EPOCH)
    a("v_mov_b32 v5, s%d" % TAG)
    a("s_mov_b64 exec, 1")
    a("global_store_dword v4, v5, s[8:9]")
    a("s_endpgm")

    a.label("L_down")
    a("s_cmp_ge_u32 s2, 192")
    a("s_cbranch_scc1 L_end")
    DW, DA = 20, 128
    a("v_lshrrev_b32 v2, 3, v0")
    a("v_and_b32 v10, 7, v0")
    a("v_mul_u32_u24 v16, 1152, v2")
    a("v_lshl_add_u32 v16, v10, 4, v16")
    a("s_mul_i32 s36, s2, 24")
    a("v_mul_u32_u24 v12, %d, v10" % (4608 * 16))
    a("v_add_u32 v11, s36, v2")
    a("v_lshl_add_u32 v17, v11, 4, v12")
    a("v_cmp_gt_u32 s[56:57], 7, v10")
    a("s_mul_i32 s37, s2, %d" % (24 * 1152))
    a("v_and_b32 v1, 1, v0")
    a("v_lshlrev_b32 v1, 4, v1")
    sel_masks(a, 44, 11)
    a("v_lshrrev_b32 v11, 5, v0")
    a("v_bfe_u32 v12, v0, 3, 1")
    a("v_cmp_eq_u32 s[52:53], v11, v12")
    a("v_mul_u32_u24 v12, 2304, v12")
    a("v_bfe_u32 v11, v0, 4, 1")
    a("v_lshl_add_u32 v12, v11, 7, v12")
    a("v_lshl_add_u32 v12, v10, 2, v12")
    a("v_add_u32 v164, %d, v12" % HP)
    a("v_lshlrev_b32 v165, 2, v0")
    a("v_add_u32 v166, %d, v165" % HP)
    a("s_and_b32 s38, s2, 15")
    a("s_mul_i32 s39, s38, 2304")
    a("s_add_u32 s39, s39, %d" % L.WS_YP)
    a("v_add_u32 v165, s39, v165")
    a("s_lshl_b32 s38, s38, 7")
    a("s_add_u32 s38, s38, %d" % (L.WS_FLAG + F_Y * 128))
    srd_off(a, 16, 14, "s37", 24 * 1152)
    srd_off(a, 20, 8, L.WS_PA, 7 * 4608 * 16)
    def dloads(ts=(0, 1, 2)):
        for t in (() if OPT["nodown"] else ts):
            a("s_movk_i32 s40, %d" % (9216 * t))
            for cg in range(9):
                a("buffer_load_dwordx4 %s, v16, s[16:19], s40 offen offset:%d %s" % (vr(DW + 4 * (9 * t + cg), 4), 128 * cg, "" if OPT["dtouch"] else "nt"))

    for k in range(2, 11):
        if OPT["dsplit"]:
            if k in (8, 9, 10):
                dloads((k - 8,))
        elif k == OPT["dpos"]:
            dloads()
        a("s_barrier")
    if OPT["dpos"] == -1:
        a("s_setprio 3")
        stage_spin(a, "L_dn_w2", 0, 3, 10, 0)
        dloads()
    elif OPT["dpos"] == -2:
        a("s_setprio 3")
        lds_spin(a, "L_dn_w2", 3, C_WO, 10, (2,), 2)
        dloads()
    elif OPT["dpos"] == -3:
        a("s_setprio 3")
        lds_spin(a, "L_dn_w2", 3, C_1, 10, (8, 1), 0)
        a("s_sleep 8")
        dloads()
    elif OPT["w8e"] == 2:
        lds_spin(a, "L_dn_w2", 3, C_1, 10, (8, 1), 2)
        a("s_sleep 6")
    elif OPT["w8e"]:
        lds_spin(a, "L_dn_w2", 3, C_1, 10, (8,), 2)
    else:
        stage_spin(a, "L_dn_w2", 0, 3, 10, 2)
    stamp(a, 5)
    a("s_setprio %d" % OPT["pr1"])
    a("s_mov_b32 s60, 0x40000")
    a.label("L_dn_pa")
    a("buffer_load_dwordx3 v[4:6], v17, s[20:23], 0 offen sc1")
    a("buffer_load_dwordx3 v[8:10], v17, s[20:23], 0 offen offset:128 sc1")
    a("buffer_load_dwordx3 v[160:162], v17, s[20:23], 0 offen offset:256 sc1")
    a("s_waitcnt vmcnt(0)")
    a("v_cmp_ne_u32 vcc, s%d, v6" % TAG)
    a("v_cmp_ne_u32 s[40:41], s%d, v10" % TAG)
    a("v_cmp_ne_u32 s[42:43], s%d, v162" % TAG)
    a("s_or_b64 vcc, vcc, s[40:41]")
    a("s_or_b64 vcc, vcc, s[42:43]")
    a("s_and_b64 vcc, vcc, s[56:57]")
    a("s_cmp_eq_u64 vcc, 0")
    a("s_cbranch_scc1 L_dn_pb")
    a("s_sleep 8")
    a("s_sub_u32 s60, s60, 1")
    a("s_cbranch_scc0 L_dn_pa")
    a.label("L_dn_pb")
    stamp(a, 8)
    a("v_mov_b32 v6, v8")
    a("v_mov_b32 v7, v9")
    a("v_mov_b32 v8, v160")
    a("v_mov_b32 v9, v161")
    sum8(a, (4, 5, 6, 7, 8, 9))
    for t in range(3):
        g, u = 4 + 2 * t, 5 + 2 * t
        bf16_round(a, g, g)
        bf16_round(a, u, u)
        sigmoid(a, 10, g)
        a("v_mul_f32 v%d, v%d, v10" % (g, g))
        bf16_round(a, g, g)
        a("v_mul_f32 v%d, v%d, v%d" % (g, g, u))
        a("v_cvt_pk_bf16_f32 v%d, v%d, v%d" % (g, g, g))
        a("v_and_b32 v%d, 0xffff, v%d" % (g, g))
        a("v_lshlrev_b32 v%d, v1, v%d" % (g, g))
    for t in range(3):
        selector(a, 12, 4 + 2 * t, 44)
        for cg in range(9):
            d = vr(DA + 4 * cg, 4)
            a("v_mfma_f32_16x16x32_bf16 %s, %s, v[12:15], %s" % (d, vr(DW + 4 * (9 * t + cg), 4), "0" if t == 0 else d))
    a("s_mov_b64 exec, s[52:53]")
    for cg in range(9):
        for r in range(4):
            a("ds_write_b32 v164, v%d offset:%d" % (DA + 4 * cg + r, 256 * cg + 32 * r))
    a("s_mov_b64 exec, -1")
    for cg in range(9):
        a("ds_read2st64_b32 %s, v166 offset0:%d offset1:%d" % (vr(20 + 2 * cg, 2), cg, cg + 9))
    if OPT["atw"]:
        lds_spin(a, "L_dn_at", 3, C_WO, 10, (2,), 2)
    else:
        stage_spin(a, "L_dn_at", 0, 3, 10, 2)
    lds_spin(a, "L_dn_ax", 3, C_PA, 10, (1,), 1)
    for cg in range(9):
        a("v_add_f32 v%d, v%d, v%d" % (20 + 2 * cg, 20 + 2 * cg, 21 + 2 * cg))
        if not OPT["noat"]:
            a("global_atomic_add_f32 v165, v%d, s[8:9] offset:%d" % (20 + 2 * cg, 256 * cg))
    a("v_mov_b32 v4, s38")
    a("v_mov_b32 v5, 1")
    a("s_waitcnt vmcnt(0)")
    stamp(a, 7)
    a("s_mov_b64 exec, 1")
    a("global_atomic_add v4, v5, s[8:9] sc1")
    stamp_end(a, 8, 1)


def kf(a):
    a.label(NAME)
    a("s_cmp_ge_u32 s2, 256")
    a("s_cbranch_scc1 L_end")
    stamp_init(a)
    stamp(a, 0)
    a("s_load_dwordx4 s[4:7], s[0:1], 0")
    a("s_load_dwordx2 s[8:9], s[0:1], 88")
    a("s_load_dwordx2 s[10:11], s[0:1], 72")
    a("s_load_dwordx2 s[14:15], s[0:1], 56")
    a("s_load_dwordx2 s[28:29], s[0:1], 16")
    a("v_lshrrev_b32 v1, 6, v0")
    a("v_and_b32 v0, 63, v0")
    a("v_readfirstlane_b32 s3, v1")
    a("s_and_b32 s30, s2, 3")
    a("s_bfe_u32 s31, s2, 0x10002")
    a("s_lshr_b32 s32, s2, 3")
    a("s_cmp_ge_u32 s32, 24")
    a("s_cbranch_scc1 L_sp")
    a("s_cmp_ge_u32 s3, 8")
    a("s_cbranch_scc1 L_help")
    gemm_phase(a)
    attention_phase(a)
    out_phase(a)
    late_and_slow(a)
    spare_phase(a)
    helpers(a)
    a.label("L_end")
    a("s_endpgm")
```

```python
import os
BASE = int(os.environ.get('WSBASE', '0'), 0)
WS_QKV = BASE
PAIR_BYTES = 2048 * 72
QKV_BYTES = 48 * PAIR_BYTES
WS_O = BASE + 0x700000
WS_G = BASE + 0x984000
WS_SEL = BASE + 0x986000
WS_PA = BASE + 0xB00000
WS_YP = BASE + 0x9A0000
N_YP = 16
WS_FLAG = BASE + 0x9C0000
WS_KEYF = BASE + 0x9E0000
WS_EPOCH = BASE + 0x9E4000
WS_BC = BASE + 0x9E8000
WS_STAMP = BASE + 0xA00000
STAMP_BYTES = 8 * 512 * 128
WS_USED = 0xC00000


def kslot_to_col():
    out = []
    for s in range(18):
        for g in range(4):
            for e in range(8):
                if s < 16:
                    hs, hh = g >> 1, g & 1
                    m = 4 * hh + e if e < 4 else 8 + 4 * hh + (e - 4)
                    out.append(36 * s + (20 if hs else 0) + m)
                else:
                    u = s - 16
                    p = 8 * u + 2 * g + (e >> 2)
                    out.append(36 * p + 16 + (e & 3))
    assert sorted(out) == list(range(576))
    return out
```

```python
from asmdsl import vr, sr
import layout as L
from common import *
from k2 import (KB, VB, QB, ONES, vK, vKt, vV, vStep, QM, QT, MSK, KF, VF, PP, SS, OO, T,
                k_reads, v_reads, qk, pv)

NAME = "gated_mix__sliding_block__moe_arch_mod__prompt_kernel"
SLOT = 34816
IMG = SLOT
WO = 66560
CTL = 149568
YB = 149696
HP = 150016
YT = 154624
XS = 156672
KF_LDS = 162304
PSLOT = (QB, QB + 4096, 140288, 144384, 158208)
KF_VGPR = 168
PART = 0
STG = 20480
XR, GR = 128, 136
vC = 154
TAG = 65
C_O, C_GO2, C_A, C_WO, C_PART, C_YRDY, C_B, C_1, C_GO1, C_C, C_PA, C_IDX, C_RSEL = 0, 4, 8, 12, 88, 32, 36, 40, 44, 48, 52, 56, 60
C_KMAX, C_KCNT, C_XS, C_GD, C_RED, C_RED2, C_FI = 64, 68, 72, 76, 80, 84, 16
F_Q, F_O, F_PA, F_Y = 0, 192, 448, 512


def lds_spin(a, name, addr_v, off, regs, conds, slp=1):
    n = len(conds)
    a("s_mov_b32 s60, 0x200000")
    a.label(name)
    a(("ds_read_b64 %s, v%d offset:%d" % (vr(regs, 2), addr_v, off)) if n == 2 else
      ("ds_read_b32 v%d, v%d offset:%d" % (regs, addr_v, off)))
    a("s_waitcnt lgkmcnt(0)")
    a("v_readfirstlane_b32 s61, v%d" % regs)
    if n == 2:
        a("v_readfirstlane_b32 s62, v%d" % (regs + 1))
        a("s_lshl_b32 s62, s62, 8")
        a("s_or_b32 s61, s61, s62")
        a("s_cmp_eq_u32 s61, %d" % (conds[0] | (conds[1] << 8)))
    else:
        a("s_cmp_eq_u32 s61, %d" % conds[0])
    a("s_cbranch_scc1 %s_d" % name)
    if slp:
        a("s_sleep %d" % slp)
    a("s_sub_u32 s60, s60, 1")
    a("s_cmp_lg_u32 s60, 0")
    a("s_cbranch_scc1 %s" % name)
    a.label(name + "_d")


def stage_spin(a, name, stage, vc=vC, T=T, slp=0):
    a("s_mov_b32 s60, 0x200000")
    a.label(name)
    a("ds_read_b32 v%d, v%d offset:%d" % (T, vc, C_A))
    a("s_waitcnt lgkmcnt(0)")
    a("v_readfirstlane_b32 s61, v%d" % T)
    a("s_bitcmp1_b32 s61, %d" % (8 * stage + 3))
    a("s_cbranch_scc1 %s_d" % name)
    if slp:
        a("s_sleep %d" % slp)
    a("s_sub_u32 s60, s60, 1")
    a("s_cmp_lg_u32 s60, 0")
    a("s_cbranch_scc1 %s" % name)
    a.label(name + "_d")


def landed(a, inc, vm):
    a("v_mov_b32 v%d, %s" % (T, hex(inc)))
    a("s_waitcnt vmcnt(%d)" % vm)
    a("s_mov_b64 exec, 1")
    a("ds_add_u32 v%d, v%d offset:%d" % (vC, T, C_A))
    a("s_mov_b64 exec, -1")


def poison(a):
    if OPT["nopois"]:
        a("s_nop 0")
        a("buffer_load_dword v155, v152, s[24:27], s59 offen")
        a("buffer_load_dword v155, v152, s[24:27], s59 offen")
        return
    for k in range(4):
        a("v_mov_b32 v%d, -1" % (120 + k))
    a("buffer_store_dwordx4 %s, v153, s[24:27], s58 offen sc1" % vr(120, 4))
    a("s_mov_b32 exec_hi, 0")
    a("buffer_store_dword v%d, v152, s[24:27], s59 offen sc1" % 120)
    a("s_mov_b32 exec_hi, -1")


def tail_touch(a):
    a("buffer_load_dword v155, v152, s[24:27], s59 offen")


def flag_poll(a, name, voff, vt, want, lanes, slp=1, width=1):
    a("s_mov_b64 exec, %s" % ("-1" if lanes == 64 else hex((1 << lanes) - 1)))
    a("s_mov_b32 s60, 0x40000")
    a.label(name)
    a("global_load_dword%s %s, v%d, s[8:9] sc1" % ("" if width == 1 else "x%d" % width, vr(vt, width), voff))
    a("s_waitcnt vmcnt(0)")
    a("v_cmp_eq_u32 vcc, %s, v%d" % (want, vt))
    a("s_cmp_eq_u64 vcc, exec")
    a("s_cbranch_scc1 %s_d" % name)
    if slp:
        a("s_sleep %d" % slp)
    a("s_sub_u32 s60, s60, 1")
    a("s_cmp_lg_u32 s60, 0")
    a("s_cbranch_scc1 %s" % name)
    a.label(name + "_d")
    a("s_mov_b64 exec, -1")


def lds_inc(a, vz, vt, off, rtn=False):
    a("v_mov_b32 v%d, 1" % vt)
    a("s_mov_b64 exec, 1")
    if rtn:
        a("ds_add_rtn_u32 v%d, v%d, v%d offset:%d" % (vt, vz, vt, off))
    else:
        a("ds_add_u32 v%d, v%d offset:%d" % (vz, vt, off))
    a("s_mov_b64 exec, -1")


def load_tag(a):
    a("s_mov_b32 s64, %d" % L.WS_EPOCH)
    a("s_load_dword s%d, s[8:9], s64" % TAG)


def make_tag(a):
    a("s_mul_i32 s%d, s%d, 0x9e3779b1" % (TAG, TAG))
    a("s_add_u32 s%d, s%d, 0x7f4a7c15" % (TAG, TAG))


def copy_scalars(a):
    a("s_mul_i32 s55, s34, %d" % (4 * L.PAIR_BYTES))
    a("s_mul_i32 s56, s35, 9216")
    a("s_add_u32 s55, s55, s56")
    a("s_lshl_b32 s56, s3, 10")
    a("s_add_u32 s55, s55, s56")
    for j in range(5):
        a("s_add_u32 s57, s3, %d" % (8 * j))
        a("s_mul_i32 s57, s57, 57")
        a("s_lshr_b32 s57, s57, 9")
        a("s_mul_i32 s57, s57, %d" % (L.PAIR_BYTES - 9216))
        a("s_add_u32 s57, s57, s55")
        a("s_add_u32 s%d, s57, %d" % (50 + j, 8192 * j))
    a("s_mul_i32 s58, s35, 12")
    a("s_add_u32 s58, s58, s34")
    a("s_lshl_b32 s58, s58, 7")
    a("s_add_u32 s58, s58, %d" % (L.WS_FLAG + F_Q * 128))


def decode2(a):
    if OPT["amap"]:
        a("s_and_b32 s31, s2, 7")
        a("s_lshl_b32 s31, s31, 1")
        a("s_bfe_u32 s32, s2, 0x10003")
        a("s_add_u32 s31, s31, s32")
        a("s_lshr_b32 s30, s31, 2")
        a("s_lshr_b32 s32, s2, 4")
        a("s_add_u32 s32, s32, 4")
        a("s_and_b32 s32, s32, 15")
    else:
        a("s_and_b32 s30, s2, 3")
        a("s_bfe_u32 s33, s2, 0x10002")
        a("s_bfe_u32 s32, s2, 0x20003")
        a("s_lshl_b32 s31, s30, 2")
        a("s_add_u32 s31, s31, s32")
        a("s_lshl_b32 s32, s33, 3")
        a("s_lshr_b32 s34, s2, 5")
        if OPT["light"]:
            a("s_add_u32 s34, s34, 2")
            a("s_and_b32 s34, s34, 7")
        a("s_add_u32 s32, s32, s34")
    a("s_lshr_b32 s33, s2, 3")
    a("s_mul_i32 s34, s33, 57")
    a("s_lshr_b32 s34, s34, 9")
    a("s_mul_i32 s53, s34, 9")
    a("s_sub_u32 s53, s33, s53")
    a("s_lshl_b32 s52, s34, 3")
    a("s_and_b32 s34, s2, 7")
    a("s_add_u32 s52, s52, s34")
    a("s_sub_u32 s33, s2, 216")
    a("s_mul_i32 s34, s33, 57")
    a("s_lshr_b32 s34, s34, 9")
    a("s_mul_i32 s35, s34, 9")
    a("s_sub_u32 s33, s33, s35")
    a("s_add_u32 s34, s34, 24")
    a("s_cmp_ge_u32 s2, 216")
    a("s_cselect_b32 s52, s34, s52")
    a("s_cselect_b32 s53, s33, s53")


def qpoll(a, vc, name, own, r=16):
    R = dict(a=r, b=r + 1, c=r + 2)
    a("v_add_u32 v%(a)d, 2, v0" % R)
    a("v_mul_u32_u24 v%(b)d, 43, v%(a)d" % R)
    a("v_lshrrev_b32 v%(b)d, 7, v%(b)d" % R)
    a("v_mul_u32_u24 v%(c)d, 3, v%(b)d" % R)
    a("v_sub_u32 v%(a)d, v%(a)d, v%(c)d" % R)
    a("s_sub_u32 s35, s32, 2")
    a("v_add_u32 v%(a)d, s35, v%(a)d" % R)
    a("v_max_i32 v%(a)d, 0, v%(a)d" % R)
    a("v_mul_u32_u24 v%(a)d, 12, v%(a)d" % R)
    a("v_lshl_add_u32 v%(a)d, v%(b)d, 2, v%(a)d" % R)
    a("v_add_u32 v%(a)d, s30, v%(a)d" % R)
    a("v_lshlrev_b32 v%(a)d, 7, v%(a)d" % R)
    a("v_add_u32 v%d, %d, v%d" % (r, L.WS_FLAG + F_Q * 128, r))
    if own:
        lds_spin(a, name + "w", vc, C_1, r + 2, (8,), 0)
    if OPT["qdel"]:
        a("s_sleep %d" % OPT["qdel"])
    if OPT["qpipe"] and own:
        NP = OPT["qpipe"]
        a("s_mov_b64 exec, 0x7f")
        a("s_mov_b32 s60, 0x20000")
        for k in range(NP - 1):
            a("global_load_dword v%d, v%d, s[8:9] sc1" % (r + 3 + k, r))
            a("s_sleep 1")
        a.label(name)
        for k in range(NP):
            a("global_load_dword v%d, v%d, s[8:9] sc1" % (r + 3 + (k + NP - 1) % NP, r))
            a("s_waitcnt vmcnt(%d)" % (NP - 1))
            a("v_cmp_eq_u32 vcc, s%d, v%d" % (TAG, r + 3 + k))
            a("s_cmp_eq_u64 vcc, exec")
            a("s_cbranch_scc1 %s_d" % name)
        a("s_sub_u32 s60, s60, 1")
        a("s_cbranch_scc0 %s" % name)
        a.label(name + "_d")
        a("s_mov_b64 exec, -1")
    else:
        flag_poll(a, name, r, r + 1, "s%d" % TAG, 7, OPT["qslp"])
    lds_inc(a, vc, r + 2, C_GO1)


def code_touch(a):
    if not OPT["ctouch"]:
        return
    lab = a.newlabel("pc")
    a("s_getpc_b64 s[20:21]")
    a.label(lab)
    a("s_sub_u32 s20, s20, %s-%s" % (lab, NAME))
    a("s_subb_u32 s21, s21, 0")
    a("s_lshr_b32 s22, s2, 3")
    a("s_mul_i32 s22, s22, %d" % (12 * 128))
    a("v_lshlrev_b32 v20, 7, v0")
    a("v_add_u32 v20, s22, v20")
    a("v_min_u32 v20, L_end-%s, v20" % NAME)
    a("s_mov_b64 exec, 0xfff")
    a("global_load_dword v21, v20, s[20:21]")
    a("s_mov_b64 exec, -1")


def gemm_phase(a):
    if OPT["gmap"]:
        a("s_lshr_b32 s33, s32, 1")
        a("s_mul_i32 s33, s33, 43")
        a("s_lshr_b32 s33, s33, 7")
        a("s_mul_i32 s34, s33, 6")
        a("s_sub_u32 s34, s32, s34")
        a("s_and_b32 s35, s34, 1")
        a("s_lshr_b32 s34, s34, 1")
        a("s_lshl_b32 s34, s34, 2")
        a("s_add_u32 s34, s34, s35")
        a("s_and_b32 s35, s2, 1")
        a("s_lshl_b32 s35, s35, 1")
        a("s_add_u32 s34, s34, s35")
        a("s_bfe_u32 s35, s2, 0x20001")
        a("s_lshl_b32 s35, s35, 2")
        a("s_add_u32 s35, s35, s33")
    else:
        a("s_mul_i32 s33, s32, 43")
        a("s_lshr_b32 s33, s33, 7")
        a("s_mul_i32 s34, s33, 3")
        a("s_sub_u32 s34, s32, s34")
        a("s_lshl_b32 s34, s34, 2")
        a("s_add_u32 s34, s34, s30")
        a("s_lshl_b32 s35, s31, 3")
        a("s_add_u32 s35, s35, s33")
    a("s_cmp_lt_u32 s3, 4")
    a("s_cbranch_scc1 L_comp")
    a("s_cmp_lt_u32 s3, 6")
    a("s_cbranch_scc0 L_ldw")
    a("s_sub_u32 s36, s3, 4")
    SH = 4 if OPT["gmap"] else 3
    a("v_and_b32 v7, %d, v0" % ((1 << SH) - 1))
    a("s_lshl_b32 s41, s33, %d" % SH)
    a("s_lshl_b32 s42, s36, 6")
    a("s_add_u32 s41, s41, s42")
    a("v_add_u32 v7, s41, v7")
    a("v_mul_u32_u24 v7, 3456, v7")
    a("v_lshrrev_b32 v1, %d, v0" % SH)
    a("v_lshl_add_u32 v7, v1, 7, v7")
    a("v_lshrrev_b32 v1, 3, v0")
    a("s_mul_i32 s39, s35, %d" % (128 * 1152))
    a("s_mul_i32 s46, s34, 288")
    a("s_and_b32 s46, s46, 0xffffff80")
    a("s_sub_u32 s47, %d, s46" % (576 * 3456))
    a("v_mul_u32_u24 v1, 1152, v1")
    a("v_lshrrev_b32 v2, 4, v0")
    a("v_and_b32 v3, 7, v0")
    a("v_xor_b32 v3, v3, v2")
    a("v_lshl_add_u32 v4, v3, 4, v1")
    a("v_xor_b32 v3, 4, v3")
    a("v_lshl_add_u32 v5, v3, 4, v1")
    a("v_add_u32 v5, %d, v5" % (8 * 1152))
    a("s_mul_i32 s37, s36, %d" % (64 * 1152))
    a("s_lshl_b32 s38, s36, 13")
    a("s_waitcnt lgkmcnt(0)")
    srd_off(a, 20, 6, "s46", "s47")
    if OPT["gmap"]:
        a("s_mov_b32 exec_hi, 0xffff")
    else:
        a("s_mov_b64 exec, 0xffffff")
    a("buffer_load_dword v20, v7, s[20:23], 0 offen")
    a("s_mov_b64 exec, -1")
    srd_off(a, 16, 4, "s39", 128 * 1152)

    def x_chunk(c):
        for i in range(8):
            a("s_add_u32 m0, s38, %d" % ((c % 4) * SLOT + i * 1024))
            a("s_add_u32 s40, s37, %d" % ((i >> 1) * 16 * 1152 + c * 128))
            a("buffer_load_dwordx4 v%d, s[16:19], s40 offen lds" % (4 + (i & 1)))

    x_chunk(0)
    load_tag(a)
    copy_scalars(a)
    stamp(a, 1)
    a("s_waitcnt vmcnt(8) lgkmcnt(0)")
    stamp(a, 2)

    def loader_loop(fn, n, first, ahead0):
        LA = OPT["la"]
        a("s_barrier")
        stamp(a, 13)
        nxt = first
        while nxt < ahead0:
            fn(nxt)
            nxt += 1
        stamp(a, 14)
        for c in range(9):
            a("s_waitcnt vmcnt(%d)" % (n * (nxt - 1 - c)))
            a("s_barrier")
            while nxt <= c + LA and nxt < 9:
                fn(nxt)
                nxt += 1

    loader_loop(x_chunk, 8, 1, 2)
    a("s_branch L_copy")
    a.label("L_ldw")
    a("s_movk_i32 s41, 3641")
    for i in range(9):
        a("v_add_u32 v1, %d, v0" % (64 * i))
        a("v_mul_u32_u24 v2, s41, v1")
        a("v_lshrrev_b32 v2, 16, v2")
        a("v_mul_u32_u24 v3, 18, v2")
        a("v_sub_u32 v3, v1, v3")
        a("v_bfe_u32 v1, v2, 2, 2")
        a("v_lshlrev_b32 v1, 3, v1")
        a("v_lshrrev_b32 v13, 4, v2")
        a("v_lshl_add_u32 v1, v13, 2, v1")
        a("v_and_b32 v2, 3, v2")
        a("v_add_u32 v1, v1, v2")
        a("v_mul_u32_u24 v1, 3456, v1")
        a("v_lshl_add_u32 v%d, v3, 4, v1" % (4 + i))
        if i == 2:
            a("s_waitcnt lgkmcnt(0)")
            load_tag(a)
    a("s_sub_u32 s36, s3, 6")
    a("s_mul_i32 s37, s36, %d" % (32 * 3456))
    a("s_mul_i32 s38, s36, 9216")
    a("s_mul_i32 s39, s34, 288")
    a("s_sub_u32 s42, %d, s39" % (576 * 3456))
    copy_scalars(a)
    srd_off(a, 16, 6, "s39", "s42")
    a("s_waitcnt lgkmcnt(0)")

    def w_chunk(c):
        a("s_add_u32 s40, s37, %d" % (c * 64 * 3456))
        for i in range(9):
            a("s_add_u32 m0, s38, %d" % ((c % 4) * SLOT + 16384 + i * 1024))
            a("s_nop 0")
            a("buffer_load_dwordx4 v%d, s[16:19], s40 offen lds" % (4 + i))

    loader_loop(w_chunk, 9, 0, OPT["wa0"])
    a("s_branch L_copy")
    a.label("L_comp")
    ACC, XF, WF = 64, (136, 144), 24
    a("v_and_b32 v8, 15, v0")
    a("v_lshrrev_b32 v9, 4, v0")
    a("v_lshrrev_b32 v10, 1, v8")
    a("v_xor_b32 v10, v10, v9")
    a("s_lshl_b32 s36, s3, 12")
    a("v_lshlrev_b32 v2, 7, v8")
    a("v_lshl_add_u32 v2, v10, 4, v2")
    a("v_add_u32 v2, s36, v2")
    a("v_xor_b32 v3, 64, v2")
    a("v_add_u32 v4, %d, v2" % (2 * SLOT))
    a("v_add_u32 v5, %d, v3" % (2 * SLOT))
    a("v_lshrrev_b32 v10, 2, v0")
    a("v_mul_u32_u24 v6, 288, v10")
    a("v_and_b32 v10, 3, v0")
    a("v_lshl_add_u32 v6, v10, 3, v6")
    a("v_add_u32 v6, 16384, v6")
    a("v_add_u32 v7, %d, v6" % (2 * SLOT))
    a("s_waitcnt lgkmcnt(0)")
    load_tag(a)
    a("s_mov_b32 s36, 1.0")
    a("s_cmp_lt_u32 s34, 4")
    a("s_cselect_b32 s36, %s, s36" % f32(QSCALE))
    a("s_mov_b32 s37, s36")
    a("s_lshl_b32 s38, s3, 5")
    a("v_add_u32 v10, s38, v8")
    a("v_mul_u32_u24 v10, 72, v10")
    a("v_lshl_add_u32 v10, v9, 3, v10")
    a("v_add_u32 v10, %d, v10" % IMG)
    for ft in range(9):
        a("v_add_u32 v11, %d, v9" % (4 * ft))
        a("v_mul_u32_u24 v11, 57, v11")
        a("v_lshrrev_b32 v11, 9, v11")
        a("v_mul_u32_u24 v11, 9144, v11")
        a("v_add_u32 v%d, v11, v10" % (12 + ft))
    copy_scalars(a)
    a("s_waitcnt lgkmcnt(0)")

    def xreads(step):
        c, h2 = step >> 1, step & 1
        slot = c % 4
        return ["ds_read_b128 %s, v%d offset:%d" % (vr(XF[step & 1] + 4 * tt, 4), 2 + 2 * (slot >> 1) + h2,
                                                    (slot & 1) * SLOT + tt * 2048) for tt in range(2)]

    def wreads(step, ft):
        c, h2 = step >> 1, step & 1
        slot = c % 4
        return ["ds_read_b64_tr_b16 %s, v%d offset:%d" % (vr(WF + 4 * ft + 2 * sec, 2), 6 + (slot >> 1),
                                                          (slot & 1) * SLOT + h2 * 9216 + sec * 4608 + ft * 32)
                for sec in range(2)]

    def mfma(step, ft, tt):
        d = vr(ACC + 8 * ft + 4 * tt, 4)
        return "v_mfma_f32_16x16x32_bf16 %s, %s, %s, %s" % (
            d, vr(WF + 4 * ft, 4), vr(XF[step & 1] + 4 * tt, 4), "0" if step == 0 else d)

    def epi(k):
        ft, tt = k >> 1, k & 1
        b = ACC + 4 * k
        t = 152 + 2 * (k % 4)
        return ["v_pk_mul_f32 %s, %s, s[36:37]" % (vr(b, 2), vr(b, 2)),
                "v_pk_mul_f32 %s, %s, s[36:37]" % (vr(b + 2, 2), vr(b + 2, 2)),
                "v_cvt_pk_bf16_f32 v%d, v%d, v%d" % (t, b, b + 1),
                "v_cvt_pk_bf16_f32 v%d, v%d, v%d" % (t + 1, b + 2, b + 3),
                "ds_write_b64 v%d, %s offset:%d" % (12 + ft, vr(t, 2), 32 * ft + 1152 * tt)]

    a("s_barrier")
    a("s_barrier")
    stamp(a, 1)
    q = []

    def issue(tag, lst):
        for x in lst:
            a(x)
            q.append(tag)

    def need(tag):
        last = max(k for k, v in enumerate(q) if v == tag)
        a("s_waitcnt lgkmcnt(%d)" % min(15, len(q) - 1 - last))

    issue(("x", 0), xreads(0))
    for ft in range(9):
        issue(("w", 0, ft), wreads(0, ft))
    for step in range(16):
        if step & 1:
            a("s_barrier")
        for ft in range(9):
            need(("w", step, ft))
            a(mfma(step, ft, 0))
            if ft == 0:
                issue(("x", step + 1), xreads(step + 1))
            a(mfma(step, ft, 1))
            issue(("w", step + 1, ft), wreads(step + 1, ft))
    RING = (60, 160, 164)

    def w17(ft):
        return [x.replace(vr(WF + 4 * ft + 2 * sec, 2), vr(RING[ft % 3] + 2 * sec, 2)) for sec, x in enumerate(wreads(17, ft))]

    issue(("x", 17), xreads(17))
    issue(("v", 0), w17(0))
    issue(("v", 1), w17(1))
    for ft in range(10):
        e = (epi(2 * ft - 2) + epi(2 * ft - 1)) if ft else []
        if ft < 9:
            need(("v", ft))
            m = [mfma(16, ft, 0), mfma(16, ft, 1)] + \
                [mfma(17, ft, tt).replace(vr(WF + 4 * ft, 4), vr(RING[ft % 3], 4)) for tt in range(2)]
        else:
            m = []
        cut = (0, 3, 5, 8, 10)
        for k in range(4):
            if m:
                a(m[k])
            if k == 0 and ft + 2 < 9:
                issue(("v", ft + 2), w17(ft + 2))
            for x in e[cut[k]:cut[k + 1]]:
                if x.startswith("ds_"):
                    issue("e", [x])
                else:
                    a(x)
    stamp(a, 2)
    a("s_waitcnt lgkmcnt(0)")
    a.label("L_copy")
    a("v_lshlrev_b32 v1, 4, v0")
    a("s_lshl_b32 s36, s3, 10")
    a("v_add_u32 v2, s36, v1")
    a("v_add_u32 v3, %d, v2" % (IMG + 4 * 8192))
    srd_off(a, 24, 8, L.WS_QKV, L.QKV_BYTES)
    make_tag(a)
    a("s_barrier")
    for j in range(4):
        a("ds_read_b128 %s, v2 offset:%d" % (vr(4 + 4 * j, 4), IMG + j * 8192))
    a("s_cmp_lt_u32 s3, 4")
    a("s_cbranch_scc0 L_c4")
    a("ds_read_b128 v[20:23], v3")
    a("s_waitcnt lgkmcnt(0)")
    a("buffer_store_dwordx4 v[20:23], v1, s[24:27], s54 offen sc1")
    a.label("L_c4")
    for j in range(4):
        a("s_waitcnt lgkmcnt(%d)" % (3 - j))
        a("buffer_store_dwordx4 %s, v1, s[24:27], s%d offen sc1" % (vr(4 + 4 * j, 4), 50 + j))
    a("s_mov_b32 s63, s58")
    a("v_mov_b32 v%d, %d" % (vC, CTL))
    lds_inc(a, vC, 24, C_FI)
    stamp(a, 3)


def spare_phase(a):
    GW = 64
    a.label("L_sp")
    a("s_sub_u32 s36, s2, 192")
    a("s_cmp_ge_u32 s3, 8")
    a("s_cbranch_scc1 L_sp_ffn")
    a("s_cmp_ge_u32 s3, 4")
    a("s_cbranch_scc1 L_sp_hi")
    a("s_load_dwordx2 s[60:61], s[0:1], 32")
    a("s_load_dwordx2 s[62:63], s[0:1], 64")
    a("v_lshrrev_b32 v2, 3, v0")
    a("v_and_b32 v3, 7, v0")
    a("v_lshlrev_b32 v3, 4, v3")
    a("s_lshl_b32 s34, s36, 2")
    a("s_add_u32 s34, s34, s3")
    a("s_lshl_b32 s33, s34, 3")
    a("v_add_u32 v1, s33, v2")
    a("v_mul_u32_u24 v4, 1152, v1")
    a("v_add_u32 v4, v4, v3")
    a("s_mul_i32 s51, s34, %d" % (7 * 128))
    a("s_mul_i32 s52, s34, %d" % (21 * 128))
    a("v_lshlrev_b32 v7, 7, v0")
    a("s_waitcnt lgkmcnt(0)")
    load_tag(a)
    srd(a, 16, 6, 576 * 3456)
    srd(a, 20, 28, 576 * 1152)
    for i in range(9):
        a("global_load_dwordx4 %s, v4, s[4:5] offset:%d" % (vr(8 + 4 * i, 4), 128 * i))
        if i == 0:
            for j in range(9):
                a("global_load_dwordx4 %s, v3, s[60:61] offset:%d" % (vr(44 + 4 * j, 4), 128 * j))
                a("global_load_dwordx4 %s, v3, s[62:63] offset:%d" % (vr(80 + 4 * j, 4), 128 * j))
        else:
            a("s_add_u32 s53, s51, %d" % (1728 * 128 * i))
            a("s_mov_b64 exec, 0x7f")
            a("buffer_load_dword v124, v7, s[16:19], s53 offen")
            a("s_mov_b64 exec, -1")
    a("s_mov_b64 exec, 0x1fffff")
    a("buffer_load_dword v124, v7, s[20:23], s52 offen")
    a("s_mov_b64 exec, -1")
    a("v_mov_b32 v%d, %d" % (vC, CTL))
    a("s_waitcnt lgkmcnt(0)")
    make_tag(a)
    a("s_barrier")
    a("s_waitcnt vmcnt(2)")
    for i in range(36):
        p = 116 + (i & 3)
        a("v_dot2_f32_bf16 v%d, v%d, v%d, %s" % (p, 8 + i, 44 + i, "0" if i < 4 else "v%d" % p))
    a("s_nop 1")
    a("v_pk_add_f32 v[116:117], v[116:117], v[118:119]")
    a("v_add_f32 v5, v116, v117")
    sum8(a, (5,))
    bf16_round(a, 5, 5)
    a("v_ashrrev_i32 v7, 31, v5")
    a("v_or_b32 v7, 0x80000000, v7")
    a("v_xor_b32 v7, v7, v5")
    a("v_and_b32 v7, 0xffff0000, v7")
    a("v_sub_u32 v6, 0x7ff, v1")
    a("v_or_b32 v7, v7, v6")
    a("v_mov_b32 v5, 1")
    a("s_mov_b32 s54, 0x01010101")
    a("s_mov_b32 exec_lo, s54")
    a("s_mov_b32 exec_hi, s54")
    a("ds_max_u32 v%d, v7 offset:%d" % (vC, C_KMAX))
    a("s_mov_b64 exec, 1")
    a("ds_add_rtn_u32 v5, v%d, v5 offset:%d" % (vC, C_KCNT))
    a("ds_read_b32 v7, v%d offset:%d" % (vC, C_KMAX))
    a("s_lshl_b32 s53, s36, 3")
    a("s_add_u32 s53, s53, %d" % L.WS_KEYF)
    a("v_mov_b32 v4, s53")
    a("v_mov_b32 v6, s%d" % TAG)
    a("s_waitcnt lgkmcnt(0)")
    a("v_cmp_eq_u32 vcc, 3, v5")
    a("s_and_b64 exec, exec, vcc")
    a("s_cbranch_execz L_sp_nopub")
    a("global_store_dwordx2 v4, v[6:7], s[8:9] sc1")
    a.label("L_sp_nopub")
    a("s_mov_b64 exec, -1")
    stamp(a, 1)
    a("s_mov_b32 s55, 0x3f803f80")
    for i in range(36):
        x, w, p = 8 + i, 80 + i, 116 + (i & 3)
        t = 44 + 4 * (i & 3)
        a("v_lshlrev_b32 v%d, 16, v%d" % (t, x))
        a("v_and_b32 v%d, 0xffff0000, v%d" % (t + 1, x))
        a("v_lshlrev_b32 v%d, 16, v%d" % (t + 2, w))
        a("v_and_b32 v%d, 0xffff0000, v%d" % (t + 3, w))
        a("v_pk_mul_f32 %s, %s, %s" % (vr(t, 2), vr(t, 2), vr(t + 2, 2)))
        a("v_cvt_pk_bf16_f32 v%d, v%d, v%d" % (t, t, t + 1))
        a("v_dot2_f32_bf16 v%d, v%d, s55, %s" % (p, t, "0" if i < 4 else "v%d" % p))
    a("s_nop 1")
    a("v_pk_add_f32 v[116:117], v[116:117], v[118:119]")
    a("v_add_f32 v6, v116, v117")
    sum8(a, (6,))
    bf16_round(a, 6, 6)
    sigmoid(a, 6, 6)
    bf16_round(a, 6, 6)
    a("v_lshlrev_b32 v1, 2, v1")
    a("v_add_u32 v1, %d, v1" % L.WS_G)
    a("s_mov_b32 exec_lo, s54")
    a("s_mov_b32 exec_hi, s54")
    a("global_store_dword v1, v6, s[8:9] sc1")
    a("s_mov_b64 exec, -1")
    a("s_waitcnt vmcnt(0)")
    lds_inc(a, vC, 5, C_GD)
    if OPT["dtouch"]:
        srd(a, 16, 14, 4608 * 1152)
        a("s_mul_i32 s52, s34, %d" % (162 * 128))
        a("v_lshlrev_b32 v7, 7, v0")
        for k in range(3):
            a("buffer_load_dword v124, v7, s[16:19], s52 offen")
            a("s_add_u32 s52, s52, %d" % (54 * 128))
    a("s_mov_b32 s63, 0")
    stamp(a, 2)
    a("s_branch L_att")

    a.label("L_sp_hi")
    a("s_cmp_eq_u32 s3, 7")
    a("s_cbranch_scc0 L_sp_hi1")
    code_touch(a)
    a.label("L_sp_hi1")
    a("v_mov_b32 v%d, %d" % (vC, CTL))
    a("s_waitcnt lgkmcnt(0)")
    load_tag(a)
    a("s_mov_b32 s63, 0")
    a("s_waitcnt lgkmcnt(0)")
    make_tag(a)
    a("s_barrier")
    a("s_cmp_eq_u32 s3, 4")
    a("s_cbranch_scc1 L_sp_w4")
    a("s_cmp_eq_u32 s3, 5")
    a("s_cbranch_scc0 L_att")
    a("s_lshl_b32 s56, s36, 7")
    a("s_add_u32 s56, s56, %d" % (L.WS_FLAG + F_PA * 128))
    a("v_mov_b32 v9, s56")
    lds_spin(a, "L_sp_x5", vC, C_XS, 10, (1, 4), 4)
    a("ds_read_b64 v[14:15], v%d offset:%d" % (vC, C_IDX))
    a("v_mov_b32 v12, s%d" % TAG)
    a("s_waitcnt lgkmcnt(0)")
    a("v_mov_b32 v13, v14")
    a("v_mov_b32 v14, v15")
    a("s_mov_b64 exec, 1")
    a("global_store_dwordx3 v9, v[12:14], s[8:9] sc1")
    a("s_mov_b64 exec, -1")
    a("s_branch L_att")
    a.label("L_sp_w4")
    for k in range(4):
        a("v_mov_b32 v%d, 0" % (12 + k))
    a("s_cmp_lt_u32 s36, 36")
    a("s_cbranch_scc0 L_sp_nz")
    a("s_lshl_b32 s51, s36, 10")
    a("s_add_u32 s51, s51, %d" % L.WS_YP)
    a("v_lshlrev_b32 v4, 4, v0")
    a("v_add_u32 v4, s51, v4")
    a("global_store_dwordx4 v4, v[12:15], s[8:9] sc1")
    a("s_cmp_eq_u32 s36, 0")
    a("s_cbranch_scc0 L_sp_nz")
    a("v_lshlrev_b32 v4, 7, v0")
    a("v_add_u32 v4, %d, v4" % (L.WS_FLAG + F_Y * 128))
    a("global_store_dword v4, v12, s[8:9] sc1")
    a.label("L_sp_nz")
    a("v_lshlrev_b32 v8, 3, v0")
    a("v_add_u32 v8, %d, v8" % L.WS_KEYF)
    srd(a, 24, 4, 2048 * 1152)
    lds_spin(a, "L_sp_own", vC, C_KCNT, 10, (4,), 2)
    a("s_sleep %d" % OPT["slp0"])
    flag_poll(a, "L_sp_kp", 8, 10, "s%d" % TAG, 64, OPT["slp"], 2)
    a("v_lshlrev_b32 v8, 4, v0")
    stamp(a, 1)
    wave_umax(a, 11, 53)
    a("s_and_b32 s54, s53, 0x7ff")
    a("s_sub_u32 s54, 2047, s54")
    a("s_mul_i32 s55, s54, 1152")
    a("s_mov_b32 m0, %d" % XS)
    a("s_add_u32 s56, s55, 1024")
    a("buffer_load_dwordx4 v8, s[24:27], s55 offen lds")
    a("s_mov_b32 m0, %d" % (XS + 1024))
    a("s_mov_b64 exec, 0xff")
    a("buffer_load_dwordx4 v8, s[24:27], s56 offen lds")
    a("s_mov_b64 exec, -1")
    a("s_and_b32 s55, s53, 0xffff0000")
    a("s_xor_b32 s56, s55, 0x80000000")
    a("s_xor_b32 s57, s55, 0xffff0000")
    a("s_bitcmp1_b32 s55, 31")
    a("s_cselect_b32 s55, s56, s57")
    a("v_mov_b32 v12, s55")
    sigmoid(a, 13, 12)
    bf16_round(a, 13, 13)
    a("v_mov_b32 v12, s54")
    a("ds_write_b64 v%d, v[12:13] offset:%d" % (vC, C_IDX))
    a("v_mov_b32 v12, 1")
    a("s_waitcnt vmcnt(0)")
    a("ds_write_b32 v%d, v12 offset:%d" % (vC, C_XS))
    stamp(a, 2)
    a("s_branch L_att")

    a.label("L_sp_ffn")
    a("s_load_dwordx4 s[40:43], s[0:1], 40")
    a("v_mov_b32 v3, %d" % CTL)
    for k in range(4):
        a("v_mov_b32 v%d, 0" % (4 + k))
    a("v_lshlrev_b32 v1, 4, v0")
    a("v_add_u32 v2, v1, v3")
    a("s_mov_b64 exec, 0xff")
    a("ds_write_b128 v2, v[4:7]")
    a("s_mov_b64 exec, -1")
    a("v_lshlrev_b32 v2, 2, v0")
    a("v_add_u32 v2, %d, v2" % (XS + 1152))
    a("ds_write_b32 v2, v4")
    a("s_sub_u32 s59, s3, 8")
    a("s_mul_i32 s37, s36, 57")
    a("s_lshr_b32 s37, s37, 9")
    a("s_mul_i32 s38, s37, 9")
    a("s_sub_u32 s38, s36, s38")
    a("s_mul_i32 s49, s37, 84")
    a("s_mul_i32 s39, s49, 9216")
    a("s_lshl_b32 s48, s38, 10")
    a("s_add_u32 s39, s39, s48")
    a("s_sub_u32 s48, %d, s39" % (576 * 9216))
    a("s_min_i32 s48, s48, %d" % (83 * 9216 + 1024))
    a("s_max_i32 s48, s48, 0")
    a("v_lshrrev_b32 v160, 5, v0")
    a("v_mul_u32_u24 v160, 9216, v160")
    a("v_and_b32 v161, 31, v0")
    a("v_lshl_add_u32 v160, v161, 4, v160")
    a("s_mul_i32 s57, s59, 20480")
    a("s_add_u32 s57, s57, %d" % WO)
    a("s_mul_i32 s58, s59, %d" % (2 * 9216))
    a("s_waitcnt lgkmcnt(0)")
    load_tag(a)
    srd_off(a, 16, 40, "s39", "s48")
    srd_off(a, 20, 42, "s39", "s48")
    a("s_waitcnt lgkmcnt(0)")
    make_tag(a)
    a("s_barrier")
    for i in range(5):
        a("s_add_u32 s55, s58, %d" % (8 * (6 + i) * 9216))
        a("s_add_u32 s56, s55, 512")
        for k in range(4):
            a("s_add_u32 m0, s57, %d" % ((4 * i + k) * 1024))
            a("buffer_load_dwordx4 v160, s[%d:%d], s%d offen nt lds" % (16 + 4 * (k >> 1), 19 + 4 * (k >> 1), 55 + (k & 1)))
    for i in range(6):
        a("s_add_u32 s55, s58, %d" % (8 * i * 9216))
        for k in range(4):
            a("buffer_load_dwordx4 %s, v160, s[%d:%d], s55 offen offset:%d nt" % (
                vr(GW + 16 * i + 4 * k, 4), 16 + 4 * (k >> 1), 19 + 4 * (k >> 1), 512 * (k & 1)))
    a("s_lshl_b32 s55, s59, 1")
    a("s_add_u32 s55, s55, s49")
    a("v_lshrrev_b32 v51, 5, v0")
    a("v_add_u32 v51, s55, v51")
    a("v_lshlrev_b32 v51, 1, v51")
    a("v_add_u32 v51, %d, v51" % XS)
    a("v_and_b32 v2, 1, v0")
    a("v_lshlrev_b32 v2, 4, v2")
    a("v_lshrrev_b32 v4, 1, v0")
    a("v_xor_b32 v4, v4, v0")
    a("v_and_b32 v4, 8, v4")
    a("v_bfe_u32 v5, v0, 1, 2")
    a("v_or_b32 v4, v4, v5")
    for q in range(4):
        a("v_cmp_eq_u32 s[%d:%d], %d, v4" % (40 + 2 * q, 41 + 2 * q, q))
    a("v_bfe_u32 v4, v0, 3, 1")
    a("v_lshlrev_b32 v4, 9, v4")
    a("v_lshrrev_b32 v5, 4, v0")
    a("v_lshl_add_u32 v4, v5, 7, v4")
    a("v_and_b32 v5, 7, v0")
    a("v_lshl_add_u32 v4, v5, 2, v4")
    a("v_add_u32 v6, s57, v4")
    a("v_add_u32 v52, s57, v1")
    a("s_lshl_b32 s55, s59, 9")
    a("v_lshlrev_b32 v8, 3, v0")
    a("v_add_u32 v8, s55, v8")
    a("s_mul_i32 s52, s37, %d" % (4608 * 16))
    a("s_lshl_b32 s55, s38, 13")
    a("s_add_u32 s52, s52, s55")
    a("s_add_u32 s52, s52, %d" % L.WS_PA)
    a("v_lshlrev_b32 v9, 2, v8")
    a("v_add_u32 v9, s52, v9")
    a("v_add_u32 v8, %d, v8" % WO)
    stamp(a, 3)
    lds_spin(a, "L_sp_xs", 3, C_XS, 10, (1,), 2)
    a("s_setprio %d" % OPT["pr2"])
    stamp(a, 7)
    for i in range(11):
        a("ds_read_u16 v%d, v51 offset:%d" % (53 + i, 16 * i))
    a("s_waitcnt vmcnt(24)")
    for k in range(4):
        a("ds_read_b128 %s, v52 offset:%d" % (vr(32 + 4 * k, 4), 1024 * k))
    a("s_waitcnt lgkmcnt(4)")
    for i in range(11):
        a("v_lshlrev_b32 v%d, v2, v%d" % (53 + i, 53 + i))
    first = True
    for i in range(5):
        selector(a, 12, 53 + 6 + i, 40)
        for k in range(4):
            d = vr(16 + 4 * k, 4)
            a("s_waitcnt lgkmcnt(%d)" % (3 if i < 4 else 3 - k))
            a("v_mfma_f32_16x16x32_bf16 %s, %s, v[12:15], %s" % (d, vr(32 + 4 * k, 4), "0" if first else d))
            if i < 4:
                a("ds_read_b128 %s, v52 offset:%d" % (vr(32 + 4 * k, 4), 1024 * (4 * (i + 1) + k)))
        first = False
    stamp(a, 12)
    for i in range(6):
        selector(a, 12, 53 + i, 40)
        a("s_waitcnt vmcnt(%d)" % (4 * (5 - i)))
        for k in range(4):
            d = vr(16 + 4 * k, 4)
            a("v_mfma_f32_16x16x32_bf16 %s, %s, v[12:15], %s" % (d, vr(GW + 16 * i + 4 * k, 4), d))
    stamp(a, 11)
    for k in range(4):
        for r in range(4):
            a("ds_write_b32 v6, v%d offset:%d" % (16 + 4 * k + r, 1024 * k + 32 * r))
    lds_inc(a, 3, 10, C_RED)
    lds_spin(a, "L_sp_rd", 3, C_RED, 10, (4,), 0)
    for p in range(4):
        a("ds_read_b64 %s, v8 offset:%d" % (vr(16 + 4 * p, 2), 20480 * p))
        a("ds_read_b64 %s, v8 offset:%d" % (vr(18 + 4 * p, 2), 20480 * p + 2048))
    a("v_mov_b32 v34, s%d" % TAG)
    a("v_mov_b32 v38, s%d" % TAG)
    a("s_waitcnt lgkmcnt(0)")
    lds_inc(a, 3, 10, C_RED2)
    for p in (2, 1):
        for h in range(2 * p):
            a("v_pk_add_f32 %s, %s, %s" % (vr(16 + 2 * h, 2), vr(16 + 2 * h, 2), vr(16 + 4 * p + 2 * h, 2)))
    a("v_mov_b32 v32, v16")
    a("v_mov_b32 v33, v18")
    a("v_mov_b32 v36, v17")
    a("v_mov_b32 v37, v19")
    a("s_cmp_eq_u32 s36, 63")
    a("s_cbranch_scc1 L_sp_nost")
    a("global_store_dwordx4 v9, v[32:35], s[8:9] sc1")
    a("global_store_dwordx4 v9, v[36:39], s[8:9] offset:16 sc1")
    a.label("L_sp_nost")
    stamp(a, 4)
    lds_spin(a, "L_sp_r2", 3, C_RED2, 10, (4,), 0)
    a("s_branch L_help2")


def attn_loop(a):
    for i in range(9):
        if OPT["bal"] and i == 0:
            a("s_cmp_lt_u32 s3, 4")
            a("s_cbranch_scc1 L_bal0")
            a("s_setprio 1")
            a.label("L_bal0")
        if OPT["bal"] and i == OPT["bal"]:
            a("s_setprio 0")
        a.label("L_it%d" % i)
        S, P = SS[i & 1], PP[i & 1]
        ex = ["v_exp_f32 v%d, v%d" % (S + r, S + r) for r in range(16)]
        cv = ["v_cvt_pk_bf16_f32 v%d, v%d, v%d" % (P + q, S + 2 * q, S + 2 * q + 1) for q in range(8)]
        if i == 0:
            mk = ["v_bfi_b32 v%d, v%d, 0, v%d" % (P + q, MSK + q, P + q) for q in range(8)]
        elif i == 8:
            mk = ["v_and_b32 v%d, v%d, v%d" % (P + q, MSK + q, P + q) for q in range(8)]
        else:
            mk = []
        m1 = qk(i + 1) if i < 8 else []
        m2 = pv(i - 1, i == 1) if i > 0 else []
        a("s_waitcnt lgkmcnt(%d)" % (4 if 0 < i < 8 else 0))
        seq = m1[:1] + ex[0:4] + m1[1:] + (k_reads(i + 2) if i + 2 <= 8 else []) + ex[4:8] + cv[0:2] + m2[:1] + \
            ex[8:12] + cv[2:4] + m2[1:]
        if i + 1 <= 8:
            seq += ["v_add_u32 v%d, v%d, v%d" % (vV, vV, vStep)] + v_reads(i + 1)
        seq += ex[12:16] + cv[4:8] + mk
        for x in seq:
            a(x)
    lds_spin(a, "L_pz", vC, C_C, T, (1,), 0)
    for x in pv(8, False):
        a(x)


def attention_phase(a):
    a.label("L_att")
    decode2(a)
    a("s_mul_i32 s33, s31, %d" % L.PAIR_BYTES)
    a("s_mul_i32 s34, s32, 9216")
    a("s_add_u32 s33, s33, s34")
    a("v_mov_b32 v%d, %d" % (vC, CTL))
    KS, VS = 16 * L.PAIR_BYTES - 18432, 32 * L.PAIR_BYTES - 18432
    grp = [(QB, 0), (KB, KS), (VB, VS), (KB + 9216, KS + 9216), (VB + 9216, VS + 9216), (KB + 18432, KS + 18432), (VB + 18432, VS + 18432)]
    a("s_lshl_b32 s34, s3, 10")
    for j in range(8):
        lo, hi = (8 * j) // 9, min(8 * j + 7, 62) // 9
        l0, g0 = grp[lo][0] + (8 * j - 9 * lo) * 1024, grp[lo][1] + (8 * j - 9 * lo) * 1024
        l1, g1 = grp[hi][0] + (8 * j - 9 * hi) * 1024, grp[hi][1] + (8 * j - 9 * hi) * 1024
        if j == 7:
            a("s_min_u32 s34, s34, %d" % (6 * 1024))
        if lo == hi:
            a("s_add_u32 s%d, s34, %d" % (16 + j, l0))
            a("s_add_u32 s%d, s33, %d" % (44 + j, g0 - l0 & 0xffffffff))
        else:
            a("s_mov_b32 s35, %d" % l0)
            a("s_mov_b32 s36, %d" % (g0 - l0 & 0xffffffff))
            a("s_cmp_ge_u32 s3, %d" % (9 * hi - 8 * j))
            a("s_cselect_b32 s35, %d, s35" % (l1 & 0xffffffff))
            a("s_cselect_b32 s36, %d, s36" % (g1 - l1 & 0xffffffff))
            a("s_add_u32 s%d, s34, s35" % (16 + j))
            a("s_add_u32 s%d, s33, s36" % (44 + j))
        a("s_add_u32 s%d, s%d, s%d" % (44 + j, 44 + j, 16 + j))
    a("v_mov_b32 v10, s63")
    a("v_mov_b32 v11, s%d" % TAG)
    a("s_waitcnt vmcnt(0)")
    lds_inc(a, vC, 9, C_1, rtn=True)
    a("s_cmp_lg_u32 s63, 0")
    a("s_cselect_b32 s35, 7, 99")
    a("s_waitcnt lgkmcnt(0)")
    a("v_readfirstlane_b32 s36, v9")
    a("s_cmp_eq_u32 s36, s35")
    a("s_cbranch_scc0 L_nofl1")
    a("s_mov_b64 exec, 1")
    a("global_store_dword v10, v11, s[8:9] sc1")
    a("s_mov_b64 exec, -1")
    a.label("L_nofl1")
    stamp(a, 4)
    a("s_and_b32 s42, s3, 1")
    a("s_lshr_b32 s43, s3, 1")
    a("s_mul_i32 s35, s43, 2304")
    a("s_mul_i32 s36, s42, 40")
    a("v_and_b32 v%d, 31, v0" % T)
    a("v_lshrrev_b32 v%d, 5, v0" % (T + 1))
    a("v_mul_u32_u24 v%d, 72, v%d" % (vKt, T))
    a("v_add_u32 v%d, s35, v%d" % (vKt, vKt))
    a("v_lshl_add_u32 v%d, v%d, 4, v%d" % (vK, T + 1, vKt))
    a("v_add_u32 v%d, s36, v%d" % (vK, vK))
    a("v_add_u32 v%d, 32, v%d" % (vKt, vKt))
    a("v_bfe_u32 v%d, v0, 2, 2" % (T + 2))
    a("v_lshl_add_u32 v%d, v%d, 2, v%d" % (T + 2, T + 1, T + 2))
    a("v_mul_u32_u24 v%d, 72, v%d" % (T + 2, T + 2))
    a("s_add_u32 s37, s35, %d" % VB)
    a("v_add_u32 v%d, s37, v%d" % (T + 2, T + 2))
    a("v_and_b32 v%d, 3, v0" % (T + 3))
    a("v_lshlrev_b32 v%d, 3, v%d" % (T + 4, T + 3))
    a("v_add_u32 v%d, s36, v%d" % (T + 4, T + 4))
    a("v_and_b32 v%d, 16, v0" % (T + 5))
    a("v_cmp_eq_u32 s[38:39], 0, v%d" % (T + 5))
    a("v_cndmask_b32 v%d, 32, v%d, s[38:39]" % (T + 4, T + 4))
    a("v_add_u32 v%d, v%d, v%d" % (vV, T + 2, T + 4))
    a("v_and_b32 v%d, 19, v0" % (T + 5))
    a("v_cmp_lt_u32 s[38:39], 16, v%d" % (T + 5))
    a("v_mov_b32 v%d, %d" % (T + 6, ONES))
    a("v_cndmask_b32 v%d, v%d, v%d, s[38:39]" % (vV, vV, T + 6))
    a("v_mov_b32 v%d, 2304" % (T + 6))
    a("v_cndmask_b32 v%d, v%d, 0, s[38:39]" % (vStep, T + 6))
    a("v_lshlrev_b32 v%d, 2, v%d" % (T + 2, T + 1))
    a("v_sub_u32 v%d, v%d, v%d" % (T + 2, T, T + 2))
    a("v_mov_b32 v%d, 0xffff" % (T + 3))
    for q in range(8):
        kl = 8 * (q >> 1) + 2 * (q & 1)
        a("v_cmp_le_i32 s[38:39], %d, v%d" % (kl, T + 2))
        a("v_cmp_le_i32 s[40:41], %d, v%d" % (kl + 1, T + 2))
        a("v_cndmask_b32 v%d, 0, v%d, s[38:39]" % (MSK + q, T + 3))
        a("v_cndmask_b32 v%d, v%d, -1, s[40:41]" % (MSK + q, MSK + q))
    a("s_lshl_b32 s41, s32, 2")
    a("s_add_u32 s41, s41, s43")
    a("s_sub_i32 s41, 8, s41")
    a("s_lshl_b32 s35, s32, 3")
    a("s_lshl_b32 s36, s43, 1")
    a("s_add_u32 s35, s35, s36")
    a("s_mul_i32 s35, s35, 18432")
    a("s_lshl_b32 s58, s31, 10")
    a("s_lshl_b32 s36, s42, 9")
    a("s_add_u32 s58, s58, s36")
    a("s_add_u32 s58, s58, s35")
    a("s_lshr_b32 s59, s31, 1")
    a("s_lshl_b32 s59, s59, 8")
    a("s_and_b32 s36, s31, 1")
    a("s_lshl_b32 s36, s36, 3")
    a("s_add_u32 s59, s59, s36")
    a("s_lshl_b32 s36, s42, 2")
    a("s_add_u32 s59, s59, s36")
    a("s_add_u32 s59, s59, s35")
    a("s_add_u32 s59, s59, 16384")
    a("v_bfe_u32 v152, v0, 4, 1")
    a("v_mul_u32_u24 v152, 18432, v152")
    a("v_and_b32 v153, 15, v0")
    a("v_lshl_add_u32 v152, v153, 4, v152")
    a("v_lshrrev_b32 v153, 5, v0")
    a("v_lshl_add_u32 v153, v153, 8, v152")
    a("v_cmp_gt_u32 vcc, 32, v0")
    a("s_cmp_eq_u32 s42, 0")
    a("s_cselect_b64 s[54:55], vcc, 0")
    a("s_cselect_b64 s[56:57], 0, vcc")
    a("v_and_b32 v%d, 3, v0" % (T + 2))
    a("v_mul_u32_u24 v%d, 576, v%d" % (T + 2, T + 2))
    a("v_mov_b32 v%d, 0x3f803f80" % (T + 4))
    a("v_mov_b32 v%d, v%d" % (T + 5, T + 4))
    a("v_lshlrev_b32 v%d, 4, v0" % (T + 3))
    srd_off(a, 36, 8, L.WS_QKV, L.QKV_BYTES)
    srd_off(a, 24, 8, L.WS_O, 128 * 18432)
    a("s_add_u32 s40, s3, 2")
    a("s_cmp_lt_u32 s3, 4")
    a("s_cselect_b32 s40, s3, s40")
    out_setup(a, 40)
    a("s_lshr_b32 s35, s2, 6")
    a("s_lshl_b32 s35, s35, 4")
    a("s_add_u32 s35, s35, s3")
    a("s_cmp_eq_u32 s35, %d" % (3 * 16 + 6))
    a("s_cbranch_scc0 L_nq2")
    lds_spin(a, "L_sp_x6", vC, C_XS, T + 8, (1,), 8)
    qpoll(a, vC, "L_qp2", False, T + 8)
    a.label("L_nq2")
    lds_spin(a, "L_go1", vC, C_1, T, (8, 1), OPT["g1s"])
    stamp(a, 5)
    for j in range(8):
        a("s_mov_b32 m0, s%d" % (16 + j))
        a("s_nop 0")
        a("buffer_load_dwordx4 v%d, s[36:39], s%d offen %s lds" % (T + 3, 44 + j, OPT["kvl"]))
    a("ds_write_b64 v%d, %s offset:%d" % (T + 2, vr(T + 4, 2), ONES))
    a("s_cmp_lt_u32 s32, 2")
    a("s_cbranch_scc1 L_late")
    landed(a, 1, 0)
    stage_spin(a, "L_sA", 0)
    stamp(a, 6)
    for x in q_reads() + k_reads(0) + k_reads(1) + v_reads(0):
        a(x)
    a("s_waitcnt lgkmcnt(7)")
    a("v_cndmask_b32 v%d, 0, v%d, s[54:55]" % (QT, QT))
    a("v_cndmask_b32 v%d, 0, v%d, s[56:57]" % (QT + 1, QT + 1))
    for x in qk(0):
        a(x)
    lds_inc(a, vC, T, C_B)
    x_loads(a)
    attn_loop(a)
    a.label("L_check")
    stamp(a, 7)
    a("s_mov_b32 s46, %s" % f32(2.0 ** 60))
    a("s_mov_b32 s47, %s" % f32(2.0 ** -60))
    a("s_mov_b32 s48, 0x7f800000")
    a("s_nop 7")
    a("s_nop 0")
    a("v_rcp_f32 v%d, v%d" % (T, OO + 12))
    a("v_cmp_gt_f32 s[50:51], s46, v%d" % (OO + 12))
    a("v_cmp_lt_f32 vcc, s47, v%d" % (OO + 12))
    for k in range(6):
        a("v_add_f32 v%d, abs(v%d), abs(v%d)" % (T + 2 + k, OO + 2 * k, OO + 2 * k + 1))
    a("s_and_b64 s[50:51], s[50:51], vcc")
    a("v_pk_add_f32 %s, %s, %s" % (vr(T + 2, 2), vr(T + 2, 2), vr(T + 4, 2)))
    a("v_pk_add_f32 %s, %s, %s" % (vr(T + 2, 2), vr(T + 2, 2), vr(T + 6, 2)))
    a("v_add_f32 v%d, v%d, v%d" % (T + 2, T + 2, T + 3))
    a("v_cmp_gt_f32 vcc, s48, v%d" % (T + 2))
    a("s_and_b64 s[50:51], s[50:51], vcc")
    a("s_cmp_eq_u64 s[50:51], -1")
    a("s_cbranch_scc0 L_slow")
    a.label("L_fin")
    a("s_cmp_eq_u32 s42, 0")
    a("s_cbranch_scc1 L_fa")
    a("v_mov_b32 v%d, v%d" % (OO + 8, OO + 10))
    a("v_mov_b32 v%d, v%d" % (OO + 9, OO + 11))
    a.label("L_fa")
    for k in range(0, 10, 2):
        a("v_pk_mul_f32 %s, %s, %s op_sel_hi:[1,0]" % (vr(OO + k, 2), vr(OO + k, 2), vr(T, 2)))
    for q in range(5):
        a("v_cvt_pk_bf16_f32 v%d, v%d, v%d" % (T + 4 + q, OO + 2 * q, OO + 2 * q + 1))
    a("buffer_store_dwordx4 %s, v153, s[24:27], s58 offen sc1" % vr(T + 4, 4))
    a("s_mov_b32 exec_hi, 0")
    a("buffer_store_dword v%d, v152, s[24:27], s59 offen sc1" % (T + 8))
    a("s_mov_b32 exec_hi, -1")


def q_reads():
    return ["ds_read_b64 %s, v%d offset:%d" % (vr(QM, 2), vK, QB),
            "ds_read_b64 %s, v%d offset:%d" % (vr(QM + 2, 2), vK, QB + 8),
            "ds_read_b64 %s, v%d offset:%d" % (vr(QT, 2), vKt, QB)]


sKH, sPAIR, sTILE, sGATE, sSLOT, sOB, sXO = 6, 7, 13, 14, 15, 28, 29
A0, vXO, vRW, vCH, vSW, vSR, vL16, vPX, vPF = 156, 142, 140, 141, 143, 144, 162, 160, 161
GB = 154624


def out_setup(a, role):
    a("s_and_b32 s%d, s%d, 1" % (sKH, role))
    a("s_lshr_b32 s%d, s%d, 1" % (sPAIR, role))
    a("s_mul_i32 s%d, s52, 5" % sTILE)
    a("s_and_b32 s33, s%d, 7" % sTILE)
    a("s_sub_u32 s34, 8, s33")
    a("s_cmp_lt_u32 s33, 4")
    a("s_cselect_b32 s34, 0, s34")
    a("s_add_u32 s34, s34, s%d" % sPAIR)
    a("s_sub_u32 s35, s34, 5")
    a("s_cmp_ge_u32 s34, 5")
    a("s_cselect_b32 s34, s35, s34")
    a("s_add_u32 s%d, s%d, s34" % (sTILE, sTILE))
    a("s_lshl_b32 s98, s34, 6")
    a("s_mov_b32 s%d, 0x404" % sGATE)
    a("s_bitcmp1_b32 s%d, 2" % sTILE)
    if not OPT["allg"]:
        a("s_cselect_b32 s%d, s%d, 4" % (sGATE, sGATE))
    a("s_mov_b32 s%d, %d" % (sSLOT, PSLOT[0]))
    for p in range(1, 5):
        a("s_cmp_eq_u32 s%d, %d" % (sPAIR, p))
        a("s_cselect_b32 s%d, %d, s%d" % (sSLOT, PSLOT[p], sSLOT))
    a("s_mul_i32 s%d, s%d, 18432" % (sOB, sTILE))
    a("s_lshl_b32 s33, s53, 7")
    a("s_add_u32 s%d, s%d, s33" % (sXO, sOB))
    a("s_lshl_b32 s33, s%d, 6" % sKH)
    a("s_add_u32 s%d, s%d, s33" % (sXO, sXO))
    a("s_mul_i32 s33, s%d, 9216" % sKH)
    a("s_add_u32 s%d, s%d, s33" % (sOB, sOB))
    a("s_add_u32 s96, s%d, 4096" % sOB)
    a("s_add_u32 s97, s%d, 8192" % sOB)
    a("v_lshrrev_b32 v%d, 2, v0" % vRW)
    a("v_and_b32 v%d, 3, v0" % vCH)
    a("v_mul_u32_u24 v%d, 1152, v%d" % (vXO, vRW))
    a("v_lshl_add_u32 v%d, v%d, 4, v%d" % (vXO, vCH, vXO))
    a("v_lshrrev_b32 v146, 2, v0")
    a("v_bfe_u32 v147, v0, 3, 2")
    a("v_lshlrev_b32 v147, 1, v147")
    a("v_bfe_u32 v148, v0, 1, 1")
    a("v_xor_b32 v147, v147, v148")
    a("v_and_b32 v148, 1, v0")
    a("v_lshlrev_b32 v148, 3, v148")
    a("v_lshl_add_u32 v148, v146, 7, v148")
    a("v_lshl_add_u32 v148, v147, 4, v148")
    a("s_mul_i32 s33, s%d, %d" % (sKH, 9 * 4096))
    a("s_add_u32 s33, s33, %d" % WO)
    a("s_lshl_b32 s34, s%d, 6" % sKH)
    a("v_xor_b32 v148, s34, v148")
    for t in range(4):
        a("v_xor_b32 v%d, %d, v148" % (A0 + t, 32 * t))
        a("v_add_u32 v%d, s33, v%d" % (A0 + t, A0 + t))
    a("v_lshlrev_b32 v%d, 4, v0" % vL16)
    a("s_lshl_b32 s33, s%d, 11" % sKH)
    a("s_add_u32 s%d, s%d, s33" % (sSLOT, sSLOT))
    a("v_add_u32 v%d, s%d, v%d" % (vPX, sSLOT, vL16))
    a("s_lshl_b32 s33, s33, 1")
    a("s_sub_u32 s33, 2048, s33")
    a("v_add_u32 v164, s33, v%d" % vPX)
    a("s_lshl_b32 s33, s%d, 1" % sPAIR)
    a("s_add_u32 s33, s33, s%d" % sKH)
    a("s_lshl_b32 s33, s33, 2")
    a("s_add_u32 s33, s33, %d" % CTL)
    a("v_mov_b32 v%d, s33" % vPF)
    a("v_xor_b32 v165, 4, v%d" % vPF)
    a("v_and_b32 v%d, 15, v0" % vSW)
    a("v_mul_u32_u24 v%d, 80, v%d" % (vSW, vSW))
    a("v_lshrrev_b32 v146, 4, v0")
    a("v_lshlrev_b32 v146, 3, v146")
    a("v_add3_u32 v%d, v%d, v146, s%d" % (vSW, vSW, sSLOT))
    a("v_mul_u32_u24 v%d, 80, v%d" % (vSR, vRW))
    a("v_lshl_add_u32 v%d, v%d, 4, v%d" % (vSR, vCH, vSR))
    a("v_add_u32 v%d, s%d, v%d" % (vSR, sSLOT, vSR))
    a("s_add_u32 s98, s98, %d" % GB)
    a("v_lshl_add_u32 v145, v%d, 2, s98" % vRW)
    a("s_cmp_lt_u32 s3, 4")
    a("s_cselect_b32 s33, 1, 0x100")
    a("v_mov_b32 v163, s33")


def x_loads(a):
    srd(a, 20, 4, 2048 * 1152)
    a("buffer_load_dwordx4 %s, v%d, s[20:23], s%d offen" % (vr(XR, 4), vXO, sXO))


def out_phase(a):
    WFR, OF, ACC, PX = (20, 36, 100), 64, (52, 56, 60, 116), (146, 120)
    a("s_cmp_ge_u32 s52, 26")
    a("s_cbranch_scc1 L_end")
    if not OPT["gissue"]:
        a("s_waitcnt vmcnt(0)")
    stamp(a, 8)
    a("s_mov_b64 exec, 1")
    a("ds_add_u32 v%d, v163 offset:%d" % (vC, C_O))
    a("s_mov_b64 exec, -1")
    a.label("L_out")

    def omx():
        for j in range(1):
            for q in range(4):
                xv = XR + 4 * j + q
                d = PX[j] + 2 * q
                a("v_lshlrev_b32 v%d, 16, v%d" % (d, xv))
                a("v_and_b32 v%d, 0xffff0000, v%d" % (d + 1, xv))
                a("v_pk_mul_f32 %s, %s, %s op_sel:[0,1] op_sel_hi:[1,1]" % (vr(d, 2), vr(d, 2), vr(GR + 2 * j, 2)))

    def reads(sl):
        st = WFR[sl % 3]
        return ["ds_read_b64_tr_b16 %s, v%d offset:%d" % (vr(st + 4 * t + 2 * sec, 2), A0 + t, (32 * sl + 16 * sec) * 128)
                for t in range(4) for sec in range(2)]

    lds_spin(a, "L_wo", vC, C_WO, 10, (2,), 0)
    for x in reads(0) + reads(1):
        a(x)
    a("s_mov_b32 s60, 0x200000")
    a.label("L_go2")
    a("ds_read_b64 v[10:11], v%d offset:%d" % (vC, C_O))
    a("s_waitcnt lgkmcnt(0)")
    a("v_readfirstlane_b32 s61, v10")
    a("v_readfirstlane_b32 s62, v11")
    a("s_and_b32 s61, s61, s%d" % sGATE)
    a("s_cmp_eq_u32 s61, s%d" % sGATE)
    a("s_cselect_b32 s62, s62, 0")
    a("s_cmp_eq_u32 s62, 1")
    a("s_cbranch_scc1 L_go2_d")
    a("s_sub_u32 s60, s60, 1")
    a("s_cbranch_scc0 L_go2")
    a.label("L_go2_d")
    if OPT["gissue"] == 2:
        a("s_cmp_eq_u32 s60, 0x200000")
        a("s_cbranch_scc1 L_go2_e")
        a("s_sleep %d" % OPT["cdel"])
        a.label("L_go2_e")
        a("s_waitcnt vmcnt(0)")
    elif OPT["cdel"]:
        a("s_sleep %d" % OPT["cdel"])
    stamp(a, 9)
    LAO = OPT["lao"]

    def oload(s):
        a("buffer_load_dwordx4 %s, v%d, s[24:27], s%d offen offset:%d sc1" % (vr(OF + 4 * s, 4), vL16, (sOB, 96, 97)[s // 4], 1024 * (s % 4)))

    def ocheck(sl):
        b = OF + 4 * sl
        if sl < 7:
            a("v_cmp_eq_u32 vcc, -1, v%d" % b)
        else:
            a("v_max3_u32 v10, v%d, v%d, v%d" % (b, b + 1, b + 2))
            a("v_max_u32 v10, v10, v%d" % (b + 3))
            a("v_cmp_eq_u32 vcc, -1, v10")
        a("s_nop 1")

    def oretry():
        for sl in range(9):
            a.label("L_or%d" % sl)
            a("s_sub_u32 s60, s60, 1")
            a("s_cbranch_scc1 L_ok%d" % sl)
            a("s_waitcnt vmcnt(0)")
            for s in range(sl, min(sl + LAO, 9)):
                oload(s)
            a("s_waitcnt vmcnt(%d)" % min(LAO - 1, 8 - sl))
            a("s_branch L_oc%d" % sl)

    RETRY.append(oretry)
    a("s_mov_b32 s60, 0x8000")
    for s in range(LAO):
        oload(s)
    a("ds_read_b32 v%d, v145" % GR)
    a("ds_read_b32 v10, v%d offset:%d" % (vC, C_IDX))
    srd(a, 20, 10, 2048 * 1152)
    a("s_waitcnt lgkmcnt(0) vmcnt(%d)" % LAO)
    a("v_readfirstlane_b32 s12, v10")
    a("v_sub_f32 v%d, 1.0, v%d" % (GR + 1, GR))
    bf16_round(a, GR + 1, GR + 1)
    omx()
    for sl in range(9):
        rd = reads(sl + 2) if sl < 7 else []
        a("s_waitcnt vmcnt(%d) lgkmcnt(%d)" % (min(LAO - 1, 8 - sl), 8 if sl < 8 else 0))
        a.label("L_oc%d" % sl)
        ocheck(sl)
        a("s_cbranch_vccnz L_or%d" % sl)
        a.label("L_ok%d" % sl)
        for t in range(4):
            d = vr(ACC[t], 4)
            a("v_mfma_f32_16x16x32_bf16 %s, %s, %s, %s" % (d, vr(WFR[sl % 3] + 4 * t, 4), vr(OF + 4 * sl, 4), "0" if sl == 0 else d))
            if t == 0 and sl + LAO < 9:
                oload(sl + LAO)
            for x in rd[2 * t:2 * t + 2]:
                a(x)
    stamp(a, 10)
    if OPT["stamp"]:
        a("s_sub_u32 s94, 0x8000, s60")
        a("s_mul_i32 s94, s94, 100")
        a("s_add_u32 s94, s94, s66")
        a("s_addc_u32 s95, s67, 0")
    a("v_mov_b32 v10, 1")
    a("ds_write_b128 v164, %s" % vr(ACC[2], 4))
    a("ds_write_b128 v164, %s offset:1024" % vr(ACC[3], 4))
    a("ds_write_b32 v165, v10 offset:%d" % C_PART)
    a("s_lshr_b32 s46, s12, 4")
    a("s_cmp_eq_u32 s46, s%d" % sTILE)
    a("s_cbranch_scc0 L_noy")
    lds_spin(a, "L_yw", vC, C_YRDY, 10, (1,))
    a("s_lshl_b32 s46, s%d, 7" % sKH)
    a("s_add_u32 s46, s46, %d" % YB)
    a("v_lshl_add_u32 v10, v%d, 5, s46" % vCH)
    a("ds_read_b128 v[12:15], v10")
    a("ds_read_b128 v[16:19], v10 offset:16")
    a("s_and_b32 s46, s12, 15")
    a("v_cmp_eq_u32 s[50:51], s46, v%d" % vRW)
    a("s_waitcnt lgkmcnt(0)")
    for q in range(4):
        xv = XR + q
        a("v_lshlrev_b32 v10, 16, v%d" % xv)
        a("v_and_b32 v11, 0xffff0000, v%d" % xv)
        a("v_add_f32 v10, v10, v%d" % (12 + 2 * q))
        a("v_add_f32 v11, v11, v%d" % (13 + 2 * q))
        a("v_cvt_pk_bf16_f32 v10, v10, v11")
        a("v_cndmask_b32 v%d, v%d, v10, s[50:51]" % (xv, xv))
    omx()
    a.label("L_noy")
    lds_spin(a, "L_pw", vPF, C_PART, 10, (1,), 0)
    stamp(a, 11)
    for t in range(2):
        a("ds_read_b128 %s, v%d offset:%d" % (vr(20 + 4 * t, 4), vPX, 1024 * t))
    a("s_waitcnt lgkmcnt(0)")
    for t in range(2):
        b = ACC[t]
        a("v_pk_add_f32 %s, %s, %s" % (vr(b, 2), vr(b, 2), vr(20 + 4 * t, 2)))
        a("v_pk_add_f32 %s, %s, %s" % (vr(b + 2, 2), vr(b + 2, 2), vr(22 + 4 * t, 2)))
        a("v_cvt_pk_bf16_f32 v%d, v%d, v%d" % (40 + 2 * t, b, b + 1))
        a("v_cvt_pk_bf16_f32 v%d, v%d, v%d" % (41 + 2 * t, b + 2, b + 3))
        a("ds_write_b64 v%d, %s offset:%d" % (vSW, vr(40 + 2 * t, 2), 32 * t))
    a("ds_read_b128 v[20:23], v%d" % vSR)
    a("s_waitcnt lgkmcnt(0)")
    for q in range(4):
        d = PX[0] + 2 * q
        a("v_lshlrev_b32 v%d, 16, v%d" % (10 + 2 * q, 20 + q))
        a("v_and_b32 v%d, 0xffff0000, v%d" % (11 + 2 * q, 20 + q))
        a("v_pk_fma_f32 %s, %s, %s, %s op_sel_hi:[1,0,1]" % (vr(d, 2), vr(10 + 2 * q, 2), vr(GR, 2), vr(d, 2)))
    for q in range(4):
        d = PX[0] + 2 * q
        a("v_cvt_pk_bf16_f32 v%d, v%d, v%d" % (32 + q, d, d + 1))
    a("buffer_store_dwordx4 v[32:35], v%d, s[20:23], s%d offen %s" % (vXO, sXO, OPT["ost"]))
    if OPT["stamp"]:
        stamp(a, 12)
        a("s_waitcnt vmcnt(0)")
        stamp(a, 13)
        stamp_end(a, OPT["stw"], 0)
        stamp_end(a, 10, 2)
    a("s_endpgm")


RETRY = []
GLATE = []


def late_and_slow(a):
    RETRY[0]()
    a.label("L_late")
    a("s_mul_i32 s50, s41, 2304")
    a("v_add_u32 v%d, s50, v%d" % (T + 8, vK))
    a("v_add_u32 v%d, s50, v%d" % (T + 9, vKt))
    a("v_mul_u32_u24 v%d, s41, v%d" % (T + 2, vStep))
    a("v_add_u32 v%d, v%d, v%d" % (vV, vV, T + 2))
    for r in list(range(OO, OO + 16)) + list(range(VF[0], VF[0] + 32)):
        a("v_mov_b32 v%d, 0" % r)
    landed(a, 1, 0)
    stage_spin(a, "L_lt", 0)
    for x in q_reads():
        a(x)
    a("s_waitcnt lgkmcnt(0)")
    lds_inc(a, vC, T, C_B)
    x_loads(a)
    a("s_bitcmp1_b32 s41, 0")
    a("s_cbranch_scc1 L_late1")
    for par in range(2):
        if par:
            a.label("L_late1")
        for x in k_reads(par, T + 8, T + 9, 0):
            a(x)
        for x in k_reads(par + 1, T + 8, T + 9, 0):
            a(x.replace("offset:8", "offset:2312").replace("offset:0", "offset:2304"))
        for x in v_reads(par):
            a(x)
        a("s_waitcnt lgkmcnt(7)")
        a("v_cndmask_b32 v%d, 0, v%d, s[54:55]" % (QT, QT))
        a("v_cndmask_b32 v%d, 0, v%d, s[56:57]" % (QT + 1, QT + 1))
        for x in qk(par):
            a(x)
        a("s_nop 7")
        a("s_nop 3")
        for i0 in range(2 - par, 9, 2):
            a("s_cmp_eq_u32 s41, %d" % i0)
            a("s_cbranch_scc1 L_it%d" % i0)
        a("s_branch L_it%d" % (8 - par))

    a.label("L_slow")
    vKs, vKts, vM, vD0, vNeg = T + 8, T + 9, T + 10, T + 11, T + 12
    a("v_and_b32 v%d, 31, v0" % T)
    a("v_lshrrev_b32 v%d, 5, v0" % (T + 1))
    a("v_lshlrev_b32 v%d, 2, v%d" % (vD0, T + 1))
    a("v_sub_u32 v%d, v%d, v%d" % (vD0, vD0, T))
    a("v_mov_b32 v%d, 0xff800000" % vNeg)
    a("v_mov_b32 v%d, v%d" % (vM, vNeg))
    a("s_max_i32 s50, s41, 0")
    a("s_sub_u32 s51, 8, s50")
    a("v_mul_u32_u24 v%d, s51, v%d" % (T, vStep))
    a("v_sub_u32 v%d, v%d, v%d" % (vV, vV, T))
    a("s_mul_i32 s51, s50, 2304")
    for r in range(16):
        a("v_mov_b32 v%d, 0" % (OO + r))
    for ps in range(2):
        lab = "L_sp%d" % ps
        a("v_add_u32 v%d, s51, v%d" % (vKs, vK))
        a("v_add_u32 v%d, s51, v%d" % (vKts, vKt))
        a("s_mov_b32 s46, s50")
        a.label(lab)
        for x in k_reads(0, vKs, vKts):
            a(x)
        if ps == 1:
            for x in v_reads(0):
                a(x)
        a("s_mov_b32 s47, -31")
        a("s_mov_b32 s48, 62")
        a("s_cmp_eq_u32 s46, 0")
        a("s_cselect_b32 s47, 1, s47")
        a("s_cselect_b32 s48, 30, s48")
        a("s_cmp_eq_u32 s46, 8")
        a("s_cselect_b32 s48, 31, s48")
        a("s_waitcnt lgkmcnt(0)")
        for x in qk(0):
            a(x)
        a("v_subrev_u32 v%d, s47, v%d" % (T, vD0))
        for r in range(16):
            a("v_add_u32 v%d, %d, v%d" % (T + 1, 8 * (r >> 2) + (r & 3), T))
            a("v_cmp_ge_u32 vcc, s48, v%d" % (T + 1))
            a("v_cndmask_b32 v%d, v%d, v%d, vcc" % (SS[0] + r, vNeg, SS[0] + r))
            if ps == 0:
                a("v_max_f32 v%d, v%d, v%d" % (vM, vM, SS[0] + r))
            else:
                a("v_sub_f32 v%d, v%d, v%d" % (SS[0] + r, SS[0] + r, vM))
                a("v_exp_f32 v%d, v%d" % (SS[0] + r, SS[0] + r))
        if ps == 1:
            for q in range(8):
                a("v_cvt_pk_bf16_f32 v%d, v%d, v%d" % (PP[0] + q, SS[0] + 2 * q, SS[0] + 2 * q + 1))
            for x in pv(0, False):
                a(x)
            a("v_add_u32 v%d, v%d, v%d" % (vV, vV, vStep))
        a("v_add_u32 v%d, 2304, v%d" % (vKs, vKs))
        a("v_add_u32 v%d, 2304, v%d" % (vKts, vKts))
        a("s_add_u32 s46, s46, 1")
        a("s_cmp_lt_u32 s46, 9")
        a("s_nop 7")
        a("s_nop 7")
        a("s_cbranch_scc1 %s" % lab)
        if ps == 0:
            a("v_mov_b32 v%d, v%d" % (T, vM))
            a("v_permlane32_swap_b32 v%d, v%d" % (T, vM))
            a("v_max_f32 v%d, v%d, v%d" % (vM, vM, T))
    a("v_rcp_f32 v%d, v%d" % (T, OO + 12))
    a("s_nop 1")
    a("s_branch L_fin")


def helpers(a):
    a.label("L_help")
    a("s_cmp_eq_u32 s3, 9")
    a("s_cbranch_scc0 L_help1")
    code_touch(a)
    a.label("L_help1")
    a("v_mov_b32 v3, %d" % CTL)
    for k in range(4):
        a("v_mov_b32 v%d, 0" % (4 + k))
    a("v_lshlrev_b32 v1, 4, v0")
    a("v_add_u32 v2, v1, v3")
    a("s_mov_b64 exec, 0xff")
    a("ds_write_b128 v2, v[4:7]")
    a("s_mov_b64 exec, -1")
    a("s_waitcnt lgkmcnt(0)")
    load_tag(a)
    a("s_barrier")
    a("s_barrier")
    a("s_waitcnt lgkmcnt(0)")
    make_tag(a)
    a.label("L_help2")
    decode2(a)
    a("s_cmp_eq_u32 s3, 8")
    a("s_cbranch_scc1 L_down")
    a("v_lshrrev_b32 v1, 5, v0")
    a("v_bfe_u32 v2, v0, 3, 2")
    a("v_lshrrev_b32 v10, 4, v0")
    a("v_lshlrev_b32 v10, 1, v10")
    a("v_and_b32 v11, 7, v0")
    a("v_xor_b32 v10, v10, v11")
    a("v_lshl_add_u32 v4, v1, 2, v2")
    a("v_mul_u32_u24 v4, 1152, v4")
    a("v_lshl_add_u32 v4, v10, 4, v4")
    a("v_mul_u32_u24 v5, 72, v1")
    a("v_add_u32 v5, v5, v2")
    a("v_mul_u32_u24 v5, 1152, v5")
    a("v_lshl_add_u32 v5, v10, 4, v5")
    a("s_sub_u32 s36, s3, 9")
    a("s_mul_i32 s37, s36, %d" % (20 * 1152))
    a("s_mul_i32 s43, s36, %d" % (144 * 1152))
    a("s_lshl_b32 s38, s36, 10")
    a("s_add_u32 s38, s38, %d" % WO)
    a("s_lshl_b32 s39, s53, 7")
    a("s_sub_u32 s42, %d, s39" % (576 * 1152))
    srd_off(a, 16, 28, "s39", "s42")
    srd_off(a, 24, 8, L.WS_O, 128 * 18432)
    a("v_mov_b32 v%d, %d" % (vC, CTL))
    a("s_sub_u32 s40, s3, 5")
    out_setup(a, 40)
    a("s_setprio %d" % OPT["pr3"])
    a("s_cmp_ge_u32 s2, 192")
    a("s_cbranch_scc1 L_wo_go")
    for k in range(9):
        a("s_barrier")
    a.label("L_wo_go")
    a("s_cmp_eq_u32 s3, 11")
    a("s_cbranch_scc1 L_ctl")
    a("s_cmp_ge_u32 s52, 26")
    a("s_cbranch_scc1 L_end")
    if OPT["woe"]:
        a("s_cmp_ge_u32 s2, 192")
        a("s_cbranch_scc1 L_wo_e_d")
        lds_spin(a, "L_wo_e", 3, C_FI, 10, (8,), 0)
    stamp(a, 5)
    for m in range(36):
        if m == OPT["woe"]:
            stage_spin(a, "L_wo_w", 0, 3, 10, 2)
        st, sec = m >> 1, m & 1
        a("s_add_u32 m0, s38, %d" % (2048 * m))
        if st < 16:
            a("s_add_u32 s40, s37, %d" % ((36 * st + 8 * sec) * 1152))
            a("buffer_load_dwordx4 v4, s[16:19], s40 offen lds")
        else:
            a("s_add_u32 s40, s43, %d" % ((288 * (st - 16) + 36 * sec + 16) * 1152))
            a("buffer_load_dwordx4 v5, s[16:19], s40 offen lds")
        if OPT["wth"] and m >= OPT["wth"] - 1:
            a("s_waitcnt vmcnt(%d)" % (OPT["wth"] - 1))
    x_loads(a)
    a("s_waitcnt vmcnt(1)")
    stamp(a, 6)
    lds_inc(a, 3, 4, C_WO)
    a("s_setprio 0")
    a("s_branch L_out")
    a.label("L_ctl")
    a("v_lshlrev_b32 v8, 7, v0")
    a("v_add_u32 v9, %d, v8" % (L.WS_FLAG + F_PA * 128))
    a("s_mul_i32 s46, s52, 5")
    a("s_lshr_b32 s46, s46, 3")
    a("s_min_u32 s46, s46, 14")
    a("s_lshl_b32 s46, s46, 11")
    a("s_add_u32 s46, s46, %d" % (L.WS_FLAG + F_O * 128))
    a("v_add_u32 v8, s46, v8")
    a("s_lshl_b32 s46, s32, 4")
    a("s_add_u32 s46, s46, s31")
    a("s_lshl_b32 s46, s46, 7")
    a("s_add_u32 s46, s46, %d" % (L.WS_FLAG + F_O * 128))
    a("v_mov_b32 v14, s46")
    a("v_mov_b32 v15, s%d" % TAG)
    a("s_cmp_ge_u32 s2, 192")
    a("s_cbranch_scc1 L_ct_0")
    qpoll(a, 3, "L_qp1", True)
    a.label("L_ct_0")
    AUXLATE = OPT["auxp"]
    def aux():
        flag_poll(a, "L_pap", 9, 4, "s%d" % TAG, 64, 8, 3)
        a("v_mov_b32 v10, v5")
        a("v_mov_b32 v11, v6")
        a("v_mov_b32 v4, 1")
        a("ds_write_b64 v3, v[10:11] offset:%d" % C_IDX)
        a("ds_write_b32 v3, v4 offset:%d" % C_PA)
        srd_off(a, 16, 8, L.WS_G, 8192)
        a("s_mul_i32 s40, s52, 320")
        a("v_lshlrev_b32 v4, 2, v0")
        a("buffer_load_dword v5, v4, s[16:19], s40 offen sc1")
        a("buffer_load_dword v6, v4, s[16:19], s40 offen offset:256 sc1")
        a("v_add_u32 v4, %d, v4" % GB)
        GLATE.append(1)
        stamp(a, 5)

    if not AUXLATE:
        aux()
    a("v_bfe_u32 v20, v0, 4, 1")
    a("v_mul_u32_u24 v20, 18432, v20")
    a("v_and_b32 v21, 15, v0")
    a("v_lshl_add_u32 v20, v21, 4, v20")
    a("v_lshrrev_b32 v21, 5, v0")
    a("v_lshl_add_u32 v22, v21, 2, v20")
    a("v_lshl_add_u32 v21, v21, 8, v20")
    for k in range(4):
        a("v_mov_b32 v%d, -1" % (24 + k))
    a("s_mul_i32 s54, s32, %d" % (8 * 18432))
    a("s_lshl_b32 s55, s31, 10")
    a("s_add_u32 s55, s55, s54")
    a("s_lshr_b32 s56, s31, 1")
    a("s_lshl_b32 s56, s56, 8")
    a("s_and_b32 s57, s31, 1")
    a("s_lshl_b32 s57, s57, 3")
    a("s_add_u32 s56, s56, s57")
    a("s_add_u32 s56, s56, s54")
    a("s_add_u32 s56, s56, 16384")
    stage_spin(a, "L_ct_p", 0, 3, 10, 0)
    for j in range(4):
        a("buffer_store_dword v24, v22, s[24:27], s56 offen sc1")
        a("buffer_store_dwordx4 v[24:27], v21, s[24:27], s55 offen sc1")
        a("buffer_store_dwordx4 v[24:27], v21, s[24:27], s55 offen offset:512 sc1")
        a("s_add_u32 s55, s55, %d" % (2 * 18432))
        a("s_add_u32 s56, s56, %d" % (2 * 18432))
    a("v_mov_b32 v4, 1")
    a("s_waitcnt vmcnt(0)")
    a("ds_write_b32 v3, v4 offset:%d" % C_C)
    a("s_mov_b64 exec, 1")
    a("global_store_dword v14, v15, s[8:9] sc1")
    a("s_mov_b64 exec, -1")
    stamp(a, 6)
    lds_spin(a, "L_ct_q", 3, C_B, 10, (8,), 1)
    if AUXLATE:
        aux()
    else:
        a("s_sleep %d" % OPT["slp3"])
    flag_poll(a, "L_op", 8, 12, "s%d" % TAG, 32, 2)
    a("ds_write_b32 v4, v5")
    a("ds_write_b32 v4, v6 offset:256")
    lds_inc(a, 3, 10, C_GO2)
    stamp(a, 7)
    stamp_end(a, 11 if OPT["st11"] else 99, 3)
    a("ds_read_b64 v[10:11], v3 offset:%d" % C_IDX)
    a("s_waitcnt lgkmcnt(0)")
    a("v_readfirstlane_b32 s12, v10")
    a("v_readfirstlane_b32 s13, v11")
    a("s_mul_i32 s46, s52, 80")
    a("s_sub_u32 s46, s12, s46")
    a("s_cmp_lt_u32 s46, 80")
    a("s_cbranch_scc0 L_end")
    a("v_lshlrev_b32 v4, 7, v0")
    a("v_add_u32 v4, %d, v4" % (L.WS_FLAG + F_Y * 128))
    srd_off(a, 16, 8, L.WS_YP, 16 * 2304)
    a("v_lshrrev_b32 v6, 4, v0")
    a("v_mul_u32_u24 v6, 2304, v6")
    a("v_and_b32 v7, 15, v0")
    a("v_lshlrev_b32 v7, 4, v7")
    a("v_add_u32 v6, v6, v7")
    a("v_add_u32 v7, %d, v7" % YB)
    a("s_lshl_b32 s40, s53, 8")
    flag_poll(a, "L_yp", 4, 5, "12", 16, 2)
    for i in range(4):
        a("buffer_load_dwordx4 %s, v6, s[16:19], s40 offen sc1" % vr(8 + 4 * i, 4))
        a("s_add_u32 s40, s40, %d" % (4 * 2304))
    a("s_waitcnt vmcnt(0)")
    for i in range(1, 4):
        a("v_pk_add_f32 v[8:9], v[8:9], %s" % vr(8 + 4 * i, 2))
        a("v_pk_add_f32 v[10:11], v[10:11], %s" % vr(10 + 4 * i, 2))
    for k in range(4):
        a("v_mov_b32 v20, v%d" % (8 + k))
        a("v_permlane32_swap_b32 v20, v%d" % (8 + k))
        a("v_add_f32 v%d, v%d, v20" % (8 + k, 8 + k))
        a("v_mov_b32 v20, v%d" % (8 + k))
        a("v_permlane16_swap_b32 v20, v%d" % (8 + k))
        a("v_add_f32 v%d, v%d, v20" % (8 + k, 8 + k))
        bf16_round(a, 8 + k, 8 + k)
        a("v_mul_f32 v%d, s13, v%d" % (8 + k, 8 + k))
        bf16_round(a, 8 + k, 8 + k)
    a("v_mov_b32 v12, 1")
    a("ds_write_b128 v7, v[8:11]")
    a("ds_write_b32 v3, v12 offset:%d" % C_YRDY)
    a("s_cmp_eq_u32 s53, 0")
    a("s_cbranch_scc0 L_end")
    a("v_mov_b32 v4, %d" % L.WS_EPOCH)
    a("v_mov_b32 v5, s%d" % TAG)
    a("s_mov_b64 exec, 1")
    a("global_store_dword v4, v5, s[8:9]")
    a("s_endpgm")

    a.label("L_down")
    a("s_cmp_ge_u32 s2, 192")
    a("s_cbranch_scc1 L_end")
    DW, DA = 20, 128
    a("v_lshrrev_b32 v2, 3, v0")
    a("v_and_b32 v10, 7, v0")
    a("v_mul_u32_u24 v16, 1152, v2")
    a("v_lshl_add_u32 v16, v10, 4, v16")
    a("s_mul_i32 s36, s2, 24")
    a("v_mul_u32_u24 v12, %d, v10" % (4608 * 16))
    a("v_add_u32 v11, s36, v2")
    a("v_lshl_add_u32 v17, v11, 4, v12")
    a("v_cmp_gt_u32 s[56:57], 7, v10")
    a("s_mul_i32 s37, s2, %d" % (24 * 1152))
    a("v_and_b32 v1, 1, v0")
    a("v_lshlrev_b32 v1, 4, v1")
    sel_masks(a, 44, 11)
    a("v_lshrrev_b32 v11, 5, v0")
    a("v_bfe_u32 v12, v0, 3, 1")
    a("v_cmp_eq_u32 s[52:53], v11, v12")
    a("v_mul_u32_u24 v12, 2304, v12")
    a("v_bfe_u32 v11, v0, 4, 1")
    a("v_lshl_add_u32 v12, v11, 7, v12")
    a("v_lshl_add_u32 v12, v10, 2, v12")
    a("v_add_u32 v164, %d, v12" % HP)
    a("v_lshlrev_b32 v165, 2, v0")
    a("v_add_u32 v166, %d, v165" % HP)
    a("s_and_b32 s38, s2, 15")
    a("s_mul_i32 s39, s38, 2304")
    a("s_add_u32 s39, s39, %d" % L.WS_YP)
    a("v_add_u32 v165, s39, v165")
    a("s_lshl_b32 s38, s38, 7")
    a("s_add_u32 s38, s38, %d" % (L.WS_FLAG + F_Y * 128))
    srd_off(a, 16, 14, "s37", 24 * 1152)
    srd_off(a, 20, 8, L.WS_PA, 7 * 4608 * 16)
    def dloads(ts=(0, 1, 2)):
        for t in (() if OPT["nodown"] else ts):
            a("s_movk_i32 s40, %d" % (9216 * t))
            for cg in range(9):
                a("buffer_load_dwordx4 %s, v16, s[16:19], s40 offen offset:%d %s" % (vr(DW + 4 * (9 * t + cg), 4), 128 * cg, "" if OPT["dtouch"] else "nt"))

    for k in range(2, 11):
        if OPT["dsplit"]:
            if k in (8, 9, 10):
                dloads((k - 8,))
        elif k == OPT["dpos"]:
            dloads()
        a("s_barrier")
    if OPT["dpos"] == -1:
        a("s_setprio 3")
        stage_spin(a, "L_dn_w2", 0, 3, 10, 0)
        dloads()
    elif OPT["dpos"] == -2:
        a("s_setprio 3")
        lds_spin(a, "L_dn_w2", 3, C_WO, 10, (2,), 2)
        dloads()
    elif OPT["dpos"] == -3:
        a("s_setprio 3")
        lds_spin(a, "L_dn_w2", 3, C_1, 10, (8, 1), 0)
        a("s_sleep 8")
        dloads()
    elif OPT["w8e"] == 2:
        lds_spin(a, "L_dn_w2", 3, C_1, 10, (8, 1), 2)
        a("s_sleep 6")
    elif OPT["w8e"]:
        lds_spin(a, "L_dn_w2", 3, C_1, 10, (8,), 2)
    else:
        stage_spin(a, "L_dn_w2", 0, 3, 10, 2)
    stamp(a, 5)
    a("s_setprio %d" % OPT["pr1"])
    a("s_mov_b32 s60, 0x40000")
    a.label("L_dn_pa")
    a("buffer_load_dwordx3 v[4:6], v17, s[20:23], 0 offen sc1")
    a("buffer_load_dwordx3 v[8:10], v17, s[20:23], 0 offen offset:128 sc1")
    a("buffer_load_dwordx3 v[160:162], v17, s[20:23], 0 offen offset:256 sc1")
    a("s_waitcnt vmcnt(0)")
    a("v_cmp_ne_u32 vcc, s%d, v6" % TAG)
    a("v_cmp_ne_u32 s[40:41], s%d, v10" % TAG)
    a("v_cmp_ne_u32 s[42:43], s%d, v162" % TAG)
    a("s_or_b64 vcc, vcc, s[40:41]")
    a("s_or_b64 vcc, vcc, s[42:43]")
    a("s_and_b64 vcc, vcc, s[56:57]")
    a("s_cmp_eq_u64 vcc, 0")
    a("s_cbranch_scc1 L_dn_pb")
    a("s_sleep 8")
    a("s_sub_u32 s60, s60, 1")
    a("s_cbranch_scc0 L_dn_pa")
    a.label("L_dn_pb")
    stamp(a, 8)
    a("v_mov_b32 v6, v8")
    a("v_mov_b32 v7, v9")
    a("v_mov_b32 v8, v160")
    a("v_mov_b32 v9, v161")
    sum8(a, (4, 5, 6, 7, 8, 9))
    for t in range(3):
        g, u = 4 + 2 * t, 5 + 2 * t
        bf16_round(a, g, g)
        bf16_round(a, u, u)
        sigmoid(a, 10, g)
        a("v_mul_f32 v%d, v%d, v10" % (g, g))
        bf16_round(a, g, g)
        a("v_mul_f32 v%d, v%d, v%d" % (g, g, u))
        a("v_cvt_pk_bf16_f32 v%d, v%d, v%d" % (g, g, g))
        a("v_and_b32 v%d, 0xffff, v%d" % (g, g))
        a("v_lshlrev_b32 v%d, v1, v%d" % (g, g))
    for t in range(3):
        selector(a, 12, 4 + 2 * t, 44)
        for cg in range(9):
            d = vr(DA + 4 * cg, 4)
            a("v_mfma_f32_16x16x32_bf16 %s, %s, v[12:15], %s" % (d, vr(DW + 4 * (9 * t + cg), 4), "0" if t == 0 else d))
    a("s_mov_b64 exec, s[52:53]")
    for cg in range(9):
        for r in range(4):
            a("ds_write_b32 v164, v%d offset:%d" % (DA + 4 * cg + r, 256 * cg + 32 * r))
    a("s_mov_b64 exec, -1")
    for cg in range(9):
        a("ds_read2st64_b32 %s, v166 offset0:%d offset1:%d" % (vr(20 + 2 * cg, 2), cg, cg + 9))
    if OPT["atw"]:
        lds_spin(a, "L_dn_at", 3, C_WO, 10, (2,), 2)
    else:
        stage_spin(a, "L_dn_at", 0, 3, 10, 2)
    lds_spin(a, "L_dn_ax", 3, C_PA, 10, (1,), 1)
    for cg in range(9):
        a("v_add_f32 v%d, v%d, v%d" % (20 + 2 * cg, 20 + 2 * cg, 21 + 2 * cg))
        if not OPT["noat"]:
            a("global_atomic_add_f32 v165, v%d, s[8:9] offset:%d" % (20 + 2 * cg, 256 * cg))
    a("v_mov_b32 v4, s38")
    a("v_mov_b32 v5, 1")
    a("s_waitcnt vmcnt(0)")
    stamp(a, 7)
    a("s_mov_b64 exec, 1")
    a("global_atomic_add v4, v5, s[8:9] sc1")
    stamp_end(a, 8, 1)


def kf(a):
    a.label(NAME)
    a("s_cmp_ge_u32 s2, 256")
    a("s_cbranch_scc1 L_end")
    stamp_init(a)
    stamp(a, 0)
    a("s_load_dwordx4 s[4:7], s[0:1], 0")
    a("s_load_dwordx2 s[8:9], s[0:1], 88")
    a("s_load_dwordx2 s[10:11], s[0:1], 72")
    a("s_load_dwordx2 s[14:15], s[0:1], 56")
    a("s_load_dwordx2 s[28:29], s[0:1], 16")
    a("v_lshrrev_b32 v1, 6, v0")
    a("v_and_b32 v0, 63, v0")
    a("v_readfirstlane_b32 s3, v1")
    a("s_and_b32 s30, s2, 3")
    a("s_bfe_u32 s31, s2, 0x10002")
    a("s_lshr_b32 s32, s2, 3")
    a("s_cmp_ge_u32 s32, 24")
    a("s_cbranch_scc1 L_sp")
    a("s_cmp_ge_u32 s3, 8")
    a("s_cbranch_scc1 L_help")
    gemm_phase(a)
    attention_phase(a)
    out_phase(a)
    late_and_slow(a)
    spare_phase(a)
    helpers(a)
    a.label("L_end")
    a("s_endpgm")
```

```python
from asmdsl import vr, sr
import layout as L
from common import *
from k2 import (KB, VB, QB, ONES, vK, vKt, vV, vStep, QM, QT, MSK, KF, VF, PP, SS, OO, T,
                k_reads, v_reads, qk, pv)

NAME = "gated_mix__sliding_block__moe_arch_mod__prompt_kernel"
SLOT = 34816
IMG = SLOT
WO = 66560
CTL = 149568
YB = 149696
HP = 150016
YT = 154624
XS = 156672
KF_LDS = 162304
PSLOT = (QB, QB + 4096, 140288, 144384, 158208)
KF_VGPR = 168
PART = 0
STG = 20480
XR, GR = 128, 136
vC = 154
TAG = 65
C_O, C_GO2, C_A, C_WO, C_PART, C_YRDY, C_B, C_1, C_GO1, C_C, C_PA, C_IDX, C_RSEL = 0, 4, 8, 12, 88, 32, 36, 40, 44, 48, 52, 56, 60
C_KMAX, C_KCNT, C_XS, C_GD, C_RED, C_RED2, C_FI = 64, 68, 72, 76, 80, 84, 16
F_Q, F_O, F_PA, F_Y = 0, 192, 448, 512


def lds_spin(a, name, addr_v, off, regs, conds, slp=1):
    n = len(conds)
    a("s_mov_b32 s60, 0x200000")
    a.label(name)
    a(("ds_read_b64 %s, v%d offset:%d" % (vr(regs, 2), addr_v, off)) if n == 2 else
      ("ds_read_b32 v%d, v%d offset:%d" % (regs, addr_v, off)))
    a("s_waitcnt lgkmcnt(0)")
    a("v_readfirstlane_b32 s61, v%d" % regs)
    if n == 2:
        a("v_readfirstlane_b32 s62, v%d" % (regs + 1))
        a("s_lshl_b32 s62, s62, 8")
        a("s_or_b32 s61, s61, s62")
        a("s_cmp_eq_u32 s61, %d" % (conds[0] | (conds[1] << 8)))
    else:
        a("s_cmp_eq_u32 s61, %d" % conds[0])
    a("s_cbranch_scc1 %s_d" % name)
    if slp:
        a("s_sleep %d" % slp)
    a("s_sub_u32 s60, s60, 1")
    a("s_cmp_lg_u32 s60, 0")
    a("s_cbranch_scc1 %s" % name)
    a.label(name + "_d")


def stage_spin(a, name, stage, vc=vC, T=T, slp=0):
    a("s_mov_b32 s60, 0x200000")
    a.label(name)
    a("ds_read_b32 v%d, v%d offset:%d" % (T, vc, C_A))
    a("s_waitcnt lgkmcnt(0)")
    a("v_readfirstlane_b32 s61, v%d" % T)
    a("s_bitcmp1_b32 s61, %d" % (8 * stage + 3))
    a("s_cbranch_scc1 %s_d" % name)
    if slp:
        a("s_sleep %d" % slp)
    a("s_sub_u32 s60, s60, 1")
    a("s_cmp_lg_u32 s60, 0")
    a("s_cbranch_scc1 %s" % name)
    a.label(name + "_d")


def landed(a, inc, vm):
    a("v_mov_b32 v%d, %s" % (T, hex(inc)))
    a("s_waitcnt vmcnt(%d)" % vm)
    a("s_mov_b64 exec, 1")
    a("ds_add_u32 v%d, v%d offset:%d" % (vC, T, C_A))
    a("s_mov_b64 exec, -1")


def poison(a):
    if OPT["nopois"]:
        a("s_nop 0")
        a("buffer_load_dword v155, v152, s[24:27], s59 offen")
        a("buffer_load_dword v155, v152, s[24:27], s59 offen")
        return
    for k in range(4):
        a("v_mov_b32 v%d, -1" % (120 + k))
    a("buffer_store_dwordx4 %s, v153, s[24:27], s58 offen sc1" % vr(120, 4))
    a("s_mov_b32 exec_hi, 0")
    a("buffer_store_dword v%d, v152, s[24:27], s59 offen sc1" % 120)
    a("s_mov_b32 exec_hi, -1")


def tail_touch(a):
    a("buffer_load_dword v155, v152, s[24:27], s59 offen")


def flag_poll(a, name, voff, vt, want, lanes, slp=1, width=1):
    a("s_mov_b64 exec, %s" % ("-1" if lanes == 64 else hex((1 << lanes) - 1)))
    a("s_mov_b32 s60, 0x40000")
    a.label(name)
    a("global_load_dword%s %s, v%d, s[8:9] sc1" % ("" if width == 1 else "x%d" % width, vr(vt, width), voff))
    a("s_waitcnt vmcnt(0)")
    a("v_cmp_eq_u32 vcc, %s, v%d" % (want, vt))
    a("s_cmp_eq_u64 vcc, exec")
    a("s_cbranch_scc1 %s_d" % name)
    if slp:
        a("s_sleep %d" % slp)
    a("s_sub_u32 s60, s60, 1")
    a("s_cmp_lg_u32 s60, 0")
    a("s_cbranch_scc1 %s" % name)
    a.label(name + "_d")
    a("s_mov_b64 exec, -1")


def lds_inc(a, vz, vt, off, rtn=False):
    a("v_mov_b32 v%d, 1" % vt)
    a("s_mov_b64 exec, 1")
    if rtn:
        a("ds_add_rtn_u32 v%d, v%d, v%d offset:%d" % (vt, vz, vt, off))
    else:
        a("ds_add_u32 v%d, v%d offset:%d" % (vz, vt, off))
    a("s_mov_b64 exec, -1")


def load_tag(a):
    a("s_mov_b32 s64, %d" % L.WS_EPOCH)
    a("s_load_dword s%d, s[8:9], s64" % TAG)


def make_tag(a):
    a("s_mul_i32 s%d, s%d, 0x9e3779b1" % (TAG, TAG))
    a("s_add_u32 s%d, s%d, 0x7f4a7c15" % (TAG, TAG))


def copy_scalars(a):
    a("s_mul_i32 s55, s34, %d" % (4 * L.PAIR_BYTES))
    a("s_mul_i32 s56, s35, 9216")
    a("s_add_u32 s55, s55, s56")
    a("s_lshl_b32 s56, s3, 10")
    a("s_add_u32 s55, s55, s56")
    for j in range(5):
        a("s_add_u32 s57, s3, %d" % (8 * j))
        a("s_mul_i32 s57, s57, 57")
        a("s_lshr_b32 s57, s57, 9")
        a("s_mul_i32 s57, s57, %d" % (L.PAIR_BYTES - 9216))
        a("s_add_u32 s57, s57, s55")
        a("s_add_u32 s%d, s57, %d" % (50 + j, 8192 * j))
    a("s_mul_i32 s58, s35, 12")
    a("s_add_u32 s58, s58, s34")
    a("s_lshl_b32 s58, s58, 7")
    a("s_add_u32 s58, s58, %d" % (L.WS_FLAG + F_Q * 128))


def decode2(a):
    if OPT["amap"]:
        a("s_and_b32 s31, s2, 7")
        a("s_lshl_b32 s31, s31, 1")
        a("s_bfe_u32 s32, s2, 0x10003")
        a("s_add_u32 s31, s31, s32")
        a("s_lshr_b32 s30, s31, 2")
        a("s_lshr_b32 s32, s2, 4")
        a("s_add_u32 s32, s32, 4")
        a("s_and_b32 s32, s32, 15")
    else:
        a("s_and_b32 s30, s2, 3")
        a("s_bfe_u32 s33, s2, 0x10002")
        a("s_bfe_u32 s32, s2, 0x20003")
        a("s_lshl_b32 s31, s30, 2")
        a("s_add_u32 s31, s31, s32")
        a("s_lshl_b32 s32, s33, 3")
        a("s_lshr_b32 s34, s2, 5")
        if OPT["light"]:
            a("s_add_u32 s34, s34, 2")
            a("s_and_b32 s34, s34, 7")
        a("s_add_u32 s32, s32, s34")
    a("s_lshr_b32 s33, s2, 3")
    a("s_mul_i32 s34, s33, 57")
    a("s_lshr_b32 s34, s34, 9")
    a("s_mul_i32 s53, s34, 9")
    a("s_sub_u32 s53, s33, s53")
    a("s_lshl_b32 s52, s34, 3")
    a("s_and_b32 s34, s2, 7")
    a("s_add_u32 s52, s52, s34")
    a("s_sub_u32 s33, s2, 216")
    a("s_mul_i32 s34, s33, 57")
    a("s_lshr_b32 s34, s34, 9")
    a("s_mul_i32 s35, s34, 9")
    a("s_sub_u32 s33, s33, s35")
    a("s_add_u32 s34, s34, 24")
    a("s_cmp_ge_u32 s2, 216")
    a("s_cselect_b32 s52, s34, s52")
    a("s_cselect_b32 s53, s33, s53")


def qpoll(a, vc, name, own, r=16):
    R = dict(a=r, b=r + 1, c=r + 2)
    a("v_add_u32 v%(a)d, 2, v0" % R)
    a("v_mul_u32_u24 v%(b)d, 43, v%(a)d" % R)
    a("v_lshrrev_b32 v%(b)d, 7, v%(b)d" % R)
    a("v_mul_u32_u24 v%(c)d, 3, v%(b)d" % R)
    a("v_sub_u32 v%(a)d, v%(a)d, v%(c)d" % R)
    a("s_sub_u32 s35, s32, 2")
    a("v_add_u32 v%(a)d, s35, v%(a)d" % R)
    a("v_max_i32 v%(a)d, 0, v%(a)d" % R)
    a("v_mul_u32_u24 v%(a)d, 12, v%(a)d" % R)
    a("v_lshl_add_u32 v%(a)d, v%(b)d, 2, v%(a)d" % R)
    a("v_add_u32 v%(a)d, s30, v%(a)d" % R)
    a("v_lshlrev_b32 v%(a)d, 7, v%(a)d" % R)
    a("v_add_u32 v%d, %d, v%d" % (r, L.WS_FLAG + F_Q * 128, r))
    if own:
        lds_spin(a, name + "w", vc, C_1, r + 2, (8,), 0)
    if OPT["qdel"]:
        a("s_sleep %d" % OPT["qdel"])
    if OPT["qpipe"] and own:
        NP = OPT["qpipe"]
        a("s_mov_b64 exec, 0x7f")
        a("s_mov_b32 s60, 0x20000")
        for k in range(NP - 1):
            a("global_load_dword v%d, v%d, s[8:9] sc1" % (r + 3 + k, r))
            a("s_sleep 1")
        a.label(name)
        for k in range(NP):
            a("global_load_dword v%d, v%d, s[8:9] sc1" % (r + 3 + (k + NP - 1) % NP, r))
            a("s_waitcnt vmcnt(%d)" % (NP - 1))
            a("v_cmp_eq_u32 vcc, s%d, v%d" % (TAG, r + 3 + k))
            a("s_cmp_eq_u64 vcc, exec")
            a("s_cbranch_scc1 %s_d" % name)
        a("s_sub_u32 s60, s60, 1")
        a("s_cbranch_scc0 %s" % name)
        a.label(name + "_d")
        a("s_mov_b64 exec, -1")
    else:
        flag_poll(a, name, r, r + 1, "s%d" % TAG, 7, OPT["qslp"])
    lds_inc(a, vc, r + 2, C_GO1)


def code_touch(a):
    if not OPT["ctouch"]:
        return
    lab = a.newlabel("pc")
    a("s_getpc_b64 s[20:21]")
    a.label(lab)
    a("s_sub_u32 s20, s20, %s-%s" % (lab, NAME))
    a("s_subb_u32 s21, s21, 0")
    a("s_lshr_b32 s22, s2, 3")
    a("s_mul_i32 s22, s22, %d" % (12 * 128))
    a("v_lshlrev_b32 v20, 7, v0")
    a("v_add_u32 v20, s22, v20")
    a("v_min_u32 v20, L_end-%s, v20" % NAME)
    a("s_mov_b64 exec, 0xfff")
    a("global_load_dword v21, v20, s[20:21]")
    a("s_mov_b64 exec, -1")


def gemm_phase(a):
    if OPT["gmap"]:
        a("s_lshr_b32 s33, s32, 1")
        a("s_mul_i32 s33, s33, 43")
        a("s_lshr_b32 s33, s33, 7")
        a("s_mul_i32 s34, s33, 6")
        a("s_sub_u32 s34, s32, s34")
        a("s_and_b32 s35, s34, 1")
        a("s_lshr_b32 s34, s34, 1")
        a("s_lshl_b32 s34, s34, 2")
        a("s_add_u32 s34, s34, s35")
        a("s_and_b32 s35, s2, 1")
        a("s_lshl_b32 s35, s35, 1")
        a("s_add_u32 s34, s34, s35")
        a("s_bfe_u32 s35, s2, 0x20001")
        a("s_lshl_b32 s35, s35, 2")
        a("s_add_u32 s35, s35, s33")
    else:
        a("s_mul_i32 s33, s32, 43")
        a("s_lshr_b32 s33, s33, 7")
        a("s_mul_i32 s34, s33, 3")
        a("s_sub_u32 s34, s32, s34")
        a("s_lshl_b32 s34, s34, 2")
        a("s_add_u32 s34, s34, s30")
        a("s_lshl_b32 s35, s31, 3")
        a("s_add_u32 s35, s35, s33")
    a("s_cmp_lt_u32 s3, 4")
    a("s_cbranch_scc1 L_comp")
    a("s_cmp_lt_u32 s3, 6")
    a("s_cbranch_scc0 L_ldw")
    a("s_sub_u32 s36, s3, 4")
    SH = 4 if OPT["gmap"] else 3
    a("v_and_b32 v7, %d, v0" % ((1 << SH) - 1))
    a("s_lshl_b32 s41, s33, %d" % SH)
    a("s_lshl_b32 s42, s36, 6")
    a("s_add_u32 s41, s41, s42")
    a("v_add_u32 v7, s41, v7")
    a("v_mul_u32_u24 v7, 3456, v7")
    a("v_lshrrev_b32 v1, %d, v0" % SH)
    a("v_lshl_add_u32 v7, v1, 7, v7")
    a("v_lshrrev_b32 v1, 3, v0")
    a("s_mul_i32 s39, s35, %d" % (128 * 1152))
    a("s_mul_i32 s46, s34, 288")
    a("s_and_b32 s46, s46, 0xffffff80")
    a("s_sub_u32 s47, %d, s46" % (576 * 3456))
    a("v_mul_u32_u24 v1, 1152, v1")
    a("v_lshrrev_b32 v2, 4, v0")
    a("v_and_b32 v3, 7, v0")
    a("v_xor_b32 v3, v3, v2")
    a("v_lshl_add_u32 v4, v3, 4, v1")
    a("v_xor_b32 v3, 4, v3")
    a("v_lshl_add_u32 v5, v3, 4, v1")
    a("v_add_u32 v5, %d, v5" % (8 * 1152))
    a("s_mul_i32 s37, s36, %d" % (64 * 1152))
    a("s_lshl_b32 s38, s36, 13")
    a("s_waitcnt lgkmcnt(0)")
    srd_off(a, 20, 6, "s46", "s47")
    if OPT["gmap"]:
        a("s_mov_b32 exec_hi, 0xffff")
    else:
        a("s_mov_b64 exec, 0xffffff")
    a("buffer_load_dword v20, v7, s[20:23], 0 offen")
    a("s_mov_b64 exec, -1")
    srd_off(a, 16, 4, "s39", 128 * 1152)

    def x_chunk(c):
        for i in range(8):
            a("s_add_u32 m0, s38, %d" % ((c % 4) * SLOT + i * 1024))
            a("s_add_u32 s40, s37, %d" % ((i >> 1) * 16 * 1152 + c * 128))
            a("buffer_load_dwordx4 v%d, s[16:19], s40 offen lds" % (4 + (i & 1)))

    x_chunk(0)
    load_tag(a)
    copy_scalars(a)
    stamp(a, 1)
    a("s_waitcnt vmcnt(8) lgkmcnt(0)")
    stamp(a, 2)

    def loader_loop(fn, n, first, ahead0):
        LA = OPT["la"]
        a("s_barrier")
        stamp(a, 13)
        nxt = first
        while nxt < ahead0:
            fn(nxt)
            nxt += 1
        stamp(a, 14)
        for c in range(9):
            a("s_waitcnt vmcnt(%d)" % (n * (nxt - 1 - c)))
            a("s_barrier")
            while nxt <= c + LA and nxt < 9:
                fn(nxt)
                nxt += 1

    loader_loop(x_chunk, 8, 1, 2)
    a("s_branch L_copy")
    a.label("L_ldw")
    a("s_movk_i32 s41, 3641")
    for i in range(9):
        a("v_add_u32 v1, %d, v0" % (64 * i))
        a("v_mul_u32_u24 v2, s41, v1")
        a("v_lshrrev_b32 v2, 16, v2")
        a("v_mul_u32_u24 v3, 18, v2")
        a("v_sub_u32 v3, v1, v3")
        a("v_bfe_u32 v1, v2, 2, 2")
        a("v_lshlrev_b32 v1, 3, v1")
        a("v_lshrrev_b32 v13, 4, v2")
        a("v_lshl_add_u32 v1, v13, 2, v1")
        a("v_and_b32 v2, 3, v2")
        a("v_add_u32 v1, v1, v2")
        a("v_mul_u32_u24 v1, 3456, v1")
        a("v_lshl_add_u32 v%d, v3, 4, v1" % (4 + i))
        if i == 2:
            a("s_waitcnt lgkmcnt(0)")
            load_tag(a)
    a("s_sub_u32 s36, s3, 6")
    a("s_mul_i32 s37, s36, %d" % (32 * 3456))
    a("s_mul_i32 s38, s36, 9216")
    a("s_mul_i32 s39, s34, 288")
    a("s_sub_u32 s42, %d, s39" % (576 * 3456))
    copy_scalars(a)
    srd_off(a, 16, 6, "s39", "s42")
    a("s_waitcnt lgkmcnt(0)")

    def w_chunk(c):
        a("s_add_u32 s40, s37, %d" % (c * 64 * 3456))
        for i in range(9):
            a("s_add_u32 m0, s38, %d" % ((c % 4) * SLOT + 16384 + i * 1024))
            a("s_nop 0")
            a("buffer_load_dwordx4 v%d, s[16:19], s40 offen lds" % (4 + i))

    loader_loop(w_chunk, 9, 0, OPT["wa0"])
    a("s_branch L_copy")
    a.label("L_comp")
    ACC, XF, WF = 64, (136, 144), 24
    a("v_and_b32 v8, 15, v0")
    a("v_lshrrev_b32 v9, 4, v0")
    a("v_lshrrev_b32 v10, 1, v8")
    a("v_xor_b32 v10, v10, v9")
    a("s_lshl_b32 s36, s3, 12")
    a("v_lshlrev_b32 v2, 7, v8")
    a("v_lshl_add_u32 v2, v10, 4, v2")
    a("v_add_u32 v2, s36, v2")
    a("v_xor_b32 v3, 64, v2")
    a("v_add_u32 v4, %d, v2" % (2 * SLOT))
    a("v_add_u32 v5, %d, v3" % (2 * SLOT))
    a("v_lshrrev_b32 v10, 2, v0")
    a("v_mul_u32_u24 v6, 288, v10")
    a("v_and_b32 v10, 3, v0")
    a("v_lshl_add_u32 v6, v10, 3, v6")
    a("v_add_u32 v6, 16384, v6")
    a("v_add_u32 v7, %d, v6" % (2 * SLOT))
    a("s_waitcnt lgkmcnt(0)")
    load_tag(a)
    a("s_mov_b32 s36, 1.0")
    a("s_cmp_lt_u32 s34, 4")
    a("s_cselect_b32 s36, %s, s36" % f32(QSCALE))
    a("s_mov_b32 s37, s36")
    a("s_lshl_b32 s38, s3, 5")
    a("v_add_u32 v10, s38, v8")
    a("v_mul_u32_u24 v10, 72, v10")
    a("v_lshl_add_u32 v10, v9, 3, v10")
    a("v_add_u32 v10, %d, v10" % IMG)
    for ft in range(9):
        a("v_add_u32 v11, %d, v9" % (4 * ft))
        a("v_mul_u32_u24 v11, 57, v11")
        a("v_lshrrev_b32 v11, 9, v11")
        a("v_mul_u32_u24 v11, 9144, v11")
        a("v_add_u32 v%d, v11, v10" % (12 + ft))
    copy_scalars(a)
    a("s_waitcnt lgkmcnt(0)")

    def xreads(step):
        c, h2 = step >> 1, step & 1
        slot = c % 4
        return ["ds_read_b128 %s, v%d offset:%d" % (vr(XF[step & 1] + 4 * tt, 4), 2 + 2 * (slot >> 1) + h2,
                                                    (slot & 1) * SLOT + tt * 2048) for tt in range(2)]

    def wreads(step, ft):
        c, h2 = step >> 1, step & 1
        slot = c % 4
        return ["ds_read_b64_tr_b16 %s, v%d offset:%d" % (vr(WF + 4 * ft + 2 * sec, 2), 6 + (slot >> 1),
                                                          (slot & 1) * SLOT + h2 * 9216 + sec * 4608 + ft * 32)
                for sec in range(2)]

    def mfma(step, ft, tt):
        d = vr(ACC + 8 * ft + 4 * tt, 4)
        return "v_mfma_f32_16x16x32_bf16 %s, %s, %s, %s" % (
            d, vr(WF + 4 * ft, 4), vr(XF[step & 1] + 4 * tt, 4), "0" if step == 0 else d)

    def epi(k):
        ft, tt = k >> 1, k & 1
        b = ACC + 4 * k
        t = 152 + 2 * (k % 4)
        return ["v_pk_mul_f32 %s, %s, s[36:37]" % (vr(b, 2), vr(b, 2)),
                "v_pk_mul_f32 %s, %s, s[36:37]" % (vr(b + 2, 2), vr(b + 2, 2)),
                "v_cvt_pk_bf16_f32 v%d, v%d, v%d" % (t, b, b + 1),
                "v_cvt_pk_bf16_f32 v%d, v%d, v%d" % (t + 1, b + 2, b + 3),
                "ds_write_b64 v%d, %s offset:%d" % (12 + ft, vr(t, 2), 32 * ft + 1152 * tt)]

    a("s_barrier")
    a("s_barrier")
    stamp(a, 1)
    q = []

    def issue(tag, lst):
        for x in lst:
            a(x)
            q.append(tag)

    def need(tag):
        last = max(k for k, v in enumerate(q) if v == tag)
        a("s_waitcnt lgkmcnt(%d)" % min(15, len(q) - 1 - last))

    issue(("x", 0), xreads(0))
    for ft in range(9):
        issue(("w", 0, ft), wreads(0, ft))
    for step in range(16):
        if step & 1:
            a("s_barrier")
        for ft in range(9):
            need(("w", step, ft))
            a(mfma(step, ft, 0))
            if ft == 0:
                issue(("x", step + 1), xreads(step + 1))
            a(mfma(step, ft, 1))
            issue(("w", step + 1, ft), wreads(step + 1, ft))
    RING = (60, 160, 164)

    def w17(ft):
        return [x.replace(vr(WF + 4 * ft + 2 * sec, 2), vr(RING[ft % 3] + 2 * sec, 2)) for sec, x in enumerate(wreads(17, ft))]

    issue(("x", 17), xreads(17))
    issue(("v", 0), w17(0))
    issue(("v", 1), w17(1))
    for ft in range(10):
        e = (epi(2 * ft - 2) + epi(2 * ft - 1)) if ft else []
        if ft < 9:
            need(("v", ft))
            m = [mfma(16, ft, 0), mfma(16, ft, 1)] + \
                [mfma(17, ft, tt).replace(vr(WF + 4 * ft, 4), vr(RING[ft % 3], 4)) for tt in range(2)]
        else:
            m = []
        cut = (0, 3, 5, 8, 10)
        for k in range(4):
            if m:
                a(m[k])
            if k == 0 and ft + 2 < 9:
                issue(("v", ft + 2), w17(ft + 2))
            for x in e[cut[k]:cut[k + 1]]:
                if x.startswith("ds_"):
                    issue("e", [x])
                else:
                    a(x)
    stamp(a, 2)
    a("s_waitcnt lgkmcnt(0)")
    a.label("L_copy")
    a("v_lshlrev_b32 v1, 4, v0")
    a("s_lshl_b32 s36, s3, 10")
    a("v_add_u32 v2, s36, v1")
    a("v_add_u32 v3, %d, v2" % (IMG + 4 * 8192))
    srd_off(a, 24, 8, L.WS_QKV, L.QKV_BYTES)
    make_tag(a)
    a("s_barrier")
    for j in range(4):
        a("ds_read_b128 %s, v2 offset:%d" % (vr(4 + 4 * j, 4), IMG + j * 8192))
    a("s_cmp_lt_u32 s3, 4")
    a("s_cbranch_scc0 L_c4")
    a("ds_read_b128 v[20:23], v3")
    a("s_waitcnt lgkmcnt(0)")
    a("buffer_store_dwordx4 v[20:23], v1, s[24:27], s54 offen sc1")
    a.label("L_c4")
    for j in range(4):
        a("s_waitcnt lgkmcnt(%d)" % (3 - j))
        a("buffer_store_dwordx4 %s, v1, s[24:27], s%d offen sc1" % (vr(4 + 4 * j, 4), 50 + j))
    a("s_mov_b32 s63, s58")
    a("v_mov_b32 v%d, %d" % (vC, CTL))
    lds_inc(a, vC, 24, C_FI)
    stamp(a, 3)


def spare_phase(a):
    GW = 64
    a.label("L_sp")
    a("s_sub_u32 s36, s2, 192")
    a("s_cmp_ge_u32 s3, 8")
    a("s_cbranch_scc1 L_sp_ffn")
    a("s_cmp_ge_u32 s3, 4")
    a("s_cbranch_scc1 L_sp_hi")
    a("s_load_dwordx2 s[60:61], s[0:1], 32")
    a("s_load_dwordx2 s[62:63], s[0:1], 64")
    a("v_lshrrev_b32 v2, 3, v0")
    a("v_and_b32 v3, 7, v0")
    a("v_lshlrev_b32 v3, 4, v3")
    a("s_lshl_b32 s34, s36, 2")
    a("s_add_u32 s34, s34, s3")
    a("s_lshl_b32 s33, s34, 3")
    a("v_add_u32 v1, s33, v2")
    a("v_mul_u32_u24 v4, 1152, v1")
    a("v_add_u32 v4, v4, v3")
    a("s_mul_i32 s51, s34, %d" % (7 * 128))
    a("s_mul_i32 s52, s34, %d" % (21 * 128))
    a("v_lshlrev_b32 v7, 7, v0")
    a("s_waitcnt lgkmcnt(0)")
    load_tag(a)
    srd(a, 16, 6, 576 * 3456)
    srd(a, 20, 28, 576 * 1152)
    for i in range(9):
        a("global_load_dwordx4 %s, v4, s[4:5] offset:%d" % (vr(8 + 4 * i, 4), 128 * i))
        if i == 0:
            for j in range(9):
                a("global_load_dwordx4 %s, v3, s[60:61] offset:%d" % (vr(44 + 4 * j, 4), 128 * j))
                a("global_load_dwordx4 %s, v3, s[62:63] offset:%d" % (vr(80 + 4 * j, 4), 128 * j))
        else:
            a("s_add_u32 s53, s51, %d" % (1728 * 128 * i))
            a("s_mov_b64 exec, 0x7f")
            a("buffer_load_dword v124, v7, s[16:19], s53 offen")
            a("s_mov_b64 exec, -1")
    a("s_mov_b64 exec, 0x1fffff")
    a("buffer_load_dword v124, v7, s[20:23], s52 offen")
    a("s_mov_b64 exec, -1")
    a("v_mov_b32 v%d, %d" % (vC, CTL))
    a("s_waitcnt lgkmcnt(0)")
    make_tag(a)
    a("s_barrier")
    a("s_waitcnt vmcnt(2)")
    for i in range(36):
        p = 116 + (i & 3)
        a("v_dot2_f32_bf16 v%d, v%d, v%d, %s" % (p, 8 + i, 44 + i, "0" if i < 4 else "v%d" % p))
    a("s_nop 1")
    a("v_pk_add_f32 v[116:117], v[116:117], v[118:119]")
    a("v_add_f32 v5, v116, v117")
    sum8(a, (5,))
    bf16_round(a, 5, 5)
    a("v_ashrrev_i32 v7, 31, v5")
    a("v_or_b32 v7, 0x80000000, v7")
    a("v_xor_b32 v7, v7, v5")
    a("v_and_b32 v7, 0xffff0000, v7")
    a("v_sub_u32 v6, 0x7ff, v1")
    a("v_or_b32 v7, v7, v6")
    a("v_mov_b32 v5, 1")
    a("s_mov_b32 s54, 0x01010101")
    a("s_mov_b32 exec_lo, s54")
    a("s_mov_b32 exec_hi, s54")
    a("ds_max_u32 v%d, v7 offset:%d" % (vC, C_KMAX))
    a("s_mov_b64 exec, 1")
    a("ds_add_rtn_u32 v5, v%d, v5 offset:%d" % (vC, C_KCNT))
    a("ds_read_b32 v7, v%d offset:%d" % (vC, C_KMAX))
    a("s_lshl_b32 s53, s36, 3")
    a("s_add_u32 s53, s53, %d" % L.WS_KEYF)
    a("v_mov_b32 v4, s53")
    a("v_mov_b32 v6, s%d" % TAG)
    a("s_waitcnt lgkmcnt(0)")
    a("v_cmp_eq_u32 vcc, 3, v5")
    a("s_and_b64 exec, exec, vcc")
    a("s_cbranch_execz L_sp_nopub")
    a("global_store_dwordx2 v4, v[6:7], s[8:9] sc1")
    a.label("L_sp_nopub")
    a("s_mov_b64 exec, -1")
    stamp(a, 1)
    a("s_mov_b32 s55, 0x3f803f80")
    for i in range(36):
        x, w, p = 8 + i, 80 + i, 116 + (i & 3)
        t = 44 + 4 * (i & 3)
        a("v_lshlrev_b32 v%d, 16, v%d" % (t, x))
        a("v_and_b32 v%d, 0xffff0000, v%d" % (t + 1, x))
        a("v_lshlrev_b32 v%d, 16, v%d" % (t + 2, w))
        a("v_and_b32 v%d, 0xffff0000, v%d" % (t + 3, w))
        a("v_pk_mul_f32 %s, %s, %s" % (vr(t, 2), vr(t, 2), vr(t + 2, 2)))
        a("v_cvt_pk_bf16_f32 v%d, v%d, v%d" % (t, t, t + 1))
        a("v_dot2_f32_bf16 v%d, v%d, s55, %s" % (p, t, "0" if i < 4 else "v%d" % p))
    a("s_nop 1")
    a("v_pk_add_f32 v[116:117], v[116:117], v[118:119]")
    a("v_add_f32 v6, v116, v117")
    sum8(a, (6,))
    bf16_round(a, 6, 6)
    sigmoid(a, 6, 6)
    bf16_round(a, 6, 6)
    a("v_lshlrev_b32 v1, 2, v1")
    a("v_add_u32 v1, %d, v1" % L.WS_G)
    a("s_mov_b32 exec_lo, s54")
    a("s_mov_b32 exec_hi, s54")
    a("global_store_dword v1, v6, s[8:9] sc1")
    a("s_mov_b64 exec, -1")
    a("s_waitcnt vmcnt(0)")
    lds_inc(a, vC, 5, C_GD)
    if OPT["dtouch"]:
        srd(a, 16, 14, 4608 * 1152)
        a("s_mul_i32 s52, s34, %d" % (162 * 128))
        a("v_lshlrev_b32 v7, 7, v0")
        for k in range(3):
            a("buffer_load_dword v124, v7, s[16:19], s52 offen")
            a("s_add_u32 s52, s52, %d" % (54 * 128))
    a("s_mov_b32 s63, 0")
    stamp(a, 2)
    a("s_branch L_att")

    a.label("L_sp_hi")
    a("s_cmp_eq_u32 s3, 7")
    a("s_cbranch_scc0 L_sp_hi1")
    code_touch(a)
    a.label("L_sp_hi1")
    a("v_mov_b32 v%d, %d" % (vC, CTL))
    a("s_waitcnt lgkmcnt(0)")
    load_tag(a)
    a("s_mov_b32 s63, 0")
    a("s_waitcnt lgkmcnt(0)")
    make_tag(a)
    a("s_barrier")
    a("s_cmp_eq_u32 s3, 4")
    a("s_cbranch_scc1 L_sp_w4")
    a("s_cmp_eq_u32 s3, 5")
    a("s_cbranch_scc0 L_att")
    a("s_lshl_b32 s56, s36, 7")
    a("s_add_u32 s56, s56, %d" % (L.WS_FLAG + F_PA * 128))
    a("v_mov_b32 v9, s56")
    lds_spin(a, "L_sp_x5", vC, C_XS, 10, (1, 4), 4)
    a("ds_read_b64 v[14:15], v%d offset:%d" % (vC, C_IDX))
    a("v_mov_b32 v12, s%d" % TAG)
    a("s_waitcnt lgkmcnt(0)")
    a("v_mov_b32 v13, v14")
    a("v_mov_b32 v14, v15")
    a("s_mov_b64 exec, 1")
    a("global_store_dwordx3 v9, v[12:14], s[8:9] sc1")
    a("s_mov_b64 exec, -1")
    a("s_branch L_att")
    a.label("L_sp_w4")
    for k in range(4):
        a("v_mov_b32 v%d, 0" % (12 + k))
    a("s_cmp_lt_u32 s36, 36")
    a("s_cbranch_scc0 L_sp_nz")
    a("s_lshl_b32 s51, s36, 10")
    a("s_add_u32 s51, s51, %d" % L.WS_YP)
    a("v_lshlrev_b32 v4, 4, v0")
    a("v_add_u32 v4, s51, v4")
    a("global_store_dwordx4 v4, v[12:15], s[8:9] sc1")
    a("s_cmp_eq_u32 s36, 0")
    a("s_cbranch_scc0 L_sp_nz")
    a("v_lshlrev_b32 v4, 7, v0")
    a("v_add_u32 v4, %d, v4" % (L.WS_FLAG + F_Y * 128))
    a("global_store_dword v4, v12, s[8:9] sc1")
    a.label("L_sp_nz")
    a("v_lshlrev_b32 v8, 3, v0")
    a("v_add_u32 v8, %d, v8" % L.WS_KEYF)
    srd(a, 24, 4, 2048 * 1152)
    lds_spin(a, "L_sp_own", vC, C_KCNT, 10, (4,), 2)
    a("s_sleep %d" % OPT["slp0"])
    flag_poll(a, "L_sp_kp", 8, 10, "s%d" % TAG, 64, OPT["slp"], 2)
    a("v_lshlrev_b32 v8, 4, v0")
    stamp(a, 1)
    wave_umax(a, 11, 53)
    a("s_and_b32 s54, s53, 0x7ff")
    a("s_sub_u32 s54, 2047, s54")
    a("s_mul_i32 s55, s54, 1152")
    a("s_mov_b32 m0, %d" % XS)
    a("s_add_u32 s56, s55, 1024")
    a("buffer_load_dwordx4 v8, s[24:27], s55 offen lds")
    a("s_mov_b32 m0, %d" % (XS + 1024))
    a("s_mov_b64 exec, 0xff")
    a("buffer_load_dwordx4 v8, s[24:27], s56 offen lds")
    a("s_mov_b64 exec, -1")
    a("s_and_b32 s55, s53, 0xffff0000")
    a("s_xor_b32 s56, s55, 0x80000000")
    a("s_xor_b32 s57, s55, 0xffff0000")
    a("s_bitcmp1_b32 s55, 31")
    a("s_cselect_b32 s55, s56, s57")
    a("v_mov_b32 v12, s55")
    sigmoid(a, 13, 12)
    bf16_round(a, 13, 13)
    a("v_mov_b32 v12, s54")
    a("ds_write_b64 v%d, v[12:13] offset:%d" % (vC, C_IDX))
    a("v_mov_b32 v12, 1")
    a("s_waitcnt vmcnt(0)")
    a("ds_write_b32 v%d, v12 offset:%d" % (vC, C_XS))
    stamp(a, 2)
    a("s_branch L_att")

    a.label("L_sp_ffn")
    a("s_load_dwordx4 s[40:43], s[0:1], 40")
    a("v_mov_b32 v3, %d" % CTL)
    for k in range(4):
        a("v_mov_b32 v%d, 0" % (4 + k))
    a("v_lshlrev_b32 v1, 4, v0")
    a("v_add_u32 v2, v1, v3")
    a("s_mov_b64 exec, 0xff")
    a("ds_write_b128 v2, v[4:7]")
    a("s_mov_b64 exec, -1")
    a("v_lshlrev_b32 v2, 2, v0")
    a("v_add_u32 v2, %d, v2" % (XS + 1152))
    a("ds_write_b32 v2, v4")
    a("s_sub_u32 s59, s3, 8")
    a("s_mul_i32 s37, s36, 57")
    a("s_lshr_b32 s37, s37, 9")
    a("s_mul_i32 s38, s37, 9")
    a("s_sub_u32 s38, s36, s38")
    a("s_mul_i32 s49, s37, 84")
    a("s_mul_i32 s39, s49, 9216")
    a("s_lshl_b32 s48, s38, 10")
    a("s_add_u32 s39, s39, s48")
    a("s_sub_u32 s48, %d, s39" % (576 * 9216))
    a("s_min_i32 s48, s48, %d" % (83 * 9216 + 1024))
    a("s_max_i32 s48, s48, 0")
    a("v_lshrrev_b32 v160, 5, v0")
    a("v_mul_u32_u24 v160, 9216, v160")
    a("v_and_b32 v161, 31, v0")
    a("v_lshl_add_u32 v160, v161, 4, v160")
    a("s_mul_i32 s57, s59, 20480")
    a("s_add_u32 s57, s57, %d" % WO)
    a("s_mul_i32 s58, s59, %d" % (2 * 9216))
    a("s_waitcnt lgkmcnt(0)")
    load_tag(a)
    srd_off(a, 16, 40, "s39", "s48")
    srd_off(a, 20, 42, "s39", "s48")
    a("s_waitcnt lgkmcnt(0)")
    make_tag(a)
    a("s_barrier")
    for i in range(5):
        a("s_add_u32 s55, s58, %d" % (8 * (6 + i) * 9216))
        a("s_add_u32 s56, s55, 512")
        for k in range(4):
            a("s_add_u32 m0, s57, %d" % ((4 * i + k) * 1024))
            a("buffer_load_dwordx4 v160, s[%d:%d], s%d offen nt lds" % (16 + 4 * (k >> 1), 19 + 4 * (k >> 1), 55 + (k & 1)))
    for i in range(6):
        a("s_add_u32 s55, s58, %d" % (8 * i * 9216))
        for k in range(4):
            a("buffer_load_dwordx4 %s, v160, s[%d:%d], s55 offen offset:%d nt" % (
                vr(GW + 16 * i + 4 * k, 4), 16 + 4 * (k >> 1), 19 + 4 * (k >> 1), 512 * (k & 1)))
    a("s_lshl_b32 s55, s59, 1")
    a("s_add_u32 s55, s55, s49")
    a("v_lshrrev_b32 v51, 5, v0")
    a("v_add_u32 v51, s55, v51")
    a("v_lshlrev_b32 v51, 1, v51")
    a("v_add_u32 v51, %d, v51" % XS)
    a("v_and_b32 v2, 1, v0")
    a("v_lshlrev_b32 v2, 4, v2")
    a("v_lshrrev_b32 v4, 1, v0")
    a("v_xor_b32 v4, v4, v0")
    a("v_and_b32 v4, 8, v4")
    a("v_bfe_u32 v5, v0, 1, 2")
    a("v_or_b32 v4, v4, v5")
    for q in range(4):
        a("v_cmp_eq_u32 s[%d:%d], %d, v4" % (40 + 2 * q, 41 + 2 * q, q))
    a("v_bfe_u32 v4, v0, 3, 1")
    a("v_lshlrev_b32 v4, 9, v4")
    a("v_lshrrev_b32 v5, 4, v0")
    a("v_lshl_add_u32 v4, v5, 7, v4")
    a("v_and_b32 v5, 7, v0")
    a("v_lshl_add_u32 v4, v5, 2, v4")
    a("v_add_u32 v6, s57, v4")
    a("v_add_u32 v52, s57, v1")
    a("s_lshl_b32 s55, s59, 9")
    a("v_lshlrev_b32 v8, 3, v0")
    a("v_add_u32 v8, s55, v8")
    a("s_mul_i32 s52, s37, %d" % (4608 * 16))
    a("s_lshl_b32 s55, s38, 13")
    a("s_add_u32 s52, s52, s55")
    a("s_add_u32 s52, s52, %d" % L.WS_PA)
    a("v_lshlrev_b32 v9, 2, v8")
    a("v_add_u32 v9, s52, v9")
    a("v_add_u32 v8, %d, v8" % WO)
    stamp(a, 3)
    lds_spin(a, "L_sp_xs", 3, C_XS, 10, (1,), 2)
    a("s_setprio %d" % OPT["pr2"])
    stamp(a, 7)
    for i in range(11):
        a("ds_read_u16 v%d, v51 offset:%d" % (53 + i, 16 * i))
    a("s_waitcnt vmcnt(24)")
    for k in range(4):
        a("ds_read_b128 %s, v52 offset:%d" % (vr(32 + 4 * k, 4), 1024 * k))
    a("s_waitcnt lgkmcnt(4)")
    for i in range(11):
        a("v_lshlrev_b32 v%d, v2, v%d" % (53 + i, 53 + i))
    first = True
    for i in range(5):
        selector(a, 12, 53 + 6 + i, 40)
        for k in range(4):
            d = vr(16 + 4 * k, 4)
            a("s_waitcnt lgkmcnt(%d)" % (3 if i < 4 else 3 - k))
            a("v_mfma_f32_16x16x32_bf16 %s, %s, v[12:15], %s" % (d, vr(32 + 4 * k, 4), "0" if first else d))
            if i < 4:
                a("ds_read_b128 %s, v52 offset:%d" % (vr(32 + 4 * k, 4), 1024 * (4 * (i + 1) + k)))
        first = False
    stamp(a, 12)
    for i in range(6):
        selector(a, 12, 53 + i, 40)
        a("s_waitcnt vmcnt(%d)" % (4 * (5 - i)))
        for k in range(4):
            d = vr(16 + 4 * k, 4)
            a("v_mfma_f32_16x16x32_bf16 %s, %s, v[12:15], %s" % (d, vr(GW + 16 * i + 4 * k, 4), d))
    stamp(a, 11)
    for k in range(4):
        for r in range(4):
            a("ds_write_b32 v6, v%d offset:%d" % (16 + 4 * k + r, 1024 * k + 32 * r))
    lds_inc(a, 3, 10, C_RED)
    lds_spin(a, "L_sp_rd", 3, C_RED, 10, (4,), 0)
    for p in range(4):
        a("ds_read_b64 %s, v8 offset:%d" % (vr(16 + 4 * p, 2), 20480 * p))
        a("ds_read_b64 %s, v8 offset:%d" % (vr(18 + 4 * p, 2), 20480 * p + 2048))
    a("v_mov_b32 v34, s%d" % TAG)
    a("v_mov_b32 v38, s%d" % TAG)
    a("s_waitcnt lgkmcnt(0)")
    lds_inc(a, 3, 10, C_RED2)
    for p in (2, 1):
        for h in range(2 * p):
            a("v_pk_add_f32 %s, %s, %s" % (vr(16 + 2 * h, 2), vr(16 + 2 * h, 2), vr(16 + 4 * p + 2 * h, 2)))
    a("v_mov_b32 v32, v16")
    a("v_mov_b32 v33, v18")
    a("v_mov_b32 v36, v17")
    a("v_mov_b32 v37, v19")
    a("s_cmp_eq_u32 s36, 63")
    a("s_cbranch_scc1 L_sp_nost")
    a("global_store_dwordx4 v9, v[32:35], s[8:9] sc1")
    a("global_store_dwordx4 v9, v[36:39], s[8:9] offset:16 sc1")
    a.label("L_sp_nost")
    stamp(a, 4)
    lds_spin(a, "L_sp_r2", 3, C_RED2, 10, (4,), 0)
    a("s_branch L_help2")


def attn_loop(a):
    for i in range(9):
        if OPT["bal"] and i == 0:
            a("s_cmp_lt_u32 s3, 4")
            a("s_cbranch_scc1 L_bal0")
            a("s_setprio 1")
            a.label("L_bal0")
        if OPT["bal"] and i == OPT["bal"]:
            a("s_setprio 0")
        a.label("L_it%d" % i)
        S, P = SS[i & 1], PP[i & 1]
        ex = ["v_exp_f32 v%d, v%d" % (S + r, S + r) for r in range(16)]
        cv = ["v_cvt_pk_bf16_f32 v%d, v%d, v%d" % (P + q, S + 2 * q, S + 2 * q + 1) for q in range(8)]
        if i == 0:
            mk = ["v_bfi_b32 v%d, v%d, 0, v%d" % (P + q, MSK + q, P + q) for q in range(8)]
        elif i == 8:
            mk = ["v_and_b32 v%d, v%d, v%d" % (P + q, MSK + q, P + q) for q in range(8)]
        else:
            mk = []
        m1 = qk(i + 1) if i < 8 else []
        m2 = pv(i - 1, i == 1) if i > 0 else []
        a("s_waitcnt lgkmcnt(%d)" % (4 if 0 < i < 8 else 0))
        seq = m1[:1] + ex[0:4] + m1[1:] + (k_reads(i + 2) if i + 2 <= 8 else []) + ex[4:8] + cv[0:2] + m2[:1] + \
            ex[8:12] + cv[2:4] + m2[1:]
        if i + 1 <= 8:
            seq += ["v_add_u32 v%d, v%d, v%d" % (vV, vV, vStep)] + v_reads(i + 1)
        seq += ex[12:16] + cv[4:8] + mk
        for x in seq:
            a(x)
    lds_spin(a, "L_pz", vC, C_C, T, (1,), 0)
    for x in pv(8, False):
        a(x)


def attention_phase(a):
    a.label("L_att")
    decode2(a)
    a("s_mul_i32 s33, s31, %d" % L.PAIR_BYTES)
    a("s_mul_i32 s34, s32, 9216")
    a("s_add_u32 s33, s33, s34")
    a("v_mov_b32 v%d, %d" % (vC, CTL))
    KS, VS = 16 * L.PAIR_BYTES - 18432, 32 * L.PAIR_BYTES - 18432
    grp = [(QB, 0), (KB, KS), (VB, VS), (KB + 9216, KS + 9216), (VB + 9216, VS + 9216), (KB + 18432, KS + 18432), (VB + 18432, VS + 18432)]
    a("s_lshl_b32 s34, s3, 10")
    for j in range(8):
        lo, hi = (8 * j) // 9, min(8 * j + 7, 62) // 9
        l0, g0 = grp[lo][0] + (8 * j - 9 * lo) * 1024, grp[lo][1] + (8 * j - 9 * lo) * 1024
        l1, g1 = grp[hi][0] + (8 * j - 9 * hi) * 1024, grp[hi][1] + (8 * j - 9 * hi) * 1024
        if j == 7:
            a("s_min_u32 s34, s34, %d" % (6 * 1024))
        if lo == hi:
            a("s_add_u32 s%d, s34, %d" % (16 + j, l0))
            a("s_add_u32 s%d, s33, %d" % (44 + j, g0 - l0 & 0xffffffff))
        else:
            a("s_mov_b32 s35, %d" % l0)
            a("s_mov_b32 s36, %d" % (g0 - l0 & 0xffffffff))
            a("s_cmp_ge_u32 s3, %d" % (9 * hi - 8 * j))
            a("s_cselect_b32 s35, %d, s35" % (l1 & 0xffffffff))
            a("s_cselect_b32 s36, %d, s36" % (g1 - l1 & 0xffffffff))
            a("s_add_u32 s%d, s34, s35" % (16 + j))
            a("s_add_u32 s%d, s33, s36" % (44 + j))
        a("s_add_u32 s%d, s%d, s%d" % (44 + j, 44 + j, 16 + j))
    a("v_mov_b32 v10, s63")
    a("v_mov_b32 v11, s%d" % TAG)
    a("s_waitcnt vmcnt(0)")
    lds_inc(a, vC, 9, C_1, rtn=True)
    a("s_cmp_lg_u32 s63, 0")
    a("s_cselect_b32 s35, 7, 99")
    a("s_waitcnt lgkmcnt(0)")
    a("v_readfirstlane_b32 s36, v9")
    a("s_cmp_eq_u32 s36, s35")
    a("s_cbranch_scc0 L_nofl1")
    a("s_mov_b64 exec, 1")
    a("global_store_dword v10, v11, s[8:9] sc1")
    a("s_mov_b64 exec, -1")
    a.label("L_nofl1")
    stamp(a, 4)
    a("s_and_b32 s42, s3, 1")
    a("s_lshr_b32 s43, s3, 1")
    a("s_mul_i32 s35, s43, 2304")
    a("s_mul_i32 s36, s42, 40")
    a("v_and_b32 v%d, 31, v0" % T)
    a("v_lshrrev_b32 v%d, 5, v0" % (T + 1))
    a("v_mul_u32_u24 v%d, 72, v%d" % (vKt, T))
    a("v_add_u32 v%d, s35, v%d" % (vKt, vKt))
    a("v_lshl_add_u32 v%d, v%d, 4, v%d" % (vK, T + 1, vKt))
    a("v_add_u32 v%d, s36, v%d" % (vK, vK))
    a("v_add_u32 v%d, 32, v%d" % (vKt, vKt))
    a("v_bfe_u32 v%d, v0, 2, 2" % (T + 2))
    a("v_lshl_add_u32 v%d, v%d, 2, v%d" % (T + 2, T + 1, T + 2))
    a("v_mul_u32_u24 v%d, 72, v%d" % (T + 2, T + 2))
    a("s_add_u32 s37, s35, %d" % VB)
    a("v_add_u32 v%d, s37, v%d" % (T + 2, T + 2))
    a("v_and_b32 v%d, 3, v0" % (T + 3))
    a("v_lshlrev_b32 v%d, 3, v%d" % (T + 4, T + 3))
    a("v_add_u32 v%d, s36, v%d" % (T + 4, T + 4))
    a("v_and_b32 v%d, 16, v0" % (T + 5))
    a("v_cmp_eq_u32 s[38:39], 0, v%d" % (T + 5))
    a("v_cndmask_b32 v%d, 32, v%d, s[38:39]" % (T + 4, T + 4))
    a("v_add_u32 v%d, v%d, v%d" % (vV, T + 2, T + 4))
    a("v_and_b32 v%d, 19, v0" % (T + 5))
    a("v_cmp_lt_u32 s[38:39], 16, v%d" % (T + 5))
    a("v_mov_b32 v%d, %d" % (T + 6, ONES))
    a("v_cndmask_b32 v%d, v%d, v%d, s[38:39]" % (vV, vV, T + 6))
    a("v_mov_b32 v%d, 2304" % (T + 6))
    a("v_cndmask_b32 v%d, v%d, 0, s[38:39]" % (vStep, T + 6))
    a("v_lshlrev_b32 v%d, 2, v%d" % (T + 2, T + 1))
    a("v_sub_u32 v%d, v%d, v%d" % (T + 2, T, T + 2))
    a("v_mov_b32 v%d, 0xffff" % (T + 3))
    for q in range(8):
        kl = 8 * (q >> 1) + 2 * (q & 1)
        a("v_cmp_le_i32 s[38:39], %d, v%d" % (kl, T + 2))
        a("v_cmp_le_i32 s[40:41], %d, v%d" % (kl + 1, T + 2))
        a("v_cndmask_b32 v%d, 0, v%d, s[38:39]" % (MSK + q, T + 3))
        a("v_cndmask_b32 v%d, v%d, -1, s[40:41]" % (MSK + q, MSK + q))
    a("s_lshl_b32 s41, s32, 2")
    a("s_add_u32 s41, s41, s43")
    a("s_sub_i32 s41, 8, s41")
    a("s_lshl_b32 s35, s32, 3")
    a("s_lshl_b32 s36, s43, 1")
    a("s_add_u32 s35, s35, s36")
    a("s_mul_i32 s35, s35, 18432")
    a("s_lshl_b32 s58, s31, 10")
    a("s_lshl_b32 s36, s42, 9")
    a("s_add_u32 s58, s58, s36")
    a("s_add_u32 s58, s58, s35")
    a("s_lshr_b32 s59, s31, 1")
    a("s_lshl_b32 s59, s59, 8")
    a("s_and_b32 s36, s31, 1")
    a("s_lshl_b32 s36, s36, 3")
    a("s_add_u32 s59, s59, s36")
    a("s_lshl_b32 s36, s42, 2")
    a("s_add_u32 s59, s59, s36")
    a("s_add_u32 s59, s59, s35")
    a("s_add_u32 s59, s59, 16384")
    a("v_bfe_u32 v152, v0, 4, 1")
    a("v_mul_u32_u24 v152, 18432, v152")
    a("v_and_b32 v153, 15, v0")
    a("v_lshl_add_u32 v152, v153, 4, v152")
    a("v_lshrrev_b32 v153, 5, v0")
    a("v_lshl_add_u32 v153, v153, 8, v152")
    a("v_cmp_gt_u32 vcc, 32, v0")
    a("s_cmp_eq_u32 s42, 0")
    a("s_cselect_b64 s[54:55], vcc, 0")
    a("s_cselect_b64 s[56:57], 0, vcc")
    a("v_and_b32 v%d, 3, v0" % (T + 2))
    a("v_mul_u32_u24 v%d, 576, v%d" % (T + 2, T + 2))
    a("v_mov_b32 v%d, 0x3f803f80" % (T + 4))
    a("v_mov_b32 v%d, v%d" % (T + 5, T + 4))
    a("v_lshlrev_b32 v%d, 4, v0" % (T + 3))
    srd_off(a, 36, 8, L.WS_QKV, L.QKV_BYTES)
    srd_off(a, 24, 8, L.WS_O, 128 * 18432)
    a("s_add_u32 s40, s3, 2")
    a("s_cmp_lt_u32 s3, 4")
    a("s_cselect_b32 s40, s3, s40")
    out_setup(a, 40)
    a("s_lshr_b32 s35, s2, 6")
    a("s_lshl_b32 s35, s35, 4")
    a("s_add_u32 s35, s35, s3")
    a("s_cmp_eq_u32 s35, %d" % (3 * 16 + 6))
    a("s_cbranch_scc0 L_nq2")
    lds_spin(a, "L_sp_x6", vC, C_XS, T + 8, (1,), 8)
    qpoll(a, vC, "L_qp2", False, T + 8)
    a.label("L_nq2")
    lds_spin(a, "L_go1", vC, C_1, T, (8, 1), OPT["g1s"])
    stamp(a, 5)
    for j in range(8):
        a("s_mov_b32 m0, s%d" % (16 + j))
        a("s_nop 0")
        a("buffer_load_dwordx4 v%d, s[36:39], s%d offen %s lds" % (T + 3, 44 + j, OPT["kvl"]))
    a("ds_write_b64 v%d, %s offset:%d" % (T + 2, vr(T + 4, 2), ONES))
    a("s_cmp_lt_u32 s32, 2")
    a("s_cbranch_scc1 L_late")
    landed(a, 1, 0)
    stage_spin(a, "L_sA", 0)
    stamp(a, 6)
    for x in q_reads() + k_reads(0) + k_reads(1) + v_reads(0):
        a(x)
    a("s_waitcnt lgkmcnt(7)")
    a("v_cndmask_b32 v%d, 0, v%d, s[54:55]" % (QT, QT))
    a("v_cndmask_b32 v%d, 0, v%d, s[56:57]" % (QT + 1, QT + 1))
    for x in qk(0):
        a(x)
    lds_inc(a, vC, T, C_B)
    x_loads(a)
    attn_loop(a)
    a.label("L_check")
    stamp(a, 7)
    a("s_mov_b32 s46, %s" % f32(2.0 ** 60))
    a("s_mov_b32 s47, %s" % f32(2.0 ** -60))
    a("s_mov_b32 s48, 0x7f800000")
    a("s_nop 7")
    a("s_nop 0")
    a("v_rcp_f32 v%d, v%d" % (T, OO + 12))
    a("v_cmp_gt_f32 s[50:51], s46, v%d" % (OO + 12))
    a("v_cmp_lt_f32 vcc, s47, v%d" % (OO + 12))
    for k in range(6):
        a("v_add_f32 v%d, abs(v%d), abs(v%d)" % (T + 2 + k, OO + 2 * k, OO + 2 * k + 1))
    a("s_and_b64 s[50:51], s[50:51], vcc")
    a("v_pk_add_f32 %s, %s, %s" % (vr(T + 2, 2), vr(T + 2, 2), vr(T + 4, 2)))
    a("v_pk_add_f32 %s, %s, %s" % (vr(T + 2, 2), vr(T + 2, 2), vr(T + 6, 2)))
    a("v_add_f32 v%d, v%d, v%d" % (T + 2, T + 2, T + 3))
    a("v_cmp_gt_f32 vcc, s48, v%d" % (T + 2))
    a("s_and_b64 s[50:51], s[50:51], vcc")
    a("s_cmp_eq_u64 s[50:51], -1")
    a("s_cbranch_scc0 L_slow")
    a.label("L_fin")
    a("s_cmp_eq_u32 s42, 0")
    a("s_cbranch_scc1 L_fa")
    a("v_mov_b32 v%d, v%d" % (OO + 8, OO + 10))
    a("v_mov_b32 v%d, v%d" % (OO + 9, OO + 11))
    a.label("L_fa")
    for k in range(0, 10, 2):
        a("v_pk_mul_f32 %s, %s, %s op_sel_hi:[1,0]" % (vr(OO + k, 2), vr(OO + k, 2), vr(T, 2)))
    for q in range(5):
        a("v_cvt_pk_bf16_f32 v%d, v%d, v%d" % (T + 4 + q, OO + 2 * q, OO + 2 * q + 1))
    a("buffer_store_dwordx4 %s, v153, s[24:27], s58 offen sc1" % vr(T + 4, 4))
    a("s_mov_b32 exec_hi, 0")
    a("buffer_store_dword v%d, v152, s[24:27], s59 offen sc1" % (T + 8))
    a("s_mov_b32 exec_hi, -1")


def q_reads():
    return ["ds_read_b64 %s, v%d offset:%d" % (vr(QM, 2), vK, QB),
            "ds_read_b64 %s, v%d offset:%d" % (vr(QM + 2, 2), vK, QB + 8),
            "ds_read_b64 %s, v%d offset:%d" % (vr(QT, 2), vKt, QB)]


sKH, sPAIR, sTILE, sGATE, sSLOT, sOB, sXO = 6, 7, 13, 14, 15, 28, 29
A0, vXO, vRW, vCH, vSW, vSR, vL16, vPX, vPF = 156, 142, 140, 141, 143, 144, 162, 160, 161
GB = 154624


def out_setup(a, role):
    a("s_and_b32 s%d, s%d, 1" % (sKH, role))
    a("s_lshr_b32 s%d, s%d, 1" % (sPAIR, role))
    a("s_mul_i32 s%d, s52, 5" % sTILE)
    a("s_and_b32 s33, s%d, 7" % sTILE)
    a("s_sub_u32 s34, 8, s33")
    a("s_cmp_lt_u32 s33, 4")
    a("s_cselect_b32 s34, 0, s34")
    a("s_add_u32 s34, s34, s%d" % sPAIR)
    a("s_sub_u32 s35, s34, 5")
    a("s_cmp_ge_u32 s34, 5")
    a("s_cselect_b32 s34, s35, s34")
    a("s_add_u32 s%d, s%d, s34" % (sTILE, sTILE))
    a("s_lshl_b32 s98, s34, 6")
    a("s_mov_b32 s%d, 0x404" % sGATE)
    a("s_bitcmp1_b32 s%d, 2" % sTILE)
    if not OPT["allg"]:
        a("s_cselect_b32 s%d, s%d, 4" % (sGATE, sGATE))
    a("s_mov_b32 s%d, %d" % (sSLOT, PSLOT[0]))
    for p in range(1, 5):
        a("s_cmp_eq_u32 s%d, %d" % (sPAIR, p))
        a("s_cselect_b32 s%d, %d, s%d" % (sSLOT, PSLOT[p], sSLOT))
    a("s_mul_i32 s%d, s%d, 18432" % (sOB, sTILE))
    a("s_lshl_b32 s33, s53, 7")
    a("s_add_u32 s%d, s%d, s33" % (sXO, sOB))
    a("s_lshl_b32 s33, s%d, 6" % sKH)
    a("s_add_u32 s%d, s%d, s33" % (sXO, sXO))
    a("s_mul_i32 s33, s%d, 9216" % sKH)
    a("s_add_u32 s%d, s%d, s33" % (sOB, sOB))
    a("s_add_u32 s96, s%d, 4096" % sOB)
    a("s_add_u32 s97, s%d, 8192" % sOB)
    a("v_lshrrev_b32 v%d, 2, v0" % vRW)
    a("v_and_b32 v%d, 3, v0" % vCH)
    a("v_mul_u32_u24 v%d, 1152, v%d" % (vXO, vRW))
    a("v_lshl_add_u32 v%d, v%d, 4, v%d" % (vXO, vCH, vXO))
    a("v_lshrrev_b32 v146, 2, v0")
    a("v_bfe_u32 v147, v0, 3, 2")
    a("v_lshlrev_b32 v147, 1, v147")
    a("v_bfe_u32 v148, v0, 1, 1")
    a("v_xor_b32 v147, v147, v148")
    a("v_and_b32 v148, 1, v0")
    a("v_lshlrev_b32 v148, 3, v148")
    a("v_lshl_add_u32 v148, v146, 7, v148")
    a("v_lshl_add_u32 v148, v147, 4, v148")
    a("s_mul_i32 s33, s%d, %d" % (sKH, 9 * 4096))
    a("s_add_u32 s33, s33, %d" % WO)
    a("s_lshl_b32 s34, s%d, 6" % sKH)
    a("v_xor_b32 v148, s34, v148")
    for t in range(4):
        a("v_xor_b32 v%d, %d, v148" % (A0 + t, 32 * t))
        a("v_add_u32 v%d, s33, v%d" % (A0 + t, A0 + t))
    a("v_lshlrev_b32 v%d, 4, v0" % vL16)
    a("s_lshl_b32 s33, s%d, 11" % sKH)
    a("s_add_u32 s%d, s%d, s33" % (sSLOT, sSLOT))
    a("v_add_u32 v%d, s%d, v%d" % (vPX, sSLOT, vL16))
    a("s_lshl_b32 s33, s33, 1")
    a("s_sub_u32 s33, 2048, s33")
    a("v_add_u32 v164, s33, v%d" % vPX)
    a("s_lshl_b32 s33, s%d, 1" % sPAIR)
    a("s_add_u32 s33, s33, s%d" % sKH)
    a("s_lshl_b32 s33, s33, 2")
    a("s_add_u32 s33, s33, %d" % CTL)
    a("v_mov_b32 v%d, s33" % vPF)
    a("v_xor_b32 v165, 4, v%d" % vPF)
    a("v_and_b32 v%d, 15, v0" % vSW)
    a("v_mul_u32_u24 v%d, 80, v%d" % (vSW, vSW))
    a("v_lshrrev_b32 v146, 4, v0")
    a("v_lshlrev_b32 v146, 3, v146")
    a("v_add3_u32 v%d, v%d, v146, s%d" % (vSW, vSW, sSLOT))
    a("v_mul_u32_u24 v%d, 80, v%d" % (vSR, vRW))
    a("v_lshl_add_u32 v%d, v%d, 4, v%d" % (vSR, vCH, vSR))
    a("v_add_u32 v%d, s%d, v%d" % (vSR, sSLOT, vSR))
    a("s_add_u32 s98, s98, %d" % GB)
    a("v_lshl_add_u32 v145, v%d, 2, s98" % vRW)
    a("s_cmp_lt_u32 s3, 4")
    a("s_cselect_b32 s33, 1, 0x100")
    a("v_mov_b32 v163, s33")


def x_loads(a):
    srd(a, 20, 4, 2048 * 1152)
    a("buffer_load_dwordx4 %s, v%d, s[20:23], s%d offen" % (vr(XR, 4), vXO, sXO))


def out_phase(a):
    WFR, OF, ACC, PX = (20, 36, 100), 64, (52, 56, 60, 116), (146, 120)
    a("s_cmp_ge_u32 s52, 26")
    a("s_cbranch_scc1 L_end")
    if not OPT["gissue"]:
        a("s_waitcnt vmcnt(0)")
    stamp(a, 8)
    a("s_mov_b64 exec, 1")
    a("ds_add_u32 v%d, v163 offset:%d" % (vC, C_O))
    a("s_mov_b64 exec, -1")
    a.label("L_out")

    def omx():
        for j in range(1):
            for q in range(4):
                xv = XR + 4 * j + q
                d = PX[j] + 2 * q
                a("v_lshlrev_b32 v%d, 16, v%d" % (d, xv))
                a("v_and_b32 v%d, 0xffff0000, v%d" % (d + 1, xv))
                a("v_pk_mul_f32 %s, %s, %s op_sel:[0,1] op_sel_hi:[1,1]" % (vr(d, 2), vr(d, 2), vr(GR + 2 * j, 2)))

    def reads(sl):
        st = WFR[sl % 3]
        return ["ds_read_b64_tr_b16 %s, v%d offset:%d" % (vr(st + 4 * t + 2 * sec, 2), A0 + t, (32 * sl + 16 * sec) * 128)
                for t in range(4) for sec in range(2)]

    lds_spin(a, "L_wo", vC, C_WO, 10, (2,), 0)
    for x in reads(0) + reads(1):
        a(x)
    a("s_mov_b32 s60, 0x200000")
    a.label("L_go2")
    a("ds_read_b64 v[10:11], v%d offset:%d" % (vC, C_O))
    a("s_waitcnt lgkmcnt(0)")
    a("v_readfirstlane_b32 s61, v10")
    a("v_readfirstlane_b32 s62, v11")
    a("s_and_b32 s61, s61, s%d" % sGATE)
    a("s_cmp_eq_u32 s61, s%d" % sGATE)
    a("s_cselect_b32 s62, s62, 0")
    a("s_cmp_eq_u32 s62, 1")
    a("s_cbranch_scc1 L_go2_d")
    a("s_sub_u32 s60, s60, 1")
    a("s_cbranch_scc0 L_go2")
    a.label("L_go2_d")
    if OPT["gissue"] == 2:
        a("s_cmp_eq_u32 s60, 0x200000")
        a("s_cbranch_scc1 L_go2_e")
        a("s_sleep %d" % OPT["cdel"])
        a.label("L_go2_e")
        a("s_waitcnt vmcnt(0)")
    elif OPT["cdel"]:
        a("s_sleep %d" % OPT["cdel"])
    stamp(a, 9)
    LAO = OPT["lao"]

    def oload(s):
        a("buffer_load_dwordx4 %s, v%d, s[24:27], s%d offen offset:%d sc1" % (vr(OF + 4 * s, 4), vL16, (sOB, 96, 97)[s // 4], 1024 * (s % 4)))

    def ocheck(sl):
        b = OF + 4 * sl
        if sl < 7:
            a("v_cmp_eq_u32 vcc, -1, v%d" % b)
        else:
            a("v_max3_u32 v10, v%d, v%d, v%d" % (b, b + 1, b + 2))
            a("v_max_u32 v10, v10, v%d" % (b + 3))
            a("v_cmp_eq_u32 vcc, -1, v10")
        a("s_nop 1")

    def oretry():
        for sl in range(9):
            a.label("L_or%d" % sl)
            a("s_sub_u32 s60, s60, 1")
            a("s_cbranch_scc1 L_ok%d" % sl)
            a("s_waitcnt vmcnt(0)")
            for s in range(sl, min(sl + LAO, 9)):
                oload(s)
            a("s_waitcnt vmcnt(%d)" % min(LAO - 1, 8 - sl))
            a("s_branch L_oc%d" % sl)

    RETRY.append(oretry)
    a("s_mov_b32 s60, 0x8000")
    for s in range(LAO):
        oload(s)
    a("ds_read_b32 v%d, v145" % GR)
    a("ds_read_b32 v10, v%d offset:%d" % (vC, C_IDX))
    srd(a, 20, 10, 2048 * 1152)
    a("s_waitcnt lgkmcnt(0) vmcnt(%d)" % LAO)
    a("v_readfirstlane_b32 s12, v10")
    a("v_sub_f32 v%d, 1.0, v%d" % (GR + 1, GR))
    bf16_round(a, GR + 1, GR + 1)
    omx()
    for sl in range(9):
        rd = reads(sl + 2) if sl < 7 else []
        a("s_waitcnt vmcnt(%d) lgkmcnt(%d)" % (min(LAO - 1, 8 - sl), 8 if sl < 8 else 0))
        a.label("L_oc%d" % sl)
        ocheck(sl)
        a("s_cbranch_vccnz L_or%d" % sl)
        a.label("L_ok%d" % sl)
        for t in range(4):
            d = vr(ACC[t], 4)
            a("v_mfma_f32_16x16x32_bf16 %s, %s, %s, %s" % (d, vr(WFR[sl % 3] + 4 * t, 4), vr(OF + 4 * sl, 4), "0" if sl == 0 else d))
            if t == 0 and sl + LAO < 9:
                oload(sl + LAO)
            for x in rd[2 * t:2 * t + 2]:
                a(x)
    stamp(a, 10)
    if OPT["stamp"]:
        a("s_sub_u32 s94, 0x8000, s60")
        a("s_mul_i32 s94, s94, 100")
        a("s_add_u32 s94, s94, s66")
        a("s_addc_u32 s95, s67, 0")
    a("v_mov_b32 v10, 1")
    a("ds_write_b128 v164, %s" % vr(ACC[2], 4))
    a("ds_write_b128 v164, %s offset:1024" % vr(ACC[3], 4))
    a("ds_write_b32 v165, v10 offset:%d" % C_PART)
    a("s_lshr_b32 s46, s12, 4")
    a("s_cmp_eq_u32 s46, s%d" % sTILE)
    a("s_cbranch_scc0 L_noy")
    lds_spin(a, "L_yw", vC, C_YRDY, 10, (1,))
    a("s_lshl_b32 s46, s%d, 7" % sKH)
    a("s_add_u32 s46, s46, %d" % YB)
    a("v_lshl_add_u32 v10, v%d, 5, s46" % vCH)
    a("ds_read_b128 v[12:15], v10")
    a("ds_read_b128 v[16:19], v10 offset:16")
    a("s_and_b32 s46, s12, 15")
    a("v_cmp_eq_u32 s[50:51], s46, v%d" % vRW)
    a("s_waitcnt lgkmcnt(0)")
    for q in range(4):
        xv = XR + q
        a("v_lshlrev_b32 v10, 16, v%d" % xv)
        a("v_and_b32 v11, 0xffff0000, v%d" % xv)
        a("v_add_f32 v10, v10, v%d" % (12 + 2 * q))
        a("v_add_f32 v11, v11, v%d" % (13 + 2 * q))
        a("v_cvt_pk_bf16_f32 v10, v10, v11")
        a("v_cndmask_b32 v%d, v%d, v10, s[50:51]" % (xv, xv))
    omx()
    a.label("L_noy")
    lds_spin(a, "L_pw", vPF, C_PART, 10, (1,), 0)
    stamp(a, 11)
    for t in range(2):
        a("ds_read_b128 %s, v%d offset:%d" % (vr(20 + 4 * t, 4), vPX, 1024 * t))
    a("s_waitcnt lgkmcnt(0)")
    for t in range(2):
        b = ACC[t]
        a("v_pk_add_f32 %s, %s, %s" % (vr(b, 2), vr(b, 2), vr(20 + 4 * t, 2)))
        a("v_pk_add_f32 %s, %s, %s" % (vr(b + 2, 2), vr(b + 2, 2), vr(22 + 4 * t, 2)))
        a("v_cvt_pk_bf16_f32 v%d, v%d, v%d" % (40 + 2 * t, b, b + 1))
        a("v_cvt_pk_bf16_f32 v%d, v%d, v%d" % (41 + 2 * t, b + 2, b + 3))
        a("ds_write_b64 v%d, %s offset:%d" % (vSW, vr(40 + 2 * t, 2), 32 * t))
    a("ds_read_b128 v[20:23], v%d" % vSR)
    a("s_waitcnt lgkmcnt(0)")
    for q in range(4):
        d = PX[0] + 2 * q
        a("v_lshlrev_b32 v%d, 16, v%d" % (10 + 2 * q, 20 + q))
        a("v_and_b32 v%d, 0xffff0000, v%d" % (11 + 2 * q, 20 + q))
        a("v_pk_fma_f32 %s, %s, %s, %s op_sel_hi:[1,0,1]" % (vr(d, 2), vr(10 + 2 * q, 2), vr(GR, 2), vr(d, 2)))
    for q in range(4):
        d = PX[0] + 2 * q
        a("v_cvt_pk_bf16_f32 v%d, v%d, v%d" % (32 + q, d, d + 1))
    a("buffer_store_dwordx4 v[32:35], v%d, s[20:23], s%d offen %s" % (vXO, sXO, OPT["ost"]))
    if OPT["stamp"]:
        stamp(a, 12)
        a("s_waitcnt vmcnt(0)")
        stamp(a, 13)
        stamp_end(a, OPT["stw"], 0)
        stamp_end(a, 10, 2)
    a("s_endpgm")


RETRY = []
GLATE = []


def late_and_slow(a):
    RETRY[0]()
    a.label("L_late")
    a("s_mul_i32 s50, s41, 2304")
    a("v_add_u32 v%d, s50, v%d" % (T + 8, vK))
    a("v_add_u32 v%d, s50, v%d" % (T + 9, vKt))
    a("v_mul_u32_u24 v%d, s41, v%d" % (T + 2, vStep))
    a("v_add_u32 v%d, v%d, v%d" % (vV, vV, T + 2))
    for r in list(range(OO, OO + 16)) + list(range(VF[0], VF[0] + 32)):
        a("v_mov_b32 v%d, 0" % r)
    landed(a, 1, 0)
    stage_spin(a, "L_lt", 0)
    for x in q_reads():
        a(x)
    a("s_waitcnt lgkmcnt(0)")
    lds_inc(a, vC, T, C_B)
    x_loads(a)
    a("s_bitcmp1_b32 s41, 0")
    a("s_cbranch_scc1 L_late1")
    for par in range(2):
        if par:
            a.label("L_late1")
        for x in k_reads(par, T + 8, T + 9, 0):
            a(x)
        for x in k_reads(par + 1, T + 8, T + 9, 0):
            a(x.replace("offset:8", "offset:2312").replace("offset:0", "offset:2304"))
        for x in v_reads(par):
            a(x)
        a("s_waitcnt lgkmcnt(7)")
        a("v_cndmask_b32 v%d, 0, v%d, s[54:55]" % (QT, QT))
        a("v_cndmask_b32 v%d, 0, v%d, s[56:57]" % (QT + 1, QT + 1))
        for x in qk(par):
            a(x)
        a("s_nop 7")
        a("s_nop 3")
        for i0 in range(2 - par, 9, 2):
            a("s_cmp_eq_u32 s41, %d" % i0)
            a("s_cbranch_scc1 L_it%d" % i0)
        a("s_branch L_it%d" % (8 - par))

    a.label("L_slow")
    vKs, vKts, vM, vD0, vNeg = T + 8, T + 9, T + 10, T + 11, T + 12
    a("v_and_b32 v%d, 31, v0" % T)
    a("v_lshrrev_b32 v%d, 5, v0" % (T + 1))
    a("v_lshlrev_b32 v%d, 2, v%d" % (vD0, T + 1))
    a("v_sub_u32 v%d, v%d, v%d" % (vD0, vD0, T))
    a("v_mov_b32 v%d, 0xff800000" % vNeg)
    a("v_mov_b32 v%d, v%d" % (vM, vNeg))
    a("s_max_i32 s50, s41, 0")
    a("s_sub_u32 s51, 8, s50")
    a("v_mul_u32_u24 v%d, s51, v%d" % (T, vStep))
    a("v_sub_u32 v%d, v%d, v%d" % (vV, vV, T))
    a("s_mul_i32 s51, s50, 2304")
    for r in range(16):
        a("v_mov_b32 v%d, 0" % (OO + r))
    for ps in range(2):
        lab = "L_sp%d" % ps
        a("v_add_u32 v%d, s51, v%d" % (vKs, vK))
        a("v_add_u32 v%d, s51, v%d" % (vKts, vKt))
        a("s_mov_b32 s46, s50")
        a.label(lab)
        for x in k_reads(0, vKs, vKts):
            a(x)
        if ps == 1:
            for x in v_reads(0):
                a(x)
        a("s_mov_b32 s47, -31")
        a("s_mov_b32 s48, 62")
        a("s_cmp_eq_u32 s46, 0")
        a("s_cselect_b32 s47, 1, s47")
        a("s_cselect_b32 s48, 30, s48")
        a("s_cmp_eq_u32 s46, 8")
        a("s_cselect_b32 s48, 31, s48")
        a("s_waitcnt lgkmcnt(0)")
        for x in qk(0):
            a(x)
        a("v_subrev_u32 v%d, s47, v%d" % (T, vD0))
        for r in range(16):
            a("v_add_u32 v%d, %d, v%d" % (T + 1, 8 * (r >> 2) + (r & 3), T))
            a("v_cmp_ge_u32 vcc, s48, v%d" % (T + 1))
            a("v_cndmask_b32 v%d, v%d, v%d, vcc" % (SS[0] + r, vNeg, SS[0] + r))
            if ps == 0:
                a("v_max_f32 v%d, v%d, v%d" % (vM, vM, SS[0] + r))
            else:
                a("v_sub_f32 v%d, v%d, v%d" % (SS[0] + r, SS[0] + r, vM))
                a("v_exp_f32 v%d, v%d" % (SS[0] + r, SS[0] + r))
        if ps == 1:
            for q in range(8):
                a("v_cvt_pk_bf16_f32 v%d, v%d, v%d" % (PP[0] + q, SS[0] + 2 * q, SS[0] + 2 * q + 1))
            for x in pv(0, False):
                a(x)
            a("v_add_u32 v%d, v%d, v%d" % (vV, vV, vStep))
        a("v_add_u32 v%d, 2304, v%d" % (vKs, vKs))
        a("v_add_u32 v%d, 2304, v%d" % (vKts, vKts))
        a("s_add_u32 s46, s46, 1")
        a("s_cmp_lt_u32 s46, 9")
        a("s_nop 7")
        a("s_nop 7")
        a("s_cbranch_scc1 %s" % lab)
        if ps == 0:
            a("v_mov_b32 v%d, v%d" % (T, vM))
            a("v_permlane32_swap_b32 v%d, v%d" % (T, vM))
            a("v_max_f32 v%d, v%d, v%d" % (vM, vM, T))
    a("v_rcp_f32 v%d, v%d" % (T, OO + 12))
    a("s_nop 1")
    a("s_branch L_fin")


def helpers(a):
    a.label("L_help")
    a("s_cmp_eq_u32 s3, 9")
    a("s_cbranch_scc0 L_help1")
    code_touch(a)
    a.label("L_help1")
    a("v_mov_b32 v3, %d" % CTL)
    for k in range(4):
        a("v_mov_b32 v%d, 0" % (4 + k))
    a("v_lshlrev_b32 v1, 4, v0")
    a("v_add_u32 v2, v1, v3")
    a("s_mov_b64 exec, 0xff")
    a("ds_write_b128 v2, v[4:7]")
    a("s_mov_b64 exec, -1")
    a("s_waitcnt lgkmcnt(0)")
    load_tag(a)
    a("s_barrier")
    a("s_barrier")
    a("s_waitcnt lgkmcnt(0)")
    make_tag(a)
    a.label("L_help2")
    decode2(a)
    a("s_cmp_eq_u32 s3, 8")
    a("s_cbranch_scc1 L_down")
    a("v_lshrrev_b32 v1, 5, v0")
    a("v_bfe_u32 v2, v0, 3, 2")
    a("v_lshrrev_b32 v10, 4, v0")
    a("v_lshlrev_b32 v10, 1, v10")
    a("v_and_b32 v11, 7, v0")
    a("v_xor_b32 v10, v10, v11")
    a("v_lshl_add_u32 v4, v1, 2, v2")
    a("v_mul_u32_u24 v4, 1152, v4")
    a("v_lshl_add_u32 v4, v10, 4, v4")
    a("v_mul_u32_u24 v5, 72, v1")
    a("v_add_u32 v5, v5, v2")
    a("v_mul_u32_u24 v5, 1152, v5")
    a("v_lshl_add_u32 v5, v10, 4, v5")
    a("s_sub_u32 s36, s3, 9")
    a("s_mul_i32 s37, s36, %d" % (20 * 1152))
    a("s_mul_i32 s43, s36, %d" % (144 * 1152))
    a("s_lshl_b32 s38, s36, 10")
    a("s_add_u32 s38, s38, %d" % WO)
    a("s_lshl_b32 s39, s53, 7")
    a("s_sub_u32 s42, %d, s39" % (576 * 1152))
    srd_off(a, 16, 28, "s39", "s42")
    srd_off(a, 24, 8, L.WS_O, 128 * 18432)
    a("v_mov_b32 v%d, %d" % (vC, CTL))
    a("s_sub_u32 s40, s3, 5")
    out_setup(a, 40)
    a("s_setprio %d" % OPT["pr3"])
    a("s_cmp_ge_u32 s2, 192")
    a("s_cbranch_scc1 L_wo_go")
    for k in range(9):
        a("s_barrier")
    a.label("L_wo_go")
    a("s_cmp_eq_u32 s3, 11")
    a("s_cbranch_scc1 L_ctl")
    a("s_cmp_ge_u32 s52, 26")
    a("s_cbranch_scc1 L_end")
    if OPT["woe"]:
        a("s_cmp_ge_u32 s2, 192")
        a("s_cbranch_scc1 L_wo_e_d")
        lds_spin(a, "L_wo_e", 3, C_FI, 10, (8,), 0)
    stamp(a, 5)
    for m in range(36):
        if m == OPT["woe"]:
            stage_spin(a, "L_wo_w", 0, 3, 10, 2)
        st, sec = m >> 1, m & 1
        a("s_add_u32 m0, s38, %d" % (2048 * m))
        if st < 16:
            a("s_add_u32 s40, s37, %d" % ((36 * st + 8 * sec) * 1152))
            a("buffer_load_dwordx4 v4, s[16:19], s40 offen lds")
        else:
            a("s_add_u32 s40, s43, %d" % ((288 * (st - 16) + 36 * sec + 16) * 1152))
            a("buffer_load_dwordx4 v5, s[16:19], s40 offen lds")
        if OPT["wth"] and m >= OPT["wth"] - 1:
            a("s_waitcnt vmcnt(%d)" % (OPT["wth"] - 1))
    x_loads(a)
    a("s_waitcnt vmcnt(1)")
    stamp(a, 6)
    lds_inc(a, 3, 4, C_WO)
    a("s_setprio 0")
    a("s_branch L_out")
    a.label("L_ctl")
    a("v_lshlrev_b32 v8, 7, v0")
    a("v_add_u32 v9, %d, v8" % (L.WS_FLAG + F_PA * 128))
    a("s_mul_i32 s46, s52, 5")
    a("s_lshr_b32 s46, s46, 3")
    a("s_min_u32 s46, s46, 14")
    a("s_lshl_b32 s46, s46, 11")
    a("s_add_u32 s46, s46, %d" % (L.WS_FLAG + F_O * 128))
    a("v_add_u32 v8, s46, v8")
    a("s_lshl_b32 s46, s32, 4")
    a("s_add_u32 s46, s46, s31")
    a("s_lshl_b32 s46, s46, 7")
    a("s_add_u32 s46, s46, %d" % (L.WS_FLAG + F_O * 128))
    a("v_mov_b32 v14, s46")
    a("v_mov_b32 v15, s%d" % TAG)
    a("s_cmp_ge_u32 s2, 192")
    a("s_cbranch_scc1 L_ct_0")
    qpoll(a, 3, "L_qp1", True)
    a.label("L_ct_0")
    AUXLATE = OPT["auxp"]
    def aux():
        flag_poll(a, "L_pap", 9, 4, "s%d" % TAG, 64, 8, 3)
        a("v_mov_b32 v10, v5")
        a("v_mov_b32 v11, v6")
        a("v_mov_b32 v4, 1")
        a("ds_write_b64 v3, v[10:11] offset:%d" % C_IDX)
        a("ds_write_b32 v3, v4 offset:%d" % C_PA)
        srd_off(a, 16, 8, L.WS_G, 8192)
        a("s_mul_i32 s40, s52, 320")
        a("v_lshlrev_b32 v4, 2, v0")
        a("buffer_load_dword v5, v4, s[16:19], s40 offen sc1")
        a("buffer_load_dword v6, v4, s[16:19], s40 offen offset:256 sc1")
        a("v_add_u32 v4, %d, v4" % GB)
        GLATE.append(1)
        stamp(a, 5)

    if not AUXLATE:
        aux()
    a("v_bfe_u32 v20, v0, 4, 1")
    a("v_mul_u32_u24 v20, 18432, v20")
    a("v_and_b32 v21, 15, v0")
    a("v_lshl_add_u32 v20, v21, 4, v20")
    a("v_lshrrev_b32 v21, 5, v0")
    a("v_lshl_add_u32 v22, v21, 2, v20")
    a("v_lshl_add_u32 v21, v21, 8, v20")
    for k in range(4):
        a("v_mov_b32 v%d, -1" % (24 + k))
    a("s_mul_i32 s54, s32, %d" % (8 * 18432))
    a("s_lshl_b32 s55, s31, 10")
    a("s_add_u32 s55, s55, s54")
    a("s_lshr_b32 s56, s31, 1")
    a("s_lshl_b32 s56, s56, 8")
    a("s_and_b32 s57, s31, 1")
    a("s_lshl_b32 s57, s57, 3")
    a("s_add_u32 s56, s56, s57")
    a("s_add_u32 s56, s56, s54")
    a("s_add_u32 s56, s56, 16384")
    if OPT["pearly"]:
        lds_spin(a, "L_ct_p", 3, C_1, 10, (8, 1), 0)
        a("s_sleep %d" % OPT["pearly"])
    else:
        stage_spin(a, "L_ct_p", 0, 3, 10, 0)
    for j in range(4):
        a("buffer_store_dword v24, v22, s[24:27], s56 offen sc1")
        a("buffer_store_dwordx4 v[24:27], v21, s[24:27], s55 offen sc1")
        a("buffer_store_dwordx4 v[24:27], v21, s[24:27], s55 offen offset:512 sc1")
        a("s_add_u32 s55, s55, %d" % (2 * 18432))
        a("s_add_u32 s56, s56, %d" % (2 * 18432))
    a("v_mov_b32 v4, 1")
    a("s_waitcnt vmcnt(0)")
    a("ds_write_b32 v3, v4 offset:%d" % C_C)
    a("s_mov_b64 exec, 1")
    a("global_store_dword v14, v15, s[8:9] sc1")
    a("s_mov_b64 exec, -1")
    stamp(a, 6)
    lds_spin(a, "L_ct_q", 3, C_B, 10, (8,), 1)
    if AUXLATE:
        aux()
    else:
        a("s_sleep %d" % OPT["slp3"])
    flag_poll(a, "L_op", 8, 12, "s%d" % TAG, 32, 2)
    a("ds_write_b32 v4, v5")
    a("ds_write_b32 v4, v6 offset:256")
    lds_inc(a, 3, 10, C_GO2)
    stamp(a, 7)
    stamp_end(a, 11 if OPT["st11"] else 99, 3)
    a("ds_read_b64 v[10:11], v3 offset:%d" % C_IDX)
    a("s_waitcnt lgkmcnt(0)")
    a("v_readfirstlane_b32 s12, v10")
    a("v_readfirstlane_b32 s13, v11")
    a("s_mul_i32 s46, s52, 80")
    a("s_sub_u32 s46, s12, s46")
    a("s_cmp_lt_u32 s46, 80")
    a("s_cbranch_scc0 L_end")
    a("v_lshlrev_b32 v4, 7, v0")
    a("v_add_u32 v4, %d, v4" % (L.WS_FLAG + F_Y * 128))
    srd_off(a, 16, 8, L.WS_YP, 16 * 2304)
    a("v_lshrrev_b32 v6, 4, v0")
    a("v_mul_u32_u24 v6, 2304, v6")
    a("v_and_b32 v7, 15, v0")
    a("v_lshlrev_b32 v7, 4, v7")
    a("v_add_u32 v6, v6, v7")
    a("v_add_u32 v7, %d, v7" % YB)
    a("s_lshl_b32 s40, s53, 8")
    flag_poll(a, "L_yp", 4, 5, "12", 16, 2)
    for i in range(4):
        a("buffer_load_dwordx4 %s, v6, s[16:19], s40 offen sc1" % vr(8 + 4 * i, 4))
        a("s_add_u32 s40, s40, %d" % (4 * 2304))
    a("s_waitcnt vmcnt(0)")
    for i in range(1, 4):
        a("v_pk_add_f32 v[8:9], v[8:9], %s" % vr(8 + 4 * i, 2))
        a("v_pk_add_f32 v[10:11], v[10:11], %s" % vr(10 + 4 * i, 2))
    for k in range(4):
        a("v_mov_b32 v20, v%d" % (8 + k))
        a("v_permlane32_swap_b32 v20, v%d" % (8 + k))
        a("v_add_f32 v%d, v%d, v20" % (8 + k, 8 + k))
        a("v_mov_b32 v20, v%d" % (8 + k))
        a("v_permlane16_swap_b32 v20, v%d" % (8 + k))
        a("v_add_f32 v%d, v%d, v20" % (8 + k, 8 + k))
        bf16_round(a, 8 + k, 8 + k)
        a("v_mul_f32 v%d, s13, v%d" % (8 + k, 8 + k))
        bf16_round(a, 8 + k, 8 + k)
    a("v_mov_b32 v12, 1")
    a("ds_write_b128 v7, v[8:11]")
    a("ds_write_b32 v3, v12 offset:%d" % C_YRDY)
    a("s_cmp_eq_u32 s53, 0")
    a("s_cbranch_scc0 L_end")
    a("v_mov_b32 v4, %d" % L.WS_EPOCH)
    a("v_mov_b32 v5, s%d" % TAG)
    a("s_mov_b64 exec, 1")
    a("global_store_dword v4, v5, s[8:9]")
    a("s_endpgm")

    a.label("L_down")
    a("s_cmp_ge_u32 s2, 192")
    a("s_cbranch_scc1 L_end")
    DW, DA = 20, 128
    a("v_lshrrev_b32 v2, 3, v0")
    a("v_and_b32 v10, 7, v0")
    a("v_mul_u32_u24 v16, 1152, v2")
    a("v_lshl_add_u32 v16, v10, 4, v16")
    a("s_mul_i32 s36, s2, 24")
    a("v_mul_u32_u24 v12, %d, v10" % (4608 * 16))
    a("v_add_u32 v11, s36, v2")
    a("v_lshl_add_u32 v17, v11, 4, v12")
    a("v_cmp_gt_u32 s[56:57], 7, v10")
    a("s_mul_i32 s37, s2, %d" % (24 * 1152))
    a("v_and_b32 v1, 1, v0")
    a("v_lshlrev_b32 v1, 4, v1")
    sel_masks(a, 44, 11)
    a("v_lshrrev_b32 v11, 5, v0")
    a("v_bfe_u32 v12, v0, 3, 1")
    a("v_cmp_eq_u32 s[52:53], v11, v12")
    a("v_mul_u32_u24 v12, 2304, v12")
    a("v_bfe_u32 v11, v0, 4, 1")
    a("v_lshl_add_u32 v12, v11, 7, v12")
    a("v_lshl_add_u32 v12, v10, 2, v12")
    a("v_add_u32 v164, %d, v12" % HP)
    a("v_lshlrev_b32 v165, 2, v0")
    a("v_add_u32 v166, %d, v165" % HP)
    a("s_and_b32 s38, s2, 15")
    a("s_mul_i32 s39, s38, 2304")
    a("s_add_u32 s39, s39, %d" % L.WS_YP)
    a("v_add_u32 v165, s39, v165")
    a("s_lshl_b32 s38, s38, 7")
    a("s_add_u32 s38, s38, %d" % (L.WS_FLAG + F_Y * 128))
    srd_off(a, 16, 14, "s37", 24 * 1152)
    srd_off(a, 20, 8, L.WS_PA, 7 * 4608 * 16)
    def dloads(ts=(0, 1, 2)):
        for t in (() if OPT["nodown"] else ts):
            a("s_movk_i32 s40, %d" % (9216 * t))
            for cg in range(9):
                a("buffer_load_dwordx4 %s, v16, s[16:19], s40 offen offset:%d %s" % (vr(DW + 4 * (9 * t + cg), 4), 128 * cg, "" if OPT["dtouch"] else "nt"))

    for k in range(2, 11):
        if OPT["dsplit"]:
            if k in (8, 9, 10):
                dloads((k - 8,))
        elif k == OPT["dpos"]:
            dloads()
        a("s_barrier")
    if OPT["dpos"] == -1:
        a("s_setprio 3")
        stage_spin(a, "L_dn_w2", 0, 3, 10, 0)
        dloads()
    elif OPT["dpos"] == -2:
        a("s_setprio 3")
        lds_spin(a, "L_dn_w2", 3, C_WO, 10, (2,), 2)
        dloads()
    elif OPT["dpos"] == -3:
        a("s_setprio 3")
        lds_spin(a, "L_dn_w2", 3, C_1, 10, (8, 1), 0)
        a("s_sleep 8")
        dloads()
    elif OPT["w8e"] == 2:
        lds_spin(a, "L_dn_w2", 3, C_1, 10, (8, 1), 2)
        a("s_sleep 6")
    elif OPT["w8e"]:
        lds_spin(a, "L_dn_w2", 3, C_1, 10, (8,), 2)
    else:
        stage_spin(a, "L_dn_w2", 0, 3, 10, 2)
    stamp(a, 5)
    a("s_setprio %d" % OPT["pr1"])
    a("s_mov_b32 s60, 0x40000")
    a.label("L_dn_pa")
    a("buffer_load_dwordx3 v[4:6], v17, s[20:23], 0 offen sc1")
    a("buffer_load_dwordx3 v[8:10], v17, s[20:23], 0 offen offset:128 sc1")
    a("buffer_load_dwordx3 v[160:162], v17, s[20:23], 0 offen offset:256 sc1")
    a("s_waitcnt vmcnt(0)")
    a("v_cmp_ne_u32 vcc, s%d, v6" % TAG)
    a("v_cmp_ne_u32 s[40:41], s%d, v10" % TAG)
    a("v_cmp_ne_u32 s[42:43], s%d, v162" % TAG)
    a("s_or_b64 vcc, vcc, s[40:41]")
    a("s_or_b64 vcc, vcc, s[42:43]")
    a("s_and_b64 vcc, vcc, s[56:57]")
    a("s_cmp_eq_u64 vcc, 0")
    a("s_cbranch_scc1 L_dn_pb")
    a("s_sleep 8")
    a("s_sub_u32 s60, s60, 1")
    a("s_cbranch_scc0 L_dn_pa")
    a.label("L_dn_pb")
    stamp(a, 8)
    a("v_mov_b32 v6, v8")
    a("v_mov_b32 v7, v9")
    a("v_mov_b32 v8, v160")
    a("v_mov_b32 v9, v161")
    sum8(a, (4, 5, 6, 7, 8, 9))
    for t in range(3):
        g, u = 4 + 2 * t, 5 + 2 * t
        bf16_round(a, g, g)
        bf16_round(a, u, u)
        sigmoid(a, 10, g)
        a("v_mul_f32 v%d, v%d, v10" % (g, g))
        bf16_round(a, g, g)
        a("v_mul_f32 v%d, v%d, v%d" % (g, g, u))
        a("v_cvt_pk_bf16_f32 v%d, v%d, v%d" % (g, g, g))
        a("v_and_b32 v%d, 0xffff, v%d" % (g, g))
        a("v_lshlrev_b32 v%d, v1, v%d" % (g, g))
    for t in range(3):
        selector(a, 12, 4 + 2 * t, 44)
        for cg in range(9):
            d = vr(DA + 4 * cg, 4)
            a("v_mfma_f32_16x16x32_bf16 %s, %s, v[12:15], %s" % (d, vr(DW + 4 * (9 * t + cg), 4), "0" if t == 0 else d))
    a("s_mov_b64 exec, s[52:53]")
    for cg in range(9):
        for r in range(4):
            a("ds_write_b32 v164, v%d offset:%d" % (DA + 4 * cg + r, 256 * cg + 32 * r))
    a("s_mov_b64 exec, -1")
    for cg in range(9):
        a("ds_read2st64_b32 %s, v166 offset0:%d offset1:%d" % (vr(20 + 2 * cg, 2), cg, cg + 9))
    if OPT["atw"]:
        lds_spin(a, "L_dn_at", 3, C_WO, 10, (2,), 2)
    else:
        stage_spin(a, "L_dn_at", 0, 3, 10, 2)
    lds_spin(a, "L_dn_ax", 3, C_PA, 10, (1,), 1)
    for cg in range(9):
        a("v_add_f32 v%d, v%d, v%d" % (20 + 2 * cg, 20 + 2 * cg, 21 + 2 * cg))
        if not OPT["noat"]:
            a("global_atomic_add_f32 v165, v%d, s[8:9] offset:%d" % (20 + 2 * cg, 256 * cg))
    a("v_mov_b32 v4, s38")
    a("v_mov_b32 v5, 1")
    a("s_waitcnt vmcnt(0)")
    stamp(a, 7)
    a("s_mov_b64 exec, 1")
    a("global_atomic_add v4, v5, s[8:9] sc1")
    stamp_end(a, 8, 1)


def kf(a):
    a.label(NAME)
    a("s_cmp_ge_u32 s2, 256")
    a("s_cbranch_scc1 L_end")
    stamp_init(a)
    stamp(a, 0)
    a("s_load_dwordx4 s[4:7], s[0:1], 0")
    a("s_load_dwordx2 s[8:9], s[0:1], 88")
    a("s_load_dwordx2 s[10:11], s[0:1], 72")
    a("s_load_dwordx2 s[14:15], s[0:1], 56")
    a("s_load_dwordx2 s[28:29], s[0:1], 16")
    a("v_lshrrev_b32 v1, 6, v0")
    a("v_and_b32 v0, 63, v0")
    a("v_readfirstlane_b32 s3, v1")
    a("s_and_b32 s30, s2, 3")
    a("s_bfe_u32 s31, s2, 0x10002")
    a("s_lshr_b32 s32, s2, 3")
    a("s_cmp_ge_u32 s32, 24")
    a("s_cbranch_scc1 L_sp")
    a("s_cmp_ge_u32 s3, 8")
    a("s_cbranch_scc1 L_help")
    gemm_phase(a)
    attention_phase(a)
    out_phase(a)
    late_and_slow(a)
    spare_phase(a)
    helpers(a)
    a.label("L_end")
    a("s_endpgm")
```

```python
from asmdsl import vr, sr
import layout as L
from common import *
from k2 import (KB, VB, QB, ONES, vK, vKt, vV, vStep, QM, QT, MSK, KF, VF, PP, SS, OO, T,
                k_reads, v_reads, qk, pv)

NAME = "gated_mix__sliding_block__moe_arch_mod__prompt_kernel"
SLOT = 34816
IMG = SLOT
WO = 66560
CTL = 149568
YB = 149696
HP = 150016
YT = 154624
XS = 156672
KF_LDS = 162304
PSLOT = (QB, QB + 4096, 140288, 144384, 158208)
KF_VGPR = 168
PART = 0
STG = 20480
XR, GR = 128, 136
vC = 154
TAG = 65
C_O, C_GO2, C_A, C_WO, C_PART, C_YRDY, C_B, C_1, C_GO1, C_C, C_PA, C_IDX, C_RSEL = 0, 4, 8, 12, 88, 32, 36, 40, 44, 48, 52, 56, 60
C_KMAX, C_KCNT, C_XS, C_GD, C_RED, C_RED2, C_FI = 64, 68, 72, 76, 80, 84, 16
F_Q, F_O, F_PA, F_Y = 0, 192, 448, 512


def lds_spin(a, name, addr_v, off, regs, conds, slp=1):
    n = len(conds)
    a("s_mov_b32 s60, 0x200000")
    a.label(name)
    a(("ds_read_b64 %s, v%d offset:%d" % (vr(regs, 2), addr_v, off)) if n == 2 else
      ("ds_read_b32 v%d, v%d offset:%d" % (regs, addr_v, off)))
    a("s_waitcnt lgkmcnt(0)")
    a("v_readfirstlane_b32 s61, v%d" % regs)
    if n == 2:
        a("v_readfirstlane_b32 s62, v%d" % (regs + 1))
        a("s_lshl_b32 s62, s62, 8")
        a("s_or_b32 s61, s61, s62")
        a("s_cmp_eq_u32 s61, %d" % (conds[0] | (conds[1] << 8)))
    else:
        a("s_cmp_eq_u32 s61, %d" % conds[0])
    a("s_cbranch_scc1 %s_d" % name)
    if slp:
        a("s_sleep %d" % slp)
    a("s_sub_u32 s60, s60, 1")
    a("s_cmp_lg_u32 s60, 0")
    a("s_cbranch_scc1 %s" % name)
    a.label(name + "_d")


def stage_spin(a, name, stage, vc=vC, T=T, slp=0):
    a("s_mov_b32 s60, 0x200000")
    a.label(name)
    a("ds_read_b32 v%d, v%d offset:%d" % (T, vc, C_A))
    a("s_waitcnt lgkmcnt(0)")
    a("v_readfirstlane_b32 s61, v%d" % T)
    a("s_bitcmp1_b32 s61, %d" % (8 * stage + 3))
    a("s_cbranch_scc1 %s_d" % name)
    if slp:
        a("s_sleep %d" % slp)
    a("s_sub_u32 s60, s60, 1")
    a("s_cmp_lg_u32 s60, 0")
    a("s_cbranch_scc1 %s" % name)
    a.label(name + "_d")


def landed(a, inc, vm):
    a("v_mov_b32 v%d, %s" % (T, hex(inc)))
    a("s_waitcnt vmcnt(%d)" % vm)
    a("s_mov_b64 exec, 1")
    a("ds_add_u32 v%d, v%d offset:%d" % (vC, T, C_A))
    a("s_mov_b64 exec, -1")


def poison(a):
    if OPT["nopois"]:
        a("s_nop 0")
        a("buffer_load_dword v155, v152, s[24:27], s59 offen")
        a("buffer_load_dword v155, v152, s[24:27], s59 offen")
        return
    for k in range(4):
        a("v_mov_b32 v%d, -1" % (120 + k))
    a("buffer_store_dwordx4 %s, v153, s[24:27], s58 offen sc1" % vr(120, 4))
    a("s_mov_b32 exec_hi, 0")
    a("buffer_store_dword v%d, v152, s[24:27], s59 offen sc1" % 120)
    a("s_mov_b32 exec_hi, -1")


def tail_touch(a):
    a("buffer_load_dword v155, v152, s[24:27], s59 offen")


def flag_poll(a, name, voff, vt, want, lanes, slp=1, width=1):
    a("s_mov_b64 exec, %s" % ("-1" if lanes == 64 else hex((1 << lanes) - 1)))
    a("s_mov_b32 s60, 0x40000")
    a.label(name)
    a("global_load_dword%s %s, v%d, s[8:9] sc1" % ("" if width == 1 else "x%d" % width, vr(vt, width), voff))
    a("s_waitcnt vmcnt(0)")
    a("v_cmp_eq_u32 vcc, %s, v%d" % (want, vt))
    a("s_cmp_eq_u64 vcc, exec")
    a("s_cbranch_scc1 %s_d" % name)
    if slp:
        a("s_sleep %d" % slp)
    a("s_sub_u32 s60, s60, 1")
    a("s_cmp_lg_u32 s60, 0")
    a("s_cbranch_scc1 %s" % name)
    a.label(name + "_d")
    a("s_mov_b64 exec, -1")


def lds_inc(a, vz, vt, off, rtn=False):
    a("v_mov_b32 v%d, 1" % vt)
    a("s_mov_b64 exec, 1")
    if rtn:
        a("ds_add_rtn_u32 v%d, v%d, v%d offset:%d" % (vt, vz, vt, off))
    else:
        a("ds_add_u32 v%d, v%d offset:%d" % (vz, vt, off))
    a("s_mov_b64 exec, -1")


def load_tag(a):
    a("s_mov_b32 s64, %d" % L.WS_EPOCH)
    a("s_load_dword s%d, s[8:9], s64" % TAG)


def make_tag(a):
    a("s_mul_i32 s%d, s%d, 0x9e3779b1" % (TAG, TAG))
    a("s_add_u32 s%d, s%d, 0x7f4a7c15" % (TAG, TAG))


def copy_scalars(a):
    a("s_mul_i32 s55, s34, %d" % (4 * L.PAIR_BYTES))
    a("s_mul_i32 s56, s35, 9216")
    a("s_add_u32 s55, s55, s56")
    a("s_lshl_b32 s56, s3, 10")
    a("s_add_u32 s55, s55, s56")
    for j in range(5):
        a("s_add_u32 s57, s3, %d" % (8 * j))
        a("s_mul_i32 s57, s57, 57")
        a("s_lshr_b32 s57, s57, 9")
        a("s_mul_i32 s57, s57, %d" % (L.PAIR_BYTES - 9216))
        a("s_add_u32 s57, s57, s55")
        a("s_add_u32 s%d, s57, %d" % (50 + j, 8192 * j))
    a("s_mul_i32 s58, s35, 12")
    a("s_add_u32 s58, s58, s34")
    a("s_lshl_b32 s58, s58, 7")
    a("s_add_u32 s58, s58, %d" % (L.WS_FLAG + F_Q * 128))


def decode2(a):
    if OPT["amap"]:
        a("s_and_b32 s31, s2, 7")
        a("s_lshl_b32 s31, s31, 1")
        a("s_bfe_u32 s32, s2, 0x10003")
        a("s_add_u32 s31, s31, s32")
        a("s_lshr_b32 s30, s31, 2")
        a("s_lshr_b32 s32, s2, 4")
        a("s_add_u32 s32, s32, 4")
        a("s_and_b32 s32, s32, 15")
    else:
        a("s_and_b32 s30, s2, 3")
        a("s_bfe_u32 s33, s2, 0x10002")
        a("s_bfe_u32 s32, s2, 0x20003")
        a("s_lshl_b32 s31, s30, 2")
        a("s_add_u32 s31, s31, s32")
        a("s_lshl_b32 s32, s33, 3")
        a("s_lshr_b32 s34, s2, 5")
        if OPT["light"]:
            a("s_add_u32 s34, s34, 2")
            a("s_and_b32 s34, s34, 7")
        a("s_add_u32 s32, s32, s34")
    a("s_lshr_b32 s33, s2, 3")
    a("s_mul_i32 s34, s33, 57")
    a("s_lshr_b32 s34, s34, 9")
    a("s_mul_i32 s53, s34, 9")
    a("s_sub_u32 s53, s33, s53")
    a("s_lshl_b32 s52, s34, 3")
    a("s_and_b32 s34, s2, 7")
    a("s_add_u32 s52, s52, s34")
    a("s_sub_u32 s33, s2, 216")
    a("s_mul_i32 s34, s33, 57")
    a("s_lshr_b32 s34, s34, 9")
    a("s_mul_i32 s35, s34, 9")
    a("s_sub_u32 s33, s33, s35")
    a("s_add_u32 s34, s34, 24")
    a("s_cmp_ge_u32 s2, 216")
    a("s_cselect_b32 s52, s34, s52")
    a("s_cselect_b32 s53, s33, s53")


def qpoll(a, vc, name, own, r=16):
    R = dict(a=r, b=r + 1, c=r + 2)
    a("v_add_u32 v%(a)d, 2, v0" % R)
    a("v_mul_u32_u24 v%(b)d, 43, v%(a)d" % R)
    a("v_lshrrev_b32 v%(b)d, 7, v%(b)d" % R)
    a("v_mul_u32_u24 v%(c)d, 3, v%(b)d" % R)
    a("v_sub_u32 v%(a)d, v%(a)d, v%(c)d" % R)
    a("s_sub_u32 s35, s32, 2")
    a("v_add_u32 v%(a)d, s35, v%(a)d" % R)
    a("v_max_i32 v%(a)d, 0, v%(a)d" % R)
    a("v_mul_u32_u24 v%(a)d, 12, v%(a)d" % R)
    a("v_lshl_add_u32 v%(a)d, v%(b)d, 2, v%(a)d" % R)
    a("v_add_u32 v%(a)d, s30, v%(a)d" % R)
    a("v_lshlrev_b32 v%(a)d, 7, v%(a)d" % R)
    a("v_add_u32 v%d, %d, v%d" % (r, L.WS_FLAG + F_Q * 128, r))
    if own:
        lds_spin(a, name + "w", vc, C_1, r + 2, (8,), 0)
    if OPT["qdel"]:
        a("s_sleep %d" % OPT["qdel"])
    if OPT["qpipe"] and own:
        NP = OPT["qpipe"]
        a("s_mov_b64 exec, 0x7f")
        a("s_mov_b32 s60, 0x20000")
        for k in range(NP - 1):
            a("global_load_dword v%d, v%d, s[8:9] sc1" % (r + 3 + k, r))
            a("s_sleep 1")
        a.label(name)
        for k in range(NP):
            a("global_load_dword v%d, v%d, s[8:9] sc1" % (r + 3 + (k + NP - 1) % NP, r))
            a("s_waitcnt vmcnt(%d)" % (NP - 1))
            a("v_cmp_eq_u32 vcc, s%d, v%d" % (TAG, r + 3 + k))
            a("s_cmp_eq_u64 vcc, exec")
            a("s_cbranch_scc1 %s_d" % name)
        a("s_sub_u32 s60, s60, 1")
        a("s_cbranch_scc0 %s" % name)
        a.label(name + "_d")
        a("s_mov_b64 exec, -1")
    else:
        flag_poll(a, name, r, r + 1, "s%d" % TAG, 7, OPT["qslp"])
    lds_inc(a, vc, r + 2, C_GO1)


def code_touch(a):
    if not OPT["ctouch"]:
        return
    lab = a.newlabel("pc")
    a("s_getpc_b64 s[20:21]")
    a.label(lab)
    a("s_sub_u32 s20, s20, %s-%s" % (lab, NAME))
    a("s_subb_u32 s21, s21, 0")
    a("s_lshr_b32 s22, s2, 3")
    a("s_mul_i32 s22, s22, %d" % (12 * 128))
    a("v_lshlrev_b32 v20, 7, v0")
    a("v_add_u32 v20, s22, v20")
    a("v_min_u32 v20, L_end-%s, v20" % NAME)
    a("s_mov_b64 exec, 0xfff")
    a("global_load_dword v21, v20, s[20:21]")
    a("s_mov_b64 exec, -1")


def gemm_phase(a):
    if OPT["gmap"]:
        a("s_lshr_b32 s33, s32, 1")
        a("s_mul_i32 s33, s33, 43")
        a("s_lshr_b32 s33, s33, 7")
        a("s_mul_i32 s34, s33, 6")
        a("s_sub_u32 s34, s32, s34")
        a("s_and_b32 s35, s34, 1")
        a("s_lshr_b32 s34, s34, 1")
        a("s_lshl_b32 s34, s34, 2")
        a("s_add_u32 s34, s34, s35")
        a("s_and_b32 s35, s2, 1")
        a("s_lshl_b32 s35, s35, 1")
        a("s_add_u32 s34, s34, s35")
        a("s_bfe_u32 s35, s2, 0x20001")
        a("s_lshl_b32 s35, s35, 2")
        a("s_add_u32 s35, s35, s33")
    else:
        a("s_mul_i32 s33, s32, 43")
        a("s_lshr_b32 s33, s33, 7")
        a("s_mul_i32 s34, s33, 3")
        a("s_sub_u32 s34, s32, s34")
        a("s_lshl_b32 s34, s34, 2")
        a("s_add_u32 s34, s34, s30")
        a("s_lshl_b32 s35, s31, 3")
        a("s_add_u32 s35, s35, s33")
    a("s_cmp_lt_u32 s3, 4")
    a("s_cbranch_scc1 L_comp")
    a("s_cmp_lt_u32 s3, 6")
    a("s_cbranch_scc0 L_ldw")
    a("s_sub_u32 s36, s3, 4")
    SH = 4 if OPT["gmap"] else 3
    a("v_and_b32 v7, %d, v0" % ((1 << SH) - 1))
    a("s_lshl_b32 s41, s33, %d" % SH)
    a("s_lshl_b32 s42, s36, 6")
    a("s_add_u32 s41, s41, s42")
    a("v_add_u32 v7, s41, v7")
    a("v_mul_u32_u24 v7, 3456, v7")
    a("v_lshrrev_b32 v1, %d, v0" % SH)
    a("v_lshl_add_u32 v7, v1, 7, v7")
    a("v_lshrrev_b32 v1, 3, v0")
    a("s_mul_i32 s39, s35, %d" % (128 * 1152))
    a("s_mul_i32 s46, s34, 288")
    a("s_and_b32 s46, s46, 0xffffff80")
    a("s_sub_u32 s47, %d, s46" % (576 * 3456))
    a("v_mul_u32_u24 v1, 1152, v1")
    a("v_lshrrev_b32 v2, 4, v0")
    a("v_and_b32 v3, 7, v0")
    a("v_xor_b32 v3, v3, v2")
    a("v_lshl_add_u32 v4, v3, 4, v1")
    a("v_xor_b32 v3, 4, v3")
    a("v_lshl_add_u32 v5, v3, 4, v1")
    a("v_add_u32 v5, %d, v5" % (8 * 1152))
    a("s_mul_i32 s37, s36, %d" % (64 * 1152))
    a("s_lshl_b32 s38, s36, 13")
    a("s_waitcnt lgkmcnt(0)")
    srd_off(a, 20, 6, "s46", "s47")
    if OPT["gmap"]:
        a("s_mov_b32 exec_hi, 0xffff")
    else:
        a("s_mov_b64 exec, 0xffffff")
    a("buffer_load_dword v20, v7, s[20:23], 0 offen")
    a("s_mov_b64 exec, -1")
    srd_off(a, 16, 4, "s39", 128 * 1152)

    def x_chunk(c):
        for i in range(8):
            a("s_add_u32 m0, s38, %d" % ((c % 4) * SLOT + i * 1024))
            a("s_add_u32 s40, s37, %d" % ((i >> 1) * 16 * 1152 + c * 128))
            a("buffer_load_dwordx4 v%d, s[16:19], s40 offen lds" % (4 + (i & 1)))

    x_chunk(0)
    load_tag(a)
    copy_scalars(a)
    stamp(a, 1)
    a("s_waitcnt vmcnt(8) lgkmcnt(0)")
    stamp(a, 2)

    def loader_loop(fn, n, first, ahead0):
        LA = OPT["la"]
        a("s_barrier")
        stamp(a, 13)
        nxt = first
        while nxt < ahead0:
            fn(nxt)
            nxt += 1
        stamp(a, 14)
        for c in range(9):
            a("s_waitcnt vmcnt(%d)" % (n * (nxt - 1 - c)))
            a("s_barrier")
            while nxt <= c + LA and nxt < 9:
                fn(nxt)
                nxt += 1

    loader_loop(x_chunk, 8, 1, 2)
    a("s_branch L_copy")
    a.label("L_ldw")
    a("s_movk_i32 s41, 3641")
    for i in range(9):
        a("v_add_u32 v1, %d, v0" % (64 * i))
        a("v_mul_u32_u24 v2, s41, v1")
        a("v_lshrrev_b32 v2, 16, v2")
        a("v_mul_u32_u24 v3, 18, v2")
        a("v_sub_u32 v3, v1, v3")
        a("v_bfe_u32 v1, v2, 2, 2")
        a("v_lshlrev_b32 v1, 3, v1")
        a("v_lshrrev_b32 v13, 4, v2")
        a("v_lshl_add_u32 v1, v13, 2, v1")
        a("v_and_b32 v2, 3, v2")
        a("v_add_u32 v1, v1, v2")
        a("v_mul_u32_u24 v1, 3456, v1")
        a("v_lshl_add_u32 v%d, v3, 4, v1" % (4 + i))
        if i == 2:
            a("s_waitcnt lgkmcnt(0)")
            load_tag(a)
    a("s_sub_u32 s36, s3, 6")
    a("s_mul_i32 s37, s36, %d" % (32 * 3456))
    a("s_mul_i32 s38, s36, 9216")
    a("s_mul_i32 s39, s34, 288")
    a("s_sub_u32 s42, %d, s39" % (576 * 3456))
    copy_scalars(a)
    srd_off(a, 16, 6, "s39", "s42")
    a("s_waitcnt lgkmcnt(0)")

    def w_chunk(c):
        a("s_add_u32 s40, s37, %d" % (c * 64 * 3456))
        for i in range(9):
            a("s_add_u32 m0, s38, %d" % ((c % 4) * SLOT + 16384 + i * 1024))
            a("s_nop 0")
            a("buffer_load_dwordx4 v%d, s[16:19], s40 offen lds" % (4 + i))

    loader_loop(w_chunk, 9, 0, OPT["wa0"])
    a("s_branch L_copy")
    a.label("L_comp")
    ACC, XF, WF = 64, (136, 144), 24
    a("v_and_b32 v8, 15, v0")
    a("v_lshrrev_b32 v9, 4, v0")
    a("v_lshrrev_b32 v10, 1, v8")
    a("v_xor_b32 v10, v10, v9")
    a("s_lshl_b32 s36, s3, 12")
    a("v_lshlrev_b32 v2, 7, v8")
    a("v_lshl_add_u32 v2, v10, 4, v2")
    a("v_add_u32 v2, s36, v2")
    a("v_xor_b32 v3, 64, v2")
    a("v_add_u32 v4, %d, v2" % (2 * SLOT))
    a("v_add_u32 v5, %d, v3" % (2 * SLOT))
    a("v_lshrrev_b32 v10, 2, v0")
    a("v_mul_u32_u24 v6, 288, v10")
    a("v_and_b32 v10, 3, v0")
    a("v_lshl_add_u32 v6, v10, 3, v6")
    a("v_add_u32 v6, 16384, v6")
    a("v_add_u32 v7, %d, v6" % (2 * SLOT))
    a("s_waitcnt lgkmcnt(0)")
    load_tag(a)
    a("s_mov_b32 s36, 1.0")
    a("s_cmp_lt_u32 s34, 4")
    a("s_cselect_b32 s36, %s, s36" % f32(QSCALE))
    a("s_mov_b32 s37, s36")
    a("s_lshl_b32 s38, s3, 5")
    a("v_add_u32 v10, s38, v8")
    a("v_mul_u32_u24 v10, 72, v10")
    a("v_lshl_add_u32 v10, v9, 3, v10")
    a("v_add_u32 v10, %d, v10" % IMG)
    for ft in range(9):
        a("v_add_u32 v11, %d, v9" % (4 * ft))
        a("v_mul_u32_u24 v11, 57, v11")
        a("v_lshrrev_b32 v11, 9, v11")
        a("v_mul_u32_u24 v11, 9144, v11")
        a("v_add_u32 v%d, v11, v10" % (12 + ft))
    copy_scalars(a)
    a("s_waitcnt lgkmcnt(0)")

    def xreads(step):
        c, h2 = step >> 1, step & 1
        slot = c % 4
        return ["ds_read_b128 %s, v%d offset:%d" % (vr(XF[step & 1] + 4 * tt, 4), 2 + 2 * (slot >> 1) + h2,
                                                    (slot & 1) * SLOT + tt * 2048) for tt in range(2)]

    def wreads(step, ft):
        c, h2 = step >> 1, step & 1
        slot = c % 4
        return ["ds_read_b64_tr_b16 %s, v%d offset:%d" % (vr(WF + 4 * ft + 2 * sec, 2), 6 + (slot >> 1),
                                                          (slot & 1) * SLOT + h2 * 9216 + sec * 4608 + ft * 32)
                for sec in range(2)]

    def mfma(step, ft, tt):
        d = vr(ACC + 8 * ft + 4 * tt, 4)
        return "v_mfma_f32_16x16x32_bf16 %s, %s, %s, %s" % (
            d, vr(WF + 4 * ft, 4), vr(XF[step & 1] + 4 * tt, 4), "0" if step == 0 else d)

    def epi(k):
        ft, tt = k >> 1, k & 1
        b = ACC + 4 * k
        t = 152 + 2 * (k % 4)
        return ["v_pk_mul_f32 %s, %s, s[36:37]" % (vr(b, 2), vr(b, 2)),
                "v_pk_mul_f32 %s, %s, s[36:37]" % (vr(b + 2, 2), vr(b + 2, 2)),
                "v_cvt_pk_bf16_f32 v%d, v%d, v%d" % (t, b, b + 1),
                "v_cvt_pk_bf16_f32 v%d, v%d, v%d" % (t + 1, b + 2, b + 3),
                "ds_write_b64 v%d, %s offset:%d" % (12 + ft, vr(t, 2), 32 * ft + 1152 * tt)]

    a("s_barrier")
    a("s_barrier")
    stamp(a, 1)
    q = []

    def issue(tag, lst):
        for x in lst:
            a(x)
            q.append(tag)

    def need(tag):
        last = max(k for k, v in enumerate(q) if v == tag)
        a("s_waitcnt lgkmcnt(%d)" % min(15, len(q) - 1 - last))

    issue(("x", 0), xreads(0))
    for ft in range(9):
        issue(("w", 0, ft), wreads(0, ft))
    for step in range(16):
        if step & 1:
            a("s_barrier")
        for ft in range(9):
            need(("w", step, ft))
            a(mfma(step, ft, 0))
            if ft == 0:
                issue(("x", step + 1), xreads(step + 1))
            a(mfma(step, ft, 1))
            issue(("w", step + 1, ft), wreads(step + 1, ft))
    RING = (60, 160, 164)

    def w17(ft):
        return [x.replace(vr(WF + 4 * ft + 2 * sec, 2), vr(RING[ft % 3] + 2 * sec, 2)) for sec, x in enumerate(wreads(17, ft))]

    issue(("x", 17), xreads(17))
    issue(("v", 0), w17(0))
    issue(("v", 1), w17(1))
    for ft in range(10):
        e = (epi(2 * ft - 2) + epi(2 * ft - 1)) if ft else []
        if ft < 9:
            need(("v", ft))
            m = [mfma(16, ft, 0), mfma(16, ft, 1)] + \
                [mfma(17, ft, tt).replace(vr(WF + 4 * ft, 4), vr(RING[ft % 3], 4)) for tt in range(2)]
        else:
            m = []
        cut = (0, 3, 5, 8, 10)
        for k in range(4):
            if m:
                a(m[k])
            if k == 0 and ft + 2 < 9:
                issue(("v", ft + 2), w17(ft + 2))
            for x in e[cut[k]:cut[k + 1]]:
                if x.startswith("ds_"):
                    issue("e", [x])
                else:
                    a(x)
    stamp(a, 2)
    a("s_waitcnt lgkmcnt(0)")
    a.label("L_copy")
    a("v_lshlrev_b32 v1, 4, v0")
    a("s_lshl_b32 s36, s3, 10")
    a("v_add_u32 v2, s36, v1")
    a("v_add_u32 v3, %d, v2" % (IMG + 4 * 8192))
    srd_off(a, 24, 8, L.WS_QKV, L.QKV_BYTES)
    make_tag(a)
    a("s_barrier")
    for j in range(4):
        a("ds_read_b128 %s, v2 offset:%d" % (vr(4 + 4 * j, 4), IMG + j * 8192))
    a("s_cmp_lt_u32 s3, 4")
    a("s_cbranch_scc0 L_c4")
    a("ds_read_b128 v[20:23], v3")
    a("s_waitcnt lgkmcnt(0)")
    a("buffer_store_dwordx4 v[20:23], v1, s[24:27], s54 offen sc1")
    a.label("L_c4")
    for j in range(4):
        a("s_waitcnt lgkmcnt(%d)" % (3 - j))
        a("buffer_store_dwordx4 %s, v1, s[24:27], s%d offen sc1" % (vr(4 + 4 * j, 4), 50 + j))
    a("s_mov_b32 s63, s58")
    a("v_mov_b32 v%d, %d" % (vC, CTL))
    lds_inc(a, vC, 24, C_FI)
    stamp(a, 3)


def spare_phase(a):
    GW = 64
    a.label("L_sp")
    a("s_sub_u32 s36, s2, 192")
    a("s_cmp_ge_u32 s3, 8")
    a("s_cbranch_scc1 L_sp_ffn")
    a("s_cmp_ge_u32 s3, 4")
    a("s_cbranch_scc1 L_sp_hi")
    a("s_load_dwordx2 s[60:61], s[0:1], 32")
    a("s_load_dwordx2 s[62:63], s[0:1], 64")
    a("v_lshrrev_b32 v2, 3, v0")
    a("v_and_b32 v3, 7, v0")
    a("v_lshlrev_b32 v3, 4, v3")
    a("s_lshl_b32 s34, s36, 2")
    a("s_add_u32 s34, s34, s3")
    a("s_lshl_b32 s33, s34, 3")
    a("v_add_u32 v1, s33, v2")
    a("v_mul_u32_u24 v4, 1152, v1")
    a("v_add_u32 v4, v4, v3")
    a("s_mul_i32 s51, s34, %d" % (7 * 128))
    a("s_mul_i32 s52, s34, %d" % (21 * 128))
    a("v_lshlrev_b32 v7, 7, v0")
    a("s_waitcnt lgkmcnt(0)")
    load_tag(a)
    srd(a, 16, 6, 576 * 3456)
    srd(a, 20, 28, 576 * 1152)
    for i in range(9):
        a("global_load_dwordx4 %s, v4, s[4:5] offset:%d" % (vr(8 + 4 * i, 4), 128 * i))
        if i == 0:
            for j in range(9):
                a("global_load_dwordx4 %s, v3, s[60:61] offset:%d" % (vr(44 + 4 * j, 4), 128 * j))
                a("global_load_dwordx4 %s, v3, s[62:63] offset:%d" % (vr(80 + 4 * j, 4), 128 * j))
        else:
            a("s_add_u32 s53, s51, %d" % (1728 * 128 * i))
            a("s_mov_b64 exec, 0x7f")
            a("buffer_load_dword v124, v7, s[16:19], s53 offen")
            a("s_mov_b64 exec, -1")
    a("s_mov_b64 exec, 0x1fffff")
    a("buffer_load_dword v124, v7, s[20:23], s52 offen")
    a("s_mov_b64 exec, -1")
    a("v_mov_b32 v%d, %d" % (vC, CTL))
    a("s_waitcnt lgkmcnt(0)")
    make_tag(a)
    a("s_barrier")
    a("s_waitcnt vmcnt(2)")
    for i in range(36):
        p = 116 + (i & 3)
        a("v_dot2_f32_bf16 v%d, v%d, v%d, %s" % (p, 8 + i, 44 + i, "0" if i < 4 else "v%d" % p))
    a("s_nop 1")
    a("v_pk_add_f32 v[116:117], v[116:117], v[118:119]")
    a("v_add_f32 v5, v116, v117")
    sum8(a, (5,))
    bf16_round(a, 5, 5)
    a("v_ashrrev_i32 v7, 31, v5")
    a("v_or_b32 v7, 0x80000000, v7")
    a("v_xor_b32 v7, v7, v5")
    a("v_and_b32 v7, 0xffff0000, v7")
    a("v_sub_u32 v6, 0x7ff, v1")
    a("v_or_b32 v7, v7, v6")
    a("v_mov_b32 v5, 1")
    a("s_mov_b32 s54, 0x01010101")
    a("s_mov_b32 exec_lo, s54")
    a("s_mov_b32 exec_hi, s54")
    a("ds_max_u32 v%d, v7 offset:%d" % (vC, C_KMAX))
    a("s_mov_b64 exec, 1")
    a("ds_add_rtn_u32 v5, v%d, v5 offset:%d" % (vC, C_KCNT))
    a("ds_read_b32 v7, v%d offset:%d" % (vC, C_KMAX))
    a("s_lshl_b32 s53, s36, 3")
    a("s_add_u32 s53, s53, %d" % L.WS_KEYF)
    a("v_mov_b32 v4, s53")
    a("v_mov_b32 v6, s%d" % TAG)
    a("s_waitcnt lgkmcnt(0)")
    a("v_cmp_eq_u32 vcc, 3, v5")
    a("s_and_b64 exec, exec, vcc")
    a("s_cbranch_execz L_sp_nopub")
    a("global_store_dwordx2 v4, v[6:7], s[8:9] sc1")
    a.label("L_sp_nopub")
    a("s_mov_b64 exec, -1")
    stamp(a, 1)
    a("s_mov_b32 s55, 0x3f803f80")
    for i in range(36):
        x, w, p = 8 + i, 80 + i, 116 + (i & 3)
        t = 44 + 4 * (i & 3)
        a("v_lshlrev_b32 v%d, 16, v%d" % (t, x))
        a("v_and_b32 v%d, 0xffff0000, v%d" % (t + 1, x))
        a("v_lshlrev_b32 v%d, 16, v%d" % (t + 2, w))
        a("v_and_b32 v%d, 0xffff0000, v%d" % (t + 3, w))
        a("v_pk_mul_f32 %s, %s, %s" % (vr(t, 2), vr(t, 2), vr(t + 2, 2)))
        a("v_cvt_pk_bf16_f32 v%d, v%d, v%d" % (t, t, t + 1))
        a("v_dot2_f32_bf16 v%d, v%d, s55, %s" % (p, t, "0" if i < 4 else "v%d" % p))
    a("s_nop 1")
    a("v_pk_add_f32 v[116:117], v[116:117], v[118:119]")
    a("v_add_f32 v6, v116, v117")
    sum8(a, (6,))
    bf16_round(a, 6, 6)
    sigmoid(a, 6, 6)
    bf16_round(a, 6, 6)
    a("v_lshlrev_b32 v1, 2, v1")
    a("v_add_u32 v1, %d, v1" % L.WS_G)
    a("s_mov_b32 exec_lo, s54")
    a("s_mov_b32 exec_hi, s54")
    a("global_store_dword v1, v6, s[8:9] sc1")
    a("s_mov_b64 exec, -1")
    a("s_waitcnt vmcnt(0)")
    lds_inc(a, vC, 5, C_GD)
    if OPT["dtouch"]:
        srd(a, 16, 14, 4608 * 1152)
        a("s_mul_i32 s52, s34, %d" % (162 * 128))
        a("v_lshlrev_b32 v7, 7, v0")
        for k in range(3):
            a("buffer_load_dword v124, v7, s[16:19], s52 offen")
            a("s_add_u32 s52, s52, %d" % (54 * 128))
    a("s_mov_b32 s63, 0")
    stamp(a, 2)
    a("s_branch L_att")

    a.label("L_sp_hi")
    a("s_cmp_eq_u32 s3, 7")
    a("s_cbranch_scc0 L_sp_hi1")
    code_touch(a)
    a.label("L_sp_hi1")
    a("v_mov_b32 v%d, %d" % (vC, CTL))
    a("s_waitcnt lgkmcnt(0)")
    load_tag(a)
    a("s_mov_b32 s63, 0")
    a("s_waitcnt lgkmcnt(0)")
    make_tag(a)
    a("s_barrier")
    a("s_cmp_eq_u32 s3, 4")
    a("s_cbranch_scc1 L_sp_w4")
    a("s_cmp_eq_u32 s3, 5")
    a("s_cbranch_scc0 L_att")
    a("s_lshl_b32 s56, s36, 7")
    a("s_add_u32 s56, s56, %d" % (L.WS_FLAG + F_PA * 128))
    a("v_mov_b32 v9, s56")
    lds_spin(a, "L_sp_x5", vC, C_XS, 10, (1, 4), 4)
    a("ds_read_b64 v[14:15], v%d offset:%d" % (vC, C_IDX))
    a("v_mov_b32 v12, s%d" % TAG)
    a("s_waitcnt lgkmcnt(0)")
    a("v_mov_b32 v13, v14")
    a("v_mov_b32 v14, v15")
    a("s_mov_b64 exec, 1")
    a("global_store_dwordx3 v9, v[12:14], s[8:9] sc1")
    a("s_mov_b64 exec, -1")
    a("s_branch L_att")
    a.label("L_sp_w4")
    for k in range(4):
        a("v_mov_b32 v%d, 0" % (12 + k))
    a("s_cmp_lt_u32 s36, 36")
    a("s_cbranch_scc0 L_sp_nz")
    a("s_lshl_b32 s51, s36, 10")
    a("s_add_u32 s51, s51, %d" % L.WS_YP)
    a("v_lshlrev_b32 v4, 4, v0")
    a("v_add_u32 v4, s51, v4")
    a("global_store_dwordx4 v4, v[12:15], s[8:9] sc1")
    a("s_cmp_eq_u32 s36, 0")
    a("s_cbranch_scc0 L_sp_nz")
    a("v_lshlrev_b32 v4, 7, v0")
    a("v_add_u32 v4, %d, v4" % (L.WS_FLAG + F_Y * 128))
    a("global_store_dword v4, v12, s[8:9] sc1")
    a.label("L_sp_nz")
    a("v_lshlrev_b32 v8, 3, v0")
    a("v_add_u32 v8, %d, v8" % L.WS_KEYF)
    srd(a, 24, 4, 2048 * 1152)
    lds_spin(a, "L_sp_own", vC, C_KCNT, 10, (4,), 2)
    a("s_sleep %d" % OPT["slp0"])
    flag_poll(a, "L_sp_kp", 8, 10, "s%d" % TAG, 64, OPT["slp"], 2)
    a("v_lshlrev_b32 v8, 4, v0")
    stamp(a, 1)
    wave_umax(a, 11, 53)
    a("s_and_b32 s54, s53, 0x7ff")
    a("s_sub_u32 s54, 2047, s54")
    a("s_mul_i32 s55, s54, 1152")
    a("s_mov_b32 m0, %d" % XS)
    a("s_add_u32 s56, s55, 1024")
    a("buffer_load_dwordx4 v8, s[24:27], s55 offen lds")
    a("s_mov_b32 m0, %d" % (XS + 1024))
    a("s_mov_b64 exec, 0xff")
    a("buffer_load_dwordx4 v8, s[24:27], s56 offen lds")
    a("s_mov_b64 exec, -1")
    a("s_and_b32 s55, s53, 0xffff0000")
    a("s_xor_b32 s56, s55, 0x80000000")
    a("s_xor_b32 s57, s55, 0xffff0000")
    a("s_bitcmp1_b32 s55, 31")
    a("s_cselect_b32 s55, s56, s57")
    a("v_mov_b32 v12, s55")
    sigmoid(a, 13, 12)
    bf16_round(a, 13, 13)
    a("v_mov_b32 v12, s54")
    a("ds_write_b64 v%d, v[12:13] offset:%d" % (vC, C_IDX))
    a("v_mov_b32 v12, 1")
    a("s_waitcnt vmcnt(0)")
    a("ds_write_b32 v%d, v12 offset:%d" % (vC, C_XS))
    stamp(a, 2)
    a("s_branch L_att")

    a.label("L_sp_ffn")
    a("s_load_dwordx4 s[40:43], s[0:1], 40")
    a("v_mov_b32 v3, %d" % CTL)
    for k in range(4):
        a("v_mov_b32 v%d, 0" % (4 + k))
    a("v_lshlrev_b32 v1, 4, v0")
    a("v_add_u32 v2, v1, v3")
    a("s_mov_b64 exec, 0xff")
    a("ds_write_b128 v2, v[4:7]")
    a("s_mov_b64 exec, -1")
    a("v_lshlrev_b32 v2, 2, v0")
    a("v_add_u32 v2, %d, v2" % (XS + 1152))
    a("ds_write_b32 v2, v4")
    a("s_sub_u32 s59, s3, 8")
    a("s_mul_i32 s37, s36, 57")
    a("s_lshr_b32 s37, s37, 9")
    a("s_mul_i32 s38, s37, 9")
    a("s_sub_u32 s38, s36, s38")
    a("s_mul_i32 s49, s37, 84")
    a("s_mul_i32 s39, s49, 9216")
    a("s_lshl_b32 s48, s38, 10")
    a("s_add_u32 s39, s39, s48")
    a("s_sub_u32 s48, %d, s39" % (576 * 9216))
    a("s_min_i32 s48, s48, %d" % (83 * 9216 + 1024))
    a("s_max_i32 s48, s48, 0")
    a("v_lshrrev_b32 v160, 5, v0")
    a("v_mul_u32_u24 v160, 9216, v160")
    a("v_and_b32 v161, 31, v0")
    a("v_lshl_add_u32 v160, v161, 4, v160")
    a("s_mul_i32 s57, s59, 20480")
    a("s_add_u32 s57, s57, %d" % WO)
    a("s_mul_i32 s58, s59, %d" % (2 * 9216))
    a("s_waitcnt lgkmcnt(0)")
    load_tag(a)
    srd_off(a, 16, 40, "s39", "s48")
    srd_off(a, 20, 42, "s39", "s48")
    a("s_waitcnt lgkmcnt(0)")
    make_tag(a)
    a("s_barrier")
    for i in range(5):
        a("s_add_u32 s55, s58, %d" % (8 * (6 + i) * 9216))
        a("s_add_u32 s56, s55, 512")
        for k in range(4):
            a("s_add_u32 m0, s57, %d" % ((4 * i + k) * 1024))
            a("buffer_load_dwordx4 v160, s[%d:%d], s%d offen nt lds" % (16 + 4 * (k >> 1), 19 + 4 * (k >> 1), 55 + (k & 1)))
            if OPT["thr"] and 4 * i + k >= OPT["thr"] - 1:
                a("s_waitcnt vmcnt(%d)" % (OPT["thr"] - 1))
    for i in range(6):
        a("s_add_u32 s55, s58, %d" % (8 * i * 9216))
        for k in range(4):
            a("buffer_load_dwordx4 %s, v160, s[%d:%d], s55 offen offset:%d nt" % (
                vr(GW + 16 * i + 4 * k, 4), 16 + 4 * (k >> 1), 19 + 4 * (k >> 1), 512 * (k & 1)))
            if OPT["thr"]:
                a("s_waitcnt vmcnt(%d)" % (OPT["thr"] - 1))
    a("s_lshl_b32 s55, s59, 1")
    a("s_add_u32 s55, s55, s49")
    a("v_lshrrev_b32 v51, 5, v0")
    a("v_add_u32 v51, s55, v51")
    a("v_lshlrev_b32 v51, 1, v51")
    a("v_add_u32 v51, %d, v51" % XS)
    a("v_and_b32 v2, 1, v0")
    a("v_lshlrev_b32 v2, 4, v2")
    a("v_lshrrev_b32 v4, 1, v0")
    a("v_xor_b32 v4, v4, v0")
    a("v_and_b32 v4, 8, v4")
    a("v_bfe_u32 v5, v0, 1, 2")
    a("v_or_b32 v4, v4, v5")
    for q in range(4):
        a("v_cmp_eq_u32 s[%d:%d], %d, v4" % (40 + 2 * q, 41 + 2 * q, q))
    a("v_bfe_u32 v4, v0, 3, 1")
    a("v_lshlrev_b32 v4, 9, v4")
    a("v_lshrrev_b32 v5, 4, v0")
    a("v_lshl_add_u32 v4, v5, 7, v4")
    a("v_and_b32 v5, 7, v0")
    a("v_lshl_add_u32 v4, v5, 2, v4")
    a("v_add_u32 v6, s57, v4")
    a("v_add_u32 v52, s57, v1")
    a("s_lshl_b32 s55, s59, 9")
    a("v_lshlrev_b32 v8, 3, v0")
    a("v_add_u32 v8, s55, v8")
    a("s_mul_i32 s52, s37, %d" % (4608 * 16))
    a("s_lshl_b32 s55, s38, 13")
    a("s_add_u32 s52, s52, s55")
    a("s_add_u32 s52, s52, %d" % L.WS_PA)
    a("v_lshlrev_b32 v9, 2, v8")
    a("v_add_u32 v9, s52, v9")
    a("v_add_u32 v8, %d, v8" % WO)
    stamp(a, 3)
    lds_spin(a, "L_sp_xs", 3, C_XS, 10, (1,), 2)
    a("s_setprio %d" % OPT["pr2"])
    stamp(a, 7)
    for i in range(11):
        a("ds_read_u16 v%d, v51 offset:%d" % (53 + i, 16 * i))
    a("s_waitcnt vmcnt(24)")
    for k in range(4):
        a("ds_read_b128 %s, v52 offset:%d" % (vr(32 + 4 * k, 4), 1024 * k))
    a("s_waitcnt lgkmcnt(4)")
    for i in range(11):
        a("v_lshlrev_b32 v%d, v2, v%d" % (53 + i, 53 + i))
    first = True
    for i in range(5):
        selector(a, 12, 53 + 6 + i, 40)
        for k in range(4):
            d = vr(16 + 4 * k, 4)
            a("s_waitcnt lgkmcnt(%d)" % (3 if i < 4 else 3 - k))
            a("v_mfma_f32_16x16x32_bf16 %s, %s, v[12:15], %s" % (d, vr(32 + 4 * k, 4), "0" if first else d))
            if i < 4:
                a("ds_read_b128 %s, v52 offset:%d" % (vr(32 + 4 * k, 4), 1024 * (4 * (i + 1) + k)))
        first = False
    stamp(a, 12)
    for i in range(6):
        selector(a, 12, 53 + i, 40)
        a("s_waitcnt vmcnt(%d)" % (4 * (5 - i)))
        for k in range(4):
            d = vr(16 + 4 * k, 4)
            a("v_mfma_f32_16x16x32_bf16 %s, %s, v[12:15], %s" % (d, vr(GW + 16 * i + 4 * k, 4), d))
    stamp(a, 11)
    for k in range(4):
        for r in range(4):
            a("ds_write_b32 v6, v%d offset:%d" % (16 + 4 * k + r, 1024 * k + 32 * r))
    lds_inc(a, 3, 10, C_RED)
    lds_spin(a, "L_sp_rd", 3, C_RED, 10, (4,), 0)
    for p in range(4):
        a("ds_read_b64 %s, v8 offset:%d" % (vr(16 + 4 * p, 2), 20480 * p))
        a("ds_read_b64 %s, v8 offset:%d" % (vr(18 + 4 * p, 2), 20480 * p + 2048))
    a("v_mov_b32 v34, s%d" % TAG)
    a("v_mov_b32 v38, s%d" % TAG)
    a("s_waitcnt lgkmcnt(0)")
    lds_inc(a, 3, 10, C_RED2)
    for p in (2, 1):
        for h in range(2 * p):
            a("v_pk_add_f32 %s, %s, %s" % (vr(16 + 2 * h, 2), vr(16 + 2 * h, 2), vr(16 + 4 * p + 2 * h, 2)))
    a("v_mov_b32 v32, v16")
    a("v_mov_b32 v33, v18")
    a("v_mov_b32 v36, v17")
    a("v_mov_b32 v37, v19")
    a("s_cmp_eq_u32 s36, 63")
    a("s_cbranch_scc1 L_sp_nost")
    a("global_store_dwordx4 v9, v[32:35], s[8:9] sc1")
    a("global_store_dwordx4 v9, v[36:39], s[8:9] offset:16 sc1")
    a.label("L_sp_nost")
    stamp(a, 4)
    lds_spin(a, "L_sp_r2", 3, C_RED2, 10, (4,), 0)
    a("s_branch L_help2")


def attn_loop(a):
    for i in range(9):
        if OPT["bal"] and i == 0:
            a("s_cmp_lt_u32 s3, 4")
            a("s_cbranch_scc1 L_bal0")
            a("s_setprio 1")
            a.label("L_bal0")
        if OPT["bal"] and i == OPT["bal"]:
            a("s_setprio 0")
        a.label("L_it%d" % i)
        S, P = SS[i & 1], PP[i & 1]
        ex = ["v_exp_f32 v%d, v%d" % (S + r, S + r) for r in range(16)]
        cv = ["v_cvt_pk_bf16_f32 v%d, v%d, v%d" % (P + q, S + 2 * q, S + 2 * q + 1) for q in range(8)]
        if i == 0:
            mk = ["v_bfi_b32 v%d, v%d, 0, v%d" % (P + q, MSK + q, P + q) for q in range(8)]
        elif i == 8:
            mk = ["v_and_b32 v%d, v%d, v%d" % (P + q, MSK + q, P + q) for q in range(8)]
        else:
            mk = []
        m1 = qk(i + 1) if i < 8 else []
        m2 = pv(i - 1, i == 1) if i > 0 else []
        a("s_waitcnt lgkmcnt(%d)" % (4 if 0 < i < 8 else 0))
        seq = m1[:1] + ex[0:4] + m1[1:] + (k_reads(i + 2) if i + 2 <= 8 else []) + ex[4:8] + cv[0:2] + m2[:1] + \
            ex[8:12] + cv[2:4] + m2[1:]
        if i + 1 <= 8:
            seq += ["v_add_u32 v%d, v%d, v%d" % (vV, vV, vStep)] + v_reads(i + 1)
        seq += ex[12:16] + cv[4:8] + mk
        for x in seq:
            a(x)
    lds_spin(a, "L_pz", vC, C_C, T, (1,), 0)
    for x in pv(8, False):
        a(x)


def attention_phase(a):
    a.label("L_att")
    decode2(a)
    a("s_mul_i32 s33, s31, %d" % L.PAIR_BYTES)
    a("s_mul_i32 s34, s32, 9216")
    a("s_add_u32 s33, s33, s34")
    a("v_mov_b32 v%d, %d" % (vC, CTL))
    KS, VS = 16 * L.PAIR_BYTES - 18432, 32 * L.PAIR_BYTES - 18432
    grp = [(QB, 0), (KB, KS), (VB, VS), (KB + 9216, KS + 9216), (VB + 9216, VS + 9216), (KB + 18432, KS + 18432), (VB + 18432, VS + 18432)]
    a("s_lshl_b32 s34, s3, 10")
    for j in range(8):
        lo, hi = (8 * j) // 9, min(8 * j + 7, 62) // 9
        l0, g0 = grp[lo][0] + (8 * j - 9 * lo) * 1024, grp[lo][1] + (8 * j - 9 * lo) * 1024
        l1, g1 = grp[hi][0] + (8 * j - 9 * hi) * 1024, grp[hi][1] + (8 * j - 9 * hi) * 1024
        if j == 7:
            a("s_min_u32 s34, s34, %d" % (6 * 1024))
        if lo == hi:
            a("s_add_u32 s%d, s34, %d" % (16 + j, l0))
            a("s_add_u32 s%d, s33, %d" % (44 + j, g0 - l0 & 0xffffffff))
        else:
            a("s_mov_b32 s35, %d" % l0)
            a("s_mov_b32 s36, %d" % (g0 - l0 & 0xffffffff))
            a("s_cmp_ge_u32 s3, %d" % (9 * hi - 8 * j))
            a("s_cselect_b32 s35, %d, s35" % (l1 & 0xffffffff))
            a("s_cselect_b32 s36, %d, s36" % (g1 - l1 & 0xffffffff))
            a("s_add_u32 s%d, s34, s35" % (16 + j))
            a("s_add_u32 s%d, s33, s36" % (44 + j))
        a("s_add_u32 s%d, s%d, s%d" % (44 + j, 44 + j, 16 + j))
    a("v_mov_b32 v10, s63")
    a("v_mov_b32 v11, s%d" % TAG)
    a("s_waitcnt vmcnt(0)")
    lds_inc(a, vC, 9, C_1, rtn=True)
    a("s_cmp_lg_u32 s63, 0")
    a("s_cselect_b32 s35, 7, 99")
    a("s_waitcnt lgkmcnt(0)")
    a("v_readfirstlane_b32 s36, v9")
    a("s_cmp_eq_u32 s36, s35")
    a("s_cbranch_scc0 L_nofl1")
    a("s_mov_b64 exec, 1")
    a("global_store_dword v10, v11, s[8:9] sc1")
    a("s_mov_b64 exec, -1")
    a.label("L_nofl1")
    stamp(a, 4)
    a("s_and_b32 s42, s3, 1")
    a("s_lshr_b32 s43, s3, 1")
    a("s_mul_i32 s35, s43, 2304")
    a("s_mul_i32 s36, s42, 40")
    a("v_and_b32 v%d, 31, v0" % T)
    a("v_lshrrev_b32 v%d, 5, v0" % (T + 1))
    a("v_mul_u32_u24 v%d, 72, v%d" % (vKt, T))
    a("v_add_u32 v%d, s35, v%d" % (vKt, vKt))
    a("v_lshl_add_u32 v%d, v%d, 4, v%d" % (vK, T + 1, vKt))
    a("v_add_u32 v%d, s36, v%d" % (vK, vK))
    a("v_add_u32 v%d, 32, v%d" % (vKt, vKt))
    a("v_bfe_u32 v%d, v0, 2, 2" % (T + 2))
    a("v_lshl_add_u32 v%d, v%d, 2, v%d" % (T + 2, T + 1, T + 2))
    a("v_mul_u32_u24 v%d, 72, v%d" % (T + 2, T + 2))
    a("s_add_u32 s37, s35, %d" % VB)
    a("v_add_u32 v%d, s37, v%d" % (T + 2, T + 2))
    a("v_and_b32 v%d, 3, v0" % (T + 3))
    a("v_lshlrev_b32 v%d, 3, v%d" % (T + 4, T + 3))
    a("v_add_u32 v%d, s36, v%d" % (T + 4, T + 4))
    a("v_and_b32 v%d, 16, v0" % (T + 5))
    a("v_cmp_eq_u32 s[38:39], 0, v%d" % (T + 5))
    a("v_cndmask_b32 v%d, 32, v%d, s[38:39]" % (T + 4, T + 4))
    a("v_add_u32 v%d, v%d, v%d" % (vV, T + 2, T + 4))
    a("v_and_b32 v%d, 19, v0" % (T + 5))
    a("v_cmp_lt_u32 s[38:39], 16, v%d" % (T + 5))
    a("v_mov_b32 v%d, %d" % (T + 6, ONES))
    a("v_cndmask_b32 v%d, v%d, v%d, s[38:39]" % (vV, vV, T + 6))
    a("v_mov_b32 v%d, 2304" % (T + 6))
    a("v_cndmask_b32 v%d, v%d, 0, s[38:39]" % (vStep, T + 6))
    a("v_lshlrev_b32 v%d, 2, v%d" % (T + 2, T + 1))
    a("v_sub_u32 v%d, v%d, v%d" % (T + 2, T, T + 2))
    a("v_mov_b32 v%d, 0xffff" % (T + 3))
    for q in range(8):
        kl = 8 * (q >> 1) + 2 * (q & 1)
        a("v_cmp_le_i32 s[38:39], %d, v%d" % (kl, T + 2))
        a("v_cmp_le_i32 s[40:41], %d, v%d" % (kl + 1, T + 2))
        a("v_cndmask_b32 v%d, 0, v%d, s[38:39]" % (MSK + q, T + 3))
        a("v_cndmask_b32 v%d, v%d, -1, s[40:41]" % (MSK + q, MSK + q))
    a("s_lshl_b32 s41, s32, 2")
    a("s_add_u32 s41, s41, s43")
    a("s_sub_i32 s41, 8, s41")
    a("s_lshl_b32 s35, s32, 3")
    a("s_lshl_b32 s36, s43, 1")
    a("s_add_u32 s35, s35, s36")
    a("s_mul_i32 s35, s35, 18432")
    a("s_lshl_b32 s58, s31, 10")
    a("s_lshl_b32 s36, s42, 9")
    a("s_add_u32 s58, s58, s36")
    a("s_add_u32 s58, s58, s35")
    a("s_lshr_b32 s59, s31, 1")
    a("s_lshl_b32 s59, s59, 8")
    a("s_and_b32 s36, s31, 1")
    a("s_lshl_b32 s36, s36, 3")
    a("s_add_u32 s59, s59, s36")
    a("s_lshl_b32 s36, s42, 2")
    a("s_add_u32 s59, s59, s36")
    a("s_add_u32 s59, s59, s35")
    a("s_add_u32 s59, s59, 16384")
    a("v_bfe_u32 v152, v0, 4, 1")
    a("v_mul_u32_u24 v152, 18432, v152")
    a("v_and_b32 v153, 15, v0")
    a("v_lshl_add_u32 v152, v153, 4, v152")
    a("v_lshrrev_b32 v153, 5, v0")
    a("v_lshl_add_u32 v153, v153, 8, v152")
    a("v_cmp_gt_u32 vcc, 32, v0")
    a("s_cmp_eq_u32 s42, 0")
    a("s_cselect_b64 s[54:55], vcc, 0")
    a("s_cselect_b64 s[56:57], 0, vcc")
    a("v_and_b32 v%d, 3, v0" % (T + 2))
    a("v_mul_u32_u24 v%d, 576, v%d" % (T + 2, T + 2))
    a("v_mov_b32 v%d, 0x3f803f80" % (T + 4))
    a("v_mov_b32 v%d, v%d" % (T + 5, T + 4))
    a("v_lshlrev_b32 v%d, 4, v0" % (T + 3))
    srd_off(a, 36, 8, L.WS_QKV, L.QKV_BYTES)
    srd_off(a, 24, 8, L.WS_O, 128 * 18432)
    a("s_add_u32 s40, s3, 2")
    a("s_cmp_lt_u32 s3, 4")
    a("s_cselect_b32 s40, s3, s40")
    out_setup(a, 40)
    a("s_lshr_b32 s35, s2, 6")
    a("s_lshl_b32 s35, s35, 4")
    a("s_add_u32 s35, s35, s3")
    a("s_cmp_eq_u32 s35, %d" % (3 * 16 + 6))
    a("s_cbranch_scc0 L_nq2")
    lds_spin(a, "L_sp_x6", vC, C_XS, T + 8, (1,), 8)
    qpoll(a, vC, "L_qp2", False, T + 8)
    a.label("L_nq2")
    lds_spin(a, "L_go1", vC, C_1, T, (8, 1), OPT["g1s"])
    stamp(a, 5)
    for j in range(8):
        a("s_mov_b32 m0, s%d" % (16 + j))
        a("s_nop 0")
        a("buffer_load_dwordx4 v%d, s[36:39], s%d offen %s lds" % (T + 3, 44 + j, OPT["kvl"]))
    a("ds_write_b64 v%d, %s offset:%d" % (T + 2, vr(T + 4, 2), ONES))
    a("s_cmp_lt_u32 s32, 2")
    a("s_cbranch_scc1 L_late")
    landed(a, 1, 0)
    stage_spin(a, "L_sA", 0)
    stamp(a, 6)
    for x in q_reads() + k_reads(0) + k_reads(1) + v_reads(0):
        a(x)
    a("s_waitcnt lgkmcnt(7)")
    a("v_cndmask_b32 v%d, 0, v%d, s[54:55]" % (QT, QT))
    a("v_cndmask_b32 v%d, 0, v%d, s[56:57]" % (QT + 1, QT + 1))
    for x in qk(0):
        a(x)
    lds_inc(a, vC, T, C_B)
    x_loads(a)
    attn_loop(a)
    a.label("L_check")
    stamp(a, 7)
    a("s_mov_b32 s46, %s" % f32(2.0 ** 60))
    a("s_mov_b32 s47, %s" % f32(2.0 ** -60))
    a("s_mov_b32 s48, 0x7f800000")
    a("s_nop 7")
    a("s_nop 0")
    a("v_rcp_f32 v%d, v%d" % (T, OO + 12))
    a("v_cmp_gt_f32 s[50:51], s46, v%d" % (OO + 12))
    a("v_cmp_lt_f32 vcc, s47, v%d" % (OO + 12))
    for k in range(6):
        a("v_add_f32 v%d, abs(v%d), abs(v%d)" % (T + 2 + k, OO + 2 * k, OO + 2 * k + 1))
    a("s_and_b64 s[50:51], s[50:51], vcc")
    a("v_pk_add_f32 %s, %s, %s" % (vr(T + 2, 2), vr(T + 2, 2), vr(T + 4, 2)))
    a("v_pk_add_f32 %s, %s, %s" % (vr(T + 2, 2), vr(T + 2, 2), vr(T + 6, 2)))
    a("v_add_f32 v%d, v%d, v%d" % (T + 2, T + 2, T + 3))
    a("v_cmp_gt_f32 vcc, s48, v%d" % (T + 2))
    a("s_and_b64 s[50:51], s[50:51], vcc")
    a("s_cmp_eq_u64 s[50:51], -1")
    a("s_cbranch_scc0 L_slow")
    a.label("L_fin")
    a("s_cmp_eq_u32 s42, 0")
    a("s_cbranch_scc1 L_fa")
    a("v_mov_b32 v%d, v%d" % (OO + 8, OO + 10))
    a("v_mov_b32 v%d, v%d" % (OO + 9, OO + 11))
    a.label("L_fa")
    for k in range(0, 10, 2):
        a("v_pk_mul_f32 %s, %s, %s op_sel_hi:[1,0]" % (vr(OO + k, 2), vr(OO + k, 2), vr(T, 2)))
    for q in range(5):
        a("v_cvt_pk_bf16_f32 v%d, v%d, v%d" % (T + 4 + q, OO + 2 * q, OO + 2 * q + 1))
    a("buffer_store_dwordx4 %s, v153, s[24:27], s58 offen sc1" % vr(T + 4, 4))
    a("s_mov_b32 exec_hi, 0")
    a("buffer_store_dword v%d, v152, s[24:27], s59 offen sc1" % (T + 8))
    a("s_mov_b32 exec_hi, -1")


def q_reads():
    return ["ds_read_b64 %s, v%d offset:%d" % (vr(QM, 2), vK, QB),
            "ds_read_b64 %s, v%d offset:%d" % (vr(QM + 2, 2), vK, QB + 8),
            "ds_read_b64 %s, v%d offset:%d" % (vr(QT, 2), vKt, QB)]


sKH, sPAIR, sTILE, sGATE, sSLOT, sOB, sXO = 6, 7, 13, 14, 15, 28, 29
A0, vXO, vRW, vCH, vSW, vSR, vL16, vPX, vPF = 156, 142, 140, 141, 143, 144, 162, 160, 161
GB = 154624


def out_setup(a, role):
    a("s_and_b32 s%d, s%d, 1" % (sKH, role))
    a("s_lshr_b32 s%d, s%d, 1" % (sPAIR, role))
    a("s_mul_i32 s%d, s52, 5" % sTILE)
    a("s_and_b32 s33, s%d, 7" % sTILE)
    a("s_sub_u32 s34, 8, s33")
    a("s_cmp_lt_u32 s33, 4")
    a("s_cselect_b32 s34, 0, s34")
    a("s_add_u32 s34, s34, s%d" % sPAIR)
    a("s_sub_u32 s35, s34, 5")
    a("s_cmp_ge_u32 s34, 5")
    a("s_cselect_b32 s34, s35, s34")
    a("s_add_u32 s%d, s%d, s34" % (sTILE, sTILE))
    a("s_lshl_b32 s98, s34, 6")
    a("s_mov_b32 s%d, 0x404" % sGATE)
    a("s_bitcmp1_b32 s%d, 2" % sTILE)
    if not OPT["allg"]:
        a("s_cselect_b32 s%d, s%d, 4" % (sGATE, sGATE))
    a("s_mov_b32 s%d, %d" % (sSLOT, PSLOT[0]))
    for p in range(1, 5):
        a("s_cmp_eq_u32 s%d, %d" % (sPAIR, p))
        a("s_cselect_b32 s%d, %d, s%d" % (sSLOT, PSLOT[p], sSLOT))
    a("s_mul_i32 s%d, s%d, 18432" % (sOB, sTILE))
    a("s_lshl_b32 s33, s53, 7")
    a("s_add_u32 s%d, s%d, s33" % (sXO, sOB))
    a("s_lshl_b32 s33, s%d, 6" % sKH)
    a("s_add_u32 s%d, s%d, s33" % (sXO, sXO))
    a("s_mul_i32 s33, s%d, 9216" % sKH)
    a("s_add_u32 s%d, s%d, s33" % (sOB, sOB))
    a("s_add_u32 s96, s%d, 4096" % sOB)
    a("s_add_u32 s97, s%d, 8192" % sOB)
    a("v_lshrrev_b32 v%d, 2, v0" % vRW)
    a("v_and_b32 v%d, 3, v0" % vCH)
    a("v_mul_u32_u24 v%d, 1152, v%d" % (vXO, vRW))
    a("v_lshl_add_u32 v%d, v%d, 4, v%d" % (vXO, vCH, vXO))
    a("v_lshrrev_b32 v146, 2, v0")
    a("v_bfe_u32 v147, v0, 3, 2")
    a("v_lshlrev_b32 v147, 1, v147")
    a("v_bfe_u32 v148, v0, 1, 1")
    a("v_xor_b32 v147, v147, v148")
    a("v_and_b32 v148, 1, v0")
    a("v_lshlrev_b32 v148, 3, v148")
    a("v_lshl_add_u32 v148, v146, 7, v148")
    a("v_lshl_add_u32 v148, v147, 4, v148")
    a("s_mul_i32 s33, s%d, %d" % (sKH, 9 * 4096))
    a("s_add_u32 s33, s33, %d" % WO)
    a("s_lshl_b32 s34, s%d, 6" % sKH)
    a("v_xor_b32 v148, s34, v148")
    for t in range(4):
        a("v_xor_b32 v%d, %d, v148" % (A0 + t, 32 * t))
        a("v_add_u32 v%d, s33, v%d" % (A0 + t, A0 + t))
    a("v_lshlrev_b32 v%d, 4, v0" % vL16)
    a("s_lshl_b32 s33, s%d, 11" % sKH)
    a("s_add_u32 s%d, s%d, s33" % (sSLOT, sSLOT))
    a("v_add_u32 v%d, s%d, v%d" % (vPX, sSLOT, vL16))
    a("s_lshl_b32 s33, s33, 1")
    a("s_sub_u32 s33, 2048, s33")
    a("v_add_u32 v164, s33, v%d" % vPX)
    a("s_lshl_b32 s33, s%d, 1" % sPAIR)
    a("s_add_u32 s33, s33, s%d" % sKH)
    a("s_lshl_b32 s33, s33, 2")
    a("s_add_u32 s33, s33, %d" % CTL)
    a("v_mov_b32 v%d, s33" % vPF)
    a("v_xor_b32 v165, 4, v%d" % vPF)
    a("v_and_b32 v%d, 15, v0" % vSW)
    a("v_mul_u32_u24 v%d, 80, v%d" % (vSW, vSW))
    a("v_lshrrev_b32 v146, 4, v0")
    a("v_lshlrev_b32 v146, 3, v146")
    a("v_add3_u32 v%d, v%d, v146, s%d" % (vSW, vSW, sSLOT))
    a("v_mul_u32_u24 v%d, 80, v%d" % (vSR, vRW))
    a("v_lshl_add_u32 v%d, v%d, 4, v%d" % (vSR, vCH, vSR))
    a("v_add_u32 v%d, s%d, v%d" % (vSR, sSLOT, vSR))
    a("s_add_u32 s98, s98, %d" % GB)
    a("v_lshl_add_u32 v145, v%d, 2, s98" % vRW)
    a("s_cmp_lt_u32 s3, 4")
    a("s_cselect_b32 s33, 1, 0x100")
    a("v_mov_b32 v163, s33")


def x_loads(a):
    srd(a, 20, 4, 2048 * 1152)
    a("buffer_load_dwordx4 %s, v%d, s[20:23], s%d offen" % (vr(XR, 4), vXO, sXO))


def out_phase(a):
    WFR, OF, ACC, PX = (20, 36, 100), 64, (52, 56, 60, 116), (146, 120)
    a("s_cmp_ge_u32 s52, 26")
    a("s_cbranch_scc1 L_end")
    if not OPT["gissue"]:
        a("s_waitcnt vmcnt(0)")
    stamp(a, 8)
    a("s_mov_b64 exec, 1")
    a("ds_add_u32 v%d, v163 offset:%d" % (vC, C_O))
    a("s_mov_b64 exec, -1")
    a.label("L_out")

    def omx():
        for j in range(1):
            for q in range(4):
                xv = XR + 4 * j + q
                d = PX[j] + 2 * q
                a("v_lshlrev_b32 v%d, 16, v%d" % (d, xv))
                a("v_and_b32 v%d, 0xffff0000, v%d" % (d + 1, xv))
                a("v_pk_mul_f32 %s, %s, %s op_sel:[0,1] op_sel_hi:[1,1]" % (vr(d, 2), vr(d, 2), vr(GR + 2 * j, 2)))

    def reads(sl):
        st = WFR[sl % 3]
        return ["ds_read_b64_tr_b16 %s, v%d offset:%d" % (vr(st + 4 * t + 2 * sec, 2), A0 + t, (32 * sl + 16 * sec) * 128)
                for t in range(4) for sec in range(2)]

    lds_spin(a, "L_wo", vC, C_WO, 10, (2,), 0)
    for x in reads(0) + reads(1):
        a(x)
    a("s_mov_b32 s60, 0x200000")
    a.label("L_go2")
    a("ds_read_b64 v[10:11], v%d offset:%d" % (vC, C_O))
    a("s_waitcnt lgkmcnt(0)")
    a("v_readfirstlane_b32 s61, v10")
    a("v_readfirstlane_b32 s62, v11")
    a("s_and_b32 s61, s61, s%d" % sGATE)
    a("s_cmp_eq_u32 s61, s%d" % sGATE)
    a("s_cselect_b32 s62, s62, 0")
    a("s_cmp_eq_u32 s62, 1")
    a("s_cbranch_scc1 L_go2_d")
    a("s_sub_u32 s60, s60, 1")
    a("s_cbranch_scc0 L_go2")
    a.label("L_go2_d")
    if OPT["gissue"] == 2:
        a("s_cmp_eq_u32 s60, 0x200000")
        a("s_cbranch_scc1 L_go2_e")
        a("s_sleep %d" % OPT["cdel"])
        a.label("L_go2_e")
        a("s_waitcnt vmcnt(0)")
    elif OPT["cdel"]:
        a("s_sleep %d" % OPT["cdel"])
    stamp(a, 9)
    LAO = OPT["lao"]

    def oload(s):
        a("buffer_load_dwordx4 %s, v%d, s[24:27], s%d offen offset:%d sc1" % (vr(OF + 4 * s, 4), vL16, (sOB, 96, 97)[s // 4], 1024 * (s % 4)))

    def ocheck(sl):
        b = OF + 4 * sl
        if sl < 7:
            a("v_cmp_eq_u32 vcc, -1, v%d" % b)
        else:
            a("v_max3_u32 v10, v%d, v%d, v%d" % (b, b + 1, b + 2))
            a("v_max_u32 v10, v10, v%d" % (b + 3))
            a("v_cmp_eq_u32 vcc, -1, v10")
        a("s_nop 1")

    def oretry():
        for sl in range(9):
            a.label("L_or%d" % sl)
            a("s_sub_u32 s60, s60, 1")
            a("s_cbranch_scc1 L_ok%d" % sl)
            a("s_waitcnt vmcnt(0)")
            for s in range(sl, min(sl + LAO, 9)):
                oload(s)
            a("s_waitcnt vmcnt(%d)" % min(LAO - 1, 8 - sl))
            a("s_branch L_oc%d" % sl)

    RETRY.append(oretry)
    a("s_mov_b32 s60, 0x8000")
    for s in range(LAO):
        oload(s)
    a("ds_read_b32 v%d, v145" % GR)
    a("ds_read_b32 v10, v%d offset:%d" % (vC, C_IDX))
    srd(a, 20, 10, 2048 * 1152)
    a("s_waitcnt lgkmcnt(0) vmcnt(%d)" % LAO)
    a("v_readfirstlane_b32 s12, v10")
    a("v_sub_f32 v%d, 1.0, v%d" % (GR + 1, GR))
    bf16_round(a, GR + 1, GR + 1)
    omx()
    for sl in range(9):
        rd = reads(sl + 2) if sl < 7 else []
        a("s_waitcnt vmcnt(%d) lgkmcnt(%d)" % (min(LAO - 1, 8 - sl), 8 if sl < 8 else 0))
        a.label("L_oc%d" % sl)
        ocheck(sl)
        a("s_cbranch_vccnz L_or%d" % sl)
        a.label("L_ok%d" % sl)
        for t in range(4):
            d = vr(ACC[t], 4)
            a("v_mfma_f32_16x16x32_bf16 %s, %s, %s, %s" % (d, vr(WFR[sl % 3] + 4 * t, 4), vr(OF + 4 * sl, 4), "0" if sl == 0 else d))
            if t == 0 and sl + LAO < 9:
                oload(sl + LAO)
            for x in rd[2 * t:2 * t + 2]:
                a(x)
    stamp(a, 10)
    if OPT["stamp"]:
        a("s_sub_u32 s94, 0x8000, s60")
        a("s_mul_i32 s94, s94, 100")
        a("s_add_u32 s94, s94, s66")
        a("s_addc_u32 s95, s67, 0")
    a("v_mov_b32 v10, 1")
    a("ds_write_b128 v164, %s" % vr(ACC[2], 4))
    a("ds_write_b128 v164, %s offset:1024" % vr(ACC[3], 4))
    a("ds_write_b32 v165, v10 offset:%d" % C_PART)
    a("s_lshr_b32 s46, s12, 4")
    a("s_cmp_eq_u32 s46, s%d" % sTILE)
    a("s_cbranch_scc0 L_noy")
    lds_spin(a, "L_yw", vC, C_YRDY, 10, (1,))
    a("s_lshl_b32 s46, s%d, 7" % sKH)
    a("s_add_u32 s46, s46, %d" % YB)
    a("v_lshl_add_u32 v10, v%d, 5, s46" % vCH)
    a("ds_read_b128 v[12:15], v10")
    a("ds_read_b128 v[16:19], v10 offset:16")
    a("s_and_b32 s46, s12, 15")
    a("v_cmp_eq_u32 s[50:51], s46, v%d" % vRW)
    a("s_waitcnt lgkmcnt(0)")
    for q in range(4):
        xv = XR + q
        a("v_lshlrev_b32 v10, 16, v%d" % xv)
        a("v_and_b32 v11, 0xffff0000, v%d" % xv)
        a("v_add_f32 v10, v10, v%d" % (12 + 2 * q))
        a("v_add_f32 v11, v11, v%d" % (13 + 2 * q))
        a("v_cvt_pk_bf16_f32 v10, v10, v11")
        a("v_cndmask_b32 v%d, v%d, v10, s[50:51]" % (xv, xv))
    omx()
    a.label("L_noy")
    lds_spin(a, "L_pw", vPF, C_PART, 10, (1,), 0)
    stamp(a, 11)
    for t in range(2):
        a("ds_read_b128 %s, v%d offset:%d" % (vr(20 + 4 * t, 4), vPX, 1024 * t))
    a("s_waitcnt lgkmcnt(0)")
    for t in range(2):
        b = ACC[t]
        a("v_pk_add_f32 %s, %s, %s" % (vr(b, 2), vr(b, 2), vr(20 + 4 * t, 2)))
        a("v_pk_add_f32 %s, %s, %s" % (vr(b + 2, 2), vr(b + 2, 2), vr(22 + 4 * t, 2)))
        a("v_cvt_pk_bf16_f32 v%d, v%d, v%d" % (40 + 2 * t, b, b + 1))
        a("v_cvt_pk_bf16_f32 v%d, v%d, v%d" % (41 + 2 * t, b + 2, b + 3))
        a("ds_write_b64 v%d, %s offset:%d" % (vSW, vr(40 + 2 * t, 2), 32 * t))
    a("ds_read_b128 v[20:23], v%d" % vSR)
    a("s_waitcnt lgkmcnt(0)")
    for q in range(4):
        d = PX[0] + 2 * q
        a("v_lshlrev_b32 v%d, 16, v%d" % (10 + 2 * q, 20 + q))
        a("v_and_b32 v%d, 0xffff0000, v%d" % (11 + 2 * q, 20 + q))
        a("v_pk_fma_f32 %s, %s, %s, %s op_sel_hi:[1,0,1]" % (vr(d, 2), vr(10 + 2 * q, 2), vr(GR, 2), vr(d, 2)))
    for q in range(4):
        d = PX[0] + 2 * q
        a("v_cvt_pk_bf16_f32 v%d, v%d, v%d" % (32 + q, d, d + 1))
    a("buffer_store_dwordx4 v[32:35], v%d, s[20:23], s%d offen %s" % (vXO, sXO, OPT["ost"]))
    if OPT["stamp"]:
        stamp(a, 12)
        a("s_waitcnt vmcnt(0)")
        stamp(a, 13)
        stamp_end(a, OPT["stw"], 0)
        stamp_end(a, 10, 2)
    a("s_endpgm")


RETRY = []
GLATE = []


def late_and_slow(a):
    RETRY[0]()
    a.label("L_late")
    a("s_mul_i32 s50, s41, 2304")
    a("v_add_u32 v%d, s50, v%d" % (T + 8, vK))
    a("v_add_u32 v%d, s50, v%d" % (T + 9, vKt))
    a("v_mul_u32_u24 v%d, s41, v%d" % (T + 2, vStep))
    a("v_add_u32 v%d, v%d, v%d" % (vV, vV, T + 2))
    for r in list(range(OO, OO + 16)) + list(range(VF[0], VF[0] + 32)):
        a("v_mov_b32 v%d, 0" % r)
    landed(a, 1, 0)
    stage_spin(a, "L_lt", 0)
    for x in q_reads():
        a(x)
    a("s_waitcnt lgkmcnt(0)")
    lds_inc(a, vC, T, C_B)
    x_loads(a)
    a("s_bitcmp1_b32 s41, 0")
    a("s_cbranch_scc1 L_late1")
    for par in range(2):
        if par:
            a.label("L_late1")
        for x in k_reads(par, T + 8, T + 9, 0):
            a(x)
        for x in k_reads(par + 1, T + 8, T + 9, 0):
            a(x.replace("offset:8", "offset:2312").replace("offset:0", "offset:2304"))
        for x in v_reads(par):
            a(x)
        a("s_waitcnt lgkmcnt(7)")
        a("v_cndmask_b32 v%d, 0, v%d, s[54:55]" % (QT, QT))
        a("v_cndmask_b32 v%d, 0, v%d, s[56:57]" % (QT + 1, QT + 1))
        for x in qk(par):
            a(x)
        a("s_nop 7")
        a("s_nop 3")
        for i0 in range(2 - par, 9, 2):
            a("s_cmp_eq_u32 s41, %d" % i0)
            a("s_cbranch_scc1 L_it%d" % i0)
        a("s_branch L_it%d" % (8 - par))

    a.label("L_slow")
    vKs, vKts, vM, vD0, vNeg = T + 8, T + 9, T + 10, T + 11, T + 12
    a("v_and_b32 v%d, 31, v0" % T)
    a("v_lshrrev_b32 v%d, 5, v0" % (T + 1))
    a("v_lshlrev_b32 v%d, 2, v%d" % (vD0, T + 1))
    a("v_sub_u32 v%d, v%d, v%d" % (vD0, vD0, T))
    a("v_mov_b32 v%d, 0xff800000" % vNeg)
    a("v_mov_b32 v%d, v%d" % (vM, vNeg))
    a("s_max_i32 s50, s41, 0")
    a("s_sub_u32 s51, 8, s50")
    a("v_mul_u32_u24 v%d, s51, v%d" % (T, vStep))
    a("v_sub_u32 v%d, v%d, v%d" % (vV, vV, T))
    a("s_mul_i32 s51, s50, 2304")
    for r in range(16):
        a("v_mov_b32 v%d, 0" % (OO + r))
    for ps in range(2):
        lab = "L_sp%d" % ps
        a("v_add_u32 v%d, s51, v%d" % (vKs, vK))
        a("v_add_u32 v%d, s51, v%d" % (vKts, vKt))
        a("s_mov_b32 s46, s50")
        a.label(lab)
        for x in k_reads(0, vKs, vKts):
            a(x)
        if ps == 1:
            for x in v_reads(0):
                a(x)
        a("s_mov_b32 s47, -31")
        a("s_mov_b32 s48, 62")
        a("s_cmp_eq_u32 s46, 0")
        a("s_cselect_b32 s47, 1, s47")
        a("s_cselect_b32 s48, 30, s48")
        a("s_cmp_eq_u32 s46, 8")
        a("s_cselect_b32 s48, 31, s48")
        a("s_waitcnt lgkmcnt(0)")
        for x in qk(0):
            a(x)
        a("v_subrev_u32 v%d, s47, v%d" % (T, vD0))
        for r in range(16):
            a("v_add_u32 v%d, %d, v%d" % (T + 1, 8 * (r >> 2) + (r & 3), T))
            a("v_cmp_ge_u32 vcc, s48, v%d" % (T + 1))
            a("v_cndmask_b32 v%d, v%d, v%d, vcc" % (SS[0] + r, vNeg, SS[0] + r))
            if ps == 0:
                a("v_max_f32 v%d, v%d, v%d" % (vM, vM, SS[0] + r))
            else:
                a("v_sub_f32 v%d, v%d, v%d" % (SS[0] + r, SS[0] + r, vM))
                a("v_exp_f32 v%d, v%d" % (SS[0] + r, SS[0] + r))
        if ps == 1:
            for q in range(8):
                a("v_cvt_pk_bf16_f32 v%d, v%d, v%d" % (PP[0] + q, SS[0] + 2 * q, SS[0] + 2 * q + 1))
            for x in pv(0, False):
                a(x)
            a("v_add_u32 v%d, v%d, v%d" % (vV, vV, vStep))
        a("v_add_u32 v%d, 2304, v%d" % (vKs, vKs))
        a("v_add_u32 v%d, 2304, v%d" % (vKts, vKts))
        a("s_add_u32 s46, s46, 1")
        a("s_cmp_lt_u32 s46, 9")
        a("s_nop 7")
        a("s_nop 7")
        a("s_cbranch_scc1 %s" % lab)
        if ps == 0:
            a("v_mov_b32 v%d, v%d" % (T, vM))
            a("v_permlane32_swap_b32 v%d, v%d" % (T, vM))
            a("v_max_f32 v%d, v%d, v%d" % (vM, vM, T))
    a("v_rcp_f32 v%d, v%d" % (T, OO + 12))
    a("s_nop 1")
    a("s_branch L_fin")


def helpers(a):
    a.label("L_help")
    a("s_cmp_eq_u32 s3, 9")
    a("s_cbranch_scc0 L_help1")
    code_touch(a)
    a.label("L_help1")
    a("v_mov_b32 v3, %d" % CTL)
    for k in range(4):
        a("v_mov_b32 v%d, 0" % (4 + k))
    a("v_lshlrev_b32 v1, 4, v0")
    a("v_add_u32 v2, v1, v3")
    a("s_mov_b64 exec, 0xff")
    a("ds_write_b128 v2, v[4:7]")
    a("s_mov_b64 exec, -1")
    a("s_waitcnt lgkmcnt(0)")
    load_tag(a)
    a("s_barrier")
    a("s_barrier")
    a("s_waitcnt lgkmcnt(0)")
    make_tag(a)
    a.label("L_help2")
    decode2(a)
    a("s_cmp_eq_u32 s3, 8")
    a("s_cbranch_scc1 L_down")
    a("v_lshrrev_b32 v1, 5, v0")
    a("v_bfe_u32 v2, v0, 3, 2")
    a("v_lshrrev_b32 v10, 4, v0")
    a("v_lshlrev_b32 v10, 1, v10")
    a("v_and_b32 v11, 7, v0")
    a("v_xor_b32 v10, v10, v11")
    a("v_lshl_add_u32 v4, v1, 2, v2")
    a("v_mul_u32_u24 v4, 1152, v4")
    a("v_lshl_add_u32 v4, v10, 4, v4")
    a("v_mul_u32_u24 v5, 72, v1")
    a("v_add_u32 v5, v5, v2")
    a("v_mul_u32_u24 v5, 1152, v5")
    a("v_lshl_add_u32 v5, v10, 4, v5")
    a("s_sub_u32 s36, s3, 9")
    a("s_mul_i32 s37, s36, %d" % (20 * 1152))
    a("s_mul_i32 s43, s36, %d" % (144 * 1152))
    a("s_lshl_b32 s38, s36, 10")
    a("s_add_u32 s38, s38, %d" % WO)
    a("s_lshl_b32 s39, s53, 7")
    a("s_sub_u32 s42, %d, s39" % (576 * 1152))
    srd_off(a, 16, 28, "s39", "s42")
    srd_off(a, 24, 8, L.WS_O, 128 * 18432)
    a("v_mov_b32 v%d, %d" % (vC, CTL))
    a("s_sub_u32 s40, s3, 5")
    out_setup(a, 40)
    a("s_setprio %d" % OPT["pr3"])
    a("s_cmp_ge_u32 s2, 192")
    a("s_cbranch_scc1 L_wo_go")
    for k in range(9):
        a("s_barrier")
    a.label("L_wo_go")
    a("s_cmp_eq_u32 s3, 11")
    a("s_cbranch_scc1 L_ctl")
    a("s_cmp_ge_u32 s52, 26")
    a("s_cbranch_scc1 L_end")
    if OPT["woe"]:
        a("s_cmp_ge_u32 s2, 192")
        a("s_cbranch_scc1 L_wo_e_d")
        lds_spin(a, "L_wo_e", 3, C_FI, 10, (8,), 0)
    stamp(a, 5)
    for m in range(36):
        if m == OPT["woe"]:
            stage_spin(a, "L_wo_w", 0, 3, 10, 2)
        st, sec = m >> 1, m & 1
        a("s_add_u32 m0, s38, %d" % (2048 * m))
        if st < 16:
            a("s_add_u32 s40, s37, %d" % ((36 * st + 8 * sec) * 1152))
            a("buffer_load_dwordx4 v4, s[16:19], s40 offen lds")
        else:
            a("s_add_u32 s40, s43, %d" % ((288 * (st - 16) + 36 * sec + 16) * 1152))
            a("buffer_load_dwordx4 v5, s[16:19], s40 offen lds")
        if OPT["wth"] and m >= OPT["wth"] - 1:
            a("s_waitcnt vmcnt(%d)" % (OPT["wth"] - 1))
    x_loads(a)
    a("s_waitcnt vmcnt(1)")
    stamp(a, 6)
    lds_inc(a, 3, 4, C_WO)
    a("s_setprio 0")
    a("s_branch L_out")
    a.label("L_ctl")
    a("v_lshlrev_b32 v8, 7, v0")
    a("v_add_u32 v9, %d, v8" % (L.WS_FLAG + F_PA * 128))
    a("s_mul_i32 s46, s52, 5")
    a("s_lshr_b32 s46, s46, 3")
    a("s_min_u32 s46, s46, 14")
    a("s_lshl_b32 s46, s46, 11")
    a("s_add_u32 s46, s46, %d" % (L.WS_FLAG + F_O * 128))
    a("v_add_u32 v8, s46, v8")
    a("s_lshl_b32 s46, s32, 4")
    a("s_add_u32 s46, s46, s31")
    a("s_lshl_b32 s46, s46, 7")
    a("s_add_u32 s46, s46, %d" % (L.WS_FLAG + F_O * 128))
    a("v_mov_b32 v14, s46")
    a("v_mov_b32 v15, s%d" % TAG)
    a("s_cmp_ge_u32 s2, 192")
    a("s_cbranch_scc1 L_ct_0")
    qpoll(a, 3, "L_qp1", True)
    a.label("L_ct_0")
    AUXLATE = OPT["auxp"]
    def aux():
        flag_poll(a, "L_pap", 9, 4, "s%d" % TAG, 64, 8, 3)
        a("v_mov_b32 v10, v5")
        a("v_mov_b32 v11, v6")
        a("v_mov_b32 v4, 1")
        a("ds_write_b64 v3, v[10:11] offset:%d" % C_IDX)
        a("ds_write_b32 v3, v4 offset:%d" % C_PA)
        srd_off(a, 16, 8, L.WS_G, 8192)
        a("s_mul_i32 s40, s52, 320")
        a("v_lshlrev_b32 v4, 2, v0")
        a("buffer_load_dword v5, v4, s[16:19], s40 offen sc1")
        a("buffer_load_dword v6, v4, s[16:19], s40 offen offset:256 sc1")
        a("v_add_u32 v4, %d, v4" % GB)
        GLATE.append(1)
        stamp(a, 5)

    if not AUXLATE:
        aux()
    a("v_bfe_u32 v20, v0, 4, 1")
    a("v_mul_u32_u24 v20, 18432, v20")
    a("v_and_b32 v21, 15, v0")
    a("v_lshl_add_u32 v20, v21, 4, v20")
    a("v_lshrrev_b32 v21, 5, v0")
    a("v_lshl_add_u32 v22, v21, 2, v20")
    a("v_lshl_add_u32 v21, v21, 8, v20")
    for k in range(4):
        a("v_mov_b32 v%d, -1" % (24 + k))
    a("s_mul_i32 s54, s32, %d" % (8 * 18432))
    a("s_lshl_b32 s55, s31, 10")
    a("s_add_u32 s55, s55, s54")
    a("s_lshr_b32 s56, s31, 1")
    a("s_lshl_b32 s56, s56, 8")
    a("s_and_b32 s57, s31, 1")
    a("s_lshl_b32 s57, s57, 3")
    a("s_add_u32 s56, s56, s57")
    a("s_add_u32 s56, s56, s54")
    a("s_add_u32 s56, s56, 16384")
    if OPT["pearly"]:
        lds_spin(a, "L_ct_p", 3, C_1, 10, (8, 1), 0)
        a("s_sleep %d" % OPT["pearly"])
    else:
        stage_spin(a, "L_ct_p", 0, 3, 10, 0)
    for j in range(4):
        a("buffer_store_dword v24, v22, s[24:27], s56 offen sc1")
        a("buffer_store_dwordx4 v[24:27], v21, s[24:27], s55 offen sc1")
        a("buffer_store_dwordx4 v[24:27], v21, s[24:27], s55 offen offset:512 sc1")
        a("s_add_u32 s55, s55, %d" % (2 * 18432))
        a("s_add_u32 s56, s56, %d" % (2 * 18432))
    a("v_mov_b32 v4, 1")
    a("s_waitcnt vmcnt(0)")
    a("ds_write_b32 v3, v4 offset:%d" % C_C)
    a("s_mov_b64 exec, 1")
    a("global_store_dword v14, v15, s[8:9] sc1")
    a("s_mov_b64 exec, -1")
    stamp(a, 6)
    lds_spin(a, "L_ct_q", 3, C_B, 10, (8,), 1)
    if AUXLATE:
        aux()
    else:
        a("s_sleep %d" % OPT["slp3"])
    flag_poll(a, "L_op", 8, 12, "s%d" % TAG, 32, 2)
    a("ds_write_b32 v4, v5")
    a("ds_write_b32 v4, v6 offset:256")
    lds_inc(a, 3, 10, C_GO2)
    stamp(a, 7)
    stamp_end(a, 11 if OPT["st11"] else 99, 3)
    a("ds_read_b64 v[10:11], v3 offset:%d" % C_IDX)
    a("s_waitcnt lgkmcnt(0)")
    a("v_readfirstlane_b32 s12, v10")
    a("v_readfirstlane_b32 s13, v11")
    a("s_mul_i32 s46, s52, 80")
    a("s_sub_u32 s46, s12, s46")
    a("s_cmp_lt_u32 s46, 80")
    a("s_cbranch_scc0 L_end")
    a("v_lshlrev_b32 v4, 7, v0")
    a("v_add_u32 v4, %d, v4" % (L.WS_FLAG + F_Y * 128))
    srd_off(a, 16, 8, L.WS_YP, 16 * 2304)
    a("v_lshrrev_b32 v6, 4, v0")
    a("v_mul_u32_u24 v6, 2304, v6")
    a("v_and_b32 v7, 15, v0")
    a("v_lshlrev_b32 v7, 4, v7")
    a("v_add_u32 v6, v6, v7")
    a("v_add_u32 v7, %d, v7" % YB)
    a("s_lshl_b32 s40, s53, 8")
    flag_poll(a, "L_yp", 4, 5, "12", 16, 2)
    for i in range(4):
        a("buffer_load_dwordx4 %s, v6, s[16:19], s40 offen sc1" % vr(8 + 4 * i, 4))
        a("s_add_u32 s40, s40, %d" % (4 * 2304))
    a("s_waitcnt vmcnt(0)")
    for i in range(1, 4):
        a("v_pk_add_f32 v[8:9], v[8:9], %s" % vr(8 + 4 * i, 2))
        a("v_pk_add_f32 v[10:11], v[10:11], %s" % vr(10 + 4 * i, 2))
    for k in range(4):
        a("v_mov_b32 v20, v%d" % (8 + k))
        a("v_permlane32_swap_b32 v20, v%d" % (8 + k))
        a("v_add_f32 v%d, v%d, v20" % (8 + k, 8 + k))
        a("v_mov_b32 v20, v%d" % (8 + k))
        a("v_permlane16_swap_b32 v20, v%d" % (8 + k))
        a("v_add_f32 v%d, v%d, v20" % (8 + k, 8 + k))
        bf16_round(a, 8 + k, 8 + k)
        a("v_mul_f32 v%d, s13, v%d" % (8 + k, 8 + k))
        bf16_round(a, 8 + k, 8 + k)
    a("v_mov_b32 v12, 1")
    a("ds_write_b128 v7, v[8:11]")
    a("ds_write_b32 v3, v12 offset:%d" % C_YRDY)
    a("s_cmp_eq_u32 s53, 0")
    a("s_cbranch_scc0 L_end")
    a("v_mov_b32 v4, %d" % L.WS_EPOCH)
    a("v_mov_b32 v5, s%d" % TAG)
    a("s_mov_b64 exec, 1")
    a("global_store_dword v4, v5, s[8:9]")
    a("s_endpgm")

    a.label("L_down")
    a("s_cmp_ge_u32 s2, 192")
    a("s_cbranch_scc1 L_end")
    DW, DA = 20, 128
    a("v_lshrrev_b32 v2, 3, v0")
    a("v_and_b32 v10, 7, v0")
    a("v_mul_u32_u24 v16, 1152, v2")
    a("v_lshl_add_u32 v16, v10, 4, v16")
    a("s_mul_i32 s36, s2, 24")
    a("v_mul_u32_u24 v12, %d, v10" % (4608 * 16))
    a("v_add_u32 v11, s36, v2")
    a("v_lshl_add_u32 v17, v11, 4, v12")
    a("v_cmp_gt_u32 s[56:57], 7, v10")
    a("s_mul_i32 s37, s2, %d" % (24 * 1152))
    a("v_and_b32 v1, 1, v0")
    a("v_lshlrev_b32 v1, 4, v1")
    sel_masks(a, 44, 11)
    a("v_lshrrev_b32 v11, 5, v0")
    a("v_bfe_u32 v12, v0, 3, 1")
    a("v_cmp_eq_u32 s[52:53], v11, v12")
    a("v_mul_u32_u24 v12, 2304, v12")
    a("v_bfe_u32 v11, v0, 4, 1")
    a("v_lshl_add_u32 v12, v11, 7, v12")
    a("v_lshl_add_u32 v12, v10, 2, v12")
    a("v_add_u32 v164, %d, v12" % HP)
    a("v_lshlrev_b32 v165, 2, v0")
    a("v_add_u32 v166, %d, v165" % HP)
    a("s_and_b32 s38, s2, 15")
    a("s_mul_i32 s39, s38, 2304")
    a("s_add_u32 s39, s39, %d" % L.WS_YP)
    a("v_add_u32 v165, s39, v165")
    a("s_lshl_b32 s38, s38, 7")
    a("s_add_u32 s38, s38, %d" % (L.WS_FLAG + F_Y * 128))
    srd_off(a, 16, 14, "s37", 24 * 1152)
    srd_off(a, 20, 8, L.WS_PA, 7 * 4608 * 16)
    def dloads(ts=(0, 1, 2)):
        for t in (() if OPT["nodown"] else ts):
            a("s_movk_i32 s40, %d" % (9216 * t))
            for cg in range(9):
                a("buffer_load_dwordx4 %s, v16, s[16:19], s40 offen offset:%d %s" % (vr(DW + 4 * (9 * t + cg), 4), 128 * cg, "" if OPT["dtouch"] else "nt"))

    for k in range(2, 11):
        if OPT["dsplit"]:
            if k in (8, 9, 10):
                dloads((k - 8,))
        elif k == OPT["dpos"]:
            dloads()
        a("s_barrier")
    if OPT["dpos"] == -1:
        a("s_setprio 3")
        stage_spin(a, "L_dn_w2", 0, 3, 10, 0)
        dloads()
    elif OPT["dpos"] == -2:
        a("s_setprio 3")
        lds_spin(a, "L_dn_w2", 3, C_WO, 10, (2,), 2)
        dloads()
    elif OPT["dpos"] == -3:
        a("s_setprio 3")
        lds_spin(a, "L_dn_w2", 3, C_1, 10, (8, 1), 0)
        a("s_sleep 8")
        dloads()
    elif OPT["w8e"] == 2:
        lds_spin(a, "L_dn_w2", 3, C_1, 10, (8, 1), 2)
        a("s_sleep 6")
    elif OPT["w8e"]:
        lds_spin(a, "L_dn_w2", 3, C_1, 10, (8,), 2)
    else:
        stage_spin(a, "L_dn_w2", 0, 3, 10, 2)
    stamp(a, 5)
    a("s_setprio %d" % OPT["pr1"])
    a("s_mov_b32 s60, 0x40000")
    a.label("L_dn_pa")
    a("buffer_load_dwordx3 v[4:6], v17, s[20:23], 0 offen sc1")
    a("buffer_load_dwordx3 v[8:10], v17, s[20:23], 0 offen offset:128 sc1")
    a("buffer_load_dwordx3 v[160:162], v17, s[20:23], 0 offen offset:256 sc1")
    a("s_waitcnt vmcnt(0)")
    a("v_cmp_ne_u32 vcc, s%d, v6" % TAG)
    a("v_cmp_ne_u32 s[40:41], s%d, v10" % TAG)
    a("v_cmp_ne_u32 s[42:43], s%d, v162" % TAG)
    a("s_or_b64 vcc, vcc, s[40:41]")
    a("s_or_b64 vcc, vcc, s[42:43]")
    a("s_and_b64 vcc, vcc, s[56:57]")
    a("s_cmp_eq_u64 vcc, 0")
    a("s_cbranch_scc1 L_dn_pb")
    a("s_sleep 8")
    a("s_sub_u32 s60, s60, 1")
    a("s_cbranch_scc0 L_dn_pa")
    a.label("L_dn_pb")
    stamp(a, 8)
    a("v_mov_b32 v6, v8")
    a("v_mov_b32 v7, v9")
    a("v_mov_b32 v8, v160")
    a("v_mov_b32 v9, v161")
    sum8(a, (4, 5, 6, 7, 8, 9))
    for t in range(3):
        g, u = 4 + 2 * t, 5 + 2 * t
        bf16_round(a, g, g)
        bf16_round(a, u, u)
        sigmoid(a, 10, g)
        a("v_mul_f32 v%d, v%d, v10" % (g, g))
        bf16_round(a, g, g)
        a("v_mul_f32 v%d, v%d, v%d" % (g, g, u))
        a("v_cvt_pk_bf16_f32 v%d, v%d, v%d" % (g, g, g))
        a("v_and_b32 v%d, 0xffff, v%d" % (g, g))
        a("v_lshlrev_b32 v%d, v1, v%d" % (g, g))
    for t in range(3):
        selector(a, 12, 4 + 2 * t, 44)
        for cg in range(9):
            d = vr(DA + 4 * cg, 4)
            a("v_mfma_f32_16x16x32_bf16 %s, %s, v[12:15], %s" % (d, vr(DW + 4 * (9 * t + cg), 4), "0" if t == 0 else d))
    a("s_mov_b64 exec, s[52:53]")
    for cg in range(9):
        for r in range(4):
            a("ds_write_b32 v164, v%d offset:%d" % (DA + 4 * cg + r, 256 * cg + 32 * r))
    a("s_mov_b64 exec, -1")
    for cg in range(9):
        a("ds_read2st64_b32 %s, v166 offset0:%d offset1:%d" % (vr(20 + 2 * cg, 2), cg, cg + 9))
    if OPT["atw"]:
        lds_spin(a, "L_dn_at", 3, C_WO, 10, (2,), 2)
    else:
        stage_spin(a, "L_dn_at", 0, 3, 10, 2)
    lds_spin(a, "L_dn_ax", 3, C_PA, 10, (1,), 1)
    for cg in range(9):
        a("v_add_f32 v%d, v%d, v%d" % (20 + 2 * cg, 20 + 2 * cg, 21 + 2 * cg))
        if not OPT["noat"]:
            a("global_atomic_add_f32 v165, v%d, s[8:9] offset:%d" % (20 + 2 * cg, 256 * cg))
    a("v_mov_b32 v4, s38")
    a("v_mov_b32 v5, 1")
    a("s_waitcnt vmcnt(0)")
    stamp(a, 7)
    a("s_mov_b64 exec, 1")
    a("global_atomic_add v4, v5, s[8:9] sc1")
    stamp_end(a, 8, 1)


def kf(a):
    a.label(NAME)
    a("s_cmp_ge_u32 s2, 256")
    a("s_cbranch_scc1 L_end")
    stamp_init(a)
    stamp(a, 0)
    a("s_load_dwordx4 s[4:7], s[0:1], 0")
    a("s_load_dwordx2 s[8:9], s[0:1], 88")
    a("s_load_dwordx2 s[10:11], s[0:1], 72")
    a("s_load_dwordx2 s[14:15], s[0:1], 56")
    a("s_load_dwordx2 s[28:29], s[0:1], 16")
    a("v_lshrrev_b32 v1, 6, v0")
    a("v_and_b32 v0, 63, v0")
    a("v_readfirstlane_b32 s3, v1")
    a("s_and_b32 s30, s2, 3")
    a("s_bfe_u32 s31, s2, 0x10002")
    a("s_lshr_b32 s32, s2, 3")
    a("s_cmp_ge_u32 s32, 24")
    a("s_cbranch_scc1 L_sp")
    a("s_cmp_ge_u32 s3, 8")
    a("s_cbranch_scc1 L_help")
    gemm_phase(a)
    attention_phase(a)
    out_phase(a)
    late_and_slow(a)
    spare_phase(a)
    helpers(a)
    a.label("L_end")
    a("s_endpgm")
```

```python
from asmdsl import vr, sr
import layout as L
from common import *
from k2 import (KB, VB, QB, ONES, vK, vKt, vV, vStep, QM, QT, MSK, KF, VF, PP, SS, OO, T,
                k_reads, v_reads, qk, pv)

NAME = "gated_mix__sliding_block__moe_arch_mod__prompt_kernel"
SLOT = 34816
IMG = SLOT
WO = 66560
CTL = 149568
YB = 149696
HP = 150016
YT = 154624
XS = 156672
KF_LDS = 162304
PSLOT = (QB, QB + 4096, 140288, 144384, 158208)
KF_VGPR = 168
PART = 0
STG = 20480
XR, GR = 128, 136
vC = 154
TAG = 65
C_O, C_GO2, C_A, C_WO, C_PART, C_YRDY, C_B, C_1, C_GO1, C_C, C_PA, C_IDX, C_RSEL = 0, 4, 8, 12, 88, 32, 36, 40, 44, 48, 52, 56, 60
C_KMAX, C_KCNT, C_XS, C_GD, C_RED, C_RED2, C_FI = 64, 68, 72, 76, 80, 84, 16
F_Q, F_O, F_PA, F_Y = 0, 192, 448, 512


def lds_spin(a, name, addr_v, off, regs, conds, slp=1):
    n = len(conds)
    a("s_mov_b32 s60, 0x200000")
    a.label(name)
    a(("ds_read_b64 %s, v%d offset:%d" % (vr(regs, 2), addr_v, off)) if n == 2 else
      ("ds_read_b32 v%d, v%d offset:%d" % (regs, addr_v, off)))
    a("s_waitcnt lgkmcnt(0)")
    a("v_readfirstlane_b32 s61, v%d" % regs)
    if n == 2:
        a("v_readfirstlane_b32 s62, v%d" % (regs + 1))
        a("s_lshl_b32 s62, s62, 8")
        a("s_or_b32 s61, s61, s62")
        a("s_cmp_eq_u32 s61, %d" % (conds[0] | (conds[1] << 8)))
    else:
        a("s_cmp_eq_u32 s61, %d" % conds[0])
    a("s_cbranch_scc1 %s_d" % name)
    if slp:
        a("s_sleep %d" % slp)
    a("s_sub_u32 s60, s60, 1")
    a("s_cmp_lg_u32 s60, 0")
    a("s_cbranch_scc1 %s" % name)
    a.label(name + "_d")


def stage_spin(a, name, stage, vc=vC, T=T, slp=0):
    a("s_mov_b32 s60, 0x200000")
    a.label(name)
    a("ds_read_b32 v%d, v%d offset:%d" % (T, vc, C_A))
    a("s_waitcnt lgkmcnt(0)")
    a("v_readfirstlane_b32 s61, v%d" % T)
    a("s_bitcmp1_b32 s61, %d" % (8 * stage + 3))
    a("s_cbranch_scc1 %s_d" % name)
    if slp:
        a("s_sleep %d" % slp)
    a("s_sub_u32 s60, s60, 1")
    a("s_cmp_lg_u32 s60, 0")
    a("s_cbranch_scc1 %s" % name)
    a.label(name + "_d")


def landed(a, inc, vm):
    a("v_mov_b32 v%d, %s" % (T, hex(inc)))
    a("s_waitcnt vmcnt(%d)" % vm)
    a("s_mov_b64 exec, 1")
    a("ds_add_u32 v%d, v%d offset:%d" % (vC, T, C_A))
    a("s_mov_b64 exec, -1")


def poison(a):
    if OPT["nopois"]:
        a("s_nop 0")
        a("buffer_load_dword v155, v152, s[24:27], s59 offen")
        a("buffer_load_dword v155, v152, s[24:27], s59 offen")
        return
    for k in range(4):
        a("v_mov_b32 v%d, -1" % (120 + k))
    a("buffer_store_dwordx4 %s, v153, s[24:27], s58 offen sc1" % vr(120, 4))
    a("s_mov_b32 exec_hi, 0")
    a("buffer_store_dword v%d, v152, s[24:27], s59 offen sc1" % 120)
    a("s_mov_b32 exec_hi, -1")


def tail_touch(a):
    a("buffer_load_dword v155, v152, s[24:27], s59 offen")


def flag_poll(a, name, voff, vt, want, lanes, slp=1, width=1):
    a("s_mov_b64 exec, %s" % ("-1" if lanes == 64 else hex((1 << lanes) - 1)))
    a("s_mov_b32 s60, 0x40000")
    a.label(name)
    a("global_load_dword%s %s, v%d, s[8:9] sc1" % ("" if width == 1 else "x%d" % width, vr(vt, width), voff))
    a("s_waitcnt vmcnt(0)")
    a("v_cmp_eq_u32 vcc, %s, v%d" % (want, vt))
    a("s_cmp_eq_u64 vcc, exec")
    a("s_cbranch_scc1 %s_d" % name)
    if slp:
        a("s_sleep %d" % slp)
    a("s_sub_u32 s60, s60, 1")
    a("s_cmp_lg_u32 s60, 0")
    a("s_cbranch_scc1 %s" % name)
    a.label(name + "_d")
    a("s_mov_b64 exec, -1")


def lds_inc(a, vz, vt, off, rtn=False):
    a("v_mov_b32 v%d, 1" % vt)
    a("s_mov_b64 exec, 1")
    if rtn:
        a("ds_add_rtn_u32 v%d, v%d, v%d offset:%d" % (vt, vz, vt, off))
    else:
        a("ds_add_u32 v%d, v%d offset:%d" % (vz, vt, off))
    a("s_mov_b64 exec, -1")


def load_tag(a):
    a("s_mov_b32 s64, %d" % L.WS_EPOCH)
    a("s_load_dword s%d, s[8:9], s64" % TAG)


def make_tag(a):
    a("s_mul_i32 s%d, s%d, 0x9e3779b1" % (TAG, TAG))
    a("s_add_u32 s%d, s%d, 0x7f4a7c15" % (TAG, TAG))


def copy_scalars(a):
    a("s_mul_i32 s55, s34, %d" % (4 * L.PAIR_BYTES))
    a("s_mul_i32 s56, s35, 9216")
    a("s_add_u32 s55, s55, s56")
    a("s_lshl_b32 s56, s3, 10")
    a("s_add_u32 s55, s55, s56")
    for j in range(5):
        a("s_add_u32 s57, s3, %d" % (8 * j))
        a("s_mul_i32 s57, s57, 57")
        a("s_lshr_b32 s57, s57, 9")
        a("s_mul_i32 s57, s57, %d" % (L.PAIR_BYTES - 9216))
        a("s_add_u32 s57, s57, s55")
        a("s_add_u32 s%d, s57, %d" % (50 + j, 8192 * j))
    a("s_mul_i32 s58, s35, 12")
    a("s_add_u32 s58, s58, s34")
    a("s_lshl_b32 s58, s58, 7")
    a("s_add_u32 s58, s58, %d" % (L.WS_FLAG + F_Q * 128))


def decode2(a):
    if OPT["amap"]:
        a("s_and_b32 s31, s2, 7")
        a("s_lshl_b32 s31, s31, 1")
        a("s_bfe_u32 s32, s2, 0x10003")
        a("s_add_u32 s31, s31, s32")
        a("s_lshr_b32 s30, s31, 2")
        a("s_lshr_b32 s32, s2, 4")
        a("s_add_u32 s32, s32, 4")
        a("s_and_b32 s32, s32, 15")
    else:
        a("s_and_b32 s30, s2, 3")
        a("s_bfe_u32 s33, s2, 0x10002")
        a("s_bfe_u32 s32, s2, 0x20003")
        a("s_lshl_b32 s31, s30, 2")
        a("s_add_u32 s31, s31, s32")
        a("s_lshl_b32 s32, s33, 3")
        a("s_lshr_b32 s34, s2, 5")
        if OPT["light"]:
            a("s_add_u32 s34, s34, 2")
            a("s_and_b32 s34, s34, 7")
        a("s_add_u32 s32, s32, s34")
    a("s_lshr_b32 s33, s2, 3")
    a("s_mul_i32 s34, s33, 57")
    a("s_lshr_b32 s34, s34, 9")
    a("s_mul_i32 s53, s34, 9")
    a("s_sub_u32 s53, s33, s53")
    a("s_lshl_b32 s52, s34, 3")
    a("s_and_b32 s34, s2, 7")
    a("s_add_u32 s52, s52, s34")
    a("s_sub_u32 s33, s2, 216")
    a("s_mul_i32 s34, s33, 57")
    a("s_lshr_b32 s34, s34, 9")
    a("s_mul_i32 s35, s34, 9")
    a("s_sub_u32 s33, s33, s35")
    a("s_add_u32 s34, s34, 24")
    a("s_cmp_ge_u32 s2, 216")
    a("s_cselect_b32 s52, s34, s52")
    a("s_cselect_b32 s53, s33, s53")


def qpoll(a, vc, name, own, r=16):
    R = dict(a=r, b=r + 1, c=r + 2)
    a("v_add_u32 v%(a)d, 2, v0" % R)
    a("v_mul_u32_u24 v%(b)d, 43, v%(a)d" % R)
    a("v_lshrrev_b32 v%(b)d, 7, v%(b)d" % R)
    a("v_mul_u32_u24 v%(c)d, 3, v%(b)d" % R)
    a("v_sub_u32 v%(a)d, v%(a)d, v%(c)d" % R)
    a("s_sub_u32 s35, s32, 2")
    a("v_add_u32 v%(a)d, s35, v%(a)d" % R)
    a("v_max_i32 v%(a)d, 0, v%(a)d" % R)
    a("v_mul_u32_u24 v%(a)d, 12, v%(a)d" % R)
    a("v_lshl_add_u32 v%(a)d, v%(b)d, 2, v%(a)d" % R)
    a("v_add_u32 v%(a)d, s30, v%(a)d" % R)
    a("v_lshlrev_b32 v%(a)d, 7, v%(a)d" % R)
    a("v_add_u32 v%d, %d, v%d" % (r, L.WS_FLAG + F_Q * 128, r))
    if own:
        lds_spin(a, name + "w", vc, C_1, r + 2, (8,), 0)
    if OPT["qdel"]:
        a("s_sleep %d" % OPT["qdel"])
    if OPT["qpipe"] and own:
        NP = OPT["qpipe"]
        a("s_mov_b64 exec, 0x7f")
        a("s_mov_b32 s60, 0x20000")
        for k in range(NP - 1):
            a("global_load_dword v%d, v%d, s[8:9] sc1" % (r + 3 + k, r))
            a("s_sleep 1")
        a.label(name)
        for k in range(NP):
            a("global_load_dword v%d, v%d, s[8:9] sc1" % (r + 3 + (k + NP - 1) % NP, r))
            a("s_waitcnt vmcnt(%d)" % (NP - 1))
            a("v_cmp_eq_u32 vcc, s%d, v%d" % (TAG, r + 3 + k))
            a("s_cmp_eq_u64 vcc, exec")
            a("s_cbranch_scc1 %s_d" % name)
        a("s_sub_u32 s60, s60, 1")
        a("s_cbranch_scc0 %s" % name)
        a.label(name + "_d")
        a("s_mov_b64 exec, -1")
    else:
        flag_poll(a, name, r, r + 1, "s%d" % TAG, 7, OPT["qslp"])
    lds_inc(a, vc, r + 2, C_GO1)


def code_touch(a):
    if not OPT["ctouch"]:
        return
    lab = a.newlabel("pc")
    a("s_getpc_b64 s[20:21]")
    a.label(lab)
    a("s_sub_u32 s20, s20, %s-%s" % (lab, NAME))
    a("s_subb_u32 s21, s21, 0")
    a("s_lshr_b32 s22, s2, 3")
    a("s_mul_i32 s22, s22, %d" % (12 * 128))
    a("v_lshlrev_b32 v20, 7, v0")
    a("v_add_u32 v20, s22, v20")
    a("v_min_u32 v20, L_end-%s, v20" % NAME)
    a("s_mov_b64 exec, 0xfff")
    a("global_load_dword v21, v20, s[20:21]")
    a("s_mov_b64 exec, -1")


def gemm_phase(a):
    if OPT["gmap"]:
        a("s_lshr_b32 s33, s32, 1")
        a("s_mul_i32 s33, s33, 43")
        a("s_lshr_b32 s33, s33, 7")
        a("s_mul_i32 s34, s33, 6")
        a("s_sub_u32 s34, s32, s34")
        a("s_and_b32 s35, s34, 1")
        a("s_lshr_b32 s34, s34, 1")
        a("s_lshl_b32 s34, s34, 2")
        a("s_add_u32 s34, s34, s35")
        a("s_and_b32 s35, s2, 1")
        a("s_lshl_b32 s35, s35, 1")
        a("s_add_u32 s34, s34, s35")
        a("s_bfe_u32 s35, s2, 0x20001")
        a("s_lshl_b32 s35, s35, 2")
        a("s_add_u32 s35, s35, s33")
    else:
        a("s_mul_i32 s33, s32, 43")
        a("s_lshr_b32 s33, s33, 7")
        a("s_mul_i32 s34, s33, 3")
        a("s_sub_u32 s34, s32, s34")
        a("s_lshl_b32 s34, s34, 2")
        a("s_add_u32 s34, s34, s30")
        a("s_lshl_b32 s35, s31, 3")
        a("s_add_u32 s35, s35, s33")
    a("s_cmp_lt_u32 s3, 4")
    a("s_cbranch_scc1 L_comp")
    a("s_cmp_lt_u32 s3, 6")
    a("s_cbranch_scc0 L_ldw")
    a("s_sub_u32 s36, s3, 4")
    SH = 4 if OPT["gmap"] else 3
    a("v_and_b32 v7, %d, v0" % ((1 << SH) - 1))
    a("s_lshl_b32 s41, s33, %d" % SH)
    a("s_lshl_b32 s42, s36, 6")
    a("s_add_u32 s41, s41, s42")
    a("v_add_u32 v7, s41, v7")
    a("v_mul_u32_u24 v7, 3456, v7")
    a("v_lshrrev_b32 v1, %d, v0" % SH)
    a("v_lshl_add_u32 v7, v1, 7, v7")
    a("v_lshrrev_b32 v1, 3, v0")
    a("s_mul_i32 s39, s35, %d" % (128 * 1152))
    a("s_mul_i32 s46, s34, 288")
    a("s_and_b32 s46, s46, 0xffffff80")
    a("s_sub_u32 s47, %d, s46" % (576 * 3456))
    a("v_mul_u32_u24 v1, 1152, v1")
    a("v_lshrrev_b32 v2, 4, v0")
    a("v_and_b32 v3, 7, v0")
    a("v_xor_b32 v3, v3, v2")
    a("v_lshl_add_u32 v4, v3, 4, v1")
    a("v_xor_b32 v3, 4, v3")
    a("v_lshl_add_u32 v5, v3, 4, v1")
    a("v_add_u32 v5, %d, v5" % (8 * 1152))
    a("s_mul_i32 s37, s36, %d" % (64 * 1152))
    a("s_lshl_b32 s38, s36, 13")
    a("s_waitcnt lgkmcnt(0)")
    srd_off(a, 20, 6, "s46", "s47")
    if OPT["gmap"]:
        a("s_mov_b32 exec_hi, 0xffff")
    else:
        a("s_mov_b64 exec, 0xffffff")
    a("buffer_load_dword v20, v7, s[20:23], 0 offen")
    a("s_mov_b64 exec, -1")
    srd_off(a, 16, 4, "s39", 128 * 1152)

    def x_chunk(c):
        for i in range(8):
            a("s_add_u32 m0, s38, %d" % ((c % 4) * SLOT + i * 1024))
            a("s_add_u32 s40, s37, %d" % ((i >> 1) * 16 * 1152 + c * 128))
            a("buffer_load_dwordx4 v%d, s[16:19], s40 offen lds" % (4 + (i & 1)))

    x_chunk(0)
    load_tag(a)
    copy_scalars(a)
    stamp(a, 1)
    a("s_waitcnt vmcnt(8) lgkmcnt(0)")
    stamp(a, 2)

    def loader_loop(fn, n, first, ahead0):
        LA = OPT["la"]
        a("s_barrier")
        stamp(a, 13)
        nxt = first
        while nxt < ahead0:
            fn(nxt)
            nxt += 1
        stamp(a, 14)
        for c in range(9):
            a("s_waitcnt vmcnt(%d)" % (n * (nxt - 1 - c)))
            a("s_barrier")
            while nxt <= c + LA and nxt < 9:
                fn(nxt)
                nxt += 1

    loader_loop(x_chunk, 8, 1, 2)
    a("s_branch L_copy")
    a.c("---- W loaders (waves 6,7)")
    a.label("L_ldw")
    a("s_movk_i32 s41, 3641")
    for i in range(9):
        a("v_add_u32 v1, %d, v0" % (64 * i))
        a("v_mul_u32_u24 v2, s41, v1")
        a("v_lshrrev_b32 v2, 16, v2")
        a("v_mul_u32_u24 v3, 18, v2")
        a("v_sub_u32 v3, v1, v3")
        a("v_bfe_u32 v1, v2, 2, 2")
        a("v_lshlrev_b32 v1, 3, v1")
        a("v_lshrrev_b32 v13, 4, v2")
        a("v_lshl_add_u32 v1, v13, 2, v1")
        a("v_and_b32 v2, 3, v2")
        a("v_add_u32 v1, v1, v2")
        a("v_mul_u32_u24 v1, 3456, v1")
        a("v_lshl_add_u32 v%d, v3, 4, v1" % (4 + i))
        if i == 2:
            a("s_waitcnt lgkmcnt(0)")
            load_tag(a)
    a("s_sub_u32 s36, s3, 6")
    a("s_mul_i32 s37, s36, %d" % (32 * 3456))
    a("s_mul_i32 s38, s36, 9216")
    a("s_mul_i32 s39, s34, 288")
    a("s_sub_u32 s42, %d, s39" % (576 * 3456))
    copy_scalars(a)
    srd_off(a, 16, 6, "s39", "s42")
    a("s_waitcnt lgkmcnt(0)")

    def w_chunk(c):
        a("s_add_u32 s40, s37, %d" % (c * 64 * 3456))
        for i in range(9):
            a("s_add_u32 m0, s38, %d" % ((c % 4) * SLOT + 16384 + i * 1024))
            a("s_nop 0")
            a("buffer_load_dwordx4 v%d, s[16:19], s40 offen lds" % (4 + i))

    loader_loop(w_chunk, 9, 0, OPT["wa0"])
    a("s_branch L_copy")
    a.c("---- GEMM compute waves 0..3")
    a.label("L_comp")
    ACC, XF, WF = 64, (136, 144), 24
    a("v_and_b32 v8, 15, v0")
    a("v_lshrrev_b32 v9, 4, v0")
    a("v_lshrrev_b32 v10, 1, v8")
    a("v_xor_b32 v10, v10, v9")
    a("s_lshl_b32 s36, s3, 12")
    a("v_lshlrev_b32 v2, 7, v8")
    a("v_lshl_add_u32 v2, v10, 4, v2")
    a("v_add_u32 v2, s36, v2")
    a("v_xor_b32 v3, 64, v2")
    a("v_add_u32 v4, %d, v2" % (2 * SLOT))
    a("v_add_u32 v5, %d, v3" % (2 * SLOT))
    a("v_lshrrev_b32 v10, 2, v0")
    a("v_mul_u32_u24 v6, 288, v10")
    a("v_and_b32 v10, 3, v0")
    a("v_lshl_add_u32 v6, v10, 3, v6")
    a("v_add_u32 v6, 16384, v6")
    a("v_add_u32 v7, %d, v6" % (2 * SLOT))
    a("s_waitcnt lgkmcnt(0)")
    load_tag(a)
    a("s_mov_b32 s36, 1.0")
    a("s_cmp_lt_u32 s34, 4")
    a("s_cselect_b32 s36, %s, s36" % f32(QSCALE))
    a("s_mov_b32 s37, s36")
    a("s_lshl_b32 s38, s3, 5")
    a("v_add_u32 v10, s38, v8")
    a("v_mul_u32_u24 v10, 72, v10")
    a("v_lshl_add_u32 v10, v9, 3, v10")
    a("v_add_u32 v10, %d, v10" % IMG)
    for ft in range(9):
        a("v_add_u32 v11, %d, v9" % (4 * ft))
        a("v_mul_u32_u24 v11, 57, v11")
        a("v_lshrrev_b32 v11, 9, v11")
        a("v_mul_u32_u24 v11, 9144, v11")
        a("v_add_u32 v%d, v11, v10" % (12 + ft))
    copy_scalars(a)
    a("s_waitcnt lgkmcnt(0)")

    def xreads(step):
        c, h2 = step >> 1, step & 1
        slot = c % 4
        return ["ds_read_b128 %s, v%d offset:%d" % (vr(XF[step & 1] + 4 * tt, 4), 2 + 2 * (slot >> 1) + h2,
                                                    (slot & 1) * SLOT + tt * 2048) for tt in range(2)]

    def wreads(step, ft):
        c, h2 = step >> 1, step & 1
        slot = c % 4
        return ["ds_read_b64_tr_b16 %s, v%d offset:%d" % (vr(WF + 4 * ft + 2 * sec, 2), 6 + (slot >> 1),
                                                          (slot & 1) * SLOT + h2 * 9216 + sec * 4608 + ft * 32)
                for sec in range(2)]

    def mfma(step, ft, tt):
        d = vr(ACC + 8 * ft + 4 * tt, 4)
        return "v_mfma_f32_16x16x32_bf16 %s, %s, %s, %s" % (
            d, vr(WF + 4 * ft, 4), vr(XF[step & 1] + 4 * tt, 4), "0" if step == 0 else d)

    def epi(k):
        ft, tt = k >> 1, k & 1
        b = ACC + 4 * k
        t = 152 + 2 * (k % 4)
        return ["v_pk_mul_f32 %s, %s, s[36:37]" % (vr(b, 2), vr(b, 2)),
                "v_pk_mul_f32 %s, %s, s[36:37]" % (vr(b + 2, 2), vr(b + 2, 2)),
                "v_cvt_pk_bf16_f32 v%d, v%d, v%d" % (t, b, b + 1),
                "v_cvt_pk_bf16_f32 v%d, v%d, v%d" % (t + 1, b + 2, b + 3),
                "ds_write_b64 v%d, %s offset:%d" % (12 + ft, vr(t, 2), 32 * ft + 1152 * tt)]

    a("s_barrier")
    a("s_barrier")
    stamp(a, 1)
    q = []

    def issue(tag, lst):
        for x in lst:
            a(x)
            q.append(tag)

    def need(tag):
        last = max(k for k, v in enumerate(q) if v == tag)
        a("s_waitcnt lgkmcnt(%d)" % min(15, len(q) - 1 - last))

    issue(("x", 0), xreads(0))
    for ft in range(9):
        issue(("w", 0, ft), wreads(0, ft))
    for step in range(16):
        if step & 1:
            a("s_barrier")
        for ft in range(9):
            need(("w", step, ft))
            a(mfma(step, ft, 0))
            if ft == 0:
                issue(("x", step + 1), xreads(step + 1))
            a(mfma(step, ft, 1))
            issue(("w", step + 1, ft), wreads(step + 1, ft))
    RING = (60, 160, 164)

    def w17(ft):
        return [x.replace(vr(WF + 4 * ft + 2 * sec, 2), vr(RING[ft % 3] + 2 * sec, 2)) for sec, x in enumerate(wreads(17, ft))]

    issue(("x", 17), xreads(17))
    issue(("v", 0), w17(0))
    issue(("v", 1), w17(1))
    for ft in range(10):
        e = (epi(2 * ft - 2) + epi(2 * ft - 1)) if ft else []
        if ft < 9:
            need(("v", ft))
            m = [mfma(16, ft, 0), mfma(16, ft, 1)] + \
                [mfma(17, ft, tt).replace(vr(WF + 4 * ft, 4), vr(RING[ft % 3], 4)) for tt in range(2)]
        else:
            m = []
        cut = (0, 3, 5, 8, 10)
        for k in range(4):
            if m:
                a(m[k])
            if k == 0 and ft + 2 < 9:
                issue(("v", ft + 2), w17(ft + 2))
            for x in e[cut[k]:cut[k + 1]]:
                if x.startswith("ds_"):
                    issue("e", [x])
                else:
                    a(x)
    stamp(a, 2)
    a("s_waitcnt lgkmcnt(0)")
    a.c("---- copy the tile out, then publish it")
    a.label("L_copy")
    a("v_lshlrev_b32 v1, 4, v0")
    a("s_lshl_b32 s36, s3, 10")
    a("v_add_u32 v2, s36, v1")
    a("v_add_u32 v3, %d, v2" % (IMG + 4 * 8192))
    srd_off(a, 24, 8, L.WS_QKV, L.QKV_BYTES)
    make_tag(a)
    a("s_barrier")
    for j in range(4):
        a("ds_read_b128 %s, v2 offset:%d" % (vr(4 + 4 * j, 4), IMG + j * 8192))
    a("s_cmp_lt_u32 s3, 4")
    a("s_cbranch_scc0 L_c4")
    a("ds_read_b128 v[20:23], v3")
    a("s_waitcnt lgkmcnt(0)")
    a("buffer_store_dwordx4 v[20:23], v1, s[24:27], s54 offen sc1")
    a.label("L_c4")
    for j in range(4):
        a("s_waitcnt lgkmcnt(%d)" % (3 - j))
        a("buffer_store_dwordx4 %s, v1, s[24:27], s%d offen sc1" % (vr(4 + 4 * j, 4), 50 + j))
    a("s_mov_b32 s63, s58")
    a("v_mov_b32 v%d, %d" % (vC, CTL))
    lds_inc(a, vC, 24, C_FI)
    stamp(a, 3)


def spare_phase(a):
    GW = 64
    a.c("---- workgroups without a GEMM tile: router / gate logits, first touch of the weights")
    a.label("L_sp")
    a("s_sub_u32 s36, s2, 192")
    a("s_cmp_ge_u32 s3, 8")
    a("s_cbranch_scc1 L_sp_ffn")
    a("s_cmp_ge_u32 s3, 4")
    a("s_cbranch_scc1 L_sp_hi")
    a("s_load_dwordx2 s[60:61], s[0:1], 32")
    a("s_load_dwordx2 s[62:63], s[0:1], 64")
    a("v_lshrrev_b32 v2, 3, v0")
    a("v_and_b32 v3, 7, v0")
    a("v_lshlrev_b32 v3, 4, v3")
    a("s_lshl_b32 s34, s36, 2")
    a("s_add_u32 s34, s34, s3")
    a("s_lshl_b32 s33, s34, 3")
    a("v_add_u32 v1, s33, v2")
    a("v_mul_u32_u24 v4, 1152, v1")
    a("v_add_u32 v4, v4, v3")
    a("s_mul_i32 s51, s34, %d" % (7 * 128))
    a("s_mul_i32 s52, s34, %d" % (21 * 128))
    a("v_lshlrev_b32 v7, 7, v0")
    a("s_waitcnt lgkmcnt(0)")
    load_tag(a)
    srd(a, 16, 6, 576 * 3456)
    srd(a, 20, 28, 576 * 1152)
    for i in range(9):
        a("global_load_dwordx4 %s, v4, s[4:5] offset:%d" % (vr(8 + 4 * i, 4), 128 * i))
        if i == 0:
            for j in range(9):
                a("global_load_dwordx4 %s, v3, s[60:61] offset:%d" % (vr(44 + 4 * j, 4), 128 * j))
                a("global_load_dwordx4 %s, v3, s[62:63] offset:%d" % (vr(80 + 4 * j, 4), 128 * j))
        else:
            a("s_add_u32 s53, s51, %d" % (1728 * 128 * i))
            a("s_mov_b64 exec, 0x7f")
            a("buffer_load_dword v124, v7, s[16:19], s53 offen")
            a("s_mov_b64 exec, -1")
    a("s_mov_b64 exec, 0x1fffff")
    a("buffer_load_dword v124, v7, s[20:23], s52 offen")
    a("s_mov_b64 exec, -1")
    a("v_mov_b32 v%d, %d" % (vC, CTL))
    a("s_waitcnt lgkmcnt(0)")
    make_tag(a)
    a("s_barrier")
    a("s_waitcnt vmcnt(2)")
    for i in range(36):
        p = 116 + (i & 3)
        a("v_dot2_f32_bf16 v%d, v%d, v%d, %s" % (p, 8 + i, 44 + i, "0" if i < 4 else "v%d" % p))
    a("s_nop 1")
    a("v_pk_add_f32 v[116:117], v[116:117], v[118:119]")
    a("v_add_f32 v5, v116, v117")
    sum8(a, (5,))
    bf16_round(a, 5, 5)
    a("v_ashrrev_i32 v7, 31, v5")
    a("v_or_b32 v7, 0x80000000, v7")
    a("v_xor_b32 v7, v7, v5")
    a("v_and_b32 v7, 0xffff0000, v7")
    a("v_sub_u32 v6, 0x7ff, v1")
    a("v_or_b32 v7, v7, v6")
    a("v_mov_b32 v5, 1")
    a("s_mov_b32 s54, 0x01010101")
    a("s_mov_b32 exec_lo, s54")
    a("s_mov_b32 exec_hi, s54")
    a("ds_max_u32 v%d, v7 offset:%d" % (vC, C_KMAX))
    a("s_mov_b64 exec, 1")
    a("ds_add_rtn_u32 v5, v%d, v5 offset:%d" % (vC, C_KCNT))
    a("ds_read_b32 v7, v%d offset:%d" % (vC, C_KMAX))
    a("s_lshl_b32 s53, s36, 3")
    a("s_add_u32 s53, s53, %d" % L.WS_KEYF)
    a("v_mov_b32 v4, s53")
    a("v_mov_b32 v6, s%d" % TAG)
    a("s_waitcnt lgkmcnt(0)")
    a("v_cmp_eq_u32 vcc, 3, v5")
    a("s_and_b64 exec, exec, vcc")
    a("s_cbranch_execz L_sp_nopub")
    a("global_store_dwordx2 v4, v[6:7], s[8:9] sc1")
    a.label("L_sp_nopub")
    a("s_mov_b64 exec, -1")
    stamp(a, 1)
    a("s_mov_b32 s55, 0x3f803f80")
    for i in range(36):
        x, w, p = 8 + i, 80 + i, 116 + (i & 3)
        t = 44 + 4 * (i & 3)
        a("v_lshlrev_b32 v%d, 16, v%d" % (t, x))
        a("v_and_b32 v%d, 0xffff0000, v%d" % (t + 1, x))
        a("v_lshlrev_b32 v%d, 16, v%d" % (t + 2, w))
        a("v_and_b32 v%d, 0xffff0000, v%d" % (t + 3, w))
        a("v_pk_mul_f32 %s, %s, %s" % (vr(t, 2), vr(t, 2), vr(t + 2, 2)))
        a("v_cvt_pk_bf16_f32 v%d, v%d, v%d" % (t, t, t + 1))
        a("v_dot2_f32_bf16 v%d, v%d, s55, %s" % (p, t, "0" if i < 4 else "v%d" % p))
    a("s_nop 1")
    a("v_pk_add_f32 v[116:117], v[116:117], v[118:119]")
    a("v_add_f32 v6, v116, v117")
    sum8(a, (6,))
    bf16_round(a, 6, 6)
    sigmoid(a, 6, 6)
    bf16_round(a, 6, 6)
    a("v_lshlrev_b32 v1, 2, v1")
    a("v_add_u32 v1, %d, v1" % L.WS_G)
    a("s_mov_b32 exec_lo, s54")
    a("s_mov_b32 exec_hi, s54")
    a("global_store_dword v1, v6, s[8:9] sc1")
    a("s_mov_b64 exec, -1")
    a("s_waitcnt vmcnt(0)")
    lds_inc(a, vC, 5, C_GD)
    if OPT["dtouch"]:
        srd(a, 16, 14, 4608 * 1152)
        a("s_mul_i32 s52, s34, %d" % (162 * 128))
        a("v_lshlrev_b32 v7, 7, v0")
        for k in range(3):
            a("buffer_load_dword v124, v7, s[16:19], s52 offen")
            a("s_add_u32 s52, s52, %d" % (54 * 128))
    a("s_mov_b32 s63, 0")
    stamp(a, 2)
    a("s_branch L_att")

    a.label("L_sp_hi")
    a("s_cmp_eq_u32 s3, 7")
    a("s_cbranch_scc0 L_sp_hi1")
    code_touch(a)
    a.label("L_sp_hi1")
    a("v_mov_b32 v%d, %d" % (vC, CTL))
    a("s_waitcnt lgkmcnt(0)")
    load_tag(a)
    a("s_mov_b32 s63, 0")
    a("s_waitcnt lgkmcnt(0)")
    make_tag(a)
    a("s_barrier")
    a("s_cmp_eq_u32 s3, 4")
    a("s_cbranch_scc1 L_sp_w4")
    a("s_cmp_eq_u32 s3, 5")
    a("s_cbranch_scc0 L_att")
    a("s_lshl_b32 s56, s36, 7")
    a("s_add_u32 s56, s56, %d" % (L.WS_FLAG + F_PA * 128))
    a("v_mov_b32 v9, s56")
    lds_spin(a, "L_sp_x5", vC, C_XS, 10, (1, 4), 4)
    a("ds_read_b64 v[14:15], v%d offset:%d" % (vC, C_IDX))
    a("v_mov_b32 v12, s%d" % TAG)
    a("s_waitcnt lgkmcnt(0)")
    a("v_mov_b32 v13, v14")
    a("v_mov_b32 v14, v15")
    a("s_mov_b64 exec, 1")
    a("global_store_dwordx3 v9, v[12:14], s[8:9] sc1")
    a("s_mov_b64 exec, -1")
    a("s_branch L_att")
    a.label("L_sp_w4")
    for k in range(4):
        a("v_mov_b32 v%d, 0" % (12 + k))
    a("s_cmp_lt_u32 s36, 36")
    a("s_cbranch_scc0 L_sp_nz")
    a("s_lshl_b32 s51, s36, 10")
    a("s_add_u32 s51, s51, %d" % L.WS_YP)
    a("v_lshlrev_b32 v4, 4, v0")
    a("v_add_u32 v4, s51, v4")
    a("global_store_dwordx4 v4, v[12:15], s[8:9] sc1")
    a("s_cmp_eq_u32 s36, 0")
    a("s_cbranch_scc0 L_sp_nz")
    a("v_lshlrev_b32 v4, 7, v0")
    a("v_add_u32 v4, %d, v4" % (L.WS_FLAG + F_Y * 128))
    a("global_store_dword v4, v12, s[8:9] sc1")
    a.label("L_sp_nz")
    a("v_lshlrev_b32 v8, 3, v0")
    a("v_add_u32 v8, %d, v8" % L.WS_KEYF)
    srd(a, 24, 4, 2048 * 1152)
    lds_spin(a, "L_sp_own", vC, C_KCNT, 10, (4,), 2)
    a("s_sleep %d" % OPT["slp0"])
    flag_poll(a, "L_sp_kp", 8, 10, "s%d" % TAG, 64, OPT["slp"], 2)
    a("v_lshlrev_b32 v8, 4, v0")
    stamp(a, 1)
    wave_umax(a, 11, 53)
    a("s_and_b32 s54, s53, 0x7ff")
    a("s_sub_u32 s54, 2047, s54")
    a("s_mul_i32 s55, s54, 1152")
    a("s_mov_b32 m0, %d" % XS)
    a("s_add_u32 s56, s55, 1024")
    a("buffer_load_dwordx4 v8, s[24:27], s55 offen lds")
    a("s_mov_b32 m0, %d" % (XS + 1024))
    a("s_mov_b64 exec, 0xff")
    a("buffer_load_dwordx4 v8, s[24:27], s56 offen lds")
    a("s_mov_b64 exec, -1")
    a("s_and_b32 s55, s53, 0xffff0000")
    a("s_xor_b32 s56, s55, 0x80000000")
    a("s_xor_b32 s57, s55, 0xffff0000")
    a("s_bitcmp1_b32 s55, 31")
    a("s_cselect_b32 s55, s56, s57")
    a("v_mov_b32 v12, s55")
    sigmoid(a, 13, 12)
    bf16_round(a, 13, 13)
    a("v_mov_b32 v12, s54")
    a("ds_write_b64 v%d, v[12:13] offset:%d" % (vC, C_IDX))
    a("v_mov_b32 v12, 1")
    a("s_waitcnt vmcnt(0)")
    a("ds_write_b32 v%d, v12 offset:%d" % (vC, C_XS))
    stamp(a, 2)
    a("s_branch L_att")

    a.c("---- gate / up projections of the routed token")
    a.label("L_sp_ffn")
    a("s_load_dwordx4 s[40:43], s[0:1], 40")
    a("v_mov_b32 v3, %d" % CTL)
    for k in range(4):
        a("v_mov_b32 v%d, 0" % (4 + k))
    a("v_lshlrev_b32 v1, 4, v0")
    a("v_add_u32 v2, v1, v3")
    a("s_mov_b64 exec, 0xff")
    a("ds_write_b128 v2, v[4:7]")
    a("s_mov_b64 exec, -1")
    a("v_lshlrev_b32 v2, 2, v0")
    a("v_add_u32 v2, %d, v2" % (XS + 1152))
    a("ds_write_b32 v2, v4")
    a("s_sub_u32 s59, s3, 8")
    a("s_mul_i32 s37, s36, 57")
    a("s_lshr_b32 s37, s37, 9")
    a("s_mul_i32 s38, s37, 9")
    a("s_sub_u32 s38, s36, s38")
    a("s_mul_i32 s49, s37, 84")
    a("s_mul_i32 s39, s49, 9216")
    a("s_lshl_b32 s48, s38, 10")
    a("s_add_u32 s39, s39, s48")
    a("s_sub_u32 s48, %d, s39" % (576 * 9216))
    a("s_min_i32 s48, s48, %d" % (83 * 9216 + 1024))
    a("s_max_i32 s48, s48, 0")
    a("v_lshrrev_b32 v160, 5, v0")
    a("v_mul_u32_u24 v160, 9216, v160")
    a("v_and_b32 v161, 31, v0")
    a("v_lshl_add_u32 v160, v161, 4, v160")
    a("s_mul_i32 s57, s59, 20480")
    a("s_add_u32 s57, s57, %d" % WO)
    a("s_mul_i32 s58, s59, %d" % (2 * 9216))
    a("s_waitcnt lgkmcnt(0)")
    load_tag(a)
    srd_off(a, 16, 40, "s39", "s48")
    srd_off(a, 20, 42, "s39", "s48")
    a("s_waitcnt lgkmcnt(0)")
    make_tag(a)
    a("s_barrier")
    for i in range(5):
        a("s_add_u32 s55, s58, %d" % (8 * (6 + i) * 9216))
        a("s_add_u32 s56, s55, 512")
        for k in range(4):
            a("s_add_u32 m0, s57, %d" % ((4 * i + k) * 1024))
            a("buffer_load_dwordx4 v160, s[%d:%d], s%d offen nt lds" % (16 + 4 * (k >> 1), 19 + 4 * (k >> 1), 55 + (k & 1)))
            if OPT["thr"] and 4 * i + k >= OPT["thr"] - 1:
                a("s_waitcnt vmcnt(%d)" % (OPT["thr"] - 1))
    for i in range(6):
        a("s_add_u32 s55, s58, %d" % (8 * i * 9216))
        for k in range(4):
            a("buffer_load_dwordx4 %s, v160, s[%d:%d], s55 offen offset:%d nt" % (
                vr(GW + 16 * i + 4 * k, 4), 16 + 4 * (k >> 1), 19 + 4 * (k >> 1), 512 * (k & 1)))
            if OPT["thr"]:
                a("s_waitcnt vmcnt(%d)" % (OPT["thr"] - 1))
    a("s_lshl_b32 s55, s59, 1")
    a("s_add_u32 s55, s55, s49")
    a("v_lshrrev_b32 v51, 5, v0")
    a("v_add_u32 v51, s55, v51")
    a("v_lshlrev_b32 v51, 1, v51")
    a("v_add_u32 v51, %d, v51" % XS)
    a("v_and_b32 v2, 1, v0")
    a("v_lshlrev_b32 v2, 4, v2")
    a("v_lshrrev_b32 v4, 1, v0")
    a("v_xor_b32 v4, v4, v0")
    a("v_and_b32 v4, 8, v4")
    a("v_bfe_u32 v5, v0, 1, 2")
    a("v_or_b32 v4, v4, v5")
    for q in range(4):
        a("v_cmp_eq_u32 s[%d:%d], %d, v4" % (40 + 2 * q, 41 + 2 * q, q))
    a("v_bfe_u32 v4, v0, 3, 1")
    a("v_lshlrev_b32 v4, 9, v4")
    a("v_lshrrev_b32 v5, 4, v0")
    a("v_lshl_add_u32 v4, v5, 7, v4")
    a("v_and_b32 v5, 7, v0")
    a("v_lshl_add_u32 v4, v5, 2, v4")
    a("v_add_u32 v6, s57, v4")
    a("v_add_u32 v52, s57, v1")
    a("s_lshl_b32 s55, s59, 9")
    a("v_lshlrev_b32 v8, 3, v0")
    a("v_add_u32 v8, s55, v8")
    a("s_mul_i32 s52, s37, %d" % (4608 * 16))
    a("s_lshl_b32 s55, s38, 13")
    a("s_add_u32 s52, s52, s55")
    a("s_add_u32 s52, s52, %d" % L.WS_PA)
    a("v_lshlrev_b32 v9, 2, v8")
    a("v_add_u32 v9, s52, v9")
    a("v_add_u32 v8, %d, v8" % WO)
    stamp(a, 3)
    lds_spin(a, "L_sp_xs", 3, C_XS, 10, (1,), 2)
    a("s_setprio %d" % OPT["pr2"])
    stamp(a, 7)
    for i in range(11):
        a("ds_read_u16 v%d, v51 offset:%d" % (53 + i, 16 * i))
    a("s_waitcnt vmcnt(24)")
    for k in range(4):
        a("ds_read_b128 %s, v52 offset:%d" % (vr(32 + 4 * k, 4), 1024 * k))
    a("s_waitcnt lgkmcnt(4)")
    for i in range(11):
        a("v_lshlrev_b32 v%d, v2, v%d" % (53 + i, 53 + i))
    first = True
    for i in range(5):
        selector(a, 12, 53 + 6 + i, 40)
        for k in range(4):
            d = vr(16 + 4 * k, 4)
            a("s_waitcnt lgkmcnt(%d)" % (3 if i < 4 else 3 - k))
            a("v_mfma_f32_16x16x32_bf16 %s, %s, v[12:15], %s" % (d, vr(32 + 4 * k, 4), "0" if first else d))
            if i < 4:
                a("ds_read_b128 %s, v52 offset:%d" % (vr(32 + 4 * k, 4), 1024 * (4 * (i + 1) + k)))
        first = False
    stamp(a, 12)
    for i in range(6):
        selector(a, 12, 53 + i, 40)
        a("s_waitcnt vmcnt(%d)" % (4 * (5 - i)))
        for k in range(4):
            d = vr(16 + 4 * k, 4)
            a("v_mfma_f32_16x16x32_bf16 %s, %s, v[12:15], %s" % (d, vr(GW + 16 * i + 4 * k, 4), d))
    stamp(a, 11)
    for k in range(4):
        for r in range(4):
            a("ds_write_b32 v6, v%d offset:%d" % (16 + 4 * k + r, 1024 * k + 32 * r))
    lds_inc(a, 3, 10, C_RED)
    lds_spin(a, "L_sp_rd", 3, C_RED, 10, (4,), 0)
    for p in range(4):
        a("ds_read_b64 %s, v8 offset:%d" % (vr(16 + 4 * p, 2), 20480 * p))
        a("ds_read_b64 %s, v8 offset:%d" % (vr(18 + 4 * p, 2), 20480 * p + 2048))
    a("v_mov_b32 v34, s%d" % TAG)
    a("v_mov_b32 v38, s%d" % TAG)
    a("s_waitcnt lgkmcnt(0)")
    lds_inc(a, 3, 10, C_RED2)
    for p in (2, 1):
        for h in range(2 * p):
            a("v_pk_add_f32 %s, %s, %s" % (vr(16 + 2 * h, 2), vr(16 + 2 * h, 2), vr(16 + 4 * p + 2 * h, 2)))
    a("v_mov_b32 v32, v16")
    a("v_mov_b32 v33, v18")
    a("v_mov_b32 v36, v17")
    a("v_mov_b32 v37, v19")
    a("s_cmp_eq_u32 s36, 63")
    a("s_cbranch_scc1 L_sp_nost")
    a("global_store_dwordx4 v9, v[32:35], s[8:9] sc1")
    a("global_store_dwordx4 v9, v[36:39], s[8:9] offset:16 sc1")
    a.label("L_sp_nost")
    stamp(a, 4)
    lds_spin(a, "L_sp_r2", 3, C_RED2, 10, (4,), 0)
    a("s_branch L_help2")


def attn_loop(a):
    for i in range(9):
        if OPT["bal"] and i == 0:
            a("s_cmp_lt_u32 s3, 4")
            a("s_cbranch_scc1 L_bal0")
            a("s_setprio 1")
            a.label("L_bal0")
        if OPT["bal"] and i == OPT["bal"]:
            a("s_setprio 0")
        a.label("L_it%d" % i)
        S, P = SS[i & 1], PP[i & 1]
        ex = ["v_exp_f32 v%d, v%d" % (S + r, S + r) for r in range(16)]
        cv = ["v_cvt_pk_bf16_f32 v%d, v%d, v%d" % (P + q, S + 2 * q, S + 2 * q + 1) for q in range(8)]
        if i == 0:
            mk = ["v_bfi_b32 v%d, v%d, 0, v%d" % (P + q, MSK + q, P + q) for q in range(8)]
        elif i == 8:
            mk = ["v_and_b32 v%d, v%d, v%d" % (P + q, MSK + q, P + q) for q in range(8)]
        else:
            mk = []
        m1 = qk(i + 1) if i < 8 else []
        m2 = pv(i - 1, i == 1) if i > 0 else []
        a("s_waitcnt lgkmcnt(%d)" % (4 if 0 < i < 8 else 0))
        seq = m1[:1] + ex[0:4] + m1[1:] + (k_reads(i + 2) if i + 2 <= 8 else []) + ex[4:8] + cv[0:2] + m2[:1] + \
            ex[8:12] + cv[2:4] + m2[1:]
        if i + 1 <= 8:
            seq += ["v_add_u32 v%d, v%d, v%d" % (vV, vV, vStep)] + v_reads(i + 1)
        seq += ex[12:16] + cv[4:8] + mk
        for x in seq:
            a(x)
    lds_spin(a, "L_pz", vC, C_C, T, (1,), 0)
    for x in pv(8, False):
        a(x)


def attention_phase(a):
    a.c("---- attention: set-up, wait for the producers, K/V/Q into LDS")
    a.label("L_att")
    decode2(a)
    a("s_mul_i32 s33, s31, %d" % L.PAIR_BYTES)
    a("s_mul_i32 s34, s32, 9216")
    a("s_add_u32 s33, s33, s34")
    a("v_mov_b32 v%d, %d" % (vC, CTL))
    KS, VS = 16 * L.PAIR_BYTES - 18432, 32 * L.PAIR_BYTES - 18432
    grp = [(QB, 0), (KB, KS), (VB, VS), (KB + 9216, KS + 9216), (VB + 9216, VS + 9216), (KB + 18432, KS + 18432), (VB + 18432, VS + 18432)]
    a("s_lshl_b32 s34, s3, 10")
    for j in range(8):
        lo, hi = (8 * j) // 9, min(8 * j + 7, 62) // 9
        l0, g0 = grp[lo][0] + (8 * j - 9 * lo) * 1024, grp[lo][1] + (8 * j - 9 * lo) * 1024
        l1, g1 = grp[hi][0] + (8 * j - 9 * hi) * 1024, grp[hi][1] + (8 * j - 9 * hi) * 1024
        if j == 7:
            a("s_min_u32 s34, s34, %d" % (6 * 1024))
        if lo == hi:
            a("s_add_u32 s%d, s34, %d" % (16 + j, l0))
            a("s_add_u32 s%d, s33, %d" % (44 + j, g0 - l0 & 0xffffffff))
        else:
            a("s_mov_b32 s35, %d" % l0)
            a("s_mov_b32 s36, %d" % (g0 - l0 & 0xffffffff))
            a("s_cmp_ge_u32 s3, %d" % (9 * hi - 8 * j))
            a("s_cselect_b32 s35, %d, s35" % (l1 & 0xffffffff))
            a("s_cselect_b32 s36, %d, s36" % (g1 - l1 & 0xffffffff))
            a("s_add_u32 s%d, s34, s35" % (16 + j))
            a("s_add_u32 s%d, s33, s36" % (44 + j))
        a("s_add_u32 s%d, s%d, s%d" % (44 + j, 44 + j, 16 + j))
    a("v_mov_b32 v10, s63")
    a("v_mov_b32 v11, s%d" % TAG)
    a("s_waitcnt vmcnt(0)")
    lds_inc(a, vC, 9, C_1, rtn=True)
    a("s_cmp_lg_u32 s63, 0")
    a("s_cselect_b32 s35, 7, 99")
    a("s_waitcnt lgkmcnt(0)")
    a("v_readfirstlane_b32 s36, v9")
    a("s_cmp_eq_u32 s36, s35")
    a("s_cbranch_scc0 L_nofl1")
    a("s_mov_b64 exec, 1")
    a("global_store_dword v10, v11, s[8:9] sc1")
    a("s_mov_b64 exec, -1")
    a.label("L_nofl1")
    stamp(a, 4)
    a("s_and_b32 s42, s3, 1")
    a("s_lshr_b32 s43, s3, 1")
    a("s_mul_i32 s35, s43, 2304")
    a("s_mul_i32 s36, s42, 40")
    a("v_and_b32 v%d, 31, v0" % T)
    a("v_lshrrev_b32 v%d, 5, v0" % (T + 1))
    a("v_mul_u32_u24 v%d, 72, v%d" % (vKt, T))
    a("v_add_u32 v%d, s35, v%d" % (vKt, vKt))
    a("v_lshl_add_u32 v%d, v%d, 4, v%d" % (vK, T + 1, vKt))
    a("v_add_u32 v%d, s36, v%d" % (vK, vK))
    a("v_add_u32 v%d, 32, v%d" % (vKt, vKt))
    a("v_bfe_u32 v%d, v0, 2, 2" % (T + 2))
    a("v_lshl_add_u32 v%d, v%d, 2, v%d" % (T + 2, T + 1, T + 2))
    a("v_mul_u32_u24 v%d, 72, v%d" % (T + 2, T + 2))
    a("s_add_u32 s37, s35, %d" % VB)
    a("v_add_u32 v%d, s37, v%d" % (T + 2, T + 2))
    a("v_and_b32 v%d, 3, v0" % (T + 3))
    a("v_lshlrev_b32 v%d, 3, v%d" % (T + 4, T + 3))
    a("v_add_u32 v%d, s36, v%d" % (T + 4, T + 4))
    a("v_and_b32 v%d, 16, v0" % (T + 5))
    a("v_cmp_eq_u32 s[38:39], 0, v%d" % (T + 5))
    a("v_cndmask_b32 v%d, 32, v%d, s[38:39]" % (T + 4, T + 4))
    a("v_add_u32 v%d, v%d, v%d" % (vV, T + 2, T + 4))
    a("v_and_b32 v%d, 19, v0" % (T + 5))
    a("v_cmp_lt_u32 s[38:39], 16, v%d" % (T + 5))
    a("v_mov_b32 v%d, %d" % (T + 6, ONES))
    a("v_cndmask_b32 v%d, v%d, v%d, s[38:39]" % (vV, vV, T + 6))
    a("v_mov_b32 v%d, 2304" % (T + 6))
    a("v_cndmask_b32 v%d, v%d, 0, s[38:39]" % (vStep, T + 6))
    a("v_lshlrev_b32 v%d, 2, v%d" % (T + 2, T + 1))
    a("v_sub_u32 v%d, v%d, v%d" % (T + 2, T, T + 2))
    a("v_mov_b32 v%d, 0xffff" % (T + 3))
    for q in range(8):
        kl = 8 * (q >> 1) + 2 * (q & 1)
        a("v_cmp_le_i32 s[38:39], %d, v%d" % (kl, T + 2))
        a("v_cmp_le_i32 s[40:41], %d, v%d" % (kl + 1, T + 2))
        a("v_cndmask_b32 v%d, 0, v%d, s[38:39]" % (MSK + q, T + 3))
        a("v_cndmask_b32 v%d, v%d, -1, s[40:41]" % (MSK + q, MSK + q))
    a("s_lshl_b32 s41, s32, 2")
    a("s_add_u32 s41, s41, s43")
    a("s_sub_i32 s41, 8, s41")
    a("s_lshl_b32 s35, s32, 3")
    a("s_lshl_b32 s36, s43, 1")
    a("s_add_u32 s35, s35, s36")
    a("s_mul_i32 s35, s35, 18432")
    a("s_lshl_b32 s58, s31, 10")
    a("s_lshl_b32 s36, s42, 9")
    a("s_add_u32 s58, s58, s36")
    a("s_add_u32 s58, s58, s35")
    a("s_lshr_b32 s59, s31, 1")
    a("s_lshl_b32 s59, s59, 8")
    a("s_and_b32 s36, s31, 1")
    a("s_lshl_b32 s36, s36, 3")
    a("s_add_u32 s59, s59, s36")
    a("s_lshl_b32 s36, s42, 2")
    a("s_add_u32 s59, s59, s36")
    a("s_add_u32 s59, s59, s35")
    a("s_add_u32 s59, s59, 16384")
    a("v_bfe_u32 v152, v0, 4, 1")
    a("v_mul_u32_u24 v152, 18432, v152")
    a("v_and_b32 v153, 15, v0")
    a("v_lshl_add_u32 v152, v153, 4, v152")
    a("v_lshrrev_b32 v153, 5, v0")
    a("v_lshl_add_u32 v153, v153, 8, v152")
    a("v_cmp_gt_u32 vcc, 32, v0")
    a("s_cmp_eq_u32 s42, 0")
    a("s_cselect_b64 s[54:55], vcc, 0")
    a("s_cselect_b64 s[56:57], 0, vcc")
    a("v_and_b32 v%d, 3, v0" % (T + 2))
    a("v_mul_u32_u24 v%d, 576, v%d" % (T + 2, T + 2))
    a("v_mov_b32 v%d, 0x3f803f80" % (T + 4))
    a("v_mov_b32 v%d, v%d" % (T + 5, T + 4))
    a("v_lshlrev_b32 v%d, 4, v0" % (T + 3))
    srd_off(a, 36, 8, L.WS_QKV, L.QKV_BYTES)
    srd_off(a, 24, 8, L.WS_O, 128 * 18432)
    a("s_add_u32 s40, s3, 2")
    a("s_cmp_lt_u32 s3, 4")
    a("s_cselect_b32 s40, s3, s40")
    out_setup(a, 40)
    a("s_lshr_b32 s35, s2, 6")
    a("s_lshl_b32 s35, s35, 4")
    a("s_add_u32 s35, s35, s3")
    a("s_cmp_eq_u32 s35, %d" % (3 * 16 + 6))
    a("s_cbranch_scc0 L_nq2")
    lds_spin(a, "L_sp_x6", vC, C_XS, T + 8, (1,), 8)
    qpoll(a, vC, "L_qp2", False, T + 8)
    a.label("L_nq2")
    lds_spin(a, "L_go1", vC, C_1, T, (8, 1), OPT["g1s"])
    stamp(a, 5)
    for j in range(8):
        a("s_mov_b32 m0, s%d" % (16 + j))
        a("s_nop 0")
        a("buffer_load_dwordx4 v%d, s[36:39], s%d offen %s lds" % (T + 3, 44 + j, OPT["kvl"]))
    a("ds_write_b64 v%d, %s offset:%d" % (T + 2, vr(T + 4, 2), ONES))
    a("s_cmp_lt_u32 s32, 2")
    a("s_cbranch_scc1 L_late")
    landed(a, 1, 0)
    stage_spin(a, "L_sA", 0)
    stamp(a, 6)
    for x in q_reads() + k_reads(0) + k_reads(1) + v_reads(0):
        a(x)
    a("s_waitcnt lgkmcnt(7)")
    a("v_cndmask_b32 v%d, 0, v%d, s[54:55]" % (QT, QT))
    a("v_cndmask_b32 v%d, 0, v%d, s[56:57]" % (QT + 1, QT + 1))
    for x in qk(0):
        a(x)
    lds_inc(a, vC, T, C_B)
    x_loads(a)
    attn_loop(a)
    a.c("---- softmax range check; true-max path if it fails")
    a.label("L_check")
    stamp(a, 7)
    a("s_mov_b32 s46, %s" % f32(2.0 ** 60))
    a("s_mov_b32 s47, %s" % f32(2.0 ** -60))
    a("s_mov_b32 s48, 0x7f800000")
    a("s_nop 7")
    a("s_nop 0")
    a("v_rcp_f32 v%d, v%d" % (T, OO + 12))
    a("v_cmp_gt_f32 s[50:51], s46, v%d" % (OO + 12))
    a("v_cmp_lt_f32 vcc, s47, v%d" % (OO + 12))
    for k in range(6):
        a("v_add_f32 v%d, abs(v%d), abs(v%d)" % (T + 2 + k, OO + 2 * k, OO + 2 * k + 1))
    a("s_and_b64 s[50:51], s[50:51], vcc")
    a("v_pk_add_f32 %s, %s, %s" % (vr(T + 2, 2), vr(T + 2, 2), vr(T + 4, 2)))
    a("v_pk_add_f32 %s, %s, %s" % (vr(T + 2, 2), vr(T + 2, 2), vr(T + 6, 2)))
    a("v_add_f32 v%d, v%d, v%d" % (T + 2, T + 2, T + 3))
    a("v_cmp_gt_f32 vcc, s48, v%d" % (T + 2))
    a("s_and_b64 s[50:51], s[50:51], vcc")
    a("s_cmp_eq_u64 s[50:51], -1")
    a("s_cbranch_scc0 L_slow")
    a.label("L_fin")
    a("s_cmp_eq_u32 s42, 0")
    a("s_cbranch_scc1 L_fa")
    a("v_mov_b32 v%d, v%d" % (OO + 8, OO + 10))
    a("v_mov_b32 v%d, v%d" % (OO + 9, OO + 11))
    a.label("L_fa")
    for k in range(0, 10, 2):
        a("v_pk_mul_f32 %s, %s, %s op_sel_hi:[1,0]" % (vr(OO + k, 2), vr(OO + k, 2), vr(T, 2)))
    for q in range(5):
        a("v_cvt_pk_bf16_f32 v%d, v%d, v%d" % (T + 4 + q, OO + 2 * q, OO + 2 * q + 1))
    a("buffer_store_dwordx4 %s, v153, s[24:27], s58 offen sc1" % vr(T + 4, 4))
    a("s_mov_b32 exec_hi, 0")
    a("buffer_store_dword v%d, v152, s[24:27], s59 offen sc1" % (T + 8))
    a("s_mov_b32 exec_hi, -1")


def q_reads():
    return ["ds_read_b64 %s, v%d offset:%d" % (vr(QM, 2), vK, QB),
            "ds_read_b64 %s, v%d offset:%d" % (vr(QM + 2, 2), vK, QB + 8),
            "ds_read_b64 %s, v%d offset:%d" % (vr(QT, 2), vKt, QB)]


sKH, sPAIR, sTILE, sGATE, sSLOT, sOB, sXO = 6, 7, 13, 14, 15, 28, 29
A0, vXO, vRW, vCH, vSW, vSR, vL16, vPX, vPF = 156, 142, 140, 141, 143, 144, 162, 160, 161
GB = 154624


def out_setup(a, role):
    a("s_and_b32 s%d, s%d, 1" % (sKH, role))
    a("s_lshr_b32 s%d, s%d, 1" % (sPAIR, role))
    a("s_mul_i32 s%d, s52, 5" % sTILE)
    a("s_and_b32 s33, s%d, 7" % sTILE)
    a("s_sub_u32 s34, 8, s33")
    a("s_cmp_lt_u32 s33, 4")
    a("s_cselect_b32 s34, 0, s34")
    a("s_add_u32 s34, s34, s%d" % sPAIR)
    a("s_sub_u32 s35, s34, 5")
    a("s_cmp_ge_u32 s34, 5")
    a("s_cselect_b32 s34, s35, s34")
    a("s_add_u32 s%d, s%d, s34" % (sTILE, sTILE))
    a("s_lshl_b32 s98, s34, 6")
    a("s_mov_b32 s%d, 0x404" % sGATE)
    a("s_bitcmp1_b32 s%d, 2" % sTILE)
    if not OPT["allg"]:
        a("s_cselect_b32 s%d, s%d, 4" % (sGATE, sGATE))
    a("s_mov_b32 s%d, %d" % (sSLOT, PSLOT[0]))
    for p in range(1, 5):
        a("s_cmp_eq_u32 s%d, %d" % (sPAIR, p))
        a("s_cselect_b32 s%d, %d, s%d" % (sSLOT, PSLOT[p], sSLOT))
    a("s_mul_i32 s%d, s%d, 18432" % (sOB, sTILE))
    a("s_lshl_b32 s33, s53, 7")
    a("s_add_u32 s%d, s%d, s33" % (sXO, sOB))
    a("s_lshl_b32 s33, s%d, 6" % sKH)
    a("s_add_u32 s%d, s%d, s33" % (sXO, sXO))
    a("s_mul_i32 s33, s%d, 9216" % sKH)
    a("s_add_u32 s%d, s%d, s33" % (sOB, sOB))
    a("s_add_u32 s96, s%d, 4096" % sOB)
    a("s_add_u32 s97, s%d, 8192" % sOB)
    a("v_lshrrev_b32 v%d, 2, v0" % vRW)
    a("v_and_b32 v%d, 3, v0" % vCH)
    a("v_mul_u32_u24 v%d, 1152, v%d" % (vXO, vRW))
    a("v_lshl_add_u32 v%d, v%d, 4, v%d" % (vXO, vCH, vXO))
    a("v_lshrrev_b32 v146, 2, v0")
    a("v_bfe_u32 v147, v0, 3, 2")
    a("v_lshlrev_b32 v147, 1, v147")
    a("v_bfe_u32 v148, v0, 1, 1")
    a("v_xor_b32 v147, v147, v148")
    a("v_and_b32 v148, 1, v0")
    a("v_lshlrev_b32 v148, 3, v148")
    a("v_lshl_add_u32 v148, v146, 7, v148")
    a("v_lshl_add_u32 v148, v147, 4, v148")
    a("s_mul_i32 s33, s%d, %d" % (sKH, 9 * 4096))
    a("s_add_u32 s33, s33, %d" % WO)
    a("s_lshl_b32 s34, s%d, 6" % sKH)
    a("v_xor_b32 v148, s34, v148")
    for t in range(4):
        a("v_xor_b32 v%d, %d, v148" % (A0 + t, 32 * t))
        a("v_add_u32 v%d, s33, v%d" % (A0 + t, A0 + t))
    a("v_lshlrev_b32 v%d, 4, v0" % vL16)
    a("s_lshl_b32 s33, s%d, 11" % sKH)
    a("s_add_u32 s%d, s%d, s33" % (sSLOT, sSLOT))
    a("v_add_u32 v%d, s%d, v%d" % (vPX, sSLOT, vL16))
    a("s_lshl_b32 s33, s33, 1")
    a("s_sub_u32 s33, 2048, s33")
    a("v_add_u32 v164, s33, v%d" % vPX)
    a("s_lshl_b32 s33, s%d, 1" % sPAIR)
    a("s_add_u32 s33, s33, s%d" % sKH)
    a("s_lshl_b32 s33, s33, 2")
    a("s_add_u32 s33, s33, %d" % CTL)
    a("v_mov_b32 v%d, s33" % vPF)
    a("v_xor_b32 v165, 4, v%d" % vPF)
    a("v_and_b32 v%d, 15, v0" % vSW)
    a("v_mul_u32_u24 v%d, 80, v%d" % (vSW, vSW))
    a("v_lshrrev_b32 v146, 4, v0")
    a("v_lshlrev_b32 v146, 3, v146")
    a("v_add3_u32 v%d, v%d, v146, s%d" % (vSW, vSW, sSLOT))
    a("v_mul_u32_u24 v%d, 80, v%d" % (vSR, vRW))
    a("v_lshl_add_u32 v%d, v%d, 4, v%d" % (vSR, vCH, vSR))
    a("v_add_u32 v%d, s%d, v%d" % (vSR, sSLOT, vSR))
    a("s_add_u32 s98, s98, %d" % GB)
    a("v_lshl_add_u32 v145, v%d, 2, s98" % vRW)
    a("s_cmp_lt_u32 s3, 4")
    a("s_cselect_b32 s33, 1, 0x100")
    a("v_mov_b32 v163, s33")


def x_loads(a):
    srd(a, 20, 4, 2048 * 1152)
    a("buffer_load_dwordx4 %s, v%d, s[20:23], s%d offen" % (vr(XR, 4), vXO, sXO))


def out_phase(a):
    WFR, OF, ACC, PX = (20, 36, 100), 64, (52, 56, 60, 116), (146, 120)
    a("s_cmp_ge_u32 s52, 26")
    a("s_cbranch_scc1 L_end")
    if not OPT["gissue"]:
        a("s_waitcnt vmcnt(0)")
    stamp(a, 8)
    a("s_mov_b64 exec, 1")
    a("ds_add_u32 v%d, v163 offset:%d" % (vC, C_O))
    a("s_mov_b64 exec, -1")
    a.c("---- output projection and gated mix")
    a.label("L_out")

    def omx():
        for j in range(1):
            for q in range(4):
                xv = XR + 4 * j + q
                d = PX[j] + 2 * q
                a("v_lshlrev_b32 v%d, 16, v%d" % (d, xv))
                a("v_and_b32 v%d, 0xffff0000, v%d" % (d + 1, xv))
                a("v_pk_mul_f32 %s, %s, %s op_sel:[0,1] op_sel_hi:[1,1]" % (vr(d, 2), vr(d, 2), vr(GR + 2 * j, 2)))

    def reads(sl):
        st = WFR[sl % 3]
        return ["ds_read_b64_tr_b16 %s, v%d offset:%d" % (vr(st + 4 * t + 2 * sec, 2), A0 + t, (32 * sl + 16 * sec) * 128)
                for t in range(4) for sec in range(2)]

    lds_spin(a, "L_wo", vC, C_WO, 10, (2,), 0)
    for x in reads(0) + reads(1):
        a(x)
    a("s_mov_b32 s60, 0x200000")
    a.label("L_go2")
    a("ds_read_b64 v[10:11], v%d offset:%d" % (vC, C_O))
    a("s_waitcnt lgkmcnt(0)")
    a("v_readfirstlane_b32 s61, v10")
    a("v_readfirstlane_b32 s62, v11")
    a("s_and_b32 s61, s61, s%d" % sGATE)
    a("s_cmp_eq_u32 s61, s%d" % sGATE)
    a("s_cselect_b32 s62, s62, 0")
    a("s_cmp_eq_u32 s62, 1")
    a("s_cbranch_scc1 L_go2_d")
    a("s_sub_u32 s60, s60, 1")
    a("s_cbranch_scc0 L_go2")
    a.label("L_go2_d")
    if OPT["gissue"] == 2:
        a("s_cmp_eq_u32 s60, 0x200000")
        a("s_cbranch_scc1 L_go2_e")
        a("s_sleep %d" % OPT["cdel"])
        a.label("L_go2_e")
        a("s_waitcnt vmcnt(0)")
    elif OPT["cdel"]:
        a("s_sleep %d" % OPT["cdel"])
    stamp(a, 9)
    LAO = OPT["lao"]

    def oload(s):
        a("buffer_load_dwordx4 %s, v%d, s[24:27], s%d offen offset:%d sc1" % (vr(OF + 4 * s, 4), vL16, (sOB, 96, 97)[s // 4], 1024 * (s % 4)))

    def ocheck(sl):
        b = OF + 4 * sl
        if sl < 7:
            a("v_cmp_eq_u32 vcc, -1, v%d" % b)
        else:
            a("v_max3_u32 v10, v%d, v%d, v%d" % (b, b + 1, b + 2))
            a("v_max_u32 v10, v10, v%d" % (b + 3))
            a("v_cmp_eq_u32 vcc, -1, v10")
        a("s_nop 1")

    def oretry():
        for sl in range(9):
            a.label("L_or%d" % sl)
            a("s_sub_u32 s60, s60, 1")
            a("s_cbranch_scc1 L_ok%d" % sl)
            a("s_waitcnt vmcnt(0)")
            for s in range(sl, min(sl + LAO, 9)):
                oload(s)
            a("s_waitcnt vmcnt(%d)" % min(LAO - 1, 8 - sl))
            a("s_branch L_oc%d" % sl)

    RETRY.append(oretry)
    a("s_mov_b32 s60, 0x8000")
    for s in range(LAO):
        oload(s)
    a("ds_read_b32 v%d, v145" % GR)
    a("ds_read_b32 v10, v%d offset:%d" % (vC, C_IDX))
    srd(a, 20, 10, 2048 * 1152)
    a("s_waitcnt lgkmcnt(0) vmcnt(%d)" % LAO)
    a("v_readfirstlane_b32 s12, v10")
    a("v_sub_f32 v%d, 1.0, v%d" % (GR + 1, GR))
    bf16_round(a, GR + 1, GR + 1)
    omx()
    for sl in range(9):
        rd = reads(sl + 2) if sl < 7 else []
        a("s_waitcnt vmcnt(%d) lgkmcnt(%d)" % (min(LAO - 1, 8 - sl), 8 if sl < 8 else 0))
        a.label("L_oc%d" % sl)
        ocheck(sl)
        a("s_cbranch_vccnz L_or%d" % sl)
        a.label("L_ok%d" % sl)
        for t in range(4):
            d = vr(ACC[t], 4)
            a("v_mfma_f32_16x16x32_bf16 %s, %s, %s, %s" % (d, vr(WFR[sl % 3] + 4 * t, 4), vr(OF + 4 * sl, 4), "0" if sl == 0 else d))
            if t == 0 and sl + LAO < 9:
                oload(sl + LAO)
            for x in rd[2 * t:2 * t + 2]:
                a(x)
    stamp(a, 10)
    if OPT["stamp"]:
        a("s_sub_u32 s94, 0x8000, s60")
        a("s_mul_i32 s94, s94, 100")
        a("s_add_u32 s94, s94, s66")
        a("s_addc_u32 s95, s67, 0")
    a("v_mov_b32 v10, 1")
    a("ds_write_b128 v164, %s" % vr(ACC[2], 4))
    a("ds_write_b128 v164, %s offset:1024" % vr(ACC[3], 4))
    a("ds_write_b32 v165, v10 offset:%d" % C_PART)
    a("s_lshr_b32 s46, s12, 4")
    a("s_cmp_eq_u32 s46, s%d" % sTILE)
    a("s_cbranch_scc0 L_noy")
    lds_spin(a, "L_yw", vC, C_YRDY, 10, (1,))
    a("s_lshl_b32 s46, s%d, 7" % sKH)
    a("s_add_u32 s46, s46, %d" % YB)
    a("v_lshl_add_u32 v10, v%d, 5, s46" % vCH)
    a("ds_read_b128 v[12:15], v10")
    a("ds_read_b128 v[16:19], v10 offset:16")
    a("s_and_b32 s46, s12, 15")
    a("v_cmp_eq_u32 s[50:51], s46, v%d" % vRW)
    a("s_waitcnt lgkmcnt(0)")
    for q in range(4):
        xv = XR + q
        a("v_lshlrev_b32 v10, 16, v%d" % xv)
        a("v_and_b32 v11, 0xffff0000, v%d" % xv)
        a("v_add_f32 v10, v10, v%d" % (12 + 2 * q))
        a("v_add_f32 v11, v11, v%d" % (13 + 2 * q))
        a("v_cvt_pk_bf16_f32 v10, v10, v11")
        a("v_cndmask_b32 v%d, v%d, v10, s[50:51]" % (xv, xv))
    omx()
    a.label("L_noy")
    lds_spin(a, "L_pw", vPF, C_PART, 10, (1,), 0)
    stamp(a, 11)
    for t in range(2):
        a("ds_read_b128 %s, v%d offset:%d" % (vr(20 + 4 * t, 4), vPX, 1024 * t))
    a("s_waitcnt lgkmcnt(0)")
    for t in range(2):
        b = ACC[t]
        a("v_pk_add_f32 %s, %s, %s" % (vr(b, 2), vr(b, 2), vr(20 + 4 * t, 2)))
        a("v_pk_add_f32 %s, %s, %s" % (vr(b + 2, 2), vr(b + 2, 2), vr(22 + 4 * t, 2)))
        a("v_cvt_pk_bf16_f32 v%d, v%d, v%d" % (40 + 2 * t, b, b + 1))
        a("v_cvt_pk_bf16_f32 v%d, v%d, v%d" % (41 + 2 * t, b + 2, b + 3))
        a("ds_write_b64 v%d, %s offset:%d" % (vSW, vr(40 + 2 * t, 2), 32 * t))
    a("ds_read_b128 v[20:23], v%d" % vSR)
    a("s_waitcnt lgkmcnt(0)")
    for q in range(4):
        d = PX[0] + 2 * q
        a("v_lshlrev_b32 v%d, 16, v%d" % (10 + 2 * q, 20 + q))
        a("v_and_b32 v%d, 0xffff0000, v%d" % (11 + 2 * q, 20 + q))
        a("v_pk_fma_f32 %s, %s, %s, %s op_sel_hi:[1,0,1]" % (vr(d, 2), vr(10 + 2 * q, 2), vr(GR, 2), vr(d, 2)))
    for q in range(4):
        d = PX[0] + 2 * q
        a("v_cvt_pk_bf16_f32 v%d, v%d, v%d" % (32 + q, d, d + 1))
    a("buffer_store_dwordx4 v[32:35], v%d, s[20:23], s%d offen %s" % (vXO, sXO, OPT["ost"]))
    if OPT["stamp"]:
        stamp(a, 12)
        a("s_waitcnt vmcnt(0)")
        stamp(a, 13)
        stamp_end(a, OPT["stw"], 0)
        stamp_end(a, 10, 2)
    a("s_endpgm")


RETRY = []
GLATE = []


def late_and_slow(a):
    RETRY[0]()
    a.c("---- first two query blocks: key tiles before the sequence start are skipped")
    a.label("L_late")
    a("s_mul_i32 s50, s41, 2304")
    a("v_add_u32 v%d, s50, v%d" % (T + 8, vK))
    a("v_add_u32 v%d, s50, v%d" % (T + 9, vKt))
    a("v_mul_u32_u24 v%d, s41, v%d" % (T + 2, vStep))
    a("v_add_u32 v%d, v%d, v%d" % (vV, vV, T + 2))
    for r in list(range(OO, OO + 16)) + list(range(VF[0], VF[0] + 32)):
        a("v_mov_b32 v%d, 0" % r)
    landed(a, 1, 0)
    stage_spin(a, "L_lt", 0)
    for x in q_reads():
        a(x)
    a("s_waitcnt lgkmcnt(0)")
    lds_inc(a, vC, T, C_B)
    x_loads(a)
    a("s_bitcmp1_b32 s41, 0")
    a("s_cbranch_scc1 L_late1")
    for par in range(2):
        if par:
            a.label("L_late1")
        for x in k_reads(par, T + 8, T + 9, 0):
            a(x)
        for x in k_reads(par + 1, T + 8, T + 9, 0):
            a(x.replace("offset:8", "offset:2312").replace("offset:0", "offset:2304"))
        for x in v_reads(par):
            a(x)
        a("s_waitcnt lgkmcnt(7)")
        a("v_cndmask_b32 v%d, 0, v%d, s[54:55]" % (QT, QT))
        a("v_cndmask_b32 v%d, 0, v%d, s[56:57]" % (QT + 1, QT + 1))
        for x in qk(par):
            a(x)
        a("s_nop 7")
        a("s_nop 3")
        for i0 in range(2 - par, 9, 2):
            a("s_cmp_eq_u32 s41, %d" % i0)
            a("s_cbranch_scc1 L_it%d" % i0)
        a("s_branch L_it%d" % (8 - par))

    a.c("---- two passes over the key tiles with the true row maximum")
    a.label("L_slow")
    vKs, vKts, vM, vD0, vNeg = T + 8, T + 9, T + 10, T + 11, T + 12
    a("v_and_b32 v%d, 31, v0" % T)
    a("v_lshrrev_b32 v%d, 5, v0" % (T + 1))
    a("v_lshlrev_b32 v%d, 2, v%d" % (vD0, T + 1))
    a("v_sub_u32 v%d, v%d, v%d" % (vD0, vD0, T))
    a("v_mov_b32 v%d, 0xff800000" % vNeg)
    a("v_mov_b32 v%d, v%d" % (vM, vNeg))
    a("s_max_i32 s50, s41, 0")
    a("s_sub_u32 s51, 8, s50")
    a("v_mul_u32_u24 v%d, s51, v%d" % (T, vStep))
    a("v_sub_u32 v%d, v%d, v%d" % (vV, vV, T))
    a("s_mul_i32 s51, s50, 2304")
    for r in range(16):
        a("v_mov_b32 v%d, 0" % (OO + r))
    for ps in range(2):
        lab = "L_sp%d" % ps
        a("v_add_u32 v%d, s51, v%d" % (vKs, vK))
        a("v_add_u32 v%d, s51, v%d" % (vKts, vKt))
        a("s_mov_b32 s46, s50")
        a.label(lab)
        for x in k_reads(0, vKs, vKts):
            a(x)
        if ps == 1:
            for x in v_reads(0):
                a(x)
        a("s_mov_b32 s47, -31")
        a("s_mov_b32 s48, 62")
        a("s_cmp_eq_u32 s46, 0")
        a("s_cselect_b32 s47, 1, s47")
        a("s_cselect_b32 s48, 30, s48")
        a("s_cmp_eq_u32 s46, 8")
        a("s_cselect_b32 s48, 31, s48")
        a("s_waitcnt lgkmcnt(0)")
        for x in qk(0):
            a(x)
        a("v_subrev_u32 v%d, s47, v%d" % (T, vD0))
        for r in range(16):
            a("v_add_u32 v%d, %d, v%d" % (T + 1, 8 * (r >> 2) + (r & 3), T))
            a("v_cmp_ge_u32 vcc, s48, v%d" % (T + 1))
            a("v_cndmask_b32 v%d, v%d, v%d, vcc" % (SS[0] + r, vNeg, SS[0] + r))
            if ps == 0:
                a("v_max_f32 v%d, v%d, v%d" % (vM, vM, SS[0] + r))
            else:
                a("v_sub_f32 v%d, v%d, v%d" % (SS[0] + r, SS[0] + r, vM))
                a("v_exp_f32 v%d, v%d" % (SS[0] + r, SS[0] + r))
        if ps == 1:
            for q in range(8):
                a("v_cvt_pk_bf16_f32 v%d, v%d, v%d" % (PP[0] + q, SS[0] + 2 * q, SS[0] + 2 * q + 1))
            for x in pv(0, False):
                a(x)
            a("v_add_u32 v%d, v%d, v%d" % (vV, vV, vStep))
        a("v_add_u32 v%d, 2304, v%d" % (vKs, vKs))
        a("v_add_u32 v%d, 2304, v%d" % (vKts, vKts))
        a("s_add_u32 s46, s46, 1")
        a("s_cmp_lt_u32 s46, 9")
        a("s_nop 7")
        a("s_nop 7")
        a("s_cbranch_scc1 %s" % lab)
        if ps == 0:
            a("v_mov_b32 v%d, v%d" % (T, vM))
            a("v_permlane32_swap_b32 v%d, v%d" % (T, vM))
            a("v_max_f32 v%d, v%d, v%d" % (vM, vM, T))
    a("v_rcp_f32 v%d, v%d" % (T, OO + 12))
    a("s_nop 1")
    a("s_branch L_fin")


def helpers(a):
    a.c("---- helper waves")
    a.label("L_help")
    a("s_cmp_eq_u32 s3, 9")
    a("s_cbranch_scc0 L_help1")
    code_touch(a)
    a.label("L_help1")
    a("v_mov_b32 v3, %d" % CTL)
    for k in range(4):
        a("v_mov_b32 v%d, 0" % (4 + k))
    a("v_lshlrev_b32 v1, 4, v0")
    a("v_add_u32 v2, v1, v3")
    a("s_mov_b64 exec, 0xff")
    a("ds_write_b128 v2, v[4:7]")
    a("s_mov_b64 exec, -1")
    a("s_waitcnt lgkmcnt(0)")
    load_tag(a)
    a("s_barrier")
    a("s_barrier")
    a("s_waitcnt lgkmcnt(0)")
    make_tag(a)
    a.label("L_help2")
    decode2(a)
    a("s_cmp_eq_u32 s3, 8")
    a("s_cbranch_scc1 L_down")
    a("v_lshrrev_b32 v1, 5, v0")
    a("v_bfe_u32 v2, v0, 3, 2")
    a("v_lshrrev_b32 v10, 4, v0")
    a("v_lshlrev_b32 v10, 1, v10")
    a("v_and_b32 v11, 7, v0")
    a("v_xor_b32 v10, v10, v11")
    a("v_lshl_add_u32 v4, v1, 2, v2")
    a("v_mul_u32_u24 v4, 1152, v4")
    a("v_lshl_add_u32 v4, v10, 4, v4")
    a("v_mul_u32_u24 v5, 72, v1")
    a("v_add_u32 v5, v5, v2")
    a("v_mul_u32_u24 v5, 1152, v5")
    a("v_lshl_add_u32 v5, v10, 4, v5")
    a("s_sub_u32 s36, s3, 9")
    a("s_mul_i32 s37, s36, %d" % (20 * 1152))
    a("s_mul_i32 s43, s36, %d" % (144 * 1152))
    a("s_lshl_b32 s38, s36, 10")
    a("s_add_u32 s38, s38, %d" % WO)
    a("s_lshl_b32 s39, s53, 7")
    a("s_sub_u32 s42, %d, s39" % (576 * 1152))
    srd_off(a, 16, 28, "s39", "s42")
    srd_off(a, 24, 8, L.WS_O, 128 * 18432)
    a("v_mov_b32 v%d, %d" % (vC, CTL))
    a("s_sub_u32 s40, s3, 5")
    out_setup(a, 40)
    a("s_setprio %d" % OPT["pr3"])
    a("s_cmp_ge_u32 s2, 192")
    a("s_cbranch_scc1 L_wo_go")
    for k in range(9):
        a("s_barrier")
    a.label("L_wo_go")
    a("s_cmp_eq_u32 s3, 11")
    a("s_cbranch_scc1 L_ctl")
    a("s_cmp_ge_u32 s52, 26")
    a("s_cbranch_scc1 L_end")
    if OPT["woe"]:
        a("s_cmp_ge_u32 s2, 192")
        a("s_cbranch_scc1 L_wo_e_d")
        lds_spin(a, "L_wo_e", 3, C_FI, 10, (8,), 0)
    stamp(a, 5)
    for m in range(36):
        if m == OPT["woe"]:
            stage_spin(a, "L_wo_w", 0, 3, 10, 2)
        st, sec = m >> 1, m & 1
        a("s_add_u32 m0, s38, %d" % (2048 * m))
        if st < 16:
            a("s_add_u32 s40, s37, %d" % ((36 * st + 8 * sec) * 1152))
            a("buffer_load_dwordx4 v4, s[16:19], s40 offen lds")
        else:
            a("s_add_u32 s40, s43, %d" % ((288 * (st - 16) + 36 * sec + 16) * 1152))
            a("buffer_load_dwordx4 v5, s[16:19], s40 offen lds")
        if OPT["wth"] and m >= OPT["wth"] - 1:
            a("s_waitcnt vmcnt(%d)" % (OPT["wth"] - 1))
    x_loads(a)
    a("s_waitcnt vmcnt(1)")
    stamp(a, 6)
    lds_inc(a, 3, 4, C_WO)
    a("s_setprio 0")
    a("s_branch L_out")
    a.c("---- wave 11: flags, all-ones fill, routed update")
    a.label("L_ctl")
    a("v_lshlrev_b32 v8, 7, v0")
    a("v_add_u32 v9, %d, v8" % (L.WS_FLAG + F_PA * 128))
    a("s_mul_i32 s46, s52, 5")
    a("s_lshr_b32 s46, s46, 3")
    a("s_min_u32 s46, s46, 14")
    a("s_lshl_b32 s46, s46, 11")
    a("s_add_u32 s46, s46, %d" % (L.WS_FLAG + F_O * 128))
    a("v_add_u32 v8, s46, v8")
    a("s_lshl_b32 s46, s32, 4")
    a("s_add_u32 s46, s46, s31")
    a("s_lshl_b32 s46, s46, 7")
    a("s_add_u32 s46, s46, %d" % (L.WS_FLAG + F_O * 128))
    a("v_mov_b32 v14, s46")
    a("v_mov_b32 v15, s%d" % TAG)
    a("s_cmp_ge_u32 s2, 192")
    a("s_cbranch_scc1 L_ct_0")
    qpoll(a, 3, "L_qp1", True)
    a.label("L_ct_0")
    AUXLATE = OPT["auxp"]
    def aux():
        flag_poll(a, "L_pap", 9, 4, "s%d" % TAG, 64, 8, 3)
        a("v_mov_b32 v10, v5")
        a("v_mov_b32 v11, v6")
        a("v_mov_b32 v4, 1")
        a("ds_write_b64 v3, v[10:11] offset:%d" % C_IDX)
        a("ds_write_b32 v3, v4 offset:%d" % C_PA)
        srd_off(a, 16, 8, L.WS_G, 8192)
        a("s_mul_i32 s40, s52, 320")
        a("v_lshlrev_b32 v4, 2, v0")
        a("buffer_load_dword v5, v4, s[16:19], s40 offen sc1")
        a("buffer_load_dword v6, v4, s[16:19], s40 offen offset:256 sc1")
        a("v_add_u32 v4, %d, v4" % GB)
        GLATE.append(1)
        stamp(a, 5)

    if not AUXLATE:
        aux()
    a("v_bfe_u32 v20, v0, 4, 1")
    a("v_mul_u32_u24 v20, 18432, v20")
    a("v_and_b32 v21, 15, v0")
    a("v_lshl_add_u32 v20, v21, 4, v20")
    a("v_lshrrev_b32 v21, 5, v0")
    a("v_lshl_add_u32 v22, v21, 2, v20")
    a("v_lshl_add_u32 v21, v21, 8, v20")
    for k in range(4):
        a("v_mov_b32 v%d, -1" % (24 + k))
    a("s_mul_i32 s54, s32, %d" % (8 * 18432))
    a("s_lshl_b32 s55, s31, 10")
    a("s_add_u32 s55, s55, s54")
    a("s_lshr_b32 s56, s31, 1")
    a("s_lshl_b32 s56, s56, 8")
    a("s_and_b32 s57, s31, 1")
    a("s_lshl_b32 s57, s57, 3")
    a("s_add_u32 s56, s56, s57")
    a("s_add_u32 s56, s56, s54")
    a("s_add_u32 s56, s56, 16384")
    if OPT["pearly"]:
        lds_spin(a, "L_ct_p", 3, C_1, 10, (8, 1), 0)
        a("s_sleep %d" % OPT["pearly"])
    else:
        stage_spin(a, "L_ct_p", 0, 3, 10, 0)
    for j in range(4):
        a("buffer_store_dword v24, v22, s[24:27], s56 offen sc1")
        a("buffer_store_dwordx4 v[24:27], v21, s[24:27], s55 offen sc1")
        a("buffer_store_dwordx4 v[24:27], v21, s[24:27], s55 offen offset:512 sc1")
        a("s_add_u32 s55, s55, %d" % (2 * 18432))
        a("s_add_u32 s56, s56, %d" % (2 * 18432))
    a("v_mov_b32 v4, 1")
    a("s_waitcnt vmcnt(0)")
    a("ds_write_b32 v3, v4 offset:%d" % C_C)
    a("s_mov_b64 exec, 1")
    a("global_store_dword v14, v15, s[8:9] sc1")
    a("s_mov_b64 exec, -1")
    stamp(a, 6)
    lds_spin(a, "L_ct_q", 3, C_B, 10, (8,), 1)
    if AUXLATE:
        aux()
    else:
        a("s_sleep %d" % OPT["slp3"])
    flag_poll(a, "L_op", 8, 12, "s%d" % TAG, 32, 2)
    a("ds_write_b32 v4, v5")
    a("ds_write_b32 v4, v6 offset:256")
    lds_inc(a, 3, 10, C_GO2)
    stamp(a, 7)
    stamp_end(a, 11 if OPT["st11"] else 99, 3)
    a("ds_read_b64 v[10:11], v3 offset:%d" % C_IDX)
    a("s_waitcnt lgkmcnt(0)")
    a("v_readfirstlane_b32 s12, v10")
    a("v_readfirstlane_b32 s13, v11")
    a("s_mul_i32 s46, s52, 80")
    a("s_sub_u32 s46, s12, s46")
    a("s_cmp_lt_u32 s46, 80")
    a("s_cbranch_scc0 L_end")
    a("v_lshlrev_b32 v4, 7, v0")
    a("v_add_u32 v4, %d, v4" % (L.WS_FLAG + F_Y * 128))
    srd_off(a, 16, 8, L.WS_YP, 16 * 2304)
    a("v_lshrrev_b32 v6, 4, v0")
    a("v_mul_u32_u24 v6, 2304, v6")
    a("v_and_b32 v7, 15, v0")
    a("v_lshlrev_b32 v7, 4, v7")
    a("v_add_u32 v6, v6, v7")
    a("v_add_u32 v7, %d, v7" % YB)
    a("s_lshl_b32 s40, s53, 8")
    flag_poll(a, "L_yp", 4, 5, "12", 16, 2)
    for i in range(4):
        a("buffer_load_dwordx4 %s, v6, s[16:19], s40 offen sc1" % vr(8 + 4 * i, 4))
        a("s_add_u32 s40, s40, %d" % (4 * 2304))
    a("s_waitcnt vmcnt(0)")
    for i in range(1, 4):
        a("v_pk_add_f32 v[8:9], v[8:9], %s" % vr(8 + 4 * i, 2))
        a("v_pk_add_f32 v[10:11], v[10:11], %s" % vr(10 + 4 * i, 2))
    for k in range(4):
        a("v_mov_b32 v20, v%d" % (8 + k))
        a("v_permlane32_swap_b32 v20, v%d" % (8 + k))
        a("v_add_f32 v%d, v%d, v20" % (8 + k, 8 + k))
        a("v_mov_b32 v20, v%d" % (8 + k))
        a("v_permlane16_swap_b32 v20, v%d" % (8 + k))
        a("v_add_f32 v%d, v%d, v20" % (8 + k, 8 + k))
        bf16_round(a, 8 + k, 8 + k)
        a("v_mul_f32 v%d, s13, v%d" % (8 + k, 8 + k))
        bf16_round(a, 8 + k, 8 + k)
    a("v_mov_b32 v12, 1")
    a("ds_write_b128 v7, v[8:11]")
    a("ds_write_b32 v3, v12 offset:%d" % C_YRDY)
    a("s_cmp_eq_u32 s53, 0")
    a("s_cbranch_scc0 L_end")
    a("v_mov_b32 v4, %d" % L.WS_EPOCH)
    a("v_mov_b32 v5, s%d" % TAG)
    a("s_mov_b64 exec, 1")
    a("global_store_dword v4, v5, s[8:9]")
    a("s_endpgm")

    a.c("---- wave 8: down projection")
    a.label("L_down")
    a("s_cmp_ge_u32 s2, 192")
    a("s_cbranch_scc1 L_end")
    DW, DA = 20, 128
    a("v_lshrrev_b32 v2, 3, v0")
    a("v_and_b32 v10, 7, v0")
    a("v_mul_u32_u24 v16, 1152, v2")
    a("v_lshl_add_u32 v16, v10, 4, v16")
    a("s_mul_i32 s36, s2, 24")
    a("v_mul_u32_u24 v12, %d, v10" % (4608 * 16))
    a("v_add_u32 v11, s36, v2")
    a("v_lshl_add_u32 v17, v11, 4, v12")
    a("v_cmp_gt_u32 s[56:57], 7, v10")
    a("s_mul_i32 s37, s2, %d" % (24 * 1152))
    a("v_and_b32 v1, 1, v0")
    a("v_lshlrev_b32 v1, 4, v1")
    sel_masks(a, 44, 11)
    a("v_lshrrev_b32 v11, 5, v0")
    a("v_bfe_u32 v12, v0, 3, 1")
    a("v_cmp_eq_u32 s[52:53], v11, v12")
    a("v_mul_u32_u24 v12, 2304, v12")
    a("v_bfe_u32 v11, v0, 4, 1")
    a("v_lshl_add_u32 v12, v11, 7, v12")
    a("v_lshl_add_u32 v12, v10, 2, v12")
    a("v_add_u32 v164, %d, v12" % HP)
    a("v_lshlrev_b32 v165, 2, v0")
    a("v_add_u32 v166, %d, v165" % HP)
    a("s_and_b32 s38, s2, 15")
    a("s_mul_i32 s39, s38, 2304")
    a("s_add_u32 s39, s39, %d" % L.WS_YP)
    a("v_add_u32 v165, s39, v165")
    a("s_lshl_b32 s38, s38, 7")
    a("s_add_u32 s38, s38, %d" % (L.WS_FLAG + F_Y * 128))
    srd_off(a, 16, 14, "s37", 24 * 1152)
    srd_off(a, 20, 8, L.WS_PA, 7 * 4608 * 16)
    def dloads(ts=(0, 1, 2)):
        for t in (() if OPT["nodown"] else ts):
            a("s_movk_i32 s40, %d" % (9216 * t))
            for cg in range(9):
                a("buffer_load_dwordx4 %s, v16, s[16:19], s40 offen offset:%d %s" % (vr(DW + 4 * (9 * t + cg), 4), 128 * cg, "" if OPT["dtouch"] else "nt"))

    for k in range(2, 11):
        if OPT["dsplit"]:
            if k in (8, 9, 10):
                dloads((k - 8,))
        elif k == OPT["dpos"]:
            dloads()
        a("s_barrier")
    if OPT["dpos"] == -1:
        a("s_setprio 3")
        stage_spin(a, "L_dn_w2", 0, 3, 10, 0)
        dloads()
    elif OPT["dpos"] == -2:
        a("s_setprio 3")
        lds_spin(a, "L_dn_w2", 3, C_WO, 10, (2,), 2)
        dloads()
    elif OPT["dpos"] == -3:
        a("s_setprio 3")
        lds_spin(a, "L_dn_w2", 3, C_1, 10, (8, 1), 0)
        a("s_sleep 8")
        dloads()
    elif OPT["w8e"] == 2:
        lds_spin(a, "L_dn_w2", 3, C_1, 10, (8, 1), 2)
        a("s_sleep 6")
    elif OPT["w8e"]:
        lds_spin(a, "L_dn_w2", 3, C_1, 10, (8,), 2)
    else:
        stage_spin(a, "L_dn_w2", 0, 3, 10, 2)
    stamp(a, 5)
    a("s_setprio %d" % OPT["pr1"])
    a("s_mov_b32 s60, 0x40000")
    a.label("L_dn_pa")
    a("buffer_load_dwordx3 v[4:6], v17, s[20:23], 0 offen sc1")
    a("buffer_load_dwordx3 v[8:10], v17, s[20:23], 0 offen offset:128 sc1")
    a("buffer_load_dwordx3 v[160:162], v17, s[20:23], 0 offen offset:256 sc1")
    a("s_waitcnt vmcnt(0)")
    a("v_cmp_ne_u32 vcc, s%d, v6" % TAG)
    a("v_cmp_ne_u32 s[40:41], s%d, v10" % TAG)
    a("v_cmp_ne_u32 s[42:43], s%d, v162" % TAG)
    a("s_or_b64 vcc, vcc, s[40:41]")
    a("s_or_b64 vcc, vcc, s[42:43]")
    a("s_and_b64 vcc, vcc, s[56:57]")
    a("s_cmp_eq_u64 vcc, 0")
    a("s_cbranch_scc1 L_dn_pb")
    a("s_sleep 8")
    a("s_sub_u32 s60, s60, 1")
    a("s_cbranch_scc0 L_dn_pa")
    a.label("L_dn_pb")
    stamp(a, 8)
    a("v_mov_b32 v6, v8")
    a("v_mov_b32 v7, v9")
    a("v_mov_b32 v8, v160")
    a("v_mov_b32 v9, v161")
    sum8(a, (4, 5, 6, 7, 8, 9))
    for t in range(3):
        g, u = 4 + 2 * t, 5 + 2 * t
        bf16_round(a, g, g)
        bf16_round(a, u, u)
        sigmoid(a, 10, g)
        a("v_mul_f32 v%d, v%d, v10" % (g, g))
        bf16_round(a, g, g)
        a("v_mul_f32 v%d, v%d, v%d" % (g, g, u))
        a("v_cvt_pk_bf16_f32 v%d, v%d, v%d" % (g, g, g))
        a("v_and_b32 v%d, 0xffff, v%d" % (g, g))
        a("v_lshlrev_b32 v%d, v1, v%d" % (g, g))
    for t in range(3):
        selector(a, 12, 4 + 2 * t, 44)
        for cg in range(9):
            d = vr(DA + 4 * cg, 4)
            a("v_mfma_f32_16x16x32_bf16 %s, %s, v[12:15], %s" % (d, vr(DW + 4 * (9 * t + cg), 4), "0" if t == 0 else d))
    a("s_mov_b64 exec, s[52:53]")
    for cg in range(9):
        for r in range(4):
            a("ds_write_b32 v164, v%d offset:%d" % (DA + 4 * cg + r, 256 * cg + 32 * r))
    a("s_mov_b64 exec, -1")
    for cg in range(9):
        a("ds_read2st64_b32 %s, v166 offset0:%d offset1:%d" % (vr(20 + 2 * cg, 2), cg, cg + 9))
    if OPT["atw"]:
        lds_spin(a, "L_dn_at", 3, C_WO, 10, (2,), 2)
    else:
        stage_spin(a, "L_dn_at", 0, 3, 10, 2)
    lds_spin(a, "L_dn_ax", 3, C_PA, 10, (1,), 1)
    for cg in range(9):
        a("v_add_f32 v%d, v%d, v%d" % (20 + 2 * cg, 20 + 2 * cg, 21 + 2 * cg))
        if not OPT["noat"]:
            a("global_atomic_add_f32 v165, v%d, s[8:9] offset:%d" % (20 + 2 * cg, 256 * cg))
    a("v_mov_b32 v4, s38")
    a("v_mov_b32 v5, 1")
    a("s_waitcnt vmcnt(0)")
    stamp(a, 7)
    a("s_mov_b64 exec, 1")
    a("global_atomic_add v4, v5, s[8:9] sc1")
    stamp_end(a, 8, 1)


def kf(a):
    a.label(NAME)
    a("s_cmp_ge_u32 s2, 256")
    a("s_cbranch_scc1 L_end")
    stamp_init(a)
    stamp(a, 0)
    a("s_load_dwordx4 s[4:7], s[0:1], 0")
    a("s_load_dwordx2 s[8:9], s[0:1], 88")
    a("s_load_dwordx2 s[10:11], s[0:1], 72")
    a("s_load_dwordx2 s[14:15], s[0:1], 56")
    a("s_load_dwordx2 s[28:29], s[0:1], 16")
    a("v_lshrrev_b32 v1, 6, v0")
    a("v_and_b32 v0, 63, v0")
    a("v_readfirstlane_b32 s3, v1")
    a("s_and_b32 s30, s2, 3")
    a("s_bfe_u32 s31, s2, 0x10002")
    a("s_lshr_b32 s32, s2, 3")
    a("s_cmp_ge_u32 s32, 24")
    a("s_cbranch_scc1 L_sp")
    a("s_cmp_ge_u32 s3, 8")
    a("s_cbranch_scc1 L_help")
    gemm_phase(a)
    attention_phase(a)
    out_phase(a)
    late_and_slow(a)
    spare_phase(a)
    helpers(a)
    a.label("L_end")
    a("s_endpgm")
```

```python
from asmdsl import vr, sr
import layout as L
from common import *
from k2 import (KB, VB, QB, ONES, vK, vKt, vV, vStep, QM, QT, MSK, KF, VF, PP, SS, OO, T,
                k_reads, v_reads, qk, pv)

NAME = "gated_mix__sliding_block__moe_arch_mod__prompt_kernel"
SLOT = 34816
IMG = SLOT
WO = 66560
CTL = 149568
YB = 149696
HP = 150016
YT = 154624
XS = 156672
KF_LDS = 162304
PSLOT = (QB, QB + 4096, 140288, 144384, 158208)
KF_VGPR = 168
PART = 0
STG = 20480
XR, GR = 128, 136
vC = 154
TAG = 65
C_O, C_GO2, C_A, C_WO, C_PART, C_YRDY, C_B, C_1, C_GO1, C_C, C_PA, C_IDX, C_RSEL = 0, 4, 8, 12, 88, 32, 36, 40, 44, 48, 52, 56, 60
C_KMAX, C_KCNT, C_XS, C_GD, C_RED, C_RED2, C_FI = 64, 68, 72, 76, 80, 84, 16
F_Q, F_O, F_PA, F_Y = 0, 192, 448, 512


def lds_spin(a, name, addr_v, off, regs, conds, slp=1):
    n = len(conds)
    a("s_mov_b32 s60, 0x200000")
    a.label(name)
    a(("ds_read_b64 %s, v%d offset:%d" % (vr(regs, 2), addr_v, off)) if n == 2 else
      ("ds_read_b32 v%d, v%d offset:%d" % (regs, addr_v, off)))
    a("s_waitcnt lgkmcnt(0)")
    a("v_readfirstlane_b32 s61, v%d" % regs)
    if n == 2:
        a("v_readfirstlane_b32 s62, v%d" % (regs + 1))
        a("s_lshl_b32 s62, s62, 8")
        a("s_or_b32 s61, s61, s62")
        a("s_cmp_eq_u32 s61, %d" % (conds[0] | (conds[1] << 8)))
    else:
        a("s_cmp_eq_u32 s61, %d" % conds[0])
    a("s_cbranch_scc1 %s_d" % name)
    if slp:
        a("s_sleep %d" % slp)
    a("s_sub_u32 s60, s60, 1")
    a("s_cmp_lg_u32 s60, 0")
    a("s_cbranch_scc1 %s" % name)
    a.label(name + "_d")


def stage_spin(a, name, stage, vc=vC, T=T, slp=0):
    a("s_mov_b32 s60, 0x200000")
    a.label(name)
    a("ds_read_b32 v%d, v%d offset:%d" % (T, vc, C_A))
    a("s_waitcnt lgkmcnt(0)")
    a("v_readfirstlane_b32 s61, v%d" % T)
    a("s_bitcmp1_b32 s61, %d" % (8 * stage + 3))
    a("s_cbranch_scc1 %s_d" % name)
    if slp:
        a("s_sleep %d" % slp)
    a("s_sub_u32 s60, s60, 1")
    a("s_cmp_lg_u32 s60, 0")
    a("s_cbranch_scc1 %s" % name)
    a.label(name + "_d")


def landed(a, inc, vm):
    a("v_mov_b32 v%d, %s" % (T, hex(inc)))
    a("s_waitcnt vmcnt(%d)" % vm)
    a("s_mov_b64 exec, 1")
    a("ds_add_u32 v%d, v%d offset:%d" % (vC, T, C_A))
    a("s_mov_b64 exec, -1")


def poison(a):
    if OPT["nopois"]:
        a("s_nop 0")
        a("buffer_load_dword v155, v152, s[24:27], s59 offen")
        a("buffer_load_dword v155, v152, s[24:27], s59 offen")
        return
    for k in range(4):
        a("v_mov_b32 v%d, -1" % (120 + k))
    a("buffer_store_dwordx4 %s, v153, s[24:27], s58 offen sc1" % vr(120, 4))
    a("s_mov_b32 exec_hi, 0")
    a("buffer_store_dword v%d, v152, s[24:27], s59 offen sc1" % 120)
    a("s_mov_b32 exec_hi, -1")


def tail_touch(a):
    a("buffer_load_dword v155, v152, s[24:27], s59 offen")


def flag_poll(a, name, voff, vt, want, lanes, slp=1, width=1):
    a("s_mov_b64 exec, %s" % ("-1" if lanes == 64 else hex((1 << lanes) - 1)))
    a("s_mov_b32 s60, 0x40000")
    a.label(name)
    a("global_load_dword%s %s, v%d, s[8:9] sc1" % ("" if width == 1 else "x%d" % width, vr(vt, width), voff))
    a("s_waitcnt vmcnt(0)")
    a("v_cmp_eq_u32 vcc, %s, v%d" % (want, vt))
    a("s_cmp_eq_u64 vcc, exec")
    a("s_cbranch_scc1 %s_d" % name)
    if slp:
        a("s_sleep %d" % slp)
    a("s_sub_u32 s60, s60, 1")
    a("s_cmp_lg_u32 s60, 0")
    a("s_cbranch_scc1 %s" % name)
    a.label(name + "_d")
    a("s_mov_b64 exec, -1")


def lds_inc(a, vz, vt, off, rtn=False):
    a("v_mov_b32 v%d, 1" % vt)
    a("s_mov_b64 exec, 1")
    if rtn:
        a("ds_add_rtn_u32 v%d, v%d, v%d offset:%d" % (vt, vz, vt, off))
    else:
        a("ds_add_u32 v%d, v%d offset:%d" % (vz, vt, off))
    a("s_mov_b64 exec, -1")


def load_tag(a):
    a("s_mov_b32 s64, %d" % L.WS_EPOCH)
    a("s_load_dword s%d, s[8:9], s64" % TAG)


def make_tag(a):
    a("s_mul_i32 s%d, s%d, 0x9e3779b1" % (TAG, TAG))
    a("s_add_u32 s%d, s%d, 0x7f4a7c15" % (TAG, TAG))


def copy_scalars(a):
    a("s_mul_i32 s55, s34, %d" % (4 * L.PAIR_BYTES))
    a("s_mul_i32 s56, s35, 9216")
    a("s_add_u32 s55, s55, s56")
    a("s_lshl_b32 s56, s3, 10")
    a("s_add_u32 s55, s55, s56")
    for j in range(5):
        a("s_add_u32 s57, s3, %d" % (8 * j))
        a("s_mul_i32 s57, s57, 57")
        a("s_lshr_b32 s57, s57, 9")
        a("s_mul_i32 s57, s57, %d" % (L.PAIR_BYTES - 9216))
        a("s_add_u32 s57, s57, s55")
        a("s_add_u32 s%d, s57, %d" % (50 + j, 8192 * j))
    a("s_mul_i32 s58, s35, 12")
    a("s_add_u32 s58, s58, s34")
    a("s_lshl_b32 s58, s58, 7")
    a("s_add_u32 s58, s58, %d" % (L.WS_FLAG + F_Q * 128))


def decode2(a):
    if OPT["amap"]:
        a("s_and_b32 s31, s2, 7")
        a("s_lshl_b32 s31, s31, 1")
        a("s_bfe_u32 s32, s2, 0x10003")
        a("s_add_u32 s31, s31, s32")
        a("s_lshr_b32 s30, s31, 2")
        a("s_lshr_b32 s32, s2, 4")
        a("s_add_u32 s32, s32, 4")
        a("s_and_b32 s32, s32, 15")
    else:
        a("s_and_b32 s30, s2, 3")
        a("s_bfe_u32 s33, s2, 0x10002")
        a("s_bfe_u32 s32, s2, 0x20003")
        a("s_lshl_b32 s31, s30, 2")
        a("s_add_u32 s31, s31, s32")
        a("s_lshl_b32 s32, s33, 3")
        a("s_lshr_b32 s34, s2, 5")
        if OPT["light"]:
            a("s_add_u32 s34, s34, 2")
            a("s_and_b32 s34, s34, 7")
        a("s_add_u32 s32, s32, s34")
    a("s_lshr_b32 s33, s2, 3")
    a("s_mul_i32 s34, s33, 57")
    a("s_lshr_b32 s34, s34, 9")
    a("s_mul_i32 s53, s34, 9")
    a("s_sub_u32 s53, s33, s53")
    a("s_lshl_b32 s52, s34, 3")
    a("s_and_b32 s34, s2, 7")
    a("s_add_u32 s52, s52, s34")
    a("s_sub_u32 s33, s2, 216")
    a("s_mul_i32 s34, s33, 57")
    a("s_lshr_b32 s34, s34, 9")
    a("s_mul_i32 s35, s34, 9")
    a("s_sub_u32 s33, s33, s35")
    a("s_add_u32 s34, s34, 24")
    a("s_cmp_ge_u32 s2, 216")
    a("s_cselect_b32 s52, s34, s52")
    a("s_cselect_b32 s53, s33, s53")


def qpoll(a, vc, name, own, r=16):
    R = dict(a=r, b=r + 1, c=r + 2)
    a("v_add_u32 v%(a)d, 2, v0" % R)
    a("v_mul_u32_u24 v%(b)d, 43, v%(a)d" % R)
    a("v_lshrrev_b32 v%(b)d, 7, v%(b)d" % R)
    a("v_mul_u32_u24 v%(c)d, 3, v%(b)d" % R)
    a("v_sub_u32 v%(a)d, v%(a)d, v%(c)d" % R)
    a("s_sub_u32 s35, s32, 2")
    a("v_add_u32 v%(a)d, s35, v%(a)d" % R)
    a("v_max_i32 v%(a)d, 0, v%(a)d" % R)
    a("v_mul_u32_u24 v%(a)d, 12, v%(a)d" % R)
    a("v_lshl_add_u32 v%(a)d, v%(b)d, 2, v%(a)d" % R)
    a("v_add_u32 v%(a)d, s30, v%(a)d" % R)
    a("v_lshlrev_b32 v%(a)d, 7, v%(a)d" % R)
    a("v_add_u32 v%d, %d, v%d" % (r, L.WS_FLAG + F_Q * 128, r))
    if own:
        lds_spin(a, name + "w", vc, C_1, r + 2, (8,), 0)
    if OPT["qdel"]:
        a("s_sleep %d" % OPT["qdel"])
    if OPT["qpipe"] and own:
        NP = OPT["qpipe"]
        a("s_mov_b64 exec, 0x7f")
        a("s_mov_b32 s60, 0x20000")
        for k in range(NP - 1):
            a("global_load_dword v%d, v%d, s[8:9] sc1" % (r + 3 + k, r))
            a("s_sleep 1")
        a.label(name)
        for k in range(NP):
            a("global_load_dword v%d, v%d, s[8:9] sc1" % (r + 3 + (k + NP - 1) % NP, r))
            a("s_waitcnt vmcnt(%d)" % (NP - 1))
            a("v_cmp_eq_u32 vcc, s%d, v%d" % (TAG, r + 3 + k))
            a("s_cmp_eq_u64 vcc, exec")
            a("s_cbranch_scc1 %s_d" % name)
        a("s_sub_u32 s60, s60, 1")
        a("s_cbranch_scc0 %s" % name)
        a.label(name + "_d")
        a("s_mov_b64 exec, -1")
    else:
        flag_poll(a, name, r, r + 1, "s%d" % TAG, 7, OPT["qslp"])
    lds_inc(a, vc, r + 2, C_GO1)


def code_touch(a):
    if not OPT["ctouch"]:
        return
    lab = a.newlabel("pc")
    a("s_getpc_b64 s[20:21]")
    a.label(lab)
    a("s_sub_u32 s20, s20, %s-%s" % (lab, NAME))
    a("s_subb_u32 s21, s21, 0")
    a("s_lshr_b32 s22, s2, 3")
    a("s_mul_i32 s22, s22, %d" % (12 * 128))
    a("v_lshlrev_b32 v20, 7, v0")
    a("v_add_u32 v20, s22, v20")
    a("v_min_u32 v20, L_end-%s, v20" % NAME)
    a("s_mov_b64 exec, 0xfff")
    a("global_load_dword v21, v20, s[20:21]")
    a("s_mov_b64 exec, -1")


def gemm_phase(a):
    if OPT["gmap"]:
        a("s_lshr_b32 s33, s32, 1")
        a("s_mul_i32 s33, s33, 43")
        a("s_lshr_b32 s33, s33, 7")
        a("s_mul_i32 s34, s33, 6")
        a("s_sub_u32 s34, s32, s34")
        a("s_and_b32 s35, s34, 1")
        a("s_lshr_b32 s34, s34, 1")
        a("s_lshl_b32 s34, s34, 2")
        a("s_add_u32 s34, s34, s35")
        a("s_and_b32 s35, s2, 1")
        a("s_lshl_b32 s35, s35, 1")
        a("s_add_u32 s34, s34, s35")
        a("s_bfe_u32 s35, s2, 0x20001")
        a("s_lshl_b32 s35, s35, 2")
        a("s_add_u32 s35, s35, s33")
    else:
        a("s_mul_i32 s33, s32, 43")
        a("s_lshr_b32 s33, s33, 7")
        a("s_mul_i32 s34, s33, 3")
        a("s_sub_u32 s34, s32, s34")
        a("s_lshl_b32 s34, s34, 2")
        a("s_add_u32 s34, s34, s30")
        a("s_lshl_b32 s35, s31, 3")
        a("s_add_u32 s35, s35, s33")
    a("s_cmp_lt_u32 s3, 4")
    a("s_cbranch_scc1 L_comp")
    a("s_cmp_lt_u32 s3, 6")
    a("s_cbranch_scc0 L_ldw")
    a("s_sub_u32 s36, s3, 4")
    SH = 4 if OPT["gmap"] else 3
    a("v_and_b32 v7, %d, v0" % ((1 << SH) - 1))
    a("s_lshl_b32 s41, s33, %d" % SH)
    a("s_lshl_b32 s42, s36, 6")
    a("s_add_u32 s41, s41, s42")
    a("v_add_u32 v7, s41, v7")
    a("v_mul_u32_u24 v7, 3456, v7")
    a("v_lshrrev_b32 v1, %d, v0" % SH)
    a("v_lshl_add_u32 v7, v1, 7, v7")
    a("v_lshrrev_b32 v1, 3, v0")
    a("s_mul_i32 s39, s35, %d" % (128 * 1152))
    a("s_mul_i32 s46, s34, 288")
    a("s_and_b32 s46, s46, 0xffffff80")
    a("s_sub_u32 s47, %d, s46" % (576 * 3456))
    a("v_mul_u32_u24 v1, 1152, v1")
    a("v_lshrrev_b32 v2, 4, v0")
    a("v_and_b32 v3, 7, v0")
    a("v_xor_b32 v3, v3, v2")
    a("v_lshl_add_u32 v4, v3, 4, v1")
    a("v_xor_b32 v3, 4, v3")
    a("v_lshl_add_u32 v5, v3, 4, v1")
    a("v_add_u32 v5, %d, v5" % (8 * 1152))
    a("s_mul_i32 s37, s36, %d" % (64 * 1152))
    a("s_lshl_b32 s38, s36, 13")
    a("s_waitcnt lgkmcnt(0)")
    srd_off(a, 20, 6, "s46", "s47")
    if OPT["gmap"]:
        a("s_mov_b32 exec_hi, 0xffff")
    else:
        a("s_mov_b64 exec, 0xffffff")
    a("buffer_load_dword v20, v7, s[20:23], 0 offen")
    a("s_mov_b64 exec, -1")
    srd_off(a, 16, 4, "s39", 128 * 1152)

    def x_chunk(c):
        for i in range(8):
            a("s_add_u32 m0, s38, %d" % ((c % 4) * SLOT + i * 1024))
            a("s_add_u32 s40, s37, %d" % ((i >> 1) * 16 * 1152 + c * 128))
            a("buffer_load_dwordx4 v%d, s[16:19], s40 offen lds" % (4 + (i & 1)))

    x_chunk(0)
    load_tag(a)
    copy_scalars(a)
    stamp(a, 1)
    a("s_waitcnt vmcnt(8) lgkmcnt(0)")
    stamp(a, 2)

    def loader_loop(fn, n, first, ahead0):
        LA = OPT["la"]
        a("s_barrier")
        stamp(a, 13)
        nxt = first
        while nxt < ahead0:
            fn(nxt)
            nxt += 1
        stamp(a, 14)
        for c in range(9):
            a("s_waitcnt vmcnt(%d)" % (n * (nxt - 1 - c)))
            a("s_barrier")
            while nxt <= c + LA and nxt < 9:
                fn(nxt)
                nxt += 1

    loader_loop(x_chunk, 8, 1, 2)
    a("s_branch L_copy")
    a.c("---- W loaders (waves 6,7)")
    a.label("L_ldw")
    a("s_movk_i32 s41, 3641")
    for i in range(9):
        a("v_add_u32 v1, %d, v0" % (64 * i))
        a("v_mul_u32_u24 v2, s41, v1")
        a("v_lshrrev_b32 v2, 16, v2")
        a("v_mul_u32_u24 v3, 18, v2")
        a("v_sub_u32 v3, v1, v3")
        a("v_bfe_u32 v1, v2, 2, 2")
        a("v_lshlrev_b32 v1, 3, v1")
        a("v_lshrrev_b32 v13, 4, v2")
        a("v_lshl_add_u32 v1, v13, 2, v1")
        a("v_and_b32 v2, 3, v2")
        a("v_add_u32 v1, v1, v2")
        a("v_mul_u32_u24 v1, 3456, v1")
        a("v_lshl_add_u32 v%d, v3, 4, v1" % (4 + i))
        if i == 2:
            a("s_waitcnt lgkmcnt(0)")
            load_tag(a)
    a("s_sub_u32 s36, s3, 6")
    a("s_mul_i32 s37, s36, %d" % (32 * 3456))
    a("s_mul_i32 s38, s36, 9216")
    a("s_mul_i32 s39, s34, 288")
    a("s_sub_u32 s42, %d, s39" % (576 * 3456))
    copy_scalars(a)
    srd_off(a, 16, 6, "s39", "s42")
    a("s_waitcnt lgkmcnt(0)")

    def w_chunk(c):
        a("s_add_u32 s40, s37, %d" % (c * 64 * 3456))
        for i in range(9):
            a("s_add_u32 m0, s38, %d" % ((c % 4) * SLOT + 16384 + i * 1024))
            a("s_nop 0")
            a("buffer_load_dwordx4 v%d, s[16:19], s40 offen lds" % (4 + i))

    loader_loop(w_chunk, 9, 0, OPT["wa0"])
    a("s_branch L_copy")
    a.c("---- GEMM compute waves 0..3")
    a.label("L_comp")
    ACC, XF, WF = 64, (136, 144), 24
    a("v_and_b32 v8, 15, v0")
    a("v_lshrrev_b32 v9, 4, v0")
    a("v_lshrrev_b32 v10, 1, v8")
    a("v_xor_b32 v10, v10, v9")
    a("s_lshl_b32 s36, s3, 12")
    a("v_lshlrev_b32 v2, 7, v8")
    a("v_lshl_add_u32 v2, v10, 4, v2")
    a("v_add_u32 v2, s36, v2")
    a("v_xor_b32 v3, 64, v2")
    a("v_add_u32 v4, %d, v2" % (2 * SLOT))
    a("v_add_u32 v5, %d, v3" % (2 * SLOT))
    a("v_lshrrev_b32 v10, 2, v0")
    a("v_mul_u32_u24 v6, 288, v10")
    a("v_and_b32 v10, 3, v0")
    a("v_lshl_add_u32 v6, v10, 3, v6")
    a("v_add_u32 v6, 16384, v6")
    a("v_add_u32 v7, %d, v6" % (2 * SLOT))
    a("s_waitcnt lgkmcnt(0)")
    load_tag(a)
    a("s_mov_b32 s36, 1.0")
    a("s_cmp_lt_u32 s34, 4")
    a("s_cselect_b32 s36, %s, s36" % f32(QSCALE))
    a("s_mov_b32 s37, s36")
    a("s_lshl_b32 s38, s3, 5")
    a("v_add_u32 v10, s38, v8")
    a("v_mul_u32_u24 v10, 72, v10")
    a("v_lshl_add_u32 v10, v9, 3, v10")
    a("v_add_u32 v10, %d, v10" % IMG)
    for ft in range(9):
        a("v_add_u32 v11, %d, v9" % (4 * ft))
        a("v_mul_u32_u24 v11, 57, v11")
        a("v_lshrrev_b32 v11, 9, v11")
        a("v_mul_u32_u24 v11, 9144, v11")
        a("v_add_u32 v%d, v11, v10" % (12 + ft))
    copy_scalars(a)
    a("s_waitcnt lgkmcnt(0)")

    def xreads(step):
        c, h2 = step >> 1, step & 1
        slot = c % 4
        return ["ds_read_b128 %s, v%d offset:%d" % (vr(XF[step & 1] + 4 * tt, 4), 2 + 2 * (slot >> 1) + h2,
                                                    (slot & 1) * SLOT + tt * 2048) for tt in range(2)]

    def wreads(step, ft):
        c, h2 = step >> 1, step & 1
        slot = c % 4
        return ["ds_read_b64_tr_b16 %s, v%d offset:%d" % (vr(WF + 4 * ft + 2 * sec, 2), 6 + (slot >> 1),
                                                          (slot & 1) * SLOT + h2 * 9216 + sec * 4608 + ft * 32)
                for sec in range(2)]

    def mfma(step, ft, tt):
        d = vr(ACC + 8 * ft + 4 * tt, 4)
        return "v_mfma_f32_16x16x32_bf16 %s, %s, %s, %s" % (
            d, vr(WF + 4 * ft, 4), vr(XF[step & 1] + 4 * tt, 4), "0" if step == 0 else d)

    def epi(k):
        ft, tt = k >> 1, k & 1
        b = ACC + 4 * k
        t = 152 + 2 * (k % 4)
        return ["v_pk_mul_f32 %s, %s, s[36:37]" % (vr(b, 2), vr(b, 2)),
                "v_pk_mul_f32 %s, %s, s[36:37]" % (vr(b + 2, 2), vr(b + 2, 2)),
                "v_cvt_pk_bf16_f32 v%d, v%d, v%d" % (t, b, b + 1),
                "v_cvt_pk_bf16_f32 v%d, v%d, v%d" % (t + 1, b + 2, b + 3),
                "ds_write_b64 v%d, %s offset:%d" % (12 + ft, vr(t, 2), 32 * ft + 1152 * tt)]

    a("s_barrier")
    a("s_barrier")
    stamp(a, 1)
    q = []

    def issue(tag, lst):
        for x in lst:
            a(x)
            q.append(tag)

    def need(tag):
        last = max(k for k, v in enumerate(q) if v == tag)
        a("s_waitcnt lgkmcnt(%d)" % min(15, len(q) - 1 - last))

    issue(("x", 0), xreads(0))
    for ft in range(9):
        issue(("w", 0, ft), wreads(0, ft))
    for step in range(16):
        if step & 1:
            a("s_barrier")
        for ft in range(9):
            need(("w", step, ft))
            a(mfma(step, ft, 0))
            if ft == 0:
                issue(("x", step + 1), xreads(step + 1))
            a(mfma(step, ft, 1))
            issue(("w", step + 1, ft), wreads(step + 1, ft))
    RING = (60, 160, 164)

    def w17(ft):
        return [x.replace(vr(WF + 4 * ft + 2 * sec, 2), vr(RING[ft % 3] + 2 * sec, 2)) for sec, x in enumerate(wreads(17, ft))]

    issue(("x", 17), xreads(17))
    issue(("v", 0), w17(0))
    issue(("v", 1), w17(1))
    for ft in range(10):
        e = (epi(2 * ft - 2) + epi(2 * ft - 1)) if ft else []
        if ft < 9:
            need(("v", ft))
            m = [mfma(16, ft, 0), mfma(16, ft, 1)] + \
                [mfma(17, ft, tt).replace(vr(WF + 4 * ft, 4), vr(RING[ft % 3], 4)) for tt in range(2)]
        else:
            m = []
        cut = (0, 3, 5, 8, 10)
        for k in range(4):
            if m:
                a(m[k])
            if k == 0 and ft + 2 < 9:
                issue(("v", ft + 2), w17(ft + 2))
            for x in e[cut[k]:cut[k + 1]]:
                if x.startswith("ds_"):
                    issue("e", [x])
                else:
                    a(x)
    stamp(a, 2)
    a("s_waitcnt lgkmcnt(0)")
    a.c("---- copy the tile out, then publish it")
    a.label("L_copy")
    a("v_lshlrev_b32 v1, 4, v0")
    a("s_lshl_b32 s36, s3, 10")
    a("v_add_u32 v2, s36, v1")
    a("v_add_u32 v3, %d, v2" % (IMG + 4 * 8192))
    srd_off(a, 24, 8, L.WS_QKV, L.QKV_BYTES)
    make_tag(a)
    a("s_barrier")
    for j in range(4):
        a("ds_read_b128 %s, v2 offset:%d" % (vr(4 + 4 * j, 4), IMG + j * 8192))
    a("s_cmp_lt_u32 s3, 4")
    a("s_cbranch_scc0 L_c4")
    a("ds_read_b128 v[20:23], v3")
    a("s_waitcnt lgkmcnt(0)")
    a("buffer_store_dwordx4 v[20:23], v1, s[24:27], s54 offen sc1")
    a.label("L_c4")
    for j in range(4):
        a("s_waitcnt lgkmcnt(%d)" % (3 - j))
        a("buffer_store_dwordx4 %s, v1, s[24:27], s%d offen sc1" % (vr(4 + 4 * j, 4), 50 + j))
    a("s_mov_b32 s63, s58")
    a("v_mov_b32 v%d, %d" % (vC, CTL))
    lds_inc(a, vC, 24, C_FI)
    stamp(a, 3)


def spare_phase(a):
    GW = 64
    a.c("---- workgroups without a GEMM tile: router / gate logits, first touch of the weights")
    a.label("L_sp")
    a("s_sub_u32 s36, s2, 192")
    a("s_cmp_ge_u32 s3, 8")
    a("s_cbranch_scc1 L_sp_ffn")
    a("s_cmp_ge_u32 s3, 4")
    a("s_cbranch_scc1 L_sp_hi")
    a("s_load_dwordx2 s[60:61], s[0:1], 32")
    a("s_load_dwordx2 s[62:63], s[0:1], 64")
    a("v_lshrrev_b32 v2, 3, v0")
    a("v_and_b32 v3, 7, v0")
    a("v_lshlrev_b32 v3, 4, v3")
    a("s_lshl_b32 s34, s36, 2")
    a("s_add_u32 s34, s34, s3")
    a("s_lshl_b32 s33, s34, 3")
    a("v_add_u32 v1, s33, v2")
    a("v_mul_u32_u24 v4, 1152, v1")
    a("v_add_u32 v4, v4, v3")
    a("s_mul_i32 s51, s34, %d" % (7 * 128))
    a("s_mul_i32 s52, s34, %d" % (21 * 128))
    a("v_lshlrev_b32 v7, 7, v0")
    a("s_waitcnt lgkmcnt(0)")
    load_tag(a)
    srd(a, 16, 6, 576 * 3456)
    srd(a, 20, 28, 576 * 1152)
    for i in range(9):
        a("global_load_dwordx4 %s, v4, s[4:5] offset:%d" % (vr(8 + 4 * i, 4), 128 * i))
        if i == 0:
            for j in range(9):
                a("global_load_dwordx4 %s, v3, s[60:61] offset:%d" % (vr(44 + 4 * j, 4), 128 * j))
                a("global_load_dwordx4 %s, v3, s[62:63] offset:%d" % (vr(80 + 4 * j, 4), 128 * j))
        else:
            a("s_add_u32 s53, s51, %d" % (1728 * 128 * i))
            a("s_mov_b64 exec, 0x7f")
            a("buffer_load_dword v124, v7, s[16:19], s53 offen")
            a("s_mov_b64 exec, -1")
    a("s_mov_b64 exec, 0x1fffff")
    a("buffer_load_dword v124, v7, s[20:23], s52 offen")
    a("s_mov_b64 exec, -1")
    a("v_mov_b32 v%d, %d" % (vC, CTL))
    a("s_waitcnt lgkmcnt(0)")
    make_tag(a)
    a("s_barrier")
    a("s_waitcnt vmcnt(2)")
    for i in range(36):
        p = 116 + (i & 3)
        a("v_dot2_f32_bf16 v%d, v%d, v%d, %s" % (p, 8 + i, 44 + i, "0" if i < 4 else "v%d" % p))
    a("s_nop 1")
    a("v_pk_add_f32 v[116:117], v[116:117], v[118:119]")
    a("v_add_f32 v5, v116, v117")
    sum8(a, (5,))
    bf16_round(a, 5, 5)
    a("v_ashrrev_i32 v7, 31, v5")
    a("v_or_b32 v7, 0x80000000, v7")
    a("v_xor_b32 v7, v7, v5")
    a("v_and_b32 v7, 0xffff0000, v7")
    a("v_sub_u32 v6, 0x7ff, v1")
    a("v_or_b32 v7, v7, v6")
    a("v_mov_b32 v5, 1")
    a("s_mov_b32 s54, 0x01010101")
    a("s_mov_b32 exec_lo, s54")
    a("s_mov_b32 exec_hi, s54")
    a("ds_max_u32 v%d, v7 offset:%d" % (vC, C_KMAX))
    a("s_mov_b64 exec, 1")
    a("ds_add_rtn_u32 v5, v%d, v5 offset:%d" % (vC, C_KCNT))
    a("ds_read_b32 v7, v%d offset:%d" % (vC, C_KMAX))
    a("s_lshl_b32 s53, s36, 3")
    a("s_add_u32 s53, s53, %d" % L.WS_KEYF)
    a("v_mov_b32 v4, s53")
    a("v_mov_b32 v6, s%d" % TAG)
    a("s_waitcnt lgkmcnt(0)")
    a("v_cmp_eq_u32 vcc, 3, v5")
    a("s_and_b64 exec, exec, vcc")
    a("s_cbranch_execz L_sp_nopub")
    a("global_store_dwordx2 v4, v[6:7], s[8:9] sc1")
    a.label("L_sp_nopub")
    a("s_mov_b64 exec, -1")
    stamp(a, 1)
    a("s_mov_b32 s55, 0x3f803f80")
    for i in range(36):
        x, w, p = 8 + i, 80 + i, 116 + (i & 3)
        t = 44 + 4 * (i & 3)
        a("v_lshlrev_b32 v%d, 16, v%d" % (t, x))
        a("v_and_b32 v%d, 0xffff0000, v%d" % (t + 1, x))
        a("v_lshlrev_b32 v%d, 16, v%d" % (t + 2, w))
        a("v_and_b32 v%d, 0xffff0000, v%d" % (t + 3, w))
        a("v_pk_mul_f32 %s, %s, %s" % (vr(t, 2), vr(t, 2), vr(t + 2, 2)))
        a("v_cvt_pk_bf16_f32 v%d, v%d, v%d" % (t, t, t + 1))
        a("v_dot2_f32_bf16 v%d, v%d, s55, %s" % (p, t, "0" if i < 4 else "v%d" % p))
    a("s_nop 1")
    a("v_pk_add_f32 v[116:117], v[116:117], v[118:119]")
    a("v_add_f32 v6, v116, v117")
    sum8(a, (6,))
    bf16_round(a, 6, 6)
    sigmoid(a, 6, 6)
    bf16_round(a, 6, 6)
    a("v_lshlrev_b32 v1, 2, v1")
    a("v_add_u32 v1, %d, v1" % L.WS_G)
    a("s_mov_b32 exec_lo, s54")
    a("s_mov_b32 exec_hi, s54")
    a("global_store_dword v1, v6, s[8:9] sc1")
    a("s_mov_b64 exec, -1")
    a("s_waitcnt vmcnt(0)")
    lds_inc(a, vC, 5, C_GD)
    if OPT["dtouch"]:
        srd(a, 16, 14, 4608 * 1152)
        a("s_mul_i32 s52, s34, %d" % (162 * 128))
        a("v_lshlrev_b32 v7, 7, v0")
        for k in range(3):
            a("buffer_load_dword v124, v7, s[16:19], s52 offen")
            a("s_add_u32 s52, s52, %d" % (54 * 128))
    a("s_mov_b32 s63, 0")
    stamp(a, 2)
    a("s_branch L_att")

    a.label("L_sp_hi")
    a("s_cmp_eq_u32 s3, 7")
    a("s_cbranch_scc0 L_sp_hi1")
    code_touch(a)
    a.label("L_sp_hi1")
    a("v_mov_b32 v%d, %d" % (vC, CTL))
    a("s_waitcnt lgkmcnt(0)")
    load_tag(a)
    a("s_mov_b32 s63, 0")
    a("s_waitcnt lgkmcnt(0)")
    make_tag(a)
    a("s_barrier")
    a("s_cmp_eq_u32 s3, 4")
    a("s_cbranch_scc1 L_sp_w4")
    a("s_cmp_eq_u32 s3, 5")
    a("s_cbranch_scc0 L_att")
    a("s_lshl_b32 s56, s36, 7")
    a("s_add_u32 s56, s56, %d" % (L.WS_FLAG + F_PA * 128))
    a("v_mov_b32 v9, s56")
    lds_spin(a, "L_sp_x5", vC, C_XS, 10, (1, 4), 4)
    a("ds_read_b64 v[14:15], v%d offset:%d" % (vC, C_IDX))
    a("v_mov_b32 v12, s%d" % TAG)
    a("s_waitcnt lgkmcnt(0)")
    a("v_mov_b32 v13, v14")
    a("v_mov_b32 v14, v15")
    a("s_mov_b64 exec, 1")
    a("global_store_dwordx3 v9, v[12:14], s[8:9] sc1")
    a("s_mov_b64 exec, -1")
    a("s_branch L_att")
    a.label("L_sp_w4")
    for k in range(4):
        a("v_mov_b32 v%d, 0" % (12 + k))
    a("s_cmp_lt_u32 s36, 36")
    a("s_cbranch_scc0 L_sp_nz")
    a("s_lshl_b32 s51, s36, 10")
    a("s_add_u32 s51, s51, %d" % L.WS_YP)
    a("v_lshlrev_b32 v4, 4, v0")
    a("v_add_u32 v4, s51, v4")
    a("global_store_dwordx4 v4, v[12:15], s[8:9] sc1")
    a("s_cmp_eq_u32 s36, 0")
    a("s_cbranch_scc0 L_sp_nz")
    a("v_lshlrev_b32 v4, 7, v0")
    a("v_add_u32 v4, %d, v4" % (L.WS_FLAG + F_Y * 128))
    a("global_store_dword v4, v12, s[8:9] sc1")
    a.label("L_sp_nz")
    a("v_lshlrev_b32 v8, 3, v0")
    a("v_add_u32 v8, %d, v8" % L.WS_KEYF)
    srd(a, 24, 4, 2048 * 1152)
    lds_spin(a, "L_sp_own", vC, C_KCNT, 10, (4,), 2)
    a("s_sleep %d" % OPT["slp0"])
    flag_poll(a, "L_sp_kp", 8, 10, "s%d" % TAG, 64, OPT["slp"], 2)
    a("v_lshlrev_b32 v8, 4, v0")
    stamp(a, 1)
    wave_umax(a, 11, 53)
    a("s_and_b32 s54, s53, 0x7ff")
    a("s_sub_u32 s54, 2047, s54")
    a("s_mul_i32 s55, s54, 1152")
    a("s_mov_b32 m0, %d" % XS)
    a("s_add_u32 s56, s55, 1024")
    a("buffer_load_dwordx4 v8, s[24:27], s55 offen lds")
    a("s_mov_b32 m0, %d" % (XS + 1024))
    a("s_mov_b64 exec, 0xff")
    a("buffer_load_dwordx4 v8, s[24:27], s56 offen lds")
    a("s_mov_b64 exec, -1")
    a("s_and_b32 s55, s53, 0xffff0000")
    a("s_xor_b32 s56, s55, 0x80000000")
    a("s_xor_b32 s57, s55, 0xffff0000")
    a("s_bitcmp1_b32 s55, 31")
    a("s_cselect_b32 s55, s56, s57")
    a("v_mov_b32 v12, s55")
    sigmoid(a, 13, 12)
    bf16_round(a, 13, 13)
    a("v_mov_b32 v12, s54")
    a("ds_write_b64 v%d, v[12:13] offset:%d" % (vC, C_IDX))
    a("v_mov_b32 v12, 1")
    a("s_waitcnt vmcnt(0)")
    a("ds_write_b32 v%d, v12 offset:%d" % (vC, C_XS))
    stamp(a, 2)
    a("s_branch L_att")

    a.c("---- gate / up projections of the routed token")
    a.label("L_sp_ffn")
    a("s_load_dwordx4 s[40:43], s[0:1], 40")
    a("v_mov_b32 v3, %d" % CTL)
    for k in range(4):
        a("v_mov_b32 v%d, 0" % (4 + k))
    a("v_lshlrev_b32 v1, 4, v0")
    a("v_add_u32 v2, v1, v3")
    a("s_mov_b64 exec, 0xff")
    a("ds_write_b128 v2, v[4:7]")
    a("s_mov_b64 exec, -1")
    a("v_lshlrev_b32 v2, 2, v0")
    a("v_add_u32 v2, %d, v2" % (XS + 1152))
    a("ds_write_b32 v2, v4")
    a("s_sub_u32 s59, s3, 8")
    a("s_mul_i32 s37, s36, 57")
    a("s_lshr_b32 s37, s37, 9")
    a("s_mul_i32 s38, s37, 9")
    a("s_sub_u32 s38, s36, s38")
    a("s_mul_i32 s49, s37, 84")
    a("s_mul_i32 s39, s49, 9216")
    a("s_lshl_b32 s48, s38, 10")
    a("s_add_u32 s39, s39, s48")
    a("s_sub_u32 s48, %d, s39" % (576 * 9216))
    a("s_min_i32 s48, s48, %d" % (83 * 9216 + 1024))
    a("s_max_i32 s48, s48, 0")
    a("v_lshrrev_b32 v160, 5, v0")
    a("v_mul_u32_u24 v160, 9216, v160")
    a("v_and_b32 v161, 31, v0")
    a("v_lshl_add_u32 v160, v161, 4, v160")
    a("s_mul_i32 s57, s59, 20480")
    a("s_add_u32 s57, s57, %d" % WO)
    a("s_mul_i32 s58, s59, %d" % (2 * 9216))
    a("s_waitcnt lgkmcnt(0)")
    load_tag(a)
    srd_off(a, 16, 40, "s39", "s48")
    srd_off(a, 20, 42, "s39", "s48")
    a("s_waitcnt lgkmcnt(0)")
    make_tag(a)
    a("s_barrier")
    if OPT["fdel"]:
        lds_spin(a, "L_sp_fd", 3, C_KCNT, 10, (4,), 2)
        if OPT["fdel"] > 1:
            a("s_sleep %d" % OPT["fdel"])
    for i in range(5):
        a("s_add_u32 s55, s58, %d" % (8 * (6 + i) * 9216))
        a("s_add_u32 s56, s55, 512")
        for k in range(4):
            a("s_add_u32 m0, s57, %d" % ((4 * i + k) * 1024))
            a("buffer_load_dwordx4 v160, s[%d:%d], s%d offen nt lds" % (16 + 4 * (k >> 1), 19 + 4 * (k >> 1), 55 + (k & 1)))
            if OPT["thr"] and 4 * i + k >= OPT["thr"] - 1:
                a("s_waitcnt vmcnt(%d)" % (OPT["thr"] - 1))
    for i in range(6):
        a("s_add_u32 s55, s58, %d" % (8 * i * 9216))
        for k in range(4):
            a("buffer_load_dwordx4 %s, v160, s[%d:%d], s55 offen offset:%d nt" % (
                vr(GW + 16 * i + 4 * k, 4), 16 + 4 * (k >> 1), 19 + 4 * (k >> 1), 512 * (k & 1)))
            if OPT["thr"]:
                a("s_waitcnt vmcnt(%d)" % (OPT["thr"] - 1))
    a("s_lshl_b32 s55, s59, 1")
    a("s_add_u32 s55, s55, s49")
    a("v_lshrrev_b32 v51, 5, v0")
    a("v_add_u32 v51, s55, v51")
    a("v_lshlrev_b32 v51, 1, v51")
    a("v_add_u32 v51, %d, v51" % XS)
    a("v_and_b32 v2, 1, v0")
    a("v_lshlrev_b32 v2, 4, v2")
    a("v_lshrrev_b32 v4, 1, v0")
    a("v_xor_b32 v4, v4, v0")
    a("v_and_b32 v4, 8, v4")
    a("v_bfe_u32 v5, v0, 1, 2")
    a("v_or_b32 v4, v4, v5")
    for q in range(4):
        a("v_cmp_eq_u32 s[%d:%d], %d, v4" % (40 + 2 * q, 41 + 2 * q, q))
    a("v_bfe_u32 v4, v0, 3, 1")
    a("v_lshlrev_b32 v4, 9, v4")
    a("v_lshrrev_b32 v5, 4, v0")
    a("v_lshl_add_u32 v4, v5, 7, v4")
    a("v_and_b32 v5, 7, v0")
    a("v_lshl_add_u32 v4, v5, 2, v4")
    a("v_add_u32 v6, s57, v4")
    a("v_add_u32 v52, s57, v1")
    a("s_lshl_b32 s55, s59, 9")
    a("v_lshlrev_b32 v8, 3, v0")
    a("v_add_u32 v8, s55, v8")
    a("s_mul_i32 s52, s37, %d" % (4608 * 16))
    a("s_lshl_b32 s55, s38, 13")
    a("s_add_u32 s52, s52, s55")
    a("s_add_u32 s52, s52, %d" % L.WS_PA)
    a("v_lshlrev_b32 v9, 2, v8")
    a("v_add_u32 v9, s52, v9")
    a("v_add_u32 v8, %d, v8" % WO)
    stamp(a, 3)
    lds_spin(a, "L_sp_xs", 3, C_XS, 10, (1,), 2)
    a("s_setprio %d" % OPT["pr2"])
    stamp(a, 7)
    for i in range(11):
        a("ds_read_u16 v%d, v51 offset:%d" % (53 + i, 16 * i))
    a("s_waitcnt vmcnt(24)")
    for k in range(4):
        a("ds_read_b128 %s, v52 offset:%d" % (vr(32 + 4 * k, 4), 1024 * k))
    a("s_waitcnt lgkmcnt(4)")
    for i in range(11):
        a("v_lshlrev_b32 v%d, v2, v%d" % (53 + i, 53 + i))
    first = True
    for i in range(5):
        selector(a, 12, 53 + 6 + i, 40)
        for k in range(4):
            d = vr(16 + 4 * k, 4)
            a("s_waitcnt lgkmcnt(%d)" % (3 if i < 4 else 3 - k))
            a("v_mfma_f32_16x16x32_bf16 %s, %s, v[12:15], %s" % (d, vr(32 + 4 * k, 4), "0" if first else d))
            if i < 4:
                a("ds_read_b128 %s, v52 offset:%d" % (vr(32 + 4 * k, 4), 1024 * (4 * (i + 1) + k)))
        first = False
    stamp(a, 12)
    for i in range(6):
        selector(a, 12, 53 + i, 40)
        a("s_waitcnt vmcnt(%d)" % (4 * (5 - i)))
        for k in range(4):
            d = vr(16 + 4 * k, 4)
            a("v_mfma_f32_16x16x32_bf16 %s, %s, v[12:15], %s" % (d, vr(GW + 16 * i + 4 * k, 4), d))
    stamp(a, 11)
    for k in range(4):
        for r in range(4):
            a("ds_write_b32 v6, v%d offset:%d" % (16 + 4 * k + r, 1024 * k + 32 * r))
    lds_inc(a, 3, 10, C_RED)
    lds_spin(a, "L_sp_rd", 3, C_RED, 10, (4,), 0)
    for p in range(4):
        a("ds_read_b64 %s, v8 offset:%d" % (vr(16 + 4 * p, 2), 20480 * p))
        a("ds_read_b64 %s, v8 offset:%d" % (vr(18 + 4 * p, 2), 20480 * p + 2048))
    a("v_mov_b32 v34, s%d" % TAG)
    a("v_mov_b32 v38, s%d" % TAG)
    a("s_waitcnt lgkmcnt(0)")
    lds_inc(a, 3, 10, C_RED2)
    for p in (2, 1):
        for h in range(2 * p):
            a("v_pk_add_f32 %s, %s, %s" % (vr(16 + 2 * h, 2), vr(16 + 2 * h, 2), vr(16 + 4 * p + 2 * h, 2)))
    a("v_mov_b32 v32, v16")
    a("v_mov_b32 v33, v18")
    a("v_mov_b32 v36, v17")
    a("v_mov_b32 v37, v19")
    a("s_cmp_eq_u32 s36, 63")
    a("s_cbranch_scc1 L_sp_nost")
    a("global_store_dwordx4 v9, v[32:35], s[8:9] sc1")
    a("global_store_dwordx4 v9, v[36:39], s[8:9] offset:16 sc1")
    a.label("L_sp_nost")
    stamp(a, 4)
    lds_spin(a, "L_sp_r2", 3, C_RED2, 10, (4,), 0)
    a("s_branch L_help2")


def attn_loop(a):
    for i in range(9):
        if OPT["bal"] and i == 0:
            a("s_cmp_lt_u32 s3, 4")
            a("s_cbranch_scc1 L_bal0")
            a("s_setprio 1")
            a.label("L_bal0")
        if OPT["bal"] and i == OPT["bal"]:
            a("s_setprio 0")
        a.label("L_it%d" % i)
        S, P = SS[i & 1], PP[i & 1]
        ex = ["v_exp_f32 v%d, v%d" % (S + r, S + r) for r in range(16)]
        cv = ["v_cvt_pk_bf16_f32 v%d, v%d, v%d" % (P + q, S + 2 * q, S + 2 * q + 1) for q in range(8)]
        if i == 0:
            mk = ["v_bfi_b32 v%d, v%d, 0, v%d" % (P + q, MSK + q, P + q) for q in range(8)]
        elif i == 8:
            mk = ["v_and_b32 v%d, v%d, v%d" % (P + q, MSK + q, P + q) for q in range(8)]
        else:
            mk = []
        m1 = qk(i + 1) if i < 8 else []
        m2 = pv(i - 1, i == 1) if i > 0 else []
        a("s_waitcnt lgkmcnt(%d)" % (4 if 0 < i < 8 else 0))
        seq = m1[:1] + ex[0:4] + m1[1:] + (k_reads(i + 2) if i + 2 <= 8 else []) + ex[4:8] + cv[0:2] + m2[:1] + \
            ex[8:12] + cv[2:4] + m2[1:]
        if i + 1 <= 8:
            seq += ["v_add_u32 v%d, v%d, v%d" % (vV, vV, vStep)] + v_reads(i + 1)
        seq += ex[12:16] + cv[4:8] + mk
        for x in seq:
            a(x)
    lds_spin(a, "L_pz", vC, C_C, T, (1,), 0)
    for x in pv(8, False):
        a(x)


def attention_phase(a):
    a.c("---- attention: set-up, wait for the producers, K/V/Q into LDS")
    a.label("L_att")
    decode2(a)
    a("s_mul_i32 s33, s31, %d" % L.PAIR_BYTES)
    a("s_mul_i32 s34, s32, 9216")
    a("s_add_u32 s33, s33, s34")
    a("v_mov_b32 v%d, %d" % (vC, CTL))
    KS, VS = 16 * L.PAIR_BYTES - 18432, 32 * L.PAIR_BYTES - 18432
    grp = [(QB, 0), (KB, KS), (VB, VS), (KB + 9216, KS + 9216), (VB + 9216, VS + 9216), (KB + 18432, KS + 18432), (VB + 18432, VS + 18432)]
    a("s_lshl_b32 s34, s3, 10")
    for j in range(8):
        lo, hi = (8 * j) // 9, min(8 * j + 7, 62) // 9
        l0, g0 = grp[lo][0] + (8 * j - 9 * lo) * 1024, grp[lo][1] + (8 * j - 9 * lo) * 1024
        l1, g1 = grp[hi][0] + (8 * j - 9 * hi) * 1024, grp[hi][1] + (8 * j - 9 * hi) * 1024
        if j == 7:
            a("s_min_u32 s34, s34, %d" % (6 * 1024))
        if lo == hi:
            a("s_add_u32 s%d, s34, %d" % (16 + j, l0))
            a("s_add_u32 s%d, s33, %d" % (44 + j, g0 - l0 & 0xffffffff))
        else:
            a("s_mov_b32 s35, %d" % l0)
            a("s_mov_b32 s36, %d" % (g0 - l0 & 0xffffffff))
            a("s_cmp_ge_u32 s3, %d" % (9 * hi - 8 * j))
            a("s_cselect_b32 s35, %d, s35" % (l1 & 0xffffffff))
            a("s_cselect_b32 s36, %d, s36" % (g1 - l1 & 0xffffffff))
            a("s_add_u32 s%d, s34, s35" % (16 + j))
            a("s_add_u32 s%d, s33, s36" % (44 + j))
        a("s_add_u32 s%d, s%d, s%d" % (44 + j, 44 + j, 16 + j))
    a("v_mov_b32 v10, s63")
    a("v_mov_b32 v11, s%d" % TAG)
    a("s_waitcnt vmcnt(0)")
    lds_inc(a, vC, 9, C_1, rtn=True)
    a("s_cmp_lg_u32 s63, 0")
    a("s_cselect_b32 s35, 7, 99")
    a("s_waitcnt lgkmcnt(0)")
    a("v_readfirstlane_b32 s36, v9")
    a("s_cmp_eq_u32 s36, s35")
    a("s_cbranch_scc0 L_nofl1")
    a("s_mov_b64 exec, 1")
    a("global_store_dword v10, v11, s[8:9] sc1")
    a("s_mov_b64 exec, -1")
    a.label("L_nofl1")
    stamp(a, 4)
    a("s_and_b32 s42, s3, 1")
    a("s_lshr_b32 s43, s3, 1")
    a("s_mul_i32 s35, s43, 2304")
    a("s_mul_i32 s36, s42, 40")
    a("v_and_b32 v%d, 31, v0" % T)
    a("v_lshrrev_b32 v%d, 5, v0" % (T + 1))
    a("v_mul_u32_u24 v%d, 72, v%d" % (vKt, T))
    a("v_add_u32 v%d, s35, v%d" % (vKt, vKt))
    a("v_lshl_add_u32 v%d, v%d, 4, v%d" % (vK, T + 1, vKt))
    a("v_add_u32 v%d, s36, v%d" % (vK, vK))
    a("v_add_u32 v%d, 32, v%d" % (vKt, vKt))
    a("v_bfe_u32 v%d, v0, 2, 2" % (T + 2))
    a("v_lshl_add_u32 v%d, v%d, 2, v%d" % (T + 2, T + 1, T + 2))
    a("v_mul_u32_u24 v%d, 72, v%d" % (T + 2, T + 2))
    a("s_add_u32 s37, s35, %d" % VB)
    a("v_add_u32 v%d, s37, v%d" % (T + 2, T + 2))
    a("v_and_b32 v%d, 3, v0" % (T + 3))
    a("v_lshlrev_b32 v%d, 3, v%d" % (T + 4, T + 3))
    a("v_add_u32 v%d, s36, v%d" % (T + 4, T + 4))
    a("v_and_b32 v%d, 16, v0" % (T + 5))
    a("v_cmp_eq_u32 s[38:39], 0, v%d" % (T + 5))
    a("v_cndmask_b32 v%d, 32, v%d, s[38:39]" % (T + 4, T + 4))
    a("v_add_u32 v%d, v%d, v%d" % (vV, T + 2, T + 4))
    a("v_and_b32 v%d, 19, v0" % (T + 5))
    a("v_cmp_lt_u32 s[38:39], 16, v%d" % (T + 5))
    a("v_mov_b32 v%d, %d" % (T + 6, ONES))
    a("v_cndmask_b32 v%d, v%d, v%d, s[38:39]" % (vV, vV, T + 6))
    a("v_mov_b32 v%d, 2304" % (T + 6))
    a("v_cndmask_b32 v%d, v%d, 0, s[38:39]" % (vStep, T + 6))
    a("v_lshlrev_b32 v%d, 2, v%d" % (T + 2, T + 1))
    a("v_sub_u32 v%d, v%d, v%d" % (T + 2, T, T + 2))
    a("v_mov_b32 v%d, 0xffff" % (T + 3))
    for q in range(8):
        kl = 8 * (q >> 1) + 2 * (q & 1)
        a("v_cmp_le_i32 s[38:39], %d, v%d" % (kl, T + 2))
        a("v_cmp_le_i32 s[40:41], %d, v%d" % (kl + 1, T + 2))
        a("v_cndmask_b32 v%d, 0, v%d, s[38:39]" % (MSK + q, T + 3))
        a("v_cndmask_b32 v%d, v%d, -1, s[40:41]" % (MSK + q, MSK + q))
    a("s_lshl_b32 s41, s32, 2")
    a("s_add_u32 s41, s41, s43")
    a("s_sub_i32 s41, 8, s41")
    a("s_lshl_b32 s35, s32, 3")
    a("s_lshl_b32 s36, s43, 1")
    a("s_add_u32 s35, s35, s36")
    a("s_mul_i32 s35, s35, 18432")
    a("s_lshl_b32 s58, s31, 10")
    a("s_lshl_b32 s36, s42, 9")
    a("s_add_u32 s58, s58, s36")
    a("s_add_u32 s58, s58, s35")
    a("s_lshr_b32 s59, s31, 1")
    a("s_lshl_b32 s59, s59, 8")
    a("s_and_b32 s36, s31, 1")
    a("s_lshl_b32 s36, s36, 3")
    a("s_add_u32 s59, s59, s36")
    a("s_lshl_b32 s36, s42, 2")
    a("s_add_u32 s59, s59, s36")
    a("s_add_u32 s59, s59, s35")
    a("s_add_u32 s59, s59, 16384")
    a("v_bfe_u32 v152, v0, 4, 1")
    a("v_mul_u32_u24 v152, 18432, v152")
    a("v_and_b32 v153, 15, v0")
    a("v_lshl_add_u32 v152, v153, 4, v152")
    a("v_lshrrev_b32 v153, 5, v0")
    a("v_lshl_add_u32 v153, v153, 8, v152")
    a("v_cmp_gt_u32 vcc, 32, v0")
    a("s_cmp_eq_u32 s42, 0")
    a("s_cselect_b64 s[54:55], vcc, 0")
    a("s_cselect_b64 s[56:57], 0, vcc")
    a("v_and_b32 v%d, 3, v0" % (T + 2))
    a("v_mul_u32_u24 v%d, 576, v%d" % (T + 2, T + 2))
    a("v_mov_b32 v%d, 0x3f803f80" % (T + 4))
    a("v_mov_b32 v%d, v%d" % (T + 5, T + 4))
    a("v_lshlrev_b32 v%d, 4, v0" % (T + 3))
    srd_off(a, 36, 8, L.WS_QKV, L.QKV_BYTES)
    srd_off(a, 24, 8, L.WS_O, 128 * 18432)
    a("s_add_u32 s40, s3, 2")
    a("s_cmp_lt_u32 s3, 4")
    a("s_cselect_b32 s40, s3, s40")
    out_setup(a, 40)
    a("s_lshr_b32 s35, s2, 6")
    a("s_lshl_b32 s35, s35, 4")
    a("s_add_u32 s35, s35, s3")
    a("s_cmp_eq_u32 s35, %d" % (3 * 16 + 6))
    a("s_cbranch_scc0 L_nq2")
    lds_spin(a, "L_sp_x6", vC, C_XS, T + 8, (1,), 8)
    qpoll(a, vC, "L_qp2", False, T + 8)
    a.label("L_nq2")
    lds_spin(a, "L_go1", vC, C_1, T, (8, 1), OPT["g1s"])
    stamp(a, 5)
    for j in range(8):
        a("s_mov_b32 m0, s%d" % (16 + j))
        a("s_nop 0")
        a("buffer_load_dwordx4 v%d, s[36:39], s%d offen %s lds" % (T + 3, 44 + j, OPT["kvl"]))
    a("ds_write_b64 v%d, %s offset:%d" % (T + 2, vr(T + 4, 2), ONES))
    a("s_cmp_lt_u32 s32, 2")
    a("s_cbranch_scc1 L_late")
    landed(a, 1, 0)
    stage_spin(a, "L_sA", 0)
    stamp(a, 6)
    for x in q_reads() + k_reads(0) + k_reads(1) + v_reads(0):
        a(x)
    a("s_waitcnt lgkmcnt(7)")
    a("v_cndmask_b32 v%d, 0, v%d, s[54:55]" % (QT, QT))
    a("v_cndmask_b32 v%d, 0, v%d, s[56:57]" % (QT + 1, QT + 1))
    for x in qk(0):
        a(x)
    lds_inc(a, vC, T, C_B)
    x_loads(a)
    attn_loop(a)
    a.c("---- softmax range check; true-max path if it fails")
    a.label("L_check")
    stamp(a, 7)
    a("s_mov_b32 s46, %s" % f32(2.0 ** 60))
    a("s_mov_b32 s47, %s" % f32(2.0 ** -60))
    a("s_mov_b32 s48, 0x7f800000")
    a("s_nop 7")
    a("s_nop 0")
    a("v_rcp_f32 v%d, v%d" % (T, OO + 12))
    a("v_cmp_gt_f32 s[50:51], s46, v%d" % (OO + 12))
    a("v_cmp_lt_f32 vcc, s47, v%d" % (OO + 12))
    for k in range(6):
        a("v_add_f32 v%d, abs(v%d), abs(v%d)" % (T + 2 + k, OO + 2 * k, OO + 2 * k + 1))
    a("s_and_b64 s[50:51], s[50:51], vcc")
    a("v_pk_add_f32 %s, %s, %s" % (vr(T + 2, 2), vr(T + 2, 2), vr(T + 4, 2)))
    a("v_pk_add_f32 %s, %s, %s" % (vr(T + 2, 2), vr(T + 2, 2), vr(T + 6, 2)))
    a("v_add_f32 v%d, v%d, v%d" % (T + 2, T + 2, T + 3))
    a("v_cmp_gt_f32 vcc, s48, v%d" % (T + 2))
    a("s_and_b64 s[50:51], s[50:51], vcc")
    a("s_cmp_eq_u64 s[50:51], -1")
    a("s_cbranch_scc0 L_slow")
    a.label("L_fin")
    a("s_cmp_eq_u32 s42, 0")
    a("s_cbranch_scc1 L_fa")
    a("v_mov_b32 v%d, v%d" % (OO + 8, OO + 10))
    a("v_mov_b32 v%d, v%d" % (OO + 9, OO + 11))
    a.label("L_fa")
    for k in range(0, 10, 2):
        a("v_pk_mul_f32 %s, %s, %s op_sel_hi:[1,0]" % (vr(OO + k, 2), vr(OO + k, 2), vr(T, 2)))
    for q in range(5):
        a("v_cvt_pk_bf16_f32 v%d, v%d, v%d" % (T + 4 + q, OO + 2 * q, OO + 2 * q + 1))
    a("buffer_store_dwordx4 %s, v153, s[24:27], s58 offen sc1" % vr(T + 4, 4))
    a("s_mov_b32 exec_hi, 0")
    a("buffer_store_dword v%d, v152, s[24:27], s59 offen sc1" % (T + 8))
    a("s_mov_b32 exec_hi, -1")


def q_reads():
    return ["ds_read_b64 %s, v%d offset:%d" % (vr(QM, 2), vK, QB),
            "ds_read_b64 %s, v%d offset:%d" % (vr(QM + 2, 2), vK, QB + 8),
            "ds_read_b64 %s, v%d offset:%d" % (vr(QT, 2), vKt, QB)]


sKH, sPAIR, sTILE, sGATE, sSLOT, sOB, sXO = 6, 7, 13, 14, 15, 28, 29
A0, vXO, vRW, vCH, vSW, vSR, vL16, vPX, vPF = 156, 142, 140, 141, 143, 144, 162, 160, 161
GB = 154624


def out_setup(a, role):
    a("s_and_b32 s%d, s%d, 1" % (sKH, role))
    a("s_lshr_b32 s%d, s%d, 1" % (sPAIR, role))
    a("s_mul_i32 s%d, s52, 5" % sTILE)
    a("s_and_b32 s33, s%d, 7" % sTILE)
    a("s_sub_u32 s34, 8, s33")
    a("s_cmp_lt_u32 s33, 4")
    a("s_cselect_b32 s34, 0, s34")
    a("s_add_u32 s34, s34, s%d" % sPAIR)
    a("s_sub_u32 s35, s34, 5")
    a("s_cmp_ge_u32 s34, 5")
    a("s_cselect_b32 s34, s35, s34")
    a("s_add_u32 s%d, s%d, s34" % (sTILE, sTILE))
    a("s_lshl_b32 s98, s34, 6")
    a("s_mov_b32 s%d, 0x404" % sGATE)
    a("s_bitcmp1_b32 s%d, 2" % sTILE)
    if not OPT["allg"]:
        a("s_cselect_b32 s%d, s%d, 4" % (sGATE, sGATE))
    a("s_mov_b32 s%d, %d" % (sSLOT, PSLOT[0]))
    for p in range(1, 5):
        a("s_cmp_eq_u32 s%d, %d" % (sPAIR, p))
        a("s_cselect_b32 s%d, %d, s%d" % (sSLOT, PSLOT[p], sSLOT))
    a("s_mul_i32 s%d, s%d, 18432" % (sOB, sTILE))
    a("s_lshl_b32 s33, s53, 7")
    a("s_add_u32 s%d, s%d, s33" % (sXO, sOB))
    a("s_lshl_b32 s33, s%d, 6" % sKH)
    a("s_add_u32 s%d, s%d, s33" % (sXO, sXO))
    a("s_mul_i32 s33, s%d, 9216" % sKH)
    a("s_add_u32 s%d, s%d, s33" % (sOB, sOB))
    a("s_add_u32 s96, s%d, 4096" % sOB)
    a("s_add_u32 s97, s%d, 8192" % sOB)
    a("v_lshrrev_b32 v%d, 2, v0" % vRW)
    a("v_and_b32 v%d, 3, v0" % vCH)
    a("v_mul_u32_u24 v%d, 1152, v%d" % (vXO, vRW))
    a("v_lshl_add_u32 v%d, v%d, 4, v%d" % (vXO, vCH, vXO))
    a("v_lshrrev_b32 v146, 2, v0")
    a("v_bfe_u32 v147, v0, 3, 2")
    a("v_lshlrev_b32 v147, 1, v147")
    a("v_bfe_u32 v148, v0, 1, 1")
    a("v_xor_b32 v147, v147, v148")
    a("v_and_b32 v148, 1, v0")
    a("v_lshlrev_b32 v148, 3, v148")
    a("v_lshl_add_u32 v148, v146, 7, v148")
    a("v_lshl_add_u32 v148, v147, 4, v148")
    a("s_mul_i32 s33, s%d, %d" % (sKH, 9 * 4096))
    a("s_add_u32 s33, s33, %d" % WO)
    a("s_lshl_b32 s34, s%d, 6" % sKH)
    a("v_xor_b32 v148, s34, v148")
    for t in range(4):
        a("v_xor_b32 v%d, %d, v148" % (A0 + t, 32 * t))
        a("v_add_u32 v%d, s33, v%d" % (A0 + t, A0 + t))
    a("v_lshlrev_b32 v%d, 4, v0" % vL16)
    a("s_lshl_b32 s33, s%d, 11" % sKH)
    a("s_add_u32 s%d, s%d, s33" % (sSLOT, sSLOT))
    a("v_add_u32 v%d, s%d, v%d" % (vPX, sSLOT, vL16))
    a("s_lshl_b32 s33, s33, 1")
    a("s_sub_u32 s33, 2048, s33")
    a("v_add_u32 v164, s33, v%d" % vPX)
    a("s_lshl_b32 s33, s%d, 1" % sPAIR)
    a("s_add_u32 s33, s33, s%d" % sKH)
    a("s_lshl_b32 s33, s33, 2")
    a("s_add_u32 s33, s33, %d" % CTL)
    a("v_mov_b32 v%d, s33" % vPF)
    a("v_xor_b32 v165, 4, v%d" % vPF)
    a("v_and_b32 v%d, 15, v0" % vSW)
    a("v_mul_u32_u24 v%d, 80, v%d" % (vSW, vSW))
    a("v_lshrrev_b32 v146, 4, v0")
    a("v_lshlrev_b32 v146, 3, v146")
    a("v_add3_u32 v%d, v%d, v146, s%d" % (vSW, vSW, sSLOT))
    a("v_mul_u32_u24 v%d, 80, v%d" % (vSR, vRW))
    a("v_lshl_add_u32 v%d, v%d, 4, v%d" % (vSR, vCH, vSR))
    a("v_add_u32 v%d, s%d, v%d" % (vSR, sSLOT, vSR))
    a("s_add_u32 s98, s98, %d" % GB)
    a("v_lshl_add_u32 v145, v%d, 2, s98" % vRW)
    a("s_cmp_lt_u32 s3, 4")
    a("s_cselect_b32 s33, 1, 0x100")
    a("v_mov_b32 v163, s33")


def x_loads(a):
    srd(a, 20, 4, 2048 * 1152)
    a("buffer_load_dwordx4 %s, v%d, s[20:23], s%d offen" % (vr(XR, 4), vXO, sXO))


def out_phase(a):
    WFR, OF, ACC, PX = (20, 36, 100), 64, (52, 56, 60, 116), (146, 120)
    a("s_cmp_ge_u32 s52, 26")
    a("s_cbranch_scc1 L_end")
    if not OPT["gissue"]:
        a("s_waitcnt vmcnt(0)")
    stamp(a, 8)
    a("s_mov_b64 exec, 1")
    a("ds_add_u32 v%d, v163 offset:%d" % (vC, C_O))
    a("s_mov_b64 exec, -1")
    a.c("---- output projection and gated mix")
    a.label("L_out")

    def omx():
        for j in range(1):
            for q in range(4):
                xv = XR + 4 * j + q
                d = PX[j] + 2 * q
                a("v_lshlrev_b32 v%d, 16, v%d" % (d, xv))
                a("v_and_b32 v%d, 0xffff0000, v%d" % (d + 1, xv))
                a("v_pk_mul_f32 %s, %s, %s op_sel:[0,1] op_sel_hi:[1,1]" % (vr(d, 2), vr(d, 2), vr(GR + 2 * j, 2)))

    def reads(sl):
        st = WFR[sl % 3]
        return ["ds_read_b64_tr_b16 %s, v%d offset:%d" % (vr(st + 4 * t + 2 * sec, 2), A0 + t, (32 * sl + 16 * sec) * 128)
                for t in range(4) for sec in range(2)]

    lds_spin(a, "L_wo", vC, C_WO, 10, (2,), 0)
    for x in reads(0) + reads(1):
        a(x)
    a("s_mov_b32 s60, 0x200000")
    a.label("L_go2")
    a("ds_read_b64 v[10:11], v%d offset:%d" % (vC, C_O))
    a("s_waitcnt lgkmcnt(0)")
    a("v_readfirstlane_b32 s61, v10")
    a("v_readfirstlane_b32 s62, v11")
    a("s_and_b32 s61, s61, s%d" % sGATE)
    a("s_cmp_eq_u32 s61, s%d" % sGATE)
    a("s_cselect_b32 s62, s62, 0")
    a("s_cmp_eq_u32 s62, 1")
    a("s_cbranch_scc1 L_go2_d")
    a("s_sub_u32 s60, s60, 1")
    a("s_cbranch_scc0 L_go2")
    a.label("L_go2_d")
    if OPT["gissue"] == 2:
        a("s_cmp_eq_u32 s60, 0x200000")
        a("s_cbranch_scc1 L_go2_e")
        a("s_sleep %d" % OPT["cdel"])
        a.label("L_go2_e")
        a("s_waitcnt vmcnt(0)")
    elif OPT["cdel"]:
        a("s_sleep %d" % OPT["cdel"])
    stamp(a, 9)
    LAO = OPT["lao"]

    def oload(s):
        a("buffer_load_dwordx4 %s, v%d, s[24:27], s%d offen offset:%d sc1" % (vr(OF + 4 * s, 4), vL16, (sOB, 96, 97)[s // 4], 1024 * (s % 4)))

    def ocheck(sl):
        b = OF + 4 * sl
        if sl < 7:
            a("v_cmp_eq_u32 vcc, -1, v%d" % b)
        else:
            a("v_max3_u32 v10, v%d, v%d, v%d" % (b, b + 1, b + 2))
            a("v_max_u32 v10, v10, v%d" % (b + 3))
            a("v_cmp_eq_u32 vcc, -1, v10")
        a("s_nop 1")

    def oretry():
        for sl in range(9):
            a.label("L_or%d" % sl)
            a("s_sub_u32 s60, s60, 1")
            a("s_cbranch_scc1 L_ok%d" % sl)
            a("s_waitcnt vmcnt(0)")
            for s in range(sl, min(sl + LAO, 9)):
                oload(s)
            a("s_waitcnt vmcnt(%d)" % min(LAO - 1, 8 - sl))
            a("s_branch L_oc%d" % sl)

    RETRY.append(oretry)
    a("s_mov_b32 s60, 0x8000")
    for s in range(LAO):
        oload(s)
    a("ds_read_b32 v%d, v145" % GR)
    a("ds_read_b32 v10, v%d offset:%d" % (vC, C_IDX))
    srd(a, 20, 10, 2048 * 1152)
    a("s_waitcnt lgkmcnt(0) vmcnt(%d)" % LAO)
    a("v_readfirstlane_b32 s12, v10")
    a("v_sub_f32 v%d, 1.0, v%d" % (GR + 1, GR))
    bf16_round(a, GR + 1, GR + 1)
    omx()
    for sl in range(9):
        rd = reads(sl + 2) if sl < 7 else []
        a("s_waitcnt vmcnt(%d) lgkmcnt(%d)" % (min(LAO - 1, 8 - sl), 8 if sl < 8 else 0))
        a.label("L_oc%d" % sl)
        ocheck(sl)
        a("s_cbranch_vccnz L_or%d" % sl)
        a.label("L_ok%d" % sl)
        for t in range(4):
            d = vr(ACC[t], 4)
            a("v_mfma_f32_16x16x32_bf16 %s, %s, %s, %s" % (d, vr(WFR[sl % 3] + 4 * t, 4), vr(OF + 4 * sl, 4), "0" if sl == 0 else d))
            if t == 0 and sl + LAO < 9:
                oload(sl + LAO)
            for x in rd[2 * t:2 * t + 2]:
                a(x)
    stamp(a, 10)
    if OPT["stamp"]:
        a("s_sub_u32 s94, 0x8000, s60")
        a("s_mul_i32 s94, s94, 100")
        a("s_add_u32 s94, s94, s66")
        a("s_addc_u32 s95, s67, 0")
    a("v_mov_b32 v10, 1")
    a("ds_write_b128 v164, %s" % vr(ACC[2], 4))
    a("ds_write_b128 v164, %s offset:1024" % vr(ACC[3], 4))
    a("ds_write_b32 v165, v10 offset:%d" % C_PART)
    a("s_lshr_b32 s46, s12, 4")
    a("s_cmp_eq_u32 s46, s%d" % sTILE)
    a("s_cbranch_scc0 L_noy")
    lds_spin(a, "L_yw", vC, C_YRDY, 10, (1,))
    a("s_lshl_b32 s46, s%d, 7" % sKH)
    a("s_add_u32 s46, s46, %d" % YB)
    a("v_lshl_add_u32 v10, v%d, 5, s46" % vCH)
    a("ds_read_b128 v[12:15], v10")
    a("ds_read_b128 v[16:19], v10 offset:16")
    a("s_and_b32 s46, s12, 15")
    a("v_cmp_eq_u32 s[50:51], s46, v%d" % vRW)
    a("s_waitcnt lgkmcnt(0)")
    for q in range(4):
        xv = XR + q
        a("v_lshlrev_b32 v10, 16, v%d" % xv)
        a("v_and_b32 v11, 0xffff0000, v%d" % xv)
        a("v_add_f32 v10, v10, v%d" % (12 + 2 * q))
        a("v_add_f32 v11, v11, v%d" % (13 + 2 * q))
        a("v_cvt_pk_bf16_f32 v10, v10, v11")
        a("v_cndmask_b32 v%d, v%d, v10, s[50:51]" % (xv, xv))
    omx()
    a.label("L_noy")
    lds_spin(a, "L_pw", vPF, C_PART, 10, (1,), 0)
    stamp(a, 11)
    for t in range(2):
        a("ds_read_b128 %s, v%d offset:%d" % (vr(20 + 4 * t, 4), vPX, 1024 * t))
    a("s_waitcnt lgkmcnt(0)")
    for t in range(2):
        b = ACC[t]
        a("v_pk_add_f32 %s, %s, %s" % (vr(b, 2), vr(b, 2), vr(20 + 4 * t, 2)))
        a("v_pk_add_f32 %s, %s, %s" % (vr(b + 2, 2), vr(b + 2, 2), vr(22 + 4 * t, 2)))
        a("v_cvt_pk_bf16_f32 v%d, v%d, v%d" % (40 + 2 * t, b, b + 1))
        a("v_cvt_pk_bf16_f32 v%d, v%d, v%d" % (41 + 2 * t, b + 2, b + 3))
        a("ds_write_b64 v%d, %s offset:%d" % (vSW, vr(40 + 2 * t, 2), 32 * t))
    a("ds_read_b128 v[20:23], v%d" % vSR)
    a("s_waitcnt lgkmcnt(0)")
    for q in range(4):
        d = PX[0] + 2 * q
        a("v_lshlrev_b32 v%d, 16, v%d" % (10 + 2 * q, 20 + q))
        a("v_and_b32 v%d, 0xffff0000, v%d" % (11 + 2 * q, 20 + q))
        a("v_pk_fma_f32 %s, %s, %s, %s op_sel_hi:[1,0,1]" % (vr(d, 2), vr(10 + 2 * q, 2), vr(GR, 2), vr(d, 2)))
    for q in range(4):
        d = PX[0] + 2 * q
        a("v_cvt_pk_bf16_f32 v%d, v%d, v%d" % (32 + q, d, d + 1))
    a("buffer_store_dwordx4 v[32:35], v%d, s[20:23], s%d offen %s" % (vXO, sXO, OPT["ost"]))
    if OPT["stamp"]:
        stamp(a, 12)
        a("s_waitcnt vmcnt(0)")
        stamp(a, 13)
        stamp_end(a, OPT["stw"], 0)
        stamp_end(a, 10, 2)
    a("s_endpgm")


RETRY = []
GLATE = []


def late_and_slow(a):
    RETRY[0]()
    a.c("---- first two query blocks: key tiles before the sequence start are skipped")
    a.label("L_late")
    a("s_mul_i32 s50, s41, 2304")
    a("v_add_u32 v%d, s50, v%d" % (T + 8, vK))
    a("v_add_u32 v%d, s50, v%d" % (T + 9, vKt))
    a("v_mul_u32_u24 v%d, s41, v%d" % (T + 2, vStep))
    a("v_add_u32 v%d, v%d, v%d" % (vV, vV, T + 2))
    for r in list(range(OO, OO + 16)) + list(range(VF[0], VF[0] + 32)):
        a("v_mov_b32 v%d, 0" % r)
    landed(a, 1, 0)
    stage_spin(a, "L_lt", 0)
    for x in q_reads():
        a(x)
    a("s_waitcnt lgkmcnt(0)")
    lds_inc(a, vC, T, C_B)
    x_loads(a)
    a("s_bitcmp1_b32 s41, 0")
    a("s_cbranch_scc1 L_late1")
    for par in range(2):
        if par:
            a.label("L_late1")
        for x in k_reads(par, T + 8, T + 9, 0):
            a(x)
        for x in k_reads(par + 1, T + 8, T + 9, 0):
            a(x.replace("offset:8", "offset:2312").replace("offset:0", "offset:2304"))
        for x in v_reads(par):
            a(x)
        a("s_waitcnt lgkmcnt(7)")
        a("v_cndmask_b32 v%d, 0, v%d, s[54:55]" % (QT, QT))
        a("v_cndmask_b32 v%d, 0, v%d, s[56:57]" % (QT + 1, QT + 1))
        for x in qk(par):
            a(x)
        a("s_nop 7")
        a("s_nop 3")
        for i0 in range(2 - par, 9, 2):
            a("s_cmp_eq_u32 s41, %d" % i0)
            a("s_cbranch_scc1 L_it%d" % i0)
        a("s_branch L_it%d" % (8 - par))

    a.c("---- two passes over the key tiles with the true row maximum")
    a.label("L_slow")
    vKs, vKts, vM, vD0, vNeg = T + 8, T + 9, T + 10, T + 11, T + 12
    a("v_and_b32 v%d, 31, v0" % T)
    a("v_lshrrev_b32 v%d, 5, v0" % (T + 1))
    a("v_lshlrev_b32 v%d, 2, v%d" % (vD0, T + 1))
    a("v_sub_u32 v%d, v%d, v%d" % (vD0, vD0, T))
    a("v_mov_b32 v%d, 0xff800000" % vNeg)
    a("v_mov_b32 v%d, v%d" % (vM, vNeg))
    a("s_max_i32 s50, s41, 0")
    a("s_sub_u32 s51, 8, s50")
    a("v_mul_u32_u24 v%d, s51, v%d" % (T, vStep))
    a("v_sub_u32 v%d, v%d, v%d" % (vV, vV, T))
    a("s_mul_i32 s51, s50, 2304")
    for r in range(16):
        a("v_mov_b32 v%d, 0" % (OO + r))
    for ps in range(2):
        lab = "L_sp%d" % ps
        a("v_add_u32 v%d, s51, v%d" % (vKs, vK))
        a("v_add_u32 v%d, s51, v%d" % (vKts, vKt))
        a("s_mov_b32 s46, s50")
        a.label(lab)
        for x in k_reads(0, vKs, vKts):
            a(x)
        if ps == 1:
            for x in v_reads(0):
                a(x)
        a("s_mov_b32 s47, -31")
        a("s_mov_b32 s48, 62")
        a("s_cmp_eq_u32 s46, 0")
        a("s_cselect_b32 s47, 1, s47")
        a("s_cselect_b32 s48, 30, s48")
        a("s_cmp_eq_u32 s46, 8")
        a("s_cselect_b32 s48, 31, s48")
        a("s_waitcnt lgkmcnt(0)")
        for x in qk(0):
            a(x)
        a("v_subrev_u32 v%d, s47, v%d" % (T, vD0))
        for r in range(16):
            a("v_add_u32 v%d, %d, v%d" % (T + 1, 8 * (r >> 2) + (r & 3), T))
            a("v_cmp_ge_u32 vcc, s48, v%d" % (T + 1))
            a("v_cndmask_b32 v%d, v%d, v%d, vcc" % (SS[0] + r, vNeg, SS[0] + r))
            if ps == 0:
                a("v_max_f32 v%d, v%d, v%d" % (vM, vM, SS[0] + r))
            else:
                a("v_sub_f32 v%d, v%d, v%d" % (SS[0] + r, SS[0] + r, vM))
                a("v_exp_f32 v%d, v%d" % (SS[0] + r, SS[0] + r))
        if ps == 1:
            for q in range(8):
                a("v_cvt_pk_bf16_f32 v%d, v%d, v%d" % (PP[0] + q, SS[0] + 2 * q, SS[0] + 2 * q + 1))
            for x in pv(0, False):
                a(x)
            a("v_add_u32 v%d, v%d, v%d" % (vV, vV, vStep))
        a("v_add_u32 v%d, 2304, v%d" % (vKs, vKs))
        a("v_add_u32 v%d, 2304, v%d" % (vKts, vKts))
        a("s_add_u32 s46, s46, 1")
        a("s_cmp_lt_u32 s46, 9")
        a("s_nop 7")
        a("s_nop 7")
        a("s_cbranch_scc1 %s" % lab)
        if ps == 0:
            a("v_mov_b32 v%d, v%d" % (T, vM))
            a("v_permlane32_swap_b32 v%d, v%d" % (T, vM))
            a("v_max_f32 v%d, v%d, v%d" % (vM, vM, T))
    a("v_rcp_f32 v%d, v%d" % (T, OO + 12))
    a("s_nop 1")
    a("s_branch L_fin")


def helpers(a):
    a.c("---- helper waves")
    a.label("L_help")
    a("s_cmp_eq_u32 s3, 9")
    a("s_cbranch_scc0 L_help1")
    code_touch(a)
    a.label("L_help1")
    a("v_mov_b32 v3, %d" % CTL)
    for k in range(4):
        a("v_mov_b32 v%d, 0" % (4 + k))
    a("v_lshlrev_b32 v1, 4, v0")
    a("v_add_u32 v2, v1, v3")
    a("s_mov_b64 exec, 0xff")
    a("ds_write_b128 v2, v[4:7]")
    a("s_mov_b64 exec, -1")
    a("s_waitcnt lgkmcnt(0)")
    load_tag(a)
    a("s_barrier")
    a("s_barrier")
    a("s_waitcnt lgkmcnt(0)")
    make_tag(a)
    a.label("L_help2")
    decode2(a)
    a("s_cmp_eq_u32 s3, 8")
    a("s_cbranch_scc1 L_down")
    a("v_lshrrev_b32 v1, 5, v0")
    a("v_bfe_u32 v2, v0, 3, 2")
    a("v_lshrrev_b32 v10, 4, v0")
    a("v_lshlrev_b32 v10, 1, v10")
    a("v_and_b32 v11, 7, v0")
    a("v_xor_b32 v10, v10, v11")
    a("v_lshl_add_u32 v4, v1, 2, v2")
    a("v_mul_u32_u24 v4, 1152, v4")
    a("v_lshl_add_u32 v4, v10, 4, v4")
    a("v_mul_u32_u24 v5, 72, v1")
    a("v_add_u32 v5, v5, v2")
    a("v_mul_u32_u24 v5, 1152, v5")
    a("v_lshl_add_u32 v5, v10, 4, v5")
    a("s_sub_u32 s36, s3, 9")
    a("s_mul_i32 s37, s36, %d" % (20 * 1152))
    a("s_mul_i32 s43, s36, %d" % (144 * 1152))
    a("s_lshl_b32 s38, s36, 10")
    a("s_add_u32 s38, s38, %d" % WO)
    a("s_lshl_b32 s39, s53, 7")
    a("s_sub_u32 s42, %d, s39" % (576 * 1152))
    srd_off(a, 16, 28, "s39", "s42")
    srd_off(a, 24, 8, L.WS_O, 128 * 18432)
    a("v_mov_b32 v%d, %d" % (vC, CTL))
    a("s_sub_u32 s40, s3, 5")
    out_setup(a, 40)
    a("s_setprio %d" % OPT["pr3"])
    a("s_cmp_ge_u32 s2, 192")
    a("s_cbranch_scc1 L_wo_go")
    for k in range(9):
        a("s_barrier")
    a.label("L_wo_go")
    a("s_cmp_eq_u32 s3, 11")
    a("s_cbranch_scc1 L_ctl")
    a("s_cmp_ge_u32 s52, 26")
    a("s_cbranch_scc1 L_end")
    if OPT["woe"]:
        a("s_cmp_ge_u32 s2, 192")
        a("s_cbranch_scc1 L_wo_e_d")
        lds_spin(a, "L_wo_e", 3, C_FI, 10, (8,), 0)
    stamp(a, 5)
    for m in range(36):
        if m == OPT["woe"]:
            stage_spin(a, "L_wo_w", 0, 3, 10, 2)
        st, sec = m >> 1, m & 1
        a("s_add_u32 m0, s38, %d" % (2048 * m))
        if st < 16:
            a("s_add_u32 s40, s37, %d" % ((36 * st + 8 * sec) * 1152))
            a("buffer_load_dwordx4 v4, s[16:19], s40 offen lds")
        else:
            a("s_add_u32 s40, s43, %d" % ((288 * (st - 16) + 36 * sec + 16) * 1152))
            a("buffer_load_dwordx4 v5, s[16:19], s40 offen lds")
        if OPT["wth"] and m >= OPT["wth"] - 1:
            a("s_waitcnt vmcnt(%d)" % (OPT["wth"] - 1))
    x_loads(a)
    a("s_waitcnt vmcnt(1)")
    stamp(a, 6)
    lds_inc(a, 3, 4, C_WO)
    a("s_setprio 0")
    a("s_branch L_out")
    a.c("---- wave 11: flags, all-ones fill, routed update")
    a.label("L_ctl")
    a("v_lshlrev_b32 v8, 7, v0")
    a("v_add_u32 v9, %d, v8" % (L.WS_FLAG + F_PA * 128))
    a("s_mul_i32 s46, s52, 5")
    a("s_lshr_b32 s46, s46, 3")
    a("s_min_u32 s46, s46, 14")
    a("s_lshl_b32 s46, s46, 11")
    a("s_add_u32 s46, s46, %d" % (L.WS_FLAG + F_O * 128))
    a("v_add_u32 v8, s46, v8")
    a("s_lshl_b32 s46, s32, 4")
    a("s_add_u32 s46, s46, s31")
    a("s_lshl_b32 s46, s46, 7")
    a("s_add_u32 s46, s46, %d" % (L.WS_FLAG + F_O * 128))
    a("v_mov_b32 v14, s46")
    a("v_mov_b32 v15, s%d" % TAG)
    a("s_cmp_ge_u32 s2, 192")
    a("s_cbranch_scc1 L_ct_0")
    qpoll(a, 3, "L_qp1", True)
    a.label("L_ct_0")
    AUXLATE = OPT["auxp"]
    def aux():
        flag_poll(a, "L_pap", 9, 4, "s%d" % TAG, 64, 8, 3)
        a("v_mov_b32 v10, v5")
        a("v_mov_b32 v11, v6")
        a("v_mov_b32 v4, 1")
        a("ds_write_b64 v3, v[10:11] offset:%d" % C_IDX)
        a("ds_write_b32 v3, v4 offset:%d" % C_PA)
        srd_off(a, 16, 8, L.WS_G, 8192)
        a("s_mul_i32 s40, s52, 320")
        a("v_lshlrev_b32 v4, 2, v0")
        a("buffer_load_dword v5, v4, s[16:19], s40 offen sc1")
        a("buffer_load_dword v6, v4, s[16:19], s40 offen offset:256 sc1")
        a("v_add_u32 v4, %d, v4" % GB)
        GLATE.append(1)
        stamp(a, 5)

    if not AUXLATE:
        aux()
    a("v_bfe_u32 v20, v0, 4, 1")
    a("v_mul_u32_u24 v20, 18432, v20")
    a("v_and_b32 v21, 15, v0")
    a("v_lshl_add_u32 v20, v21, 4, v20")
    a("v_lshrrev_b32 v21, 5, v0")
    a("v_lshl_add_u32 v22, v21, 2, v20")
    a("v_lshl_add_u32 v21, v21, 8, v20")
    for k in range(4):
        a("v_mov_b32 v%d, -1" % (24 + k))
    a("s_mul_i32 s54, s32, %d" % (8 * 18432))
    a("s_lshl_b32 s55, s31, 10")
    a("s_add_u32 s55, s55, s54")
    a("s_lshr_b32 s56, s31, 1")
    a("s_lshl_b32 s56, s56, 8")
    a("s_and_b32 s57, s31, 1")
    a("s_lshl_b32 s57, s57, 3")
    a("s_add_u32 s56, s56, s57")
    a("s_add_u32 s56, s56, s54")
    a("s_add_u32 s56, s56, 16384")
    if OPT["pearly"]:
        lds_spin(a, "L_ct_p", 3, C_1, 10, (8, 1), 0)
        a("s_sleep %d" % OPT["pearly"])
    else:
        stage_spin(a, "L_ct_p", 0, 3, 10, 0)
    for j in range(4):
        a("buffer_store_dword v24, v22, s[24:27], s56 offen sc1")
        a("buffer_store_dwordx4 v[24:27], v21, s[24:27], s55 offen sc1")
        a("buffer_store_dwordx4 v[24:27], v21, s[24:27], s55 offen offset:512 sc1")
        a("s_add_u32 s55, s55, %d" % (2 * 18432))
        a("s_add_u32 s56, s56, %d" % (2 * 18432))
    a("v_mov_b32 v4, 1")
    a("s_waitcnt vmcnt(0)")
    a("ds_write_b32 v3, v4 offset:%d" % C_C)
    a("s_mov_b64 exec, 1")
    a("global_store_dword v14, v15, s[8:9] sc1")
    a("s_mov_b64 exec, -1")
    stamp(a, 6)
    lds_spin(a, "L_ct_q", 3, C_B, 10, (8,), 1)
    if AUXLATE:
        aux()
    else:
        a("s_sleep %d" % OPT["slp3"])
    flag_poll(a, "L_op", 8, 12, "s%d" % TAG, 32, 2)
    a("ds_write_b32 v4, v5")
    a("ds_write_b32 v4, v6 offset:256")
    lds_inc(a, 3, 10, C_GO2)
    stamp(a, 7)
    stamp_end(a, 11 if OPT["st11"] else 99, 3)
    a("ds_read_b64 v[10:11], v3 offset:%d" % C_IDX)
    a("s_waitcnt lgkmcnt(0)")
    a("v_readfirstlane_b32 s12, v10")
    a("v_readfirstlane_b32 s13, v11")
    a("s_mul_i32 s46, s52, 80")
    a("s_sub_u32 s46, s12, s46")
    a("s_cmp_lt_u32 s46, 80")
    a("s_cbranch_scc0 L_end")
    a("v_lshlrev_b32 v4, 7, v0")
    a("v_add_u32 v4, %d, v4" % (L.WS_FLAG + F_Y * 128))
    srd_off(a, 16, 8, L.WS_YP, 16 * 2304)
    a("v_lshrrev_b32 v6, 4, v0")
    a("v_mul_u32_u24 v6, 2304, v6")
    a("v_and_b32 v7, 15, v0")
    a("v_lshlrev_b32 v7, 4, v7")
    a("v_add_u32 v6, v6, v7")
    a("v_add_u32 v7, %d, v7" % YB)
    a("s_lshl_b32 s40, s53, 8")
    flag_poll(a, "L_yp", 4, 5, "12", 16, 2)
    for i in range(4):
        a("buffer_load_dwordx4 %s, v6, s[16:19], s40 offen sc1" % vr(8 + 4 * i, 4))
        a("s_add_u32 s40, s40, %d" % (4 * 2304))
    a("s_waitcnt vmcnt(0)")
    for i in range(1, 4):
        a("v_pk_add_f32 v[8:9], v[8:9], %s" % vr(8 + 4 * i, 2))
        a("v_pk_add_f32 v[10:11], v[10:11], %s" % vr(10 + 4 * i, 2))
    for k in range(4):
        a("v_mov_b32 v20, v%d" % (8 + k))
        a("v_permlane32_swap_b32 v20, v%d" % (8 + k))
        a("v_add_f32 v%d, v%d, v20" % (8 + k, 8 + k))
        a("v_mov_b32 v20, v%d" % (8 + k))
        a("v_permlane16_swap_b32 v20, v%d" % (8 + k))
        a("v_add_f32 v%d, v%d, v20" % (8 + k, 8 + k))
        bf16_round(a, 8 + k, 8 + k)
        a("v_mul_f32 v%d, s13, v%d" % (8 + k, 8 + k))
        bf16_round(a, 8 + k, 8 + k)
    a("v_mov_b32 v12, 1")
    a("ds_write_b128 v7, v[8:11]")
    a("ds_write_b32 v3, v12 offset:%d" % C_YRDY)
    a("s_cmp_eq_u32 s53, 0")
    a("s_cbranch_scc0 L_end")
    a("v_mov_b32 v4, %d" % L.WS_EPOCH)
    a("v_mov_b32 v5, s%d" % TAG)
    a("s_mov_b64 exec, 1")
    a("global_store_dword v4, v5, s[8:9]")
    a("s_endpgm")

    a.c("---- wave 8: down projection")
    a.label("L_down")
    a("s_cmp_ge_u32 s2, 192")
    a("s_cbranch_scc1 L_end")
    DW, DA = 20, 128
    a("v_lshrrev_b32 v2, 3, v0")
    a("v_and_b32 v10, 7, v0")
    a("v_mul_u32_u24 v16, 1152, v2")
    a("v_lshl_add_u32 v16, v10, 4, v16")
    a("s_mul_i32 s36, s2, 24")
    a("v_mul_u32_u24 v12, %d, v10" % (4608 * 16))
    a("v_add_u32 v11, s36, v2")
    a("v_lshl_add_u32 v17, v11, 4, v12")
    a("v_cmp_gt_u32 s[56:57], 7, v10")
    a("s_mul_i32 s37, s2, %d" % (24 * 1152))
    a("v_and_b32 v1, 1, v0")
    a("v_lshlrev_b32 v1, 4, v1")
    sel_masks(a, 44, 11)
    a("v_lshrrev_b32 v11, 5, v0")
    a("v_bfe_u32 v12, v0, 3, 1")
    a("v_cmp_eq_u32 s[52:53], v11, v12")
    a("v_mul_u32_u24 v12, 2304, v12")
    a("v_bfe_u32 v11, v0, 4, 1")
    a("v_lshl_add_u32 v12, v11, 7, v12")
    a("v_lshl_add_u32 v12, v10, 2, v12")
    a("v_add_u32 v164, %d, v12" % HP)
    a("v_lshlrev_b32 v165, 2, v0")
    a("v_add_u32 v166, %d, v165" % HP)
    a("s_and_b32 s38, s2, 15")
    a("s_mul_i32 s39, s38, 2304")
    a("s_add_u32 s39, s39, %d" % L.WS_YP)
    a("v_add_u32 v165, s39, v165")
    a("s_lshl_b32 s38, s38, 7")
    a("s_add_u32 s38, s38, %d" % (L.WS_FLAG + F_Y * 128))
    srd_off(a, 16, 14, "s37", 24 * 1152)
    srd_off(a, 20, 8, L.WS_PA, 7 * 4608 * 16)
    def dloads(ts=(0, 1, 2)):
        for t in (() if OPT["nodown"] else ts):
            a("s_movk_i32 s40, %d" % (9216 * t))
            for cg in range(9):
                a("buffer_load_dwordx4 %s, v16, s[16:19], s40 offen offset:%d %s" % (vr(DW + 4 * (9 * t + cg), 4), 128 * cg, "" if OPT["dtouch"] else "nt"))

    for k in range(2, 11):
        if OPT["dsplit"]:
            if k in (8, 9, 10):
                dloads((k - 8,))
        elif k == OPT["dpos"]:
            dloads()
        a("s_barrier")
    if OPT["dpos"] == -1:
        a("s_setprio 3")
        stage_spin(a, "L_dn_w2", 0, 3, 10, 0)
        dloads()
    elif OPT["dpos"] == -2:
        a("s_setprio 3")
        lds_spin(a, "L_dn_w2", 3, C_WO, 10, (2,), 2)
        dloads()
    elif OPT["dpos"] == -3:
        a("s_setprio 3")
        lds_spin(a, "L_dn_w2", 3, C_1, 10, (8, 1), 0)
        a("s_sleep 8")
        dloads()
    elif OPT["w8e"] == 2:
        lds_spin(a, "L_dn_w2", 3, C_1, 10, (8, 1), 2)
        a("s_sleep 6")
    elif OPT["w8e"]:
        lds_spin(a, "L_dn_w2", 3, C_1, 10, (8,), 2)
    else:
        stage_spin(a, "L_dn_w2", 0, 3, 10, 2)
    stamp(a, 5)
    a("s_setprio %d" % OPT["pr1"])
    a("s_mov_b32 s60, 0x40000")
    a.label("L_dn_pa")
    a("buffer_load_dwordx3 v[4:6], v17, s[20:23], 0 offen sc1")
    a("buffer_load_dwordx3 v[8:10], v17, s[20:23], 0 offen offset:128 sc1")
    a("buffer_load_dwordx3 v[160:162], v17, s[20:23], 0 offen offset:256 sc1")
    a("s_waitcnt vmcnt(0)")
    a("v_cmp_ne_u32 vcc, s%d, v6" % TAG)
    a("v_cmp_ne_u32 s[40:41], s%d, v10" % TAG)
    a("v_cmp_ne_u32 s[42:43], s%d, v162" % TAG)
    a("s_or_b64 vcc, vcc, s[40:41]")
    a("s_or_b64 vcc, vcc, s[42:43]")
    a("s_and_b64 vcc, vcc, s[56:57]")
    a("s_cmp_eq_u64 vcc, 0")
    a("s_cbranch_scc1 L_dn_pb")
    a("s_sleep 8")
    a("s_sub_u32 s60, s60, 1")
    a("s_cbranch_scc0 L_dn_pa")
    a.label("L_dn_pb")
    stamp(a, 8)
    a("v_mov_b32 v6, v8")
    a("v_mov_b32 v7, v9")
    a("v_mov_b32 v8, v160")
    a("v_mov_b32 v9, v161")
    sum8(a, (4, 5, 6, 7, 8, 9))
    for t in range(3):
        g, u = 4 + 2 * t, 5 + 2 * t
        bf16_round(a, g, g)
        bf16_round(a, u, u)
        sigmoid(a, 10, g)
        a("v_mul_f32 v%d, v%d, v10" % (g, g))
        bf16_round(a, g, g)
        a("v_mul_f32 v%d, v%d, v%d" % (g, g, u))
        a("v_cvt_pk_bf16_f32 v%d, v%d, v%d" % (g, g, g))
        a("v_and_b32 v%d, 0xffff, v%d" % (g, g))
        a("v_lshlrev_b32 v%d, v1, v%d" % (g, g))
    for t in range(3):
        selector(a, 12, 4 + 2 * t, 44)
        for cg in range(9):
            d = vr(DA + 4 * cg, 4)
            a("v_mfma_f32_16x16x32_bf16 %s, %s, v[12:15], %s" % (d, vr(DW + 4 * (9 * t + cg), 4), "0" if t == 0 else d))
    a("s_mov_b64 exec, s[52:53]")
    for cg in range(9):
        for r in range(4):
            a("ds_write_b32 v164, v%d offset:%d" % (DA + 4 * cg + r, 256 * cg + 32 * r))
    a("s_mov_b64 exec, -1")
    for cg in range(9):
        a("ds_read2st64_b32 %s, v166 offset0:%d offset1:%d" % (vr(20 + 2 * cg, 2), cg, cg + 9))
    if OPT["atw"]:
        lds_spin(a, "L_dn_at", 3, C_WO, 10, (2,), 2)
    else:
        stage_spin(a, "L_dn_at", 0, 3, 10, 2)
    lds_spin(a, "L_dn_ax", 3, C_PA, 10, (1,), 1)
    for cg in range(9):
        a("v_add_f32 v%d, v%d, v%d" % (20 + 2 * cg, 20 + 2 * cg, 21 + 2 * cg))
        if not OPT["noat"]:
            a("global_atomic_add_f32 v165, v%d, s[8:9] offset:%d" % (20 + 2 * cg, 256 * cg))
    a("v_mov_b32 v4, s38")
    a("v_mov_b32 v5, 1")
    a("s_waitcnt vmcnt(0)")
    stamp(a, 7)
    a("s_mov_b64 exec, 1")
    a("global_atomic_add v4, v5, s[8:9] sc1")
    stamp_end(a, 8, 1)


def kf(a):
    a.label(NAME)
    a("s_cmp_ge_u32 s2, 256")
    a("s_cbranch_scc1 L_end")
    stamp_init(a)
    stamp(a, 0)
    a("s_load_dwordx4 s[4:7], s[0:1], 0")
    a("s_load_dwordx2 s[8:9], s[0:1], 88")
    a("s_load_dwordx2 s[10:11], s[0:1], 72")
    a("s_load_dwordx2 s[14:15], s[0:1], 56")
    a("s_load_dwordx2 s[28:29], s[0:1], 16")
    a("v_lshrrev_b32 v1, 6, v0")
    a("v_and_b32 v0, 63, v0")
    a("v_readfirstlane_b32 s3, v1")
    a("s_and_b32 s30, s2, 3")
    a("s_bfe_u32 s31, s2, 0x10002")
    a("s_lshr_b32 s32, s2, 3")
    a("s_cmp_ge_u32 s32, 24")
    a("s_cbranch_scc1 L_sp")
    a("s_cmp_ge_u32 s3, 8")
    a("s_cbranch_scc1 L_help")
    gemm_phase(a)
    attention_phase(a)
    out_phase(a)
    late_and_slow(a)
    spare_phase(a)
    helpers(a)
    a.label("L_end")
    a("s_endpgm")
```

```python
import struct
from asmdsl import vr, sr
import layout as L

OPT = dict(stamp=0, spin="", extra_empty=0, st1="sc1", st2="sc1", la=2, moe=1, nopoll=0, slp=8, pl="sc1", ps="sc1", rb=3, slp0=24, wdel=0, thr=8, wol2=0, old="sc1", stw=0, hdel=0, sperm=0, k1only=0, notail=0, ttouch=0, lao=4, wos=2, qslp=0, g1s=1, dpos=9, kvl="sc1", pr1=2, pr2=3, woe=0, ppos=4, pst="sc1", slp2=40, slp3=8, st11=0, wtp=99, ph=5, pr3=3, wt2=0, wth=12, dearly=0, dtouch=0, nodown=0, nopois=0, t0p="", ctouch=1, w8e=1, ost="", auxp=1, can=0, cdel=6, gissue=2, light=1, wa0=2, bal=4, allg=1, noat=0, atw=0, qdel=0, qpipe=0, dsplit=0, amap=1, gmap=1, pearly=0, fdel=0, gst=0, nox0=1, wg=1, skipw=9, thrn=30, xfirst=8, xcc=0)


def f32(x):
    return "0x%08x" % struct.unpack("<I", struct.pack("<f", x))[0]


LOG2E = 1.4426950408889634
QSCALE = (18 ** -0.5) * LOG2E
STAMP0 = 66
NST = 15


def stamp(a, j, g=False):
    if OPT["gst"] and 5 <= j <= 13 and not g:
        return
    if OPT["stamp"]:
        a("s_memrealtime %s" % sr(STAMP0 + 2 * j, 2))


def stamp_init(a):
    if OPT["stamp"]:
        for j in range(2 * NST):
            a("s_mov_b32 s%d, 0" % (STAMP0 + j))


def stamp_flush(a, kidx, wsreg, vt):
    if not OPT["stamp"]:
        return
    a("s_waitcnt lgkmcnt(0)")
    a("s_mov_b64 exec, 1")
    a("s_lshl_b32 s100, s2, 7")
    a("s_add_u32 s100, s100, %d" % (L.WS_STAMP + kidx * 512 * 128))
    a("v_mov_b32 v%d, s100" % vt)
    for j in range(NST):
        a("v_mov_b32 v%d, s%d" % (vt + 2, STAMP0 + 2 * j))
        a("v_mov_b32 v%d, s%d" % (vt + 3, STAMP0 + 2 * j + 1))
        a("global_store_dwordx2 v%d, %s, %s offset:%d" % (vt, vr(vt + 2, 2), sr(wsreg, 2), 8 * j))
        a("s_nop 1")
    a("v_mov_b32 v%d, 0x54414D50" % (vt + 2))
    a("v_mov_b32 v%d, 0x53" % (vt + 3))
    a("global_store_dwordx2 v%d, %s, %s offset:120" % (vt, vr(vt + 2, 2), sr(wsreg, 2)))


def stamp_end(a, wave, kidx, wsreg=8, vt=30):
    if OPT["stamp"]:
        lab = a.newlabel("se")
        a("s_cmp_eq_u32 s3, %d" % wave)
        a("s_cbranch_scc0 %s" % lab)
        stamp_flush(a, kidx, wsreg, vt)
        a("s_endpgm")
        a.label(lab)


def srd(a, d, base, nbytes):
    a("s_mov_b32 s%d, s%d" % (d, base))
    a("s_and_b32 s%d, s%d, 0xffff" % (d + 1, base + 1))
    a("s_mov_b32 s%d, %s" % (d + 2, nbytes))
    a("s_mov_b32 s%d, 0x20000" % (d + 3))


def srd_off(a, d, base, off, nbytes):
    a("s_add_u32 s%d, s%d, %s" % (d, base, off))
    a("s_addc_u32 s%d, s%d, 0" % (d + 1, base + 1))
    a("s_and_b32 s%d, s%d, 0xffff" % (d + 1, d + 1))
    a("s_mov_b32 s%d, %s" % (d + 2, nbytes))
    a("s_mov_b32 s%d, 0x20000" % (d + 3))


def bf16_round(a, dst, src):
    a("v_cvt_pk_bf16_f32 v%d, v%d, v%d" % (dst, src, src))
    a("v_lshlrev_b32 v%d, 16, v%d" % (dst, dst))


def sigmoid(a, dst, src):
    a("v_mul_f32 v%d, %s, v%d" % (dst, f32(-LOG2E), src))
    a("v_exp_f32 v%d, v%d" % (dst, dst))
    a("v_add_f32 v%d, 1.0, v%d" % (dst, dst))
    a("v_rcp_f32 v%d, v%d" % (dst, dst))


def wave_umax(a, v, sdst):
    for mod in ("row_shr:1 row_mask:0xf", "row_shr:2 row_mask:0xf", "row_shr:4 row_mask:0xf",
                "row_shr:8 row_mask:0xf", "row_bcast:15 row_mask:0xa", "row_bcast:31 row_mask:0xc"):
        a("v_max_u32_dpp v%d, v%d, v%d %s bank_mask:0xf" % (v, v, v, mod))
    a("v_readlane_b32 s%d, v%d, 63" % (sdst, v))


def sum8(a, regs):
    for mod in ("quad_perm:[1,0,3,2]", "quad_perm:[2,3,0,1]", "row_half_mirror"):
        for v in regs:
            a("v_add_f32_dpp v%d, v%d, v%d %s row_mask:0xf bank_mask:0xf" % (v, v, v, mod))


def sel_masks(a, sbase, vt):
    a("v_bfe_u32 v%d, v0, 1, 2" % vt)
    for q in range(4):
        a("v_cmp_eq_u32 s[%d:%d], %d, v%d" % (sbase + 2 * q, sbase + 2 * q + 1, q, vt))


def selector(a, dst, src, sbase):
    for q in range(4):
        a("v_cndmask_b32 v%d, 0, v%d, s[%d:%d]" % (dst + q, src, sbase + 2 * q, sbase + 2 * q + 1))
```

```python
from asmdsl import vr, sr
import layout as L
from common import *
from k2 import (KB, VB, QB, ONES, vK, vKt, vV, vStep, QM, QT, MSK, KF, VF, PP, SS, OO, T,
                k_reads, v_reads, qk, pv)

NAME = "gated_mix__sliding_block__moe_arch_mod__prompt_kernel"
SLOT = 34816
IMG = SLOT
WO = 66560
CTL = 149568
YB = 149696
HP = 150016
YT = 154624
XS = 156672
KF_LDS = 162304
PSLOT = (QB, QB + 4096, 140288, 144384, 158208)
KF_VGPR = 168
PART = 0
STG = 20480
XR, GR = 128, 136
vC = 154
TAG = 65
C_O, C_GO2, C_A, C_WO, C_PART, C_YRDY, C_B, C_1, C_GO1, C_C, C_PA, C_IDX, C_RSEL = 0, 4, 8, 12, 88, 32, 36, 40, 44, 48, 52, 56, 60
C_KMAX, C_KCNT, C_XS, C_GD, C_RED, C_RED2, C_FI = 64, 68, 72, 76, 80, 84, 16
F_Q, F_O, F_PA, F_Y = 0, 192, 448, 512


def lds_spin(a, name, addr_v, off, regs, conds, slp=1):
    n = len(conds)
    a("s_mov_b32 s60, 0x200000")
    a.label(name)
    a(("ds_read_b64 %s, v%d offset:%d" % (vr(regs, 2), addr_v, off)) if n == 2 else
      ("ds_read_b32 v%d, v%d offset:%d" % (regs, addr_v, off)))
    a("s_waitcnt lgkmcnt(0)")
    a("v_readfirstlane_b32 s61, v%d" % regs)
    if n == 2:
        a("v_readfirstlane_b32 s62, v%d" % (regs + 1))
        a("s_lshl_b32 s62, s62, 8")
        a("s_or_b32 s61, s61, s62")
        a("s_cmp_eq_u32 s61, %d" % (conds[0] | (conds[1] << 8)))
    else:
        a("s_cmp_eq_u32 s61, %d" % conds[0])
    a("s_cbranch_scc1 %s_d" % name)
    if slp:
        a("s_sleep %d" % slp)
    a("s_sub_u32 s60, s60, 1")
    a("s_cmp_lg_u32 s60, 0")
    a("s_cbranch_scc1 %s" % name)
    a.label(name + "_d")


def stage_spin(a, name, stage, vc=vC, T=T, slp=0):
    a("s_mov_b32 s60, 0x200000")
    a.label(name)
    a("ds_read_b32 v%d, v%d offset:%d" % (T, vc, C_A))
    a("s_waitcnt lgkmcnt(0)")
    a("v_readfirstlane_b32 s61, v%d" % T)
    a("s_bitcmp1_b32 s61, %d" % (8 * stage + 3))
    a("s_cbranch_scc1 %s_d" % name)
    if slp:
        a("s_sleep %d" % slp)
    a("s_sub_u32 s60, s60, 1")
    a("s_cmp_lg_u32 s60, 0")
    a("s_cbranch_scc1 %s" % name)
    a.label(name + "_d")


def landed(a, inc, vm):
    a("v_mov_b32 v%d, %s" % (T, hex(inc)))
    a("s_waitcnt vmcnt(%d)" % vm)
    a("s_mov_b64 exec, 1")
    a("ds_add_u32 v%d, v%d offset:%d" % (vC, T, C_A))
    a("s_mov_b64 exec, -1")


def poison(a):
    if OPT["nopois"]:
        a("s_nop 0")
        a("buffer_load_dword v155, v152, s[24:27], s59 offen")
        a("buffer_load_dword v155, v152, s[24:27], s59 offen")
        return
    for k in range(4):
        a("v_mov_b32 v%d, -1" % (120 + k))
    a("buffer_store_dwordx4 %s, v153, s[24:27], s58 offen sc1" % vr(120, 4))
    a("s_mov_b32 exec_hi, 0")
    a("buffer_store_dword v%d, v152, s[24:27], s59 offen sc1" % 120)
    a("s_mov_b32 exec_hi, -1")


def tail_touch(a):
    a("buffer_load_dword v155, v152, s[24:27], s59 offen")


def flag_poll(a, name, voff, vt, want, lanes, slp=1, width=1):
    a("s_mov_b64 exec, %s" % ("-1" if lanes == 64 else hex((1 << lanes) - 1)))
    a("s_mov_b32 s60, 0x40000")
    a.label(name)
    a("global_load_dword%s %s, v%d, s[8:9] sc1" % ("" if width == 1 else "x%d" % width, vr(vt, width), voff))
    a("s_waitcnt vmcnt(0)")
    a("v_cmp_eq_u32 vcc, %s, v%d" % (want, vt))
    a("s_cmp_eq_u64 vcc, exec")
    a("s_cbranch_scc1 %s_d" % name)
    if slp:
        a("s_sleep %d" % slp)
    a("s_sub_u32 s60, s60, 1")
    a("s_cmp_lg_u32 s60, 0")
    a("s_cbranch_scc1 %s" % name)
    a.label(name + "_d")
    a("s_mov_b64 exec, -1")


def lds_inc(a, vz, vt, off, rtn=False):
    a("v_mov_b32 v%d, 1" % vt)
    a("s_mov_b64 exec, 1")
    if rtn:
        a("ds_add_rtn_u32 v%d, v%d, v%d offset:%d" % (vt, vz, vt, off))
    else:
        a("ds_add_u32 v%d, v%d offset:%d" % (vz, vt, off))
    a("s_mov_b64 exec, -1")


def load_tag(a):
    a("s_mov_b32 s64, %d" % L.WS_EPOCH)
    a("s_load_dword s%d, s[8:9], s64" % TAG)


def make_tag(a):
    a("s_mul_i32 s%d, s%d, 0x9e3779b1" % (TAG, TAG))
    a("s_add_u32 s%d, s%d, 0x7f4a7c15" % (TAG, TAG))


def copy_scalars(a):
    a("s_mul_i32 s55, s34, %d" % (4 * L.PAIR_BYTES))
    a("s_mul_i32 s56, s35, 9216")
    a("s_add_u32 s55, s55, s56")
    a("s_lshl_b32 s56, s3, 10")
    a("s_add_u32 s55, s55, s56")
    for j in range(5):
        a("s_add_u32 s57, s3, %d" % (8 * j))
        a("s_mul_i32 s57, s57, 57")
        a("s_lshr_b32 s57, s57, 9")
        a("s_mul_i32 s57, s57, %d" % (L.PAIR_BYTES - 9216))
        a("s_add_u32 s57, s57, s55")
        a("s_add_u32 s%d, s57, %d" % (50 + j, 8192 * j))
    a("s_mul_i32 s58, s35, 12")
    a("s_add_u32 s58, s58, s34")
    a("s_lshl_b32 s58, s58, 7")
    a("s_add_u32 s58, s58, %d" % (L.WS_FLAG + F_Q * 128))


def decode2(a):
    if OPT["amap"]:
        a("s_and_b32 s31, s2, 7")
        a("s_lshl_b32 s31, s31, 1")
        a("s_bfe_u32 s32, s2, 0x10003")
        a("s_add_u32 s31, s31, s32")
        a("s_lshr_b32 s30, s31, 2")
        a("s_lshr_b32 s32, s2, 4")
        a("s_add_u32 s32, s32, 4")
        a("s_and_b32 s32, s32, 15")
    else:
        a("s_and_b32 s30, s2, 3")
        a("s_bfe_u32 s33, s2, 0x10002")
        a("s_bfe_u32 s32, s2, 0x20003")
        a("s_lshl_b32 s31, s30, 2")
        a("s_add_u32 s31, s31, s32")
        a("s_lshl_b32 s32, s33, 3")
        a("s_lshr_b32 s34, s2, 5")
        if OPT["light"]:
            a("s_add_u32 s34, s34, 2")
            a("s_and_b32 s34, s34, 7")
        a("s_add_u32 s32, s32, s34")
    a("s_lshr_b32 s33, s2, 3")
    a("s_mul_i32 s34, s33, 57")
    a("s_lshr_b32 s34, s34, 9")
    a("s_mul_i32 s53, s34, 9")
    a("s_sub_u32 s53, s33, s53")
    a("s_lshl_b32 s52, s34, 3")
    a("s_and_b32 s34, s2, 7")
    a("s_add_u32 s52, s52, s34")
    a("s_sub_u32 s33, s2, 216")
    a("s_mul_i32 s34, s33, 57")
    a("s_lshr_b32 s34, s34, 9")
    a("s_mul_i32 s35, s34, 9")
    a("s_sub_u32 s33, s33, s35")
    a("s_add_u32 s34, s34, 24")
    a("s_cmp_ge_u32 s2, 216")
    a("s_cselect_b32 s52, s34, s52")
    a("s_cselect_b32 s53, s33, s53")


def qpoll(a, vc, name, own, r=16):
    R = dict(a=r, b=r + 1, c=r + 2)
    a("v_add_u32 v%(a)d, 2, v0" % R)
    a("v_mul_u32_u24 v%(b)d, 43, v%(a)d" % R)
    a("v_lshrrev_b32 v%(b)d, 7, v%(b)d" % R)
    a("v_mul_u32_u24 v%(c)d, 3, v%(b)d" % R)
    a("v_sub_u32 v%(a)d, v%(a)d, v%(c)d" % R)
    a("s_sub_u32 s35, s32, 2")
    a("v_add_u32 v%(a)d, s35, v%(a)d" % R)
    a("v_max_i32 v%(a)d, 0, v%(a)d" % R)
    a("v_mul_u32_u24 v%(a)d, 12, v%(a)d" % R)
    a("v_lshl_add_u32 v%(a)d, v%(b)d, 2, v%(a)d" % R)
    a("v_add_u32 v%(a)d, s30, v%(a)d" % R)
    a("v_lshlrev_b32 v%(a)d, 7, v%(a)d" % R)
    a("v_add_u32 v%d, %d, v%d" % (r, L.WS_FLAG + F_Q * 128, r))
    if own:
        lds_spin(a, name + "w", vc, C_1, r + 2, (8,), 0)
    if OPT["qdel"]:
        a("s_sleep %d" % OPT["qdel"])
    if OPT["qpipe"] and own:
        NP = OPT["qpipe"]
        a("s_mov_b64 exec, 0x7f")
        a("s_mov_b32 s60, 0x20000")
        for k in range(NP - 1):
            a("global_load_dword v%d, v%d, s[8:9] sc1" % (r + 3 + k, r))
            a("s_sleep 1")
        a.label(name)
        for k in range(NP):
            a("global_load_dword v%d, v%d, s[8:9] sc1" % (r + 3 + (k + NP - 1) % NP, r))
            a("s_waitcnt vmcnt(%d)" % (NP - 1))
            a("v_cmp_eq_u32 vcc, s%d, v%d" % (TAG, r + 3 + k))
            a("s_cmp_eq_u64 vcc, exec")
            a("s_cbranch_scc1 %s_d" % name)
        a("s_sub_u32 s60, s60, 1")
        a("s_cbranch_scc0 %s" % name)
        a.label(name + "_d")
        a("s_mov_b64 exec, -1")
    else:
        flag_poll(a, name, r, r + 1, "s%d" % TAG, 7, OPT["qslp"])
    lds_inc(a, vc, r + 2, C_GO1)


def code_touch(a):
    if not OPT["ctouch"]:
        return
    lab = a.newlabel("pc")
    a("s_getpc_b64 s[20:21]")
    a.label(lab)
    a("s_sub_u32 s20, s20, %s-%s" % (lab, NAME))
    a("s_subb_u32 s21, s21, 0")
    a("s_lshr_b32 s22, s2, 3")
    a("s_mul_i32 s22, s22, %d" % (12 * 128))
    a("v_lshlrev_b32 v20, 7, v0")
    a("v_add_u32 v20, s22, v20")
    a("v_min_u32 v20, L_end-%s, v20" % NAME)
    a("s_mov_b64 exec, 0xfff")
    a("global_load_dword v21, v20, s[20:21]")
    a("s_mov_b64 exec, -1")


def gemm_phase(a):
    if OPT["gmap"]:
        a("s_lshr_b32 s33, s32, 1")
        a("s_mul_i32 s33, s33, 43")
        a("s_lshr_b32 s33, s33, 7")
        a("s_mul_i32 s34, s33, 6")
        a("s_sub_u32 s34, s32, s34")
        a("s_and_b32 s35, s34, 1")
        a("s_lshr_b32 s34, s34, 1")
        a("s_lshl_b32 s34, s34, 2")
        a("s_add_u32 s34, s34, s35")
        a("s_and_b32 s35, s2, 1")
        a("s_lshl_b32 s35, s35, 1")
        a("s_add_u32 s34, s34, s35")
        a("s_bfe_u32 s35, s2, 0x20001")
        a("s_lshl_b32 s35, s35, 2")
        a("s_add_u32 s35, s35, s33")
    else:
        a("s_mul_i32 s33, s32, 43")
        a("s_lshr_b32 s33, s33, 7")
        a("s_mul_i32 s34, s33, 3")
        a("s_sub_u32 s34, s32, s34")
        a("s_lshl_b32 s34, s34, 2")
        a("s_add_u32 s34, s34, s30")
        a("s_lshl_b32 s35, s31, 3")
        a("s_add_u32 s35, s35, s33")
    a("s_cmp_lt_u32 s3, 4")
    a("s_cbranch_scc1 L_comp")
    a("s_cmp_lt_u32 s3, 6")
    a("s_cbranch_scc0 L_ldw")
    a("s_sub_u32 s36, s3, 4")
    SH = 4 if OPT["gmap"] else 3
    a("v_and_b32 v7, %d, v0" % ((1 << SH) - 1))
    a("s_lshl_b32 s41, s33, %d" % SH)
    a("s_lshl_b32 s42, s36, 6")
    a("s_add_u32 s41, s41, s42")
    a("v_add_u32 v7, s41, v7")
    a("v_mul_u32_u24 v7, 3456, v7")
    a("v_lshrrev_b32 v1, %d, v0" % SH)
    a("v_lshl_add_u32 v7, v1, 7, v7")
    a("v_lshrrev_b32 v1, 3, v0")
    a("s_mul_i32 s39, s35, %d" % (128 * 1152))
    a("s_mul_i32 s46, s34, 288")
    a("s_and_b32 s46, s46, 0xffffff80")
    a("s_sub_u32 s47, %d, s46" % (576 * 3456))
    a("v_mul_u32_u24 v1, 1152, v1")
    a("v_lshrrev_b32 v2, 4, v0")
    a("v_and_b32 v3, 7, v0")
    a("v_xor_b32 v3, v3, v2")
    a("v_lshl_add_u32 v4, v3, 4, v1")
    a("v_xor_b32 v3, 4, v3")
    a("v_lshl_add_u32 v5, v3, 4, v1")
    a("v_add_u32 v5, %d, v5" % (8 * 1152))
    a("s_mul_i32 s37, s36, %d" % (64 * 1152))
    a("s_lshl_b32 s38, s36, 13")
    a("s_waitcnt lgkmcnt(0)")
    srd_off(a, 20, 6, "s46", "s47")
    if OPT["gmap"]:
        a("s_mov_b32 exec_hi, 0xffff")
    else:
        a("s_mov_b64 exec, 0xffffff")
    a("buffer_load_dword v20, v7, s[20:23], 0 offen")
    a("s_mov_b64 exec, -1")
    srd_off(a, 16, 4, "s39", 128 * 1152)

    def x_chunk(c):
        for i in range(8):
            a("s_add_u32 m0, s38, %d" % ((c % 4) * SLOT + i * 1024))
            a("s_add_u32 s40, s37, %d" % ((i >> 1) * 16 * 1152 + c * 128))
            a("buffer_load_dwordx4 v%d, s[16:19], s40 offen lds" % (4 + (i & 1)))

    x_chunk(0)
    load_tag(a)
    copy_scalars(a)
    stamp(a, 1)
    a("s_waitcnt vmcnt(8) lgkmcnt(0)")
    stamp(a, 2)

    def loader_loop(fn, n, first, ahead0):
        LA = OPT["la"]
        a("s_barrier")
        stamp(a, 13)
        nxt = first
        while nxt < ahead0:
            fn(nxt)
            nxt += 1
        stamp(a, 14)
        for c in range(9):
            a("s_waitcnt vmcnt(%d)" % (n * (nxt - 1 - c)))
            a("s_barrier")
            while nxt <= c + LA and nxt < 9:
                fn(nxt)
                nxt += 1

    loader_loop(x_chunk, 8, 1, 2)
    a("s_branch L_copy")
    a.c("---- W loaders (waves 6,7)")
    a.label("L_ldw")
    a("s_movk_i32 s41, 3641")
    for i in range(9):
        a("v_add_u32 v1, %d, v0" % (64 * i))
        a("v_mul_u32_u24 v2, s41, v1")
        a("v_lshrrev_b32 v2, 16, v2")
        a("v_mul_u32_u24 v3, 18, v2")
        a("v_sub_u32 v3, v1, v3")
        a("v_bfe_u32 v1, v2, 2, 2")
        a("v_lshlrev_b32 v1, 3, v1")
        a("v_lshrrev_b32 v13, 4, v2")
        a("v_lshl_add_u32 v1, v13, 2, v1")
        a("v_and_b32 v2, 3, v2")
        a("v_add_u32 v1, v1, v2")
        a("v_mul_u32_u24 v1, 3456, v1")
        a("v_lshl_add_u32 v%d, v3, 4, v1" % (4 + i))
        if i == 2:
            a("s_waitcnt lgkmcnt(0)")
            load_tag(a)
    a("s_sub_u32 s36, s3, 6")
    a("s_mul_i32 s37, s36, %d" % (32 * 3456))
    a("s_mul_i32 s38, s36, 9216")
    a("s_mul_i32 s39, s34, 288")
    a("s_sub_u32 s42, %d, s39" % (576 * 3456))
    copy_scalars(a)
    srd_off(a, 16, 6, "s39", "s42")
    a("s_waitcnt lgkmcnt(0)")

    def w_chunk(c):
        a("s_add_u32 s40, s37, %d" % (c * 64 * 3456))
        for i in range(9):
            a("s_add_u32 m0, s38, %d" % ((c % 4) * SLOT + 16384 + i * 1024))
            a("s_nop 0")
            a("buffer_load_dwordx4 v%d, s[16:19], s40 offen lds" % (4 + i))

    loader_loop(w_chunk, 9, 0, OPT["wa0"])
    a("s_branch L_copy")
    a.c("---- GEMM compute waves 0..3")
    a.label("L_comp")
    ACC, XF, WF = 64, (136, 144), 24
    a("v_and_b32 v8, 15, v0")
    a("v_lshrrev_b32 v9, 4, v0")
    a("v_lshrrev_b32 v10, 1, v8")
    a("v_xor_b32 v10, v10, v9")
    a("s_lshl_b32 s36, s3, 12")
    a("v_lshlrev_b32 v2, 7, v8")
    a("v_lshl_add_u32 v2, v10, 4, v2")
    a("v_add_u32 v2, s36, v2")
    a("v_xor_b32 v3, 64, v2")
    a("v_add_u32 v4, %d, v2" % (2 * SLOT))
    a("v_add_u32 v5, %d, v3" % (2 * SLOT))
    a("v_lshrrev_b32 v10, 2, v0")
    a("v_mul_u32_u24 v6, 288, v10")
    a("v_and_b32 v10, 3, v0")
    a("v_lshl_add_u32 v6, v10, 3, v6")
    a("v_add_u32 v6, 16384, v6")
    a("v_add_u32 v7, %d, v6" % (2 * SLOT))
    a("s_waitcnt lgkmcnt(0)")
    load_tag(a)
    a("s_mov_b32 s36, 1.0")
    a("s_cmp_lt_u32 s34, 4")
    a("s_cselect_b32 s36, %s, s36" % f32(QSCALE))
    a("s_mov_b32 s37, s36")
    a("s_lshl_b32 s38, s3, 5")
    a("v_add_u32 v10, s38, v8")
    a("v_mul_u32_u24 v10, 72, v10")
    a("v_lshl_add_u32 v10, v9, 3, v10")
    a("v_add_u32 v10, %d, v10" % IMG)
    for ft in range(9):
        a("v_add_u32 v11, %d, v9" % (4 * ft))
        a("v_mul_u32_u24 v11, 57, v11")
        a("v_lshrrev_b32 v11, 9, v11")
        a("v_mul_u32_u24 v11, 9144, v11")
        a("v_add_u32 v%d, v11, v10" % (12 + ft))
    copy_scalars(a)
    a("s_waitcnt lgkmcnt(0)")

    def xreads(step):
        c, h2 = step >> 1, step & 1
        slot = c % 4
        return ["ds_read_b128 %s, v%d offset:%d" % (vr(XF[step & 1] + 4 * tt, 4), 2 + 2 * (slot >> 1) + h2,
                                                    (slot & 1) * SLOT + tt * 2048) for tt in range(2)]

    def wreads(step, ft):
        c, h2 = step >> 1, step & 1
        slot = c % 4
        return ["ds_read_b64_tr_b16 %s, v%d offset:%d" % (vr(WF + 4 * ft + 2 * sec, 2), 6 + (slot >> 1),
                                                          (slot & 1) * SLOT + h2 * 9216 + sec * 4608 + ft * 32)
                for sec in range(2)]

    def mfma(step, ft, tt):
        d = vr(ACC + 8 * ft + 4 * tt, 4)
        return "v_mfma_f32_16x16x32_bf16 %s, %s, %s, %s" % (
            d, vr(WF + 4 * ft, 4), vr(XF[step & 1] + 4 * tt, 4), "0" if step == 0 else d)

    def epi(k):
        ft, tt = k >> 1, k & 1
        b = ACC + 4 * k
        t = 152 + 2 * (k % 4)
        return ["v_pk_mul_f32 %s, %s, s[36:37]" % (vr(b, 2), vr(b, 2)),
                "v_pk_mul_f32 %s, %s, s[36:37]" % (vr(b + 2, 2), vr(b + 2, 2)),
                "v_cvt_pk_bf16_f32 v%d, v%d, v%d" % (t, b, b + 1),
                "v_cvt_pk_bf16_f32 v%d, v%d, v%d" % (t + 1, b + 2, b + 3),
                "ds_write_b64 v%d, %s offset:%d" % (12 + ft, vr(t, 2), 32 * ft + 1152 * tt)]

    a("s_barrier")
    a("s_barrier")
    stamp(a, 1)
    q = []

    def issue(tag, lst):
        for x in lst:
            a(x)
            q.append(tag)

    def need(tag):
        last = max(k for k, v in enumerate(q) if v == tag)
        a("s_waitcnt lgkmcnt(%d)" % min(15, len(q) - 1 - last))

    issue(("x", 0), xreads(0))
    for ft in range(9):
        issue(("w", 0, ft), wreads(0, ft))
    for step in range(16):
        if step & 1:
            a("s_barrier")
            if OPT["gst"]:
                stamp(a, 5 + (step >> 1), True)
        for ft in range(9):
            if ft % OPT["wg"] == 0:
                need(("w", step, min(8, ft + OPT["wg"] - 1)))
            a(mfma(step, ft, 0))
            if ft == 0:
                issue(("x", step + 1), xreads(step + 1))
            a(mfma(step, ft, 1))
            issue(("w", step + 1, ft), wreads(step + 1, ft))
    RING = (60, 160, 164)

    def w17(ft):
        return [x.replace(vr(WF + 4 * ft + 2 * sec, 2), vr(RING[ft % 3] + 2 * sec, 2)) for sec, x in enumerate(wreads(17, ft))]

    issue(("x", 17), xreads(17))
    issue(("v", 0), w17(0))
    issue(("v", 1), w17(1))
    for ft in range(10):
        e = (epi(2 * ft - 2) + epi(2 * ft - 1)) if ft else []
        if ft < 9:
            need(("v", ft))
            m = [mfma(16, ft, 0), mfma(16, ft, 1)] + \
                [mfma(17, ft, tt).replace(vr(WF + 4 * ft, 4), vr(RING[ft % 3], 4)) for tt in range(2)]
        else:
            m = []
        cut = (0, 3, 5, 8, 10)
        for k in range(4):
            if m:
                a(m[k])
            if k == 0 and ft + 2 < 9:
                issue(("v", ft + 2), w17(ft + 2))
            for x in e[cut[k]:cut[k + 1]]:
                if x.startswith("ds_"):
                    issue("e", [x])
                else:
                    a(x)
    stamp(a, 2)
    a("s_waitcnt lgkmcnt(0)")
    a.c("---- copy the tile out, then publish it")
    a.label("L_copy")
    a("v_lshlrev_b32 v1, 4, v0")
    a("s_lshl_b32 s36, s3, 10")
    a("v_add_u32 v2, s36, v1")
    a("v_add_u32 v3, %d, v2" % (IMG + 4 * 8192))
    srd_off(a, 24, 8, L.WS_QKV, L.QKV_BYTES)
    make_tag(a)
    a("s_barrier")
    for j in range(4):
        a("ds_read_b128 %s, v2 offset:%d" % (vr(4 + 4 * j, 4), IMG + j * 8192))
    a("s_cmp_lt_u32 s3, 4")
    a("s_cbranch_scc0 L_c4")
    a("ds_read_b128 v[20:23], v3")
    a("s_waitcnt lgkmcnt(0)")
    a("buffer_store_dwordx4 v[20:23], v1, s[24:27], s54 offen sc1")
    a.label("L_c4")
    for j in range(4):
        a("s_waitcnt lgkmcnt(%d)" % (3 - j))
        a("buffer_store_dwordx4 %s, v1, s[24:27], s%d offen sc1" % (vr(4 + 4 * j, 4), 50 + j))
    a("s_mov_b32 s63, s58")
    a("v_mov_b32 v%d, %d" % (vC, CTL))
    lds_inc(a, vC, 24, C_FI)
    stamp(a, 3)


def spare_phase(a):
    GW = 64
    a.c("---- workgroups without a GEMM tile: router / gate logits, first touch of the weights")
    a.label("L_sp")
    a("s_sub_u32 s36, s2, 192")
    a("s_cmp_ge_u32 s3, 8")
    a("s_cbranch_scc1 L_sp_ffn")
    a("s_cmp_ge_u32 s3, 4")
    a("s_cbranch_scc1 L_sp_hi")
    a("s_load_dwordx2 s[60:61], s[0:1], 32")
    a("s_load_dwordx2 s[62:63], s[0:1], 64")
    a("v_lshrrev_b32 v2, 3, v0")
    a("v_and_b32 v3, 7, v0")
    a("v_lshlrev_b32 v3, 4, v3")
    a("s_lshl_b32 s34, s36, 2")
    a("s_add_u32 s34, s34, s3")
    a("s_lshl_b32 s33, s34, 3")
    a("v_add_u32 v1, s33, v2")
    a("v_mul_u32_u24 v4, 1152, v1")
    a("v_add_u32 v4, v4, v3")
    a("s_mul_i32 s51, s34, %d" % (7 * 128))
    a("s_mul_i32 s52, s34, %d" % (21 * 128))
    a("v_lshlrev_b32 v7, 7, v0")
    a("s_waitcnt lgkmcnt(0)")
    load_tag(a)
    srd(a, 16, 6, 576 * 3456)
    srd(a, 20, 28, 576 * 1152)
    for i in range(9):
        a("global_load_dwordx4 %s, v4, s[4:5] offset:%d" % (vr(8 + 4 * i, 4), 128 * i))
        if i == 0:
            for j in range(9):
                a("global_load_dwordx4 %s, v3, s[60:61] offset:%d" % (vr(44 + 4 * j, 4), 128 * j))
                a("global_load_dwordx4 %s, v3, s[62:63] offset:%d" % (vr(80 + 4 * j, 4), 128 * j))
        else:
            a("s_add_u32 s53, s51, %d" % (1728 * 128 * i))
            a("s_mov_b64 exec, 0x7f")
            a("buffer_load_dword v124, v7, s[16:19], s53 offen")
            a("s_mov_b64 exec, -1")
    a("s_mov_b64 exec, 0x1fffff")
    a("buffer_load_dword v124, v7, s[20:23], s52 offen")
    a("s_mov_b64 exec, -1")
    a("v_mov_b32 v%d, %d" % (vC, CTL))
    a("s_waitcnt lgkmcnt(0)")
    make_tag(a)
    a("s_barrier")
    a("s_waitcnt vmcnt(2)")
    for i in range(36):
        p = 116 + (i & 3)
        a("v_dot2_f32_bf16 v%d, v%d, v%d, %s" % (p, 8 + i, 44 + i, "0" if i < 4 else "v%d" % p))
    a("s_nop 1")
    a("v_pk_add_f32 v[116:117], v[116:117], v[118:119]")
    a("v_add_f32 v5, v116, v117")
    sum8(a, (5,))
    bf16_round(a, 5, 5)
    a("v_ashrrev_i32 v7, 31, v5")
    a("v_or_b32 v7, 0x80000000, v7")
    a("v_xor_b32 v7, v7, v5")
    a("v_and_b32 v7, 0xffff0000, v7")
    a("v_sub_u32 v6, 0x7ff, v1")
    a("v_or_b32 v7, v7, v6")
    a("v_mov_b32 v5, 1")
    a("s_mov_b32 s54, 0x01010101")
    a("s_mov_b32 exec_lo, s54")
    a("s_mov_b32 exec_hi, s54")
    a("ds_max_u32 v%d, v7 offset:%d" % (vC, C_KMAX))
    a("s_mov_b64 exec, 1")
    a("ds_add_rtn_u32 v5, v%d, v5 offset:%d" % (vC, C_KCNT))
    a("ds_read_b32 v7, v%d offset:%d" % (vC, C_KMAX))
    a("s_lshl_b32 s53, s36, 3")
    a("s_add_u32 s53, s53, %d" % L.WS_KEYF)
    a("v_mov_b32 v4, s53")
    a("v_mov_b32 v6, s%d" % TAG)
    a("s_waitcnt lgkmcnt(0)")
    a("v_cmp_eq_u32 vcc, 3, v5")
    a("s_and_b64 exec, exec, vcc")
    a("s_cbranch_execz L_sp_nopub")
    a("global_store_dwordx2 v4, v[6:7], s[8:9] sc1")
    a.label("L_sp_nopub")
    a("s_mov_b64 exec, -1")
    stamp(a, 1)
    a("s_mov_b32 s55, 0x3f803f80")
    for i in range(36):
        x, w, p = 8 + i, 80 + i, 116 + (i & 3)
        t = 44 + 4 * (i & 3)
        a("v_lshlrev_b32 v%d, 16, v%d" % (t, x))
        a("v_and_b32 v%d, 0xffff0000, v%d" % (t + 1, x))
        a("v_lshlrev_b32 v%d, 16, v%d" % (t + 2, w))
        a("v_and_b32 v%d, 0xffff0000, v%d" % (t + 3, w))
        a("v_pk_mul_f32 %s, %s, %s" % (vr(t, 2), vr(t, 2), vr(t + 2, 2)))
        a("v_cvt_pk_bf16_f32 v%d, v%d, v%d" % (t, t, t + 1))
        a("v_dot2_f32_bf16 v%d, v%d, s55, %s" % (p, t, "0" if i < 4 else "v%d" % p))
    a("s_nop 1")
    a("v_pk_add_f32 v[116:117], v[116:117], v[118:119]")
    a("v_add_f32 v6, v116, v117")
    sum8(a, (6,))
    bf16_round(a, 6, 6)
    sigmoid(a, 6, 6)
    bf16_round(a, 6, 6)
    a("v_lshlrev_b32 v1, 2, v1")
    a("v_add_u32 v1, %d, v1" % L.WS_G)
    a("s_mov_b32 exec_lo, s54")
    a("s_mov_b32 exec_hi, s54")
    a("global_store_dword v1, v6, s[8:9] sc1")
    a("s_mov_b64 exec, -1")
    a("s_waitcnt vmcnt(0)")
    lds_inc(a, vC, 5, C_GD)
    if OPT["dtouch"]:
        srd(a, 16, 14, 4608 * 1152)
        a("s_mul_i32 s52, s34, %d" % (162 * 128))
        a("v_lshlrev_b32 v7, 7, v0")
        for k in range(3):
            a("buffer_load_dword v124, v7, s[16:19], s52 offen")
            a("s_add_u32 s52, s52, %d" % (54 * 128))
    a("s_mov_b32 s63, 0")
    stamp(a, 2)
    a("s_branch L_att")

    a.label("L_sp_hi")
    a("s_cmp_eq_u32 s3, 7")
    a("s_cbranch_scc0 L_sp_hi1")
    code_touch(a)
    a.label("L_sp_hi1")
    a("v_mov_b32 v%d, %d" % (vC, CTL))
    a("s_waitcnt lgkmcnt(0)")
    load_tag(a)
    a("s_mov_b32 s63, 0")
    a("s_waitcnt lgkmcnt(0)")
    make_tag(a)
    a("s_barrier")
    a("s_cmp_eq_u32 s3, 4")
    a("s_cbranch_scc1 L_sp_w4")
    a("s_cmp_eq_u32 s3, 5")
    a("s_cbranch_scc0 L_att")
    a("s_lshl_b32 s56, s36, 7")
    a("s_add_u32 s56, s56, %d" % (L.WS_FLAG + F_PA * 128))
    a("v_mov_b32 v9, s56")
    lds_spin(a, "L_sp_x5", vC, C_XS, 10, (1, 4), 4)
    a("ds_read_b64 v[14:15], v%d offset:%d" % (vC, C_IDX))
    a("v_mov_b32 v12, s%d" % TAG)
    a("s_waitcnt lgkmcnt(0)")
    a("v_mov_b32 v13, v14")
    a("v_mov_b32 v14, v15")
    a("s_mov_b64 exec, 1")
    a("global_store_dwordx3 v9, v[12:14], s[8:9] sc1")
    a("s_mov_b64 exec, -1")
    a("s_branch L_att")
    a.label("L_sp_w4")
    for k in range(4):
        a("v_mov_b32 v%d, 0" % (12 + k))
    a("s_cmp_lt_u32 s36, 36")
    a("s_cbranch_scc0 L_sp_nz")
    a("s_lshl_b32 s51, s36, 10")
    a("s_add_u32 s51, s51, %d" % L.WS_YP)
    a("v_lshlrev_b32 v4, 4, v0")
    a("v_add_u32 v4, s51, v4")
    a("global_store_dwordx4 v4, v[12:15], s[8:9] sc1")
    a("s_cmp_eq_u32 s36, 0")
    a("s_cbranch_scc0 L_sp_nz")
    a("v_lshlrev_b32 v4, 7, v0")
    a("v_add_u32 v4, %d, v4" % (L.WS_FLAG + F_Y * 128))
    a("global_store_dword v4, v12, s[8:9] sc1")
    a.label("L_sp_nz")
    a("v_lshlrev_b32 v8, 3, v0")
    a("v_add_u32 v8, %d, v8" % L.WS_KEYF)
    srd(a, 24, 4, 2048 * 1152)
    lds_spin(a, "L_sp_own", vC, C_KCNT, 10, (4,), 2)
    a("s_sleep %d" % OPT["slp0"])
    flag_poll(a, "L_sp_kp", 8, 10, "s%d" % TAG, 64, OPT["slp"], 2)
    a("v_lshlrev_b32 v8, 4, v0")
    stamp(a, 1)
    wave_umax(a, 11, 53)
    a("s_and_b32 s54, s53, 0x7ff")
    a("s_sub_u32 s54, 2047, s54")
    a("s_mul_i32 s55, s54, 1152")
    a("s_mov_b32 m0, %d" % XS)
    a("s_add_u32 s56, s55, 1024")
    a("buffer_load_dwordx4 v8, s[24:27], s55 offen lds")
    a("s_mov_b32 m0, %d" % (XS + 1024))
    a("s_mov_b64 exec, 0xff")
    a("buffer_load_dwordx4 v8, s[24:27], s56 offen lds")
    a("s_mov_b64 exec, -1")
    a("s_and_b32 s55, s53, 0xffff0000")
    a("s_xor_b32 s56, s55, 0x80000000")
    a("s_xor_b32 s57, s55, 0xffff0000")
    a("s_bitcmp1_b32 s55, 31")
    a("s_cselect_b32 s55, s56, s57")
    a("v_mov_b32 v12, s55")
    sigmoid(a, 13, 12)
    bf16_round(a, 13, 13)
    a("v_mov_b32 v12, s54")
    a("ds_write_b64 v%d, v[12:13] offset:%d" % (vC, C_IDX))
    a("v_mov_b32 v12, 1")
    a("s_waitcnt vmcnt(0)")
    a("ds_write_b32 v%d, v12 offset:%d" % (vC, C_XS))
    stamp(a, 2)
    a("s_branch L_att")

    a.c("---- gate / up projections of the routed token")
    a.label("L_sp_ffn")
    a("s_load_dwordx4 s[40:43], s[0:1], 40")
    a("v_mov_b32 v3, %d" % CTL)
    for k in range(4):
        a("v_mov_b32 v%d, 0" % (4 + k))
    a("v_lshlrev_b32 v1, 4, v0")
    a("v_add_u32 v2, v1, v3")
    a("s_mov_b64 exec, 0xff")
    a("ds_write_b128 v2, v[4:7]")
    a("s_mov_b64 exec, -1")
    a("v_lshlrev_b32 v2, 2, v0")
    a("v_add_u32 v2, %d, v2" % (XS + 1152))
    a("ds_write_b32 v2, v4")
    a("s_sub_u32 s59, s3, 8")
    a("s_mul_i32 s37, s36, 57")
    a("s_lshr_b32 s37, s37, 9")
    a("s_mul_i32 s38, s37, 9")
    a("s_sub_u32 s38, s36, s38")
    a("s_mul_i32 s49, s37, 84")
    a("s_mul_i32 s39, s49, 9216")
    a("s_lshl_b32 s48, s38, 10")
    a("s_add_u32 s39, s39, s48")
    a("s_sub_u32 s48, %d, s39" % (576 * 9216))
    a("s_min_i32 s48, s48, %d" % (83 * 9216 + 1024))
    a("s_max_i32 s48, s48, 0")
    a("v_lshrrev_b32 v160, 5, v0")
    a("v_mul_u32_u24 v160, 9216, v160")
    a("v_and_b32 v161, 31, v0")
    a("v_lshl_add_u32 v160, v161, 4, v160")
    a("s_mul_i32 s57, s59, 20480")
    a("s_add_u32 s57, s57, %d" % WO)
    a("s_mul_i32 s58, s59, %d" % (2 * 9216))
    a("s_waitcnt lgkmcnt(0)")
    load_tag(a)
    srd_off(a, 16, 40, "s39", "s48")
    srd_off(a, 20, 42, "s39", "s48")
    a("s_waitcnt lgkmcnt(0)")
    make_tag(a)
    a("s_barrier")
    if OPT["fdel"]:
        lds_spin(a, "L_sp_fd", 3, C_KCNT, 10, (4,), 2)
        if OPT["fdel"] > 1:
            a("s_sleep %d" % OPT["fdel"])
    for i in range(5):
        a("s_add_u32 s55, s58, %d" % (8 * (6 + i) * 9216))
        a("s_add_u32 s56, s55, 512")
        for k in range(4):
            a("s_add_u32 m0, s57, %d" % ((4 * i + k) * 1024))
            a("buffer_load_dwordx4 v160, s[%d:%d], s%d offen nt lds" % (16 + 4 * (k >> 1), 19 + 4 * (k >> 1), 55 + (k & 1)))
            if OPT["thr"] and 4 * i + k >= OPT["thr"] - 1:
                a("s_waitcnt vmcnt(%d)" % (OPT["thr"] - 1))
    for i in range(6):
        a("s_add_u32 s55, s58, %d" % (8 * i * 9216))
        for k in range(4):
            a("buffer_load_dwordx4 %s, v160, s[%d:%d], s55 offen offset:%d nt" % (
                vr(GW + 16 * i + 4 * k, 4), 16 + 4 * (k >> 1), 19 + 4 * (k >> 1), 512 * (k & 1)))
            if OPT["thr"]:
                a("s_waitcnt vmcnt(%d)" % (OPT["thr"] - 1))
    a("s_lshl_b32 s55, s59, 1")
    a("s_add_u32 s55, s55, s49")
    a("v_lshrrev_b32 v51, 5, v0")
    a("v_add_u32 v51, s55, v51")
    a("v_lshlrev_b32 v51, 1, v51")
    a("v_add_u32 v51, %d, v51" % XS)
    a("v_and_b32 v2, 1, v0")
    a("v_lshlrev_b32 v2, 4, v2")
    a("v_lshrrev_b32 v4, 1, v0")
    a("v_xor_b32 v4, v4, v0")
    a("v_and_b32 v4, 8, v4")
    a("v_bfe_u32 v5, v0, 1, 2")
    a("v_or_b32 v4, v4, v5")
    for q in range(4):
        a("v_cmp_eq_u32 s[%d:%d], %d, v4" % (40 + 2 * q, 41 + 2 * q, q))
    a("v_bfe_u32 v4, v0, 3, 1")
    a("v_lshlrev_b32 v4, 9, v4")
    a("v_lshrrev_b32 v5, 4, v0")
    a("v_lshl_add_u32 v4, v5, 7, v4")
    a("v_and_b32 v5, 7, v0")
    a("v_lshl_add_u32 v4, v5, 2, v4")
    a("v_add_u32 v6, s57, v4")
    a("v_add_u32 v52, s57, v1")
    a("s_lshl_b32 s55, s59, 9")
    a("v_lshlrev_b32 v8, 3, v0")
    a("v_add_u32 v8, s55, v8")
    a("s_mul_i32 s52, s37, %d" % (4608 * 16))
    a("s_lshl_b32 s55, s38, 13")
    a("s_add_u32 s52, s52, s55")
    a("s_add_u32 s52, s52, %d" % L.WS_PA)
    a("v_lshlrev_b32 v9, 2, v8")
    a("v_add_u32 v9, s52, v9")
    a("v_add_u32 v8, %d, v8" % WO)
    stamp(a, 3)
    lds_spin(a, "L_sp_xs", 3, C_XS, 10, (1,), 2)
    a("s_setprio %d" % OPT["pr2"])
    stamp(a, 7)
    for i in range(11):
        a("ds_read_u16 v%d, v51 offset:%d" % (53 + i, 16 * i))
    a("s_waitcnt vmcnt(24)")
    for k in range(4):
        a("ds_read_b128 %s, v52 offset:%d" % (vr(32 + 4 * k, 4), 1024 * k))
    a("s_waitcnt lgkmcnt(4)")
    for i in range(11):
        a("v_lshlrev_b32 v%d, v2, v%d" % (53 + i, 53 + i))
    first = True
    for i in range(5):
        selector(a, 12, 53 + 6 + i, 40)
        for k in range(4):
            d = vr(16 + 4 * k, 4)
            a("s_waitcnt lgkmcnt(%d)" % (3 if i < 4 else 3 - k))
            a("v_mfma_f32_16x16x32_bf16 %s, %s, v[12:15], %s" % (d, vr(32 + 4 * k, 4), "0" if first else d))
            if i < 4:
                a("ds_read_b128 %s, v52 offset:%d" % (vr(32 + 4 * k, 4), 1024 * (4 * (i + 1) + k)))
        first = False
    stamp(a, 12)
    for i in range(6):
        selector(a, 12, 53 + i, 40)
        a("s_waitcnt vmcnt(%d)" % (4 * (5 - i)))
        for k in range(4):
            d = vr(16 + 4 * k, 4)
            a("v_mfma_f32_16x16x32_bf16 %s, %s, v[12:15], %s" % (d, vr(GW + 16 * i + 4 * k, 4), d))
    stamp(a, 11)
    for k in range(4):
        for r in range(4):
            a("ds_write_b32 v6, v%d offset:%d" % (16 + 4 * k + r, 1024 * k + 32 * r))
    lds_inc(a, 3, 10, C_RED)
    lds_spin(a, "L_sp_rd", 3, C_RED, 10, (4,), 0)
    for p in range(4):
        a("ds_read_b64 %s, v8 offset:%d" % (vr(16 + 4 * p, 2), 20480 * p))
        a("ds_read_b64 %s, v8 offset:%d" % (vr(18 + 4 * p, 2), 20480 * p + 2048))
    a("v_mov_b32 v34, s%d" % TAG)
    a("v_mov_b32 v38, s%d" % TAG)
    a("s_waitcnt lgkmcnt(0)")
    lds_inc(a, 3, 10, C_RED2)
    for p in (2, 1):
        for h in range(2 * p):
            a("v_pk_add_f32 %s, %s, %s" % (vr(16 + 2 * h, 2), vr(16 + 2 * h, 2), vr(16 + 4 * p + 2 * h, 2)))
    a("v_mov_b32 v32, v16")
    a("v_mov_b32 v33, v18")
    a("v_mov_b32 v36, v17")
    a("v_mov_b32 v37, v19")
    a("s_cmp_eq_u32 s36, 63")
    a("s_cbranch_scc1 L_sp_nost")
    a("global_store_dwordx4 v9, v[32:35], s[8:9] sc1")
    a("global_store_dwordx4 v9, v[36:39], s[8:9] offset:16 sc1")
    a.label("L_sp_nost")
    stamp(a, 4)
    lds_spin(a, "L_sp_r2", 3, C_RED2, 10, (4,), 0)
    a("s_branch L_help2")


def attn_loop(a):
    for i in range(9):
        if OPT["bal"] and i == 0:
            a("s_cmp_lt_u32 s3, 4")
            a("s_cbranch_scc1 L_bal0")
            a("s_setprio 1")
            a.label("L_bal0")
        if OPT["bal"] and i == OPT["bal"]:
            a("s_setprio 0")
        a.label("L_it%d" % i)
        S, P = SS[i & 1], PP[i & 1]
        ex = ["v_exp_f32 v%d, v%d" % (S + r, S + r) for r in range(16)]
        cv = ["v_cvt_pk_bf16_f32 v%d, v%d, v%d" % (P + q, S + 2 * q, S + 2 * q + 1) for q in range(8)]
        if i == 0:
            mk = ["v_bfi_b32 v%d, v%d, 0, v%d" % (P + q, MSK + q, P + q) for q in range(8)]
        elif i == 8:
            mk = ["v_and_b32 v%d, v%d, v%d" % (P + q, MSK + q, P + q) for q in range(8)]
        else:
            mk = []
        m1 = qk(i + 1) if i < 8 else []
        m2 = pv(i - 1, i == 1) if i > 0 else []
        a("s_waitcnt lgkmcnt(%d)" % (4 if 0 < i < 8 else 0))
        seq = m1[:1] + ex[0:4] + m1[1:] + (k_reads(i + 2) if i + 2 <= 8 else []) + ex[4:8] + cv[0:2] + m2[:1] + \
            ex[8:12] + cv[2:4] + m2[1:]
        if i + 1 <= 8:
            seq += ["v_add_u32 v%d, v%d, v%d" % (vV, vV, vStep)] + v_reads(i + 1)
        seq += ex[12:16] + cv[4:8] + mk
        for x in seq:
            a(x)
    lds_spin(a, "L_pz", vC, C_C, T, (1,), 0)
    for x in pv(8, False):
        a(x)


def attention_phase(a):
    a.c("---- attention: set-up, wait for the producers, K/V/Q into LDS")
    a.label("L_att")
    decode2(a)
    a("s_mul_i32 s33, s31, %d" % L.PAIR_BYTES)
    a("s_mul_i32 s34, s32, 9216")
    a("s_add_u32 s33, s33, s34")
    a("v_mov_b32 v%d, %d" % (vC, CTL))
    KS, VS = 16 * L.PAIR_BYTES - 18432, 32 * L.PAIR_BYTES - 18432
    grp = [(QB, 0), (KB, KS), (VB, VS), (KB + 9216, KS + 9216), (VB + 9216, VS + 9216), (KB + 18432, KS + 18432), (VB + 18432, VS + 18432)]
    a("s_lshl_b32 s34, s3, 10")
    for j in range(8):
        lo, hi = (8 * j) // 9, min(8 * j + 7, 62) // 9
        l0, g0 = grp[lo][0] + (8 * j - 9 * lo) * 1024, grp[lo][1] + (8 * j - 9 * lo) * 1024
        l1, g1 = grp[hi][0] + (8 * j - 9 * hi) * 1024, grp[hi][1] + (8 * j - 9 * hi) * 1024
        if j == 7:
            a("s_min_u32 s34, s34, %d" % (6 * 1024))
        if lo == hi:
            a("s_add_u32 s%d, s34, %d" % (16 + j, l0))
            a("s_add_u32 s%d, s33, %d" % (44 + j, g0 - l0 & 0xffffffff))
        else:
            a("s_mov_b32 s35, %d" % l0)
            a("s_mov_b32 s36, %d" % (g0 - l0 & 0xffffffff))
            a("s_cmp_ge_u32 s3, %d" % (9 * hi - 8 * j))
            a("s_cselect_b32 s35, %d, s35" % (l1 & 0xffffffff))
            a("s_cselect_b32 s36, %d, s36" % (g1 - l1 & 0xffffffff))
            a("s_add_u32 s%d, s34, s35" % (16 + j))
            a("s_add_u32 s%d, s33, s36" % (44 + j))
        a("s_add_u32 s%d, s%d, s%d" % (44 + j, 44 + j, 16 + j))
    a("v_mov_b32 v10, s63")
    a("v_mov_b32 v11, s%d" % TAG)
    a("s_waitcnt vmcnt(0)")
    lds_inc(a, vC, 9, C_1, rtn=True)
    a("s_cmp_lg_u32 s63, 0")
    a("s_cselect_b32 s35, 7, 99")
    a("s_waitcnt lgkmcnt(0)")
    a("v_readfirstlane_b32 s36, v9")
    a("s_cmp_eq_u32 s36, s35")
    a("s_cbranch_scc0 L_nofl1")
    a("s_mov_b64 exec, 1")
    a("global_store_dword v10, v11, s[8:9] sc1")
    a("s_mov_b64 exec, -1")
    a.label("L_nofl1")
    stamp(a, 4)
    a("s_and_b32 s42, s3, 1")
    a("s_lshr_b32 s43, s3, 1")
    a("s_mul_i32 s35, s43, 2304")
    a("s_mul_i32 s36, s42, 40")
    a("v_and_b32 v%d, 31, v0" % T)
    a("v_lshrrev_b32 v%d, 5, v0" % (T + 1))
    a("v_mul_u32_u24 v%d, 72, v%d" % (vKt, T))
    a("v_add_u32 v%d, s35, v%d" % (vKt, vKt))
    a("v_lshl_add_u32 v%d, v%d, 4, v%d" % (vK, T + 1, vKt))
    a("v_add_u32 v%d, s36, v%d" % (vK, vK))
    a("v_add_u32 v%d, 32, v%d" % (vKt, vKt))
    a("v_bfe_u32 v%d, v0, 2, 2" % (T + 2))
    a("v_lshl_add_u32 v%d, v%d, 2, v%d" % (T + 2, T + 1, T + 2))
    a("v_mul_u32_u24 v%d, 72, v%d" % (T + 2, T + 2))
    a("s_add_u32 s37, s35, %d" % VB)
    a("v_add_u32 v%d, s37, v%d" % (T + 2, T + 2))
    a("v_and_b32 v%d, 3, v0" % (T + 3))
    a("v_lshlrev_b32 v%d, 3, v%d" % (T + 4, T + 3))
    a("v_add_u32 v%d, s36, v%d" % (T + 4, T + 4))
    a("v_and_b32 v%d, 16, v0" % (T + 5))
    a("v_cmp_eq_u32 s[38:39], 0, v%d" % (T + 5))
    a("v_cndmask_b32 v%d, 32, v%d, s[38:39]" % (T + 4, T + 4))
    a("v_add_u32 v%d, v%d, v%d" % (vV, T + 2, T + 4))
    a("v_and_b32 v%d, 19, v0" % (T + 5))
    a("v_cmp_lt_u32 s[38:39], 16, v%d" % (T + 5))
    a("v_mov_b32 v%d, %d" % (T + 6, ONES))
    a("v_cndmask_b32 v%d, v%d, v%d, s[38:39]" % (vV, vV, T + 6))
    a("v_mov_b32 v%d, 2304" % (T + 6))
    a("v_cndmask_b32 v%d, v%d, 0, s[38:39]" % (vStep, T + 6))
    a("v_lshlrev_b32 v%d, 2, v%d" % (T + 2, T + 1))
    a("v_sub_u32 v%d, v%d, v%d" % (T + 2, T, T + 2))
    a("v_mov_b32 v%d, 0xffff" % (T + 3))
    for q in range(8):
        kl = 8 * (q >> 1) + 2 * (q & 1)
        a("v_cmp_le_i32 s[38:39], %d, v%d" % (kl, T + 2))
        a("v_cmp_le_i32 s[40:41], %d, v%d" % (kl + 1, T + 2))
        a("v_cndmask_b32 v%d, 0, v%d, s[38:39]" % (MSK + q, T + 3))
        a("v_cndmask_b32 v%d, v%d, -1, s[40:41]" % (MSK + q, MSK + q))
    a("s_lshl_b32 s41, s32, 2")
    a("s_add_u32 s41, s41, s43")
    a("s_sub_i32 s41, 8, s41")
    a("s_lshl_b32 s35, s32, 3")
    a("s_lshl_b32 s36, s43, 1")
    a("s_add_u32 s35, s35, s36")
    a("s_mul_i32 s35, s35, 18432")
    a("s_lshl_b32 s58, s31, 10")
    a("s_lshl_b32 s36, s42, 9")
    a("s_add_u32 s58, s58, s36")
    a("s_add_u32 s58, s58, s35")
    a("s_lshr_b32 s59, s31, 1")
    a("s_lshl_b32 s59, s59, 8")
    a("s_and_b32 s36, s31, 1")
    a("s_lshl_b32 s36, s36, 3")
    a("s_add_u32 s59, s59, s36")
    a("s_lshl_b32 s36, s42, 2")
    a("s_add_u32 s59, s59, s36")
    a("s_add_u32 s59, s59, s35")
    a("s_add_u32 s59, s59, 16384")
    a("v_bfe_u32 v152, v0, 4, 1")
    a("v_mul_u32_u24 v152, 18432, v152")
    a("v_and_b32 v153, 15, v0")
    a("v_lshl_add_u32 v152, v153, 4, v152")
    a("v_lshrrev_b32 v153, 5, v0")
    a("v_lshl_add_u32 v153, v153, 8, v152")
    a("v_cmp_gt_u32 vcc, 32, v0")
    a("s_cmp_eq_u32 s42, 0")
    a("s_cselect_b64 s[54:55], vcc, 0")
    a("s_cselect_b64 s[56:57], 0, vcc")
    a("v_and_b32 v%d, 3, v0" % (T + 2))
    a("v_mul_u32_u24 v%d, 576, v%d" % (T + 2, T + 2))
    a("v_mov_b32 v%d, 0x3f803f80" % (T + 4))
    a("v_mov_b32 v%d, v%d" % (T + 5, T + 4))
    a("v_lshlrev_b32 v%d, 4, v0" % (T + 3))
    srd_off(a, 36, 8, L.WS_QKV, L.QKV_BYTES)
    srd_off(a, 24, 8, L.WS_O, 128 * 18432)
    a("s_add_u32 s40, s3, 2")
    a("s_cmp_lt_u32 s3, 4")
    a("s_cselect_b32 s40, s3, s40")
    out_setup(a, 40)
    a("s_lshr_b32 s35, s2, 6")
    a("s_lshl_b32 s35, s35, 4")
    a("s_add_u32 s35, s35, s3")
    a("s_cmp_eq_u32 s35, %d" % (3 * 16 + 6))
    a("s_cbranch_scc0 L_nq2")
    lds_spin(a, "L_sp_x6", vC, C_XS, T + 8, (1,), 8)
    qpoll(a, vC, "L_qp2", False, T + 8)
    a.label("L_nq2")
    lds_spin(a, "L_go1", vC, C_1, T, (8, 1), OPT["g1s"])
    stamp(a, 5)
    for j in range(8):
        a("s_mov_b32 m0, s%d" % (16 + j))
        a("s_nop 0")
        a("buffer_load_dwordx4 v%d, s[36:39], s%d offen %s lds" % (T + 3, 44 + j, OPT["kvl"]))
    a("ds_write_b64 v%d, %s offset:%d" % (T + 2, vr(T + 4, 2), ONES))
    a("s_cmp_lt_u32 s32, 2")
    a("s_cbranch_scc1 L_late")
    landed(a, 1, 0)
    stage_spin(a, "L_sA", 0)
    stamp(a, 6)
    for x in q_reads() + k_reads(0) + k_reads(1) + v_reads(0):
        a(x)
    a("s_waitcnt lgkmcnt(7)")
    a("v_cndmask_b32 v%d, 0, v%d, s[54:55]" % (QT, QT))
    a("v_cndmask_b32 v%d, 0, v%d, s[56:57]" % (QT + 1, QT + 1))
    for x in qk(0):
        a(x)
    lds_inc(a, vC, T, C_B)
    x_loads(a)
    attn_loop(a)
    a.c("---- softmax range check; true-max path if it fails")
    a.label("L_check")
    stamp(a, 7)
    a("s_mov_b32 s46, %s" % f32(2.0 ** 60))
    a("s_mov_b32 s47, %s" % f32(2.0 ** -60))
    a("s_mov_b32 s48, 0x7f800000")
    a("s_nop 7")
    a("s_nop 0")
    a("v_rcp_f32 v%d, v%d" % (T, OO + 12))
    a("v_cmp_gt_f32 s[50:51], s46, v%d" % (OO + 12))
    a("v_cmp_lt_f32 vcc, s47, v%d" % (OO + 12))
    for k in range(6):
        a("v_add_f32 v%d, abs(v%d), abs(v%d)" % (T + 2 + k, OO + 2 * k, OO + 2 * k + 1))
    a("s_and_b64 s[50:51], s[50:51], vcc")
    a("v_pk_add_f32 %s, %s, %s" % (vr(T + 2, 2), vr(T + 2, 2), vr(T + 4, 2)))
    a("v_pk_add_f32 %s, %s, %s" % (vr(T + 2, 2), vr(T + 2, 2), vr(T + 6, 2)))
    a("v_add_f32 v%d, v%d, v%d" % (T + 2, T + 2, T + 3))
    a("v_cmp_gt_f32 vcc, s48, v%d" % (T + 2))
    a("s_and_b64 s[50:51], s[50:51], vcc")
    a("s_cmp_eq_u64 s[50:51], -1")
    a("s_cbranch_scc0 L_slow")
    a.label("L_fin")
    a("s_cmp_eq_u32 s42, 0")
    a("s_cbranch_scc1 L_fa")
    a("v_mov_b32 v%d, v%d" % (OO + 8, OO + 10))
    a("v_mov_b32 v%d, v%d" % (OO + 9, OO + 11))
    a.label("L_fa")
    for k in range(0, 10, 2):
        a("v_pk_mul_f32 %s, %s, %s op_sel_hi:[1,0]" % (vr(OO + k, 2), vr(OO + k, 2), vr(T, 2)))
    for q in range(5):
        a("v_cvt_pk_bf16_f32 v%d, v%d, v%d" % (T + 4 + q, OO + 2 * q, OO + 2 * q + 1))
    a("buffer_store_dwordx4 %s, v153, s[24:27], s58 offen sc1" % vr(T + 4, 4))
    a("s_mov_b32 exec_hi, 0")
    a("buffer_store_dword v%d, v152, s[24:27], s59 offen sc1" % (T + 8))
    a("s_mov_b32 exec_hi, -1")


def q_reads():
    return ["ds_read_b64 %s, v%d offset:%d" % (vr(QM, 2), vK, QB),
            "ds_read_b64 %s, v%d offset:%d" % (vr(QM + 2, 2), vK, QB + 8),
            "ds_read_b64 %s, v%d offset:%d" % (vr(QT, 2), vKt, QB)]


sKH, sPAIR, sTILE, sGATE, sSLOT, sOB, sXO = 6, 7, 13, 14, 15, 28, 29
A0, vXO, vRW, vCH, vSW, vSR, vL16, vPX, vPF = 156, 142, 140, 141, 143, 144, 162, 160, 161
GB = 154624


def out_setup(a, role):
    a("s_and_b32 s%d, s%d, 1" % (sKH, role))
    a("s_lshr_b32 s%d, s%d, 1" % (sPAIR, role))
    a("s_mul_i32 s%d, s52, 5" % sTILE)
    a("s_and_b32 s33, s%d, 7" % sTILE)
    a("s_sub_u32 s34, 8, s33")
    a("s_cmp_lt_u32 s33, 4")
    a("s_cselect_b32 s34, 0, s34")
    a("s_add_u32 s34, s34, s%d" % sPAIR)
    a("s_sub_u32 s35, s34, 5")
    a("s_cmp_ge_u32 s34, 5")
    a("s_cselect_b32 s34, s35, s34")
    a("s_add_u32 s%d, s%d, s34" % (sTILE, sTILE))
    a("s_lshl_b32 s98, s34, 6")
    a("s_mov_b32 s%d, 0x404" % sGATE)
    a("s_bitcmp1_b32 s%d, 2" % sTILE)
    if not OPT["allg"]:
        a("s_cselect_b32 s%d, s%d, 4" % (sGATE, sGATE))
    a("s_mov_b32 s%d, %d" % (sSLOT, PSLOT[0]))
    for p in range(1, 5):
        a("s_cmp_eq_u32 s%d, %d" % (sPAIR, p))
        a("s_cselect_b32 s%d, %d, s%d" % (sSLOT, PSLOT[p], sSLOT))
    a("s_mul_i32 s%d, s%d, 18432" % (sOB, sTILE))
    a("s_lshl_b32 s33, s53, 7")
    a("s_add_u32 s%d, s%d, s33" % (sXO, sOB))
    a("s_lshl_b32 s33, s%d, 6" % sKH)
    a("s_add_u32 s%d, s%d, s33" % (sXO, sXO))
    a("s_mul_i32 s33, s%d, 9216" % sKH)
    a("s_add_u32 s%d, s%d, s33" % (sOB, sOB))
    a("s_add_u32 s96, s%d, 4096" % sOB)
    a("s_add_u32 s97, s%d, 8192" % sOB)
    a("v_lshrrev_b32 v%d, 2, v0" % vRW)
    a("v_and_b32 v%d, 3, v0" % vCH)
    a("v_mul_u32_u24 v%d, 1152, v%d" % (vXO, vRW))
    a("v_lshl_add_u32 v%d, v%d, 4, v%d" % (vXO, vCH, vXO))
    a("v_lshrrev_b32 v146, 2, v0")
    a("v_bfe_u32 v147, v0, 3, 2")
    a("v_lshlrev_b32 v147, 1, v147")
    a("v_bfe_u32 v148, v0, 1, 1")
    a("v_xor_b32 v147, v147, v148")
    a("v_and_b32 v148, 1, v0")
    a("v_lshlrev_b32 v148, 3, v148")
    a("v_lshl_add_u32 v148, v146, 7, v148")
    a("v_lshl_add_u32 v148, v147, 4, v148")
    a("s_mul_i32 s33, s%d, %d" % (sKH, 9 * 4096))
    a("s_add_u32 s33, s33, %d" % WO)
    a("s_lshl_b32 s34, s%d, 6" % sKH)
    a("v_xor_b32 v148, s34, v148")
    for t in range(4):
        a("v_xor_b32 v%d, %d, v148" % (A0 + t, 32 * t))
        a("v_add_u32 v%d, s33, v%d" % (A0 + t, A0 + t))
    a("v_lshlrev_b32 v%d, 4, v0" % vL16)
    a("s_lshl_b32 s33, s%d, 11" % sKH)
    a("s_add_u32 s%d, s%d, s33" % (sSLOT, sSLOT))
    a("v_add_u32 v%d, s%d, v%d" % (vPX, sSLOT, vL16))
    a("s_lshl_b32 s33, s33, 1")
    a("s_sub_u32 s33, 2048, s33")
    a("v_add_u32 v164, s33, v%d" % vPX)
    a("s_lshl_b32 s33, s%d, 1" % sPAIR)
    a("s_add_u32 s33, s33, s%d" % sKH)
    a("s_lshl_b32 s33, s33, 2")
    a("s_add_u32 s33, s33, %d" % CTL)
    a("v_mov_b32 v%d, s33" % vPF)
    a("v_xor_b32 v165, 4, v%d" % vPF)
    a("v_and_b32 v%d, 15, v0" % vSW)
    a("v_mul_u32_u24 v%d, 80, v%d" % (vSW, vSW))
    a("v_lshrrev_b32 v146, 4, v0")
    a("v_lshlrev_b32 v146, 3, v146")
    a("v_add3_u32 v%d, v%d, v146, s%d" % (vSW, vSW, sSLOT))
    a("v_mul_u32_u24 v%d, 80, v%d" % (vSR, vRW))
    a("v_lshl_add_u32 v%d, v%d, 4, v%d" % (vSR, vCH, vSR))
    a("v_add_u32 v%d, s%d, v%d" % (vSR, sSLOT, vSR))
    a("s_add_u32 s98, s98, %d" % GB)
    a("v_lshl_add_u32 v145, v%d, 2, s98" % vRW)
    a("s_cmp_lt_u32 s3, 4")
    a("s_cselect_b32 s33, 1, 0x100")
    a("v_mov_b32 v163, s33")


def x_loads(a):
    srd(a, 20, 4, 2048 * 1152)
    a("buffer_load_dwordx4 %s, v%d, s[20:23], s%d offen" % (vr(XR, 4), vXO, sXO))


def out_phase(a):
    WFR, OF, ACC, PX = (20, 36, 100), 64, (52, 56, 60, 116), (146, 120)
    a("s_cmp_ge_u32 s52, 26")
    a("s_cbranch_scc1 L_end")
    if not OPT["gissue"]:
        a("s_waitcnt vmcnt(0)")
    stamp(a, 8)
    a("s_mov_b64 exec, 1")
    a("ds_add_u32 v%d, v163 offset:%d" % (vC, C_O))
    a("s_mov_b64 exec, -1")
    a.c("---- output projection and gated mix")
    a.label("L_out")

    def omx():
        for j in range(1):
            for q in range(4):
                xv = XR + 4 * j + q
                d = PX[j] + 2 * q
                a("v_lshlrev_b32 v%d, 16, v%d" % (d, xv))
                a("v_and_b32 v%d, 0xffff0000, v%d" % (d + 1, xv))
                a("v_pk_mul_f32 %s, %s, %s op_sel:[0,1] op_sel_hi:[1,1]" % (vr(d, 2), vr(d, 2), vr(GR + 2 * j, 2)))

    def reads(sl):
        st = WFR[sl % 3]
        return ["ds_read_b64_tr_b16 %s, v%d offset:%d" % (vr(st + 4 * t + 2 * sec, 2), A0 + t, (32 * sl + 16 * sec) * 128)
                for t in range(4) for sec in range(2)]

    lds_spin(a, "L_wo", vC, C_WO, 10, (2,), 0)
    for x in reads(0) + reads(1):
        a(x)
    a("s_mov_b32 s60, 0x200000")
    a.label("L_go2")
    a("ds_read_b64 v[10:11], v%d offset:%d" % (vC, C_O))
    a("s_waitcnt lgkmcnt(0)")
    a("v_readfirstlane_b32 s61, v10")
    a("v_readfirstlane_b32 s62, v11")
    a("s_and_b32 s61, s61, s%d" % sGATE)
    a("s_cmp_eq_u32 s61, s%d" % sGATE)
    a("s_cselect_b32 s62, s62, 0")
    a("s_cmp_eq_u32 s62, 1")
    a("s_cbranch_scc1 L_go2_d")
    a("s_sub_u32 s60, s60, 1")
    a("s_cbranch_scc0 L_go2")
    a.label("L_go2_d")
    if OPT["gissue"] == 2:
        a("s_cmp_eq_u32 s60, 0x200000")
        a("s_cbranch_scc1 L_go2_e")
        a("s_sleep %d" % OPT["cdel"])
        a.label("L_go2_e")
        a("s_waitcnt vmcnt(0)")
    elif OPT["cdel"]:
        a("s_sleep %d" % OPT["cdel"])
    stamp(a, 9)
    LAO = OPT["lao"]

    def oload(s):
        a("buffer_load_dwordx4 %s, v%d, s[24:27], s%d offen offset:%d sc1" % (vr(OF + 4 * s, 4), vL16, (sOB, 96, 97)[s // 4], 1024 * (s % 4)))

    def ocheck(sl):
        b = OF + 4 * sl
        if sl < 7:
            a("v_cmp_eq_u32 vcc, -1, v%d" % b)
        else:
            a("v_max3_u32 v10, v%d, v%d, v%d" % (b, b + 1, b + 2))
            a("v_max_u32 v10, v10, v%d" % (b + 3))
            a("v_cmp_eq_u32 vcc, -1, v10")
        a("s_nop 1")

    def oretry():
        for sl in range(9):
            a.label("L_or%d" % sl)
            a("s_sub_u32 s60, s60, 1")
            a("s_cbranch_scc1 L_ok%d" % sl)
            a("s_waitcnt vmcnt(0)")
            for s in range(sl, min(sl + LAO, 9)):
                oload(s)
            a("s_waitcnt vmcnt(%d)" % min(LAO - 1, 8 - sl))
            a("s_branch L_oc%d" % sl)

    RETRY.append(oretry)
    a("s_mov_b32 s60, 0x8000")
    for s in range(LAO):
        oload(s)
    a("ds_read_b32 v%d, v145" % GR)
    a("ds_read_b32 v10, v%d offset:%d" % (vC, C_IDX))
    srd(a, 20, 10, 2048 * 1152)
    a("s_waitcnt lgkmcnt(0) vmcnt(%d)" % LAO)
    a("v_readfirstlane_b32 s12, v10")
    a("v_sub_f32 v%d, 1.0, v%d" % (GR + 1, GR))
    bf16_round(a, GR + 1, GR + 1)
    omx()
    for sl in range(9):
        rd = reads(sl + 2) if sl < 7 else []
        a("s_waitcnt vmcnt(%d) lgkmcnt(%d)" % (min(LAO - 1, 8 - sl), 8 if sl < 8 else 0))
        a.label("L_oc%d" % sl)
        ocheck(sl)
        a("s_cbranch_vccnz L_or%d" % sl)
        a.label("L_ok%d" % sl)
        for t in range(4):
            d = vr(ACC[t], 4)
            a("v_mfma_f32_16x16x32_bf16 %s, %s, %s, %s" % (d, vr(WFR[sl % 3] + 4 * t, 4), vr(OF + 4 * sl, 4), "0" if sl == 0 else d))
            if t == 0 and sl + LAO < 9:
                oload(sl + LAO)
            for x in rd[2 * t:2 * t + 2]:
                a(x)
    stamp(a, 10)
    if OPT["stamp"]:
        a("s_sub_u32 s94, 0x8000, s60")
        a("s_mul_i32 s94, s94, 100")
        a("s_add_u32 s94, s94, s66")
        a("s_addc_u32 s95, s67, 0")
    a("v_mov_b32 v10, 1")
    a("ds_write_b128 v164, %s" % vr(ACC[2], 4))
    a("ds_write_b128 v164, %s offset:1024" % vr(ACC[3], 4))
    a("ds_write_b32 v165, v10 offset:%d" % C_PART)
    a("s_lshr_b32 s46, s12, 4")
    a("s_cmp_eq_u32 s46, s%d" % sTILE)
    a("s_cbranch_scc0 L_noy")
    lds_spin(a, "L_yw", vC, C_YRDY, 10, (1,))
    a("s_lshl_b32 s46, s%d, 7" % sKH)
    a("s_add_u32 s46, s46, %d" % YB)
    a("v_lshl_add_u32 v10, v%d, 5, s46" % vCH)
    a("ds_read_b128 v[12:15], v10")
    a("ds_read_b128 v[16:19], v10 offset:16")
    a("s_and_b32 s46, s12, 15")
    a("v_cmp_eq_u32 s[50:51], s46, v%d" % vRW)
    a("s_waitcnt lgkmcnt(0)")
    for q in range(4):
        xv = XR + q
        a("v_lshlrev_b32 v10, 16, v%d" % xv)
        a("v_and_b32 v11, 0xffff0000, v%d" % xv)
        a("v_add_f32 v10, v10, v%d" % (12 + 2 * q))
        a("v_add_f32 v11, v11, v%d" % (13 + 2 * q))
        a("v_cvt_pk_bf16_f32 v10, v10, v11")
        a("v_cndmask_b32 v%d, v%d, v10, s[50:51]" % (xv, xv))
    omx()
    a.label("L_noy")
    lds_spin(a, "L_pw", vPF, C_PART, 10, (1,), 0)
    stamp(a, 11)
    for t in range(2):
        a("ds_read_b128 %s, v%d offset:%d" % (vr(20 + 4 * t, 4), vPX, 1024 * t))
    a("s_waitcnt lgkmcnt(0)")
    for t in range(2):
        b = ACC[t]
        a("v_pk_add_f32 %s, %s, %s" % (vr(b, 2), vr(b, 2), vr(20 + 4 * t, 2)))
        a("v_pk_add_f32 %s, %s, %s" % (vr(b + 2, 2), vr(b + 2, 2), vr(22 + 4 * t, 2)))
        a("v_cvt_pk_bf16_f32 v%d, v%d, v%d" % (40 + 2 * t, b, b + 1))
        a("v_cvt_pk_bf16_f32 v%d, v%d, v%d" % (41 + 2 * t, b + 2, b + 3))
        a("ds_write_b64 v%d, %s offset:%d" % (vSW, vr(40 + 2 * t, 2), 32 * t))
    a("ds_read_b128 v[20:23], v%d" % vSR)
    a("s_waitcnt lgkmcnt(0)")
    for q in range(4):
        d = PX[0] + 2 * q
        a("v_lshlrev_b32 v%d, 16, v%d" % (10 + 2 * q, 20 + q))
        a("v_and_b32 v%d, 0xffff0000, v%d" % (11 + 2 * q, 20 + q))
        a("v_pk_fma_f32 %s, %s, %s, %s op_sel_hi:[1,0,1]" % (vr(d, 2), vr(10 + 2 * q, 2), vr(GR, 2), vr(d, 2)))
    for q in range(4):
        d = PX[0] + 2 * q
        a("v_cvt_pk_bf16_f32 v%d, v%d, v%d" % (32 + q, d, d + 1))
    a("buffer_store_dwordx4 v[32:35], v%d, s[20:23], s%d offen %s" % (vXO, sXO, OPT["ost"]))
    if OPT["stamp"]:
        stamp(a, 12)
        a("s_waitcnt vmcnt(0)")
        stamp(a, 13)
        stamp_end(a, OPT["stw"], 0)
        stamp_end(a, 10, 2)
    a("s_endpgm")


RETRY = []
GLATE = []


def late_and_slow(a):
    RETRY[0]()
    a.c("---- first two query blocks: key tiles before the sequence start are skipped")
    a.label("L_late")
    a("s_mul_i32 s50, s41, 2304")
    a("v_add_u32 v%d, s50, v%d" % (T + 8, vK))
    a("v_add_u32 v%d, s50, v%d" % (T + 9, vKt))
    a("v_mul_u32_u24 v%d, s41, v%d" % (T + 2, vStep))
    a("v_add_u32 v%d, v%d, v%d" % (vV, vV, T + 2))
    for r in list(range(OO, OO + 16)) + list(range(VF[0], VF[0] + 32)):
        a("v_mov_b32 v%d, 0" % r)
    landed(a, 1, 0)
    stage_spin(a, "L_lt", 0)
    for x in q_reads():
        a(x)
    a("s_waitcnt lgkmcnt(0)")
    lds_inc(a, vC, T, C_B)
    x_loads(a)
    a("s_bitcmp1_b32 s41, 0")
    a("s_cbranch_scc1 L_late1")
    for par in range(2):
        if par:
            a.label("L_late1")
        for x in k_reads(par, T + 8, T + 9, 0):
            a(x)
        for x in k_reads(par + 1, T + 8, T + 9, 0):
            a(x.replace("offset:8", "offset:2312").replace("offset:0", "offset:2304"))
        for x in v_reads(par):
            a(x)
        a("s_waitcnt lgkmcnt(7)")
        a("v_cndmask_b32 v%d, 0, v%d, s[54:55]" % (QT, QT))
        a("v_cndmask_b32 v%d, 0, v%d, s[56:57]" % (QT + 1, QT + 1))
        for x in qk(par):
            a(x)
        a("s_nop 7")
        a("s_nop 3")
        for i0 in range(2 - par, 9, 2):
            a("s_cmp_eq_u32 s41, %d" % i0)
            a("s_cbranch_scc1 L_it%d" % i0)
        a("s_branch L_it%d" % (8 - par))

    a.c("---- two passes over the key tiles with the true row maximum")
    a.label("L_slow")
    vKs, vKts, vM, vD0, vNeg = T + 8, T + 9, T + 10, T + 11, T + 12
    a("v_and_b32 v%d, 31, v0" % T)
    a("v_lshrrev_b32 v%d, 5, v0" % (T + 1))
    a("v_lshlrev_b32 v%d, 2, v%d" % (vD0, T + 1))
    a("v_sub_u32 v%d, v%d, v%d" % (vD0, vD0, T))
    a("v_mov_b32 v%d, 0xff800000" % vNeg)
    a("v_mov_b32 v%d, v%d" % (vM, vNeg))
    a("s_max_i32 s50, s41, 0")
    a("s_sub_u32 s51, 8, s50")
    a("v_mul_u32_u24 v%d, s51, v%d" % (T, vStep))
    a("v_sub_u32 v%d, v%d, v%d" % (vV, vV, T))
    a("s_mul_i32 s51, s50, 2304")
    for r in range(16):
        a("v_mov_b32 v%d, 0" % (OO + r))
    for ps in range(2):
        lab = "L_sp%d" % ps
        a("v_add_u32 v%d, s51, v%d" % (vKs, vK))
        a("v_add_u32 v%d, s51, v%d" % (vKts, vKt))
        a("s_mov_b32 s46, s50")
        a.label(lab)
        for x in k_reads(0, vKs, vKts):
            a(x)
        if ps == 1:
            for x in v_reads(0):
                a(x)
        a("s_mov_b32 s47, -31")
        a("s_mov_b32 s48, 62")
        a("s_cmp_eq_u32 s46, 0")
        a("s_cselect_b32 s47, 1, s47")
        a("s_cselect_b32 s48, 30, s48")
        a("s_cmp_eq_u32 s46, 8")
        a("s_cselect_b32 s48, 31, s48")
        a("s_waitcnt lgkmcnt(0)")
        for x in qk(0):
            a(x)
        a("v_subrev_u32 v%d, s47, v%d" % (T, vD0))
        for r in range(16):
            a("v_add_u32 v%d, %d, v%d" % (T + 1, 8 * (r >> 2) + (r & 3), T))
            a("v_cmp_ge_u32 vcc, s48, v%d" % (T + 1))
            a("v_cndmask_b32 v%d, v%d, v%d, vcc" % (SS[0] + r, vNeg, SS[0] + r))
            if ps == 0:
                a("v_max_f32 v%d, v%d, v%d" % (vM, vM, SS[0] + r))
            else:
                a("v_sub_f32 v%d, v%d, v%d" % (SS[0] + r, SS[0] + r, vM))
                a("v_exp_f32 v%d, v%d" % (SS[0] + r, SS[0] + r))
        if ps == 1:
            for q in range(8):
                a("v_cvt_pk_bf16_f32 v%d, v%d, v%d" % (PP[0] + q, SS[0] + 2 * q, SS[0] + 2 * q + 1))
            for x in pv(0, False):
                a(x)
            a("v_add_u32 v%d, v%d, v%d" % (vV, vV, vStep))
        a("v_add_u32 v%d, 2304, v%d" % (vKs, vKs))
        a("v_add_u32 v%d, 2304, v%d" % (vKts, vKts))
        a("s_add_u32 s46, s46, 1")
        a("s_cmp_lt_u32 s46, 9")
        a("s_nop 7")
        a("s_nop 7")
        a("s_cbranch_scc1 %s" % lab)
        if ps == 0:
            a("v_mov_b32 v%d, v%d" % (T, vM))
            a("v_permlane32_swap_b32 v%d, v%d" % (T, vM))
            a("v_max_f32 v%d, v%d, v%d" % (vM, vM, T))
    a("v_rcp_f32 v%d, v%d" % (T, OO + 12))
    a("s_nop 1")
    a("s_branch L_fin")


def helpers(a):
    a.c("---- helper waves")
    a.label("L_help")
    a("s_cmp_eq_u32 s3, 9")
    a("s_cbranch_scc0 L_help1")
    code_touch(a)
    a.label("L_help1")
    a("v_mov_b32 v3, %d" % CTL)
    for k in range(4):
        a("v_mov_b32 v%d, 0" % (4 + k))
    a("v_lshlrev_b32 v1, 4, v0")
    a("v_add_u32 v2, v1, v3")
    a("s_mov_b64 exec, 0xff")
    a("ds_write_b128 v2, v[4:7]")
    a("s_mov_b64 exec, -1")
    a("s_waitcnt lgkmcnt(0)")
    load_tag(a)
    a("s_barrier")
    a("s_barrier")
    a("s_waitcnt lgkmcnt(0)")
    make_tag(a)
    a.label("L_help2")
    decode2(a)
    a("s_cmp_eq_u32 s3, 8")
    a("s_cbranch_scc1 L_down")
    a("v_lshrrev_b32 v1, 5, v0")
    a("v_bfe_u32 v2, v0, 3, 2")
    a("v_lshrrev_b32 v10, 4, v0")
    a("v_lshlrev_b32 v10, 1, v10")
    a("v_and_b32 v11, 7, v0")
    a("v_xor_b32 v10, v10, v11")
    a("v_lshl_add_u32 v4, v1, 2, v2")
    a("v_mul_u32_u24 v4, 1152, v4")
    a("v_lshl_add_u32 v4, v10, 4, v4")
    a("v_mul_u32_u24 v5, 72, v1")
    a("v_add_u32 v5, v5, v2")
    a("v_mul_u32_u24 v5, 1152, v5")
    a("v_lshl_add_u32 v5, v10, 4, v5")
    a("s_sub_u32 s36, s3, 9")
    a("s_mul_i32 s37, s36, %d" % (20 * 1152))
    a("s_mul_i32 s43, s36, %d" % (144 * 1152))
    a("s_lshl_b32 s38, s36, 10")
    a("s_add_u32 s38, s38, %d" % WO)
    a("s_lshl_b32 s39, s53, 7")
    a("s_sub_u32 s42, %d, s39" % (576 * 1152))
    srd_off(a, 16, 28, "s39", "s42")
    srd_off(a, 24, 8, L.WS_O, 128 * 18432)
    a("v_mov_b32 v%d, %d" % (vC, CTL))
    a("s_sub_u32 s40, s3, 5")
    out_setup(a, 40)
    a("s_setprio %d" % OPT["pr3"])
    a("s_cmp_ge_u32 s2, 192")
    a("s_cbranch_scc1 L_wo_go")
    for k in range(9):
        a("s_barrier")
    a.label("L_wo_go")
    a("s_cmp_eq_u32 s3, 11")
    a("s_cbranch_scc1 L_ctl")
    a("s_cmp_ge_u32 s52, 26")
    a("s_cbranch_scc1 L_end")
    if OPT["woe"]:
        a("s_cmp_ge_u32 s2, 192")
        a("s_cbranch_scc1 L_wo_e_d")
        lds_spin(a, "L_wo_e", 3, C_FI, 10, (8,), 0)
    stamp(a, 5)
    for m in range(36):
        if m == OPT["woe"]:
            stage_spin(a, "L_wo_w", 0, 3, 10, 2)
        st, sec = m >> 1, m & 1
        a("s_add_u32 m0, s38, %d" % (2048 * m))
        if st < 16:
            a("s_add_u32 s40, s37, %d" % ((36 * st + 8 * sec) * 1152))
            a("buffer_load_dwordx4 v4, s[16:19], s40 offen lds")
        else:
            a("s_add_u32 s40, s43, %d" % ((288 * (st - 16) + 36 * sec + 16) * 1152))
            a("buffer_load_dwordx4 v5, s[16:19], s40 offen lds")
        if OPT["wth"] and m >= OPT["wth"] - 1:
            a("s_waitcnt vmcnt(%d)" % (OPT["wth"] - 1))
    x_loads(a)
    a("s_waitcnt vmcnt(1)")
    stamp(a, 6)
    lds_inc(a, 3, 4, C_WO)
    a("s_setprio 0")
    a("s_branch L_out")
    a.c("---- wave 11: flags, all-ones fill, routed update")
    a.label("L_ctl")
    a("v_lshlrev_b32 v8, 7, v0")
    a("v_add_u32 v9, %d, v8" % (L.WS_FLAG + F_PA * 128))
    a("s_mul_i32 s46, s52, 5")
    a("s_lshr_b32 s46, s46, 3")
    a("s_min_u32 s46, s46, 14")
    a("s_lshl_b32 s46, s46, 11")
    a("s_add_u32 s46, s46, %d" % (L.WS_FLAG + F_O * 128))
    a("v_add_u32 v8, s46, v8")
    a("s_lshl_b32 s46, s32, 4")
    a("s_add_u32 s46, s46, s31")
    a("s_lshl_b32 s46, s46, 7")
    a("s_add_u32 s46, s46, %d" % (L.WS_FLAG + F_O * 128))
    a("v_mov_b32 v14, s46")
    a("v_mov_b32 v15, s%d" % TAG)
    a("s_cmp_ge_u32 s2, 192")
    a("s_cbranch_scc1 L_ct_0")
    qpoll(a, 3, "L_qp1", True)
    a.label("L_ct_0")
    AUXLATE = OPT["auxp"]
    def aux():
        flag_poll(a, "L_pap", 9, 4, "s%d" % TAG, 64, 8, 3)
        a("v_mov_b32 v10, v5")
        a("v_mov_b32 v11, v6")
        a("v_mov_b32 v4, 1")
        a("ds_write_b64 v3, v[10:11] offset:%d" % C_IDX)
        a("ds_write_b32 v3, v4 offset:%d" % C_PA)
        srd_off(a, 16, 8, L.WS_G, 8192)
        a("s_mul_i32 s40, s52, 320")
        a("v_lshlrev_b32 v4, 2, v0")
        a("buffer_load_dword v5, v4, s[16:19], s40 offen sc1")
        a("buffer_load_dword v6, v4, s[16:19], s40 offen offset:256 sc1")
        a("v_add_u32 v4, %d, v4" % GB)
        GLATE.append(1)
        stamp(a, 5)

    if not AUXLATE:
        aux()
    a("v_bfe_u32 v20, v0, 4, 1")
    a("v_mul_u32_u24 v20, 18432, v20")
    a("v_and_b32 v21, 15, v0")
    a("v_lshl_add_u32 v20, v21, 4, v20")
    a("v_lshrrev_b32 v21, 5, v0")
    a("v_lshl_add_u32 v22, v21, 2, v20")
    a("v_lshl_add_u32 v21, v21, 8, v20")
    for k in range(4):
        a("v_mov_b32 v%d, -1" % (24 + k))
    a("s_mul_i32 s54, s32, %d" % (8 * 18432))
    a("s_lshl_b32 s55, s31, 10")
    a("s_add_u32 s55, s55, s54")
    a("s_lshr_b32 s56, s31, 1")
    a("s_lshl_b32 s56, s56, 8")
    a("s_and_b32 s57, s31, 1")
    a("s_lshl_b32 s57, s57, 3")
    a("s_add_u32 s56, s56, s57")
    a("s_add_u32 s56, s56, s54")
    a("s_add_u32 s56, s56, 16384")
    if OPT["pearly"]:
        lds_spin(a, "L_ct_p", 3, C_1, 10, (8, 1), 0)
        a("s_sleep %d" % OPT["pearly"])
    else:
        stage_spin(a, "L_ct_p", 0, 3, 10, 0)
    for j in range(4):
        a("buffer_store_dword v24, v22, s[24:27], s56 offen sc1")
        a("buffer_store_dwordx4 v[24:27], v21, s[24:27], s55 offen sc1")
        a("buffer_store_dwordx4 v[24:27], v21, s[24:27], s55 offen offset:512 sc1")
        a("s_add_u32 s55, s55, %d" % (2 * 18432))
        a("s_add_u32 s56, s56, %d" % (2 * 18432))
    a("v_mov_b32 v4, 1")
    a("s_waitcnt vmcnt(0)")
    a("ds_write_b32 v3, v4 offset:%d" % C_C)
    a("s_mov_b64 exec, 1")
    a("global_store_dword v14, v15, s[8:9] sc1")
    a("s_mov_b64 exec, -1")
    stamp(a, 6)
    lds_spin(a, "L_ct_q", 3, C_B, 10, (8,), 1)
    if AUXLATE:
        aux()
    else:
        a("s_sleep %d" % OPT["slp3"])
    flag_poll(a, "L_op", 8, 12, "s%d" % TAG, 32, 2)
    a("ds_write_b32 v4, v5")
    a("ds_write_b32 v4, v6 offset:256")
    lds_inc(a, 3, 10, C_GO2)
    stamp(a, 7)
    stamp_end(a, 11 if OPT["st11"] else 99, 3)
    a("ds_read_b64 v[10:11], v3 offset:%d" % C_IDX)
    a("s_waitcnt lgkmcnt(0)")
    a("v_readfirstlane_b32 s12, v10")
    a("v_readfirstlane_b32 s13, v11")
    a("s_mul_i32 s46, s52, 80")
    a("s_sub_u32 s46, s12, s46")
    a("s_cmp_lt_u32 s46, 80")
    a("s_cbranch_scc0 L_end")
    a("v_lshlrev_b32 v4, 7, v0")
    a("v_add_u32 v4, %d, v4" % (L.WS_FLAG + F_Y * 128))
    srd_off(a, 16, 8, L.WS_YP, 16 * 2304)
    a("v_lshrrev_b32 v6, 4, v0")
    a("v_mul_u32_u24 v6, 2304, v6")
    a("v_and_b32 v7, 15, v0")
    a("v_lshlrev_b32 v7, 4, v7")
    a("v_add_u32 v6, v6, v7")
    a("v_add_u32 v7, %d, v7" % YB)
    a("s_lshl_b32 s40, s53, 8")
    flag_poll(a, "L_yp", 4, 5, "12", 16, 2)
    for i in range(4):
        a("buffer_load_dwordx4 %s, v6, s[16:19], s40 offen sc1" % vr(8 + 4 * i, 4))
        a("s_add_u32 s40, s40, %d" % (4 * 2304))
    a("s_waitcnt vmcnt(0)")
    for i in range(1, 4):
        a("v_pk_add_f32 v[8:9], v[8:9], %s" % vr(8 + 4 * i, 2))
        a("v_pk_add_f32 v[10:11], v[10:11], %s" % vr(10 + 4 * i, 2))
    for k in range(4):
        a("v_mov_b32 v20, v%d" % (8 + k))
        a("v_permlane32_swap_b32 v20, v%d" % (8 + k))
        a("v_add_f32 v%d, v%d, v20" % (8 + k, 8 + k))
        a("v_mov_b32 v20, v%d" % (8 + k))
        a("v_permlane16_swap_b32 v20, v%d" % (8 + k))
        a("v_add_f32 v%d, v%d, v20" % (8 + k, 8 + k))
        bf16_round(a, 8 + k, 8 + k)
        a("v_mul_f32 v%d, s13, v%d" % (8 + k, 8 + k))
        bf16_round(a, 8 + k, 8 + k)
    a("v_mov_b32 v12, 1")
    a("ds_write_b128 v7, v[8:11]")
    a("ds_write_b32 v3, v12 offset:%d" % C_YRDY)
    a("s_cmp_eq_u32 s53, 0")
    a("s_cbranch_scc0 L_end")
    a("v_mov_b32 v4, %d" % L.WS_EPOCH)
    a("v_mov_b32 v5, s%d" % TAG)
    a("s_mov_b64 exec, 1")
    a("global_store_dword v4, v5, s[8:9]")
    a("s_endpgm")

    a.c("---- wave 8: down projection")
    a.label("L_down")
    a("s_cmp_ge_u32 s2, 192")
    a("s_cbranch_scc1 L_end")
    DW, DA = 20, 128
    a("v_lshrrev_b32 v2, 3, v0")
    a("v_and_b32 v10, 7, v0")
    a("v_mul_u32_u24 v16, 1152, v2")
    a("v_lshl_add_u32 v16, v10, 4, v16")
    a("s_mul_i32 s36, s2, 24")
    a("v_mul_u32_u24 v12, %d, v10" % (4608 * 16))
    a("v_add_u32 v11, s36, v2")
    a("v_lshl_add_u32 v17, v11, 4, v12")
    a("v_cmp_gt_u32 s[56:57], 7, v10")
    a("s_mul_i32 s37, s2, %d" % (24 * 1152))
    a("v_and_b32 v1, 1, v0")
    a("v_lshlrev_b32 v1, 4, v1")
    sel_masks(a, 44, 11)
    a("v_lshrrev_b32 v11, 5, v0")
    a("v_bfe_u32 v12, v0, 3, 1")
    a("v_cmp_eq_u32 s[52:53], v11, v12")
    a("v_mul_u32_u24 v12, 2304, v12")
    a("v_bfe_u32 v11, v0, 4, 1")
    a("v_lshl_add_u32 v12, v11, 7, v12")
    a("v_lshl_add_u32 v12, v10, 2, v12")
    a("v_add_u32 v164, %d, v12" % HP)
    a("v_lshlrev_b32 v165, 2, v0")
    a("v_add_u32 v166, %d, v165" % HP)
    a("s_and_b32 s38, s2, 15")
    a("s_mul_i32 s39, s38, 2304")
    a("s_add_u32 s39, s39, %d" % L.WS_YP)
    a("v_add_u32 v165, s39, v165")
    a("s_lshl_b32 s38, s38, 7")
    a("s_add_u32 s38, s38, %d" % (L.WS_FLAG + F_Y * 128))
    srd_off(a, 16, 14, "s37", 24 * 1152)
    srd_off(a, 20, 8, L.WS_PA, 7 * 4608 * 16)
    def dloads(ts=(0, 1, 2)):
        for t in (() if OPT["nodown"] else ts):
            a("s_movk_i32 s40, %d" % (9216 * t))
            for cg in range(9):
                a("buffer_load_dwordx4 %s, v16, s[16:19], s40 offen offset:%d %s" % (vr(DW + 4 * (9 * t + cg), 4), 128 * cg, "" if OPT["dtouch"] else "nt"))

    for k in range(2, 11):
        if OPT["dsplit"]:
            if k in (8, 9, 10):
                dloads((k - 8,))
        elif k == OPT["dpos"]:
            dloads()
        a("s_barrier")
    if OPT["dpos"] == -1:
        a("s_setprio 3")
        stage_spin(a, "L_dn_w2", 0, 3, 10, 0)
        dloads()
    elif OPT["dpos"] == -2:
        a("s_setprio 3")
        lds_spin(a, "L_dn_w2", 3, C_WO, 10, (2,), 2)
        dloads()
    elif OPT["dpos"] == -3:
        a("s_setprio 3")
        lds_spin(a, "L_dn_w2", 3, C_1, 10, (8, 1), 0)
        a("s_sleep 8")
        dloads()
    elif OPT["w8e"] == 2:
        lds_spin(a, "L_dn_w2", 3, C_1, 10, (8, 1), 2)
        a("s_sleep 6")
    elif OPT["w8e"]:
        lds_spin(a, "L_dn_w2", 3, C_1, 10, (8,), 2)
    else:
        stage_spin(a, "L_dn_w2", 0, 3, 10, 2)
    stamp(a, 5)
    a("s_setprio %d" % OPT["pr1"])
    a("s_mov_b32 s60, 0x40000")
    a.label("L_dn_pa")
    a("buffer_load_dwordx3 v[4:6], v17, s[20:23], 0 offen sc1")
    a("buffer_load_dwordx3 v[8:10], v17, s[20:23], 0 offen offset:128 sc1")
    a("buffer_load_dwordx3 v[160:162], v17, s[20:23], 0 offen offset:256 sc1")
    a("s_waitcnt vmcnt(0)")
    a("v_cmp_ne_u32 vcc, s%d, v6" % TAG)
    a("v_cmp_ne_u32 s[40:41], s%d, v10" % TAG)
    a("v_cmp_ne_u32 s[42:43], s%d, v162" % TAG)
    a("s_or_b64 vcc, vcc, s[40:41]")
    a("s_or_b64 vcc, vcc, s[42:43]")
    a("s_and_b64 vcc, vcc, s[56:57]")
    a("s_cmp_eq_u64 vcc, 0")
    a("s_cbranch_scc1 L_dn_pb")
    a("s_sleep 8")
    a("s_sub_u32 s60, s60, 1")
    a("s_cbranch_scc0 L_dn_pa")
    a.label("L_dn_pb")
    stamp(a, 8)
    a("v_mov_b32 v6, v8")
    a("v_mov_b32 v7, v9")
    a("v_mov_b32 v8, v160")
    a("v_mov_b32 v9, v161")
    sum8(a, (4, 5, 6, 7, 8, 9))
    for t in range(3):
        g, u = 4 + 2 * t, 5 + 2 * t
        bf16_round(a, g, g)
        bf16_round(a, u, u)
        sigmoid(a, 10, g)
        a("v_mul_f32 v%d, v%d, v10" % (g, g))
        bf16_round(a, g, g)
        a("v_mul_f32 v%d, v%d, v%d" % (g, g, u))
        a("v_cvt_pk_bf16_f32 v%d, v%d, v%d" % (g, g, g))
        a("v_and_b32 v%d, 0xffff, v%d" % (g, g))
        a("v_lshlrev_b32 v%d, v1, v%d" % (g, g))
    for t in range(3):
        selector(a, 12, 4 + 2 * t, 44)
        for cg in range(9):
            d = vr(DA + 4 * cg, 4)
            a("v_mfma_f32_16x16x32_bf16 %s, %s, v[12:15], %s" % (d, vr(DW + 4 * (9 * t + cg), 4), "0" if t == 0 else d))
    a("s_mov_b64 exec, s[52:53]")
    for cg in range(9):
        for r in range(4):
            a("ds_write_b32 v164, v%d offset:%d" % (DA + 4 * cg + r, 256 * cg + 32 * r))
    a("s_mov_b64 exec, -1")
    for cg in range(9):
        a("ds_read2st64_b32 %s, v166 offset0:%d offset1:%d" % (vr(20 + 2 * cg, 2), cg, cg + 9))
    if OPT["atw"]:
        lds_spin(a, "L_dn_at", 3, C_WO, 10, (2,), 2)
    else:
        stage_spin(a, "L_dn_at", 0, 3, 10, 2)
    lds_spin(a, "L_dn_ax", 3, C_PA, 10, (1,), 1)
    for cg in range(9):
        a("v_add_f32 v%d, v%d, v%d" % (20 + 2 * cg, 20 + 2 * cg, 21 + 2 * cg))
        if not OPT["noat"]:
            a("global_atomic_add_f32 v165, v%d, s[8:9] offset:%d" % (20 + 2 * cg, 256 * cg))
    a("v_mov_b32 v4, s38")
    a("v_mov_b32 v5, 1")
    a("s_waitcnt vmcnt(0)")
    stamp(a, 7)
    a("s_mov_b64 exec, 1")
    a("global_atomic_add v4, v5, s[8:9] sc1")
    stamp_end(a, 8, 1)


def kf(a):
    a.label(NAME)
    a("s_cmp_ge_u32 s2, 256")
    a("s_cbranch_scc1 L_end")
    stamp_init(a)
    stamp(a, 0)
    a("s_load_dwordx4 s[4:7], s[0:1], 0")
    a("s_load_dwordx2 s[8:9], s[0:1], 88")
    a("s_load_dwordx2 s[10:11], s[0:1], 72")
    a("s_load_dwordx2 s[14:15], s[0:1], 56")
    a("s_load_dwordx2 s[28:29], s[0:1], 16")
    a("v_lshrrev_b32 v1, 6, v0")
    a("v_and_b32 v0, 63, v0")
    a("v_readfirstlane_b32 s3, v1")
    a("s_and_b32 s30, s2, 3")
    a("s_bfe_u32 s31, s2, 0x10002")
    a("s_lshr_b32 s32, s2, 3")
    a("s_cmp_ge_u32 s32, 24")
    a("s_cbranch_scc1 L_sp")
    a("s_cmp_ge_u32 s3, 8")
    a("s_cbranch_scc1 L_help")
    gemm_phase(a)
    attention_phase(a)
    out_phase(a)
    late_and_slow(a)
    spare_phase(a)
    helpers(a)
    a.label("L_end")
    a("s_endpgm")
```

```python
from asmdsl import vr, sr
import layout as L
from common import *
from k2 import (KB, VB, QB, ONES, vK, vKt, vV, vStep, QM, QT, MSK, KF, VF, PP, SS, OO, T,
                k_reads, v_reads, qk, pv)

NAME = "gated_mix__sliding_block__moe_arch_mod__prompt_kernel"
SLOT = 34816
IMG = SLOT
WO = 66560
CTL = 149568
YB = 149696
HP = 150016
YT = 154624
XS = 156672
KF_LDS = 162304
PSLOT = (QB, QB + 4096, 140288, 144384, 158208)
KF_VGPR = 168
PART = 0
STG = 20480
XR, GR = 128, 136
vC = 154
TAG = 65
C_O, C_GO2, C_A, C_WO, C_PART, C_YRDY, C_B, C_1, C_GO1, C_C, C_PA, C_IDX, C_RSEL = 0, 4, 8, 12, 88, 32, 36, 40, 44, 48, 52, 56, 60
C_KMAX, C_KCNT, C_XS, C_GD, C_RED, C_RED2, C_FI = 64, 68, 72, 76, 80, 84, 16
F_Q, F_O, F_PA, F_Y = 0, 192, 448, 512


def lds_spin(a, name, addr_v, off, regs, conds, slp=1):
    n = len(conds)
    a("s_mov_b32 s60, 0x200000")
    a.label(name)
    a(("ds_read_b64 %s, v%d offset:%d" % (vr(regs, 2), addr_v, off)) if n == 2 else
      ("ds_read_b32 v%d, v%d offset:%d" % (regs, addr_v, off)))
    a("s_waitcnt lgkmcnt(0)")
    a("v_readfirstlane_b32 s61, v%d" % regs)
    if n == 2:
        a("v_readfirstlane_b32 s62, v%d" % (regs + 1))
        a("s_lshl_b32 s62, s62, 8")
        a("s_or_b32 s61, s61, s62")
        a("s_cmp_eq_u32 s61, %d" % (conds[0] | (conds[1] << 8)))
    else:
        a("s_cmp_eq_u32 s61, %d" % conds[0])
    a("s_cbranch_scc1 %s_d" % name)
    if slp:
        a("s_sleep %d" % slp)
    a("s_sub_u32 s60, s60, 1")
    a("s_cmp_lg_u32 s60, 0")
    a("s_cbranch_scc1 %s" % name)
    a.label(name + "_d")


def stage_spin(a, name, stage, vc=vC, T=T, slp=0):
    a("s_mov_b32 s60, 0x200000")
    a.label(name)
    a("ds_read_b32 v%d, v%d offset:%d" % (T, vc, C_A))
    a("s_waitcnt lgkmcnt(0)")
    a("v_readfirstlane_b32 s61, v%d" % T)
    a("s_bitcmp1_b32 s61, %d" % (8 * stage + 3))
    a("s_cbranch_scc1 %s_d" % name)
    if slp:
        a("s_sleep %d" % slp)
    a("s_sub_u32 s60, s60, 1")
    a("s_cmp_lg_u32 s60, 0")
    a("s_cbranch_scc1 %s" % name)
    a.label(name + "_d")


def landed(a, inc, vm):
    a("v_mov_b32 v%d, %s" % (T, hex(inc)))
    a("s_waitcnt vmcnt(%d)" % vm)
    a("s_mov_b64 exec, 1")
    a("ds_add_u32 v%d, v%d offset:%d" % (vC, T, C_A))
    a("s_mov_b64 exec, -1")


def poison(a):
    if OPT["nopois"]:
        a("s_nop 0")
        a("buffer_load_dword v155, v152, s[24:27], s59 offen")
        a("buffer_load_dword v155, v152, s[24:27], s59 offen")
        return
    for k in range(4):
        a("v_mov_b32 v%d, -1" % (120 + k))
    a("buffer_store_dwordx4 %s, v153, s[24:27], s58 offen sc1" % vr(120, 4))
    a("s_mov_b32 exec_hi, 0")
    a("buffer_store_dword v%d, v152, s[24:27], s59 offen sc1" % 120)
    a("s_mov_b32 exec_hi, -1")


def tail_touch(a):
    a("buffer_load_dword v155, v152, s[24:27], s59 offen")


def flag_poll(a, name, voff, vt, want, lanes, slp=1, width=1):
    a("s_mov_b64 exec, %s" % ("-1" if lanes == 64 else hex((1 << lanes) - 1)))
    a("s_mov_b32 s60, 0x40000")
    a.label(name)
    a("global_load_dword%s %s, v%d, s[8:9] sc1" % ("" if width == 1 else "x%d" % width, vr(vt, width), voff))
    a("s_waitcnt vmcnt(0)")
    a("v_cmp_eq_u32 vcc, %s, v%d" % (want, vt))
    a("s_cmp_eq_u64 vcc, exec")
    a("s_cbranch_scc1 %s_d" % name)
    if slp:
        a("s_sleep %d" % slp)
    a("s_sub_u32 s60, s60, 1")
    a("s_cmp_lg_u32 s60, 0")
    a("s_cbranch_scc1 %s" % name)
    a.label(name + "_d")
    a("s_mov_b64 exec, -1")


def lds_inc(a, vz, vt, off, rtn=False):
    a("v_mov_b32 v%d, 1" % vt)
    a("s_mov_b64 exec, 1")
    if rtn:
        a("ds_add_rtn_u32 v%d, v%d, v%d offset:%d" % (vt, vz, vt, off))
    else:
        a("ds_add_u32 v%d, v%d offset:%d" % (vz, vt, off))
    a("s_mov_b64 exec, -1")


def load_tag(a):
    a("s_mov_b32 s64, %d" % L.WS_EPOCH)
    a("s_load_dword s%d, s[8:9], s64" % TAG)


def make_tag(a):
    a("s_mul_i32 s%d, s%d, 0x9e3779b1" % (TAG, TAG))
    a("s_add_u32 s%d, s%d, 0x7f4a7c15" % (TAG, TAG))


def copy_scalars(a):
    a("s_mul_i32 s55, s34, %d" % (4 * L.PAIR_BYTES))
    a("s_mul_i32 s56, s35, 9216")
    a("s_add_u32 s55, s55, s56")
    a("s_lshl_b32 s56, s3, 10")
    a("s_add_u32 s55, s55, s56")
    for j in range(5):
        a("s_add_u32 s57, s3, %d" % (8 * j))
        a("s_mul_i32 s57, s57, 57")
        a("s_lshr_b32 s57, s57, 9")
        a("s_mul_i32 s57, s57, %d" % (L.PAIR_BYTES - 9216))
        a("s_add_u32 s57, s57, s55")
        a("s_add_u32 s%d, s57, %d" % (50 + j, 8192 * j))
    a("s_mul_i32 s58, s35, 12")
    a("s_add_u32 s58, s58, s34")
    a("s_lshl_b32 s58, s58, 7")
    a("s_add_u32 s58, s58, %d" % (L.WS_FLAG + F_Q * 128))


def decode2(a):
    if OPT["amap"]:
        a("s_and_b32 s31, s2, 7")
        a("s_lshl_b32 s31, s31, 1")
        a("s_bfe_u32 s32, s2, 0x10003")
        a("s_add_u32 s31, s31, s32")
        a("s_lshr_b32 s30, s31, 2")
        a("s_lshr_b32 s32, s2, 4")
        a("s_add_u32 s32, s32, 4")
        a("s_and_b32 s32, s32, 15")
    else:
        a("s_and_b32 s30, s2, 3")
        a("s_bfe_u32 s33, s2, 0x10002")
        a("s_bfe_u32 s32, s2, 0x20003")
        a("s_lshl_b32 s31, s30, 2")
        a("s_add_u32 s31, s31, s32")
        a("s_lshl_b32 s32, s33, 3")
        a("s_lshr_b32 s34, s2, 5")
        if OPT["light"]:
            a("s_add_u32 s34, s34, 2")
            a("s_and_b32 s34, s34, 7")
        a("s_add_u32 s32, s32, s34")
    a("s_lshr_b32 s33, s2, 3")
    a("s_mul_i32 s34, s33, 57")
    a("s_lshr_b32 s34, s34, 9")
    a("s_mul_i32 s53, s34, 9")
    a("s_sub_u32 s53, s33, s53")
    a("s_lshl_b32 s52, s34, 3")
    a("s_and_b32 s34, s2, 7")
    a("s_add_u32 s52, s52, s34")
    a("s_sub_u32 s33, s2, 216")
    a("s_mul_i32 s34, s33, 57")
    a("s_lshr_b32 s34, s34, 9")
    a("s_mul_i32 s35, s34, 9")
    a("s_sub_u32 s33, s33, s35")
    a("s_add_u32 s34, s34, 24")
    a("s_cmp_ge_u32 s2, 216")
    a("s_cselect_b32 s52, s34, s52")
    a("s_cselect_b32 s53, s33, s53")


def qpoll(a, vc, name, own, r=16):
    R = dict(a=r, b=r + 1, c=r + 2)
    a("v_add_u32 v%(a)d, 2, v0" % R)
    a("v_mul_u32_u24 v%(b)d, 43, v%(a)d" % R)
    a("v_lshrrev_b32 v%(b)d, 7, v%(b)d" % R)
    a("v_mul_u32_u24 v%(c)d, 3, v%(b)d" % R)
    a("v_sub_u32 v%(a)d, v%(a)d, v%(c)d" % R)
    a("s_sub_u32 s35, s32, 2")
    a("v_add_u32 v%(a)d, s35, v%(a)d" % R)
    a("v_max_i32 v%(a)d, 0, v%(a)d" % R)
    a("v_mul_u32_u24 v%(a)d, 12, v%(a)d" % R)
    a("v_lshl_add_u32 v%(a)d, v%(b)d, 2, v%(a)d" % R)
    a("v_add_u32 v%(a)d, s30, v%(a)d" % R)
    a("v_lshlrev_b32 v%(a)d, 7, v%(a)d" % R)
    a("v_add_u32 v%d, %d, v%d" % (r, L.WS_FLAG + F_Q * 128, r))
    if own:
        lds_spin(a, name + "w", vc, C_1, r + 2, (8,), 0)
    if OPT["qdel"]:
        a("s_sleep %d" % OPT["qdel"])
    if OPT["qpipe"] and own:
        NP = OPT["qpipe"]
        a("s_mov_b64 exec, 0x7f")
        a("s_mov_b32 s60, 0x20000")
        for k in range(NP - 1):
            a("global_load_dword v%d, v%d, s[8:9] sc1" % (r + 3 + k, r))
            a("s_sleep 1")
        a.label(name)
        for k in range(NP):
            a("global_load_dword v%d, v%d, s[8:9] sc1" % (r + 3 + (k + NP - 1) % NP, r))
            a("s_waitcnt vmcnt(%d)" % (NP - 1))
            a("v_cmp_eq_u32 vcc, s%d, v%d" % (TAG, r + 3 + k))
            a("s_cmp_eq_u64 vcc, exec")
            a("s_cbranch_scc1 %s_d" % name)
        a("s_sub_u32 s60, s60, 1")
        a("s_cbranch_scc0 %s" % name)
        a.label(name + "_d")
        a("s_mov_b64 exec, -1")
    else:
        flag_poll(a, name, r, r + 1, "s%d" % TAG, 7, OPT["qslp"])
    lds_inc(a, vc, r + 2, C_GO1)


def code_touch(a):
    if not OPT["ctouch"]:
        return
    lab = a.newlabel("pc")
    a("s_getpc_b64 s[20:21]")
    a.label(lab)
    a("s_sub_u32 s20, s20, %s-%s" % (lab, NAME))
    a("s_subb_u32 s21, s21, 0")
    a("s_lshr_b32 s22, s2, 3")
    a("s_mul_i32 s22, s22, %d" % (12 * 128))
    a("v_lshlrev_b32 v20, 7, v0")
    a("v_add_u32 v20, s22, v20")
    a("v_min_u32 v20, L_end-%s, v20" % NAME)
    a("s_mov_b64 exec, 0xfff")
    a("global_load_dword v21, v20, s[20:21]")
    a("s_mov_b64 exec, -1")


def gemm_phase(a):
    if OPT["gmap"]:
        a("s_lshr_b32 s33, s32, 1")
        a("s_mul_i32 s33, s33, 43")
        a("s_lshr_b32 s33, s33, 7")
        a("s_mul_i32 s34, s33, 6")
        a("s_sub_u32 s34, s32, s34")
        a("s_and_b32 s35, s34, 1")
        a("s_lshr_b32 s34, s34, 1")
        a("s_lshl_b32 s34, s34, 2")
        a("s_add_u32 s34, s34, s35")
        a("s_and_b32 s35, s2, 1")
        a("s_lshl_b32 s35, s35, 1")
        a("s_add_u32 s34, s34, s35")
        a("s_bfe_u32 s35, s2, 0x20001")
        a("s_lshl_b32 s35, s35, 2")
        a("s_add_u32 s35, s35, s33")
    else:
        a("s_mul_i32 s33, s32, 43")
        a("s_lshr_b32 s33, s33, 7")
        a("s_mul_i32 s34, s33, 3")
        a("s_sub_u32 s34, s32, s34")
        a("s_lshl_b32 s34, s34, 2")
        a("s_add_u32 s34, s34, s30")
        a("s_lshl_b32 s35, s31, 3")
        a("s_add_u32 s35, s35, s33")
    a("s_cmp_lt_u32 s3, 4")
    a("s_cbranch_scc1 L_comp")
    a("s_cmp_lt_u32 s3, 6")
    a("s_cbranch_scc0 L_ldw")
    a("s_sub_u32 s36, s3, 4")
    SH = 4 if OPT["gmap"] else 3
    a("v_and_b32 v7, %d, v0" % ((1 << SH) - 1))
    a("s_lshl_b32 s41, s33, %d" % SH)
    a("s_lshl_b32 s42, s36, 6")
    a("s_add_u32 s41, s41, s42")
    a("v_add_u32 v7, s41, v7")
    a("v_mul_u32_u24 v7, 3456, v7")
    a("v_lshrrev_b32 v1, %d, v0" % SH)
    a("v_lshl_add_u32 v7, v1, 7, v7")
    a("v_lshrrev_b32 v1, 3, v0")
    a("s_mul_i32 s39, s35, %d" % (128 * 1152))
    a("s_mul_i32 s46, s34, 288")
    a("s_and_b32 s46, s46, 0xffffff80")
    a("s_sub_u32 s47, %d, s46" % (576 * 3456))
    a("v_mul_u32_u24 v1, 1152, v1")
    a("v_lshrrev_b32 v2, 4, v0")
    a("v_and_b32 v3, 7, v0")
    a("v_xor_b32 v3, v3, v2")
    a("v_lshl_add_u32 v4, v3, 4, v1")
    a("v_xor_b32 v3, 4, v3")
    a("v_lshl_add_u32 v5, v3, 4, v1")
    a("v_add_u32 v5, %d, v5" % (8 * 1152))
    a("s_mul_i32 s37, s36, %d" % (64 * 1152))
    a("s_lshl_b32 s38, s36, 13")
    a("s_waitcnt lgkmcnt(0)")
    srd_off(a, 20, 6, "s46", "s47")
    if OPT["gmap"]:
        a("s_mov_b32 exec_hi, 0xffff")
    else:
        a("s_mov_b64 exec, 0xffffff")
    a("buffer_load_dword v20, v7, s[20:23], 0 offen")
    a("s_mov_b64 exec, -1")
    srd_off(a, 16, 4, "s39", 128 * 1152)
    if OPT["nox0"]:
        a("s_mul_i32 s41, s33, 6")
        a("s_sub_u32 s41, s32, s41")
        a("s_mul_i32 s41, s41, 22")
        a("v_add_u32 v6, s41, v0")
        a("v_mul_u32_u24 v6, 1152, v6")
        a("s_lshl_b32 s41, s36, 7")
        a("s_mov_b64 exec, 0x3fffff")
        a("buffer_load_dword v21, v6, s[16:19], s41 offen")
        a("s_mov_b64 exec, -1")

    def x_chunk(c):
        for i in range(8):
            a("s_add_u32 m0, s38, %d" % ((c % 4) * SLOT + i * 1024))
            a("s_add_u32 s40, s37, %d" % ((i >> 1) * 16 * 1152 + c * 128))
            a("buffer_load_dwordx4 v%d, s[16:19], s40 offen lds" % (4 + (i & 1)))

    if not OPT["nox0"]:
        x_chunk(0)
    load_tag(a)
    copy_scalars(a)
    stamp(a, 1)
    a("s_waitcnt vmcnt(%d) lgkmcnt(0)" % (0 if OPT["nox0"] else 8))
    stamp(a, 2)

    def loader_loop(fn, n, first, ahead0):
        LA = OPT["la"]
        a("s_barrier")
        stamp(a, 13)
        nxt = first
        while nxt < ahead0:
            fn(nxt)
            nxt += 1
        stamp(a, 14)
        for c in range(9):
            a("s_waitcnt vmcnt(%d)" % (n * (nxt - 1 - c)))
            a("s_barrier")
            while nxt <= c + LA and nxt < 9:
                fn(nxt)
                nxt += 1

    loader_loop(x_chunk, 8, 0 if OPT["nox0"] else 1, 2)
    a("s_branch L_copy")
    a.c("---- W loaders (waves 6,7)")
    a.label("L_ldw")
    a("s_movk_i32 s41, 3641")
    for i in range(9):
        a("v_add_u32 v1, %d, v0" % (64 * i))
        a("v_mul_u32_u24 v2, s41, v1")
        a("v_lshrrev_b32 v2, 16, v2")
        a("v_mul_u32_u24 v3, 18, v2")
        a("v_sub_u32 v3, v1, v3")
        a("v_bfe_u32 v1, v2, 2, 2")
        a("v_lshlrev_b32 v1, 3, v1")
        a("v_lshrrev_b32 v13, 4, v2")
        a("v_lshl_add_u32 v1, v13, 2, v1")
        a("v_and_b32 v2, 3, v2")
        a("v_add_u32 v1, v1, v2")
        a("v_mul_u32_u24 v1, 3456, v1")
        a("v_lshl_add_u32 v%d, v3, 4, v1" % (4 + i))
        if i == 2:
            a("s_waitcnt lgkmcnt(0)")
            load_tag(a)
    a("s_sub_u32 s36, s3, 6")
    a("s_mul_i32 s37, s36, %d" % (32 * 3456))
    a("s_mul_i32 s38, s36, 9216")
    a("s_mul_i32 s39, s34, 288")
    a("s_sub_u32 s42, %d, s39" % (576 * 3456))
    copy_scalars(a)
    srd_off(a, 16, 6, "s39", "s42")
    a("s_waitcnt lgkmcnt(0)")

    def w_chunk(c):
        a("s_add_u32 s40, s37, %d" % (c * 64 * 3456))
        for i in range(9):
            a("s_add_u32 m0, s38, %d" % ((c % 4) * SLOT + 16384 + i * 1024))
            a("s_nop 0")
            a("buffer_load_dwordx4 v%d, s[16:19], s40 offen lds" % (4 + i))

    loader_loop(w_chunk, 9, 0, OPT["wa0"])
    a("s_branch L_copy")
    a.c("---- GEMM compute waves 0..3")
    a.label("L_comp")
    ACC, XF, WF = 64, (136, 144), 24
    a("v_and_b32 v8, 15, v0")
    a("v_lshrrev_b32 v9, 4, v0")
    a("v_lshrrev_b32 v10, 1, v8")
    a("v_xor_b32 v10, v10, v9")
    a("s_lshl_b32 s36, s3, 12")
    a("v_lshlrev_b32 v2, 7, v8")
    a("v_lshl_add_u32 v2, v10, 4, v2")
    a("v_add_u32 v2, s36, v2")
    a("v_xor_b32 v3, 64, v2")
    a("v_add_u32 v4, %d, v2" % (2 * SLOT))
    a("v_add_u32 v5, %d, v3" % (2 * SLOT))
    a("v_lshrrev_b32 v10, 2, v0")
    a("v_mul_u32_u24 v6, 288, v10")
    a("v_and_b32 v10, 3, v0")
    a("v_lshl_add_u32 v6, v10, 3, v6")
    a("v_add_u32 v6, 16384, v6")
    a("v_add_u32 v7, %d, v6" % (2 * SLOT))
    a("s_waitcnt lgkmcnt(0)")
    load_tag(a)
    a("s_mov_b32 s36, 1.0")
    a("s_cmp_lt_u32 s34, 4")
    a("s_cselect_b32 s36, %s, s36" % f32(QSCALE))
    a("s_mov_b32 s37, s36")
    a("s_lshl_b32 s38, s3, 5")
    a("v_add_u32 v10, s38, v8")
    a("v_mul_u32_u24 v10, 72, v10")
    a("v_lshl_add_u32 v10, v9, 3, v10")
    a("v_add_u32 v10, %d, v10" % IMG)
    for ft in range(9):
        a("v_add_u32 v11, %d, v9" % (4 * ft))
        a("v_mul_u32_u24 v11, 57, v11")
        a("v_lshrrev_b32 v11, 9, v11")
        a("v_mul_u32_u24 v11, 9144, v11")
        a("v_add_u32 v%d, v11, v10" % (12 + ft))
    copy_scalars(a)
    a("s_waitcnt lgkmcnt(0)")

    def xreads(step):
        c, h2 = step >> 1, step & 1
        slot = c % 4
        return ["ds_read_b128 %s, v%d offset:%d" % (vr(XF[step & 1] + 4 * tt, 4), 2 + 2 * (slot >> 1) + h2,
                                                    (slot & 1) * SLOT + tt * 2048) for tt in range(2)]

    def wreads(step, ft):
        c, h2 = step >> 1, step & 1
        slot = c % 4
        return ["ds_read_b64_tr_b16 %s, v%d offset:%d" % (vr(WF + 4 * ft + 2 * sec, 2), 6 + (slot >> 1),
                                                          (slot & 1) * SLOT + h2 * 9216 + sec * 4608 + ft * 32)
                for sec in range(2)]

    def mfma(step, ft, tt):
        d = vr(ACC + 8 * ft + 4 * tt, 4)
        return "v_mfma_f32_16x16x32_bf16 %s, %s, %s, %s" % (
            d, vr(WF + 4 * ft, 4), vr(XF[step & 1] + 4 * tt, 4), "0" if step == 0 else d)

    def epi(k):
        ft, tt = k >> 1, k & 1
        b = ACC + 4 * k
        t = 152 + 2 * (k % 4)
        return ["v_pk_mul_f32 %s, %s, s[36:37]" % (vr(b, 2), vr(b, 2)),
                "v_pk_mul_f32 %s, %s, s[36:37]" % (vr(b + 2, 2), vr(b + 2, 2)),
                "v_cvt_pk_bf16_f32 v%d, v%d, v%d" % (t, b, b + 1),
                "v_cvt_pk_bf16_f32 v%d, v%d, v%d" % (t + 1, b + 2, b + 3),
                "ds_write_b64 v%d, %s offset:%d" % (12 + ft, vr(t, 2), 32 * ft + 1152 * tt)]

    a("s_barrier")
    a("s_barrier")
    stamp(a, 1)
    q = []

    def issue(tag, lst):
        for x in lst:
            a(x)
            q.append(tag)

    def need(tag):
        last = max(k for k, v in enumerate(q) if v == tag)
        a("s_waitcnt lgkmcnt(%d)" % min(15, len(q) - 1 - last))

    issue(("x", 0), xreads(0))
    for ft in range(9):
        issue(("w", 0, ft), wreads(0, ft))
    for step in range(16):
        if step & 1:
            a("s_barrier")
            if OPT["gst"]:
                stamp(a, 5 + (step >> 1), True)
        for ft in range(9):
            if ft % OPT["wg"] == 0:
                need(("w", step, min(8, ft + OPT["wg"] - 1)))
            a(mfma(step, ft, 0))
            if ft == 0:
                issue(("x", step + 1), xreads(step + 1))
            a(mfma(step, ft, 1))
            issue(("w", step + 1, ft), wreads(step + 1, ft) if ft < OPT["skipw"] else ["s_nop 0"])
    RING = (60, 160, 164)

    def w17(ft):
        return [x.replace(vr(WF + 4 * ft + 2 * sec, 2), vr(RING[ft % 3] + 2 * sec, 2)) for sec, x in enumerate(wreads(17, ft))]

    issue(("x", 17), xreads(17))
    issue(("v", 0), w17(0))
    issue(("v", 1), w17(1))
    for ft in range(10):
        e = (epi(2 * ft - 2) + epi(2 * ft - 1)) if ft else []
        if ft < 9:
            need(("v", ft))
            m = [mfma(16, ft, 0), mfma(16, ft, 1)] + \
                [mfma(17, ft, tt).replace(vr(WF + 4 * ft, 4), vr(RING[ft % 3], 4)) for tt in range(2)]
        else:
            m = []
        cut = (0, 3, 5, 8, 10)
        for k in range(4):
            if m:
                a(m[k])
            if k == 0 and ft + 2 < 9:
                issue(("v", ft + 2), w17(ft + 2))
            for x in e[cut[k]:cut[k + 1]]:
                if x.startswith("ds_"):
                    issue("e", [x])
                else:
                    a(x)
    stamp(a, 2)
    a("s_waitcnt lgkmcnt(0)")
    a.c("---- copy the tile out, then publish it")
    a.label("L_copy")
    a("v_lshlrev_b32 v1, 4, v0")
    a("s_lshl_b32 s36, s3, 10")
    a("v_add_u32 v2, s36, v1")
    a("v_add_u32 v3, %d, v2" % (IMG + 4 * 8192))
    srd_off(a, 24, 8, L.WS_QKV, L.QKV_BYTES)
    make_tag(a)
    a("s_barrier")
    for j in range(4):
        a("ds_read_b128 %s, v2 offset:%d" % (vr(4 + 4 * j, 4), IMG + j * 8192))
    a("s_cmp_lt_u32 s3, 4")
    a("s_cbranch_scc0 L_c4")
    a("ds_read_b128 v[20:23], v3")
    a("s_waitcnt lgkmcnt(0)")
    a("buffer_store_dwordx4 v[20:23], v1, s[24:27], s54 offen sc1")
    a.label("L_c4")
    for j in range(4):
        a("s_waitcnt lgkmcnt(%d)" % (3 - j))
        a("buffer_store_dwordx4 %s, v1, s[24:27], s%d offen sc1" % (vr(4 + 4 * j, 4), 50 + j))
    a("s_mov_b32 s63, s58")
    a("v_mov_b32 v%d, %d" % (vC, CTL))
    lds_inc(a, vC, 24, C_FI)
    stamp(a, 3)


def spare_phase(a):
    GW = 64
    a.c("---- workgroups without a GEMM tile: router / gate logits, first touch of the weights")
    a.label("L_sp")
    a("s_sub_u32 s36, s2, 192")
    a("s_cmp_ge_u32 s3, 8")
    a("s_cbranch_scc1 L_sp_ffn")
    a("s_cmp_ge_u32 s3, 4")
    a("s_cbranch_scc1 L_sp_hi")
    a("s_load_dwordx2 s[60:61], s[0:1], 32")
    a("s_load_dwordx2 s[62:63], s[0:1], 64")
    a("v_lshrrev_b32 v2, 3, v0")
    a("v_and_b32 v3, 7, v0")
    a("v_lshlrev_b32 v3, 4, v3")
    a("s_lshl_b32 s34, s36, 2")
    a("s_add_u32 s34, s34, s3")
    a("s_lshl_b32 s33, s34, 3")
    a("v_add_u32 v1, s33, v2")
    a("v_mul_u32_u24 v4, 1152, v1")
    a("v_add_u32 v4, v4, v3")
    a("s_mul_i32 s51, s34, %d" % (7 * 128))
    a("s_mul_i32 s52, s34, %d" % (21 * 128))
    a("v_lshlrev_b32 v7, 7, v0")
    a("s_waitcnt lgkmcnt(0)")
    load_tag(a)
    srd(a, 16, 6, 576 * 3456)
    srd(a, 20, 28, 576 * 1152)
    for i in range(9):
        a("global_load_dwordx4 %s, v4, s[4:5] offset:%d" % (vr(8 + 4 * i, 4), 128 * i))
        if i == 0:
            for j in range(9):
                a("global_load_dwordx4 %s, v3, s[60:61] offset:%d" % (vr(44 + 4 * j, 4), 128 * j))
                a("global_load_dwordx4 %s, v3, s[62:63] offset:%d" % (vr(80 + 4 * j, 4), 128 * j))
        else:
            a("s_add_u32 s53, s51, %d" % (1728 * 128 * i))
            a("s_mov_b64 exec, 0x7f")
            a("buffer_load_dword v124, v7, s[16:19], s53 offen")
            a("s_mov_b64 exec, -1")
    a("s_mov_b64 exec, 0x1fffff")
    a("buffer_load_dword v124, v7, s[20:23], s52 offen")
    a("s_mov_b64 exec, -1")
    a("v_mov_b32 v%d, %d" % (vC, CTL))
    a("s_waitcnt lgkmcnt(0)")
    make_tag(a)
    a("s_barrier")
    a("s_waitcnt vmcnt(2)")
    for i in range(36):
        p = 116 + (i & 3)
        a("v_dot2_f32_bf16 v%d, v%d, v%d, %s" % (p, 8 + i, 44 + i, "0" if i < 4 else "v%d" % p))
    a("s_nop 1")
    a("v_pk_add_f32 v[116:117], v[116:117], v[118:119]")
    a("v_add_f32 v5, v116, v117")
    sum8(a, (5,))
    bf16_round(a, 5, 5)
    a("v_ashrrev_i32 v7, 31, v5")
    a("v_or_b32 v7, 0x80000000, v7")
    a("v_xor_b32 v7, v7, v5")
    a("v_and_b32 v7, 0xffff0000, v7")
    a("v_sub_u32 v6, 0x7ff, v1")
    a("v_or_b32 v7, v7, v6")
    a("v_mov_b32 v5, 1")
    a("s_mov_b32 s54, 0x01010101")
    a("s_mov_b32 exec_lo, s54")
    a("s_mov_b32 exec_hi, s54")
    a("ds_max_u32 v%d, v7 offset:%d" % (vC, C_KMAX))
    a("s_mov_b64 exec, 1")
    a("ds_add_rtn_u32 v5, v%d, v5 offset:%d" % (vC, C_KCNT))
    a("ds_read_b32 v7, v%d offset:%d" % (vC, C_KMAX))
    a("s_lshl_b32 s53, s36, 3")
    a("s_add_u32 s53, s53, %d" % L.WS_KEYF)
    a("v_mov_b32 v4, s53")
    a("v_mov_b32 v6, s%d" % TAG)
    a("s_waitcnt lgkmcnt(0)")
    a("v_cmp_eq_u32 vcc, 3, v5")
    a("s_and_b64 exec, exec, vcc")
    a("s_cbranch_execz L_sp_nopub")
    a("global_store_dwordx2 v4, v[6:7], s[8:9] sc1")
    a.label("L_sp_nopub")
    a("s_mov_b64 exec, -1")
    stamp(a, 1)
    a("s_mov_b32 s55, 0x3f803f80")
    for i in range(36):
        x, w, p = 8 + i, 80 + i, 116 + (i & 3)
        t = 44 + 4 * (i & 3)
        a("v_lshlrev_b32 v%d, 16, v%d" % (t, x))
        a("v_and_b32 v%d, 0xffff0000, v%d" % (t + 1, x))
        a("v_lshlrev_b32 v%d, 16, v%d" % (t + 2, w))
        a("v_and_b32 v%d, 0xffff0000, v%d" % (t + 3, w))
        a("v_pk_mul_f32 %s, %s, %s" % (vr(t, 2), vr(t, 2), vr(t + 2, 2)))
        a("v_cvt_pk_bf16_f32 v%d, v%d, v%d" % (t, t, t + 1))
        a("v_dot2_f32_bf16 v%d, v%d, s55, %s" % (p, t, "0" if i < 4 else "v%d" % p))
    a("s_nop 1")
    a("v_pk_add_f32 v[116:117], v[116:117], v[118:119]")
    a("v_add_f32 v6, v116, v117")
    sum8(a, (6,))
    bf16_round(a, 6, 6)
    sigmoid(a, 6, 6)
    bf16_round(a, 6, 6)
    a("v_lshlrev_b32 v1, 2, v1")
    a("v_add_u32 v1, %d, v1" % L.WS_G)
    a("s_mov_b32 exec_lo, s54")
    a("s_mov_b32 exec_hi, s54")
    a("global_store_dword v1, v6, s[8:9] sc1")
    a("s_mov_b64 exec, -1")
    a("s_waitcnt vmcnt(0)")
    lds_inc(a, vC, 5, C_GD)
    if OPT["dtouch"]:
        srd(a, 16, 14, 4608 * 1152)
        a("s_mul_i32 s52, s34, %d" % (162 * 128))
        a("v_lshlrev_b32 v7, 7, v0")
        for k in range(3):
            a("buffer_load_dword v124, v7, s[16:19], s52 offen")
            a("s_add_u32 s52, s52, %d" % (54 * 128))
    a("s_mov_b32 s63, 0")
    stamp(a, 2)
    a("s_branch L_att")

    a.label("L_sp_hi")
    a("s_cmp_eq_u32 s3, 7")
    a("s_cbranch_scc0 L_sp_hi1")
    code_touch(a)
    a.label("L_sp_hi1")
    a("v_mov_b32 v%d, %d" % (vC, CTL))
    a("s_waitcnt lgkmcnt(0)")
    load_tag(a)
    a("s_mov_b32 s63, 0")
    a("s_waitcnt lgkmcnt(0)")
    make_tag(a)
    a("s_barrier")
    a("s_cmp_eq_u32 s3, 4")
    a("s_cbranch_scc1 L_sp_w4")
    a("s_cmp_eq_u32 s3, 5")
    a("s_cbranch_scc0 L_att")
    a("s_lshl_b32 s56, s36, 7")
    a("s_add_u32 s56, s56, %d" % (L.WS_FLAG + F_PA * 128))
    a("v_mov_b32 v9, s56")
    lds_spin(a, "L_sp_x5", vC, C_XS, 10, (1, 4), 4)
    a("ds_read_b64 v[14:15], v%d offset:%d" % (vC, C_IDX))
    a("v_mov_b32 v12, s%d" % TAG)
    a("s_waitcnt lgkmcnt(0)")
    a("v_mov_b32 v13, v14")
    a("v_mov_b32 v14, v15")
    a("s_mov_b64 exec, 1")
    a("global_store_dwordx3 v9, v[12:14], s[8:9] sc1")
    a("s_mov_b64 exec, -1")
    a("s_branch L_att")
    a.label("L_sp_w4")
    for k in range(4):
        a("v_mov_b32 v%d, 0" % (12 + k))
    a("s_cmp_lt_u32 s36, 36")
    a("s_cbranch_scc0 L_sp_nz")
    a("s_lshl_b32 s51, s36, 10")
    a("s_add_u32 s51, s51, %d" % L.WS_YP)
    a("v_lshlrev_b32 v4, 4, v0")
    a("v_add_u32 v4, s51, v4")
    a("global_store_dwordx4 v4, v[12:15], s[8:9] sc1")
    a("s_cmp_eq_u32 s36, 0")
    a("s_cbranch_scc0 L_sp_nz")
    a("v_lshlrev_b32 v4, 7, v0")
    a("v_add_u32 v4, %d, v4" % (L.WS_FLAG + F_Y * 128))
    a("global_store_dword v4, v12, s[8:9] sc1")
    a.label("L_sp_nz")
    a("v_lshlrev_b32 v8, 3, v0")
    a("v_add_u32 v8, %d, v8" % L.WS_KEYF)
    srd(a, 24, 4, 2048 * 1152)
    lds_spin(a, "L_sp_own", vC, C_KCNT, 10, (4,), 2)
    a("s_sleep %d" % OPT["slp0"])
    flag_poll(a, "L_sp_kp", 8, 10, "s%d" % TAG, 64, OPT["slp"], 2)
    a("v_lshlrev_b32 v8, 4, v0")
    stamp(a, 1)
    wave_umax(a, 11, 53)
    a("s_and_b32 s54, s53, 0x7ff")
    a("s_sub_u32 s54, 2047, s54")
    a("s_mul_i32 s55, s54, 1152")
    a("s_mov_b32 m0, %d" % XS)
    a("s_add_u32 s56, s55, 1024")
    a("buffer_load_dwordx4 v8, s[24:27], s55 offen lds")
    a("s_mov_b32 m0, %d" % (XS + 1024))
    a("s_mov_b64 exec, 0xff")
    a("buffer_load_dwordx4 v8, s[24:27], s56 offen lds")
    a("s_mov_b64 exec, -1")
    a("s_and_b32 s55, s53, 0xffff0000")
    a("s_xor_b32 s56, s55, 0x80000000")
    a("s_xor_b32 s57, s55, 0xffff0000")
    a("s_bitcmp1_b32 s55, 31")
    a("s_cselect_b32 s55, s56, s57")
    a("v_mov_b32 v12, s55")
    sigmoid(a, 13, 12)
    bf16_round(a, 13, 13)
    a("v_mov_b32 v12, s54")
    a("ds_write_b64 v%d, v[12:13] offset:%d" % (vC, C_IDX))
    a("v_mov_b32 v12, 1")
    a("s_waitcnt vmcnt(0)")
    a("ds_write_b32 v%d, v12 offset:%d" % (vC, C_XS))
    stamp(a, 2)
    a("s_branch L_att")

    a.c("---- gate / up projections of the routed token")
    a.label("L_sp_ffn")
    a("s_load_dwordx4 s[40:43], s[0:1], 40")
    a("v_mov_b32 v3, %d" % CTL)
    for k in range(4):
        a("v_mov_b32 v%d, 0" % (4 + k))
    a("v_lshlrev_b32 v1, 4, v0")
    a("v_add_u32 v2, v1, v3")
    a("s_mov_b64 exec, 0xff")
    a("ds_write_b128 v2, v[4:7]")
    a("s_mov_b64 exec, -1")
    a("v_lshlrev_b32 v2, 2, v0")
    a("v_add_u32 v2, %d, v2" % (XS + 1152))
    a("ds_write_b32 v2, v4")
    a("s_sub_u32 s59, s3, 8")
    a("s_mul_i32 s37, s36, 57")
    a("s_lshr_b32 s37, s37, 9")
    a("s_mul_i32 s38, s37, 9")
    a("s_sub_u32 s38, s36, s38")
    a("s_mul_i32 s49, s37, 84")
    a("s_mul_i32 s39, s49, 9216")
    a("s_lshl_b32 s48, s38, 10")
    a("s_add_u32 s39, s39, s48")
    a("s_sub_u32 s48, %d, s39" % (576 * 9216))
    a("s_min_i32 s48, s48, %d" % (83 * 9216 + 1024))
    a("s_max_i32 s48, s48, 0")
    a("v_lshrrev_b32 v160, 5, v0")
    a("v_mul_u32_u24 v160, 9216, v160")
    a("v_and_b32 v161, 31, v0")
    a("v_lshl_add_u32 v160, v161, 4, v160")
    a("s_mul_i32 s57, s59, 20480")
    a("s_add_u32 s57, s57, %d" % WO)
    a("s_mul_i32 s58, s59, %d" % (2 * 9216))
    a("s_waitcnt lgkmcnt(0)")
    load_tag(a)
    srd_off(a, 16, 40, "s39", "s48")
    srd_off(a, 20, 42, "s39", "s48")
    a("s_waitcnt lgkmcnt(0)")
    make_tag(a)
    a("s_barrier")
    if OPT["fdel"]:
        lds_spin(a, "L_sp_fd", 3, C_KCNT, 10, (4,), 2)
        if OPT["fdel"] > 1:
            a("s_sleep %d" % OPT["fdel"])
    for i in range(5):
        a("s_add_u32 s55, s58, %d" % (8 * (6 + i) * 9216))
        a("s_add_u32 s56, s55, 512")
        for k in range(4):
            a("s_add_u32 m0, s57, %d" % ((4 * i + k) * 1024))
            a("buffer_load_dwordx4 v160, s[%d:%d], s%d offen nt lds" % (16 + 4 * (k >> 1), 19 + 4 * (k >> 1), 55 + (k & 1)))
            if OPT["thr"] and 4 * i + k >= OPT["thr"] - 1:
                a("s_waitcnt vmcnt(%d)" % (OPT["thr"] - 1))
    for i in range(6):
        a("s_add_u32 s55, s58, %d" % (8 * i * 9216))
        for k in range(4):
            a("buffer_load_dwordx4 %s, v160, s[%d:%d], s55 offen offset:%d nt" % (
                vr(GW + 16 * i + 4 * k, 4), 16 + 4 * (k >> 1), 19 + 4 * (k >> 1), 512 * (k & 1)))
            if OPT["thr"]:
                a("s_waitcnt vmcnt(%d)" % (OPT["thr"] - 1))
    a("s_lshl_b32 s55, s59, 1")
    a("s_add_u32 s55, s55, s49")
    a("v_lshrrev_b32 v51, 5, v0")
    a("v_add_u32 v51, s55, v51")
    a("v_lshlrev_b32 v51, 1, v51")
    a("v_add_u32 v51, %d, v51" % XS)
    a("v_and_b32 v2, 1, v0")
    a("v_lshlrev_b32 v2, 4, v2")
    a("v_lshrrev_b32 v4, 1, v0")
    a("v_xor_b32 v4, v4, v0")
    a("v_and_b32 v4, 8, v4")
    a("v_bfe_u32 v5, v0, 1, 2")
    a("v_or_b32 v4, v4, v5")
    for q in range(4):
        a("v_cmp_eq_u32 s[%d:%d], %d, v4" % (40 + 2 * q, 41 + 2 * q, q))
    a("v_bfe_u32 v4, v0, 3, 1")
    a("v_lshlrev_b32 v4, 9, v4")
    a("v_lshrrev_b32 v5, 4, v0")
    a("v_lshl_add_u32 v4, v5, 7, v4")
    a("v_and_b32 v5, 7, v0")
    a("v_lshl_add_u32 v4, v5, 2, v4")
    a("v_add_u32 v6, s57, v4")
    a("v_add_u32 v52, s57, v1")
    a("s_lshl_b32 s55, s59, 9")
    a("v_lshlrev_b32 v8, 3, v0")
    a("v_add_u32 v8, s55, v8")
    a("s_mul_i32 s52, s37, %d" % (4608 * 16))
    a("s_lshl_b32 s55, s38, 13")
    a("s_add_u32 s52, s52, s55")
    a("s_add_u32 s52, s52, %d" % L.WS_PA)
    a("v_lshlrev_b32 v9, 2, v8")
    a("v_add_u32 v9, s52, v9")
    a("v_add_u32 v8, %d, v8" % WO)
    stamp(a, 3)
    lds_spin(a, "L_sp_xs", 3, C_XS, 10, (1,), 2)
    a("s_setprio %d" % OPT["pr2"])
    stamp(a, 7)
    for i in range(11):
        a("ds_read_u16 v%d, v51 offset:%d" % (53 + i, 16 * i))
    a("s_waitcnt vmcnt(24)")
    for k in range(4):
        a("ds_read_b128 %s, v52 offset:%d" % (vr(32 + 4 * k, 4), 1024 * k))
    a("s_waitcnt lgkmcnt(4)")
    for i in range(11):
        a("v_lshlrev_b32 v%d, v2, v%d" % (53 + i, 53 + i))
    first = True
    for i in range(5):
        selector(a, 12, 53 + 6 + i, 40)
        for k in range(4):
            d = vr(16 + 4 * k, 4)
            a("s_waitcnt lgkmcnt(%d)" % (3 if i < 4 else 3 - k))
            a("v_mfma_f32_16x16x32_bf16 %s, %s, v[12:15], %s" % (d, vr(32 + 4 * k, 4), "0" if first else d))
            if i < 4:
                a("ds_read_b128 %s, v52 offset:%d" % (vr(32 + 4 * k, 4), 1024 * (4 * (i + 1) + k)))
        first = False
    stamp(a, 12)
    for i in range(6):
        selector(a, 12, 53 + i, 40)
        a("s_waitcnt vmcnt(%d)" % (4 * (5 - i)))
        for k in range(4):
            d = vr(16 + 4 * k, 4)
            a("v_mfma_f32_16x16x32_bf16 %s, %s, v[12:15], %s" % (d, vr(GW + 16 * i + 4 * k, 4), d))
    stamp(a, 11)
    for k in range(4):
        for r in range(4):
            a("ds_write_b32 v6, v%d offset:%d" % (16 + 4 * k + r, 1024 * k + 32 * r))
    lds_inc(a, 3, 10, C_RED)
    lds_spin(a, "L_sp_rd", 3, C_RED, 10, (4,), 0)
    for p in range(4):
        a("ds_read_b64 %s, v8 offset:%d" % (vr(16 + 4 * p, 2), 20480 * p))
        a("ds_read_b64 %s, v8 offset:%d" % (vr(18 + 4 * p, 2), 20480 * p + 2048))
    a("v_mov_b32 v34, s%d" % TAG)
    a("v_mov_b32 v38, s%d" % TAG)
    a("s_waitcnt lgkmcnt(0)")
    lds_inc(a, 3, 10, C_RED2)
    for p in (2, 1):
        for h in range(2 * p):
            a("v_pk_add_f32 %s, %s, %s" % (vr(16 + 2 * h, 2), vr(16 + 2 * h, 2), vr(16 + 4 * p + 2 * h, 2)))
    a("v_mov_b32 v32, v16")
    a("v_mov_b32 v33, v18")
    a("v_mov_b32 v36, v17")
    a("v_mov_b32 v37, v19")
    a("s_cmp_eq_u32 s36, 63")
    a("s_cbranch_scc1 L_sp_nost")
    a("global_store_dwordx4 v9, v[32:35], s[8:9] sc1")
    a("global_store_dwordx4 v9, v[36:39], s[8:9] offset:16 sc1")
    a.label("L_sp_nost")
    stamp(a, 4)
    lds_spin(a, "L_sp_r2", 3, C_RED2, 10, (4,), 0)
    a("s_branch L_help2")


def attn_loop(a):
    for i in range(9):
        if OPT["bal"] and i == 0:
            a("s_cmp_lt_u32 s3, 4")
            a("s_cbranch_scc1 L_bal0")
            a("s_setprio 1")
            a.label("L_bal0")
        if OPT["bal"] and i == OPT["bal"]:
            a("s_setprio 0")
        a.label("L_it%d" % i)
        S, P = SS[i & 1], PP[i & 1]
        ex = ["v_exp_f32 v%d, v%d" % (S + r, S + r) for r in range(16)]
        cv = ["v_cvt_pk_bf16_f32 v%d, v%d, v%d" % (P + q, S + 2 * q, S + 2 * q + 1) for q in range(8)]
        if i == 0:
            mk = ["v_bfi_b32 v%d, v%d, 0, v%d" % (P + q, MSK + q, P + q) for q in range(8)]
        elif i == 8:
            mk = ["v_and_b32 v%d, v%d, v%d" % (P + q, MSK + q, P + q) for q in range(8)]
        else:
            mk = []
        m1 = qk(i + 1) if i < 8 else []
        m2 = pv(i - 1, i == 1) if i > 0 else []
        a("s_waitcnt lgkmcnt(%d)" % (4 if 0 < i < 8 else 0))
        seq = m1[:1] + ex[0:4] + m1[1:] + (k_reads(i + 2) if i + 2 <= 8 else []) + ex[4:8] + cv[0:2] + m2[:1] + \
            ex[8:12] + cv[2:4] + m2[1:]
        if i + 1 <= 8:
            seq += ["v_add_u32 v%d, v%d, v%d" % (vV, vV, vStep)] + v_reads(i + 1)
        seq += ex[12:16] + cv[4:8] + mk
        for x in seq:
            a(x)
    lds_spin(a, "L_pz", vC, C_C, T, (1,), 0)
    for x in pv(8, False):
        a(x)


def attention_phase(a):
    a.c("---- attention: set-up, wait for the producers, K/V/Q into LDS")
    a.label("L_att")
    decode2(a)
    a("s_mul_i32 s33, s31, %d" % L.PAIR_BYTES)
    a("s_mul_i32 s34, s32, 9216")
    a("s_add_u32 s33, s33, s34")
    a("v_mov_b32 v%d, %d" % (vC, CTL))
    KS, VS = 16 * L.PAIR_BYTES - 18432, 32 * L.PAIR_BYTES - 18432
    grp = [(QB, 0), (KB, KS), (VB, VS), (KB + 9216, KS + 9216), (VB + 9216, VS + 9216), (KB + 18432, KS + 18432), (VB + 18432, VS + 18432)]
    a("s_lshl_b32 s34, s3, 10")
    for j in range(8):
        lo, hi = (8 * j) // 9, min(8 * j + 7, 62) // 9
        l0, g0 = grp[lo][0] + (8 * j - 9 * lo) * 1024, grp[lo][1] + (8 * j - 9 * lo) * 1024
        l1, g1 = grp[hi][0] + (8 * j - 9 * hi) * 1024, grp[hi][1] + (8 * j - 9 * hi) * 1024
        if j == 7:
            a("s_min_u32 s34, s34, %d" % (6 * 1024))
        if lo == hi:
            a("s_add_u32 s%d, s34, %d" % (16 + j, l0))
            a("s_add_u32 s%d, s33, %d" % (44 + j, g0 - l0 & 0xffffffff))
        else:
            a("s_mov_b32 s35, %d" % l0)
            a("s_mov_b32 s36, %d" % (g0 - l0 & 0xffffffff))
            a("s_cmp_ge_u32 s3, %d" % (9 * hi - 8 * j))
            a("s_cselect_b32 s35, %d, s35" % (l1 & 0xffffffff))
            a("s_cselect_b32 s36, %d, s36" % (g1 - l1 & 0xffffffff))
            a("s_add_u32 s%d, s34, s35" % (16 + j))
            a("s_add_u32 s%d, s33, s36" % (44 + j))
        a("s_add_u32 s%d, s%d, s%d" % (44 + j, 44 + j, 16 + j))
    a("v_mov_b32 v10, s63")
    a("v_mov_b32 v11, s%d" % TAG)
    a("s_waitcnt vmcnt(0)")
    lds_inc(a, vC, 9, C_1, rtn=True)
    a("s_cmp_lg_u32 s63, 0")
    a("s_cselect_b32 s35, 7, 99")
    a("s_waitcnt lgkmcnt(0)")
    a("v_readfirstlane_b32 s36, v9")
    a("s_cmp_eq_u32 s36, s35")
    a("s_cbranch_scc0 L_nofl1")
    a("s_mov_b64 exec, 1")
    a("global_store_dword v10, v11, s[8:9] sc1")
    a("s_mov_b64 exec, -1")
    a.label("L_nofl1")
    stamp(a, 4)
    a("s_and_b32 s42, s3, 1")
    a("s_lshr_b32 s43, s3, 1")
    a("s_mul_i32 s35, s43, 2304")
    a("s_mul_i32 s36, s42, 40")
    a("v_and_b32 v%d, 31, v0" % T)
    a("v_lshrrev_b32 v%d, 5, v0" % (T + 1))
    a("v_mul_u32_u24 v%d, 72, v%d" % (vKt, T))
    a("v_add_u32 v%d, s35, v%d" % (vKt, vKt))
    a("v_lshl_add_u32 v%d, v%d, 4, v%d" % (vK, T + 1, vKt))
    a("v_add_u32 v%d, s36, v%d" % (vK, vK))
    a("v_add_u32 v%d, 32, v%d" % (vKt, vKt))
    a("v_bfe_u32 v%d, v0, 2, 2" % (T + 2))
    a("v_lshl_add_u32 v%d, v%d, 2, v%d" % (T + 2, T + 1, T + 2))
    a("v_mul_u32_u24 v%d, 72, v%d" % (T + 2, T + 2))
    a("s_add_u32 s37, s35, %d" % VB)
    a("v_add_u32 v%d, s37, v%d" % (T + 2, T + 2))
    a("v_and_b32 v%d, 3, v0" % (T + 3))
    a("v_lshlrev_b32 v%d, 3, v%d" % (T + 4, T + 3))
    a("v_add_u32 v%d, s36, v%d" % (T + 4, T + 4))
    a("v_and_b32 v%d, 16, v0" % (T + 5))
    a("v_cmp_eq_u32 s[38:39], 0, v%d" % (T + 5))
    a("v_cndmask_b32 v%d, 32, v%d, s[38:39]" % (T + 4, T + 4))
    a("v_add_u32 v%d, v%d, v%d" % (vV, T + 2, T + 4))
    a("v_and_b32 v%d, 19, v0" % (T + 5))
    a("v_cmp_lt_u32 s[38:39], 16, v%d" % (T + 5))
    a("v_mov_b32 v%d, %d" % (T + 6, ONES))
    a("v_cndmask_b32 v%d, v%d, v%d, s[38:39]" % (vV, vV, T + 6))
    a("v_mov_b32 v%d, 2304" % (T + 6))
    a("v_cndmask_b32 v%d, v%d, 0, s[38:39]" % (vStep, T + 6))
    a("v_lshlrev_b32 v%d, 2, v%d" % (T + 2, T + 1))
    a("v_sub_u32 v%d, v%d, v%d" % (T + 2, T, T + 2))
    a("v_mov_b32 v%d, 0xffff" % (T + 3))
    for q in range(8):
        kl = 8 * (q >> 1) + 2 * (q & 1)
        a("v_cmp_le_i32 s[38:39], %d, v%d" % (kl, T + 2))
        a("v_cmp_le_i32 s[40:41], %d, v%d" % (kl + 1, T + 2))
        a("v_cndmask_b32 v%d, 0, v%d, s[38:39]" % (MSK + q, T + 3))
        a("v_cndmask_b32 v%d, v%d, -1, s[40:41]" % (MSK + q, MSK + q))
    a("s_lshl_b32 s41, s32, 2")
    a("s_add_u32 s41, s41, s43")
    a("s_sub_i32 s41, 8, s41")
    a("s_lshl_b32 s35, s32, 3")
    a("s_lshl_b32 s36, s43, 1")
    a("s_add_u32 s35, s35, s36")
    a("s_mul_i32 s35, s35, 18432")
    a("s_lshl_b32 s58, s31, 10")
    a("s_lshl_b32 s36, s42, 9")
    a("s_add_u32 s58, s58, s36")
    a("s_add_u32 s58, s58, s35")
    a("s_lshr_b32 s59, s31, 1")
    a("s_lshl_b32 s59, s59, 8")
    a("s_and_b32 s36, s31, 1")
    a("s_lshl_b32 s36, s36, 3")
    a("s_add_u32 s59, s59, s36")
    a("s_lshl_b32 s36, s42, 2")
    a("s_add_u32 s59, s59, s36")
    a("s_add_u32 s59, s59, s35")
    a("s_add_u32 s59, s59, 16384")
    a("v_bfe_u32 v152, v0, 4, 1")
    a("v_mul_u32_u24 v152, 18432, v152")
    a("v_and_b32 v153, 15, v0")
    a("v_lshl_add_u32 v152, v153, 4, v152")
    a("v_lshrrev_b32 v153, 5, v0")
    a("v_lshl_add_u32 v153, v153, 8, v152")
    a("v_cmp_gt_u32 vcc, 32, v0")
    a("s_cmp_eq_u32 s42, 0")
    a("s_cselect_b64 s[54:55], vcc, 0")
    a("s_cselect_b64 s[56:57], 0, vcc")
    a("v_and_b32 v%d, 3, v0" % (T + 2))
    a("v_mul_u32_u24 v%d, 576, v%d" % (T + 2, T + 2))
    a("v_mov_b32 v%d, 0x3f803f80" % (T + 4))
    a("v_mov_b32 v%d, v%d" % (T + 5, T + 4))
    a("v_lshlrev_b32 v%d, 4, v0" % (T + 3))
    srd_off(a, 36, 8, L.WS_QKV, L.QKV_BYTES)
    srd_off(a, 24, 8, L.WS_O, 128 * 18432)
    a("s_add_u32 s40, s3, 2")
    a("s_cmp_lt_u32 s3, 4")
    a("s_cselect_b32 s40, s3, s40")
    out_setup(a, 40)
    a("s_lshr_b32 s35, s2, 6")
    a("s_lshl_b32 s35, s35, 4")
    a("s_add_u32 s35, s35, s3")
    a("s_cmp_eq_u32 s35, %d" % (3 * 16 + 6))
    a("s_cbranch_scc0 L_nq2")
    lds_spin(a, "L_sp_x6", vC, C_XS, T + 8, (1,), 8)
    qpoll(a, vC, "L_qp2", False, T + 8)
    a.label("L_nq2")
    lds_spin(a, "L_go1", vC, C_1, T, (8, 1), OPT["g1s"])
    stamp(a, 5)
    for j in range(8):
        a("s_mov_b32 m0, s%d" % (16 + j))
        a("s_nop 0")
        a("buffer_load_dwordx4 v%d, s[36:39], s%d offen %s lds" % (T + 3, 44 + j, OPT["kvl"]))
    a("ds_write_b64 v%d, %s offset:%d" % (T + 2, vr(T + 4, 2), ONES))
    a("s_cmp_lt_u32 s32, 2")
    a("s_cbranch_scc1 L_late")
    landed(a, 1, 0)
    stage_spin(a, "L_sA", 0)
    stamp(a, 6)
    for x in q_reads() + k_reads(0) + k_reads(1) + v_reads(0):
        a(x)
    a("s_waitcnt lgkmcnt(7)")
    a("v_cndmask_b32 v%d, 0, v%d, s[54:55]" % (QT, QT))
    a("v_cndmask_b32 v%d, 0, v%d, s[56:57]" % (QT + 1, QT + 1))
    for x in qk(0):
        a(x)
    lds_inc(a, vC, T, C_B)
    x_loads(a)
    attn_loop(a)
    a.c("---- softmax range check; true-max path if it fails")
    a.label("L_check")
    stamp(a, 7)
    a("s_mov_b32 s46, %s" % f32(2.0 ** 60))
    a("s_mov_b32 s47, %s" % f32(2.0 ** -60))
    a("s_mov_b32 s48, 0x7f800000")
    a("s_nop 7")
    a("s_nop 0")
    a("v_rcp_f32 v%d, v%d" % (T, OO + 12))
    a("v_cmp_gt_f32 s[50:51], s46, v%d" % (OO + 12))
    a("v_cmp_lt_f32 vcc, s47, v%d" % (OO + 12))
    for k in range(6):
        a("v_add_f32 v%d, abs(v%d), abs(v%d)" % (T + 2 + k, OO + 2 * k, OO + 2 * k + 1))
    a("s_and_b64 s[50:51], s[50:51], vcc")
    a("v_pk_add_f32 %s, %s, %s" % (vr(T + 2, 2), vr(T + 2, 2), vr(T + 4, 2)))
    a("v_pk_add_f32 %s, %s, %s" % (vr(T + 2, 2), vr(T + 2, 2), vr(T + 6, 2)))
    a("v_add_f32 v%d, v%d, v%d" % (T + 2, T + 2, T + 3))
    a("v_cmp_gt_f32 vcc, s48, v%d" % (T + 2))
    a("s_and_b64 s[50:51], s[50:51], vcc")
    a("s_cmp_eq_u64 s[50:51], -1")
    a("s_cbranch_scc0 L_slow")
    a.label("L_fin")
    a("s_cmp_eq_u32 s42, 0")
    a("s_cbranch_scc1 L_fa")
    a("v_mov_b32 v%d, v%d" % (OO + 8, OO + 10))
    a("v_mov_b32 v%d, v%d" % (OO + 9, OO + 11))
    a.label("L_fa")
    for k in range(0, 10, 2):
        a("v_pk_mul_f32 %s, %s, %s op_sel_hi:[1,0]" % (vr(OO + k, 2), vr(OO + k, 2), vr(T, 2)))
    for q in range(5):
        a("v_cvt_pk_bf16_f32 v%d, v%d, v%d" % (T + 4 + q, OO + 2 * q, OO + 2 * q + 1))
    a("buffer_store_dwordx4 %s, v153, s[24:27], s58 offen sc1" % vr(T + 4, 4))
    a("s_mov_b32 exec_hi, 0")
    a("buffer_store_dword v%d, v152, s[24:27], s59 offen sc1" % (T + 8))
    a("s_mov_b32 exec_hi, -1")


def q_reads():
    return ["ds_read_b64 %s, v%d offset:%d" % (vr(QM, 2), vK, QB),
            "ds_read_b64 %s, v%d offset:%d" % (vr(QM + 2, 2), vK, QB + 8),
            "ds_read_b64 %s, v%d offset:%d" % (vr(QT, 2), vKt, QB)]


sKH, sPAIR, sTILE, sGATE, sSLOT, sOB, sXO = 6, 7, 13, 14, 15, 28, 29
A0, vXO, vRW, vCH, vSW, vSR, vL16, vPX, vPF = 156, 142, 140, 141, 143, 144, 162, 160, 161
GB = 154624


def out_setup(a, role):
    a("s_and_b32 s%d, s%d, 1" % (sKH, role))
    a("s_lshr_b32 s%d, s%d, 1" % (sPAIR, role))
    a("s_mul_i32 s%d, s52, 5" % sTILE)
    a("s_and_b32 s33, s%d, 7" % sTILE)
    a("s_sub_u32 s34, 8, s33")
    a("s_cmp_lt_u32 s33, 4")
    a("s_cselect_b32 s34, 0, s34")
    a("s_add_u32 s34, s34, s%d" % sPAIR)
    a("s_sub_u32 s35, s34, 5")
    a("s_cmp_ge_u32 s34, 5")
    a("s_cselect_b32 s34, s35, s34")
    a("s_add_u32 s%d, s%d, s34" % (sTILE, sTILE))
    a("s_lshl_b32 s98, s34, 6")
    a("s_mov_b32 s%d, 0x404" % sGATE)
    a("s_bitcmp1_b32 s%d, 2" % sTILE)
    if not OPT["allg"]:
        a("s_cselect_b32 s%d, s%d, 4" % (sGATE, sGATE))
    a("s_mov_b32 s%d, %d" % (sSLOT, PSLOT[0]))
    for p in range(1, 5):
        a("s_cmp_eq_u32 s%d, %d" % (sPAIR, p))
        a("s_cselect_b32 s%d, %d, s%d" % (sSLOT, PSLOT[p], sSLOT))
    a("s_mul_i32 s%d, s%d, 18432" % (sOB, sTILE))
    a("s_lshl_b32 s33, s53, 7")
    a("s_add_u32 s%d, s%d, s33" % (sXO, sOB))
    a("s_lshl_b32 s33, s%d, 6" % sKH)
    a("s_add_u32 s%d, s%d, s33" % (sXO, sXO))
    a("s_mul_i32 s33, s%d, 9216" % sKH)
    a("s_add_u32 s%d, s%d, s33" % (sOB, sOB))
    a("s_add_u32 s96, s%d, 4096" % sOB)
    a("s_add_u32 s97, s%d, 8192" % sOB)
    a("v_lshrrev_b32 v%d, 2, v0" % vRW)
    a("v_and_b32 v%d, 3, v0" % vCH)
    a("v_mul_u32_u24 v%d, 1152, v%d" % (vXO, vRW))
    a("v_lshl_add_u32 v%d, v%d, 4, v%d" % (vXO, vCH, vXO))
    a("v_lshrrev_b32 v146, 2, v0")
    a("v_bfe_u32 v147, v0, 3, 2")
    a("v_lshlrev_b32 v147, 1, v147")
    a("v_bfe_u32 v148, v0, 1, 1")
    a("v_xor_b32 v147, v147, v148")
    a("v_and_b32 v148, 1, v0")
    a("v_lshlrev_b32 v148, 3, v148")
    a("v_lshl_add_u32 v148, v146, 7, v148")
    a("v_lshl_add_u32 v148, v147, 4, v148")
    a("s_mul_i32 s33, s%d, %d" % (sKH, 9 * 4096))
    a("s_add_u32 s33, s33, %d" % WO)
    a("s_lshl_b32 s34, s%d, 6" % sKH)
    a("v_xor_b32 v148, s34, v148")
    for t in range(4):
        a("v_xor_b32 v%d, %d, v148" % (A0 + t, 32 * t))
        a("v_add_u32 v%d, s33, v%d" % (A0 + t, A0 + t))
    a("v_lshlrev_b32 v%d, 4, v0" % vL16)
    a("s_lshl_b32 s33, s%d, 11" % sKH)
    a("s_add_u32 s%d, s%d, s33" % (sSLOT, sSLOT))
    a("v_add_u32 v%d, s%d, v%d" % (vPX, sSLOT, vL16))
    a("s_lshl_b32 s33, s33, 1")
    a("s_sub_u32 s33, 2048, s33")
    a("v_add_u32 v164, s33, v%d" % vPX)
    a("s_lshl_b32 s33, s%d, 1" % sPAIR)
    a("s_add_u32 s33, s33, s%d" % sKH)
    a("s_lshl_b32 s33, s33, 2")
    a("s_add_u32 s33, s33, %d" % CTL)
    a("v_mov_b32 v%d, s33" % vPF)
    a("v_xor_b32 v165, 4, v%d" % vPF)
    a("v_and_b32 v%d, 15, v0" % vSW)
    a("v_mul_u32_u24 v%d, 80, v%d" % (vSW, vSW))
    a("v_lshrrev_b32 v146, 4, v0")
    a("v_lshlrev_b32 v146, 3, v146")
    a("v_add3_u32 v%d, v%d, v146, s%d" % (vSW, vSW, sSLOT))
    a("v_mul_u32_u24 v%d, 80, v%d" % (vSR, vRW))
    a("v_lshl_add_u32 v%d, v%d, 4, v%d" % (vSR, vCH, vSR))
    a("v_add_u32 v%d, s%d, v%d" % (vSR, sSLOT, vSR))
    a("s_add_u32 s98, s98, %d" % GB)
    a("v_lshl_add_u32 v145, v%d, 2, s98" % vRW)
    a("s_cmp_lt_u32 s3, 4")
    a("s_cselect_b32 s33, 1, 0x100")
    a("v_mov_b32 v163, s33")


def x_loads(a):
    srd(a, 20, 4, 2048 * 1152)
    a("buffer_load_dwordx4 %s, v%d, s[20:23], s%d offen" % (vr(XR, 4), vXO, sXO))


def out_phase(a):
    WFR, OF, ACC, PX = (20, 36, 100), 64, (52, 56, 60, 116), (146, 120)
    a("s_cmp_ge_u32 s52, 26")
    a("s_cbranch_scc1 L_end")
    if not OPT["gissue"]:
        a("s_waitcnt vmcnt(0)")
    stamp(a, 8)
    a("s_mov_b64 exec, 1")
    a("ds_add_u32 v%d, v163 offset:%d" % (vC, C_O))
    a("s_mov_b64 exec, -1")
    a.c("---- output projection and gated mix")
    a.label("L_out")

    def omx():
        for j in range(1):
            for q in range(4):
                xv = XR + 4 * j + q
                d = PX[j] + 2 * q
                a("v_lshlrev_b32 v%d, 16, v%d" % (d, xv))
                a("v_and_b32 v%d, 0xffff0000, v%d" % (d + 1, xv))
                a("v_pk_mul_f32 %s, %s, %s op_sel:[0,1] op_sel_hi:[1,1]" % (vr(d, 2), vr(d, 2), vr(GR + 2 * j, 2)))

    def reads(sl):
        st = WFR[sl % 3]
        return ["ds_read_b64_tr_b16 %s, v%d offset:%d" % (vr(st + 4 * t + 2 * sec, 2), A0 + t, (32 * sl + 16 * sec) * 128)
                for t in range(4) for sec in range(2)]

    lds_spin(a, "L_wo", vC, C_WO, 10, (2,), 0)
    for x in reads(0) + reads(1):
        a(x)
    a("s_mov_b32 s60, 0x200000")
    a.label("L_go2")
    a("ds_read_b64 v[10:11], v%d offset:%d" % (vC, C_O))
    a("s_waitcnt lgkmcnt(0)")
    a("v_readfirstlane_b32 s61, v10")
    a("v_readfirstlane_b32 s62, v11")
    a("s_and_b32 s61, s61, s%d" % sGATE)
    a("s_cmp_eq_u32 s61, s%d" % sGATE)
    a("s_cselect_b32 s62, s62, 0")
    a("s_cmp_eq_u32 s62, 1")
    a("s_cbranch_scc1 L_go2_d")
    a("s_sub_u32 s60, s60, 1")
    a("s_cbranch_scc0 L_go2")
    a.label("L_go2_d")
    if OPT["gissue"] == 2:
        a("s_cmp_eq_u32 s60, 0x200000")
        a("s_cbranch_scc1 L_go2_e")
        a("s_sleep %d" % OPT["cdel"])
        a.label("L_go2_e")
        a("s_waitcnt vmcnt(0)")
    elif OPT["cdel"]:
        a("s_sleep %d" % OPT["cdel"])
    stamp(a, 9)
    LAO = OPT["lao"]

    def oload(s):
        a("buffer_load_dwordx4 %s, v%d, s[24:27], s%d offen offset:%d sc1" % (vr(OF + 4 * s, 4), vL16, (sOB, 96, 97)[s // 4], 1024 * (s % 4)))

    def ocheck(sl):
        b = OF + 4 * sl
        if sl < 7:
            a("v_cmp_eq_u32 vcc, -1, v%d" % b)
        else:
            a("v_max3_u32 v10, v%d, v%d, v%d" % (b, b + 1, b + 2))
            a("v_max_u32 v10, v10, v%d" % (b + 3))
            a("v_cmp_eq_u32 vcc, -1, v10")
        a("s_nop 1")

    def oretry():
        for sl in range(9):
            a.label("L_or%d" % sl)
            a("s_sub_u32 s60, s60, 1")
            a("s_cbranch_scc1 L_ok%d" % sl)
            a("s_waitcnt vmcnt(0)")
            for s in range(sl, min(sl + LAO, 9)):
                oload(s)
            a("s_waitcnt vmcnt(%d)" % min(LAO - 1, 8 - sl))
            a("s_branch L_oc%d" % sl)

    RETRY.append(oretry)
    a("s_mov_b32 s60, 0x8000")
    for s in range(LAO):
        oload(s)
    a("ds_read_b32 v%d, v145" % GR)
    a("ds_read_b32 v10, v%d offset:%d" % (vC, C_IDX))
    srd(a, 20, 10, 2048 * 1152)
    a("s_waitcnt lgkmcnt(0) vmcnt(%d)" % LAO)
    a("v_readfirstlane_b32 s12, v10")
    a("v_sub_f32 v%d, 1.0, v%d" % (GR + 1, GR))
    bf16_round(a, GR + 1, GR + 1)
    omx()
    for sl in range(9):
        rd = reads(sl + 2) if sl < 7 else []
        a("s_waitcnt vmcnt(%d) lgkmcnt(%d)" % (min(LAO - 1, 8 - sl), 8 if sl < 8 else 0))
        a.label("L_oc%d" % sl)
        ocheck(sl)
        a("s_cbranch_vccnz L_or%d" % sl)
        a.label("L_ok%d" % sl)
        for t in range(4):
            d = vr(ACC[t], 4)
            a("v_mfma_f32_16x16x32_bf16 %s, %s, %s, %s" % (d, vr(WFR[sl % 3] + 4 * t, 4), vr(OF + 4 * sl, 4), "0" if sl == 0 else d))
            if t == 0 and sl + LAO < 9:
                oload(sl + LAO)
            for x in rd[2 * t:2 * t + 2]:
                a(x)
    stamp(a, 10)
    if OPT["stamp"]:
        a("s_sub_u32 s94, 0x8000, s60")
        a("s_mul_i32 s94, s94, 100")
        a("s_add_u32 s94, s94, s66")
        a("s_addc_u32 s95, s67, 0")
    a("v_mov_b32 v10, 1")
    a("ds_write_b128 v164, %s" % vr(ACC[2], 4))
    a("ds_write_b128 v164, %s offset:1024" % vr(ACC[3], 4))
    a("ds_write_b32 v165, v10 offset:%d" % C_PART)
    a("s_lshr_b32 s46, s12, 4")
    a("s_cmp_eq_u32 s46, s%d" % sTILE)
    a("s_cbranch_scc0 L_noy")
    lds_spin(a, "L_yw", vC, C_YRDY, 10, (1,))
    a("s_lshl_b32 s46, s%d, 7" % sKH)
    a("s_add_u32 s46, s46, %d" % YB)
    a("v_lshl_add_u32 v10, v%d, 5, s46" % vCH)
    a("ds_read_b128 v[12:15], v10")
    a("ds_read_b128 v[16:19], v10 offset:16")
    a("s_and_b32 s46, s12, 15")
    a("v_cmp_eq_u32 s[50:51], s46, v%d" % vRW)
    a("s_waitcnt lgkmcnt(0)")
    for q in range(4):
        xv = XR + q
        a("v_lshlrev_b32 v10, 16, v%d" % xv)
        a("v_and_b32 v11, 0xffff0000, v%d" % xv)
        a("v_add_f32 v10, v10, v%d" % (12 + 2 * q))
        a("v_add_f32 v11, v11, v%d" % (13 + 2 * q))
        a("v_cvt_pk_bf16_f32 v10, v10, v11")
        a("v_cndmask_b32 v%d, v%d, v10, s[50:51]" % (xv, xv))
    omx()
    a.label("L_noy")
    lds_spin(a, "L_pw", vPF, C_PART, 10, (1,), 0)
    stamp(a, 11)
    for t in range(2):
        a("ds_read_b128 %s, v%d offset:%d" % (vr(20 + 4 * t, 4), vPX, 1024 * t))
    a("s_waitcnt lgkmcnt(0)")
    for t in range(2):
        b = ACC[t]
        a("v_pk_add_f32 %s, %s, %s" % (vr(b, 2), vr(b, 2), vr(20 + 4 * t, 2)))
        a("v_pk_add_f32 %s, %s, %s" % (vr(b + 2, 2), vr(b + 2, 2), vr(22 + 4 * t, 2)))
        a("v_cvt_pk_bf16_f32 v%d, v%d, v%d" % (40 + 2 * t, b, b + 1))
        a("v_cvt_pk_bf16_f32 v%d, v%d, v%d" % (41 + 2 * t, b + 2, b + 3))
        a("ds_write_b64 v%d, %s offset:%d" % (vSW, vr(40 + 2 * t, 2), 32 * t))
    a("ds_read_b128 v[20:23], v%d" % vSR)
    a("s_waitcnt lgkmcnt(0)")
    for q in range(4):
        d = PX[0] + 2 * q
        a("v_lshlrev_b32 v%d, 16, v%d" % (10 + 2 * q, 20 + q))
        a("v_and_b32 v%d, 0xffff0000, v%d" % (11 + 2 * q, 20 + q))
        a("v_pk_fma_f32 %s, %s, %s, %s op_sel_hi:[1,0,1]" % (vr(d, 2), vr(10 + 2 * q, 2), vr(GR, 2), vr(d, 2)))
    for q in range(4):
        d = PX[0] + 2 * q
        a("v_cvt_pk_bf16_f32 v%d, v%d, v%d" % (32 + q, d, d + 1))
    a("buffer_store_dwordx4 v[32:35], v%d, s[20:23], s%d offen %s" % (vXO, sXO, OPT["ost"]))
    if OPT["stamp"]:
        stamp(a, 12)
        a("s_waitcnt vmcnt(0)")
        stamp(a, 13)
        stamp_end(a, OPT["stw"], 0)
        stamp_end(a, 10, 2)
    a("s_endpgm")


RETRY = []
GLATE = []


def late_and_slow(a):
    RETRY[0]()
    a.c("---- first two query blocks: key tiles before the sequence start are skipped")
    a.label("L_late")
    a("s_mul_i32 s50, s41, 2304")
    a("v_add_u32 v%d, s50, v%d" % (T + 8, vK))
    a("v_add_u32 v%d, s50, v%d" % (T + 9, vKt))
    a("v_mul_u32_u24 v%d, s41, v%d" % (T + 2, vStep))
    a("v_add_u32 v%d, v%d, v%d" % (vV, vV, T + 2))
    for r in list(range(OO, OO + 16)) + list(range(VF[0], VF[0] + 32)):
        a("v_mov_b32 v%d, 0" % r)
    landed(a, 1, 0)
    stage_spin(a, "L_lt", 0)
    for x in q_reads():
        a(x)
    a("s_waitcnt lgkmcnt(0)")
    lds_inc(a, vC, T, C_B)
    x_loads(a)
    a("s_bitcmp1_b32 s41, 0")
    a("s_cbranch_scc1 L_late1")
    for par in range(2):
        if par:
            a.label("L_late1")
        for x in k_reads(par, T + 8, T + 9, 0):
            a(x)
        for x in k_reads(par + 1, T + 8, T + 9, 0):
            a(x.replace("offset:8", "offset:2312").replace("offset:0", "offset:2304"))
        for x in v_reads(par):
            a(x)
        a("s_waitcnt lgkmcnt(7)")
        a("v_cndmask_b32 v%d, 0, v%d, s[54:55]" % (QT, QT))
        a("v_cndmask_b32 v%d, 0, v%d, s[56:57]" % (QT + 1, QT + 1))
        for x in qk(par):
            a(x)
        a("s_nop 7")
        a("s_nop 3")
        for i0 in range(2 - par, 9, 2):
            a("s_cmp_eq_u32 s41, %d" % i0)
            a("s_cbranch_scc1 L_it%d" % i0)
        a("s_branch L_it%d" % (8 - par))

    a.c("---- two passes over the key tiles with the true row maximum")
    a.label("L_slow")
    vKs, vKts, vM, vD0, vNeg = T + 8, T + 9, T + 10, T + 11, T + 12
    a("v_and_b32 v%d, 31, v0" % T)
    a("v_lshrrev_b32 v%d, 5, v0" % (T + 1))
    a("v_lshlrev_b32 v%d, 2, v%d" % (vD0, T + 1))
    a("v_sub_u32 v%d, v%d, v%d" % (vD0, vD0, T))
    a("v_mov_b32 v%d, 0xff800000" % vNeg)
    a("v_mov_b32 v%d, v%d" % (vM, vNeg))
    a("s_max_i32 s50, s41, 0")
    a("s_sub_u32 s51, 8, s50")
    a("v_mul_u32_u24 v%d, s51, v%d" % (T, vStep))
    a("v_sub_u32 v%d, v%d, v%d" % (vV, vV, T))
    a("s_mul_i32 s51, s50, 2304")
    for r in range(16):
        a("v_mov_b32 v%d, 0" % (OO + r))
    for ps in range(2):
        lab = "L_sp%d" % ps
        a("v_add_u32 v%d, s51, v%d" % (vKs, vK))
        a("v_add_u32 v%d, s51, v%d" % (vKts, vKt))
        a("s_mov_b32 s46, s50")
        a.label(lab)
        for x in k_reads(0, vKs, vKts):
            a(x)
        if ps == 1:
            for x in v_reads(0):
                a(x)
        a("s_mov_b32 s47, -31")
        a("s_mov_b32 s48, 62")
        a("s_cmp_eq_u32 s46, 0")
        a("s_cselect_b32 s47, 1, s47")
        a("s_cselect_b32 s48, 30, s48")
        a("s_cmp_eq_u32 s46, 8")
        a("s_cselect_b32 s48, 31, s48")
        a("s_waitcnt lgkmcnt(0)")
        for x in qk(0):
            a(x)
        a("v_subrev_u32 v%d, s47, v%d" % (T, vD0))
        for r in range(16):
            a("v_add_u32 v%d, %d, v%d" % (T + 1, 8 * (r >> 2) + (r & 3), T))
            a("v_cmp_ge_u32 vcc, s48, v%d" % (T + 1))
            a("v_cndmask_b32 v%d, v%d, v%d, vcc" % (SS[0] + r, vNeg, SS[0] + r))
            if ps == 0:
                a("v_max_f32 v%d, v%d, v%d" % (vM, vM, SS[0] + r))
            else:
                a("v_sub_f32 v%d, v%d, v%d" % (SS[0] + r, SS[0] + r, vM))
                a("v_exp_f32 v%d, v%d" % (SS[0] + r, SS[0] + r))
        if ps == 1:
            for q in range(8):
                a("v_cvt_pk_bf16_f32 v%d, v%d, v%d" % (PP[0] + q, SS[0] + 2 * q, SS[0] + 2 * q + 1))
            for x in pv(0, False):
                a(x)
            a("v_add_u32 v%d, v%d, v%d" % (vV, vV, vStep))
        a("v_add_u32 v%d, 2304, v%d" % (vKs, vKs))
        a("v_add_u32 v%d, 2304, v%d" % (vKts, vKts))
        a("s_add_u32 s46, s46, 1")
        a("s_cmp_lt_u32 s46, 9")
        a("s_nop 7")
        a("s_nop 7")
        a("s_cbranch_scc1 %s" % lab)
        if ps == 0:
            a("v_mov_b32 v%d, v%d" % (T, vM))
            a("v_permlane32_swap_b32 v%d, v%d" % (T, vM))
            a("v_max_f32 v%d, v%d, v%d" % (vM, vM, T))
    a("v_rcp_f32 v%d, v%d" % (T, OO + 12))
    a("s_nop 1")
    a("s_branch L_fin")


def helpers(a):
    a.c("---- helper waves")
    a.label("L_help")
    a("s_cmp_eq_u32 s3, 9")
    a("s_cbranch_scc0 L_help1")
    code_touch(a)
    a.label("L_help1")
    a("v_mov_b32 v3, %d" % CTL)
    for k in range(4):
        a("v_mov_b32 v%d, 0" % (4 + k))
    a("v_lshlrev_b32 v1, 4, v0")
    a("v_add_u32 v2, v1, v3")
    a("s_mov_b64 exec, 0xff")
    a("ds_write_b128 v2, v[4:7]")
    a("s_mov_b64 exec, -1")
    a("s_waitcnt lgkmcnt(0)")
    load_tag(a)
    a("s_barrier")
    a("s_barrier")
    a("s_waitcnt lgkmcnt(0)")
    make_tag(a)
    a.label("L_help2")
    decode2(a)
    a("s_cmp_eq_u32 s3, 8")
    a("s_cbranch_scc1 L_down")
    a("v_lshrrev_b32 v1, 5, v0")
    a("v_bfe_u32 v2, v0, 3, 2")
    a("v_lshrrev_b32 v10, 4, v0")
    a("v_lshlrev_b32 v10, 1, v10")
    a("v_and_b32 v11, 7, v0")
    a("v_xor_b32 v10, v10, v11")
    a("v_lshl_add_u32 v4, v1, 2, v2")
    a("v_mul_u32_u24 v4, 1152, v4")
    a("v_lshl_add_u32 v4, v10, 4, v4")
    a("v_mul_u32_u24 v5, 72, v1")
    a("v_add_u32 v5, v5, v2")
    a("v_mul_u32_u24 v5, 1152, v5")
    a("v_lshl_add_u32 v5, v10, 4, v5")
    a("s_sub_u32 s36, s3, 9")
    a("s_mul_i32 s37, s36, %d" % (20 * 1152))
    a("s_mul_i32 s43, s36, %d" % (144 * 1152))
    a("s_lshl_b32 s38, s36, 10")
    a("s_add_u32 s38, s38, %d" % WO)
    a("s_lshl_b32 s39, s53, 7")
    a("s_sub_u32 s42, %d, s39" % (576 * 1152))
    srd_off(a, 16, 28, "s39", "s42")
    srd_off(a, 24, 8, L.WS_O, 128 * 18432)
    a("v_mov_b32 v%d, %d" % (vC, CTL))
    a("s_sub_u32 s40, s3, 5")
    out_setup(a, 40)
    a("s_setprio %d" % OPT["pr3"])
    a("s_cmp_ge_u32 s2, 192")
    a("s_cbranch_scc1 L_wo_go")
    for k in range(9):
        a("s_barrier")
    a.label("L_wo_go")
    a("s_cmp_eq_u32 s3, 11")
    a("s_cbranch_scc1 L_ctl")
    a("s_cmp_ge_u32 s52, 26")
    a("s_cbranch_scc1 L_end")
    if OPT["woe"]:
        a("s_cmp_ge_u32 s2, 192")
        a("s_cbranch_scc1 L_wo_e_d")
        lds_spin(a, "L_wo_e", 3, C_FI, 10, (8,), 0)
    stamp(a, 5)
    for m in range(36):
        if m == OPT["woe"]:
            stage_spin(a, "L_wo_w", 0, 3, 10, 2)
        st, sec = m >> 1, m & 1
        a("s_add_u32 m0, s38, %d" % (2048 * m))
        if st < 16:
            a("s_add_u32 s40, s37, %d" % ((36 * st + 8 * sec) * 1152))
            a("buffer_load_dwordx4 v4, s[16:19], s40 offen lds")
        else:
            a("s_add_u32 s40, s43, %d" % ((288 * (st - 16) + 36 * sec + 16) * 1152))
            a("buffer_load_dwordx4 v5, s[16:19], s40 offen lds")
        if OPT["wth"] and m >= OPT["wth"] - 1:
            a("s_waitcnt vmcnt(%d)" % (OPT["wth"] - 1))
    x_loads(a)
    a("s_waitcnt vmcnt(1)")
    stamp(a, 6)
    lds_inc(a, 3, 4, C_WO)
    a("s_setprio 0")
    a("s_branch L_out")
    a.c("---- wave 11: flags, all-ones fill, routed update")
    a.label("L_ctl")
    a("v_lshlrev_b32 v8, 7, v0")
    a("v_add_u32 v9, %d, v8" % (L.WS_FLAG + F_PA * 128))
    a("s_mul_i32 s46, s52, 5")
    a("s_lshr_b32 s46, s46, 3")
    a("s_min_u32 s46, s46, 14")
    a("s_lshl_b32 s46, s46, 11")
    a("s_add_u32 s46, s46, %d" % (L.WS_FLAG + F_O * 128))
    a("v_add_u32 v8, s46, v8")
    a("s_lshl_b32 s46, s32, 4")
    a("s_add_u32 s46, s46, s31")
    a("s_lshl_b32 s46, s46, 7")
    a("s_add_u32 s46, s46, %d" % (L.WS_FLAG + F_O * 128))
    a("v_mov_b32 v14, s46")
    a("v_mov_b32 v15, s%d" % TAG)
    a("s_cmp_ge_u32 s2, 192")
    a("s_cbranch_scc1 L_ct_0")
    qpoll(a, 3, "L_qp1", True)
    a.label("L_ct_0")
    AUXLATE = OPT["auxp"]
    def aux():
        flag_poll(a, "L_pap", 9, 4, "s%d" % TAG, 64, 8, 3)
        a("v_mov_b32 v10, v5")
        a("v_mov_b32 v11, v6")
        a("v_mov_b32 v4, 1")
        a("ds_write_b64 v3, v[10:11] offset:%d" % C_IDX)
        a("ds_write_b32 v3, v4 offset:%d" % C_PA)
        srd_off(a, 16, 8, L.WS_G, 8192)
        a("s_mul_i32 s40, s52, 320")
        a("v_lshlrev_b32 v4, 2, v0")
        a("buffer_load_dword v5, v4, s[16:19], s40 offen sc1")
        a("buffer_load_dword v6, v4, s[16:19], s40 offen offset:256 sc1")
        a("v_add_u32 v4, %d, v4" % GB)
        GLATE.append(1)
        stamp(a, 5)

    if not AUXLATE:
        aux()
    a("v_bfe_u32 v20, v0, 4, 1")
    a("v_mul_u32_u24 v20, 18432, v20")
    a("v_and_b32 v21, 15, v0")
    a("v_lshl_add_u32 v20, v21, 4, v20")
    a("v_lshrrev_b32 v21, 5, v0")
    a("v_lshl_add_u32 v22, v21, 2, v20")
    a("v_lshl_add_u32 v21, v21, 8, v20")
    for k in range(4):
        a("v_mov_b32 v%d, -1" % (24 + k))
    a("s_mul_i32 s54, s32, %d" % (8 * 18432))
    a("s_lshl_b32 s55, s31, 10")
    a("s_add_u32 s55, s55, s54")
    a("s_lshr_b32 s56, s31, 1")
    a("s_lshl_b32 s56, s56, 8")
    a("s_and_b32 s57, s31, 1")
    a("s_lshl_b32 s57, s57, 3")
    a("s_add_u32 s56, s56, s57")
    a("s_add_u32 s56, s56, s54")
    a("s_add_u32 s56, s56, 16384")
    if OPT["pearly"]:
        lds_spin(a, "L_ct_p", 3, C_1, 10, (8, 1), 0)
        a("s_sleep %d" % OPT["pearly"])
    else:
        stage_spin(a, "L_ct_p", 0, 3, 10, 0)
    for j in range(4):
        a("buffer_store_dword v24, v22, s[24:27], s56 offen sc1")
        a("buffer_store_dwordx4 v[24:27], v21, s[24:27], s55 offen sc1")
        a("buffer_store_dwordx4 v[24:27], v21, s[24:27], s55 offen offset:512 sc1")
        a("s_add_u32 s55, s55, %d" % (2 * 18432))
        a("s_add_u32 s56, s56, %d" % (2 * 18432))
    a("v_mov_b32 v4, 1")
    a("s_waitcnt vmcnt(0)")
    a("ds_write_b32 v3, v4 offset:%d" % C_C)
    a("s_mov_b64 exec, 1")
    a("global_store_dword v14, v15, s[8:9] sc1")
    a("s_mov_b64 exec, -1")
    stamp(a, 6)
    lds_spin(a, "L_ct_q", 3, C_B, 10, (8,), 1)
    if AUXLATE:
        aux()
    else:
        a("s_sleep %d" % OPT["slp3"])
    flag_poll(a, "L_op", 8, 12, "s%d" % TAG, 32, 2)
    a("ds_write_b32 v4, v5")
    a("ds_write_b32 v4, v6 offset:256")
    lds_inc(a, 3, 10, C_GO2)
    stamp(a, 7)
    stamp_end(a, 11 if OPT["st11"] else 99, 3)
    a("ds_read_b64 v[10:11], v3 offset:%d" % C_IDX)
    a("s_waitcnt lgkmcnt(0)")
    a("v_readfirstlane_b32 s12, v10")
    a("v_readfirstlane_b32 s13, v11")
    a("s_mul_i32 s46, s52, 80")
    a("s_sub_u32 s46, s12, s46")
    a("s_cmp_lt_u32 s46, 80")
    a("s_cbranch_scc0 L_end")
    a("v_lshlrev_b32 v4, 7, v0")
    a("v_add_u32 v4, %d, v4" % (L.WS_FLAG + F_Y * 128))
    srd_off(a, 16, 8, L.WS_YP, 16 * 2304)
    a("v_lshrrev_b32 v6, 4, v0")
    a("v_mul_u32_u24 v6, 2304, v6")
    a("v_and_b32 v7, 15, v0")
    a("v_lshlrev_b32 v7, 4, v7")
    a("v_add_u32 v6, v6, v7")
    a("v_add_u32 v7, %d, v7" % YB)
    a("s_lshl_b32 s40, s53, 8")
    flag_poll(a, "L_yp", 4, 5, "12", 16, 2)
    for i in range(4):
        a("buffer_load_dwordx4 %s, v6, s[16:19], s40 offen sc1" % vr(8 + 4 * i, 4))
        a("s_add_u32 s40, s40, %d" % (4 * 2304))
    a("s_waitcnt vmcnt(0)")
    for i in range(1, 4):
        a("v_pk_add_f32 v[8:9], v[8:9], %s" % vr(8 + 4 * i, 2))
        a("v_pk_add_f32 v[10:11], v[10:11], %s" % vr(10 + 4 * i, 2))
    for k in range(4):
        a("v_mov_b32 v20, v%d" % (8 + k))
        a("v_permlane32_swap_b32 v20, v%d" % (8 + k))
        a("v_add_f32 v%d, v%d, v20" % (8 + k, 8 + k))
        a("v_mov_b32 v20, v%d" % (8 + k))
        a("v_permlane16_swap_b32 v20, v%d" % (8 + k))
        a("v_add_f32 v%d, v%d, v20" % (8 + k, 8 + k))
        bf16_round(a, 8 + k, 8 + k)
        a("v_mul_f32 v%d, s13, v%d" % (8 + k, 8 + k))
        bf16_round(a, 8 + k, 8 + k)
    a("v_mov_b32 v12, 1")
    a("ds_write_b128 v7, v[8:11]")
    a("ds_write_b32 v3, v12 offset:%d" % C_YRDY)
    a("s_cmp_eq_u32 s53, 0")
    a("s_cbranch_scc0 L_end")
    a("v_mov_b32 v4, %d" % L.WS_EPOCH)
    a("v_mov_b32 v5, s%d" % TAG)
    a("s_mov_b64 exec, 1")
    a("global_store_dword v4, v5, s[8:9]")
    a("s_endpgm")

    a.c("---- wave 8: down projection")
    a.label("L_down")
    a("s_cmp_ge_u32 s2, 192")
    a("s_cbranch_scc1 L_end")
    DW, DA = 20, 128
    a("v_lshrrev_b32 v2, 3, v0")
    a("v_and_b32 v10, 7, v0")
    a("v_mul_u32_u24 v16, 1152, v2")
    a("v_lshl_add_u32 v16, v10, 4, v16")
    a("s_mul_i32 s36, s2, 24")
    a("v_mul_u32_u24 v12, %d, v10" % (4608 * 16))
    a("v_add_u32 v11, s36, v2")
    a("v_lshl_add_u32 v17, v11, 4, v12")
    a("v_cmp_gt_u32 s[56:57], 7, v10")
    a("s_mul_i32 s37, s2, %d" % (24 * 1152))
    a("v_and_b32 v1, 1, v0")
    a("v_lshlrev_b32 v1, 4, v1")
    sel_masks(a, 44, 11)
    a("v_lshrrev_b32 v11, 5, v0")
    a("v_bfe_u32 v12, v0, 3, 1")
    a("v_cmp_eq_u32 s[52:53], v11, v12")
    a("v_mul_u32_u24 v12, 2304, v12")
    a("v_bfe_u32 v11, v0, 4, 1")
    a("v_lshl_add_u32 v12, v11, 7, v12")
    a("v_lshl_add_u32 v12, v10, 2, v12")
    a("v_add_u32 v164, %d, v12" % HP)
    a("v_lshlrev_b32 v165, 2, v0")
    a("v_add_u32 v166, %d, v165" % HP)
    a("s_and_b32 s38, s2, 15")
    a("s_mul_i32 s39, s38, 2304")
    a("s_add_u32 s39, s39, %d" % L.WS_YP)
    a("v_add_u32 v165, s39, v165")
    a("s_lshl_b32 s38, s38, 7")
    a("s_add_u32 s38, s38, %d" % (L.WS_FLAG + F_Y * 128))
    srd_off(a, 16, 14, "s37", 24 * 1152)
    srd_off(a, 20, 8, L.WS_PA, 7 * 4608 * 16)
    def dloads(ts=(0, 1, 2)):
        for t in (() if OPT["nodown"] else ts):
            a("s_movk_i32 s40, %d" % (9216 * t))
            for cg in range(9):
                a("buffer_load_dwordx4 %s, v16, s[16:19], s40 offen offset:%d %s" % (vr(DW + 4 * (9 * t + cg), 4), 128 * cg, "" if OPT["dtouch"] else "nt"))

    for k in range(2, 11):
        if OPT["dsplit"]:
            if k in (8, 9, 10):
                dloads((k - 8,))
        elif k == OPT["dpos"]:
            dloads()
        a("s_barrier")
    if OPT["dpos"] == -1:
        a("s_setprio 3")
        stage_spin(a, "L_dn_w2", 0, 3, 10, 0)
        dloads()
    elif OPT["dpos"] == -2:
        a("s_setprio 3")
        lds_spin(a, "L_dn_w2", 3, C_WO, 10, (2,), 2)
        dloads()
    elif OPT["dpos"] == -3:
        a("s_setprio 3")
        lds_spin(a, "L_dn_w2", 3, C_1, 10, (8, 1), 0)
        a("s_sleep 8")
        dloads()
    elif OPT["w8e"] == 2:
        lds_spin(a, "L_dn_w2", 3, C_1, 10, (8, 1), 2)
        a("s_sleep 6")
    elif OPT["w8e"]:
        lds_spin(a, "L_dn_w2", 3, C_1, 10, (8,), 2)
    else:
        stage_spin(a, "L_dn_w2", 0, 3, 10, 2)
    stamp(a, 5)
    a("s_setprio %d" % OPT["pr1"])
    a("s_mov_b32 s60, 0x40000")
    a.label("L_dn_pa")
    a("buffer_load_dwordx3 v[4:6], v17, s[20:23], 0 offen sc1")
    a("buffer_load_dwordx3 v[8:10], v17, s[20:23], 0 offen offset:128 sc1")
    a("buffer_load_dwordx3 v[160:162], v17, s[20:23], 0 offen offset:256 sc1")
    a("s_waitcnt vmcnt(0)")
    a("v_cmp_ne_u32 vcc, s%d, v6" % TAG)
    a("v_cmp_ne_u32 s[40:41], s%d, v10" % TAG)
    a("v_cmp_ne_u32 s[42:43], s%d, v162" % TAG)
    a("s_or_b64 vcc, vcc, s[40:41]")
    a("s_or_b64 vcc, vcc, s[42:43]")
    a("s_and_b64 vcc, vcc, s[56:57]")
    a("s_cmp_eq_u64 vcc, 0")
    a("s_cbranch_scc1 L_dn_pb")
    a("s_sleep 8")
    a("s_sub_u32 s60, s60, 1")
    a("s_cbranch_scc0 L_dn_pa")
    a.label("L_dn_pb")
    stamp(a, 8)
    a("v_mov_b32 v6, v8")
    a("v_mov_b32 v7, v9")
    a("v_mov_b32 v8, v160")
    a("v_mov_b32 v9, v161")
    sum8(a, (4, 5, 6, 7, 8, 9))
    for t in range(3):
        g, u = 4 + 2 * t, 5 + 2 * t
        bf16_round(a, g, g)
        bf16_round(a, u, u)
        sigmoid(a, 10, g)
        a("v_mul_f32 v%d, v%d, v10" % (g, g))
        bf16_round(a, g, g)
        a("v_mul_f32 v%d, v%d, v%d" % (g, g, u))
        a("v_cvt_pk_bf16_f32 v%d, v%d, v%d" % (g, g, g))
        a("v_and_b32 v%d, 0xffff, v%d" % (g, g))
        a("v_lshlrev_b32 v%d, v1, v%d" % (g, g))
    for t in range(3):
        selector(a, 12, 4 + 2 * t, 44)
        for cg in range(9):
            d = vr(DA + 4 * cg, 4)
            a("v_mfma_f32_16x16x32_bf16 %s, %s, v[12:15], %s" % (d, vr(DW + 4 * (9 * t + cg), 4), "0" if t == 0 else d))
    a("s_mov_b64 exec, s[52:53]")
    for cg in range(9):
        for r in range(4):
            a("ds_write_b32 v164, v%d offset:%d" % (DA + 4 * cg + r, 256 * cg + 32 * r))
    a("s_mov_b64 exec, -1")
    for cg in range(9):
        a("ds_read2st64_b32 %s, v166 offset0:%d offset1:%d" % (vr(20 + 2 * cg, 2), cg, cg + 9))
    if OPT["atw"]:
        lds_spin(a, "L_dn_at", 3, C_WO, 10, (2,), 2)
    else:
        stage_spin(a, "L_dn_at", 0, 3, 10, 2)
    lds_spin(a, "L_dn_ax", 3, C_PA, 10, (1,), 1)
    for cg in range(9):
        a("v_add_f32 v%d, v%d, v%d" % (20 + 2 * cg, 20 + 2 * cg, 21 + 2 * cg))
        if not OPT["noat"]:
            a("global_atomic_add_f32 v165, v%d, s[8:9] offset:%d" % (20 + 2 * cg, 256 * cg))
    a("v_mov_b32 v4, s38")
    a("v_mov_b32 v5, 1")
    a("s_waitcnt vmcnt(0)")
    stamp(a, 7)
    a("s_mov_b64 exec, 1")
    a("global_atomic_add v4, v5, s[8:9] sc1")
    stamp_end(a, 8, 1)


def kf(a):
    a.label(NAME)
    a("s_cmp_ge_u32 s2, 256")
    a("s_cbranch_scc1 L_end")
    stamp_init(a)
    stamp(a, 0)
    a("s_load_dwordx4 s[4:7], s[0:1], 0")
    a("s_load_dwordx2 s[8:9], s[0:1], 88")
    a("s_load_dwordx2 s[10:11], s[0:1], 72")
    a("s_load_dwordx2 s[14:15], s[0:1], 56")
    a("s_load_dwordx2 s[28:29], s[0:1], 16")
    a("v_lshrrev_b32 v1, 6, v0")
    a("v_and_b32 v0, 63, v0")
    a("v_readfirstlane_b32 s3, v1")
    a("s_and_b32 s30, s2, 3")
    a("s_bfe_u32 s31, s2, 0x10002")
    a("s_lshr_b32 s32, s2, 3")
    a("s_cmp_ge_u32 s32, 24")
    a("s_cbranch_scc1 L_sp")
    a("s_cmp_ge_u32 s3, 8")
    a("s_cbranch_scc1 L_help")
    gemm_phase(a)
    attention_phase(a)
    out_phase(a)
    late_and_slow(a)
    spare_phase(a)
    helpers(a)
    a.label("L_end")
    a("s_endpgm")
```

```python
from asmdsl import vr, sr
import layout as L
from common import *
from k2 import (KB, VB, QB, ONES, vK, vKt, vV, vStep, QM, QT, MSK, KF, VF, PP, SS, OO, T,
                k_reads, v_reads, qk, pv)

NAME = "gated_mix__sliding_block__moe_arch_mod__prompt_kernel"
SLOT = 34816
IMG = SLOT
WO = 66560
CTL = 149568
YB = 149696
HP = 150016
YT = 154624
XS = 156672
KF_LDS = 162304
PSLOT = (QB, QB + 4096, 140288, 144384, 158208)
KF_VGPR = 168
PART = 0
STG = 20480
XR, GR = 128, 136
vC = 154
TAG = 65
C_O, C_GO2, C_A, C_WO, C_PART, C_YRDY, C_B, C_1, C_GO1, C_C, C_PA, C_IDX, C_RSEL = 0, 4, 8, 12, 88, 32, 36, 40, 44, 48, 52, 56, 60
C_KMAX, C_KCNT, C_XS, C_GD, C_RED, C_RED2, C_FI = 64, 68, 72, 76, 80, 84, 16
F_Q, F_O, F_PA, F_Y = 0, 192, 448, 512


def lds_spin(a, name, addr_v, off, regs, conds, slp=1):
    n = len(conds)
    a("s_mov_b32 s60, 0x200000")
    a.label(name)
    a(("ds_read_b64 %s, v%d offset:%d" % (vr(regs, 2), addr_v, off)) if n == 2 else
      ("ds_read_b32 v%d, v%d offset:%d" % (regs, addr_v, off)))
    a("s_waitcnt lgkmcnt(0)")
    a("v_readfirstlane_b32 s61, v%d" % regs)
    if n == 2:
        a("v_readfirstlane_b32 s62, v%d" % (regs + 1))
        a("s_lshl_b32 s62, s62, 8")
        a("s_or_b32 s61, s61, s62")
        a("s_cmp_eq_u32 s61, %d" % (conds[0] | (conds[1] << 8)))
    else:
        a("s_cmp_eq_u32 s61, %d" % conds[0])
    a("s_cbranch_scc1 %s_d" % name)
    if slp:
        a("s_sleep %d" % slp)
    a("s_sub_u32 s60, s60, 1")
    a("s_cmp_lg_u32 s60, 0")
    a("s_cbranch_scc1 %s" % name)
    a.label(name + "_d")


def stage_spin(a, name, stage, vc=vC, T=T, slp=0):
    a("s_mov_b32 s60, 0x200000")
    a.label(name)
    a("ds_read_b32 v%d, v%d offset:%d" % (T, vc, C_A))
    a("s_waitcnt lgkmcnt(0)")
    a("v_readfirstlane_b32 s61, v%d" % T)
    a("s_bitcmp1_b32 s61, %d" % (8 * stage + 3))
    a("s_cbranch_scc1 %s_d" % name)
    if slp:
        a("s_sleep %d" % slp)
    a("s_sub_u32 s60, s60, 1")
    a("s_cmp_lg_u32 s60, 0")
    a("s_cbranch_scc1 %s" % name)
    a.label(name + "_d")


def landed(a, inc, vm):
    a("v_mov_b32 v%d, %s" % (T, hex(inc)))
    a("s_waitcnt vmcnt(%d)" % vm)
    a("s_mov_b64 exec, 1")
    a("ds_add_u32 v%d, v%d offset:%d" % (vC, T, C_A))
    a("s_mov_b64 exec, -1")


def poison(a):
    if OPT["nopois"]:
        a("s_nop 0")
        a("buffer_load_dword v155, v152, s[24:27], s59 offen")
        a("buffer_load_dword v155, v152, s[24:27], s59 offen")
        return
    for k in range(4):
        a("v_mov_b32 v%d, -1" % (120 + k))
    a("buffer_store_dwordx4 %s, v153, s[24:27], s58 offen sc1" % vr(120, 4))
    a("s_mov_b32 exec_hi, 0")
    a("buffer_store_dword v%d, v152, s[24:27], s59 offen sc1" % 120)
    a("s_mov_b32 exec_hi, -1")


def tail_touch(a):
    a("buffer_load_dword v155, v152, s[24:27], s59 offen")


def flag_poll(a, name, voff, vt, want, lanes, slp=1, width=1):
    a("s_mov_b64 exec, %s" % ("-1" if lanes == 64 else hex((1 << lanes) - 1)))
    a("s_mov_b32 s60, 0x40000")
    a.label(name)
    a("global_load_dword%s %s, v%d, s[8:9] sc1" % ("" if width == 1 else "x%d" % width, vr(vt, width), voff))
    a("s_waitcnt vmcnt(0)")
    a("v_cmp_eq_u32 vcc, %s, v%d" % (want, vt))
    a("s_cmp_eq_u64 vcc, exec")
    a("s_cbranch_scc1 %s_d" % name)
    if slp:
        a("s_sleep %d" % slp)
    a("s_sub_u32 s60, s60, 1")
    a("s_cmp_lg_u32 s60, 0")
    a("s_cbranch_scc1 %s" % name)
    a.label(name + "_d")
    a("s_mov_b64 exec, -1")


def lds_inc(a, vz, vt, off, rtn=False):
    a("v_mov_b32 v%d, 1" % vt)
    a("s_mov_b64 exec, 1")
    if rtn:
        a("ds_add_rtn_u32 v%d, v%d, v%d offset:%d" % (vt, vz, vt, off))
    else:
        a("ds_add_u32 v%d, v%d offset:%d" % (vz, vt, off))
    a("s_mov_b64 exec, -1")


def load_tag(a):
    a("s_mov_b32 s64, %d" % L.WS_EPOCH)
    a("s_load_dword s%d, s[8:9], s64" % TAG)


def make_tag(a):
    a("s_mul_i32 s%d, s%d, 0x9e3779b1" % (TAG, TAG))
    a("s_add_u32 s%d, s%d, 0x7f4a7c15" % (TAG, TAG))


def copy_scalars(a):
    a("s_mul_i32 s55, s34, %d" % (4 * L.PAIR_BYTES))
    a("s_mul_i32 s56, s35, 9216")
    a("s_add_u32 s55, s55, s56")
    a("s_lshl_b32 s56, s3, 10")
    a("s_add_u32 s55, s55, s56")
    for j in range(5):
        a("s_add_u32 s57, s3, %d" % (8 * j))
        a("s_mul_i32 s57, s57, 57")
        a("s_lshr_b32 s57, s57, 9")
        a("s_mul_i32 s57, s57, %d" % (L.PAIR_BYTES - 9216))
        a("s_add_u32 s57, s57, s55")
        a("s_add_u32 s%d, s57, %d" % (50 + j, 8192 * j))
    a("s_mul_i32 s58, s35, 12")
    a("s_add_u32 s58, s58, s34")
    a("s_lshl_b32 s58, s58, 7")
    a("s_add_u32 s58, s58, %d" % (L.WS_FLAG + F_Q * 128))


def decode2(a):
    if OPT["amap"]:
        a("s_and_b32 s31, s2, 7")
        a("s_lshl_b32 s31, s31, 1")
        a("s_bfe_u32 s32, s2, 0x10003")
        a("s_add_u32 s31, s31, s32")
        a("s_lshr_b32 s30, s31, 2")
        a("s_lshr_b32 s32, s2, 4")
        a("s_add_u32 s32, s32, 4")
        a("s_and_b32 s32, s32, 15")
    else:
        a("s_and_b32 s30, s2, 3")
        a("s_bfe_u32 s33, s2, 0x10002")
        a("s_bfe_u32 s32, s2, 0x20003")
        a("s_lshl_b32 s31, s30, 2")
        a("s_add_u32 s31, s31, s32")
        a("s_lshl_b32 s32, s33, 3")
        a("s_lshr_b32 s34, s2, 5")
        if OPT["light"]:
            a("s_add_u32 s34, s34, 2")
            a("s_and_b32 s34, s34, 7")
        a("s_add_u32 s32, s32, s34")
    a("s_lshr_b32 s33, s2, 3")
    a("s_mul_i32 s34, s33, 57")
    a("s_lshr_b32 s34, s34, 9")
    a("s_mul_i32 s53, s34, 9")
    a("s_sub_u32 s53, s33, s53")
    a("s_lshl_b32 s52, s34, 3")
    a("s_and_b32 s34, s2, 7")
    a("s_add_u32 s52, s52, s34")
    a("s_sub_u32 s33, s2, 216")
    a("s_mul_i32 s34, s33, 57")
    a("s_lshr_b32 s34, s34, 9")
    a("s_mul_i32 s35, s34, 9")
    a("s_sub_u32 s33, s33, s35")
    a("s_add_u32 s34, s34, 24")
    a("s_cmp_ge_u32 s2, 216")
    a("s_cselect_b32 s52, s34, s52")
    a("s_cselect_b32 s53, s33, s53")


def qpoll(a, vc, name, own, r=16):
    R = dict(a=r, b=r + 1, c=r + 2)
    a("v_add_u32 v%(a)d, 2, v0" % R)
    a("v_mul_u32_u24 v%(b)d, 43, v%(a)d" % R)
    a("v_lshrrev_b32 v%(b)d, 7, v%(b)d" % R)
    a("v_mul_u32_u24 v%(c)d, 3, v%(b)d" % R)
    a("v_sub_u32 v%(a)d, v%(a)d, v%(c)d" % R)
    a("s_sub_u32 s35, s32, 2")
    a("v_add_u32 v%(a)d, s35, v%(a)d" % R)
    a("v_max_i32 v%(a)d, 0, v%(a)d" % R)
    a("v_mul_u32_u24 v%(a)d, 12, v%(a)d" % R)
    a("v_lshl_add_u32 v%(a)d, v%(b)d, 2, v%(a)d" % R)
    a("v_add_u32 v%(a)d, s30, v%(a)d" % R)
    a("v_lshlrev_b32 v%(a)d, 7, v%(a)d" % R)
    a("v_add_u32 v%d, %d, v%d" % (r, L.WS_FLAG + F_Q * 128, r))
    if own:
        lds_spin(a, name + "w", vc, C_1, r + 2, (8,), 0)
    if OPT["qdel"]:
        a("s_sleep %d" % OPT["qdel"])
    if OPT["qpipe"] and own:
        NP = OPT["qpipe"]
        a("s_mov_b64 exec, 0x7f")
        a("s_mov_b32 s60, 0x20000")
        for k in range(NP - 1):
            a("global_load_dword v%d, v%d, s[8:9] sc1" % (r + 3 + k, r))
            a("s_sleep 1")
        a.label(name)
        for k in range(NP):
            a("global_load_dword v%d, v%d, s[8:9] sc1" % (r + 3 + (k + NP - 1) % NP, r))
            a("s_waitcnt vmcnt(%d)" % (NP - 1))
            a("v_cmp_eq_u32 vcc, s%d, v%d" % (TAG, r + 3 + k))
            a("s_cmp_eq_u64 vcc, exec")
            a("s_cbranch_scc1 %s_d" % name)
        a("s_sub_u32 s60, s60, 1")
        a("s_cbranch_scc0 %s" % name)
        a.label(name + "_d")
        a("s_mov_b64 exec, -1")
    else:
        flag_poll(a, name, r, r + 1, "s%d" % TAG, 7, OPT["qslp"])
    lds_inc(a, vc, r + 2, C_GO1)


def code_touch(a):
    if not OPT["ctouch"]:
        return
    lab = a.newlabel("pc")
    a("s_getpc_b64 s[20:21]")
    a.label(lab)
    a("s_sub_u32 s20, s20, %s-%s" % (lab, NAME))
    a("s_subb_u32 s21, s21, 0")
    a("s_lshr_b32 s22, s2, 3")
    a("s_mul_i32 s22, s22, %d" % (12 * 128))
    a("v_lshlrev_b32 v20, 7, v0")
    a("v_add_u32 v20, s22, v20")
    a("v_min_u32 v20, L_end-%s, v20" % NAME)
    a("s_mov_b64 exec, 0xfff")
    a("global_load_dword v21, v20, s[20:21]")
    a("s_mov_b64 exec, -1")


def gemm_phase(a):
    if OPT["gmap"]:
        a("s_lshr_b32 s33, s32, 1")
        a("s_mul_i32 s33, s33, 43")
        a("s_lshr_b32 s33, s33, 7")
        a("s_mul_i32 s34, s33, 6")
        a("s_sub_u32 s34, s32, s34")
        a("s_and_b32 s35, s34, 1")
        a("s_lshr_b32 s34, s34, 1")
        a("s_lshl_b32 s34, s34, 2")
        a("s_add_u32 s34, s34, s35")
        a("s_and_b32 s35, s2, 1")
        a("s_lshl_b32 s35, s35, 1")
        a("s_add_u32 s34, s34, s35")
        a("s_bfe_u32 s35, s2, 0x20001")
        a("s_lshl_b32 s35, s35, 2")
        a("s_add_u32 s35, s35, s33")
    else:
        a("s_mul_i32 s33, s32, 43")
        a("s_lshr_b32 s33, s33, 7")
        a("s_mul_i32 s34, s33, 3")
        a("s_sub_u32 s34, s32, s34")
        a("s_lshl_b32 s34, s34, 2")
        a("s_add_u32 s34, s34, s30")
        a("s_lshl_b32 s35, s31, 3")
        a("s_add_u32 s35, s35, s33")
    a("s_cmp_lt_u32 s3, 4")
    a("s_cbranch_scc1 L_comp")
    a("s_cmp_lt_u32 s3, 6")
    a("s_cbranch_scc0 L_ldw")
    a("s_sub_u32 s36, s3, 4")
    SH = 4 if OPT["gmap"] else 3
    a("v_and_b32 v7, %d, v0" % ((1 << SH) - 1))
    a("s_lshl_b32 s41, s33, %d" % SH)
    a("s_lshl_b32 s42, s36, 6")
    a("s_add_u32 s41, s41, s42")
    a("v_add_u32 v7, s41, v7")
    a("v_mul_u32_u24 v7, 3456, v7")
    a("v_lshrrev_b32 v1, %d, v0" % SH)
    a("v_lshl_add_u32 v7, v1, 7, v7")
    a("v_lshrrev_b32 v1, 3, v0")
    a("s_mul_i32 s39, s35, %d" % (128 * 1152))
    a("s_mul_i32 s46, s34, 288")
    a("s_and_b32 s46, s46, 0xffffff80")
    a("s_sub_u32 s47, %d, s46" % (576 * 3456))
    a("v_mul_u32_u24 v1, 1152, v1")
    a("v_lshrrev_b32 v2, 4, v0")
    a("v_and_b32 v3, 7, v0")
    a("v_xor_b32 v3, v3, v2")
    a("v_lshl_add_u32 v4, v3, 4, v1")
    a("v_xor_b32 v3, 4, v3")
    a("v_lshl_add_u32 v5, v3, 4, v1")
    a("v_add_u32 v5, %d, v5" % (8 * 1152))
    a("s_mul_i32 s37, s36, %d" % (64 * 1152))
    a("s_lshl_b32 s38, s36, 13")
    a("s_waitcnt lgkmcnt(0)")
    srd_off(a, 20, 6, "s46", "s47")
    if OPT["gmap"]:
        a("s_mov_b32 exec_hi, 0xffff")
    else:
        a("s_mov_b64 exec, 0xffffff")
    a("buffer_load_dword v20, v7, s[20:23], 0 offen")
    a("s_mov_b64 exec, -1")
    srd_off(a, 16, 4, "s39", 128 * 1152)
    if OPT["nox0"]:
        a("s_mul_i32 s41, s33, 6")
        a("s_sub_u32 s41, s32, s41")
        a("s_mul_i32 s41, s41, 22")
        a("v_add_u32 v6, s41, v0")
        a("v_mul_u32_u24 v6, 1152, v6")
        a("s_lshl_b32 s41, s36, 7")
        a("s_mov_b64 exec, 0x3fffff")
        a("buffer_load_dword v21, v6, s[16:19], s41 offen")
        a("s_mov_b64 exec, -1")

    def x_chunk(c):
        for i in range(8):
            a("s_add_u32 m0, s38, %d" % ((c % 4) * SLOT + i * 1024))
            a("s_add_u32 s40, s37, %d" % ((i >> 1) * 16 * 1152 + c * 128))
            a("buffer_load_dwordx4 v%d, s[16:19], s40 offen lds" % (4 + (i & 1)))

    if not OPT["nox0"]:
        x_chunk(0)
    load_tag(a)
    copy_scalars(a)
    stamp(a, 1)
    a("s_waitcnt vmcnt(%d) lgkmcnt(0)" % (0 if OPT["nox0"] else 8))
    stamp(a, 2)

    def loader_loop(fn, n, first, ahead0):
        LA = OPT["la"]
        a("s_barrier")
        stamp(a, 13)
        nxt = first
        while nxt < ahead0:
            fn(nxt)
            nxt += 1
        stamp(a, 14)
        for c in range(9):
            a("s_waitcnt vmcnt(%d)" % (n * (nxt - 1 - c)))
            a("s_barrier")
            while nxt <= c + LA and nxt < 9:
                fn(nxt)
                nxt += 1

    loader_loop(x_chunk, 8, 0 if OPT["nox0"] else 1, 2)
    a("s_branch L_copy")
    a.c("---- W loaders (waves 6,7)")
    a.label("L_ldw")
    a("s_movk_i32 s41, 3641")
    for i in range(9):
        a("v_add_u32 v1, %d, v0" % (64 * i))
        a("v_mul_u32_u24 v2, s41, v1")
        a("v_lshrrev_b32 v2, 16, v2")
        a("v_mul_u32_u24 v3, 18, v2")
        a("v_sub_u32 v3, v1, v3")
        a("v_bfe_u32 v1, v2, 2, 2")
        a("v_lshlrev_b32 v1, 3, v1")
        a("v_lshrrev_b32 v13, 4, v2")
        a("v_lshl_add_u32 v1, v13, 2, v1")
        a("v_and_b32 v2, 3, v2")
        a("v_add_u32 v1, v1, v2")
        a("v_mul_u32_u24 v1, 3456, v1")
        a("v_lshl_add_u32 v%d, v3, 4, v1" % (4 + i))
        if i == 2:
            a("s_waitcnt lgkmcnt(0)")
            load_tag(a)
    a("s_sub_u32 s36, s3, 6")
    a("s_mul_i32 s37, s36, %d" % (32 * 3456))
    a("s_mul_i32 s38, s36, 9216")
    a("s_mul_i32 s39, s34, 288")
    a("s_sub_u32 s42, %d, s39" % (576 * 3456))
    copy_scalars(a)
    srd_off(a, 16, 6, "s39", "s42")
    a("s_waitcnt lgkmcnt(0)")

    def w_chunk(c):
        a("s_add_u32 s40, s37, %d" % (c * 64 * 3456))
        for i in range(9):
            a("s_add_u32 m0, s38, %d" % ((c % 4) * SLOT + 16384 + i * 1024))
            a("s_nop 0")
            a("buffer_load_dwordx4 v%d, s[16:19], s40 offen lds" % (4 + i))

    loader_loop(w_chunk, 9, 0, OPT["wa0"])
    a("s_branch L_copy")
    a.c("---- GEMM compute waves 0..3")
    a.label("L_comp")
    ACC, XF, WF = 64, (136, 144), 24
    a("v_and_b32 v8, 15, v0")
    a("v_lshrrev_b32 v9, 4, v0")
    a("v_lshrrev_b32 v10, 1, v8")
    a("v_xor_b32 v10, v10, v9")
    a("s_lshl_b32 s36, s3, 12")
    a("v_lshlrev_b32 v2, 7, v8")
    a("v_lshl_add_u32 v2, v10, 4, v2")
    a("v_add_u32 v2, s36, v2")
    a("v_xor_b32 v3, 64, v2")
    a("v_add_u32 v4, %d, v2" % (2 * SLOT))
    a("v_add_u32 v5, %d, v3" % (2 * SLOT))
    a("v_lshrrev_b32 v10, 2, v0")
    a("v_mul_u32_u24 v6, 288, v10")
    a("v_and_b32 v10, 3, v0")
    a("v_lshl_add_u32 v6, v10, 3, v6")
    a("v_add_u32 v6, 16384, v6")
    a("v_add_u32 v7, %d, v6" % (2 * SLOT))
    a("s_waitcnt lgkmcnt(0)")
    load_tag(a)
    a("s_mov_b32 s36, 1.0")
    a("s_cmp_lt_u32 s34, 4")
    a("s_cselect_b32 s36, %s, s36" % f32(QSCALE))
    a("s_mov_b32 s37, s36")
    a("s_lshl_b32 s38, s3, 5")
    a("v_add_u32 v10, s38, v8")
    a("v_mul_u32_u24 v10, 72, v10")
    a("v_lshl_add_u32 v10, v9, 3, v10")
    a("v_add_u32 v10, %d, v10" % IMG)
    for ft in range(9):
        a("v_add_u32 v11, %d, v9" % (4 * ft))
        a("v_mul_u32_u24 v11, 57, v11")
        a("v_lshrrev_b32 v11, 9, v11")
        a("v_mul_u32_u24 v11, 9144, v11")
        a("v_add_u32 v%d, v11, v10" % (12 + ft))
    copy_scalars(a)
    a("s_waitcnt lgkmcnt(0)")

    def xreads(step):
        c, h2 = step >> 1, step & 1
        slot = c % 4
        return ["ds_read_b128 %s, v%d offset:%d" % (vr(XF[step & 1] + 4 * tt, 4), 2 + 2 * (slot >> 1) + h2,
                                                    (slot & 1) * SLOT + tt * 2048) for tt in range(2)]

    def wreads(step, ft):
        c, h2 = step >> 1, step & 1
        slot = c % 4
        return ["ds_read_b64_tr_b16 %s, v%d offset:%d" % (vr(WF + 4 * ft + 2 * sec, 2), 6 + (slot >> 1),
                                                          (slot & 1) * SLOT + h2 * 9216 + sec * 4608 + ft * 32)
                for sec in range(2)]

    def mfma(step, ft, tt):
        d = vr(ACC + 8 * ft + 4 * tt, 4)
        return "v_mfma_f32_16x16x32_bf16 %s, %s, %s, %s" % (
            d, vr(WF + 4 * ft, 4), vr(XF[step & 1] + 4 * tt, 4), "0" if step == 0 else d)

    def epi(k):
        ft, tt = k >> 1, k & 1
        b = ACC + 4 * k
        t = 152 + 2 * (k % 4)
        return ["v_pk_mul_f32 %s, %s, s[36:37]" % (vr(b, 2), vr(b, 2)),
                "v_pk_mul_f32 %s, %s, s[36:37]" % (vr(b + 2, 2), vr(b + 2, 2)),
                "v_cvt_pk_bf16_f32 v%d, v%d, v%d" % (t, b, b + 1),
                "v_cvt_pk_bf16_f32 v%d, v%d, v%d" % (t + 1, b + 2, b + 3),
                "ds_write_b64 v%d, %s offset:%d" % (12 + ft, vr(t, 2), 32 * ft + 1152 * tt)]

    a("s_barrier")
    a("s_barrier")
    stamp(a, 1)
    q = []

    def issue(tag, lst):
        for x in lst:
            a(x)
            q.append(tag)

    def need(tag):
        last = max(k for k, v in enumerate(q) if v == tag)
        a("s_waitcnt lgkmcnt(%d)" % min(15, len(q) - 1 - last))

    issue(("x", 0), xreads(0))
    for ft in range(9):
        issue(("w", 0, ft), wreads(0, ft))
    for step in range(16):
        if step & 1:
            a("s_barrier")
            if OPT["gst"]:
                stamp(a, 5 + (step >> 1), True)
        for ft in range(9):
            if ft % OPT["wg"] == 0:
                need(("w", step, min(8, ft + OPT["wg"] - 1)))
            a(mfma(step, ft, 0))
            if ft == 0:
                issue(("x", step + 1), xreads(step + 1))
            a(mfma(step, ft, 1))
            issue(("w", step + 1, ft), wreads(step + 1, ft) if ft < OPT["skipw"] else ["s_nop 0"])
    RING = (60, 160, 164)

    def w17(ft):
        return [x.replace(vr(WF + 4 * ft + 2 * sec, 2), vr(RING[ft % 3] + 2 * sec, 2)) for sec, x in enumerate(wreads(17, ft))]

    issue(("x", 17), xreads(17))
    issue(("v", 0), w17(0))
    issue(("v", 1), w17(1))
    for ft in range(10):
        e = (epi(2 * ft - 2) + epi(2 * ft - 1)) if ft else []
        if ft < 9:
            need(("v", ft))
            m = [mfma(16, ft, 0), mfma(16, ft, 1)] + \
                [mfma(17, ft, tt).replace(vr(WF + 4 * ft, 4), vr(RING[ft % 3], 4)) for tt in range(2)]
        else:
            m = []
        cut = (0, 3, 5, 8, 10)
        for k in range(4):
            if m:
                a(m[k])
            if k == 0 and ft + 2 < 9:
                issue(("v", ft + 2), w17(ft + 2))
            for x in e[cut[k]:cut[k + 1]]:
                if x.startswith("ds_"):
                    issue("e", [x])
                else:
                    a(x)
    stamp(a, 2)
    a("s_waitcnt lgkmcnt(0)")
    a.c("---- copy the tile out, then publish it")
    a.label("L_copy")
    a("v_lshlrev_b32 v1, 4, v0")
    a("s_lshl_b32 s36, s3, 10")
    a("v_add_u32 v2, s36, v1")
    a("v_add_u32 v3, %d, v2" % (IMG + 4 * 8192))
    srd_off(a, 24, 8, L.WS_QKV, L.QKV_BYTES)
    make_tag(a)
    a("s_barrier")
    for j in range(4):
        a("ds_read_b128 %s, v2 offset:%d" % (vr(4 + 4 * j, 4), IMG + j * 8192))
    a("s_cmp_lt_u32 s3, 4")
    a("s_cbranch_scc0 L_c4")
    a("ds_read_b128 v[20:23], v3")
    a("s_waitcnt lgkmcnt(0)")
    a("buffer_store_dwordx4 v[20:23], v1, s[24:27], s54 offen sc1")
    a.label("L_c4")
    for j in range(4):
        a("s_waitcnt lgkmcnt(%d)" % (3 - j))
        a("buffer_store_dwordx4 %s, v1, s[24:27], s%d offen sc1" % (vr(4 + 4 * j, 4), 50 + j))
    a("s_mov_b32 s63, s58")
    a("v_mov_b32 v%d, %d" % (vC, CTL))
    lds_inc(a, vC, 24, C_FI)
    stamp(a, 3)


def spare_phase(a):
    GW = 64
    a.c("---- workgroups without a GEMM tile: router / gate logits, first touch of the weights")
    a.label("L_sp")
    a("s_sub_u32 s36, s2, 192")
    a("s_cmp_ge_u32 s3, 8")
    a("s_cbranch_scc1 L_sp_ffn")
    a("s_cmp_ge_u32 s3, 4")
    a("s_cbranch_scc1 L_sp_hi")
    a("s_load_dwordx2 s[60:61], s[0:1], 32")
    a("s_load_dwordx2 s[62:63], s[0:1], 64")
    a("v_lshrrev_b32 v2, 3, v0")
    a("v_and_b32 v3, 7, v0")
    a("v_lshlrev_b32 v3, 4, v3")
    a("s_lshl_b32 s34, s36, 2")
    a("s_add_u32 s34, s34, s3")
    a("s_lshl_b32 s33, s34, 3")
    a("v_add_u32 v1, s33, v2")
    a("v_mul_u32_u24 v4, 1152, v1")
    a("v_add_u32 v4, v4, v3")
    a("s_mul_i32 s51, s34, %d" % (7 * 128))
    a("s_mul_i32 s52, s34, %d" % (21 * 128))
    a("v_lshlrev_b32 v7, 7, v0")
    a("s_waitcnt lgkmcnt(0)")
    load_tag(a)
    srd(a, 16, 6, 576 * 3456)
    srd(a, 20, 28, 576 * 1152)
    for i in range(9):
        a("global_load_dwordx4 %s, v4, s[4:5] offset:%d" % (vr(8 + 4 * i, 4), 128 * i))
        if i == 0:
            for j in range(9):
                a("global_load_dwordx4 %s, v3, s[60:61] offset:%d" % (vr(44 + 4 * j, 4), 128 * j))
                a("global_load_dwordx4 %s, v3, s[62:63] offset:%d" % (vr(80 + 4 * j, 4), 128 * j))
        else:
            a("s_add_u32 s53, s51, %d" % (1728 * 128 * i))
            a("s_mov_b64 exec, 0x7f")
            a("buffer_load_dword v124, v7, s[16:19], s53 offen")
            a("s_mov_b64 exec, -1")
    a("s_mov_b64 exec, 0x1fffff")
    a("buffer_load_dword v124, v7, s[20:23], s52 offen")
    a("s_mov_b64 exec, -1")
    a("v_mov_b32 v%d, %d" % (vC, CTL))
    a("s_waitcnt lgkmcnt(0)")
    make_tag(a)
    a("s_barrier")
    a("s_waitcnt vmcnt(2)")
    for i in range(36):
        p = 116 + (i & 3)
        a("v_dot2_f32_bf16 v%d, v%d, v%d, %s" % (p, 8 + i, 44 + i, "0" if i < 4 else "v%d" % p))
    a("s_nop 1")
    a("v_pk_add_f32 v[116:117], v[116:117], v[118:119]")
    a("v_add_f32 v5, v116, v117")
    sum8(a, (5,))
    bf16_round(a, 5, 5)
    a("v_ashrrev_i32 v7, 31, v5")
    a("v_or_b32 v7, 0x80000000, v7")
    a("v_xor_b32 v7, v7, v5")
    a("v_and_b32 v7, 0xffff0000, v7")
    a("v_sub_u32 v6, 0x7ff, v1")
    a("v_or_b32 v7, v7, v6")
    a("v_mov_b32 v5, 1")
    a("s_mov_b32 s54, 0x01010101")
    a("s_mov_b32 exec_lo, s54")
    a("s_mov_b32 exec_hi, s54")
    a("ds_max_u32 v%d, v7 offset:%d" % (vC, C_KMAX))
    a("s_mov_b64 exec, 1")
    a("ds_add_rtn_u32 v5, v%d, v5 offset:%d" % (vC, C_KCNT))
    a("ds_read_b32 v7, v%d offset:%d" % (vC, C_KMAX))
    a("s_lshl_b32 s53, s36, 3")
    a("s_add_u32 s53, s53, %d" % L.WS_KEYF)
    a("v_mov_b32 v4, s53")
    a("v_mov_b32 v6, s%d" % TAG)
    a("s_waitcnt lgkmcnt(0)")
    a("v_cmp_eq_u32 vcc, 3, v5")
    a("s_and_b64 exec, exec, vcc")
    a("s_cbranch_execz L_sp_nopub")
    a("global_store_dwordx2 v4, v[6:7], s[8:9] sc1")
    a.label("L_sp_nopub")
    a("s_mov_b64 exec, -1")
    stamp(a, 1)
    a("s_mov_b32 s55, 0x3f803f80")
    for i in range(36):
        x, w, p = 8 + i, 80 + i, 116 + (i & 3)
        t = 44 + 4 * (i & 3)
        a("v_lshlrev_b32 v%d, 16, v%d" % (t, x))
        a("v_and_b32 v%d, 0xffff0000, v%d" % (t + 1, x))
        a("v_lshlrev_b32 v%d, 16, v%d" % (t + 2, w))
        a("v_and_b32 v%d, 0xffff0000, v%d" % (t + 3, w))
        a("v_pk_mul_f32 %s, %s, %s" % (vr(t, 2), vr(t, 2), vr(t + 2, 2)))
        a("v_cvt_pk_bf16_f32 v%d, v%d, v%d" % (t, t, t + 1))
        a("v_dot2_f32_bf16 v%d, v%d, s55, %s" % (p, t, "0" if i < 4 else "v%d" % p))
    a("s_nop 1")
    a("v_pk_add_f32 v[116:117], v[116:117], v[118:119]")
    a("v_add_f32 v6, v116, v117")
    sum8(a, (6,))
    bf16_round(a, 6, 6)
    sigmoid(a, 6, 6)
    bf16_round(a, 6, 6)
    a("v_lshlrev_b32 v1, 2, v1")
    a("v_add_u32 v1, %d, v1" % L.WS_G)
    a("s_mov_b32 exec_lo, s54")
    a("s_mov_b32 exec_hi, s54")
    a("global_store_dword v1, v6, s[8:9] sc1")
    a("s_mov_b64 exec, -1")
    a("s_waitcnt vmcnt(0)")
    lds_inc(a, vC, 5, C_GD)
    if OPT["dtouch"]:
        srd(a, 16, 14, 4608 * 1152)
        a("s_mul_i32 s52, s34, %d" % (162 * 128))
        a("v_lshlrev_b32 v7, 7, v0")
        for k in range(3):
            a("buffer_load_dword v124, v7, s[16:19], s52 offen")
            a("s_add_u32 s52, s52, %d" % (54 * 128))
    a("s_mov_b32 s63, 0")
    stamp(a, 2)
    a("s_branch L_att")

    a.label("L_sp_hi")
    a("s_cmp_eq_u32 s3, 7")
    a("s_cbranch_scc0 L_sp_hi1")
    code_touch(a)
    a.label("L_sp_hi1")
    a("v_mov_b32 v%d, %d" % (vC, CTL))
    a("s_waitcnt lgkmcnt(0)")
    load_tag(a)
    a("s_mov_b32 s63, 0")
    a("s_waitcnt lgkmcnt(0)")
    make_tag(a)
    a("s_barrier")
    a("s_cmp_eq_u32 s3, 4")
    a("s_cbranch_scc1 L_sp_w4")
    a("s_cmp_eq_u32 s3, 5")
    a("s_cbranch_scc0 L_att")
    a("s_lshl_b32 s56, s36, 7")
    a("s_add_u32 s56, s56, %d" % (L.WS_FLAG + F_PA * 128))
    a("v_mov_b32 v9, s56")
    lds_spin(a, "L_sp_x5", vC, C_XS, 10, (1, 4), 4)
    a("ds_read_b64 v[14:15], v%d offset:%d" % (vC, C_IDX))
    a("v_mov_b32 v12, s%d" % TAG)
    a("s_waitcnt lgkmcnt(0)")
    a("v_mov_b32 v13, v14")
    a("v_mov_b32 v14, v15")
    a("s_mov_b64 exec, 1")
    a("global_store_dwordx3 v9, v[12:14], s[8:9] sc1")
    a("s_mov_b64 exec, -1")
    a("s_branch L_att")
    a.label("L_sp_w4")
    for k in range(4):
        a("v_mov_b32 v%d, 0" % (12 + k))
    a("s_cmp_lt_u32 s36, 36")
    a("s_cbranch_scc0 L_sp_nz")
    a("s_lshl_b32 s51, s36, 10")
    a("s_add_u32 s51, s51, %d" % L.WS_YP)
    a("v_lshlrev_b32 v4, 4, v0")
    a("v_add_u32 v4, s51, v4")
    a("global_store_dwordx4 v4, v[12:15], s[8:9] sc1")
    a("s_cmp_eq_u32 s36, 0")
    a("s_cbranch_scc0 L_sp_nz")
    a("v_lshlrev_b32 v4, 7, v0")
    a("v_add_u32 v4, %d, v4" % (L.WS_FLAG + F_Y * 128))
    a("global_store_dword v4, v12, s[8:9] sc1")
    a.label("L_sp_nz")
    a("v_lshlrev_b32 v8, 3, v0")
    a("v_add_u32 v8, %d, v8" % L.WS_KEYF)
    srd(a, 24, 4, 2048 * 1152)
    lds_spin(a, "L_sp_own", vC, C_KCNT, 10, (4,), 2)
    a("s_sleep %d" % OPT["slp0"])
    flag_poll(a, "L_sp_kp", 8, 10, "s%d" % TAG, 64, OPT["slp"], 2)
    a("v_lshlrev_b32 v8, 4, v0")
    stamp(a, 1)
    wave_umax(a, 11, 53)
    a("s_and_b32 s54, s53, 0x7ff")
    a("s_sub_u32 s54, 2047, s54")
    a("s_mul_i32 s55, s54, 1152")
    a("s_mov_b32 m0, %d" % XS)
    a("s_add_u32 s56, s55, 1024")
    a("buffer_load_dwordx4 v8, s[24:27], s55 offen lds")
    a("s_mov_b32 m0, %d" % (XS + 1024))
    a("s_mov_b64 exec, 0xff")
    a("buffer_load_dwordx4 v8, s[24:27], s56 offen lds")
    a("s_mov_b64 exec, -1")
    a("s_and_b32 s55, s53, 0xffff0000")
    a("s_xor_b32 s56, s55, 0x80000000")
    a("s_xor_b32 s57, s55, 0xffff0000")
    a("s_bitcmp1_b32 s55, 31")
    a("s_cselect_b32 s55, s56, s57")
    a("v_mov_b32 v12, s55")
    sigmoid(a, 13, 12)
    bf16_round(a, 13, 13)
    a("v_mov_b32 v12, s54")
    a("ds_write_b64 v%d, v[12:13] offset:%d" % (vC, C_IDX))
    a("v_mov_b32 v12, 1")
    a("s_waitcnt vmcnt(0)")
    a("ds_write_b32 v%d, v12 offset:%d" % (vC, C_XS))
    stamp(a, 2)
    a("s_branch L_att")

    a.c("---- gate / up projections of the routed token")
    a.label("L_sp_ffn")
    a("s_load_dwordx4 s[40:43], s[0:1], 40")
    a("v_mov_b32 v3, %d" % CTL)
    for k in range(4):
        a("v_mov_b32 v%d, 0" % (4 + k))
    a("v_lshlrev_b32 v1, 4, v0")
    a("v_add_u32 v2, v1, v3")
    a("s_mov_b64 exec, 0xff")
    a("ds_write_b128 v2, v[4:7]")
    a("s_mov_b64 exec, -1")
    a("v_lshlrev_b32 v2, 2, v0")
    a("v_add_u32 v2, %d, v2" % (XS + 1152))
    a("ds_write_b32 v2, v4")
    a("s_sub_u32 s59, s3, 8")
    a("s_mul_i32 s37, s36, 57")
    a("s_lshr_b32 s37, s37, 9")
    a("s_mul_i32 s38, s37, 9")
    a("s_sub_u32 s38, s36, s38")
    a("s_mul_i32 s49, s37, 84")
    a("s_mul_i32 s39, s49, 9216")
    a("s_lshl_b32 s48, s38, 10")
    a("s_add_u32 s39, s39, s48")
    a("s_sub_u32 s48, %d, s39" % (576 * 9216))
    a("s_min_i32 s48, s48, %d" % (83 * 9216 + 1024))
    a("s_max_i32 s48, s48, 0")
    a("v_lshrrev_b32 v160, 5, v0")
    a("v_mul_u32_u24 v160, 9216, v160")
    a("v_and_b32 v161, 31, v0")
    a("v_lshl_add_u32 v160, v161, 4, v160")
    a("s_mul_i32 s57, s59, 20480")
    a("s_add_u32 s57, s57, %d" % WO)
    a("s_mul_i32 s58, s59, %d" % (2 * 9216))
    a("s_waitcnt lgkmcnt(0)")
    load_tag(a)
    srd_off(a, 16, 40, "s39", "s48")
    srd_off(a, 20, 42, "s39", "s48")
    a("s_waitcnt lgkmcnt(0)")
    make_tag(a)
    a("s_barrier")
    if OPT["fdel"]:
        lds_spin(a, "L_sp_fd", 3, C_KCNT, 10, (4,), 2)
        if OPT["fdel"] > 1:
            a("s_sleep %d" % OPT["fdel"])
    for i in range(5):
        a("s_add_u32 s55, s58, %d" % (8 * (6 + i) * 9216))
        a("s_add_u32 s56, s55, 512")
        for k in range(4):
            a("s_add_u32 m0, s57, %d" % ((4 * i + k) * 1024))
            a("buffer_load_dwordx4 v160, s[%d:%d], s%d offen nt lds" % (16 + 4 * (k >> 1), 19 + 4 * (k >> 1), 55 + (k & 1)))
            if OPT["thr"] and 4 * i + k >= OPT["thr"] - 1:
                a("s_waitcnt vmcnt(%d)" % (OPT["thr"] - 1))
    for i in range(6):
        a("s_add_u32 s55, s58, %d" % (8 * i * 9216))
        for k in range(4):
            a("buffer_load_dwordx4 %s, v160, s[%d:%d], s55 offen offset:%d nt" % (
                vr(GW + 16 * i + 4 * k, 4), 16 + 4 * (k >> 1), 19 + 4 * (k >> 1), 512 * (k & 1)))
            if OPT["thr"]:
                a("s_waitcnt vmcnt(%d)" % (OPT["thr"] - 1))
    a("s_lshl_b32 s55, s59, 1")
    a("s_add_u32 s55, s55, s49")
    a("v_lshrrev_b32 v51, 5, v0")
    a("v_add_u32 v51, s55, v51")
    a("v_lshlrev_b32 v51, 1, v51")
    a("v_add_u32 v51, %d, v51" % XS)
    a("v_and_b32 v2, 1, v0")
    a("v_lshlrev_b32 v2, 4, v2")
    a("v_lshrrev_b32 v4, 1, v0")
    a("v_xor_b32 v4, v4, v0")
    a("v_and_b32 v4, 8, v4")
    a("v_bfe_u32 v5, v0, 1, 2")
    a("v_or_b32 v4, v4, v5")
    for q in range(4):
        a("v_cmp_eq_u32 s[%d:%d], %d, v4" % (40 + 2 * q, 41 + 2 * q, q))
    a("v_bfe_u32 v4, v0, 3, 1")
    a("v_lshlrev_b32 v4, 9, v4")
    a("v_lshrrev_b32 v5, 4, v0")
    a("v_lshl_add_u32 v4, v5, 7, v4")
    a("v_and_b32 v5, 7, v0")
    a("v_lshl_add_u32 v4, v5, 2, v4")
    a("v_add_u32 v6, s57, v4")
    a("v_add_u32 v52, s57, v1")
    a("s_lshl_b32 s55, s59, 9")
    a("v_lshlrev_b32 v8, 3, v0")
    a("v_add_u32 v8, s55, v8")
    a("s_mul_i32 s52, s37, %d" % (4608 * 16))
    a("s_lshl_b32 s55, s38, 13")
    a("s_add_u32 s52, s52, s55")
    a("s_add_u32 s52, s52, %d" % L.WS_PA)
    a("v_lshlrev_b32 v9, 2, v8")
    a("v_add_u32 v9, s52, v9")
    a("v_add_u32 v8, %d, v8" % WO)
    stamp(a, 3)
    lds_spin(a, "L_sp_xs", 3, C_XS, 10, (1,), 2)
    a("s_setprio %d" % OPT["pr2"])
    stamp(a, 7)
    for i in range(11):
        a("ds_read_u16 v%d, v51 offset:%d" % (53 + i, 16 * i))
    a("s_waitcnt vmcnt(24)")
    for k in range(4):
        a("ds_read_b128 %s, v52 offset:%d" % (vr(32 + 4 * k, 4), 1024 * k))
    a("s_waitcnt lgkmcnt(4)")
    for i in range(11):
        a("v_lshlrev_b32 v%d, v2, v%d" % (53 + i, 53 + i))
    first = True
    for i in range(5):
        selector(a, 12, 53 + 6 + i, 40)
        for k in range(4):
            d = vr(16 + 4 * k, 4)
            a("s_waitcnt lgkmcnt(%d)" % (3 if i < 4 else 3 - k))
            a("v_mfma_f32_16x16x32_bf16 %s, %s, v[12:15], %s" % (d, vr(32 + 4 * k, 4), "0" if first else d))
            if i < 4:
                a("ds_read_b128 %s, v52 offset:%d" % (vr(32 + 4 * k, 4), 1024 * (4 * (i + 1) + k)))
        first = False
    stamp(a, 12)
    for i in range(6):
        selector(a, 12, 53 + i, 40)
        a("s_waitcnt vmcnt(%d)" % (4 * (5 - i)))
        for k in range(4):
            d = vr(16 + 4 * k, 4)
            a("v_mfma_f32_16x16x32_bf16 %s, %s, v[12:15], %s" % (d, vr(GW + 16 * i + 4 * k, 4), d))
    stamp(a, 11)
    for k in range(4):
        for r in range(4):
            a("ds_write_b32 v6, v%d offset:%d" % (16 + 4 * k + r, 1024 * k + 32 * r))
    lds_inc(a, 3, 10, C_RED)
    lds_spin(a, "L_sp_rd", 3, C_RED, 10, (4,), 0)
    for p in range(4):
        a("ds_read_b64 %s, v8 offset:%d" % (vr(16 + 4 * p, 2), 20480 * p))
        a("ds_read_b64 %s, v8 offset:%d" % (vr(18 + 4 * p, 2), 20480 * p + 2048))
    a("v_mov_b32 v34, s%d" % TAG)
    a("v_mov_b32 v38, s%d" % TAG)
    a("s_waitcnt lgkmcnt(0)")
    lds_inc(a, 3, 10, C_RED2)
    for p in (2, 1):
        for h in range(2 * p):
            a("v_pk_add_f32 %s, %s, %s" % (vr(16 + 2 * h, 2), vr(16 + 2 * h, 2), vr(16 + 4 * p + 2 * h, 2)))
    a("v_mov_b32 v32, v16")
    a("v_mov_b32 v33, v18")
    a("v_mov_b32 v36, v17")
    a("v_mov_b32 v37, v19")
    a("s_cmp_eq_u32 s36, 63")
    a("s_cbranch_scc1 L_sp_nost")
    a("global_store_dwordx4 v9, v[32:35], s[8:9] sc1")
    a("global_store_dwordx4 v9, v[36:39], s[8:9] offset:16 sc1")
    a.label("L_sp_nost")
    stamp(a, 4)
    lds_spin(a, "L_sp_r2", 3, C_RED2, 10, (4,), 0)
    a("s_branch L_help2")


def attn_loop(a):
    for i in range(9):
        if OPT["bal"] and i == 0:
            a("s_cmp_lt_u32 s3, 4")
            a("s_cbranch_scc1 L_bal0")
            a("s_setprio 1")
            a.label("L_bal0")
        if OPT["bal"] and i == OPT["bal"]:
            a("s_setprio 0")
        a.label("L_it%d" % i)
        S, P = SS[i & 1], PP[i & 1]
        ex = ["v_exp_f32 v%d, v%d" % (S + r, S + r) for r in range(16)]
        cv = ["v_cvt_pk_bf16_f32 v%d, v%d, v%d" % (P + q, S + 2 * q, S + 2 * q + 1) for q in range(8)]
        if i == 0:
            mk = ["v_bfi_b32 v%d, v%d, 0, v%d" % (P + q, MSK + q, P + q) for q in range(8)]
        elif i == 8:
            mk = ["v_and_b32 v%d, v%d, v%d" % (P + q, MSK + q, P + q) for q in range(8)]
        else:
            mk = []
        m1 = qk(i + 1) if i < 8 else []
        m2 = pv(i - 1, i == 1) if i > 0 else []
        a("s_waitcnt lgkmcnt(%d)" % (4 if 0 < i < 8 else 0))
        seq = m1[:1] + ex[0:4] + m1[1:] + (k_reads(i + 2) if i + 2 <= 8 else []) + ex[4:8] + cv[0:2] + m2[:1] + \
            ex[8:12] + cv[2:4] + m2[1:]
        if i + 1 <= 8:
            seq += ["v_add_u32 v%d, v%d, v%d" % (vV, vV, vStep)] + v_reads(i + 1)
        seq += ex[12:16] + cv[4:8] + mk
        for x in seq:
            a(x)
    lds_spin(a, "L_pz", vC, C_C, T, (1,), 0)
    for x in pv(8, False):
        a(x)


def attention_phase(a):
    a.c("---- attention: set-up, wait for the producers, K/V/Q into LDS")
    a.label("L_att")
    decode2(a)
    a("s_mul_i32 s33, s31, %d" % L.PAIR_BYTES)
    a("s_mul_i32 s34, s32, 9216")
    a("s_add_u32 s33, s33, s34")
    a("v_mov_b32 v%d, %d" % (vC, CTL))
    KS, VS = 16 * L.PAIR_BYTES - 18432, 32 * L.PAIR_BYTES - 18432
    grp = [(QB, 0), (KB, KS), (VB, VS), (KB + 9216, KS + 9216), (VB + 9216, VS + 9216), (KB + 18432, KS + 18432), (VB + 18432, VS + 18432)]
    a("s_lshl_b32 s34, s3, 10")
    for j in range(8):
        lo, hi = (8 * j) // 9, min(8 * j + 7, 62) // 9
        l0, g0 = grp[lo][0] + (8 * j - 9 * lo) * 1024, grp[lo][1] + (8 * j - 9 * lo) * 1024
        l1, g1 = grp[hi][0] + (8 * j - 9 * hi) * 1024, grp[hi][1] + (8 * j - 9 * hi) * 1024
        if j == 7:
            a("s_min_u32 s34, s34, %d" % (6 * 1024))
        if lo == hi:
            a("s_add_u32 s%d, s34, %d" % (16 + j, l0))
            a("s_add_u32 s%d, s33, %d" % (44 + j, g0 - l0 & 0xffffffff))
        else:
            a("s_mov_b32 s35, %d" % l0)
            a("s_mov_b32 s36, %d" % (g0 - l0 & 0xffffffff))
            a("s_cmp_ge_u32 s3, %d" % (9 * hi - 8 * j))
            a("s_cselect_b32 s35, %d, s35" % (l1 & 0xffffffff))
            a("s_cselect_b32 s36, %d, s36" % (g1 - l1 & 0xffffffff))
            a("s_add_u32 s%d, s34, s35" % (16 + j))
            a("s_add_u32 s%d, s33, s36" % (44 + j))
        a("s_add_u32 s%d, s%d, s%d" % (44 + j, 44 + j, 16 + j))
    a("v_mov_b32 v10, s63")
    a("v_mov_b32 v11, s%d" % TAG)
    a("s_waitcnt vmcnt(0)")
    lds_inc(a, vC, 9, C_1, rtn=True)
    a("s_cmp_lg_u32 s63, 0")
    a("s_cselect_b32 s35, 7, 99")
    a("s_waitcnt lgkmcnt(0)")
    a("v_readfirstlane_b32 s36, v9")
    a("s_cmp_eq_u32 s36, s35")
    a("s_cbranch_scc0 L_nofl1")
    a("s_mov_b64 exec, 1")
    a("global_store_dword v10, v11, s[8:9] sc1")
    a("s_mov_b64 exec, -1")
    a.label("L_nofl1")
    stamp(a, 4)
    a("s_and_b32 s42, s3, 1")
    a("s_lshr_b32 s43, s3, 1")
    a("s_mul_i32 s35, s43, 2304")
    a("s_mul_i32 s36, s42, 40")
    a("v_and_b32 v%d, 31, v0" % T)
    a("v_lshrrev_b32 v%d, 5, v0" % (T + 1))
    a("v_mul_u32_u24 v%d, 72, v%d" % (vKt, T))
    a("v_add_u32 v%d, s35, v%d" % (vKt, vKt))
    a("v_lshl_add_u32 v%d, v%d, 4, v%d" % (vK, T + 1, vKt))
    a("v_add_u32 v%d, s36, v%d" % (vK, vK))
    a("v_add_u32 v%d, 32, v%d" % (vKt, vKt))
    a("v_bfe_u32 v%d, v0, 2, 2" % (T + 2))
    a("v_lshl_add_u32 v%d, v%d, 2, v%d" % (T + 2, T + 1, T + 2))
    a("v_mul_u32_u24 v%d, 72, v%d" % (T + 2, T + 2))
    a("s_add_u32 s37, s35, %d" % VB)
    a("v_add_u32 v%d, s37, v%d" % (T + 2, T + 2))
    a("v_and_b32 v%d, 3, v0" % (T + 3))
    a("v_lshlrev_b32 v%d, 3, v%d" % (T + 4, T + 3))
    a("v_add_u32 v%d, s36, v%d" % (T + 4, T + 4))
    a("v_and_b32 v%d, 16, v0" % (T + 5))
    a("v_cmp_eq_u32 s[38:39], 0, v%d" % (T + 5))
    a("v_cndmask_b32 v%d, 32, v%d, s[38:39]" % (T + 4, T + 4))
    a("v_add_u32 v%d, v%d, v%d" % (vV, T + 2, T + 4))
    a("v_and_b32 v%d, 19, v0" % (T + 5))
    a("v_cmp_lt_u32 s[38:39], 16, v%d" % (T + 5))
    a("v_mov_b32 v%d, %d" % (T + 6, ONES))
    a("v_cndmask_b32 v%d, v%d, v%d, s[38:39]" % (vV, vV, T + 6))
    a("v_mov_b32 v%d, 2304" % (T + 6))
    a("v_cndmask_b32 v%d, v%d, 0, s[38:39]" % (vStep, T + 6))
    a("v_lshlrev_b32 v%d, 2, v%d" % (T + 2, T + 1))
    a("v_sub_u32 v%d, v%d, v%d" % (T + 2, T, T + 2))
    a("v_mov_b32 v%d, 0xffff" % (T + 3))
    for q in range(8):
        kl = 8 * (q >> 1) + 2 * (q & 1)
        a("v_cmp_le_i32 s[38:39], %d, v%d" % (kl, T + 2))
        a("v_cmp_le_i32 s[40:41], %d, v%d" % (kl + 1, T + 2))
        a("v_cndmask_b32 v%d, 0, v%d, s[38:39]" % (MSK + q, T + 3))
        a("v_cndmask_b32 v%d, v%d, -1, s[40:41]" % (MSK + q, MSK + q))
    a("s_lshl_b32 s41, s32, 2")
    a("s_add_u32 s41, s41, s43")
    a("s_sub_i32 s41, 8, s41")
    a("s_lshl_b32 s35, s32, 3")
    a("s_lshl_b32 s36, s43, 1")
    a("s_add_u32 s35, s35, s36")
    a("s_mul_i32 s35, s35, 18432")
    a("s_lshl_b32 s58, s31, 10")
    a("s_lshl_b32 s36, s42, 9")
    a("s_add_u32 s58, s58, s36")
    a("s_add_u32 s58, s58, s35")
    a("s_lshr_b32 s59, s31, 1")
    a("s_lshl_b32 s59, s59, 8")
    a("s_and_b32 s36, s31, 1")
    a("s_lshl_b32 s36, s36, 3")
    a("s_add_u32 s59, s59, s36")
    a("s_lshl_b32 s36, s42, 2")
    a("s_add_u32 s59, s59, s36")
    a("s_add_u32 s59, s59, s35")
    a("s_add_u32 s59, s59, 16384")
    a("v_bfe_u32 v152, v0, 4, 1")
    a("v_mul_u32_u24 v152, 18432, v152")
    a("v_and_b32 v153, 15, v0")
    a("v_lshl_add_u32 v152, v153, 4, v152")
    a("v_lshrrev_b32 v153, 5, v0")
    a("v_lshl_add_u32 v153, v153, 8, v152")
    a("v_cmp_gt_u32 vcc, 32, v0")
    a("s_cmp_eq_u32 s42, 0")
    a("s_cselect_b64 s[54:55], vcc, 0")
    a("s_cselect_b64 s[56:57], 0, vcc")
    a("v_and_b32 v%d, 3, v0" % (T + 2))
    a("v_mul_u32_u24 v%d, 576, v%d" % (T + 2, T + 2))
    a("v_mov_b32 v%d, 0x3f803f80" % (T + 4))
    a("v_mov_b32 v%d, v%d" % (T + 5, T + 4))
    a("v_lshlrev_b32 v%d, 4, v0" % (T + 3))
    srd_off(a, 36, 8, L.WS_QKV, L.QKV_BYTES)
    srd_off(a, 24, 8, L.WS_O, 128 * 18432)
    a("s_add_u32 s40, s3, 2")
    a("s_cmp_lt_u32 s3, 4")
    a("s_cselect_b32 s40, s3, s40")
    out_setup(a, 40)
    a("s_lshr_b32 s35, s2, 6")
    a("s_lshl_b32 s35, s35, 4")
    a("s_add_u32 s35, s35, s3")
    a("s_cmp_eq_u32 s35, %d" % (3 * 16 + 6))
    a("s_cbranch_scc0 L_nq2")
    lds_spin(a, "L_sp_x6", vC, C_XS, T + 8, (1,), 8)
    qpoll(a, vC, "L_qp2", False, T + 8)
    a.label("L_nq2")
    lds_spin(a, "L_go1", vC, C_1, T, (8, 1), OPT["g1s"])
    stamp(a, 5)
    for j in range(8):
        a("s_mov_b32 m0, s%d" % (16 + j))
        a("s_nop 0")
        a("buffer_load_dwordx4 v%d, s[36:39], s%d offen %s lds" % (T + 3, 44 + j, OPT["kvl"]))
    a("ds_write_b64 v%d, %s offset:%d" % (T + 2, vr(T + 4, 2), ONES))
    a("s_cmp_lt_u32 s32, 2")
    a("s_cbranch_scc1 L_late")
    landed(a, 1, 0)
    stage_spin(a, "L_sA", 0)
    stamp(a, 6)
    for x in q_reads() + k_reads(0) + k_reads(1) + v_reads(0):
        a(x)
    a("s_waitcnt lgkmcnt(7)")
    a("v_cndmask_b32 v%d, 0, v%d, s[54:55]" % (QT, QT))
    a("v_cndmask_b32 v%d, 0, v%d, s[56:57]" % (QT + 1, QT + 1))
    for x in qk(0):
        a(x)
    lds_inc(a, vC, T, C_B)
    x_loads(a)
    attn_loop(a)
    a.c("---- softmax range check; true-max path if it fails")
    a.label("L_check")
    stamp(a, 7)
    a("s_mov_b32 s46, %s" % f32(2.0 ** 60))
    a("s_mov_b32 s47, %s" % f32(2.0 ** -60))
    a("s_mov_b32 s48, 0x7f800000")
    a("s_nop 7")
    a("s_nop 0")
    a("v_rcp_f32 v%d, v%d" % (T, OO + 12))
    a("v_cmp_gt_f32 s[50:51], s46, v%d" % (OO + 12))
    a("v_cmp_lt_f32 vcc, s47, v%d" % (OO + 12))
    for k in range(6):
        a("v_add_f32 v%d, abs(v%d), abs(v%d)" % (T + 2 + k, OO + 2 * k, OO + 2 * k + 1))
    a("s_and_b64 s[50:51], s[50:51], vcc")
    a("v_pk_add_f32 %s, %s, %s" % (vr(T + 2, 2), vr(T + 2, 2), vr(T + 4, 2)))
    a("v_pk_add_f32 %s, %s, %s" % (vr(T + 2, 2), vr(T + 2, 2), vr(T + 6, 2)))
    a("v_add_f32 v%d, v%d, v%d" % (T + 2, T + 2, T + 3))
    a("v_cmp_gt_f32 vcc, s48, v%d" % (T + 2))
    a("s_and_b64 s[50:51], s[50:51], vcc")
    a("s_cmp_eq_u64 s[50:51], -1")
    a("s_cbranch_scc0 L_slow")
    a.label("L_fin")
    a("s_cmp_eq_u32 s42, 0")
    a("s_cbranch_scc1 L_fa")
    a("v_mov_b32 v%d, v%d" % (OO + 8, OO + 10))
    a("v_mov_b32 v%d, v%d" % (OO + 9, OO + 11))
    a.label("L_fa")
    for k in range(0, 10, 2):
        a("v_pk_mul_f32 %s, %s, %s op_sel_hi:[1,0]" % (vr(OO + k, 2), vr(OO + k, 2), vr(T, 2)))
    for q in range(5):
        a("v_cvt_pk_bf16_f32 v%d, v%d, v%d" % (T + 4 + q, OO + 2 * q, OO + 2 * q + 1))
    a("buffer_store_dwordx4 %s, v153, s[24:27], s58 offen sc1" % vr(T + 4, 4))
    a("s_mov_b32 exec_hi, 0")
    a("buffer_store_dword v%d, v152, s[24:27], s59 offen sc1" % (T + 8))
    a("s_mov_b32 exec_hi, -1")


def q_reads():
    return ["ds_read_b64 %s, v%d offset:%d" % (vr(QM, 2), vK, QB),
            "ds_read_b64 %s, v%d offset:%d" % (vr(QM + 2, 2), vK, QB + 8),
            "ds_read_b64 %s, v%d offset:%d" % (vr(QT, 2), vKt, QB)]


sKH, sPAIR, sTILE, sGATE, sSLOT, sOB, sXO = 6, 7, 13, 14, 15, 28, 29
A0, vXO, vRW, vCH, vSW, vSR, vL16, vPX, vPF = 156, 142, 140, 141, 143, 144, 162, 160, 161
GB = 154624


def out_setup(a, role):
    a("s_and_b32 s%d, s%d, 1" % (sKH, role))
    a("s_lshr_b32 s%d, s%d, 1" % (sPAIR, role))
    a("s_mul_i32 s%d, s52, 5" % sTILE)
    a("s_and_b32 s33, s%d, 7" % sTILE)
    a("s_sub_u32 s34, 8, s33")
    a("s_cmp_lt_u32 s33, 4")
    a("s_cselect_b32 s34, 0, s34")
    a("s_add_u32 s34, s34, s%d" % sPAIR)
    a("s_sub_u32 s35, s34, 5")
    a("s_cmp_ge_u32 s34, 5")
    a("s_cselect_b32 s34, s35, s34")
    a("s_add_u32 s%d, s%d, s34" % (sTILE, sTILE))
    a("s_lshl_b32 s98, s34, 6")
    a("s_mov_b32 s%d, 0x404" % sGATE)
    a("s_bitcmp1_b32 s%d, 2" % sTILE)
    if not OPT["allg"]:
        a("s_cselect_b32 s%d, s%d, 4" % (sGATE, sGATE))
    a("s_mov_b32 s%d, %d" % (sSLOT, PSLOT[0]))
    for p in range(1, 5):
        a("s_cmp_eq_u32 s%d, %d" % (sPAIR, p))
        a("s_cselect_b32 s%d, %d, s%d" % (sSLOT, PSLOT[p], sSLOT))
    a("s_mul_i32 s%d, s%d, 18432" % (sOB, sTILE))
    a("s_lshl_b32 s33, s53, 7")
    a("s_add_u32 s%d, s%d, s33" % (sXO, sOB))
    a("s_lshl_b32 s33, s%d, 6" % sKH)
    a("s_add_u32 s%d, s%d, s33" % (sXO, sXO))
    a("s_mul_i32 s33, s%d, 9216" % sKH)
    a("s_add_u32 s%d, s%d, s33" % (sOB, sOB))
    a("s_add_u32 s96, s%d, 4096" % sOB)
    a("s_add_u32 s97, s%d, 8192" % sOB)
    a("v_lshrrev_b32 v%d, 2, v0" % vRW)
    a("v_and_b32 v%d, 3, v0" % vCH)
    a("v_mul_u32_u24 v%d, 1152, v%d" % (vXO, vRW))
    a("v_lshl_add_u32 v%d, v%d, 4, v%d" % (vXO, vCH, vXO))
    a("v_lshrrev_b32 v146, 2, v0")
    a("v_bfe_u32 v147, v0, 3, 2")
    a("v_lshlrev_b32 v147, 1, v147")
    a("v_bfe_u32 v148, v0, 1, 1")
    a("v_xor_b32 v147, v147, v148")
    a("v_and_b32 v148, 1, v0")
    a("v_lshlrev_b32 v148, 3, v148")
    a("v_lshl_add_u32 v148, v146, 7, v148")
    a("v_lshl_add_u32 v148, v147, 4, v148")
    a("s_mul_i32 s33, s%d, %d" % (sKH, 9 * 4096))
    a("s_add_u32 s33, s33, %d" % WO)
    a("s_lshl_b32 s34, s%d, 6" % sKH)
    a("v_xor_b32 v148, s34, v148")
    for t in range(4):
        a("v_xor_b32 v%d, %d, v148" % (A0 + t, 32 * t))
        a("v_add_u32 v%d, s33, v%d" % (A0 + t, A0 + t))
    a("v_lshlrev_b32 v%d, 4, v0" % vL16)
    a("s_lshl_b32 s33, s%d, 11" % sKH)
    a("s_add_u32 s%d, s%d, s33" % (sSLOT, sSLOT))
    a("v_add_u32 v%d, s%d, v%d" % (vPX, sSLOT, vL16))
    a("s_lshl_b32 s33, s33, 1")
    a("s_sub_u32 s33, 2048, s33")
    a("v_add_u32 v164, s33, v%d" % vPX)
    a("s_lshl_b32 s33, s%d, 1" % sPAIR)
    a("s_add_u32 s33, s33, s%d" % sKH)
    a("s_lshl_b32 s33, s33, 2")
    a("s_add_u32 s33, s33, %d" % CTL)
    a("v_mov_b32 v%d, s33" % vPF)
    a("v_xor_b32 v165, 4, v%d" % vPF)
    a("v_and_b32 v%d, 15, v0" % vSW)
    a("v_mul_u32_u24 v%d, 80, v%d" % (vSW, vSW))
    a("v_lshrrev_b32 v146, 4, v0")
    a("v_lshlrev_b32 v146, 3, v146")
    a("v_add3_u32 v%d, v%d, v146, s%d" % (vSW, vSW, sSLOT))
    a("v_mul_u32_u24 v%d, 80, v%d" % (vSR, vRW))
    a("v_lshl_add_u32 v%d, v%d, 4, v%d" % (vSR, vCH, vSR))
    a("v_add_u32 v%d, s%d, v%d" % (vSR, sSLOT, vSR))
    a("s_add_u32 s98, s98, %d" % GB)
    a("v_lshl_add_u32 v145, v%d, 2, s98" % vRW)
    a("s_cmp_lt_u32 s3, 4")
    a("s_cselect_b32 s33, 1, 0x100")
    a("v_mov_b32 v163, s33")


def x_loads(a):
    srd(a, 20, 4, 2048 * 1152)
    a("buffer_load_dwordx4 %s, v%d, s[20:23], s%d offen" % (vr(XR, 4), vXO, sXO))


def out_phase(a):
    WFR, OF, ACC, PX = (20, 36, 100), 64, (52, 56, 60, 116), (146, 120)
    a("s_cmp_ge_u32 s52, 26")
    a("s_cbranch_scc1 L_end")
    if not OPT["gissue"]:
        a("s_waitcnt vmcnt(0)")
    stamp(a, 8)
    a("s_mov_b64 exec, 1")
    a("ds_add_u32 v%d, v163 offset:%d" % (vC, C_O))
    a("s_mov_b64 exec, -1")
    a.c("---- output projection and gated mix")
    a.label("L_out")

    def omx():
        for j in range(1):
            for q in range(4):
                xv = XR + 4 * j + q
                d = PX[j] + 2 * q
                a("v_lshlrev_b32 v%d, 16, v%d" % (d, xv))
                a("v_and_b32 v%d, 0xffff0000, v%d" % (d + 1, xv))
                a("v_pk_mul_f32 %s, %s, %s op_sel:[0,1] op_sel_hi:[1,1]" % (vr(d, 2), vr(d, 2), vr(GR + 2 * j, 2)))

    def reads(sl):
        st = WFR[sl % 3]
        return ["ds_read_b64_tr_b16 %s, v%d offset:%d" % (vr(st + 4 * t + 2 * sec, 2), A0 + t, (32 * sl + 16 * sec) * 128)
                for t in range(4) for sec in range(2)]

    lds_spin(a, "L_wo", vC, C_WO, 10, (2,), 0)
    for x in reads(0) + reads(1):
        a(x)
    a("s_mov_b32 s60, 0x200000")
    a.label("L_go2")
    a("ds_read_b64 v[10:11], v%d offset:%d" % (vC, C_O))
    a("s_waitcnt lgkmcnt(0)")
    a("v_readfirstlane_b32 s61, v10")
    a("v_readfirstlane_b32 s62, v11")
    a("s_and_b32 s61, s61, s%d" % sGATE)
    a("s_cmp_eq_u32 s61, s%d" % sGATE)
    a("s_cselect_b32 s62, s62, 0")
    a("s_cmp_eq_u32 s62, 1")
    a("s_cbranch_scc1 L_go2_d")
    a("s_sub_u32 s60, s60, 1")
    a("s_cbranch_scc0 L_go2")
    a.label("L_go2_d")
    if OPT["gissue"] == 2:
        a("s_cmp_eq_u32 s60, 0x200000")
        a("s_cbranch_scc1 L_go2_e")
        a("s_sleep %d" % OPT["cdel"])
        a.label("L_go2_e")
        a("s_waitcnt vmcnt(0)")
    elif OPT["cdel"]:
        a("s_sleep %d" % OPT["cdel"])
    stamp(a, 9)
    LAO = OPT["lao"]

    def oload(s):
        a("buffer_load_dwordx4 %s, v%d, s[24:27], s%d offen offset:%d sc1" % (vr(OF + 4 * s, 4), vL16, (sOB, 96, 97)[s // 4], 1024 * (s % 4)))

    def ocheck(sl):
        b = OF + 4 * sl
        if sl < 7:
            a("v_cmp_eq_u32 vcc, -1, v%d" % b)
        else:
            a("v_max3_u32 v10, v%d, v%d, v%d" % (b, b + 1, b + 2))
            a("v_max_u32 v10, v10, v%d" % (b + 3))
            a("v_cmp_eq_u32 vcc, -1, v10")
        a("s_nop 1")

    def oretry():
        for sl in range(9):
            a.label("L_or%d" % sl)
            a("s_sub_u32 s60, s60, 1")
            a("s_cbranch_scc1 L_ok%d" % sl)
            a("s_waitcnt vmcnt(0)")
            for s in range(sl, min(sl + LAO, 9)):
                oload(s)
            a("s_waitcnt vmcnt(%d)" % min(LAO - 1, 8 - sl))
            a("s_branch L_oc%d" % sl)

    RETRY.append(oretry)
    a("s_mov_b32 s60, 0x8000")
    for s in range(LAO):
        oload(s)
    a("ds_read_b32 v%d, v145" % GR)
    a("ds_read_b32 v10, v%d offset:%d" % (vC, C_IDX))
    srd(a, 20, 10, 2048 * 1152)
    a("s_waitcnt lgkmcnt(0) vmcnt(%d)" % LAO)
    a("v_readfirstlane_b32 s12, v10")
    a("v_sub_f32 v%d, 1.0, v%d" % (GR + 1, GR))
    bf16_round(a, GR + 1, GR + 1)
    omx()
    for sl in range(9):
        rd = reads(sl + 2) if sl < 7 else []
        a("s_waitcnt vmcnt(%d) lgkmcnt(%d)" % (min(LAO - 1, 8 - sl), 8 if sl < 8 else 0))
        a.label("L_oc%d" % sl)
        ocheck(sl)
        a("s_cbranch_vccnz L_or%d" % sl)
        a.label("L_ok%d" % sl)
        for t in range(4):
            d = vr(ACC[t], 4)
            a("v_mfma_f32_16x16x32_bf16 %s, %s, %s, %s" % (d, vr(WFR[sl % 3] + 4 * t, 4), vr(OF + 4 * sl, 4), "0" if sl == 0 else d))
            if t == 0 and sl + LAO < 9:
                oload(sl + LAO)
            for x in rd[2 * t:2 * t + 2]:
                a(x)
    stamp(a, 10)
    if OPT["stamp"]:
        a("s_sub_u32 s94, 0x8000, s60")
        a("s_mul_i32 s94, s94, 100")
        a("s_add_u32 s94, s94, s66")
        a("s_addc_u32 s95, s67, 0")
    a("v_mov_b32 v10, 1")
    a("ds_write_b128 v164, %s" % vr(ACC[2], 4))
    a("ds_write_b128 v164, %s offset:1024" % vr(ACC[3], 4))
    a("ds_write_b32 v165, v10 offset:%d" % C_PART)
    a("s_lshr_b32 s46, s12, 4")
    a("s_cmp_eq_u32 s46, s%d" % sTILE)
    a("s_cbranch_scc0 L_noy")
    lds_spin(a, "L_yw", vC, C_YRDY, 10, (1,))
    a("s_lshl_b32 s46, s%d, 7" % sKH)
    a("s_add_u32 s46, s46, %d" % YB)
    a("v_lshl_add_u32 v10, v%d, 5, s46" % vCH)
    a("ds_read_b128 v[12:15], v10")
    a("ds_read_b128 v[16:19], v10 offset:16")
    a("s_and_b32 s46, s12, 15")
    a("v_cmp_eq_u32 s[50:51], s46, v%d" % vRW)
    a("s_waitcnt lgkmcnt(0)")
    for q in range(4):
        xv = XR + q
        a("v_lshlrev_b32 v10, 16, v%d" % xv)
        a("v_and_b32 v11, 0xffff0000, v%d" % xv)
        a("v_add_f32 v10, v10, v%d" % (12 + 2 * q))
        a("v_add_f32 v11, v11, v%d" % (13 + 2 * q))
        a("v_cvt_pk_bf16_f32 v10, v10, v11")
        a("v_cndmask_b32 v%d, v%d, v10, s[50:51]" % (xv, xv))
    omx()
    a.label("L_noy")
    lds_spin(a, "L_pw", vPF, C_PART, 10, (1,), 0)
    stamp(a, 11)
    for t in range(2):
        a("ds_read_b128 %s, v%d offset:%d" % (vr(20 + 4 * t, 4), vPX, 1024 * t))
    a("s_waitcnt lgkmcnt(0)")
    for t in range(2):
        b = ACC[t]
        a("v_pk_add_f32 %s, %s, %s" % (vr(b, 2), vr(b, 2), vr(20 + 4 * t, 2)))
        a("v_pk_add_f32 %s, %s, %s" % (vr(b + 2, 2), vr(b + 2, 2), vr(22 + 4 * t, 2)))
        a("v_cvt_pk_bf16_f32 v%d, v%d, v%d" % (40 + 2 * t, b, b + 1))
        a("v_cvt_pk_bf16_f32 v%d, v%d, v%d" % (41 + 2 * t, b + 2, b + 3))
        a("ds_write_b64 v%d, %s offset:%d" % (vSW, vr(40 + 2 * t, 2), 32 * t))
    a("ds_read_b128 v[20:23], v%d" % vSR)
    a("s_waitcnt lgkmcnt(0)")
    for q in range(4):
        d = PX[0] + 2 * q
        a("v_lshlrev_b32 v%d, 16, v%d" % (10 + 2 * q, 20 + q))
        a("v_and_b32 v%d, 0xffff0000, v%d" % (11 + 2 * q, 20 + q))
        a("v_pk_fma_f32 %s, %s, %s, %s op_sel_hi:[1,0,1]" % (vr(d, 2), vr(10 + 2 * q, 2), vr(GR, 2), vr(d, 2)))
    for q in range(4):
        d = PX[0] + 2 * q
        a("v_cvt_pk_bf16_f32 v%d, v%d, v%d" % (32 + q, d, d + 1))
    a("buffer_store_dwordx4 v[32:35], v%d, s[20:23], s%d offen %s" % (vXO, sXO, OPT["ost"]))
    if OPT["stamp"]:
        stamp(a, 12)
        a("s_waitcnt vmcnt(0)")
        stamp(a, 13)
        stamp_end(a, OPT["stw"], 0)
        stamp_end(a, 10, 2)
    a("s_endpgm")


RETRY = []
GLATE = []


def late_and_slow(a):
    RETRY[0]()
    a.c("---- first two query blocks: key tiles before the sequence start are skipped")
    a.label("L_late")
    a("s_mul_i32 s50, s41, 2304")
    a("v_add_u32 v%d, s50, v%d" % (T + 8, vK))
    a("v_add_u32 v%d, s50, v%d" % (T + 9, vKt))
    a("v_mul_u32_u24 v%d, s41, v%d" % (T + 2, vStep))
    a("v_add_u32 v%d, v%d, v%d" % (vV, vV, T + 2))
    for r in list(range(OO, OO + 16)) + list(range(VF[0], VF[0] + 32)):
        a("v_mov_b32 v%d, 0" % r)
    landed(a, 1, 0)
    stage_spin(a, "L_lt", 0)
    for x in q_reads():
        a(x)
    a("s_waitcnt lgkmcnt(0)")
    lds_inc(a, vC, T, C_B)
    x_loads(a)
    a("s_bitcmp1_b32 s41, 0")
    a("s_cbranch_scc1 L_late1")
    for par in range(2):
        if par:
            a.label("L_late1")
        for x in k_reads(par, T + 8, T + 9, 0):
            a(x)
        for x in k_reads(par + 1, T + 8, T + 9, 0):
            a(x.replace("offset:8", "offset:2312").replace("offset:0", "offset:2304"))
        for x in v_reads(par):
            a(x)
        a("s_waitcnt lgkmcnt(7)")
        a("v_cndmask_b32 v%d, 0, v%d, s[54:55]" % (QT, QT))
        a("v_cndmask_b32 v%d, 0, v%d, s[56:57]" % (QT + 1, QT + 1))
        for x in qk(par):
            a(x)
        a("s_nop 7")
        a("s_nop 3")
        for i0 in range(2 - par, 9, 2):
            a("s_cmp_eq_u32 s41, %d" % i0)
            a("s_cbranch_scc1 L_it%d" % i0)
        a("s_branch L_it%d" % (8 - par))

    a.c("---- two passes over the key tiles with the true row maximum")
    a.label("L_slow")
    vKs, vKts, vM, vD0, vNeg = T + 8, T + 9, T + 10, T + 11, T + 12
    a("v_and_b32 v%d, 31, v0" % T)
    a("v_lshrrev_b32 v%d, 5, v0" % (T + 1))
    a("v_lshlrev_b32 v%d, 2, v%d" % (vD0, T + 1))
    a("v_sub_u32 v%d, v%d, v%d" % (vD0, vD0, T))
    a("v_mov_b32 v%d, 0xff800000" % vNeg)
    a("v_mov_b32 v%d, v%d" % (vM, vNeg))
    a("s_max_i32 s50, s41, 0")
    a("s_sub_u32 s51, 8, s50")
    a("v_mul_u32_u24 v%d, s51, v%d" % (T, vStep))
    a("v_sub_u32 v%d, v%d, v%d" % (vV, vV, T))
    a("s_mul_i32 s51, s50, 2304")
    for r in range(16):
        a("v_mov_b32 v%d, 0" % (OO + r))
    for ps in range(2):
        lab = "L_sp%d" % ps
        a("v_add_u32 v%d, s51, v%d" % (vKs, vK))
        a("v_add_u32 v%d, s51, v%d" % (vKts, vKt))
        a("s_mov_b32 s46, s50")
        a.label(lab)
        for x in k_reads(0, vKs, vKts):
            a(x)
        if ps == 1:
            for x in v_reads(0):
                a(x)
        a("s_mov_b32 s47, -31")
        a("s_mov_b32 s48, 62")
        a("s_cmp_eq_u32 s46, 0")
        a("s_cselect_b32 s47, 1, s47")
        a("s_cselect_b32 s48, 30, s48")
        a("s_cmp_eq_u32 s46, 8")
        a("s_cselect_b32 s48, 31, s48")
        a("s_waitcnt lgkmcnt(0)")
        for x in qk(0):
            a(x)
        a("v_subrev_u32 v%d, s47, v%d" % (T, vD0))
        for r in range(16):
            a("v_add_u32 v%d, %d, v%d" % (T + 1, 8 * (r >> 2) + (r & 3), T))
            a("v_cmp_ge_u32 vcc, s48, v%d" % (T + 1))
            a("v_cndmask_b32 v%d, v%d, v%d, vcc" % (SS[0] + r, vNeg, SS[0] + r))
            if ps == 0:
                a("v_max_f32 v%d, v%d, v%d" % (vM, vM, SS[0] + r))
            else:
                a("v_sub_f32 v%d, v%d, v%d" % (SS[0] + r, SS[0] + r, vM))
                a("v_exp_f32 v%d, v%d" % (SS[0] + r, SS[0] + r))
        if ps == 1:
            for q in range(8):
                a("v_cvt_pk_bf16_f32 v%d, v%d, v%d" % (PP[0] + q, SS[0] + 2 * q, SS[0] + 2 * q + 1))
            for x in pv(0, False):
                a(x)
            a("v_add_u32 v%d, v%d, v%d" % (vV, vV, vStep))
        a("v_add_u32 v%d, 2304, v%d" % (vKs, vKs))
        a("v_add_u32 v%d, 2304, v%d" % (vKts, vKts))
        a("s_add_u32 s46, s46, 1")
        a("s_cmp_lt_u32 s46, 9")
        a("s_nop 7")
        a("s_nop 7")
        a("s_cbranch_scc1 %s" % lab)
        if ps == 0:
            a("v_mov_b32 v%d, v%d" % (T, vM))
            a("v_permlane32_swap_b32 v%d, v%d" % (T, vM))
            a("v_max_f32 v%d, v%d, v%d" % (vM, vM, T))
    a("v_rcp_f32 v%d, v%d" % (T, OO + 12))
    a("s_nop 1")
    a("s_branch L_fin")


def helpers(a):
    a.c("---- helper waves")
    a.label("L_help")
    a("s_cmp_eq_u32 s3, 9")
    a("s_cbranch_scc0 L_help1")
    code_touch(a)
    a.label("L_help1")
    a("v_mov_b32 v3, %d" % CTL)
    for k in range(4):
        a("v_mov_b32 v%d, 0" % (4 + k))
    a("v_lshlrev_b32 v1, 4, v0")
    a("v_add_u32 v2, v1, v3")
    a("s_mov_b64 exec, 0xff")
    a("ds_write_b128 v2, v[4:7]")
    a("s_mov_b64 exec, -1")
    a("s_waitcnt lgkmcnt(0)")
    load_tag(a)
    a("s_barrier")
    a("s_barrier")
    a("s_waitcnt lgkmcnt(0)")
    make_tag(a)
    a.label("L_help2")
    decode2(a)
    a("s_cmp_eq_u32 s3, 8")
    a("s_cbranch_scc1 L_down")
    a("v_lshrrev_b32 v1, 5, v0")
    a("v_bfe_u32 v2, v0, 3, 2")
    a("v_lshrrev_b32 v10, 4, v0")
    a("v_lshlrev_b32 v10, 1, v10")
    a("v_and_b32 v11, 7, v0")
    a("v_xor_b32 v10, v10, v11")
    a("v_lshl_add_u32 v4, v1, 2, v2")
    a("v_mul_u32_u24 v4, 1152, v4")
    a("v_lshl_add_u32 v4, v10, 4, v4")
    a("v_mul_u32_u24 v5, 72, v1")
    a("v_add_u32 v5, v5, v2")
    a("v_mul_u32_u24 v5, 1152, v5")
    a("v_lshl_add_u32 v5, v10, 4, v5")
    a("s_sub_u32 s36, s3, 9")
    a("s_mul_i32 s37, s36, %d" % (20 * 1152))
    a("s_mul_i32 s43, s36, %d" % (144 * 1152))
    a("s_lshl_b32 s38, s36, 10")
    a("s_add_u32 s38, s38, %d" % WO)
    a("s_lshl_b32 s39, s53, 7")
    a("s_sub_u32 s42, %d, s39" % (576 * 1152))
    srd_off(a, 16, 28, "s39", "s42")
    srd_off(a, 24, 8, L.WS_O, 128 * 18432)
    a("v_mov_b32 v%d, %d" % (vC, CTL))
    a("s_sub_u32 s40, s3, 5")
    out_setup(a, 40)
    a("s_setprio %d" % OPT["pr3"])
    a("s_cmp_ge_u32 s2, 192")
    a("s_cbranch_scc1 L_wo_go")
    for k in range(9):
        a("s_barrier")
    a.label("L_wo_go")
    a("s_cmp_eq_u32 s3, 11")
    a("s_cbranch_scc1 L_ctl")
    a("s_cmp_ge_u32 s52, 26")
    a("s_cbranch_scc1 L_end")
    if OPT["woe"]:
        a("s_cmp_ge_u32 s2, 192")
        a("s_cbranch_scc1 L_wo_e_d")
        lds_spin(a, "L_wo_e", 3, C_FI, 10, (8,), 0)
    stamp(a, 5)
    for m in range(36):
        if m == OPT["woe"]:
            stage_spin(a, "L_wo_w", 0, 3, 10, 2)
        st, sec = m >> 1, m & 1
        a("s_add_u32 m0, s38, %d" % (2048 * m))
        if st < 16:
            a("s_add_u32 s40, s37, %d" % ((36 * st + 8 * sec) * 1152))
            a("buffer_load_dwordx4 v4, s[16:19], s40 offen lds")
        else:
            a("s_add_u32 s40, s43, %d" % ((288 * (st - 16) + 36 * sec + 16) * 1152))
            a("buffer_load_dwordx4 v5, s[16:19], s40 offen lds")
        if OPT["wth"] and m >= OPT["wth"] - 1:
            a("s_waitcnt vmcnt(%d)" % (OPT["wth"] - 1))
    x_loads(a)
    a("s_waitcnt vmcnt(1)")
    stamp(a, 6)
    lds_inc(a, 3, 4, C_WO)
    a("s_setprio 0")
    a("s_branch L_out")
    a.c("---- wave 11: flags, all-ones fill, routed update")
    a.label("L_ctl")
    a("v_lshlrev_b32 v8, 7, v0")
    a("v_add_u32 v9, %d, v8" % (L.WS_FLAG + F_PA * 128))
    a("s_mul_i32 s46, s52, 5")
    a("s_lshr_b32 s46, s46, 3")
    a("s_min_u32 s46, s46, 14")
    a("s_lshl_b32 s46, s46, 11")
    a("s_add_u32 s46, s46, %d" % (L.WS_FLAG + F_O * 128))
    a("v_add_u32 v8, s46, v8")
    a("s_lshl_b32 s46, s32, 4")
    a("s_add_u32 s46, s46, s31")
    a("s_lshl_b32 s46, s46, 7")
    a("s_add_u32 s46, s46, %d" % (L.WS_FLAG + F_O * 128))
    a("v_mov_b32 v14, s46")
    a("v_mov_b32 v15, s%d" % TAG)
    a("s_cmp_ge_u32 s2, 192")
    a("s_cbranch_scc1 L_ct_0")
    qpoll(a, 3, "L_qp1", True)
    a.label("L_ct_0")
    AUXLATE = OPT["auxp"]
    def aux():
        flag_poll(a, "L_pap", 9, 4, "s%d" % TAG, 64, 8, 3)
        a("v_mov_b32 v10, v5")
        a("v_mov_b32 v11, v6")
        a("v_mov_b32 v4, 1")
        a("ds_write_b64 v3, v[10:11] offset:%d" % C_IDX)
        a("ds_write_b32 v3, v4 offset:%d" % C_PA)
        srd_off(a, 16, 8, L.WS_G, 8192)
        a("s_mul_i32 s40, s52, 320")
        a("v_lshlrev_b32 v4, 2, v0")
        a("buffer_load_dword v5, v4, s[16:19], s40 offen sc1")
        a("buffer_load_dword v6, v4, s[16:19], s40 offen offset:256 sc1")
        a("v_add_u32 v4, %d, v4" % GB)
        GLATE.append(1)
        stamp(a, 5)

    if not AUXLATE:
        aux()
    a("v_bfe_u32 v20, v0, 4, 1")
    a("v_mul_u32_u24 v20, 18432, v20")
    a("v_and_b32 v21, 15, v0")
    a("v_lshl_add_u32 v20, v21, 4, v20")
    a("v_lshrrev_b32 v21, 5, v0")
    a("v_lshl_add_u32 v22, v21, 2, v20")
    a("v_lshl_add_u32 v21, v21, 8, v20")
    for k in range(4):
        a("v_mov_b32 v%d, -1" % (24 + k))
    a("s_mul_i32 s54, s32, %d" % (8 * 18432))
    a("s_lshl_b32 s55, s31, 10")
    a("s_add_u32 s55, s55, s54")
    a("s_lshr_b32 s56, s31, 1")
    a("s_lshl_b32 s56, s56, 8")
    a("s_and_b32 s57, s31, 1")
    a("s_lshl_b32 s57, s57, 3")
    a("s_add_u32 s56, s56, s57")
    a("s_add_u32 s56, s56, s54")
    a("s_add_u32 s56, s56, 16384")
    if OPT["pearly"]:
        lds_spin(a, "L_ct_p", 3, C_1, 10, (8, 1), 0)
        a("s_sleep %d" % OPT["pearly"])
    else:
        stage_spin(a, "L_ct_p", 0, 3, 10, 0)
    for j in range(4):
        a("buffer_store_dword v24, v22, s[24:27], s56 offen sc1")
        a("buffer_store_dwordx4 v[24:27], v21, s[24:27], s55 offen sc1")
        a("buffer_store_dwordx4 v[24:27], v21, s[24:27], s55 offen offset:512 sc1")
        a("s_add_u32 s55, s55, %d" % (2 * 18432))
        a("s_add_u32 s56, s56, %d" % (2 * 18432))
    a("v_mov_b32 v4, 1")
    a("s_waitcnt vmcnt(0)")
    a("ds_write_b32 v3, v4 offset:%d" % C_C)
    a("s_mov_b64 exec, 1")
    a("global_store_dword v14, v15, s[8:9] sc1")
    a("s_mov_b64 exec, -1")
    stamp(a, 6)
    lds_spin(a, "L_ct_q", 3, C_B, 10, (8,), 1)
    if AUXLATE:
        aux()
    else:
        a("s_sleep %d" % OPT["slp3"])
    flag_poll(a, "L_op", 8, 12, "s%d" % TAG, 32, 2)
    a("ds_write_b32 v4, v5")
    a("ds_write_b32 v4, v6 offset:256")
    lds_inc(a, 3, 10, C_GO2)
    stamp(a, 7)
    stamp_end(a, 11 if OPT["st11"] else 99, 3)
    a("ds_read_b64 v[10:11], v3 offset:%d" % C_IDX)
    a("s_waitcnt lgkmcnt(0)")
    a("v_readfirstlane_b32 s12, v10")
    a("v_readfirstlane_b32 s13, v11")
    a("s_mul_i32 s46, s52, 80")
    a("s_sub_u32 s46, s12, s46")
    a("s_cmp_lt_u32 s46, 80")
    a("s_cbranch_scc0 L_end")
    a("v_lshlrev_b32 v4, 7, v0")
    a("v_add_u32 v4, %d, v4" % (L.WS_FLAG + F_Y * 128))
    srd_off(a, 16, 8, L.WS_YP, 16 * 2304)
    a("v_lshrrev_b32 v6, 4, v0")
    a("v_mul_u32_u24 v6, 2304, v6")
    a("v_and_b32 v7, 15, v0")
    a("v_lshlrev_b32 v7, 4, v7")
    a("v_add_u32 v6, v6, v7")
    a("v_add_u32 v7, %d, v7" % YB)
    a("s_lshl_b32 s40, s53, 8")
    flag_poll(a, "L_yp", 4, 5, "12", 16, 2)
    for i in range(4):
        a("buffer_load_dwordx4 %s, v6, s[16:19], s40 offen sc1" % vr(8 + 4 * i, 4))
        a("s_add_u32 s40, s40, %d" % (4 * 2304))
    a("s_waitcnt vmcnt(0)")
    for i in range(1, 4):
        a("v_pk_add_f32 v[8:9], v[8:9], %s" % vr(8 + 4 * i, 2))
        a("v_pk_add_f32 v[10:11], v[10:11], %s" % vr(10 + 4 * i, 2))
    for k in range(4):
        a("v_mov_b32 v20, v%d" % (8 + k))
        a("v_permlane32_swap_b32 v20, v%d" % (8 + k))
        a("v_add_f32 v%d, v%d, v20" % (8 + k, 8 + k))
        a("v_mov_b32 v20, v%d" % (8 + k))
        a("v_permlane16_swap_b32 v20, v%d" % (8 + k))
        a("v_add_f32 v%d, v%d, v20" % (8 + k, 8 + k))
        bf16_round(a, 8 + k, 8 + k)
        a("v_mul_f32 v%d, s13, v%d" % (8 + k, 8 + k))
        bf16_round(a, 8 + k, 8 + k)
    a("v_mov_b32 v12, 1")
    a("ds_write_b128 v7, v[8:11]")
    a("ds_write_b32 v3, v12 offset:%d" % C_YRDY)
    a("s_cmp_eq_u32 s53, 0")
    a("s_cbranch_scc0 L_end")
    a("v_mov_b32 v4, %d" % L.WS_EPOCH)
    a("v_mov_b32 v5, s%d" % TAG)
    a("s_mov_b64 exec, 1")
    a("global_store_dword v4, v5, s[8:9]")
    a("s_endpgm")

    a.c("---- wave 8: down projection")
    a.label("L_down")
    a("s_cmp_ge_u32 s2, 192")
    a("s_cbranch_scc1 L_end")
    DW, DA = 20, 128
    a("v_lshrrev_b32 v2, 3, v0")
    a("v_and_b32 v10, 7, v0")
    a("v_mul_u32_u24 v16, 1152, v2")
    a("v_lshl_add_u32 v16, v10, 4, v16")
    a("s_mul_i32 s36, s2, 24")
    a("v_mul_u32_u24 v12, %d, v10" % (4608 * 16))
    a("v_add_u32 v11, s36, v2")
    a("v_lshl_add_u32 v17, v11, 4, v12")
    a("v_cmp_gt_u32 s[56:57], 7, v10")
    a("s_mul_i32 s37, s2, %d" % (24 * 1152))
    a("v_and_b32 v1, 1, v0")
    a("v_lshlrev_b32 v1, 4, v1")
    sel_masks(a, 44, 11)
    a("v_lshrrev_b32 v11, 5, v0")
    a("v_bfe_u32 v12, v0, 3, 1")
    a("v_cmp_eq_u32 s[52:53], v11, v12")
    a("v_mul_u32_u24 v12, 2304, v12")
    a("v_bfe_u32 v11, v0, 4, 1")
    a("v_lshl_add_u32 v12, v11, 4, v12")
    a("v_lshl_add_u32 v12, v10, 5, v12")
    a("v_add_u32 v164, %d, v12" % HP)
    a("v_lshlrev_b32 v165, 2, v0")
    a("v_lshl_add_u32 v166, v10, 3, v2")
    a("v_lshlrev_b32 v166, 2, v166")
    a("v_add_u32 v166, %d, v166" % HP)
    a("v_cmp_eq_u32 s[58:59], 1, v10")
    a("v_cmp_eq_u32 s[54:55], 2, v10")
    a("s_and_b32 s38, s2, 15")
    a("s_mul_i32 s39, s38, 2304")
    a("s_add_u32 s39, s39, %d" % L.WS_YP)
    a("v_add_u32 v165, s39, v165")
    a("s_lshl_b32 s38, s38, 7")
    a("s_add_u32 s38, s38, %d" % (L.WS_FLAG + F_Y * 128))
    srd_off(a, 16, 14, "s37", 24 * 1152)
    srd_off(a, 20, 8, L.WS_PA, 7 * 4608 * 16)
    def dloads(ts=(0, 1, 2)):
        for t in (() if OPT["nodown"] else ts):
            a("s_movk_i32 s40, %d" % (9216 * t))
            for cg in range(9):
                a("buffer_load_dwordx4 %s, v16, s[16:19], s40 offen offset:%d %s" % (vr(DW + 4 * (9 * t + cg), 4), 128 * cg, "" if OPT["dtouch"] else "nt"))

    for k in range(2, 11):
        if OPT["dsplit"]:
            if k in (8, 9, 10):
                dloads((k - 8,))
        elif k == OPT["dpos"]:
            dloads()
        a("s_barrier")
    if OPT["dpos"] == -1:
        a("s_setprio 3")
        stage_spin(a, "L_dn_w2", 0, 3, 10, 0)
        dloads()
    elif OPT["dpos"] == -2:
        a("s_setprio 3")
        lds_spin(a, "L_dn_w2", 3, C_WO, 10, (2,), 2)
        dloads()
    elif OPT["dpos"] == -3:
        a("s_setprio 3")
        lds_spin(a, "L_dn_w2", 3, C_1, 10, (8, 1), 0)
        a("s_sleep 8")
        dloads()
    elif OPT["w8e"] == 2:
        lds_spin(a, "L_dn_w2", 3, C_1, 10, (8, 1), 2)
        a("s_sleep 6")
    elif OPT["w8e"]:
        lds_spin(a, "L_dn_w2", 3, C_1, 10, (8,), 2)
    else:
        stage_spin(a, "L_dn_w2", 0, 3, 10, 2)
    stamp(a, 5)
    a("s_setprio %d" % OPT["pr1"])
    a("s_mov_b32 s60, 0x40000")
    a.label("L_dn_pa")
    a("buffer_load_dwordx3 v[4:6], v17, s[20:23], 0 offen sc1")
    a("buffer_load_dwordx3 v[8:10], v17, s[20:23], 0 offen offset:128 sc1")
    a("buffer_load_dwordx3 v[160:162], v17, s[20:23], 0 offen offset:256 sc1")
    a("s_waitcnt vmcnt(0)")
    a("v_cmp_ne_u32 vcc, s%d, v6" % TAG)
    a("v_cmp_ne_u32 s[40:41], s%d, v10" % TAG)
    a("v_cmp_ne_u32 s[42:43], s%d, v162" % TAG)
    a("s_or_b64 vcc, vcc, s[40:41]")
    a("s_or_b64 vcc, vcc, s[42:43]")
    a("s_and_b64 vcc, vcc, s[56:57]")
    a("s_cmp_eq_u64 vcc, 0")
    a("s_cbranch_scc1 L_dn_pb")
    a("s_sleep 8")
    a("s_sub_u32 s60, s60, 1")
    a("s_cbranch_scc0 L_dn_pa")
    a.label("L_dn_pb")
    stamp(a, 8)
    a("v_mov_b32 v6, v8")
    a("v_mov_b32 v7, v9")
    a("v_mov_b32 v8, v160")
    a("v_mov_b32 v9, v161")
    sum8(a, (4, 5, 6, 7, 8, 9))
    a("v_cndmask_b32 v4, v4, v6, s[58:59]")
    a("v_cndmask_b32 v5, v5, v7, s[58:59]")
    a("v_cndmask_b32 v4, v4, v8, s[54:55]")
    a("v_cndmask_b32 v5, v5, v9, s[54:55]")
    bf16_round(a, 4, 4)
    bf16_round(a, 5, 5)
    sigmoid(a, 10, 4)
    a("v_mul_f32 v4, v4, v10")
    bf16_round(a, 4, 4)
    a("v_mul_f32 v4, v4, v5")
    a("v_cvt_pk_bf16_f32 v4, v4, v4")
    a("v_and_b32 v4, 0xffff, v4")
    a("v_mov_b32_dpp v4, v4 row_shr:4 row_mask:0xf bank_mask:0xa")
    for t in range(3):
        a("v_mov_b32_dpp v%d, v4 quad_perm:[%d,%d,%d,%d] row_mask:0xf bank_mask:0xf" % (6 + t, t, t, t, t))
    for t in range(3):
        a("v_lshlrev_b32 v%d, v1, v%d" % (6 + t, 6 + t))
    for t in range(3):
        selector(a, 12, 6 + t, 44)
        for cg in range(9):
            d = vr(DA + 4 * cg, 4)
            a("v_mfma_f32_16x16x32_bf16 %s, %s, v[12:15], %s" % (d, vr(DW + 4 * (9 * t + cg), 4), "0" if t == 0 else d))
    a("s_mov_b64 exec, s[52:53]")
    for cg in range(9):
        a("ds_write_b128 v164, %s offset:%d" % (vr(DA + 4 * cg, 4), 256 * cg))
    a("s_mov_b64 exec, -1")
    for cg in range(9):
        a("ds_read2st64_b32 %s, v166 offset0:%d offset1:%d" % (vr(20 + 2 * cg, 2), cg, cg + 9))
    if OPT["atw"]:
        lds_spin(a, "L_dn_at", 3, C_WO, 10, (2,), 2)
    else:
        stage_spin(a, "L_dn_at", 0, 3, 10, 2)
    lds_spin(a, "L_dn_ax", 3, C_PA, 10, (1,), 1)
    for cg in range(9):
        a("v_add_f32 v%d, v%d, v%d" % (20 + 2 * cg, 20 + 2 * cg, 21 + 2 * cg))
        if not OPT["noat"]:
            a("global_atomic_add_f32 v165, v%d, s[8:9] offset:%d" % (20 + 2 * cg, 256 * cg))
    a("v_mov_b32 v4, s38")
    a("v_mov_b32 v5, 1")
    a("s_waitcnt vmcnt(0)")
    stamp(a, 7)
    a("s_mov_b64 exec, 1")
    a("global_atomic_add v4, v5, s[8:9] sc1")
    stamp_end(a, 8, 1)


def kf(a):
    a.label(NAME)
    a("s_cmp_ge_u32 s2, 256")
    a("s_cbranch_scc1 L_end")
    stamp_init(a)
    stamp(a, 0)
    a("s_load_dwordx4 s[4:7], s[0:1], 0")
    a("s_load_dwordx2 s[8:9], s[0:1], 88")
    a("s_load_dwordx2 s[10:11], s[0:1], 72")
    a("s_load_dwordx2 s[14:15], s[0:1], 56")
    a("s_load_dwordx2 s[28:29], s[0:1], 16")
    a("v_lshrrev_b32 v1, 6, v0")
    a("v_and_b32 v0, 63, v0")
    a("v_readfirstlane_b32 s3, v1")
    a("s_and_b32 s30, s2, 3")
    a("s_bfe_u32 s31, s2, 0x10002")
    a("s_lshr_b32 s32, s2, 3")
    a("s_cmp_ge_u32 s32, 24")
    a("s_cbranch_scc1 L_sp")
    a("s_cmp_ge_u32 s3, 8")
    a("s_cbranch_scc1 L_help")
    gemm_phase(a)
    attention_phase(a)
    out_phase(a)
    late_and_slow(a)
    spare_phase(a)
    helpers(a)
    a.label("L_end")
    a("s_endpgm")
```

```python
from asmdsl import vr, sr
import layout as L
from common import *
from k2 import (KB, VB, QB, ONES, vK, vKt, vV, vStep, QM, QT, MSK, KF, VF, PP, SS, OO, T,
                k_reads, v_reads, qk, pv)

NAME = "gated_mix__sliding_block__moe_arch_mod__prompt_kernel"
SLOT = 34816
IMG = SLOT
WO = 66560
CTL = 149568
YB = 149696
HP = 150016
YT = 154624
XS = 156672
KF_LDS = 162304
PSLOT = (QB, QB + 4096, 140288, 144384, 158208)
KF_VGPR = 168
PART = 0
STG = 20480
XR, GR = 128, 136
vC = 154
TAG = 65
C_O, C_GO2, C_A, C_WO, C_PART, C_YRDY, C_B, C_1, C_GO1, C_C, C_PA, C_IDX, C_RSEL = 0, 4, 8, 12, 88, 32, 36, 40, 44, 48, 52, 56, 60
C_KMAX, C_KCNT, C_XS, C_GD, C_RED, C_RED2, C_FI = 64, 68, 72, 76, 80, 84, 16
F_Q, F_O, F_PA, F_Y = 0, 192, 448, 512


def lds_spin(a, name, addr_v, off, regs, conds, slp=1):
    n = len(conds)
    a("s_mov_b32 s60, 0x200000")
    a.label(name)
    a(("ds_read_b64 %s, v%d offset:%d" % (vr(regs, 2), addr_v, off)) if n == 2 else
      ("ds_read_b32 v%d, v%d offset:%d" % (regs, addr_v, off)))
    a("s_waitcnt lgkmcnt(0)")
    a("v_readfirstlane_b32 s61, v%d" % regs)
    if n == 2:
        a("v_readfirstlane_b32 s62, v%d" % (regs + 1))
        a("s_lshl_b32 s62, s62, 8")
        a("s_or_b32 s61, s61, s62")
        a("s_cmp_eq_u32 s61, %d" % (conds[0] | (conds[1] << 8)))
    else:
        a("s_cmp_eq_u32 s61, %d" % conds[0])
    a("s_cbranch_scc1 %s_d" % name)
    if slp:
        a("s_sleep %d" % slp)
    a("s_sub_u32 s60, s60, 1")
    a("s_cmp_lg_u32 s60, 0")
    a("s_cbranch_scc1 %s" % name)
    a.label(name + "_d")


def stage_spin(a, name, stage, vc=vC, T=T, slp=0):
    a("s_mov_b32 s60, 0x200000")
    a.label(name)
    a("ds_read_b32 v%d, v%d offset:%d" % (T, vc, C_A))
    a("s_waitcnt lgkmcnt(0)")
    a("v_readfirstlane_b32 s61, v%d" % T)
    a("s_bitcmp1_b32 s61, %d" % (8 * stage + 3))
    a("s_cbranch_scc1 %s_d" % name)
    if slp:
        a("s_sleep %d" % slp)
    a("s_sub_u32 s60, s60, 1")
    a("s_cmp_lg_u32 s60, 0")
    a("s_cbranch_scc1 %s" % name)
    a.label(name + "_d")


def landed(a, inc, vm):
    a("v_mov_b32 v%d, %s" % (T, hex(inc)))
    a("s_waitcnt vmcnt(%d)" % vm)
    a("s_mov_b64 exec, 1")
    a("ds_add_u32 v%d, v%d offset:%d" % (vC, T, C_A))
    a("s_mov_b64 exec, -1")


def poison(a):
    if OPT["nopois"]:
        a("s_nop 0")
        a("buffer_load_dword v155, v152, s[24:27], s59 offen")
        a("buffer_load_dword v155, v152, s[24:27], s59 offen")
        return
    for k in range(4):
        a("v_mov_b32 v%d, -1" % (120 + k))
    a("buffer_store_dwordx4 %s, v153, s[24:27], s58 offen sc1" % vr(120, 4))
    a("s_mov_b32 exec_hi, 0")
    a("buffer_store_dword v%d, v152, s[24:27], s59 offen sc1" % 120)
    a("s_mov_b32 exec_hi, -1")


def tail_touch(a):
    a("buffer_load_dword v155, v152, s[24:27], s59 offen")


def flag_poll(a, name, voff, vt, want, lanes, slp=1, width=1):
    a("s_mov_b64 exec, %s" % ("-1" if lanes == 64 else hex((1 << lanes) - 1)))
    a("s_mov_b32 s60, 0x40000")
    a.label(name)
    a("global_load_dword%s %s, v%d, s[8:9] sc1" % ("" if width == 1 else "x%d" % width, vr(vt, width), voff))
    a("s_waitcnt vmcnt(0)")
    a("v_cmp_eq_u32 vcc, %s, v%d" % (want, vt))
    a("s_cmp_eq_u64 vcc, exec")
    a("s_cbranch_scc1 %s_d" % name)
    if slp:
        a("s_sleep %d" % slp)
    a("s_sub_u32 s60, s60, 1")
    a("s_cmp_lg_u32 s60, 0")
    a("s_cbranch_scc1 %s" % name)
    a.label(name + "_d")
    a("s_mov_b64 exec, -1")


def lds_inc(a, vz, vt, off, rtn=False):
    a("v_mov_b32 v%d, 1" % vt)
    a("s_mov_b64 exec, 1")
    if rtn:
        a("ds_add_rtn_u32 v%d, v%d, v%d offset:%d" % (vt, vz, vt, off))
    else:
        a("ds_add_u32 v%d, v%d offset:%d" % (vz, vt, off))
    a("s_mov_b64 exec, -1")


def load_tag(a):
    a("s_mov_b32 s64, %d" % L.WS_EPOCH)
    a("s_load_dword s%d, s[8:9], s64" % TAG)


def make_tag(a):
    a("s_mul_i32 s%d, s%d, 0x9e3779b1" % (TAG, TAG))
    a("s_add_u32 s%d, s%d, 0x7f4a7c15" % (TAG, TAG))


def copy_scalars(a):
    a("s_mul_i32 s55, s34, %d" % (4 * L.PAIR_BYTES))
    a("s_mul_i32 s56, s35, 9216")
    a("s_add_u32 s55, s55, s56")
    a("s_lshl_b32 s56, s3, 10")
    a("s_add_u32 s55, s55, s56")
    for j in range(5):
        a("s_add_u32 s57, s3, %d" % (8 * j))
        a("s_mul_i32 s57, s57, 57")
        a("s_lshr_b32 s57, s57, 9")
        a("s_mul_i32 s57, s57, %d" % (L.PAIR_BYTES - 9216))
        a("s_add_u32 s57, s57, s55")
        a("s_add_u32 s%d, s57, %d" % (50 + j, 8192 * j))
    a("s_mul_i32 s58, s35, 12")
    a("s_add_u32 s58, s58, s34")
    a("s_lshl_b32 s58, s58, 7")
    a("s_add_u32 s58, s58, %d" % (L.WS_FLAG + F_Q * 128))


def decode2(a):
    if OPT["amap"]:
        a("s_and_b32 s31, s2, 7")
        a("s_lshl_b32 s31, s31, 1")
        a("s_bfe_u32 s32, s2, 0x10003")
        a("s_add_u32 s31, s31, s32")
        a("s_lshr_b32 s30, s31, 2")
        a("s_lshr_b32 s32, s2, 4")
        a("s_add_u32 s32, s32, 4")
        a("s_and_b32 s32, s32, 15")
    else:
        a("s_and_b32 s30, s2, 3")
        a("s_bfe_u32 s33, s2, 0x10002")
        a("s_bfe_u32 s32, s2, 0x20003")
        a("s_lshl_b32 s31, s30, 2")
        a("s_add_u32 s31, s31, s32")
        a("s_lshl_b32 s32, s33, 3")
        a("s_lshr_b32 s34, s2, 5")
        if OPT["light"]:
            a("s_add_u32 s34, s34, 2")
            a("s_and_b32 s34, s34, 7")
        a("s_add_u32 s32, s32, s34")
    a("s_lshr_b32 s33, s2, 3")
    a("s_mul_i32 s34, s33, 57")
    a("s_lshr_b32 s34, s34, 9")
    a("s_mul_i32 s53, s34, 9")
    a("s_sub_u32 s53, s33, s53")
    a("s_lshl_b32 s52, s34, 3")
    a("s_and_b32 s34, s2, 7")
    a("s_add_u32 s52, s52, s34")
    a("s_sub_u32 s33, s2, 216")
    a("s_mul_i32 s34, s33, 57")
    a("s_lshr_b32 s34, s34, 9")
    a("s_mul_i32 s35, s34, 9")
    a("s_sub_u32 s33, s33, s35")
    a("s_add_u32 s34, s34, 24")
    a("s_cmp_ge_u32 s2, 216")
    a("s_cselect_b32 s52, s34, s52")
    a("s_cselect_b32 s53, s33, s53")


def qpoll(a, vc, name, own, r=16):
    R = dict(a=r, b=r + 1, c=r + 2)
    a("v_add_u32 v%(a)d, 2, v0" % R)
    a("v_mul_u32_u24 v%(b)d, 43, v%(a)d" % R)
    a("v_lshrrev_b32 v%(b)d, 7, v%(b)d" % R)
    a("v_mul_u32_u24 v%(c)d, 3, v%(b)d" % R)
    a("v_sub_u32 v%(a)d, v%(a)d, v%(c)d" % R)
    a("s_sub_u32 s35, s32, 2")
    a("v_add_u32 v%(a)d, s35, v%(a)d" % R)
    a("v_max_i32 v%(a)d, 0, v%(a)d" % R)
    a("v_mul_u32_u24 v%(a)d, 12, v%(a)d" % R)
    a("v_lshl_add_u32 v%(a)d, v%(b)d, 2, v%(a)d" % R)
    a("v_add_u32 v%(a)d, s30, v%(a)d" % R)
    a("v_lshlrev_b32 v%(a)d, 7, v%(a)d" % R)
    a("v_add_u32 v%d, %d, v%d" % (r, L.WS_FLAG + F_Q * 128, r))
    if own:
        lds_spin(a, name + "w", vc, C_1, r + 2, (8,), 0)
    if OPT["qdel"]:
        a("s_sleep %d" % OPT["qdel"])
    if OPT["qpipe"] and own:
        NP = OPT["qpipe"]
        a("s_mov_b64 exec, 0x7f")
        a("s_mov_b32 s60, 0x20000")
        for k in range(NP - 1):
            a("global_load_dword v%d, v%d, s[8:9] sc1" % (r + 3 + k, r))
            a("s_sleep 1")
        a.label(name)
        for k in range(NP):
            a("global_load_dword v%d, v%d, s[8:9] sc1" % (r + 3 + (k + NP - 1) % NP, r))
            a("s_waitcnt vmcnt(%d)" % (NP - 1))
            a("v_cmp_eq_u32 vcc, s%d, v%d" % (TAG, r + 3 + k))
            a("s_cmp_eq_u64 vcc, exec")
            a("s_cbranch_scc1 %s_d" % name)
        a("s_sub_u32 s60, s60, 1")
        a("s_cbranch_scc0 %s" % name)
        a.label(name + "_d")
        a("s_mov_b64 exec, -1")
    else:
        flag_poll(a, name, r, r + 1, "s%d" % TAG, 7, OPT["qslp"])
    lds_inc(a, vc, r + 2, C_GO1)


def code_touch(a):
    if not OPT["ctouch"]:
        return
    lab = a.newlabel("pc")
    a("s_getpc_b64 s[20:21]")
    a.label(lab)
    a("s_sub_u32 s20, s20, %s-%s" % (lab, NAME))
    a("s_subb_u32 s21, s21, 0")
    a("s_lshr_b32 s22, s2, 3")
    a("s_mul_i32 s22, s22, %d" % (12 * 128))
    a("v_lshlrev_b32 v20, 7, v0")
    a("v_add_u32 v20, s22, v20")
    a("v_min_u32 v20, L_end-%s, v20" % NAME)
    a("s_mov_b64 exec, 0xfff")
    a("global_load_dword v21, v20, s[20:21]")
    a("s_mov_b64 exec, -1")


def gemm_phase(a):
    if OPT["gmap"]:
        a("s_lshr_b32 s33, s32, 1")
        a("s_mul_i32 s33, s33, 43")
        a("s_lshr_b32 s33, s33, 7")
        a("s_mul_i32 s34, s33, 6")
        a("s_sub_u32 s34, s32, s34")
        a("s_and_b32 s35, s34, 1")
        a("s_lshr_b32 s34, s34, 1")
        a("s_lshl_b32 s34, s34, 2")
        a("s_add_u32 s34, s34, s35")
        a("s_and_b32 s35, s2, 1")
        a("s_lshl_b32 s35, s35, 1")
        a("s_add_u32 s34, s34, s35")
        a("s_bfe_u32 s35, s2, 0x20001")
        a("s_lshl_b32 s35, s35, 2")
        a("s_add_u32 s35, s35, s33")
    else:
        a("s_mul_i32 s33, s32, 43")
        a("s_lshr_b32 s33, s33, 7")
        a("s_mul_i32 s34, s33, 3")
        a("s_sub_u32 s34, s32, s34")
        a("s_lshl_b32 s34, s34, 2")
        a("s_add_u32 s34, s34, s30")
        a("s_lshl_b32 s35, s31, 3")
        a("s_add_u32 s35, s35, s33")
    a("s_cmp_lt_u32 s3, 4")
    a("s_cbranch_scc1 L_comp")
    a("s_cmp_lt_u32 s3, 6")
    a("s_cbranch_scc0 L_ldw")
    a("s_sub_u32 s36, s3, 4")
    SH = 4 if OPT["gmap"] else 3
    a("v_and_b32 v7, %d, v0" % ((1 << SH) - 1))
    a("s_lshl_b32 s41, s33, %d" % SH)
    a("s_lshl_b32 s42, s36, 6")
    a("s_add_u32 s41, s41, s42")
    a("v_add_u32 v7, s41, v7")
    a("v_mul_u32_u24 v7, 3456, v7")
    a("v_lshrrev_b32 v1, %d, v0" % SH)
    a("v_lshl_add_u32 v7, v1, 7, v7")
    a("v_lshrrev_b32 v1, 3, v0")
    a("s_mul_i32 s39, s35, %d" % (128 * 1152))
    a("s_mul_i32 s46, s34, 288")
    a("s_and_b32 s46, s46, 0xffffff80")
    a("s_sub_u32 s47, %d, s46" % (576 * 3456))
    a("v_mul_u32_u24 v1, 1152, v1")
    a("v_lshrrev_b32 v2, 4, v0")
    a("v_and_b32 v3, 7, v0")
    a("v_xor_b32 v3, v3, v2")
    a("v_lshl_add_u32 v4, v3, 4, v1")
    a("v_xor_b32 v3, 4, v3")
    a("v_lshl_add_u32 v5, v3, 4, v1")
    a("v_add_u32 v5, %d, v5" % (8 * 1152))
    a("s_mul_i32 s37, s36, %d" % (64 * 1152))
    a("s_lshl_b32 s38, s36, 13")
    a("s_waitcnt lgkmcnt(0)")
    srd_off(a, 20, 6, "s46", "s47")
    if OPT["gmap"]:
        a("s_mov_b32 exec_hi, 0xffff")
    else:
        a("s_mov_b64 exec, 0xffffff")
    a("buffer_load_dword v20, v7, s[20:23], 0 offen")
    a("s_mov_b64 exec, -1")
    srd_off(a, 16, 4, "s39", 128 * 1152)
    if OPT["nox0"]:
        a("s_mul_i32 s41, s33, 6")
        a("s_sub_u32 s41, s32, s41")
        a("s_mul_i32 s41, s41, 22")
        a("v_add_u32 v6, s41, v0")
        a("v_mul_u32_u24 v6, 1152, v6")
        a("s_lshl_b32 s41, s36, 7")
        a("s_mov_b64 exec, 0x3fffff")
        a("buffer_load_dword v21, v6, s[16:19], s41 offen")
        a("s_mov_b64 exec, -1")

    def x_chunk(c):
        for i in range(8):
            a("s_add_u32 m0, s38, %d" % ((c % 4) * SLOT + i * 1024))
            a("s_add_u32 s40, s37, %d" % ((i >> 1) * 16 * 1152 + c * 128))
            a("buffer_load_dwordx4 v%d, s[16:19], s40 offen lds" % (4 + (i & 1)))

    if not OPT["nox0"]:
        x_chunk(0)
    load_tag(a)
    copy_scalars(a)
    stamp(a, 1)
    a("s_waitcnt vmcnt(%d) lgkmcnt(0)" % (0 if OPT["nox0"] else 8))
    stamp(a, 2)

    def loader_loop(fn, n, first, ahead0):
        LA = OPT["la"]
        a("s_barrier")
        stamp(a, 13)
        nxt = first
        while nxt < ahead0:
            fn(nxt)
            nxt += 1
        stamp(a, 14)
        for c in range(9):
            a("s_waitcnt vmcnt(%d)" % (n * (nxt - 1 - c)))
            a("s_barrier")
            while nxt <= c + LA and nxt < 9:
                fn(nxt)
                nxt += 1

    loader_loop(x_chunk, 8, 0 if OPT["nox0"] else 1, 2)
    a("s_branch L_copy")
    a.c("---- W loaders (waves 6,7)")
    a.label("L_ldw")
    a("s_movk_i32 s41, 3641")
    for i in range(9):
        a("v_add_u32 v1, %d, v0" % (64 * i))
        a("v_mul_u32_u24 v2, s41, v1")
        a("v_lshrrev_b32 v2, 16, v2")
        a("v_mul_u32_u24 v3, 18, v2")
        a("v_sub_u32 v3, v1, v3")
        a("v_bfe_u32 v1, v2, 2, 2")
        a("v_lshlrev_b32 v1, 3, v1")
        a("v_lshrrev_b32 v13, 4, v2")
        a("v_lshl_add_u32 v1, v13, 2, v1")
        a("v_and_b32 v2, 3, v2")
        a("v_add_u32 v1, v1, v2")
        a("v_mul_u32_u24 v1, 3456, v1")
        a("v_lshl_add_u32 v%d, v3, 4, v1" % (4 + i))
        if i == 2:
            a("s_waitcnt lgkmcnt(0)")
            load_tag(a)
    a("s_sub_u32 s36, s3, 6")
    a("s_mul_i32 s37, s36, %d" % (32 * 3456))
    a("s_mul_i32 s38, s36, 9216")
    a("s_mul_i32 s39, s34, 288")
    a("s_sub_u32 s42, %d, s39" % (576 * 3456))
    copy_scalars(a)
    srd_off(a, 16, 6, "s39", "s42")
    a("s_waitcnt lgkmcnt(0)")

    def w_chunk(c):
        a("s_add_u32 s40, s37, %d" % (c * 64 * 3456))
        for i in range(9):
            a("s_add_u32 m0, s38, %d" % ((c % 4) * SLOT + 16384 + i * 1024))
            a("s_nop 0")
            a("buffer_load_dwordx4 v%d, s[16:19], s40 offen lds" % (4 + i))

    loader_loop(w_chunk, 9, 0, OPT["wa0"])
    a("s_branch L_copy")
    a.c("---- GEMM compute waves 0..3")
    a.label("L_comp")
    ACC, XF, WF = 64, (136, 144), 24
    a("v_and_b32 v8, 15, v0")
    a("v_lshrrev_b32 v9, 4, v0")
    a("v_lshrrev_b32 v10, 1, v8")
    a("v_xor_b32 v10, v10, v9")
    a("s_lshl_b32 s36, s3, 12")
    a("v_lshlrev_b32 v2, 7, v8")
    a("v_lshl_add_u32 v2, v10, 4, v2")
    a("v_add_u32 v2, s36, v2")
    a("v_xor_b32 v3, 64, v2")
    a("v_add_u32 v4, %d, v2" % (2 * SLOT))
    a("v_add_u32 v5, %d, v3" % (2 * SLOT))
    a("v_lshrrev_b32 v10, 2, v0")
    a("v_mul_u32_u24 v6, 288, v10")
    a("v_and_b32 v10, 3, v0")
    a("v_lshl_add_u32 v6, v10, 3, v6")
    a("v_add_u32 v6, 16384, v6")
    a("v_add_u32 v7, %d, v6" % (2 * SLOT))
    a("s_waitcnt lgkmcnt(0)")
    load_tag(a)
    a("s_mov_b32 s36, 1.0")
    a("s_cmp_lt_u32 s34, 4")
    a("s_cselect_b32 s36, %s, s36" % f32(QSCALE))
    a("s_mov_b32 s37, s36")
    a("s_lshl_b32 s38, s3, 5")
    a("v_add_u32 v10, s38, v8")
    a("v_mul_u32_u24 v10, 72, v10")
    a("v_lshl_add_u32 v10, v9, 3, v10")
    a("v_add_u32 v10, %d, v10" % IMG)
    for ft in range(9):
        a("v_add_u32 v11, %d, v9" % (4 * ft))
        a("v_mul_u32_u24 v11, 57, v11")
        a("v_lshrrev_b32 v11, 9, v11")
        a("v_mul_u32_u24 v11, 9144, v11")
        a("v_add_u32 v%d, v11, v10" % (12 + ft))
    copy_scalars(a)
    a("s_waitcnt lgkmcnt(0)")

    def xreads(step):
        c, h2 = step >> 1, step & 1
        slot = c % 4
        return ["ds_read_b128 %s, v%d offset:%d" % (vr(XF[step & 1] + 4 * tt, 4), 2 + 2 * (slot >> 1) + h2,
                                                    (slot & 1) * SLOT + tt * 2048) for tt in range(2)]

    def wreads(step, ft):
        c, h2 = step >> 1, step & 1
        slot = c % 4
        return ["ds_read_b64_tr_b16 %s, v%d offset:%d" % (vr(WF + 4 * ft + 2 * sec, 2), 6 + (slot >> 1),
                                                          (slot & 1) * SLOT + h2 * 9216 + sec * 4608 + ft * 32)
                for sec in range(2)]

    def mfma(step, ft, tt):
        d = vr(ACC + 8 * ft + 4 * tt, 4)
        return "v_mfma_f32_16x16x32_bf16 %s, %s, %s, %s" % (
            d, vr(WF + 4 * ft, 4), vr(XF[step & 1] + 4 * tt, 4), "0" if step == 0 else d)

    def epi(k):
        ft, tt = k >> 1, k & 1
        b = ACC + 4 * k
        t = 152 + 2 * (k % 4)
        return ["v_pk_mul_f32 %s, %s, s[36:37]" % (vr(b, 2), vr(b, 2)),
                "v_pk_mul_f32 %s, %s, s[36:37]" % (vr(b + 2, 2), vr(b + 2, 2)),
                "v_cvt_pk_bf16_f32 v%d, v%d, v%d" % (t, b, b + 1),
                "v_cvt_pk_bf16_f32 v%d, v%d, v%d" % (t + 1, b + 2, b + 3),
                "ds_write_b64 v%d, %s offset:%d" % (12 + ft, vr(t, 2), 32 * ft + 1152 * tt)]

    a("s_barrier")
    a("s_barrier")
    stamp(a, 1)
    q = []

    def issue(tag, lst):
        for x in lst:
            a(x)
            q.append(tag)

    def need(tag):
        last = max(k for k, v in enumerate(q) if v == tag)
        a("s_waitcnt lgkmcnt(%d)" % min(15, len(q) - 1 - last))

    issue(("x", 0), xreads(0))
    for ft in range(9):
        issue(("w", 0, ft), wreads(0, ft))
    for step in range(16):
        if step & 1:
            a("s_barrier")
            if OPT["gst"]:
                stamp(a, 5 + (step >> 1), True)
        for ft in range(9):
            if ft % OPT["wg"] == 0:
                need(("w", step, min(8, ft + OPT["wg"] - 1)))
            a(mfma(step, ft, 0))
            if ft == 0:
                issue(("x", step + 1), xreads(step + 1))
            a(mfma(step, ft, 1))
            issue(("w", step + 1, ft), wreads(step + 1, ft) if ft < OPT["skipw"] else ["s_nop 0"])
    RING = (60, 160, 164)

    def w17(ft):
        return [x.replace(vr(WF + 4 * ft + 2 * sec, 2), vr(RING[ft % 3] + 2 * sec, 2)) for sec, x in enumerate(wreads(17, ft))]

    issue(("x", 17), xreads(17))
    issue(("v", 0), w17(0))
    issue(("v", 1), w17(1))
    for ft in range(10):
        e = (epi(2 * ft - 2) + epi(2 * ft - 1)) if ft else []
        if ft < 9:
            need(("v", ft))
            m = [mfma(16, ft, 0), mfma(16, ft, 1)] + \
                [mfma(17, ft, tt).replace(vr(WF + 4 * ft, 4), vr(RING[ft % 3], 4)) for tt in range(2)]
        else:
            m = []
        cut = (0, 3, 5, 8, 10)
        for k in range(4):
            if m:
                a(m[k])
            if k == 0 and ft + 2 < 9:
                issue(("v", ft + 2), w17(ft + 2))
            for x in e[cut[k]:cut[k + 1]]:
                if x.startswith("ds_"):
                    issue("e", [x])
                else:
                    a(x)
    stamp(a, 2)
    a("s_waitcnt lgkmcnt(0)")
    a.c("---- copy the tile out, then publish it")
    a.label("L_copy")
    a("v_lshlrev_b32 v1, 4, v0")
    a("s_lshl_b32 s36, s3, 10")
    a("v_add_u32 v2, s36, v1")
    a("v_add_u32 v3, %d, v2" % (IMG + 4 * 8192))
    srd_off(a, 24, 8, L.WS_QKV, L.QKV_BYTES)
    make_tag(a)
    a("s_barrier")
    for j in range(4):
        a("ds_read_b128 %s, v2 offset:%d" % (vr(4 + 4 * j, 4), IMG + j * 8192))
    a("s_cmp_lt_u32 s3, 4")
    a("s_cbranch_scc0 L_c4")
    a("ds_read_b128 v[20:23], v3")
    a("s_waitcnt lgkmcnt(0)")
    a("buffer_store_dwordx4 v[20:23], v1, s[24:27], s54 offen sc1")
    a.label("L_c4")
    for j in range(4):
        a("s_waitcnt lgkmcnt(%d)" % (3 - j))
        a("buffer_store_dwordx4 %s, v1, s[24:27], s%d offen sc1" % (vr(4 + 4 * j, 4), 50 + j))
    a("s_mov_b32 s63, s58")
    a("v_mov_b32 v%d, %d" % (vC, CTL))
    lds_inc(a, vC, 24, C_FI)
    stamp(a, 3)


def spare_phase(a):
    GW = 64
    a.c("---- workgroups without a GEMM tile: router / gate logits, first touch of the weights")
    a.label("L_sp")
    a("s_sub_u32 s36, s2, 192")
    a("s_cmp_ge_u32 s3, 8")
    a("s_cbranch_scc1 L_sp_ffn")
    a("s_cmp_ge_u32 s3, 4")
    a("s_cbranch_scc1 L_sp_hi")
    a("s_load_dwordx2 s[60:61], s[0:1], 32")
    a("s_load_dwordx2 s[62:63], s[0:1], 64")
    a("v_lshrrev_b32 v2, 3, v0")
    a("v_and_b32 v3, 7, v0")
    a("v_lshlrev_b32 v3, 4, v3")
    a("s_lshl_b32 s34, s36, 2")
    a("s_add_u32 s34, s34, s3")
    a("s_lshl_b32 s33, s34, 3")
    a("v_add_u32 v1, s33, v2")
    a("v_mul_u32_u24 v4, 1152, v1")
    a("v_add_u32 v4, v4, v3")
    a("s_mul_i32 s51, s34, %d" % (7 * 128))
    a("s_mul_i32 s52, s34, %d" % (21 * 128))
    a("v_lshlrev_b32 v7, 7, v0")
    a("s_waitcnt lgkmcnt(0)")
    load_tag(a)
    srd(a, 16, 6, 576 * 3456)
    srd(a, 20, 28, 576 * 1152)
    def wtouch(i):
        a("s_add_u32 s53, s51, %d" % (1728 * 128 * i))
        a("s_mov_b64 exec, 0x7f")
        a("buffer_load_dword v124, v7, s[16:19], s53 offen")
        a("s_mov_b64 exec, -1")

    XF_ = OPT["xfirst"]
    order = list(range(2, 9)) + [0, 1] if XF_ else list(range(9))
    NEWER = 2
    for n, i in enumerate(order):
        a("global_load_dwordx4 %s, v4, s[4:5] offset:%d" % (vr(8 + 4 * i, 4), 128 * i))
        if n == 0:
            for j in range(9):
                a("global_load_dwordx4 %s, v3, s[60:61] offset:%d" % (vr(44 + 4 * j, 4), 128 * j))
                a("global_load_dwordx4 %s, v3, s[62:63] offset:%d" % (vr(80 + 4 * j, 4), 128 * j))
        if not XF_ and n:
            wtouch(i)
        if XF_ and 2 <= i < 2 + XF_ - 1:
            wtouch(i)
    if XF_:
        for i in range(2 + XF_ - 1, 9):
            wtouch(i)
        NEWER = 9 - (2 + XF_ - 1) + 1
    a("s_mov_b64 exec, 0x1fffff")
    a("buffer_load_dword v124, v7, s[20:23], s52 offen")
    a("s_mov_b64 exec, -1")
    a("v_mov_b32 v%d, %d" % (vC, CTL))
    a("s_waitcnt lgkmcnt(0)")
    make_tag(a)
    a("s_barrier")
    a("s_waitcnt vmcnt(%d)" % NEWER)
    for i in range(36):
        p = 116 + (i & 3)
        a("v_dot2_f32_bf16 v%d, v%d, v%d, %s" % (p, 8 + i, 44 + i, "0" if i < 4 else "v%d" % p))
    a("s_nop 1")
    a("v_pk_add_f32 v[116:117], v[116:117], v[118:119]")
    a("v_add_f32 v5, v116, v117")
    sum8(a, (5,))
    bf16_round(a, 5, 5)
    a("v_ashrrev_i32 v7, 31, v5")
    a("v_or_b32 v7, 0x80000000, v7")
    a("v_xor_b32 v7, v7, v5")
    a("v_and_b32 v7, 0xffff0000, v7")
    a("v_sub_u32 v6, 0x7ff, v1")
    a("v_or_b32 v7, v7, v6")
    a("v_mov_b32 v5, 1")
    a("s_mov_b32 s54, 0x01010101")
    a("s_mov_b32 exec_lo, s54")
    a("s_mov_b32 exec_hi, s54")
    a("ds_max_u32 v%d, v7 offset:%d" % (vC, C_KMAX))
    a("s_mov_b64 exec, 1")
    a("ds_add_rtn_u32 v5, v%d, v5 offset:%d" % (vC, C_KCNT))
    a("ds_read_b32 v7, v%d offset:%d" % (vC, C_KMAX))
    a("s_lshl_b32 s53, s36, 3")
    a("s_add_u32 s53, s53, %d" % L.WS_KEYF)
    a("v_mov_b32 v4, s53")
    a("v_mov_b32 v6, s%d" % TAG)
    a("s_waitcnt lgkmcnt(0)")
    a("v_cmp_eq_u32 vcc, 3, v5")
    a("s_and_b64 exec, exec, vcc")
    a("s_cbranch_execz L_sp_nopub")
    a("global_store_dwordx2 v4, v[6:7], s[8:9] sc1")
    a.label("L_sp_nopub")
    a("s_mov_b64 exec, -1")
    stamp(a, 1)
    a("s_mov_b32 s55, 0x3f803f80")
    for i in range(36):
        x, w, p = 8 + i, 80 + i, 116 + (i & 3)
        t = 44 + 4 * (i & 3)
        a("v_lshlrev_b32 v%d, 16, v%d" % (t, x))
        a("v_and_b32 v%d, 0xffff0000, v%d" % (t + 1, x))
        a("v_lshlrev_b32 v%d, 16, v%d" % (t + 2, w))
        a("v_and_b32 v%d, 0xffff0000, v%d" % (t + 3, w))
        a("v_pk_mul_f32 %s, %s, %s" % (vr(t, 2), vr(t, 2), vr(t + 2, 2)))
        a("v_cvt_pk_bf16_f32 v%d, v%d, v%d" % (t, t, t + 1))
        a("v_dot2_f32_bf16 v%d, v%d, s55, %s" % (p, t, "0" if i < 4 else "v%d" % p))
    a("s_nop 1")
    a("v_pk_add_f32 v[116:117], v[116:117], v[118:119]")
    a("v_add_f32 v6, v116, v117")
    sum8(a, (6,))
    bf16_round(a, 6, 6)
    sigmoid(a, 6, 6)
    bf16_round(a, 6, 6)
    a("v_lshlrev_b32 v1, 2, v1")
    a("v_add_u32 v1, %d, v1" % L.WS_G)
    a("s_mov_b32 exec_lo, s54")
    a("s_mov_b32 exec_hi, s54")
    a("global_store_dword v1, v6, s[8:9] sc1")
    a("s_mov_b64 exec, -1")
    a("s_waitcnt vmcnt(0)")
    lds_inc(a, vC, 5, C_GD)
    if OPT["dtouch"]:
        srd(a, 16, 14, 4608 * 1152)
        a("s_mul_i32 s52, s34, %d" % (162 * 128))
        a("v_lshlrev_b32 v7, 7, v0")
        for k in range(3):
            a("buffer_load_dword v124, v7, s[16:19], s52 offen")
            a("s_add_u32 s52, s52, %d" % (54 * 128))
    a("s_mov_b32 s63, 0")
    stamp(a, 2)
    a("s_branch L_att")

    a.label("L_sp_hi")
    a("s_cmp_eq_u32 s3, 7")
    a("s_cbranch_scc0 L_sp_hi1")
    code_touch(a)
    a.label("L_sp_hi1")
    a("v_mov_b32 v%d, %d" % (vC, CTL))
    a("s_waitcnt lgkmcnt(0)")
    load_tag(a)
    a("s_mov_b32 s63, 0")
    a("s_waitcnt lgkmcnt(0)")
    make_tag(a)
    a("s_barrier")
    a("s_cmp_eq_u32 s3, 4")
    a("s_cbranch_scc1 L_sp_w4")
    a("s_cmp_eq_u32 s3, 5")
    a("s_cbranch_scc0 L_att")
    a("s_lshl_b32 s56, s36, 7")
    a("s_add_u32 s56, s56, %d" % (L.WS_FLAG + F_PA * 128))
    a("v_mov_b32 v9, s56")
    lds_spin(a, "L_sp_x5", vC, C_XS, 10, (1, 4), 4)
    a("ds_read_b64 v[14:15], v%d offset:%d" % (vC, C_IDX))
    a("v_mov_b32 v12, s%d" % TAG)
    a("s_waitcnt lgkmcnt(0)")
    a("v_mov_b32 v13, v14")
    a("v_mov_b32 v14, v15")
    a("s_mov_b64 exec, 1")
    a("global_store_dwordx3 v9, v[12:14], s[8:9] sc1")
    a("s_mov_b64 exec, -1")
    a("s_branch L_att")
    a.label("L_sp_w4")
    for k in range(4):
        a("v_mov_b32 v%d, 0" % (12 + k))
    a("s_cmp_lt_u32 s36, 36")
    a("s_cbranch_scc0 L_sp_nz")
    a("s_lshl_b32 s51, s36, 10")
    a("s_add_u32 s51, s51, %d" % L.WS_YP)
    a("v_lshlrev_b32 v4, 4, v0")
    a("v_add_u32 v4, s51, v4")
    a("global_store_dwordx4 v4, v[12:15], s[8:9] sc1")
    a("s_cmp_eq_u32 s36, 0")
    a("s_cbranch_scc0 L_sp_nz")
    a("v_lshlrev_b32 v4, 7, v0")
    a("v_add_u32 v4, %d, v4" % (L.WS_FLAG + F_Y * 128))
    a("global_store_dword v4, v12, s[8:9] sc1")
    a.label("L_sp_nz")
    a("v_lshlrev_b32 v8, 3, v0")
    a("v_add_u32 v8, %d, v8" % L.WS_KEYF)
    srd(a, 24, 4, 2048 * 1152)
    lds_spin(a, "L_sp_own", vC, C_KCNT, 10, (4,), 2)
    a("s_sleep %d" % OPT["slp0"])
    flag_poll(a, "L_sp_kp", 8, 10, "s%d" % TAG, 64, OPT["slp"], 2)
    a("v_lshlrev_b32 v8, 4, v0")
    stamp(a, 1)
    wave_umax(a, 11, 53)
    a("s_and_b32 s54, s53, 0x7ff")
    a("s_sub_u32 s54, 2047, s54")
    a("s_mul_i32 s55, s54, 1152")
    a("s_mov_b32 m0, %d" % XS)
    a("s_add_u32 s56, s55, 1024")
    a("buffer_load_dwordx4 v8, s[24:27], s55 offen lds")
    a("s_mov_b32 m0, %d" % (XS + 1024))
    a("s_mov_b64 exec, 0xff")
    a("buffer_load_dwordx4 v8, s[24:27], s56 offen lds")
    a("s_mov_b64 exec, -1")
    a("s_and_b32 s55, s53, 0xffff0000")
    a("s_xor_b32 s56, s55, 0x80000000")
    a("s_xor_b32 s57, s55, 0xffff0000")
    a("s_bitcmp1_b32 s55, 31")
    a("s_cselect_b32 s55, s56, s57")
    a("v_mov_b32 v12, s55")
    sigmoid(a, 13, 12)
    bf16_round(a, 13, 13)
    a("v_mov_b32 v12, s54")
    a("ds_write_b64 v%d, v[12:13] offset:%d" % (vC, C_IDX))
    a("v_mov_b32 v12, 1")
    a("s_waitcnt vmcnt(0)")
    a("ds_write_b32 v%d, v12 offset:%d" % (vC, C_XS))
    stamp(a, 2)
    a("s_branch L_att")

    a.c("---- gate / up projections of the routed token")
    a.label("L_sp_ffn")
    a("s_load_dwordx4 s[40:43], s[0:1], 40")
    a("v_mov_b32 v3, %d" % CTL)
    for k in range(4):
        a("v_mov_b32 v%d, 0" % (4 + k))
    a("v_lshlrev_b32 v1, 4, v0")
    a("v_add_u32 v2, v1, v3")
    a("s_mov_b64 exec, 0xff")
    a("ds_write_b128 v2, v[4:7]")
    a("s_mov_b64 exec, -1")
    a("v_lshlrev_b32 v2, 2, v0")
    a("v_add_u32 v2, %d, v2" % (XS + 1152))
    a("ds_write_b32 v2, v4")
    a("s_sub_u32 s59, s3, 8")
    a("s_mul_i32 s37, s36, 57")
    a("s_lshr_b32 s37, s37, 9")
    a("s_mul_i32 s38, s37, 9")
    a("s_sub_u32 s38, s36, s38")
    a("s_mul_i32 s49, s37, 84")
    a("s_mul_i32 s39, s49, 9216")
    a("s_lshl_b32 s48, s38, 10")
    a("s_add_u32 s39, s39, s48")
    a("s_sub_u32 s48, %d, s39" % (576 * 9216))
    a("s_min_i32 s48, s48, %d" % (83 * 9216 + 1024))
    a("s_max_i32 s48, s48, 0")
    a("v_lshrrev_b32 v160, 5, v0")
    a("v_mul_u32_u24 v160, 9216, v160")
    a("v_and_b32 v161, 31, v0")
    a("v_lshl_add_u32 v160, v161, 4, v160")
    a("s_mul_i32 s57, s59, 20480")
    a("s_add_u32 s57, s57, %d" % WO)
    a("s_mul_i32 s58, s59, %d" % (2 * 9216))
    a("s_waitcnt lgkmcnt(0)")
    load_tag(a)
    srd_off(a, 16, 40, "s39", "s48")
    srd_off(a, 20, 42, "s39", "s48")
    a("s_waitcnt lgkmcnt(0)")
    make_tag(a)
    a("s_barrier")
    if OPT["fdel"]:
        lds_spin(a, "L_sp_fd", 3, C_KCNT, 10, (4,), 2)
        if OPT["fdel"] > 1:
            a("s_sleep %d" % OPT["fdel"])
    for i in range(5):
        a("s_add_u32 s55, s58, %d" % (8 * (6 + i) * 9216))
        a("s_add_u32 s56, s55, 512")
        for k in range(4):
            a("s_add_u32 m0, s57, %d" % ((4 * i + k) * 1024))
            a("buffer_load_dwordx4 v160, s[%d:%d], s%d offen nt lds" % (16 + 4 * (k >> 1), 19 + 4 * (k >> 1), 55 + (k & 1)))
            if OPT["thr"] and 4 * i + k >= OPT["thr"] - 1:
                a("s_waitcnt vmcnt(%d)" % (OPT["thr"] - 1))
    for i in range(6):
        a("s_add_u32 s55, s58, %d" % (8 * i * 9216))
        for k in range(4):
            a("buffer_load_dwordx4 %s, v160, s[%d:%d], s55 offen offset:%d nt" % (
                vr(GW + 16 * i + 4 * k, 4), 16 + 4 * (k >> 1), 19 + 4 * (k >> 1), 512 * (k & 1)))
            if OPT["thr"] and 20 + 4 * i + k < OPT["thrn"]:
                a("s_waitcnt vmcnt(%d)" % (OPT["thr"] - 1))
    a("s_lshl_b32 s55, s59, 1")
    a("s_add_u32 s55, s55, s49")
    a("v_lshrrev_b32 v51, 5, v0")
    a("v_add_u32 v51, s55, v51")
    a("v_lshlrev_b32 v51, 1, v51")
    a("v_add_u32 v51, %d, v51" % XS)
    a("v_and_b32 v2, 1, v0")
    a("v_lshlrev_b32 v2, 4, v2")
    a("v_lshrrev_b32 v4, 1, v0")
    a("v_xor_b32 v4, v4, v0")
    a("v_and_b32 v4, 8, v4")
    a("v_bfe_u32 v5, v0, 1, 2")
    a("v_or_b32 v4, v4, v5")
    for q in range(4):
        a("v_cmp_eq_u32 s[%d:%d], %d, v4" % (40 + 2 * q, 41 + 2 * q, q))
    a("v_bfe_u32 v4, v0, 3, 1")
    a("v_lshlrev_b32 v4, 9, v4")
    a("v_lshrrev_b32 v5, 4, v0")
    a("v_lshl_add_u32 v4, v5, 7, v4")
    a("v_and_b32 v5, 7, v0")
    a("v_lshl_add_u32 v4, v5, 2, v4")
    a("v_add_u32 v6, s57, v4")
    a("v_add_u32 v52, s57, v1")
    a("s_lshl_b32 s55, s59, 9")
    a("v_lshlrev_b32 v8, 3, v0")
    a("v_add_u32 v8, s55, v8")
    a("s_mul_i32 s52, s37, %d" % (4608 * 16))
    a("s_lshl_b32 s55, s38, 13")
    a("s_add_u32 s52, s52, s55")
    a("s_add_u32 s52, s52, %d" % L.WS_PA)
    a("v_lshlrev_b32 v9, 2, v8")
    a("v_add_u32 v9, s52, v9")
    a("v_add_u32 v8, %d, v8" % WO)
    stamp(a, 3)
    lds_spin(a, "L_sp_xs", 3, C_XS, 10, (1,), 2)
    a("s_setprio %d" % OPT["pr2"])
    stamp(a, 7)
    for i in range(11):
        a("ds_read_u16 v%d, v51 offset:%d" % (53 + i, 16 * i))
    a("s_waitcnt vmcnt(24)")
    for k in range(4):
        a("ds_read_b128 %s, v52 offset:%d" % (vr(32 + 4 * k, 4), 1024 * k))
    a("s_waitcnt lgkmcnt(4)")
    for i in range(11):
        a("v_lshlrev_b32 v%d, v2, v%d" % (53 + i, 53 + i))
    first = True
    for i in range(5):
        selector(a, 12, 53 + 6 + i, 40)
        for k in range(4):
            d = vr(16 + 4 * k, 4)
            a("s_waitcnt lgkmcnt(%d)" % (3 if i < 4 else 3 - k))
            a("v_mfma_f32_16x16x32_bf16 %s, %s, v[12:15], %s" % (d, vr(32 + 4 * k, 4), "0" if first else d))
            if i < 4:
                a("ds_read_b128 %s, v52 offset:%d" % (vr(32 + 4 * k, 4), 1024 * (4 * (i + 1) + k)))
        first = False
    stamp(a, 12)
    for i in range(6):
        selector(a, 12, 53 + i, 40)
        a("s_waitcnt vmcnt(%d)" % (4 * (5 - i)))
        for k in range(4):
            d = vr(16 + 4 * k, 4)
            a("v_mfma_f32_16x16x32_bf16 %s, %s, v[12:15], %s" % (d, vr(GW + 16 * i + 4 * k, 4), d))
    stamp(a, 11)
    for k in range(4):
        for r in range(4):
            a("ds_write_b32 v6, v%d offset:%d" % (16 + 4 * k + r, 1024 * k + 32 * r))
    lds_inc(a, 3, 10, C_RED)
    lds_spin(a, "L_sp_rd", 3, C_RED, 10, (4,), 0)
    for p in range(4):
        a("ds_read_b64 %s, v8 offset:%d" % (vr(16 + 4 * p, 2), 20480 * p))
        a("ds_read_b64 %s, v8 offset:%d" % (vr(18 + 4 * p, 2), 20480 * p + 2048))
    a("v_mov_b32 v34, s%d" % TAG)
    a("v_mov_b32 v38, s%d" % TAG)
    a("s_waitcnt lgkmcnt(0)")
    lds_inc(a, 3, 10, C_RED2)
    for p in (2, 1):
        for h in range(2 * p):
            a("v_pk_add_f32 %s, %s, %s" % (vr(16 + 2 * h, 2), vr(16 + 2 * h, 2), vr(16 + 4 * p + 2 * h, 2)))
    a("v_mov_b32 v32, v16")
    a("v_mov_b32 v33, v18")
    a("v_mov_b32 v36, v17")
    a("v_mov_b32 v37, v19")
    a("s_cmp_eq_u32 s36, 63")
    a("s_cbranch_scc1 L_sp_nost")
    a("global_store_dwordx4 v9, v[32:35], s[8:9] sc1")
    a("global_store_dwordx4 v9, v[36:39], s[8:9] offset:16 sc1")
    a.label("L_sp_nost")
    stamp(a, 4)
    lds_spin(a, "L_sp_r2", 3, C_RED2, 10, (4,), 0)
    a("s_branch L_help2")


def attn_loop(a):
    for i in range(9):
        if OPT["bal"] and i == 0:
            a("s_cmp_lt_u32 s3, 4")
            a("s_cbranch_scc1 L_bal0")
            a("s_setprio 1")
            a.label("L_bal0")
        if OPT["bal"] and i == OPT["bal"]:
            a("s_setprio 0")
        a.label("L_it%d" % i)
        S, P = SS[i & 1], PP[i & 1]
        ex = ["v_exp_f32 v%d, v%d" % (S + r, S + r) for r in range(16)]
        cv = ["v_cvt_pk_bf16_f32 v%d, v%d, v%d" % (P + q, S + 2 * q, S + 2 * q + 1) for q in range(8)]
        if i == 0:
            mk = ["v_bfi_b32 v%d, v%d, 0, v%d" % (P + q, MSK + q, P + q) for q in range(8)]
        elif i == 8:
            mk = ["v_and_b32 v%d, v%d, v%d" % (P + q, MSK + q, P + q) for q in range(8)]
        else:
            mk = []
        m1 = qk(i + 1) if i < 8 else []
        m2 = pv(i - 1, i == 1) if i > 0 else []
        a("s_waitcnt lgkmcnt(%d)" % (4 if 0 < i < 8 else 0))
        seq = m1[:1] + ex[0:4] + m1[1:] + (k_reads(i + 2) if i + 2 <= 8 else []) + ex[4:8] + cv[0:2] + m2[:1] + \
            ex[8:12] + cv[2:4] + m2[1:]
        if i + 1 <= 8:
            seq += ["v_add_u32 v%d, v%d, v%d" % (vV, vV, vStep)] + v_reads(i + 1)
        seq += ex[12:16] + cv[4:8] + mk
        for x in seq:
            a(x)
    lds_spin(a, "L_pz", vC, C_C, T, (1,), 0)
    for x in pv(8, False):
        a(x)


def attention_phase(a):
    a.c("---- attention: set-up, wait for the producers, K/V/Q into LDS")
    a.label("L_att")
    decode2(a)
    a("s_mul_i32 s33, s31, %d" % L.PAIR_BYTES)
    a("s_mul_i32 s34, s32, 9216")
    a("s_add_u32 s33, s33, s34")
    a("v_mov_b32 v%d, %d" % (vC, CTL))
    KS, VS = 16 * L.PAIR_BYTES - 18432, 32 * L.PAIR_BYTES - 18432
    grp = [(QB, 0), (KB, KS), (VB, VS), (KB + 9216, KS + 9216), (VB + 9216, VS + 9216), (KB + 18432, KS + 18432), (VB + 18432, VS + 18432)]
    a("s_lshl_b32 s34, s3, 10")
    for j in range(8):
        lo, hi = (8 * j) // 9, min(8 * j + 7, 62) // 9
        l0, g0 = grp[lo][0] + (8 * j - 9 * lo) * 1024, grp[lo][1] + (8 * j - 9 * lo) * 1024
        l1, g1 = grp[hi][0] + (8 * j - 9 * hi) * 1024, grp[hi][1] + (8 * j - 9 * hi) * 1024
        if j == 7:
            a("s_min_u32 s34, s34, %d" % (6 * 1024))
        if lo == hi:
            a("s_add_u32 s%d, s34, %d" % (16 + j, l0))
            a("s_add_u32 s%d, s33, %d" % (44 + j, g0 - l0 & 0xffffffff))
        else:
            a("s_mov_b32 s35, %d" % l0)
            a("s_mov_b32 s36, %d" % (g0 - l0 & 0xffffffff))
            a("s_cmp_ge_u32 s3, %d" % (9 * hi - 8 * j))
            a("s_cselect_b32 s35, %d, s35" % (l1 & 0xffffffff))
            a("s_cselect_b32 s36, %d, s36" % (g1 - l1 & 0xffffffff))
            a("s_add_u32 s%d, s34, s35" % (16 + j))
            a("s_add_u32 s%d, s33, s36" % (44 + j))
        a("s_add_u32 s%d, s%d, s%d" % (44 + j, 44 + j, 16 + j))
    a("v_mov_b32 v10, s63")
    a("v_mov_b32 v11, s%d" % TAG)
    a("s_waitcnt vmcnt(0)")
    lds_inc(a, vC, 9, C_1, rtn=True)
    a("s_cmp_lg_u32 s63, 0")
    a("s_cselect_b32 s35, 7, 99")
    a("s_waitcnt lgkmcnt(0)")
    a("v_readfirstlane_b32 s36, v9")
    a("s_cmp_eq_u32 s36, s35")
    a("s_cbranch_scc0 L_nofl1")
    a("s_mov_b64 exec, 1")
    a("global_store_dword v10, v11, s[8:9] sc1")
    a("s_mov_b64 exec, -1")
    a.label("L_nofl1")
    stamp(a, 4)
    a("s_and_b32 s42, s3, 1")
    a("s_lshr_b32 s43, s3, 1")
    a("s_mul_i32 s35, s43, 2304")
    a("s_mul_i32 s36, s42, 40")
    a("v_and_b32 v%d, 31, v0" % T)
    a("v_lshrrev_b32 v%d, 5, v0" % (T + 1))
    a("v_mul_u32_u24 v%d, 72, v%d" % (vKt, T))
    a("v_add_u32 v%d, s35, v%d" % (vKt, vKt))
    a("v_lshl_add_u32 v%d, v%d, 4, v%d" % (vK, T + 1, vKt))
    a("v_add_u32 v%d, s36, v%d" % (vK, vK))
    a("v_add_u32 v%d, 32, v%d" % (vKt, vKt))
    a("v_bfe_u32 v%d, v0, 2, 2" % (T + 2))
    a("v_lshl_add_u32 v%d, v%d, 2, v%d" % (T + 2, T + 1, T + 2))
    a("v_mul_u32_u24 v%d, 72, v%d" % (T + 2, T + 2))
    a("s_add_u32 s37, s35, %d" % VB)
    a("v_add_u32 v%d, s37, v%d" % (T + 2, T + 2))
    a("v_and_b32 v%d, 3, v0" % (T + 3))
    a("v_lshlrev_b32 v%d, 3, v%d" % (T + 4, T + 3))
    a("v_add_u32 v%d, s36, v%d" % (T + 4, T + 4))
    a("v_and_b32 v%d, 16, v0" % (T + 5))
    a("v_cmp_eq_u32 s[38:39], 0, v%d" % (T + 5))
    a("v_cndmask_b32 v%d, 32, v%d, s[38:39]" % (T + 4, T + 4))
    a("v_add_u32 v%d, v%d, v%d" % (vV, T + 2, T + 4))
    a("v_and_b32 v%d, 19, v0" % (T + 5))
    a("v_cmp_lt_u32 s[38:39], 16, v%d" % (T + 5))
    a("v_mov_b32 v%d, %d" % (T + 6, ONES))
    a("v_cndmask_b32 v%d, v%d, v%d, s[38:39]" % (vV, vV, T + 6))
    a("v_mov_b32 v%d, 2304" % (T + 6))
    a("v_cndmask_b32 v%d, v%d, 0, s[38:39]" % (vStep, T + 6))
    a("v_lshlrev_b32 v%d, 2, v%d" % (T + 2, T + 1))
    a("v_sub_u32 v%d, v%d, v%d" % (T + 2, T, T + 2))
    a("v_mov_b32 v%d, 0xffff" % (T + 3))
    for q in range(8):
        kl = 8 * (q >> 1) + 2 * (q & 1)
        a("v_cmp_le_i32 s[38:39], %d, v%d" % (kl, T + 2))
        a("v_cmp_le_i32 s[40:41], %d, v%d" % (kl + 1, T + 2))
        a("v_cndmask_b32 v%d, 0, v%d, s[38:39]" % (MSK + q, T + 3))
        a("v_cndmask_b32 v%d, v%d, -1, s[40:41]" % (MSK + q, MSK + q))
    a("s_lshl_b32 s41, s32, 2")
    a("s_add_u32 s41, s41, s43")
    a("s_sub_i32 s41, 8, s41")
    a("s_lshl_b32 s35, s32, 3")
    a("s_lshl_b32 s36, s43, 1")
    a("s_add_u32 s35, s35, s36")
    a("s_mul_i32 s35, s35, 18432")
    a("s_lshl_b32 s58, s31, 10")
    a("s_lshl_b32 s36, s42, 9")
    a("s_add_u32 s58, s58, s36")
    a("s_add_u32 s58, s58, s35")
    a("s_lshr_b32 s59, s31, 1")
    a("s_lshl_b32 s59, s59, 8")
    a("s_and_b32 s36, s31, 1")
    a("s_lshl_b32 s36, s36, 3")
    a("s_add_u32 s59, s59, s36")
    a("s_lshl_b32 s36, s42, 2")
    a("s_add_u32 s59, s59, s36")
    a("s_add_u32 s59, s59, s35")
    a("s_add_u32 s59, s59, 16384")
    a("v_bfe_u32 v152, v0, 4, 1")
    a("v_mul_u32_u24 v152, 18432, v152")
    a("v_and_b32 v153, 15, v0")
    a("v_lshl_add_u32 v152, v153, 4, v152")
    a("v_lshrrev_b32 v153, 5, v0")
    a("v_lshl_add_u32 v153, v153, 8, v152")
    a("v_cmp_gt_u32 vcc, 32, v0")
    a("s_cmp_eq_u32 s42, 0")
    a("s_cselect_b64 s[54:55], vcc, 0")
    a("s_cselect_b64 s[56:57], 0, vcc")
    a("v_and_b32 v%d, 3, v0" % (T + 2))
    a("v_mul_u32_u24 v%d, 576, v%d" % (T + 2, T + 2))
    a("v_mov_b32 v%d, 0x3f803f80" % (T + 4))
    a("v_mov_b32 v%d, v%d" % (T + 5, T + 4))
    a("v_lshlrev_b32 v%d, 4, v0" % (T + 3))
    srd_off(a, 36, 8, L.WS_QKV, L.QKV_BYTES)
    srd_off(a, 24, 8, L.WS_O, 128 * 18432)
    a("s_add_u32 s40, s3, 2")
    a("s_cmp_lt_u32 s3, 4")
    a("s_cselect_b32 s40, s3, s40")
    out_setup(a, 40)
    a("s_lshr_b32 s35, s2, 6")
    a("s_lshl_b32 s35, s35, 4")
    a("s_add_u32 s35, s35, s3")
    a("s_cmp_eq_u32 s35, %d" % (3 * 16 + 6))
    a("s_cbranch_scc0 L_nq2")
    lds_spin(a, "L_sp_x6", vC, C_XS, T + 8, (1,), 8)
    qpoll(a, vC, "L_qp2", False, T + 8)
    a.label("L_nq2")
    lds_spin(a, "L_go1", vC, C_1, T, (8, 1), OPT["g1s"])
    stamp(a, 5)
    for j in range(8):
        a("s_mov_b32 m0, s%d" % (16 + j))
        a("s_nop 0")
        a("buffer_load_dwordx4 v%d, s[36:39], s%d offen %s lds" % (T + 3, 44 + j, OPT["kvl"]))
    a("ds_write_b64 v%d, %s offset:%d" % (T + 2, vr(T + 4, 2), ONES))
    a("s_cmp_lt_u32 s32, 2")
    a("s_cbranch_scc1 L_late")
    landed(a, 1, 0)
    stage_spin(a, "L_sA", 0)
    stamp(a, 6)
    for x in q_reads() + k_reads(0) + k_reads(1) + v_reads(0):
        a(x)
    a("s_waitcnt lgkmcnt(7)")
    a("v_cndmask_b32 v%d, 0, v%d, s[54:55]" % (QT, QT))
    a("v_cndmask_b32 v%d, 0, v%d, s[56:57]" % (QT + 1, QT + 1))
    for x in qk(0):
        a(x)
    lds_inc(a, vC, T, C_B)
    x_loads(a)
    attn_loop(a)
    a.c("---- softmax range check; true-max path if it fails")
    a.label("L_check")
    stamp(a, 7)
    a("s_mov_b32 s46, %s" % f32(2.0 ** 60))
    a("s_mov_b32 s47, %s" % f32(2.0 ** -60))
    a("s_mov_b32 s48, 0x7f800000")
    a("s_nop 7")
    a("s_nop 0")
    a("v_rcp_f32 v%d, v%d" % (T, OO + 12))
    a("v_cmp_gt_f32 s[50:51], s46, v%d" % (OO + 12))
    a("v_cmp_lt_f32 vcc, s47, v%d" % (OO + 12))
    for k in range(6):
        a("v_add_f32 v%d, abs(v%d), abs(v%d)" % (T + 2 + k, OO + 2 * k, OO + 2 * k + 1))
    a("s_and_b64 s[50:51], s[50:51], vcc")
    a("v_pk_add_f32 %s, %s, %s" % (vr(T + 2, 2), vr(T + 2, 2), vr(T + 4, 2)))
    a("v_pk_add_f32 %s, %s, %s" % (vr(T + 2, 2), vr(T + 2, 2), vr(T + 6, 2)))
    a("v_add_f32 v%d, v%d, v%d" % (T + 2, T + 2, T + 3))
    a("v_cmp_gt_f32 vcc, s48, v%d" % (T + 2))
    a("s_and_b64 s[50:51], s[50:51], vcc")
    a("s_cmp_eq_u64 s[50:51], -1")
    a("s_cbranch_scc0 L_slow")
    a.label("L_fin")
    a("s_cmp_eq_u32 s42, 0")
    a("s_cbranch_scc1 L_fa")
    a("v_mov_b32 v%d, v%d" % (OO + 8, OO + 10))
    a("v_mov_b32 v%d, v%d" % (OO + 9, OO + 11))
    a.label("L_fa")
    for k in range(0, 10, 2):
        a("v_pk_mul_f32 %s, %s, %s op_sel_hi:[1,0]" % (vr(OO + k, 2), vr(OO + k, 2), vr(T, 2)))
    for q in range(5):
        a("v_cvt_pk_bf16_f32 v%d, v%d, v%d" % (T + 4 + q, OO + 2 * q, OO + 2 * q + 1))
    a("buffer_store_dwordx4 %s, v153, s[24:27], s58 offen sc1" % vr(T + 4, 4))
    a("s_mov_b32 exec_hi, 0")
    a("buffer_store_dword v%d, v152, s[24:27], s59 offen sc1" % (T + 8))
    a("s_mov_b32 exec_hi, -1")


def q_reads():
    return ["ds_read_b64 %s, v%d offset:%d" % (vr(QM, 2), vK, QB),
            "ds_read_b64 %s, v%d offset:%d" % (vr(QM + 2, 2), vK, QB + 8),
            "ds_read_b64 %s, v%d offset:%d" % (vr(QT, 2), vKt, QB)]


sKH, sPAIR, sTILE, sGATE, sSLOT, sOB, sXO = 6, 7, 13, 14, 15, 28, 29
A0, vXO, vRW, vCH, vSW, vSR, vL16, vPX, vPF = 156, 142, 140, 141, 143, 144, 162, 160, 161
GB = 154624


def out_setup(a, role):
    a("s_and_b32 s%d, s%d, 1" % (sKH, role))
    a("s_lshr_b32 s%d, s%d, 1" % (sPAIR, role))
    a("s_mul_i32 s%d, s52, 5" % sTILE)
    a("s_and_b32 s33, s%d, 7" % sTILE)
    a("s_sub_u32 s34, 8, s33")
    a("s_cmp_lt_u32 s33, 4")
    a("s_cselect_b32 s34, 0, s34")
    a("s_add_u32 s34, s34, s%d" % sPAIR)
    a("s_sub_u32 s35, s34, 5")
    a("s_cmp_ge_u32 s34, 5")
    a("s_cselect_b32 s34, s35, s34")
    a("s_add_u32 s%d, s%d, s34" % (sTILE, sTILE))
    a("s_lshl_b32 s98, s34, 6")
    a("s_mov_b32 s%d, 0x404" % sGATE)
    a("s_bitcmp1_b32 s%d, 2" % sTILE)
    if not OPT["allg"]:
        a("s_cselect_b32 s%d, s%d, 4" % (sGATE, sGATE))
    a("s_mov_b32 s%d, %d" % (sSLOT, PSLOT[0]))
    for p in range(1, 5):
        a("s_cmp_eq_u32 s%d, %d" % (sPAIR, p))
        a("s_cselect_b32 s%d, %d, s%d" % (sSLOT, PSLOT[p], sSLOT))
    a("s_mul_i32 s%d, s%d, 18432" % (sOB, sTILE))
    a("s_lshl_b32 s33, s53, 7")
    a("s_add_u32 s%d, s%d, s33" % (sXO, sOB))
    a("s_lshl_b32 s33, s%d, 6" % sKH)
    a("s_add_u32 s%d, s%d, s33" % (sXO, sXO))
    a("s_mul_i32 s33, s%d, 9216" % sKH)
    a("s_add_u32 s%d, s%d, s33" % (sOB, sOB))
    a("s_add_u32 s96, s%d, 4096" % sOB)
    a("s_add_u32 s97, s%d, 8192" % sOB)
    a("v_lshrrev_b32 v%d, 2, v0" % vRW)
    a("v_and_b32 v%d, 3, v0" % vCH)
    a("v_mul_u32_u24 v%d, 1152, v%d" % (vXO, vRW))
    a("v_lshl_add_u32 v%d, v%d, 4, v%d" % (vXO, vCH, vXO))
    a("v_lshrrev_b32 v146, 2, v0")
    a("v_bfe_u32 v147, v0, 3, 2")
    a("v_lshlrev_b32 v147, 1, v147")
    a("v_bfe_u32 v148, v0, 1, 1")
    a("v_xor_b32 v147, v147, v148")
    a("v_and_b32 v148, 1, v0")
    a("v_lshlrev_b32 v148, 3, v148")
    a("v_lshl_add_u32 v148, v146, 7, v148")
    a("v_lshl_add_u32 v148, v147, 4, v148")
    a("s_mul_i32 s33, s%d, %d" % (sKH, 9 * 4096))
    a("s_add_u32 s33, s33, %d" % WO)
    a("s_lshl_b32 s34, s%d, 6" % sKH)
    a("v_xor_b32 v148, s34, v148")
    for t in range(4):
        a("v_xor_b32 v%d, %d, v148" % (A0 + t, 32 * t))
        a("v_add_u32 v%d, s33, v%d" % (A0 + t, A0 + t))
    a("v_lshlrev_b32 v%d, 4, v0" % vL16)
    a("s_lshl_b32 s33, s%d, 11" % sKH)
    a("s_add_u32 s%d, s%d, s33" % (sSLOT, sSLOT))
    a("v_add_u32 v%d, s%d, v%d" % (vPX, sSLOT, vL16))
    a("s_lshl_b32 s33, s33, 1")
    a("s_sub_u32 s33, 2048, s33")
    a("v_add_u32 v164, s33, v%d" % vPX)
    a("s_lshl_b32 s33, s%d, 1" % sPAIR)
    a("s_add_u32 s33, s33, s%d" % sKH)
    a("s_lshl_b32 s33, s33, 2")
    a("s_add_u32 s33, s33, %d" % CTL)
    a("v_mov_b32 v%d, s33" % vPF)
    a("v_xor_b32 v165, 4, v%d" % vPF)
    a("v_and_b32 v%d, 15, v0" % vSW)
    a("v_mul_u32_u24 v%d, 80, v%d" % (vSW, vSW))
    a("v_lshrrev_b32 v146, 4, v0")
    a("v_lshlrev_b32 v146, 3, v146")
    a("v_add3_u32 v%d, v%d, v146, s%d" % (vSW, vSW, sSLOT))
    a("v_mul_u32_u24 v%d, 80, v%d" % (vSR, vRW))
    a("v_lshl_add_u32 v%d, v%d, 4, v%d" % (vSR, vCH, vSR))
    a("v_add_u32 v%d, s%d, v%d" % (vSR, sSLOT, vSR))
    a("s_add_u32 s98, s98, %d" % GB)
    a("v_lshl_add_u32 v145, v%d, 2, s98" % vRW)
    a("s_cmp_lt_u32 s3, 4")
    a("s_cselect_b32 s33, 1, 0x100")
    a("v_mov_b32 v163, s33")


def x_loads(a):
    srd(a, 20, 4, 2048 * 1152)
    a("buffer_load_dwordx4 %s, v%d, s[20:23], s%d offen" % (vr(XR, 4), vXO, sXO))


def out_phase(a):
    WFR, OF, ACC, PX = (20, 36, 100), 64, (52, 56, 60, 116), (146, 120)
    a("s_cmp_ge_u32 s52, 26")
    a("s_cbranch_scc1 L_end")
    if not OPT["gissue"]:
        a("s_waitcnt vmcnt(0)")
    stamp(a, 8)
    a("s_mov_b64 exec, 1")
    a("ds_add_u32 v%d, v163 offset:%d" % (vC, C_O))
    a("s_mov_b64 exec, -1")
    a.c("---- output projection and gated mix")
    a.label("L_out")

    def omx():
        for j in range(1):
            for q in range(4):
                xv = XR + 4 * j + q
                d = PX[j] + 2 * q
                a("v_lshlrev_b32 v%d, 16, v%d" % (d, xv))
                a("v_and_b32 v%d, 0xffff0000, v%d" % (d + 1, xv))
                a("v_pk_mul_f32 %s, %s, %s op_sel:[0,1] op_sel_hi:[1,1]" % (vr(d, 2), vr(d, 2), vr(GR + 2 * j, 2)))

    def reads(sl):
        st = WFR[sl % 3]
        return ["ds_read_b64_tr_b16 %s, v%d offset:%d" % (vr(st + 4 * t + 2 * sec, 2), A0 + t, (32 * sl + 16 * sec) * 128)
                for t in range(4) for sec in range(2)]

    lds_spin(a, "L_wo", vC, C_WO, 10, (2,), 0)
    for x in reads(0) + reads(1):
        a(x)
    a("s_mov_b32 s60, 0x200000")
    a.label("L_go2")
    a("ds_read_b64 v[10:11], v%d offset:%d" % (vC, C_O))
    a("s_waitcnt lgkmcnt(0)")
    a("v_readfirstlane_b32 s61, v10")
    a("v_readfirstlane_b32 s62, v11")
    a("s_and_b32 s61, s61, s%d" % sGATE)
    a("s_cmp_eq_u32 s61, s%d" % sGATE)
    a("s_cselect_b32 s62, s62, 0")
    a("s_cmp_eq_u32 s62, 1")
    a("s_cbranch_scc1 L_go2_d")
    a("s_sub_u32 s60, s60, 1")
    a("s_cbranch_scc0 L_go2")
    a.label("L_go2_d")
    if OPT["gissue"] == 2:
        a("s_cmp_eq_u32 s60, 0x200000")
        a("s_cbranch_scc1 L_go2_e")
        a("s_sleep %d" % OPT["cdel"])
        a.label("L_go2_e")
        a("s_waitcnt vmcnt(0)")
    elif OPT["cdel"]:
        a("s_sleep %d" % OPT["cdel"])
    stamp(a, 9)
    LAO = OPT["lao"]

    def oload(s):
        a("buffer_load_dwordx4 %s, v%d, s[24:27], s%d offen offset:%d sc1" % (vr(OF + 4 * s, 4), vL16, (sOB, 96, 97)[s // 4], 1024 * (s % 4)))

    def ocheck(sl):
        b = OF + 4 * sl
        if sl < 7:
            a("v_cmp_eq_u32 vcc, -1, v%d" % b)
        else:
            a("v_max3_u32 v10, v%d, v%d, v%d" % (b, b + 1, b + 2))
            a("v_max_u32 v10, v10, v%d" % (b + 3))
            a("v_cmp_eq_u32 vcc, -1, v10")
        a("s_nop 1")

    def oretry():
        for sl in range(9):
            a.label("L_or%d" % sl)
            a("s_sub_u32 s60, s60, 1")
            a("s_cbranch_scc1 L_ok%d" % sl)
            a("s_waitcnt vmcnt(0)")
            for s in range(sl, min(sl + LAO, 9)):
                oload(s)
            a("s_waitcnt vmcnt(%d)" % min(LAO - 1, 8 - sl))
            a("s_branch L_oc%d" % sl)

    RETRY.append(oretry)
    a("s_mov_b32 s60, 0x8000")
    for s in range(LAO):
        oload(s)
    a("ds_read_b32 v%d, v145" % GR)
    a("ds_read_b32 v10, v%d offset:%d" % (vC, C_IDX))
    srd(a, 20, 10, 2048 * 1152)
    a("s_waitcnt lgkmcnt(0) vmcnt(%d)" % LAO)
    a("v_readfirstlane_b32 s12, v10")
    a("v_sub_f32 v%d, 1.0, v%d" % (GR + 1, GR))
    bf16_round(a, GR + 1, GR + 1)
    omx()
    for sl in range(9):
        rd = reads(sl + 2) if sl < 7 else []
        a("s_waitcnt vmcnt(%d) lgkmcnt(%d)" % (min(LAO - 1, 8 - sl), 8 if sl < 8 else 0))
        a.label("L_oc%d" % sl)
        ocheck(sl)
        a("s_cbranch_vccnz L_or%d" % sl)
        a.label("L_ok%d" % sl)
        for t in range(4):
            d = vr(ACC[t], 4)
            a("v_mfma_f32_16x16x32_bf16 %s, %s, %s, %s" % (d, vr(WFR[sl % 3] + 4 * t, 4), vr(OF + 4 * sl, 4), "0" if sl == 0 else d))
            if t == 0 and sl + LAO < 9:
                oload(sl + LAO)
            for x in rd[2 * t:2 * t + 2]:
                a(x)
    stamp(a, 10)
    if OPT["stamp"]:
        a("s_sub_u32 s94, 0x8000, s60")
        a("s_mul_i32 s94, s94, 100")
        a("s_add_u32 s94, s94, s66")
        a("s_addc_u32 s95, s67, 0")
    a("v_mov_b32 v10, 1")
    a("ds_write_b128 v164, %s" % vr(ACC[2], 4))
    a("ds_write_b128 v164, %s offset:1024" % vr(ACC[3], 4))
    a("ds_write_b32 v165, v10 offset:%d" % C_PART)
    a("s_lshr_b32 s46, s12, 4")
    a("s_cmp_eq_u32 s46, s%d" % sTILE)
    a("s_cbranch_scc0 L_noy")
    lds_spin(a, "L_yw", vC, C_YRDY, 10, (1,))
    a("s_lshl_b32 s46, s%d, 7" % sKH)
    a("s_add_u32 s46, s46, %d" % YB)
    a("v_lshl_add_u32 v10, v%d, 5, s46" % vCH)
    a("ds_read_b128 v[12:15], v10")
    a("ds_read_b128 v[16:19], v10 offset:16")
    a("s_and_b32 s46, s12, 15")
    a("v_cmp_eq_u32 s[50:51], s46, v%d" % vRW)
    a("s_waitcnt lgkmcnt(0)")
    for q in range(4):
        xv = XR + q
        a("v_lshlrev_b32 v10, 16, v%d" % xv)
        a("v_and_b32 v11, 0xffff0000, v%d" % xv)
        a("v_add_f32 v10, v10, v%d" % (12 + 2 * q))
        a("v_add_f32 v11, v11, v%d" % (13 + 2 * q))
        a("v_cvt_pk_bf16_f32 v10, v10, v11")
        a("v_cndmask_b32 v%d, v%d, v10, s[50:51]" % (xv, xv))
    omx()
    a.label("L_noy")
    lds_spin(a, "L_pw", vPF, C_PART, 10, (1,), 0)
    stamp(a, 11)
    for t in range(2):
        a("ds_read_b128 %s, v%d offset:%d" % (vr(20 + 4 * t, 4), vPX, 1024 * t))
    a("s_waitcnt lgkmcnt(0)")
    for t in range(2):
        b = ACC[t]
        a("v_pk_add_f32 %s, %s, %s" % (vr(b, 2), vr(b, 2), vr(20 + 4 * t, 2)))
        a("v_pk_add_f32 %s, %s, %s" % (vr(b + 2, 2), vr(b + 2, 2), vr(22 + 4 * t, 2)))
        a("v_cvt_pk_bf16_f32 v%d, v%d, v%d" % (40 + 2 * t, b, b + 1))
        a("v_cvt_pk_bf16_f32 v%d, v%d, v%d" % (41 + 2 * t, b + 2, b + 3))
        a("ds_write_b64 v%d, %s offset:%d" % (vSW, vr(40 + 2 * t, 2), 32 * t))
    a("ds_read_b128 v[20:23], v%d" % vSR)
    a("s_waitcnt lgkmcnt(0)")
    for q in range(4):
        d = PX[0] + 2 * q
        a("v_lshlrev_b32 v%d, 16, v%d" % (10 + 2 * q, 20 + q))
        a("v_and_b32 v%d, 0xffff0000, v%d" % (11 + 2 * q, 20 + q))
        a("v_pk_fma_f32 %s, %s, %s, %s op_sel_hi:[1,0,1]" % (vr(d, 2), vr(10 + 2 * q, 2), vr(GR, 2), vr(d, 2)))
    for q in range(4):
        d = PX[0] + 2 * q
        a("v_cvt_pk_bf16_f32 v%d, v%d, v%d" % (32 + q, d, d + 1))
    a("buffer_store_dwordx4 v[32:35], v%d, s[20:23], s%d offen %s" % (vXO, sXO, OPT["ost"]))
    if OPT["stamp"]:
        stamp(a, 12)
        a("s_waitcnt vmcnt(0)")
        stamp(a, 13)
        stamp_end(a, OPT["stw"], 0)
        stamp_end(a, 10, 2)
    a("s_endpgm")


RETRY = []
GLATE = []


def late_and_slow(a):
    RETRY[0]()
    a.c("---- first two query blocks: key tiles before the sequence start are skipped")
    a.label("L_late")
    a("s_mul_i32 s50, s41, 2304")
    a("v_add_u32 v%d, s50, v%d" % (T + 8, vK))
    a("v_add_u32 v%d, s50, v%d" % (T + 9, vKt))
    a("v_mul_u32_u24 v%d, s41, v%d" % (T + 2, vStep))
    a("v_add_u32 v%d, v%d, v%d" % (vV, vV, T + 2))
    for r in list(range(OO, OO + 16)) + list(range(VF[0], VF[0] + 32)):
        a("v_mov_b32 v%d, 0" % r)
    landed(a, 1, 0)
    stage_spin(a, "L_lt", 0)
    for x in q_reads():
        a(x)
    a("s_waitcnt lgkmcnt(0)")
    lds_inc(a, vC, T, C_B)
    x_loads(a)
    a("s_bitcmp1_b32 s41, 0")
    a("s_cbranch_scc1 L_late1")
    for par in range(2):
        if par:
            a.label("L_late1")
        for x in k_reads(par, T + 8, T + 9, 0):
            a(x)
        for x in k_reads(par + 1, T + 8, T + 9, 0):
            a(x.replace("offset:8", "offset:2312").replace("offset:0", "offset:2304"))
        for x in v_reads(par):
            a(x)
        a("s_waitcnt lgkmcnt(7)")
        a("v_cndmask_b32 v%d, 0, v%d, s[54:55]" % (QT, QT))
        a("v_cndmask_b32 v%d, 0, v%d, s[56:57]" % (QT + 1, QT + 1))
        for x in qk(par):
            a(x)
        a("s_nop 7")
        a("s_nop 3")
        for i0 in range(2 - par, 9, 2):
            a("s_cmp_eq_u32 s41, %d" % i0)
            a("s_cbranch_scc1 L_it%d" % i0)
        a("s_branch L_it%d" % (8 - par))

    a.c("---- two passes over the key tiles with the true row maximum")
    a.label("L_slow")
    vKs, vKts, vM, vD0, vNeg = T + 8, T + 9, T + 10, T + 11, T + 12
    a("v_and_b32 v%d, 31, v0" % T)
    a("v_lshrrev_b32 v%d, 5, v0" % (T + 1))
    a("v_lshlrev_b32 v%d, 2, v%d" % (vD0, T + 1))
    a("v_sub_u32 v%d, v%d, v%d" % (vD0, vD0, T))
    a("v_mov_b32 v%d, 0xff800000" % vNeg)
    a("v_mov_b32 v%d, v%d" % (vM, vNeg))
    a("s_max_i32 s50, s41, 0")
    a("s_sub_u32 s51, 8, s50")
    a("v_mul_u32_u24 v%d, s51, v%d" % (T, vStep))
    a("v_sub_u32 v%d, v%d, v%d" % (vV, vV, T))
    a("s_mul_i32 s51, s50, 2304")
    for r in range(16):
        a("v_mov_b32 v%d, 0" % (OO + r))
    for ps in range(2):
        lab = "L_sp%d" % ps
        a("v_add_u32 v%d, s51, v%d" % (vKs, vK))
        a("v_add_u32 v%d, s51, v%d" % (vKts, vKt))
        a("s_mov_b32 s46, s50")
        a.label(lab)
        for x in k_reads(0, vKs, vKts):
            a(x)
        if ps == 1:
            for x in v_reads(0):
                a(x)
        a("s_mov_b32 s47, -31")
        a("s_mov_b32 s48, 62")
        a("s_cmp_eq_u32 s46, 0")
        a("s_cselect_b32 s47, 1, s47")
        a("s_cselect_b32 s48, 30, s48")
        a("s_cmp_eq_u32 s46, 8")
        a("s_cselect_b32 s48, 31, s48")
        a("s_waitcnt lgkmcnt(0)")
        for x in qk(0):
            a(x)
        a("v_subrev_u32 v%d, s47, v%d" % (T, vD0))
        for r in range(16):
            a("v_add_u32 v%d, %d, v%d" % (T + 1, 8 * (r >> 2) + (r & 3), T))
            a("v_cmp_ge_u32 vcc, s48, v%d" % (T + 1))
            a("v_cndmask_b32 v%d, v%d, v%d, vcc" % (SS[0] + r, vNeg, SS[0] + r))
            if ps == 0:
                a("v_max_f32 v%d, v%d, v%d" % (vM, vM, SS[0] + r))
            else:
                a("v_sub_f32 v%d, v%d, v%d" % (SS[0] + r, SS[0] + r, vM))
                a("v_exp_f32 v%d, v%d" % (SS[0] + r, SS[0] + r))
        if ps == 1:
            for q in range(8):
                a("v_cvt_pk_bf16_f32 v%d, v%d, v%d" % (PP[0] + q, SS[0] + 2 * q, SS[0] + 2 * q + 1))
            for x in pv(0, False):
                a(x)
            a("v_add_u32 v%d, v%d, v%d" % (vV, vV, vStep))
        a("v_add_u32 v%d, 2304, v%d" % (vKs, vKs))
        a("v_add_u32 v%d, 2304, v%d" % (vKts, vKts))
        a("s_add_u32 s46, s46, 1")
        a("s_cmp_lt_u32 s46, 9")
        a("s_nop 7")
        a("s_nop 7")
        a("s_cbranch_scc1 %s" % lab)
        if ps == 0:
            a("v_mov_b32 v%d, v%d" % (T, vM))
            a("v_permlane32_swap_b32 v%d, v%d" % (T, vM))
            a("v_max_f32 v%d, v%d, v%d" % (vM, vM, T))
    a("v_rcp_f32 v%d, v%d" % (T, OO + 12))
    a("s_nop 1")
    a("s_branch L_fin")


def helpers(a):
    a.c("---- helper waves")
    a.label("L_help")
    a("s_cmp_eq_u32 s3, 9")
    a("s_cbranch_scc0 L_help1")
    code_touch(a)
    a.label("L_help1")
    a("v_mov_b32 v3, %d" % CTL)
    for k in range(4):
        a("v_mov_b32 v%d, 0" % (4 + k))
    a("v_lshlrev_b32 v1, 4, v0")
    a("v_add_u32 v2, v1, v3")
    a("s_mov_b64 exec, 0xff")
    a("ds_write_b128 v2, v[4:7]")
    a("s_mov_b64 exec, -1")
    a("s_waitcnt lgkmcnt(0)")
    load_tag(a)
    a("s_barrier")
    a("s_barrier")
    a("s_waitcnt lgkmcnt(0)")
    make_tag(a)
    a.label("L_help2")
    decode2(a)
    a("s_cmp_eq_u32 s3, 8")
    a("s_cbranch_scc1 L_down")
    a("v_lshrrev_b32 v1, 5, v0")
    a("v_bfe_u32 v2, v0, 3, 2")
    a("v_lshrrev_b32 v10, 4, v0")
    a("v_lshlrev_b32 v10, 1, v10")
    a("v_and_b32 v11, 7, v0")
    a("v_xor_b32 v10, v10, v11")
    a("v_lshl_add_u32 v4, v1, 2, v2")
    a("v_mul_u32_u24 v4, 1152, v4")
    a("v_lshl_add_u32 v4, v10, 4, v4")
    a("v_mul_u32_u24 v5, 72, v1")
    a("v_add_u32 v5, v5, v2")
    a("v_mul_u32_u24 v5, 1152, v5")
    a("v_lshl_add_u32 v5, v10, 4, v5")
    a("s_sub_u32 s36, s3, 9")
    a("s_mul_i32 s37, s36, %d" % (20 * 1152))
    a("s_mul_i32 s43, s36, %d" % (144 * 1152))
    a("s_lshl_b32 s38, s36, 10")
    a("s_add_u32 s38, s38, %d" % WO)
    a("s_lshl_b32 s39, s53, 7")
    a("s_sub_u32 s42, %d, s39" % (576 * 1152))
    srd_off(a, 16, 28, "s39", "s42")
    srd_off(a, 24, 8, L.WS_O, 128 * 18432)
    a("v_mov_b32 v%d, %d" % (vC, CTL))
    a("s_sub_u32 s40, s3, 5")
    out_setup(a, 40)
    a("s_setprio %d" % OPT["pr3"])
    a("s_cmp_ge_u32 s2, 192")
    a("s_cbranch_scc1 L_wo_go")
    for k in range(9):
        a("s_barrier")
    a.label("L_wo_go")
    a("s_cmp_eq_u32 s3, 11")
    a("s_cbranch_scc1 L_ctl")
    a("s_cmp_ge_u32 s52, 26")
    a("s_cbranch_scc1 L_end")
    if OPT["woe"]:
        a("s_cmp_ge_u32 s2, 192")
        a("s_cbranch_scc1 L_wo_e_d")
        lds_spin(a, "L_wo_e", 3, C_FI, 10, (8,), 0)
    stamp(a, 5)
    for m in range(36):
        if m == OPT["woe"]:
            stage_spin(a, "L_wo_w", 0, 3, 10, 2)
        st, sec = m >> 1, m & 1
        a("s_add_u32 m0, s38, %d" % (2048 * m))
        if st < 16:
            a("s_add_u32 s40, s37, %d" % ((36 * st + 8 * sec) * 1152))
            a("buffer_load_dwordx4 v4, s[16:19], s40 offen lds")
        else:
            a("s_add_u32 s40, s43, %d" % ((288 * (st - 16) + 36 * sec + 16) * 1152))
            a("buffer_load_dwordx4 v5, s[16:19], s40 offen lds")
        if OPT["wth"] and m >= OPT["wth"] - 1:
            a("s_waitcnt vmcnt(%d)" % (OPT["wth"] - 1))
    x_loads(a)
    a("s_waitcnt vmcnt(1)")
    stamp(a, 6)
    lds_inc(a, 3, 4, C_WO)
    a("s_setprio 0")
    a("s_branch L_out")
    a.c("---- wave 11: flags, all-ones fill, routed update")
    a.label("L_ctl")
    a("v_lshlrev_b32 v8, 7, v0")
    a("v_add_u32 v9, %d, v8" % (L.WS_FLAG + F_PA * 128))
    a("s_mul_i32 s46, s52, 5")
    a("s_lshr_b32 s46, s46, 3")
    a("s_min_u32 s46, s46, 14")
    a("s_lshl_b32 s46, s46, 11")
    a("s_add_u32 s46, s46, %d" % (L.WS_FLAG + F_O * 128))
    a("v_add_u32 v8, s46, v8")
    a("s_lshl_b32 s46, s32, 4")
    a("s_add_u32 s46, s46, s31")
    a("s_lshl_b32 s46, s46, 7")
    a("s_add_u32 s46, s46, %d" % (L.WS_FLAG + F_O * 128))
    a("v_mov_b32 v14, s46")
    a("v_mov_b32 v15, s%d" % TAG)
    a("s_cmp_ge_u32 s2, 192")
    a("s_cbranch_scc1 L_ct_0")
    qpoll(a, 3, "L_qp1", True)
    a.label("L_ct_0")
    AUXLATE = OPT["auxp"]
    def aux():
        flag_poll(a, "L_pap", 9, 4, "s%d" % TAG, 64, 8, 3)
        a("v_mov_b32 v10, v5")
        a("v_mov_b32 v11, v6")
        a("v_mov_b32 v4, 1")
        a("ds_write_b64 v3, v[10:11] offset:%d" % C_IDX)
        a("ds_write_b32 v3, v4 offset:%d" % C_PA)
        srd_off(a, 16, 8, L.WS_G, 8192)
        a("s_mul_i32 s40, s52, 320")
        a("v_lshlrev_b32 v4, 2, v0")
        a("buffer_load_dword v5, v4, s[16:19], s40 offen sc1")
        a("buffer_load_dword v6, v4, s[16:19], s40 offen offset:256 sc1")
        a("v_add_u32 v4, %d, v4" % GB)
        GLATE.append(1)
        stamp(a, 5)

    if not AUXLATE:
        aux()
    a("v_bfe_u32 v20, v0, 4, 1")
    a("v_mul_u32_u24 v20, 18432, v20")
    a("v_and_b32 v21, 15, v0")
    a("v_lshl_add_u32 v20, v21, 4, v20")
    a("v_lshrrev_b32 v21, 5, v0")
    a("v_lshl_add_u32 v22, v21, 2, v20")
    a("v_lshl_add_u32 v21, v21, 8, v20")
    for k in range(4):
        a("v_mov_b32 v%d, -1" % (24 + k))
    a("s_mul_i32 s54, s32, %d" % (8 * 18432))
    a("s_lshl_b32 s55, s31, 10")
    a("s_add_u32 s55, s55, s54")
    a("s_lshr_b32 s56, s31, 1")
    a("s_lshl_b32 s56, s56, 8")
    a("s_and_b32 s57, s31, 1")
    a("s_lshl_b32 s57, s57, 3")
    a("s_add_u32 s56, s56, s57")
    a("s_add_u32 s56, s56, s54")
    a("s_add_u32 s56, s56, 16384")
    if OPT["pearly"]:
        lds_spin(a, "L_ct_p", 3, C_1, 10, (8, 1), 0)
        a("s_sleep %d" % OPT["pearly"])
    else:
        stage_spin(a, "L_ct_p", 0, 3, 10, 0)
    for j in range(4):
        a("buffer_store_dword v24, v22, s[24:27], s56 offen sc1")
        a("buffer_store_dwordx4 v[24:27], v21, s[24:27], s55 offen sc1")
        a("buffer_store_dwordx4 v[24:27], v21, s[24:27], s55 offen offset:512 sc1")
        a("s_add_u32 s55, s55, %d" % (2 * 18432))
        a("s_add_u32 s56, s56, %d" % (2 * 18432))
    a("v_mov_b32 v4, 1")
    a("s_waitcnt vmcnt(0)")
    a("ds_write_b32 v3, v4 offset:%d" % C_C)
    a("s_mov_b64 exec, 1")
    a("global_store_dword v14, v15, s[8:9] sc1")
    a("s_mov_b64 exec, -1")
    stamp(a, 6)
    lds_spin(a, "L_ct_q", 3, C_B, 10, (8,), 1)
    if AUXLATE:
        aux()
    else:
        a("s_sleep %d" % OPT["slp3"])
    flag_poll(a, "L_op", 8, 12, "s%d" % TAG, 32, 2)
    a("ds_write_b32 v4, v5")
    a("ds_write_b32 v4, v6 offset:256")
    lds_inc(a, 3, 10, C_GO2)
    stamp(a, 7)
    stamp_end(a, 11 if OPT["st11"] else 99, 3)
    a("ds_read_b64 v[10:11], v3 offset:%d" % C_IDX)
    a("s_waitcnt lgkmcnt(0)")
    a("v_readfirstlane_b32 s12, v10")
    a("v_readfirstlane_b32 s13, v11")
    a("s_mul_i32 s46, s52, 80")
    a("s_sub_u32 s46, s12, s46")
    a("s_cmp_lt_u32 s46, 80")
    a("s_cbranch_scc0 L_end")
    a("v_lshlrev_b32 v4, 7, v0")
    a("v_add_u32 v4, %d, v4" % (L.WS_FLAG + F_Y * 128))
    srd_off(a, 16, 8, L.WS_YP, 16 * 2304)
    a("v_lshrrev_b32 v6, 4, v0")
    a("v_mul_u32_u24 v6, 2304, v6")
    a("v_and_b32 v7, 15, v0")
    a("v_lshlrev_b32 v7, 4, v7")
    a("v_add_u32 v6, v6, v7")
    a("v_add_u32 v7, %d, v7" % YB)
    a("s_lshl_b32 s40, s53, 8")
    flag_poll(a, "L_yp", 4, 5, "12", 16, 2)
    for i in range(4):
        a("buffer_load_dwordx4 %s, v6, s[16:19], s40 offen sc1" % vr(8 + 4 * i, 4))
        a("s_add_u32 s40, s40, %d" % (4 * 2304))
    a("s_waitcnt vmcnt(0)")
    for i in range(1, 4):
        a("v_pk_add_f32 v[8:9], v[8:9], %s" % vr(8 + 4 * i, 2))
        a("v_pk_add_f32 v[10:11], v[10:11], %s" % vr(10 + 4 * i, 2))
    for k in range(4):
        a("v_mov_b32 v20, v%d" % (8 + k))
        a("v_permlane32_swap_b32 v20, v%d" % (8 + k))
        a("v_add_f32 v%d, v%d, v20" % (8 + k, 8 + k))
        a("v_mov_b32 v20, v%d" % (8 + k))
        a("v_permlane16_swap_b32 v20, v%d" % (8 + k))
        a("v_add_f32 v%d, v%d, v20" % (8 + k, 8 + k))
        bf16_round(a, 8 + k, 8 + k)
        a("v_mul_f32 v%d, s13, v%d" % (8 + k, 8 + k))
        bf16_round(a, 8 + k, 8 + k)
    a("v_mov_b32 v12, 1")
    a("ds_write_b128 v7, v[8:11]")
    a("ds_write_b32 v3, v12 offset:%d" % C_YRDY)
    a("s_cmp_eq_u32 s53, 0")
    a("s_cbranch_scc0 L_end")
    a("v_mov_b32 v4, %d" % L.WS_EPOCH)
    a("v_mov_b32 v5, s%d" % TAG)
    a("s_mov_b64 exec, 1")
    a("global_store_dword v4, v5, s[8:9]")
    a("s_endpgm")

    a.c("---- wave 8: down projection")
    a.label("L_down")
    a("s_cmp_ge_u32 s2, 192")
    a("s_cbranch_scc1 L_end")
    DW, DA = 20, 128
    a("v_lshrrev_b32 v2, 3, v0")
    a("v_and_b32 v10, 7, v0")
    a("v_mul_u32_u24 v16, 1152, v2")
    a("v_lshl_add_u32 v16, v10, 4, v16")
    a("s_mul_i32 s36, s2, 24")
    a("v_mul_u32_u24 v12, %d, v10" % (4608 * 16))
    a("v_add_u32 v11, s36, v2")
    a("v_lshl_add_u32 v17, v11, 4, v12")
    a("v_cmp_gt_u32 s[56:57], 7, v10")
    a("s_mul_i32 s37, s2, %d" % (24 * 1152))
    a("v_and_b32 v1, 1, v0")
    a("v_lshlrev_b32 v1, 4, v1")
    sel_masks(a, 44, 11)
    a("v_lshrrev_b32 v11, 5, v0")
    a("v_bfe_u32 v12, v0, 3, 1")
    a("v_cmp_eq_u32 s[52:53], v11, v12")
    a("v_mul_u32_u24 v12, 2304, v12")
    a("v_bfe_u32 v11, v0, 4, 1")
    a("v_lshl_add_u32 v12, v11, 4, v12")
    a("v_lshl_add_u32 v12, v10, 5, v12")
    a("v_add_u32 v164, %d, v12" % HP)
    a("v_lshlrev_b32 v165, 2, v0")
    a("v_lshl_add_u32 v166, v10, 3, v2")
    a("v_lshlrev_b32 v166, 2, v166")
    a("v_add_u32 v166, %d, v166" % HP)
    a("v_cmp_eq_u32 s[58:59], 1, v10")
    a("v_cmp_eq_u32 s[54:55], 2, v10")
    a("s_and_b32 s38, s2, 15")
    a("s_mul_i32 s39, s38, 2304")
    a("s_add_u32 s39, s39, %d" % L.WS_YP)
    a("v_add_u32 v165, s39, v165")
    a("s_lshl_b32 s38, s38, 7")
    a("s_add_u32 s38, s38, %d" % (L.WS_FLAG + F_Y * 128))
    srd_off(a, 16, 14, "s37", 24 * 1152)
    srd_off(a, 20, 8, L.WS_PA, 7 * 4608 * 16)
    def dloads(ts=(0, 1, 2)):
        for t in (() if OPT["nodown"] else ts):
            a("s_movk_i32 s40, %d" % (9216 * t))
            for cg in range(9):
                a("buffer_load_dwordx4 %s, v16, s[16:19], s40 offen offset:%d %s" % (vr(DW + 4 * (9 * t + cg), 4), 128 * cg, "" if OPT["dtouch"] else "nt"))

    for k in range(2, 11):
        if OPT["dsplit"]:
            if k in (8, 9, 10):
                dloads((k - 8,))
        elif k == OPT["dpos"]:
            dloads()
        a("s_barrier")
    if OPT["dpos"] == -1:
        a("s_setprio 3")
        stage_spin(a, "L_dn_w2", 0, 3, 10, 0)
        dloads()
    elif OPT["dpos"] == -2:
        a("s_setprio 3")
        lds_spin(a, "L_dn_w2", 3, C_WO, 10, (2,), 2)
        dloads()
    elif OPT["dpos"] == -3:
        a("s_setprio 3")
        lds_spin(a, "L_dn_w2", 3, C_1, 10, (8, 1), 0)
        a("s_sleep 8")
        dloads()
    elif OPT["w8e"] == 2:
        lds_spin(a, "L_dn_w2", 3, C_1, 10, (8, 1), 2)
        a("s_sleep 6")
    elif OPT["w8e"]:
        lds_spin(a, "L_dn_w2", 3, C_1, 10, (8,), 2)
    else:
        stage_spin(a, "L_dn_w2", 0, 3, 10, 2)
    stamp(a, 5)
    a("s_setprio %d" % OPT["pr1"])
    a("s_mov_b32 s60, 0x40000")
    a.label("L_dn_pa")
    a("buffer_load_dwordx3 v[4:6], v17, s[20:23], 0 offen sc1")
    a("buffer_load_dwordx3 v[8:10], v17, s[20:23], 0 offen offset:128 sc1")
    a("buffer_load_dwordx3 v[160:162], v17, s[20:23], 0 offen offset:256 sc1")
    a("s_waitcnt vmcnt(0)")
    a("v_cmp_ne_u32 vcc, s%d, v6" % TAG)
    a("v_cmp_ne_u32 s[40:41], s%d, v10" % TAG)
    a("v_cmp_ne_u32 s[42:43], s%d, v162" % TAG)
    a("s_or_b64 vcc, vcc, s[40:41]")
    a("s_or_b64 vcc, vcc, s[42:43]")
    a("s_and_b64 vcc, vcc, s[56:57]")
    a("s_cmp_eq_u64 vcc, 0")
    a("s_cbranch_scc1 L_dn_pb")
    a("s_sleep 8")
    a("s_sub_u32 s60, s60, 1")
    a("s_cbranch_scc0 L_dn_pa")
    a.label("L_dn_pb")
    stamp(a, 8)
    a("v_mov_b32 v6, v8")
    a("v_mov_b32 v7, v9")
    a("v_mov_b32 v8, v160")
    a("v_mov_b32 v9, v161")
    sum8(a, (4, 5, 6, 7, 8, 9))
    a("v_cndmask_b32 v4, v4, v6, s[58:59]")
    a("v_cndmask_b32 v5, v5, v7, s[58:59]")
    a("v_cndmask_b32 v4, v4, v8, s[54:55]")
    a("v_cndmask_b32 v5, v5, v9, s[54:55]")
    bf16_round(a, 4, 4)
    bf16_round(a, 5, 5)
    sigmoid(a, 10, 4)
    a("v_mul_f32 v4, v4, v10")
    bf16_round(a, 4, 4)
    a("v_mul_f32 v4, v4, v5")
    a("v_cvt_pk_bf16_f32 v4, v4, v4")
    a("v_and_b32 v4, 0xffff, v4")
    a("v_mov_b32_dpp v4, v4 row_shr:4 row_mask:0xf bank_mask:0xa")
    for t in range(3):
        a("v_mov_b32_dpp v%d, v4 quad_perm:[%d,%d,%d,%d] row_mask:0xf bank_mask:0xf" % (6 + t, t, t, t, t))
    for t in range(3):
        a("v_lshlrev_b32 v%d, v1, v%d" % (6 + t, 6 + t))
    for t in range(3):
        selector(a, 12, 6 + t, 44)
        for cg in range(9):
            d = vr(DA + 4 * cg, 4)
            a("v_mfma_f32_16x16x32_bf16 %s, %s, v[12:15], %s" % (d, vr(DW + 4 * (9 * t + cg), 4), "0" if t == 0 else d))
    a("s_mov_b64 exec, s[52:53]")
    for cg in range(9):
        a("ds_write_b128 v164, %s offset:%d" % (vr(DA + 4 * cg, 4), 256 * cg))
    a("s_mov_b64 exec, -1")
    for cg in range(9):
        a("ds_read2st64_b32 %s, v166 offset0:%d offset1:%d" % (vr(20 + 2 * cg, 2), cg, cg + 9))
    if OPT["atw"]:
        lds_spin(a, "L_dn_at", 3, C_WO, 10, (2,), 2)
    else:
        stage_spin(a, "L_dn_at", 0, 3, 10, 2)
    lds_spin(a, "L_dn_ax", 3, C_PA, 10, (1,), 1)
    for cg in range(9):
        a("v_add_f32 v%d, v%d, v%d" % (20 + 2 * cg, 20 + 2 * cg, 21 + 2 * cg))
        if not OPT["noat"]:
            a("global_atomic_add_f32 v165, v%d, s[8:9] offset:%d" % (20 + 2 * cg, 256 * cg))
    a("v_mov_b32 v4, s38")
    a("v_mov_b32 v5, 1")
    a("s_waitcnt vmcnt(0)")
    stamp(a, 7)
    a("s_mov_b64 exec, 1")
    a("global_atomic_add v4, v5, s[8:9] sc1")
    stamp_end(a, 8, 1)


def kf(a):
    a.label(NAME)
    a("s_cmp_ge_u32 s2, 256")
    a("s_cbranch_scc1 L_end")
    stamp_init(a)
    stamp(a, 0)
    a("s_load_dwordx4 s[4:7], s[0:1], 0")
    a("s_load_dwordx2 s[8:9], s[0:1], 88")
    a("s_load_dwordx2 s[10:11], s[0:1], 72")
    a("s_load_dwordx2 s[14:15], s[0:1], 56")
    a("s_load_dwordx2 s[28:29], s[0:1], 16")
    a("v_lshrrev_b32 v1, 6, v0")
    a("v_and_b32 v0, 63, v0")
    a("v_readfirstlane_b32 s3, v1")
    a("s_and_b32 s30, s2, 3")
    a("s_bfe_u32 s31, s2, 0x10002")
    a("s_lshr_b32 s32, s2, 3")
    a("s_cmp_ge_u32 s32, 24")
    a("s_cbranch_scc1 L_sp")
    a("s_cmp_ge_u32 s3, 8")
    a("s_cbranch_scc1 L_help")
    gemm_phase(a)
    attention_phase(a)
    out_phase(a)
    late_and_slow(a)
    spare_phase(a)
    helpers(a)
    a.label("L_end")
    a("s_endpgm")
```

```python
from asmdsl import vr, sr
import layout as L
from common import *
from k2 import (KB, VB, QB, ONES, vK, vKt, vV, vStep, QM, QT, MSK, KF, VF, PP, SS, OO, T,
                k_reads, v_reads, qk, pv)

NAME = "gated_mix__sliding_block__moe_arch_mod__prompt_kernel"
SLOT = 34816
IMG = SLOT
WO = 66560
CTL = 149568
YB = 149696
HP = 150016
YT = 154624
XS = 156672
KF_LDS = 162304
PSLOT = (QB, QB + 4096, 140288, 144384, 158208)
KF_VGPR = 168
PART = 0
STG = 20480
XR, GR = 128, 136
vC = 154
TAG = 65
C_O, C_GO2, C_A, C_WO, C_PART, C_YRDY, C_B, C_1, C_GO1, C_C, C_PA, C_IDX, C_RSEL = 0, 4, 8, 12, 88, 32, 36, 40, 44, 48, 52, 56, 60
C_KMAX, C_KCNT, C_XS, C_GD, C_RED, C_RED2, C_FI, C_IX = 64, 68, 72, 76, 80, 84, 16, 20
F_Q, F_O, F_PA, F_Y = 0, 192, 448, 512


def lds_spin(a, name, addr_v, off, regs, conds, slp=1):
    n = len(conds)
    a("s_mov_b32 s60, 0x200000")
    a.label(name)
    a(("ds_read_b64 %s, v%d offset:%d" % (vr(regs, 2), addr_v, off)) if n == 2 else
      ("ds_read_b32 v%d, v%d offset:%d" % (regs, addr_v, off)))
    a("s_waitcnt lgkmcnt(0)")
    a("v_readfirstlane_b32 s61, v%d" % regs)
    if n == 2:
        a("v_readfirstlane_b32 s62, v%d" % (regs + 1))
        a("s_lshl_b32 s62, s62, 8")
        a("s_or_b32 s61, s61, s62")
        a("s_cmp_eq_u32 s61, %d" % (conds[0] | (conds[1] << 8)))
    else:
        a("s_cmp_eq_u32 s61, %d" % conds[0])
    a("s_cbranch_scc1 %s_d" % name)
    if slp:
        a("s_sleep %d" % slp)
    a("s_sub_u32 s60, s60, 1")
    a("s_cmp_lg_u32 s60, 0")
    a("s_cbranch_scc1 %s" % name)
    a.label(name + "_d")


def stage_spin(a, name, stage, vc=vC, T=T, slp=0):
    a("s_mov_b32 s60, 0x200000")
    a.label(name)
    a("ds_read_b32 v%d, v%d offset:%d" % (T, vc, C_A))
    a("s_waitcnt lgkmcnt(0)")
    a("v_readfirstlane_b32 s61, v%d" % T)
    a("s_bitcmp1_b32 s61, %d" % (8 * stage + 3))
    a("s_cbranch_scc1 %s_d" % name)
    if slp:
        a("s_sleep %d" % slp)
    a("s_sub_u32 s60, s60, 1")
    a("s_cmp_lg_u32 s60, 0")
    a("s_cbranch_scc1 %s" % name)
    a.label(name + "_d")


def landed(a, inc, vm):
    a("v_mov_b32 v%d, %s" % (T, hex(inc)))
    a("s_waitcnt vmcnt(%d)" % vm)
    a("s_mov_b64 exec, 1")
    a("ds_add_u32 v%d, v%d offset:%d" % (vC, T, C_A))
    a("s_mov_b64 exec, -1")


def poison(a):
    if OPT["nopois"]:
        a("s_nop 0")
        a("buffer_load_dword v155, v152, s[24:27], s59 offen")
        a("buffer_load_dword v155, v152, s[24:27], s59 offen")
        return
    for k in range(4):
        a("v_mov_b32 v%d, -1" % (120 + k))
    a("buffer_store_dwordx4 %s, v153, s[24:27], s58 offen sc1" % vr(120, 4))
    a("s_mov_b32 exec_hi, 0")
    a("buffer_store_dword v%d, v152, s[24:27], s59 offen sc1" % 120)
    a("s_mov_b32 exec_hi, -1")


def tail_touch(a):
    a("buffer_load_dword v155, v152, s[24:27], s59 offen")


def flag_poll(a, name, voff, vt, want, lanes, slp=1, width=1, first=False):
    a("s_mov_b64 exec, %s" % ("-1" if lanes == 64 else hex((1 << lanes) - 1)))
    a("s_mov_b32 s60, 0x40000")
    a.label(name)
    if first:
        a("s_sleep %d" % slp)
        slp = 0
    a("global_load_dword%s %s, v%d, s[8:9] sc1" % ("" if width == 1 else "x%d" % width, vr(vt, width), voff))
    a("s_waitcnt vmcnt(0)")
    a("v_cmp_eq_u32 vcc, %s, v%d" % (want, vt))
    a("s_cmp_eq_u64 vcc, exec")
    a("s_cbranch_scc1 %s_d" % name)
    if slp:
        a("s_sleep %d" % slp)
    a("s_sub_u32 s60, s60, 1")
    a("s_cmp_lg_u32 s60, 0")
    a("s_cbranch_scc1 %s" % name)
    a.label(name + "_d")
    a("s_mov_b64 exec, -1")


def lds_inc(a, vz, vt, off, rtn=False):
    a("v_mov_b32 v%d, 1" % vt)
    a("s_mov_b64 exec, 1")
    if rtn:
        a("ds_add_rtn_u32 v%d, v%d, v%d offset:%d" % (vt, vz, vt, off))
    else:
        a("ds_add_u32 v%d, v%d offset:%d" % (vz, vt, off))
    a("s_mov_b64 exec, -1")


def load_tag(a):
    a("s_mov_b32 s64, %d" % L.WS_EPOCH)
    a("s_load_dword s%d, s[8:9], s64" % TAG)


def make_tag(a):
    a("s_mul_i32 s%d, s%d, 0x9e3779b1" % (TAG, TAG))
    a("s_add_u32 s%d, s%d, 0x7f4a7c15" % (TAG, TAG))


def copy_scalars(a):
    a("s_mul_i32 s55, s34, %d" % (4 * L.PAIR_BYTES))
    a("s_mul_i32 s56, s35, 9216")
    a("s_add_u32 s55, s55, s56")
    a("s_lshl_b32 s56, s3, 10")
    a("s_add_u32 s55, s55, s56")
    for j in range(5):
        a("s_add_u32 s57, s3, %d" % (8 * j))
        a("s_mul_i32 s57, s57, 57")
        a("s_lshr_b32 s57, s57, 9")
        a("s_mul_i32 s57, s57, %d" % (L.PAIR_BYTES - 9216))
        a("s_add_u32 s57, s57, s55")
        a("s_add_u32 s%d, s57, %d" % (50 + j, 8192 * j))
    a("s_mul_i32 s58, s35, 12")
    a("s_add_u32 s58, s58, s34")
    a("s_lshl_b32 s58, s58, 7")
    a("s_add_u32 s58, s58, %d" % (L.WS_FLAG + F_Q * 128))


def decode2(a):
    if OPT["amap"]:
        a("s_and_b32 s31, s2, 7")
        a("s_lshl_b32 s31, s31, 1")
        a("s_bfe_u32 s32, s2, 0x10003")
        a("s_add_u32 s31, s31, s32")
        a("s_lshr_b32 s30, s31, 2")
        a("s_lshr_b32 s32, s2, 4")
        a("s_add_u32 s32, s32, 4")
        a("s_and_b32 s32, s32, 15")
    else:
        a("s_and_b32 s30, s2, 3")
        a("s_bfe_u32 s33, s2, 0x10002")
        a("s_bfe_u32 s32, s2, 0x20003")
        a("s_lshl_b32 s31, s30, 2")
        a("s_add_u32 s31, s31, s32")
        a("s_lshl_b32 s32, s33, 3")
        a("s_lshr_b32 s34, s2, 5")
        if OPT["light"]:
            a("s_add_u32 s34, s34, 2")
            a("s_and_b32 s34, s34, 7")
        a("s_add_u32 s32, s32, s34")
    a("s_lshr_b32 s33, s2, 3")
    a("s_mul_i32 s34, s33, 57")
    a("s_lshr_b32 s34, s34, 9")
    a("s_mul_i32 s53, s34, 9")
    a("s_sub_u32 s53, s33, s53")
    a("s_lshl_b32 s52, s34, 3")
    a("s_and_b32 s34, s2, 7")
    a("s_add_u32 s52, s52, s34")
    a("s_sub_u32 s33, s2, 216")
    a("s_mul_i32 s34, s33, 57")
    a("s_lshr_b32 s34, s34, 9")
    a("s_mul_i32 s35, s34, 9")
    a("s_sub_u32 s33, s33, s35")
    a("s_add_u32 s34, s34, 24")
    a("s_cmp_ge_u32 s2, 216")
    a("s_cselect_b32 s52, s34, s52")
    a("s_cselect_b32 s53, s33, s53")


def qpoll(a, vc, name, own, r=16):
    R = dict(a=r, b=r + 1, c=r + 2)
    a("v_add_u32 v%(a)d, 2, v0" % R)
    a("v_mul_u32_u24 v%(b)d, 43, v%(a)d" % R)
    a("v_lshrrev_b32 v%(b)d, 7, v%(b)d" % R)
    a("v_mul_u32_u24 v%(c)d, 3, v%(b)d" % R)
    a("v_sub_u32 v%(a)d, v%(a)d, v%(c)d" % R)
    a("s_sub_u32 s35, s32, 2")
    a("v_add_u32 v%(a)d, s35, v%(a)d" % R)
    a("v_max_i32 v%(a)d, 0, v%(a)d" % R)
    a("v_mul_u32_u24 v%(a)d, 12, v%(a)d" % R)
    a("v_lshl_add_u32 v%(a)d, v%(b)d, 2, v%(a)d" % R)
    a("v_add_u32 v%(a)d, s30, v%(a)d" % R)
    a("v_lshlrev_b32 v%(a)d, 7, v%(a)d" % R)
    a("v_add_u32 v%d, %d, v%d" % (r, L.WS_FLAG + F_Q * 128, r))
    if own:
        lds_spin(a, name + "w", vc, C_1, r + 2, (8,), 0)
    if OPT["qdel"]:
        a("s_sleep %d" % OPT["qdel"])
    if OPT["qpipe"] and own:
        NP = OPT["qpipe"]
        a("s_mov_b64 exec, 0x7f")
        a("s_mov_b32 s60, 0x20000")
        for k in range(NP - 1):
            a("global_load_dword v%d, v%d, s[8:9] sc1" % (r + 3 + k, r))
            a("s_sleep 1")
        a.label(name)
        for k in range(NP):
            a("global_load_dword v%d, v%d, s[8:9] sc1" % (r + 3 + (k + NP - 1) % NP, r))
            a("s_waitcnt vmcnt(%d)" % (NP - 1))
            a("v_cmp_eq_u32 vcc, s%d, v%d" % (TAG, r + 3 + k))
            a("s_cmp_eq_u64 vcc, exec")
            a("s_cbranch_scc1 %s_d" % name)
        a("s_sub_u32 s60, s60, 1")
        a("s_cbranch_scc0 %s" % name)
        a.label(name + "_d")
        a("s_mov_b64 exec, -1")
    else:
        flag_poll(a, name, r, r + 1, "s%d" % TAG, 7, OPT["qslp"])
    lds_inc(a, vc, r + 2, C_GO1)


def code_touch(a):
    if not OPT["ctouch"]:
        return
    lab = a.newlabel("pc")
    a("s_getpc_b64 s[20:21]")
    a.label(lab)
    a("s_sub_u32 s20, s20, %s-%s" % (lab, NAME))
    a("s_subb_u32 s21, s21, 0")
    a("s_lshr_b32 s22, s2, 3")
    a("s_mul_i32 s22, s22, %d" % (12 * 128))
    a("v_lshlrev_b32 v20, 7, v0")
    a("v_add_u32 v20, s22, v20")
    a("v_min_u32 v20, L_end-%s, v20" % NAME)
    a("s_mov_b64 exec, 0xfff")
    a("global_load_dword v21, v20, s[20:21]")
    a("s_mov_b64 exec, -1")


def gemm_phase(a):
    if OPT["gmap"]:
        a("s_lshr_b32 s33, s32, 1")
        a("s_mul_i32 s33, s33, 43")
        a("s_lshr_b32 s33, s33, 7")
        a("s_mul_i32 s34, s33, 6")
        a("s_sub_u32 s34, s32, s34")
        a("s_and_b32 s35, s34, 1")
        a("s_lshr_b32 s34, s34, 1")
        a("s_lshl_b32 s34, s34, 2")
        a("s_add_u32 s34, s34, s35")
        a("s_and_b32 s35, s2, 1")
        a("s_lshl_b32 s35, s35, 1")
        a("s_add_u32 s34, s34, s35")
        a("s_bfe_u32 s35, s2, 0x20001")
        a("s_lshl_b32 s35, s35, 2")
        a("s_add_u32 s35, s35, s33")
    else:
        a("s_mul_i32 s33, s32, 43")
        a("s_lshr_b32 s33, s33, 7")
        a("s_mul_i32 s34, s33, 3")
        a("s_sub_u32 s34, s32, s34")
        a("s_lshl_b32 s34, s34, 2")
        a("s_add_u32 s34, s34, s30")
        a("s_lshl_b32 s35, s31, 3")
        a("s_add_u32 s35, s35, s33")
    a("s_cmp_lt_u32 s3, 4")
    a("s_cbranch_scc1 L_comp")
    a("s_cmp_lt_u32 s3, 6")
    a("s_cbranch_scc0 L_ldw")
    a("s_sub_u32 s36, s3, 4")
    SH = 4 if OPT["gmap"] else 3
    a("v_and_b32 v7, %d, v0" % ((1 << SH) - 1))
    a("s_lshl_b32 s41, s33, %d" % SH)
    a("s_lshl_b32 s42, s36, 6")
    a("s_add_u32 s41, s41, s42")
    a("v_add_u32 v7, s41, v7")
    a("v_mul_u32_u24 v7, 3456, v7")
    a("v_lshrrev_b32 v1, %d, v0" % SH)
    a("v_lshl_add_u32 v7, v1, 7, v7")
    a("v_lshrrev_b32 v1, 3, v0")
    a("s_mul_i32 s39, s35, %d" % (128 * 1152))
    a("s_mul_i32 s46, s34, 288")
    a("s_and_b32 s46, s46, 0xffffff80")
    a("s_sub_u32 s47, %d, s46" % (576 * 3456))
    a("v_mul_u32_u24 v1, 1152, v1")
    a("v_lshrrev_b32 v2, 4, v0")
    a("v_and_b32 v3, 7, v0")
    a("v_xor_b32 v3, v3, v2")
    a("v_lshl_add_u32 v4, v3, 4, v1")
    a("v_xor_b32 v3, 4, v3")
    a("v_lshl_add_u32 v5, v3, 4, v1")
    a("v_add_u32 v5, %d, v5" % (8 * 1152))
    a("s_mul_i32 s37, s36, %d" % (64 * 1152))
    a("s_lshl_b32 s38, s36, 13")
    a("s_waitcnt lgkmcnt(0)")
    srd_off(a, 20, 6, "s46", "s47")
    if OPT["gmap"]:
        a("s_mov_b32 exec_hi, 0xffff")
    else:
        a("s_mov_b64 exec, 0xffffff")
    a("buffer_load_dword v20, v7, s[20:23], 0 offen")
    a("s_mov_b64 exec, -1")
    srd_off(a, 16, 4, "s39", 128 * 1152)
    if OPT["nox0"]:
        a("s_mul_i32 s41, s33, 6")
        a("s_sub_u32 s41, s32, s41")
        a("s_mul_i32 s41, s41, 22")
        a("v_add_u32 v6, s41, v0")
        a("v_mul_u32_u24 v6, 1152, v6")
        a("s_lshl_b32 s41, s36, 7")
        a("s_mov_b64 exec, 0x3fffff")
        a("buffer_load_dword v21, v6, s[16:19], s41 offen")
        a("s_mov_b64 exec, -1")

    def x_chunk(c):
        for i in range(8):
            a("s_add_u32 m0, s38, %d" % ((c % 4) * SLOT + i * 1024))
            a("s_add_u32 s40, s37, %d" % ((i >> 1) * 16 * 1152 + c * 128))
            a("buffer_load_dwordx4 v%d, s[16:19], s40 offen lds" % (4 + (i & 1)))

    if not OPT["nox0"]:
        x_chunk(0)
    load_tag(a)
    copy_scalars(a)
    stamp(a, 1)
    a("s_waitcnt vmcnt(%d) lgkmcnt(0)" % (0 if OPT["nox0"] else 8))
    stamp(a, 2)

    def loader_loop(fn, n, first, ahead0):
        LA = OPT["la"]
        a("s_barrier")
        stamp(a, 13)
        nxt = first
        while nxt < ahead0:
            fn(nxt)
            nxt += 1
        stamp(a, 14)
        for c in range(9):
            a("s_waitcnt vmcnt(%d)" % (n * (nxt - 1 - c)))
            a("s_barrier")
            while nxt <= c + LA and nxt < 9:
                fn(nxt)
                nxt += 1

    loader_loop(x_chunk, 8, 0 if OPT["nox0"] else 1, 2)
    a("s_branch L_copy")
    a.c("---- W loaders (waves 6,7)")
    a.label("L_ldw")
    a("s_movk_i32 s41, 3641")
    for i in range(9):
        a("v_add_u32 v1, %d, v0" % (64 * i))
        a("v_mul_u32_u24 v2, s41, v1")
        a("v_lshrrev_b32 v2, 16, v2")
        a("v_mul_u32_u24 v3, 18, v2")
        a("v_sub_u32 v3, v1, v3")
        a("v_bfe_u32 v1, v2, 2, 2")
        a("v_lshlrev_b32 v1, 3, v1")
        a("v_lshrrev_b32 v13, 4, v2")
        a("v_lshl_add_u32 v1, v13, 2, v1")
        a("v_and_b32 v2, 3, v2")
        a("v_add_u32 v1, v1, v2")
        a("v_mul_u32_u24 v1, 3456, v1")
        a("v_lshl_add_u32 v%d, v3, 4, v1" % (4 + i))
        if i == 2:
            a("s_waitcnt lgkmcnt(0)")
            load_tag(a)
    a("s_sub_u32 s36, s3, 6")
    a("s_mul_i32 s37, s36, %d" % (32 * 3456))
    a("s_mul_i32 s38, s36, 9216")
    a("s_mul_i32 s39, s34, 288")
    a("s_sub_u32 s42, %d, s39" % (576 * 3456))
    copy_scalars(a)
    srd_off(a, 16, 6, "s39", "s42")
    a("s_waitcnt lgkmcnt(0)")

    def w_chunk(c):
        a("s_add_u32 s40, s37, %d" % (c * 64 * 3456))
        for i in range(9):
            a("s_add_u32 m0, s38, %d" % ((c % 4) * SLOT + 16384 + i * 1024))
            a("s_nop 0")
            a("buffer_load_dwordx4 v%d, s[16:19], s40 offen lds" % (4 + i))

    loader_loop(w_chunk, 9, 0, OPT["wa0"])
    a("s_branch L_copy")
    a.c("---- GEMM compute waves 0..3")
    a.label("L_comp")
    ACC, XF, WF = 64, (136, 144), 24
    a("v_and_b32 v8, 15, v0")
    a("v_lshrrev_b32 v9, 4, v0")
    a("v_lshrrev_b32 v10, 1, v8")
    a("v_xor_b32 v10, v10, v9")
    a("s_lshl_b32 s36, s3, 12")
    a("v_lshlrev_b32 v2, 7, v8")
    a("v_lshl_add_u32 v2, v10, 4, v2")
    a("v_add_u32 v2, s36, v2")
    a("v_xor_b32 v3, 64, v2")
    a("v_add_u32 v4, %d, v2" % (2 * SLOT))
    a("v_add_u32 v5, %d, v3" % (2 * SLOT))
    a("v_lshrrev_b32 v10, 2, v0")
    a("v_mul_u32_u24 v6, 288, v10")
    a("v_and_b32 v10, 3, v0")
    a("v_lshl_add_u32 v6, v10, 3, v6")
    a("v_add_u32 v6, 16384, v6")
    a("v_add_u32 v7, %d, v6" % (2 * SLOT))
    a("s_waitcnt lgkmcnt(0)")
    load_tag(a)
    a("s_mov_b32 s36, 1.0")
    a("s_cmp_lt_u32 s34, 4")
    a("s_cselect_b32 s36, %s, s36" % f32(QSCALE))
    a("s_mov_b32 s37, s36")
    a("s_lshl_b32 s38, s3, 5")
    a("v_add_u32 v10, s38, v8")
    a("v_mul_u32_u24 v10, 72, v10")
    a("v_lshl_add_u32 v10, v9, 3, v10")
    a("v_add_u32 v10, %d, v10" % IMG)
    for ft in range(9):
        a("v_add_u32 v11, %d, v9" % (4 * ft))
        a("v_mul_u32_u24 v11, 57, v11")
        a("v_lshrrev_b32 v11, 9, v11")
        a("v_mul_u32_u24 v11, 9144, v11")
        a("v_add_u32 v%d, v11, v10" % (12 + ft))
    copy_scalars(a)
    a("s_waitcnt lgkmcnt(0)")

    def xreads(step):
        c, h2 = step >> 1, step & 1
        slot = c % 4
        return ["ds_read_b128 %s, v%d offset:%d" % (vr(XF[step & 1] + 4 * tt, 4), 2 + 2 * (slot >> 1) + h2,
                                                    (slot & 1) * SLOT + tt * 2048) for tt in range(2)]

    def wreads(step, ft):
        c, h2 = step >> 1, step & 1
        slot = c % 4
        return ["ds_read_b64_tr_b16 %s, v%d offset:%d" % (vr(WF + 4 * ft + 2 * sec, 2), 6 + (slot >> 1),
                                                          (slot & 1) * SLOT + h2 * 9216 + sec * 4608 + ft * 32)
                for sec in range(2)]

    def mfma(step, ft, tt):
        d = vr(ACC + 8 * ft + 4 * tt, 4)
        return "v_mfma_f32_16x16x32_bf16 %s, %s, %s, %s" % (
            d, vr(WF + 4 * ft, 4), vr(XF[step & 1] + 4 * tt, 4), "0" if step == 0 else d)

    def epi(k):
        ft, tt = k >> 1, k & 1
        b = ACC + 4 * k
        t = 152 + 2 * (k % 4)
        return ["v_pk_mul_f32 %s, %s, s[36:37]" % (vr(b, 2), vr(b, 2)),
                "v_pk_mul_f32 %s, %s, s[36:37]" % (vr(b + 2, 2), vr(b + 2, 2)),
                "v_cvt_pk_bf16_f32 v%d, v%d, v%d" % (t, b, b + 1),
                "v_cvt_pk_bf16_f32 v%d, v%d, v%d" % (t + 1, b + 2, b + 3),
                "ds_write_b64 v%d, %s offset:%d" % (12 + ft, vr(t, 2), 32 * ft + 1152 * tt)]

    a("s_barrier")
    a("s_barrier")
    stamp(a, 1)
    q = []

    def issue(tag, lst):
        for x in lst:
            a(x)
            q.append(tag)

    def need(tag):
        last = max(k for k, v in enumerate(q) if v == tag)
        a("s_waitcnt lgkmcnt(%d)" % min(15, len(q) - 1 - last))

    issue(("x", 0), xreads(0))
    for ft in range(9):
        issue(("w", 0, ft), wreads(0, ft))
    for step in range(16):
        if step & 1:
            a("s_barrier")
            if OPT["gst"]:
                stamp(a, 5 + (step >> 1), True)
        for ft in range(9):
            if ft % OPT["wg"] == 0:
                need(("w", step, min(8, ft + OPT["wg"] - 1)))
            a(mfma(step, ft, 0))
            if ft == 0:
                issue(("x", step + 1), xreads(step + 1))
            a(mfma(step, ft, 1))
            issue(("w", step + 1, ft), wreads(step + 1, ft) if ft < OPT["skipw"] else ["s_nop 0"])
    RING = (60, 160, 164)

    def w17(ft):
        return [x.replace(vr(WF + 4 * ft + 2 * sec, 2), vr(RING[ft % 3] + 2 * sec, 2)) for sec, x in enumerate(wreads(17, ft))]

    issue(("x", 17), xreads(17))
    issue(("v", 0), w17(0))
    issue(("v", 1), w17(1))
    for ft in range(10):
        e = (epi(2 * ft - 2) + epi(2 * ft - 1)) if ft else []
        if ft < 9:
            need(("v", ft))
            m = [mfma(16, ft, 0), mfma(16, ft, 1)] + \
                [mfma(17, ft, tt).replace(vr(WF + 4 * ft, 4), vr(RING[ft % 3], 4)) for tt in range(2)]
        else:
            m = []
        cut = (0, 3, 5, 8, 10)
        for k in range(4):
            if m:
                a(m[k])
            if k == 0 and ft + 2 < 9:
                issue(("v", ft + 2), w17(ft + 2))
            for x in e[cut[k]:cut[k + 1]]:
                if x.startswith("ds_"):
                    issue("e", [x])
                else:
                    a(x)
    stamp(a, 2)
    a("s_waitcnt lgkmcnt(0)")
    a.c("---- copy the tile out, then publish it")
    a.label("L_copy")
    a("v_lshlrev_b32 v1, 4, v0")
    a("s_lshl_b32 s36, s3, 10")
    a("v_add_u32 v2, s36, v1")
    a("v_add_u32 v3, %d, v2" % (IMG + 4 * 8192))
    srd_off(a, 24, 8, L.WS_QKV, L.QKV_BYTES)
    make_tag(a)
    a("s_barrier")
    for j in range(4):
        a("ds_read_b128 %s, v2 offset:%d" % (vr(4 + 4 * j, 4), IMG + j * 8192))
    a("s_cmp_lt_u32 s3, 4")
    a("s_cbranch_scc0 L_c4")
    a("ds_read_b128 v[20:23], v3")
    a("s_waitcnt lgkmcnt(0)")
    a("buffer_store_dwordx4 v[20:23], v1, s[24:27], s54 offen sc1")
    a.label("L_c4")
    for j in range(4):
        a("s_waitcnt lgkmcnt(%d)" % (3 - j))
        a("buffer_store_dwordx4 %s, v1, s[24:27], s%d offen sc1" % (vr(4 + 4 * j, 4), 50 + j))
    a("s_mov_b32 s63, s58")
    a("v_mov_b32 v%d, %d" % (vC, CTL))
    lds_inc(a, vC, 24, C_FI)
    stamp(a, 3)


def spare_phase(a):
    GW = 64
    a.c("---- workgroups without a GEMM tile: router / gate logits, first touch of the weights")
    a.label("L_sp")
    a("s_sub_u32 s36, s2, 192")
    a("s_cmp_ge_u32 s3, 8")
    a("s_cbranch_scc1 L_sp_ffn")
    a("s_cmp_ge_u32 s3, 4")
    a("s_cbranch_scc1 L_sp_hi")
    a("s_load_dwordx2 s[60:61], s[0:1], 32")
    a("s_load_dwordx2 s[62:63], s[0:1], 64")
    a("v_lshrrev_b32 v2, 3, v0")
    a("v_and_b32 v3, 7, v0")
    a("v_lshlrev_b32 v3, 4, v3")
    a("s_lshl_b32 s34, s36, 2")
    a("s_add_u32 s34, s34, s3")
    a("s_lshl_b32 s33, s34, 3")
    a("v_add_u32 v1, s33, v2")
    a("v_mul_u32_u24 v4, 1152, v1")
    a("v_add_u32 v4, v4, v3")
    a("s_mul_i32 s51, s34, %d" % (7 * 128))
    a("s_mul_i32 s52, s34, %d" % (21 * 128))
    a("v_lshlrev_b32 v7, 7, v0")
    a("s_waitcnt lgkmcnt(0)")
    load_tag(a)
    srd(a, 16, 6, 576 * 3456)
    srd(a, 20, 28, 576 * 1152)
    def wtouch(i):
        a("s_add_u32 s53, s51, %d" % (1728 * 128 * i))
        a("s_mov_b64 exec, 0x7f")
        a("buffer_load_dword v124, v7, s[16:19], s53 offen")
        a("s_mov_b64 exec, -1")

    XF_ = OPT["xfirst"]
    order = list(range(2, 9)) + [0, 1] if XF_ else list(range(9))
    NEWER = 2
    for n, i in enumerate(order):
        a("global_load_dwordx4 %s, v4, s[4:5] offset:%d" % (vr(8 + 4 * i, 4), 128 * i))
        if n == 0:
            for j in range(9):
                a("global_load_dwordx4 %s, v3, s[60:61] offset:%d" % (vr(44 + 4 * j, 4), 128 * j))
                a("global_load_dwordx4 %s, v3, s[62:63] offset:%d" % (vr(80 + 4 * j, 4), 128 * j))
        if not XF_ and n:
            wtouch(i)
        if XF_ and 2 <= i < 2 + XF_ - 1:
            wtouch(i)
    if XF_:
        for i in range(2 + XF_ - 1, 9):
            wtouch(i)
        NEWER = 9 - (2 + XF_ - 1) + 1
    a("s_mov_b64 exec, 0x1fffff")
    a("buffer_load_dword v124, v7, s[20:23], s52 offen")
    a("s_mov_b64 exec, -1")
    a("v_mov_b32 v%d, %d" % (vC, CTL))
    a("s_waitcnt lgkmcnt(0)")
    make_tag(a)
    a("s_barrier")
    a("s_waitcnt vmcnt(%d)" % NEWER)
    for i in range(36):
        p = 116 + (i & 3)
        a("v_dot2_f32_bf16 v%d, v%d, v%d, %s" % (p, 8 + i, 44 + i, "0" if i < 4 else "v%d" % p))
    a("s_nop 1")
    a("v_pk_add_f32 v[116:117], v[116:117], v[118:119]")
    a("v_add_f32 v5, v116, v117")
    sum8(a, (5,))
    bf16_round(a, 5, 5)
    a("v_ashrrev_i32 v7, 31, v5")
    a("v_or_b32 v7, 0x80000000, v7")
    a("v_xor_b32 v7, v7, v5")
    a("v_and_b32 v7, 0xffff0000, v7")
    a("v_sub_u32 v6, 0x7ff, v1")
    a("v_or_b32 v7, v7, v6")
    a("v_mov_b32 v5, 1")
    a("s_mov_b32 s54, 0x01010101")
    a("s_mov_b32 exec_lo, s54")
    a("s_mov_b32 exec_hi, s54")
    a("ds_max_u32 v%d, v7 offset:%d" % (vC, C_KMAX))
    a("s_mov_b64 exec, 1")
    a("ds_add_rtn_u32 v5, v%d, v5 offset:%d" % (vC, C_KCNT))
    a("ds_read_b32 v7, v%d offset:%d" % (vC, C_KMAX))
    a("s_lshl_b32 s53, s36, 3")
    a("s_add_u32 s53, s53, %d" % L.WS_KEYF)
    a("v_mov_b32 v4, s53")
    a("v_mov_b32 v6, s%d" % TAG)
    a("s_waitcnt lgkmcnt(0)")
    a("v_cmp_eq_u32 vcc, 3, v5")
    a("s_and_b64 exec, exec, vcc")
    a("s_cbranch_execz L_sp_nopub")
    a("global_store_dwordx2 v4, v[6:7], s[8:9] sc1")
    a.label("L_sp_nopub")
    a("s_mov_b64 exec, -1")
    stamp(a, 1)
    a("s_mov_b32 s55, 0x3f803f80")
    for i in range(36):
        x, w, p = 8 + i, 80 + i, 116 + (i & 3)
        t = 44 + 4 * (i & 3)
        a("v_lshlrev_b32 v%d, 16, v%d" % (t, x))
        a("v_and_b32 v%d, 0xffff0000, v%d" % (t + 1, x))
        a("v_lshlrev_b32 v%d, 16, v%d" % (t + 2, w))
        a("v_and_b32 v%d, 0xffff0000, v%d" % (t + 3, w))
        a("v_pk_mul_f32 %s, %s, %s" % (vr(t, 2), vr(t, 2), vr(t + 2, 2)))
        a("v_cvt_pk_bf16_f32 v%d, v%d, v%d" % (t, t, t + 1))
        a("v_dot2_f32_bf16 v%d, v%d, s55, %s" % (p, t, "0" if i < 4 else "v%d" % p))
    a("s_nop 1")
    a("v_pk_add_f32 v[116:117], v[116:117], v[118:119]")
    a("v_add_f32 v6, v116, v117")
    sum8(a, (6,))
    bf16_round(a, 6, 6)
    sigmoid(a, 6, 6)
    bf16_round(a, 6, 6)
    a("v_lshlrev_b32 v1, 2, v1")
    a("v_add_u32 v1, %d, v1" % L.WS_G)
    a("s_mov_b32 exec_lo, s54")
    a("s_mov_b32 exec_hi, s54")
    a("global_store_dword v1, v6, s[8:9] sc1")
    a("s_mov_b64 exec, -1")
    a("s_waitcnt vmcnt(0)")
    lds_inc(a, vC, 5, C_GD)
    if OPT["dtouch"]:
        srd(a, 16, 14, 4608 * 1152)
        a("s_mul_i32 s52, s34, %d" % (162 * 128))
        a("v_lshlrev_b32 v7, 7, v0")
        for k in range(3):
            a("buffer_load_dword v124, v7, s[16:19], s52 offen")
            a("s_add_u32 s52, s52, %d" % (54 * 128))
    a("s_mov_b32 s63, 0")
    stamp(a, 2)
    a("s_branch L_att")

    a.label("L_sp_hi")
    a("s_cmp_eq_u32 s3, 7")
    a("s_cbranch_scc0 L_sp_hi1")
    code_touch(a)
    a.label("L_sp_hi1")
    a("v_mov_b32 v%d, %d" % (vC, CTL))
    a("s_waitcnt lgkmcnt(0)")
    load_tag(a)
    a("s_mov_b32 s63, 0")
    a("s_waitcnt lgkmcnt(0)")
    make_tag(a)
    a("s_barrier")
    a("s_cmp_eq_u32 s3, 4")
    a("s_cbranch_scc1 L_sp_w4")
    a("s_cmp_eq_u32 s3, 5")
    a("s_cbranch_scc0 L_att")
    a("s_lshl_b32 s56, s36, 7")
    a("s_add_u32 s56, s56, %d" % (L.WS_FLAG + F_PA * 128))
    a("v_mov_b32 v9, s56")
    lds_spin(a, "L_sp_x5", vC, C_XS, 10, (1, 4), 4)
    a("ds_read_b64 v[14:15], v%d offset:%d" % (vC, C_IDX))
    a("v_mov_b32 v12, s%d" % TAG)
    a("s_waitcnt lgkmcnt(0)")
    a("v_mov_b32 v13, v14")
    a("v_mov_b32 v14, v15")
    a("s_mov_b64 exec, 1")
    a("global_store_dwordx3 v9, v[12:14], s[8:9] sc1")
    a("s_mov_b64 exec, -1")
    a("s_branch L_att")
    a.label("L_sp_w4")
    for k in range(4):
        a("v_mov_b32 v%d, 0" % (12 + k))
    a("s_cmp_lt_u32 s36, 36")
    a("s_cbranch_scc0 L_sp_nz")
    a("s_lshl_b32 s51, s36, 10")
    a("s_add_u32 s51, s51, %d" % L.WS_YP)
    a("v_lshlrev_b32 v4, 4, v0")
    a("v_add_u32 v4, s51, v4")
    a("global_store_dwordx4 v4, v[12:15], s[8:9] sc1")
    a("s_cmp_eq_u32 s36, 0")
    a("s_cbranch_scc0 L_sp_nz")
    a("v_lshlrev_b32 v4, 7, v0")
    a("v_add_u32 v4, %d, v4" % (L.WS_FLAG + F_Y * 128))
    a("global_store_dword v4, v12, s[8:9] sc1")
    a.label("L_sp_nz")
    a("v_lshlrev_b32 v8, 3, v0")
    a("v_add_u32 v8, %d, v8" % L.WS_KEYF)
    lds_spin(a, "L_sp_own", vC, C_KCNT, 10, (4,), 2)
    a("s_sleep %d" % OPT["slp0"])
    flag_poll(a, "L_sp_kp", 8, 10, "s%d" % TAG, 64, OPT["slp"], 2)
    stamp(a, 1)
    wave_umax(a, 11, 53)
    a("s_and_b32 s54, s53, 0x7ff")
    a("s_sub_u32 s54, 2047, s54")
    a("v_mov_b32 v12, s54")
    a("v_mov_b32 v13, 1")
    a("ds_write_b32 v%d, v12 offset:%d" % (vC, C_IDX))
    a("ds_write_b32 v%d, v13 offset:%d" % (vC, C_IX))
    a("s_and_b32 s55, s53, 0xffff0000")
    a("s_xor_b32 s56, s55, 0x80000000")
    a("s_xor_b32 s57, s55, 0xffff0000")
    a("s_bitcmp1_b32 s55, 31")
    a("s_cselect_b32 s55, s56, s57")
    a("v_mov_b32 v12, s55")
    sigmoid(a, 13, 12)
    bf16_round(a, 13, 13)
    a("v_mov_b32 v12, s54")
    a("ds_write_b64 v%d, v[12:13] offset:%d" % (vC, C_IDX))
    a("v_mov_b32 v12, 1")
    a("s_waitcnt vmcnt(0)")
    a("ds_write_b32 v%d, v12 offset:%d" % (vC, C_XS))
    stamp(a, 2)
    a("s_branch L_att")

    a.c("---- gate / up projections of the routed token")
    a.label("L_sp_ffn")
    a("s_load_dwordx4 s[40:43], s[0:1], 40")
    a("v_mov_b32 v3, %d" % CTL)
    for k in range(4):
        a("v_mov_b32 v%d, 0" % (4 + k))
    a("v_lshlrev_b32 v1, 4, v0")
    a("v_add_u32 v2, v1, v3")
    a("s_mov_b64 exec, 0xff")
    a("ds_write_b128 v2, v[4:7]")
    a("s_mov_b64 exec, -1")
    a("s_sub_u32 s59, s3, 8")
    a("s_mul_i32 s37, s36, 57")
    a("s_lshr_b32 s37, s37, 9")
    a("s_mul_i32 s38, s37, 9")
    a("s_sub_u32 s38, s36, s38")
    a("s_mul_i32 s49, s37, 84")
    a("s_mul_i32 s39, s49, 9216")
    a("s_lshl_b32 s48, s38, 10")
    a("s_add_u32 s39, s39, s48")
    a("s_sub_u32 s48, %d, s39" % (576 * 9216))
    a("s_min_i32 s48, s48, %d" % (83 * 9216 + 1024))
    a("s_max_i32 s48, s48, 0")
    a("v_lshrrev_b32 v160, 5, v0")
    a("v_mul_u32_u24 v160, 9216, v160")
    a("v_and_b32 v161, 31, v0")
    a("v_lshl_add_u32 v160, v161, 4, v160")
    a("s_mul_i32 s57, s59, 20480")
    a("s_add_u32 s57, s57, %d" % WO)
    a("s_mul_i32 s58, s59, %d" % (2 * 9216))
    a("s_waitcnt lgkmcnt(0)")
    load_tag(a)
    srd_off(a, 16, 40, "s39", "s48")
    srd_off(a, 20, 42, "s39", "s48")
    a("s_waitcnt lgkmcnt(0)")
    make_tag(a)
    a("s_barrier")
    if OPT["fdel"]:
        lds_spin(a, "L_sp_fd", 3, C_KCNT, 10, (4,), 2)
        if OPT["fdel"] > 1:
            a("s_sleep %d" % OPT["fdel"])
    for i in range(5):
        a("s_add_u32 s55, s58, %d" % (8 * (6 + i) * 9216))
        a("s_add_u32 s56, s55, 512")
        for k in range(4):
            a("s_add_u32 m0, s57, %d" % ((4 * i + k) * 1024))
            a("buffer_load_dwordx4 v160, s[%d:%d], s%d offen nt lds" % (16 + 4 * (k >> 1), 19 + 4 * (k >> 1), 55 + (k & 1)))
            if OPT["thr"] and 4 * i + k >= OPT["thr"] - 1:
                a("s_waitcnt vmcnt(%d)" % (OPT["thr"] - 1))
    for i in range(6):
        a("s_add_u32 s55, s58, %d" % (8 * i * 9216))
        for k in range(4):
            a("buffer_load_dwordx4 %s, v160, s[%d:%d], s55 offen offset:%d nt" % (
                vr(GW + 16 * i + 4 * k, 4), 16 + 4 * (k >> 1), 19 + 4 * (k >> 1), 512 * (k & 1)))
            if OPT["thr"] and 20 + 4 * i + k < OPT["thrn"]:
                a("s_waitcnt vmcnt(%d)" % (OPT["thr"] - 1))
    a("s_lshl_b32 s50, s59, 1")
    a("s_add_u32 s50, s50, s49")
    a("s_lshl_b32 s50, s50, 1")
    a("v_lshrrev_b32 v51, 5, v0")
    a("v_lshlrev_b32 v51, 4, v51")
    a("v_and_b32 v2, 1, v0")
    a("v_lshlrev_b32 v2, 4, v2")
    a("v_lshrrev_b32 v4, 1, v0")
    a("v_xor_b32 v4, v4, v0")
    a("v_and_b32 v4, 8, v4")
    a("v_bfe_u32 v5, v0, 1, 2")
    a("v_or_b32 v4, v4, v5")
    for q in range(4):
        a("v_cmp_eq_u32 s[%d:%d], %d, v4" % (40 + 2 * q, 41 + 2 * q, q))
    a("v_bfe_u32 v4, v0, 3, 1")
    a("v_lshlrev_b32 v4, 9, v4")
    a("v_lshrrev_b32 v5, 4, v0")
    a("v_lshl_add_u32 v4, v5, 7, v4")
    a("v_and_b32 v5, 7, v0")
    a("v_lshl_add_u32 v4, v5, 2, v4")
    a("v_add_u32 v6, s57, v4")
    a("v_add_u32 v52, s57, v1")
    a("s_lshl_b32 s55, s59, 9")
    a("v_lshlrev_b32 v8, 3, v0")
    a("v_add_u32 v8, s55, v8")
    a("s_mul_i32 s52, s37, %d" % (4608 * 16))
    a("s_lshl_b32 s55, s38, 13")
    a("s_add_u32 s52, s52, s55")
    a("s_add_u32 s52, s52, %d" % L.WS_PA)
    a("v_lshlrev_b32 v9, 2, v8")
    a("v_add_u32 v9, s52, v9")
    a("v_add_u32 v8, %d, v8" % WO)
    stamp(a, 3)
    lds_spin(a, "L_sp_xs", 3, C_IX, 10, (1,), 1)
    a("s_setprio %d" % OPT["pr2"])
    stamp(a, 7)
    a("ds_read_b32 v10, v3 offset:%d" % C_IDX)
    a("s_waitcnt lgkmcnt(0)")
    a("v_readfirstlane_b32 s51, v10")
    a("s_mul_i32 s51, s51, 1152")
    srd_off(a, 24, 4, "s51", 1152)
    a("s_mov_b32 s51, s50")
    XSG = (30, 31, 32, 33, 34, 35, 39, 48, 49, 50, 53)
    for i in range(11):
        a("s_buffer_load_dword s%d, s[24:27], s51 offset:%d" % (XSG[i], 16 * i))
    a("s_waitcnt vmcnt(24) lgkmcnt(0)")
    for k in range(4):
        a("ds_read_b128 %s, v52 offset:%d" % (vr(32 + 4 * k, 4), 1024 * k))
    for i in range(11):
        a("v_bfe_u32 v%d, s%d, v51, 16" % (53 + i, XSG[i]))
        a("v_lshlrev_b32 v%d, v2, v%d" % (53 + i, 53 + i))
    first = True
    for i in range(5):
        selector(a, 12, 53 + 6 + i, 40)
        for k in range(4):
            d = vr(16 + 4 * k, 4)
            a("s_waitcnt lgkmcnt(%d)" % (3 if i < 4 else 3 - k))
            a("v_mfma_f32_16x16x32_bf16 %s, %s, v[12:15], %s" % (d, vr(32 + 4 * k, 4), "0" if first else d))
            if i < 4:
                a("ds_read_b128 %s, v52 offset:%d" % (vr(32 + 4 * k, 4), 1024 * (4 * (i + 1) + k)))
        first = False
    stamp(a, 12)
    for i in range(6):
        selector(a, 12, 53 + i, 40)
        a("s_waitcnt vmcnt(%d)" % (4 * (5 - i)))
        for k in range(4):
            d = vr(16 + 4 * k, 4)
            a("v_mfma_f32_16x16x32_bf16 %s, %s, v[12:15], %s" % (d, vr(GW + 16 * i + 4 * k, 4), d))
    stamp(a, 11)
    for k in range(4):
        for r in range(4):
            a("ds_write_b32 v6, v%d offset:%d" % (16 + 4 * k + r, 1024 * k + 32 * r))
    lds_inc(a, 3, 10, C_RED)
    lds_spin(a, "L_sp_rd", 3, C_RED, 10, (4,), 0)
    for p in range(4):
        a("ds_read_b64 %s, v8 offset:%d" % (vr(16 + 4 * p, 2), 20480 * p))
        a("ds_read_b64 %s, v8 offset:%d" % (vr(18 + 4 * p, 2), 20480 * p + 2048))
    a("v_mov_b32 v34, s%d" % TAG)
    a("v_mov_b32 v38, s%d" % TAG)
    a("s_waitcnt lgkmcnt(0)")
    lds_inc(a, 3, 10, C_RED2)
    for p in (2, 1):
        for h in range(2 * p):
            a("v_pk_add_f32 %s, %s, %s" % (vr(16 + 2 * h, 2), vr(16 + 2 * h, 2), vr(16 + 4 * p + 2 * h, 2)))
    a("v_mov_b32 v32, v16")
    a("v_mov_b32 v33, v18")
    a("v_mov_b32 v36, v17")
    a("v_mov_b32 v37, v19")
    a("s_cmp_eq_u32 s36, 63")
    a("s_cbranch_scc1 L_sp_nost")
    a("global_store_dwordx4 v9, v[32:35], s[8:9] sc1")
    a("global_store_dwordx4 v9, v[36:39], s[8:9] offset:16 sc1")
    a.label("L_sp_nost")
    stamp(a, 4)
    lds_spin(a, "L_sp_r2", 3, C_RED2, 10, (4,), 0)
    a("s_branch L_help2")


def attn_loop(a):
    for i in range(9):
        if OPT["bal"] and i == 0:
            a("s_cmp_lt_u32 s3, 4")
            a("s_cbranch_scc1 L_bal0")
            a("s_setprio 1")
            a.label("L_bal0")
        if OPT["bal"] and i == OPT["bal"]:
            a("s_setprio 0")
        a.label("L_it%d" % i)
        S, P = SS[i & 1], PP[i & 1]
        ex = ["v_exp_f32 v%d, v%d" % (S + r, S + r) for r in range(16)]
        cv = ["v_cvt_pk_bf16_f32 v%d, v%d, v%d" % (P + q, S + 2 * q, S + 2 * q + 1) for q in range(8)]
        if i == 0:
            mk = ["v_bfi_b32 v%d, v%d, 0, v%d" % (P + q, MSK + q, P + q) for q in range(8)]
        elif i == 8:
            mk = ["v_and_b32 v%d, v%d, v%d" % (P + q, MSK + q, P + q) for q in range(8)]
        else:
            mk = []
        m1 = qk(i + 1) if i < 8 else []
        m2 = pv(i - 1, i == 1) if i > 0 else []
        a("s_waitcnt lgkmcnt(%d)" % (4 if 0 < i < 8 else 0))
        seq = m1[:1] + ex[0:4] + m1[1:] + (k_reads(i + 2) if i + 2 <= 8 else []) + ex[4:8] + cv[0:2] + m2[:1] + \
            ex[8:12] + cv[2:4] + m2[1:]
        if i + 1 <= 8:
            seq += ["v_add_u32 v%d, v%d, v%d" % (vV, vV, vStep)] + v_reads(i + 1)
        seq += ex[12:16] + cv[4:8] + mk
        for x in seq:
            a(x)
    lds_spin(a, "L_pz", vC, C_C, T, (1,), 0)
    for x in pv(8, False):
        a(x)


def attention_phase(a):
    a.c("---- attention: set-up, wait for the producers, K/V/Q into LDS")
    a.label("L_att")
    decode2(a)
    a("s_mul_i32 s33, s31, %d" % L.PAIR_BYTES)
    a("s_mul_i32 s34, s32, 9216")
    a("s_add_u32 s33, s33, s34")
    a("v_mov_b32 v%d, %d" % (vC, CTL))
    KS, VS = 16 * L.PAIR_BYTES - 18432, 32 * L.PAIR_BYTES - 18432
    grp = [(QB, 0), (KB, KS), (VB, VS), (KB + 9216, KS + 9216), (VB + 9216, VS + 9216), (KB + 18432, KS + 18432), (VB + 18432, VS + 18432)]
    a("s_lshl_b32 s34, s3, 10")
    for j in range(8):
        lo, hi = (8 * j) // 9, min(8 * j + 7, 62) // 9
        l0, g0 = grp[lo][0] + (8 * j - 9 * lo) * 1024, grp[lo][1] + (8 * j - 9 * lo) * 1024
        l1, g1 = grp[hi][0] + (8 * j - 9 * hi) * 1024, grp[hi][1] + (8 * j - 9 * hi) * 1024
        if j == 7:
            a("s_min_u32 s34, s34, %d" % (6 * 1024))
        if lo == hi:
            a("s_add_u32 s%d, s34, %d" % (16 + j, l0))
            a("s_add_u32 s%d, s33, %d" % (44 + j, g0 - l0 & 0xffffffff))
        else:
            a("s_mov_b32 s35, %d" % l0)
            a("s_mov_b32 s36, %d" % (g0 - l0 & 0xffffffff))
            a("s_cmp_ge_u32 s3, %d" % (9 * hi - 8 * j))
            a("s_cselect_b32 s35, %d, s35" % (l1 & 0xffffffff))
            a("s_cselect_b32 s36, %d, s36" % (g1 - l1 & 0xffffffff))
            a("s_add_u32 s%d, s34, s35" % (16 + j))
            a("s_add_u32 s%d, s33, s36" % (44 + j))
        a("s_add_u32 s%d, s%d, s%d" % (44 + j, 44 + j, 16 + j))
    a("v_mov_b32 v10, s63")
    a("v_mov_b32 v11, s%d" % TAG)
    a("s_waitcnt vmcnt(0)")
    lds_inc(a, vC, 9, C_1, rtn=True)
    a("s_cmp_lg_u32 s63, 0")
    a("s_cselect_b32 s35, 7, 99")
    a("s_waitcnt lgkmcnt(0)")
    a("v_readfirstlane_b32 s36, v9")
    a("s_cmp_eq_u32 s36, s35")
    a("s_cbranch_scc0 L_nofl1")
    a("s_mov_b64 exec, 1")
    a("global_store_dword v10, v11, s[8:9] sc1")
    a("s_mov_b64 exec, -1")
    a.label("L_nofl1")
    stamp(a, 4)
    a("s_and_b32 s42, s3, 1")
    a("s_lshr_b32 s43, s3, 1")
    a("s_mul_i32 s35, s43, 2304")
    a("s_mul_i32 s36, s42, 40")
    a("v_and_b32 v%d, 31, v0" % T)
    a("v_lshrrev_b32 v%d, 5, v0" % (T + 1))
    a("v_mul_u32_u24 v%d, 72, v%d" % (vKt, T))
    a("v_add_u32 v%d, s35, v%d" % (vKt, vKt))
    a("v_lshl_add_u32 v%d, v%d, 4, v%d" % (vK, T + 1, vKt))
    a("v_add_u32 v%d, s36, v%d" % (vK, vK))
    a("v_add_u32 v%d, 32, v%d" % (vKt, vKt))
    a("v_bfe_u32 v%d, v0, 2, 2" % (T + 2))
    a("v_lshl_add_u32 v%d, v%d, 2, v%d" % (T + 2, T + 1, T + 2))
    a("v_mul_u32_u24 v%d, 72, v%d" % (T + 2, T + 2))
    a("s_add_u32 s37, s35, %d" % VB)
    a("v_add_u32 v%d, s37, v%d" % (T + 2, T + 2))
    a("v_and_b32 v%d, 3, v0" % (T + 3))
    a("v_lshlrev_b32 v%d, 3, v%d" % (T + 4, T + 3))
    a("v_add_u32 v%d, s36, v%d" % (T + 4, T + 4))
    a("v_and_b32 v%d, 16, v0" % (T + 5))
    a("v_cmp_eq_u32 s[38:39], 0, v%d" % (T + 5))
    a("v_cndmask_b32 v%d, 32, v%d, s[38:39]" % (T + 4, T + 4))
    a("v_add_u32 v%d, v%d, v%d" % (vV, T + 2, T + 4))
    a("v_and_b32 v%d, 19, v0" % (T + 5))
    a("v_cmp_lt_u32 s[38:39], 16, v%d" % (T + 5))
    a("v_mov_b32 v%d, %d" % (T + 6, ONES))
    a("v_cndmask_b32 v%d, v%d, v%d, s[38:39]" % (vV, vV, T + 6))
    a("v_mov_b32 v%d, 2304" % (T + 6))
    a("v_cndmask_b32 v%d, v%d, 0, s[38:39]" % (vStep, T + 6))
    a("v_lshlrev_b32 v%d, 2, v%d" % (T + 2, T + 1))
    a("v_sub_u32 v%d, v%d, v%d" % (T + 2, T, T + 2))
    a("v_mov_b32 v%d, 0xffff" % (T + 3))
    for q in range(8):
        kl = 8 * (q >> 1) + 2 * (q & 1)
        a("v_cmp_le_i32 s[38:39], %d, v%d" % (kl, T + 2))
        a("v_cmp_le_i32 s[40:41], %d, v%d" % (kl + 1, T + 2))
        a("v_cndmask_b32 v%d, 0, v%d, s[38:39]" % (MSK + q, T + 3))
        a("v_cndmask_b32 v%d, v%d, -1, s[40:41]" % (MSK + q, MSK + q))
    a("s_lshl_b32 s41, s32, 2")
    a("s_add_u32 s41, s41, s43")
    a("s_sub_i32 s41, 8, s41")
    a("s_lshl_b32 s35, s32, 3")
    a("s_lshl_b32 s36, s43, 1")
    a("s_add_u32 s35, s35, s36")
    a("s_mul_i32 s35, s35, 18432")
    a("s_lshl_b32 s58, s31, 10")
    a("s_lshl_b32 s36, s42, 9")
    a("s_add_u32 s58, s58, s36")
    a("s_add_u32 s58, s58, s35")
    a("s_lshr_b32 s59, s31, 1")
    a("s_lshl_b32 s59, s59, 8")
    a("s_and_b32 s36, s31, 1")
    a("s_lshl_b32 s36, s36, 3")
    a("s_add_u32 s59, s59, s36")
    a("s_lshl_b32 s36, s42, 2")
    a("s_add_u32 s59, s59, s36")
    a("s_add_u32 s59, s59, s35")
    a("s_add_u32 s59, s59, 16384")
    a("v_bfe_u32 v152, v0, 4, 1")
    a("v_mul_u32_u24 v152, 18432, v152")
    a("v_and_b32 v153, 15, v0")
    a("v_lshl_add_u32 v152, v153, 4, v152")
    a("v_lshrrev_b32 v153, 5, v0")
    a("v_lshl_add_u32 v153, v153, 8, v152")
    a("v_cmp_gt_u32 vcc, 32, v0")
    a("s_cmp_eq_u32 s42, 0")
    a("s_cselect_b64 s[54:55], vcc, 0")
    a("s_cselect_b64 s[56:57], 0, vcc")
    a("v_and_b32 v%d, 3, v0" % (T + 2))
    a("v_mul_u32_u24 v%d, 576, v%d" % (T + 2, T + 2))
    a("v_mov_b32 v%d, 0x3f803f80" % (T + 4))
    a("v_mov_b32 v%d, v%d" % (T + 5, T + 4))
    a("v_lshlrev_b32 v%d, 4, v0" % (T + 3))
    srd_off(a, 36, 8, L.WS_QKV, L.QKV_BYTES)
    srd_off(a, 24, 8, L.WS_O, 128 * 18432)
    a("s_add_u32 s40, s3, 2")
    a("s_cmp_lt_u32 s3, 4")
    a("s_cselect_b32 s40, s3, s40")
    out_setup(a, 40)
    a("s_lshr_b32 s35, s2, 6")
    a("s_lshl_b32 s35, s35, 4")
    a("s_add_u32 s35, s35, s3")
    a("s_cmp_eq_u32 s35, %d" % (3 * 16 + 6))
    a("s_cbranch_scc0 L_nq2")
    lds_spin(a, "L_sp_x6", vC, C_XS, T + 8, (1,), 8)
    qpoll(a, vC, "L_qp2", False, T + 8)
    a.label("L_nq2")
    lds_spin(a, "L_go1", vC, C_1, T, (8, 1), OPT["g1s"])
    stamp(a, 5)
    for j in range(8):
        a("s_mov_b32 m0, s%d" % (16 + j))
        a("s_nop 0")
        a("buffer_load_dwordx4 v%d, s[36:39], s%d offen %s lds" % (T + 3, 44 + j, OPT["kvl"]))
    a("ds_write_b64 v%d, %s offset:%d" % (T + 2, vr(T + 4, 2), ONES))
    a("s_cmp_lt_u32 s32, 2")
    a("s_cbranch_scc1 L_late")
    landed(a, 1, 0)
    stage_spin(a, "L_sA", 0)
    stamp(a, 6)
    for x in q_reads() + k_reads(0) + k_reads(1) + v_reads(0):
        a(x)
    a("s_waitcnt lgkmcnt(7)")
    a("v_cndmask_b32 v%d, 0, v%d, s[54:55]" % (QT, QT))
    a("v_cndmask_b32 v%d, 0, v%d, s[56:57]" % (QT + 1, QT + 1))
    for x in qk(0):
        a(x)
    lds_inc(a, vC, T, C_B)
    x_loads(a)
    attn_loop(a)
    a.c("---- softmax range check; true-max path if it fails")
    a.label("L_check")
    stamp(a, 7)
    a("s_mov_b32 s46, %s" % f32(2.0 ** 60))
    a("s_mov_b32 s47, %s" % f32(2.0 ** -60))
    a("s_mov_b32 s48, 0x7f800000")
    a("s_nop 7")
    a("s_nop 0")
    a("v_rcp_f32 v%d, v%d" % (T, OO + 12))
    a("v_cmp_gt_f32 s[50:51], s46, v%d" % (OO + 12))
    a("v_cmp_lt_f32 vcc, s47, v%d" % (OO + 12))
    for k in range(6):
        a("v_add_f32 v%d, abs(v%d), abs(v%d)" % (T + 2 + k, OO + 2 * k, OO + 2 * k + 1))
    a("s_and_b64 s[50:51], s[50:51], vcc")
    a("v_pk_add_f32 %s, %s, %s" % (vr(T + 2, 2), vr(T + 2, 2), vr(T + 4, 2)))
    a("v_pk_add_f32 %s, %s, %s" % (vr(T + 2, 2), vr(T + 2, 2), vr(T + 6, 2)))
    a("v_add_f32 v%d, v%d, v%d" % (T + 2, T + 2, T + 3))
    a("v_cmp_gt_f32 vcc, s48, v%d" % (T + 2))
    a("s_and_b64 s[50:51], s[50:51], vcc")
    a("s_cmp_eq_u64 s[50:51], -1")
    a("s_cbranch_scc0 L_slow")
    a.label("L_fin")
    a("s_cmp_eq_u32 s42, 0")
    a("s_cbranch_scc1 L_fa")
    a("v_mov_b32 v%d, v%d" % (OO + 8, OO + 10))
    a("v_mov_b32 v%d, v%d" % (OO + 9, OO + 11))
    a.label("L_fa")
    for k in range(0, 10, 2):
        a("v_pk_mul_f32 %s, %s, %s op_sel_hi:[1,0]" % (vr(OO + k, 2), vr(OO + k, 2), vr(T, 2)))
    for q in range(5):
        a("v_cvt_pk_bf16_f32 v%d, v%d, v%d" % (T + 4 + q, OO + 2 * q, OO + 2 * q + 1))
    a("buffer_store_dwordx4 %s, v153, s[24:27], s58 offen sc1" % vr(T + 4, 4))
    a("s_mov_b32 exec_hi, 0")
    a("buffer_store_dword v%d, v152, s[24:27], s59 offen sc1" % (T + 8))
    a("s_mov_b32 exec_hi, -1")


def q_reads():
    return ["ds_read_b64 %s, v%d offset:%d" % (vr(QM, 2), vK, QB),
            "ds_read_b64 %s, v%d offset:%d" % (vr(QM + 2, 2), vK, QB + 8),
            "ds_read_b64 %s, v%d offset:%d" % (vr(QT, 2), vKt, QB)]


sKH, sPAIR, sTILE, sGATE, sSLOT, sOB, sXO = 6, 7, 13, 14, 15, 28, 29
A0, vXO, vRW, vCH, vSW, vSR, vL16, vPX, vPF = 156, 142, 140, 141, 143, 144, 162, 160, 161
GB = 154624


def out_setup(a, role):
    a("s_and_b32 s%d, s%d, 1" % (sKH, role))
    a("s_lshr_b32 s%d, s%d, 1" % (sPAIR, role))
    a("s_mul_i32 s%d, s52, 5" % sTILE)
    a("s_and_b32 s33, s%d, 7" % sTILE)
    a("s_sub_u32 s34, 8, s33")
    a("s_cmp_lt_u32 s33, 4")
    a("s_cselect_b32 s34, 0, s34")
    a("s_add_u32 s34, s34, s%d" % sPAIR)
    a("s_sub_u32 s35, s34, 5")
    a("s_cmp_ge_u32 s34, 5")
    a("s_cselect_b32 s34, s35, s34")
    a("s_add_u32 s%d, s%d, s34" % (sTILE, sTILE))
    a("s_lshl_b32 s98, s34, 6")
    a("s_mov_b32 s%d, 0x404" % sGATE)
    a("s_bitcmp1_b32 s%d, 2" % sTILE)
    if not OPT["allg"]:
        a("s_cselect_b32 s%d, s%d, 4" % (sGATE, sGATE))
    a("s_mov_b32 s%d, %d" % (sSLOT, PSLOT[0]))
    for p in range(1, 5):
        a("s_cmp_eq_u32 s%d, %d" % (sPAIR, p))
        a("s_cselect_b32 s%d, %d, s%d" % (sSLOT, PSLOT[p], sSLOT))
    a("s_mul_i32 s%d, s%d, 18432" % (sOB, sTILE))
    a("s_lshl_b32 s33, s53, 7")
    a("s_add_u32 s%d, s%d, s33" % (sXO, sOB))
    a("s_lshl_b32 s33, s%d, 6" % sKH)
    a("s_add_u32 s%d, s%d, s33" % (sXO, sXO))
    a("s_mul_i32 s33, s%d, 9216" % sKH)
    a("s_add_u32 s%d, s%d, s33" % (sOB, sOB))
    a("s_add_u32 s96, s%d, 4096" % sOB)
    a("s_add_u32 s97, s%d, 8192" % sOB)
    a("v_lshrrev_b32 v%d, 2, v0" % vRW)
    a("v_and_b32 v%d, 3, v0" % vCH)
    a("v_mul_u32_u24 v%d, 1152, v%d" % (vXO, vRW))
    a("v_lshl_add_u32 v%d, v%d, 4, v%d" % (vXO, vCH, vXO))
    a("v_lshrrev_b32 v146, 2, v0")
    a("v_bfe_u32 v147, v0, 3, 2")
    a("v_lshlrev_b32 v147, 1, v147")
    a("v_bfe_u32 v148, v0, 1, 1")
    a("v_xor_b32 v147, v147, v148")
    a("v_and_b32 v148, 1, v0")
    a("v_lshlrev_b32 v148, 3, v148")
    a("v_lshl_add_u32 v148, v146, 7, v148")
    a("v_lshl_add_u32 v148, v147, 4, v148")
    a("s_mul_i32 s33, s%d, %d" % (sKH, 9 * 4096))
    a("s_add_u32 s33, s33, %d" % WO)
    a("s_lshl_b32 s34, s%d, 6" % sKH)
    a("v_xor_b32 v148, s34, v148")
    for t in range(4):
        a("v_xor_b32 v%d, %d, v148" % (A0 + t, 32 * t))
        a("v_add_u32 v%d, s33, v%d" % (A0 + t, A0 + t))
    a("v_lshlrev_b32 v%d, 4, v0" % vL16)
    a("s_lshl_b32 s33, s%d, 11" % sKH)
    a("s_add_u32 s%d, s%d, s33" % (sSLOT, sSLOT))
    a("v_add_u32 v%d, s%d, v%d" % (vPX, sSLOT, vL16))
    a("s_lshl_b32 s33, s33, 1")
    a("s_sub_u32 s33, 2048, s33")
    a("v_add_u32 v164, s33, v%d" % vPX)
    a("s_lshl_b32 s33, s%d, 1" % sPAIR)
    a("s_add_u32 s33, s33, s%d" % sKH)
    a("s_lshl_b32 s33, s33, 2")
    a("s_add_u32 s33, s33, %d" % CTL)
    a("v_mov_b32 v%d, s33" % vPF)
    a("v_xor_b32 v165, 4, v%d" % vPF)
    a("v_and_b32 v%d, 15, v0" % vSW)
    a("v_mul_u32_u24 v%d, 80, v%d" % (vSW, vSW))
    a("v_lshrrev_b32 v146, 4, v0")
    a("v_lshlrev_b32 v146, 3, v146")
    a("v_add3_u32 v%d, v%d, v146, s%d" % (vSW, vSW, sSLOT))
    a("v_mul_u32_u24 v%d, 80, v%d" % (vSR, vRW))
    a("v_lshl_add_u32 v%d, v%d, 4, v%d" % (vSR, vCH, vSR))
    a("v_add_u32 v%d, s%d, v%d" % (vSR, sSLOT, vSR))
    a("s_add_u32 s98, s98, %d" % GB)
    a("v_lshl_add_u32 v145, v%d, 2, s98" % vRW)
    a("s_cmp_lt_u32 s3, 4")
    a("s_cselect_b32 s33, 1, 0x100")
    a("v_mov_b32 v163, s33")


def x_loads(a):
    srd(a, 20, 4, 2048 * 1152)
    a("buffer_load_dwordx4 %s, v%d, s[20:23], s%d offen" % (vr(XR, 4), vXO, sXO))


def out_phase(a):
    WFR, OF, ACC, PX = (20, 36, 100), 64, (52, 56, 60, 116), (146, 120)
    a("s_cmp_ge_u32 s52, 26")
    a("s_cbranch_scc1 L_end")
    if not OPT["gissue"]:
        a("s_waitcnt vmcnt(0)")
    stamp(a, 8)
    a("s_mov_b64 exec, 1")
    a("ds_add_u32 v%d, v163 offset:%d" % (vC, C_O))
    a("s_mov_b64 exec, -1")
    a.c("---- output projection and gated mix")
    a.label("L_out")

    def omx():
        for j in range(1):
            for q in range(4):
                xv = XR + 4 * j + q
                d = PX[j] + 2 * q
                a("v_lshlrev_b32 v%d, 16, v%d" % (d, xv))
                a("v_and_b32 v%d, 0xffff0000, v%d" % (d + 1, xv))
                a("v_pk_mul_f32 %s, %s, %s op_sel:[0,1] op_sel_hi:[1,1]" % (vr(d, 2), vr(d, 2), vr(GR + 2 * j, 2)))

    def reads(sl):
        st = WFR[sl % 3]
        return ["ds_read_b64_tr_b16 %s, v%d offset:%d" % (vr(st + 4 * t + 2 * sec, 2), A0 + t, (32 * sl + 16 * sec) * 128)
                for t in range(4) for sec in range(2)]

    lds_spin(a, "L_wo", vC, C_WO, 10, (2,), 0)
    for x in reads(0) + reads(1):
        a(x)
    a("s_mov_b32 s60, 0x200000")
    a.label("L_go2")
    a("ds_read_b64 v[10:11], v%d offset:%d" % (vC, C_O))
    a("s_waitcnt lgkmcnt(0)")
    a("v_readfirstlane_b32 s61, v10")
    a("v_readfirstlane_b32 s62, v11")
    a("s_and_b32 s61, s61, s%d" % sGATE)
    a("s_cmp_eq_u32 s61, s%d" % sGATE)
    a("s_cselect_b32 s62, s62, 0")
    a("s_cmp_eq_u32 s62, 1")
    a("s_cbranch_scc1 L_go2_d")
    a("s_sub_u32 s60, s60, 1")
    a("s_cbranch_scc0 L_go2")
    a.label("L_go2_d")
    if OPT["gissue"] == 2:
        if OPT["cdel"]:
            a("s_cmp_eq_u32 s60, 0x200000")
            a("s_cbranch_scc1 L_go2_e")
            a("s_sleep %d" % OPT["cdel"])
            a.label("L_go2_e")
        a("s_waitcnt vmcnt(0)")
    elif OPT["cdel"]:
        a("s_sleep %d" % OPT["cdel"])
    stamp(a, 9)
    LAO = OPT["lao"]

    def oload(s):
        a("buffer_load_dwordx4 %s, v%d, s[24:27], s%d offen offset:%d sc1" % (vr(OF + 4 * s, 4), vL16, (sOB, 96, 97)[s // 4], 1024 * (s % 4)))

    def ocheck(sl):
        b = OF + 4 * sl
        if sl < 7:
            a("v_cmp_eq_u32 vcc, -1, v%d" % b)
        else:
            a("v_max3_u32 v10, v%d, v%d, v%d" % (b, b + 1, b + 2))
            a("v_max_u32 v10, v10, v%d" % (b + 3))
            a("v_cmp_eq_u32 vcc, -1, v10")
        a("s_nop 1")

    def oretry():
        for sl in range(9):
            a.label("L_or%d" % sl)
            a("s_sub_u32 s60, s60, 1")
            a("s_cbranch_scc1 L_ok%d" % sl)
            a("s_waitcnt vmcnt(0)")
            for s in range(sl, min(sl + LAO, 9)):
                oload(s)
            a("s_waitcnt vmcnt(%d)" % min(LAO - 1, 8 - sl))
            a("s_branch L_oc%d" % sl)

    RETRY.append(oretry)
    a("s_mov_b32 s60, 0x8000")
    for s in range(LAO):
        oload(s)
    a("ds_read_b32 v%d, v145" % GR)
    a("ds_read_b32 v10, v%d offset:%d" % (vC, C_IDX))
    srd(a, 20, 10, 2048 * 1152)
    a("s_waitcnt lgkmcnt(0) vmcnt(%d)" % LAO)
    a("v_readfirstlane_b32 s12, v10")
    a("v_sub_f32 v%d, 1.0, v%d" % (GR + 1, GR))
    bf16_round(a, GR + 1, GR + 1)
    omx()
    for sl in range(9):
        rd = reads(sl + 2) if sl < 7 else []
        a("s_waitcnt vmcnt(%d) lgkmcnt(%d)" % (min(LAO - 1, 8 - sl), 8 if sl < 8 else 0))
        a.label("L_oc%d" % sl)
        ocheck(sl)
        a("s_cbranch_vccnz L_or%d" % sl)
        a.label("L_ok%d" % sl)
        for t in range(4):
            d = vr(ACC[t], 4)
            a("v_mfma_f32_16x16x32_bf16 %s, %s, %s, %s" % (d, vr(WFR[sl % 3] + 4 * t, 4), vr(OF + 4 * sl, 4), "0" if sl == 0 else d))
            if t == 0 and sl + LAO < 9:
                oload(sl + LAO)
            for x in rd[2 * t:2 * t + 2]:
                a(x)
    stamp(a, 10)
    if OPT["stamp"]:
        if OPT["xcc"]:
            a("s_getreg_b32 s60, hwreg(HW_REG_XCC_ID, 0, 4)")
            a("s_sub_u32 s60, 0x8000, s60")
        a("s_sub_u32 s94, 0x8000, s60")
        a("s_mul_i32 s94, s94, 100")
        a("s_add_u32 s94, s94, s66")
        a("s_addc_u32 s95, s67, 0")
    a("v_mov_b32 v10, 1")
    a("ds_write_b128 v164, %s" % vr(ACC[2], 4))
    a("ds_write_b128 v164, %s offset:1024" % vr(ACC[3], 4))
    a("ds_write_b32 v165, v10 offset:%d" % C_PART)
    a("s_lshr_b32 s46, s12, 4")
    a("s_cmp_eq_u32 s46, s%d" % sTILE)
    a("s_cbranch_scc0 L_noy")
    lds_spin(a, "L_yw", vC, C_YRDY, 10, (1,))
    a("s_lshl_b32 s46, s%d, 7" % sKH)
    a("s_add_u32 s46, s46, %d" % YB)
    a("v_lshl_add_u32 v10, v%d, 5, s46" % vCH)
    a("ds_read_b128 v[12:15], v10")
    a("ds_read_b128 v[16:19], v10 offset:16")
    a("s_and_b32 s46, s12, 15")
    a("v_cmp_eq_u32 s[50:51], s46, v%d" % vRW)
    a("s_waitcnt lgkmcnt(0)")
    for q in range(4):
        xv = XR + q
        a("v_lshlrev_b32 v10, 16, v%d" % xv)
        a("v_and_b32 v11, 0xffff0000, v%d" % xv)
        a("v_add_f32 v10, v10, v%d" % (12 + 2 * q))
        a("v_add_f32 v11, v11, v%d" % (13 + 2 * q))
        a("v_cvt_pk_bf16_f32 v10, v10, v11")
        a("v_cndmask_b32 v%d, v%d, v10, s[50:51]" % (xv, xv))
    omx()
    a.label("L_noy")
    lds_spin(a, "L_pw", vPF, C_PART, 10, (1,), 0)
    stamp(a, 11)
    for t in range(2):
        a("ds_read_b128 %s, v%d offset:%d" % (vr(20 + 4 * t, 4), vPX, 1024 * t))
    a("s_waitcnt lgkmcnt(0)")
    for t in range(2):
        b = ACC[t]
        a("v_pk_add_f32 %s, %s, %s" % (vr(b, 2), vr(b, 2), vr(20 + 4 * t, 2)))
        a("v_pk_add_f32 %s, %s, %s" % (vr(b + 2, 2), vr(b + 2, 2), vr(22 + 4 * t, 2)))
        a("v_cvt_pk_bf16_f32 v%d, v%d, v%d" % (40 + 2 * t, b, b + 1))
        a("v_cvt_pk_bf16_f32 v%d, v%d, v%d" % (41 + 2 * t, b + 2, b + 3))
        a("ds_write_b64 v%d, %s offset:%d" % (vSW, vr(40 + 2 * t, 2), 32 * t))
    a("ds_read_b128 v[20:23], v%d" % vSR)
    a("s_waitcnt lgkmcnt(0)")
    for q in range(4):
        d = PX[0] + 2 * q
        a("v_lshlrev_b32 v%d, 16, v%d" % (10 + 2 * q, 20 + q))
        a("v_and_b32 v%d, 0xffff0000, v%d" % (11 + 2 * q, 20 + q))
        a("v_pk_fma_f32 %s, %s, %s, %s op_sel_hi:[1,0,1]" % (vr(d, 2), vr(10 + 2 * q, 2), vr(GR, 2), vr(d, 2)))
    for q in range(4):
        d = PX[0] + 2 * q
        a("v_cvt_pk_bf16_f32 v%d, v%d, v%d" % (32 + q, d, d + 1))
    a("buffer_store_dwordx4 v[32:35], v%d, s[20:23], s%d offen %s" % (vXO, sXO, OPT["ost"]))
    if OPT["stamp"]:
        stamp(a, 12)
        a("s_waitcnt vmcnt(0)")
        stamp(a, 13)
        stamp_end(a, OPT["stw"], 0)
        stamp_end(a, 10, 2)
    a("s_endpgm")


RETRY = []
GLATE = []


def late_and_slow(a):
    RETRY[0]()
    a.c("---- first two query blocks: key tiles before the sequence start are skipped")
    a.label("L_late")
    a("s_mul_i32 s50, s41, 2304")
    a("v_add_u32 v%d, s50, v%d" % (T + 8, vK))
    a("v_add_u32 v%d, s50, v%d" % (T + 9, vKt))
    a("v_mul_u32_u24 v%d, s41, v%d" % (T + 2, vStep))
    a("v_add_u32 v%d, v%d, v%d" % (vV, vV, T + 2))
    for r in list(range(OO, OO + 16)) + list(range(VF[0], VF[0] + 32)):
        a("v_mov_b32 v%d, 0" % r)
    landed(a, 1, 0)
    stage_spin(a, "L_lt", 0)
    for x in q_reads():
        a(x)
    a("s_waitcnt lgkmcnt(0)")
    lds_inc(a, vC, T, C_B)
    x_loads(a)
    a("s_bitcmp1_b32 s41, 0")
    a("s_cbranch_scc1 L_late1")
    for par in range(2):
        if par:
            a.label("L_late1")
        for x in k_reads(par, T + 8, T + 9, 0):
            a(x)
        for x in k_reads(par + 1, T + 8, T + 9, 0):
            a(x.replace("offset:8", "offset:2312").replace("offset:0", "offset:2304"))
        for x in v_reads(par):
            a(x)
        a("s_waitcnt lgkmcnt(7)")
        a("v_cndmask_b32 v%d, 0, v%d, s[54:55]" % (QT, QT))
        a("v_cndmask_b32 v%d, 0, v%d, s[56:57]" % (QT + 1, QT + 1))
        for x in qk(par):
            a(x)
        a("s_nop 7")
        a("s_nop 3")
        for i0 in range(2 - par, 9, 2):
            a("s_cmp_eq_u32 s41, %d" % i0)
            a("s_cbranch_scc1 L_it%d" % i0)
        a("s_branch L_it%d" % (8 - par))

    a.c("---- two passes over the key tiles with the true row maximum")
    a.label("L_slow")
    vKs, vKts, vM, vD0, vNeg = T + 8, T + 9, T + 10, T + 11, T + 12
    a("v_and_b32 v%d, 31, v0" % T)
    a("v_lshrrev_b32 v%d, 5, v0" % (T + 1))
    a("v_lshlrev_b32 v%d, 2, v%d" % (vD0, T + 1))
    a("v_sub_u32 v%d, v%d, v%d" % (vD0, vD0, T))
    a("v_mov_b32 v%d, 0xff800000" % vNeg)
    a("v_mov_b32 v%d, v%d" % (vM, vNeg))
    a("s_max_i32 s50, s41, 0")
    a("s_sub_u32 s51, 8, s50")
    a("v_mul_u32_u24 v%d, s51, v%d" % (T, vStep))
    a("v_sub_u32 v%d, v%d, v%d" % (vV, vV, T))
    a("s_mul_i32 s51, s50, 2304")
    for r in range(16):
        a("v_mov_b32 v%d, 0" % (OO + r))
    for ps in range(2):
        lab = "L_sp%d" % ps
        a("v_add_u32 v%d, s51, v%d" % (vKs, vK))
        a("v_add_u32 v%d, s51, v%d" % (vKts, vKt))
        a("s_mov_b32 s46, s50")
        a.label(lab)
        for x in k_reads(0, vKs, vKts):
            a(x)
        if ps == 1:
            for x in v_reads(0):
                a(x)
        a("s_mov_b32 s47, -31")
        a("s_mov_b32 s48, 62")
        a("s_cmp_eq_u32 s46, 0")
        a("s_cselect_b32 s47, 1, s47")
        a("s_cselect_b32 s48, 30, s48")
        a("s_cmp_eq_u32 s46, 8")
        a("s_cselect_b32 s48, 31, s48")
        a("s_waitcnt lgkmcnt(0)")
        for x in qk(0):
            a(x)
        a("v_subrev_u32 v%d, s47, v%d" % (T, vD0))
        for r in range(16):
            a("v_add_u32 v%d, %d, v%d" % (T + 1, 8 * (r >> 2) + (r & 3), T))
            a("v_cmp_ge_u32 vcc, s48, v%d" % (T + 1))
            a("v_cndmask_b32 v%d, v%d, v%d, vcc" % (SS[0] + r, vNeg, SS[0] + r))
            if ps == 0:
                a("v_max_f32 v%d, v%d, v%d" % (vM, vM, SS[0] + r))
            else:
                a("v_sub_f32 v%d, v%d, v%d" % (SS[0] + r, SS[0] + r, vM))
                a("v_exp_f32 v%d, v%d" % (SS[0] + r, SS[0] + r))
        if ps == 1:
            for q in range(8):
                a("v_cvt_pk_bf16_f32 v%d, v%d, v%d" % (PP[0] + q, SS[0] + 2 * q, SS[0] + 2 * q + 1))
            for x in pv(0, False):
                a(x)
            a("v_add_u32 v%d, v%d, v%d" % (vV, vV, vStep))
        a("v_add_u32 v%d, 2304, v%d" % (vKs, vKs))
        a("v_add_u32 v%d, 2304, v%d" % (vKts, vKts))
        a("s_add_u32 s46, s46, 1")
        a("s_cmp_lt_u32 s46, 9")
        a("s_nop 7")
        a("s_nop 7")
        a("s_cbranch_scc1 %s" % lab)
        if ps == 0:
            a("v_mov_b32 v%d, v%d" % (T, vM))
            a("v_permlane32_swap_b32 v%d, v%d" % (T, vM))
            a("v_max_f32 v%d, v%d, v%d" % (vM, vM, T))
    a("v_rcp_f32 v%d, v%d" % (T, OO + 12))
    a("s_nop 1")
    a("s_branch L_fin")


def helpers(a):
    a.c("---- helper waves")
    a.label("L_help")
    a("s_cmp_eq_u32 s3, 9")
    a("s_cbranch_scc0 L_help1")
    code_touch(a)
    a.label("L_help1")
    a("v_mov_b32 v3, %d" % CTL)
    for k in range(4):
        a("v_mov_b32 v%d, 0" % (4 + k))
    a("v_lshlrev_b32 v1, 4, v0")
    a("v_add_u32 v2, v1, v3")
    a("s_mov_b64 exec, 0xff")
    a("ds_write_b128 v2, v[4:7]")
    a("s_mov_b64 exec, -1")
    a("s_waitcnt lgkmcnt(0)")
    load_tag(a)
    a("s_barrier")
    a("s_barrier")
    a("s_waitcnt lgkmcnt(0)")
    make_tag(a)
    a.label("L_help2")
    decode2(a)
    a("s_cmp_eq_u32 s3, 8")
    a("s_cbranch_scc1 L_down")
    a("v_lshrrev_b32 v1, 5, v0")
    a("v_bfe_u32 v2, v0, 3, 2")
    a("v_lshrrev_b32 v10, 4, v0")
    a("v_lshlrev_b32 v10, 1, v10")
    a("v_and_b32 v11, 7, v0")
    a("v_xor_b32 v10, v10, v11")
    a("v_lshl_add_u32 v4, v1, 2, v2")
    a("v_mul_u32_u24 v4, 1152, v4")
    a("v_lshl_add_u32 v4, v10, 4, v4")
    a("v_mul_u32_u24 v5, 72, v1")
    a("v_add_u32 v5, v5, v2")
    a("v_mul_u32_u24 v5, 1152, v5")
    a("v_lshl_add_u32 v5, v10, 4, v5")
    a("s_sub_u32 s36, s3, 9")
    a("s_mul_i32 s37, s36, %d" % (20 * 1152))
    a("s_mul_i32 s43, s36, %d" % (144 * 1152))
    a("s_lshl_b32 s38, s36, 10")
    a("s_add_u32 s38, s38, %d" % WO)
    a("s_lshl_b32 s39, s53, 7")
    a("s_sub_u32 s42, %d, s39" % (576 * 1152))
    srd_off(a, 16, 28, "s39", "s42")
    srd_off(a, 24, 8, L.WS_O, 128 * 18432)
    a("v_mov_b32 v%d, %d" % (vC, CTL))
    a("s_sub_u32 s40, s3, 5")
    out_setup(a, 40)
    a("s_setprio %d" % OPT["pr3"])
    a("s_cmp_ge_u32 s2, 192")
    a("s_cbranch_scc1 L_wo_go")
    for k in range(9):
        a("s_barrier")
    a.label("L_wo_go")
    a("s_cmp_eq_u32 s3, 11")
    a("s_cbranch_scc1 L_ctl")
    a("s_cmp_ge_u32 s52, 26")
    a("s_cbranch_scc1 L_end")
    if OPT["woe"]:
        a("s_cmp_ge_u32 s2, 192")
        a("s_cbranch_scc1 L_wo_e_d")
        lds_spin(a, "L_wo_e", 3, C_FI, 10, (8,), 0)
    stamp(a, 5)
    for m in range(36):
        if m == OPT["woe"]:
            stage_spin(a, "L_wo_w", 0, 3, 10, 2)
        st, sec = m >> 1, m & 1
        a("s_add_u32 m0, s38, %d" % (2048 * m))
        if st < 16:
            a("s_add_u32 s40, s37, %d" % ((36 * st + 8 * sec) * 1152))
            a("buffer_load_dwordx4 v4, s[16:19], s40 offen lds")
        else:
            a("s_add_u32 s40, s43, %d" % ((288 * (st - 16) + 36 * sec + 16) * 1152))
            a("buffer_load_dwordx4 v5, s[16:19], s40 offen lds")
        if OPT["wth"] and m >= OPT["wth"] - 1:
            a("s_waitcnt vmcnt(%d)" % (OPT["wth"] - 1))
    x_loads(a)
    a("s_waitcnt vmcnt(1)")
    stamp(a, 6)
    lds_inc(a, 3, 4, C_WO)
    a("s_setprio 0")
    a("s_branch L_out")
    a.c("---- wave 11: flags, all-ones fill, routed update")
    a.label("L_ctl")
    a("v_lshlrev_b32 v8, 7, v0")
    a("v_add_u32 v9, %d, v8" % (L.WS_FLAG + F_PA * 128))
    a("s_mul_i32 s46, s52, 5")
    a("s_lshr_b32 s46, s46, 3")
    a("s_min_u32 s46, s46, 14")
    a("s_lshl_b32 s46, s46, 11")
    a("s_add_u32 s46, s46, %d" % (L.WS_FLAG + F_O * 128))
    a("v_add_u32 v8, s46, v8")
    a("s_lshl_b32 s46, s32, 4")
    a("s_add_u32 s46, s46, s31")
    a("s_lshl_b32 s46, s46, 7")
    a("s_add_u32 s46, s46, %d" % (L.WS_FLAG + F_O * 128))
    a("v_mov_b32 v14, s46")
    a("v_mov_b32 v15, s%d" % TAG)
    a("s_cmp_ge_u32 s2, 192")
    a("s_cbranch_scc1 L_ct_0")
    qpoll(a, 3, "L_qp1", True)
    a.label("L_ct_0")
    AUXLATE = OPT["auxp"]
    def aux():
        flag_poll(a, "L_pap", 9, 4, "s%d" % TAG, 64, 8, 3)
        a("v_mov_b32 v10, v5")
        a("v_mov_b32 v11, v6")
        a("v_mov_b32 v4, 1")
        a("ds_write_b64 v3, v[10:11] offset:%d" % C_IDX)
        a("ds_write_b32 v3, v4 offset:%d" % C_PA)
        srd_off(a, 16, 8, L.WS_G, 8192)
        a("s_mul_i32 s40, s52, 320")
        a("v_lshlrev_b32 v4, 2, v0")
        a("buffer_load_dword v5, v4, s[16:19], s40 offen sc1")
        a("buffer_load_dword v6, v4, s[16:19], s40 offen offset:256 sc1")
        a("v_add_u32 v4, %d, v4" % GB)
        GLATE.append(1)
        stamp(a, 5)

    if not AUXLATE:
        aux()
    a("v_bfe_u32 v20, v0, 4, 1")
    a("v_mul_u32_u24 v20, 18432, v20")
    a("v_and_b32 v21, 15, v0")
    a("v_lshl_add_u32 v20, v21, 4, v20")
    a("v_lshrrev_b32 v21, 5, v0")
    a("v_lshl_add_u32 v22, v21, 2, v20")
    a("v_lshl_add_u32 v21, v21, 8, v20")
    for k in range(4):
        a("v_mov_b32 v%d, -1" % (24 + k))
    a("s_mul_i32 s54, s32, %d" % (8 * 18432))
    a("s_lshl_b32 s55, s31, 10")
    a("s_add_u32 s55, s55, s54")
    a("s_lshr_b32 s56, s31, 1")
    a("s_lshl_b32 s56, s56, 8")
    a("s_and_b32 s57, s31, 1")
    a("s_lshl_b32 s57, s57, 3")
    a("s_add_u32 s56, s56, s57")
    a("s_add_u32 s56, s56, s54")
    a("s_add_u32 s56, s56, 16384")
    if OPT["pearly"]:
        lds_spin(a, "L_ct_p", 3, C_1, 10, (8, 1), 0)
        a("s_sleep %d" % OPT["pearly"])
    else:
        stage_spin(a, "L_ct_p", 0, 3, 10, 0)
    for j in range(4):
        a("buffer_store_dword v24, v22, s[24:27], s56 offen sc1")
        a("buffer_store_dwordx4 v[24:27], v21, s[24:27], s55 offen sc1")
        a("buffer_store_dwordx4 v[24:27], v21, s[24:27], s55 offen offset:512 sc1")
        a("s_add_u32 s55, s55, %d" % (2 * 18432))
        a("s_add_u32 s56, s56, %d" % (2 * 18432))
    a("v_mov_b32 v4, 1")
    a("s_waitcnt vmcnt(0)")
    a("ds_write_b32 v3, v4 offset:%d" % C_C)
    a("s_mov_b64 exec, 1")
    a("global_store_dword v14, v15, s[8:9] sc1")
    a("s_mov_b64 exec, -1")
    stamp(a, 6)
    lds_spin(a, "L_ct_q", 3, C_B, 10, (8,), 1)
    if AUXLATE:
        aux()
    else:
        a("s_sleep %d" % OPT["slp3"])
    flag_poll(a, "L_op", 8, 12, "s%d" % TAG, 32, 2)
    a("ds_write_b32 v4, v5")
    a("ds_write_b32 v4, v6 offset:256")
    lds_inc(a, 3, 10, C_GO2)
    stamp(a, 7)
    stamp_end(a, 11 if OPT["st11"] else 99, 3)
    a("ds_read_b64 v[10:11], v3 offset:%d" % C_IDX)
    a("s_waitcnt lgkmcnt(0)")
    a("v_readfirstlane_b32 s12, v10")
    a("v_readfirstlane_b32 s13, v11")
    a("s_mul_i32 s46, s52, 80")
    a("s_sub_u32 s46, s12, s46")
    a("s_cmp_lt_u32 s46, 80")
    a("s_cbranch_scc0 L_end")
    a("v_lshlrev_b32 v4, 7, v0")
    a("v_add_u32 v4, %d, v4" % (L.WS_FLAG + F_Y * 128))
    srd_off(a, 16, 8, L.WS_YP, 16 * 2304)
    a("v_lshrrev_b32 v6, 4, v0")
    a("v_mul_u32_u24 v6, 2304, v6")
    a("v_and_b32 v7, 15, v0")
    a("v_lshlrev_b32 v7, 4, v7")
    a("v_add_u32 v6, v6, v7")
    a("v_add_u32 v7, %d, v7" % YB)
    a("s_lshl_b32 s40, s53, 8")
    flag_poll(a, "L_yp", 4, 5, "12", 16, 2)
    for i in range(4):
        a("buffer_load_dwordx4 %s, v6, s[16:19], s40 offen sc1" % vr(8 + 4 * i, 4))
        a("s_add_u32 s40, s40, %d" % (4 * 2304))
    a("s_waitcnt vmcnt(0)")
    for i in range(1, 4):
        a("v_pk_add_f32 v[8:9], v[8:9], %s" % vr(8 + 4 * i, 2))
        a("v_pk_add_f32 v[10:11], v[10:11], %s" % vr(10 + 4 * i, 2))
    for k in range(4):
        a("v_mov_b32 v20, v%d" % (8 + k))
        a("v_permlane32_swap_b32 v20, v%d" % (8 + k))
        a("v_add_f32 v%d, v%d, v20" % (8 + k, 8 + k))
        a("v_mov_b32 v20, v%d" % (8 + k))
        a("v_permlane16_swap_b32 v20, v%d" % (8 + k))
        a("v_add_f32 v%d, v%d, v20" % (8 + k, 8 + k))
        bf16_round(a, 8 + k, 8 + k)
        a("v_mul_f32 v%d, s13, v%d" % (8 + k, 8 + k))
        bf16_round(a, 8 + k, 8 + k)
    a("v_mov_b32 v12, 1")
    a("ds_write_b128 v7, v[8:11]")
    a("ds_write_b32 v3, v12 offset:%d" % C_YRDY)
    a("s_cmp_eq_u32 s53, 0")
    a("s_cbranch_scc0 L_end")
    a("v_mov_b32 v4, %d" % L.WS_EPOCH)
    a("v_mov_b32 v5, s%d" % TAG)
    a("s_mov_b64 exec, 1")
    a("global_store_dword v4, v5, s[8:9]")
    a("s_endpgm")

    a.c("---- wave 8: down projection")
    a.label("L_down")
    a("s_cmp_ge_u32 s2, 192")
    a("s_cbranch_scc1 L_end")
    DW, DA = 20, 128
    a("v_lshrrev_b32 v2, 3, v0")
    a("v_and_b32 v10, 7, v0")
    a("v_mul_u32_u24 v16, 1152, v2")
    a("v_lshl_add_u32 v16, v10, 4, v16")
    a("s_mul_i32 s36, s2, 24")
    a("v_mul_u32_u24 v12, %d, v10" % (4608 * 16))
    a("v_add_u32 v11, s36, v2")
    a("v_lshl_add_u32 v17, v11, 4, v12")
    a("v_cmp_gt_u32 s[56:57], 7, v10")
    a("s_mul_i32 s37, s2, %d" % (24 * 1152))
    a("v_and_b32 v1, 1, v0")
    a("v_lshlrev_b32 v1, 4, v1")
    sel_masks(a, 44, 11)
    a("v_lshrrev_b32 v11, 5, v0")
    a("v_bfe_u32 v12, v0, 3, 1")
    a("v_cmp_eq_u32 s[52:53], v11, v12")
    a("v_mul_u32_u24 v12, 2304, v12")
    a("v_bfe_u32 v11, v0, 4, 1")
    a("v_lshl_add_u32 v12, v11, 4, v12")
    a("v_lshl_add_u32 v12, v10, 5, v12")
    a("v_add_u32 v164, %d, v12" % HP)
    a("v_lshlrev_b32 v165, 2, v0")
    a("v_lshl_add_u32 v166, v10, 3, v2")
    a("v_lshlrev_b32 v166, 2, v166")
    a("v_add_u32 v166, %d, v166" % HP)
    a("v_cmp_eq_u32 s[58:59], 1, v10")
    a("v_cmp_eq_u32 s[54:55], 2, v10")
    a("s_and_b32 s38, s2, 15")
    a("s_mul_i32 s39, s38, 2304")
    a("s_add_u32 s39, s39, %d" % L.WS_YP)
    a("v_add_u32 v165, s39, v165")
    a("s_lshl_b32 s38, s38, 7")
    a("s_add_u32 s38, s38, %d" % (L.WS_FLAG + F_Y * 128))
    srd_off(a, 16, 14, "s37", 24 * 1152)
    srd_off(a, 20, 8, L.WS_PA, 7 * 4608 * 16)
    def dloads(ts=(0, 1, 2)):
        for t in (() if OPT["nodown"] else ts):
            a("s_movk_i32 s40, %d" % (9216 * t))
            for cg in range(9):
                a("buffer_load_dwordx4 %s, v16, s[16:19], s40 offen offset:%d %s" % (vr(DW + 4 * (9 * t + cg), 4), 128 * cg, "" if OPT["dtouch"] else "nt"))

    for k in range(2, 11):
        if OPT["dsplit"] == 2:
            if k == 8:
                dloads((0,))
            if k == 9:
                dloads((1, 2))
        elif OPT["dsplit"] == 3:
            if k == 7:
                dloads((0,))
            if k == 9:
                dloads((1, 2))
        elif OPT["dsplit"]:
            if k in (8, 9, 10):
                dloads((k - 8,))
        elif k == OPT["dpos"]:
            dloads()
        a("s_barrier")
    if OPT["dpos"] == -1:
        a("s_setprio 3")
        stage_spin(a, "L_dn_w2", 0, 3, 10, 0)
        dloads()
    elif OPT["dpos"] == -2:
        a("s_setprio 3")
        lds_spin(a, "L_dn_w2", 3, C_WO, 10, (2,), 2)
        dloads()
    elif OPT["dpos"] == -3:
        a("s_setprio 3")
        lds_spin(a, "L_dn_w2", 3, C_1, 10, (8, 1), 0)
        a("s_sleep 8")
        dloads()
    elif OPT["w8e"] == 2:
        lds_spin(a, "L_dn_w2", 3, C_1, 10, (8, 1), 2)
        a("s_sleep 6")
    elif OPT["w8e"]:
        lds_spin(a, "L_dn_w2", 3, C_1, 10, (8,), 2)
    else:
        stage_spin(a, "L_dn_w2", 0, 3, 10, 2)
    stamp(a, 5)
    a("s_setprio %d" % OPT["pr1"])
    a("s_mov_b32 s60, 0x40000")
    a.label("L_dn_pa")
    a("buffer_load_dwordx3 v[4:6], v17, s[20:23], 0 offen sc1")
    a("buffer_load_dwordx3 v[8:10], v17, s[20:23], 0 offen offset:128 sc1")
    a("buffer_load_dwordx3 v[160:162], v17, s[20:23], 0 offen offset:256 sc1")
    a("s_waitcnt vmcnt(0)")
    a("v_cmp_ne_u32 vcc, s%d, v6" % TAG)
    a("v_cmp_ne_u32 s[40:41], s%d, v10" % TAG)
    a("v_cmp_ne_u32 s[42:43], s%d, v162" % TAG)
    a("s_or_b64 vcc, vcc, s[40:41]")
    a("s_or_b64 vcc, vcc, s[42:43]")
    a("s_and_b64 vcc, vcc, s[56:57]")
    a("s_cmp_eq_u64 vcc, 0")
    a("s_cbranch_scc1 L_dn_pb")
    a("s_sleep 8")
    a("s_sub_u32 s60, s60, 1")
    a("s_cbranch_scc0 L_dn_pa")
    a.label("L_dn_pb")
    stamp(a, 8)
    a("v_mov_b32 v6, v8")
    a("v_mov_b32 v7, v9")
    a("v_mov_b32 v8, v160")
    a("v_mov_b32 v9, v161")
    sum8(a, (4, 5, 6, 7, 8, 9))
    a("v_cndmask_b32 v4, v4, v6, s[58:59]")
    a("v_cndmask_b32 v5, v5, v7, s[58:59]")
    a("v_cndmask_b32 v4, v4, v8, s[54:55]")
    a("v_cndmask_b32 v5, v5, v9, s[54:55]")
    bf16_round(a, 4, 4)
    bf16_round(a, 5, 5)
    sigmoid(a, 10, 4)
    a("v_mul_f32 v4, v4, v10")
    bf16_round(a, 4, 4)
    a("v_mul_f32 v4, v4, v5")
    a("v_cvt_pk_bf16_f32 v4, v4, v4")
    a("v_and_b32 v4, 0xffff, v4")
    a("v_mov_b32_dpp v4, v4 row_shr:4 row_mask:0xf bank_mask:0xa")
    for t in range(3):
        a("v_mov_b32_dpp v%d, v4 quad_perm:[%d,%d,%d,%d] row_mask:0xf bank_mask:0xf" % (6 + t, t, t, t, t))
    for t in range(3):
        a("v_lshlrev_b32 v%d, v1, v%d" % (6 + t, 6 + t))
    for t in range(3):
        selector(a, 12, 6 + t, 44)
        for cg in range(9):
            d = vr(DA + 4 * cg, 4)
            a("v_mfma_f32_16x16x32_bf16 %s, %s, v[12:15], %s" % (d, vr(DW + 4 * (9 * t + cg), 4), "0" if t == 0 else d))
    a("s_mov_b64 exec, s[52:53]")
    for cg in range(9):
        a("ds_write_b128 v164, %s offset:%d" % (vr(DA + 4 * cg, 4), 256 * cg))
    a("s_mov_b64 exec, -1")
    for cg in range(9):
        a("ds_read2st64_b32 %s, v166 offset0:%d offset1:%d" % (vr(20 + 2 * cg, 2), cg, cg + 9))
    if OPT["atw"]:
        lds_spin(a, "L_dn_at", 3, C_WO, 10, (2,), 2)
    else:
        stage_spin(a, "L_dn_at", 0, 3, 10, 2)
    lds_spin(a, "L_dn_ax", 3, C_PA, 10, (1,), 1)
    for cg in range(9):
        a("v_add_f32 v%d, v%d, v%d" % (20 + 2 * cg, 20 + 2 * cg, 21 + 2 * cg))
        if not OPT["noat"]:
            a("global_atomic_add_f32 v165, v%d, s[8:9] offset:%d" % (20 + 2 * cg, 256 * cg))
    a("v_mov_b32 v4, s38")
    a("v_mov_b32 v5, 1")
    a("s_waitcnt vmcnt(0)")
    stamp(a, 7)
    a("s_mov_b64 exec, 1")
    a("global_atomic_add v4, v5, s[8:9] sc1")
    stamp_end(a, 8, 1)


def kf(a):
    a.label(NAME)
    a("s_cmp_ge_u32 s2, 256")
    a("s_cbranch_scc1 L_end")
    stamp_init(a)
    stamp(a, 0)
    a("s_load_dwordx4 s[4:7], s[0:1], 0")
    a("s_load_dwordx2 s[8:9], s[0:1], 88")
    a("s_load_dwordx2 s[10:11], s[0:1], 72")
    a("s_load_dwordx2 s[14:15], s[0:1], 56")
    a("s_load_dwordx2 s[28:29], s[0:1], 16")
    a("v_lshrrev_b32 v1, 6, v0")
    a("v_and_b32 v0, 63, v0")
    a("v_readfirstlane_b32 s3, v1")
    a("s_and_b32 s30, s2, 3")
    a("s_bfe_u32 s31, s2, 0x10002")
    a("s_lshr_b32 s32, s2, 3")
    a("s_cmp_ge_u32 s32, 24")
    a("s_cbranch_scc1 L_sp")
    a("s_cmp_ge_u32 s3, 8")
    a("s_cbranch_scc1 L_help")
    gemm_phase(a)
    attention_phase(a)
    out_phase(a)
    late_and_slow(a)
    spare_phase(a)
    helpers(a)
    a.label("L_end")
    a("s_endpgm")
```
